```python
import torch

def _softmax(x, axis=-1):
    return torch.softmax(x, dim=axis)
def _gelu(x):
    return torch.nn.functional.gelu(x, approximate="tanh")
def _silu(x):
    return torch.nn.functional.silu(x)
def _sigmoid(x):
    return torch.sigmoid(x)
def _layernorm(x, axis=-1, eps=1e-5):
    m = x.mean(dim=axis, keepdim=True)
    v = x.var(dim=axis, keepdim=True, unbiased=False)
    return (x - m) / torch.sqrt(v + eps)
def _scatter_add(tgt, idx, src, axis=0):
    return tgt.clone().index_add_(axis, idx, src)
def _segment_sum(src, seg, n):
    out = torch.zeros((n,) + src.shape[1:], dtype=src.dtype)
    return out.index_add_(0, seg, src)
def _pad(x, pw):
    flat = tuple(v for pair in reversed(pw) for v in pair)
    return torch.nn.functional.pad(x, flat)

kernel_name = 'interleave_layers__linear_kernel_hedgehog__geglu_ffn__prompt'

def setup_inputs():

    _w = (lambda a: (lambda t: t.to(torch.bfloat16) if t.is_floating_point() else t)(torch.as_tensor(a)))
    def _A_setup():
        B, S, D, H = 1, 2048, 640, 32
        Dh = D // H
        return {
            "x": _w((lambda *s: torch.randn(*s, dtype=torch.bfloat16) * 0.05)(B, S, D)),
            "wqkv": _w((lambda *s: torch.randn(*s, dtype=torch.bfloat16) * 0.2)(D, 3 * D)),
            "w_phi": _w((lambda *s: torch.randn(*s, dtype=torch.bfloat16) * 0.2)(H, Dh, Dh) * (Dh ** -0.5)),
            "wo": _w((lambda *s: torch.randn(*s, dtype=torch.bfloat16) * 0.05)(D, D)),
        }
    _A_in = _A_setup()

    def _B_setup():
        B, S, D, F = 1, 2048, 640, 1536
        return {
            "x": _w((lambda *s: torch.randn(*s, dtype=torch.bfloat16) * 0.05)(B, S, D)),
            "w_gate": _w((lambda *s: torch.randn(*s, dtype=torch.bfloat16) * 0.05)(D, F)),
            "w_up": _w((lambda *s: torch.randn(*s, dtype=torch.bfloat16) * 0.05)(D, F)),
            "w_down": _w((lambda *s: torch.randn(*s, dtype=torch.bfloat16) * 0.05)(F, D)),
        }
    _B_in = _B_setup()

    return {
        "A_x": _A_in["x"],
        "A_wqkv": _A_in["wqkv"],
        "A_w_phi": _A_in["w_phi"],
        "A_wo": _A_in["wo"],
        "B_x": _B_in["x"],
        "B_w_gate": _B_in["w_gate"],
        "B_w_up": _B_in["w_up"],
        "B_w_down": _B_in["w_down"],
    }

def reference(A_x, A_wqkv, A_w_phi, A_wo, B_x, B_w_gate, B_w_up, B_w_down):
    def _A_ref(x, wqkv, w_phi, wo):
        B, S, D = x.shape
        H = 32; Dh = D // H
        qkv = (lambda x, *d: x.permute(*d))((x @ wqkv).reshape(B, S, 3, H, Dh), 2, 0, 3, 1, 4)
        q, k, v = qkv[0], qkv[1], qkv[2]
        pq = torch.einsum("bhsd,hdf->bhsf", q, w_phi)
        pk = torch.einsum("bhsd,hdf->bhsf", k, w_phi)
        phi_q = torch.concatenate([_softmax(pq, axis=-1), _softmax(-pq, axis=-1)], axis=-1)
        phi_k = torch.concatenate([_softmax(pk, axis=-1), _softmax(-pk, axis=-1)], axis=-1)
        kv = torch.einsum("bhsf,bhsd->bhfd", phi_k, v)
        z  = torch.einsum("bhsf->bhf", phi_k)
        num = torch.einsum("bhqf,bhfd->bhqd", phi_q, kv)
        den = torch.einsum("bhqf,bhf->bhq", phi_q, z)[..., None] + 1e-6
        o = num / den
        return (lambda x, *d: x.permute(*d))(o, 0, 2, 1, 3).reshape(B, S, D) @ wo

    def _B_ref(x, w_gate, w_up, w_down):
        return (_gelu(x @ w_gate) * (x @ w_up)) @ w_down

    x = A_x
    x = x + _A_ref(_layernorm(x, axis=-1), A_wqkv, A_w_phi, A_wo)
    x = x + _B_ref(_layernorm(x, axis=-1), B_w_gate, B_w_up, B_w_down)
    x = x + _A_ref(_layernorm(x, axis=-1), A_wqkv, A_w_phi, A_wo)
    x = x + _B_ref(_layernorm(x, axis=-1), B_w_gate, B_w_up, B_w_down)
    return x
```

```python
import re

REG_RE = re.compile(r'^(-|\|)?(v|a|s)(\d+|\[(\d+):(\d+)\])\|?$')

def regs_of(op):
    op = op.strip()
    if op.startswith('abs(') or op.startswith('neg('):
        op = op[4:-1]
    m = REG_RE.match(op)
    if m:
        k = m.group(2)
        if m.group(4) is not None:
            return {(k, i) for i in range(int(m.group(4)), int(m.group(5)) + 1)}
        return {(k, int(m.group(3)))}
    if op in ('vcc', 'exec', 'm0', 'scc'):
        return {('x', op)}
    if op in ('vcc_lo', 'vcc_hi'):
        return {('x', 'vcc')}
    if op in ('exec_lo', 'exec_hi'):
        return {('x', 'exec')}
    return set()

def regs_names(S):
    return ['%s%d' % r for r in S]

TRANS = ('v_exp_f32', 'v_log_f32', 'v_rcp_f32', 'v_rsq_f32', 'v_sqrt_f32', 'v_sin_f32', 'v_cos_f32')
RMW = ('v_fmac_f32', 'v_dot2c_f32_bf16', 'v_mac_f32', 'v_writelane_b32')

class Ins:
    __slots__ = ('txt', 'op', 'kind', 'rd', 'wr', 'tag', 'passes', 'srcc', 'srcab', 'wide_store', 'states', 'count', 'lds_dma', 'meta')
    def __init__(self, txt, op='', kind='raw', rd=(), wr=(), tag=None):
        self.txt = txt; self.op = op; self.kind = kind
        self.rd = set(rd); self.wr = set(wr); self.tag = tag
        self.passes = 0; self.srcc = set(); self.srcab = set(); self.wide_store = False
        self.states = 1; self.count = True; self.lds_dma = False; self.meta = None

def split_ops(s):
    out = []; depth = 0; cur = ''
    for ch in s:
        if ch in '[(': depth += 1
        if ch in '])': depth -= 1
        if ch == ',' and depth == 0:
            out.append(cur.strip()); cur = ''
        else:
            cur += ch
    if cur.strip(): out.append(cur.strip())
    return out

def parse(txt, tag=None):
    t = txt.strip()
    sp = t.split(None, 1)
    op = sp[0]
    rest = sp[1] if len(sp) > 1 else ''
    ops = split_ops(rest)
    mods = ''
    if ops:
        last = ops[-1].split()
        ops[-1] = last[0]
        mods = ' '.join(last[1:])
    base = op
    for suf in ('_e32', '_e64', '_sdwa', '_dpp'):
        if base.endswith(suf): base = base[:-len(suf)]
    I = Ins(txt, base, 'raw', tag=tag)
    R = lambda idxs: set().union(*[regs_of(ops[i]) for i in idxs if i < len(ops)]) if idxs else set()
    n = len(ops)
    if base.startswith('v_mfma'):
        I.kind = 'mfma'
        I.wr = R([0]); I.srcab = R([1, 2]); I.srcc = R([3]); I.rd = I.srcab | I.srcc
        I.passes = 8 if '32x32' in base else 4
    elif base.startswith('v_cmp'):
        I.kind = 'valu'; I.wr = R([0]); I.rd = R(range(1, n)) | {('x', 'exec')}
    elif base in ('v_readfirstlane_b32', 'v_readlane_b32'):
        I.kind = 'valu'; I.wr = R([0]); I.rd = R(range(1, n))
    elif base.startswith('v_permlane') and 'swap' in base:
        I.kind = 'valu'; I.wr = R([0, 1]); I.rd = R([0, 1])
    elif base in ('v_add_co_u32', 'v_sub_co_u32', 'v_addc_co_u32'):
        I.kind = 'valu'; I.wr = R([0, 1]); I.rd = R(range(2, n))
    elif base.startswith('v_'):
        I.kind = 'valu'; I.wr = R([0]); I.rd = R(range(1, n))
        if base in RMW: I.rd |= I.wr
        if base == 'v_cndmask_b32' and n == 3: I.rd |= {('x', 'vcc')}
    elif base.startswith('ds_read') or base.startswith('ds_bpermute'):
        I.kind = 'ds'; I.wr = R([0]); I.rd = R(range(1, n))
    elif base.startswith('ds_write'):
        I.kind = 'ds'; I.rd = R(range(0, n))
    elif base.startswith('buffer_load'):
        I.kind = 'vm'
        if ' lds' in (' ' + mods):
            I.lds_dma = True; I.rd = R(range(0, n)) | {('x', 'm0')}
        else:
            I.wr = R([0]); I.rd = R(range(1, n))
    elif base.startswith('buffer_store'):
        I.kind = 'vm'; I.rd = R(range(0, n))
        I.wide_store = base.endswith('x3') or base.endswith('x4')
        I.meta = R([0])
    elif base.startswith('buffer_atomic'):
        I.kind = 'vm'; I.rd = R(range(0, n))
        if 'sc0' in mods: I.wr = R([0])
    elif base.startswith('global_load'):
        I.kind = 'vm'; I.wr = R([0]); I.rd = R(range(1, n))
    elif base.startswith('s_load') :
        I.kind = 'smem'; I.wr = R([0]); I.rd = R(range(1, n))
    elif base in ('s_memtime', 's_memrealtime'):
        I.kind = 'smem'; I.wr = R([0])
    elif base == 's_waitcnt':
        I.kind = 'wait'
    elif base == 's_nop':
        I.kind = 'nop'; I.states = int(ops[0], 0) + 1
    elif base == 's_barrier':
        I.kind = 'barrier'
    elif base.startswith('s_cmp') or base.startswith('s_bitcmp'):
        I.kind = 'salu'; I.rd = R(range(0, n)); I.wr = {('x', 'scc')}
    elif base.startswith('s_cbranch') or base in ('s_branch', 's_endpgm', 's_setpc_b64', 's_sleep', 's_setprio'):
        I.kind = 'ctl'
        if base == 's_setpc_b64': I.rd = R([0])
    elif base.startswith('s_'):
        I.kind = 'salu'; I.wr = R([0]); I.rd = R(range(1, n))
        if base in ('s_and_saveexec_b64',): I.wr |= {('x', 'exec')}
    else:
        raise ValueError('cannot parse: ' + txt)
    return I

class Asm:
    def __init__(self):
        self.items = []
    def __call__(self, txt, tag=None, count=True):
        for line in txt.split('\n'):
            line = line.strip()
            if not line: continue
            I = parse(line, tag); I.count = count
            self.items.append(I)
    def add(self, I): self.items.append(I)
    def extend(self, L):
        for x in L:
            if isinstance(x, str): self(x)
            elif isinstance(x, tuple): self(*x)
            else: self.items.append(x)
    def comment(self, txt):
        self.items.append(Ins('; ' + txt, kind='comment'))
    def label(self, name):
        self.items.append(Ins(name + ':', kind='label'))
    def directive(self, txt):
        self.items.append(Ins(txt, kind='comment'))
    def wait_tag(self, tag):
        I = Ins('', kind='wait_tag', tag=tag); self.items.append(I)
    def wait_lgkm0(self):
        self.items.append(Ins('', kind='wait_lgkm0'))
    def wait_all(self):
        self.items.append(Ins('', kind='wait_all'))
    def reset_state(self):
        self.items.append(Ins('', kind='reset'))
    def insert_waits(self):
        out = []; vm = []; lg = []; smem = [False]
        def wait(vmn=None, lgn=None):
            parts = []
            if vmn is not None: parts.append('vmcnt(%d)' % min(vmn, 63))
            if lgn is not None: parts.append('lgkmcnt(%d)' % min(lgn, 15))
            out.append(parse('s_waitcnt ' + ' '.join(parts)))
        def need(touch):
            vn = ln = None
            for p in range(len(vm) - 1, -1, -1):
                if vm[p].wr & touch:
                    vn = len(vm) - 1 - p; break
            for p in range(len(lg) - 1, -1, -1):
                if lg[p].wr & touch:
                    ln = len(lg) - 1 - p; break
            if ln is not None and any(x.kind == 'smem' for x in lg): ln = 0
            return vn, ln
        def retire(vn, ln):
            if vn is not None: del vm[:len(vm) - vn]
            if ln is not None: del lg[:len(lg) - ln]
        for I in self.items:
            if I.kind == 'wait_tag':
                vn = None
                for p in range(len(vm) - 1, -1, -1):
                    if vm[p].tag == I.tag:
                        vn = len(vm) - 1 - p; break
                if vn is not None:
                    if vn <= 63: wait(vn, None)
                    retire(vn, None)
                continue
            if I.kind == 'wait_lgkm0':
                if lg: wait(None, 0); lg.clear()
                continue
            if I.kind == 'wait_all':
                wait(0, 0); vm.clear(); lg.clear(); continue
            if I.kind == 'reset':
                vm.clear(); lg.clear(); continue
            if I.kind == 'wait' and not I.count:
                out.append(I); continue
            if I.kind == 'wait':
                m = re.search(r'vmcnt\((\d+)\)', I.txt)
                if m: retire(min(int(m.group(1)), len(vm)), None)
                m = re.search(r'lgkmcnt\((\d+)\)', I.txt)
                if m:
                    k = int(m.group(1))
                    if k == 0: lg.clear()
                    elif not any(x.kind == 'smem' for x in lg): retire(None, min(k, len(lg)))
                out.append(I); continue
            if I.kind in ('comment', 'label', 'ctl', 'barrier', 'nop', 'raw'):
                out.append(I); continue
            touch = {r for r in (I.rd | I.wr)}
            vn, ln = need(touch)
            if vn is not None and vn > 63:
                retire(vn, None); vn = None
            if vn is not None or ln is not None:
                wait(vn, ln); retire(vn, ln)
            out.append(I)
            if I.count:
                if I.kind == 'vm': vm.append(I)
                elif I.kind == 'ds': lg.append(I)
                elif I.kind == 'smem': lg.append(I)
            while len(vm) > 64: vm.pop(0)
        self.items = out
    def insert_nops(self):
        out = []
        def required(prev, I):
            n = 0
            vr = lambda s: {r for r in s if r[0] in 'va'}
            if prev.kind == 'valu' and prev.op.startswith('v_dot'):
                if prev.wr & (I.rd | I.wr):
                    chain = I.op == prev.op and I.wr == prev.wr and I.txt.count(next(iter(regs_names(prev.wr)))) == 1
                    if not chain: n = max(n, 3)
            if prev.kind == 'valu':
                pw = prev.wr
                if I.kind == 'mfma' and vr(pw) & I.rd: n = max(n, 2)
                if I.kind == 'valu':
                    if prev.op in TRANS and I.op not in TRANS and (pw & I.rd): n = max(n, 1)
                    if prev.op in TRANS and I.op in TRANS and (pw & I.rd): n = max(n, 1)
                    if I.op.startswith('v_permlane') and (vr(pw) & I.rd): n = max(n, 2)
                    if I.op in ('v_readfirstlane_b32', 'v_readlane_b32') and (vr(pw) & I.rd): n = max(n, 1)
                    sw = {r for r in pw if r[0] == 's' or r == ('x', 'vcc')}
                    if sw & I.rd: n = max(n, 4 if I.op in ('v_readlane_b32', 'v_writelane_b32') else 2)
                if I.kind in ('vm', 'smem'):
                    sw = {r for r in pw if r[0] == 's'}
                    if sw & I.rd: n = max(n, 5)
                if I.kind == 'salu':
                    sw = {r for r in pw if r[0] == 's' or r == ('x', 'vcc')}
                    if sw & I.rd: n = max(n, 4)
                if I.kind == 'ctl' and ('x', 'vcc') in pw and 'vcc' in I.op: n = max(n, 5)
            if prev.kind == 'mfma':
                D = prev.wr; four = prev.passes == 4
                if I.kind == 'mfma':
                    if D & I.srcab: n = max(n, 8 if four else 12)
                    if D & I.srcc and not (D == I.srcc and prev.passes == I.passes): n = max(n, 6 if four else 10)
                    if D & I.wr and not (D == I.wr and D == I.srcc and prev.passes == I.passes):
                        n = max(n, 8 if four else 12)
                elif I.kind in ('valu', 'ds', 'vm'):
                    if D & (I.rd | I.wr): n = max(n, 8 if four else 12)
                if I.kind == 'valu' and (prev.srcc & I.wr): n = max(n, 3 if four else 7)
            if prev.kind == 'salu' and ('x', 'm0') in prev.wr and I.kind == 'vm' and I.lds_dma: n = max(n, 1)
            if prev.kind == 'vm' and prev.wide_store and prev.meta & I.wr:
                n = max(n, 2 if I.kind == 'valu' else 1)
            return n
        for I in self.items:
            if I.kind in ('comment', 'label'):
                out.append(I); continue
            need = 0; dist = 0
            for prev in reversed(out):
                if prev.kind in ('comment', 'label'): continue
                if dist >= 20: break
                r = required(prev, I)
                if r > dist: need = max(need, r - dist)
                dist += prev.states
            while need > 0:
                k = min(need, 16)
                out.append(parse('s_nop %d' % (k - 1))); need -= k
            out.append(I)
        self.items = out
    def text(self):
        L = []
        for I in self.items:
            if I.kind in ('label', 'comment'): L.append(I.txt)
            else: L.append('  ' + I.txt)
        return '\n'.join(L) + '\n'
    def finish(self):
        self.insert_waits(); self.insert_nops()
        return self.text()
    def stats(self):
        import collections
        c = collections.Counter(I.kind for I in self.items)
        return dict(c)

def vr(b, n=1): return 'v%d' % b if n == 1 else 'v[%d:%d]' % (b, b + n - 1)
def ar(b, n=1): return 'a%d' % b if n == 1 else 'a[%d:%d]' % (b, b + n - 1)
def sr(b, n=1): return 's%d' % b if n == 1 else 's[%d:%d]' % (b, b + n - 1)

def interleave(slots, fillers, per=None, start=0):
    out = []; f = list(fillers); n = len(slots)
    for i, s in enumerate(slots):
        out.extend(s)
        if i < start or not f: continue
        left = n - i
        k = -(-len(f) // left)
        if per is not None: k = min(k, per)
        out.extend(f[:k]); del f[:k]
    return out, f
```

```python
from asmlib import *
from layout import *

NAME = 'hedgehog_main_kernel'
BLK = 20480
SCR = 6 * BLK
LDS_TOTAL = 163840
SPIN_LIMIT = 40000
LOG2E = 1.4426950408889634

sW, sRB, sJ, sL, sLOFF, sW5K, sWA, sWB, sWC, sWD = range(16, 26)
sT0, sT1, sT2, sT3, sT4, sT5 = range(26, 32)
sDEAD, sPC, sPV, sCS, sTH, sTTK, sTTS, sKH = range(40, 48)
sDM = 48
sTW = 49
sB0, sB1 = 50, 51
sC1, sC2, sC3, sC4 = 52, 53, 54, 55
vL16, vLANE, vONES, vZERO, vONE, vPOLL = 1, 2, 3, 4, 5, 6
vL16B, vK0, vK1 = 7, 8, 9
vT0, vT1, vT2, vT3, vT4 = 10, 11, 12, 13, 14
vEXR = 15
AF, ACC = 16, 48
vSA, vTW, vKA, vKB, vPS1, vPS2, vPL, vAW, vO0, vO1, vO2, vX0, vX1, vX2, vY0, vY1 = range(224, 240)
XR = 240
vY2, vR0, vR2, vST, vSC, vEXW = range(250, 256)

A0, B0, C0, D0, NBLK = 0, 8, 13, 25, 37

def f32bits(x):
    import struct
    return '0x%08x' % struct.unpack('<I', struct.pack('<f', x))[0]

class Main:
    def __init__(self, stop=None, opts=None):
        self.e = Asm(); self.stop = stop; self.o = opts or {}
        self.nlab = 0
    def lab(self, p):
        self.nlab += 1
        return 'M_%s_%d' % (p, self.nlab)
    def blk_src(self, b):
        if b < B0: return sWA, (b - A0) * BLK
        if b < C0: return sWB, (b - B0) * BLK
        if b < D0: return sWC, (b - C0) * BLK
        return sWD, (b - D0) * BLK
    def dma_ops(self, b, tag=None):
        nb = b % NBLK if b >= NBLK else b
        base, off = self.blk_src(nb)
        slot = nb % 6
        tag = tag or 'blk%d' % nb
        g = []
        first = ['s_add_u32 m0, s%d, %d' % (sW5K, slot * BLK), 's_add_u32 s%d, s%d, %d' % (sDM, base, off),
                 ('buffer_load_dwordx4 v%d, s[4:7], s%d offen lds' % (vL16, sDM), tag)]
        g.append(first)
        for k in range(1, 4):
            g.append([('buffer_load_dwordx4 v%d, s[4:7], s%d offen offset:%d lds' % (vL16, sDM, k * 1024), tag)])
        g.append(['s_add_u32 m0, s%d, %d' % (sW5K, slot * BLK + 4096), 's_add_u32 s%d, s%d, %d' % (sDM, base, off + 4096),
                  ('buffer_load_dwordx4 v%d, s[4:7], s%d offen lds' % (vL16, sDM), tag)])
        return g
    def freed_by(self, c):
        if c <= NBLK - 7: return c + 6
        if c < NBLK - 1: return NBLK + (c - (NBLK - 7))
        return NBLK + 0
    def ring_read(self, dst, blk, off, kh=False):
        slot = blk % 6
        base = (vK0 if kh else vL16) if slot < 3 else (vK1 if kh else vL16B)
        return 'ds_read_b128 v[%d:%d], v%d offset:%d' % (dst, dst + 3, base, (slot % 3) * BLK + off)
    def emit_next_layer_dma(self, b):
        e = self.e
        L = self.lab('nl')
        e('s_cmp_lg_u32 s%d, 0' % sL); e('s_cbranch_scc1 %s' % L)
        for g in self.dma_ops(b):
            for x in g:
                if isinstance(x, tuple): e(x[0], count=False)
                else: e(x)
        e.label(L)
    def signal(self, cnt_off_sgpr):
        e = self.e
        e.wait_all()
        e('s_barrier')
        self.signal_only(cnt_off_sgpr)
    def signal_only(self, cnt_off_sgpr):
        e = self.e
        L = self.lab('sig')
        e('s_cmp_lg_u32 s%d, 0' % sW); e('s_cbranch_scc1 %s' % L)
        e('s_mov_b64 exec, 1')
        e('buffer_atomic_add v%d, v%d, s[4:7], s%d offen sc1' % (vONE, vZERO, cnt_off_sgpr), count=False)
        e('s_mov_b64 exec, -1')
        e.label(L)
    def poll(self, cnt_off_sgpr, n=1, target=16):
        e = self.e
        L = self.lab('poll'); X = self.lab('got')
        e('s_cmp_lg_u32 s%d, 0' % sW); e('s_cbranch_scc1 %s' % X)
        e('s_cmp_lg_u32 s%d, 0' % sDEAD); e('s_cbranch_scc1 %s' % X)
        e('s_mov_b32 s%d, 0' % sPC)
        if n > 1:
            e('v_min_u32 v%d, %d, v%d' % (vT0, n - 1, vLANE)); e('v_lshlrev_b32 v%d, 7, v%d' % (vT0, vT0))
        e.label(L)
        e('buffer_load_dword v%d, v%d, s[4:7], s%d offen sc1' % (vPOLL, vT0 if n > 1 else vZERO, cnt_off_sgpr), count=False)
        e('s_waitcnt vmcnt(0)', count=False)
        e('v_cmp_gt_u32 vcc, %d, v%d' % (target, vPOLL))
        e('s_cbranch_vccz %s' % X)
        e('s_add_u32 s%d, s%d, 1' % (sPC, sPC)); e('s_cmp_lt_u32 s%d, %d' % (sPC, SPIN_LIMIT))
        e('s_cbranch_scc1 %s' % L)
        e('s_mov_b32 s%d, 1' % sDEAD)
        e.label(X)
    def cnt(self, dst, which, idx_sgpr, mul=128, add=0, next_layer=False):
        e = self.e
        e('s_mul_i32 s%d, s%d, %d' % (dst, idx_sgpr, mul))
        e('s_add_u32 s%d, s%d, s%d' % (dst, dst, sLOFF))
        e('s_add_u32 s%d, s%d, 0x%x' % (dst, dst, which + add + (LSTRIDE if next_layer else 0)))
    def prologue(self):
        e = self.e
        e.directive('.text\n.globl %s\n.p2align 8\n.type %s,@function' % (NAME, NAME))
        e.label(NAME)
        e('s_cmp_ge_u32 s2, 256'); e('s_cbranch_scc1 M_END')
        e('s_load_dwordx2 s[32:33], s[0:1], 0')
        e('s_load_dwordx2 s[34:35], s[0:1], 64')
        e('s_load_dwordx2 s[36:37], s[0:1], 80')
        e('v_lshrrev_b32 v10, 6, v0'); e('v_and_b32 v%d, 63, v0' % vLANE)
        e('v_readfirstlane_b32 s%d, v10' % sW)
        e('v_lshlrev_b32 v%d, 4, v%d' % (vL16, vLANE))
        e('s_and_b32 s%d, s2, 3\ns_lshr_b32 s26, s2, 6\ns_lshl_b32 s26, s26, 2\ns_or_b32 s%d, s%d, s26' % (sRB, sRB, sRB))
        e('s_lshr_b32 s%d, s2, 2\ns_and_b32 s%d, s%d, 15' % (sJ, sJ, sJ))
        e('s_and_b32 s%d, s%d, 7\ns_lshr_b32 s%d, s%d, 3' % (sCS, sJ, sTH, sJ))
        e('s_mul_i32 s%d, s%d, 5120' % (sW5K, sW))
        e('s_lshr_b32 s%d, s%d, 1' % (sKH, sW))
        for (s, idx, stride, base) in ((sWA, sJ, 160 * KB, WA), (sWB, sCS, 100 * KB, WB), (sWC, sJ, 240 * KB, WC), (sWD, sCS, 240 * KB, WD)):
            e('s_mul_i32 s%d, s%d, %d\ns_add_u32 s%d, s%d, s%d\ns_add_u32 s%d, s%d, 0x%x' % (s, idx, stride, s, s, sW5K, s, s, base))
        e('s_lshl_b32 s%d, s%d, 3\ns_lshl_b32 s26, s%d, 2\ns_add_u32 s%d, s%d, s26' % (sTTK, sRB, sTH, sTTK, sTTK))
        e('s_and_b32 s26, s%d, 1\ns_lshl_b32 s26, s26, 1\ns_add_u32 s%d, s%d, s26\ns_add_u32 s%d, s%d, s%d' % (sW, sTTK, sTTK, sTTK, sTTK, sKH))
        e('s_xor_b32 s%d, s%d, 1' % (sTTS, sTTK))
        e('s_mov_b32 s%d, 0\ns_mov_b32 s%d, 0\ns_mov_b32 s%d, 0x%x' % (sDEAD, sL, sLOFF, LBASE))
        e('s_waitcnt lgkmcnt(0)')
        for (d, lo, n) in ((4, 36, WS_BYTES), (8, 32, T * 1280), (12, 34, T * 1280)):
            e('s_mov_b32 s%d, s%d\ns_mov_b32 s%d, s%d\ns_mov_b32 s%d, 0x%x\ns_mov_b32 s%d, 0x20000' % (d, lo, d + 1, lo + 1, d + 2, n, d + 3))
        for b in range(6):
            for g in self.dma_ops(b): e.extend(g)
        e('v_mov_b32 v%d, 0x3f803f80\nv_mov_b32 v%d, 0\nv_mov_b32 v%d, 1' % (vONES, vZERO, vONE))
        e('v_add_u32 v%d, %d, v%d' % (vL16B, 3 * BLK, vL16))
        e('s_mul_i32 s26, s%d, 5120\nv_add_u32 v%d, s26, v%d\nv_add_u32 v%d, %d, v%d' % (sKH, vK0, vL16, vK1, 3 * BLK, vK0))
        t32, hi, t16, q = 100, 101, 102, 103
        e('v_and_b32 v%d, 31, v%d\nv_lshrrev_b32 v%d, 5, v%d' % (t32, vLANE, hi, vLANE))
        e('v_and_b32 v%d, 15, v%d\nv_lshrrev_b32 v%d, 4, v%d' % (t16, vLANE, q, vLANE))
        e('v_mov_b32 v104, 0x%x' % OOB)
        e('v_lshlrev_b32 v%d, 6, v%d\nv_lshl_add_u32 v%d, v%d, 5, v%d' % (vSA, t32, vSA, hi, vSA))
        e('s_lshl_b32 s26, s%d, 5\nv_add_u32 v105, s26, v%d\nv_mul_u32_u24 v105, 144, v105' % (sW, t32))
        e('v_mul_u32_u24 v106, 18432, v%d\nv_add_u32 v105, v105, v106\nv_add_u32 v%d, 0x%x, v105' % (hi, vTW, SCR))
        e('v_lshrrev_b32 v105, 1, v%d\nv_bfe_u32 v106, v%d, 2, 2\nv_lshl_add_u32 v105, v105, 3, v106\nv_mul_u32_u24 v105, 144, v105' % (q, vLANE))
        e('v_and_b32 v106, 1, v%d\nv_lshlrev_b32 v106, 5, v106\nv_and_b32 v107, 3, v%d\nv_lshl_add_u32 v106, v107, 3, v106\nv_add_u32 v105, v105, v106' % (q, vLANE))
        e('s_lshr_b32 s26, s%d, 1\ns_mul_i32 s26, s26, 18432\ns_add_u32 s26, s26, 0x%x' % (sW, SCR))
        e('s_and_b32 s27, s%d, 1\ns_mul_i32 s28, s27, 40\ns_add_u32 s28, s28, s26\ns_add_u32 s29, s26, 80' % sW)
        e('v_add_u32 v%d, s28, v105\nv_add_u32 v%d, s29, v105' % (vKA, vKB))
        e('s_lshr_b32 s26, s%d, 1\ns_mul_i32 s26, s26, 5\ns_lshl_b32 s28, s27, 1\ns_add_u32 s28, s28, s26' % sW)
        e('v_add_u32 v105, s28, v%d\nv_mul_u32_u24 v105, 21, v105\nv_add_u32 v105, v105, v%d\nv_lshlrev_b32 v105, 4, v105' % (hi, t32))
        e('v_cmp_gt_u32 vcc, 21, v%d\nv_cndmask_b32 v%d, v104, v105, vcc' % (t32, vPS1))
        e('s_add_u32 s26, s26, 4\ns_mul_i32 s26, s26, 21\nv_add_u32 v105, s26, v%d\nv_lshlrev_b32 v105, 4, v105' % t32)
        e('s_lshl_b32 s27, s27, 3\nv_add_u32 v105, s27, v105\nv_cndmask_b32 v105, v104, v105, vcc')
        e('v_cmp_eq_u32 vcc, 0, v%d\nv_cndmask_b32 v%d, v104, v105, vcc' % (hi, vPS2))
        e('v_lshlrev_b32 v105, 4, v0\nv_cmp_gt_u32 vcc, 210, v0\nv_cndmask_b32 v%d, v104, v105, vcc' % vPL)
        e('v_mov_b32 v106, 105\nv_cmp_le_u32 s[30:31], v106, v0\nv_cndmask_b32 v106, 0, 1, s[30:31]')
        e('v_mul_u32_u24 v107, 105, v106\nv_sub_u32 v107, v0, v107')
        e('v_mul_u32_u24 v108, 391, v107\nv_lshrrev_b32 v108, 13, v108')
        e('v_mul_u32_u24 v109, 21, v108\nv_sub_u32 v109, v107, v109')
        e('v_lshrrev_b32 v110, 4, v109\nv_mul_u32_u24 v110, 5, v110\nv_add_u32 v110, v110, v108')
        e('v_and_b32 v109, 15, v109\nv_lshrrev_b32 v111, 2, v109\nv_lshlrev_b32 v111, 3, v111\nv_and_b32 v109, 3, v109\nv_add_u32 v111, v111, v109')
        e('v_mul_u32_u24 v109, 36, v106\nv_add_u32 v111, v111, v109')
        e('v_lshlrev_b32 v111, 4, v111\nv_lshl_add_u32 v111, v110, 10, v111\nv_add_u32 v111, 0x%x, v111' % SCR)
        e('v_and_b32 v105, 63, v0\nv_lshlrev_b32 v105, 4, v105\nv_add_u32 v105, 0x%x, v105' % (SCR + 12288))
        e('v_cndmask_b32 v%d, v105, v111, vcc' % vAW)
        e('s_mul_i32 s26, s%d, 5' % sJ)
        e('v_bfe_u32 v105, v%d, 4, 1\nv_mul_u32_u24 v105, 20480, v105\nv_lshl_add_u32 v105, v%d, 4, v105' % (vLANE, t16))
        for (dst, expr) in ((vO0, 0), (vO1, 1), (vO2, None)):
            if expr is not None:
                e('v_lshl_add_u32 v106, v%d, 1, s26\nv_add_u32 v106, %d, v106' % (hi, expr))
            else:
                e('v_mov_b32 v106, s26\nv_add_u32 v106, 4, v106')
            e('v_lshrrev_b32 v107, 2, v106\nv_lshl_add_u32 v107, v107, 10, v105\nv_and_b32 v106, 3, v106\nv_lshl_add_u32 v%d, v106, 8, v107' % dst)
        e('v_lshl_add_u32 v%d, v%d, 3, v%d' % (vO2, hi, vO2))
        e('s_mul_i32 s26, s%d, 10' % sCS)
        e('s_and_b32 s27, s%d, 1\ns_lshl_b32 s27, s27, 8' % sTTK)
        e('v_lshlrev_b32 v105, 4, v%d' % t16)
        for n, (dx, dy) in enumerate(((vX0, vY0), (vX1, vY1), (vX2, vY2))):
            if n < 2: e('v_add_u32 v106, s26, v%d\nv_add_u32 v106, %d, v106' % (q, 4 * n))
            else: e('v_lshrrev_b32 v106, 1, v%d\nv_add_u32 v106, s26, v106\nv_add_u32 v106, 8, v106' % q)
            e('v_lshrrev_b32 v107, 2, v106\nv_lshl_add_u32 v107, v107, 10, v105\nv_and_b32 v108, 3, v106\nv_lshl_add_u32 v%d, v108, 8, v107' % dx)
            e('v_lshrrev_b32 v107, 1, v106\nv_lshl_add_u32 v107, v107, 10, v105\nv_and_b32 v108, 1, v106\nv_lshl_add_u32 v107, v108, 9, v107\nv_add_u32 v%d, s27, v107' % dy)
        e('v_and_b32 v106, 1, v%d\nv_lshl_add_u32 v%d, v106, 3, v%d\nv_lshl_add_u32 v%d, v106, 3, v%d' % (q, vX2, vX2, vY2, vY2))
        e('v_mul_u32_u24 v105, 1280, v%d\nv_lshl_add_u32 v%d, v%d, 4, v105\nv_lshl_add_u32 v%d, v%d, 3, v105\nv_add_u32 v%d, 128, v%d' % (t16, vR0, q, vR2, q, vR2, vR2))
        e('v_lshlrev_b32 v105, 6, v%d\nv_cmp_eq_u32 vcc, 0, v%d\nv_cndmask_b32 v%d, v104, v105, vcc\nv_lshl_add_u32 v%d, v%d, 4, v105' % (t16, q, vST, vSC, q))
        e('s_add_u32 s26, s%d, 0x%x\nv_add_u32 v%d, s26, v%d' % (sW5K, SCR, vEXW, vL16))
        e('s_xor_b32 s27, s%d, 2\ns_mul_i32 s27, s27, 5120\ns_add_u32 s27, s27, 0x%x\nv_add_u32 v%d, s27, v%d' % (sW, SCR, vEXR, vL16))
        e('s_mul_i32 s26, s%d, 20480\ns_mul_i32 s27, s%d, 160\ns_add_u32 s26, s26, s27' % (sTTK, sCS))
        e('buffer_load_dwordx4 v[%d:%d], v%d, s[8:11], s26 offen' % (XR, XR + 3, vR0))
        e('buffer_load_dwordx4 v[%d:%d], v%d, s[8:11], s26 offen offset:64' % (XR + 4, XR + 7, vR0))
        e('buffer_load_dwordx2 v[%d:%d], v%d, s[8:11], s26 offen' % (XR + 8, XR + 9, vR2))
        e.wait_all()
    def rowstat_finish(self, S, Q, vRS, vVE, BM, tmp):
        L = []
        L.append('v_mul_f32 v%d, %s, v%d' % (S, f32bits(1.0 / 640), S))
        L.append('v_mul_f32 v%d, %s, v%d' % (Q, f32bits(1.0 / 640), Q))
        L.append('v_fma_f32 v%d, -v%d, v%d, v%d' % (Q, S, S, Q))
        L.append('v_max_f32 v%d, 0, v%d' % (Q, Q))
        L.append('v_add_f32 v%d, %s, v%d' % (vVE, f32bits(1e-5), Q))
        L.append('v_rsq_f32 v%d, v%d' % (vRS, vVE))
        L.append('v_cvt_pk_bf16_f32 v%d, -v%d, -v%d' % (tmp, S, S))
        L.append('v_and_b32 v%d, 0xffff0000, v%d' % (tmp, tmp))
        L.append('v_sub_f32 v%d, -v%d, v%d' % (tmp, S, tmp))
        L.append('v_cvt_pk_bf16_f32 v%d, -v%d, v%d' % (BM, S, tmp))
        for k in range(1, 4): L.append('v_mov_b32 v%d, v%d' % (BM + k, BM))
        return L
    def softmax_pair(self, X, vC, EP, EM, t):
        L = []
        mx, mn, ap, am, sp, sm = range(t, t + 6)
        L.append('v_max3_f32 v%d, v%d, v%d, v%d' % (mx, X[0], X[1], X[2]))
        L.append('v_min3_f32 v%d, v%d, v%d, v%d' % (mn, X[0], X[1], X[2]))
        for k in range(3, 19, 2):
            L.append('v_max3_f32 v%d, v%d, v%d, v%d' % (mx, mx, X[k], X[k + 1]))
            L.append('v_min3_f32 v%d, v%d, v%d, v%d' % (mn, mn, X[k], X[k + 1]))
        L.append('v_max_f32 v%d, v%d, v%d' % (mx, mx, X[19]))
        L.append('v_min_f32 v%d, v%d, v%d' % (mn, mn, X[19]))
        L.append('v_mul_f32 v%d, v%d, v%d' % (ap, vC, mx))
        L.append('v_mul_f32 v%d, v%d, v%d' % (am, vC, mn))
        for f in range(20):
            L.append('v_fma_f32 v%d, v%d, v%d, -v%d' % (EP + f, X[f], vC, ap))
            L.append('v_fma_f32 v%d, -v%d, v%d, v%d' % (EM + f, X[f], vC, am))
        for f in range(20):
            L.append('v_exp_f32 v%d, v%d' % (EP + f, EP + f))
            L.append('v_exp_f32 v%d, v%d' % (EM + f, EM + f))
        L.append('v_add_f32 v%d, v%d, v%d' % (sp, EP, EP + 1))
        L.append('v_add_f32 v%d, v%d, v%d' % (sm, EM, EM + 1))
        for f in range(2, 20):
            L.append('v_add_f32 v%d, v%d, v%d' % (sp, sp, EP + f))
            L.append('v_add_f32 v%d, v%d, v%d' % (sm, sm, EM + f))
        L.append('v_rcp_f32 v%d, v%d' % (sp, sp))
        L.append('v_rcp_f32 v%d, v%d' % (sm, sm))
        for f in range(20):
            L.append('v_mul_f32 v%d, v%d, v%d' % (EP + f, EP + f, sp))
            L.append('v_mul_f32 v%d, v%d, v%d' % (EM + f, EM + f, sm))
        return L
    def maybe_stop(self, name):
        if self.stop == name:
            self.e.wait_all(); self.e('s_endpgm'); return True
        return False
    def phase_a(self):
        e = self.e
        T0, T1, T2, T3 = ACC, ACC + 16, ACC + 32, ACC + 48
        ST, vRS, vVE, vC, BM, AM, EP, EM, P = 112, 120, 121, 122, 124, 128, 144, 164, 184
        L = self.lab('a_nopoll')
        e('s_cmp_eq_u32 s%d, 0' % sL); e('s_cbranch_scc1 %s' % L)
        self.cnt(sT0, CNT_XA, sRB)
        self.poll(sT0)
        e.label(L)
        e.wait_all()
        e('s_barrier')
        e('s_lshl_b32 s%d, s%d, 2\ns_add_u32 s%d, s%d, s%d' % (sT0, sRB, sT0, sT0, sW))
        e('s_lshl_b32 s%d, s%d, 11\ns_add_u32 s%d, s%d, s%d\ns_add_u32 s%d, s%d, 0x%x' % (sT1, sT0, sT1, sT1, sLOFF, sT1, sT1, SA))
        e('s_mul_i32 s%d, s%d, 40960\ns_add_u32 s%d, s%d, s%d\ns_add_u32 s%d, s%d, 0x%x' % (sTW, sT0, sTW, sTW, sLOFF, sTW, sTW, XA))
        def tok(s):
            g = []
            if s % 4 == 0: g.append('s_add_u32 s%d, s%d, %d' % (sB0, sTW, s * 1024))
            g.append('buffer_load_dwordx4 a[%d:%d], v%d, s[4:7], s%d offen offset:%d sc1' % (4 * s, 4 * s + 3, vL16, sB0, (s % 4) * 1024))
            return g
        NPRE = 6
        e('buffer_load_dwordx4 v[%d:%d], v%d, s[4:7], s%d offen sc1' % (ST, ST + 3, vSA, sT1))
        e('buffer_load_dwordx4 v[%d:%d], v%d, s[4:7], s%d offen offset:16 sc1' % (ST + 4, ST + 7, vSA, sT1))
        for s in range(NPRE): e.extend(tok(s))
        e('s_lshl_b32 s%d, s%d, 12\ns_add_u32 s%d, s%d, 0x%x' % (sT2, sJ, sT2, sT2, WAM))
        amload = ['buffer_load_dwordx4 v[%d:%d], v%d, s[4:7], s%d offen offset:%d' % (AM + 4 * t, AM + 4 * t + 3, vL16, sT2, t * 1024) for t in range(4)]
        st = []
        st += ['v_add_f32 v%d, v%d, v%d' % (ST, ST, ST + 2), 'v_add_f32 v%d, v%d, v%d' % (ST + 1, ST + 1, ST + 3),
               'v_add_f32 v%d, v%d, v%d' % (ST + 4, ST + 4, ST + 6), 'v_add_f32 v%d, v%d, v%d' % (ST + 5, ST + 5, ST + 7),
               'v_add_f32 v%d, v%d, v%d' % (ST, ST, ST + 4), 'v_add_f32 v%d, v%d, v%d' % (ST + 1, ST + 1, ST + 5),
               'v_mov_b32 v%d, v%d' % (ST + 2, ST), 'v_mov_b32 v%d, v%d' % (ST + 3, ST + 1),
               'v_permlane32_swap_b32 v%d, v%d' % (ST, ST + 2), 'v_permlane32_swap_b32 v%d, v%d' % (ST + 1, ST + 3),
               'v_add_f32 v%d, v%d, v%d' % (ST, ST, ST + 2), 'v_add_f32 v%d, v%d, v%d' % (ST + 1, ST + 1, ST + 3)]
        st += self.rowstat_finish(ST, ST + 1, vRS, vVE, BM, ST + 2)
        st += ['v_mul_f32 v%d, %s, v%d' % (vC, f32bits(LOG2E), vRS)]
        LA = 5
        def frag_info(n):
            if n < 120: return n // 3, n % 3
            return n - 120, 3
        def read(n): return self.ring_read(AF + 4 * (n % 8), A0 + n // 20, (n % 20) * 1024)
        def mfma(n):
            s, tau = frag_info(n); acc = ACC + 16 * tau; a = AF + 4 * (n % 8)
            c = '0' if s == 0 else 'v[%d:%d]' % (acc, acc + 15)
            return 'v_mfma_f32_32x32x16_bf16 v[%d:%d], v[%d:%d], a[%d:%d], %s' % (acc, acc + 15, a, a + 3, 4 * s, 4 * s + 3, c)
        def mean(tau):
            acc = ACC + 16 * tau
            return 'v_mfma_f32_32x32x16_bf16 v[%d:%d], v[%d:%d], v[%d:%d], v[%d:%d]' % (acc, acc + 15, AM + 4 * tau, AM + 4 * tau + 3, BM, BM + 3, acc, acc + 15)
        ksm = self.softmax_pair([T0 + r for r in range(16)] + [T1 + r for r in range(4)], vC, EP, EM, ST)
        for d in range(10): ksm.append('v_cvt_pk_bf16_f32 v%d, v%d, v%d' % (P + d, EP + 2 * d, EP + 2 * d + 1))
        for d in range(10): ksm.append('v_cvt_pk_bf16_f32 v%d, v%d, v%d' % (P + 10 + d, EM + 2 * d, EM + 2 * d + 1))
        V = [T1 + r for r in range(4, 16)] + [T2 + r for r in range(8)]
        for f in range(20): ksm.append('v_mul_f32 v%d, v%d, v%d' % (V[f], V[f], vRS))
        for d in range(10): ksm.append('v_cvt_pk_bf16_f32 v%d, v%d, v%d' % (P + 20 + d, V[2 * d], V[2 * d + 1]))
        ksm += ['v_mov_b32 v%d, 0x3f80' % (P + 30), 'v_mov_b32 v%d, 0' % (P + 31)]
        for n in range(LA): e(read(n))
        tokq = list(range(NPRE, 40))
        for ep in range(8):
            b = A0 + ep
            if ep > 0:
                e.wait_tag('blk%d' % (b + 1)) if ep < 7 else None
                e('s_barrier')
            fill = []
            if ep > 0:
                for g in self.dma_ops(self.freed_by(b - 1)): fill.append(g)
            slots = []
            for n in range(20 * ep, 20 * ep + 20):
                sl = [mfma(n)]
                if n + LA < 160: sl.append(read(n + LA))
                s, tau = frag_info(n)
                if n < 120 and tau == 2 and tokq: sl += tok(tokq.pop(0))
                slots.append(sl)
            flat = []
            if ep == 0:
                fill = [[x] for x in amload] + fill
            if ep == 2: fill = fill + [[x] for x in st]
            if ep < 6:
                k = 0
                for i, sl in enumerate(slots):
                    flat += sl
                    want = -(-len(fill) * (i + 1) // len(slots))
                    while k < want: flat += fill[k]; k += 1
            else:
                if ep == 6:
                    for tau in range(3): flat.append(mean(tau))
                    self.ksm_left = list(ksm)
                extra = [x for g in fill for x in g]
                per = -(-len(self.ksm_left) // ((8 - ep) * 20 - (3 if ep == 6 else 0)))
                for i, sl in enumerate(slots):
                    flat += sl
                    if extra: flat += extra[:2]; del extra[:2]
                    if ep == 6 and i < 3: continue
                    flat += self.ksm_left[:per]; del self.ksm_left[:per]
                flat += extra
            e.extend(flat)
        e(mean(3))
        e.extend(self.ksm_left)
        for m in range(8):
            e('ds_write_b128 v%d, v[%d:%d] offset:%d' % (vTW, P + 4 * m, P + 4 * m + 3, 16 * m))
        e.wait_lgkm0()
        e('s_barrier')
        post = self.dma_ops(self.freed_by(A0 + 7))
        KD = T0
        def kvread(ks):
            b = AF + 8 * (ks % 4)
            return ['ds_read_b64_tr_b16 v[%d:%d], v%d offset:%d' % (b, b + 1, vKA, ks * 2304),
                    'ds_read_b64_tr_b16 v[%d:%d], v%d offset:%d' % (b + 2, b + 3, vKA, ks * 2304 + 576),
                    'ds_read_b64_tr_b16 v[%d:%d], v%d offset:%d' % (b + 4, b + 5, vKB, ks * 2304),
                    'ds_read_b64_tr_b16 v[%d:%d], v%d offset:%d' % (b + 6, b + 7, vKB, ks * 2304 + 576)]
        for ks in range(3): e.extend(kvread(ks))
        for ks in range(8):
            if ks + 3 < 8: e.extend(kvread(ks + 3))
            b = AF + 8 * (ks % 4)
            e('v_mfma_f32_32x32x16_bf16 v[%d:%d], v[%d:%d], v[%d:%d], %s' % (KD, KD + 15, b, b + 3, b + 4, b + 7, '0' if ks == 0 else 'v[%d:%d]' % (KD, KD + 15)))
        PK = EP
        for d in range(6): e('v_cvt_pk_bf16_f32 v%d, v%d, v%d' % (PK + d, KD + 2 * d, KD + 2 * d + 1))
        e('s_lshl_b32 s%d, s%d, 4\ns_add_u32 s%d, s%d, s%d\ns_lshl_b32 s%d, s%d, 12' % (sT0, sJ, sT0, sT0, sRB, sT0, sT0))
        e('s_add_u32 s%d, s%d, s%d\ns_add_u32 s%d, s%d, 0x%x' % (sT0, sT0, sLOFF, sT0, sT0, KVP))
        e('buffer_store_dwordx4 v[%d:%d], v%d, s[4:7], s%d offen sc1' % (PK, PK + 3, vPS1, sT0))
        e('buffer_store_dwordx2 v[%d:%d], v%d, s[4:7], s%d offen sc1' % (PK + 4, PK + 5, vPS2, sT0))
        self.cnt(sT1, CNT_KV, sJ)
        self.signal(sT1)
        for g in post: e.extend(g)
        for r in range(4): e('v_mov_b32 v%d, 0' % (AF + r))
        e('v_lshlrev_b32 v%d, 4, v0\nv_add_u32 v%d, 0x%x, v%d' % (vT1, vT1, SCR, vT1))
        for m in range(3): e('ds_write_b128 v%d, v[%d:%d] offset:%d' % (vT1, AF, AF + 3, m * 4096))
        Q = P
        X = [T2 + r for r in range(8, 16)] + [T3 + r for r in range(12)]
        e.extend(self.softmax_pair(X, vC, EP, EM, ST))
        order = []
        for sign in (EP, EM):
            order += [(sign + 0), (sign + 2), (sign + 8), (sign + 10), (sign + 4), (sign + 6), (sign + 12), (sign + 14)]
        order += [EP + 16, EP + 18, EM + 16, EM + 18]
        for d, r in enumerate(order): e('v_cvt_pk_bf16_f32 v%d, v%d, v%d' % (Q + d, r, r + 1))
        e.wait_lgkm0()
        self.poll(sT1)
        e('s_barrier')
        if self.maybe_stop('a1'): return True
        LD, SUM, PKK = 112, 176, 204
        e('s_lshl_b32 s%d, s%d, 16\ns_add_u32 s%d, s%d, s%d\ns_add_u32 s%d, s%d, 0x%x' % (sT0, sJ, sT0, sT0, sLOFF, sT0, sT0, KVP))
        for p in range(16):
            if p: e('s_add_u32 s%d, s%d, 4096' % (sT0, sT0))
            e('buffer_load_dwordx4 v[%d:%d], v%d, s[4:7], s%d offen sc1' % (LD + 4 * p, LD + 4 * p + 3, vPL, sT0))
        e('v_mov_b32 v%d, 0x00003f80\nv_mov_b32 v%d, 0x3f800000' % (vT2, vT3))
        for k in range(8): e('v_mov_b32 v%d, 0' % (SUM + k))
        for p in range(16):
            for d in range(4):
                e('v_dot2c_f32_bf16 v%d, v%d, v%d' % (SUM + 2 * d, LD + 4 * p + d, vT2))
                e('v_dot2c_f32_bf16 v%d, v%d, v%d' % (SUM + 2 * d + 1, LD + 4 * p + d, vT3))
        for d in range(4): e('v_cvt_pk_bf16_f32 v%d, v%d, v%d' % (PKK + d, SUM + 2 * d, SUM + 2 * d + 1))
        e('ds_write_b128 v%d, v[%d:%d]' % (vAW, PKK, PKK + 3))
        e.wait_lgkm0()
        e('s_barrier')
        e('v_add_u32 v%d, 0x%x, v%d' % (vT1, SCR, vL16))
        for n in range(8): e('ds_read_b128 v[%d:%d], v%d offset:%d' % (AF + 4 * n, AF + 4 * n + 3, vT1, n * 1024))
        G0, G1 = T0, T1
        for n in range(10):
            rho, s = n // 5, n % 5
            acc = G0 if rho == 0 else G1
            a = AF + 4 * (n % 8)
            e('v_mfma_f32_32x32x16_bf16 v[%d:%d], v[%d:%d], v[%d:%d], %s' % (acc, acc + 15, a, a + 3, Q + 4 * s, Q + 4 * s + 3, '0' if s == 0 else 'v[%d:%d]' % (acc, acc + 15)))
            if n < 2: e('ds_read_b128 v[%d:%d], v%d offset:%d' % (a, a + 3, vT1, (n + 8) * 1024))
        e('v_add_f32 v%d, %s, v%d' % (vT2, f32bits(1e-6), G1 + 4))
        e('v_rcp_f32 v%d, v%d' % (vT2, vT2))
        OP = 208
        src = [G0 + r for r in range(16)] + [G1 + r for r in range(4)]
        for r in src: e('v_mul_f32 v%d, v%d, v%d' % (r, r, vT2))
        for d in range(10): e('v_cvt_pk_bf16_f32 v%d, v%d, v%d' % (OP + d, src[2 * d], src[2 * d + 1]))
        e('s_lshl_b32 s%d, s%d, 3\ns_lshl_b32 s%d, s%d, 1\ns_add_u32 s%d, s%d, s%d\ns_mul_i32 s%d, s%d, 20480' % (sT0, sRB, sT1, sW, sT0, sT0, sT1, sT0, sT0))
        e('s_add_u32 s%d, s%d, s%d\ns_add_u32 s%d, s%d, 0x%x' % (sT0, sT0, sLOFF, sT0, sT0, O))
        e('buffer_store_dwordx4 v[%d:%d], v%d, s[4:7], s%d offen sc1' % (OP, OP + 3, vO0, sT0))
        e('buffer_store_dwordx4 v[%d:%d], v%d, s[4:7], s%d offen sc1' % (OP + 4, OP + 7, vO1, sT0))
        e('buffer_store_dwordx2 v[%d:%d], v%d, s[4:7], s%d offen sc1' % (OP + 8, OP + 9, vO2, sT0))
        self.cnt(sT1, CNT_O, sRB)
        self.signal(sT1)
        return self.maybe_stop('a')
    def gemm_bd(self, first_blk, nsteps, tokload, pre_hooks, name):
        e = self.e
        LA = 5
        nf = nsteps * 5
        def read(n):
            i, tau = n // 5, n % 5
            return self.ring_read(AF + 4 * (n % 8), first_blk + i // 2, (i & 1) * 10240 + tau * 1024, kh=True)
        def mf(n, u):
            i, tau = n // 5, n % 5
            acc = ACC + (tau * 2 + u) * 4; a = AF + 4 * (n % 8); b = (2 * i + u) * 4
            c = '0' if i == 0 else 'v[%d:%d]' % (acc, acc + 3)
            return 'v_mfma_f32_16x16x32_bf16 v[%d:%d], v[%d:%d], a[%d:%d], %s' % (acc, acc + 3, a, a + 3, b, b + 3, c)
        nep = nsteps // 2
        for ep in range(nep):
            b = first_blk + ep
            if ep in pre_hooks: pre_hooks[ep]()
            if ep == 0: e.wait_tag('blk%d' % b)
            if ep + 1 < nep: e.wait_tag('blk%d' % (b + 1))
            e('s_barrier')
            if ep == 0:
                for n in range(LA): e(read(n))
            fill = list(tokload.get(ep, []))
            nxt = self.freed_by(b - 1) if ep > 0 else None
            late = None
            if nxt is not None:
                if nxt >= NBLK: late = nxt
                else: fill += self.dma_ops(nxt)
            slots = []
            for n in range(10 * ep, 10 * ep + 10):
                sl = [mf(n, 0)]
                if n + LA < nf: sl.append(read(n + LA))
                sl.append(mf(n, 1))
                slots.append(sl)
            k = 0; flat = []
            if late is not None:
                e.extend(slots[0]); slots = slots[1:]
                self.emit_next_layer_dma(late)
            for i, sl in enumerate(slots):
                flat += sl
                want = -(-len(fill) * (i + 1) // len(slots))
                while k < want: flat += fill[k]; k += 1
            e.extend(flat)
    def bd_epilogue(self, last_blk, final):
        e = self.e
        EX = 88
        for tau in range(5):
            a = ACC + (tau * 2 + 1) * 4
            e('ds_write_b128 v%d, v[%d:%d] offset:%d' % (vEXW, a, a + 3, tau * 1024))
        e.wait_lgkm0()
        e('s_barrier')
        for tau in range(5):
            e('ds_read_b128 v[%d:%d], v%d offset:%d' % (EX + 4 * tau, EX + 4 * tau + 3, vEXR, tau * 1024))
        U = 112
        for d in range(10):
            e('v_lshlrev_b32 v%d, 16, v%d' % (U + 2 * d, XR + d))
            e('v_and_b32 v%d, 0xffff0000, v%d' % (U + 2 * d + 1, XR + d))
        for tau in range(5):
            a = ACC + (tau * 2) * 4
            for c in range(4):
                e('v_add_f32 v%d, v%d, v%d' % (U + 4 * tau + c, U + 4 * tau + c, a + c))
        for tau in range(5):
            for c in range(4):
                e('v_add_f32 v%d, v%d, v%d' % (U + 4 * tau + c, U + 4 * tau + c, EX + 4 * tau + c))
        for d in range(10): e('v_cvt_pk_bf16_f32 v%d, v%d, v%d' % (XR + d, U + 2 * d, U + 2 * d + 1))
        final()
    def bd_stats(self, base_off, next_layer):
        e = self.e
        S, Q = 136, 137
        e('v_mov_b32 v%d, 0\nv_mov_b32 v%d, 0' % (S, Q))
        for d in range(10):
            e('v_dot2c_f32_bf16 v%d, v%d, v%d' % (S, XR + d, vONES))
            e('v_dot2c_f32_bf16 v%d, v%d, v%d' % (Q, XR + d, XR + d))
        for sw in ('v_permlane16_swap_b32', 'v_permlane32_swap_b32'):
            e('v_mov_b32 v138, v%d\nv_mov_b32 v139, v%d' % (S, Q))
            e('%s v%d, v138\n%s v%d, v139' % (sw, S, sw, Q))
            e('v_add_f32 v%d, v%d, v138\nv_add_f32 v%d, v%d, v139' % (S, S, Q, Q))
        e('s_lshl_b32 s%d, s%d, 10\ns_lshl_b32 s%d, s%d, 3\ns_add_u32 s%d, s%d, s%d' % (sT2, sTTK, sT3, sCS, sT2, sT2, sT3))
        e('s_add_u32 s%d, s%d, s%d\ns_add_u32 s%d, s%d, 0x%x' % (sT2, sT2, sLOFF, sT2, sT2, base_off + (LSTRIDE if next_layer else 0)))
        e('buffer_store_dwordx2 v[%d:%d], v%d, s[4:7], s%d offen sc1' % (S, Q, vST, sT2))
    def phase_b(self):
        e = self.e
        self.cnt(sT0, CNT_O, sRB)
        self.poll(sT0)
        def bases():
            for (s, tt) in ((sB0, sTTK), (sB1, sTTS)):
                e('s_mul_i32 s%d, s%d, 20\ns_mul_i32 s%d, s%d, 10\ns_add_u32 s%d, s%d, s%d\ns_lshl_b32 s%d, s%d, 10' % (s, tt, sT1, sKH, s, s, sT1, s, s))
                e('s_add_u32 s%d, s%d, s%d\ns_add_u32 s%d, s%d, 0x%x' % (s, s, sLOFF, s, s, O))
        bases()
        def tok(i, u):
            s = sB0 if u == 0 else sB1
            t = sC1 + u
            g = []
            if i % 4 == 0: g.append('s_add_u32 s%d, s%d, %d' % (t, s, i * 1024))
            g.append('buffer_load_dwordx4 a[%d:%d], v%d, s[4:7], s%d offen offset:%d sc1' % ((2 * i + u) * 4, (2 * i + u) * 4 + 3, vL16, t, (i % 4) * 1024))
            return g
        def pre0():
            e('s_barrier')
            for i in range(10):
                for u in range(2): e.extend(tok(i, u))
        self.gemm_bd(B0, 10, {}, {0: pre0}, 'b')
        def final():
            e('s_mul_i32 s%d, s%d, 20480\ns_add_u32 s%d, s%d, s%d\ns_add_u32 s%d, s%d, 0x%x' % (sT0, sTTK, sT0, sT0, sLOFF, sT0, sT0, XC))
            e('buffer_store_dwordx4 v[%d:%d], v%d, s[4:7], s%d offen sc1' % (XR, XR + 3, vX0, sT0))
            e('buffer_store_dwordx4 v[%d:%d], v%d, s[4:7], s%d offen sc1' % (XR + 4, XR + 7, vX1, sT0))
            e('buffer_store_dwordx2 v[%d:%d], v%d, s[4:7], s%d offen sc1' % (XR + 8, XR + 9, vX2, sT0))
            self.bd_stats(SC, False)
            self.cnt(sT1, CNT_XC, sRB)
            self.signal(sT1)
            for g in self.dma_ops(self.freed_by(B0 + 4)): e.extend(g)
        self.bd_epilogue(B0 + 4, final)
        return self.maybe_stop('b')
    def gelu_ops(self, accset, u, vRS, vVE, HP, t):
        L = []
        k0 = -2.0 * 0.7978845608028654 * LOG2E
        k1 = k0 * 0.044715
        G = [accset + (p * 2 + u) * 4 + c for p in range(2) for c in range(4)]
        U = [accset + ((2 + p) * 2 + u) * 4 + c for p in range(2) for c in range(4)]
        g = [t + i for i in range(8)]; w = [t + 8 + i for i in range(8)]
        for i in range(8): L.append('v_mul_f32 v%d, v%d, v%d' % (g[i], G[i], vRS))
        for i in range(8): L.append('v_mul_f32 v%d, v%d, v%d' % (w[i], g[i], g[i]))
        for i in range(8): L.append('v_fma_f32 v%d, v%d, s%d, s%d' % (w[i], w[i], sC3, sC4) if False else 'v_fma_f32 v%d, v%d, v%d, v%d' % (w[i], w[i], vT3, vT4))
        for i in range(8): L.append('v_mul_f32 v%d, v%d, v%d' % (w[i], w[i], g[i]))
        for i in range(8): L.append('v_exp_f32 v%d, v%d' % (w[i], w[i]))
        for i in range(8): L.append('v_mul_f32 v%d, v%d, v%d' % (g[i], G[i], U[i]))
        for i in range(8): L.append('v_fma_f32 v%d, v%d, v%d, v%d' % (w[i], w[i], vVE, vVE))
        for i in range(8): L.append('v_rcp_f32 v%d, v%d' % (w[i], w[i]))
        for i in range(8): L.append('v_mul_f32 v%d, v%d, v%d' % (g[i], g[i], w[i]))
        for d in range(4): L.append('v_cvt_pk_bf16_f32 v%d, v%d, v%d' % (HP + d, g[2 * d], g[2 * d + 1]))
        return L
    def phase_c(self):
        e = self.e
        ST, RS, VE, BMs, AM, GT, HP = 112, (120, 121), (122, 123), (124, 132), 136, 152, (168, 172)
        k0 = -2.0 * 0.7978845608028654 * LOG2E
        self.cnt(sT0, CNT_XC, sRB)
        self.poll(sT0)
        e.wait_tag('blk%d' % C0); e.wait_tag('blk%d' % (C0 + 1))
        e('s_barrier')
        e('s_lshl_b32 s%d, s%d, 3\ns_lshl_b32 s%d, s%d, 1\ns_add_u32 s%d, s%d, s%d' % (sT0, sRB, sT1, sW, sT0, sT0, sT1))
        e('s_lshl_b32 s%d, s%d, 10\ns_add_u32 s%d, s%d, s%d\ns_add_u32 s%d, s%d, 0x%x' % (sT1, sT0, sT1, sT1, sLOFF, sT1, sT1, SC))
        e('buffer_load_dwordx4 v[%d:%d], v%d, s[4:7], s%d offen sc1' % (ST, ST + 3, vSC, sT1))
        e('buffer_load_dwordx4 v[%d:%d], v%d, s[4:7], s%d offen offset:1024 sc1' % (ST + 4, ST + 7, vSC, sT1))
        e('s_mul_i32 s%d, s%d, 20480\ns_add_u32 s%d, s%d, s%d\ns_add_u32 s%d, s%d, 0x%x' % (sB0, sT0, sB0, sB0, sLOFF, sB0, sB0, XC))
        e('s_add_u32 s%d, s%d, 20480' % (sB1, sB0))
        e('s_mul_i32 s%d, s%d, 48\ns_add_u32 s%d, s%d, s%d\ns_lshl_b32 s%d, s%d, 10' % (sTW, sT0, sTW, sTW, sJ, sTW, sTW))
        e('s_add_u32 s%d, s%d, s%d\ns_add_u32 s%d, s%d, 0x%x' % (sTW, sTW, sLOFF, sTW, sTW, HH))
        e('s_mul_i32 s%d, s%d, %d\ns_add_u32 s%d, s%d, 0x%x' % (sT4, sJ, 12 * KB, sT4, sT4, WCM))
        e('v_mov_b32 v%d, %s\nv_mov_b32 v%d, %s' % (vT3, f32bits(k0 * 0.044715), vT4, f32bits(k0)))
        def tok(s, u):
            sb = sB0 if u == 0 else sB1; t = sC1 + u
            g = []
            if s % 4 == 0: g.append('s_add_u32 s%d, s%d, %d' % (t, sb, s * 1024))
            g.append('buffer_load_dwordx4 a[%d:%d], v%d, s[4:7], s%d offen offset:%d sc1' % ((2 * s + u) * 4, (2 * s + u) * 4 + 3, vL16, t, (s % 4) * 1024))
            return g
        NPRE = 3
        for s in range(NPRE):
            for u in range(2): e.extend(tok(s, u))
        def amload(sg):
            if sg == 0: pre = []
            else: pre = ['s_add_u32 s%d, s%d, 4096' % (sT4, sT4)]
            return [pre + ['buffer_load_dwordx4 v[%d:%d], v%d, s[4:7], s%d offen' % (AM, AM + 3, vL16, sT4)]] + \
                   [['buffer_load_dwordx4 v[%d:%d], v%d, s[4:7], s%d offen offset:%d' % (AM + 4 * t, AM + 4 * t + 3, vL16, sT4, t * 1024)] for t in range(1, 4)]
        st = []
        for u in range(2):
            b = ST + 4 * u
            st += ['v_add_f32 v%d, v%d, v%d' % (b, b, b + 2), 'v_add_f32 v%d, v%d, v%d' % (b + 1, b + 1, b + 3)]
            for sw in ('v_permlane16_swap_b32', 'v_permlane32_swap_b32'):
                st += ['v_mov_b32 v%d, v%d' % (b + 2, b), 'v_mov_b32 v%d, v%d' % (b + 3, b + 1),
                       '%s v%d, v%d' % (sw, b, b + 2), '%s v%d, v%d' % (sw, b + 1, b + 3),
                       'v_add_f32 v%d, v%d, v%d' % (b, b, b + 2), 'v_add_f32 v%d, v%d, v%d' % (b + 1, b + 1, b + 3)]
            st += self.rowstat_finish(b, b + 1, RS[u], VE[u], BMs[u], b + 2)
        LA = 5
        def read(n): return self.ring_read(AF + 4 * (n % 8), C0 + n // 20, (n % 20) * 1024)
        def mf(n, u):
            sg, r = n // 80, n % 80; s, tl = r // 4, r % 4
            acc = ACC + 32 * (sg & 1) + (tl * 2 + u) * 4; a = AF + 4 * (n % 8); b = (2 * s + u) * 4
            c = '0' if s == 0 else 'v[%d:%d]' % (acc, acc + 3)
            return 'v_mfma_f32_16x16x32_bf16 v[%d:%d], v[%d:%d], a[%d:%d], %s' % (acc, acc + 3, a, a + 3, b, b + 3, c)
        def mean(sg):
            L = []
            for tl in range(4):
                for u in range(2):
                    acc = ACC + 32 * (sg & 1) + (tl * 2 + u) * 4
                    L.append('v_mfma_f32_16x16x32_bf16 v[%d:%d], v[%d:%d], v[%d:%d], v[%d:%d]' % (acc, acc + 3, AM + 4 * tl, AM + 4 * tl + 3, BMs[u], BMs[u] + 3, acc, acc + 3))
            return L
        def gelu_store(sg):
            L = []
            for u in range(2):
                L += self.gelu_ops(ACC + 32 * (sg & 1), u, RS[u], VE[u], HP[u], GT)
                L.append('s_add_u32 s%d, s%d, %d' % (sT5, sTW, u * 48 * 1024 + sg * 16 * 1024))
                L.append(('buffer_store_dwordx4 v[%d:%d], v%d, s[4:7], s%d offen sc1' % (HP[u], HP[u] + 3, vL16, sT5), 'h%d' % sg))
            return L
        for n in range(LA): e(read(n))
        tokq = [(s, u) for s in range(NPRE, 20) for u in range(2)]
        pend = []
        for ep in range(12):
            b = C0 + ep; sg = ep // 4
            sig = None
            if ep > 0:
                if ep < 11: e.wait_tag('blk%d' % (b + 1))
                if ep % 4 == 3 and sg > 0:
                    assert not pend
                    e.wait_tag('h%d' % (sg - 1)); sig = sg - 1
                e('s_barrier')
                if sig is not None:
                    self.cnt(sT0, CNT_H, sRB, mul=384, add=128 * sig)
                    self.signal_only(sT0)
            fill = []
            if ep > 0: fill += self.dma_ops(self.freed_by(b - 1))
            if ep % 4 == 1: fill += amload(sg)
            if ep == 1: fill += [[x] for x in st]
            if ep % 4 == 0 and sg > 0:
                e.extend(mean(sg - 1))
                pend = gelu_store(sg - 1)
            slots = []
            for n in range(20 * ep, 20 * ep + 20):
                sl = [mf(n, 0)]
                if n + LA < 240: sl.append(read(n + LA))
                if sg == 0 and tokq and (n % 2 == 1): sl += tok(*tokq.pop(0))
                sl.append(mf(n, 1))
                slots.append(sl)
            left = (4 - ep % 4) * 20
            per = -(-len(pend) // max(left - 30, 1)) if pend else 0
            k = 0; flat = []
            for i, sl in enumerate(slots):
                flat += sl
                want = -(-len(fill) * (i + 1) // len(slots))
                while k < want: flat += fill[k]; k += 1
                if pend and not (ep % 4 == 0 and i < 2):
                    flat += pend[:per]; del pend[:per]
            e.extend(flat)
        e.extend(mean(2))
        e.extend(gelu_store(2))
        self.cnt(sT0, CNT_H, sRB, mul=384, add=256)
        self.signal(sT0)
        for g in self.dma_ops(self.freed_by(C0 + 11)): e.extend(g)
        return self.maybe_stop('c')
    def phase_d(self):
        e = self.e
        self.cnt(sT0, CNT_H, sRB, mul=384)
        self.poll(sT0, n=2)
        for (s, tt) in ((sB0, sTTK), (sB1, sTTS)):
            e('s_mul_i32 s%d, s%d, 48\ns_add_u32 s%d, s%d, s%d\ns_lshl_b32 s%d, s%d, 10' % (s, tt, s, s, sKH, s, s))
            e('s_add_u32 s%d, s%d, s%d\ns_add_u32 s%d, s%d, 0x%x' % (s, s, sLOFF, s, s, HH))
        def tok(i, u):
            sg, jj = i // 8, i % 8
            s = sB0 if u == 0 else sB1; t = sC1 + u
            g = []
            if jj % 2 == 0: g.append('s_add_u32 s%d, s%d, %d' % (t, s, sg * 16384 + jj * 2048))
            g.append('buffer_load_dwordx4 a[%d:%d], v%d, s[4:7], s%d offen offset:%d sc1' % ((2 * i + u) * 4, (2 * i + u) * 4 + 3, vL16, t, (jj % 2) * 2048))
            return g
        def pre0():
            e('s_barrier')
            for i in range(4):
                for u in range(2): e.extend(tok(i, u))
        def pre4():
            self.cnt(sT0, CNT_H, sRB, mul=384, add=256)
            self.poll(sT0)
        tl = {}
        rest = [(i, u) for i in range(4, 16) for u in range(2)]
        for ep in range(4): tl[ep] = [tok(*x) for x in rest[6 * ep:6 * ep + 6]]
        last = [(i, u) for i in range(16, 24) for u in range(2)]
        for ep in range(4, 8): tl[ep] = [tok(*x) for x in last[4 * (ep - 4):4 * (ep - 4) + 4]]
        self.gemm_bd(D0, 24, tl, {0: pre0, 4: pre4}, 'd')
        def final():
            L = self.lab('d_last'); X = self.lab('d_done')
            e('s_cmp_lg_u32 s%d, 0' % sL); e('s_cbranch_scc1 %s' % L)
            e('s_lshr_b32 s%d, s%d, 1\ns_mul_i32 s%d, s%d, 40960\ns_add_u32 s%d, s%d, s%d\ns_add_u32 s%d, s%d, 0x%x' % (sT0, sTTK, sT0, sT0, sT0, sT0, sLOFF, sT0, sT0, XA + LSTRIDE))
            e('buffer_store_dwordx4 v[%d:%d], v%d, s[4:7], s%d offen sc1' % (XR, XR + 3, vY0, sT0))
            e('buffer_store_dwordx4 v[%d:%d], v%d, s[4:7], s%d offen sc1' % (XR + 4, XR + 7, vY1, sT0))
            e('buffer_store_dwordx2 v[%d:%d], v%d, s[4:7], s%d offen sc1' % (XR + 8, XR + 9, vY2, sT0))
            self.bd_stats(SA, True)
            self.cnt(sT1, CNT_XA, sRB, next_layer=True)
            self.signal(sT1)
            for g in self.dma_ops(self.freed_by(D0 + 11)):
                for x in g:
                    if isinstance(x, tuple): e(x[0], count=False)
                    else: e(x)
            e('s_branch %s' % X)
            e.label(L)
            e('s_mul_i32 s%d, s%d, 20480\ns_mul_i32 s%d, s%d, 160\ns_add_u32 s%d, s%d, s%d' % (sT0, sTTK, sT1, sCS, sT0, sT0, sT1))
            e('buffer_store_dwordx4 v[%d:%d], v%d, s[12:15], s%d offen' % (XR, XR + 3, vR0, sT0))
            e('buffer_store_dwordx4 v[%d:%d], v%d, s[12:15], s%d offen offset:64' % (XR + 4, XR + 7, vR0, sT0))
            e('buffer_store_dwordx2 v[%d:%d], v%d, s[12:15], s%d offen' % (XR + 8, XR + 9, vR2, sT0))
            e('s_endpgm')
            e.label(X)
        self.bd_epilogue(D0 + 11, final)
        return self.maybe_stop('d')
    def build(self):
        e = self.e
        self.prologue()
        e.label('M_LAYER')
        e.reset_state()
        done = self.phase_a() or self.phase_b() or self.phase_c() or self.phase_d()
        if not done:
            e.wait_all()
            e('s_add_u32 s%d, s%d, 1\ns_add_u32 s%d, s%d, 0x%x' % (sL, sL, sLOFF, sLOFF, LSTRIDE))
            e('s_branch M_LAYER')
        e.label('M_END')
        e('s_endpgm')
        return e
```

```python
from asmlib import *
from layout import *

P0_GRID = 513
P0_LDS = 28 * 1024
NAME = 'prep_kernel'

def srd(e, dst, lo, nbytes):
    e('s_mov_b32 s%d, s%d' % (dst, lo))
    e('s_mov_b32 s%d, s%d' % (dst + 1, lo + 1))
    e('s_mov_b32 s%d, 0x%x' % (dst + 2, nbytes))
    e('s_mov_b32 s%d, 0x20000' % (dst + 3))

S_WS, S_SRC, S_SRC2, S_W = 4, 8, 12, 16

def gen_p0():
    e = Asm()
    e.directive('.text\n.globl %s\n.p2align 8\n.type %s,@function' % (NAME, NAME))
    e.label(NAME)
    e('s_cmp_ge_u32 s2, %d' % P0_GRID)
    e('s_cbranch_scc1 P0_END')
    e('s_load_dwordx8 s[40:47], s[0:1], 0')
    e('s_load_dwordx4 s[48:51], s[0:1], 40')
    e('s_load_dwordx2 s[52:53], s[0:1], 56')
    e('s_load_dwordx2 s[54:55], s[0:1], 80')
    e('v_lshrrev_b32 v1, 6, v0')
    e('v_and_b32 v2, 63, v0')
    e('v_readfirstlane_b32 s16, v1')
    e('v_mov_b32 v3, 0x3f803f80')
    e('v_lshlrev_b32 v4, 4, v2')
    e('s_waitcnt lgkmcnt(0)')
    srd(e, S_WS, 54, WS_BYTES)
    e('s_cmp_lt_u32 s2, 96');  e('s_cbranch_scc1 P0_WA')
    e('s_cmp_lt_u32 s2, 288'); e('s_cbranch_scc1 P0_WC')
    e('s_cmp_lt_u32 s2, 416'); e('s_cbranch_scc1 P0_WD')
    e('s_cmp_lt_u32 s2, 448'); e('s_cbranch_scc1 P0_WB')
    e('s_cmp_lt_u32 s2, 512'); e('s_cbranch_scc1 P0_X')
    e('v_lshlrev_b32 v5, 4, v0')
    for r in range(8, 12): e('v_mov_b32 v%d, 0' % r)
    for l in range(2):
        for n in range(4):
            e('s_mov_b32 s20, 0x%x' % (LBASE + l * LSTRIDE + CNT + n * 4096))
            e('buffer_store_dwordx4 v[8:11], v5, s[4:7], s20 offen')
    e('s_endpgm')
    gen_wa(e); gen_wc(e); gen_wd(e); gen_wb(e); gen_x(e)
    e.label('P0_END')
    e('s_endpgm')
    return e

def hilo_store(e, vsum, vtmp, voff, soff):
    e('v_cvt_pk_bf16_f32 v%d, v%d, v%d' % (vtmp, vsum, vsum))
    e('v_and_b32 v%d, 0xffff0000, v%d' % (vtmp + 2, vtmp))
    e('v_sub_f32 v%d, v%d, v%d' % (vtmp + 2, vsum, vtmp + 2))
    e('v_cvt_pk_bf16_f32 v%d, v%d, v%d' % (vtmp + 1, vtmp + 2, vtmp + 2))
    e('buffer_store_dwordx2 v[%d:%d], v%d, s[4:7], %s offen' % (vtmp, vtmp + 1, voff, soff))

def gen_wa(e):
    e.label('P0_WA')
    e.reset_state()
    srd(e, S_SRC, 42, 640 * 3840)
    srd(e, S_SRC2, 44, 32 * 800)
    e('s_lshl_b32 s20, s2, 2\ns_add_u32 s20, s20, s16')
    e('s_mul_i32 s21, s20, 2731\ns_lshr_b32 s21, s21, 16')
    e('s_mul_i32 s22, s21, 24\ns_sub_u32 s22, s20, s22')
    e('s_mul_i32 s23, s22, 43\ns_lshr_b32 s23, s23, 8')
    e('s_mul_i32 s24, s23, 6\ns_sub_u32 s24, s22, s24')
    e('s_lshr_b32 s25, s24, 1\ns_and_b32 s26, s24, 1')
    e('s_lshl_b32 s27, s21, 1\ns_add_u32 s27, s27, s26')
    e('s_add_u32 s28, s25, 1\ns_mul_i32 s28, s28, 640')
    e('s_cmp_eq_u32 s25, 2\ns_cselect_b32 s28, 0, s28')
    e('s_mul_i32 s29, s27, 20\ns_add_u32 s28, s28, s29\ns_lshl_b32 s28, s28, 1')
    e('s_mul_i32 s29, s23, %d\ns_add_u32 s28, s28, s29' % (160 * 3840))
    e('v_and_b32 v5, 31, v2\nv_lshrrev_b32 v6, 5, v2')
    e('v_and_b32 v7, 0x13, v5')
    e('v_bfe_u32 v8, v5, 2, 1\nv_lshl_add_u32 v7, v8, 3, v7')
    e('v_bfe_u32 v8, v5, 3, 1\nv_lshl_add_u32 v7, v8, 2, v7')
    e('v_mul_u32_u24 v7, 3840, v7\nv_lshl_add_u32 v7, v6, 4, v7')
    for kt in range(5):
        e('s_add_u32 s30, s28, %d' % (kt * 32 * 3840))
        for m in range(2):
            r = 32 + 8 * kt + 4 * m
            e('buffer_load_dwordx4 v[%d:%d], v7, s[8:11], s30 offen offset:%d' % (r, r + 3, 32 * m))
    e('s_cmp_eq_u32 s25, 1\ns_cbranch_scc1 P0_WA_ID')
    e('v_lshlrev_b32 v8, 1, v5')
    e('v_mul_u32_u24 v9, 320, v6\nv_add_u32 v8, v8, v9')
    e('s_mul_i32 s30, s27, 800')
    e('v_mov_b32 v10, 0x%x' % OOB)
    e('v_cmp_gt_u32 vcc, 20, v5\nv_cndmask_b32 v8, v10, v8, vcc')
    e('v_cmp_eq_u32 vcc, 0, v6\nv_cndmask_b32 v9, v10, v8, vcc')
    for el in range(8):
        e('buffer_load_ushort v%d, v8, s[12:15], s30 offen offset:%d' % (80 + el, el * 40))
    for el in range(4):
        e('buffer_load_ushort v%d, v9, s[12:15], s30 offen offset:%d' % (88 + el, (16 + el) * 40))
    for d in range(4): e('v_lshl_or_b32 v%d, v%d, 16, v%d' % (72 + d, 81 + 2 * d, 80 + 2 * d))
    for d in range(2): e('v_lshl_or_b32 v%d, v%d, 16, v%d' % (76 + d, 89 + 2 * d, 88 + 2 * d))
    e('v_mov_b32 v78, 0\nv_mov_b32 v79, 0')
    e.wait_all()
    e('s_branch P0_WA_GO')
    e.label('P0_WA_ID')
    e('v_lshlrev_b32 v8, 3, v6\nv_sub_u32 v8, v5, v8')
    e('v_mov_b32 v10, 0x3f80\nv_mov_b32 v11, 0x3f800000\nv_mov_b32 v12, 0')
    for m in range(2):
        if m == 1: e('v_subrev_u32 v8, 16, v8')
        for d in range(4):
            e('v_cmp_eq_u32 vcc, %d, v8' % (2 * d))
            e('v_cndmask_b32 v%d, v12, v10, vcc' % (72 + 4 * m + d))
            e('v_cmp_eq_u32 vcc, %d, v8' % (2 * d + 1))
            e('v_cndmask_b32 v%d, v%d, v11, vcc' % (72 + 4 * m + d, 72 + 4 * m + d))
    e.wait_all()
    e.label('P0_WA_GO')
    e.reset_state()
    e('s_mul_i32 s30, s25, 20\nv_add_u32 v8, s30, v5')
    e('v_lshrrev_b32 v9, 4, v8\nv_and_b32 v10, 15, v8')
    e('v_lshrrev_b32 v11, 2, v10\nv_lshlrev_b32 v11, 3, v11')
    e('v_and_b32 v10, 3, v10\nv_add_u32 v11, v11, v10')
    e('s_lshl_b32 s31, s26, 2\nv_add_u32 v11, s31, v11')
    e('v_lshl_add_u32 v12, v6, 5, v11\nv_lshlrev_b32 v12, 4, v12')
    e('v_cmp_gt_u32 vcc, 3, v9')
    e('v_mov_b32 v13, 120\nv_cndmask_b32 v13, v13, v9, vcc')
    e('v_mov_b32 v14, 1024\nv_mov_b32 v15, 3072\nv_cndmask_b32 v14, v14, v15, vcc')
    e('v_lshl_add_u32 v12, v13, 10, v12')
    e('s_mul_i32 s31, s23, 10\nv_mul_lo_u32 v15, v14, s31\nv_add_u32 v12, v12, v15')
    e('s_cmp_eq_u32 s25, 2\ns_cselect_b32 s32, 24, 20')
    e('v_cmp_gt_u32 vcc, s32, v5\nv_mov_b32 v16, 0x%x' % OOB)
    e('s_mov_b64 s[34:35], vcc', count=False) if False else None
    e('v_cndmask_b32 v12, v16, v12, vcc')
    e('v_cndmask_b32 v14, 0, v14, vcc') if False else None
    e('v_lshlrev_b32 v17, 10, v9\nv_lshl_add_u32 v17, v11, 4, v17')
    e('v_cndmask_b32 v17, v16, v17, vcc')
    e('v_cmp_eq_u32 vcc, 0, v6\nv_cndmask_b32 v17, v16, v17, vcc')
    e('s_mul_i32 s33, s21, %d\ns_add_u32 s33, s33, 0x%x' % (160 * KB, WA))
    e('v_mov_b32 v18, 0')
    for kt in range(5):
        a0 = 32 + 8 * kt
        e('v_mfma_f32_32x32x16_bf16 v[96:111], v[%d:%d], v[72:75], 0' % (a0, a0 + 3))
        e('v_mfma_f32_32x32x16_bf16 v[96:111], v[%d:%d], v[76:79], v[96:111]' % (a0 + 4, a0 + 7))
        for d in range(8):
            e('v_cvt_pk_bf16_f32 v%d, v%d, v%d' % (112 + d, 96 + 2 * d, 97 + 2 * d))
        for d in range(8):
            e('v_dot2c_f32_bf16 v18, v%d, v3' % (112 + d))
        e('buffer_store_dwordx4 v[112:115], v12, s[4:7], s33 offen')
        e('v_add_u32 v19, v12, v14')
        e('buffer_store_dwordx4 v[116:119], v19, s[4:7], s33 offen')
        e('v_add_u32 v12, v19, v14')
    e('v_mov_b32 v19, v18')
    e('v_permlane32_swap_b32 v18, v19')
    e('v_add_f32 v18, v18, v19')
    e('s_lshl_b32 s34, s21, 12\ns_add_u32 s34, s34, 0x%x' % WAM)
    e('s_lshr_b32 s35, s23, 1\ns_lshl_b32 s35, s35, 9\ns_add_u32 s34, s34, s35')
    e('s_and_b32 s35, s23, 1\ns_lshl_b32 s35, s35, 3\ns_add_u32 s34, s34, s35')
    hilo_store(e, 18, 20, 17, 's34')
    e('s_endpgm')

def tr_lane(e):
    e('v_lshrrev_b32 v5, 4, v2\nv_bfe_u32 v6, v2, 2, 2\nv_and_b32 v7, 3, v2')

def gen_wc(e):
    e.label('P0_WC')
    e.reset_state()
    e('s_sub_u32 s20, s2, 96')
    e('s_cmp_ge_u32 s20, 96\ns_cselect_b32 s21, 1, 0')
    e('s_cselect_b32 s8, s50, s48\ns_cselect_b32 s9, s51, s49')
    e('s_mov_b32 s10, 0x%x\ns_mov_b32 s11, 0x20000' % (640 * 3072))
    e('s_mul_i32 s22, s21, 96\ns_sub_u32 s22, s20, s22')
    e('s_lshr_b32 s23, s22, 2\ns_and_b32 s24, s22, 3')
    e('v_lshrrev_b32 v8, 3, v2\nv_mul_u32_u24 v8, 3072, v8')
    e('v_and_b32 v9, 7, v2\nv_lshl_add_u32 v8, v9, 4, v8')
    e('s_mul_i32 s25, s24, %d\ns_lshl_b32 s26, s23, 7\ns_add_u32 s25, s25, s26' % (160 * 3072))
    e('s_mul_i32 s26, s16, %d\ns_add_u32 s25, s25, s26' % (40 * 3072))
    e('s_mul_i32 s27, s16, 5120')
    for n in range(5):
        e('s_add_u32 m0, s27, %d' % (n * 1024))
        e('s_add_u32 s28, s25, %d' % (n * 8 * 3072))
        e('buffer_load_dwordx4 v8, s[8:11], s28 offen lds')
    tr_lane(e)
    e('v_lshl_add_u32 v9, v5, 3, v6\nv_lshlrev_b32 v9, 7, v9')
    e('v_lshl_add_u32 v9, v7, 3, v9')
    e('s_lshl_b32 s26, s16, 5\nv_add_u32 v9, s26, v9')
    e('s_lshl_b32 s26, s23, 2\ns_add_u32 s26, s26, s16')
    e('s_mul_i32 s27, s26, 171\ns_lshr_b32 s27, s27, 10')
    e('s_mul_i32 s28, s27, 6\ns_sub_u32 s28, s26, s28\ns_lshr_b32 s28, s28, 1')
    e('s_and_b32 s29, s26, 1\ns_lshl_b32 s30, s21, 1\ns_add_u32 s29, s29, s30')
    e('s_mul_i32 s30, s27, 240\ns_mul_i32 s31, s28, 80\ns_add_u32 s30, s30, s31')
    e('s_mul_i32 s31, s24, 20\ns_add_u32 s30, s30, s31\ns_add_u32 s30, s30, s29')
    e('s_lshl_b32 s30, s30, 10\ns_add_u32 s30, s30, 0x%x' % WC)
    e('v_mov_b32 v18, 0')
    e.wait_all()
    e('s_barrier')
    for s in range(5):
        r = 32 + 4 * s
        e('ds_read_b64_tr_b16 v[%d:%d], v9 offset:%d' % (r, r + 1, s * 4096))
        e('ds_read_b64_tr_b16 v[%d:%d], v9 offset:%d' % (r + 2, r + 3, s * 4096 + 512))
    for s in range(5):
        r = 32 + 4 * s
        e('s_add_u32 s31, s30, %d' % (s * 4096))
        e('buffer_store_dwordx4 v[%d:%d], v4, s[4:7], s31 offen' % (r, r + 3))
        for d in range(4): e('v_dot2c_f32_bf16 v18, v%d, v3' % (r + d))
    e('v_mov_b32 v19, v18\nv_permlane16_swap_b32 v18, v19\nv_add_f32 v18, v18, v19')
    e('v_mov_b32 v19, v18\nv_permlane32_swap_b32 v18, v19\nv_add_f32 v18, v18, v19')
    e('v_and_b32 v10, 15, v2\nv_lshlrev_b32 v10, 4, v10')
    e('v_lshl_add_u32 v10, v5, 9, v10')
    e('v_mov_b32 v11, 0x%x' % OOB)
    e('v_cmp_gt_u32 vcc, 2, v5\nv_cndmask_b32 v10, v11, v10, vcc')
    e('v_cmp_eq_u32 vcc, 0, v5\nv_cndmask_b32 v18, 0, v18, vcc')
    e('s_mul_i32 s31, s27, 12\ns_lshl_b32 s32, s28, 2\ns_add_u32 s31, s31, s32\ns_add_u32 s31, s31, s29')
    e('s_lshl_b32 s31, s31, 10\ns_add_u32 s31, s31, 0x%x' % WCM)
    e('s_lshr_b32 s32, s24, 1\ns_lshl_b32 s32, s32, 8\ns_add_u32 s31, s31, s32')
    e('s_and_b32 s32, s24, 1\ns_lshl_b32 s32, s32, 3\ns_add_u32 s31, s31, s32')
    hilo_store(e, 18, 20, 10, 's31')
    e('s_endpgm')

def dma160_voff(e, dst):
    e('v_mul_u32_u24 v8, 205, v2\nv_lshrrev_b32 v8, 11, v8')
    e('v_mul_u32_u24 v9, 10, v8\nv_sub_u32 v9, v2, v9')
    e('v_min_u32 v8, 5, v8')
    e('v_mul_u32_u24 v8, 1280, v8\nv_lshl_add_u32 v%d, v9, 4, v8' % dst)

def row_to_lds(e, vrow, vdst, vt):
    e('v_mul_u32_u24 v%d, 171, v%d\nv_lshrrev_b32 v%d, 10, v%d' % (vt, vrow, vt, vt))
    e('v_mul_u32_u24 v%d, 6, v%d\nv_sub_u32 v%d, v%d, v%d' % (vdst, vt, vdst, vrow, vdst))
    e('v_mul_u32_u24 v%d, 160, v%d\nv_lshl_add_u32 v%d, v%d, 10, v%d' % (vdst, vdst, vdst, vt, vdst))

def gen_wd(e):
    e.label('P0_WD')
    e.reset_state()
    srd(e, S_SRC, 52, 1536 * 1280)
    e('s_sub_u32 s20, s2, 288\ns_lshr_b32 s21, s20, 4\ns_and_b32 s22, s20, 15')
    dma160_voff(e, 10)
    e('s_mul_i32 s23, s22, %d\ns_mul_i32 s24, s21, 160\ns_add_u32 s23, s23, s24' % (96 * 1280))
    e('s_mul_i32 s24, s16, %d\ns_add_u32 s23, s23, s24' % (24 * 1280))
    e('s_lshl_b32 s25, s16, 12')
    for n in range(4):
        e('s_add_u32 m0, s25, %d' % (n * 1024))
        e('s_add_u32 s26, s23, %d' % (n * 6 * 1280))
        e('buffer_load_dwordx4 v10, s[8:11], s26 offen lds')
    tr_lane(e)
    e('s_lshl_b32 s26, s16, 5')
    e('v_lshl_add_u32 v11, v5, 2, v6\nv_add_u32 v11, s26, v11')
    e('v_min_u32 v11, 79, v11')
    row_to_lds(e, 11, 12, 13)
    e('v_add_u32 v11, 16, v11')
    row_to_lds(e, 11, 14, 13)
    e('v_lshl_add_u32 v16, v7, 4, v12\nv_lshl_add_u32 v17, v7, 4, v14')
    e('v_lshl_add_u32 v18, v7, 3, v12\nv_lshl_add_u32 v19, v7, 3, v14')
    e('s_lshl_b32 s27, s16, 3\ns_lshr_b32 s28, s22, 1\ns_add_u32 s27, s27, s28\ns_mul_i32 s27, s27, 10')
    e('s_and_b32 s28, s22, 1\ns_mul_i32 s28, s28, 5\ns_add_u32 s27, s27, s28')
    e('s_mul_i32 s28, s21, 240\ns_add_u32 s27, s27, s28\ns_lshl_b32 s27, s27, 10\ns_add_u32 s27, s27, 0x%x' % WD)
    e.wait_all()
    e('s_barrier')
    e('s_cmp_eq_u32 s16, 3\ns_cbranch_scc1 P0_END')
    for tau in range(5):
        r = 32 + 4 * tau
        off = (8 * tau if tau < 2 else 64 + 8 * (tau - 2)) if tau < 4 else 128
        va, vb = (16, 17) if tau < 4 else (18, 19)
        e('ds_read_b64_tr_b16 v[%d:%d], v%d offset:%d' % (r, r + 1, va, off))
        e('ds_read_b64_tr_b16 v[%d:%d], v%d offset:%d' % (r + 2, r + 3, vb, off))
    for tau in range(5):
        r = 32 + 4 * tau
        e('s_add_u32 s28, s27, %d' % (tau * 1024))
        e('buffer_store_dwordx4 v[%d:%d], v4, s[4:7], s28 offen' % (r, r + 3))
    e('s_endpgm')

def gen_wb(e):
    e.label('P0_WB')
    e.reset_state()
    srd(e, S_SRC, 46, 640 * 1280)
    e('s_sub_u32 s20, s2, 416\ns_lshr_b32 s21, s20, 2\ns_and_b32 s22, s20, 3')
    dma160_voff(e, 10)
    e('s_mul_i32 s23, s22, %d\ns_mul_i32 s24, s21, 160\ns_add_u32 s23, s23, s24' % (160 * 1280))
    e('s_mul_i32 s24, s16, %d\ns_add_u32 s23, s23, s24' % (42 * 1280))
    e('s_mul_i32 s25, s16, 7168')
    for n in range(7):
        e('s_add_u32 m0, s25, %d' % (n * 1024))
        e('s_add_u32 s26, s23, %d' % (n * 6 * 1280))
        e('buffer_load_dwordx4 v10, s[8:11], s26 offen lds')
    tr_lane(e)
    e('s_mul_i32 s27, s21, %d\ns_add_u32 s27, s27, 0x%x' % (100 * KB, WB))
    e.wait_all()
    e('s_barrier')
    def rows(sp):
        e('v_mov_b32 v11, %s' % sp)
        e('v_lshl_add_u32 v11, v11, 2, v5')
        e('v_mul_u32_u24 v12, 52, v11\nv_lshrrev_b32 v12, 8, v12')
        e('v_mul_u32_u24 v13, 5, v12\nv_sub_u32 v13, v11, v13')
        e('v_mul_u32_u24 v12, 40, v12\nv_add_u32 v12, v12, v6')
        e('v_lshlrev_b32 v14, 3, v13')
        e('v_add_u32 v15, 4, v14')
        e('v_cmp_gt_u32 vcc, 2, v13\nv_cndmask_b32 v14, v15, v14, vcc')
        e('v_cmp_eq_u32 vcc, 4, v13\nv_cndmask_b32 v14, v14, 16, vcc') if False else None
        e('v_mov_b32 v15, 16\nv_cmp_eq_u32 vcc, 4, v13\nv_cndmask_b32 v14, v14, v15, vcc')
        e('v_add_u32 v20, v12, v14')
        e('v_mov_b32 v15, 20\nv_cndmask_b32 v15, 4, v15, vcc')
        e('v_add_u32 v21, v20, v15')
        row_to_lds(e, 20, 12, 13)
        row_to_lds(e, 21, 14, 13)
    def dest(sp, tau_sgpr_or_const):
        e('s_mul_i32 s28, s22, 5\ns_add_u32 s28, s28, %s' % sp)
        e('s_cmp_ge_u32 s28, 10\ns_cselect_b32 s29, 5, 0\ns_cselect_b32 s30, 10, 0')
        e('s_sub_u32 s28, s28, s30\ns_mul_i32 s28, s28, 10\ns_add_u32 s28, s28, s29')
        e('s_add_u32 s28, s28, %s' % tau_sgpr_or_const)
        e('s_lshl_b32 s28, s28, 10\ns_add_u32 s28, s28, s27')
    e('s_and_b32 s31, s16, 1\ns_lshl_b32 s31, s31, 3\ns_lshr_b32 s32, s16, 1\ns_lshl_b32 s32, s32, 6\ns_add_u32 s31, s31, s32')
    e('v_lshlrev_b32 v22, 4, v7\nv_add_u32 v22, s31, v22')
    e('v_lshlrev_b32 v23, 3, v7\nv_add_u32 v23, 128, v23')
    def frag(vcol):
        e('v_add_u32 v16, v12, v%d\nv_add_u32 v17, v14, v%d' % (vcol, vcol))
        e('ds_read_b64_tr_b16 v[32:33], v16\nds_read_b64_tr_b16 v[34:35], v17')
        e('buffer_store_dwordx4 v[32:35], v4, s[4:7], s28 offen')
    for sp in range(5):
        rows(str(sp)); dest(str(sp), 's16'); frag(22)
        if sp == 4:
            dest('4', '4'); frag(23)
    rows('s16'); dest('s16', '4'); frag(23)
    e('s_endpgm')

def gen_x(e):
    e.label('P0_X')
    e.reset_state()
    srd(e, S_SRC, 40, T * 1280)
    e('s_sub_u32 s20, s2, 448')
    e('v_and_b32 v5, 31, v2\nv_lshrrev_b32 v6, 5, v2')
    e('v_mul_u32_u24 v7, 1280, v5\nv_lshl_add_u32 v7, v6, 4, v7')
    e('s_mul_i32 s21, s20, 40960\ns_mul_i32 s22, s16, 320\ns_add_u32 s21, s21, s22')
    for n in range(10):
        e('buffer_load_dwordx4 v[%d:%d], v7, s[8:11], s21 offen offset:%d' % (32 + 4 * n, 35 + 4 * n, 32 * n))
    e('s_mul_i32 s22, s20, 40\ns_mul_i32 s23, s16, 10\ns_add_u32 s22, s22, s23')
    e('s_lshl_b32 s22, s22, 10\ns_add_u32 s22, s22, 0x%x' % (LBASE + XA))
    for r in range(20, 24): e('v_mov_b32 v%d, 0' % r)
    for n in range(10):
        r = 32 + 4 * n
        e('s_add_u32 s23, s22, %d' % (n * 1024))
        e('buffer_store_dwordx4 v[%d:%d], v4, s[4:7], s23 offen' % (r, r + 3))
        a = 20 if n < 5 else 22
        for d in range(4):
            e('v_dot2c_f32_bf16 v%d, v%d, v3' % (a, r + d))
            e('v_dot2c_f32_bf16 v%d, v%d, v%d' % (a + 1, r + d, r + d))
    for r in range(20, 24):
        e('v_mov_b32 v24, v%d\nv_permlane32_swap_b32 v%d, v24\nv_add_f32 v%d, v%d, v24' % (r, r, r, r))
    e('v_lshlrev_b32 v8, 6, v5\nv_mov_b32 v9, 0x%x' % OOB)
    e('v_cmp_eq_u32 vcc, 0, v6\nv_cndmask_b32 v8, v9, v8, vcc')
    e('s_lshl_b32 s23, s20, 11\ns_lshl_b32 s24, s16, 4\ns_add_u32 s23, s23, s24\ns_add_u32 s23, s23, 0x%x' % (LBASE + SA))
    e('buffer_store_dwordx4 v[20:23], v8, s[4:7], s23 offen')
    e('s_endpgm')

def descriptor(name, vgpr, accum, sgpr=96):
    return """.amdhsa_kernel %s
  .amdhsa_next_free_vgpr %d
  .amdhsa_next_free_sgpr %d
  .amdhsa_accum_offset %d
  .amdhsa_group_segment_fixed_size 0
  .amdhsa_kernarg_size 88
  .amdhsa_user_sgpr_count 2
  .amdhsa_user_sgpr_kernarg_segment_ptr 1
  .amdhsa_system_sgpr_workgroup_id_x 1
.end_amdhsa_kernel
""" % (name, vgpr, sgpr, accum)
```

```python
T, D, F, H, DH = 2048, 640, 1536, 32, 20
KB = 1024
WA   = 0x0010000
WAM  = WA + 16 * 160 * KB
WB   = WAM + 16 * 4 * KB
WC   = WB + 8 * 100 * KB
WCM  = WC + 16 * 240 * KB
WD   = WCM + 16 * 12 * KB
WEND = WD + 8 * 240 * KB
LBASE = (WEND + 0xFFFFF) & ~0xFFFFF
XA  = 0
SA  = XA + 64 * 40 * KB
O   = SA + T * 64
XC  = O + 128 * 20 * KB
SC  = XC + 128 * 20 * KB
HH  = SC + T * 64
KVP = HH + 128 * 48 * KB
CNT = KVP + 256 * 4096
CNT_XA = CNT
CNT_KV = CNT_XA + 16 * 128
CNT_O  = CNT_KV + 16 * 128
CNT_XC = CNT_O + 16 * 128
CNT_H  = CNT_XC + 16 * 128
CNT_END = CNT_H + 48 * 128
LSTRIDE = (CNT_END + 0xFFFFF) & ~0xFFFFF
WS_USED = LBASE + 2 * LSTRIDE + LSTRIDE
WS_BYTES = 268435456
OOB = 0x40000000

def rb_j_of(wg):
    return (wg & 3) | ((wg >> 6) << 2), (wg >> 2) & 15

def a_slot(tau, i):
    return (i >> 2) & 1, 16 * tau + 4 * (i >> 3) + (i & 3)
def a_row(half, vi):
    tau, r = vi >> 4, vi & 15
    return tau, 8 * (r >> 2) + 4 * half + (r & 3)
def wa_frag(tau, s):
    return s * 3 + tau if tau < 3 else 120 + s
def bd_col(tau, i16):
    q, c = i16 >> 2, i16 & 3
    if tau < 2: return 8 * q + 4 * tau + c
    if tau < 4: return 32 + 8 * q + 4 * (tau - 2) + c
    return 64 + 4 * q + c
def phi_o(step, g, e):
    pid = 4 * step + g
    hp, m = pid // 5, pid % 5
    if m < 2: return 20 * (2 * hp) + 8 * m + e
    if m < 4: return 20 * (2 * hp + 1) + 8 * (m - 2) + e
    return 20 * (2 * hp) + 16 + e if e < 4 else 20 * (2 * hp + 1) + 16 + (e - 4)
def phi_h(sigma, j, g, e):
    return 96 * j + 32 * sigma + 16 * (e >> 2) + 4 * g + (e & 3)
if __name__ == '__main__':
    for k in ('WA','WAM','WB','WC','WCM','WD','WEND','LBASE','XA','SA','O','XC','SC','HH','KVP','CNT','CNT_END','LSTRIDE','WS_USED'):
        print(k, hex(globals()[k]))
```

```python
import sys
sys.path.insert(0, 'gen')
import gen_p0, gen_main
from layout import *

HEADER = open('interleave_layers__linear_kernel_hedgehog__geglu_ffn__prompt.s.ref').read().split('; Override launch geometry')[0]

def build(stop=None, opts=None):
    p0 = gen_p0.gen_p0(); t0 = p0.finish()
    m = gen_main.Main(stop, opts).build(); t1 = m.finish()
    src = HEADER
    src += '; Two launches: a weight/activation re-layout pass, then one persistent kernel for both layers.\n'
    src += '; @launch kernel=%s grid=(%d,1,1) block=(256,1,1) lds=%d\n' % (gen_p0.NAME, gen_p0.P0_GRID, gen_p0.P0_LDS)
    src += '; @launch kernel=%s grid=(256,1,1) block=(256,1,1) lds=%d\n' % (gen_main.NAME, gen_main.LDS_TOTAL)
    src += '.amdgcn_target "amdgcn-amd-amdhsa--gfx950"\n' + t0 + t1
    src += '.section .rodata,"a"\n.p2align 6\n' + gen_p0.descriptor(gen_p0.NAME, 128, 128)
    src += '.p2align 6\n' + gen_p0.descriptor(gen_main.NAME, 512, 256)
    return src, p0, m

if __name__ == '__main__':
    out = sys.argv[1]; stop = sys.argv[2] if len(sys.argv) > 2 and sys.argv[2] != 'none' else None
    src, p0, m = build(stop)
    open(out, 'w').write(src)
    print('p0', p0.stats()); print('main', m.stats())
```

```python
import re

REG_RE = re.compile(r'^(-|\|)?(v|a|s)(\d+|\[(\d+):(\d+)\])\|?$')

def regs_of(op):
    op = op.strip()
    if op.startswith('abs(') or op.startswith('neg('):
        op = op[4:-1]
    m = REG_RE.match(op)
    if m:
        k = m.group(2)
        if m.group(4) is not None:
            return {(k, i) for i in range(int(m.group(4)), int(m.group(5)) + 1)}
        return {(k, int(m.group(3)))}
    if op in ('vcc', 'exec', 'm0', 'scc'):
        return {('x', op)}
    if op in ('vcc_lo', 'vcc_hi'):
        return {('x', 'vcc')}
    if op in ('exec_lo', 'exec_hi'):
        return {('x', 'exec')}
    return set()

def regs_names(S):
    return ['%s%d' % r for r in S]

TRANS = ('v_exp_f32', 'v_log_f32', 'v_rcp_f32', 'v_rsq_f32', 'v_sqrt_f32', 'v_sin_f32', 'v_cos_f32')
RMW = ('v_fmac_f32', 'v_dot2c_f32_bf16', 'v_mac_f32', 'v_writelane_b32')

class Ins:
    __slots__ = ('txt', 'op', 'kind', 'rd', 'wr', 'tag', 'passes', 'srcc', 'srcab', 'wide_store', 'states', 'count', 'lds_dma', 'meta')
    def __init__(self, txt, op='', kind='raw', rd=(), wr=(), tag=None):
        self.txt = txt; self.op = op; self.kind = kind
        self.rd = set(rd); self.wr = set(wr); self.tag = tag
        self.passes = 0; self.srcc = set(); self.srcab = set(); self.wide_store = False
        self.states = 1; self.count = True; self.lds_dma = False; self.meta = None

def split_ops(s):
    out = []; depth = 0; cur = ''
    for ch in s:
        if ch in '[(': depth += 1
        if ch in '])': depth -= 1
        if ch == ',' and depth == 0:
            out.append(cur.strip()); cur = ''
        else:
            cur += ch
    if cur.strip(): out.append(cur.strip())
    return out

def parse(txt, tag=None):
    t = txt.strip()
    sp = t.split(None, 1)
    op = sp[0]
    rest = sp[1] if len(sp) > 1 else ''
    ops = split_ops(rest)
    mods = ''
    if ops:
        last = ops[-1].split()
        ops[-1] = last[0]
        mods = ' '.join(last[1:])
    base = op
    for suf in ('_e32', '_e64', '_sdwa', '_dpp'):
        if base.endswith(suf): base = base[:-len(suf)]
    I = Ins(txt, base, 'raw', tag=tag)
    R = lambda idxs: set().union(*[regs_of(ops[i]) for i in idxs if i < len(ops)]) if idxs else set()
    n = len(ops)
    if base.startswith('v_mfma'):
        I.kind = 'mfma'
        I.wr = R([0]); I.srcab = R([1, 2]); I.srcc = R([3]); I.rd = I.srcab | I.srcc
        I.passes = 8 if '32x32' in base else 4
    elif base.startswith('v_cmp'):
        I.kind = 'valu'; I.wr = R([0]); I.rd = R(range(1, n)) | {('x', 'exec')}
    elif base in ('v_readfirstlane_b32', 'v_readlane_b32'):
        I.kind = 'valu'; I.wr = R([0]); I.rd = R(range(1, n))
    elif base.startswith('v_permlane') and 'swap' in base:
        I.kind = 'valu'; I.wr = R([0, 1]); I.rd = R([0, 1])
    elif base in ('v_add_co_u32', 'v_sub_co_u32', 'v_addc_co_u32'):
        I.kind = 'valu'; I.wr = R([0, 1]); I.rd = R(range(2, n))
    elif base.startswith('v_'):
        I.kind = 'valu'; I.wr = R([0]); I.rd = R(range(1, n))
        if base in RMW: I.rd |= I.wr
        if base == 'v_cndmask_b32' and n == 3: I.rd |= {('x', 'vcc')}
    elif base.startswith('ds_read') or base.startswith('ds_bpermute'):
        I.kind = 'ds'; I.wr = R([0]); I.rd = R(range(1, n))
    elif base.startswith('ds_write'):
        I.kind = 'ds'; I.rd = R(range(0, n))
    elif base.startswith('buffer_load'):
        I.kind = 'vm'
        if ' lds' in (' ' + mods):
            I.lds_dma = True; I.rd = R(range(0, n)) | {('x', 'm0')}
        else:
            I.wr = R([0]); I.rd = R(range(1, n))
    elif base.startswith('buffer_store'):
        I.kind = 'vm'; I.rd = R(range(0, n))
        I.wide_store = base.endswith('x3') or base.endswith('x4')
        I.meta = R([0])
    elif base.startswith('buffer_atomic'):
        I.kind = 'vm'; I.rd = R(range(0, n))
        if 'sc0' in mods: I.wr = R([0])
    elif base.startswith('global_load'):
        I.kind = 'vm'; I.wr = R([0]); I.rd = R(range(1, n))
    elif base.startswith('s_load') :
        I.kind = 'smem'; I.wr = R([0]); I.rd = R(range(1, n))
    elif base in ('s_memtime', 's_memrealtime'):
        I.kind = 'smem'; I.wr = R([0])
    elif base == 's_waitcnt':
        I.kind = 'wait'
    elif base == 's_nop':
        I.kind = 'nop'; I.states = int(ops[0], 0) + 1
    elif base == 's_barrier':
        I.kind = 'barrier'
    elif base.startswith('s_cmp') or base.startswith('s_bitcmp'):
        I.kind = 'salu'; I.rd = R(range(0, n)); I.wr = {('x', 'scc')}
    elif base.startswith('s_cbranch') or base in ('s_branch', 's_endpgm', 's_setpc_b64', 's_sleep', 's_setprio'):
        I.kind = 'ctl'
        if base == 's_setpc_b64': I.rd = R([0])
    elif base.startswith('s_'):
        I.kind = 'salu'; I.wr = R([0]); I.rd = R(range(1, n))
        if base in ('s_and_saveexec_b64',): I.wr |= {('x', 'exec')}
    else:
        raise ValueError('cannot parse: ' + txt)
    return I

class Asm:
    def __init__(self):
        self.items = []
    def __call__(self, txt, tag=None, count=True):
        for line in txt.split('\n'):
            line = line.strip()
            if not line: continue
            I = parse(line, tag); I.count = count
            self.items.append(I)
    def add(self, I): self.items.append(I)
    def side(self, txt, tag):
        I = parse(txt, tag); I.meta = 'side'; self.items.append(I)
    def extend(self, L):
        for x in L:
            if isinstance(x, str): self(x)
            elif isinstance(x, tuple): self(*x)
            else: self.items.append(x)
    def comment(self, txt):
        self.items.append(Ins('; ' + txt, kind='comment'))
    def label(self, name):
        self.items.append(Ins(name + ':', kind='label'))
    def directive(self, txt):
        self.items.append(Ins(txt, kind='comment'))
    def wait_tag(self, tag):
        I = Ins('', kind='wait_tag', tag=tag); self.items.append(I)
    def vm_marker(self, tag):
        self.items.append(Ins('', kind='vm_marker', tag=tag))
    def wait_lgkm0(self):
        self.items.append(Ins('', kind='wait_lgkm0'))
    def wait_all(self):
        self.items.append(Ins('', kind='wait_all'))
    def reset_state(self):
        self.items.append(Ins('', kind='reset'))
    def insert_waits(self):
        out = []; vm = []; lg = []; smem = [False]
        def wait(vmn=None, lgn=None):
            parts = []
            if vmn is not None: parts.append('vmcnt(%d)' % min(vmn, 63))
            if lgn is not None: parts.append('lgkmcnt(%d)' % min(lgn, 15))
            out.append(parse('s_waitcnt ' + ' '.join(parts)))
        def real_after(p):
            own_side = vm[p].meta == 'side'
            return sum(1 for x in vm[p + 1:] if x.kind != 'vm_marker' and (own_side or x.meta != 'side'))
        def need(touch):
            vp = ln = None
            for p in range(len(vm) - 1, -1, -1):
                if vm[p].wr & touch:
                    vp = p; break
            for p in range(len(lg) - 1, -1, -1):
                if lg[p].wr & touch:
                    ln = len(lg) - 1 - p; break
            if ln is not None and any(x.kind == 'smem' for x in lg): ln = 0
            return vp, ln
        def retire_lg(ln):
            if ln is not None: del lg[:len(lg) - ln]
        for I in self.items:
            if I.kind == 'vm_marker':
                vm.append(I); continue
            if I.kind == 'wait_tag':
                vp = None
                for p in range(len(vm) - 1, -1, -1):
                    if vm[p].tag == I.tag:
                        vp = p; break
                if vp is not None:
                    vn = real_after(vp)
                    if vn <= 63: wait(vn, None)
                    del vm[:vp + 1]
                continue
            if I.kind == 'wait_lgkm0':
                if lg: wait(None, 0); lg.clear()
                continue
            if I.kind == 'wait_all':
                wait(0, 0); vm.clear(); lg.clear(); continue
            if I.kind == 'reset':
                vm.clear(); lg.clear(); continue
            if I.kind == 'wait' and not I.count:
                out.append(I); continue
            if I.kind == 'wait':
                m = re.search(r'vmcnt\((\d+)\)', I.txt)
                if m:
                    assert int(m.group(1)) == 0, 'only full manual vmcnt waits are tracked'
                    vm.clear()
                m = re.search(r'lgkmcnt\((\d+)\)', I.txt)
                if m:
                    k = int(m.group(1))
                    if k == 0: lg.clear()
                    elif not any(x.kind == 'smem' for x in lg): retire_lg(min(k, len(lg)))
                out.append(I); continue
            if I.kind in ('comment', 'label', 'ctl', 'barrier', 'nop', 'raw'):
                out.append(I); continue
            touch = {r for r in (I.rd | I.wr)}
            vp, ln = need(touch)
            vn = None
            if vp is not None:
                vn = real_after(vp)
                del vm[:vp + 1]
                if vn > 63: vn = None
            if vn is not None or ln is not None:
                wait(vn, ln); retire_lg(ln)
            out.append(I)
            if I.count:
                if I.kind == 'vm': vm.append(I)
                elif I.kind == 'ds': lg.append(I)
                elif I.kind == 'smem': lg.append(I)
        self.items = out
    def insert_nops(self):
        out = []
        def required(prev, I):
            n = 0
            vr = lambda s: {r for r in s if r[0] in 'va'}
            if prev.kind == 'valu' and prev.op.startswith('v_dot'):
                if prev.wr & (I.rd | I.wr):
                    chain = I.op == prev.op and I.wr == prev.wr and I.txt.count(next(iter(regs_names(prev.wr)))) == 1
                    if not chain: n = max(n, 3)
            if prev.kind == 'valu':
                pw = prev.wr
                if I.kind == 'mfma' and vr(pw) & I.rd: n = max(n, 2)
                if I.kind == 'valu':
                    if prev.op in TRANS and I.op not in TRANS and (pw & I.rd): n = max(n, 1)
                    if prev.op in TRANS and I.op in TRANS and (pw & I.rd): n = max(n, 1)
                    if I.op.startswith('v_permlane') and (vr(pw) & I.rd): n = max(n, 2)
                    if I.op in ('v_readfirstlane_b32', 'v_readlane_b32') and (vr(pw) & I.rd): n = max(n, 1)
                    sw = {r for r in pw if r[0] == 's' or r == ('x', 'vcc')}
                    if sw & I.rd: n = max(n, 4 if I.op in ('v_readlane_b32', 'v_writelane_b32') else 2)
                if I.kind in ('vm', 'smem'):
                    sw = {r for r in pw if r[0] == 's'}
                    if sw & I.rd: n = max(n, 5)
                if I.kind == 'salu':
                    sw = {r for r in pw if r[0] == 's' or r == ('x', 'vcc')}
                    if sw & I.rd: n = max(n, 4)
                if I.kind == 'ctl' and ('x', 'vcc') in pw and 'vcc' in I.op: n = max(n, 5)
            if prev.kind == 'mfma':
                D = prev.wr; four = prev.passes == 4
                if I.kind == 'mfma':
                    if D & I.srcab: n = max(n, 8 if four else 12)
                    if D & I.srcc and not (D == I.srcc and prev.passes == I.passes): n = max(n, 6 if four else 10)
                    if D & I.wr and not (D == I.wr and D == I.srcc and prev.passes == I.passes):
                        n = max(n, 8 if four else 12)
                elif I.kind in ('valu', 'ds', 'vm'):
                    if D & (I.rd | I.wr): n = max(n, 8 if four else 12)
                if I.kind == 'valu' and (prev.srcc & I.wr): n = max(n, 3 if four else 7)
            if prev.kind == 'salu' and ('x', 'm0') in prev.wr and I.kind == 'vm' and I.lds_dma: n = max(n, 1)
            if prev.kind == 'vm' and prev.wide_store and prev.meta & I.wr:
                n = max(n, 2 if I.kind == 'valu' else 1)
            return n
        for I in self.items:
            if I.kind in ('comment', 'label'):
                out.append(I); continue
            need = 0; dist = 0
            for prev in reversed(out):
                if prev.kind in ('comment', 'label'): continue
                if dist >= 20: break
                r = required(prev, I)
                if r > dist: need = max(need, r - dist)
                dist += prev.states
            while need > 0:
                k = min(need, 16)
                out.append(parse('s_nop %d' % (k - 1))); need -= k
            out.append(I)
        self.items = out
    def text(self):
        L = []
        for I in self.items:
            if I.kind in ('label', 'comment'): L.append(I.txt)
            else: L.append('  ' + I.txt)
        return '\n'.join(L) + '\n'
    def finish(self):
        self.insert_waits(); self.insert_nops()
        return self.text()
    def stats(self):
        import collections
        c = collections.Counter(I.kind for I in self.items)
        return dict(c)

def vr(b, n=1): return 'v%d' % b if n == 1 else 'v[%d:%d]' % (b, b + n - 1)
def ar(b, n=1): return 'a%d' % b if n == 1 else 'a[%d:%d]' % (b, b + n - 1)
def sr(b, n=1): return 's%d' % b if n == 1 else 's[%d:%d]' % (b, b + n - 1)

def interleave(slots, fillers, per=None, start=0):
    out = []; f = list(fillers); n = len(slots)
    for i, s in enumerate(slots):
        out.extend(s)
        if i < start or not f: continue
        left = n - i
        k = -(-len(f) // left)
        if per is not None: k = min(k, per)
        out.extend(f[:k]); del f[:k]
    return out, f


def W_tag(tag): return Ins('', kind='wait_tag', tag=tag)
def V_marker(tag): return Ins('', kind='vm_marker', tag=tag)

def cost_of(x):
    t = x[0] if isinstance(x, tuple) else (x.txt if isinstance(x, Ins) else x)
    t = t.strip()
    if not t: return 0
    op = t.split()[0]
    if op.startswith('buffer_') or op.startswith('global_'): return 2
    if op in TRANS: return 2
    if op in ('s_waitcnt', 's_barrier'): return 0
    return 1

class Stream:
    def __init__(self, items=(), earliest=0, before=1 << 30):
        self.q = [(x, earliest, before) for x in items]
    def add(self, items, earliest=0, before=1 << 30):
        self.q += [(x, earliest, before) for x in items]
        return self
    def __len__(self): return len(self.q)

def is_vm(x):
    t = x[0] if isinstance(x, tuple) else (x.txt if isinstance(x, Ins) else x)
    return t.strip().startswith('buffer_')

def schedule(anchors, cap, pre=None, fixed=None, streams=(), start=0, vm_gap=0, state=None):
    pre = pre or {}; fixed = fixed or {}
    out = []
    state = state if state is not None else {}
    state.setdefault('last_vm', -1000)
    for k, a in enumerate(anchors):
        i = start + k
        for s in streams:
            last = max((n for n, y in enumerate(s.q) if y[2] <= i), default=-1)
            if last >= 0:
                assert all(y[1] <= i for y in s.q[:last + 1]), 'deadline precedes earliest slot'
                state['forced'] = state.get('forced', 0) + last + 1
                out.extend(y[0] for y in s.q[:last + 1]); del s.q[:last + 1]
                state['last_vm'] = i
        out.extend(pre.get(i, ()))
        out.append(a)
        room = cap(i) if callable(cap) else cap
        for x in fixed.get(i, ()):
            out.append(x); room -= cost_of(x)
        progress = True
        while room > 0 and progress:
            progress = False
            for s in streams:
                if s.q and s.q[0][1] <= i:
                    if is_vm(s.q[0][0]):
                        if i - state['last_vm'] < vm_gap: continue
                    c = cost_of(s.q[0][0])
                    if c <= room or (c > 1 and room >= 1 and c > (cap(i) if callable(cap) else cap)):
                        if is_vm(s.q[0][0]): state['last_vm'] = i
                        out.append(s.q.pop(0)[0]); room -= c; progress = True
                        break
    return out
```

```python
from asmlib import *
from layout import *

NAME = 'hedgehog_main_kernel'
BLK = 20480
SCR = 6 * BLK
LDS_TOTAL = 163840
SPIN_LIMIT = 40000
LOG2E = 1.4426950408889634
TSOFF = 0x4000000

sW, sRB, sJ, sL, sLOFF, sW5K, sWA, sWB, sWC, sWD = range(16, 26)
sT0, sT1, sT2, sT3, sT4, sT5 = range(26, 32)
sDEAD, sPC, sPV, sCS, sTH, sTTK, sTTS, sKH = range(40, 48)
sDM = 48
sTW = 49
sB0, sB1 = 50, 51
sC1, sC2, sC3, sC4 = 52, 53, 54, 55
sEX, sEXD = 56, 57
vL16, vLANE, vONES, vZERO, vONE, vPOLL = 1, 2, 3, 4, 5, 6
vL16B, vK0, vK1 = 7, 8, 9
vT0, vT1, vT2, vT3, vT4 = 10, 11, 12, 13, 14
vEXR = 15
AF, ACC = 16, 48
vSA, vTW, vKA, vKB, vPS1, vPS2, vPL, vAW, vO0, vO1, vO2, vX0, vX1, vX2, vY0, vY1 = range(224, 240)
XR = 240
vY2, vR0, vR2, vST, vSC, vEXW = range(250, 256)

A0, B0, C0, D0, NBLK = 0, 8, 13, 25, 37
NSIDE_A, NSIDE_C = 4, 4

def f32bits(x):
    import struct
    return '0x%08x' % struct.unpack('<I', struct.pack('<f', x))[0]

def W_vreg(r):
    return 'v_mov_b32 v%d, v%d' % (r, r)

class Main:
    def __init__(self, stop=None, opts=None):
        self.e = Asm(); self.stop = stop; self.o = opts or {}
        self.sc = '' if self.o.get('nosc1') else ' sc1'
        self.nlab = 0
        global NSIDE_A, NSIDE_C
        NSIDE_A = self.o.get('nsa', 6); NSIDE_C = self.o.get('nsc', 5)
    def lab(self, p):
        self.nlab += 1
        return 'M_%s_%d' % (p, self.nlab)
    def blk_src(self, b):
        if b < B0: return sWA, (b - A0) * BLK
        if b < C0: return sWB, (b - B0) * BLK
        if b < D0: return sWC, (b - C0) * BLK
        return sWD, (b - D0) * BLK
    def dma_ops(self, b, tag=None):
        nb = b % NBLK if b >= NBLK else b
        base, off = self.blk_src(nb)
        slot = nb % 6
        tag = tag or 'blk%d' % nb
        g = []
        first = ['s_add_u32 m0, s%d, %d' % (sW5K, slot * BLK), 's_add_u32 s%d, s%d, %d' % (sDM, base, off),
                 ('buffer_load_dwordx4 v%d, s[4:7], s%d offen lds' % (vL16, sDM), tag)]
        g.append(first)
        for k in range(1, 4):
            g.append([('buffer_load_dwordx4 v%d, s[4:7], s%d offen offset:%d lds' % (vL16, sDM, k * 1024), tag)])
        g.append(['s_add_u32 m0, s%d, %d' % (sW5K, slot * BLK + 4096), 's_add_u32 s%d, s%d, %d' % (sDM, base, off + 4096),
                  ('buffer_load_dwordx4 v%d, s[4:7], s%d offen lds' % (vL16, sDM), tag)])
        return g
    def side_dma(self, blocks):
        e = self.e
        L = self.lab('side')
        e('s_cmp_eq_u32 s%d, 0' % sW); e('s_cbranch_scc1 %s' % L)
        for b in blocks:
            base, off = self.blk_src(b); slot = b % 6; tag = 'blk%d' % b
            ld = 'buffer_load_dwordx4 v%d, s[4:7], s%d offen%%s lds' % (vL16, sDM)
            e('s_add_u32 m0, s%d, %d' % (sW5K, slot * BLK)); e('s_add_u32 s%d, s%d, %d' % (sDM, base, off))
            for k in range(4): e.side(ld % (' offset:%d' % (k * 1024) if k else ''), tag)
            e('s_add_u32 m0, s%d, %d' % (sW5K, slot * BLK + 4096)); e('s_add_u32 s%d, s%d, %d' % (sDM, base, off + 4096))
            e.side(ld % '', tag)
            e('s_add_u32 m0, s%d, %d' % (sEX, slot * BLK)); e('s_add_u32 s%d, s%d, %d' % (sDM, base, off))
            e('s_add_u32 s%d, s%d, s%d' % (sDM, sDM, sEXD))
            e.side(ld % '', tag); e.side(ld % ' offset:1024', tag)
        e.label(L)
    def dma_items(self, b, earliest):
        out = []
        for g in self.dma_ops(b):
            for x in g: out.append((x, earliest))
        return out
    def freed_by(self, c):
        if c <= NBLK - 7: return c + 6
        if c < NBLK - 1: return NBLK + (c - (NBLK - 7))
        return NBLK + 0
    def ring_read(self, dst, blk, off, kh=False):
        slot = blk % 6
        base = (vK0 if kh else vL16) if slot < 3 else (vK1 if kh else vL16B)
        return 'ds_read_b128 v[%d:%d], v%d offset:%d' % (dst, dst + 3, base, (slot % 3) * BLK + off)
    def emit_next_layer_dma(self, b):
        e = self.e
        L = self.lab('nl')
        e('s_cmp_lg_u32 s%d, 0' % sL); e('s_cbranch_scc1 %s' % L)
        for g in self.dma_ops(b):
            for x in g:
                if isinstance(x, tuple): e(x[0], count=False)
                else: e(x)
        e.label(L)
    def signal(self, cnt_off_sgpr):
        e = self.e
        e.wait_all()
        e('s_barrier')
        self.signal_only(cnt_off_sgpr)
    def signal_only(self, cnt_off_sgpr):
        e = self.e
        L = self.lab('sig')
        e('s_cmp_lg_u32 s%d, 0' % sW); e('s_cbranch_scc1 %s' % L)
        e('s_mov_b64 exec, 1')
        e('buffer_atomic_add v%d, v%d, s[4:7], s%d offen sc1' % (vONE, vZERO, cnt_off_sgpr), count=False)
        e('s_mov_b64 exec, -1')
        e.label(L)
    def poll(self, cnt_off_sgpr, n=1, target=16):
        e = self.e
        L = self.lab('poll'); X = self.lab('got')
        e('s_cmp_lg_u32 s%d, 0' % sW); e('s_cbranch_scc1 %s' % X)
        e('s_cmp_lg_u32 s%d, 0' % sDEAD); e('s_cbranch_scc1 %s' % X)
        e('s_mov_b32 s%d, 0' % sPC)
        if n > 1:
            e('v_min_u32 v%d, %d, v%d' % (vT0, n - 1, vLANE)); e('v_lshlrev_b32 v%d, 7, v%d' % (vT0, vT0))
        e.label(L)
        e('buffer_load_dword v%d, v%d, s[4:7], s%d offen sc1' % (vPOLL, vT0 if n > 1 else vZERO, cnt_off_sgpr), count=False)
        e('s_waitcnt vmcnt(0)', count=False)
        e('v_cmp_gt_u32 vcc, %d, v%d' % (target, vPOLL))
        e('s_cbranch_vccz %s' % X)
        e('s_add_u32 s%d, s%d, 1' % (sPC, sPC)); e('s_cmp_lt_u32 s%d, %d' % (sPC, SPIN_LIMIT))
        e('s_cbranch_scc1 %s' % L)
        e('s_mov_b32 s%d, 1' % sDEAD)
        e.label(X)
    def cnt(self, dst, which, idx_sgpr, mul=128, add=0, next_layer=False):
        e = self.e
        e('s_mul_i32 s%d, s%d, %d' % (dst, idx_sgpr, mul))
        e('s_add_u32 s%d, s%d, s%d' % (dst, dst, sLOFF))
        e('s_add_u32 s%d, s%d, 0x%x' % (dst, dst, which + add + (LSTRIDE if next_layer else 0)))
    def prologue(self):
        e = self.e
        e.directive('.text\n.globl %s\n.p2align 8\n.type %s,@function' % (NAME, NAME))
        e.label(NAME)
        e('s_cmp_ge_u32 s2, 256'); e('s_cbranch_scc1 M_END')
        e('s_load_dwordx2 s[32:33], s[0:1], 0')
        e('s_load_dwordx2 s[34:35], s[0:1], 64')
        e('s_load_dwordx2 s[36:37], s[0:1], 80')
        if self.o.get('stamps'):
            e(('s_memtime' if self.o.get('cyc') else 's_memrealtime') + ' s[60:61]\ns_waitcnt lgkmcnt(0)\nv_mov_b32 v223, s60')
        e('v_lshrrev_b32 v10, 6, v0'); e('v_and_b32 v%d, 63, v0' % vLANE)
        e('v_readfirstlane_b32 s%d, v10' % sW)
        e('v_lshlrev_b32 v%d, 4, v%d' % (vL16, vLANE))
        e('s_and_b32 s%d, s2, 3\ns_lshr_b32 s26, s2, 6\ns_lshl_b32 s26, s26, 2\ns_or_b32 s%d, s%d, s26' % (sRB, sRB, sRB))
        e('s_lshr_b32 s%d, s2, 2\ns_and_b32 s%d, s%d, 15' % (sJ, sJ, sJ))
        e('s_and_b32 s%d, s%d, 7\ns_lshr_b32 s%d, s%d, 3' % (sCS, sJ, sTH, sJ))
        e('s_mul_i32 s%d, s%d, 5120' % (sW5K, sW))
        e('s_lshr_b32 s%d, s%d, 1' % (sKH, sW))
        for (s, idx, stride, base) in ((sWA, sJ, 160 * KB, WA), (sWB, sCS, 100 * KB, WB), (sWC, sJ, 240 * KB, WC), (sWD, sCS, 240 * KB, WD)):
            e('s_mul_i32 s%d, s%d, %d\ns_add_u32 s%d, s%d, s%d\ns_add_u32 s%d, s%d, 0x%x' % (s, idx, stride, s, s, sW5K, s, s, base))
        e('s_lshl_b32 s%d, s%d, 3\ns_lshl_b32 s26, s%d, 2\ns_add_u32 s%d, s%d, s26' % (sTTK, sRB, sTH, sTTK, sTTK))
        e('s_and_b32 s26, s%d, 1\ns_lshl_b32 s26, s26, 1\ns_add_u32 s%d, s%d, s26\ns_add_u32 s%d, s%d, s%d' % (sW, sTTK, sTTK, sTTK, sTTK, sKH))
        e('s_xor_b32 s%d, s%d, 1' % (sTTS, sTTK))
        e('s_mov_b32 s%d, 0\ns_mov_b32 s%d, 0\ns_mov_b32 s%d, 0x%x' % (sDEAD, sL, sLOFF, LBASE))
        e('s_waitcnt lgkmcnt(0)')
        for (d, lo, n) in ((4, 36, WS_BYTES), (8, 32, T * 1280), (12, 34, T * 1280)):
            e('s_mov_b32 s%d, s%d\ns_mov_b32 s%d, s%d\ns_mov_b32 s%d, 0x%x\ns_mov_b32 s%d, 0x20000' % (d, lo, d + 1, lo + 1, d + 2, n, d + 3))
        e('s_sub_u32 s%d, s%d, 1\ns_lshl_b32 s%d, s%d, 11\ns_sub_u32 s%d, s%d, s%d' % (sEX, sW, sEX, sEX, sEXD, sEX, sW5K))
        self.side_dma(range(NSIDE_A))
        e('v_mov_b32 v%d, 0x3f803f80\nv_mov_b32 v%d, 0\nv_mov_b32 v%d, 1' % (vONES, vZERO, vONE))
        e('v_add_u32 v%d, %d, v%d' % (vL16B, 3 * BLK, vL16))
        e('s_mul_i32 s26, s%d, 5120\nv_add_u32 v%d, s26, v%d\nv_add_u32 v%d, %d, v%d' % (sKH, vK0, vL16, vK1, 3 * BLK, vK0))
        t32, hi, t16, q = 100, 101, 102, 103
        e('v_and_b32 v%d, 31, v%d\nv_lshrrev_b32 v%d, 5, v%d' % (t32, vLANE, hi, vLANE))
        e('v_and_b32 v%d, 15, v%d\nv_lshrrev_b32 v%d, 4, v%d' % (t16, vLANE, q, vLANE))
        e('v_mov_b32 v104, 0x%x' % OOB)
        e('v_lshlrev_b32 v%d, 6, v%d\nv_lshl_add_u32 v%d, v%d, 5, v%d' % (vSA, t32, vSA, hi, vSA))
        e('s_lshl_b32 s26, s%d, 5\nv_add_u32 v105, s26, v%d\nv_mul_u32_u24 v105, 144, v105' % (sW, t32))
        e('v_mul_u32_u24 v106, 18432, v%d\nv_add_u32 v105, v105, v106\nv_add_u32 v%d, 0x%x, v105' % (hi, vTW, SCR))
        e('v_lshrrev_b32 v105, 1, v%d\nv_bfe_u32 v106, v%d, 2, 2\nv_lshl_add_u32 v105, v105, 3, v106\nv_mul_u32_u24 v105, 144, v105' % (q, vLANE))
        e('v_and_b32 v106, 1, v%d\nv_lshlrev_b32 v106, 5, v106\nv_and_b32 v107, 3, v%d\nv_lshl_add_u32 v106, v107, 3, v106\nv_add_u32 v105, v105, v106' % (q, vLANE))
        e('s_lshr_b32 s26, s%d, 1\ns_mul_i32 s26, s26, 18432\ns_add_u32 s26, s26, 0x%x' % (sW, SCR))
        e('s_and_b32 s27, s%d, 1\ns_mul_i32 s28, s27, 40\ns_add_u32 s28, s28, s26\ns_add_u32 s29, s26, 80' % sW)
        e('v_add_u32 v%d, s28, v105\nv_add_u32 v%d, s29, v105' % (vKA, vKB))
        e('s_lshr_b32 s26, s%d, 1\ns_mul_i32 s26, s26, 5\ns_lshl_b32 s28, s27, 1\ns_add_u32 s28, s28, s26' % sW)
        e('v_add_u32 v105, s28, v%d\nv_mul_u32_u24 v105, 21, v105\nv_add_u32 v105, v105, v%d\nv_lshlrev_b32 v105, 4, v105' % (hi, t32))
        e('v_cmp_gt_u32 vcc, 21, v%d\nv_cndmask_b32 v%d, v104, v105, vcc' % (t32, vPS1))
        e('s_add_u32 s26, s26, 4\ns_mul_i32 s26, s26, 21\nv_add_u32 v105, s26, v%d\nv_lshlrev_b32 v105, 4, v105' % t32)
        e('s_lshl_b32 s27, s27, 3\nv_add_u32 v105, s27, v105\nv_cndmask_b32 v105, v104, v105, vcc')
        e('v_cmp_eq_u32 vcc, 0, v%d\nv_cndmask_b32 v%d, v104, v105, vcc' % (hi, vPS2))
        e('v_lshlrev_b32 v105, 4, v0\nv_cmp_gt_u32 vcc, 210, v0\nv_cndmask_b32 v%d, v104, v105, vcc' % vPL)
        e('v_mov_b32 v106, 105\nv_cmp_le_u32 s[30:31], v106, v0\nv_cndmask_b32 v106, 0, 1, s[30:31]')
        e('v_mul_u32_u24 v107, 105, v106\nv_sub_u32 v107, v0, v107')
        e('v_mul_u32_u24 v108, 391, v107\nv_lshrrev_b32 v108, 13, v108')
        e('v_mul_u32_u24 v109, 21, v108\nv_sub_u32 v109, v107, v109')
        e('v_lshrrev_b32 v110, 4, v109\nv_mul_u32_u24 v110, 5, v110\nv_add_u32 v110, v110, v108')
        e('v_and_b32 v109, 15, v109\nv_lshrrev_b32 v111, 2, v109\nv_lshlrev_b32 v111, 3, v111\nv_and_b32 v109, 3, v109\nv_add_u32 v111, v111, v109')
        e('v_mul_u32_u24 v109, 36, v106\nv_add_u32 v111, v111, v109')
        e('v_lshlrev_b32 v111, 4, v111\nv_lshl_add_u32 v111, v110, 10, v111\nv_add_u32 v111, 0x%x, v111' % SCR)
        e('v_and_b32 v105, 63, v0\nv_lshlrev_b32 v105, 4, v105\nv_add_u32 v105, 0x%x, v105' % (SCR + 12288))
        e('v_cndmask_b32 v%d, v105, v111, vcc' % vAW)
        e('s_mul_i32 s26, s%d, 5' % sJ)
        e('v_bfe_u32 v105, v%d, 4, 1\nv_mul_u32_u24 v105, 20480, v105\nv_lshl_add_u32 v105, v%d, 4, v105' % (vLANE, t16))
        for (dst, expr) in ((vO0, 0), (vO1, 1), (vO2, None)):
            if expr is not None:
                e('v_lshl_add_u32 v106, v%d, 1, s26\nv_add_u32 v106, %d, v106' % (hi, expr))
            else:
                e('v_mov_b32 v106, s26\nv_add_u32 v106, 4, v106')
            e('v_lshrrev_b32 v107, 2, v106\nv_lshl_add_u32 v107, v107, 10, v105\nv_and_b32 v106, 3, v106\nv_lshl_add_u32 v%d, v106, 8, v107' % dst)
        e('v_lshl_add_u32 v%d, v%d, 3, v%d' % (vO2, hi, vO2))
        e('s_mul_i32 s26, s%d, 10' % sCS)
        e('s_and_b32 s27, s%d, 1\ns_lshl_b32 s27, s27, 8' % sTTK)
        e('v_lshlrev_b32 v105, 4, v%d' % t16)
        for n, (dx, dy) in enumerate(((vX0, vY0), (vX1, vY1), (vX2, vY2))):
            if n < 2: e('v_add_u32 v106, s26, v%d\nv_add_u32 v106, %d, v106' % (q, 4 * n))
            else: e('v_lshrrev_b32 v106, 1, v%d\nv_add_u32 v106, s26, v106\nv_add_u32 v106, 8, v106' % q)
            e('v_lshrrev_b32 v107, 2, v106\nv_lshl_add_u32 v107, v107, 10, v105\nv_and_b32 v108, 3, v106\nv_lshl_add_u32 v%d, v108, 8, v107' % dx)
            e('v_lshrrev_b32 v107, 1, v106\nv_lshl_add_u32 v107, v107, 10, v105\nv_and_b32 v108, 1, v106\nv_lshl_add_u32 v107, v108, 9, v107\nv_add_u32 v%d, s27, v107' % dy)
        e('v_and_b32 v106, 1, v%d\nv_lshl_add_u32 v%d, v106, 3, v%d\nv_lshl_add_u32 v%d, v106, 3, v%d' % (q, vX2, vX2, vY2, vY2))
        e('v_mul_u32_u24 v105, 1280, v%d\nv_lshl_add_u32 v%d, v%d, 4, v105\nv_lshl_add_u32 v%d, v%d, 3, v105\nv_add_u32 v%d, 128, v%d' % (t16, vR0, q, vR2, q, vR2, vR2))
        e('v_lshlrev_b32 v105, 6, v%d\nv_cmp_eq_u32 vcc, 0, v%d\nv_cndmask_b32 v%d, v104, v105, vcc\nv_lshl_add_u32 v%d, v%d, 4, v105' % (t16, q, vST, vSC, q))
        e('s_add_u32 s26, s%d, 0x%x\nv_add_u32 v%d, s26, v%d' % (sW5K, SCR, vEXW, vL16))
        e('s_xor_b32 s27, s%d, 2\ns_mul_i32 s27, s27, 5120\ns_add_u32 s27, s27, 0x%x\nv_add_u32 v%d, s27, v%d' % (sW, SCR, vEXR, vL16))
        e('s_mul_i32 s26, s%d, 20480\ns_mul_i32 s27, s%d, 160\ns_add_u32 s26, s26, s27' % (sTTK, sCS))
        e('buffer_load_dwordx4 v[%d:%d], v%d, s[8:11], s26 offen' % (XR, XR + 3, vR0), count=False)
        e('buffer_load_dwordx4 v[%d:%d], v%d, s[8:11], s26 offen offset:64' % (XR + 4, XR + 7, vR0), count=False)
        e('buffer_load_dwordx2 v[%d:%d], v%d, s[8:11], s26 offen' % (XR + 8, XR + 9, vR2), count=False)
    def rowstat_finish(self, S, Q, vRS, vVE, BM, tmp):
        L = []
        L.append('v_mul_f32 v%d, %s, v%d' % (S, f32bits(1.0 / 640), S))
        L.append('v_mul_f32 v%d, %s, v%d' % (Q, f32bits(1.0 / 640), Q))
        L.append('v_fma_f32 v%d, -v%d, v%d, v%d' % (Q, S, S, Q))
        L.append('v_max_f32 v%d, 0, v%d' % (Q, Q))
        L.append('v_add_f32 v%d, %s, v%d' % (vVE, f32bits(1e-5), Q))
        L.append('v_rsq_f32 v%d, v%d' % (vRS, vVE))
        L.append('v_cvt_pk_bf16_f32 v%d, -v%d, -v%d' % (tmp, S, S))
        L.append('v_and_b32 v%d, 0xffff0000, v%d' % (tmp, tmp))
        L.append('v_sub_f32 v%d, -v%d, v%d' % (tmp, S, tmp))
        L.append('v_cvt_pk_bf16_f32 v%d, -v%d, v%d' % (BM, S, tmp))
        for k in range(1, 4): L.append('v_mov_b32 v%d, v%d' % (BM + k, BM))
        return L
    def softmax_pair(self, X, vC, EP, EM, t):
        L = []
        mx, mn, ap, am, sp, sm = range(t, t + 6)
        L.append('v_max3_f32 v%d, v%d, v%d, v%d' % (mx, X[0], X[1], X[2]))
        L.append('v_min3_f32 v%d, v%d, v%d, v%d' % (mn, X[0], X[1], X[2]))
        for k in range(3, 19, 2):
            L.append('v_max3_f32 v%d, v%d, v%d, v%d' % (mx, mx, X[k], X[k + 1]))
            L.append('v_min3_f32 v%d, v%d, v%d, v%d' % (mn, mn, X[k], X[k + 1]))
        L.append('v_max_f32 v%d, v%d, v%d' % (mx, mx, X[19]))
        L.append('v_min_f32 v%d, v%d, v%d' % (mn, mn, X[19]))
        L.append('v_mul_f32 v%d, v%d, v%d' % (ap, vC, mx))
        L.append('v_mul_f32 v%d, v%d, v%d' % (am, vC, mn))
        for f in range(20):
            L.append('v_fma_f32 v%d, v%d, v%d, -v%d' % (EP + f, X[f], vC, ap))
            L.append('v_fma_f32 v%d, -v%d, v%d, v%d' % (EM + f, X[f], vC, am))
        for f in range(20):
            L.append('v_exp_f32 v%d, v%d' % (EP + f, EP + f))
            L.append('v_exp_f32 v%d, v%d' % (EM + f, EM + f))
        L.append('v_add_f32 v%d, v%d, v%d' % (sp, EP, EP + 1))
        L.append('v_add_f32 v%d, v%d, v%d' % (sm, EM, EM + 1))
        for f in range(2, 20):
            L.append('v_add_f32 v%d, v%d, v%d' % (sp, sp, EP + f))
            L.append('v_add_f32 v%d, v%d, v%d' % (sm, sm, EM + f))
        L.append('v_rcp_f32 v%d, v%d' % (sp, sp))
        L.append('v_rcp_f32 v%d, v%d' % (sm, sm))
        for f in range(20):
            L.append('v_mul_f32 v%d, v%d, v%d' % (EP + f, EP + f, sp))
            L.append('v_mul_f32 v%d, v%d, v%d' % (EM + f, EM + f, sm))
        return L
    def stamp(self, k):
        if not self.o.get('stamps'): return
        e = self.e
        e('s_memtime s[60:61]' if self.o.get('cyc') else 's_memrealtime s[60:61]')
        e('s_lshl_b32 s62, s%d, 5\ns_add_u32 s62, s62, %d' % (sL, k))
        e('s_waitcnt lgkmcnt(0)')
        e('v_mov_b32 v222, s60')
        e('v_cmp_eq_u32 vcc, s62, v%d' % vLANE)
        e('v_cndmask_b32 v223, v223, v222, vcc')
    def stamp_items(self, k):
        if self.o.get('stamps') != 2: return []
        sub = Main(None, self.o); sub.stamp(k)
        return sub.e.items
    def stamp_flush(self):
        if not self.o.get('stamps'): return
        e = self.e
        e('s_lshl_b32 s62, s2, 2\ns_add_u32 s62, s62, s%d\ns_lshl_b32 s62, s62, 8\ns_add_u32 s62, s62, 0x%x' % (sW, TSOFF))
        e('v_lshlrev_b32 v%d, 2, v%d' % (vT0, vLANE))
        e('buffer_store_dword v223, v%d, s[4:7], s62 offen' % vT0)
    def maybe_stop(self, name):
        if self.stop == name:
            self.e.wait_all(); self.e('s_endpgm'); return True
        return False
    def vm_stream(self, items):
        st = Stream()
        for dl, early, ins in sorted(items, key=lambda x: x[0]):
            st.add(ins, early, dl)
        return st
    def flat(self, groups):
        return [x for g in groups for x in g]
    def phase_a(self):
        e = self.e; o = self.o
        T0, T1, T2, T3 = ACC, ACC + 16, ACC + 32, ACC + 48
        ST, vRS, vVE, vC, BM, AM, EP, EM, P = 112, 120, 121, 122, 124, 128, 144, 164, 184
        self.stamp(0)
        L = self.lab('a_nopoll')
        e('s_cmp_eq_u32 s%d, 0' % sL); e('s_cbranch_scc1 %s' % L)
        self.cnt(sT0, CNT_XA, sRB)
        self.poll(sT0)
        e('s_barrier')
        e.label(L)
        self.stamp(1)
        e('s_lshl_b32 s%d, s%d, 2\ns_add_u32 s%d, s%d, s%d' % (sT0, sRB, sT0, sT0, sW))
        e('s_lshl_b32 s%d, s%d, 11\ns_add_u32 s%d, s%d, s%d\ns_add_u32 s%d, s%d, 0x%x' % (sT1, sT0, sT1, sT1, sLOFF, sT1, sT1, SA))
        e('s_mul_i32 s%d, s%d, 40960\ns_add_u32 s%d, s%d, s%d\ns_add_u32 s%d, s%d, 0x%x' % (sTW, sT0, sTW, sTW, sLOFF, sTW, sTW, XA))
        def tok(s):
            g = []
            if s % 4 == 0: g.append('s_add_u32 s%d, s%d, %d' % (sB0, sTW, s * 1024))
            g.append('buffer_load_dwordx4 a[%d:%d], v%d, s[4:7], s%d offen offset:%d%s' % (4 * s, 4 * s + 3, vL16, sB0, (s % 4) * 1024, self.sc))
            return g
        NPRE = o.get('a_npre', 12)
        e('buffer_load_dwordx4 v[%d:%d], v%d, s[4:7], s%d offen sc1' % (ST, ST + 3, vSA, sT1))
        e('buffer_load_dwordx4 v[%d:%d], v%d, s[4:7], s%d offen offset:16 sc1' % (ST + 4, ST + 7, vSA, sT1))
        for s in range(NPRE): e.extend(tok(s))
        e('s_lshl_b32 s%d, s%d, 12\ns_add_u32 s%d, s%d, 0x%x' % (sT2, sJ, sT2, sT2, WAM))
        amload = ['buffer_load_dwordx4 v[%d:%d], v%d, s[4:7], s%d offen offset:%d' % (AM + 4 * t, AM + 4 * t + 3, vL16, sT2, t * 1024) for t in range(4)]
        st = []
        st += ['v_add_f32 v%d, v%d, v%d' % (ST, ST, ST + 2), 'v_add_f32 v%d, v%d, v%d' % (ST + 1, ST + 1, ST + 3),
               'v_add_f32 v%d, v%d, v%d' % (ST + 4, ST + 4, ST + 6), 'v_add_f32 v%d, v%d, v%d' % (ST + 5, ST + 5, ST + 7),
               'v_add_f32 v%d, v%d, v%d' % (ST, ST, ST + 4), 'v_add_f32 v%d, v%d, v%d' % (ST + 1, ST + 1, ST + 5),
               'v_mov_b32 v%d, v%d' % (ST + 2, ST), 'v_mov_b32 v%d, v%d' % (ST + 3, ST + 1),
               'v_permlane32_swap_b32 v%d, v%d' % (ST, ST + 2), 'v_permlane32_swap_b32 v%d, v%d' % (ST + 1, ST + 3),
               'v_add_f32 v%d, v%d, v%d' % (ST, ST, ST + 2), 'v_add_f32 v%d, v%d, v%d' % (ST + 1, ST + 1, ST + 3)]
        st += self.rowstat_finish(ST, ST + 1, vRS, vVE, BM, ST + 2)
        st += ['v_mul_f32 v%d, %s, v%d' % (vC, f32bits(LOG2E), vRS)]
        LA = 5
        def frag_info(n):
            if n < 120: return n // 3, n % 3
            return n - 120, 3
        def read(n): return self.ring_read(AF + 4 * (n % 8), A0 + n // 20, (n % 20) * 1024)
        def mfma(n):
            s, tau = frag_info(n); acc = ACC + 16 * tau; a = AF + 4 * (n % 8)
            c = '0' if s == 0 else 'v[%d:%d]' % (acc, acc + 15)
            return 'v_mfma_f32_32x32x16_bf16 v[%d:%d], v[%d:%d], a[%d:%d], %s' % (acc, acc + 15, a, a + 3, 4 * s, 4 * s + 3, c)
        def mean(tau):
            acc = ACC + 16 * tau
            return 'v_mfma_f32_32x32x16_bf16 v[%d:%d], v[%d:%d], v[%d:%d], v[%d:%d]' % (acc, acc + 15, AM + 4 * tau, AM + 4 * tau + 3, BM, BM + 3, acc, acc + 15)
        ksm = self.softmax_pair([T0 + r for r in range(16)] + [T1 + r for r in range(4)], vC, EP, EM, ST)
        for d in range(10): ksm.append('v_cvt_pk_bf16_f32 v%d, v%d, v%d' % (P + d, EP + 2 * d, EP + 2 * d + 1))
        for d in range(10): ksm.append('v_cvt_pk_bf16_f32 v%d, v%d, v%d' % (P + 10 + d, EM + 2 * d, EM + 2 * d + 1))
        V = [T1 + r for r in range(4, 16)] + [T2 + r for r in range(8)]
        for f in range(20): ksm.append('v_mul_f32 v%d, v%d, v%d' % (V[f], V[f], vRS))
        for d in range(10): ksm.append('v_cvt_pk_bf16_f32 v%d, v%d, v%d' % (P + 20 + d, V[2 * d], V[2 * d + 1]))
        ksm += ['v_mov_b32 v%d, 0x3f80' % (P + 30), 'v_mov_b32 v%d, 0' % (P + 31)]
        anchors = []; pre = {}; fixed = {}; idx = {}
        for n in range(160):
            if n == 120:
                idx['mean'] = len(anchors)
                anchors += [mean(t) for t in range(3)]
            idx[n] = len(anchors)
            anchors.append(mfma(n))
            if n + LA < 160: fixed[idx[n]] = [read(n + LA)]
        anchors.append(mean(3))
        for ep in range(1, 8):
            at = idx['mean'] if ep == 6 else idx[20 * ep]
            pre[at] = ([W_tag('blk%d' % (A0 + ep + 1))] if ep < 7 else []) + ['s_barrier']
            if self.o.get('fine') == 'a': pre[at] += self.stamp_items(19 + ep - 1)
        items = [(3 * s, 0, tok(s)) for s in range(NPRE, 40)]
        items.append((90, 0, amload))
        for b in range(NSIDE_A, 6): items.append((20 * (b - 1), 0, self.flat(self.dma_ops(b))))
        last_in = o.get('a_lastblk', 11)
        for b in range(6, last_in + 1):
            free = 20 * (b - 5) if b - 5 < 6 else idx['mean']
            items.append((20 * (b - 1) if b < 8 else 200 + b, free, self.flat(self.dma_ops(b))))
        vs = self.vm_stream(items)
        valu = Stream(st, 12).add(ksm, idx[120] + 1)
        if o.get('fine') == 'a0': e.extend(self.stamp_items(19))
        e.wait_tag('blk0'); e.wait_tag('blk1')
        e('s_barrier')
        if o.get('fine') == 'a0':
            e.extend(self.stamp_items(20))
            for k, at in enumerate((1, 3, 6, 9, 12, 15, 18)):
                pre[at] = pre.get(at, []) + self.stamp_items(21 + k)
        for n in range(LA): e(read(n))
        stt = {}
        e.extend(schedule(anchors, 5, pre, fixed, [vs, valu], vm_gap=o.get('a_gap', 2), state=stt))
        if o.get('verbose'): print('a forced', stt.get('forced'), 'left', len(vs.q), len(valu.q))
        e.extend([y[0] for y in vs.q]); e.extend([y[0] for y in valu.q])
        self.a_late = list(range(last_in + 1, 14))
        self.stamp(2)
        for m in range(8):
            e('ds_write_b128 v%d, v[%d:%d] offset:%d' % (vTW, P + 4 * m, P + 4 * m + 3, 16 * m))
        e.wait_lgkm0()
        e('s_barrier')
        KD = T0
        def kvread(ks):
            b = AF + 8 * (ks % 4)
            return ['ds_read_b64_tr_b16 v[%d:%d], v%d offset:%d' % (b, b + 1, vKA, ks * 2304),
                    'ds_read_b64_tr_b16 v[%d:%d], v%d offset:%d' % (b + 2, b + 3, vKA, ks * 2304 + 576),
                    'ds_read_b64_tr_b16 v[%d:%d], v%d offset:%d' % (b + 4, b + 5, vKB, ks * 2304),
                    'ds_read_b64_tr_b16 v[%d:%d], v%d offset:%d' % (b + 6, b + 7, vKB, ks * 2304 + 576)]
        for ks in range(3): e.extend(kvread(ks))
        for ks in range(8):
            if ks + 3 < 8: e.extend(kvread(ks + 3))
            b = AF + 8 * (ks % 4)
            e('v_mfma_f32_32x32x16_bf16 v[%d:%d], v[%d:%d], v[%d:%d], %s' % (KD, KD + 15, b, b + 3, b + 4, b + 7, '0' if ks == 0 else 'v[%d:%d]' % (KD, KD + 15)))
        PK = EP
        for d in range(6): e('v_cvt_pk_bf16_f32 v%d, v%d, v%d' % (PK + d, KD + 2 * d, KD + 2 * d + 1))
        e('s_lshl_b32 s%d, s%d, 4\ns_add_u32 s%d, s%d, s%d\ns_lshl_b32 s%d, s%d, 12' % (sT0, sJ, sT0, sT0, sRB, sT0, sT0))
        e('s_add_u32 s%d, s%d, s%d\ns_add_u32 s%d, s%d, 0x%x' % (sT0, sT0, sLOFF, sT0, sT0, KVP))
        e('buffer_store_dwordx4 v[%d:%d], v%d, s[4:7], s%d offen sc1' % (PK, PK + 3, vPS1, sT0))
        e('buffer_store_dwordx2 v[%d:%d], v%d, s[4:7], s%d offen sc1' % (PK + 4, PK + 5, vPS2, sT0))
        self.cnt(sT1, CNT_KV, sJ)
        self.signal(sT1)
        self.stamp(3)
        self.side_dma(self.a_late)
        for r in range(4): e('v_mov_b32 v%d, 0' % (AF + r))
        e('v_lshlrev_b32 v%d, 4, v0\nv_add_u32 v%d, 0x%x, v%d' % (vT1, vT1, SCR, vT1))
        for m in range(3): e('ds_write_b128 v%d, v[%d:%d] offset:%d' % (vT1, AF, AF + 3, m * 4096))
        Q = P
        X = [T2 + r for r in range(8, 16)] + [T3 + r for r in range(12)]
        e.extend(self.softmax_pair(X, vC, EP, EM, ST))
        order = []
        for sign in (EP, EM):
            order += [(sign + 0), (sign + 2), (sign + 8), (sign + 10), (sign + 4), (sign + 6), (sign + 12), (sign + 14)]
        order += [EP + 16, EP + 18, EM + 16, EM + 18]
        for d, r in enumerate(order): e('v_cvt_pk_bf16_f32 v%d, v%d, v%d' % (Q + d, r, r + 1))
        e.wait_lgkm0()
        self.stamp(4)
        self.poll(sT1)
        e('s_barrier')
        self.stamp(5)
        if self.maybe_stop('a1'): return True
        LD, SUM, PKK = 112, 176, 204
        e('s_lshl_b32 s%d, s%d, 16\ns_add_u32 s%d, s%d, s%d\ns_add_u32 s%d, s%d, 0x%x' % (sT0, sJ, sT0, sT0, sLOFF, sT0, sT0, KVP))
        for p in range(16):
            if p: e('s_add_u32 s%d, s%d, 4096' % (sT0, sT0))
            e('buffer_load_dwordx4 v[%d:%d], v%d, s[4:7], s%d offen sc1' % (LD + 4 * p, LD + 4 * p + 3, vPL, sT0))
        e('v_mov_b32 v%d, 0x00003f80\nv_mov_b32 v%d, 0x3f800000' % (vT2, vT3))
        for k in range(8): e('v_mov_b32 v%d, 0' % (SUM + k))
        for p in range(16):
            for d in range(4):
                e('v_dot2c_f32_bf16 v%d, v%d, v%d' % (SUM + 2 * d, LD + 4 * p + d, vT2))
                e('v_dot2c_f32_bf16 v%d, v%d, v%d' % (SUM + 2 * d + 1, LD + 4 * p + d, vT3))
        for d in range(4): e('v_cvt_pk_bf16_f32 v%d, v%d, v%d' % (PKK + d, SUM + 2 * d, SUM + 2 * d + 1))
        e('ds_write_b128 v%d, v[%d:%d]' % (vAW, PKK, PKK + 3))
        e.wait_lgkm0()
        e('s_barrier')
        e('v_add_u32 v%d, 0x%x, v%d' % (vT1, SCR, vL16))
        for n in range(8): e('ds_read_b128 v[%d:%d], v%d offset:%d' % (AF + 4 * n, AF + 4 * n + 3, vT1, n * 1024))
        G0, G1 = T0, T1
        for n in range(10):
            rho, s = n // 5, n % 5
            acc = G0 if rho == 0 else G1
            a = AF + 4 * (n % 8)
            e('v_mfma_f32_32x32x16_bf16 v[%d:%d], v[%d:%d], v[%d:%d], %s' % (acc, acc + 15, a, a + 3, Q + 4 * s, Q + 4 * s + 3, '0' if s == 0 else 'v[%d:%d]' % (acc, acc + 15)))
            if n < 2: e('ds_read_b128 v[%d:%d], v%d offset:%d' % (a, a + 3, vT1, (n + 8) * 1024))
        e('v_add_f32 v%d, %s, v%d' % (vT2, f32bits(1e-6), G1 + 4))
        e('v_rcp_f32 v%d, v%d' % (vT2, vT2))
        OP = 208
        src = [G0 + r for r in range(16)] + [G1 + r for r in range(4)]
        for r in src: e('v_mul_f32 v%d, v%d, v%d' % (r, r, vT2))
        for d in range(10): e('v_cvt_pk_bf16_f32 v%d, v%d, v%d' % (OP + d, src[2 * d], src[2 * d + 1]))
        e('s_lshl_b32 s%d, s%d, 3\ns_lshl_b32 s%d, s%d, 1\ns_add_u32 s%d, s%d, s%d\ns_mul_i32 s%d, s%d, 20480' % (sT0, sRB, sT1, sW, sT0, sT0, sT1, sT0, sT0))
        e('s_add_u32 s%d, s%d, s%d\ns_add_u32 s%d, s%d, 0x%x' % (sT0, sT0, sLOFF, sT0, sT0, O))
        e('buffer_store_dwordx4 v[%d:%d], v%d, s[4:7], s%d offen sc1' % (OP, OP + 3, vO0, sT0))
        e('buffer_store_dwordx4 v[%d:%d], v%d, s[4:7], s%d offen sc1' % (OP + 4, OP + 7, vO1, sT0))
        e('buffer_store_dwordx2 v[%d:%d], v%d, s[4:7], s%d offen sc1' % (OP + 8, OP + 9, vO2, sT0))
        self.stamp(6)
        self.cnt(sT1, CNT_O, sRB)
        self.signal(sT1)
        self.stamp(7)
        return self.maybe_stop('a')
    def gemm_bd(self, first_blk, nsteps, vs, pre_extra, valu):
        e = self.e
        LA = 5
        nf = nsteps * 5
        def read(n):
            i, tau = n // 5, n % 5
            return self.ring_read(AF + 4 * (n % 8), first_blk + i // 2, (i & 1) * 10240 + tau * 1024, kh=True)
        def mf(n, u):
            i, tau = n // 5, n % 5
            acc = ACC + (tau * 2 + u) * 4; a = AF + 4 * (n % 8); b = (2 * i + u) * 4
            c = '0' if i == 0 else 'v[%d:%d]' % (acc, acc + 3)
            return 'v_mfma_f32_16x16x32_bf16 v[%d:%d], v[%d:%d], a[%d:%d], %s' % (acc, acc + 3, a, a + 3, b, b + 3, c)
        anchors = []; pre = {}; fixed = {}
        for n in range(nf):
            anchors += [mf(n, 0), mf(n, 1)]
            if n + LA < nf: fixed[2 * n] = [read(n + LA)]
        nep = nsteps // 2
        for ep in range(1, nep):
            pre[20 * ep] = list(pre_extra.get(ep, [])) + ([W_tag('blk%d' % (first_blk + ep + 1))] if ep + 1 < nep else []) + ['s_barrier']
            if self.o.get('fine') == 'd' and nsteps == 24: pre[20 * ep] += self.stamp_items(19 + ep - 1)
        for n in range(LA): e(read(n))
        stt = {}
        e.extend(schedule(anchors, 2, pre, fixed, [vs, valu], vm_gap=self.o.get('d_gap', 3), state=stt))
        if self.o.get('verbose'): print('bd forced', stt.get('forced'), 'left', len(vs.q), len(valu.q))
        e.extend([y[0] for y in vs.q]); e.extend([y[0] for y in valu.q])
    def bd_unpack(self):
        U = 112; L = []
        for d in range(10):
            L.append('v_lshlrev_b32 v%d, 16, v%d' % (U + 2 * d, XR + d))
            L.append('v_and_b32 v%d, 0xffff0000, v%d' % (U + 2 * d + 1, XR + d))
        return L
    def bd_epilogue(self, last_blk, final):
        e = self.e
        EX = 88
        for tau in range(5):
            a = ACC + (tau * 2 + 1) * 4
            e('ds_write_b128 v%d, v[%d:%d] offset:%d' % (vEXW, a, a + 3, tau * 1024))
        e.wait_lgkm0()
        e('s_barrier')
        for tau in range(5):
            e('ds_read_b128 v[%d:%d], v%d offset:%d' % (EX + 4 * tau, EX + 4 * tau + 3, vEXR, tau * 1024))
        U = 112
        for tau in range(5):
            a = ACC + (tau * 2) * 4
            for c in range(4):
                e('v_add_f32 v%d, v%d, v%d' % (U + 4 * tau + c, U + 4 * tau + c, a + c))
        for tau in range(5):
            for c in range(4):
                e('v_add_f32 v%d, v%d, v%d' % (U + 4 * tau + c, U + 4 * tau + c, EX + 4 * tau + c))
        for d in range(10): e('v_cvt_pk_bf16_f32 v%d, v%d, v%d' % (XR + d, U + 2 * d, U + 2 * d + 1))
        final()
    def bd_stats(self, base_off, next_layer):
        e = self.e
        S, Q = 136, 137
        e('v_mov_b32 v%d, 0\nv_mov_b32 v%d, 0' % (S, Q))
        for d in range(10):
            e('v_dot2c_f32_bf16 v%d, v%d, v%d' % (S, XR + d, vONES))
            e('v_dot2c_f32_bf16 v%d, v%d, v%d' % (Q, XR + d, XR + d))
        for sw in ('v_permlane16_swap_b32', 'v_permlane32_swap_b32'):
            e('v_mov_b32 v138, v%d\nv_mov_b32 v139, v%d' % (S, Q))
            e('%s v%d, v138\n%s v%d, v139' % (sw, S, sw, Q))
            e('v_add_f32 v%d, v%d, v138\nv_add_f32 v%d, v%d, v139' % (S, S, Q, Q))
        e('s_lshl_b32 s%d, s%d, 10\ns_lshl_b32 s%d, s%d, 3\ns_add_u32 s%d, s%d, s%d' % (sT2, sTTK, sT3, sCS, sT2, sT2, sT3))
        e('s_add_u32 s%d, s%d, s%d\ns_add_u32 s%d, s%d, 0x%x' % (sT2, sT2, sLOFF, sT2, sT2, base_off + (LSTRIDE if next_layer else 0)))
        e('buffer_store_dwordx2 v[%d:%d], v%d, s[4:7], s%d offen sc1' % (S, Q, vST, sT2))
    def phase_b(self):
        e = self.e
        self.cnt(sT0, CNT_O, sRB)
        for (s, tt) in ((sB0, sTTK), (sB1, sTTS)):
            e('s_mul_i32 s%d, s%d, 20\ns_mul_i32 s%d, s%d, 10\ns_add_u32 s%d, s%d, s%d\ns_lshl_b32 s%d, s%d, 10' % (s, tt, sT1, sKH, s, s, sT1, s, s))
            e('s_add_u32 s%d, s%d, s%d\ns_add_u32 s%d, s%d, 0x%x' % (s, s, sLOFF, s, s, O))
        def tok(i, u):
            s = sB0 if u == 0 else sB1
            t = sC1 + u
            g = []
            if i % 4 == 0: g.append('s_add_u32 s%d, s%d, %d' % (t, s, i * 1024))
            g.append('buffer_load_dwordx4 a[%d:%d], v%d, s[4:7], s%d offen offset:%d%s' % ((2 * i + u) * 4, (2 * i + u) * 4 + 3, vL16, t, (i % 4) * 1024, self.sc))
            return g
        e.wait_tag('blk%d' % B0); e.wait_tag('blk%d' % (B0 + 1))
        self.poll(sT0)
        e('s_barrier')
        self.stamp(8)
        for i in range(10):
            for u in range(2): e.extend(tok(i, u))
        self.gemm_bd(B0, 10, Stream(), {}, Stream(self.bd_unpack(), 60))
        self.stamp(9)
        def final():
            e('s_mul_i32 s%d, s%d, 20480\ns_add_u32 s%d, s%d, s%d\ns_add_u32 s%d, s%d, 0x%x' % (sT0, sTTK, sT0, sT0, sLOFF, sT0, sT0, XC))
            e('buffer_store_dwordx4 v[%d:%d], v%d, s[4:7], s%d offen sc1' % (XR, XR + 3, vX0, sT0))
            e('buffer_store_dwordx4 v[%d:%d], v%d, s[4:7], s%d offen sc1' % (XR + 4, XR + 7, vX1, sT0))
            e('buffer_store_dwordx2 v[%d:%d], v%d, s[4:7], s%d offen sc1' % (XR + 8, XR + 9, vX2, sT0))
            self.bd_stats(SC, False)
            self.cnt(sT1, CNT_XC, sRB)
            self.signal(sT1)
            self.stamp(10)
            self.side_dma(range(C0 + 1, C0 + 1 + NSIDE_C))
        self.bd_epilogue(B0 + 4, final)
        return self.maybe_stop('b')
    def gelu_ops(self, accset, u, c0, c1, vVE, HP, t):
        L = []
        G = [accset + (p * 2 + u) * 4 + c for p in range(2) for c in range(4)]
        U = [accset + ((2 + p) * 2 + u) * 4 + c for p in range(2) for c in range(4)]
        g = [t + i for i in range(8)]; w = [t + 8 + i for i in range(8)]
        for h in range(2):
            R = range(4 * h, 4 * h + 4)
            for i in R: L.append('v_mul_f32 v%d, v%d, v%d' % (w[i], G[i], G[i]))
            for i in R: L.append('v_fma_f32 v%d, v%d, v%d, v%d' % (w[i], w[i], c1, c0))
            for i in R: L.append('v_mul_f32 v%d, v%d, v%d' % (w[i], w[i], G[i]))
            for i in R:
                L.append('v_exp_f32 v%d, v%d' % (w[i], w[i]))
                L.append('v_mul_f32 v%d, v%d, v%d' % (g[i], G[i], U[i]))
            for i in R: L.append('v_fma_f32 v%d, v%d, v%d, v%d' % (w[i], w[i], vVE, vVE))
            for i in R: L.append('v_rcp_f32 v%d, v%d' % (w[i], w[i]))
            for i in R: L.append('v_mul_f32 v%d, v%d, v%d' % (g[i], g[i], w[i]))
            for d in (2 * h, 2 * h + 1): L.append('v_cvt_pk_bf16_f32 v%d, v%d, v%d' % (HP + d, g[2 * d], g[2 * d + 1]))
        return L
    def check_flag(self, vreg, cnt_sgpr, target=16):
        sub = Asm()
        X = self.lab('ck'); L = self.lab('ckl')
        sub('v_cmp_gt_u32 vcc, %d, v%d' % (target, vreg))
        sub('s_cbranch_vccz %s' % X)
        sub('s_cmp_lg_u32 s%d, 0' % sDEAD); sub('s_cbranch_scc1 %s' % X)
        sub('s_mov_b32 s%d, 0' % sPC)
        sub.label(L)
        sub('buffer_load_dword v%d, v%d, s[4:7], s%d offen sc1' % (vreg, vZERO, cnt_sgpr), count=False)
        sub('s_waitcnt vmcnt(0)', count=False)
        sub('v_cmp_gt_u32 vcc, %d, v%d' % (target, vreg))
        sub('s_cbranch_vccz %s' % X)
        sub('s_add_u32 s%d, s%d, 1' % (sPC, sPC)); sub('s_cmp_lt_u32 s%d, %d' % (sPC, SPIN_LIMIT))
        sub('s_cbranch_scc1 %s' % L)
        sub('s_mov_b32 s%d, 1' % sDEAD)
        sub.label(X)
        return sub.items
    def phase_c(self):
        e = self.e; o = self.o
        ST, RS, VE, BMs, AM, GT, HP = 112, (120, 121), (122, 123), (124, 132), 136, 152, (168, 172)
        GC0, GC1 = (176, 177), (178, 179)
        k0 = -2.0 * 0.7978845608028654 * LOG2E
        self.cnt(sT0, CNT_XC, sRB)
        e('s_lshl_b32 s%d, s%d, 3\ns_lshl_b32 s%d, s%d, 1\ns_add_u32 s%d, s%d, s%d' % (sT2, sRB, sT1, sW, sT2, sT2, sT1))
        e('s_lshl_b32 s%d, s%d, 10\ns_add_u32 s%d, s%d, s%d\ns_add_u32 s%d, s%d, 0x%x' % (sT1, sT2, sT1, sT1, sLOFF, sT1, sT1, SC))
        e('s_mul_i32 s%d, s%d, 20480\ns_add_u32 s%d, s%d, s%d\ns_add_u32 s%d, s%d, 0x%x' % (sB0, sT2, sB0, sB0, sLOFF, sB0, sB0, XC))
        e('s_add_u32 s%d, s%d, 20480' % (sB1, sB0))
        e('s_mul_i32 s%d, s%d, 48\ns_add_u32 s%d, s%d, s%d\ns_lshl_b32 s%d, s%d, 10' % (sTW, sT2, sTW, sTW, sJ, sTW, sTW))
        e('s_add_u32 s%d, s%d, s%d\ns_add_u32 s%d, s%d, 0x%x' % (sTW, sTW, sLOFF, sTW, sTW, HH))
        e('s_mul_i32 s%d, s%d, %d\ns_add_u32 s%d, s%d, 0x%x' % (sT4, sJ, 12 * KB, sT4, sT4, WCM))
        self.poll(sT0)
        e('s_barrier')
        self.stamp(11)
        def tok(s, u):
            sb = sB0 if u == 0 else sB1; t = sC1 + u
            g = []
            if s % 4 == 0: g.append('s_add_u32 s%d, s%d, %d' % (t, sb, s * 1024))
            g.append('buffer_load_dwordx4 a[%d:%d], v%d, s[4:7], s%d offen offset:%d%s' % ((2 * s + u) * 4, (2 * s + u) * 4 + 3, vL16, t, (s % 4) * 1024, self.sc))
            return g
        NPRE = o.get('c_npre', 7)
        e('buffer_load_dwordx4 v[%d:%d], v%d, s[4:7], s%d offen sc1' % (ST, ST + 3, vSC, sT1))
        e('buffer_load_dwordx4 v[%d:%d], v%d, s[4:7], s%d offen offset:1024 sc1' % (ST + 4, ST + 7, vSC, sT1))
        for s in range(NPRE):
            for u in range(2): e.extend(tok(s, u))
        def amload(sg):
            pre = [] if sg == 0 else ['s_add_u32 s%d, s%d, 4096' % (sT4, sT4)]
            return pre + ['buffer_load_dwordx4 v[%d:%d], v%d, s[4:7], s%d offen offset:%d' % (AM + 4 * t, AM + 4 * t + 3, vL16, sT4, t * 1024) for t in range(4)]
        st = []
        for u in range(2):
            b = ST + 4 * u
            st += ['v_add_f32 v%d, v%d, v%d' % (b, b, b + 2), 'v_add_f32 v%d, v%d, v%d' % (b + 1, b + 1, b + 3)]
            for sw in ('v_permlane16_swap_b32', 'v_permlane32_swap_b32'):
                st += ['v_mov_b32 v%d, v%d' % (b + 2, b), 'v_mov_b32 v%d, v%d' % (b + 3, b + 1),
                       '%s v%d, v%d' % (sw, b, b + 2), '%s v%d, v%d' % (sw, b + 1, b + 3),
                       'v_add_f32 v%d, v%d, v%d' % (b, b, b + 2), 'v_add_f32 v%d, v%d, v%d' % (b + 1, b + 1, b + 3)]
            st += self.rowstat_finish(b, b + 1, RS[u], VE[u], BMs[u], b + 2)
            st += ['v_mul_f32 v%d, %s, v%d' % (GC0[u], f32bits(k0), RS[u]),
                   'v_mul_f32 v%d, v%d, v%d' % (GC1[u], RS[u], RS[u]),
                   'v_mul_f32 v%d, v%d, v%d' % (GC1[u], GC1[u], GC0[u]),
                   'v_mul_f32 v%d, %s, v%d' % (GC1[u], f32bits(0.044715), GC1[u])]
        LA = 5
        def read(n): return self.ring_read(AF + 4 * (n % 8), C0 + n // 20, (n % 20) * 1024)
        def mf(n, u):
            sg, r = n // 80, n % 80; s, tl = r // 4, r % 4
            acc = ACC + 32 * (sg & 1) + (tl * 2 + u) * 4; a = AF + 4 * (n % 8); b = (2 * s + u) * 4
            c = '0' if s == 0 else 'v[%d:%d]' % (acc, acc + 3)
            return 'v_mfma_f32_16x16x32_bf16 v[%d:%d], v[%d:%d], a[%d:%d], %s' % (acc, acc + 3, a, a + 3, b, b + 3, c)
        def mean(sg):
            L = []
            for tl in range(4):
                for u in range(2):
                    acc = ACC + 32 * (sg & 1) + (tl * 2 + u) * 4
                    L.append('v_mfma_f32_16x16x32_bf16 v[%d:%d], v[%d:%d], v[%d:%d], v[%d:%d]' % (acc, acc + 3, AM + 4 * tl, AM + 4 * tl + 3, BMs[u], BMs[u] + 3, acc, acc + 3))
            return L
        def gelu_store(sg):
            L = []
            for u in range(2):
                L += self.gelu_ops(ACC + 32 * (sg & 1), u, GC0[u], GC1[u], VE[u], HP[u], GT)
                L.append('s_add_u32 s%d, s%d, %d' % (sT5, sTW, u * 48 * 1024 + sg * 16 * 1024))
                L.append(('buffer_store_dwordx4 v[%d:%d], v%d, s[4:7], s%d offen sc1' % (HP[u], HP[u] + 3, vL16, sT5), 'h%d' % sg))
            return L
        def ix(n): return 2 * n + 8 * (n // 80)
        items = [(ix(4 * s), 0, tok(s, 0) + tok(s, 1)) for s in range(NPRE, 20)]
        for b in range(C0 + 1 + NSIDE_C, C0 + 6): items.append((ix(20 * (b - C0 - 1)), 0, self.flat(self.dma_ops(b))))
        last_in = o.get('c_lastblk', D0 + 2)
        for b in range(C0 + 6, last_in + 1):
            free = 20 * (b - C0 - 5)
            epn = b - C0 - 1
            dl = ix(20 * epn) - (8 if epn % 4 == 0 else 0) if b < D0 else 10000 + b
            items.append((dl, ix(free) - (8 if free % 80 == 0 else 0), self.flat(self.dma_ops(b))))
        items.append((ix(60), 0, amload(0)))
        items.append((ix(130), ix(80), amload(1)))
        items.append((ix(210), ix(160), amload(2)))
        vs = self.vm_stream(items)
        e.wait_tag('blk%d' % C0); e.wait_tag('blk%d' % (C0 + 1))
        e('s_barrier')
        for n in range(LA): e(read(n))
        pos = 0; cstate = {}
        for sg in range(3):
            anchors = []; pre = {}; fixed = {}
            if sg > 0: anchors += mean(sg - 1)
            for n in range(80 * sg, 80 * sg + 80):
                assert pos + len(anchors) == ix(n)
                anchors += [mf(n, 0), mf(n, 1)]
                if n + LA < 240: fixed[ix(n)] = [read(n + LA)]
            for ep in range(4 * sg, 4 * sg + 4):
                if ep == 0: continue
                at = ix(20 * ep) - (8 if ep % 4 == 0 else 0)
                p = [W_tag('blk%d' % (C0 + ep + 1))] if ep < 11 else []
                if ep == 8: p.append(W_tag('h0'))
                p.append('s_barrier')
                if self.o.get('fine') == 'c': p += self.stamp_items(19 + ep - 1)
                if ep == 8:
                    sub = Main(None, self.o); sub.nlab = self.nlab + 1000
                    sub.cnt(sT0, CNT_H, sRB, mul=384); sub.signal_only(sT0)
                    p += sub.e.items
                pre[at] = p
            valu = Stream(st, 8) if sg == 0 else Stream(gelu_store(sg - 1), pos + 10)
            e.extend(schedule(anchors, 2, pre, fixed, [vs, valu], start=pos, vm_gap=o.get('c_gap', 4), state=cstate))
            e.extend([y[0] for y in valu.q])
            pos += len(anchors)
        if self.o.get('verbose'): print('c forced', cstate.get('forced'), 'left', len(vs.q))
        e.extend([y[0] for y in vs.q])
        self.stamp(12)
        self.cnt(sT0, CNT_H, sRB, mul=384)
        e('buffer_load_dword v%d, v%d, s[4:7], s%d offen sc1' % (vPOLL, vZERO, sT0))
        e.extend(mean(2))
        e.extend(gelu_store(2))
        self.cnt(sT1, CNT_H, sRB, mul=384, add=256)
        self.signal(sT1)
        self.stamp(13)
        self.side_dma(range(last_in + 1, D0 + 6))
        return self.maybe_stop('c')
    def phase_d(self):
        e = self.e; o = self.o
        for (s, tt) in ((sB0, sTTK), (sB1, sTTS)):
            e('s_mul_i32 s%d, s%d, 48\ns_add_u32 s%d, s%d, s%d\ns_lshl_b32 s%d, s%d, 10' % (s, tt, s, s, sKH, s, s))
            e('s_add_u32 s%d, s%d, s%d\ns_add_u32 s%d, s%d, 0x%x' % (s, s, sLOFF, s, s, HH))
        def tok(i, u):
            sg, jj = i // 8, i % 8
            s = sB0 if u == 0 else sB1; t = sC1 + u
            g = []
            if jj % 2 == 0: g.append('s_add_u32 s%d, s%d, %d' % (t, s, sg * 16384 + jj * 2048))
            g.append('buffer_load_dwordx4 a[%d:%d], v%d, s[4:7], s%d offen offset:%d%s' % ((2 * i + u) * 4, (2 * i + u) * 4 + 3, vL16, t, (jj % 2) * 2048, self.sc))
            return g
        e.extend(self.check_flag(vPOLL, sT0))
        self.stamp(14)
        for i in range(8):
            for u in range(2): e.extend(tok(i, u))
        e('buffer_load_dword v%d, v%d, s[4:7], s%d offen sc1' % (vPOLL, vZERO, sT1))
        e.wait_tag('blk%d' % D0); e.wait_tag('blk%d' % (D0 + 1))
        e('s_barrier')
        CK = o.get('d_ck', 1)
        items = [(10 * i, 20 * CK, tok(i, 0) + tok(i, 1)) for i in range(8, 24)]
        for b in range(D0 + 6, NBLK): items.append((20 * (b - D0 - 1), 20 * (b - D0 - 5), self.flat(self.dma_ops(b))))
        chk = [W_vreg(vPOLL)] + self.check_flag(vPOLL, sT1)
        self.gemm_bd(D0, 24, self.vm_stream(items), {CK: chk}, Stream(self.bd_unpack(), 200))
        self.stamp(17)
        def final():
            L = self.lab('d_last'); X = self.lab('d_done')
            e('s_cmp_lg_u32 s%d, 0' % sL); e('s_cbranch_scc1 %s' % L)
            e('s_lshr_b32 s%d, s%d, 1\ns_mul_i32 s%d, s%d, 40960\ns_add_u32 s%d, s%d, s%d\ns_add_u32 s%d, s%d, 0x%x' % (sT0, sTTK, sT0, sT0, sT0, sT0, sLOFF, sT0, sT0, XA + LSTRIDE))
            e('buffer_store_dwordx4 v[%d:%d], v%d, s[4:7], s%d offen sc1' % (XR, XR + 3, vY0, sT0))
            e('buffer_store_dwordx4 v[%d:%d], v%d, s[4:7], s%d offen sc1' % (XR + 4, XR + 7, vY1, sT0))
            e('buffer_store_dwordx2 v[%d:%d], v%d, s[4:7], s%d offen sc1' % (XR + 8, XR + 9, vY2, sT0))
            self.bd_stats(SA, True)
            self.cnt(sT1, CNT_XA, sRB, next_layer=True)
            self.signal(sT1)
            self.stamp(18)
            self.side_dma(range(NSIDE_A))
            e('s_branch %s' % X)
            e.label(L)
            e('s_mul_i32 s%d, s%d, 20480\ns_mul_i32 s%d, s%d, 160\ns_add_u32 s%d, s%d, s%d' % (sT0, sTTK, sT1, sCS, sT0, sT0, sT1))
            e('buffer_store_dwordx4 v[%d:%d], v%d, s[12:15], s%d offen' % (XR, XR + 3, vR0, sT0))
            e('buffer_store_dwordx4 v[%d:%d], v%d, s[12:15], s%d offen offset:64' % (XR + 4, XR + 7, vR0, sT0))
            e('buffer_store_dwordx2 v[%d:%d], v%d, s[12:15], s%d offen' % (XR + 8, XR + 9, vR2, sT0))
            self.stamp(18)
            self.stamp_flush()
            e('s_endpgm')
            e.label(X)
        self.bd_epilogue(D0 + 11, final)
        return self.maybe_stop('d')
    def build(self):
        e = self.e
        self.prologue()
        e.label('M_LAYER')
        done = self.phase_a() or self.phase_b() or self.phase_c() or self.phase_d()
        if not done:
            e('s_add_u32 s%d, s%d, 1\ns_add_u32 s%d, s%d, 0x%x' % (sL, sL, sLOFF, sLOFF, LSTRIDE))
            e('s_branch M_LAYER')
        e.label('M_END')
        e('s_endpgm')
        return e
```

```python
from asmlib import *
from layout import *

P0_GRID = 513
P0_LDS = 28 * 1024
NAME = 'prep_kernel'

def srd(e, dst, lo, nbytes):
    e('s_mov_b32 s%d, s%d' % (dst, lo))
    e('s_mov_b32 s%d, s%d' % (dst + 1, lo + 1))
    e('s_mov_b32 s%d, 0x%x' % (dst + 2, nbytes))
    e('s_mov_b32 s%d, 0x20000' % (dst + 3))

S_WS, S_SRC, S_SRC2, S_W = 4, 8, 12, 16

STAMPS = False
def stamp(e, k):
    if not STAMPS: return
    e('s_memrealtime s[70:71]\ns_waitcnt lgkmcnt(0)\nv_mov_b32 v%d, s70' % (120 + k))
def stamp_flush(e):
    if not STAMPS: return
    stamp(e, 3)
    e('s_lshl_b32 s72, s2, 2\ns_add_u32 s72, s72, s16\ns_lshl_b32 s72, s72, 4\ns_add_u32 s72, s72, 0x4100000')
    e('v_mov_b32 v5, 0')
    e('buffer_store_dwordx4 v[120:123], v5, s[4:7], s72 offen')

def gen_p0(stamps=False):
    global STAMPS
    STAMPS = stamps
    e = Asm()
    e.directive('.text\n.globl %s\n.p2align 8\n.type %s,@function' % (NAME, NAME))
    e.label(NAME)
    e('s_cmp_ge_u32 s2, %d' % P0_GRID)
    e('s_cbranch_scc1 P0_END')
    stamp(e, 0)
    e('s_load_dwordx8 s[40:47], s[0:1], 0')
    e('s_load_dwordx4 s[48:51], s[0:1], 40')
    e('s_load_dwordx2 s[52:53], s[0:1], 56')
    e('s_load_dwordx2 s[54:55], s[0:1], 80')
    e('v_lshrrev_b32 v1, 6, v0')
    e('v_and_b32 v2, 63, v0')
    e('v_readfirstlane_b32 s16, v1')
    e('v_mov_b32 v3, 0x3f803f80')
    e('v_lshlrev_b32 v4, 4, v2')
    e('s_waitcnt lgkmcnt(0)')
    srd(e, S_WS, 54, WS_BYTES)
    stamp(e, 1)
    e('s_cmp_lt_u32 s2, 96');  e('s_cbranch_scc1 P0_WA')
    e('s_cmp_lt_u32 s2, 288'); e('s_cbranch_scc1 P0_WC')
    e('s_cmp_lt_u32 s2, 416'); e('s_cbranch_scc1 P0_WD')
    e('s_cmp_lt_u32 s2, 448'); e('s_cbranch_scc1 P0_WB')
    e('s_cmp_lt_u32 s2, 512'); e('s_cbranch_scc1 P0_X')
    e('v_lshlrev_b32 v5, 4, v0')
    for r in range(8, 12): e('v_mov_b32 v%d, 0' % r)
    for l in range(2):
        for n in range(4):
            e('s_mov_b32 s20, 0x%x' % (LBASE + l * LSTRIDE + CNT + n * 4096))
            e('buffer_store_dwordx4 v[8:11], v5, s[4:7], s20 offen')
    e('s_endpgm')
    gen_wa(e); gen_wc(e); gen_wd(e); gen_wb(e); gen_x(e)
    e.label('P0_END')
    e('s_endpgm')
    return e

def hilo_store(e, vsum, vtmp, voff, soff):
    e('v_cvt_pk_bf16_f32 v%d, v%d, v%d' % (vtmp, vsum, vsum))
    e('v_and_b32 v%d, 0xffff0000, v%d' % (vtmp + 2, vtmp))
    e('v_sub_f32 v%d, v%d, v%d' % (vtmp + 2, vsum, vtmp + 2))
    e('v_cvt_pk_bf16_f32 v%d, v%d, v%d' % (vtmp + 1, vtmp + 2, vtmp + 2))
    e('buffer_store_dwordx2 v[%d:%d], v%d, s[4:7], %s offen' % (vtmp, vtmp + 1, voff, soff))

def gen_wa(e):
    e.label('P0_WA')
    e.reset_state()
    srd(e, S_SRC, 42, 640 * 3840)
    srd(e, S_SRC2, 44, 32 * 800)
    e('s_lshl_b32 s20, s2, 2\ns_add_u32 s20, s20, s16')
    e('s_mul_i32 s21, s20, 2731\ns_lshr_b32 s21, s21, 16')
    e('s_mul_i32 s22, s21, 24\ns_sub_u32 s22, s20, s22')
    e('s_mul_i32 s23, s22, 43\ns_lshr_b32 s23, s23, 8')
    e('s_mul_i32 s24, s23, 6\ns_sub_u32 s24, s22, s24')
    e('s_lshr_b32 s25, s24, 1\ns_and_b32 s26, s24, 1')
    e('s_lshl_b32 s27, s21, 1\ns_add_u32 s27, s27, s26')
    e('s_add_u32 s28, s25, 1\ns_mul_i32 s28, s28, 640')
    e('s_cmp_eq_u32 s25, 2\ns_cselect_b32 s28, 0, s28')
    e('s_mul_i32 s29, s27, 20\ns_add_u32 s28, s28, s29\ns_lshl_b32 s28, s28, 1')
    e('s_mul_i32 s29, s23, %d\ns_add_u32 s28, s28, s29' % (160 * 3840))
    e('v_and_b32 v5, 31, v2\nv_lshrrev_b32 v6, 5, v2')
    e('v_and_b32 v7, 0x13, v5')
    e('v_bfe_u32 v8, v5, 2, 1\nv_lshl_add_u32 v7, v8, 3, v7')
    e('v_bfe_u32 v8, v5, 3, 1\nv_lshl_add_u32 v7, v8, 2, v7')
    e('v_mul_u32_u24 v7, 3840, v7\nv_lshl_add_u32 v7, v6, 4, v7')
    for kt in range(5):
        e('s_add_u32 s30, s28, %d' % (kt * 32 * 3840))
        for m in range(2):
            r = 32 + 8 * kt + 4 * m
            e('buffer_load_dwordx4 v[%d:%d], v7, s[8:11], s30 offen offset:%d' % (r, r + 3, 32 * m))
    e('s_cmp_eq_u32 s25, 1\ns_cbranch_scc1 P0_WA_ID')
    e('v_lshlrev_b32 v8, 1, v5')
    e('v_mul_u32_u24 v9, 320, v6\nv_add_u32 v8, v8, v9')
    e('s_mul_i32 s30, s27, 800')
    e('v_mov_b32 v10, 0x%x' % OOB)
    e('v_cmp_gt_u32 vcc, 20, v5\nv_cndmask_b32 v8, v10, v8, vcc')
    e('v_cmp_eq_u32 vcc, 0, v6\nv_cndmask_b32 v9, v10, v8, vcc')
    for el in range(8):
        e('buffer_load_ushort v%d, v8, s[12:15], s30 offen offset:%d' % (80 + el, el * 40))
    for el in range(4):
        e('buffer_load_ushort v%d, v9, s[12:15], s30 offen offset:%d' % (88 + el, (16 + el) * 40))
    for d in range(4): e('v_lshl_or_b32 v%d, v%d, 16, v%d' % (72 + d, 81 + 2 * d, 80 + 2 * d))
    for d in range(2): e('v_lshl_or_b32 v%d, v%d, 16, v%d' % (76 + d, 89 + 2 * d, 88 + 2 * d))
    e('v_mov_b32 v78, 0\nv_mov_b32 v79, 0')
    e.wait_all()
    e('s_branch P0_WA_GO')
    e.label('P0_WA_ID')
    e('v_lshlrev_b32 v8, 3, v6\nv_sub_u32 v8, v5, v8')
    e('v_mov_b32 v10, 0x3f80\nv_mov_b32 v11, 0x3f800000\nv_mov_b32 v12, 0')
    for m in range(2):
        if m == 1: e('v_subrev_u32 v8, 16, v8')
        for d in range(4):
            e('v_cmp_eq_u32 vcc, %d, v8' % (2 * d))
            e('v_cndmask_b32 v%d, v12, v10, vcc' % (72 + 4 * m + d))
            e('v_cmp_eq_u32 vcc, %d, v8' % (2 * d + 1))
            e('v_cndmask_b32 v%d, v%d, v11, vcc' % (72 + 4 * m + d, 72 + 4 * m + d))
    e.wait_all()
    e.label('P0_WA_GO')
    e.reset_state()
    stamp(e, 2)
    e('s_mul_i32 s30, s25, 20\nv_add_u32 v8, s30, v5')
    e('v_lshrrev_b32 v9, 4, v8\nv_and_b32 v10, 15, v8')
    e('v_lshrrev_b32 v11, 2, v10\nv_lshlrev_b32 v11, 3, v11')
    e('v_and_b32 v10, 3, v10\nv_add_u32 v11, v11, v10')
    e('s_lshl_b32 s31, s26, 2\nv_add_u32 v11, s31, v11')
    e('v_lshl_add_u32 v12, v6, 5, v11\nv_lshlrev_b32 v12, 4, v12')
    e('v_cmp_gt_u32 vcc, 3, v9')
    e('v_mov_b32 v13, 120\nv_cndmask_b32 v13, v13, v9, vcc')
    e('v_mov_b32 v14, 1024\nv_mov_b32 v15, 3072\nv_cndmask_b32 v14, v14, v15, vcc')
    e('v_lshl_add_u32 v12, v13, 10, v12')
    e('s_mul_i32 s31, s23, 10\nv_mul_lo_u32 v15, v14, s31\nv_add_u32 v12, v12, v15')
    e('s_cmp_eq_u32 s25, 2\ns_cselect_b32 s32, 24, 20')
    e('v_cmp_gt_u32 vcc, s32, v5\nv_mov_b32 v16, 0x%x' % OOB)
    e('s_mov_b64 s[34:35], vcc', count=False) if False else None
    e('v_cndmask_b32 v12, v16, v12, vcc')
    e('v_cndmask_b32 v14, 0, v14, vcc') if False else None
    e('v_lshlrev_b32 v17, 10, v9\nv_lshl_add_u32 v17, v11, 4, v17')
    e('v_cndmask_b32 v17, v16, v17, vcc')
    e('v_cmp_eq_u32 vcc, 0, v6\nv_cndmask_b32 v17, v16, v17, vcc')
    e('s_mul_i32 s33, s21, %d\ns_add_u32 s33, s33, 0x%x' % (160 * KB, WA))
    e('v_mov_b32 v18, 0')
    for kt in range(5):
        a0 = 32 + 8 * kt
        e('v_mfma_f32_32x32x16_bf16 v[96:111], v[%d:%d], v[72:75], 0' % (a0, a0 + 3))
        e('v_mfma_f32_32x32x16_bf16 v[96:111], v[%d:%d], v[76:79], v[96:111]' % (a0 + 4, a0 + 7))
        for d in range(8):
            e('v_cvt_pk_bf16_f32 v%d, v%d, v%d' % (112 + d, 96 + 2 * d, 97 + 2 * d))
        for d in range(8):
            e('v_dot2c_f32_bf16 v18, v%d, v3' % (112 + d))
        e('buffer_store_dwordx4 v[112:115], v12, s[4:7], s33 offen')
        e('v_add_u32 v19, v12, v14')
        e('buffer_store_dwordx4 v[116:119], v19, s[4:7], s33 offen')
        e('v_add_u32 v12, v19, v14')
    e('v_mov_b32 v19, v18')
    e('v_permlane32_swap_b32 v18, v19')
    e('v_add_f32 v18, v18, v19')
    e('s_lshl_b32 s34, s21, 12\ns_add_u32 s34, s34, 0x%x' % WAM)
    e('s_lshr_b32 s35, s23, 1\ns_lshl_b32 s35, s35, 9\ns_add_u32 s34, s34, s35')
    e('s_and_b32 s35, s23, 1\ns_lshl_b32 s35, s35, 3\ns_add_u32 s34, s34, s35')
    hilo_store(e, 18, 20, 17, 's34')
    stamp_flush(e)
    e('s_endpgm')

def tr_lane(e):
    e('v_lshrrev_b32 v5, 4, v2\nv_bfe_u32 v6, v2, 2, 2\nv_and_b32 v7, 3, v2')

def gen_wc(e):
    e.label('P0_WC')
    e.reset_state()
    e('s_sub_u32 s20, s2, 96')
    e('s_cmp_ge_u32 s20, 96\ns_cselect_b32 s21, 1, 0')
    e('s_cselect_b32 s8, s50, s48\ns_cselect_b32 s9, s51, s49')
    e('s_mov_b32 s10, 0x%x\ns_mov_b32 s11, 0x20000' % (640 * 3072))
    e('s_mul_i32 s22, s21, 96\ns_sub_u32 s22, s20, s22')
    e('s_lshr_b32 s23, s22, 2\ns_and_b32 s24, s22, 3')
    e('v_lshrrev_b32 v8, 3, v2\nv_mul_u32_u24 v8, 3072, v8')
    e('v_and_b32 v9, 7, v2\nv_lshl_add_u32 v8, v9, 4, v8')
    e('s_mul_i32 s25, s24, %d\ns_lshl_b32 s26, s23, 7\ns_add_u32 s25, s25, s26' % (160 * 3072))
    e('s_mul_i32 s26, s16, %d\ns_add_u32 s25, s25, s26' % (40 * 3072))
    e('s_mul_i32 s27, s16, 5120')
    for n in range(5):
        e('s_add_u32 m0, s27, %d' % (n * 1024))
        e('s_add_u32 s28, s25, %d' % (n * 8 * 3072))
        e('buffer_load_dwordx4 v8, s[8:11], s28 offen lds')
    tr_lane(e)
    e('v_lshl_add_u32 v9, v5, 3, v6\nv_lshlrev_b32 v9, 7, v9')
    e('v_lshl_add_u32 v9, v7, 3, v9')
    e('s_lshl_b32 s26, s16, 5\nv_add_u32 v9, s26, v9')
    e('s_lshl_b32 s26, s23, 2\ns_add_u32 s26, s26, s16')
    e('s_mul_i32 s27, s26, 171\ns_lshr_b32 s27, s27, 10')
    e('s_mul_i32 s28, s27, 6\ns_sub_u32 s28, s26, s28\ns_lshr_b32 s28, s28, 1')
    e('s_and_b32 s29, s26, 1\ns_lshl_b32 s30, s21, 1\ns_add_u32 s29, s29, s30')
    e('s_mul_i32 s30, s27, 240\ns_mul_i32 s31, s28, 80\ns_add_u32 s30, s30, s31')
    e('s_mul_i32 s31, s24, 20\ns_add_u32 s30, s30, s31\ns_add_u32 s30, s30, s29')
    e('s_lshl_b32 s30, s30, 10\ns_add_u32 s30, s30, 0x%x' % WC)
    e('v_mov_b32 v18, 0')
    e.wait_all()
    e('s_barrier')
    stamp(e, 2)
    for s in range(5):
        r = 32 + 4 * s
        e('ds_read_b64_tr_b16 v[%d:%d], v9 offset:%d' % (r, r + 1, s * 4096))
        e('ds_read_b64_tr_b16 v[%d:%d], v9 offset:%d' % (r + 2, r + 3, s * 4096 + 512))
    for s in range(5):
        r = 32 + 4 * s
        e('s_add_u32 s31, s30, %d' % (s * 4096))
        e('buffer_store_dwordx4 v[%d:%d], v4, s[4:7], s31 offen' % (r, r + 3))
        for d in range(4): e('v_dot2c_f32_bf16 v18, v%d, v3' % (r + d))
    e('v_mov_b32 v19, v18\nv_permlane16_swap_b32 v18, v19\nv_add_f32 v18, v18, v19')
    e('v_mov_b32 v19, v18\nv_permlane32_swap_b32 v18, v19\nv_add_f32 v18, v18, v19')
    e('v_and_b32 v10, 15, v2\nv_lshlrev_b32 v10, 4, v10')
    e('v_lshl_add_u32 v10, v5, 9, v10')
    e('v_mov_b32 v11, 0x%x' % OOB)
    e('v_cmp_gt_u32 vcc, 2, v5\nv_cndmask_b32 v10, v11, v10, vcc')
    e('v_cmp_eq_u32 vcc, 0, v5\nv_cndmask_b32 v18, 0, v18, vcc')
    e('s_mul_i32 s31, s27, 12\ns_lshl_b32 s32, s28, 2\ns_add_u32 s31, s31, s32\ns_add_u32 s31, s31, s29')
    e('s_lshl_b32 s31, s31, 10\ns_add_u32 s31, s31, 0x%x' % WCM)
    e('s_lshr_b32 s32, s24, 1\ns_lshl_b32 s32, s32, 8\ns_add_u32 s31, s31, s32')
    e('s_and_b32 s32, s24, 1\ns_lshl_b32 s32, s32, 3\ns_add_u32 s31, s31, s32')
    hilo_store(e, 18, 20, 10, 's31')
    stamp_flush(e)
    e('s_endpgm')

def dma160_voff(e, dst):
    e('v_mul_u32_u24 v8, 205, v2\nv_lshrrev_b32 v8, 11, v8')
    e('v_mul_u32_u24 v9, 10, v8\nv_sub_u32 v9, v2, v9')
    e('v_min_u32 v8, 5, v8')
    e('v_mul_u32_u24 v8, 1280, v8\nv_lshl_add_u32 v%d, v9, 4, v8' % dst)

def row_to_lds(e, vrow, vdst, vt):
    e('v_mul_u32_u24 v%d, 171, v%d\nv_lshrrev_b32 v%d, 10, v%d' % (vt, vrow, vt, vt))
    e('v_mul_u32_u24 v%d, 6, v%d\nv_sub_u32 v%d, v%d, v%d' % (vdst, vt, vdst, vrow, vdst))
    e('v_mul_u32_u24 v%d, 160, v%d\nv_lshl_add_u32 v%d, v%d, 10, v%d' % (vdst, vdst, vdst, vt, vdst))

def gen_wd(e):
    e.label('P0_WD')
    e.reset_state()
    srd(e, S_SRC, 52, 1536 * 1280)
    e('s_sub_u32 s20, s2, 288\ns_lshr_b32 s21, s20, 4\ns_and_b32 s22, s20, 15')
    dma160_voff(e, 10)
    e('s_mul_i32 s23, s22, %d\ns_mul_i32 s24, s21, 160\ns_add_u32 s23, s23, s24' % (96 * 1280))
    e('s_mul_i32 s24, s16, %d\ns_add_u32 s23, s23, s24' % (24 * 1280))
    e('s_lshl_b32 s25, s16, 12')
    for n in range(4):
        e('s_add_u32 m0, s25, %d' % (n * 1024))
        e('s_add_u32 s26, s23, %d' % (n * 6 * 1280))
        e('buffer_load_dwordx4 v10, s[8:11], s26 offen lds')
    tr_lane(e)
    e('s_lshl_b32 s26, s16, 5')
    e('v_lshl_add_u32 v11, v5, 2, v6\nv_add_u32 v11, s26, v11')
    e('v_min_u32 v11, 79, v11')
    row_to_lds(e, 11, 12, 13)
    e('v_add_u32 v11, 16, v11')
    row_to_lds(e, 11, 14, 13)
    e('v_lshl_add_u32 v16, v7, 4, v12\nv_lshl_add_u32 v17, v7, 4, v14')
    e('v_lshl_add_u32 v18, v7, 3, v12\nv_lshl_add_u32 v19, v7, 3, v14')
    e('s_lshl_b32 s27, s16, 3\ns_lshr_b32 s28, s22, 1\ns_add_u32 s27, s27, s28\ns_mul_i32 s27, s27, 10')
    e('s_and_b32 s28, s22, 1\ns_mul_i32 s28, s28, 5\ns_add_u32 s27, s27, s28')
    e('s_mul_i32 s28, s21, 240\ns_add_u32 s27, s27, s28\ns_lshl_b32 s27, s27, 10\ns_add_u32 s27, s27, 0x%x' % WD)
    e.wait_all()
    e('s_barrier')
    stamp(e, 2)
    e('s_cmp_eq_u32 s16, 3\ns_cbranch_scc1 P0_END')
    for tau in range(5):
        r = 32 + 4 * tau
        off = (8 * tau if tau < 2 else 64 + 8 * (tau - 2)) if tau < 4 else 128
        va, vb = (16, 17) if tau < 4 else (18, 19)
        e('ds_read_b64_tr_b16 v[%d:%d], v%d offset:%d' % (r, r + 1, va, off))
        e('ds_read_b64_tr_b16 v[%d:%d], v%d offset:%d' % (r + 2, r + 3, vb, off))
    for tau in range(5):
        r = 32 + 4 * tau
        e('s_add_u32 s28, s27, %d' % (tau * 1024))
        e('buffer_store_dwordx4 v[%d:%d], v4, s[4:7], s28 offen' % (r, r + 3))
    stamp_flush(e)
    e('s_endpgm')

def gen_wb(e):
    e.label('P0_WB')
    e.reset_state()
    srd(e, S_SRC, 46, 640 * 1280)
    e('s_sub_u32 s20, s2, 416\ns_lshr_b32 s21, s20, 2\ns_and_b32 s22, s20, 3')
    dma160_voff(e, 10)
    e('s_mul_i32 s23, s22, %d\ns_mul_i32 s24, s21, 160\ns_add_u32 s23, s23, s24' % (160 * 1280))
    e('s_mul_i32 s24, s16, %d\ns_add_u32 s23, s23, s24' % (42 * 1280))
    e('s_mul_i32 s25, s16, 7168')
    for n in range(7):
        e('s_add_u32 m0, s25, %d' % (n * 1024))
        e('s_add_u32 s26, s23, %d' % (n * 6 * 1280))
        e('buffer_load_dwordx4 v10, s[8:11], s26 offen lds')
    tr_lane(e)
    e('s_mul_i32 s27, s21, %d\ns_add_u32 s27, s27, 0x%x' % (100 * KB, WB))
    e.wait_all()
    e('s_barrier')
    stamp(e, 2)
    def rows(sp):
        e('v_mov_b32 v11, %s' % sp)
        e('v_lshl_add_u32 v11, v11, 2, v5')
        e('v_mul_u32_u24 v12, 52, v11\nv_lshrrev_b32 v12, 8, v12')
        e('v_mul_u32_u24 v13, 5, v12\nv_sub_u32 v13, v11, v13')
        e('v_mul_u32_u24 v12, 40, v12\nv_add_u32 v12, v12, v6')
        e('v_lshlrev_b32 v14, 3, v13')
        e('v_add_u32 v15, 4, v14')
        e('v_cmp_gt_u32 vcc, 2, v13\nv_cndmask_b32 v14, v15, v14, vcc')
        e('v_cmp_eq_u32 vcc, 4, v13\nv_cndmask_b32 v14, v14, 16, vcc') if False else None
        e('v_mov_b32 v15, 16\nv_cmp_eq_u32 vcc, 4, v13\nv_cndmask_b32 v14, v14, v15, vcc')
        e('v_add_u32 v20, v12, v14')
        e('v_mov_b32 v15, 20\nv_cndmask_b32 v15, 4, v15, vcc')
        e('v_add_u32 v21, v20, v15')
        row_to_lds(e, 20, 12, 13)
        row_to_lds(e, 21, 14, 13)
    def dest(sp, tau_sgpr_or_const):
        e('s_mul_i32 s28, s22, 5\ns_add_u32 s28, s28, %s' % sp)
        e('s_cmp_ge_u32 s28, 10\ns_cselect_b32 s29, 5, 0\ns_cselect_b32 s30, 10, 0')
        e('s_sub_u32 s28, s28, s30\ns_mul_i32 s28, s28, 10\ns_add_u32 s28, s28, s29')
        e('s_add_u32 s28, s28, %s' % tau_sgpr_or_const)
        e('s_lshl_b32 s28, s28, 10\ns_add_u32 s28, s28, s27')
    e('s_and_b32 s31, s16, 1\ns_lshl_b32 s31, s31, 3\ns_lshr_b32 s32, s16, 1\ns_lshl_b32 s32, s32, 6\ns_add_u32 s31, s31, s32')
    e('v_lshlrev_b32 v22, 4, v7\nv_add_u32 v22, s31, v22')
    e('v_lshlrev_b32 v23, 3, v7\nv_add_u32 v23, 128, v23')
    def frag(vcol):
        e('v_add_u32 v16, v12, v%d\nv_add_u32 v17, v14, v%d' % (vcol, vcol))
        e('ds_read_b64_tr_b16 v[32:33], v16\nds_read_b64_tr_b16 v[34:35], v17')
        e('buffer_store_dwordx4 v[32:35], v4, s[4:7], s28 offen')
    for sp in range(5):
        rows(str(sp)); dest(str(sp), 's16'); frag(22)
        if sp == 4:
            dest('4', '4'); frag(23)
    rows('s16'); dest('s16', '4'); frag(23)
    stamp_flush(e)
    e('s_endpgm')

def gen_x(e):
    e.label('P0_X')
    e.reset_state()
    srd(e, S_SRC, 40, T * 1280)
    e('s_sub_u32 s20, s2, 448')
    e('v_and_b32 v5, 31, v2\nv_lshrrev_b32 v6, 5, v2')
    e('v_mul_u32_u24 v7, 1280, v5\nv_lshl_add_u32 v7, v6, 4, v7')
    e('s_mul_i32 s21, s20, 40960\ns_mul_i32 s22, s16, 320\ns_add_u32 s21, s21, s22')
    for n in range(10):
        e('buffer_load_dwordx4 v[%d:%d], v7, s[8:11], s21 offen offset:%d' % (32 + 4 * n, 35 + 4 * n, 32 * n))
    e('s_mul_i32 s22, s20, 40\ns_mul_i32 s23, s16, 10\ns_add_u32 s22, s22, s23')
    e('s_lshl_b32 s22, s22, 10\ns_add_u32 s22, s22, 0x%x' % (LBASE + XA))
    for r in range(20, 24): e('v_mov_b32 v%d, 0' % r)
    if STAMPS:
        e.wait_all(); stamp(e, 2)
    for n in range(10):
        r = 32 + 4 * n
        e('s_add_u32 s23, s22, %d' % (n * 1024))
        e('buffer_store_dwordx4 v[%d:%d], v4, s[4:7], s23 offen' % (r, r + 3))
        a = 20 if n < 5 else 22
        for d in range(4):
            e('v_dot2c_f32_bf16 v%d, v%d, v3' % (a, r + d))
            e('v_dot2c_f32_bf16 v%d, v%d, v%d' % (a + 1, r + d, r + d))
    for r in range(20, 24):
        e('v_mov_b32 v24, v%d\nv_permlane32_swap_b32 v%d, v24\nv_add_f32 v%d, v%d, v24' % (r, r, r, r))
    e('v_lshlrev_b32 v8, 6, v5\nv_mov_b32 v9, 0x%x' % OOB)
    e('v_cmp_eq_u32 vcc, 0, v6\nv_cndmask_b32 v8, v9, v8, vcc')
    e('s_lshl_b32 s23, s20, 11\ns_lshl_b32 s24, s16, 4\ns_add_u32 s23, s23, s24\ns_add_u32 s23, s23, 0x%x' % (LBASE + SA))
    e('buffer_store_dwordx4 v[20:23], v8, s[4:7], s23 offen')
    stamp_flush(e)
    e('s_endpgm')

def descriptor(name, vgpr, accum, sgpr=96):
    return """.amdhsa_kernel %s
  .amdhsa_next_free_vgpr %d
  .amdhsa_next_free_sgpr %d
  .amdhsa_accum_offset %d
  .amdhsa_group_segment_fixed_size 0
  .amdhsa_kernarg_size 88
  .amdhsa_user_sgpr_count 2
  .amdhsa_user_sgpr_kernarg_segment_ptr 1
  .amdhsa_system_sgpr_workgroup_id_x 1
.end_amdhsa_kernel
""" % (name, vgpr, sgpr, accum)
```

```python
import sys
sys.path.insert(0, 'gen')
import gen_p0, gen_main
from layout import *

HEADER = open('interleave_layers__linear_kernel_hedgehog__geglu_ffn__prompt.s.ref').read().split('; Override launch geometry')[0]

def build(stop=None, opts=None):
    p0 = gen_p0.gen_p0(bool((opts or {}).get('p0stamps')), {0: '', 1: ' sc1', 2: ' nt', 3: ' sc0 sc1'}[(opts or {}).get('p0sc', 0)], (opts or {}).get('codepf', 1), (opts or {}).get('onlycrit', 0)); t0 = p0.finish()
    m = gen_main.Main(stop, opts).build(); t1 = m.finish()
    src = HEADER
    src += '; Two launches: a weight/activation re-layout pass, then one persistent kernel for both layers.\n'
    src += '; @launch kernel=%s grid=(%d,1,1) block=(256,1,1) lds=%d\n' % (gen_p0.NAME, gen_p0.P0_GRID, gen_p0.P0_LDS)
    for _ in range((opts or {}).get('empty', 0)):
        src += '; @launch kernel=nop_kernel grid=(1,1,1) block=(64,1,1) lds=0\n'
    src += '; @launch kernel=%s grid=(256,1,1) block=(256,1,1) lds=%d\n' % (gen_main.NAME, gen_main.LDS_TOTAL)
    src += '.amdgcn_target "amdgcn-amd-amdhsa--gfx950"\n' + t0 + t1
    if (opts or {}).get('empty'):
        src += '.text\n.globl nop_kernel\n.p2align 8\n.type nop_kernel,@function\nnop_kernel:\n  s_endpgm\n'
    src += '.section .rodata,"a"\n.p2align 6\n' + gen_p0.descriptor(gen_p0.NAME, 128, 128)
    if (opts or {}).get('empty'):
        src += '.p2align 6\n' + gen_p0.descriptor('nop_kernel', 32, 32)
    src += '.p2align 6\n' + gen_p0.descriptor(gen_main.NAME, 512, 256)
    return src, p0, m

if __name__ == '__main__':
    out = sys.argv[1]; stop = sys.argv[2] if len(sys.argv) > 2 and sys.argv[2] != 'none' else None
    opts = {}
    for a in sys.argv[3:]:
        k, _, v = a.partition('=')
        opts[k] = int(v) if v.lstrip('-').isdigit() else (v or 1)
    src, p0, m = build(stop, opts)
    open(out, 'w').write(src)
    print('p0', p0.stats()); print('main', m.stats())
```

```python
import re

REG_RE = re.compile(r'^(-|\|)?(v|a|s)(\d+|\[(\d+):(\d+)\])\|?$')

def regs_of(op):
    op = op.strip()
    if op.startswith('abs(') or op.startswith('neg('):
        op = op[4:-1]
    m = REG_RE.match(op)
    if m:
        k = m.group(2)
        if m.group(4) is not None:
            return {(k, i) for i in range(int(m.group(4)), int(m.group(5)) + 1)}
        return {(k, int(m.group(3)))}
    if op in ('vcc', 'exec', 'm0', 'scc'):
        return {('x', op)}
    if op in ('vcc_lo', 'vcc_hi'):
        return {('x', 'vcc')}
    if op in ('exec_lo', 'exec_hi'):
        return {('x', 'exec')}
    return set()

def regs_names(S):
    return ['%s%d' % r for r in S]

TRANS = ('v_exp_f32', 'v_log_f32', 'v_rcp_f32', 'v_rsq_f32', 'v_sqrt_f32', 'v_sin_f32', 'v_cos_f32')
RMW = ('v_fmac_f32', 'v_dot2c_f32_bf16', 'v_mac_f32', 'v_writelane_b32')

class Ins:
    __slots__ = ('txt', 'op', 'kind', 'rd', 'wr', 'tag', 'passes', 'srcc', 'srcab', 'wide_store', 'states', 'count', 'lds_dma', 'meta')
    def __init__(self, txt, op='', kind='raw', rd=(), wr=(), tag=None):
        self.txt = txt; self.op = op; self.kind = kind
        self.rd = set(rd); self.wr = set(wr); self.tag = tag
        self.passes = 0; self.srcc = set(); self.srcab = set(); self.wide_store = False
        self.states = 1; self.count = True; self.lds_dma = False; self.meta = None

def split_ops(s):
    out = []; depth = 0; cur = ''
    for ch in s:
        if ch in '[(': depth += 1
        if ch in '])': depth -= 1
        if ch == ',' and depth == 0:
            out.append(cur.strip()); cur = ''
        else:
            cur += ch
    if cur.strip(): out.append(cur.strip())
    return out

def parse(txt, tag=None):
    t = txt.strip()
    sp = t.split(None, 1)
    op = sp[0]
    rest = sp[1] if len(sp) > 1 else ''
    ops = split_ops(rest)
    mods = ''
    if ops:
        last = ops[-1].split()
        ops[-1] = last[0]
        mods = ' '.join(last[1:])
    base = op
    for suf in ('_e32', '_e64', '_sdwa', '_dpp'):
        if base.endswith(suf): base = base[:-len(suf)]
    I = Ins(txt, base, 'raw', tag=tag)
    R = lambda idxs: set().union(*[regs_of(ops[i]) for i in idxs if i < len(ops)]) if idxs else set()
    n = len(ops)
    if base.startswith('v_mfma'):
        I.kind = 'mfma'
        I.wr = R([0]); I.srcab = R([1, 2]); I.srcc = R([3]); I.rd = I.srcab | I.srcc
        I.passes = 8 if '32x32' in base else 4
    elif base.startswith('v_cmp'):
        I.kind = 'valu'; I.wr = R([0]); I.rd = R(range(1, n)) | {('x', 'exec')}
    elif base in ('v_readfirstlane_b32', 'v_readlane_b32'):
        I.kind = 'valu'; I.wr = R([0]); I.rd = R(range(1, n))
    elif base.startswith('v_permlane') and 'swap' in base:
        I.kind = 'valu'; I.wr = R([0, 1]); I.rd = R([0, 1])
    elif base in ('v_add_co_u32', 'v_sub_co_u32', 'v_addc_co_u32'):
        I.kind = 'valu'; I.wr = R([0, 1]); I.rd = R(range(2, n))
    elif base.startswith('v_'):
        I.kind = 'valu'; I.wr = R([0]); I.rd = R(range(1, n))
        if base in RMW: I.rd |= I.wr
        if base == 'v_cndmask_b32' and n == 3: I.rd |= {('x', 'vcc')}
    elif base.startswith('ds_read') or base.startswith('ds_bpermute'):
        I.kind = 'ds'; I.wr = R([0]); I.rd = R(range(1, n))
    elif base.startswith('ds_write'):
        I.kind = 'ds'; I.rd = R(range(0, n))
    elif base.startswith('buffer_load'):
        I.kind = 'vm'
        if ' lds' in (' ' + mods):
            I.lds_dma = True; I.rd = R(range(0, n)) | {('x', 'm0')}
        else:
            I.wr = R([0]); I.rd = R(range(1, n))
    elif base.startswith('buffer_store'):
        I.kind = 'vm'; I.rd = R(range(0, n))
        I.wide_store = base.endswith('x3') or base.endswith('x4')
        I.meta = R([0])
    elif base.startswith('buffer_atomic'):
        I.kind = 'vm'; I.rd = R(range(0, n))
        if 'sc0' in mods: I.wr = R([0])
    elif base.startswith('global_load'):
        I.kind = 'vm'; I.wr = R([0]); I.rd = R(range(1, n))
    elif base.startswith('s_load') :
        I.kind = 'smem'; I.wr = R([0]); I.rd = R(range(1, n))
    elif base in ('s_memtime', 's_memrealtime'):
        I.kind = 'smem'; I.wr = R([0])
    elif base == 's_waitcnt':
        I.kind = 'wait'
    elif base == 's_nop':
        I.kind = 'nop'; I.states = int(ops[0], 0) + 1
    elif base == 's_barrier':
        I.kind = 'barrier'
    elif base.startswith('s_cmp') or base.startswith('s_bitcmp'):
        I.kind = 'salu'; I.rd = R(range(0, n)); I.wr = {('x', 'scc')}
    elif base.startswith('s_cbranch') or base in ('s_branch', 's_endpgm', 's_setpc_b64', 's_sleep', 's_setprio'):
        I.kind = 'ctl'
        if base == 's_setpc_b64': I.rd = R([0])
    elif base.startswith('s_'):
        I.kind = 'salu'; I.wr = R([0]); I.rd = R(range(1, n))
        if base in ('s_and_saveexec_b64',): I.wr |= {('x', 'exec')}
    else:
        raise ValueError('cannot parse: ' + txt)
    return I

class Asm:
    def __init__(self):
        self.items = []
    def __call__(self, txt, tag=None, count=True):
        for line in txt.split('\n'):
            line = line.strip()
            if not line: continue
            I = parse(line, tag); I.count = count
            self.items.append(I)
    def add(self, I): self.items.append(I)
    def side(self, txt, tag):
        I = parse(txt, tag); I.meta = 'side'; self.items.append(I)
    def extend(self, L):
        for x in L:
            if isinstance(x, str): self(x)
            elif isinstance(x, tuple): self(*x)
            else: self.items.append(x)
    def comment(self, txt):
        self.items.append(Ins('; ' + txt, kind='comment'))
    def label(self, name):
        self.items.append(Ins(name + ':', kind='label'))
    def directive(self, txt):
        self.items.append(Ins(txt, kind='comment'))
    def wait_tag(self, tag):
        I = Ins('', kind='wait_tag', tag=tag); self.items.append(I)
    def vm_marker(self, tag):
        self.items.append(Ins('', kind='vm_marker', tag=tag))
    def wait_lgkm0(self):
        self.items.append(Ins('', kind='wait_lgkm0'))
    def wait_all(self):
        self.items.append(Ins('', kind='wait_all'))
    def reset_state(self):
        self.items.append(Ins('', kind='reset'))
    def insert_waits(self):
        out = []; vm = []; lg = []; smem = [False]
        def wait(vmn=None, lgn=None):
            parts = []
            if vmn is not None: parts.append('vmcnt(%d)' % min(vmn, 63))
            if lgn is not None: parts.append('lgkmcnt(%d)' % min(lgn, 15))
            out.append(parse('s_waitcnt ' + ' '.join(parts)))
        def real_after(p):
            own_side = vm[p].meta == 'side'
            return sum(1 for x in vm[p + 1:] if x.kind != 'vm_marker' and (own_side or x.meta != 'side'))
        def need(touch):
            vp = ln = None
            for p in range(len(vm) - 1, -1, -1):
                if vm[p].wr & touch:
                    vp = p; break
            for p in range(len(lg) - 1, -1, -1):
                if lg[p].wr & touch:
                    ln = len(lg) - 1 - p; break
            if ln is not None and any(x.kind == 'smem' for x in lg): ln = 0
            return vp, ln
        def retire_lg(ln):
            if ln is not None: del lg[:len(lg) - ln]
        for I in self.items:
            if I.kind == 'vm_marker':
                vm.append(I); continue
            if I.kind == 'wait_tag':
                vp = None
                for p in range(len(vm) - 1, -1, -1):
                    if vm[p].tag == I.tag:
                        vp = p; break
                if vp is not None:
                    vn = real_after(vp)
                    if vn <= 63: wait(vn, None)
                    del vm[:vp + 1]
                continue
            if I.kind == 'need':
                vp, ln = need(I.rd)
                vn = None
                if vp is not None:
                    vn = real_after(vp)
                    del vm[:vp + 1]
                    if vn > 63: vn = None
                if vn is not None or ln is not None:
                    wait(vn, ln); retire_lg(ln)
                continue
            if I.kind == 'wait_lgkm0':
                if lg: wait(None, 0); lg.clear()
                continue
            if I.kind == 'wait_all':
                wait(0, 0); vm.clear(); lg.clear(); continue
            if I.kind == 'reset':
                vm.clear(); lg.clear(); continue
            if I.kind == 'wait' and not I.count:
                out.append(I); continue
            if I.kind == 'wait':
                m = re.search(r'vmcnt\((\d+)\)', I.txt)
                if m:
                    assert int(m.group(1)) == 0, 'only full manual vmcnt waits are tracked'
                    vm.clear()
                m = re.search(r'lgkmcnt\((\d+)\)', I.txt)
                if m:
                    k = int(m.group(1))
                    if k == 0: lg.clear()
                    elif not any(x.kind == 'smem' for x in lg): retire_lg(min(k, len(lg)))
                out.append(I); continue
            if I.kind in ('comment', 'label', 'ctl', 'barrier', 'nop', 'raw'):
                out.append(I); continue
            touch = {r for r in (I.rd | I.wr)}
            vp, ln = need(touch)
            vn = None
            if vp is not None:
                vn = real_after(vp)
                del vm[:vp + 1]
                if vn > 63: vn = None
            if vn is not None or ln is not None:
                wait(vn, ln); retire_lg(ln)
            out.append(I)
            if I.count:
                if I.kind == 'vm': vm.append(I)
                elif I.kind == 'ds': lg.append(I)
                elif I.kind == 'smem': lg.append(I)
        self.items = out
    def insert_nops(self):
        out = []
        def required(prev, I):
            n = 0
            vr = lambda s: {r for r in s if r[0] in 'va'}
            if prev.kind == 'valu' and prev.op.startswith('v_dot'):
                if prev.wr & (I.rd | I.wr):
                    chain = I.op == prev.op and I.wr == prev.wr and I.txt.count(next(iter(regs_names(prev.wr)))) == 1
                    if not chain: n = max(n, 3)
            if prev.kind == 'valu':
                pw = prev.wr
                if I.kind == 'mfma' and vr(pw) & I.rd: n = max(n, 2)
                if I.kind == 'valu':
                    if prev.op in TRANS and I.op not in TRANS and (pw & I.rd): n = max(n, 1)
                    if prev.op in TRANS and I.op in TRANS and (pw & I.rd): n = max(n, 1)
                    if I.op.startswith('v_permlane') and (vr(pw) & I.rd): n = max(n, 2)
                    if I.op in ('v_readfirstlane_b32', 'v_readlane_b32') and (vr(pw) & I.rd): n = max(n, 1)
                    sw = {r for r in pw if r[0] == 's' or r == ('x', 'vcc')}
                    if sw & I.rd: n = max(n, 4 if I.op in ('v_readlane_b32', 'v_writelane_b32') else 2)
                if I.kind in ('vm', 'smem'):
                    sw = {r for r in pw if r[0] == 's'}
                    if sw & I.rd: n = max(n, 5)
                if I.kind == 'salu':
                    sw = {r for r in pw if r[0] == 's' or r == ('x', 'vcc')}
                    if sw & I.rd: n = max(n, 4)
                if I.kind == 'ctl' and ('x', 'vcc') in pw and 'vcc' in I.op: n = max(n, 5)
            if prev.kind == 'mfma':
                D = prev.wr; four = prev.passes == 4
                if I.kind == 'mfma':
                    if D & I.srcab: n = max(n, 8 if four else 12)
                    if D & I.srcc and not (D == I.srcc and prev.passes == I.passes): n = max(n, 6 if four else 10)
                    if D & I.wr and not (D == I.wr and D == I.srcc and prev.passes == I.passes):
                        n = max(n, 8 if four else 12)
                elif I.kind in ('valu', 'ds', 'vm'):
                    if D & (I.rd | I.wr): n = max(n, 8 if four else 12)
                if I.kind == 'valu' and (prev.srcc & I.wr): n = max(n, 3 if four else 7)
            if prev.kind == 'salu' and ('x', 'm0') in prev.wr and I.kind == 'vm' and I.lds_dma: n = max(n, 1)
            if prev.kind == 'vm' and prev.wide_store and prev.meta & I.wr:
                n = max(n, 2 if I.kind == 'valu' else 1)
            return n
        for I in self.items:
            if I.kind in ('comment', 'label'):
                out.append(I); continue
            need = 0; dist = 0
            for prev in reversed(out):
                if prev.kind in ('comment', 'label'): continue
                if dist >= 20: break
                r = required(prev, I)
                if r > dist: need = max(need, r - dist)
                dist += prev.states
            while need > 0:
                k = min(need, 16)
                out.append(parse('s_nop %d' % (k - 1))); need -= k
            out.append(I)
        self.items = out
    def text(self):
        L = []
        for I in self.items:
            if I.kind in ('label', 'comment'): L.append(I.txt)
            else: L.append('  ' + I.txt)
        return '\n'.join(L) + '\n'
    def finish(self):
        self.insert_waits(); self.insert_nops()
        return self.text()
    def stats(self):
        import collections
        c = collections.Counter(I.kind for I in self.items)
        return dict(c)

def vr(b, n=1): return 'v%d' % b if n == 1 else 'v[%d:%d]' % (b, b + n - 1)
def ar(b, n=1): return 'a%d' % b if n == 1 else 'a[%d:%d]' % (b, b + n - 1)
def sr(b, n=1): return 's%d' % b if n == 1 else 's[%d:%d]' % (b, b + n - 1)

def interleave(slots, fillers, per=None, start=0):
    out = []; f = list(fillers); n = len(slots)
    for i, s in enumerate(slots):
        out.extend(s)
        if i < start or not f: continue
        left = n - i
        k = -(-len(f) // left)
        if per is not None: k = min(k, per)
        out.extend(f[:k]); del f[:k]
    return out, f


def Need(op):
    return Ins('', kind='need', rd=regs_of(op))
def W_tag(tag): return Ins('', kind='wait_tag', tag=tag)
def V_marker(tag): return Ins('', kind='vm_marker', tag=tag)

def cost_of(x):
    t = x[0] if isinstance(x, tuple) else (x.txt if isinstance(x, Ins) else x)
    t = t.strip()
    if not t: return 0
    op = t.split()[0]
    if op.startswith('buffer_') or op.startswith('global_'): return 2
    if op in TRANS: return 2
    if op in ('s_waitcnt', 's_barrier'): return 0
    return 1

class Stream:
    def __init__(self, items=(), earliest=0, before=1 << 30):
        self.q = [(x, earliest, before) for x in items]
    def add(self, items, earliest=0, before=1 << 30):
        self.q += [(x, earliest, before) for x in items]
        return self
    def __len__(self): return len(self.q)

def is_vm(x):
    t = x[0] if isinstance(x, tuple) else (x.txt if isinstance(x, Ins) else x)
    return t.strip().startswith('buffer_')

def schedule(anchors, cap, pre=None, fixed=None, streams=(), start=0, vm_gap=0, state=None):
    pre = pre or {}; fixed = fixed or {}
    out = []
    state = state if state is not None else {}
    state.setdefault('last_vm', -1000)
    for k, a in enumerate(anchors):
        i = start + k
        for s in streams:
            last = max((n for n, y in enumerate(s.q) if y[2] <= i), default=-1)
            if last >= 0:
                assert all(y[1] <= i for y in s.q[:last + 1]), 'deadline precedes earliest slot'
                state['forced'] = state.get('forced', 0) + last + 1
                out.extend(y[0] for y in s.q[:last + 1]); del s.q[:last + 1]
                state['last_vm'] = i
        out.extend(pre.get(i, ()))
        out.append(a)
        room = cap(i) if callable(cap) else cap
        for x in fixed.get(i, ()):
            out.append(x); room -= cost_of(x)
        progress = True
        while room > 0 and progress:
            progress = False
            for s in streams:
                if s.q and s.q[0][1] <= i:
                    if is_vm(s.q[0][0]):
                        if i - state['last_vm'] < vm_gap: continue
                    c = cost_of(s.q[0][0])
                    if c <= room or (c > 1 and room >= 1 and c > (cap(i) if callable(cap) else cap)):
                        if is_vm(s.q[0][0]): state['last_vm'] = i
                        out.append(s.q.pop(0)[0]); room -= c; progress = True
                        break
    return out
```

```python
from asmlib import *
from layout import *

NAME = 'hedgehog_main_kernel'
BLK = 20480
SCR = 6 * BLK
LDS_TOTAL = 163840
SPIN_LIMIT = 40000
LOG2E = 1.4426950408889634
TSOFF = 0x4000000

sW, sRB, sJ, sL, sLOFF, sW5K, sWA, sWB, sWC, sWD = range(16, 26)
sT0, sT1, sT2, sT3, sT4, sT5 = range(26, 32)
sDEAD, sPC, sPV, sCS, sTH, sTTK, sTTS, sKH = range(40, 48)
sDM = 48
sTW = 49
sB0, sB1 = 50, 51
sC1, sC2, sC3, sC4 = 52, 53, 54, 55
sEX, sEXD = 56, 57
vL16, vLANE, vONES, vZERO, vONE, vPOLL = 1, 2, 3, 4, 5, 6
vL16B, vK0, vK1 = 7, 8, 9
vT0, vT1, vT2, vT3, vT4 = 10, 11, 12, 13, 14
vEXR = 15
AF, ACC = 16, 48
vSA, vTW, vKA, vKB, vPS1, vPS2, vPL, vAW, vO0, vO1, vO2, vX0, vX1, vX2, vY0, vY1 = range(224, 240)
XR = 240
vY2, vR0, vR2, vST, vSC, vEXW = range(250, 256)
vAW2 = 221

A0, B0, C0, D0, NBLK = 0, 8, 13, 25, 37
NSIDE_A, NSIDE_C = 4, 4

def f32bits(x):
    import struct
    return '0x%08x' % struct.unpack('<I', struct.pack('<f', x))[0]

def W_vreg(r):
    return 'v_mov_b32 v%d, v%d' % (r, r)

class Main:
    def __init__(self, stop=None, opts=None):
        self.e = Asm(); self.stop = stop; self.o = opts or {}
        self.sc = '' if self.o.get('nosc1') else ' sc1'
        self.nlab = 0
        global NSIDE_A, NSIDE_C
        NSIDE_A = self.o.get('nsa', 4); NSIDE_C = self.o.get('nsc', 4)
    def lab(self, p):
        self.nlab += 1
        return 'M_%s_%d' % (p, self.nlab)
    def blk_src(self, b):
        if b < B0: return sWA, (b - A0) * BLK
        if b < C0: return sWB, (b - B0) * BLK
        if b < D0: return sWC, (b - C0) * BLK
        return sWD, (b - D0) * BLK
    def dma_ops(self, b, tag=None):
        nb = b % NBLK if b >= NBLK else b
        base, off = self.blk_src(nb)
        slot = nb % 6
        tag = tag or 'blk%d' % nb
        g = []
        first = ['s_add_u32 m0, s%d, %d' % (sW5K, slot * BLK), 's_add_u32 s%d, s%d, %d' % (sDM, base, off),
                 ('buffer_load_dwordx4 v%d, s[4:7], s%d offen lds' % (vL16, sDM), tag)]
        g.append(first)
        for k in range(1, 4):
            g.append([('buffer_load_dwordx4 v%d, s[4:7], s%d offen offset:%d lds' % (vL16, sDM, k * 1024), tag)])
        g.append(['s_add_u32 m0, s%d, %d' % (sW5K, slot * BLK + 4096), 's_add_u32 s%d, s%d, %d' % (sDM, base, off + 4096),
                  ('buffer_load_dwordx4 v%d, s[4:7], s%d offen lds' % (vL16, sDM), tag)])
        return g
    def side_dma(self, blocks):
        e = self.e
        L = self.lab('side')
        e('s_cmp_eq_u32 s%d, 0' % sW); e('s_cbranch_scc1 %s' % L)
        for b in blocks:
            base, off = self.blk_src(b); slot = b % 6; tag = 'blk%d' % b
            ld = 'buffer_load_dwordx4 v%d, s[4:7], s%d offen%%s lds' % (vL16, sDM)
            e('s_add_u32 m0, s%d, %d' % (sW5K, slot * BLK)); e('s_add_u32 s%d, s%d, %d' % (sDM, base, off))
            for k in range(4): e.side(ld % (' offset:%d' % (k * 1024) if k else ''), tag)
            e('s_add_u32 m0, s%d, %d' % (sW5K, slot * BLK + 4096)); e('s_add_u32 s%d, s%d, %d' % (sDM, base, off + 4096))
            e.side(ld % '', tag)
            e('s_add_u32 m0, s%d, %d' % (sEX, slot * BLK)); e('s_add_u32 s%d, s%d, %d' % (sDM, base, off))
            e('s_add_u32 s%d, s%d, s%d' % (sDM, sDM, sEXD))
            e.side(ld % '', tag); e.side(ld % ' offset:1024', tag)
        e.label(L)
    def dma_items(self, b, earliest):
        out = []
        for g in self.dma_ops(b):
            for x in g: out.append((x, earliest))
        return out
    def freed_by(self, c):
        if c <= NBLK - 7: return c + 6
        if c < NBLK - 1: return NBLK + (c - (NBLK - 7))
        return NBLK + 0
    def ring_read(self, dst, blk, off, kh=False):
        slot = blk % 6
        base = (vK0 if kh else vL16) if slot < 3 else (vK1 if kh else vL16B)
        return 'ds_read_b128 v[%d:%d], v%d offset:%d' % (dst, dst + 3, base, (slot % 3) * BLK + off)
    def emit_next_layer_dma(self, b):
        e = self.e
        L = self.lab('nl')
        e('s_cmp_lg_u32 s%d, 0' % sL); e('s_cbranch_scc1 %s' % L)
        for g in self.dma_ops(b):
            for x in g:
                if isinstance(x, tuple): e(x[0], count=False)
                else: e(x)
        e.label(L)
    def signal(self, cnt_off_sgpr):
        e = self.e
        e.wait_all()
        e('s_barrier')
        self.signal_only(cnt_off_sgpr)
    def signal_only(self, cnt_off_sgpr):
        e = self.e
        L = self.lab('sig')
        e('s_cmp_lg_u32 s%d, 0' % sW); e('s_cbranch_scc1 %s' % L)
        e('s_mov_b64 exec, 1')
        e('buffer_atomic_add v%d, v%d, s[4:7], s%d offen sc1' % (vONE, vZERO, cnt_off_sgpr), count=False)
        e('s_mov_b64 exec, -1')
        e.label(L)
    def poll(self, cnt_off_sgpr, n=1, target=16):
        e = self.e
        L = self.lab('poll'); X = self.lab('got')
        e('s_cmp_lg_u32 s%d, 0' % sW); e('s_cbranch_scc1 %s' % X)
        e('s_cmp_lg_u32 s%d, 0' % sDEAD); e('s_cbranch_scc1 %s' % X)
        e('s_mov_b32 s%d, 0' % sPC)
        if n > 1:
            e('v_min_u32 v%d, %d, v%d' % (vT0, n - 1, vLANE)); e('v_lshlrev_b32 v%d, 7, v%d' % (vT0, vT0))
        e.label(L)
        e('buffer_load_dword v%d, v%d, s[4:7], s%d offen sc1' % (vPOLL, vT0 if n > 1 else vZERO, cnt_off_sgpr), count=False)
        e('s_waitcnt vmcnt(0)', count=False)
        e('v_cmp_gt_u32 vcc, %d, v%d' % (target, vPOLL))
        e('s_cbranch_vccz %s' % X)
        e('s_add_u32 s%d, s%d, 1' % (sPC, sPC)); e('s_cmp_lt_u32 s%d, %d' % (sPC, SPIN_LIMIT))
        e('s_cbranch_scc1 %s' % L)
        e('s_mov_b32 s%d, 1' % sDEAD)
        e.label(X)
    def cnt(self, dst, which, idx_sgpr, mul=128, add=0, next_layer=False):
        e = self.e
        e('s_mul_i32 s%d, s%d, %d' % (dst, idx_sgpr, mul))
        e('s_add_u32 s%d, s%d, s%d' % (dst, dst, sLOFF))
        e('s_add_u32 s%d, s%d, 0x%x' % (dst, dst, which + add + (LSTRIDE if next_layer else 0)))
    def prologue(self):
        e = self.e
        e.directive('.text\n.globl %s\n.p2align 8\n.type %s,@function' % (NAME, NAME))
        e.label(NAME)
        e('s_cmp_ge_u32 s2, 256'); e('s_cbranch_scc1 M_END')
        e('s_load_dwordx2 s[32:33], s[0:1], 0')
        e('s_load_dwordx2 s[34:35], s[0:1], 64')
        e('s_load_dwordx2 s[36:37], s[0:1], 80')
        if self.o.get('stamps'):
            e(('s_memtime' if self.o.get('cyc') else 's_memrealtime') + ' s[60:61]\ns_waitcnt lgkmcnt(0)\nv_mov_b32 v223, s60')
        e('v_lshrrev_b32 v10, 6, v0'); e('v_and_b32 v%d, 63, v0' % vLANE)
        e('v_readfirstlane_b32 s%d, v10' % sW)
        e('v_lshlrev_b32 v%d, 4, v%d' % (vL16, vLANE))
        e('s_and_b32 s%d, s2, 3\ns_lshr_b32 s26, s2, 6\ns_lshl_b32 s26, s26, 2\ns_or_b32 s%d, s%d, s26' % (sRB, sRB, sRB))
        e('s_lshr_b32 s%d, s2, 2\ns_and_b32 s%d, s%d, 15' % (sJ, sJ, sJ))
        e('s_and_b32 s%d, s%d, 7\ns_lshr_b32 s%d, s%d, 3' % (sCS, sJ, sTH, sJ))
        e('s_mul_i32 s%d, s%d, 5120' % (sW5K, sW))
        e('s_lshr_b32 s%d, s%d, 1' % (sKH, sW))
        for (s, idx, stride, base) in ((sWA, sJ, 160 * KB, WA), (sWB, sCS, 100 * KB, WB), (sWC, sJ, 240 * KB, WC), (sWD, sCS, 240 * KB, WD)):
            if self.o.get('wsame'): stride = 0
            e('s_mul_i32 s%d, s%d, %d\ns_add_u32 s%d, s%d, s%d\ns_add_u32 s%d, s%d, 0x%x' % (s, idx, stride, s, s, sW5K, s, s, base))
        e('s_lshl_b32 s%d, s%d, 3\ns_lshl_b32 s26, s%d, 2\ns_add_u32 s%d, s%d, s26' % (sTTK, sRB, sTH, sTTK, sTTK))
        e('s_and_b32 s26, s%d, 1\ns_lshl_b32 s26, s26, 1\ns_add_u32 s%d, s%d, s26\ns_add_u32 s%d, s%d, s%d' % (sW, sTTK, sTTK, sTTK, sTTK, sKH))
        e('s_xor_b32 s%d, s%d, 1' % (sTTS, sTTK))
        e('s_mov_b32 s%d, 0\ns_mov_b32 s%d, 0\ns_mov_b32 s%d, 0x%x' % (sDEAD, sL, sLOFF, LBASE))
        e('v_mov_b32 v%d, 0x3f803f80\nv_mov_b32 v%d, 0\nv_mov_b32 v%d, 1' % (vONES, vZERO, vONE))
        e('v_add_u32 v%d, %d, v%d' % (vL16B, 3 * BLK, vL16))
        e('s_mul_i32 s26, s%d, 5120\nv_add_u32 v%d, s26, v%d\nv_add_u32 v%d, %d, v%d' % (sKH, vK0, vL16, vK1, 3 * BLK, vK0))
        t32, hi, t16, q = 100, 101, 102, 103
        e('v_and_b32 v%d, 31, v%d\nv_lshrrev_b32 v%d, 5, v%d' % (t32, vLANE, hi, vLANE))
        e('v_and_b32 v%d, 15, v%d\nv_lshrrev_b32 v%d, 4, v%d' % (t16, vLANE, q, vLANE))
        e('v_mov_b32 v104, 0x%x' % OOB)
        e('v_lshlrev_b32 v%d, 3, v%d\nv_lshl_add_u32 v%d, v%d, 16, v%d' % (vSA, t32, vSA, hi, vSA))
        e('s_lshl_b32 s26, s%d, 5\nv_add_u32 v105, s26, v%d\nv_mul_u32_u24 v105, 144, v105' % (sW, t32))
        e('v_mul_u32_u24 v106, 18432, v%d\nv_add_u32 v105, v105, v106\nv_add_u32 v%d, 0x%x, v105' % (hi, vTW, SCR))
        e('v_lshrrev_b32 v105, 1, v%d\nv_bfe_u32 v106, v%d, 2, 2\nv_lshl_add_u32 v105, v105, 3, v106\nv_mul_u32_u24 v105, 144, v105' % (q, vLANE))
        e('v_and_b32 v106, 1, v%d\nv_lshlrev_b32 v106, 5, v106\nv_and_b32 v107, 3, v%d\nv_lshl_add_u32 v106, v107, 3, v106\nv_add_u32 v105, v105, v106' % (q, vLANE))
        e('s_lshr_b32 s26, s%d, 1\ns_mul_i32 s26, s26, 18432\ns_add_u32 s26, s26, 0x%x' % (sW, SCR))
        e('s_and_b32 s27, s%d, 1\ns_mul_i32 s28, s27, 40\ns_add_u32 s28, s28, s26\ns_add_u32 s29, s26, 80' % sW)
        e('v_add_u32 v%d, s28, v105\nv_add_u32 v%d, s29, v105' % (vKA, vKB))
        e('s_lshl_b32 s26, s%d, 10' % sW)
        e('v_mul_u32_u24 v105, 24, v%d\nv_add_u32 v105, v105, v%d\nv_lshlrev_b32 v105, 4, v105\nv_add_u32 v105, s26, v105' % (hi, t32))
        e('v_cmp_gt_u32 vcc, 24, v%d\nv_cndmask_b32 v%d, v104, v105, vcc' % (t32, vPS1))
        e('v_lshlrev_b32 v105, 3, v%d\nv_add_u32 v105, s26, v105\nv_add_u32 v105, 768, v105' % t32)
        e('v_cmp_eq_u32 vcc, 0, v%d\nv_cndmask_b32 v%d, v104, v105, vcc' % (hi, vPS2))
        e('v_mov_b32 v106, 84\nv_cmp_le_u32 s[30:31], v106, v0\nv_cndmask_b32 v106, 0, 1, s[30:31]')
        e('v_mul_u32_u24 v107, 84, v106\nv_sub_u32 v107, v0, v107')
        e('v_mul_u32_u24 v108, 391, v107\nv_lshrrev_b32 v108, 13, v108')
        e('v_mul_u32_u24 v109, 21, v108\nv_sub_u32 v109, v107, v109')
        e('v_subrev_u32 v110, 168, v0\nv_mul_u32_u24 v111, 391, v110\nv_lshrrev_b32 v111, 13, v111\nv_and_b32 v111, 3, v111')
        e('v_mul_u32_u24 v96, 21, v111\nv_sub_u32 v96, v110, v96')
        e('v_cmp_gt_u32 vcc, 168, v0')
        e('v_lshrrev_b32 v97, 1, v108\nv_lshl_add_u32 v97, v106, 1, v97\nv_lshlrev_b32 v97, 10, v97')
        e('v_and_b32 v98, 1, v108\nv_mul_u32_u24 v98, 24, v98\nv_add_u32 v98, v98, v109\nv_lshl_add_u32 v97, v98, 4, v97')
        e('v_lshlrev_b32 v98, 10, v111\nv_lshl_add_u32 v98, v96, 3, v98\nv_add_u32 v98, 768, v98')
        e('v_cndmask_b32 v97, v98, v97, vcc')
        e('v_mov_b32 v99, 252\nv_cmp_gt_u32 s[30:31], v99, v0\nv_cndmask_b32 v%d, v104, v97, s[30:31]' % vPL)
        e('v_lshrrev_b32 v97, 1, v111\nv_cndmask_b32 v106, v97, v106, vcc')
        e('v_cndmask_b32 v108, 4, v108, vcc\nv_cndmask_b32 v109, v96, v109, vcc')
        e('v_lshrrev_b32 v110, 4, v109\nv_mul_u32_u24 v110, 5, v110\nv_add_u32 v110, v110, v108')
        e('v_and_b32 v109, 15, v109\nv_lshrrev_b32 v97, 2, v109\nv_lshlrev_b32 v97, 3, v97\nv_and_b32 v109, 3, v109\nv_add_u32 v97, v97, v109')
        e('v_mul_u32_u24 v109, 36, v106\nv_add_u32 v97, v97, v109')
        e('v_lshlrev_b32 v97, 4, v97\nv_lshl_add_u32 v97, v110, 10, v97\nv_add_u32 v97, 0x%x, v97' % SCR)
        e('v_and_b32 v105, 63, v0\nv_lshlrev_b32 v105, 4, v105\nv_add_u32 v105, 0x%x, v105' % (SCR + 12288))
        e('v_cndmask_b32 v%d, v105, v97, vcc' % vAW)
        e('v_and_b32 v98, 1, v111\nv_lshl_add_u32 v97, v98, 3, v97')
        e('v_cndmask_b32 v97, v97, v105, vcc\nv_cndmask_b32 v%d, v105, v97, s[30:31]' % vAW2)
        e('s_mul_i32 s26, s%d, 5' % sJ)
        e('v_bfe_u32 v105, v%d, 4, 1\nv_mul_u32_u24 v105, 20480, v105\nv_lshl_add_u32 v105, v%d, 4, v105' % (vLANE, t16))
        for (dst, expr) in ((vO0, 0), (vO1, 1), (vO2, None)):
            if expr is not None:
                e('v_lshl_add_u32 v106, v%d, 1, s26\nv_add_u32 v106, %d, v106' % (hi, expr))
            else:
                e('v_mov_b32 v106, s26\nv_add_u32 v106, 4, v106')
            e('v_lshrrev_b32 v107, 2, v106\nv_lshl_add_u32 v107, v107, 10, v105\nv_and_b32 v106, 3, v106\nv_lshl_add_u32 v%d, v106, 8, v107' % dst)
        e('v_lshl_add_u32 v%d, v%d, 3, v%d' % (vO2, hi, vO2))
        e('s_mul_i32 s26, s%d, 10' % sCS)
        e('s_and_b32 s27, s%d, 1\ns_lshl_b32 s27, s27, 8' % sTTK)
        e('v_lshlrev_b32 v105, 4, v%d' % t16)
        for n, (dx, dy) in enumerate(((vX0, vY0), (vX1, vY1), (vX2, vY2))):
            if n < 2: e('v_add_u32 v106, s26, v%d\nv_add_u32 v106, %d, v106' % (q, 4 * n))
            else: e('v_lshrrev_b32 v106, 1, v%d\nv_add_u32 v106, s26, v106\nv_add_u32 v106, 8, v106' % q)
            e('v_lshrrev_b32 v107, 2, v106\nv_lshl_add_u32 v107, v107, 10, v105\nv_and_b32 v108, 3, v106\nv_lshl_add_u32 v%d, v108, 8, v107' % dx)
            e('v_lshrrev_b32 v107, 1, v106\nv_lshl_add_u32 v107, v107, 10, v105\nv_and_b32 v108, 1, v106\nv_lshl_add_u32 v107, v108, 9, v107\nv_add_u32 v%d, s27, v107' % dy)
        e('v_and_b32 v106, 1, v%d\nv_lshl_add_u32 v%d, v106, 3, v%d\nv_lshl_add_u32 v%d, v106, 3, v%d' % (q, vX2, vX2, vY2, vY2))
        e('v_mul_u32_u24 v105, 1280, v%d\nv_lshl_add_u32 v%d, v%d, 4, v105\nv_lshl_add_u32 v%d, v%d, 3, v105\nv_add_u32 v%d, 128, v%d' % (t16, vR0, q, vR2, q, vR2, vR2))
        e('v_lshlrev_b32 v105, 3, v%d\nv_cmp_eq_u32 vcc, 0, v%d\nv_cndmask_b32 v%d, v104, v105, vcc\nv_lshl_add_u32 v%d, v%d, 15, v105' % (t16, q, vST, vSC, q))
        e('s_add_u32 s26, s%d, 0x%x\nv_add_u32 v%d, s26, v%d' % (sW5K, SCR, vEXW, vL16))
        e('s_xor_b32 s27, s%d, 2\ns_mul_i32 s27, s27, 5120\ns_add_u32 s27, s27, 0x%x\nv_add_u32 v%d, s27, v%d' % (sW, SCR, vEXR, vL16))
        e('s_waitcnt lgkmcnt(0)')
        for (d, lo, n) in ((4, 36, WS_BYTES), (8, 32, T * 1280), (12, 34, T * 1280)):
            e('s_mov_b32 s%d, s%d\ns_mov_b32 s%d, s%d\ns_mov_b32 s%d, 0x%x\ns_mov_b32 s%d, 0x20000' % (d, lo, d + 1, lo + 1, d + 2, n, d + 3))
        e('s_sub_u32 s%d, s%d, 1\ns_lshl_b32 s%d, s%d, 11\ns_sub_u32 s%d, s%d, s%d' % (sEX, sW, sEX, sEX, sEXD, sEX, sW5K))
        if self.o.get('tlb', 0):
            e('v_lshlrev_b32 v%d, 20, v%d' % (vT0, vLANE))
            e('buffer_load_dword v%d, v%d, s[4:7], 0 offen' % (vPOLL, vT0), count=False)
        self.side_dma(range(NSIDE_A))
        e('s_mul_i32 s26, s%d, 20480\ns_mul_i32 s27, s%d, 160\ns_add_u32 s26, s26, s27' % (sTTK, sCS))
        e('buffer_load_dwordx4 v[%d:%d], v%d, s[8:11], s26 offen' % (XR, XR + 3, vR0), count=False)
        e('buffer_load_dwordx4 v[%d:%d], v%d, s[8:11], s26 offen offset:64' % (XR + 4, XR + 7, vR0), count=False)
        e('buffer_load_dwordx2 v[%d:%d], v%d, s[8:11], s26 offen' % (XR + 8, XR + 9, vR2), count=False)
    def rowstat_finish(self, S, Q, vRS, vVE, BM, tmp):
        L = []
        L.append('v_mul_f32 v%d, %s, v%d' % (S, f32bits(1.0 / 640), S))
        L.append('v_mul_f32 v%d, %s, v%d' % (Q, f32bits(1.0 / 640), Q))
        L.append('v_fma_f32 v%d, -v%d, v%d, v%d' % (Q, S, S, Q))
        L.append('v_max_f32 v%d, 0, v%d' % (Q, Q))
        L.append('v_add_f32 v%d, %s, v%d' % (vVE, f32bits(1e-5), Q))
        L.append('v_rsq_f32 v%d, v%d' % (vRS, vVE))
        L.append('v_cvt_pk_bf16_f32 v%d, -v%d, -v%d' % (tmp, S, S))
        L.append('v_and_b32 v%d, 0xffff0000, v%d' % (tmp, tmp))
        L.append('v_sub_f32 v%d, -v%d, v%d' % (tmp, S, tmp))
        L.append('v_cvt_pk_bf16_f32 v%d, -v%d, v%d' % (BM, S, tmp))
        for k in range(1, 4): L.append('v_mov_b32 v%d, v%d' % (BM + k, BM))
        return L
    def softmax_pair(self, X, vC, EP, EM, t):
        L = []
        mx, mn, ap, am, sp, sm = range(t, t + 6)
        L.append('v_max3_f32 v%d, v%d, v%d, v%d' % (mx, X[0], X[1], X[2]))
        L.append('v_min3_f32 v%d, v%d, v%d, v%d' % (mn, X[0], X[1], X[2]))
        for k in range(3, 19, 2):
            L.append('v_max3_f32 v%d, v%d, v%d, v%d' % (mx, mx, X[k], X[k + 1]))
            L.append('v_min3_f32 v%d, v%d, v%d, v%d' % (mn, mn, X[k], X[k + 1]))
        L.append('v_max_f32 v%d, v%d, v%d' % (mx, mx, X[19]))
        L.append('v_min_f32 v%d, v%d, v%d' % (mn, mn, X[19]))
        L.append('v_mul_f32 v%d, v%d, v%d' % (ap, vC, mx))
        L.append('v_mul_f32 v%d, v%d, v%d' % (am, vC, mn))
        for f in range(20):
            L.append('v_fma_f32 v%d, v%d, v%d, -v%d' % (EP + f, X[f], vC, ap))
            L.append('v_fma_f32 v%d, -v%d, v%d, v%d' % (EM + f, X[f], vC, am))
        for f in range(20):
            L.append('v_exp_f32 v%d, v%d' % (EP + f, EP + f))
            L.append('v_exp_f32 v%d, v%d' % (EM + f, EM + f))
        L.append('v_add_f32 v%d, v%d, v%d' % (sp, EP, EP + 1))
        L.append('v_add_f32 v%d, v%d, v%d' % (sm, EM, EM + 1))
        for f in range(2, 20):
            L.append('v_add_f32 v%d, v%d, v%d' % (sp, sp, EP + f))
            L.append('v_add_f32 v%d, v%d, v%d' % (sm, sm, EM + f))
        L.append('v_rcp_f32 v%d, v%d' % (sp, sp))
        L.append('v_rcp_f32 v%d, v%d' % (sm, sm))
        for f in range(20):
            L.append('v_mul_f32 v%d, v%d, v%d' % (EP + f, EP + f, sp))
            L.append('v_mul_f32 v%d, v%d, v%d' % (EM + f, EM + f, sm))
        return L
    def stamp(self, k):
        if not self.o.get('stamps'): return
        e = self.e
        e('s_memtime s[60:61]' if self.o.get('cyc') else 's_memrealtime s[60:61]')
        e('s_lshl_b32 s62, s%d, 5\ns_add_u32 s62, s62, %d' % (sL, k))
        e('s_waitcnt lgkmcnt(0)')
        e('v_mov_b32 v222, s60')
        e('v_cmp_eq_u32 vcc, s62, v%d' % vLANE)
        e('v_cndmask_b32 v223, v223, v222, vcc')
    def stamp_items(self, k):
        if self.o.get('stamps') != 2: return []
        sub = Main(None, self.o); sub.stamp(k)
        return sub.e.items
    def stamp_flush(self):
        if not self.o.get('stamps'): return
        e = self.e
        e('s_lshl_b32 s62, s2, 2\ns_add_u32 s62, s62, s%d\ns_lshl_b32 s62, s62, 8\ns_add_u32 s62, s62, 0x%x' % (sW, TSOFF))
        e('v_lshlrev_b32 v%d, 2, v%d' % (vT0, vLANE))
        e('buffer_store_dword v223, v%d, s[4:7], s62 offen' % vT0)
    def maybe_stop(self, name):
        if self.stop == name:
            self.e.wait_all(); self.e('s_endpgm'); return True
        return False
    def vm_stream(self, items):
        st = Stream()
        for it in sorted(items, key=lambda x: x[3] if len(x) > 3 else x[0]):
            st.add(it[2], it[1], it[0])
        return st
    def flat(self, groups):
        return [x for g in groups for x in g]
    def phase_a(self):
        e = self.e; o = self.o
        T0, T1, T2, T3 = ACC, ACC + 16, ACC + 32, ACC + 48
        ST, vRS, vVE, vC, BM, AM, EP, EM, P = 112, 120, 121, 122, 124, 128, 144, 164, 184
        self.stamp(0)
        L = self.lab('a_nopoll')
        e('s_cmp_eq_u32 s%d, 0' % sL); e('s_cbranch_scc1 %s' % L)
        self.cnt(sT0, CNT_XA, sRB)
        self.poll(sT0)
        e('s_barrier')
        e.label(L)
        self.stamp(1)
        e('s_lshl_b32 s%d, s%d, 2\ns_add_u32 s%d, s%d, s%d' % (sT0, sRB, sT0, sT0, sW))
        e('s_lshl_b32 s%d, s%d, 8\ns_add_u32 s%d, s%d, s%d\ns_add_u32 s%d, s%d, 0x%x' % (sT1, sT0, sT1, sT1, sLOFF, sT1, sT1, SA))
        e('s_mul_i32 s%d, s%d, 40960\ns_add_u32 s%d, s%d, s%d\ns_add_u32 s%d, s%d, 0x%x' % (sTW, sT0, sTW, sTW, sLOFF, sTW, sTW, XA))
        def tok(s):
            g = []
            if s % 4 == 0: g.append('s_add_u32 s%d, s%d, %d' % (sB0, sTW, s * 1024))
            g.append('buffer_load_dwordx4 a[%d:%d], v%d, s[4:7], s%d offen offset:%d%s' % (4 * s, 4 * s + 3, vL16, sB0, (s % 4) * 1024, self.sc))
            return g
        NPRE = o.get('a_npre', 12)
        for s in range(NPRE): e.extend(tok(s))
        for k in range(4):
            if k: e('s_add_u32 s%d, s%d, 16384' % (sT1, sT1))
            e('buffer_load_dwordx2 v[%d:%d], v%d, s[4:7], s%d offen sc1' % (ST + 2 * k, ST + 2 * k + 1, vSA, sT1))
        e('s_lshl_b32 s%d, s%d, 12\ns_add_u32 s%d, s%d, 0x%x' % (sT2, sJ, sT2, sT2, WAM))
        amload = ['buffer_load_dwordx4 v[%d:%d], v%d, s[4:7], s%d offen offset:%d' % (AM + 4 * t, AM + 4 * t + 3, vL16, sT2, t * 1024) for t in range(4)]
        st = []
        st += ['v_add_f32 v%d, v%d, v%d' % (ST, ST, ST + 2), 'v_add_f32 v%d, v%d, v%d' % (ST + 1, ST + 1, ST + 3),
               'v_add_f32 v%d, v%d, v%d' % (ST + 4, ST + 4, ST + 6), 'v_add_f32 v%d, v%d, v%d' % (ST + 5, ST + 5, ST + 7),
               'v_add_f32 v%d, v%d, v%d' % (ST, ST, ST + 4), 'v_add_f32 v%d, v%d, v%d' % (ST + 1, ST + 1, ST + 5),
               'v_mov_b32 v%d, v%d' % (ST + 2, ST), 'v_mov_b32 v%d, v%d' % (ST + 3, ST + 1),
               'v_permlane32_swap_b32 v%d, v%d' % (ST, ST + 2), 'v_permlane32_swap_b32 v%d, v%d' % (ST + 1, ST + 3),
               'v_add_f32 v%d, v%d, v%d' % (ST, ST, ST + 2), 'v_add_f32 v%d, v%d, v%d' % (ST + 1, ST + 1, ST + 3)]
        st += self.rowstat_finish(ST, ST + 1, vRS, vVE, BM, ST + 2)
        st += ['v_mul_f32 v%d, %s, v%d' % (vC, f32bits(LOG2E), vRS)]
        LA = 5
        def frag_info(n):
            if n < 120: return n // 3, n % 3
            return n - 120, 3
        def read(n): return self.ring_read(AF + 4 * (n % 8), A0 + n // 20, (n % 20) * 1024)
        def mfma(n):
            s, tau = frag_info(n); acc = ACC + 16 * tau; a = AF + 4 * (n % 8)
            c = '0' if s == 0 else 'v[%d:%d]' % (acc, acc + 15)
            return 'v_mfma_f32_32x32x16_bf16 v[%d:%d], v[%d:%d], a[%d:%d], %s' % (acc, acc + 15, a, a + 3, 4 * s, 4 * s + 3, c)
        def mean(tau):
            acc = ACC + 16 * tau
            return 'v_mfma_f32_32x32x16_bf16 v[%d:%d], v[%d:%d], v[%d:%d], v[%d:%d]' % (acc, acc + 15, AM + 4 * tau, AM + 4 * tau + 3, BM, BM + 3, acc, acc + 15)
        ksm = self.softmax_pair([T0 + r for r in range(16)] + [T1 + r for r in range(4)], vC, EP, EM, ST)
        for d in range(10): ksm.append('v_cvt_pk_bf16_f32 v%d, v%d, v%d' % (P + d, EP + 2 * d, EP + 2 * d + 1))
        for d in range(10): ksm.append('v_cvt_pk_bf16_f32 v%d, v%d, v%d' % (P + 10 + d, EM + 2 * d, EM + 2 * d + 1))
        V = [T1 + r for r in range(4, 16)] + [T2 + r for r in range(8)]
        for f in range(20): ksm.append('v_mul_f32 v%d, v%d, v%d' % (V[f], V[f], vRS))
        for d in range(10): ksm.append('v_cvt_pk_bf16_f32 v%d, v%d, v%d' % (P + 20 + d, V[2 * d], V[2 * d + 1]))
        ksm += ['v_mov_b32 v%d, 0x3f80' % (P + 30), 'v_mov_b32 v%d, 0' % (P + 31)]
        anchors = []; pre = {}; fixed = {}; idx = {}
        for n in range(160):
            if n == 120:
                idx['mean'] = len(anchors)
                anchors += [mean(t) for t in range(3)]
            idx[n] = len(anchors)
            anchors.append(mfma(n))
            fixed[idx[n]] = ([read(n + LA)] if n + LA < 160 else []) + ([Need('v[%d:%d]' % (AF + 4 * ((n + 1) % 8), AF + 4 * ((n + 1) % 8) + 3))] if n + 1 < 160 else [])
        anchors.append(mean(3))
        for ep in range(1, 8):
            at = idx['mean'] if ep == 6 else idx[20 * ep]
            pre[at] = ([W_tag('blk%d' % (A0 + ep + 1))] if ep < 7 else []) + ['s_barrier']
            if self.o.get('fine') == 'a': pre[at] += self.stamp_items(19 + ep - 1)
        items = [(3 * s, 0, tok(s)) for s in range(NPRE, 40)]
        items.append((90, 0, amload))
        for b in range(NSIDE_A, 6): items.append((20 * (b - 1), 0, self.flat(self.dma_ops(b))))
        last_in = o.get('a_lastblk', 9)
        for b in range(6, last_in + 1):
            free = 20 * (b - 5) if b - 5 < 6 else idx['mean']
            items.append((20 * (b - 1) if b < 8 else 200 + b, free, self.flat(self.dma_ops(b))))
        vs = self.vm_stream(items)
        valu = Stream(st, 12).add(ksm, idx[120] + 1)
        if o.get('fine') == 'a0': e.extend(self.stamp_items(19))
        e.wait_tag('blk0'); e.wait_tag('blk1')
        e('s_barrier')
        if o.get('fine') == 'a0':
            e.extend(self.stamp_items(20))
            for k, at in enumerate((1, 3, 6, 9, 12, 15, 18)):
                pre[at] = pre.get(at, []) + self.stamp_items(21 + k)
        for n in range(LA): e(read(n))
        stt = {}
        e.extend(schedule(anchors, 5, pre, fixed, [vs, valu], vm_gap=o.get('a_gap', 2), state=stt))
        if o.get('verbose'): print('a forced', stt.get('forced'), 'left', len(vs.q), len(valu.q))
        e.extend([y[0] for y in vs.q]); e.extend([y[0] for y in valu.q])
        self.a_late = list(range(last_in + 1, 13))
        self.stamp(2)
        for m in range(8):
            e('ds_write_b128 v%d, v[%d:%d] offset:%d' % (vTW, P + 4 * m, P + 4 * m + 3, 16 * m))
        e.wait_lgkm0()
        e('s_barrier')
        KD = T0
        def kvread(ks):
            b = AF + 8 * (ks % 4)
            return ['ds_read_b64_tr_b16 v[%d:%d], v%d offset:%d' % (b, b + 1, vKA, ks * 2304),
                    'ds_read_b64_tr_b16 v[%d:%d], v%d offset:%d' % (b + 2, b + 3, vKA, ks * 2304 + 576),
                    'ds_read_b64_tr_b16 v[%d:%d], v%d offset:%d' % (b + 4, b + 5, vKB, ks * 2304),
                    'ds_read_b64_tr_b16 v[%d:%d], v%d offset:%d' % (b + 6, b + 7, vKB, ks * 2304 + 576)]
        for ks in range(3): e.extend(kvread(ks))
        for ks in range(8):
            if ks + 3 < 8: e.extend(kvread(ks + 3))
            b = AF + 8 * (ks % 4)
            e('v_mfma_f32_32x32x16_bf16 v[%d:%d], v[%d:%d], v[%d:%d], %s' % (KD, KD + 15, b, b + 3, b + 4, b + 7, '0' if ks == 0 else 'v[%d:%d]' % (KD, KD + 15)))
        PK = EP
        for d in range(6): e('v_cvt_pk_bf16_f32 v%d, v%d, v%d' % (PK + d, KD + 2 * d, KD + 2 * d + 1))
        e('s_lshl_b32 s%d, s%d, 4\ns_add_u32 s%d, s%d, s%d\ns_lshl_b32 s%d, s%d, 12' % (sT0, sJ, sT0, sT0, sRB, sT0, sT0))
        e('s_add_u32 s%d, s%d, s%d\ns_add_u32 s%d, s%d, 0x%x' % (sT0, sT0, sLOFF, sT0, sT0, KVP))
        e('buffer_store_dwordx4 v[%d:%d], v%d, s[4:7], s%d offen sc1' % (PK, PK + 3, vPS1, sT0))
        e('buffer_store_dwordx2 v[%d:%d], v%d, s[4:7], s%d offen sc1' % (PK + 4, PK + 5, vPS2, sT0))
        self.cnt(sT1, CNT_KV, sJ)
        self.signal(sT1)
        self.stamp(3)
        self.side_dma(self.a_late)
        for r in range(4): e('v_mov_b32 v%d, 0' % (AF + r))
        e('v_lshlrev_b32 v%d, 4, v0\nv_add_u32 v%d, 0x%x, v%d' % (vT1, vT1, SCR, vT1))
        for m in range(3): e('ds_write_b128 v%d, v[%d:%d] offset:%d' % (vT1, AF, AF + 3, m * 4096))
        Q = P
        X = [T2 + r for r in range(8, 16)] + [T3 + r for r in range(12)]
        e.extend(self.softmax_pair(X, vC, EP, EM, ST))
        order = []
        for sign in (EP, EM):
            order += [(sign + 0), (sign + 2), (sign + 8), (sign + 10), (sign + 4), (sign + 6), (sign + 12), (sign + 14)]
        order += [EP + 16, EP + 18, EM + 16, EM + 18]
        for d, r in enumerate(order): e('v_cvt_pk_bf16_f32 v%d, v%d, v%d' % (Q + d, r, r + 1))
        e.wait_lgkm0()
        self.stamp(4)
        self.poll(sT1)
        e('s_barrier')
        self.stamp(5)
        if self.maybe_stop('a1'): return True
        LD, SUM, PKK = 112, 176, 204
        e('s_lshl_b32 s%d, s%d, 16\ns_add_u32 s%d, s%d, s%d\ns_add_u32 s%d, s%d, 0x%x' % (sT0, sJ, sT0, sT0, sLOFF, sT0, sT0, KVP))
        for p in range(16):
            if p: e('s_add_u32 s%d, s%d, 4096' % (sT0, sT0))
            e('buffer_load_dwordx4 v[%d:%d], v%d, s[4:7], s%d offen sc1' % (LD + 4 * p, LD + 4 * p + 3, vPL, sT0))
        e('v_mov_b32 v%d, 0x00003f80\nv_mov_b32 v%d, 0x3f800000' % (vT2, vT3))
        for k in range(8): e('v_mov_b32 v%d, 0' % (SUM + k))
        for p in range(16):
            for d in range(4):
                e('v_dot2c_f32_bf16 v%d, v%d, v%d' % (SUM + 2 * d, LD + 4 * p + d, vT2))
                e('v_dot2c_f32_bf16 v%d, v%d, v%d' % (SUM + 2 * d + 1, LD + 4 * p + d, vT3))
        for d in range(4): e('v_cvt_pk_bf16_f32 v%d, v%d, v%d' % (PKK + d, SUM + 2 * d, SUM + 2 * d + 1))
        e('ds_write_b128 v%d, v[%d:%d]' % (vAW, PKK, PKK + 3))
        e('ds_write_b64 v%d, v[%d:%d]' % (vAW2, PKK, PKK + 1))
        e.wait_lgkm0()
        e('s_barrier')
        e('v_add_u32 v%d, 0x%x, v%d' % (vT1, SCR, vL16))
        for n in range(8): e('ds_read_b128 v[%d:%d], v%d offset:%d' % (AF + 4 * n, AF + 4 * n + 3, vT1, n * 1024))
        G0, G1 = T0, T1
        for n in range(10):
            rho, s = n // 5, n % 5
            acc = G0 if rho == 0 else G1
            a = AF + 4 * (n % 8)
            e('v_mfma_f32_32x32x16_bf16 v[%d:%d], v[%d:%d], v[%d:%d], %s' % (acc, acc + 15, a, a + 3, Q + 4 * s, Q + 4 * s + 3, '0' if s == 0 else 'v[%d:%d]' % (acc, acc + 15)))
            if n < 2: e('ds_read_b128 v[%d:%d], v%d offset:%d' % (a, a + 3, vT1, (n + 8) * 1024))
        e('v_add_f32 v%d, %s, v%d' % (vT2, f32bits(1e-6), G1 + 4))
        e('v_rcp_f32 v%d, v%d' % (vT2, vT2))
        OP = 208
        src = [G0 + r for r in range(16)] + [G1 + r for r in range(4)]
        for r in src: e('v_mul_f32 v%d, v%d, v%d' % (r, r, vT2))
        for d in range(10): e('v_cvt_pk_bf16_f32 v%d, v%d, v%d' % (OP + d, src[2 * d], src[2 * d + 1]))
        e('s_lshl_b32 s%d, s%d, 3\ns_lshl_b32 s%d, s%d, 1\ns_add_u32 s%d, s%d, s%d\ns_mul_i32 s%d, s%d, 20480' % (sT0, sRB, sT1, sW, sT0, sT0, sT1, sT0, sT0))
        e('s_add_u32 s%d, s%d, s%d\ns_add_u32 s%d, s%d, 0x%x' % (sT0, sT0, sLOFF, sT0, sT0, O))
        e('buffer_store_dwordx4 v[%d:%d], v%d, s[4:7], s%d offen sc1' % (OP, OP + 3, vO0, sT0))
        e('buffer_store_dwordx4 v[%d:%d], v%d, s[4:7], s%d offen sc1' % (OP + 4, OP + 7, vO1, sT0))
        e('buffer_store_dwordx2 v[%d:%d], v%d, s[4:7], s%d offen sc1' % (OP + 8, OP + 9, vO2, sT0))
        self.stamp(6)
        self.cnt(sT1, CNT_O, sRB)
        self.signal(sT1)
        self.stamp(7)
        self.side_dma([C0])
        return self.maybe_stop('a')
    def gemm_bd(self, first_blk, nsteps, vs, pre_extra, valu):
        e = self.e
        LA = 5
        nf = nsteps * 5
        def read(n):
            i, tau = n // 5, n % 5
            return self.ring_read(AF + 4 * (n % 8), first_blk + i // 2, (i & 1) * 10240 + tau * 1024, kh=True)
        def mf(n, u):
            i, tau = n // 5, n % 5
            acc = ACC + (tau * 2 + u) * 4; a = AF + 4 * (n % 8); b = (2 * i + u) * 4
            c = '0' if i == 0 else 'v[%d:%d]' % (acc, acc + 3)
            return 'v_mfma_f32_16x16x32_bf16 v[%d:%d], v[%d:%d], a[%d:%d], %s' % (acc, acc + 3, a, a + 3, b, b + 3, c)
        anchors = []; pre = {}; fixed = {}
        for n in range(nf):
            anchors += [mf(n, 0), mf(n, 1)]
            if n + LA < nf: fixed[2 * n] = [read(n + LA)]
            if n + 1 < nf: fixed[2 * n + 1] = [Need('v[%d:%d]' % (AF + 4 * ((n + 1) % 8), AF + 4 * ((n + 1) % 8) + 3))]
        nep = nsteps // 2
        for ep in range(1, nep):
            pre[20 * ep] = list(pre_extra.get(ep, [])) + ([W_tag('blk%d' % (first_blk + ep + 1))] if ep + 1 < nep else []) + ['s_barrier']
            if self.o.get('fine') == 'd' and nsteps == 24: pre[20 * ep] += self.stamp_items(19 + ep - 1)
        for n in range(LA): e(read(n))
        stt = {}
        e.extend(schedule(anchors, 2, pre, fixed, [vs, valu], vm_gap=self.o.get('d_gap', 2), state=stt))
        if self.o.get('verbose'): print('bd forced', stt.get('forced'), 'left', len(vs.q), len(valu.q))
        e.extend([y[0] for y in vs.q]); e.extend([y[0] for y in valu.q])
    def bd_unpack(self):
        U = 112; L = []
        for d in range(10):
            L.append('v_lshlrev_b32 v%d, 16, v%d' % (U + 2 * d, XR + d))
            L.append('v_and_b32 v%d, 0xffff0000, v%d' % (U + 2 * d + 1, XR + d))
        return L
    def bd_epilogue(self, last_blk, final):
        e = self.e
        EX = 88
        for tau in range(5):
            a = ACC + (tau * 2 + 1) * 4
            e('ds_write_b128 v%d, v[%d:%d] offset:%d' % (vEXW, a, a + 3, tau * 1024))
        e.wait_lgkm0()
        e('s_barrier')
        for tau in range(5):
            e('ds_read_b128 v[%d:%d], v%d offset:%d' % (EX + 4 * tau, EX + 4 * tau + 3, vEXR, tau * 1024))
        U = 112
        for tau in range(5):
            a = ACC + (tau * 2) * 4
            for c in range(4):
                e('v_add_f32 v%d, v%d, v%d' % (U + 4 * tau + c, U + 4 * tau + c, a + c))
        for tau in range(5):
            for c in range(4):
                e('v_add_f32 v%d, v%d, v%d' % (U + 4 * tau + c, U + 4 * tau + c, EX + 4 * tau + c))
        for d in range(10): e('v_cvt_pk_bf16_f32 v%d, v%d, v%d' % (XR + d, U + 2 * d, U + 2 * d + 1))
        final()
    def bd_stats(self, base_off, next_layer):
        e = self.e
        S, Q = 136, 137
        e('v_mov_b32 v%d, 0\nv_mov_b32 v%d, 0' % (S, Q))
        for d in range(10):
            e('v_dot2c_f32_bf16 v%d, v%d, v%d' % (S, XR + d, vONES))
            e('v_dot2c_f32_bf16 v%d, v%d, v%d' % (Q, XR + d, XR + d))
        for sw in ('v_permlane16_swap_b32', 'v_permlane32_swap_b32'):
            e('v_mov_b32 v138, v%d\nv_mov_b32 v139, v%d' % (S, Q))
            e('%s v%d, v138\n%s v%d, v139' % (sw, S, sw, Q))
            e('v_add_f32 v%d, v%d, v138\nv_add_f32 v%d, v%d, v139' % (S, S, Q, Q))
        e('s_lshl_b32 s%d, s%d, 7\ns_lshl_b32 s%d, s%d, 14\ns_add_u32 s%d, s%d, s%d' % (sT2, sTTK, sT3, sCS, sT2, sT2, sT3))
        e('s_add_u32 s%d, s%d, s%d\ns_add_u32 s%d, s%d, 0x%x' % (sT2, sT2, sLOFF, sT2, sT2, base_off + (LSTRIDE if next_layer else 0)))
        if not self.o.get('nostats'): e('buffer_store_dwordx2 v[%d:%d], v%d, s[4:7], s%d offen sc1' % (S, Q, vST, sT2))
    def phase_b(self):
        e = self.e
        self.cnt(sT0, CNT_O, sRB)
        for (s, tt) in ((sB0, sTTK), (sB1, sTTS)):
            e('s_mul_i32 s%d, s%d, 20\ns_mul_i32 s%d, s%d, 10\ns_add_u32 s%d, s%d, s%d\ns_lshl_b32 s%d, s%d, 10' % (s, tt, sT1, sKH, s, s, sT1, s, s))
            e('s_add_u32 s%d, s%d, s%d\ns_add_u32 s%d, s%d, 0x%x' % (s, s, sLOFF, s, s, O))
        def tok(i, u):
            s = sB0 if u == 0 else sB1
            t = sC1 + u
            g = []
            if i % 4 == 0: g.append('s_add_u32 s%d, s%d, %d' % (t, s, i * 1024))
            g.append('buffer_load_dwordx4 a[%d:%d], v%d, s[4:7], s%d offen offset:%d%s' % ((2 * i + u) * 4, (2 * i + u) * 4 + 3, vL16, t, (i % 4) * 1024, self.sc))
            return g
        e.wait_tag('blk%d' % B0); e.wait_tag('blk%d' % (B0 + 1))
        self.poll(sT0)
        e('s_barrier')
        self.stamp(8)
        NPRE = self.o.get('b_npre', 6)
        for i in range(NPRE):
            for u in range(2): e.extend(tok(i, u))
        vs = self.vm_stream([(10 * i, 0, tok(i, 0) + tok(i, 1)) for i in range(NPRE, 10)])
        self.gemm_bd(B0, 10, vs, {}, Stream(self.bd_unpack(), 60))
        self.stamp(9)
        def final():
            e('s_mul_i32 s%d, s%d, 20480\ns_add_u32 s%d, s%d, s%d\ns_add_u32 s%d, s%d, 0x%x' % (sT0, sTTK, sT0, sT0, sLOFF, sT0, sT0, XC))
            e('buffer_store_dwordx4 v[%d:%d], v%d, s[4:7], s%d offen sc1' % (XR, XR + 3, vX0, sT0))
            e('buffer_store_dwordx4 v[%d:%d], v%d, s[4:7], s%d offen sc1' % (XR + 4, XR + 7, vX1, sT0))
            e('buffer_store_dwordx2 v[%d:%d], v%d, s[4:7], s%d offen sc1' % (XR + 8, XR + 9, vX2, sT0))
            self.bd_stats(SC, False)
            self.cnt(sT1, CNT_XC, sRB)
            self.signal(sT1)
            self.stamp(10)
            self.side_dma(range(C0 + 1, C0 + 1 + NSIDE_C))
        self.bd_epilogue(B0 + 4, final)
        return self.maybe_stop('b')
    def gelu_ops(self, accset, u, c0, c1, vVE, HP, t):
        L = []
        G = [accset + (p * 2 + u) * 4 + c for p in range(2) for c in range(4)]
        U = [accset + ((2 + p) * 2 + u) * 4 + c for p in range(2) for c in range(4)]
        g = [t + i for i in range(8)]; w = [t + 8 + i for i in range(8)]
        for h in range(2):
            R = range(4 * h, 4 * h + 4)
            for i in R: L.append('v_mul_f32 v%d, v%d, v%d' % (w[i], G[i], G[i]))
            for i in R: L.append('v_fma_f32 v%d, v%d, v%d, v%d' % (w[i], w[i], c1, c0))
            for i in R: L.append('v_mul_f32 v%d, v%d, v%d' % (w[i], w[i], G[i]))
            for i in R:
                L.append('v_exp_f32 v%d, v%d' % (w[i], w[i]))
                L.append('v_mul_f32 v%d, v%d, v%d' % (g[i], G[i], U[i]))
            for i in R: L.append('v_fma_f32 v%d, v%d, v%d, v%d' % (w[i], w[i], vVE, vVE))
            for i in R: L.append('v_rcp_f32 v%d, v%d' % (w[i], w[i]))
            for i in R: L.append('v_mul_f32 v%d, v%d, v%d' % (g[i], g[i], w[i]))
            for d in (2 * h, 2 * h + 1): L.append('v_cvt_pk_bf16_f32 v%d, v%d, v%d' % (HP + d, g[2 * d], g[2 * d + 1]))
        return L
    def check_flag(self, vreg, cnt_sgpr, target=16):
        sub = Asm()
        X = self.lab('ck'); L = self.lab('ckl')
        sub('v_cmp_gt_u32 vcc, %d, v%d' % (target, vreg))
        sub('s_cbranch_vccz %s' % X)
        sub('s_cmp_lg_u32 s%d, 0' % sDEAD); sub('s_cbranch_scc1 %s' % X)
        sub('s_mov_b32 s%d, 0' % sPC)
        sub.label(L)
        sub('buffer_load_dword v%d, v%d, s[4:7], s%d offen sc1' % (vreg, vZERO, cnt_sgpr), count=False)
        sub('s_waitcnt vmcnt(0)', count=False)
        sub('v_cmp_gt_u32 vcc, %d, v%d' % (target, vreg))
        sub('s_cbranch_vccz %s' % X)
        sub('s_add_u32 s%d, s%d, 1' % (sPC, sPC)); sub('s_cmp_lt_u32 s%d, %d' % (sPC, SPIN_LIMIT))
        sub('s_cbranch_scc1 %s' % L)
        sub('s_mov_b32 s%d, 1' % sDEAD)
        sub.label(X)
        return sub.items
    def phase_c(self):
        e = self.e; o = self.o
        ST, RS, VE, BMs, AM, GT, HP = 112, (120, 121), (122, 123), (124, 132), 136, 152, (168, 172)
        GC0, GC1 = (176, 177), (178, 179)
        k0 = -2.0 * 0.7978845608028654 * LOG2E
        self.cnt(sT0, CNT_XC, sRB)
        e('s_lshl_b32 s%d, s%d, 3\ns_lshl_b32 s%d, s%d, 1\ns_add_u32 s%d, s%d, s%d' % (sT2, sRB, sT1, sW, sT2, sT2, sT1))
        e('s_lshl_b32 s%d, s%d, 7\ns_add_u32 s%d, s%d, s%d\ns_add_u32 s%d, s%d, 0x%x' % (sT1, sT2, sT1, sT1, sLOFF, sT1, sT1, SC))
        e('s_mul_i32 s%d, s%d, 20480\ns_add_u32 s%d, s%d, s%d\ns_add_u32 s%d, s%d, 0x%x' % (sB0, sT2, sB0, sB0, sLOFF, sB0, sB0, XC))
        e('s_add_u32 s%d, s%d, 20480' % (sB1, sB0))
        e('s_mul_i32 s%d, s%d, 48\ns_add_u32 s%d, s%d, s%d\ns_lshl_b32 s%d, s%d, 10' % (sTW, sT2, sTW, sTW, sJ, sTW, sTW))
        e('s_add_u32 s%d, s%d, s%d\ns_add_u32 s%d, s%d, 0x%x' % (sTW, sTW, sLOFF, sTW, sTW, HH))
        e('s_mul_i32 s%d, s%d, %d\ns_add_u32 s%d, s%d, 0x%x' % (sT4, sJ, 12 * KB, sT4, sT4, WCM))
        self.poll(sT0)
        e('s_barrier')
        self.stamp(11)
        def tok(s, u):
            sb = sB0 if u == 0 else sB1; t = sC1 + u
            g = []
            if s % 4 == 0: g.append('s_add_u32 s%d, s%d, %d' % (t, sb, s * 1024))
            g.append('buffer_load_dwordx4 a[%d:%d], v%d, s[4:7], s%d offen offset:%d%s' % ((2 * s + u) * 4, (2 * s + u) * 4 + 3, vL16, t, (s % 4) * 1024, self.sc))
            return g
        NPRE = o.get('c_npre', 7)
        for s in range(NPRE):
            for u in range(2): e.extend(tok(s, u))
        for k in range(2):
            if k: e('s_add_u32 s%d, s%d, 16384' % (sT1, sT1))
            for u in range(2):
                e('buffer_load_dwordx2 v[%d:%d], v%d, s[4:7], s%d offen offset:%d sc1' % (ST + 4 * u + 2 * k, ST + 4 * u + 2 * k + 1, vSC, sT1, 128 * u))
        def amload(sg):
            pre = [] if sg == 0 else ['s_add_u32 s%d, s%d, 4096' % (sT4, sT4)]
            return pre + ['buffer_load_dwordx4 v[%d:%d], v%d, s[4:7], s%d offen offset:%d' % (AM + 4 * t, AM + 4 * t + 3, vL16, sT4, t * 1024) for t in range(4)]
        st = []
        for u in range(2):
            b = ST + 4 * u
            st += ['v_add_f32 v%d, v%d, v%d' % (b, b, b + 2), 'v_add_f32 v%d, v%d, v%d' % (b + 1, b + 1, b + 3)]
            for sw in ('v_permlane16_swap_b32', 'v_permlane32_swap_b32'):
                st += ['v_mov_b32 v%d, v%d' % (b + 2, b), 'v_mov_b32 v%d, v%d' % (b + 3, b + 1),
                       '%s v%d, v%d' % (sw, b, b + 2), '%s v%d, v%d' % (sw, b + 1, b + 3),
                       'v_add_f32 v%d, v%d, v%d' % (b, b, b + 2), 'v_add_f32 v%d, v%d, v%d' % (b + 1, b + 1, b + 3)]
            st += self.rowstat_finish(b, b + 1, RS[u], VE[u], BMs[u], b + 2)
            st += ['v_mul_f32 v%d, %s, v%d' % (GC0[u], f32bits(k0), RS[u]),
                   'v_mul_f32 v%d, v%d, v%d' % (GC1[u], RS[u], RS[u]),
                   'v_mul_f32 v%d, v%d, v%d' % (GC1[u], GC1[u], GC0[u]),
                   'v_mul_f32 v%d, %s, v%d' % (GC1[u], f32bits(0.044715), GC1[u])]
        LA = 5
        def read(n): return self.ring_read(AF + 4 * (n % 8), C0 + n // 20, (n % 20) * 1024)
        def mf(n, u):
            sg, r = n // 80, n % 80; s, tl = r // 4, r % 4
            acc = ACC + 32 * (sg & 1) + (tl * 2 + u) * 4; a = AF + 4 * (n % 8); b = (2 * s + u) * 4
            c = '0' if s == 0 else 'v[%d:%d]' % (acc, acc + 3)
            return 'v_mfma_f32_16x16x32_bf16 v[%d:%d], v[%d:%d], a[%d:%d], %s' % (acc, acc + 3, a, a + 3, b, b + 3, c)
        def mean(sg):
            L = []
            for tl in range(4):
                for u in range(2):
                    acc = ACC + 32 * (sg & 1) + (tl * 2 + u) * 4
                    L.append('v_mfma_f32_16x16x32_bf16 v[%d:%d], v[%d:%d], v[%d:%d], v[%d:%d]' % (acc, acc + 3, AM + 4 * tl, AM + 4 * tl + 3, BMs[u], BMs[u] + 3, acc, acc + 3))
            return L
        def gelu_store(sg):
            L = []
            for u in range(2):
                L += self.gelu_ops(ACC + 32 * (sg & 1), u, GC0[u], GC1[u], VE[u], HP[u], GT)
                L.append('s_add_u32 s%d, s%d, %d' % (sT5, sTW, u * 48 * 1024 + sg * 16 * 1024))
                L.append(('buffer_store_dwordx4 v[%d:%d], v%d, s[4:7], s%d offen sc1' % (HP[u], HP[u] + 3, vL16, sT5), 'h%d' % sg))
            return L
        def ix(n): return 2 * n + 8 * (n // 80)
        items = [(ix(4 * s), 0, tok(s, 0) + tok(s, 1)) for s in range(NPRE, 20)]
        for b in range(C0 + 1 + NSIDE_C, C0 + 6): items.append((ix(20 * (b - C0 - 1)), 0, self.flat(self.dma_ops(b))))
        last_in = o.get('c_lastblk', D0 + 4)
        for b in range(C0 + 6, last_in + 1):
            free = 20 * (b - C0 - 5)
            epn = b - C0 - 1
            dl = ix(20 * epn) - (8 if epn % 4 == 0 else 0) if b < D0 else 10000 + b
            items.append((dl, ix(free) - (8 if free % 80 == 0 else 0), self.flat(self.dma_ops(b))))
        items.append((ix(60), 0, amload(0)))
        items.append((ix(130), ix(80), amload(1)))
        items.append((ix(210), ix(160), amload(2)))
        vs = self.vm_stream(items)
        e.wait_tag('blk%d' % C0); e.wait_tag('blk%d' % (C0 + 1))
        e('s_barrier')
        for n in range(LA): e(read(n))
        pos = 0; cstate = {}
        for sg in range(3):
            anchors = []; pre = {}; fixed = {}
            if sg > 0: anchors += mean(sg - 1)
            for n in range(80 * sg, 80 * sg + 80):
                assert pos + len(anchors) == ix(n)
                anchors += [mf(n, 0), mf(n, 1)]
                if n + LA < 240: fixed[ix(n)] = [read(n + LA)]
                if n + 1 < 240: fixed[ix(n) + 1] = [Need('v[%d:%d]' % (AF + 4 * ((n + 1) % 8), AF + 4 * ((n + 1) % 8) + 3))]
            for ep in range(4 * sg, 4 * sg + 4):
                if ep == 0: continue
                at = ix(20 * ep) - (8 if ep % 4 == 0 else 0)
                p = [W_tag('blk%d' % (C0 + ep + 1))] if ep < 11 else []
                if ep == o.get('h0ep', 10): p.append(W_tag('h0'))
                p.append('s_barrier')
                if self.o.get('fine') == 'c': p += self.stamp_items(19 + ep - 1)
                if ep == o.get('h0ep', 10):
                    sub = Main(None, self.o); sub.nlab = self.nlab + 1000
                    sub.cnt(sT0, CNT_H, sRB, mul=384); sub.signal_only(sT0)
                    p += sub.e.items
                pre[at] = p
            valu = Stream(st, 8) if sg == 0 else Stream(gelu_store(sg - 1), pos + 10)
            e.extend(schedule(anchors, 2, pre, fixed, [vs, valu], start=pos, vm_gap=(o.get('c_gap', 4) if sg == 0 else o.get('c_gap2', 6)), state=cstate))
            e.extend([y[0] for y in valu.q])
            pos += len(anchors)
        if self.o.get('verbose'): print('c forced', cstate.get('forced'), 'left', len(vs.q))
        e.extend([y[0] for y in vs.q])
        self.stamp(12)
        self.cnt(sT0, CNT_H, sRB, mul=384)
        e('buffer_load_dword v%d, v%d, s[4:7], s%d offen sc1' % (vPOLL, vZERO, sT0))
        e.extend(mean(2))
        e.extend(gelu_store(2))
        self.cnt(sT1, CNT_H, sRB, mul=384, add=256)
        self.signal(sT1)
        self.stamp(13)
        self.c_last = last_in
        return self.maybe_stop('c')
    def phase_d(self):
        e = self.e; o = self.o
        for (s, tt) in ((sB0, sTTK), (sB1, sTTS)):
            e('s_mul_i32 s%d, s%d, 48\ns_add_u32 s%d, s%d, s%d\ns_lshl_b32 s%d, s%d, 10' % (s, tt, s, s, sKH, s, s))
            e('s_add_u32 s%d, s%d, s%d\ns_add_u32 s%d, s%d, 0x%x' % (s, s, sLOFF, s, s, HH))
        def tok(i, u):
            sg, jj = i // 8, i % 8
            s = sB0 if u == 0 else sB1; t = sC1 + u
            g = []
            if jj % 2 == 0: g.append('s_add_u32 s%d, s%d, %d' % (t, s, sg * 16384 + jj * 2048))
            g.append('buffer_load_dwordx4 a[%d:%d], v%d, s[4:7], s%d offen offset:%d%s' % ((2 * i + u) * 4, (2 * i + u) * 4 + 3, vL16, t, (jj % 2) * 2048, self.sc))
            return g
        e.extend(self.check_flag(vPOLL, sT0))
        self.stamp(14)
        NPRE = o.get('d_npre', 6)
        for i in range(NPRE):
            for u in range(2): e.extend(tok(i, u))
        e.wait_tag('blk%d' % D0); e.wait_tag('blk%d' % (D0 + 1))
        e('s_barrier')
        CK = o.get('d_ck', 2)
        items = [(10 * i, 0, tok(i, 0) + tok(i, 1), i - 100) for i in range(NPRE, 8)]
        for b in range(self.c_last + 1, D0 + 6): items.append((20 * (b - D0 - 1), 0, self.flat(self.dma_ops(b)), b - 60))
        items.append((20 * CK - 1, 20 * CK - o.get('d_fl', 14), ['buffer_load_dword v%d, v%d, s[4:7], s%d offen sc1' % (vPOLL, vZERO, sT1)], -1))
        items += [(10 * i, 20 * CK, tok(i, 0) + tok(i, 1)) for i in range(8, 24)]
        for b in range(D0 + 6, NBLK): items.append((20 * (b - D0 - 1), 20 * (b - D0 - 5), self.flat(self.dma_ops(b))))
        chk = [W_vreg(vPOLL)] + self.check_flag(vPOLL, sT1)
        self.gemm_bd(D0, 24, self.vm_stream(items), {CK: chk}, Stream(self.bd_unpack(), 200))
        self.stamp(17)
        def final():
            L = self.lab('d_last'); X = self.lab('d_done')
            e('s_cmp_lg_u32 s%d, 0' % sL); e('s_cbranch_scc1 %s' % L)
            e('s_lshr_b32 s%d, s%d, 1\ns_mul_i32 s%d, s%d, 40960\ns_add_u32 s%d, s%d, s%d\ns_add_u32 s%d, s%d, 0x%x' % (sT0, sTTK, sT0, sT0, sT0, sT0, sLOFF, sT0, sT0, XA + LSTRIDE))
            e('buffer_store_dwordx4 v[%d:%d], v%d, s[4:7], s%d offen sc1' % (XR, XR + 3, vY0, sT0))
            e('buffer_store_dwordx4 v[%d:%d], v%d, s[4:7], s%d offen sc1' % (XR + 4, XR + 7, vY1, sT0))
            e('buffer_store_dwordx2 v[%d:%d], v%d, s[4:7], s%d offen sc1' % (XR + 8, XR + 9, vY2, sT0))
            self.bd_stats(SA, True)
            self.cnt(sT1, CNT_XA, sRB, next_layer=True)
            self.signal(sT1)
            self.stamp(18)
            self.side_dma(range(NSIDE_A))
            e('s_branch %s' % X)
            e.label(L)
            e('s_mul_i32 s%d, s%d, 20480\ns_mul_i32 s%d, s%d, 160\ns_add_u32 s%d, s%d, s%d' % (sT0, sTTK, sT1, sCS, sT0, sT0, sT1))
            e('buffer_store_dwordx4 v[%d:%d], v%d, s[12:15], s%d offen' % (XR, XR + 3, vR0, sT0))
            e('buffer_store_dwordx4 v[%d:%d], v%d, s[12:15], s%d offen offset:64' % (XR + 4, XR + 7, vR0, sT0))
            e('buffer_store_dwordx2 v[%d:%d], v%d, s[12:15], s%d offen' % (XR + 8, XR + 9, vR2, sT0))
            self.stamp(18)
            self.stamp_flush()
            e('s_endpgm')
            e.label(X)
        self.bd_epilogue(D0 + 11, final)
        return self.maybe_stop('d')
    def build(self):
        e = self.e
        self.prologue()
        e.label('M_LAYER')
        done = self.phase_a() or self.phase_b() or self.phase_c() or self.phase_d()
        if not done:
            e('s_add_u32 s%d, s%d, 1\ns_add_u32 s%d, s%d, 0x%x' % (sL, sL, sLOFF, sLOFF, LSTRIDE))
            e('s_branch M_LAYER')
        e.label('M_END')
        e('s_endpgm')
        e.label('M_CODE_END')
        return e
```

```python
from asmlib import *
from layout import *

P0_GRID = 513
P0_LDS = 28 * 1024
NAME = 'prep_kernel'

def srd(e, dst, lo, nbytes):
    e('s_mov_b32 s%d, s%d' % (dst, lo))
    e('s_mov_b32 s%d, s%d' % (dst + 1, lo + 1))
    e('s_mov_b32 s%d, 0x%x' % (dst + 2, nbytes))
    e('s_mov_b32 s%d, 0x20000' % (dst + 3))

S_WS, S_SRC, S_SRC2, S_W = 4, 8, 12, 16

STAMPS = False
def stamp(e, k):
    if not STAMPS: return
    e('s_memrealtime s[70:71]\ns_waitcnt lgkmcnt(0)\nv_mov_b32 v%d, s70' % (120 + k))
def stamp_flush(e):
    if not STAMPS: return
    stamp(e, 3)
    e('s_lshl_b32 s72, s2, 2\ns_add_u32 s72, s72, s16\ns_lshl_b32 s72, s72, 4\ns_add_u32 s72, s72, 0x4100000')
    e('v_mov_b32 v5, 0')
    e('buffer_store_dwordx4 v[120:123], v5, s[4:7], s72 offen' + SC)

SC = ''
CODEPF = 1
MAIN_LABEL = 'hedgehog_main_kernel'
def gen_p0(stamps=False, sc='', codepf=1):
    global STAMPS, SC, CODEPF
    STAMPS = stamps; SC = sc; CODEPF = codepf
    e = Asm()
    e.directive('.text\n.globl %s\n.p2align 8\n.type %s,@function' % (NAME, NAME))
    e.label(NAME)
    e('s_cmp_ge_u32 s2, %d' % P0_GRID)
    e('s_cbranch_scc1 P0_END')
    stamp(e, 0)
    e('s_load_dwordx8 s[40:47], s[0:1], 0')
    e('s_load_dwordx4 s[48:51], s[0:1], 40')
    e('s_load_dwordx2 s[52:53], s[0:1], 56')
    e('s_load_dwordx2 s[54:55], s[0:1], 80')
    e('v_lshrrev_b32 v1, 6, v0')
    e('v_and_b32 v2, 63, v0')
    e('v_readfirstlane_b32 s16, v1')
    e('v_mov_b32 v3, 0x3f803f80')
    e('v_lshlrev_b32 v4, 4, v2')
    e('s_waitcnt lgkmcnt(0)')
    srd(e, S_WS, 54, WS_BYTES)
    stamp(e, 1)
    e('s_cmp_lt_u32 s2, 96');  e('s_cbranch_scc1 P0_WA')
    e('s_cmp_lt_u32 s2, 288'); e('s_cbranch_scc1 P0_WC')
    e('s_cmp_lt_u32 s2, 416'); e('s_cbranch_scc1 P0_WD')
    e('s_cmp_lt_u32 s2, 448'); e('s_cbranch_scc1 P0_WB')
    e('s_cmp_lt_u32 s2, 512'); e('s_cbranch_scc1 P0_X')
    e('v_lshlrev_b32 v5, 4, v0')
    for r in range(8, 12): e('v_mov_b32 v%d, 0' % r)
    for l in range(2):
        for n in range(4):
            e('s_mov_b32 s20, 0x%x' % (LBASE + l * LSTRIDE + CNT + n * 4096))
            e('buffer_store_dwordx4 v[8:11], v5, s[4:7], s20 offen' + SC)
    e('s_endpgm')
    gen_wa(e); gen_wc(e); gen_wd(e); gen_wb(e); gen_x(e)
    e.label('P0_END')
    e('s_endpgm')
    return e

def hilo_store(e, vsum, vtmp, voff, soff):
    e('v_cvt_pk_bf16_f32 v%d, v%d, v%d' % (vtmp, vsum, vsum))
    e('v_and_b32 v%d, 0xffff0000, v%d' % (vtmp + 2, vtmp))
    e('v_sub_f32 v%d, v%d, v%d' % (vtmp + 2, vsum, vtmp + 2))
    e('v_cvt_pk_bf16_f32 v%d, v%d, v%d' % (vtmp + 1, vtmp + 2, vtmp + 2))
    e(('buffer_store_dwordx2 v[%d:%d], v%d, s[4:7], %s offen' % (vtmp, vtmp + 1, voff, soff)) + SC)

def gen_wa(e):
    e.label('P0_WA')
    e.reset_state()
    srd(e, S_SRC, 42, 640 * 3840)
    srd(e, S_SRC2, 44, 32 * 800)
    e('s_lshl_b32 s20, s2, 2\ns_add_u32 s20, s20, s16')
    e('s_mul_i32 s21, s20, 2731\ns_lshr_b32 s21, s21, 16')
    e('s_mul_i32 s22, s21, 24\ns_sub_u32 s22, s20, s22')
    e('s_mul_i32 s23, s22, 43\ns_lshr_b32 s23, s23, 8')
    e('s_mul_i32 s24, s23, 6\ns_sub_u32 s24, s22, s24')
    e('s_lshr_b32 s25, s24, 1\ns_and_b32 s26, s24, 1')
    e('s_lshl_b32 s27, s21, 1\ns_add_u32 s27, s27, s26')
    e('s_add_u32 s28, s25, 1\ns_mul_i32 s28, s28, 640')
    e('s_cmp_eq_u32 s25, 2\ns_cselect_b32 s28, 0, s28')
    e('s_mul_i32 s29, s27, 20\ns_add_u32 s28, s28, s29\ns_lshl_b32 s28, s28, 1')
    e('s_mul_i32 s29, s23, %d\ns_add_u32 s28, s28, s29' % (160 * 3840))
    e('v_and_b32 v5, 31, v2\nv_lshrrev_b32 v6, 5, v2')
    e('v_and_b32 v7, 0x13, v5')
    e('v_bfe_u32 v8, v5, 2, 1\nv_lshl_add_u32 v7, v8, 3, v7')
    e('v_bfe_u32 v8, v5, 3, 1\nv_lshl_add_u32 v7, v8, 2, v7')
    e('v_mul_u32_u24 v7, 3840, v7\nv_lshl_add_u32 v7, v6, 4, v7')
    for kt in range(5):
        e('s_add_u32 s30, s28, %d' % (kt * 32 * 3840))
        for m in range(2):
            r = 32 + 8 * kt + 4 * m
            e('buffer_load_dwordx4 v[%d:%d], v7, s[8:11], s30 offen offset:%d' % (r, r + 3, 32 * m))
    e('s_cmp_eq_u32 s25, 1\ns_cbranch_scc1 P0_WA_ID')
    e('v_lshlrev_b32 v8, 1, v5')
    e('v_mul_u32_u24 v9, 320, v6\nv_add_u32 v8, v8, v9')
    e('s_mul_i32 s30, s27, 800')
    e('v_mov_b32 v10, 0x%x' % OOB)
    e('v_cmp_gt_u32 vcc, 20, v5\nv_cndmask_b32 v8, v10, v8, vcc')
    e('v_cmp_eq_u32 vcc, 0, v6\nv_cndmask_b32 v9, v10, v8, vcc')
    for el in range(8):
        e('buffer_load_ushort v%d, v8, s[12:15], s30 offen offset:%d' % (80 + el, el * 40))
    for el in range(4):
        e('buffer_load_ushort v%d, v9, s[12:15], s30 offen offset:%d' % (88 + el, (16 + el) * 40))
    for d in range(4): e('v_lshl_or_b32 v%d, v%d, 16, v%d' % (72 + d, 81 + 2 * d, 80 + 2 * d))
    for d in range(2): e('v_lshl_or_b32 v%d, v%d, 16, v%d' % (76 + d, 89 + 2 * d, 88 + 2 * d))
    e('v_mov_b32 v78, 0\nv_mov_b32 v79, 0')
    e.wait_all()
    e('s_branch P0_WA_GO')
    e.label('P0_WA_ID')
    e('v_lshlrev_b32 v8, 3, v6\nv_sub_u32 v8, v5, v8')
    e('v_mov_b32 v10, 0x3f80\nv_mov_b32 v11, 0x3f800000\nv_mov_b32 v12, 0')
    for m in range(2):
        if m == 1: e('v_subrev_u32 v8, 16, v8')
        for d in range(4):
            e('v_cmp_eq_u32 vcc, %d, v8' % (2 * d))
            e('v_cndmask_b32 v%d, v12, v10, vcc' % (72 + 4 * m + d))
            e('v_cmp_eq_u32 vcc, %d, v8' % (2 * d + 1))
            e('v_cndmask_b32 v%d, v%d, v11, vcc' % (72 + 4 * m + d, 72 + 4 * m + d))
    e.wait_all()
    e.label('P0_WA_GO')
    e.reset_state()
    stamp(e, 2)
    e('s_mul_i32 s30, s25, 20\nv_add_u32 v8, s30, v5')
    e('v_lshrrev_b32 v9, 4, v8\nv_and_b32 v10, 15, v8')
    e('v_lshrrev_b32 v11, 2, v10\nv_lshlrev_b32 v11, 3, v11')
    e('v_and_b32 v10, 3, v10\nv_add_u32 v11, v11, v10')
    e('s_lshl_b32 s31, s26, 2\nv_add_u32 v11, s31, v11')
    e('v_lshl_add_u32 v12, v6, 5, v11\nv_lshlrev_b32 v12, 4, v12')
    e('v_cmp_gt_u32 vcc, 3, v9')
    e('v_mov_b32 v13, 120\nv_cndmask_b32 v13, v13, v9, vcc')
    e('v_mov_b32 v14, 1024\nv_mov_b32 v15, 3072\nv_cndmask_b32 v14, v14, v15, vcc')
    e('v_lshl_add_u32 v12, v13, 10, v12')
    e('s_mul_i32 s31, s23, 10\nv_mul_lo_u32 v15, v14, s31\nv_add_u32 v12, v12, v15')
    e('s_cmp_eq_u32 s25, 2\ns_cselect_b32 s32, 24, 20')
    e('v_cmp_gt_u32 vcc, s32, v5\nv_mov_b32 v16, 0x%x' % OOB)
    e('s_mov_b64 s[34:35], vcc', count=False) if False else None
    e('v_cndmask_b32 v12, v16, v12, vcc')
    e('v_cndmask_b32 v14, 0, v14, vcc') if False else None
    e('v_lshlrev_b32 v17, 10, v9\nv_lshl_add_u32 v17, v11, 4, v17')
    e('v_cndmask_b32 v17, v16, v17, vcc')
    e('v_cmp_eq_u32 vcc, 0, v6\nv_cndmask_b32 v17, v16, v17, vcc')
    e('s_mul_i32 s33, s21, %d\ns_add_u32 s33, s33, 0x%x' % (160 * KB, WA))
    e('v_mov_b32 v18, 0')
    for kt in range(5):
        a0 = 32 + 8 * kt
        e('v_mfma_f32_32x32x16_bf16 v[96:111], v[%d:%d], v[72:75], 0' % (a0, a0 + 3))
        e('v_mfma_f32_32x32x16_bf16 v[96:111], v[%d:%d], v[76:79], v[96:111]' % (a0 + 4, a0 + 7))
        for d in range(8):
            e('v_cvt_pk_bf16_f32 v%d, v%d, v%d' % (112 + d, 96 + 2 * d, 97 + 2 * d))
        for d in range(8):
            e('v_dot2c_f32_bf16 v18, v%d, v3' % (112 + d))
        e('buffer_store_dwordx4 v[112:115], v12, s[4:7], s33 offen' + SC)
        e('v_add_u32 v19, v12, v14')
        e('buffer_store_dwordx4 v[116:119], v19, s[4:7], s33 offen' + SC)
        e('v_add_u32 v12, v19, v14')
    e('v_mov_b32 v19, v18')
    e('v_permlane32_swap_b32 v18, v19')
    e('v_add_f32 v18, v18, v19')
    e('s_lshl_b32 s34, s21, 12\ns_add_u32 s34, s34, 0x%x' % WAM)
    e('s_lshr_b32 s35, s23, 1\ns_lshl_b32 s35, s35, 9\ns_add_u32 s34, s34, s35')
    e('s_and_b32 s35, s23, 1\ns_lshl_b32 s35, s35, 3\ns_add_u32 s34, s34, s35')
    hilo_store(e, 18, 20, 17, 's34')
    stamp_flush(e)
    e('s_endpgm')

def tr_lane(e):
    e('v_lshrrev_b32 v5, 4, v2\nv_bfe_u32 v6, v2, 2, 2\nv_and_b32 v7, 3, v2')

def gen_wc(e):
    e.label('P0_WC')
    e.reset_state()
    e('s_sub_u32 s20, s2, 96')
    e('s_cmp_ge_u32 s20, 96\ns_cselect_b32 s21, 1, 0')
    e('s_cselect_b32 s8, s50, s48\ns_cselect_b32 s9, s51, s49')
    e('s_mov_b32 s10, 0x%x\ns_mov_b32 s11, 0x20000' % (640 * 3072))
    e('s_mul_i32 s22, s21, 96\ns_sub_u32 s22, s20, s22')
    e('s_lshr_b32 s23, s22, 2\ns_and_b32 s24, s22, 3')
    e('v_lshrrev_b32 v8, 3, v2\nv_mul_u32_u24 v8, 3072, v8')
    e('v_and_b32 v9, 7, v2\nv_lshl_add_u32 v8, v9, 4, v8')
    e('s_mul_i32 s25, s24, %d\ns_lshl_b32 s26, s23, 7\ns_add_u32 s25, s25, s26' % (160 * 3072))
    e('s_mul_i32 s26, s16, %d\ns_add_u32 s25, s25, s26' % (40 * 3072))
    e('s_mul_i32 s27, s16, 5120')
    for n in range(5):
        e('s_add_u32 m0, s27, %d' % (n * 1024))
        e('s_add_u32 s28, s25, %d' % (n * 8 * 3072))
        e('buffer_load_dwordx4 v8, s[8:11], s28 offen lds')
    tr_lane(e)
    e('v_lshl_add_u32 v9, v5, 3, v6\nv_lshlrev_b32 v9, 7, v9')
    e('v_lshl_add_u32 v9, v7, 3, v9')
    e('s_lshl_b32 s26, s16, 5\nv_add_u32 v9, s26, v9')
    e('s_lshl_b32 s26, s23, 2\ns_add_u32 s26, s26, s16')
    e('s_mul_i32 s27, s26, 171\ns_lshr_b32 s27, s27, 10')
    e('s_mul_i32 s28, s27, 6\ns_sub_u32 s28, s26, s28\ns_lshr_b32 s28, s28, 1')
    e('s_and_b32 s29, s26, 1\ns_lshl_b32 s30, s21, 1\ns_add_u32 s29, s29, s30')
    e('s_mul_i32 s30, s27, 240\ns_mul_i32 s31, s28, 80\ns_add_u32 s30, s30, s31')
    e('s_mul_i32 s31, s24, 20\ns_add_u32 s30, s30, s31\ns_add_u32 s30, s30, s29')
    e('s_lshl_b32 s30, s30, 10\ns_add_u32 s30, s30, 0x%x' % WC)
    e('v_mov_b32 v18, 0')
    e.wait_all()
    e('s_barrier')
    stamp(e, 2)
    for s in range(5):
        r = 32 + 4 * s
        e('ds_read_b64_tr_b16 v[%d:%d], v9 offset:%d' % (r, r + 1, s * 4096))
        e('ds_read_b64_tr_b16 v[%d:%d], v9 offset:%d' % (r + 2, r + 3, s * 4096 + 512))
    for s in range(5):
        r = 32 + 4 * s
        e('s_add_u32 s31, s30, %d' % (s * 4096))
        e(('buffer_store_dwordx4 v[%d:%d], v4, s[4:7], s31 offen' % (r, r + 3)) + SC)
        for d in range(4): e('v_dot2c_f32_bf16 v18, v%d, v3' % (r + d))
    e('v_mov_b32 v19, v18\nv_permlane16_swap_b32 v18, v19\nv_add_f32 v18, v18, v19')
    e('v_mov_b32 v19, v18\nv_permlane32_swap_b32 v18, v19\nv_add_f32 v18, v18, v19')
    e('v_and_b32 v10, 15, v2\nv_lshlrev_b32 v10, 4, v10')
    e('v_lshl_add_u32 v10, v5, 9, v10')
    e('v_mov_b32 v11, 0x%x' % OOB)
    e('v_cmp_gt_u32 vcc, 2, v5\nv_cndmask_b32 v10, v11, v10, vcc')
    e('v_cmp_eq_u32 vcc, 0, v5\nv_cndmask_b32 v18, 0, v18, vcc')
    e('s_mul_i32 s31, s27, 12\ns_lshl_b32 s32, s28, 2\ns_add_u32 s31, s31, s32\ns_add_u32 s31, s31, s29')
    e('s_lshl_b32 s31, s31, 10\ns_add_u32 s31, s31, 0x%x' % WCM)
    e('s_lshr_b32 s32, s24, 1\ns_lshl_b32 s32, s32, 8\ns_add_u32 s31, s31, s32')
    e('s_and_b32 s32, s24, 1\ns_lshl_b32 s32, s32, 3\ns_add_u32 s31, s31, s32')
    hilo_store(e, 18, 20, 10, 's31')
    stamp_flush(e)
    e('s_endpgm')

def dma160_voff(e, dst):
    e('v_mul_u32_u24 v8, 205, v2\nv_lshrrev_b32 v8, 11, v8')
    e('v_mul_u32_u24 v9, 10, v8\nv_sub_u32 v9, v2, v9')
    e('v_min_u32 v8, 5, v8')
    e('v_mul_u32_u24 v8, 1280, v8\nv_lshl_add_u32 v%d, v9, 4, v8' % dst)

def row_to_lds(e, vrow, vdst, vt):
    e('v_mul_u32_u24 v%d, 171, v%d\nv_lshrrev_b32 v%d, 10, v%d' % (vt, vrow, vt, vt))
    e('v_mul_u32_u24 v%d, 6, v%d\nv_sub_u32 v%d, v%d, v%d' % (vdst, vt, vdst, vrow, vdst))
    e('v_mul_u32_u24 v%d, 160, v%d\nv_lshl_add_u32 v%d, v%d, 10, v%d' % (vdst, vdst, vdst, vt, vdst))

def gen_wd(e):
    e.label('P0_WD')
    e.reset_state()
    srd(e, S_SRC, 52, 1536 * 1280)
    e('s_sub_u32 s20, s2, 288\ns_lshr_b32 s21, s20, 4\ns_and_b32 s22, s20, 15')
    dma160_voff(e, 10)
    e('s_mul_i32 s23, s22, %d\ns_mul_i32 s24, s21, 160\ns_add_u32 s23, s23, s24' % (96 * 1280))
    e('s_mul_i32 s24, s16, %d\ns_add_u32 s23, s23, s24' % (24 * 1280))
    e('s_lshl_b32 s25, s16, 12')
    for n in range(4):
        e('s_add_u32 m0, s25, %d' % (n * 1024))
        e('s_add_u32 s26, s23, %d' % (n * 6 * 1280))
        e('buffer_load_dwordx4 v10, s[8:11], s26 offen lds')
    tr_lane(e)
    e('s_lshl_b32 s26, s16, 5')
    e('v_lshl_add_u32 v11, v5, 2, v6\nv_add_u32 v11, s26, v11')
    e('v_min_u32 v11, 79, v11')
    row_to_lds(e, 11, 12, 13)
    e('v_add_u32 v11, 16, v11')
    row_to_lds(e, 11, 14, 13)
    e('v_lshl_add_u32 v16, v7, 4, v12\nv_lshl_add_u32 v17, v7, 4, v14')
    e('v_lshl_add_u32 v18, v7, 3, v12\nv_lshl_add_u32 v19, v7, 3, v14')
    e('s_lshl_b32 s27, s16, 3\ns_lshr_b32 s28, s22, 1\ns_add_u32 s27, s27, s28\ns_mul_i32 s27, s27, 10')
    e('s_and_b32 s28, s22, 1\ns_mul_i32 s28, s28, 5\ns_add_u32 s27, s27, s28')
    e('s_mul_i32 s28, s21, 240\ns_add_u32 s27, s27, s28\ns_lshl_b32 s27, s27, 10\ns_add_u32 s27, s27, 0x%x' % WD)
    e.wait_all()
    e('s_barrier')
    stamp(e, 2)
    e('s_cmp_eq_u32 s16, 3\ns_cbranch_scc1 P0_END')
    for tau in range(5):
        r = 32 + 4 * tau
        off = (8 * tau if tau < 2 else 64 + 8 * (tau - 2)) if tau < 4 else 128
        va, vb = (16, 17) if tau < 4 else (18, 19)
        e('ds_read_b64_tr_b16 v[%d:%d], v%d offset:%d' % (r, r + 1, va, off))
        e('ds_read_b64_tr_b16 v[%d:%d], v%d offset:%d' % (r + 2, r + 3, vb, off))
    for tau in range(5):
        r = 32 + 4 * tau
        e('s_add_u32 s28, s27, %d' % (tau * 1024))
        e(('buffer_store_dwordx4 v[%d:%d], v4, s[4:7], s28 offen' % (r, r + 3)) + SC)
    stamp_flush(e)
    e('s_endpgm')

def gen_wb(e):
    e.label('P0_WB')
    e.reset_state()
    srd(e, S_SRC, 46, 640 * 1280)
    e('s_sub_u32 s20, s2, 416\ns_lshr_b32 s21, s20, 2\ns_and_b32 s22, s20, 3')
    dma160_voff(e, 10)
    e('s_mul_i32 s23, s22, %d\ns_mul_i32 s24, s21, 160\ns_add_u32 s23, s23, s24' % (160 * 1280))
    e('s_mul_i32 s24, s16, %d\ns_add_u32 s23, s23, s24' % (42 * 1280))
    e('s_mul_i32 s25, s16, 7168')
    for n in range(7):
        e('s_add_u32 m0, s25, %d' % (n * 1024))
        e('s_add_u32 s26, s23, %d' % (n * 6 * 1280))
        e('buffer_load_dwordx4 v10, s[8:11], s26 offen lds')
    tr_lane(e)
    e('s_mul_i32 s27, s21, %d\ns_add_u32 s27, s27, 0x%x' % (100 * KB, WB))
    e.wait_all()
    e('s_barrier')
    stamp(e, 2)
    def rows(sp):
        e('v_mov_b32 v11, %s' % sp)
        e('v_lshl_add_u32 v11, v11, 2, v5')
        e('v_mul_u32_u24 v12, 52, v11\nv_lshrrev_b32 v12, 8, v12')
        e('v_mul_u32_u24 v13, 5, v12\nv_sub_u32 v13, v11, v13')
        e('v_mul_u32_u24 v12, 40, v12\nv_add_u32 v12, v12, v6')
        e('v_lshlrev_b32 v14, 3, v13')
        e('v_add_u32 v15, 4, v14')
        e('v_cmp_gt_u32 vcc, 2, v13\nv_cndmask_b32 v14, v15, v14, vcc')
        e('v_cmp_eq_u32 vcc, 4, v13\nv_cndmask_b32 v14, v14, 16, vcc') if False else None
        e('v_mov_b32 v15, 16\nv_cmp_eq_u32 vcc, 4, v13\nv_cndmask_b32 v14, v14, v15, vcc')
        e('v_add_u32 v20, v12, v14')
        e('v_mov_b32 v15, 20\nv_cndmask_b32 v15, 4, v15, vcc')
        e('v_add_u32 v21, v20, v15')
        row_to_lds(e, 20, 12, 13)
        row_to_lds(e, 21, 14, 13)
    def dest(sp, tau_sgpr_or_const):
        e('s_mul_i32 s28, s22, 5\ns_add_u32 s28, s28, %s' % sp)
        e('s_cmp_ge_u32 s28, 10\ns_cselect_b32 s29, 5, 0\ns_cselect_b32 s30, 10, 0')
        e('s_sub_u32 s28, s28, s30\ns_mul_i32 s28, s28, 10\ns_add_u32 s28, s28, s29')
        e('s_add_u32 s28, s28, %s' % tau_sgpr_or_const)
        e('s_lshl_b32 s28, s28, 10\ns_add_u32 s28, s28, s27')
    e('s_and_b32 s31, s16, 1\ns_lshl_b32 s31, s31, 3\ns_lshr_b32 s32, s16, 1\ns_lshl_b32 s32, s32, 6\ns_add_u32 s31, s31, s32')
    e('v_lshlrev_b32 v22, 4, v7\nv_add_u32 v22, s31, v22')
    e('v_lshlrev_b32 v23, 3, v7\nv_add_u32 v23, 128, v23')
    def frag(vcol):
        e('v_add_u32 v16, v12, v%d\nv_add_u32 v17, v14, v%d' % (vcol, vcol))
        e('ds_read_b64_tr_b16 v[32:33], v16\nds_read_b64_tr_b16 v[34:35], v17')
        e('buffer_store_dwordx4 v[32:35], v4, s[4:7], s28 offen' + SC)
    for sp in range(5):
        rows(str(sp)); dest(str(sp), 's16'); frag(22)
        if sp == 4:
            dest('4', '4'); frag(23)
    rows('s16'); dest('s16', '4'); frag(23)
    stamp_flush(e)
    e('s_endpgm')

def gen_x(e):
    e.label('P0_X')
    e.reset_state()
    srd(e, S_SRC, 40, T * 1280)
    e('s_sub_u32 s20, s2, 448')
    if CODEPF:
        e('s_getpc_b64 s[24:25]')
        e.label('P0_PC')
        e('s_add_u32 s24, s24, (%s-P0_PC)\ns_addc_u32 s25, s25, 0' % MAIN_LABEL)
        e('v_lshlrev_b32 v100, 7, v0')
        e('v_mov_b32 v101, (M_CODE_END-%s-4)' % MAIN_LABEL)
        e('v_add_u32 v102, 0x8000, v100')
        e('v_min_u32 v100, v100, v101\nv_min_u32 v102, v102, v101')
        e('v_and_b32 v100, -4, v100\nv_and_b32 v102, -4, v102')
        e('global_load_dword v103, v100, s[24:25]', count=False)
        e('global_load_dword v104, v102, s[24:25]', count=False)
    e('v_and_b32 v5, 31, v2\nv_lshrrev_b32 v6, 5, v2')
    e('v_mul_u32_u24 v7, 1280, v5\nv_lshl_add_u32 v7, v6, 4, v7')
    e('s_mul_i32 s21, s20, 40960\ns_mul_i32 s22, s16, 320\ns_add_u32 s21, s21, s22')
    for n in range(10):
        e('buffer_load_dwordx4 v[%d:%d], v7, s[8:11], s21 offen offset:%d' % (32 + 4 * n, 35 + 4 * n, 32 * n))
    e('s_mul_i32 s22, s20, 40\ns_mul_i32 s23, s16, 10\ns_add_u32 s22, s22, s23')
    e('s_lshl_b32 s22, s22, 10\ns_add_u32 s22, s22, 0x%x' % (LBASE + XA))
    for r in range(20, 24): e('v_mov_b32 v%d, 0' % r)
    if STAMPS:
        e.wait_all(); stamp(e, 2)
    for n in range(10):
        r = 32 + 4 * n
        e('s_add_u32 s23, s22, %d' % (n * 1024))
        e(('buffer_store_dwordx4 v[%d:%d], v4, s[4:7], s23 offen' % (r, r + 3)) + SC)
        a = 20 if n < 5 else 22
        for d in range(4):
            e('v_dot2c_f32_bf16 v%d, v%d, v3' % (a, r + d))
            e('v_dot2c_f32_bf16 v%d, v%d, v%d' % (a + 1, r + d, r + d))
    for r in range(20, 24):
        e('v_mov_b32 v24, v%d\nv_permlane32_swap_b32 v%d, v24\nv_add_f32 v%d, v%d, v24' % (r, r, r, r))
    e('v_lshlrev_b32 v8, 3, v5\nv_mov_b32 v9, 0x%x' % OOB)
    e('v_cmp_eq_u32 vcc, 0, v6\nv_cndmask_b32 v8, v9, v8, vcc')
    e('s_lshl_b32 s23, s20, 8\ns_lshl_b32 s24, s16, 15\ns_add_u32 s23, s23, s24\ns_add_u32 s23, s23, 0x%x' % (LBASE + SA))
    e('buffer_store_dwordx2 v[20:21], v8, s[4:7], s23 offen' + SC)
    e('s_add_u32 s23, s23, 16384')
    e('buffer_store_dwordx2 v[22:23], v8, s[4:7], s23 offen' + SC)
    stamp_flush(e)
    e('s_endpgm')

def descriptor(name, vgpr, accum, sgpr=96):
    return """.amdhsa_kernel %s
  .amdhsa_next_free_vgpr %d
  .amdhsa_next_free_sgpr %d
  .amdhsa_accum_offset %d
  .amdhsa_group_segment_fixed_size 0
  .amdhsa_kernarg_size 88
  .amdhsa_user_sgpr_count 2
  .amdhsa_user_sgpr_kernarg_segment_ptr 1
  .amdhsa_system_sgpr_workgroup_id_x 1
.end_amdhsa_kernel
""" % (name, vgpr, sgpr, accum)
```

```python
from asmlib import *
from layout import *

NAME = 'hedgehog_main_kernel'
BLK = 20480
SCR = 6 * BLK
LDS_TOTAL = 163840
SPIN_LIMIT = 40000
LOG2E = 1.4426950408889634
TSOFF = 0x4000000

sW, sRB, sJ, sL, sLOFF, sW5K, sWA, sWB, sWC, sWD = range(16, 26)
sT0, sT1, sT2, sT3, sT4, sT5 = range(26, 32)
sDEAD, sPC, sPV, sCS, sTH, sTTK, sTTS, sKH = range(40, 48)
sDM = 48
sTW = 49
sB0, sB1 = 50, 51
sC1, sC2, sC3, sC4 = 52, 53, 54, 55
sEX, sEXD = 56, 57
sTA, sTB = 58, 59
vL16, vLANE, vONES, vZERO, vONE, vPOLL = 1, 2, 3, 4, 5, 6
vL16B, vK0, vK1 = 7, 8, 9
vT0, vT1, vT2, vT3, vT4 = 10, 11, 12, 13, 14
vEXR = 15
AF, ACC = 16, 48
vSA, vTW, vKA, vKB, vPS1, vPS2, vPL, vAW, vO0, vO1, vO2, vX0, vX1, vX2, vY0, vY1 = range(224, 240)
XR = 240
vY2, vR0, vR2, vST, vSC, vEXW = range(250, 256)
vAW2 = 221
vL128, vTCH = 220, 219

A0, B0, C0, D0, NBLK = 0, 8, 13, 25, 37
NSIDE_A, NSIDE_C = 4, 4

def f32bits(x):
    import struct
    return '0x%08x' % struct.unpack('<I', struct.pack('<f', x))[0]

def W_vreg(r):
    return 'v_mov_b32 v%d, v%d' % (r, r)

class Main:
    def __init__(self, stop=None, opts=None):
        self.e = Asm(); self.stop = stop; self.o = opts or {}
        self.sc = '' if self.o.get('nosc1') else ' sc1'
        self.nlab = 0
        global NSIDE_A, NSIDE_C
        NSIDE_A = self.o.get('nsa', 4); NSIDE_C = self.o.get('nsc', 4)
        dt = self.o.get('d_tail', 0); bt = self.o.get('b_tail', 0)
        self.A_tail = list(range(1, 1 + dt))
        rest = [0] + list(range(1 + dt, 6))
        self.A_side, self.A_in = rest[:NSIDE_A], rest[NSIDE_A:]
        self.C_tail = list(range(C0 + 1, C0 + 1 + bt))
        rest = list(range(C0 + 1 + bt, C0 + 6))
        self.C_side, self.C_in = rest[:NSIDE_C], rest[NSIDE_C:]
    def lab(self, p):
        self.nlab += 1
        return 'M_%s_%d' % (p, self.nlab)
    def blk_src(self, b):
        if b < B0: return sWA, (b - A0) * BLK
        if b < C0: return sWB, (b - B0) * BLK
        if b < D0: return sWC, (b - C0) * BLK
        return sWD, (b - D0) * BLK
    def dma_ops(self, b, tag=None):
        nb = b % NBLK if b >= NBLK else b
        base, off = self.blk_src(nb)
        slot = nb % 6
        tag = tag or 'blk%d' % nb
        g = []
        first = ['s_add_u32 m0, s%d, %d' % (sW5K, slot * BLK), 's_add_u32 s%d, s%d, %d' % (sDM, base, off),
                 ('buffer_load_dwordx4 v%d, s[4:7], s%d offen lds' % (vL16, sDM), tag)]
        g.append(first)
        for k in range(1, 4):
            g.append([('buffer_load_dwordx4 v%d, s[4:7], s%d offen offset:%d lds' % (vL16, sDM, k * 1024), tag)])
        g.append(['s_add_u32 m0, s%d, %d' % (sW5K, slot * BLK + 4096), 's_add_u32 s%d, s%d, %d' % (sDM, base, off + 4096),
                  ('buffer_load_dwordx4 v%d, s[4:7], s%d offen lds' % (vL16, sDM), tag)])
        return g
    def side_dma(self, blocks):
        e = self.e
        L = self.lab('side')
        e('s_cmp_eq_u32 s%d, 0' % sW); e('s_cbranch_scc1 %s' % L)
        for b in blocks:
            base, off = self.blk_src(b); slot = b % 6; tag = 'blk%d' % b
            ld = 'buffer_load_dwordx4 v%d, s[4:7], s%d offen%%s lds' % (vL16, sDM)
            e('s_add_u32 m0, s%d, %d' % (sW5K, slot * BLK)); e('s_add_u32 s%d, s%d, %d' % (sDM, base, off))
            for k in range(4): e.side(ld % (' offset:%d' % (k * 1024) if k else ''), tag)
            e('s_add_u32 m0, s%d, %d' % (sW5K, slot * BLK + 4096)); e('s_add_u32 s%d, s%d, %d' % (sDM, base, off + 4096))
            e.side(ld % '', tag)
            e('s_add_u32 m0, s%d, %d' % (sEX, slot * BLK)); e('s_add_u32 s%d, s%d, %d' % (sDM, base, off))
            e('s_add_u32 s%d, s%d, s%d' % (sDM, sDM, sEXD))
            e.side(ld % '', tag); e.side(ld % ' offset:1024', tag)
        e.label(L)
    def dma_items(self, b, earliest):
        out = []
        for g in self.dma_ops(b):
            for x in g: out.append((x, earliest))
        return out
    def touch(self, base_expr, nlines_wave, ninstr=1, sc=''):
        L = list(base_expr)
        L.append('s_mul_i32 s%d, s%d, %d' % (sTB, sW, nlines_wave * ninstr * 128))
        L.append('s_add_u32 s%d, s%d, s%d' % (sTA, sTA, sTB))
        if nlines_wave < 64:
            L.append('v_mov_b32 v%d, 0x%x' % (vT0, OOB))
            L.append('v_cmp_gt_u32 vcc, %d, v%d' % (nlines_wave, vLANE))
            L.append('v_cndmask_b32 v%d, v%d, v%d, vcc' % (vT0, vT0, vL128))
            va = vT0
        else: va = vL128
        for k in range(ninstr):
            if k: L.append('s_add_u32 s%d, s%d, %d' % (sTA, sTA, nlines_wave * 128))
            I = parse('buffer_load_dword v%d, v%d, s[4:7], s%d offen%s' % (vTCH, va, sTA, sc)); I.wr = set()
            L.append(I)
        return L
    def touch_w(self, which):
        if which == 'A':
            pre = ['s_lshr_b32 s%d, s%d, 2' % (sTA, sRB), 's_mul_i32 s%d, s%d, %d' % (sTA, sTA, 40 * KB), 's_add_u32 s%d, s%d, s%d' % (sTA, sTA, sWA), 's_sub_u32 s%d, s%d, s%d' % (sTA, sTA, sW5K)]
            return self.touch(pre, 40, 2)
        if which == 'C':
            pre = ['s_lshr_b32 s%d, s%d, 2' % (sTA, sRB), 's_mul_i32 s%d, s%d, %d' % (sTA, sTA, 60 * KB), 's_add_u32 s%d, s%d, s%d' % (sTA, sTA, sWC), 's_sub_u32 s%d, s%d, s%d' % (sTA, sTA, sW5K)]
            return self.touch(pre, 60, 2)
        idx = ['s_lshr_b32 s%d, s%d, 2' % (sTA, sRB), 's_lshl_b32 s%d, s%d, 1' % (sTA, sTA), 's_add_u32 s%d, s%d, s%d' % (sTA, sTA, sTH)]
        if which == 'B':
            return self.touch(idx + ['s_mul_i32 s%d, s%d, 12800' % (sTA, sTA), 's_add_u32 s%d, s%d, s%d' % (sTA, sTA, sWB), 's_sub_u32 s%d, s%d, s%d' % (sTA, sTA, sW5K)], 25, 1)
        if which == 'D':
            return self.touch(idx + ['s_mul_i32 s%d, s%d, 30720' % (sTA, sTA), 's_add_u32 s%d, s%d, s%d' % (sTA, sTA, sWD), 's_sub_u32 s%d, s%d, s%d' % (sTA, sTA, sW5K)], 60, 1)
    def touch_tok(self, base_off):
        pre = ['s_mul_i32 s%d, s%d, %d' % (sTA, sRB, 160 * KB), 's_lshr_b32 s%d, s%d, 1' % (sTB, sJ), 's_mul_i32 s%d, s%d, %d' % (sTB, sTB, 20 * KB),
               's_add_u32 s%d, s%d, s%d' % (sTA, sTA, sTB), 's_add_u32 s%d, s%d, s%d' % (sTA, sTA, sLOFF), 's_add_u32 s%d, s%d, 0x%x' % (sTA, sTA, base_off)]
        return self.touch(pre, 40, 1, ' sc1')
    def freed_by(self, c):
        if c <= NBLK - 7: return c + 6
        if c < NBLK - 1: return NBLK + (c - (NBLK - 7))
        return NBLK + 0
    def ring_read(self, dst, blk, off, kh=False):
        slot = blk % 6
        base = (vK0 if kh else vL16) if slot < 3 else (vK1 if kh else vL16B)
        return 'ds_read_b128 v[%d:%d], v%d offset:%d' % (dst, dst + 3, base, (slot % 3) * BLK + off)
    def emit_next_layer_dma(self, b):
        e = self.e
        L = self.lab('nl')
        e('s_cmp_lg_u32 s%d, 0' % sL); e('s_cbranch_scc1 %s' % L)
        for g in self.dma_ops(b):
            for x in g:
                if isinstance(x, tuple): e(x[0], count=False)
                else: e(x)
        e.label(L)
    def signal(self, cnt_off_sgpr):
        e = self.e
        e.wait_all()
        e('s_barrier')
        self.signal_only(cnt_off_sgpr)
    def signal_only(self, cnt_off_sgpr):
        e = self.e
        L = self.lab('sig')
        e('s_cmp_lg_u32 s%d, 0' % sW); e('s_cbranch_scc1 %s' % L)
        e('s_mov_b64 exec, 1')
        e('buffer_atomic_add v%d, v%d, s[4:7], s%d offen sc1' % (vONE, vZERO, cnt_off_sgpr), count=False)
        e('s_mov_b64 exec, -1')
        e.label(L)
    def poll(self, cnt_off_sgpr, n=1, target=16):
        e = self.e
        L = self.lab('poll'); X = self.lab('got')
        e('s_cmp_lg_u32 s%d, 0' % sW); e('s_cbranch_scc1 %s' % X)
        e('s_cmp_lg_u32 s%d, 0' % sDEAD); e('s_cbranch_scc1 %s' % X)
        e('s_mov_b32 s%d, 0' % sPC)
        if n > 1:
            e('v_min_u32 v%d, %d, v%d' % (vT0, n - 1, vLANE)); e('v_lshlrev_b32 v%d, 7, v%d' % (vT0, vT0))
        e.label(L)
        e('buffer_load_dword v%d, v%d, s[4:7], s%d offen sc1' % (vPOLL, vT0 if n > 1 else vZERO, cnt_off_sgpr), count=False)
        e('s_waitcnt vmcnt(0)', count=False)
        e('v_cmp_gt_u32 vcc, %d, v%d' % (target, vPOLL))
        e('s_cbranch_vccz %s' % X)
        e('s_add_u32 s%d, s%d, 1' % (sPC, sPC)); e('s_cmp_lt_u32 s%d, %d' % (sPC, SPIN_LIMIT))
        e('s_cbranch_scc1 %s' % L)
        e('s_mov_b32 s%d, 1' % sDEAD)
        e.label(X)
    def cnt(self, dst, which, idx_sgpr, mul=128, add=0, next_layer=False):
        e = self.e
        e('s_mul_i32 s%d, s%d, %d' % (dst, idx_sgpr, mul))
        e('s_add_u32 s%d, s%d, s%d' % (dst, dst, sLOFF))
        e('s_add_u32 s%d, s%d, 0x%x' % (dst, dst, which + add + (LSTRIDE if next_layer else 0)))
    def prologue(self):
        e = self.e
        e.directive('.text\n.globl %s\n.p2align 8\n.type %s,@function' % (NAME, NAME))
        e.label(NAME)
        e('s_cmp_ge_u32 s2, 256'); e('s_cbranch_scc1 M_END')
        e('s_load_dwordx2 s[32:33], s[0:1], 0')
        e('s_load_dwordx2 s[34:35], s[0:1], 64')
        e('s_load_dwordx2 s[36:37], s[0:1], 80')
        if self.o.get('stamps'):
            e(('s_memtime' if self.o.get('cyc') else 's_memrealtime') + ' s[60:61]\ns_waitcnt lgkmcnt(0)\nv_mov_b32 v223, s60')
        e('v_lshrrev_b32 v10, 6, v0'); e('v_and_b32 v%d, 63, v0' % vLANE)
        e('v_readfirstlane_b32 s%d, v10' % sW)
        e('v_lshlrev_b32 v%d, 4, v%d' % (vL16, vLANE))
        e('s_and_b32 s%d, s2, 3\ns_lshr_b32 s26, s2, 6\ns_lshl_b32 s26, s26, 2\ns_or_b32 s%d, s%d, s26' % (sRB, sRB, sRB))
        e('s_lshr_b32 s%d, s2, 2\ns_and_b32 s%d, s%d, 15' % (sJ, sJ, sJ))
        e('s_and_b32 s%d, s%d, 7\ns_lshr_b32 s%d, s%d, 3' % (sCS, sJ, sTH, sJ))
        e('s_mul_i32 s%d, s%d, 5120' % (sW5K, sW))
        e('s_lshr_b32 s%d, s%d, 1' % (sKH, sW))
        for (s, idx, stride, base) in ((sWA, sJ, 160 * KB, WA), (sWB, sCS, 100 * KB, WB), (sWC, sJ, 240 * KB, WC), (sWD, sCS, 240 * KB, WD)):
            if self.o.get('wsame'): stride = 0
            e('s_mul_i32 s%d, s%d, %d\ns_add_u32 s%d, s%d, s%d\ns_add_u32 s%d, s%d, 0x%x' % (s, idx, stride, s, s, sW5K, s, s, base))
        e('s_lshl_b32 s%d, s%d, 3\ns_lshl_b32 s26, s%d, 2\ns_add_u32 s%d, s%d, s26' % (sTTK, sRB, sTH, sTTK, sTTK))
        e('s_and_b32 s26, s%d, 1\ns_lshl_b32 s26, s26, 1\ns_add_u32 s%d, s%d, s26\ns_add_u32 s%d, s%d, s%d' % (sW, sTTK, sTTK, sTTK, sTTK, sKH))
        e('s_xor_b32 s%d, s%d, 1' % (sTTS, sTTK))
        e('s_mov_b32 s%d, 0\ns_mov_b32 s%d, 0\ns_mov_b32 s%d, 0x%x' % (sDEAD, sL, sLOFF, LBASE))
        e('v_mov_b32 v%d, 0x3f803f80\nv_mov_b32 v%d, 0\nv_mov_b32 v%d, 1' % (vONES, vZERO, vONE))
        e('v_add_u32 v%d, %d, v%d' % (vL16B, 3 * BLK, vL16))
        e('v_lshlrev_b32 v%d, 7, v%d' % (vL128, vLANE))
        e('s_mul_i32 s26, s%d, 5120\nv_add_u32 v%d, s26, v%d\nv_add_u32 v%d, %d, v%d' % (sKH, vK0, vL16, vK1, 3 * BLK, vK0))
        t32, hi, t16, q = 100, 101, 102, 103
        e('v_and_b32 v%d, 31, v%d\nv_lshrrev_b32 v%d, 5, v%d' % (t32, vLANE, hi, vLANE))
        e('v_and_b32 v%d, 15, v%d\nv_lshrrev_b32 v%d, 4, v%d' % (t16, vLANE, q, vLANE))
        e('v_mov_b32 v104, 0x%x' % OOB)
        e('v_lshlrev_b32 v%d, 3, v%d\nv_lshl_add_u32 v%d, v%d, 16, v%d' % (vSA, t32, vSA, hi, vSA))
        e('s_lshl_b32 s26, s%d, 5\nv_add_u32 v105, s26, v%d\nv_mul_u32_u24 v105, 144, v105' % (sW, t32))
        e('v_mul_u32_u24 v106, 18432, v%d\nv_add_u32 v105, v105, v106\nv_add_u32 v%d, 0x%x, v105' % (hi, vTW, SCR))
        e('v_lshrrev_b32 v105, 1, v%d\nv_bfe_u32 v106, v%d, 2, 2\nv_lshl_add_u32 v105, v105, 3, v106\nv_mul_u32_u24 v105, 144, v105' % (q, vLANE))
        e('v_and_b32 v106, 1, v%d\nv_lshlrev_b32 v106, 5, v106\nv_and_b32 v107, 3, v%d\nv_lshl_add_u32 v106, v107, 3, v106\nv_add_u32 v105, v105, v106' % (q, vLANE))
        e('s_lshr_b32 s26, s%d, 1\ns_mul_i32 s26, s26, 18432\ns_add_u32 s26, s26, 0x%x' % (sW, SCR))
        e('s_and_b32 s27, s%d, 1\ns_mul_i32 s28, s27, 40\ns_add_u32 s28, s28, s26\ns_add_u32 s29, s26, 80' % sW)
        e('v_add_u32 v%d, s28, v105\nv_add_u32 v%d, s29, v105' % (vKA, vKB))
        e('s_lshl_b32 s26, s%d, 10' % sW)
        e('v_mul_u32_u24 v105, 24, v%d\nv_add_u32 v105, v105, v%d\nv_lshlrev_b32 v105, 4, v105\nv_add_u32 v105, s26, v105' % (hi, t32))
        e('v_cmp_gt_u32 vcc, 24, v%d\nv_cndmask_b32 v%d, v104, v105, vcc' % (t32, vPS1))
        e('v_lshlrev_b32 v105, 3, v%d\nv_add_u32 v105, s26, v105\nv_add_u32 v105, 768, v105' % t32)
        e('v_cmp_eq_u32 vcc, 0, v%d\nv_cndmask_b32 v%d, v104, v105, vcc' % (hi, vPS2))
        e('v_mov_b32 v106, 84\nv_cmp_le_u32 s[30:31], v106, v0\nv_cndmask_b32 v106, 0, 1, s[30:31]')
        e('v_mul_u32_u24 v107, 84, v106\nv_sub_u32 v107, v0, v107')
        e('v_mul_u32_u24 v108, 391, v107\nv_lshrrev_b32 v108, 13, v108')
        e('v_mul_u32_u24 v109, 21, v108\nv_sub_u32 v109, v107, v109')
        e('v_subrev_u32 v110, 168, v0\nv_mul_u32_u24 v111, 391, v110\nv_lshrrev_b32 v111, 13, v111\nv_and_b32 v111, 3, v111')
        e('v_mul_u32_u24 v96, 21, v111\nv_sub_u32 v96, v110, v96')
        e('v_cmp_gt_u32 vcc, 168, v0')
        e('v_lshrrev_b32 v97, 1, v108\nv_lshl_add_u32 v97, v106, 1, v97\nv_lshlrev_b32 v97, 10, v97')
        e('v_and_b32 v98, 1, v108\nv_mul_u32_u24 v98, 24, v98\nv_add_u32 v98, v98, v109\nv_lshl_add_u32 v97, v98, 4, v97')
        e('v_lshlrev_b32 v98, 10, v111\nv_lshl_add_u32 v98, v96, 3, v98\nv_add_u32 v98, 768, v98')
        e('v_cndmask_b32 v97, v98, v97, vcc')
        e('v_mov_b32 v99, 252\nv_cmp_gt_u32 s[30:31], v99, v0\nv_cndmask_b32 v%d, v104, v97, s[30:31]' % vPL)
        e('v_lshrrev_b32 v97, 1, v111\nv_cndmask_b32 v106, v97, v106, vcc')
        e('v_cndmask_b32 v108, 4, v108, vcc\nv_cndmask_b32 v109, v96, v109, vcc')
        e('v_lshrrev_b32 v110, 4, v109\nv_mul_u32_u24 v110, 5, v110\nv_add_u32 v110, v110, v108')
        e('v_and_b32 v109, 15, v109\nv_lshrrev_b32 v97, 2, v109\nv_lshlrev_b32 v97, 3, v97\nv_and_b32 v109, 3, v109\nv_add_u32 v97, v97, v109')
        e('v_mul_u32_u24 v109, 36, v106\nv_add_u32 v97, v97, v109')
        e('v_lshlrev_b32 v97, 4, v97\nv_lshl_add_u32 v97, v110, 10, v97\nv_add_u32 v97, 0x%x, v97' % SCR)
        e('v_and_b32 v105, 63, v0\nv_lshlrev_b32 v105, 4, v105\nv_add_u32 v105, 0x%x, v105' % (SCR + 12288))
        e('v_cndmask_b32 v%d, v105, v97, vcc' % vAW)
        e('v_and_b32 v98, 1, v111\nv_lshl_add_u32 v97, v98, 3, v97')
        e('v_cndmask_b32 v97, v97, v105, vcc\nv_cndmask_b32 v%d, v105, v97, s[30:31]' % vAW2)
        e('s_mul_i32 s26, s%d, 5' % sJ)
        e('v_bfe_u32 v105, v%d, 4, 1\nv_mul_u32_u24 v105, 20480, v105\nv_lshl_add_u32 v105, v%d, 4, v105' % (vLANE, t16))
        for (dst, expr) in ((vO0, 0), (vO1, 1), (vO2, None)):
            if expr is not None:
                e('v_lshl_add_u32 v106, v%d, 1, s26\nv_add_u32 v106, %d, v106' % (hi, expr))
            else:
                e('v_mov_b32 v106, s26\nv_add_u32 v106, 4, v106')
            e('v_lshrrev_b32 v107, 2, v106\nv_lshl_add_u32 v107, v107, 10, v105\nv_and_b32 v106, 3, v106\nv_lshl_add_u32 v%d, v106, 8, v107' % dst)
        e('v_lshl_add_u32 v%d, v%d, 3, v%d' % (vO2, hi, vO2))
        e('s_mul_i32 s26, s%d, 10' % sCS)
        e('s_and_b32 s27, s%d, 1\ns_lshl_b32 s27, s27, 8' % sTTK)
        e('v_lshlrev_b32 v105, 4, v%d' % t16)
        for n, (dx, dy) in enumerate(((vX0, vY0), (vX1, vY1), (vX2, vY2))):
            if n < 2: e('v_add_u32 v106, s26, v%d\nv_add_u32 v106, %d, v106' % (q, 4 * n))
            else: e('v_lshrrev_b32 v106, 1, v%d\nv_add_u32 v106, s26, v106\nv_add_u32 v106, 8, v106' % q)
            e('v_lshrrev_b32 v107, 2, v106\nv_lshl_add_u32 v107, v107, 10, v105\nv_and_b32 v108, 3, v106\nv_lshl_add_u32 v%d, v108, 8, v107' % dx)
            e('v_lshrrev_b32 v107, 1, v106\nv_lshl_add_u32 v107, v107, 10, v105\nv_and_b32 v108, 1, v106\nv_lshl_add_u32 v107, v108, 9, v107\nv_add_u32 v%d, s27, v107' % dy)
        e('v_and_b32 v106, 1, v%d\nv_lshl_add_u32 v%d, v106, 3, v%d\nv_lshl_add_u32 v%d, v106, 3, v%d' % (q, vX2, vX2, vY2, vY2))
        e('v_mul_u32_u24 v105, 1280, v%d\nv_lshl_add_u32 v%d, v%d, 4, v105\nv_lshl_add_u32 v%d, v%d, 3, v105\nv_add_u32 v%d, 128, v%d' % (t16, vR0, q, vR2, q, vR2, vR2))
        e('v_lshlrev_b32 v105, 3, v%d\nv_cmp_eq_u32 vcc, 0, v%d\nv_cndmask_b32 v%d, v104, v105, vcc\nv_lshl_add_u32 v%d, v%d, 15, v105' % (t16, q, vST, vSC, q))
        e('s_add_u32 s26, s%d, 0x%x\nv_add_u32 v%d, s26, v%d' % (sW5K, SCR, vEXW, vL16))
        e('s_xor_b32 s27, s%d, 2\ns_mul_i32 s27, s27, 5120\ns_add_u32 s27, s27, 0x%x\nv_add_u32 v%d, s27, v%d' % (sW, SCR, vEXR, vL16))
        e('s_waitcnt lgkmcnt(0)')
        for (d, lo, n) in ((4, 36, WS_BYTES), (8, 32, T * 1280), (12, 34, T * 1280)):
            e('s_mov_b32 s%d, s%d\ns_mov_b32 s%d, s%d\ns_mov_b32 s%d, 0x%x\ns_mov_b32 s%d, 0x20000' % (d, lo, d + 1, lo + 1, d + 2, n, d + 3))
        e('s_sub_u32 s%d, s%d, 1\ns_lshl_b32 s%d, s%d, 11\ns_sub_u32 s%d, s%d, s%d' % (sEX, sW, sEX, sEX, sEXD, sEX, sW5K))
        if self.o.get('tlb', 0):
            e('v_lshlrev_b32 v%d, 20, v%d' % (vT0, vLANE))
            e('buffer_load_dword v%d, v%d, s[4:7], 0 offen' % (vPOLL, vT0), count=False)
        self.side_dma(self.A_side[:1])
        for b in self.A_tail:
            for g in self.dma_ops(b):
                for x in g:
                    if isinstance(x, tuple): e(x[0], count=False)
                    else: e(x)
        self.side_dma(self.A_side[1:])
        e('s_mul_i32 s26, s%d, 20480\ns_mul_i32 s27, s%d, 160\ns_add_u32 s26, s26, s27' % (sTTK, sCS))
        e('buffer_load_dwordx4 v[%d:%d], v%d, s[8:11], s26 offen' % (XR, XR + 3, vR0), count=False)
        e('buffer_load_dwordx4 v[%d:%d], v%d, s[8:11], s26 offen offset:64' % (XR + 4, XR + 7, vR0), count=False)
        e('buffer_load_dwordx2 v[%d:%d], v%d, s[8:11], s26 offen' % (XR + 8, XR + 9, vR2), count=False)
    def rowstat_finish(self, S, Q, vRS, vVE, BM, tmp):
        L = []
        L.append('v_mul_f32 v%d, %s, v%d' % (S, f32bits(1.0 / 640), S))
        L.append('v_mul_f32 v%d, %s, v%d' % (Q, f32bits(1.0 / 640), Q))
        L.append('v_fma_f32 v%d, -v%d, v%d, v%d' % (Q, S, S, Q))
        L.append('v_max_f32 v%d, 0, v%d' % (Q, Q))
        L.append('v_add_f32 v%d, %s, v%d' % (vVE, f32bits(1e-5), Q))
        L.append('v_rsq_f32 v%d, v%d' % (vRS, vVE))
        L.append('v_cvt_pk_bf16_f32 v%d, -v%d, -v%d' % (tmp, S, S))
        L.append('v_and_b32 v%d, 0xffff0000, v%d' % (tmp, tmp))
        L.append('v_sub_f32 v%d, -v%d, v%d' % (tmp, S, tmp))
        L.append('v_cvt_pk_bf16_f32 v%d, -v%d, v%d' % (BM, S, tmp))
        for k in range(1, 4): L.append('v_mov_b32 v%d, v%d' % (BM + k, BM))
        return L
    def softmax_pair(self, X, vC, EP, EM, t):
        L = []
        mx, mn, ap, am, sp, sm = range(t, t + 6)
        L.append('v_max3_f32 v%d, v%d, v%d, v%d' % (mx, X[0], X[1], X[2]))
        L.append('v_min3_f32 v%d, v%d, v%d, v%d' % (mn, X[0], X[1], X[2]))
        for k in range(3, 19, 2):
            L.append('v_max3_f32 v%d, v%d, v%d, v%d' % (mx, mx, X[k], X[k + 1]))
            L.append('v_min3_f32 v%d, v%d, v%d, v%d' % (mn, mn, X[k], X[k + 1]))
        L.append('v_max_f32 v%d, v%d, v%d' % (mx, mx, X[19]))
        L.append('v_min_f32 v%d, v%d, v%d' % (mn, mn, X[19]))
        L.append('v_mul_f32 v%d, v%d, v%d' % (ap, vC, mx))
        L.append('v_mul_f32 v%d, v%d, v%d' % (am, vC, mn))
        for f in range(20):
            L.append('v_fma_f32 v%d, v%d, v%d, -v%d' % (EP + f, X[f], vC, ap))
            L.append('v_fma_f32 v%d, -v%d, v%d, v%d' % (EM + f, X[f], vC, am))
        for f in range(20):
            L.append('v_exp_f32 v%d, v%d' % (EP + f, EP + f))
            L.append('v_exp_f32 v%d, v%d' % (EM + f, EM + f))
        L.append('v_add_f32 v%d, v%d, v%d' % (sp, EP, EP + 1))
        L.append('v_add_f32 v%d, v%d, v%d' % (sm, EM, EM + 1))
        for f in range(2, 20):
            L.append('v_add_f32 v%d, v%d, v%d' % (sp, sp, EP + f))
            L.append('v_add_f32 v%d, v%d, v%d' % (sm, sm, EM + f))
        L.append('v_rcp_f32 v%d, v%d' % (sp, sp))
        L.append('v_rcp_f32 v%d, v%d' % (sm, sm))
        for f in range(20):
            L.append('v_mul_f32 v%d, v%d, v%d' % (EP + f, EP + f, sp))
            L.append('v_mul_f32 v%d, v%d, v%d' % (EM + f, EM + f, sm))
        return L
    def stamp(self, k):
        if not self.o.get('stamps'): return
        e = self.e
        e('s_memtime s[60:61]' if self.o.get('cyc') else 's_memrealtime s[60:61]')
        e('s_lshl_b32 s62, s%d, 5\ns_add_u32 s62, s62, %d' % (sL, k))
        e('s_waitcnt lgkmcnt(0)')
        e('v_mov_b32 v222, s60')
        e('v_cmp_eq_u32 vcc, s62, v%d' % vLANE)
        e('v_cndmask_b32 v223, v223, v222, vcc')
    def stamp_items(self, k):
        if self.o.get('stamps') != 2: return []
        sub = Main(None, self.o); sub.stamp(k)
        return sub.e.items
    def stamp_flush(self):
        if not self.o.get('stamps'): return
        e = self.e
        e('s_lshl_b32 s62, s2, 2\ns_add_u32 s62, s62, s%d\ns_lshl_b32 s62, s62, 8\ns_add_u32 s62, s62, 0x%x' % (sW, TSOFF))
        e('v_lshlrev_b32 v%d, 2, v%d' % (vT0, vLANE))
        e('buffer_store_dword v223, v%d, s[4:7], s62 offen' % vT0)
    def maybe_stop(self, name):
        if self.stop == name:
            self.e.wait_all(); self.e('s_endpgm'); return True
        return False
    def vm_stream(self, items):
        st = Stream()
        for it in sorted(items, key=lambda x: x[3] if len(x) > 3 else x[0]):
            st.add(it[2], it[1], it[0])
        return st
    def flat(self, groups):
        return [x for g in groups for x in g]
    def phase_a(self):
        e = self.e; o = self.o
        T0, T1, T2, T3 = ACC, ACC + 16, ACC + 32, ACC + 48
        ST, vRS, vVE, vC, BM, AM, EP, EM, P = 112, 120, 121, 122, 124, 128, 144, 164, 184
        self.stamp(0)
        L = self.lab('a_nopoll')
        e('s_cmp_eq_u32 s%d, 0' % sL); e('s_cbranch_scc1 %s' % L)
        self.cnt(sT0, CNT_XA, sRB)
        self.poll(sT0)
        e('s_barrier')
        e.label(L)
        self.stamp(1)
        e('s_lshl_b32 s%d, s%d, 2\ns_add_u32 s%d, s%d, s%d' % (sT0, sRB, sT0, sT0, sW))
        e('s_lshl_b32 s%d, s%d, 8\ns_add_u32 s%d, s%d, s%d\ns_add_u32 s%d, s%d, 0x%x' % (sT1, sT0, sT1, sT1, sLOFF, sT1, sT1, SA))
        e('s_mul_i32 s%d, s%d, 40960\ns_add_u32 s%d, s%d, s%d\ns_add_u32 s%d, s%d, 0x%x' % (sTW, sT0, sTW, sTW, sLOFF, sTW, sTW, XA))
        def tok(s):
            g = []
            if s % 4 == 0: g.append('s_add_u32 s%d, s%d, %d' % (sB0, sTW, s * 1024))
            g.append('buffer_load_dwordx4 a[%d:%d], v%d, s[4:7], s%d offen offset:%d%s' % (4 * s, 4 * s + 3, vL16, sB0, (s % 4) * 1024, self.sc))
            return g
        NPRE = o.get('a_npre', 14)
        if o.get('tt', 0): e.extend(self.touch_tok(XA))
        for s in range(NPRE): e.extend(tok(s))
        stld = []
        for k in range(4):
            if k: stld.append('s_add_u32 s%d, s%d, 16384' % (sT1, sT1))
            stld.append('buffer_load_dwordx2 v[%d:%d], v%d, s[4:7], s%d offen sc1' % (ST + 2 * k, ST + 2 * k + 1, vSA, sT1))
        e('s_lshl_b32 s%d, s%d, 12\ns_add_u32 s%d, s%d, 0x%x' % (sT2, sJ, sT2, sT2, WAM))
        amload = ['buffer_load_dwordx4 v[%d:%d], v%d, s[4:7], s%d offen offset:%d' % (AM + 4 * t, AM + 4 * t + 3, vL16, sT2, t * 1024) for t in range(4)]
        st = []
        st += ['v_add_f32 v%d, v%d, v%d' % (ST, ST, ST + 2), 'v_add_f32 v%d, v%d, v%d' % (ST + 1, ST + 1, ST + 3),
               'v_add_f32 v%d, v%d, v%d' % (ST + 4, ST + 4, ST + 6), 'v_add_f32 v%d, v%d, v%d' % (ST + 5, ST + 5, ST + 7),
               'v_add_f32 v%d, v%d, v%d' % (ST, ST, ST + 4), 'v_add_f32 v%d, v%d, v%d' % (ST + 1, ST + 1, ST + 5),
               'v_mov_b32 v%d, v%d' % (ST + 2, ST), 'v_mov_b32 v%d, v%d' % (ST + 3, ST + 1),
               'v_permlane32_swap_b32 v%d, v%d' % (ST, ST + 2), 'v_permlane32_swap_b32 v%d, v%d' % (ST + 1, ST + 3),
               'v_add_f32 v%d, v%d, v%d' % (ST, ST, ST + 2), 'v_add_f32 v%d, v%d, v%d' % (ST + 1, ST + 1, ST + 3)]
        st += self.rowstat_finish(ST, ST + 1, vRS, vVE, BM, ST + 2)
        st += ['v_mul_f32 v%d, %s, v%d' % (vC, f32bits(LOG2E), vRS)]
        LA = 5
        def frag_info(n):
            if n < 120: return n // 3, n % 3
            return n - 120, 3
        def read(n): return self.ring_read(AF + 4 * (n % 8), A0 + n // 20, (n % 20) * 1024)
        def mfma(n):
            s, tau = frag_info(n); acc = ACC + 16 * tau; a = AF + 4 * (n % 8)
            c = '0' if s == 0 else 'v[%d:%d]' % (acc, acc + 15)
            return 'v_mfma_f32_32x32x16_bf16 v[%d:%d], v[%d:%d], a[%d:%d], %s' % (acc, acc + 15, a, a + 3, 4 * s, 4 * s + 3, c)
        def mean(tau):
            acc = ACC + 16 * tau
            return 'v_mfma_f32_32x32x16_bf16 v[%d:%d], v[%d:%d], v[%d:%d], v[%d:%d]' % (acc, acc + 15, AM + 4 * tau, AM + 4 * tau + 3, BM, BM + 3, acc, acc + 15)
        ksm = self.softmax_pair([T0 + r for r in range(16)] + [T1 + r for r in range(4)], vC, EP, EM, ST)
        for d in range(10): ksm.append('v_cvt_pk_bf16_f32 v%d, v%d, v%d' % (P + d, EP + 2 * d, EP + 2 * d + 1))
        for d in range(10): ksm.append('v_cvt_pk_bf16_f32 v%d, v%d, v%d' % (P + 10 + d, EM + 2 * d, EM + 2 * d + 1))
        V = [T1 + r for r in range(4, 16)] + [T2 + r for r in range(8)]
        for f in range(20): ksm.append('v_mul_f32 v%d, v%d, v%d' % (V[f], V[f], vRS))
        for d in range(10): ksm.append('v_cvt_pk_bf16_f32 v%d, v%d, v%d' % (P + 20 + d, V[2 * d], V[2 * d + 1]))
        ksm += ['v_mov_b32 v%d, 0x3f80' % (P + 30), 'v_mov_b32 v%d, 0' % (P + 31)]
        anchors = []; pre = {}; fixed = {}; idx = {}
        for n in range(160):
            if n == 120:
                idx['mean'] = len(anchors)
                anchors += [mean(t) for t in range(3)]
            idx[n] = len(anchors)
            anchors.append(mfma(n))
            fixed[idx[n]] = ([read(n + LA)] if n + LA < 160 else []) + ([Need('v[%d:%d]' % (AF + 4 * ((n + 1) % 8), AF + 4 * ((n + 1) % 8) + 3))] if n + 1 < 160 else [])
        anchors.append(mean(3))
        for ep in range(1, 8):
            at = idx['mean'] if ep == 6 else idx[20 * ep]
            pre[at] = ([W_tag('blk%d' % (A0 + ep + 1))] if ep < 7 else []) + ['s_barrier']
            if self.o.get('fine') == 'a': pre[at] += self.stamp_items(19 + ep - 1)
        items = [(3 * s, 0, tok(s)) for s in range(NPRE, 40)]
        items.append((90, 0, amload))
        if o.get('tw', 0): items.append((30, 0, self.touch_w('B')))
        items.append((o.get('a_stdl', 64), 0, stld))
        for b in self.A_in: items.append((20 * (b - 1), 0, self.flat(self.dma_ops(b))))
        last_in = o.get('a_lastblk', 9)
        for b in range(6, last_in + 1):
            free = 20 * (b - 5) if b - 5 < 6 else idx['mean']
            items.append((20 * (b - 1) if b < 8 else 200 + b, free, self.flat(self.dma_ops(b))))
        vs = self.vm_stream(items)
        valu = Stream(st, o.get('a_stv', 90)).add(ksm, idx[120] + 1)
        if o.get('fine') == 'a0': e.extend(self.stamp_items(19))
        e.wait_tag('blk0'); e.wait_tag('blk1')
        if self.A_tail:
            Lw = self.lab('a_l0w')
            e('s_cmp_lg_u32 s%d, 0' % sL); e('s_cbranch_scc1 %s' % Lw)
            e('s_waitcnt vmcnt(0)', count=False)
            e.label(Lw)
        e('s_barrier')
        if o.get('fine') == 'a0':
            e.extend(self.stamp_items(20))
            for k, at in enumerate((1, 3, 6, 9, 12, 15, 18)):
                pre[at] = pre.get(at, []) + self.stamp_items(21 + k)
        for n in range(LA): e(read(n))
        stt = {}
        e.extend(schedule(anchors, 5, pre, fixed, [vs, valu], vm_gap=o.get('a_gap', 2), state=stt))
        if o.get('verbose'): print('a forced', stt.get('forced'), 'left', len(vs.q), len(valu.q))
        e.extend([y[0] for y in vs.q]); e.extend([y[0] for y in valu.q])
        self.a_late = list(range(last_in + 1, 13))
        self.stamp(2)
        for m in range(8):
            e('ds_write_b128 v%d, v[%d:%d] offset:%d' % (vTW, P + 4 * m, P + 4 * m + 3, 16 * m))
        e.wait_lgkm0()
        e('s_barrier')
        KD = T0
        def kvread(ks):
            b = AF + 8 * (ks % 4)
            return ['ds_read_b64_tr_b16 v[%d:%d], v%d offset:%d' % (b, b + 1, vKA, ks * 2304),
                    'ds_read_b64_tr_b16 v[%d:%d], v%d offset:%d' % (b + 2, b + 3, vKA, ks * 2304 + 576),
                    'ds_read_b64_tr_b16 v[%d:%d], v%d offset:%d' % (b + 4, b + 5, vKB, ks * 2304),
                    'ds_read_b64_tr_b16 v[%d:%d], v%d offset:%d' % (b + 6, b + 7, vKB, ks * 2304 + 576)]
        for ks in range(3): e.extend(kvread(ks))
        for ks in range(8):
            if ks + 3 < 8: e.extend(kvread(ks + 3))
            b = AF + 8 * (ks % 4)
            e('v_mfma_f32_32x32x16_bf16 v[%d:%d], v[%d:%d], v[%d:%d], %s' % (KD, KD + 15, b, b + 3, b + 4, b + 7, '0' if ks == 0 else 'v[%d:%d]' % (KD, KD + 15)))
        PK = EP
        for d in range(6): e('v_cvt_pk_bf16_f32 v%d, v%d, v%d' % (PK + d, KD + 2 * d, KD + 2 * d + 1))
        e('s_lshl_b32 s%d, s%d, 4\ns_add_u32 s%d, s%d, s%d\ns_lshl_b32 s%d, s%d, 12' % (sT0, sJ, sT0, sT0, sRB, sT0, sT0))
        e('s_add_u32 s%d, s%d, s%d\ns_add_u32 s%d, s%d, 0x%x' % (sT0, sT0, sLOFF, sT0, sT0, KVP))
        e('buffer_store_dwordx4 v[%d:%d], v%d, s[4:7], s%d offen sc1' % (PK, PK + 3, vPS1, sT0))
        e('buffer_store_dwordx2 v[%d:%d], v%d, s[4:7], s%d offen sc1' % (PK + 4, PK + 5, vPS2, sT0))
        self.cnt(sT1, CNT_KV, sJ)
        self.signal(sT1)
        self.stamp(3)
        if o.get('tw', 0): e.extend(self.touch_w('C'))
        self.side_dma(self.a_late)
        for r in range(4): e('v_mov_b32 v%d, 0' % (AF + r))
        e('v_lshlrev_b32 v%d, 4, v0\nv_add_u32 v%d, 0x%x, v%d' % (vT1, vT1, SCR, vT1))
        for m in range(3): e('ds_write_b128 v%d, v[%d:%d] offset:%d' % (vT1, AF, AF + 3, m * 4096))
        Q = P
        X = [T2 + r for r in range(8, 16)] + [T3 + r for r in range(12)]
        e.extend(self.softmax_pair(X, vC, EP, EM, ST))
        order = []
        for sign in (EP, EM):
            order += [(sign + 0), (sign + 2), (sign + 8), (sign + 10), (sign + 4), (sign + 6), (sign + 12), (sign + 14)]
        order += [EP + 16, EP + 18, EM + 16, EM + 18]
        for d, r in enumerate(order): e('v_cvt_pk_bf16_f32 v%d, v%d, v%d' % (Q + d, r, r + 1))
        e.wait_lgkm0()
        self.stamp(4)
        self.poll(sT1)
        e('s_barrier')
        self.stamp(5)
        if self.maybe_stop('a1'): return True
        LD, SUM, PKK = 112, 176, 204
        e('s_lshl_b32 s%d, s%d, 16\ns_add_u32 s%d, s%d, s%d\ns_add_u32 s%d, s%d, 0x%x' % (sT0, sJ, sT0, sT0, sLOFF, sT0, sT0, KVP))
        for p in range(16):
            if p: e('s_add_u32 s%d, s%d, 4096' % (sT0, sT0))
            e('buffer_load_dwordx4 v[%d:%d], v%d, s[4:7], s%d offen sc1' % (LD + 4 * p, LD + 4 * p + 3, vPL, sT0))
        e('v_mov_b32 v%d, 0x00003f80\nv_mov_b32 v%d, 0x3f800000' % (vT2, vT3))
        for k in range(8): e('v_mov_b32 v%d, 0' % (SUM + k))
        for p in range(16):
            for d in range(4):
                e('v_dot2c_f32_bf16 v%d, v%d, v%d' % (SUM + 2 * d, LD + 4 * p + d, vT2))
                e('v_dot2c_f32_bf16 v%d, v%d, v%d' % (SUM + 2 * d + 1, LD + 4 * p + d, vT3))
        for d in range(4): e('v_cvt_pk_bf16_f32 v%d, v%d, v%d' % (PKK + d, SUM + 2 * d, SUM + 2 * d + 1))
        e('ds_write_b128 v%d, v[%d:%d]' % (vAW, PKK, PKK + 3))
        e('ds_write_b64 v%d, v[%d:%d]' % (vAW2, PKK, PKK + 1))
        e.wait_lgkm0()
        e('s_barrier')
        e('v_add_u32 v%d, 0x%x, v%d' % (vT1, SCR, vL16))
        for n in range(8): e('ds_read_b128 v[%d:%d], v%d offset:%d' % (AF + 4 * n, AF + 4 * n + 3, vT1, n * 1024))
        G0, G1 = T0, T1
        for n in range(10):
            rho, s = n // 5, n % 5
            acc = G0 if rho == 0 else G1
            a = AF + 4 * (n % 8)
            e('v_mfma_f32_32x32x16_bf16 v[%d:%d], v[%d:%d], v[%d:%d], %s' % (acc, acc + 15, a, a + 3, Q + 4 * s, Q + 4 * s + 3, '0' if s == 0 else 'v[%d:%d]' % (acc, acc + 15)))
            if n < 2: e('ds_read_b128 v[%d:%d], v%d offset:%d' % (a, a + 3, vT1, (n + 8) * 1024))
        e('v_add_f32 v%d, %s, v%d' % (vT2, f32bits(1e-6), G1 + 4))
        e('v_rcp_f32 v%d, v%d' % (vT2, vT2))
        OP = 208
        src = [G0 + r for r in range(16)] + [G1 + r for r in range(4)]
        for r in src: e('v_mul_f32 v%d, v%d, v%d' % (r, r, vT2))
        for d in range(10): e('v_cvt_pk_bf16_f32 v%d, v%d, v%d' % (OP + d, src[2 * d], src[2 * d + 1]))
        e('s_lshl_b32 s%d, s%d, 3\ns_lshl_b32 s%d, s%d, 1\ns_add_u32 s%d, s%d, s%d\ns_mul_i32 s%d, s%d, 20480' % (sT0, sRB, sT1, sW, sT0, sT0, sT1, sT0, sT0))
        e('s_add_u32 s%d, s%d, s%d\ns_add_u32 s%d, s%d, 0x%x' % (sT0, sT0, sLOFF, sT0, sT0, O))
        e('buffer_store_dwordx4 v[%d:%d], v%d, s[4:7], s%d offen sc1' % (OP, OP + 3, vO0, sT0))
        e('buffer_store_dwordx4 v[%d:%d], v%d, s[4:7], s%d offen sc1' % (OP + 4, OP + 7, vO1, sT0))
        e('buffer_store_dwordx2 v[%d:%d], v%d, s[4:7], s%d offen sc1' % (OP + 8, OP + 9, vO2, sT0))
        self.stamp(6)
        self.cnt(sT1, CNT_O, sRB)
        self.signal(sT1)
        self.stamp(7)
        self.side_dma([C0])
        return self.maybe_stop('a')
    def gemm_bd(self, first_blk, nsteps, vs, pre_extra, valu):
        e = self.e
        LA = 5
        nf = nsteps * 5
        def read(n):
            i, tau = n // 5, n % 5
            return self.ring_read(AF + 4 * (n % 8), first_blk + i // 2, (i & 1) * 10240 + tau * 1024, kh=True)
        def mf(n, u):
            i, tau = n // 5, n % 5
            acc = ACC + (tau * 2 + u) * 4; a = AF + 4 * (n % 8); b = (2 * i + u) * 4
            c = '0' if i == 0 else 'v[%d:%d]' % (acc, acc + 3)
            return 'v_mfma_f32_16x16x32_bf16 v[%d:%d], v[%d:%d], a[%d:%d], %s' % (acc, acc + 3, a, a + 3, b, b + 3, c)
        anchors = []; pre = {}; fixed = {}
        for n in range(nf):
            anchors += [mf(n, 0), mf(n, 1)]
            if n + LA < nf: fixed[2 * n] = [read(n + LA)]
            if n + 1 < nf: fixed[2 * n + 1] = [Need('v[%d:%d]' % (AF + 4 * ((n + 1) % 8), AF + 4 * ((n + 1) % 8) + 3))]
        nep = nsteps // 2
        for ep in range(1, nep):
            pre[20 * ep] = list(pre_extra.get(ep, [])) + ([W_tag('blk%d' % (first_blk + ep + 1))] if ep + 1 < nep else []) + ['s_barrier']
            if self.o.get('fine') == 'd' and nsteps == 24: pre[20 * ep] += self.stamp_items(19 + ep - 1)
        for n in range(LA): e(read(n))
        stt = {}
        e.extend(schedule(anchors, 2, pre, fixed, [vs, valu], vm_gap=self.o.get('d_gap', 2), state=stt))
        if self.o.get('verbose'): print('bd forced', stt.get('forced'), 'left', len(vs.q), len(valu.q))
        e.extend([y[0] for y in vs.q]); e.extend([y[0] for y in valu.q])
    def bd_unpack(self):
        U = 112; L = []
        for d in range(10):
            L.append('v_lshlrev_b32 v%d, 16, v%d' % (U + 2 * d, XR + d))
            L.append('v_and_b32 v%d, 0xffff0000, v%d' % (U + 2 * d + 1, XR + d))
        return L
    def bd_epilogue(self, last_blk, final):
        e = self.e
        EX = 88
        for tau in range(5):
            a = ACC + (tau * 2 + 1) * 4
            e('ds_write_b128 v%d, v[%d:%d] offset:%d' % (vEXW, a, a + 3, tau * 1024))
        e.wait_lgkm0()
        e('s_barrier')
        for tau in range(5):
            e('ds_read_b128 v[%d:%d], v%d offset:%d' % (EX + 4 * tau, EX + 4 * tau + 3, vEXR, tau * 1024))
        U = 112
        for tau in range(5):
            a = ACC + (tau * 2) * 4
            for c in range(4):
                e('v_add_f32 v%d, v%d, v%d' % (U + 4 * tau + c, U + 4 * tau + c, a + c))
        for tau in range(5):
            for c in range(4):
                e('v_add_f32 v%d, v%d, v%d' % (U + 4 * tau + c, U + 4 * tau + c, EX + 4 * tau + c))
        for d in range(10): e('v_cvt_pk_bf16_f32 v%d, v%d, v%d' % (XR + d, U + 2 * d, U + 2 * d + 1))
        final()
    def bd_stats(self, base_off, next_layer):
        e = self.e
        S, Q = 136, 137
        e('v_mov_b32 v%d, 0\nv_mov_b32 v%d, 0' % (S, Q))
        for d in range(10):
            e('v_dot2c_f32_bf16 v%d, v%d, v%d' % (S, XR + d, vONES))
            e('v_dot2c_f32_bf16 v%d, v%d, v%d' % (Q, XR + d, XR + d))
        for sw in ('v_permlane16_swap_b32', 'v_permlane32_swap_b32'):
            e('v_mov_b32 v138, v%d\nv_mov_b32 v139, v%d' % (S, Q))
            e('%s v%d, v138\n%s v%d, v139' % (sw, S, sw, Q))
            e('v_add_f32 v%d, v%d, v138\nv_add_f32 v%d, v%d, v139' % (S, S, Q, Q))
        e('s_lshl_b32 s%d, s%d, 7\ns_lshl_b32 s%d, s%d, 14\ns_add_u32 s%d, s%d, s%d' % (sT2, sTTK, sT3, sCS, sT2, sT2, sT3))
        e('s_add_u32 s%d, s%d, s%d\ns_add_u32 s%d, s%d, 0x%x' % (sT2, sT2, sLOFF, sT2, sT2, base_off + (LSTRIDE if next_layer else 0)))
        if not self.o.get('nostats'): e('buffer_store_dwordx2 v[%d:%d], v%d, s[4:7], s%d offen sc1' % (S, Q, vST, sT2))
    def phase_b(self):
        e = self.e
        self.cnt(sT0, CNT_O, sRB)
        for (s, tt) in ((sB0, sTTK), (sB1, sTTS)):
            e('s_mul_i32 s%d, s%d, 20\ns_mul_i32 s%d, s%d, 10\ns_add_u32 s%d, s%d, s%d\ns_lshl_b32 s%d, s%d, 10' % (s, tt, sT1, sKH, s, s, sT1, s, s))
            e('s_add_u32 s%d, s%d, s%d\ns_add_u32 s%d, s%d, 0x%x' % (s, s, sLOFF, s, s, O))
        def tok(i, u):
            s = sB0 if u == 0 else sB1
            t = sC1 + u
            g = []
            if i % 4 == 0: g.append('s_add_u32 s%d, s%d, %d' % (t, s, i * 1024))
            g.append('buffer_load_dwordx4 a[%d:%d], v%d, s[4:7], s%d offen offset:%d%s' % ((2 * i + u) * 4, (2 * i + u) * 4 + 3, vL16, t, (i % 4) * 1024, self.sc))
            return g
        e.wait_tag('blk%d' % B0); e.wait_tag('blk%d' % (B0 + 1))
        self.poll(sT0)
        e('s_barrier')
        self.stamp(8)
        NPRE = self.o.get('b_npre', 6)
        for i in range(NPRE):
            for u in range(2): e.extend(tok(i, u))
        items = [(10 * i, 0, tok(i, 0) + tok(i, 1)) for i in range(NPRE, 10)]
        for k, b in enumerate(self.C_tail): items.append((5000 + b, 20 * (k + 1), self.flat(self.dma_ops(b))))
        vs = self.vm_stream(items)
        self.gemm_bd(B0, 10, vs, {}, Stream(self.bd_unpack(), 60))
        self.stamp(9)
        def final():
            e('s_mul_i32 s%d, s%d, 20480\ns_add_u32 s%d, s%d, s%d\ns_add_u32 s%d, s%d, 0x%x' % (sT0, sTTK, sT0, sT0, sLOFF, sT0, sT0, XC))
            e('buffer_store_dwordx4 v[%d:%d], v%d, s[4:7], s%d offen sc1' % (XR, XR + 3, vX0, sT0))
            e('buffer_store_dwordx4 v[%d:%d], v%d, s[4:7], s%d offen sc1' % (XR + 4, XR + 7, vX1, sT0))
            e('buffer_store_dwordx2 v[%d:%d], v%d, s[4:7], s%d offen sc1' % (XR + 8, XR + 9, vX2, sT0))
            self.bd_stats(SC, False)
            self.cnt(sT1, CNT_XC, sRB)
            self.signal(sT1)
            self.stamp(10)
            self.side_dma(self.C_side)
        self.bd_epilogue(B0 + 4, final)
        return self.maybe_stop('b')
    def gelu_ops(self, accset, u, c0, c1, vVE, HP, t):
        L = []
        G = [accset + (p * 2 + u) * 4 + c for p in range(2) for c in range(4)]
        U = [accset + ((2 + p) * 2 + u) * 4 + c for p in range(2) for c in range(4)]
        g = [t + i for i in range(8)]; w = [t + 8 + i for i in range(8)]
        for h in range(2):
            R = range(4 * h, 4 * h + 4)
            for i in R: L.append('v_mul_f32 v%d, v%d, v%d' % (w[i], G[i], G[i]))
            for i in R: L.append('v_fma_f32 v%d, v%d, v%d, v%d' % (w[i], w[i], c1, c0))
            for i in R: L.append('v_mul_f32 v%d, v%d, v%d' % (w[i], w[i], G[i]))
            for i in R:
                L.append('v_exp_f32 v%d, v%d' % (w[i], w[i]))
                L.append('v_mul_f32 v%d, v%d, v%d' % (g[i], G[i], U[i]))
            for i in R: L.append('v_fma_f32 v%d, v%d, v%d, v%d' % (w[i], w[i], vVE, vVE))
            for i in R: L.append('v_rcp_f32 v%d, v%d' % (w[i], w[i]))
            for i in R: L.append('v_mul_f32 v%d, v%d, v%d' % (g[i], g[i], w[i]))
            for d in (2 * h, 2 * h + 1): L.append('v_cvt_pk_bf16_f32 v%d, v%d, v%d' % (HP + d, g[2 * d], g[2 * d + 1]))
        return L
    def check_flag(self, vreg, cnt_sgpr, target=16):
        sub = Asm()
        X = self.lab('ck'); L = self.lab('ckl')
        sub('v_cmp_gt_u32 vcc, %d, v%d' % (target, vreg))
        sub('s_cbranch_vccz %s' % X)
        sub('s_cmp_lg_u32 s%d, 0' % sDEAD); sub('s_cbranch_scc1 %s' % X)
        sub('s_mov_b32 s%d, 0' % sPC)
        sub.label(L)
        sub('buffer_load_dword v%d, v%d, s[4:7], s%d offen sc1' % (vreg, vZERO, cnt_sgpr), count=False)
        sub('s_waitcnt vmcnt(0)', count=False)
        sub('v_cmp_gt_u32 vcc, %d, v%d' % (target, vreg))
        sub('s_cbranch_vccz %s' % X)
        sub('s_add_u32 s%d, s%d, 1' % (sPC, sPC)); sub('s_cmp_lt_u32 s%d, %d' % (sPC, SPIN_LIMIT))
        sub('s_cbranch_scc1 %s' % L)
        sub('s_mov_b32 s%d, 1' % sDEAD)
        sub.label(X)
        return sub.items
    def phase_c(self):
        e = self.e; o = self.o
        ST, RS, VE, BMs, AM, GT, HP = 112, (120, 121), (122, 123), (124, 132), 136, 152, (168, 172)
        GC0, GC1 = (176, 177), (178, 179)
        k0 = -2.0 * 0.7978845608028654 * LOG2E
        self.cnt(sT0, CNT_XC, sRB)
        e('s_lshl_b32 s%d, s%d, 3\ns_lshl_b32 s%d, s%d, 1\ns_add_u32 s%d, s%d, s%d' % (sT2, sRB, sT1, sW, sT2, sT2, sT1))
        e('s_lshl_b32 s%d, s%d, 7\ns_add_u32 s%d, s%d, s%d\ns_add_u32 s%d, s%d, 0x%x' % (sT1, sT2, sT1, sT1, sLOFF, sT1, sT1, SC))
        e('s_mul_i32 s%d, s%d, 20480\ns_add_u32 s%d, s%d, s%d\ns_add_u32 s%d, s%d, 0x%x' % (sB0, sT2, sB0, sB0, sLOFF, sB0, sB0, XC))
        e('s_add_u32 s%d, s%d, 20480' % (sB1, sB0))
        e('s_mul_i32 s%d, s%d, 48\ns_add_u32 s%d, s%d, s%d\ns_lshl_b32 s%d, s%d, 10' % (sTW, sT2, sTW, sTW, sJ, sTW, sTW))
        e('s_add_u32 s%d, s%d, s%d\ns_add_u32 s%d, s%d, 0x%x' % (sTW, sTW, sLOFF, sTW, sTW, HH))
        e('s_mul_i32 s%d, s%d, %d\ns_add_u32 s%d, s%d, 0x%x' % (sT4, sJ, 12 * KB, sT4, sT4, WCM))
        self.poll(sT0)
        e('s_barrier')
        self.stamp(11)
        def tok(s, u):
            sb = sB0 if u == 0 else sB1; t = sC1 + u
            g = []
            if s % 4 == 0: g.append('s_add_u32 s%d, s%d, %d' % (t, sb, s * 1024))
            g.append('buffer_load_dwordx4 a[%d:%d], v%d, s[4:7], s%d offen offset:%d%s' % ((2 * s + u) * 4, (2 * s + u) * 4 + 3, vL16, t, (s % 4) * 1024, self.sc))
            return g
        NPRE = o.get('c_npre', 8)
        if o.get('tt', 0): e.extend(self.touch_tok(XC))
        for s in range(NPRE):
            for u in range(2): e.extend(tok(s, u))
        stld = []
        for k in range(2):
            if k: stld.append('s_add_u32 s%d, s%d, 16384' % (sT1, sT1))
            for u in range(2):
                stld.append('buffer_load_dwordx2 v[%d:%d], v%d, s[4:7], s%d offen offset:%d sc1' % (ST + 4 * u + 2 * k, ST + 4 * u + 2 * k + 1, vSC, sT1, 128 * u))
        def amload(sg):
            pre = [] if sg == 0 else ['s_add_u32 s%d, s%d, 4096' % (sT4, sT4)]
            return pre + ['buffer_load_dwordx4 v[%d:%d], v%d, s[4:7], s%d offen offset:%d' % (AM + 4 * t, AM + 4 * t + 3, vL16, sT4, t * 1024) for t in range(4)]
        st = []
        for u in range(2):
            b = ST + 4 * u
            st += ['v_add_f32 v%d, v%d, v%d' % (b, b, b + 2), 'v_add_f32 v%d, v%d, v%d' % (b + 1, b + 1, b + 3)]
            for sw in ('v_permlane16_swap_b32', 'v_permlane32_swap_b32'):
                st += ['v_mov_b32 v%d, v%d' % (b + 2, b), 'v_mov_b32 v%d, v%d' % (b + 3, b + 1),
                       '%s v%d, v%d' % (sw, b, b + 2), '%s v%d, v%d' % (sw, b + 1, b + 3),
                       'v_add_f32 v%d, v%d, v%d' % (b, b, b + 2), 'v_add_f32 v%d, v%d, v%d' % (b + 1, b + 1, b + 3)]
            st += self.rowstat_finish(b, b + 1, RS[u], VE[u], BMs[u], b + 2)
            st += ['v_mul_f32 v%d, %s, v%d' % (GC0[u], f32bits(k0), RS[u]),
                   'v_mul_f32 v%d, v%d, v%d' % (GC1[u], RS[u], RS[u]),
                   'v_mul_f32 v%d, v%d, v%d' % (GC1[u], GC1[u], GC0[u]),
                   'v_mul_f32 v%d, %s, v%d' % (GC1[u], f32bits(0.044715), GC1[u])]
        LA = 5
        def read(n): return self.ring_read(AF + 4 * (n % 8), C0 + n // 20, (n % 20) * 1024)
        def mf(n, u):
            sg, r = n // 80, n % 80; s, tl = r // 4, r % 4
            acc = ACC + 32 * (sg & 1) + (tl * 2 + u) * 4; a = AF + 4 * (n % 8); b = (2 * s + u) * 4
            c = '0' if s == 0 else 'v[%d:%d]' % (acc, acc + 3)
            return 'v_mfma_f32_16x16x32_bf16 v[%d:%d], v[%d:%d], a[%d:%d], %s' % (acc, acc + 3, a, a + 3, b, b + 3, c)
        def mean(sg):
            L = []
            for tl in range(4):
                for u in range(2):
                    acc = ACC + 32 * (sg & 1) + (tl * 2 + u) * 4
                    L.append('v_mfma_f32_16x16x32_bf16 v[%d:%d], v[%d:%d], v[%d:%d], v[%d:%d]' % (acc, acc + 3, AM + 4 * tl, AM + 4 * tl + 3, BMs[u], BMs[u] + 3, acc, acc + 3))
            return L
        def gelu_store(sg):
            L = []
            for u in range(2):
                L += self.gelu_ops(ACC + 32 * (sg & 1), u, GC0[u], GC1[u], VE[u], HP[u], GT)
                L.append('s_add_u32 s%d, s%d, %d' % (sT5, sTW, u * 48 * 1024 + sg * 16 * 1024))
                L.append(('buffer_store_dwordx4 v[%d:%d], v%d, s[4:7], s%d offen sc1' % (HP[u], HP[u] + 3, vL16, sT5), 'h%d' % sg))
            return L
        def ix(n): return 2 * n + 8 * (n // 80)
        items = [(ix(4 * s), 0, tok(s, 0) + tok(s, 1)) for s in range(NPRE, 20)]
        for b in self.C_in: items.append((ix(20 * (b - C0 - 1)) - (8 if (b - C0 - 1) % 4 == 0 and b > C0 + 1 else 0), 0, self.flat(self.dma_ops(b))))
        last_in = o.get('c_lastblk', D0 + 4)
        for b in range(C0 + 6, last_in + 1):
            free = 20 * (b - C0 - 5)
            epn = b - C0 - 1
            dl = ix(20 * epn) - (8 if epn % 4 == 0 else 0) if b < D0 else 10000 + b
            items.append((dl, ix(free) - (8 if free % 80 == 0 else 0), self.flat(self.dma_ops(b))))
        items.append((ix(60), 0, amload(0)))
        if o.get('tw', 0): items.append((ix(90), ix(84), self.touch_w('D')))
        items.append((ix(o.get('c_stdl', 44)), 0, stld))
        items.append((ix(130), ix(80), amload(1)))
        items.append((ix(210), ix(160), amload(2)))
        self.cnt(sT0, CNT_H, sRB, mul=384)
        items.append((ix(239), ix(o.get('c_fl', 226)), ['buffer_load_dword v%d, v%d, s[4:7], s%d offen sc1' % (vPOLL, vZERO, sT0)], 20000))
        vs = self.vm_stream(items)
        e.wait_tag('blk%d' % C0); e.wait_tag('blk%d' % (C0 + 1))
        e('s_barrier')
        for n in range(LA): e(read(n))
        pos = 0; cstate = {}
        for sg in range(3):
            anchors = []; pre = {}; fixed = {}
            if sg > 0: anchors += mean(sg - 1)
            for n in range(80 * sg, 80 * sg + 80):
                assert pos + len(anchors) == ix(n)
                anchors += [mf(n, 0), mf(n, 1)]
                if n + LA < 240: fixed[ix(n)] = [read(n + LA)]
                if n + 1 < 240: fixed[ix(n) + 1] = [Need('v[%d:%d]' % (AF + 4 * ((n + 1) % 8), AF + 4 * ((n + 1) % 8) + 3))]
            for ep in range(4 * sg, 4 * sg + 4):
                if ep == 0: continue
                at = ix(20 * ep) - (8 if ep % 4 == 0 else 0)
                p = [W_tag('blk%d' % (C0 + ep + 1))] if ep < 11 else []
                if ep == o.get('h0ep', 10): p.append(W_tag('h0'))
                p.append('s_barrier')
                if self.o.get('fine') == 'c': p += self.stamp_items(19 + ep - 1)
                if ep == o.get('h0ep', 10):
                    sub = Main(None, self.o); sub.nlab = self.nlab + 1000
                    sub.signal_only(sT0)
                    p += sub.e.items
                pre[at] = p
            valu = Stream(st, ix(o.get('c_stv', 56))) if sg == 0 else Stream(gelu_store(sg - 1), pos + 10)
            e.extend(schedule(anchors, 2, pre, fixed, [vs, valu], start=pos, vm_gap=(o.get('c_gap', 4) if sg == 0 else o.get('c_gap2', 4)), state=cstate))
            e.extend([y[0] for y in valu.q])
            pos += len(anchors)
        if self.o.get('verbose'): print('c forced', cstate.get('forced'), 'left', len(vs.q))
        e.extend([y[0] for y in vs.q])
        self.stamp(12)
        e.extend(self.check_flag(vPOLL, sT0))
        self.d_bases()
        tail = mean(2) + gelu_store(2)
        toks = [self.d_tok(i, u) for i in range(8) for u in range(2)]
        step = max(1, (len(tail) - 8) // (len(toks) + 1))
        k = 0
        for n, x in enumerate(tail):
            if k < len(toks) and n % step == 0: e.extend(toks[k]); k += 1
            e.extend([x])
        for g in toks[k:]: e.extend(g)
        self.cnt(sT1, CNT_H, sRB, mul=384, add=256)
        self.signal(sT1)
        self.stamp(13)
        self.c_last = last_in
        return self.maybe_stop('c')
    def d_bases(self):
        e = self.e
        for (s, tt) in ((sB0, sTTK), (sB1, sTTS)):
            e('s_mul_i32 s%d, s%d, 48\ns_add_u32 s%d, s%d, s%d\ns_lshl_b32 s%d, s%d, 10' % (s, tt, s, s, sKH, s, s))
            e('s_add_u32 s%d, s%d, s%d\ns_add_u32 s%d, s%d, 0x%x' % (s, s, sLOFF, s, s, HH))
    def d_tok(self, i, u):
        sg, jj = i // 8, i % 8
        s = sB0 if u == 0 else sB1; t = sC1 + u
        g = []
        if jj % 2 == 0: g.append('s_add_u32 s%d, s%d, %d' % (t, s, sg * 16384 + jj * 2048))
        g.append('buffer_load_dwordx4 a[%d:%d], v%d, s[4:7], s%d offen offset:%d%s' % ((2 * i + u) * 4, (2 * i + u) * 4 + 3, vL16, t, (jj % 2) * 2048, self.sc))
        return g
    def phase_d(self):
        e = self.e; o = self.o
        tok = self.d_tok
        self.stamp(14)
        CK = o.get('d_ck', 3)
        items = []
        for b in range(self.c_last + 1, D0 + 6): items.append((20 * (b - D0 - 1), 0, self.flat(self.dma_ops(b)), b - 200))
        for b in range(D0 + 6, NBLK):
            early = 20 * (b - D0 - 5)
            key = (b - 200) if early < 20 * CK else 20 * (b - D0 - 1)
            items.append((20 * (b - D0 - 1), early, self.flat(self.dma_ops(b)), key))
        items.append((20 * CK - 1, 20 * CK - o.get('d_fl', 14), ['buffer_load_dword v%d, v%d, s[4:7], s%d offen sc1' % (vPOLL, vZERO, sT1)], -1))
        items += [(10 * i, 20 * CK, tok(i, 0) + tok(i, 1)) for i in range(8, 24)]
        if o.get('tw', 0): items.append((30, 0, self.touch_w('A'), -500))
        for b in self.A_tail: items.append((5000 + b, 20 * (6 + b), self.flat(self.dma_ops(b))))
        chk = [W_vreg(vPOLL)] + self.check_flag(vPOLL, sT1)
        self.gemm_bd(D0, 24, self.vm_stream(items), {CK: chk}, Stream(self.bd_unpack(), 200))
        self.stamp(17)
        def final():
            L = self.lab('d_last'); X = self.lab('d_done')
            e('s_cmp_lg_u32 s%d, 0' % sL); e('s_cbranch_scc1 %s' % L)
            e('s_lshr_b32 s%d, s%d, 1\ns_mul_i32 s%d, s%d, 40960\ns_add_u32 s%d, s%d, s%d\ns_add_u32 s%d, s%d, 0x%x' % (sT0, sTTK, sT0, sT0, sT0, sT0, sLOFF, sT0, sT0, XA + LSTRIDE))
            e('buffer_store_dwordx4 v[%d:%d], v%d, s[4:7], s%d offen sc1' % (XR, XR + 3, vY0, sT0))
            e('buffer_store_dwordx4 v[%d:%d], v%d, s[4:7], s%d offen sc1' % (XR + 4, XR + 7, vY1, sT0))
            e('buffer_store_dwordx2 v[%d:%d], v%d, s[4:7], s%d offen sc1' % (XR + 8, XR + 9, vY2, sT0))
            self.bd_stats(SA, True)
            self.cnt(sT1, CNT_XA, sRB, next_layer=True)
            self.signal(sT1)
            self.stamp(18)
            self.side_dma(self.A_side)
            e('s_branch %s' % X)
            e.label(L)
            e('s_mul_i32 s%d, s%d, 20480\ns_mul_i32 s%d, s%d, 160\ns_add_u32 s%d, s%d, s%d' % (sT0, sTTK, sT1, sCS, sT0, sT0, sT1))
            e('buffer_store_dwordx4 v[%d:%d], v%d, s[12:15], s%d offen' % (XR, XR + 3, vR0, sT0))
            e('buffer_store_dwordx4 v[%d:%d], v%d, s[12:15], s%d offen offset:64' % (XR + 4, XR + 7, vR0, sT0))
            e('buffer_store_dwordx2 v[%d:%d], v%d, s[12:15], s%d offen' % (XR + 8, XR + 9, vR2, sT0))
            self.stamp(18)
            self.stamp_flush()
            e('s_endpgm')
            e.label(X)
        self.bd_epilogue(D0 + 11, final)
        return self.maybe_stop('d')
    def build(self):
        e = self.e
        self.prologue()
        e.label('M_LAYER')
        done = self.phase_a() or self.phase_b() or self.phase_c() or self.phase_d()
        if not done:
            e('s_add_u32 s%d, s%d, 1\ns_add_u32 s%d, s%d, 0x%x' % (sL, sL, sLOFF, sLOFF, LSTRIDE))
            e('s_branch M_LAYER')
        e.label('M_END')
        e('s_endpgm')
        e.label('M_CODE_END')
        return e
```

```python
from asmlib import *
from layout import *

P0_GRID = 513
P0_LDS = 28 * 1024
NAME = 'prep_kernel'

def srd(e, dst, lo, nbytes):
    e('s_mov_b32 s%d, s%d' % (dst, lo))
    e('s_mov_b32 s%d, s%d' % (dst + 1, lo + 1))
    e('s_mov_b32 s%d, 0x%x' % (dst + 2, nbytes))
    e('s_mov_b32 s%d, 0x20000' % (dst + 3))

S_WS, S_SRC, S_SRC2, S_W = 4, 8, 12, 16

STAMPS = False
def stamp(e, k):
    if not STAMPS: return
    e('s_memrealtime s[70:71]\ns_waitcnt lgkmcnt(0)\nv_mov_b32 v%d, s70' % (120 + k))
def stamp_flush(e):
    if not STAMPS: return
    stamp(e, 3)
    e('s_lshl_b32 s72, s2, 2\ns_add_u32 s72, s72, s16\ns_lshl_b32 s72, s72, 4\ns_add_u32 s72, s72, 0x4100000')
    e('v_mov_b32 v5, 0')
    e('buffer_store_dwordx4 v[120:123], v5, s[4:7], s72 offen' + SC)

SC = ''
CODEPF = 1
ONLYCRIT = 0
MAIN_LABEL = 'hedgehog_main_kernel'
def gen_p0(stamps=False, sc='', codepf=1, onlycrit=0):
    global STAMPS, SC, CODEPF, ONLYCRIT
    STAMPS = stamps; SC = sc; CODEPF = codepf; ONLYCRIT = onlycrit
    e = Asm()
    e.directive('.text\n.globl %s\n.p2align 8\n.type %s,@function' % (NAME, NAME))
    e.label(NAME)
    e('s_cmp_ge_u32 s2, %d' % P0_GRID)
    e('s_cbranch_scc1 P0_END')
    stamp(e, 0)
    e('s_load_dwordx8 s[40:47], s[0:1], 0')
    e('s_load_dwordx4 s[48:51], s[0:1], 40')
    e('s_load_dwordx2 s[52:53], s[0:1], 56')
    e('s_load_dwordx2 s[54:55], s[0:1], 80')
    e('v_lshrrev_b32 v1, 6, v0')
    e('v_and_b32 v2, 63, v0')
    e('v_readfirstlane_b32 s16, v1')
    e('v_mov_b32 v3, 0x3f803f80')
    e('v_lshlrev_b32 v4, 4, v2')
    e('s_waitcnt lgkmcnt(0)')
    srd(e, S_WS, 54, WS_BYTES)
    stamp(e, 1)
    e('s_cmp_lt_u32 s2, 96');  e('s_cbranch_scc1 P0_WA')
    if ONLYCRIT:
        e('s_cmp_lt_u32 s2, 448'); e('s_cbranch_scc1 P0_END')
    e('s_cmp_lt_u32 s2, 288'); e('s_cbranch_scc1 P0_WC')
    e('s_cmp_lt_u32 s2, 416'); e('s_cbranch_scc1 P0_WD')
    e('s_cmp_lt_u32 s2, 448'); e('s_cbranch_scc1 P0_WB')
    e('s_cmp_lt_u32 s2, 512'); e('s_cbranch_scc1 P0_X')
    e('v_lshlrev_b32 v5, 4, v0')
    for r in range(8, 12): e('v_mov_b32 v%d, 0' % r)
    for l in range(1):
        for n in range(8):
            e('s_mov_b32 s20, 0x%x' % (n * 4096))
            e('buffer_store_dwordx4 v[8:11], v5, s[4:7], s20 offen' + SC)
    e('s_endpgm')
    gen_wa(e); gen_wc(e); gen_wd(e); gen_wb(e); gen_x(e)
    e.label('P0_END')
    e('s_endpgm')
    return e

def hilo_store(e, vsum, vtmp, voff, soff):
    e('v_cvt_pk_bf16_f32 v%d, v%d, v%d' % (vtmp, vsum, vsum))
    e('v_and_b32 v%d, 0xffff0000, v%d' % (vtmp + 2, vtmp))
    e('v_sub_f32 v%d, v%d, v%d' % (vtmp + 2, vsum, vtmp + 2))
    e('v_cvt_pk_bf16_f32 v%d, v%d, v%d' % (vtmp + 1, vtmp + 2, vtmp + 2))
    e(('buffer_store_dwordx2 v[%d:%d], v%d, s[4:7], %s offen' % (vtmp, vtmp + 1, voff, soff)) + SC)

def gen_wa(e):
    e.label('P0_WA')
    e.reset_state()
    srd(e, S_SRC, 42, 640 * 3840)
    srd(e, S_SRC2, 44, 32 * 800)
    e('s_lshl_b32 s20, s2, 2\ns_add_u32 s20, s20, s16')
    e('s_mul_i32 s21, s20, 2731\ns_lshr_b32 s21, s21, 16')
    e('s_mul_i32 s22, s21, 24\ns_sub_u32 s22, s20, s22')
    e('s_mul_i32 s23, s22, 43\ns_lshr_b32 s23, s23, 8')
    e('s_mul_i32 s24, s23, 6\ns_sub_u32 s24, s22, s24')
    e('s_lshr_b32 s25, s24, 1\ns_and_b32 s26, s24, 1')
    e('s_lshl_b32 s27, s21, 1\ns_add_u32 s27, s27, s26')
    e('s_add_u32 s28, s25, 1\ns_mul_i32 s28, s28, 640')
    e('s_cmp_eq_u32 s25, 2\ns_cselect_b32 s28, 0, s28')
    e('s_mul_i32 s29, s27, 20\ns_add_u32 s28, s28, s29\ns_lshl_b32 s28, s28, 1')
    e('s_mul_i32 s29, s23, %d\ns_add_u32 s28, s28, s29' % (160 * 3840))
    e('v_and_b32 v5, 31, v2\nv_lshrrev_b32 v6, 5, v2')
    e('v_and_b32 v7, 0x13, v5')
    e('v_bfe_u32 v8, v5, 2, 1\nv_lshl_add_u32 v7, v8, 3, v7')
    e('v_bfe_u32 v8, v5, 3, 1\nv_lshl_add_u32 v7, v8, 2, v7')
    e('v_mul_u32_u24 v7, 3840, v7\nv_lshl_add_u32 v7, v6, 4, v7')
    for kt in range(5):
        e('s_add_u32 s30, s28, %d' % (kt * 32 * 3840))
        for m in range(2):
            r = 32 + 8 * kt + 4 * m
            e('buffer_load_dwordx4 v[%d:%d], v7, s[8:11], s30 offen offset:%d' % (r, r + 3, 32 * m))
    e('s_cmp_eq_u32 s25, 1\ns_cbranch_scc1 P0_WA_ID')
    e('v_lshlrev_b32 v8, 1, v5')
    e('v_mul_u32_u24 v9, 320, v6\nv_add_u32 v8, v8, v9')
    e('s_mul_i32 s30, s27, 800')
    e('v_mov_b32 v10, 0x%x' % OOB)
    e('v_cmp_gt_u32 vcc, 20, v5\nv_cndmask_b32 v8, v10, v8, vcc')
    e('v_cmp_eq_u32 vcc, 0, v6\nv_cndmask_b32 v9, v10, v8, vcc')
    for el in range(8):
        e('buffer_load_ushort v%d, v8, s[12:15], s30 offen offset:%d' % (80 + el, el * 40))
    for el in range(4):
        e('buffer_load_ushort v%d, v9, s[12:15], s30 offen offset:%d' % (88 + el, (16 + el) * 40))
    for d in range(4): e('v_lshl_or_b32 v%d, v%d, 16, v%d' % (72 + d, 81 + 2 * d, 80 + 2 * d))
    for d in range(2): e('v_lshl_or_b32 v%d, v%d, 16, v%d' % (76 + d, 89 + 2 * d, 88 + 2 * d))
    e('v_mov_b32 v78, 0\nv_mov_b32 v79, 0')
    e.wait_all()
    e('s_branch P0_WA_GO')
    e.label('P0_WA_ID')
    e('v_lshlrev_b32 v8, 3, v6\nv_sub_u32 v8, v5, v8')
    e('v_mov_b32 v10, 0x3f80\nv_mov_b32 v11, 0x3f800000\nv_mov_b32 v12, 0')
    for m in range(2):
        if m == 1: e('v_subrev_u32 v8, 16, v8')
        for d in range(4):
            e('v_cmp_eq_u32 vcc, %d, v8' % (2 * d))
            e('v_cndmask_b32 v%d, v12, v10, vcc' % (72 + 4 * m + d))
            e('v_cmp_eq_u32 vcc, %d, v8' % (2 * d + 1))
            e('v_cndmask_b32 v%d, v%d, v11, vcc' % (72 + 4 * m + d, 72 + 4 * m + d))
    e.wait_all()
    e.label('P0_WA_GO')
    e.reset_state()
    stamp(e, 2)
    e('s_mul_i32 s30, s25, 20\nv_add_u32 v8, s30, v5')
    e('v_lshrrev_b32 v9, 4, v8\nv_and_b32 v10, 15, v8')
    e('v_lshrrev_b32 v11, 2, v10\nv_lshlrev_b32 v11, 3, v11')
    e('v_and_b32 v10, 3, v10\nv_add_u32 v11, v11, v10')
    e('s_lshl_b32 s31, s26, 2\nv_add_u32 v11, s31, v11')
    e('v_lshl_add_u32 v12, v6, 5, v11\nv_lshlrev_b32 v12, 4, v12')
    e('v_cmp_gt_u32 vcc, 3, v9')
    e('v_mov_b32 v13, 120\nv_cndmask_b32 v13, v13, v9, vcc')
    e('v_mov_b32 v14, 1024\nv_mov_b32 v15, 3072\nv_cndmask_b32 v14, v14, v15, vcc')
    e('v_lshl_add_u32 v12, v13, 10, v12')
    e('s_mul_i32 s31, s23, 10\nv_mul_lo_u32 v15, v14, s31\nv_add_u32 v12, v12, v15')
    e('s_cmp_eq_u32 s25, 2\ns_cselect_b32 s32, 24, 20')
    e('v_cmp_gt_u32 vcc, s32, v5\nv_mov_b32 v16, 0x%x' % OOB)
    e('s_mov_b64 s[34:35], vcc', count=False) if False else None
    e('v_cndmask_b32 v12, v16, v12, vcc')
    e('v_cndmask_b32 v14, 0, v14, vcc') if False else None
    e('v_lshlrev_b32 v17, 10, v9\nv_lshl_add_u32 v17, v11, 4, v17')
    e('v_cndmask_b32 v17, v16, v17, vcc')
    e('v_cmp_eq_u32 vcc, 0, v6\nv_cndmask_b32 v17, v16, v17, vcc')
    e('s_mul_i32 s33, s21, %d\ns_add_u32 s33, s33, 0x%x' % (160 * KB, WA))
    e('v_mov_b32 v18, 0')
    for kt in range(5):
        a0 = 32 + 8 * kt
        e('v_mfma_f32_32x32x16_bf16 v[96:111], v[%d:%d], v[72:75], 0' % (a0, a0 + 3))
        e('v_mfma_f32_32x32x16_bf16 v[96:111], v[%d:%d], v[76:79], v[96:111]' % (a0 + 4, a0 + 7))
        for d in range(8):
            e('v_cvt_pk_bf16_f32 v%d, v%d, v%d' % (112 + d, 96 + 2 * d, 97 + 2 * d))
        for d in range(8):
            e('v_dot2c_f32_bf16 v18, v%d, v3' % (112 + d))
        e('buffer_store_dwordx4 v[112:115], v12, s[4:7], s33 offen' + SC)
        e('v_add_u32 v19, v12, v14')
        e('buffer_store_dwordx4 v[116:119], v19, s[4:7], s33 offen' + SC)
        e('v_add_u32 v12, v19, v14')
    e('v_mov_b32 v19, v18')
    e('v_permlane32_swap_b32 v18, v19')
    e('v_add_f32 v18, v18, v19')
    e('s_lshl_b32 s34, s21, 12\ns_add_u32 s34, s34, 0x%x' % WAM)
    e('s_lshr_b32 s35, s23, 1\ns_lshl_b32 s35, s35, 9\ns_add_u32 s34, s34, s35')
    e('s_and_b32 s35, s23, 1\ns_lshl_b32 s35, s35, 3\ns_add_u32 s34, s34, s35')
    hilo_store(e, 18, 20, 17, 's34')
    stamp_flush(e)
    e('s_endpgm')

def tr_lane(e):
    e('v_lshrrev_b32 v5, 4, v2\nv_bfe_u32 v6, v2, 2, 2\nv_and_b32 v7, 3, v2')

def gen_wc(e):
    e.label('P0_WC')
    e.reset_state()
    e('s_sub_u32 s20, s2, 96')
    e('s_cmp_ge_u32 s20, 96\ns_cselect_b32 s21, 1, 0')
    e('s_cselect_b32 s8, s50, s48\ns_cselect_b32 s9, s51, s49')
    e('s_mov_b32 s10, 0x%x\ns_mov_b32 s11, 0x20000' % (640 * 3072))
    e('s_mul_i32 s22, s21, 96\ns_sub_u32 s22, s20, s22')
    e('s_lshr_b32 s23, s22, 2\ns_and_b32 s24, s22, 3')
    e('v_lshrrev_b32 v8, 3, v2\nv_mul_u32_u24 v8, 3072, v8')
    e('v_and_b32 v9, 7, v2\nv_lshl_add_u32 v8, v9, 4, v8')
    e('s_mul_i32 s25, s24, %d\ns_lshl_b32 s26, s23, 7\ns_add_u32 s25, s25, s26' % (160 * 3072))
    e('s_mul_i32 s26, s16, %d\ns_add_u32 s25, s25, s26' % (40 * 3072))
    e('s_mul_i32 s27, s16, 5120')
    for n in range(5):
        e('s_add_u32 m0, s27, %d' % (n * 1024))
        e('s_add_u32 s28, s25, %d' % (n * 8 * 3072))
        e('buffer_load_dwordx4 v8, s[8:11], s28 offen lds')
    tr_lane(e)
    e('v_lshl_add_u32 v9, v5, 3, v6\nv_lshlrev_b32 v9, 7, v9')
    e('v_lshl_add_u32 v9, v7, 3, v9')
    e('s_lshl_b32 s26, s16, 5\nv_add_u32 v9, s26, v9')
    e('s_lshl_b32 s26, s23, 2\ns_add_u32 s26, s26, s16')
    e('s_mul_i32 s27, s26, 171\ns_lshr_b32 s27, s27, 10')
    e('s_mul_i32 s28, s27, 6\ns_sub_u32 s28, s26, s28\ns_lshr_b32 s28, s28, 1')
    e('s_and_b32 s29, s26, 1\ns_lshl_b32 s30, s21, 1\ns_add_u32 s29, s29, s30')
    e('s_mul_i32 s30, s27, 240\ns_mul_i32 s31, s28, 80\ns_add_u32 s30, s30, s31')
    e('s_mul_i32 s31, s24, 20\ns_add_u32 s30, s30, s31\ns_add_u32 s30, s30, s29')
    e('s_lshl_b32 s30, s30, 10\ns_add_u32 s30, s30, 0x%x' % WC)
    e('v_mov_b32 v18, 0')
    e.wait_all()
    e('s_barrier')
    stamp(e, 2)
    for s in range(5):
        r = 32 + 4 * s
        e('ds_read_b64_tr_b16 v[%d:%d], v9 offset:%d' % (r, r + 1, s * 4096))
        e('ds_read_b64_tr_b16 v[%d:%d], v9 offset:%d' % (r + 2, r + 3, s * 4096 + 512))
    for s in range(5):
        r = 32 + 4 * s
        e('s_add_u32 s31, s30, %d' % (s * 4096))
        e(('buffer_store_dwordx4 v[%d:%d], v4, s[4:7], s31 offen' % (r, r + 3)) + SC)
        for d in range(4): e('v_dot2c_f32_bf16 v18, v%d, v3' % (r + d))
    e('v_mov_b32 v19, v18\nv_permlane16_swap_b32 v18, v19\nv_add_f32 v18, v18, v19')
    e('v_mov_b32 v19, v18\nv_permlane32_swap_b32 v18, v19\nv_add_f32 v18, v18, v19')
    e('v_and_b32 v10, 15, v2\nv_lshlrev_b32 v10, 4, v10')
    e('v_lshl_add_u32 v10, v5, 9, v10')
    e('v_mov_b32 v11, 0x%x' % OOB)
    e('v_cmp_gt_u32 vcc, 2, v5\nv_cndmask_b32 v10, v11, v10, vcc')
    e('v_cmp_eq_u32 vcc, 0, v5\nv_cndmask_b32 v18, 0, v18, vcc')
    e('s_mul_i32 s31, s27, 12\ns_lshl_b32 s32, s28, 2\ns_add_u32 s31, s31, s32\ns_add_u32 s31, s31, s29')
    e('s_lshl_b32 s31, s31, 10\ns_add_u32 s31, s31, 0x%x' % WCM)
    e('s_lshr_b32 s32, s24, 1\ns_lshl_b32 s32, s32, 8\ns_add_u32 s31, s31, s32')
    e('s_and_b32 s32, s24, 1\ns_lshl_b32 s32, s32, 3\ns_add_u32 s31, s31, s32')
    hilo_store(e, 18, 20, 10, 's31')
    stamp_flush(e)
    e('s_endpgm')

def dma160_voff(e, dst):
    e('v_mul_u32_u24 v8, 205, v2\nv_lshrrev_b32 v8, 11, v8')
    e('v_mul_u32_u24 v9, 10, v8\nv_sub_u32 v9, v2, v9')
    e('v_min_u32 v8, 5, v8')
    e('v_mul_u32_u24 v8, 1280, v8\nv_lshl_add_u32 v%d, v9, 4, v8' % dst)

def row_to_lds(e, vrow, vdst, vt):
    e('v_mul_u32_u24 v%d, 171, v%d\nv_lshrrev_b32 v%d, 10, v%d' % (vt, vrow, vt, vt))
    e('v_mul_u32_u24 v%d, 6, v%d\nv_sub_u32 v%d, v%d, v%d' % (vdst, vt, vdst, vrow, vdst))
    e('v_mul_u32_u24 v%d, 160, v%d\nv_lshl_add_u32 v%d, v%d, 10, v%d' % (vdst, vdst, vdst, vt, vdst))

def gen_wd(e):
    e.label('P0_WD')
    e.reset_state()
    srd(e, S_SRC, 52, 1536 * 1280)
    e('s_sub_u32 s20, s2, 288\ns_lshr_b32 s21, s20, 4\ns_and_b32 s22, s20, 15')
    dma160_voff(e, 10)
    e('s_mul_i32 s23, s22, %d\ns_mul_i32 s24, s21, 160\ns_add_u32 s23, s23, s24' % (96 * 1280))
    e('s_mul_i32 s24, s16, %d\ns_add_u32 s23, s23, s24' % (24 * 1280))
    e('s_lshl_b32 s25, s16, 12')
    for n in range(4):
        e('s_add_u32 m0, s25, %d' % (n * 1024))
        e('s_add_u32 s26, s23, %d' % (n * 6 * 1280))
        e('buffer_load_dwordx4 v10, s[8:11], s26 offen lds')
    tr_lane(e)
    e('s_lshl_b32 s26, s16, 5')
    e('v_lshl_add_u32 v11, v5, 2, v6\nv_add_u32 v11, s26, v11')
    e('v_min_u32 v11, 79, v11')
    row_to_lds(e, 11, 12, 13)
    e('v_add_u32 v11, 16, v11')
    row_to_lds(e, 11, 14, 13)
    e('v_lshl_add_u32 v16, v7, 4, v12\nv_lshl_add_u32 v17, v7, 4, v14')
    e('v_lshl_add_u32 v18, v7, 3, v12\nv_lshl_add_u32 v19, v7, 3, v14')
    e('s_lshl_b32 s27, s16, 3\ns_lshr_b32 s28, s22, 1\ns_add_u32 s27, s27, s28\ns_mul_i32 s27, s27, 10')
    e('s_and_b32 s28, s22, 1\ns_mul_i32 s28, s28, 5\ns_add_u32 s27, s27, s28')
    e('s_mul_i32 s28, s21, 240\ns_add_u32 s27, s27, s28\ns_lshl_b32 s27, s27, 10\ns_add_u32 s27, s27, 0x%x' % WD)
    e.wait_all()
    e('s_barrier')
    stamp(e, 2)
    e('s_cmp_eq_u32 s16, 3\ns_cbranch_scc1 P0_END')
    for tau in range(5):
        r = 32 + 4 * tau
        off = (8 * tau if tau < 2 else 64 + 8 * (tau - 2)) if tau < 4 else 128
        va, vb = (16, 17) if tau < 4 else (18, 19)
        e('ds_read_b64_tr_b16 v[%d:%d], v%d offset:%d' % (r, r + 1, va, off))
        e('ds_read_b64_tr_b16 v[%d:%d], v%d offset:%d' % (r + 2, r + 3, vb, off))
    for tau in range(5):
        r = 32 + 4 * tau
        e('s_add_u32 s28, s27, %d' % (tau * 1024))
        e(('buffer_store_dwordx4 v[%d:%d], v4, s[4:7], s28 offen' % (r, r + 3)) + SC)
    stamp_flush(e)
    e('s_endpgm')

def gen_wb(e):
    e.label('P0_WB')
    e.reset_state()
    srd(e, S_SRC, 46, 640 * 1280)
    e('s_sub_u32 s20, s2, 416\ns_lshr_b32 s21, s20, 2\ns_and_b32 s22, s20, 3')
    dma160_voff(e, 10)
    e('s_mul_i32 s23, s22, %d\ns_mul_i32 s24, s21, 160\ns_add_u32 s23, s23, s24' % (160 * 1280))
    e('s_mul_i32 s24, s16, %d\ns_add_u32 s23, s23, s24' % (42 * 1280))
    e('s_mul_i32 s25, s16, 7168')
    for n in range(7):
        e('s_add_u32 m0, s25, %d' % (n * 1024))
        e('s_add_u32 s26, s23, %d' % (n * 6 * 1280))
        e('buffer_load_dwordx4 v10, s[8:11], s26 offen lds')
    tr_lane(e)
    e('s_mul_i32 s27, s21, %d\ns_add_u32 s27, s27, 0x%x' % (100 * KB, WB))
    e.wait_all()
    e('s_barrier')
    stamp(e, 2)
    def rows(sp):
        e('v_mov_b32 v11, %s' % sp)
        e('v_lshl_add_u32 v11, v11, 2, v5')
        e('v_mul_u32_u24 v12, 52, v11\nv_lshrrev_b32 v12, 8, v12')
        e('v_mul_u32_u24 v13, 5, v12\nv_sub_u32 v13, v11, v13')
        e('v_mul_u32_u24 v12, 40, v12\nv_add_u32 v12, v12, v6')
        e('v_lshlrev_b32 v14, 3, v13')
        e('v_add_u32 v15, 4, v14')
        e('v_cmp_gt_u32 vcc, 2, v13\nv_cndmask_b32 v14, v15, v14, vcc')
        e('v_cmp_eq_u32 vcc, 4, v13\nv_cndmask_b32 v14, v14, 16, vcc') if False else None
        e('v_mov_b32 v15, 16\nv_cmp_eq_u32 vcc, 4, v13\nv_cndmask_b32 v14, v14, v15, vcc')
        e('v_add_u32 v20, v12, v14')
        e('v_mov_b32 v15, 20\nv_cndmask_b32 v15, 4, v15, vcc')
        e('v_add_u32 v21, v20, v15')
        row_to_lds(e, 20, 12, 13)
        row_to_lds(e, 21, 14, 13)
    def dest(sp, tau_sgpr_or_const):
        e('s_mul_i32 s28, s22, 5\ns_add_u32 s28, s28, %s' % sp)
        e('s_cmp_ge_u32 s28, 10\ns_cselect_b32 s29, 5, 0\ns_cselect_b32 s30, 10, 0')
        e('s_sub_u32 s28, s28, s30\ns_mul_i32 s28, s28, 10\ns_add_u32 s28, s28, s29')
        e('s_add_u32 s28, s28, %s' % tau_sgpr_or_const)
        e('s_lshl_b32 s28, s28, 10\ns_add_u32 s28, s28, s27')
    e('s_and_b32 s31, s16, 1\ns_lshl_b32 s31, s31, 3\ns_lshr_b32 s32, s16, 1\ns_lshl_b32 s32, s32, 6\ns_add_u32 s31, s31, s32')
    e('v_lshlrev_b32 v22, 4, v7\nv_add_u32 v22, s31, v22')
    e('v_lshlrev_b32 v23, 3, v7\nv_add_u32 v23, 128, v23')
    def frag(vcol):
        e('v_add_u32 v16, v12, v%d\nv_add_u32 v17, v14, v%d' % (vcol, vcol))
        e('ds_read_b64_tr_b16 v[32:33], v16\nds_read_b64_tr_b16 v[34:35], v17')
        e('buffer_store_dwordx4 v[32:35], v4, s[4:7], s28 offen' + SC)
    for sp in range(5):
        rows(str(sp)); dest(str(sp), 's16'); frag(22)
        if sp == 4:
            dest('4', '4'); frag(23)
    rows('s16'); dest('s16', '4'); frag(23)
    stamp_flush(e)
    e('s_endpgm')

def gen_x(e):
    e.label('P0_X')
    e.reset_state()
    srd(e, S_SRC, 40, T * 1280)
    e('s_sub_u32 s20, s2, 448')
    if CODEPF:
        e('s_getpc_b64 s[24:25]')
        e.label('P0_PC')
        e('s_add_u32 s24, s24, (%s-P0_PC)\ns_addc_u32 s25, s25, 0' % MAIN_LABEL)
        e('v_lshlrev_b32 v100, 7, v0')
        e('v_mov_b32 v101, (M_CODE_END-%s-4)' % MAIN_LABEL)
        e('v_add_u32 v102, 0x8000, v100')
        e('v_min_u32 v100, v100, v101\nv_min_u32 v102, v102, v101')
        e('v_and_b32 v100, -4, v100\nv_and_b32 v102, -4, v102')
        e('global_load_dword v103, v100, s[24:25]', count=False)
        e('global_load_dword v104, v102, s[24:25]', count=False)
    e('v_and_b32 v5, 31, v2\nv_lshrrev_b32 v6, 5, v2')
    e('v_mul_u32_u24 v7, 1280, v5\nv_lshl_add_u32 v7, v6, 4, v7')
    e('s_mul_i32 s21, s20, 40960\ns_mul_i32 s22, s16, 320\ns_add_u32 s21, s21, s22')
    for n in range(10):
        e('buffer_load_dwordx4 v[%d:%d], v7, s[8:11], s21 offen offset:%d' % (32 + 4 * n, 35 + 4 * n, 32 * n))
    e('s_mul_i32 s22, s20, 40\ns_mul_i32 s23, s16, 10\ns_add_u32 s22, s22, s23')
    e('s_lshl_b32 s22, s22, 10\ns_add_u32 s22, s22, 0x%x' % (LBASE + XA))
    for r in range(20, 24): e('v_mov_b32 v%d, 0' % r)
    if STAMPS:
        e.wait_all(); stamp(e, 2)
    for n in range(10):
        r = 32 + 4 * n
        e('s_add_u32 s23, s22, %d' % (n * 1024))
        e(('buffer_store_dwordx4 v[%d:%d], v4, s[4:7], s23 offen' % (r, r + 3)) + SC)
        a = 20 if n < 5 else 22
        for d in range(4):
            e('v_dot2c_f32_bf16 v%d, v%d, v3' % (a, r + d))
            e('v_dot2c_f32_bf16 v%d, v%d, v%d' % (a + 1, r + d, r + d))
    for r in range(20, 24):
        e('v_mov_b32 v24, v%d\nv_permlane32_swap_b32 v%d, v24\nv_add_f32 v%d, v%d, v24' % (r, r, r, r))
    e('v_lshlrev_b32 v8, 3, v5\nv_mov_b32 v9, 0x%x' % OOB)
    e('v_cmp_eq_u32 vcc, 0, v6\nv_cndmask_b32 v8, v9, v8, vcc')
    e('s_lshl_b32 s23, s20, 8\ns_lshl_b32 s24, s16, 15\ns_add_u32 s23, s23, s24\ns_add_u32 s23, s23, 0x%x' % (LBASE + SA))
    e('buffer_store_dwordx2 v[20:21], v8, s[4:7], s23 offen' + SC)
    e('s_add_u32 s23, s23, 16384')
    e('buffer_store_dwordx2 v[22:23], v8, s[4:7], s23 offen' + SC)
    stamp_flush(e)
    e('s_endpgm')

def descriptor(name, vgpr, accum, sgpr=96):
    return """.amdhsa_kernel %s
  .amdhsa_next_free_vgpr %d
  .amdhsa_next_free_sgpr %d
  .amdhsa_accum_offset %d
  .amdhsa_group_segment_fixed_size 0
  .amdhsa_kernarg_size 88
  .amdhsa_user_sgpr_count 2
  .amdhsa_user_sgpr_kernarg_segment_ptr 1
  .amdhsa_system_sgpr_workgroup_id_x 1
.end_amdhsa_kernel
""" % (name, vgpr, sgpr, accum)
```

```python
from asmlib import *
from layout import *

NAME = 'hedgehog_main_kernel'
KNAME = 'interleave_layers__linear_kernel_hedgehog__geglu_ffn__prompt_kernel'
BLK = 20480
SCR = 6 * BLK
LDS_TOTAL = 163840
SPIN_LIMIT = 40000
LOG2E = 1.4426950408889634
TSOFF = 0x4000000

sW, sRB, sJ, sL, sLOFF, sW5K, sWA, sWB, sWC, sWD = range(16, 26)
sT0, sT1, sT2, sT3, sT4, sT5 = range(26, 32)
sDEAD, sPC, sPV, sCS, sTH, sTTK, sTTS, sKH = range(40, 48)
sDM = 48
sTW = 49
sB0, sB1 = 50, 51
sC1, sC2, sC3, sC4 = 52, 53, 54, 55
sEX, sEXD = 56, 57
sCNT = 3
sTA, sTB = 58, 59
vL16, vLANE, vONES, vZERO, vONE, vPOLL = 1, 2, 3, 4, 5, 6
vL16B, vK0, vK1 = 7, 8, 9
vT0, vT1, vT2, vT3, vT4 = 10, 11, 12, 13, 14
vEXR = 15
AF, ACC = 16, 48
vSA, vTW, vKA, vKB, vPS1, vPS2, vPL, vAW, vO0, vO1, vO2, vX0, vX1, vX2, vY0, vY1 = range(224, 240)
XR = 240
vY2, vR0, vR2, vST, vSC, vEXW = range(250, 256)
vAW2 = 221
vL128, vTCH = 220, 219

A0, B0, C0, D0, NBLK = 0, 8, 13, 25, 37
NSIDE_A, NSIDE_C = 4, 4

def f32bits(x):
    import struct
    return '0x%08x' % struct.unpack('<I', struct.pack('<f', x))[0]

def W_vreg(r):
    return 'v_mov_b32 v%d, v%d' % (r, r)

class Main:
    def __init__(self, stop=None, opts=None):
        self.e = Asm(); self.stop = stop; self.o = opts or {}
        self.sc = '' if self.o.get('nosc1') else ' sc1'
        self.nlab = 0
        self.lstride = 0 if self.o.get('reuse') else LSTRIDE
        self.name = KNAME if self.o.get('merged', 1) else NAME
        global NSIDE_A, NSIDE_C
        NSIDE_A = self.o.get('nsa', 4); NSIDE_C = self.o.get('nsc', 4)
        dt = self.o.get('d_tail', 0); bt = self.o.get('b_tail', 0)
        self.A_tail = list(range(1, 1 + dt))
        rest = [0] + list(range(1 + dt, 6))
        self.A_side, self.A_in = rest[:NSIDE_A], rest[NSIDE_A:]
        self.C_tail = list(range(C0 + 1, C0 + 1 + bt))
        rest = list(range(C0 + 1 + bt, C0 + 6))
        self.C_side, self.C_in = rest[:NSIDE_C], rest[NSIDE_C:]
    def lab(self, p):
        self.nlab += 1
        return 'M_%s_%d' % (p, self.nlab)
    def blk_src(self, b):
        if b < B0: return sWA, (b - A0) * BLK
        if b < C0: return sWB, (b - B0) * BLK
        if b < D0: return sWC, (b - C0) * BLK
        return sWD, (b - D0) * BLK
    def dma_ops(self, b, tag=None):
        nb = b % NBLK if b >= NBLK else b
        base, off = self.blk_src(nb)
        slot = nb % 6
        tag = tag or 'blk%d' % nb
        g = []
        first = ['s_add_u32 m0, s%d, %d' % (sW5K, slot * BLK), 's_add_u32 s%d, s%d, %d' % (sDM, base, off),
                 ('buffer_load_dwordx4 v%d, s[4:7], s%d offen lds' % (vL16, sDM), tag)]
        g.append(first)
        for k in range(1, 4):
            g.append([('buffer_load_dwordx4 v%d, s[4:7], s%d offen offset:%d lds' % (vL16, sDM, k * 1024), tag)])
        g.append(['s_add_u32 m0, s%d, %d' % (sW5K, slot * BLK + 4096), 's_add_u32 s%d, s%d, %d' % (sDM, base, off + 4096),
                  ('buffer_load_dwordx4 v%d, s[4:7], s%d offen lds' % (vL16, sDM), tag)])
        return g
    def am_a(self):
        AM = 128; e = self.e
        e('s_lshl_b32 s%d, s%d, 12\ns_add_u32 s%d, s%d, 0x%x' % (sT2, sJ, sT2, sT2, WAM))
        for t in range(4): e('buffer_load_dwordx4 v[%d:%d], v%d, s[4:7], s%d offen offset:%d' % (AM + 4 * t, AM + 4 * t + 3, vL16, sT2, t * 1024))
    def am_c(self):
        AM = 136; e = self.e
        e('s_mul_i32 s%d, s%d, %d\ns_add_u32 s%d, s%d, 0x%x' % (sT4, sJ, 12 * KB, sT4, sT4, WCM))
        for t in range(4): e('buffer_load_dwordx4 v[%d:%d], v%d, s[4:7], s%d offen offset:%d' % (AM + 4 * t, AM + 4 * t + 3, vL16, sT4, t * 1024))
    def side_dma(self, blocks):
        e = self.e
        L = self.lab('side')
        e('s_cmp_eq_u32 s%d, 0' % sW); e('s_cbranch_scc1 %s' % L)
        for b in blocks:
            base, off = self.blk_src(b); slot = b % 6; tag = 'blk%d' % b
            ld = 'buffer_load_dwordx4 v%d, s[4:7], s%d offen%%s lds' % (vL16, sDM)
            e('s_add_u32 m0, s%d, %d' % (sW5K, slot * BLK)); e('s_add_u32 s%d, s%d, %d' % (sDM, base, off))
            for k in range(4): e.side(ld % (' offset:%d' % (k * 1024) if k else ''), tag)
            e('s_add_u32 m0, s%d, %d' % (sW5K, slot * BLK + 4096)); e('s_add_u32 s%d, s%d, %d' % (sDM, base, off + 4096))
            e.side(ld % '', tag)
            e('s_add_u32 m0, s%d, %d' % (sEX, slot * BLK)); e('s_add_u32 s%d, s%d, %d' % (sDM, base, off))
            e('s_add_u32 s%d, s%d, s%d' % (sDM, sDM, sEXD))
            e.side(ld % '', tag); e.side(ld % ' offset:1024', tag)
        e.label(L)
    def dma_items(self, b, earliest):
        out = []
        for g in self.dma_ops(b):
            for x in g: out.append((x, earliest))
        return out
    def touch(self, base_expr, nlines_wave, ninstr=1, sc=''):
        L = list(base_expr)
        L.append('s_mul_i32 s%d, s%d, %d' % (sTB, sW, nlines_wave * ninstr * 128))
        L.append('s_add_u32 s%d, s%d, s%d' % (sTA, sTA, sTB))
        if nlines_wave < 64:
            L.append('v_mov_b32 v%d, 0x%x' % (vT0, OOB))
            L.append('v_cmp_gt_u32 vcc, %d, v%d' % (nlines_wave, vLANE))
            L.append('v_cndmask_b32 v%d, v%d, v%d, vcc' % (vT0, vT0, vL128))
            va = vT0
        else: va = vL128
        for k in range(ninstr):
            if k: L.append('s_add_u32 s%d, s%d, %d' % (sTA, sTA, nlines_wave * 128))
            I = parse('buffer_load_dword v%d, v%d, s[4:7], s%d offen%s' % (vTCH, va, sTA, sc)); I.wr = set()
            L.append(I)
        return L
    def touch_w(self, which):
        if which == 'A':
            pre = ['s_lshr_b32 s%d, s%d, 2' % (sTA, sRB), 's_mul_i32 s%d, s%d, %d' % (sTA, sTA, 40 * KB), 's_add_u32 s%d, s%d, s%d' % (sTA, sTA, sWA), 's_sub_u32 s%d, s%d, s%d' % (sTA, sTA, sW5K)]
            return self.touch(pre, 40, 2)
        if which == 'C':
            pre = ['s_lshr_b32 s%d, s%d, 2' % (sTA, sRB), 's_mul_i32 s%d, s%d, %d' % (sTA, sTA, 60 * KB), 's_add_u32 s%d, s%d, s%d' % (sTA, sTA, sWC), 's_sub_u32 s%d, s%d, s%d' % (sTA, sTA, sW5K)]
            return self.touch(pre, 60, 2)
        idx = ['s_lshr_b32 s%d, s%d, 2' % (sTA, sRB), 's_lshl_b32 s%d, s%d, 1' % (sTA, sTA), 's_add_u32 s%d, s%d, s%d' % (sTA, sTA, sTH)]
        if which == 'B':
            return self.touch(idx + ['s_mul_i32 s%d, s%d, 12800' % (sTA, sTA), 's_add_u32 s%d, s%d, s%d' % (sTA, sTA, sWB), 's_sub_u32 s%d, s%d, s%d' % (sTA, sTA, sW5K)], 25, 1)
        if which == 'D':
            return self.touch(idx + ['s_mul_i32 s%d, s%d, 30720' % (sTA, sTA), 's_add_u32 s%d, s%d, s%d' % (sTA, sTA, sWD), 's_sub_u32 s%d, s%d, s%d' % (sTA, sTA, sW5K)], 60, 1)
    def touch_tok(self, base_off):
        pre = ['s_mul_i32 s%d, s%d, %d' % (sTA, sRB, 160 * KB), 's_lshr_b32 s%d, s%d, 1' % (sTB, sJ), 's_mul_i32 s%d, s%d, %d' % (sTB, sTB, 20 * KB),
               's_add_u32 s%d, s%d, s%d' % (sTA, sTA, sTB), 's_add_u32 s%d, s%d, s%d' % (sTA, sTA, sLOFF), 's_add_u32 s%d, s%d, 0x%x' % (sTA, sTA, base_off)]
        return self.touch(pre, 40, 1, ' sc1')
    def freed_by(self, c):
        if c <= NBLK - 7: return c + 6
        if c < NBLK - 1: return NBLK + (c - (NBLK - 7))
        return NBLK + 0
    def ring_read(self, dst, blk, off, kh=False):
        slot = blk % 6
        base = (vK0 if kh else vL16) if slot < 3 else (vK1 if kh else vL16B)
        return 'ds_read_b128 v[%d:%d], v%d offset:%d' % (dst, dst + 3, base, (slot % 3) * BLK + off)
    def emit_next_layer_dma(self, b):
        e = self.e
        L = self.lab('nl')
        e('s_cmp_lg_u32 s%d, 0' % sL); e('s_cbranch_scc1 %s' % L)
        for g in self.dma_ops(b):
            for x in g:
                if isinstance(x, tuple): e(x[0], count=False)
                else: e(x)
        e.label(L)
    def signal(self, cnt_off_sgpr):
        e = self.e
        e.wait_all()
        e('s_barrier')
        self.signal_only(cnt_off_sgpr)
    def signal_only(self, cnt_off_sgpr):
        e = self.e
        L = self.lab('sig')
        e('s_cmp_lg_u32 s%d, 0' % sW); e('s_cbranch_scc1 %s' % L)
        e('s_mov_b64 exec, 1')
        e('buffer_atomic_add v%d, v%d, s[4:7], s%d offen sc1' % (vONE, vZERO, cnt_off_sgpr), count=False)
        e('s_mov_b64 exec, -1')
        e.label(L)
    def poll(self, cnt_off_sgpr, n=1, target=16, srd=4, stride=128):
        e = self.e
        L = self.lab('poll'); X = self.lab('got')
        e('s_cmp_lg_u32 s%d, 0' % sW); e('s_cbranch_scc1 %s' % X)
        e('s_cmp_lg_u32 s%d, 0' % sDEAD); e('s_cbranch_scc1 %s' % X)
        e('s_mov_b32 s%d, 0' % sPC)
        if n > 1:
            e('v_min_u32 v%d, %d, v%d' % (vT0, n - 1, vLANE)); e('v_mul_u32_u24 v%d, %d, v%d' % (vT0, stride, vT0))
        e.label(L)
        e('buffer_load_dword v%d, v%d, s[%d:%d], s%d offen sc1' % (vPOLL, vT0 if n > 1 else vZERO, srd, srd + 3, cnt_off_sgpr), count=False)
        e('s_waitcnt vmcnt(0)', count=False)
        e('v_cmp_gt_u32 vcc, %d, v%d' % (target, vPOLL))
        e('s_cbranch_vccz %s' % X)
        if self.o.get('psleep'): e('s_sleep %d' % self.o['psleep'])
        e('s_add_u32 s%d, s%d, 1' % (sPC, sPC)); e('s_cmp_lt_u32 s%d, %d' % (sPC, SPIN_LIMIT))
        e('s_cbranch_scc1 %s' % L)
        e('s_mov_b32 s%d, 1' % sDEAD)
        e.label(X)
    def cnt(self, dst, which, idx_sgpr, mul=128, add=0, next_layer=False):
        e = self.e
        e('s_mul_i32 s%d, s%d, %d' % (dst, idx_sgpr, mul))
        e('s_add_u32 s%d, s%d, s%d' % (dst, dst, sCNT))
        e('s_add_u32 s%d, s%d, 0x%x' % (dst, dst, which + add + (CSTRIDE if next_layer else 0)))
    def prologue(self):
        if self.o.get('merged', 1): return self.prologue_merged()
        e = self.e
        e.directive('.text\n.globl %s\n.p2align 8\n.type %s,@function' % (self.name, self.name))
        e.label(self.name)
        e('s_cmp_ge_u32 s2, 256'); e('s_cbranch_scc1 M_END')
        e('s_load_dwordx2 s[32:33], s[0:1], 0')
        e('s_load_dwordx2 s[34:35], s[0:1], 64')
        e('s_load_dwordx2 s[36:37], s[0:1], 80')
        self.entry_stamp()
        self.pro_scalars(); self.pro_lanes()
        e('s_waitcnt lgkmcnt(0)')
        self.mk_srd(4, 36, WS_BYTES)
        self.pro_tail(32, 34)
    def prologue_merged(self):
        import gen_prep as P
        e = self.e
        e.directive('.text\n.globl %s\n.p2align 8\n.type %s,@function' % (self.name, self.name))
        e.label(self.name)
        e('s_cmp_ge_u32 s2, 256'); e('s_cbranch_scc1 M_END')
        e('s_load_dwordx8 s[64:71], s[0:1], 0')
        e('s_load_dwordx4 s[72:75], s[0:1], 40')
        e('s_load_dwordx2 s[76:77], s[0:1], 56')
        e('s_load_dwordx2 s[78:79], s[0:1], 64')
        e('s_load_dwordx4 s[80:83], s[0:1], 72')
        self.entry_stamp()
        self.pro_scalars()
        e('s_waitcnt lgkmcnt(0)')
        self.mk_srd(4, 82, WS_BYTES)
        e('s_add_u32 s0, s2, 352\ns_sub_u32 s26, s2, 64\ns_cmp_ge_u32 s2, 160\ns_cselect_b32 s0, s26, s0\ns_cmp_lt_u32 s2, 96\ns_cselect_b32 s0, s2, s0')
        e('s_add_u32 s1, s2, 192')
        Lz = self.lab('nz')
        e('s_cmp_ge_u32 s2, 16'); e('s_cbranch_scc1 %s' % Lz)
        e('s_cmp_lg_u32 s%d, 0' % sW); e('s_cbranch_scc1 %s' % Lz)
        for k in range(4): e('v_mov_b32 v%d, 0' % (120 + k))
        e('s_lshl_b32 s26, s2, 11')
        e('buffer_store_dwordx4 v[120:123], v%d, s[4:7], s26 offen sc1' % vL16, count=False)
        e('buffer_store_dwordx4 v[120:123], v%d, s[4:7], s26 offen offset:1024 sc1' % vL16, count=False)
        e.label(Lz)
        r1 = P.Ren(e, 1, 0); r2 = P.Ren(e, 2, 1)
        L1, L2 = 0, 32768
        def dispatch(cases, sreg, tagp):
            end = self.lab(tagp)
            labs = [self.lab(tagp) for _ in cases]
            for (ub, _), lb in list(zip(cases, labs))[:-1]:
                e('s_cmp_lt_u32 s%d, %d' % (sreg, ub)); e('s_cbranch_scc1 %s' % lb)
            e('s_branch %s' % labs[-1])
            for (ub, fn), lb in zip(cases, labs):
                e.label(lb); e.reset_state(); fn()
                e.wait_lgkm0()
                e('s_branch %s' % end)
            e.label(end); e.reset_state()
        dispatch([(96, lambda: P.wa_issue(r1)), (288, lambda: P.wc_issue(r1, L1)), (None, lambda: P.x_issue(r1))], 0, 'i1')
        dispatch([(288, lambda: P.wc_issue(r2, L2)), (416, lambda: P.wd_issue(r2, L2)), (None, lambda: P.wb_issue(r2, L2))], 1, 'i2')
        if self.o.get('codepf', 1):
            Lp = self.lab('npf')
            e('s_cmp_ge_u32 s2, 64'); e('s_cbranch_scc1 %s' % Lp)
            e('s_getpc_b64 s[84:85]')
            e.label('M_PC')
            e('s_add_u32 s84, s84, (M_LAYER-M_PC)\ns_addc_u32 s85, s85, 0')
            e('v_lshlrev_b32 v124, 7, v0\nv_mov_b32 v125, (M_CODE_END-M_LAYER-4)\nv_add_u32 v126, 0x8000, v124')
            e('v_min_u32 v124, v124, v125\nv_min_u32 v126, v126, v125\nv_and_b32 v124, -4, v124\nv_and_b32 v126, -4, v126')
            e('global_load_dword v127, v124, s[84:85]', count=False)
            e('global_load_dword v127, v126, s[84:85]', count=False)
            e.label(Lp)
        e('s_waitcnt vmcnt(%d)' % (6 if self.o.get('codepf', 1) else 4), count=False) if False else e('s_waitcnt vmcnt(4)', count=False)
        self.mk_srd(84, 80, 256)
        self.stamp(19)
        dispatch([(96, lambda: P.wa_process(r1)), (288, lambda: P.wc_process(r1, L1)), (None, lambda: P.x_process(r1))], 0, 'p1')
        e('s_waitcnt vmcnt(6)', count=False)
        self.stamp(20)
        dispatch([(288, lambda: P.wc_process(r2, L2)), (416, lambda: P.wd_process(r2, L2)), (None, lambda: P.wb_process(r2, L2))], 1, 'p2')
        self.stamp(21)
        e('s_waitcnt vmcnt(0) lgkmcnt(0)', count=False)
        e('s_barrier')
        self.stamp(22)
        NSH = self.o.get('nsh', 16); STR = 256 // NSH
        La = self.lab('arr')
        e('s_cmp_lg_u32 s%d, 0' % sW); e('s_cbranch_scc1 %s' % La)
        e('s_and_b32 s26, s2, %d\ns_mul_i32 s26, s26, %d\ns_mov_b64 exec, 1' % (NSH - 1, STR))
        e('buffer_atomic_add v%d, v%d, s[84:87], s26 offen sc1' % (vONE, vZERO), count=False)
        e('s_mov_b64 exec, -1')
        e.label(La)
        self.stamp(25)
        self.pro_lanes()
        e('s_mov_b32 s%d, 0' % sT0)
        self.stamp(23)
        self.poll(sT0, n=NSH, target=256 // NSH, srd=84, stride=STR)
        e('s_barrier')
        self.stamp(24)
        self.pro_tail(64, 78)
    def entry_stamp(self):
        if self.o.get('stamps'):
            self.e(('s_memtime' if self.o.get('cyc') else 's_memrealtime') + ' s[60:61]\ns_waitcnt lgkmcnt(0)\nv_mov_b32 v223, s60')
    def mk_srd(self, d, lo, n):
        self.e('s_mov_b32 s%d, s%d\ns_mov_b32 s%d, s%d\ns_mov_b32 s%d, 0x%x\ns_mov_b32 s%d, 0x20000' % (d, lo, d + 1, lo + 1, d + 2, n, d + 3))
    def pro_scalars(self):
        e = self.e
        e('v_lshrrev_b32 v10, 6, v0'); e('v_and_b32 v%d, 63, v0' % vLANE)
        e('v_readfirstlane_b32 s%d, v10' % sW)
        e('v_lshlrev_b32 v%d, 4, v%d' % (vL16, vLANE))
        e('s_and_b32 s%d, s2, 3\ns_lshr_b32 s26, s2, 6\ns_lshl_b32 s26, s26, 2\ns_or_b32 s%d, s%d, s26' % (sRB, sRB, sRB))
        e('s_lshr_b32 s%d, s2, 2\ns_and_b32 s%d, s%d, 15' % (sJ, sJ, sJ))
        e('s_and_b32 s%d, s%d, 7\ns_lshr_b32 s%d, s%d, 3' % (sCS, sJ, sTH, sJ))
        e('s_mul_i32 s%d, s%d, 5120' % (sW5K, sW))
        e('s_lshr_b32 s%d, s%d, 1' % (sKH, sW))
        for (s, idx, stride, base) in ((sWA, sJ, 160 * KB, WA), (sWB, sCS, 100 * KB, WB), (sWC, sJ, 240 * KB, WC), (sWD, sCS, 240 * KB, WD)):
            if self.o.get('wsame'): stride = 0
            e('s_mul_i32 s%d, s%d, %d\ns_add_u32 s%d, s%d, s%d\ns_add_u32 s%d, s%d, 0x%x' % (s, idx, stride, s, s, sW5K, s, s, base))
        e('s_lshl_b32 s%d, s%d, 3\ns_lshl_b32 s26, s%d, 2\ns_add_u32 s%d, s%d, s26' % (sTTK, sRB, sTH, sTTK, sTTK))
        e('s_and_b32 s26, s%d, 1\ns_lshl_b32 s26, s26, 1\ns_add_u32 s%d, s%d, s26\ns_add_u32 s%d, s%d, s%d' % (sW, sTTK, sTTK, sTTK, sTTK, sKH))
        e('s_xor_b32 s%d, s%d, 1' % (sTTS, sTTK))
        e('s_mov_b32 s%d, 0\ns_mov_b32 s%d, 0\ns_mov_b32 s%d, 0x%x' % (sDEAD, sL, sLOFF, LBASE))
        e('s_mov_b32 s%d, 0x%x' % (sCNT, CNT0))
        e('s_sub_u32 s%d, s%d, 1\ns_lshl_b32 s%d, s%d, 11\ns_sub_u32 s%d, s%d, s%d' % (sEX, sW, sEX, sEX, sEXD, sEX, sW5K))
        e('v_mov_b32 v%d, 0x3f803f80\nv_mov_b32 v%d, 0\nv_mov_b32 v%d, 1' % (vONES, vZERO, vONE))
    def pro_lanes(self):
        e = self.e
        e('v_add_u32 v%d, %d, v%d' % (vL16B, 3 * BLK, vL16))
        e('v_lshlrev_b32 v%d, 7, v%d' % (vL128, vLANE))
        e('s_mul_i32 s26, s%d, 5120\nv_add_u32 v%d, s26, v%d\nv_add_u32 v%d, %d, v%d' % (sKH, vK0, vL16, vK1, 3 * BLK, vK0))
        t32, hi, t16, q = 100, 101, 102, 103
        e('v_and_b32 v%d, 31, v%d\nv_lshrrev_b32 v%d, 5, v%d' % (t32, vLANE, hi, vLANE))
        e('v_and_b32 v%d, 15, v%d\nv_lshrrev_b32 v%d, 4, v%d' % (t16, vLANE, q, vLANE))
        e('v_mov_b32 v104, 0x%x' % OOB)
        e('v_lshlrev_b32 v%d, 3, v%d\nv_lshl_add_u32 v%d, v%d, 16, v%d' % (vSA, t32, vSA, hi, vSA))
        e('s_lshl_b32 s26, s%d, 5\nv_add_u32 v105, s26, v%d\nv_mul_u32_u24 v105, 144, v105' % (sW, t32))
        e('v_mul_u32_u24 v106, 18432, v%d\nv_add_u32 v105, v105, v106\nv_add_u32 v%d, 0x%x, v105' % (hi, vTW, SCR))
        e('v_lshrrev_b32 v105, 1, v%d\nv_bfe_u32 v106, v%d, 2, 2\nv_lshl_add_u32 v105, v105, 3, v106\nv_mul_u32_u24 v105, 144, v105' % (q, vLANE))
        e('v_and_b32 v106, 1, v%d\nv_lshlrev_b32 v106, 5, v106\nv_and_b32 v107, 3, v%d\nv_lshl_add_u32 v106, v107, 3, v106\nv_add_u32 v105, v105, v106' % (q, vLANE))
        e('s_lshr_b32 s26, s%d, 1\ns_mul_i32 s26, s26, 18432\ns_add_u32 s26, s26, 0x%x' % (sW, SCR))
        e('s_and_b32 s27, s%d, 1\ns_mul_i32 s28, s27, 40\ns_add_u32 s28, s28, s26\ns_add_u32 s29, s26, 80' % sW)
        e('v_add_u32 v%d, s28, v105\nv_add_u32 v%d, s29, v105' % (vKA, vKB))
        e('s_lshl_b32 s26, s%d, 10' % sW)
        e('v_mul_u32_u24 v105, 24, v%d\nv_add_u32 v105, v105, v%d\nv_lshlrev_b32 v105, 4, v105\nv_add_u32 v105, s26, v105' % (hi, t32))
        e('v_cmp_gt_u32 vcc, 24, v%d\nv_cndmask_b32 v%d, v104, v105, vcc' % (t32, vPS1))
        e('v_lshlrev_b32 v105, 3, v%d\nv_add_u32 v105, s26, v105\nv_add_u32 v105, 768, v105' % t32)
        e('v_cmp_eq_u32 vcc, 0, v%d\nv_cndmask_b32 v%d, v104, v105, vcc' % (hi, vPS2))
        e('v_mov_b32 v106, 84\nv_cmp_le_u32 s[30:31], v106, v0\nv_cndmask_b32 v106, 0, 1, s[30:31]')
        e('v_mul_u32_u24 v107, 84, v106\nv_sub_u32 v107, v0, v107')
        e('v_mul_u32_u24 v108, 391, v107\nv_lshrrev_b32 v108, 13, v108')
        e('v_mul_u32_u24 v109, 21, v108\nv_sub_u32 v109, v107, v109')
        e('v_subrev_u32 v110, 168, v0\nv_mul_u32_u24 v111, 391, v110\nv_lshrrev_b32 v111, 13, v111\nv_and_b32 v111, 3, v111')
        e('v_mul_u32_u24 v96, 21, v111\nv_sub_u32 v96, v110, v96')
        e('v_cmp_gt_u32 vcc, 168, v0')
        e('v_lshrrev_b32 v97, 1, v108\nv_lshl_add_u32 v97, v106, 1, v97\nv_lshlrev_b32 v97, 10, v97')
        e('v_and_b32 v98, 1, v108\nv_mul_u32_u24 v98, 24, v98\nv_add_u32 v98, v98, v109\nv_lshl_add_u32 v97, v98, 4, v97')
        e('v_lshlrev_b32 v98, 10, v111\nv_lshl_add_u32 v98, v96, 3, v98\nv_add_u32 v98, 768, v98')
        e('v_cndmask_b32 v97, v98, v97, vcc')
        e('v_mov_b32 v99, 252\nv_cmp_gt_u32 s[30:31], v99, v0\nv_cndmask_b32 v%d, v104, v97, s[30:31]' % vPL)
        e('v_lshrrev_b32 v97, 1, v111\nv_cndmask_b32 v106, v97, v106, vcc')
        e('v_cndmask_b32 v108, 4, v108, vcc\nv_cndmask_b32 v109, v96, v109, vcc')
        e('v_lshrrev_b32 v110, 4, v109\nv_mul_u32_u24 v110, 5, v110\nv_add_u32 v110, v110, v108')
        e('v_and_b32 v109, 15, v109\nv_lshrrev_b32 v97, 2, v109\nv_lshlrev_b32 v97, 3, v97\nv_and_b32 v109, 3, v109\nv_add_u32 v97, v97, v109')
        e('v_mul_u32_u24 v109, 36, v106\nv_add_u32 v97, v97, v109')
        e('v_lshlrev_b32 v97, 4, v97\nv_lshl_add_u32 v97, v110, 10, v97\nv_add_u32 v97, 0x%x, v97' % SCR)
        e('v_and_b32 v105, 63, v0\nv_lshlrev_b32 v105, 4, v105\nv_add_u32 v105, 0x%x, v105' % (SCR + 12288))
        e('v_cndmask_b32 v%d, v105, v97, vcc' % vAW)
        e('v_and_b32 v98, 1, v111\nv_lshl_add_u32 v97, v98, 3, v97')
        e('v_cndmask_b32 v97, v97, v105, vcc\nv_cndmask_b32 v%d, v105, v97, s[30:31]' % vAW2)
        e('s_mul_i32 s26, s%d, 5' % sJ)
        e('v_bfe_u32 v105, v%d, 4, 1\nv_mul_u32_u24 v105, 20480, v105\nv_lshl_add_u32 v105, v%d, 4, v105' % (vLANE, t16))
        for (dst, expr) in ((vO0, 0), (vO1, 1), (vO2, None)):
            if expr is not None:
                e('v_lshl_add_u32 v106, v%d, 1, s26\nv_add_u32 v106, %d, v106' % (hi, expr))
            else:
                e('v_mov_b32 v106, s26\nv_add_u32 v106, 4, v106')
            e('v_lshrrev_b32 v107, 2, v106\nv_lshl_add_u32 v107, v107, 10, v105\nv_and_b32 v106, 3, v106\nv_lshl_add_u32 v%d, v106, 8, v107' % dst)
        e('v_lshl_add_u32 v%d, v%d, 3, v%d' % (vO2, hi, vO2))
        e('s_mul_i32 s26, s%d, 10' % sCS)
        e('s_and_b32 s27, s%d, 1\ns_lshl_b32 s27, s27, 8' % sTTK)
        e('v_lshlrev_b32 v105, 4, v%d' % t16)
        for n, (dx, dy) in enumerate(((vX0, vY0), (vX1, vY1), (vX2, vY2))):
            if n < 2: e('v_add_u32 v106, s26, v%d\nv_add_u32 v106, %d, v106' % (q, 4 * n))
            else: e('v_lshrrev_b32 v106, 1, v%d\nv_add_u32 v106, s26, v106\nv_add_u32 v106, 8, v106' % q)
            e('v_lshrrev_b32 v107, 2, v106\nv_lshl_add_u32 v107, v107, 10, v105\nv_and_b32 v108, 3, v106\nv_lshl_add_u32 v%d, v108, 8, v107' % dx)
            e('v_lshrrev_b32 v107, 1, v106\nv_lshl_add_u32 v107, v107, 10, v105\nv_and_b32 v108, 1, v106\nv_lshl_add_u32 v107, v108, 9, v107\nv_add_u32 v%d, s27, v107' % dy)
        e('v_and_b32 v106, 1, v%d\nv_lshl_add_u32 v%d, v106, 3, v%d\nv_lshl_add_u32 v%d, v106, 3, v%d' % (q, vX2, vX2, vY2, vY2))
        e('v_mul_u32_u24 v105, 1280, v%d\nv_lshl_add_u32 v%d, v%d, 4, v105\nv_lshl_add_u32 v%d, v%d, 3, v105\nv_add_u32 v%d, 128, v%d' % (t16, vR0, q, vR2, q, vR2, vR2))
        e('v_lshlrev_b32 v105, 3, v%d\nv_cmp_eq_u32 vcc, 0, v%d\nv_cndmask_b32 v%d, v104, v105, vcc\nv_lshl_add_u32 v%d, v%d, 15, v105' % (t16, q, vST, vSC, q))
        e('s_add_u32 s26, s%d, 0x%x\nv_add_u32 v%d, s26, v%d' % (sW5K, SCR, vEXW, vL16))
        e('s_xor_b32 s27, s%d, 2\ns_mul_i32 s27, s27, 5120\ns_add_u32 s27, s27, 0x%x\nv_add_u32 v%d, s27, v%d' % (sW, SCR, vEXR, vL16))
    def pro_tail(self, xlo, olo):
        e = self.e
        self.mk_srd(8, xlo, T * 1280); self.mk_srd(12, olo, T * 1280)
        if self.o.get('ampre', 1): self.am_a()
        self.side_dma(self.A_side[:1])
        for b in self.A_tail:
            for g in self.dma_ops(b):
                for x in g:
                    if isinstance(x, tuple): e(x[0], count=False)
                    else: e(x)
        self.side_dma(self.A_side[1:])
        e('s_mul_i32 s26, s%d, 20480\ns_mul_i32 s27, s%d, 160\ns_add_u32 s26, s26, s27' % (sTTK, sCS))
        e('buffer_load_dwordx4 v[%d:%d], v%d, s[8:11], s26 offen' % (XR, XR + 3, vR0), count=False)
        e('buffer_load_dwordx4 v[%d:%d], v%d, s[8:11], s26 offen offset:64' % (XR + 4, XR + 7, vR0), count=False)
        e('buffer_load_dwordx2 v[%d:%d], v%d, s[8:11], s26 offen' % (XR + 8, XR + 9, vR2), count=False)
    def rowstat_finish(self, S, Q, vRS, vVE, BM, tmp):
        L = []
        L.append('v_mul_f32 v%d, %s, v%d' % (S, f32bits(1.0 / 640), S))
        L.append('v_mul_f32 v%d, %s, v%d' % (Q, f32bits(1.0 / 640), Q))
        L.append('v_fma_f32 v%d, -v%d, v%d, v%d' % (Q, S, S, Q))
        L.append('v_max_f32 v%d, 0, v%d' % (Q, Q))
        L.append('v_add_f32 v%d, %s, v%d' % (vVE, f32bits(1e-5), Q))
        L.append('v_rsq_f32 v%d, v%d' % (vRS, vVE))
        L.append('v_cvt_pk_bf16_f32 v%d, -v%d, -v%d' % (tmp, S, S))
        L.append('v_and_b32 v%d, 0xffff0000, v%d' % (tmp, tmp))
        L.append('v_sub_f32 v%d, -v%d, v%d' % (tmp, S, tmp))
        L.append('v_cvt_pk_bf16_f32 v%d, -v%d, v%d' % (BM, S, tmp))
        for k in range(1, 4): L.append('v_mov_b32 v%d, v%d' % (BM + k, BM))
        return L
    def softmax_pair(self, X, vC, EP, EM, t):
        L = []
        mx, mn, ap, am, sp, sm = range(t, t + 6)
        L.append('v_max3_f32 v%d, v%d, v%d, v%d' % (mx, X[0], X[1], X[2]))
        L.append('v_min3_f32 v%d, v%d, v%d, v%d' % (mn, X[0], X[1], X[2]))
        for k in range(3, 19, 2):
            L.append('v_max3_f32 v%d, v%d, v%d, v%d' % (mx, mx, X[k], X[k + 1]))
            L.append('v_min3_f32 v%d, v%d, v%d, v%d' % (mn, mn, X[k], X[k + 1]))
        L.append('v_max_f32 v%d, v%d, v%d' % (mx, mx, X[19]))
        L.append('v_min_f32 v%d, v%d, v%d' % (mn, mn, X[19]))
        L.append('v_mul_f32 v%d, v%d, v%d' % (ap, vC, mx))
        L.append('v_mul_f32 v%d, v%d, v%d' % (am, vC, mn))
        for f in range(20):
            L.append('v_fma_f32 v%d, v%d, v%d, -v%d' % (EP + f, X[f], vC, ap))
            L.append('v_fma_f32 v%d, -v%d, v%d, v%d' % (EM + f, X[f], vC, am))
        for f in range(20):
            L.append('v_exp_f32 v%d, v%d' % (EP + f, EP + f))
            L.append('v_exp_f32 v%d, v%d' % (EM + f, EM + f))
        L.append('v_add_f32 v%d, v%d, v%d' % (sp, EP, EP + 1))
        L.append('v_add_f32 v%d, v%d, v%d' % (sm, EM, EM + 1))
        for f in range(2, 20):
            L.append('v_add_f32 v%d, v%d, v%d' % (sp, sp, EP + f))
            L.append('v_add_f32 v%d, v%d, v%d' % (sm, sm, EM + f))
        L.append('v_rcp_f32 v%d, v%d' % (sp, sp))
        L.append('v_rcp_f32 v%d, v%d' % (sm, sm))
        for f in range(20):
            L.append('v_mul_f32 v%d, v%d, v%d' % (EP + f, EP + f, sp))
            L.append('v_mul_f32 v%d, v%d, v%d' % (EM + f, EM + f, sm))
        return L
    def stamp(self, k):
        if not self.o.get('stamps'): return
        e = self.e
        e('v_mov_b32 v222, s%d' % sL)
        e('v_lshlrev_b32 v222, 5, v222\nv_add_u32 v222, %d, v222' % k)
        e('v_cmp_eq_u32 vcc, v222, v%d' % vLANE)
        e('s_memtime s[58:59]' if self.o.get('cyc') else 's_memrealtime s[58:59]')
        e('s_waitcnt lgkmcnt(0)')
        e('v_mov_b32 v222, s58')
        e('v_cndmask_b32 v223, v223, v222, vcc')
    def stamp_items(self, k):
        if self.o.get('stamps') != 2: return []
        sub = Main(None, self.o); sub.stamp(k)
        return sub.e.items
    def stamp_flush(self):
        if not self.o.get('stamps'): return
        e = self.e
        e('s_lshl_b32 s62, s2, 2\ns_add_u32 s62, s62, s%d\ns_lshl_b32 s62, s62, 8\ns_add_u32 s62, s62, 0x%x' % (sW, TSOFF))
        e('v_lshlrev_b32 v%d, 2, v%d' % (vT0, vLANE))
        e('buffer_store_dword v223, v%d, s[4:7], s62 offen' % vT0)
    def maybe_stop(self, name):
        if self.stop == name:
            self.e.wait_all(); self.e('s_endpgm'); return True
        return False
    def vm_stream(self, items):
        st = Stream()
        for it in sorted(items, key=lambda x: x[3] if len(x) > 3 else x[0]):
            st.add(it[2], it[1], it[0])
        return st
    def flat(self, groups):
        return [x for g in groups for x in g]
    def phase_a(self):
        e = self.e; o = self.o
        T0, T1, T2, T3 = ACC, ACC + 16, ACC + 32, ACC + 48
        ST, vRS, vVE, vC, BM, AM, EP, EM, P = 112, 120, 121, 122, 124, 128, 144, 164, 184
        self.stamp(0)
        L = self.lab('a_nopoll')
        e('s_cmp_eq_u32 s%d, 0' % sL); e('s_cbranch_scc1 %s' % L)
        self.cnt(sT0, CNT_XA, sRB)
        self.poll(sT0)
        e('s_barrier')
        e.label(L)
        self.stamp(1)
        e('s_lshl_b32 s%d, s%d, 2\ns_add_u32 s%d, s%d, s%d' % (sT0, sRB, sT0, sT0, sW))
        e('s_lshl_b32 s%d, s%d, 8\ns_add_u32 s%d, s%d, s%d\ns_add_u32 s%d, s%d, 0x%x' % (sT1, sT0, sT1, sT1, sLOFF, sT1, sT1, SA))
        e('s_mul_i32 s%d, s%d, 40960\ns_add_u32 s%d, s%d, s%d\ns_add_u32 s%d, s%d, 0x%x' % (sTW, sT0, sTW, sTW, sLOFF, sTW, sTW, XA))
        def tok(s):
            g = []
            if s % 4 == 0: g.append('s_add_u32 s%d, s%d, %d' % (sB0, sTW, s * 1024))
            g.append('buffer_load_dwordx4 a[%d:%d], v%d, s[4:7], s%d offen offset:%d%s' % (4 * s, 4 * s + 3, vL16, sB0, (s % 4) * 1024, self.sc))
            return g
        NPRE = o.get('a_npre', 14)
        if o.get('tt', 0): e.extend(self.touch_tok(XA))
        for s in range(NPRE): e.extend(tok(s))
        stld = []
        for k in range(4):
            if k: stld.append('s_add_u32 s%d, s%d, 16384' % (sT1, sT1))
            stld.append('buffer_load_dwordx2 v[%d:%d], v%d, s[4:7], s%d offen sc1' % (ST + 2 * k, ST + 2 * k + 1, vSA, sT1))
        e('s_lshl_b32 s%d, s%d, 12\ns_add_u32 s%d, s%d, 0x%x' % (sT2, sJ, sT2, sT2, WAM))
        amload = ['buffer_load_dwordx4 v[%d:%d], v%d, s[4:7], s%d offen offset:%d' % (AM + 4 * t, AM + 4 * t + 3, vL16, sT2, t * 1024) for t in range(4)]
        st = []
        st += ['v_add_f32 v%d, v%d, v%d' % (ST, ST, ST + 2), 'v_add_f32 v%d, v%d, v%d' % (ST + 1, ST + 1, ST + 3),
               'v_add_f32 v%d, v%d, v%d' % (ST + 4, ST + 4, ST + 6), 'v_add_f32 v%d, v%d, v%d' % (ST + 5, ST + 5, ST + 7),
               'v_add_f32 v%d, v%d, v%d' % (ST, ST, ST + 4), 'v_add_f32 v%d, v%d, v%d' % (ST + 1, ST + 1, ST + 5),
               'v_mov_b32 v%d, v%d' % (ST + 2, ST), 'v_mov_b32 v%d, v%d' % (ST + 3, ST + 1),
               'v_permlane32_swap_b32 v%d, v%d' % (ST, ST + 2), 'v_permlane32_swap_b32 v%d, v%d' % (ST + 1, ST + 3),
               'v_add_f32 v%d, v%d, v%d' % (ST, ST, ST + 2), 'v_add_f32 v%d, v%d, v%d' % (ST + 1, ST + 1, ST + 3)]
        st += self.rowstat_finish(ST, ST + 1, vRS, vVE, BM, ST + 2)
        st += ['v_mul_f32 v%d, %s, v%d' % (vC, f32bits(LOG2E), vRS)]
        LA = 5
        def frag_info(n):
            if n < 120: return n // 3, n % 3
            return n - 120, 3
        def read(n): return self.ring_read(AF + 4 * (n % 8), A0 + n // 20, (n % 20) * 1024)
        def mfma(n):
            s, tau = frag_info(n); acc = ACC + 16 * tau; a = AF + 4 * (n % 8)
            c = '0' if s == 0 else 'v[%d:%d]' % (acc, acc + 15)
            return 'v_mfma_f32_32x32x16_bf16 v[%d:%d], v[%d:%d], a[%d:%d], %s' % (acc, acc + 15, a, a + 3, 4 * s, 4 * s + 3, c)
        def mean(tau):
            acc = ACC + 16 * tau
            return 'v_mfma_f32_32x32x16_bf16 v[%d:%d], v[%d:%d], v[%d:%d], v[%d:%d]' % (acc, acc + 15, AM + 4 * tau, AM + 4 * tau + 3, BM, BM + 3, acc, acc + 15)
        ksm = self.softmax_pair([T0 + r for r in range(16)] + [T1 + r for r in range(4)], vC, EP, EM, ST)
        for d in range(10): ksm.append('v_cvt_pk_bf16_f32 v%d, v%d, v%d' % (P + d, EP + 2 * d, EP + 2 * d + 1))
        for d in range(10): ksm.append('v_cvt_pk_bf16_f32 v%d, v%d, v%d' % (P + 10 + d, EM + 2 * d, EM + 2 * d + 1))
        V = [T1 + r for r in range(4, 16)] + [T2 + r for r in range(8)]
        for f in range(20): ksm.append('v_mul_f32 v%d, v%d, v%d' % (V[f], V[f], vRS))
        for d in range(10): ksm.append('v_cvt_pk_bf16_f32 v%d, v%d, v%d' % (P + 20 + d, V[2 * d], V[2 * d + 1]))
        ksm += ['v_mov_b32 v%d, 0x3f80' % (P + 30), 'v_mov_b32 v%d, 0' % (P + 31)]
        anchors = []; pre = {}; fixed = {}; idx = {}
        for n in range(160):
            if n == 120:
                idx['mean'] = len(anchors)
                anchors += [mean(t) for t in range(3)]
            idx[n] = len(anchors)
            anchors.append(mfma(n))
            fixed[idx[n]] = ([read(n + LA)] if n + LA < 160 else []) + ([Need('v[%d:%d]' % (AF + 4 * ((n + 1) % 8), AF + 4 * ((n + 1) % 8) + 3))] if n + 1 < 160 else [])
        anchors.append(mean(3))
        for ep in range(1, 8):
            at = idx['mean'] if ep == 6 else idx[20 * ep]
            pre[at] = ([W_tag('blk%d' % (A0 + ep + 1))] if ep < 7 else []) + ['s_barrier']
            if self.o.get('fine') == 'a': pre[at] += self.stamp_items(19 + ep - 1)
        items = [(3 * s, 0, tok(s)) for s in range(NPRE, 40)]
        if not o.get('ampre', 1): items.append((90, 0, amload))
        if o.get('tw', 0): items.append((30, 0, self.touch_w('B')))
        items.append((o.get('a_stdl', 64), 0, stld))
        for b in self.A_in: items.append((20 * (b - 1), 0, self.flat(self.dma_ops(b))))
        last_in = o.get('a_lastblk', 11)
        for b in range(6, last_in + 1):
            free = 20 * (b - 5) if b - 5 < 6 else idx['mean']
            items.append((20 * (b - 1) if b < 8 else 200 + b, free, self.flat(self.dma_ops(b))))
        vs = self.vm_stream(items)
        valu = Stream(st, o.get('a_stv', 90)).add(ksm, idx[120] + 1)
        if o.get('fine') == 'a0': e.extend(self.stamp_items(19))
        e.wait_tag('blk0'); e.wait_tag('blk1')
        if self.A_tail:
            Lw = self.lab('a_l0w')
            e('s_cmp_lg_u32 s%d, 0' % sL); e('s_cbranch_scc1 %s' % Lw)
            e('s_waitcnt vmcnt(0)', count=False)
            e.label(Lw)
        e('s_barrier')
        if o.get('fine') == 'a0':
            e.extend(self.stamp_items(20))
            for k, at in enumerate((1, 3, 6, 9, 12, 15, 18)):
                pre[at] = pre.get(at, []) + self.stamp_items(21 + k)
        for n in range(LA): e(read(n))
        stt = {}
        e.extend(schedule(anchors, 5, pre, fixed, [vs, valu], vm_gap=o.get('a_gap', 2), state=stt))
        if o.get('verbose'): print('a forced', stt.get('forced'), 'left', len(vs.q), len(valu.q))
        e.extend([y[0] for y in vs.q]); e.extend([y[0] for y in valu.q])
        self.a_late = list(range(last_in + 1, 13))
        self.stamp(2)
        for m in range(8):
            e('ds_write_b128 v%d, v[%d:%d] offset:%d' % (vTW, P + 4 * m, P + 4 * m + 3, 16 * m))
        e.wait_lgkm0()
        e('s_barrier')
        KD = T0
        def kvread(ks):
            b = AF + 8 * (ks % 4)
            return ['ds_read_b64_tr_b16 v[%d:%d], v%d offset:%d' % (b, b + 1, vKA, ks * 2304),
                    'ds_read_b64_tr_b16 v[%d:%d], v%d offset:%d' % (b + 2, b + 3, vKA, ks * 2304 + 576),
                    'ds_read_b64_tr_b16 v[%d:%d], v%d offset:%d' % (b + 4, b + 5, vKB, ks * 2304),
                    'ds_read_b64_tr_b16 v[%d:%d], v%d offset:%d' % (b + 6, b + 7, vKB, ks * 2304 + 576)]
        for ks in range(3): e.extend(kvread(ks))
        for ks in range(8):
            if ks + 3 < 8: e.extend(kvread(ks + 3))
            b = AF + 8 * (ks % 4)
            e('v_mfma_f32_32x32x16_bf16 v[%d:%d], v[%d:%d], v[%d:%d], %s' % (KD, KD + 15, b, b + 3, b + 4, b + 7, '0' if ks == 0 else 'v[%d:%d]' % (KD, KD + 15)))
        PK = EP
        for d in range(6): e('v_cvt_pk_bf16_f32 v%d, v%d, v%d' % (PK + d, KD + 2 * d, KD + 2 * d + 1))
        e('s_lshl_b32 s%d, s%d, 4\ns_add_u32 s%d, s%d, s%d\ns_lshl_b32 s%d, s%d, 12' % (sT0, sJ, sT0, sT0, sRB, sT0, sT0))
        e('s_add_u32 s%d, s%d, s%d\ns_add_u32 s%d, s%d, 0x%x' % (sT0, sT0, sLOFF, sT0, sT0, KVP))
        if o.get('reuse'): e('s_lshl_b32 s%d, s%d, 20\ns_add_u32 s%d, s%d, s%d' % (sT3, sL, sT0, sT0, sT3))
        e('buffer_store_dwordx4 v[%d:%d], v%d, s[4:7], s%d offen sc1' % (PK, PK + 3, vPS1, sT0))
        e('buffer_store_dwordx2 v[%d:%d], v%d, s[4:7], s%d offen sc1' % (PK + 4, PK + 5, vPS2, sT0))
        self.cnt(sT1, CNT_KV, sJ)
        self.signal(sT1)
        self.stamp(3)
        if o.get('tw', 0): e.extend(self.touch_w('C'))
        self.side_dma(self.a_late)
        for r in range(4): e('v_mov_b32 v%d, 0' % (AF + r))
        e('v_lshlrev_b32 v%d, 4, v0\nv_add_u32 v%d, 0x%x, v%d' % (vT1, vT1, SCR, vT1))
        for m in range(3): e('ds_write_b128 v%d, v[%d:%d] offset:%d' % (vT1, AF, AF + 3, m * 4096))
        Q = P
        X = [T2 + r for r in range(8, 16)] + [T3 + r for r in range(12)]
        e.extend(self.softmax_pair(X, vC, EP, EM, ST))
        order = []
        for sign in (EP, EM):
            order += [(sign + 0), (sign + 2), (sign + 8), (sign + 10), (sign + 4), (sign + 6), (sign + 12), (sign + 14)]
        order += [EP + 16, EP + 18, EM + 16, EM + 18]
        for d, r in enumerate(order): e('v_cvt_pk_bf16_f32 v%d, v%d, v%d' % (Q + d, r, r + 1))
        e.wait_lgkm0()
        self.stamp(4)
        self.poll(sT1)
        e('s_barrier')
        self.stamp(5)
        if self.maybe_stop('a1'): return True
        LD, SUM, PKK = 112, 176, 204
        e('s_lshl_b32 s%d, s%d, 16\ns_add_u32 s%d, s%d, s%d\ns_add_u32 s%d, s%d, 0x%x' % (sT0, sJ, sT0, sT0, sLOFF, sT0, sT0, KVP))
        if o.get('reuse'): e('s_lshl_b32 s%d, s%d, 20\ns_add_u32 s%d, s%d, s%d' % (sT3, sL, sT0, sT0, sT3))
        for p in range(16):
            if p: e('s_add_u32 s%d, s%d, 4096' % (sT0, sT0))
            e('buffer_load_dwordx4 v[%d:%d], v%d, s[4:7], s%d offen sc1' % (LD + 4 * p, LD + 4 * p + 3, vPL, sT0))
        e('v_mov_b32 v%d, 0x00003f80\nv_mov_b32 v%d, 0x3f800000' % (vT2, vT3))
        for k in range(8): e('v_mov_b32 v%d, 0' % (SUM + k))
        for p in range(16):
            for d in range(4):
                e('v_dot2c_f32_bf16 v%d, v%d, v%d' % (SUM + 2 * d, LD + 4 * p + d, vT2))
                e('v_dot2c_f32_bf16 v%d, v%d, v%d' % (SUM + 2 * d + 1, LD + 4 * p + d, vT3))
        for d in range(4): e('v_cvt_pk_bf16_f32 v%d, v%d, v%d' % (PKK + d, SUM + 2 * d, SUM + 2 * d + 1))
        e('ds_write_b128 v%d, v[%d:%d]' % (vAW, PKK, PKK + 3))
        e('ds_write_b64 v%d, v[%d:%d]' % (vAW2, PKK, PKK + 1))
        e.wait_lgkm0()
        e('s_barrier')
        e('v_add_u32 v%d, 0x%x, v%d' % (vT1, SCR, vL16))
        for n in range(8): e('ds_read_b128 v[%d:%d], v%d offset:%d' % (AF + 4 * n, AF + 4 * n + 3, vT1, n * 1024))
        G0, G1 = T0, T1
        for n in range(10):
            rho, s = n // 5, n % 5
            acc = G0 if rho == 0 else G1
            a = AF + 4 * (n % 8)
            e('v_mfma_f32_32x32x16_bf16 v[%d:%d], v[%d:%d], v[%d:%d], %s' % (acc, acc + 15, a, a + 3, Q + 4 * s, Q + 4 * s + 3, '0' if s == 0 else 'v[%d:%d]' % (acc, acc + 15)))
            if n < 2: e('ds_read_b128 v[%d:%d], v%d offset:%d' % (a, a + 3, vT1, (n + 8) * 1024))
        e('v_add_f32 v%d, %s, v%d' % (vT2, f32bits(1e-6), G1 + 4))
        e('v_rcp_f32 v%d, v%d' % (vT2, vT2))
        OP = 208
        src = [G0 + r for r in range(16)] + [G1 + r for r in range(4)]
        for r in src: e('v_mul_f32 v%d, v%d, v%d' % (r, r, vT2))
        for d in range(10): e('v_cvt_pk_bf16_f32 v%d, v%d, v%d' % (OP + d, src[2 * d], src[2 * d + 1]))
        e('s_lshl_b32 s%d, s%d, 3\ns_lshl_b32 s%d, s%d, 1\ns_add_u32 s%d, s%d, s%d\ns_mul_i32 s%d, s%d, 20480' % (sT0, sRB, sT1, sW, sT0, sT0, sT1, sT0, sT0))
        e('s_add_u32 s%d, s%d, s%d\ns_add_u32 s%d, s%d, 0x%x' % (sT0, sT0, sLOFF, sT0, sT0, O))
        e('buffer_store_dwordx4 v[%d:%d], v%d, s[4:7], s%d offen sc1' % (OP, OP + 3, vO0, sT0))
        e('buffer_store_dwordx4 v[%d:%d], v%d, s[4:7], s%d offen sc1' % (OP + 4, OP + 7, vO1, sT0))
        e('buffer_store_dwordx2 v[%d:%d], v%d, s[4:7], s%d offen sc1' % (OP + 8, OP + 9, vO2, sT0))
        self.stamp(6)
        self.cnt(sT1, CNT_O, sRB)
        self.signal(sT1)
        self.stamp(7)
        self.side_dma([C0])
        return self.maybe_stop('a')
    def gemm_bd(self, first_blk, nsteps, vs, pre_extra, valu):
        e = self.e
        LA = 5
        nf = nsteps * 5
        def read(n):
            i, tau = n // 5, n % 5
            return self.ring_read(AF + 4 * (n % 8), first_blk + i // 2, (i & 1) * 10240 + tau * 1024, kh=True)
        def mf(n, u):
            i, tau = n // 5, n % 5
            acc = ACC + (tau * 2 + u) * 4; a = AF + 4 * (n % 8); b = (2 * i + u) * 4
            c = '0' if i == 0 else 'v[%d:%d]' % (acc, acc + 3)
            return 'v_mfma_f32_16x16x32_bf16 v[%d:%d], v[%d:%d], a[%d:%d], %s' % (acc, acc + 3, a, a + 3, b, b + 3, c)
        anchors = []; pre = {}; fixed = {}
        for n in range(nf):
            anchors += [mf(n, 0), mf(n, 1)]
            if n + LA < nf: fixed[2 * n] = [read(n + LA)]
            if n + 1 < nf: fixed[2 * n + 1] = [Need('v[%d:%d]' % (AF + 4 * ((n + 1) % 8), AF + 4 * ((n + 1) % 8) + 3))]
        nep = nsteps // 2
        for ep in range(1, nep):
            pre[20 * ep] = list(pre_extra.get(ep, [])) + ([W_tag('blk%d' % (first_blk + ep + 1))] if ep + 1 < nep else []) + ['s_barrier']
            if self.o.get('fine') == 'd' and nsteps == 24: pre[20 * ep] += self.stamp_items(19 + ep - 1)
        for n in range(LA): e(read(n))
        stt = {}
        e.extend(schedule(anchors, 2, pre, fixed, [vs, valu], vm_gap=self.o.get('d_gap', 2), state=stt))
        if self.o.get('verbose'): print('bd forced', stt.get('forced'), 'left', len(vs.q), len(valu.q))
        e.extend([y[0] for y in vs.q]); e.extend([y[0] for y in valu.q])
    def bd_unpack(self):
        U = 112; L = []
        for d in range(10):
            L.append('v_lshlrev_b32 v%d, 16, v%d' % (U + 2 * d, XR + d))
            L.append('v_and_b32 v%d, 0xffff0000, v%d' % (U + 2 * d + 1, XR + d))
        return L
    def bd_epilogue(self, last_blk, final):
        e = self.e
        EX = 88
        for tau in range(5):
            a = ACC + (tau * 2 + 1) * 4
            e('ds_write_b128 v%d, v[%d:%d] offset:%d' % (vEXW, a, a + 3, tau * 1024))
        e.wait_lgkm0()
        e('s_barrier')
        for tau in range(5):
            e('ds_read_b128 v[%d:%d], v%d offset:%d' % (EX + 4 * tau, EX + 4 * tau + 3, vEXR, tau * 1024))
        U = 112
        for tau in range(5):
            a = ACC + (tau * 2) * 4
            for c in range(4):
                e('v_add_f32 v%d, v%d, v%d' % (U + 4 * tau + c, U + 4 * tau + c, a + c))
        for tau in range(5):
            for c in range(4):
                e('v_add_f32 v%d, v%d, v%d' % (U + 4 * tau + c, U + 4 * tau + c, EX + 4 * tau + c))
        for d in range(10): e('v_cvt_pk_bf16_f32 v%d, v%d, v%d' % (XR + d, U + 2 * d, U + 2 * d + 1))
        final()
    def bd_stats(self, base_off, next_layer):
        e = self.e
        S, Q = 136, 137
        e('v_mov_b32 v%d, 0\nv_mov_b32 v%d, 0' % (S, Q))
        for d in range(10):
            e('v_dot2c_f32_bf16 v%d, v%d, v%d' % (S, XR + d, vONES))
            e('v_dot2c_f32_bf16 v%d, v%d, v%d' % (Q, XR + d, XR + d))
        for sw in ('v_permlane16_swap_b32', 'v_permlane32_swap_b32'):
            e('v_mov_b32 v138, v%d\nv_mov_b32 v139, v%d' % (S, Q))
            e('%s v%d, v138\n%s v%d, v139' % (sw, S, sw, Q))
            e('v_add_f32 v%d, v%d, v138\nv_add_f32 v%d, v%d, v139' % (S, S, Q, Q))
        e('s_lshl_b32 s%d, s%d, 7\ns_lshl_b32 s%d, s%d, 14\ns_add_u32 s%d, s%d, s%d' % (sT2, sTTK, sT3, sCS, sT2, sT2, sT3))
        e('s_add_u32 s%d, s%d, s%d\ns_add_u32 s%d, s%d, 0x%x' % (sT2, sT2, sLOFF, sT2, sT2, base_off + (self.lstride if next_layer else 0)))
        if not self.o.get('nostats'): e('buffer_store_dwordx2 v[%d:%d], v%d, s[4:7], s%d offen sc1' % (S, Q, vST, sT2))
    def phase_b(self):
        e = self.e
        self.cnt(sT0, CNT_O, sRB)
        for (s, tt) in ((sB0, sTTK), (sB1, sTTS)):
            e('s_mul_i32 s%d, s%d, 20\ns_mul_i32 s%d, s%d, 10\ns_add_u32 s%d, s%d, s%d\ns_lshl_b32 s%d, s%d, 10' % (s, tt, sT1, sKH, s, s, sT1, s, s))
            e('s_add_u32 s%d, s%d, s%d\ns_add_u32 s%d, s%d, 0x%x' % (s, s, sLOFF, s, s, O))
        def tok(i, u):
            s = sB0 if u == 0 else sB1
            t = sC1 + u
            g = []
            if i % 4 == 0: g.append('s_add_u32 s%d, s%d, %d' % (t, s, i * 1024))
            g.append('buffer_load_dwordx4 a[%d:%d], v%d, s[4:7], s%d offen offset:%d%s' % ((2 * i + u) * 4, (2 * i + u) * 4 + 3, vL16, t, (i % 4) * 1024, self.sc))
            return g
        e.wait_tag('blk%d' % B0); e.wait_tag('blk%d' % (B0 + 1))
        self.poll(sT0)
        e('s_barrier')
        self.stamp(8)
        NPRE = self.o.get('b_npre', 10)
        for i in range(NPRE):
            for u in range(2): e.extend(tok(i, u))
        items = [(10 * i, 0, tok(i, 0) + tok(i, 1)) for i in range(NPRE, 10)]
        for k, b in enumerate(self.C_tail): items.append((5000 + b, 20 * (k + 1), self.flat(self.dma_ops(b))))
        vs = self.vm_stream(items)
        self.gemm_bd(B0, 10, vs, {}, Stream(self.bd_unpack(), 60))
        self.stamp(9)
        def final():
            e('s_mul_i32 s%d, s%d, 20480\ns_add_u32 s%d, s%d, s%d\ns_add_u32 s%d, s%d, 0x%x' % (sT0, sTTK, sT0, sT0, sLOFF, sT0, sT0, XC))
            e('buffer_store_dwordx4 v[%d:%d], v%d, s[4:7], s%d offen sc1' % (XR, XR + 3, vX0, sT0))
            e('buffer_store_dwordx4 v[%d:%d], v%d, s[4:7], s%d offen sc1' % (XR + 4, XR + 7, vX1, sT0))
            e('buffer_store_dwordx2 v[%d:%d], v%d, s[4:7], s%d offen sc1' % (XR + 8, XR + 9, vX2, sT0))
            self.bd_stats(SC, False)
            self.cnt(sT1, CNT_XC, sRB)
            self.signal(sT1)
            self.stamp(10)
            if self.o.get('ampre', 1): self.am_c()
            self.side_dma(self.C_side)
        self.bd_epilogue(B0 + 4, final)
        return self.maybe_stop('b')
    def gelu_ops(self, accset, u, c0, c1, vVE, HP, t):
        L = []
        G = [accset + (p * 2 + u) * 4 + c for p in range(2) for c in range(4)]
        U = [accset + ((2 + p) * 2 + u) * 4 + c for p in range(2) for c in range(4)]
        g = [t + i for i in range(8)]; w = [t + 8 + i for i in range(8)]
        for h in range(2):
            R = range(4 * h, 4 * h + 4)
            for i in R: L.append('v_mul_f32 v%d, v%d, v%d' % (w[i], G[i], G[i]))
            for i in R: L.append('v_fma_f32 v%d, v%d, v%d, v%d' % (w[i], w[i], c1, c0))
            for i in R: L.append('v_mul_f32 v%d, v%d, v%d' % (w[i], w[i], G[i]))
            for i in R:
                L.append('v_exp_f32 v%d, v%d' % (w[i], w[i]))
                L.append('v_mul_f32 v%d, v%d, v%d' % (g[i], G[i], U[i]))
            for i in R: L.append('v_fma_f32 v%d, v%d, v%d, v%d' % (w[i], w[i], vVE, vVE))
            for i in R: L.append('v_rcp_f32 v%d, v%d' % (w[i], w[i]))
            for i in R: L.append('v_mul_f32 v%d, v%d, v%d' % (g[i], g[i], w[i]))
            for d in (2 * h, 2 * h + 1): L.append('v_cvt_pk_bf16_f32 v%d, v%d, v%d' % (HP + d, g[2 * d], g[2 * d + 1]))
        return L
    def check_flag(self, vreg, cnt_sgpr, target=16):
        sub = Asm()
        X = self.lab('ck'); L = self.lab('ckl')
        sub('v_cmp_gt_u32 vcc, %d, v%d' % (target, vreg))
        sub('s_cbranch_vccz %s' % X)
        sub('s_cmp_lg_u32 s%d, 0' % sDEAD); sub('s_cbranch_scc1 %s' % X)
        sub('s_mov_b32 s%d, 0' % sPC)
        sub.label(L)
        sub('buffer_load_dword v%d, v%d, s[4:7], s%d offen sc1' % (vreg, vZERO, cnt_sgpr), count=False)
        sub('s_waitcnt vmcnt(0)', count=False)
        sub('v_cmp_gt_u32 vcc, %d, v%d' % (target, vreg))
        sub('s_cbranch_vccz %s' % X)
        sub('s_add_u32 s%d, s%d, 1' % (sPC, sPC)); sub('s_cmp_lt_u32 s%d, %d' % (sPC, SPIN_LIMIT))
        sub('s_cbranch_scc1 %s' % L)
        sub('s_mov_b32 s%d, 1' % sDEAD)
        sub.label(X)
        return sub.items
    def phase_c(self):
        e = self.e; o = self.o
        ST, RS, VE, BMs, AM, GT, HP = 112, (120, 121), (122, 123), (124, 132), 136, 152, (168, 172)
        GC0, GC1 = (176, 177), (178, 179)
        k0 = -2.0 * 0.7978845608028654 * LOG2E
        self.cnt(sT0, CNT_XC, sRB)
        e('s_lshl_b32 s%d, s%d, 3\ns_lshl_b32 s%d, s%d, 1\ns_add_u32 s%d, s%d, s%d' % (sT2, sRB, sT1, sW, sT2, sT2, sT1))
        e('s_lshl_b32 s%d, s%d, 7\ns_add_u32 s%d, s%d, s%d\ns_add_u32 s%d, s%d, 0x%x' % (sT1, sT2, sT1, sT1, sLOFF, sT1, sT1, SC))
        e('s_mul_i32 s%d, s%d, 20480\ns_add_u32 s%d, s%d, s%d\ns_add_u32 s%d, s%d, 0x%x' % (sB0, sT2, sB0, sB0, sLOFF, sB0, sB0, XC))
        e('s_add_u32 s%d, s%d, 20480' % (sB1, sB0))
        e('s_mul_i32 s%d, s%d, 48\ns_add_u32 s%d, s%d, s%d\ns_lshl_b32 s%d, s%d, 10' % (sTW, sT2, sTW, sTW, sJ, sTW, sTW))
        e('s_add_u32 s%d, s%d, s%d\ns_add_u32 s%d, s%d, 0x%x' % (sTW, sTW, sLOFF, sTW, sTW, HH))
        if not o.get('ampre', 1): e('s_mul_i32 s%d, s%d, %d\ns_add_u32 s%d, s%d, 0x%x' % (sT4, sJ, 12 * KB, sT4, sT4, WCM))
        self.poll(sT0)
        e('s_barrier')
        self.stamp(11)
        def tok(s, u):
            sb = sB0 if u == 0 else sB1; t = sC1 + u
            g = []
            if s % 4 == 0: g.append('s_add_u32 s%d, s%d, %d' % (t, sb, s * 1024))
            g.append('buffer_load_dwordx4 a[%d:%d], v%d, s[4:7], s%d offen offset:%d%s' % ((2 * s + u) * 4, (2 * s + u) * 4 + 3, vL16, t, (s % 4) * 1024, self.sc))
            return g
        NPRE = o.get('c_npre', 8)
        if o.get('tt', 0): e.extend(self.touch_tok(XC))
        for s in range(NPRE):
            for u in range(2): e.extend(tok(s, u))
        stld = []
        for k in range(2):
            if k: stld.append('s_add_u32 s%d, s%d, 16384' % (sT1, sT1))
            for u in range(2):
                stld.append('buffer_load_dwordx2 v[%d:%d], v%d, s[4:7], s%d offen offset:%d sc1' % (ST + 4 * u + 2 * k, ST + 4 * u + 2 * k + 1, vSC, sT1, 128 * u))
        def amload(sg):
            pre = [] if sg == 0 else ['s_add_u32 s%d, s%d, 4096' % (sT4, sT4)]
            return pre + ['buffer_load_dwordx4 v[%d:%d], v%d, s[4:7], s%d offen offset:%d' % (AM + 4 * t, AM + 4 * t + 3, vL16, sT4, t * 1024) for t in range(4)]
        st = []
        for u in range(2):
            b = ST + 4 * u
            st += ['v_add_f32 v%d, v%d, v%d' % (b, b, b + 2), 'v_add_f32 v%d, v%d, v%d' % (b + 1, b + 1, b + 3)]
            for sw in ('v_permlane16_swap_b32', 'v_permlane32_swap_b32'):
                st += ['v_mov_b32 v%d, v%d' % (b + 2, b), 'v_mov_b32 v%d, v%d' % (b + 3, b + 1),
                       '%s v%d, v%d' % (sw, b, b + 2), '%s v%d, v%d' % (sw, b + 1, b + 3),
                       'v_add_f32 v%d, v%d, v%d' % (b, b, b + 2), 'v_add_f32 v%d, v%d, v%d' % (b + 1, b + 1, b + 3)]
            st += self.rowstat_finish(b, b + 1, RS[u], VE[u], BMs[u], b + 2)
            st += ['v_mul_f32 v%d, %s, v%d' % (GC0[u], f32bits(k0), RS[u]),
                   'v_mul_f32 v%d, v%d, v%d' % (GC1[u], RS[u], RS[u]),
                   'v_mul_f32 v%d, v%d, v%d' % (GC1[u], GC1[u], GC0[u]),
                   'v_mul_f32 v%d, %s, v%d' % (GC1[u], f32bits(0.044715), GC1[u])]
        LA = 5
        def read(n): return self.ring_read(AF + 4 * (n % 8), C0 + n // 20, (n % 20) * 1024)
        def mf(n, u):
            sg, r = n // 80, n % 80; s, tl = r // 4, r % 4
            acc = ACC + 32 * (sg & 1) + (tl * 2 + u) * 4; a = AF + 4 * (n % 8); b = (2 * s + u) * 4
            c = '0' if s == 0 else 'v[%d:%d]' % (acc, acc + 3)
            return 'v_mfma_f32_16x16x32_bf16 v[%d:%d], v[%d:%d], a[%d:%d], %s' % (acc, acc + 3, a, a + 3, b, b + 3, c)
        def mean(sg):
            L = []
            for tl in range(4):
                for u in range(2):
                    acc = ACC + 32 * (sg & 1) + (tl * 2 + u) * 4
                    L.append('v_mfma_f32_16x16x32_bf16 v[%d:%d], v[%d:%d], v[%d:%d], v[%d:%d]' % (acc, acc + 3, AM + 4 * tl, AM + 4 * tl + 3, BMs[u], BMs[u] + 3, acc, acc + 3))
            return L
        def gelu_store(sg):
            L = []
            for u in range(2):
                L += self.gelu_ops(ACC + 32 * (sg & 1), u, GC0[u], GC1[u], VE[u], HP[u], GT)
                L.append('s_add_u32 s%d, s%d, %d' % (sT5, sTW, u * 48 * 1024 + sg * 16 * 1024))
                L.append(('buffer_store_dwordx4 v[%d:%d], v%d, s[4:7], s%d offen sc1' % (HP[u], HP[u] + 3, vL16, sT5), 'h%d' % sg))
            return L
        def ix(n): return 2 * n + 8 * (n // 80)
        items = [(ix(4 * s), 0, tok(s, 0) + tok(s, 1)) for s in range(NPRE, 20)]
        for b in self.C_in:
            dl = ix(20 * (b - C0 - 1)) - (8 if (b - C0 - 1) % 4 == 0 and b > C0 + 1 else 0)
            items.append((dl, 0, self.flat(self.dma_ops(b)), dl - o.get('c_lead', 40)))
        last_in = o.get('c_lastblk', D0 + 4)
        for b in range(C0 + 6, last_in + 1):
            free = 20 * (b - C0 - 5)
            epn = b - C0 - 1
            dl = ix(20 * epn) - (8 if epn % 4 == 0 else 0) if b < D0 else 10000 + b
            items.append((dl, ix(free) - (8 if free % 80 == 0 else 0), self.flat(self.dma_ops(b))))
        if not o.get('ampre', 1): items.append((ix(60), 0, amload(0)))
        if o.get('tw', 0): items.append((ix(90), ix(84), self.touch_w('D')))
        items.append((ix(o.get('c_stdl', 44)), 0, stld))
        items.append((ix(130), ix(80), amload(1)))
        items.append((ix(210), ix(160), amload(2)))
        self.cnt(sT0, CNT_H, sRB, mul=384)
        items.append((ix(239), ix(o.get('c_fl', 226)), ['buffer_load_dword v%d, v%d, s[4:7], s%d offen sc1' % (vPOLL, vZERO, sT0)], 20000))
        vs = self.vm_stream(items)
        e.wait_tag('blk%d' % C0); e.wait_tag('blk%d' % (C0 + 1))
        e('s_barrier')
        for n in range(LA): e(read(n))
        pos = 0; cstate = {}
        for sg in range(3):
            anchors = []; pre = {}; fixed = {}
            if sg > 0: anchors += mean(sg - 1)
            for n in range(80 * sg, 80 * sg + 80):
                assert pos + len(anchors) == ix(n)
                anchors += [mf(n, 0), mf(n, 1)]
                if n + LA < 240: fixed[ix(n)] = [read(n + LA)]
                if n + 1 < 240: fixed[ix(n) + 1] = [Need('v[%d:%d]' % (AF + 4 * ((n + 1) % 8), AF + 4 * ((n + 1) % 8) + 3))]
            for ep in range(4 * sg, 4 * sg + 4):
                if ep == 0: continue
                at = ix(20 * ep) - (8 if ep % 4 == 0 else 0)
                p = [W_tag('blk%d' % (C0 + ep + 1))] if ep < 11 else []
                if ep == o.get('h0ep', 9): p.append(W_tag('h0'))
                p.append('s_barrier')
                if self.o.get('fine') == 'c': p += self.stamp_items(19 + ep - 1)
                if ep == o.get('h0ep', 9):
                    sub = Main(None, self.o); sub.nlab = self.nlab + 1000
                    sub.signal_only(sT0)
                    p += sub.e.items
                pre[at] = p
            valu = Stream(st, ix(o.get('c_stv', 56))) if sg == 0 else Stream(gelu_store(sg - 1), pos + 10)
            e.extend(schedule(anchors, 2, pre, fixed, [vs, valu], start=pos, vm_gap=(o.get('c_gap', 4) if sg == 0 else o.get('c_gap2', 4)), state=cstate))
            e.extend([y[0] for y in valu.q])
            pos += len(anchors)
        if self.o.get('verbose'): print('c forced', cstate.get('forced'), 'left', len(vs.q))
        e.extend([y[0] for y in vs.q])
        self.stamp(12)
        e.extend(self.check_flag(vPOLL, sT0))
        self.d_bases()
        tail = mean(2) + gelu_store(2)
        toks = [self.d_tok(i, u) for i in range(8) for u in range(2)]
        step = max(1, (len(tail) - 8) // (len(toks) + 1))
        k = 0
        for n, x in enumerate(tail):
            if k < len(toks) and n % step == 0: e.extend(toks[k]); k += 1
            e.extend([x])
        for g in toks[k:]: e.extend(g)
        self.cnt(sT1, CNT_H, sRB, mul=384, add=256)
        self.signal(sT1)
        self.stamp(13)
        self.c_last = last_in
        return self.maybe_stop('c')
    def d_bases(self):
        e = self.e
        for (s, tt) in ((sB0, sTTK), (sB1, sTTS)):
            e('s_mul_i32 s%d, s%d, 48\ns_add_u32 s%d, s%d, s%d\ns_lshl_b32 s%d, s%d, 10' % (s, tt, s, s, sKH, s, s))
            e('s_add_u32 s%d, s%d, s%d\ns_add_u32 s%d, s%d, 0x%x' % (s, s, sLOFF, s, s, HH))
    def d_tok(self, i, u):
        sg, jj = i // 8, i % 8
        s = sB0 if u == 0 else sB1; t = sC1 + u
        g = []
        if jj % 2 == 0: g.append('s_add_u32 s%d, s%d, %d' % (t, s, sg * 16384 + jj * 2048))
        g.append('buffer_load_dwordx4 a[%d:%d], v%d, s[4:7], s%d offen offset:%d%s' % ((2 * i + u) * 4, (2 * i + u) * 4 + 3, vL16, t, (jj % 2) * 2048, self.sc))
        return g
    def phase_d(self):
        e = self.e; o = self.o
        tok = self.d_tok
        self.stamp(14)
        CK = o.get('d_ck', 3)
        items = []
        for b in range(self.c_last + 1, D0 + 6): items.append((20 * (b - D0 - 1), 0, self.flat(self.dma_ops(b)), b - 200))
        for b in range(D0 + 6, NBLK):
            early = 20 * (b - D0 - 5)
            key = (b - 200) if early < 20 * CK else 20 * (b - D0 - 1)
            items.append((20 * (b - D0 - 1), early, self.flat(self.dma_ops(b)), key))
        items.append((20 * CK - 1, 20 * CK - o.get('d_fl', 14), ['buffer_load_dword v%d, v%d, s[4:7], s%d offen sc1' % (vPOLL, vZERO, sT1)], -1))
        items += [(10 * i, 20 * CK, tok(i, 0) + tok(i, 1)) for i in range(8, 24)]
        if o.get('tw', 0): items.append((30, 0, self.touch_w('A'), -500))
        for b in self.A_tail: items.append((5000 + b, 20 * (6 + b), self.flat(self.dma_ops(b))))
        chk = [W_vreg(vPOLL)] + self.check_flag(vPOLL, sT1)
        self.gemm_bd(D0, 24, self.vm_stream(items), {CK: chk}, Stream(self.bd_unpack(), 200))
        self.stamp(17)
        def final():
            L = self.lab('d_last'); X = self.lab('d_done')
            e('s_cmp_lg_u32 s%d, 0' % sL); e('s_cbranch_scc1 %s' % L)
            e('s_lshr_b32 s%d, s%d, 1\ns_mul_i32 s%d, s%d, 40960\ns_add_u32 s%d, s%d, s%d\ns_add_u32 s%d, s%d, 0x%x' % (sT0, sTTK, sT0, sT0, sT0, sT0, sLOFF, sT0, sT0, XA + self.lstride))
            e('buffer_store_dwordx4 v[%d:%d], v%d, s[4:7], s%d offen sc1' % (XR, XR + 3, vY0, sT0))
            e('buffer_store_dwordx4 v[%d:%d], v%d, s[4:7], s%d offen sc1' % (XR + 4, XR + 7, vY1, sT0))
            e('buffer_store_dwordx2 v[%d:%d], v%d, s[4:7], s%d offen sc1' % (XR + 8, XR + 9, vY2, sT0))
            self.bd_stats(SA, True)
            self.cnt(sT1, CNT_XA, sRB, next_layer=True)
            self.signal(sT1)
            self.stamp(18)
            if self.o.get('ampre', 1): self.am_a()
            self.side_dma(self.A_side)
            e('s_branch %s' % X)
            e.label(L)
            e('s_mul_i32 s%d, s%d, 20480\ns_mul_i32 s%d, s%d, 160\ns_add_u32 s%d, s%d, s%d' % (sT0, sTTK, sT1, sCS, sT0, sT0, sT1))
            e('buffer_store_dwordx4 v[%d:%d], v%d, s[12:15], s%d offen' % (XR, XR + 3, vR0, sT0))
            e('buffer_store_dwordx4 v[%d:%d], v%d, s[12:15], s%d offen offset:64' % (XR + 4, XR + 7, vR0, sT0))
            e('buffer_store_dwordx2 v[%d:%d], v%d, s[12:15], s%d offen' % (XR + 8, XR + 9, vR2, sT0))
            self.stamp(18)
            self.stamp_flush()
            e('s_endpgm')
            e.label(X)
        self.bd_epilogue(D0 + 11, final)
        return self.maybe_stop('d')
    def build(self):
        e = self.e
        self.prologue()
        e.label('M_LAYER')
        done = self.phase_a() or self.phase_b() or self.phase_c() or self.phase_d()
        if not done:
            e('s_add_u32 s%d, s%d, 1\ns_add_u32 s%d, s%d, 0x%x\ns_add_u32 s%d, s%d, 0x%x' % (sL, sL, sLOFF, sLOFF, self.lstride, sCNT, sCNT, CSTRIDE))
            e('s_branch M_LAYER')
        e.label('M_END')
        e('s_endpgm')
        e.label('M_CODE_END')
        return e
```

```python
import re
from asmlib import *
from layout import *

SC = ' sc1'
KARG = {40: 64, 41: 65, 42: 66, 43: 67, 44: 68, 45: 69, 46: 70, 47: 71, 48: 72, 49: 73, 50: 74, 51: 75, 52: 76, 53: 77}
TOK = re.compile(r'\b([sv])(\d+)\b|\b([sv])\[(\d+):(\d+)\]')

class Ren:
    def __init__(self, e, slot, sU):
        self.e = e; self.slot = slot
        ts = (list(range(26, 40)) + [60, 61]) if slot == 1 else (list(range(88, 102)) + [62, 63])
        self.s = {20 + i: r for i, r in enumerate(ts)}
        self.s.update(KARG); self.s[2] = sU
        if slot == 2: self.s.update({8: 84, 9: 85, 10: 86, 11: 87})
        vb = 196 if slot == 1 else 176
        self.v = {5 + i: vb + i for i in range(20)}
        self.v[4] = 1
        if slot == 2: self.v.update({32 + i: 128 + i for i in range(20)})
    def ren(self, txt):
        def f(m):
            if m.group(1):
                k, n = m.group(1), int(m.group(2))
                return '%s%d' % (k, (self.s if k == 's' else self.v).get(n, n))
            k, a, b = m.group(3), int(m.group(4)), int(m.group(5))
            mp = self.s if k == 's' else self.v
            na, nb = mp.get(a, a), mp.get(b, b)
            assert nb - na == b - a, txt
            return '%s[%d:%d]' % (k, na, nb)
        return TOK.sub(f, txt)
    def __call__(self, txt, tag=None, count=True): self.e(self.ren(txt), tag, count)
    def label(self, n): self.e.label(n)

def srd(r, dst, lo, nbytes):
    r('s_mov_b32 s%d, s%d\ns_mov_b32 s%d, s%d\ns_mov_b32 s%d, 0x%x\ns_mov_b32 s%d, 0x20000' % (dst, lo, dst + 1, lo + 1, dst + 2, nbytes, dst + 3))

def hilo_store(r, vsum, vtmp, voff, soff):
    r('v_cvt_pk_bf16_f32 v%d, v%d, v%d' % (vtmp, vsum, vsum))
    r('v_and_b32 v%d, 0xffff0000, v%d' % (vtmp + 2, vtmp))
    r('v_sub_f32 v%d, v%d, v%d' % (vtmp + 2, vsum, vtmp + 2))
    r('v_cvt_pk_bf16_f32 v%d, v%d, v%d' % (vtmp + 1, vtmp + 2, vtmp + 2))
    r('buffer_store_dwordx2 v[%d:%d], v%d, s[4:7], %s offen%s' % (vtmp - 0, vtmp + 1, voff, soff, SC))

def wa_issue(r):
    srd(r, 8, 42, 640 * 3840)
    srd(r, 12, 44, 32 * 800)
    r('s_lshl_b32 s20, s2, 2\ns_add_u32 s20, s20, s16')
    r('s_mul_i32 s21, s20, 2731\ns_lshr_b32 s21, s21, 16')
    r('s_mul_i32 s22, s21, 24\ns_sub_u32 s22, s20, s22')
    r('s_mul_i32 s23, s22, 43\ns_lshr_b32 s23, s23, 8')
    r('s_mul_i32 s24, s23, 6\ns_sub_u32 s24, s22, s24')
    r('s_lshr_b32 s25, s24, 1\ns_and_b32 s26, s24, 1')
    r('s_lshl_b32 s27, s21, 1\ns_add_u32 s27, s27, s26')
    r('s_add_u32 s28, s25, 1\ns_mul_i32 s28, s28, 640')
    r('s_cmp_eq_u32 s25, 2\ns_cselect_b32 s28, 0, s28')
    r('s_mul_i32 s29, s27, 20\ns_add_u32 s28, s28, s29\ns_lshl_b32 s28, s28, 1')
    r('s_mul_i32 s29, s23, %d\ns_add_u32 s28, s28, s29' % (160 * 3840))
    r('v_and_b32 v5, 31, v2\nv_lshrrev_b32 v6, 5, v2')
    r('v_and_b32 v7, 0x13, v5')
    r('v_bfe_u32 v8, v5, 2, 1\nv_lshl_add_u32 v7, v8, 3, v7')
    r('v_bfe_u32 v8, v5, 3, 1\nv_lshl_add_u32 v7, v8, 2, v7')
    r('v_mul_u32_u24 v7, 3840, v7\nv_lshl_add_u32 v7, v6, 4, v7')
    for kt in range(5):
        r('s_add_u32 s30, s28, %d' % (kt * 32 * 3840))
        for m in range(2):
            x = 32 + 8 * kt + 4 * m
            r('buffer_load_dwordx4 v[%d:%d], v7, s[8:11], s30 offen offset:%d' % (x, x + 3, 32 * m), count=False)
    r('s_cmp_eq_u32 s25, 1\ns_cbranch_scc1 PR_WA_NOG')
    r('v_lshlrev_b32 v8, 1, v5')
    r('v_mul_u32_u24 v9, 320, v6\nv_add_u32 v8, v8, v9')
    r('s_mul_i32 s30, s27, 800')
    r('v_mov_b32 v10, 0x%x' % OOB)
    r('v_cmp_gt_u32 vcc, 20, v5\nv_cndmask_b32 v8, v10, v8, vcc')
    r('v_cmp_eq_u32 vcc, 0, v6\nv_cndmask_b32 v9, v10, v8, vcc')
    for el in range(8):
        r('buffer_load_ushort v%d, v8, s[12:15], s30 offen offset:%d' % (80 + el, el * 40), count=False)
    for el in range(4):
        r('buffer_load_ushort v%d, v9, s[12:15], s30 offen offset:%d' % (88 + el, (16 + el) * 40), count=False)
    r.label('PR_WA_NOG')
def wa_process(r):
    r('s_cmp_eq_u32 s25, 1\ns_cbranch_scc1 PR_WA_ID')
    for d in range(4): r('v_lshl_or_b32 v%d, v%d, 16, v%d' % (72 + d, 81 + 2 * d, 80 + 2 * d))
    for d in range(2): r('v_lshl_or_b32 v%d, v%d, 16, v%d' % (76 + d, 89 + 2 * d, 88 + 2 * d))
    r('v_mov_b32 v78, 0\nv_mov_b32 v79, 0')
    r('s_branch PR_WA_GO')
    r.label('PR_WA_ID')
    r('v_lshlrev_b32 v8, 3, v6\nv_sub_u32 v8, v5, v8')
    r('v_mov_b32 v10, 0x3f80\nv_mov_b32 v11, 0x3f800000\nv_mov_b32 v12, 0')
    for m in range(2):
        if m == 1: r('v_subrev_u32 v8, 16, v8')
        for d in range(4):
            r('v_cmp_eq_u32 vcc, %d, v8' % (2 * d))
            r('v_cndmask_b32 v%d, v12, v10, vcc' % (72 + 4 * m + d))
            r('v_cmp_eq_u32 vcc, %d, v8' % (2 * d + 1))
            r('v_cndmask_b32 v%d, v%d, v11, vcc' % (72 + 4 * m + d, 72 + 4 * m + d))
    r.label('PR_WA_GO')
    r('s_mul_i32 s30, s25, 20\nv_add_u32 v8, s30, v5')
    r('v_lshrrev_b32 v9, 4, v8\nv_and_b32 v10, 15, v8')
    r('v_lshrrev_b32 v11, 2, v10\nv_lshlrev_b32 v11, 3, v11')
    r('v_and_b32 v10, 3, v10\nv_add_u32 v11, v11, v10')
    r('s_lshl_b32 s31, s26, 2\nv_add_u32 v11, s31, v11')
    r('v_lshl_add_u32 v12, v6, 5, v11\nv_lshlrev_b32 v12, 4, v12')
    r('v_cmp_gt_u32 vcc, 3, v9')
    r('v_mov_b32 v13, 120\nv_cndmask_b32 v13, v13, v9, vcc')
    r('v_mov_b32 v14, 1024\nv_mov_b32 v15, 3072\nv_cndmask_b32 v14, v14, v15, vcc')
    r('v_lshl_add_u32 v12, v13, 10, v12')
    r('s_mul_i32 s31, s23, 10\nv_mul_lo_u32 v15, v14, s31\nv_add_u32 v12, v12, v15')
    r('s_cmp_eq_u32 s25, 2\ns_cselect_b32 s32, 24, 20')
    r('v_cmp_gt_u32 vcc, s32, v5\nv_mov_b32 v16, 0x%x' % OOB)
    r('v_cndmask_b32 v12, v16, v12, vcc')
    r('v_lshlrev_b32 v17, 10, v9\nv_lshl_add_u32 v17, v11, 4, v17')
    r('v_cndmask_b32 v17, v16, v17, vcc')
    r('v_cmp_eq_u32 vcc, 0, v6\nv_cndmask_b32 v17, v16, v17, vcc')
    r('s_mul_i32 s33, s21, %d\ns_add_u32 s33, s33, 0x%x' % (160 * KB, WA))
    r('v_mov_b32 v18, 0')
    for kt in range(5):
        a0 = 32 + 8 * kt
        r('v_mfma_f32_32x32x16_bf16 v[96:111], v[%d:%d], v[72:75], 0' % (a0, a0 + 3))
        r('v_mfma_f32_32x32x16_bf16 v[96:111], v[%d:%d], v[76:79], v[96:111]' % (a0 + 4, a0 + 7))
        for d in range(8): r('v_cvt_pk_bf16_f32 v%d, v%d, v%d' % (112 + d, 96 + 2 * d, 97 + 2 * d))
        for d in range(8): r('v_dot2c_f32_bf16 v18, v%d, v3' % (112 + d))
        r('buffer_store_dwordx4 v[112:115], v12, s[4:7], s33 offen' + SC)
        r('v_add_u32 v19, v12, v14')
        r('buffer_store_dwordx4 v[116:119], v19, s[4:7], s33 offen' + SC)
        r('v_add_u32 v12, v19, v14')
    r('v_mov_b32 v19, v18')
    r('v_permlane32_swap_b32 v18, v19')
    r('v_add_f32 v18, v18, v19')
    r('s_lshl_b32 s34, s21, 12\ns_add_u32 s34, s34, 0x%x' % WAM)
    r('s_lshr_b32 s35, s23, 1\ns_lshl_b32 s35, s35, 9\ns_add_u32 s34, s34, s35')
    r('s_and_b32 s35, s23, 1\ns_lshl_b32 s35, s35, 3\ns_add_u32 s34, s34, s35')
    hilo_store(r, 18, 21, 17, 's34')

def x_issue(r):
    srd(r, 8, 40, T * 1280)
    r('s_sub_u32 s20, s2, 448')
    r('v_and_b32 v5, 31, v2\nv_lshrrev_b32 v6, 5, v2')
    r('v_mul_u32_u24 v7, 1280, v5\nv_lshl_add_u32 v7, v6, 4, v7')
    r('s_mul_i32 s21, s20, 40960\ns_mul_i32 s22, s16, 320\ns_add_u32 s21, s21, s22')
    for n in range(10):
        r('buffer_load_dwordx4 v[%d:%d], v7, s[8:11], s21 offen offset:%d' % (32 + 4 * n, 35 + 4 * n, 32 * n), count=False)
def x_process(r):
    r('s_mul_i32 s22, s20, 40\ns_mul_i32 s23, s16, 10\ns_add_u32 s22, s22, s23')
    r('s_lshl_b32 s22, s22, 10\ns_add_u32 s22, s22, 0x%x' % (LBASE + XA))
    for x in range(112, 116): r('v_mov_b32 v%d, 0' % x)
    for n in range(10):
        x = 32 + 4 * n
        r('s_add_u32 s23, s22, %d' % (n * 1024))
        r('buffer_store_dwordx4 v[%d:%d], v1, s[4:7], s23 offen%s' % (x, x + 3, SC))
        a = 112 if n < 5 else 114
        for d in range(4):
            r('v_dot2c_f32_bf16 v%d, v%d, v3' % (a, x + d))
            r('v_dot2c_f32_bf16 v%d, v%d, v%d' % (a + 1, x + d, x + d))
    for x in range(112, 116):
        r('v_mov_b32 v24, v%d\nv_permlane32_swap_b32 v%d, v24\nv_add_f32 v%d, v%d, v24' % (x, x, x, x))
    r('v_lshlrev_b32 v8, 3, v5\nv_mov_b32 v9, 0x%x' % OOB)
    r('v_cmp_eq_u32 vcc, 0, v6\nv_cndmask_b32 v8, v9, v8, vcc')
    r('s_lshl_b32 s23, s20, 8\ns_lshl_b32 s24, s16, 15\ns_add_u32 s23, s23, s24\ns_add_u32 s23, s23, 0x%x' % (LBASE + SA))
    r('buffer_store_dwordx2 v[112:113], v8, s[4:7], s23 offen' + SC)
    r('s_add_u32 s23, s23, 16384')
    r('buffer_store_dwordx2 v[114:115], v8, s[4:7], s23 offen' + SC)

def tr_lane(r):
    r('v_lshrrev_b32 v5, 4, v2\nv_bfe_u32 v6, v2, 2, 2\nv_and_b32 v7, 3, v2')

def wc_issue(r, lds):
    r('s_sub_u32 s20, s2, 96')
    r('s_cmp_ge_u32 s20, 96\ns_cselect_b32 s21, 1, 0')
    r('s_cselect_b32 s8, s50, s48\ns_cselect_b32 s9, s51, s49')
    r('s_mov_b32 s10, 0x%x\ns_mov_b32 s11, 0x20000' % (640 * 3072))
    r('s_mul_i32 s22, s21, 96\ns_sub_u32 s22, s20, s22')
    r('s_lshr_b32 s23, s22, 2\ns_and_b32 s24, s22, 3')
    r('v_lshrrev_b32 v8, 3, v2\nv_mul_u32_u24 v8, 3072, v8')
    r('v_and_b32 v9, 7, v2\nv_lshl_add_u32 v8, v9, 4, v8')
    r('s_mul_i32 s25, s24, %d\ns_lshl_b32 s26, s23, 7\ns_add_u32 s25, s25, s26' % (160 * 3072))
    r('s_mul_i32 s26, s16, %d\ns_add_u32 s25, s25, s26' % (40 * 3072))
    r('s_mul_i32 s27, s16, 5120')
    for n in range(5):
        r('s_add_u32 m0, s27, %d' % (lds + n * 1024))
        r('s_add_u32 s28, s25, %d' % (n * 8 * 3072))
        r('buffer_load_dwordx4 v8, s[8:11], s28 offen lds', count=False)
def wc_process(r, lds):
    tr_lane(r)
    r('v_lshl_add_u32 v9, v5, 3, v6\nv_lshlrev_b32 v9, 7, v9')
    r('v_lshl_add_u32 v9, v7, 3, v9')
    r('s_lshl_b32 s26, s16, 5\ns_add_u32 s26, s26, %d\nv_add_u32 v9, s26, v9' % lds)
    r('s_lshl_b32 s26, s23, 2\ns_add_u32 s26, s26, s16')
    r('s_mul_i32 s27, s26, 171\ns_lshr_b32 s27, s27, 10')
    r('s_mul_i32 s28, s27, 6\ns_sub_u32 s28, s26, s28\ns_lshr_b32 s28, s28, 1')
    r('s_and_b32 s29, s26, 1\ns_lshl_b32 s30, s21, 1\ns_add_u32 s29, s29, s30')
    r('s_mul_i32 s30, s27, 240\ns_mul_i32 s31, s28, 80\ns_add_u32 s30, s30, s31')
    r('s_mul_i32 s31, s24, 20\ns_add_u32 s30, s30, s31\ns_add_u32 s30, s30, s29')
    r('s_lshl_b32 s30, s30, 10\ns_add_u32 s30, s30, 0x%x' % WC)
    r('v_mov_b32 v18, 0')
    r('s_barrier')
    for s in range(5):
        x = 32 + 4 * s
        r('ds_read_b64_tr_b16 v[%d:%d], v9 offset:%d' % (x, x + 1, s * 4096))
        r('ds_read_b64_tr_b16 v[%d:%d], v9 offset:%d' % (x + 2, x + 3, s * 4096 + 512))
    for s in range(5):
        x = 32 + 4 * s
        r('s_add_u32 s31, s30, %d' % (s * 4096))
        r('buffer_store_dwordx4 v[%d:%d], v4, s[4:7], s31 offen%s' % (x, x + 3, SC))
        for d in range(4): r('v_dot2c_f32_bf16 v18, v%d, v3' % (x + d))
    r('v_mov_b32 v19, v18\nv_permlane16_swap_b32 v18, v19\nv_add_f32 v18, v18, v19')
    r('v_mov_b32 v19, v18\nv_permlane32_swap_b32 v18, v19\nv_add_f32 v18, v18, v19')
    r('v_and_b32 v10, 15, v2\nv_lshlrev_b32 v10, 4, v10')
    r('v_lshl_add_u32 v10, v5, 9, v10')
    r('v_mov_b32 v11, 0x%x' % OOB)
    r('v_cmp_gt_u32 vcc, 2, v5\nv_cndmask_b32 v10, v11, v10, vcc')
    r('v_cmp_eq_u32 vcc, 0, v5\nv_cndmask_b32 v18, 0, v18, vcc')
    r('s_mul_i32 s31, s27, 12\ns_lshl_b32 s32, s28, 2\ns_add_u32 s31, s31, s32\ns_add_u32 s31, s31, s29')
    r('s_lshl_b32 s31, s31, 10\ns_add_u32 s31, s31, 0x%x' % WCM)
    r('s_lshr_b32 s32, s24, 1\ns_lshl_b32 s32, s32, 8\ns_add_u32 s31, s31, s32')
    r('s_and_b32 s32, s24, 1\ns_lshl_b32 s32, s32, 3\ns_add_u32 s31, s31, s32')
    hilo_store(r, 18, 21, 10, 's31')

def dma160_voff(r, dst):
    r('v_mul_u32_u24 v8, 205, v2\nv_lshrrev_b32 v8, 11, v8')
    r('v_mul_u32_u24 v9, 10, v8\nv_sub_u32 v9, v2, v9')
    r('v_min_u32 v8, 5, v8')
    r('v_mul_u32_u24 v8, 1280, v8\nv_lshl_add_u32 v%d, v9, 4, v8' % dst)
def row_to_lds(r, vrow, vdst, vt, lds):
    r('v_mul_u32_u24 v%d, 171, v%d\nv_lshrrev_b32 v%d, 10, v%d' % (vt, vrow, vt, vt))
    r('v_mul_u32_u24 v%d, 6, v%d\nv_sub_u32 v%d, v%d, v%d' % (vdst, vt, vdst, vrow, vdst))
    r('v_mul_u32_u24 v%d, 160, v%d\nv_lshl_add_u32 v%d, v%d, 10, v%d' % (vdst, vdst, vdst, vt, vdst))
    r('v_add_u32 v%d, %d, v%d' % (vdst, lds, vdst))

def wd_issue(r, lds):
    srd(r, 8, 52, 1536 * 1280)
    r('s_sub_u32 s20, s2, 288\ns_lshr_b32 s21, s20, 4\ns_and_b32 s22, s20, 15')
    dma160_voff(r, 10)
    r('s_mul_i32 s23, s22, %d\ns_mul_i32 s24, s21, 160\ns_add_u32 s23, s23, s24' % (96 * 1280))
    r('s_mul_i32 s24, s16, %d\ns_add_u32 s23, s23, s24' % (24 * 1280))
    r('s_lshl_b32 s25, s16, 12')
    for n in range(4):
        r('s_add_u32 m0, s25, %d' % (lds + n * 1024))
        r('s_add_u32 s26, s23, %d' % (n * 6 * 1280))
        r('buffer_load_dwordx4 v10, s[8:11], s26 offen lds', count=False)
def wd_process(r, lds):
    tr_lane(r)
    r('s_lshl_b32 s26, s16, 5')
    r('v_lshl_add_u32 v11, v5, 2, v6\nv_add_u32 v11, s26, v11')
    r('v_min_u32 v11, 79, v11')
    row_to_lds(r, 11, 12, 13, lds)
    r('v_add_u32 v11, 16, v11')
    row_to_lds(r, 11, 14, 13, lds)
    r('v_lshl_add_u32 v16, v7, 4, v12\nv_lshl_add_u32 v17, v7, 4, v14')
    r('v_lshl_add_u32 v18, v7, 3, v12\nv_lshl_add_u32 v19, v7, 3, v14')
    r('s_lshl_b32 s27, s16, 3\ns_lshr_b32 s28, s22, 1\ns_add_u32 s27, s27, s28\ns_mul_i32 s27, s27, 10')
    r('s_and_b32 s28, s22, 1\ns_mul_i32 s28, s28, 5\ns_add_u32 s27, s27, s28')
    r('s_mul_i32 s28, s21, 240\ns_add_u32 s27, s27, s28\ns_lshl_b32 s27, s27, 10\ns_add_u32 s27, s27, 0x%x' % WD)
    r('s_barrier')
    r('s_cmp_eq_u32 s16, 3\ns_cbranch_scc1 PR_WD_END')
    for tau in range(5):
        x = 32 + 4 * tau
        off = (8 * tau if tau < 2 else 64 + 8 * (tau - 2)) if tau < 4 else 128
        va, vb = (16, 17) if tau < 4 else (18, 19)
        r('ds_read_b64_tr_b16 v[%d:%d], v%d offset:%d' % (x, x + 1, va, off))
        r('ds_read_b64_tr_b16 v[%d:%d], v%d offset:%d' % (x + 2, x + 3, vb, off))
    for tau in range(5):
        x = 32 + 4 * tau
        r('s_add_u32 s28, s27, %d' % (tau * 1024))
        r('buffer_store_dwordx4 v[%d:%d], v4, s[4:7], s28 offen%s' % (x, x + 3, SC))
    r.label('PR_WD_END')

def wb_issue(r, lds):
    srd(r, 8, 46, 640 * 1280)
    r('s_sub_u32 s20, s2, 416\ns_lshr_b32 s21, s20, 2\ns_and_b32 s22, s20, 3')
    dma160_voff(r, 10)
    r('s_mul_i32 s23, s22, %d\ns_mul_i32 s24, s21, 160\ns_add_u32 s23, s23, s24' % (160 * 1280))
    r('s_mul_i32 s24, s16, %d\ns_add_u32 s23, s23, s24' % (42 * 1280))
    r('s_mul_i32 s25, s16, 7168')
    for n in range(7):
        r('s_add_u32 m0, s25, %d' % (lds + n * 1024))
        r('s_add_u32 s26, s23, %d' % (n * 6 * 1280))
        r('buffer_load_dwordx4 v10, s[8:11], s26 offen lds', count=False)
def wb_process(r, lds):
    tr_lane(r)
    r('s_mul_i32 s27, s21, %d\ns_add_u32 s27, s27, 0x%x' % (100 * KB, WB))
    r('s_barrier')
    def rows(sp):
        r('v_mov_b32 v11, %s' % sp)
        r('v_lshl_add_u32 v11, v11, 2, v5')
        r('v_mul_u32_u24 v12, 52, v11\nv_lshrrev_b32 v12, 8, v12')
        r('v_mul_u32_u24 v13, 5, v12\nv_sub_u32 v13, v11, v13')
        r('v_mul_u32_u24 v12, 40, v12\nv_add_u32 v12, v12, v6')
        r('v_lshlrev_b32 v14, 3, v13')
        r('v_add_u32 v15, 4, v14')
        r('v_cmp_gt_u32 vcc, 2, v13\nv_cndmask_b32 v14, v15, v14, vcc')
        r('v_mov_b32 v15, 16\nv_cmp_eq_u32 vcc, 4, v13\nv_cndmask_b32 v14, v14, v15, vcc')
        r('v_add_u32 v20, v12, v14')
        r('v_mov_b32 v15, 20\nv_cndmask_b32 v15, 4, v15, vcc')
        r('v_add_u32 v21, v20, v15')
        row_to_lds(r, 20, 12, 13, lds)
        row_to_lds(r, 21, 14, 13, lds)
    def dest(sp, tau):
        r('s_mul_i32 s28, s22, 5\ns_add_u32 s28, s28, %s' % sp)
        r('s_cmp_ge_u32 s28, 10\ns_cselect_b32 s29, 5, 0\ns_cselect_b32 s30, 10, 0')
        r('s_sub_u32 s28, s28, s30\ns_mul_i32 s28, s28, 10\ns_add_u32 s28, s28, s29')
        r('s_add_u32 s28, s28, %s' % tau)
        r('s_lshl_b32 s28, s28, 10\ns_add_u32 s28, s28, s27')
    r('s_and_b32 s31, s16, 1\ns_lshl_b32 s31, s31, 3\ns_lshr_b32 s32, s16, 1\ns_lshl_b32 s32, s32, 6\ns_add_u32 s31, s31, s32')
    r('v_lshlrev_b32 v22, 4, v7\nv_add_u32 v22, s31, v22')
    r('v_lshlrev_b32 v23, 3, v7\nv_add_u32 v23, 128, v23')
    def frag(vcol):
        r('v_add_u32 v16, v12, v%d\nv_add_u32 v17, v14, v%d' % (vcol, vcol))
        r('ds_read_b64_tr_b16 v[32:33], v16\nds_read_b64_tr_b16 v[34:35], v17')
        r('buffer_store_dwordx4 v[32:35], v4, s[4:7], s28 offen' + SC)
    for sp in range(5):
        rows(str(sp)); dest(str(sp), 's16'); frag(22)
        if sp == 4:
            dest('4', '4'); frag(23)
    rows('s16'); dest('s16', '4'); frag(23)
```

```python
T, D, F, H, DH = 2048, 640, 1536, 32, 20
KB = 1024
WA   = 0x0010000
WAM  = WA + 16 * 160 * KB
WB   = WAM + 16 * 4 * KB
WC   = WB + 8 * 100 * KB
WCM  = WC + 16 * 240 * KB
WD   = WCM + 16 * 12 * KB
WEND = WD + 8 * 240 * KB
LBASE = (WEND + 0xFFFFF) & ~0xFFFFF
XA  = 0
SA  = XA + 64 * 40 * KB
O   = SA + T * 64
XC  = O + 128 * 20 * KB
SC  = XC + 128 * 20 * KB
HH  = SC + T * 64
KVP = HH + 128 * 48 * KB
LEND = KVP + 256 * 4096
LSTRIDE = (LEND + 0xFFFFF) & ~0xFFFFF
CNT_CRIT = 0
CNT_REST = 0x800
CNT0 = 0x1000
CSTRIDE = 0x3800
CNT_XA = 0
CNT_KV = CNT_XA + 16 * 128
CNT_O  = CNT_KV + 16 * 128
CNT_XC = CNT_O + 16 * 128
CNT_H  = CNT_XC + 16 * 128
CNT_END = CNT_H + 48 * 128
assert CNT_END == CSTRIDE and CNT0 + 2 * CSTRIDE <= 0x8000
WS_USED = LBASE + 2 * LSTRIDE + LSTRIDE
WS_BYTES = 268435456
OOB = 0x40000000

def rb_j_of(wg):
    return (wg & 3) | ((wg >> 6) << 2), (wg >> 2) & 15

def a_slot(tau, i):
    return (i >> 2) & 1, 16 * tau + 4 * (i >> 3) + (i & 3)
def a_row(half, vi):
    tau, r = vi >> 4, vi & 15
    return tau, 8 * (r >> 2) + 4 * half + (r & 3)
def wa_frag(tau, s):
    return s * 3 + tau if tau < 3 else 120 + s
def bd_col(tau, i16):
    q, c = i16 >> 2, i16 & 3
    if tau < 2: return 8 * q + 4 * tau + c
    if tau < 4: return 32 + 8 * q + 4 * (tau - 2) + c
    return 64 + 4 * q + c
def phi_o(step, g, e):
    pid = 4 * step + g
    hp, m = pid // 5, pid % 5
    if m < 2: return 20 * (2 * hp) + 8 * m + e
    if m < 4: return 20 * (2 * hp + 1) + 8 * (m - 2) + e
    return 20 * (2 * hp) + 16 + e if e < 4 else 20 * (2 * hp + 1) + 16 + (e - 4)
def phi_h(sigma, j, g, e):
    return 96 * j + 32 * sigma + 16 * (e >> 2) + 4 * g + (e & 3)
if __name__ == '__main__':
    for k in ('WA','WAM','WB','WC','WCM','WD','WEND','LBASE','XA','SA','O','XC','SC','HH','KVP','LSTRIDE','WS_USED'):
        print(k, hex(globals()[k]))
```

```python
import sys
sys.path.insert(0, 'gen')
import gen_p0, gen_main
from layout import *

HEADER = open('interleave_layers__linear_kernel_hedgehog__geglu_ffn__prompt.s.ref').read().split('; Override launch geometry')[0]

def build(stop=None, opts=None):
    opts = opts or {}
    if opts.get('merged', 0):
        m = gen_main.Main(stop, opts).build(); t1 = m.finish()
        src = HEADER
        src += '; One persistent launch: operand re-layout, then both layers, with hand-offs between workgroups through counters.\n'
        src += '; @launch grid=(256,1,1) block=(256,1,1) lds=%d\n' % gen_main.LDS_TOTAL
        src += '.amdgcn_target "amdgcn-amd-amdhsa--gfx950"\n' + t1
        src += '.section .rodata,"a"\n.p2align 6\n' + gen_p0.descriptor(gen_main.KNAME, 512, 256, 102)
        return src, m, m
    p0 = gen_p0.gen_p0(bool(opts.get('p0stamps')), {0: '', 1: ' sc1', 2: ' nt', 3: ' sc0 sc1'}[opts.get('p0sc', 0)], opts.get('codepf', 1), opts.get('onlycrit', 0), opts.get('remap', 1), opts.get('earlyj', 1)); t0 = p0.finish()
    m = gen_main.Main(stop, opts).build(); t1 = m.finish()
    src = HEADER
    src += '; Two launches: a weight/activation re-layout pass, then one persistent kernel for both layers.\n'
    src += '; @launch kernel=%s grid=(%d,1,1) block=(256,1,1) lds=%d\n' % (gen_p0.NAME, gen_p0.P0_GRID, gen_p0.P0_LDS)
    for _ in range(opts.get('empty', 0)):
        src += '; @launch kernel=nop_kernel grid=(1,1,1) block=(64,1,1) lds=0\n'
    src += '; @launch kernel=%s grid=(256,1,1) block=(256,1,1) lds=%d\n' % (gen_main.NAME, gen_main.LDS_TOTAL)
    src += '.amdgcn_target "amdgcn-amd-amdhsa--gfx950"\n' + t0 + t1
    if opts.get('empty'):
        src += '.text\n.globl nop_kernel\n.p2align 8\n.type nop_kernel,@function\nnop_kernel:\n  s_endpgm\n'
    src += '.section .rodata,"a"\n.p2align 6\n' + gen_p0.descriptor(gen_p0.NAME, 128, 128)
    if opts.get('empty'):
        src += '.p2align 6\n' + gen_p0.descriptor('nop_kernel', 32, 32)
    src += '.p2align 6\n' + gen_p0.descriptor(gen_main.NAME, 512, 256)
    return src, p0, m

if __name__ == '__main__':
    out = sys.argv[1]; stop = sys.argv[2] if len(sys.argv) > 2 and sys.argv[2] != 'none' else None
    opts = {}
    for a in sys.argv[3:]:
        k, _, v = a.partition('=')
        opts[k] = int(v) if v.lstrip('-').isdigit() else (v or 1)
    src, p0, m = build(stop, opts)
    open(out, 'w').write(src)
    print('p0', p0.stats()); print('main', m.stats())
```

```python
from asmlib import *
from layout import *

NAME = 'hedgehog_main_kernel'
KNAME = 'interleave_layers__linear_kernel_hedgehog__geglu_ffn__prompt_kernel'
BLK = 20480
SCR = 6 * BLK
LDS_TOTAL = 163840
SPIN_LIMIT = 40000
LOG2E = 1.4426950408889634
TSOFF = 0x4000000

sW, sRB, sJ, sL, sLOFF, sW5K, sWA, sWB, sWC, sWD = range(16, 26)
sT0, sT1, sT2, sT3, sT4, sT5 = range(26, 32)
sDEAD, sPC, sPV, sCS, sTH, sTTK, sTTS, sKH = range(40, 48)
sDM = 48
sTW = 49
sB0, sB1 = 50, 51
sC1, sC2, sC3, sC4 = 52, 53, 54, 55
sEX, sEXD = 56, 57
sCNT = 3
sTA, sTB = 58, 59
vL16, vLANE, vONES, vZERO, vONE, vPOLL = 1, 2, 3, 4, 5, 6
vL16B, vK0, vK1 = 7, 8, 9
vT0, vT1, vT2, vT3, vT4 = 10, 11, 12, 13, 14
vEXR = 15
AF, ACC = 16, 48
vSA, vTW, vKA, vKB, vPS1, vPS2, vPL, vAW, vO0, vO1, vO2, vX0, vX1, vX2, vY0, vY1 = range(224, 240)
XR = 240
vY2, vR0, vR2, vST, vSC, vEXW = range(250, 256)
vAW2 = 221
vL128, vTCH = 220, 219

A0, B0, C0, D0, NBLK = 0, 8, 13, 25, 37
NSIDE_A, NSIDE_C = 4, 4

def f32bits(x):
    import struct
    return '0x%08x' % struct.unpack('<I', struct.pack('<f', x))[0]

def W_vreg(r):
    return 'v_mov_b32 v%d, v%d' % (r, r)

class Main:
    def __init__(self, stop=None, opts=None):
        self.e = Asm(); self.stop = stop; self.o = opts or {}
        self.sc = '' if self.o.get('nosc1') else ' sc1'
        self.nlab = 0
        self.lstride = 0 if self.o.get('reuse') else LSTRIDE
        self.name = KNAME if self.o.get('merged', 0) else NAME
        global NSIDE_A, NSIDE_C
        NSIDE_A = self.o.get('nsa', 4); NSIDE_C = self.o.get('nsc', 4)
        dt = self.o.get('d_tail', 0); bt = self.o.get('b_tail', 0)
        self.A_tail = list(range(1, 1 + dt))
        rest = [0] + list(range(1 + dt, 6))
        self.A_side, self.A_in = rest[:NSIDE_A], rest[NSIDE_A:]
        self.C_tail = list(range(C0 + 1, C0 + 1 + bt))
        rest = list(range(C0 + 1 + bt, C0 + 6))
        self.C_side, self.C_in = rest[:NSIDE_C], rest[NSIDE_C:]
    def lab(self, p):
        self.nlab += 1
        return 'M_%s_%d' % (p, self.nlab)
    def blk_src(self, b):
        if b < B0: return sWA, (b - A0) * BLK
        if b < C0: return sWB, (b - B0) * BLK
        if b < D0: return sWC, (b - C0) * BLK
        return sWD, (b - D0) * BLK
    def dma_ops(self, b, tag=None):
        nb = b % NBLK if b >= NBLK else b
        base, off = self.blk_src(nb)
        slot = nb % 6
        tag = tag or 'blk%d' % nb
        g = []
        first = ['s_add_u32 m0, s%d, %d' % (sW5K, slot * BLK), 's_add_u32 s%d, s%d, %d' % (sDM, base, off),
                 ('buffer_load_dwordx4 v%d, s[4:7], s%d offen lds' % (vL16, sDM), tag)]
        g.append(first)
        for k in range(1, 4):
            g.append([('buffer_load_dwordx4 v%d, s[4:7], s%d offen offset:%d lds' % (vL16, sDM, k * 1024), tag)])
        g.append(['s_add_u32 m0, s%d, %d' % (sW5K, slot * BLK + 4096), 's_add_u32 s%d, s%d, %d' % (sDM, base, off + 4096),
                  ('buffer_load_dwordx4 v%d, s[4:7], s%d offen lds' % (vL16, sDM), tag)])
        return g
    def am_a(self):
        AM = 128; e = self.e
        e('s_lshl_b32 s%d, s%d, 12\ns_add_u32 s%d, s%d, 0x%x' % (sT2, sJ, sT2, sT2, WAM))
        for t in range(4): e('buffer_load_dwordx4 v[%d:%d], v%d, s[4:7], s%d offen offset:%d' % (AM + 4 * t, AM + 4 * t + 3, vL16, sT2, t * 1024))
    def am_c(self):
        AM = 136; e = self.e
        e('s_mul_i32 s%d, s%d, %d\ns_add_u32 s%d, s%d, 0x%x' % (sT4, sJ, 12 * KB, sT4, sT4, WCM))
        for t in range(4): e('buffer_load_dwordx4 v[%d:%d], v%d, s[4:7], s%d offen offset:%d' % (AM + 4 * t, AM + 4 * t + 3, vL16, sT4, t * 1024))
    def side_dma(self, blocks):
        e = self.e
        L = self.lab('side')
        e('s_cmp_eq_u32 s%d, 0' % sW); e('s_cbranch_scc1 %s' % L)
        for b in blocks:
            base, off = self.blk_src(b); slot = b % 6; tag = 'blk%d' % b
            ld = 'buffer_load_dwordx4 v%d, s[4:7], s%d offen%%s lds' % (vL16, sDM)
            e('s_add_u32 m0, s%d, %d' % (sW5K, slot * BLK)); e('s_add_u32 s%d, s%d, %d' % (sDM, base, off))
            for k in range(4): e.side(ld % (' offset:%d' % (k * 1024) if k else ''), tag)
            e('s_add_u32 m0, s%d, %d' % (sW5K, slot * BLK + 4096)); e('s_add_u32 s%d, s%d, %d' % (sDM, base, off + 4096))
            e.side(ld % '', tag)
            e('s_add_u32 m0, s%d, %d' % (sEX, slot * BLK)); e('s_add_u32 s%d, s%d, %d' % (sDM, base, off))
            e('s_add_u32 s%d, s%d, s%d' % (sDM, sDM, sEXD))
            e.side(ld % '', tag); e.side(ld % ' offset:1024', tag)
        e.label(L)
    def dma_items(self, b, earliest):
        out = []
        for g in self.dma_ops(b):
            for x in g: out.append((x, earliest))
        return out
    def touch(self, base_expr, nlines_wave, ninstr=1, sc=''):
        L = list(base_expr)
        L.append('s_mul_i32 s%d, s%d, %d' % (sTB, sW, nlines_wave * ninstr * 128))
        L.append('s_add_u32 s%d, s%d, s%d' % (sTA, sTA, sTB))
        if nlines_wave < 64:
            L.append('v_mov_b32 v%d, 0x%x' % (vT0, OOB))
            L.append('v_cmp_gt_u32 vcc, %d, v%d' % (nlines_wave, vLANE))
            L.append('v_cndmask_b32 v%d, v%d, v%d, vcc' % (vT0, vT0, vL128))
            va = vT0
        else: va = vL128
        for k in range(ninstr):
            if k: L.append('s_add_u32 s%d, s%d, %d' % (sTA, sTA, nlines_wave * 128))
            I = parse('buffer_load_dword v%d, v%d, s[4:7], s%d offen%s' % (vTCH, va, sTA, sc)); I.wr = set()
            L.append(I)
        return L
    def touch_w(self, which):
        if which == 'A':
            pre = ['s_lshr_b32 s%d, s%d, 2' % (sTA, sRB), 's_mul_i32 s%d, s%d, %d' % (sTA, sTA, 40 * KB), 's_add_u32 s%d, s%d, s%d' % (sTA, sTA, sWA), 's_sub_u32 s%d, s%d, s%d' % (sTA, sTA, sW5K)]
            return self.touch(pre, 40, 2)
        if which == 'C':
            pre = ['s_lshr_b32 s%d, s%d, 2' % (sTA, sRB), 's_mul_i32 s%d, s%d, %d' % (sTA, sTA, 60 * KB), 's_add_u32 s%d, s%d, s%d' % (sTA, sTA, sWC), 's_sub_u32 s%d, s%d, s%d' % (sTA, sTA, sW5K)]
            return self.touch(pre, 60, 2)
        idx = ['s_lshr_b32 s%d, s%d, 2' % (sTA, sRB), 's_lshl_b32 s%d, s%d, 1' % (sTA, sTA), 's_add_u32 s%d, s%d, s%d' % (sTA, sTA, sTH)]
        if which == 'B':
            return self.touch(idx + ['s_mul_i32 s%d, s%d, 12800' % (sTA, sTA), 's_add_u32 s%d, s%d, s%d' % (sTA, sTA, sWB), 's_sub_u32 s%d, s%d, s%d' % (sTA, sTA, sW5K)], 25, 1)
        if which == 'D':
            return self.touch(idx + ['s_mul_i32 s%d, s%d, 30720' % (sTA, sTA), 's_add_u32 s%d, s%d, s%d' % (sTA, sTA, sWD), 's_sub_u32 s%d, s%d, s%d' % (sTA, sTA, sW5K)], 60, 1)
    def touch_tok(self, base_off):
        pre = ['s_mul_i32 s%d, s%d, %d' % (sTA, sRB, 160 * KB), 's_lshr_b32 s%d, s%d, 1' % (sTB, sJ), 's_mul_i32 s%d, s%d, %d' % (sTB, sTB, 20 * KB),
               's_add_u32 s%d, s%d, s%d' % (sTA, sTA, sTB), 's_add_u32 s%d, s%d, s%d' % (sTA, sTA, sLOFF), 's_add_u32 s%d, s%d, 0x%x' % (sTA, sTA, base_off)]
        return self.touch(pre, 40, 1, ' sc1')
    def freed_by(self, c):
        if c <= NBLK - 7: return c + 6
        if c < NBLK - 1: return NBLK + (c - (NBLK - 7))
        return NBLK + 0
    def ring_read(self, dst, blk, off, kh=False):
        slot = blk % 6
        base = (vK0 if kh else vL16) if slot < 3 else (vK1 if kh else vL16B)
        return 'ds_read_b128 v[%d:%d], v%d offset:%d' % (dst, dst + 3, base, (slot % 3) * BLK + off)
    def emit_next_layer_dma(self, b):
        e = self.e
        L = self.lab('nl')
        e('s_cmp_lg_u32 s%d, 0' % sL); e('s_cbranch_scc1 %s' % L)
        for g in self.dma_ops(b):
            for x in g:
                if isinstance(x, tuple): e(x[0], count=False)
                else: e(x)
        e.label(L)
    def signal(self, cnt_off_sgpr):
        e = self.e
        e.wait_all()
        e('s_barrier')
        self.signal_only(cnt_off_sgpr)
    def signal_only(self, cnt_off_sgpr):
        e = self.e
        L = self.lab('sig')
        e('s_cmp_lg_u32 s%d, 0' % sW); e('s_cbranch_scc1 %s' % L)
        e('s_mov_b64 exec, 1')
        e('buffer_atomic_add v%d, v%d, s[4:7], s%d offen sc1' % (vONE, vZERO, cnt_off_sgpr), count=False)
        e('s_mov_b64 exec, -1')
        e.label(L)
    def poll(self, cnt_off_sgpr, n=1, target=16, srd=4, stride=128):
        e = self.e
        L = self.lab('poll'); X = self.lab('got')
        e('s_cmp_lg_u32 s%d, 0' % sW); e('s_cbranch_scc1 %s' % X)
        e('s_cmp_lg_u32 s%d, 0' % sDEAD); e('s_cbranch_scc1 %s' % X)
        e('s_mov_b32 s%d, 0' % sPC)
        if n > 1:
            e('v_min_u32 v%d, %d, v%d' % (vT0, n - 1, vLANE)); e('v_mul_u32_u24 v%d, %d, v%d' % (vT0, stride, vT0))
        e.label(L)
        e('buffer_load_dword v%d, v%d, s[%d:%d], s%d offen sc1' % (vPOLL, vT0 if n > 1 else vZERO, srd, srd + 3, cnt_off_sgpr), count=False)
        e('s_waitcnt vmcnt(0)', count=False)
        e('v_cmp_gt_u32 vcc, %d, v%d' % (target, vPOLL))
        e('s_cbranch_vccz %s' % X)
        if self.o.get('psleep'): e('s_sleep %d' % self.o['psleep'])
        e('s_add_u32 s%d, s%d, 1' % (sPC, sPC)); e('s_cmp_lt_u32 s%d, %d' % (sPC, SPIN_LIMIT))
        e('s_cbranch_scc1 %s' % L)
        e('s_mov_b32 s%d, 1' % sDEAD)
        e.label(X)
    def cnt(self, dst, which, idx_sgpr, mul=128, add=0, next_layer=False):
        e = self.e
        e('s_mul_i32 s%d, s%d, %d' % (dst, idx_sgpr, mul))
        e('s_add_u32 s%d, s%d, s%d' % (dst, dst, sCNT))
        e('s_add_u32 s%d, s%d, 0x%x' % (dst, dst, which + add + (CSTRIDE if next_layer else 0)))
    def prologue(self):
        if self.o.get('merged', 0): return self.prologue_merged()
        e = self.e
        e.directive('.text\n.globl %s\n.p2align 8\n.type %s,@function' % (self.name, self.name))
        e.label(self.name)
        e('s_cmp_ge_u32 s2, 256'); e('s_cbranch_scc1 M_END')
        e('s_load_dwordx2 s[32:33], s[0:1], 0')
        e('s_load_dwordx2 s[34:35], s[0:1], 64')
        e('s_load_dwordx2 s[36:37], s[0:1], 80')
        self.entry_stamp()
        self.pro_scalars(); self.pro_lanes()
        e('s_waitcnt lgkmcnt(0)')
        self.mk_srd(4, 36, WS_BYTES)
        self.pro_tail(32, 34)
    def prologue_merged(self):
        import gen_prep as P
        e = self.e
        e.directive('.text\n.globl %s\n.p2align 8\n.type %s,@function' % (self.name, self.name))
        e.label(self.name)
        e('s_cmp_ge_u32 s2, 256'); e('s_cbranch_scc1 M_END')
        e('s_load_dwordx8 s[64:71], s[0:1], 0')
        e('s_load_dwordx4 s[72:75], s[0:1], 40')
        e('s_load_dwordx2 s[76:77], s[0:1], 56')
        e('s_load_dwordx2 s[78:79], s[0:1], 64')
        e('s_load_dwordx4 s[80:83], s[0:1], 72')
        self.entry_stamp()
        self.pro_scalars()
        e('s_waitcnt lgkmcnt(0)')
        self.mk_srd(4, 82, WS_BYTES)
        e('s_add_u32 s0, s2, 352\ns_sub_u32 s26, s2, 64\ns_cmp_ge_u32 s2, 160\ns_cselect_b32 s0, s26, s0\ns_cmp_lt_u32 s2, 96\ns_cselect_b32 s0, s2, s0')
        e('s_add_u32 s1, s2, 192')
        Lz = self.lab('nz')
        e('s_cmp_ge_u32 s2, 16'); e('s_cbranch_scc1 %s' % Lz)
        e('s_cmp_lg_u32 s%d, 0' % sW); e('s_cbranch_scc1 %s' % Lz)
        for k in range(4): e('v_mov_b32 v%d, 0' % (120 + k))
        e('s_lshl_b32 s26, s2, 11')
        e('buffer_store_dwordx4 v[120:123], v%d, s[4:7], s26 offen sc1' % vL16, count=False)
        e('buffer_store_dwordx4 v[120:123], v%d, s[4:7], s26 offen offset:1024 sc1' % vL16, count=False)
        e.label(Lz)
        r1 = P.Ren(e, 1, 0); r2 = P.Ren(e, 2, 1)
        L1, L2 = 0, 32768
        def dispatch(cases, sreg, tagp):
            end = self.lab(tagp)
            labs = [self.lab(tagp) for _ in cases]
            for (ub, _), lb in list(zip(cases, labs))[:-1]:
                e('s_cmp_lt_u32 s%d, %d' % (sreg, ub)); e('s_cbranch_scc1 %s' % lb)
            e('s_branch %s' % labs[-1])
            for (ub, fn), lb in zip(cases, labs):
                e.label(lb); e.reset_state(); fn()
                e.wait_lgkm0()
                e('s_branch %s' % end)
            e.label(end); e.reset_state()
        dispatch([(96, lambda: P.wa_issue(r1)), (288, lambda: P.wc_issue(r1, L1)), (None, lambda: P.x_issue(r1))], 0, 'i1')
        dispatch([(288, lambda: P.wc_issue(r2, L2)), (416, lambda: P.wd_issue(r2, L2)), (None, lambda: P.wb_issue(r2, L2))], 1, 'i2')
        if self.o.get('codepf', 1):
            Lp = self.lab('npf')
            e('s_cmp_ge_u32 s2, 64'); e('s_cbranch_scc1 %s' % Lp)
            e('s_getpc_b64 s[84:85]')
            e.label('M_PC')
            e('s_add_u32 s84, s84, (M_LAYER-M_PC)\ns_addc_u32 s85, s85, 0')
            e('v_lshlrev_b32 v124, 7, v0\nv_mov_b32 v125, (M_CODE_END-M_LAYER-4)\nv_add_u32 v126, 0x8000, v124')
            e('v_min_u32 v124, v124, v125\nv_min_u32 v126, v126, v125\nv_and_b32 v124, -4, v124\nv_and_b32 v126, -4, v126')
            e('global_load_dword v127, v124, s[84:85]', count=False)
            e('global_load_dword v127, v126, s[84:85]', count=False)
            e.label(Lp)
        self.mk_srd(84, 80, 256)
        Lf = self.lab('nf'); Lv = self.lab('nfv'); Lw = self.lab('nfw')
        e('s_cmp_ge_u32 s2, 16'); e('s_cbranch_scc1 %s' % Lf)
        e('s_cmp_lg_u32 s%d, 0' % sW); e('s_cbranch_scc1 %s' % Lf)
        npf = 2 if self.o.get('codepf', 1) else 0
        e('s_cmp_eq_u32 s31, 1'); e('s_cbranch_scc1 %s' % Lv)
        e('s_waitcnt vmcnt(%d)' % (22 + 5 + npf), count=False); e('s_branch %s' % Lw)
        e.label(Lv)
        e('s_waitcnt vmcnt(%d)' % (10 + 5 + npf), count=False)
        e.label(Lw)
        e('s_lshl_b32 s62, s2, 2\ns_mov_b64 exec, 1')
        e('buffer_store_dword v%d, v%d, s[84:87], s62 offen sc1' % (vONE, vZERO), count=False)
        e('s_mov_b64 exec, -1')
        self.stamp(27)
        e.label(Lf)
        e('s_waitcnt vmcnt(4)', count=False)
        self.stamp(19)
        dispatch([(96, lambda: P.wa_process(r1)), (288, lambda: P.wc_process(r1, L1)), (None, lambda: P.x_process(r1))], 0, 'p1')
        self.stamp(20)
        Lq = self.lab('zq')
        e('s_cmp_lg_u32 s%d, 0' % sW); e('s_cbranch_scc1 %s' % Lq)
        e('v_min_u32 v126, 15, v%d\nv_lshlrev_b32 v126, 2, v126' % vLANE)
        e('buffer_load_dword v%d, v126, s[84:87], 0 offen sc1' % vPOLL, count=False)
        e.label(Lq)
        e('s_waitcnt vmcnt(0) lgkmcnt(0)', count=False)
        e('s_barrier')
        self.stamp(26)
        def arrive(off, below=None):
            La = self.lab('arr')
            e('s_cmp_lg_u32 s%d, 0' % sW); e('s_cbranch_scc1 %s' % La)
            if below is not None:
                e('s_cmp_ge_u32 s2, %d' % below); e('s_cbranch_scc1 %s' % La)
            e('s_and_b32 s62, s2, 15\ns_lshl_b32 s62, s62, 7\ns_add_u32 s62, s62, 0x%x\ns_mov_b64 exec, 1' % off)
            e('buffer_atomic_add v%d, v%d, s[4:7], s62 offen sc1' % (vONE, vZERO), count=False)
            e('s_mov_b64 exec, -1')
            e.label(La)
        Lc = self.lab('zc'); Ls = self.lab('zcs')
        e('s_cmp_lg_u32 s%d, 0' % sW); e('s_cbranch_scc1 %s' % Lc)
        e('s_mov_b32 s%d, 0' % sPC)
        e.label(Ls)
        e('v_cmp_gt_u32 vcc, 1, v%d' % vPOLL)
        e('s_cbranch_vccz %s' % Lc)
        if self.o.get('zsleep'): e('s_sleep %d' % self.o['zsleep'])
        e('buffer_load_dword v%d, v126, s[84:87], 0 offen sc1' % vPOLL, count=False)
        e('s_waitcnt vmcnt(0)', count=False)
        e('s_add_u32 s%d, s%d, 1' % (sPC, sPC)); e('s_cmp_lt_u32 s%d, %d' % (sPC, SPIN_LIMIT)); e('s_cbranch_scc1 %s' % Ls)
        e('s_mov_b32 s%d, 1' % sDEAD)
        e.label(Lc)
        arrive(CNT_CRIT, 160)
        self.stamp(21)
        dispatch([(288, lambda: P.wc_process(r2, L2)), (416, lambda: P.wd_process(r2, L2)), (None, lambda: P.wb_process(r2, L2))], 1, 'p2')
        self.stamp(22)
        e('s_waitcnt vmcnt(0) lgkmcnt(0)', count=False)
        e('s_barrier')
        arrive(CNT_REST)
        self.stamp(25)
        self.pro_lanes()
        e('s_mov_b32 s%d, 0x%x' % (sT0, CNT_CRIT))
        self.stamp(23)
        self.poll(sT0, n=16, target=10)
        e('s_barrier')
        self.stamp(24)
        self.pro_tail(64, 78)
    def entry_stamp(self):
        if self.o.get('stamps'):
            self.e(('s_memtime' if self.o.get('cyc') else 's_memrealtime') + ' s[60:61]\ns_waitcnt lgkmcnt(0)\nv_mov_b32 v223, s60')
    def mk_srd(self, d, lo, n):
        self.e('s_mov_b32 s%d, s%d\ns_mov_b32 s%d, s%d\ns_mov_b32 s%d, 0x%x\ns_mov_b32 s%d, 0x20000' % (d, lo, d + 1, lo + 1, d + 2, n, d + 3))
    def pro_scalars(self):
        e = self.e
        e('v_lshrrev_b32 v10, 6, v0'); e('v_and_b32 v%d, 63, v0' % vLANE)
        e('v_readfirstlane_b32 s%d, v10' % sW)
        e('v_lshlrev_b32 v%d, 4, v%d' % (vL16, vLANE))
        e('s_and_b32 s%d, s2, 3\ns_lshr_b32 s26, s2, 6\ns_lshl_b32 s26, s26, 2\ns_or_b32 s%d, s%d, s26' % (sRB, sRB, sRB))
        e('s_lshr_b32 s%d, s2, 2\ns_and_b32 s%d, s%d, 15' % (sJ, sJ, sJ))
        e('s_and_b32 s%d, s%d, 7\ns_lshr_b32 s%d, s%d, 3' % (sCS, sJ, sTH, sJ))
        e('s_mul_i32 s%d, s%d, 5120' % (sW5K, sW))
        e('s_lshr_b32 s%d, s%d, 1' % (sKH, sW))
        for (s, idx, stride, base) in ((sWA, sJ, 160 * KB, WA), (sWB, sCS, 100 * KB, WB), (sWC, sJ, 240 * KB, WC), (sWD, sCS, 240 * KB, WD)):
            if self.o.get('wsame'): stride = 0
            e('s_mul_i32 s%d, s%d, %d\ns_add_u32 s%d, s%d, s%d\ns_add_u32 s%d, s%d, 0x%x' % (s, idx, stride, s, s, sW5K, s, s, base))
        e('s_lshl_b32 s%d, s%d, 3\ns_lshl_b32 s26, s%d, 2\ns_add_u32 s%d, s%d, s26' % (sTTK, sRB, sTH, sTTK, sTTK))
        e('s_and_b32 s26, s%d, 1\ns_lshl_b32 s26, s26, 1\ns_add_u32 s%d, s%d, s26\ns_add_u32 s%d, s%d, s%d' % (sW, sTTK, sTTK, sTTK, sTTK, sKH))
        e('s_xor_b32 s%d, s%d, 1' % (sTTS, sTTK))
        e('s_mov_b32 s%d, 0\ns_mov_b32 s%d, 0\ns_mov_b32 s%d, 0x%x' % (sDEAD, sL, sLOFF, LBASE))
        e('s_mov_b32 s%d, 0x%x' % (sCNT, CNT0))
        e('s_sub_u32 s%d, s%d, 1\ns_lshl_b32 s%d, s%d, 11\ns_sub_u32 s%d, s%d, s%d' % (sEX, sW, sEX, sEX, sEXD, sEX, sW5K))
        e('v_mov_b32 v%d, 0x3f803f80\nv_mov_b32 v%d, 0\nv_mov_b32 v%d, 1' % (vONES, vZERO, vONE))
    def pro_lanes(self):
        e = self.e
        e('v_add_u32 v%d, %d, v%d' % (vL16B, 3 * BLK, vL16))
        e('v_lshlrev_b32 v%d, 7, v%d' % (vL128, vLANE))
        e('s_mul_i32 s26, s%d, 5120\nv_add_u32 v%d, s26, v%d\nv_add_u32 v%d, %d, v%d' % (sKH, vK0, vL16, vK1, 3 * BLK, vK0))
        t32, hi, t16, q = 100, 101, 102, 103
        e('v_and_b32 v%d, 31, v%d\nv_lshrrev_b32 v%d, 5, v%d' % (t32, vLANE, hi, vLANE))
        e('v_and_b32 v%d, 15, v%d\nv_lshrrev_b32 v%d, 4, v%d' % (t16, vLANE, q, vLANE))
        e('v_mov_b32 v104, 0x%x' % OOB)
        e('v_lshlrev_b32 v%d, 3, v%d\nv_lshl_add_u32 v%d, v%d, 16, v%d' % (vSA, t32, vSA, hi, vSA))
        e('s_lshl_b32 s26, s%d, 5\nv_add_u32 v105, s26, v%d\nv_mul_u32_u24 v105, 144, v105' % (sW, t32))
        e('v_mul_u32_u24 v106, 18432, v%d\nv_add_u32 v105, v105, v106\nv_add_u32 v%d, 0x%x, v105' % (hi, vTW, SCR))
        e('v_lshrrev_b32 v105, 1, v%d\nv_bfe_u32 v106, v%d, 2, 2\nv_lshl_add_u32 v105, v105, 3, v106\nv_mul_u32_u24 v105, 144, v105' % (q, vLANE))
        e('v_and_b32 v106, 1, v%d\nv_lshlrev_b32 v106, 5, v106\nv_and_b32 v107, 3, v%d\nv_lshl_add_u32 v106, v107, 3, v106\nv_add_u32 v105, v105, v106' % (q, vLANE))
        e('s_lshr_b32 s26, s%d, 1\ns_mul_i32 s26, s26, 18432\ns_add_u32 s26, s26, 0x%x' % (sW, SCR))
        e('s_and_b32 s27, s%d, 1\ns_mul_i32 s28, s27, 40\ns_add_u32 s28, s28, s26\ns_add_u32 s29, s26, 80' % sW)
        e('v_add_u32 v%d, s28, v105\nv_add_u32 v%d, s29, v105' % (vKA, vKB))
        e('s_lshl_b32 s26, s%d, 10' % sW)
        e('v_mul_u32_u24 v105, 24, v%d\nv_add_u32 v105, v105, v%d\nv_lshlrev_b32 v105, 4, v105\nv_add_u32 v105, s26, v105' % (hi, t32))
        e('v_cmp_gt_u32 vcc, 24, v%d\nv_cndmask_b32 v%d, v104, v105, vcc' % (t32, vPS1))
        e('v_lshlrev_b32 v105, 3, v%d\nv_add_u32 v105, s26, v105\nv_add_u32 v105, 768, v105' % t32)
        e('v_cmp_eq_u32 vcc, 0, v%d\nv_cndmask_b32 v%d, v104, v105, vcc' % (hi, vPS2))
        e('v_mov_b32 v106, 84\nv_cmp_le_u32 s[30:31], v106, v0\nv_cndmask_b32 v106, 0, 1, s[30:31]')
        e('v_mul_u32_u24 v107, 84, v106\nv_sub_u32 v107, v0, v107')
        e('v_mul_u32_u24 v108, 391, v107\nv_lshrrev_b32 v108, 13, v108')
        e('v_mul_u32_u24 v109, 21, v108\nv_sub_u32 v109, v107, v109')
        e('v_subrev_u32 v110, 168, v0\nv_mul_u32_u24 v111, 391, v110\nv_lshrrev_b32 v111, 13, v111\nv_and_b32 v111, 3, v111')
        e('v_mul_u32_u24 v96, 21, v111\nv_sub_u32 v96, v110, v96')
        e('v_cmp_gt_u32 vcc, 168, v0')
        e('v_lshrrev_b32 v97, 1, v108\nv_lshl_add_u32 v97, v106, 1, v97\nv_lshlrev_b32 v97, 10, v97')
        e('v_and_b32 v98, 1, v108\nv_mul_u32_u24 v98, 24, v98\nv_add_u32 v98, v98, v109\nv_lshl_add_u32 v97, v98, 4, v97')
        e('v_lshlrev_b32 v98, 10, v111\nv_lshl_add_u32 v98, v96, 3, v98\nv_add_u32 v98, 768, v98')
        e('v_cndmask_b32 v97, v98, v97, vcc')
        e('v_mov_b32 v99, 252\nv_cmp_gt_u32 s[30:31], v99, v0\nv_cndmask_b32 v%d, v104, v97, s[30:31]' % vPL)
        e('v_lshrrev_b32 v97, 1, v111\nv_cndmask_b32 v106, v97, v106, vcc')
        e('v_cndmask_b32 v108, 4, v108, vcc\nv_cndmask_b32 v109, v96, v109, vcc')
        e('v_lshrrev_b32 v110, 4, v109\nv_mul_u32_u24 v110, 5, v110\nv_add_u32 v110, v110, v108')
        e('v_and_b32 v109, 15, v109\nv_lshrrev_b32 v97, 2, v109\nv_lshlrev_b32 v97, 3, v97\nv_and_b32 v109, 3, v109\nv_add_u32 v97, v97, v109')
        e('v_mul_u32_u24 v109, 36, v106\nv_add_u32 v97, v97, v109')
        e('v_lshlrev_b32 v97, 4, v97\nv_lshl_add_u32 v97, v110, 10, v97\nv_add_u32 v97, 0x%x, v97' % SCR)
        e('v_and_b32 v105, 63, v0\nv_lshlrev_b32 v105, 4, v105\nv_add_u32 v105, 0x%x, v105' % (SCR + 12288))
        e('v_cndmask_b32 v%d, v105, v97, vcc' % vAW)
        e('v_and_b32 v98, 1, v111\nv_lshl_add_u32 v97, v98, 3, v97')
        e('v_cndmask_b32 v97, v97, v105, vcc\nv_cndmask_b32 v%d, v105, v97, s[30:31]' % vAW2)
        e('s_mul_i32 s26, s%d, 5' % sJ)
        e('v_bfe_u32 v105, v%d, 4, 1\nv_mul_u32_u24 v105, 20480, v105\nv_lshl_add_u32 v105, v%d, 4, v105' % (vLANE, t16))
        for (dst, expr) in ((vO0, 0), (vO1, 1), (vO2, None)):
            if expr is not None:
                e('v_lshl_add_u32 v106, v%d, 1, s26\nv_add_u32 v106, %d, v106' % (hi, expr))
            else:
                e('v_mov_b32 v106, s26\nv_add_u32 v106, 4, v106')
            e('v_lshrrev_b32 v107, 2, v106\nv_lshl_add_u32 v107, v107, 10, v105\nv_and_b32 v106, 3, v106\nv_lshl_add_u32 v%d, v106, 8, v107' % dst)
        e('v_lshl_add_u32 v%d, v%d, 3, v%d' % (vO2, hi, vO2))
        e('s_mul_i32 s26, s%d, 10' % sCS)
        e('s_and_b32 s27, s%d, 1\ns_lshl_b32 s27, s27, 8' % sTTK)
        e('v_lshlrev_b32 v105, 4, v%d' % t16)
        for n, (dx, dy) in enumerate(((vX0, vY0), (vX1, vY1), (vX2, vY2))):
            if n < 2: e('v_add_u32 v106, s26, v%d\nv_add_u32 v106, %d, v106' % (q, 4 * n))
            else: e('v_lshrrev_b32 v106, 1, v%d\nv_add_u32 v106, s26, v106\nv_add_u32 v106, 8, v106' % q)
            e('v_lshrrev_b32 v107, 2, v106\nv_lshl_add_u32 v107, v107, 10, v105\nv_and_b32 v108, 3, v106\nv_lshl_add_u32 v%d, v108, 8, v107' % dx)
            e('v_lshrrev_b32 v107, 1, v106\nv_lshl_add_u32 v107, v107, 10, v105\nv_and_b32 v108, 1, v106\nv_lshl_add_u32 v107, v108, 9, v107\nv_add_u32 v%d, s27, v107' % dy)
        e('v_and_b32 v106, 1, v%d\nv_lshl_add_u32 v%d, v106, 3, v%d\nv_lshl_add_u32 v%d, v106, 3, v%d' % (q, vX2, vX2, vY2, vY2))
        e('v_mul_u32_u24 v105, 1280, v%d\nv_lshl_add_u32 v%d, v%d, 4, v105\nv_lshl_add_u32 v%d, v%d, 3, v105\nv_add_u32 v%d, 128, v%d' % (t16, vR0, q, vR2, q, vR2, vR2))
        e('v_lshlrev_b32 v105, 3, v%d\nv_cmp_eq_u32 vcc, 0, v%d\nv_cndmask_b32 v%d, v104, v105, vcc\nv_lshl_add_u32 v%d, v%d, 15, v105' % (t16, q, vST, vSC, q))
        e('s_add_u32 s26, s%d, 0x%x\nv_add_u32 v%d, s26, v%d' % (sW5K, SCR, vEXW, vL16))
        e('s_xor_b32 s27, s%d, 2\ns_mul_i32 s27, s27, 5120\ns_add_u32 s27, s27, 0x%x\nv_add_u32 v%d, s27, v%d' % (sW, SCR, vEXR, vL16))
    def pro_tail(self, xlo, olo):
        e = self.e
        self.mk_srd(8, xlo, T * 1280); self.mk_srd(12, olo, T * 1280)
        if self.o.get('ampre', 1): self.am_a()
        self.side_dma(self.A_side[:1])
        for b in self.A_tail:
            for g in self.dma_ops(b):
                for x in g:
                    if isinstance(x, tuple): e(x[0], count=False)
                    else: e(x)
        self.side_dma(self.A_side[1:])
        e('s_mul_i32 s26, s%d, 20480\ns_mul_i32 s27, s%d, 160\ns_add_u32 s26, s26, s27' % (sTTK, sCS))
        e('buffer_load_dwordx4 v[%d:%d], v%d, s[8:11], s26 offen' % (XR, XR + 3, vR0), count=False)
        e('buffer_load_dwordx4 v[%d:%d], v%d, s[8:11], s26 offen offset:64' % (XR + 4, XR + 7, vR0), count=False)
        e('buffer_load_dwordx2 v[%d:%d], v%d, s[8:11], s26 offen' % (XR + 8, XR + 9, vR2), count=False)
    def rowstat_finish(self, S, Q, vRS, vVE, BM, tmp):
        L = []
        L.append('v_mul_f32 v%d, %s, v%d' % (S, f32bits(1.0 / 640), S))
        L.append('v_mul_f32 v%d, %s, v%d' % (Q, f32bits(1.0 / 640), Q))
        L.append('v_fma_f32 v%d, -v%d, v%d, v%d' % (Q, S, S, Q))
        L.append('v_max_f32 v%d, 0, v%d' % (Q, Q))
        L.append('v_add_f32 v%d, %s, v%d' % (vVE, f32bits(1e-5), Q))
        L.append('v_rsq_f32 v%d, v%d' % (vRS, vVE))
        L.append('v_cvt_pk_bf16_f32 v%d, -v%d, -v%d' % (tmp, S, S))
        L.append('v_and_b32 v%d, 0xffff0000, v%d' % (tmp, tmp))
        L.append('v_sub_f32 v%d, -v%d, v%d' % (tmp, S, tmp))
        L.append('v_cvt_pk_bf16_f32 v%d, -v%d, v%d' % (BM, S, tmp))
        for k in range(1, 4): L.append('v_mov_b32 v%d, v%d' % (BM + k, BM))
        return L
    def softmax_pair(self, X, vC, EP, EM, t):
        L = []
        mx, mn, ap, am, sp, sm = range(t, t + 6)
        L.append('v_max3_f32 v%d, v%d, v%d, v%d' % (mx, X[0], X[1], X[2]))
        L.append('v_min3_f32 v%d, v%d, v%d, v%d' % (mn, X[0], X[1], X[2]))
        for k in range(3, 19, 2):
            L.append('v_max3_f32 v%d, v%d, v%d, v%d' % (mx, mx, X[k], X[k + 1]))
            L.append('v_min3_f32 v%d, v%d, v%d, v%d' % (mn, mn, X[k], X[k + 1]))
        L.append('v_max_f32 v%d, v%d, v%d' % (mx, mx, X[19]))
        L.append('v_min_f32 v%d, v%d, v%d' % (mn, mn, X[19]))
        L.append('v_mul_f32 v%d, v%d, v%d' % (ap, vC, mx))
        L.append('v_mul_f32 v%d, v%d, v%d' % (am, vC, mn))
        for f in range(20):
            L.append('v_fma_f32 v%d, v%d, v%d, -v%d' % (EP + f, X[f], vC, ap))
            L.append('v_fma_f32 v%d, -v%d, v%d, v%d' % (EM + f, X[f], vC, am))
        for f in range(20):
            L.append('v_exp_f32 v%d, v%d' % (EP + f, EP + f))
            L.append('v_exp_f32 v%d, v%d' % (EM + f, EM + f))
        L.append('v_add_f32 v%d, v%d, v%d' % (sp, EP, EP + 1))
        L.append('v_add_f32 v%d, v%d, v%d' % (sm, EM, EM + 1))
        for f in range(2, 20):
            L.append('v_add_f32 v%d, v%d, v%d' % (sp, sp, EP + f))
            L.append('v_add_f32 v%d, v%d, v%d' % (sm, sm, EM + f))
        L.append('v_rcp_f32 v%d, v%d' % (sp, sp))
        L.append('v_rcp_f32 v%d, v%d' % (sm, sm))
        for f in range(20):
            L.append('v_mul_f32 v%d, v%d, v%d' % (EP + f, EP + f, sp))
            L.append('v_mul_f32 v%d, v%d, v%d' % (EM + f, EM + f, sm))
        return L
    def stamp(self, k):
        if not self.o.get('stamps'): return
        e = self.e
        e('v_mov_b32 v222, s%d' % sL)
        e('v_lshlrev_b32 v222, 5, v222\nv_add_u32 v222, %d, v222' % k)
        e('v_cmp_eq_u32 vcc, v222, v%d' % vLANE)
        e('s_memtime s[58:59]' if self.o.get('cyc') else 's_memrealtime s[58:59]')
        e('s_waitcnt lgkmcnt(0)')
        e('v_mov_b32 v222, s58')
        e('v_cndmask_b32 v223, v223, v222, vcc')
    def stamp_items(self, k):
        if self.o.get('stamps') != 2: return []
        sub = Main(None, self.o); sub.stamp(k)
        return sub.e.items
    def stamp_flush(self):
        if not self.o.get('stamps'): return
        e = self.e
        e('s_lshl_b32 s62, s2, 2\ns_add_u32 s62, s62, s%d\ns_lshl_b32 s62, s62, 8\ns_add_u32 s62, s62, 0x%x' % (sW, TSOFF))
        e('v_lshlrev_b32 v%d, 2, v%d' % (vT0, vLANE))
        e('buffer_store_dword v223, v%d, s[4:7], s62 offen' % vT0)
    def maybe_stop(self, name):
        if self.stop == name:
            self.e.wait_all(); self.e('s_endpgm'); return True
        return False
    def vm_stream(self, items):
        st = Stream()
        for it in sorted(items, key=lambda x: x[3] if len(x) > 3 else x[0]):
            st.add(it[2], it[1], it[0])
        return st
    def flat(self, groups):
        return [x for g in groups for x in g]
    def phase_a(self):
        e = self.e; o = self.o
        T0, T1, T2, T3 = ACC, ACC + 16, ACC + 32, ACC + 48
        ST, vRS, vVE, vC, BM, AM, EP, EM, P = 112, 120, 121, 122, 124, 128, 144, 164, 184
        self.stamp(0)
        L = self.lab('a_nopoll')
        e('s_cmp_eq_u32 s%d, 0' % sL); e('s_cbranch_scc1 %s' % L)
        self.cnt(sT0, CNT_XA, sRB)
        self.poll(sT0)
        e('s_barrier')
        e.label(L)
        self.stamp(1)
        e('s_lshl_b32 s%d, s%d, 2\ns_add_u32 s%d, s%d, s%d' % (sT0, sRB, sT0, sT0, sW))
        e('s_lshl_b32 s%d, s%d, 8\ns_add_u32 s%d, s%d, s%d\ns_add_u32 s%d, s%d, 0x%x' % (sT1, sT0, sT1, sT1, sLOFF, sT1, sT1, SA))
        e('s_mul_i32 s%d, s%d, 40960\ns_add_u32 s%d, s%d, s%d\ns_add_u32 s%d, s%d, 0x%x' % (sTW, sT0, sTW, sTW, sLOFF, sTW, sTW, XA))
        def tok(s):
            g = []
            if s % 4 == 0: g.append('s_add_u32 s%d, s%d, %d' % (sB0, sTW, s * 1024))
            g.append('buffer_load_dwordx4 a[%d:%d], v%d, s[4:7], s%d offen offset:%d%s' % (4 * s, 4 * s + 3, vL16, sB0, (s % 4) * 1024, self.sc))
            return g
        NPRE = o.get('a_npre', 14)
        if o.get('tt', 0): e.extend(self.touch_tok(XA))
        for s in range(NPRE): e.extend(tok(s))
        stld = []
        for k in range(4):
            if k: stld.append('s_add_u32 s%d, s%d, 16384' % (sT1, sT1))
            stld.append('buffer_load_dwordx2 v[%d:%d], v%d, s[4:7], s%d offen sc1' % (ST + 2 * k, ST + 2 * k + 1, vSA, sT1))
        e('s_lshl_b32 s%d, s%d, 12\ns_add_u32 s%d, s%d, 0x%x' % (sT2, sJ, sT2, sT2, WAM))
        amload = ['buffer_load_dwordx4 v[%d:%d], v%d, s[4:7], s%d offen offset:%d' % (AM + 4 * t, AM + 4 * t + 3, vL16, sT2, t * 1024) for t in range(4)]
        st = []
        st += ['v_add_f32 v%d, v%d, v%d' % (ST, ST, ST + 2), 'v_add_f32 v%d, v%d, v%d' % (ST + 1, ST + 1, ST + 3),
               'v_add_f32 v%d, v%d, v%d' % (ST + 4, ST + 4, ST + 6), 'v_add_f32 v%d, v%d, v%d' % (ST + 5, ST + 5, ST + 7),
               'v_add_f32 v%d, v%d, v%d' % (ST, ST, ST + 4), 'v_add_f32 v%d, v%d, v%d' % (ST + 1, ST + 1, ST + 5),
               'v_mov_b32 v%d, v%d' % (ST + 2, ST), 'v_mov_b32 v%d, v%d' % (ST + 3, ST + 1),
               'v_permlane32_swap_b32 v%d, v%d' % (ST, ST + 2), 'v_permlane32_swap_b32 v%d, v%d' % (ST + 1, ST + 3),
               'v_add_f32 v%d, v%d, v%d' % (ST, ST, ST + 2), 'v_add_f32 v%d, v%d, v%d' % (ST + 1, ST + 1, ST + 3)]
        st += self.rowstat_finish(ST, ST + 1, vRS, vVE, BM, ST + 2)
        st += ['v_mul_f32 v%d, %s, v%d' % (vC, f32bits(LOG2E), vRS)]
        LA = 5
        def frag_info(n):
            if n < 120: return n // 3, n % 3
            return n - 120, 3
        def read(n): return self.ring_read(AF + 4 * (n % 8), A0 + n // 20, (n % 20) * 1024)
        def mfma(n):
            s, tau = frag_info(n); acc = ACC + 16 * tau; a = AF + 4 * (n % 8)
            c = '0' if s == 0 else 'v[%d:%d]' % (acc, acc + 15)
            return 'v_mfma_f32_32x32x16_bf16 v[%d:%d], v[%d:%d], a[%d:%d], %s' % (acc, acc + 15, a, a + 3, 4 * s, 4 * s + 3, c)
        def mean(tau):
            acc = ACC + 16 * tau
            return 'v_mfma_f32_32x32x16_bf16 v[%d:%d], v[%d:%d], v[%d:%d], v[%d:%d]' % (acc, acc + 15, AM + 4 * tau, AM + 4 * tau + 3, BM, BM + 3, acc, acc + 15)
        ksm = self.softmax_pair([T0 + r for r in range(16)] + [T1 + r for r in range(4)], vC, EP, EM, ST)
        for d in range(10): ksm.append('v_cvt_pk_bf16_f32 v%d, v%d, v%d' % (P + d, EP + 2 * d, EP + 2 * d + 1))
        for d in range(10): ksm.append('v_cvt_pk_bf16_f32 v%d, v%d, v%d' % (P + 10 + d, EM + 2 * d, EM + 2 * d + 1))
        V = [T1 + r for r in range(4, 16)] + [T2 + r for r in range(8)]
        for f in range(20): ksm.append('v_mul_f32 v%d, v%d, v%d' % (V[f], V[f], vRS))
        for d in range(10): ksm.append('v_cvt_pk_bf16_f32 v%d, v%d, v%d' % (P + 20 + d, V[2 * d], V[2 * d + 1]))
        ksm += ['v_mov_b32 v%d, 0x3f80' % (P + 30), 'v_mov_b32 v%d, 0' % (P + 31)]
        anchors = []; pre = {}; fixed = {}; idx = {}
        for n in range(160):
            if n == 120:
                idx['mean'] = len(anchors)
                anchors += [mean(t) for t in range(3)]
            idx[n] = len(anchors)
            anchors.append(mfma(n))
            fixed[idx[n]] = ([read(n + LA)] if n + LA < 160 else []) + ([Need('v[%d:%d]' % (AF + 4 * ((n + 1) % 8), AF + 4 * ((n + 1) % 8) + 3))] if n + 1 < 160 else [])
        anchors.append(mean(3))
        for ep in range(1, 8):
            at = idx['mean'] if ep == 6 else idx[20 * ep]
            pre[at] = ([W_tag('blk%d' % (A0 + ep + 1))] if ep < 7 else []) + ['s_barrier']
            if self.o.get('fine') == 'a': pre[at] += self.stamp_items(19 + ep - 1)
        items = [(3 * s, 0, tok(s)) for s in range(NPRE, 40)]
        if not o.get('ampre', 1): items.append((90, 0, amload))
        if o.get('tw', 0): items.append((30, 0, self.touch_w('B')))
        items.append((o.get('a_stdl', 64), 0, stld))
        for b in self.A_in: items.append((20 * (b - 1), 0, self.flat(self.dma_ops(b))))
        last_in = o.get('a_lastblk', 11)
        for b in range(6, last_in + 1):
            free = 20 * (b - 5) if b - 5 < 6 else idx['mean']
            items.append((20 * (b - 1) if b < 8 else 200 + b, free, self.flat(self.dma_ops(b))))
        if o.get('merged', 0):
            sub = Main(None, self.o); sub.nlab = self.nlab + 2000; q = sub.e
            Lr = 'M_restld'
            q('s_cmp_lg_u32 s%d, 0' % sL); q('s_cbranch_scc1 %s' % Lr)
            q('v_min_u32 v%d, 15, v%d\nv_lshlrev_b32 v%d, 7, v%d\ns_mov_b32 s%d, 0x%x' % (vT1, vLANE, vT1, vT1, sT3, CNT_REST))
            q('buffer_load_dword v%d, v%d, s[4:7], s%d offen sc1' % (vPOLL, vT1, sT3), count=False)
            q.label(Lr)
            e.extend(q.items)
            sub = Main(None, self.o); sub.nlab = self.nlab + 3000; q = sub.e
            Lk = 'M_restok'; Ll = 'M_restsp'
            q('s_cmp_lg_u32 s%d, 0' % sL); q('s_cbranch_scc1 %s' % Lk)
            q('s_mov_b32 s%d, 0' % sPC)
            q.label(Ll)
            q('v_cmp_gt_u32 vcc, 16, v%d' % vPOLL)
            q('s_cbranch_vccz %s' % Lk)
            q('s_cmp_lg_u32 s%d, 0' % sDEAD); q('s_cbranch_scc1 %s' % Lk)
            q('buffer_load_dword v%d, v%d, s[4:7], s%d offen sc1' % (vPOLL, vT1, sT3), count=False)
            q('s_waitcnt vmcnt(0)', count=False)
            q('s_add_u32 s%d, s%d, 1' % (sPC, sPC)); q('s_cmp_lt_u32 s%d, %d' % (sPC, SPIN_LIMIT)); q('s_cbranch_scc1 %s' % Ll)
            q('s_mov_b32 s%d, 1' % sDEAD)
            q.label(Lk)
            pre[idx[60]] = q.items + pre[idx[60]]
        vs = self.vm_stream(items)
        valu = Stream(st, o.get('a_stv', 90)).add(ksm, idx[120] + 1)
        if o.get('fine') == 'a0': e.extend(self.stamp_items(19))
        e.wait_tag('blk0'); e.wait_tag('blk1')
        if self.A_tail:
            Lw = self.lab('a_l0w')
            e('s_cmp_lg_u32 s%d, 0' % sL); e('s_cbranch_scc1 %s' % Lw)
            e('s_waitcnt vmcnt(0)', count=False)
            e.label(Lw)
        e('s_barrier')
        if o.get('fine') == 'a0':
            e.extend(self.stamp_items(20))
            for k, at in enumerate((1, 3, 6, 9, 12, 15, 18)):
                pre[at] = pre.get(at, []) + self.stamp_items(21 + k)
        for n in range(LA): e(read(n))
        stt = {}
        e.extend(schedule(anchors, 5, pre, fixed, [vs, valu], vm_gap=o.get('a_gap', 2), state=stt))
        if o.get('verbose'): print('a forced', stt.get('forced'), 'left', len(vs.q), len(valu.q))
        e.extend([y[0] for y in vs.q]); e.extend([y[0] for y in valu.q])
        self.a_late = list(range(last_in + 1, 13))
        self.stamp(2)
        for m in range(8):
            e('ds_write_b128 v%d, v[%d:%d] offset:%d' % (vTW, P + 4 * m, P + 4 * m + 3, 16 * m))
        e.wait_lgkm0()
        e('s_barrier')
        KD = T0
        def kvread(ks):
            b = AF + 8 * (ks % 4)
            return ['ds_read_b64_tr_b16 v[%d:%d], v%d offset:%d' % (b, b + 1, vKA, ks * 2304),
                    'ds_read_b64_tr_b16 v[%d:%d], v%d offset:%d' % (b + 2, b + 3, vKA, ks * 2304 + 576),
                    'ds_read_b64_tr_b16 v[%d:%d], v%d offset:%d' % (b + 4, b + 5, vKB, ks * 2304),
                    'ds_read_b64_tr_b16 v[%d:%d], v%d offset:%d' % (b + 6, b + 7, vKB, ks * 2304 + 576)]
        for ks in range(3): e.extend(kvread(ks))
        for ks in range(8):
            if ks + 3 < 8: e.extend(kvread(ks + 3))
            b = AF + 8 * (ks % 4)
            e('v_mfma_f32_32x32x16_bf16 v[%d:%d], v[%d:%d], v[%d:%d], %s' % (KD, KD + 15, b, b + 3, b + 4, b + 7, '0' if ks == 0 else 'v[%d:%d]' % (KD, KD + 15)))
        PK = EP
        for d in range(6): e('v_cvt_pk_bf16_f32 v%d, v%d, v%d' % (PK + d, KD + 2 * d, KD + 2 * d + 1))
        e('s_lshl_b32 s%d, s%d, 4\ns_add_u32 s%d, s%d, s%d\ns_lshl_b32 s%d, s%d, 12' % (sT0, sJ, sT0, sT0, sRB, sT0, sT0))
        e('s_add_u32 s%d, s%d, s%d\ns_add_u32 s%d, s%d, 0x%x' % (sT0, sT0, sLOFF, sT0, sT0, KVP))
        if o.get('reuse'): e('s_lshl_b32 s%d, s%d, 20\ns_add_u32 s%d, s%d, s%d' % (sT3, sL, sT0, sT0, sT3))
        e('buffer_store_dwordx4 v[%d:%d], v%d, s[4:7], s%d offen sc1' % (PK, PK + 3, vPS1, sT0))
        e('buffer_store_dwordx2 v[%d:%d], v%d, s[4:7], s%d offen sc1' % (PK + 4, PK + 5, vPS2, sT0))
        self.cnt(sT1, CNT_KV, sJ)
        self.signal(sT1)
        self.stamp(3)
        if o.get('tw', 0): e.extend(self.touch_w('C'))
        self.side_dma(self.a_late)
        for r in range(4): e('v_mov_b32 v%d, 0' % (AF + r))
        e('v_lshlrev_b32 v%d, 4, v0\nv_add_u32 v%d, 0x%x, v%d' % (vT1, vT1, SCR, vT1))
        for m in range(3): e('ds_write_b128 v%d, v[%d:%d] offset:%d' % (vT1, AF, AF + 3, m * 4096))
        Q = P
        X = [T2 + r for r in range(8, 16)] + [T3 + r for r in range(12)]
        e.extend(self.softmax_pair(X, vC, EP, EM, ST))
        order = []
        for sign in (EP, EM):
            order += [(sign + 0), (sign + 2), (sign + 8), (sign + 10), (sign + 4), (sign + 6), (sign + 12), (sign + 14)]
        order += [EP + 16, EP + 18, EM + 16, EM + 18]
        for d, r in enumerate(order): e('v_cvt_pk_bf16_f32 v%d, v%d, v%d' % (Q + d, r, r + 1))
        e.wait_lgkm0()
        self.stamp(4)
        self.poll(sT1)
        e('s_barrier')
        self.stamp(5)
        if self.maybe_stop('a1'): return True
        LD, SUM, PKK = 112, 176, 204
        e('s_lshl_b32 s%d, s%d, 16\ns_add_u32 s%d, s%d, s%d\ns_add_u32 s%d, s%d, 0x%x' % (sT0, sJ, sT0, sT0, sLOFF, sT0, sT0, KVP))
        if o.get('reuse'): e('s_lshl_b32 s%d, s%d, 20\ns_add_u32 s%d, s%d, s%d' % (sT3, sL, sT0, sT0, sT3))
        for p in range(16):
            if p: e('s_add_u32 s%d, s%d, 4096' % (sT0, sT0))
            e('buffer_load_dwordx4 v[%d:%d], v%d, s[4:7], s%d offen sc1' % (LD + 4 * p, LD + 4 * p + 3, vPL, sT0))
        e('v_mov_b32 v%d, 0x00003f80\nv_mov_b32 v%d, 0x3f800000' % (vT2, vT3))
        for k in range(8): e('v_mov_b32 v%d, 0' % (SUM + k))
        for p in range(16):
            for d in range(4):
                e('v_dot2c_f32_bf16 v%d, v%d, v%d' % (SUM + 2 * d, LD + 4 * p + d, vT2))
                e('v_dot2c_f32_bf16 v%d, v%d, v%d' % (SUM + 2 * d + 1, LD + 4 * p + d, vT3))
        for d in range(4): e('v_cvt_pk_bf16_f32 v%d, v%d, v%d' % (PKK + d, SUM + 2 * d, SUM + 2 * d + 1))
        e('ds_write_b128 v%d, v[%d:%d]' % (vAW, PKK, PKK + 3))
        e('ds_write_b64 v%d, v[%d:%d]' % (vAW2, PKK, PKK + 1))
        e.wait_lgkm0()
        e('s_barrier')
        e('v_add_u32 v%d, 0x%x, v%d' % (vT1, SCR, vL16))
        for n in range(8): e('ds_read_b128 v[%d:%d], v%d offset:%d' % (AF + 4 * n, AF + 4 * n + 3, vT1, n * 1024))
        G0, G1 = T0, T1
        for n in range(10):
            rho, s = n // 5, n % 5
            acc = G0 if rho == 0 else G1
            a = AF + 4 * (n % 8)
            e('v_mfma_f32_32x32x16_bf16 v[%d:%d], v[%d:%d], v[%d:%d], %s' % (acc, acc + 15, a, a + 3, Q + 4 * s, Q + 4 * s + 3, '0' if s == 0 else 'v[%d:%d]' % (acc, acc + 15)))
            if n < 2: e('ds_read_b128 v[%d:%d], v%d offset:%d' % (a, a + 3, vT1, (n + 8) * 1024))
        e('v_add_f32 v%d, %s, v%d' % (vT2, f32bits(1e-6), G1 + 4))
        e('v_rcp_f32 v%d, v%d' % (vT2, vT2))
        OP = 208
        src = [G0 + r for r in range(16)] + [G1 + r for r in range(4)]
        for r in src: e('v_mul_f32 v%d, v%d, v%d' % (r, r, vT2))
        for d in range(10): e('v_cvt_pk_bf16_f32 v%d, v%d, v%d' % (OP + d, src[2 * d], src[2 * d + 1]))
        e('s_lshl_b32 s%d, s%d, 3\ns_lshl_b32 s%d, s%d, 1\ns_add_u32 s%d, s%d, s%d\ns_mul_i32 s%d, s%d, 20480' % (sT0, sRB, sT1, sW, sT0, sT0, sT1, sT0, sT0))
        e('s_add_u32 s%d, s%d, s%d\ns_add_u32 s%d, s%d, 0x%x' % (sT0, sT0, sLOFF, sT0, sT0, O))
        e('buffer_store_dwordx4 v[%d:%d], v%d, s[4:7], s%d offen sc1' % (OP, OP + 3, vO0, sT0))
        e('buffer_store_dwordx4 v[%d:%d], v%d, s[4:7], s%d offen sc1' % (OP + 4, OP + 7, vO1, sT0))
        e('buffer_store_dwordx2 v[%d:%d], v%d, s[4:7], s%d offen sc1' % (OP + 8, OP + 9, vO2, sT0))
        self.stamp(6)
        self.cnt(sT1, CNT_O, sRB)
        self.signal(sT1)
        self.stamp(7)
        self.side_dma([C0])
        return self.maybe_stop('a')
    def gemm_bd(self, first_blk, nsteps, vs, pre_extra, valu):
        e = self.e
        LA = 5
        nf = nsteps * 5
        def read(n):
            i, tau = n // 5, n % 5
            return self.ring_read(AF + 4 * (n % 8), first_blk + i // 2, (i & 1) * 10240 + tau * 1024, kh=True)
        def mf(n, u):
            i, tau = n // 5, n % 5
            acc = ACC + (tau * 2 + u) * 4; a = AF + 4 * (n % 8); b = (2 * i + u) * 4
            c = '0' if i == 0 else 'v[%d:%d]' % (acc, acc + 3)
            return 'v_mfma_f32_16x16x32_bf16 v[%d:%d], v[%d:%d], a[%d:%d], %s' % (acc, acc + 3, a, a + 3, b, b + 3, c)
        anchors = []; pre = {}; fixed = {}
        for n in range(nf):
            anchors += [mf(n, 0), mf(n, 1)]
            if n + LA < nf: fixed[2 * n] = [read(n + LA)]
            if n + 1 < nf: fixed[2 * n + 1] = [Need('v[%d:%d]' % (AF + 4 * ((n + 1) % 8), AF + 4 * ((n + 1) % 8) + 3))]
        nep = nsteps // 2
        for ep in range(1, nep):
            pre[20 * ep] = list(pre_extra.get(ep, [])) + ([W_tag('blk%d' % (first_blk + ep + 1))] if ep + 1 < nep else []) + ['s_barrier']
            if self.o.get('fine') == 'd' and nsteps == 24: pre[20 * ep] += self.stamp_items(19 + ep - 1)
        for n in range(LA): e(read(n))
        stt = {}
        e.extend(schedule(anchors, 2, pre, fixed, [vs, valu], vm_gap=self.o.get('d_gap', 2), state=stt))
        if self.o.get('verbose'): print('bd forced', stt.get('forced'), 'left', len(vs.q), len(valu.q))
        e.extend([y[0] for y in vs.q]); e.extend([y[0] for y in valu.q])
    def bd_unpack(self):
        U = 112; L = []
        for d in range(10):
            L.append('v_lshlrev_b32 v%d, 16, v%d' % (U + 2 * d, XR + d))
            L.append('v_and_b32 v%d, 0xffff0000, v%d' % (U + 2 * d + 1, XR + d))
        return L
    def bd_epilogue(self, last_blk, final):
        e = self.e
        EX = 88
        for tau in range(5):
            a = ACC + (tau * 2 + 1) * 4
            e('ds_write_b128 v%d, v[%d:%d] offset:%d' % (vEXW, a, a + 3, tau * 1024))
        e.wait_lgkm0()
        e('s_barrier')
        for tau in range(5):
            e('ds_read_b128 v[%d:%d], v%d offset:%d' % (EX + 4 * tau, EX + 4 * tau + 3, vEXR, tau * 1024))
        U = 112
        for tau in range(5):
            a = ACC + (tau * 2) * 4
            for c in range(4):
                e('v_add_f32 v%d, v%d, v%d' % (U + 4 * tau + c, U + 4 * tau + c, a + c))
        for tau in range(5):
            for c in range(4):
                e('v_add_f32 v%d, v%d, v%d' % (U + 4 * tau + c, U + 4 * tau + c, EX + 4 * tau + c))
        for d in range(10): e('v_cvt_pk_bf16_f32 v%d, v%d, v%d' % (XR + d, U + 2 * d, U + 2 * d + 1))
        final()
    def bd_stats(self, base_off, next_layer):
        e = self.e
        S, Q = 136, 137
        e('v_mov_b32 v%d, 0\nv_mov_b32 v%d, 0' % (S, Q))
        for d in range(10):
            e('v_dot2c_f32_bf16 v%d, v%d, v%d' % (S, XR + d, vONES))
            e('v_dot2c_f32_bf16 v%d, v%d, v%d' % (Q, XR + d, XR + d))
        for sw in ('v_permlane16_swap_b32', 'v_permlane32_swap_b32'):
            e('v_mov_b32 v138, v%d\nv_mov_b32 v139, v%d' % (S, Q))
            e('%s v%d, v138\n%s v%d, v139' % (sw, S, sw, Q))
            e('v_add_f32 v%d, v%d, v138\nv_add_f32 v%d, v%d, v139' % (S, S, Q, Q))
        e('s_lshl_b32 s%d, s%d, 7\ns_lshl_b32 s%d, s%d, 14\ns_add_u32 s%d, s%d, s%d' % (sT2, sTTK, sT3, sCS, sT2, sT2, sT3))
        e('s_add_u32 s%d, s%d, s%d\ns_add_u32 s%d, s%d, 0x%x' % (sT2, sT2, sLOFF, sT2, sT2, base_off + (self.lstride if next_layer else 0)))
        if not self.o.get('nostats'): e('buffer_store_dwordx2 v[%d:%d], v%d, s[4:7], s%d offen sc1' % (S, Q, vST, sT2))
    def phase_b(self):
        e = self.e
        self.cnt(sT0, CNT_O, sRB)
        for (s, tt) in ((sB0, sTTK), (sB1, sTTS)):
            e('s_mul_i32 s%d, s%d, 20\ns_mul_i32 s%d, s%d, 10\ns_add_u32 s%d, s%d, s%d\ns_lshl_b32 s%d, s%d, 10' % (s, tt, sT1, sKH, s, s, sT1, s, s))
            e('s_add_u32 s%d, s%d, s%d\ns_add_u32 s%d, s%d, 0x%x' % (s, s, sLOFF, s, s, O))
        def tok(i, u):
            s = sB0 if u == 0 else sB1
            t = sC1 + u
            g = []
            if i % 4 == 0: g.append('s_add_u32 s%d, s%d, %d' % (t, s, i * 1024))
            g.append('buffer_load_dwordx4 a[%d:%d], v%d, s[4:7], s%d offen offset:%d%s' % ((2 * i + u) * 4, (2 * i + u) * 4 + 3, vL16, t, (i % 4) * 1024, self.sc))
            return g
        e.wait_tag('blk%d' % B0); e.wait_tag('blk%d' % (B0 + 1))
        self.poll(sT0)
        e('s_barrier')
        self.stamp(8)
        NPRE = self.o.get('b_npre', 10)
        for i in range(NPRE):
            for u in range(2): e.extend(tok(i, u))
        items = [(10 * i, 0, tok(i, 0) + tok(i, 1)) for i in range(NPRE, 10)]
        for k, b in enumerate(self.C_tail): items.append((5000 + b, 20 * (k + 1), self.flat(self.dma_ops(b))))
        vs = self.vm_stream(items)
        self.gemm_bd(B0, 10, vs, {}, Stream(self.bd_unpack(), 60))
        self.stamp(9)
        def final():
            e('s_mul_i32 s%d, s%d, 20480\ns_add_u32 s%d, s%d, s%d\ns_add_u32 s%d, s%d, 0x%x' % (sT0, sTTK, sT0, sT0, sLOFF, sT0, sT0, XC))
            e('buffer_store_dwordx4 v[%d:%d], v%d, s[4:7], s%d offen sc1' % (XR, XR + 3, vX0, sT0))
            e('buffer_store_dwordx4 v[%d:%d], v%d, s[4:7], s%d offen sc1' % (XR + 4, XR + 7, vX1, sT0))
            e('buffer_store_dwordx2 v[%d:%d], v%d, s[4:7], s%d offen sc1' % (XR + 8, XR + 9, vX2, sT0))
            self.bd_stats(SC, False)
            self.cnt(sT1, CNT_XC, sRB)
            self.signal(sT1)
            self.stamp(10)
            if self.o.get('ampre', 1): self.am_c()
            self.side_dma(self.C_side)
        self.bd_epilogue(B0 + 4, final)
        return self.maybe_stop('b')
    def gelu_ops(self, accset, u, c0, c1, vVE, HP, t):
        L = []
        G = [accset + (p * 2 + u) * 4 + c for p in range(2) for c in range(4)]
        U = [accset + ((2 + p) * 2 + u) * 4 + c for p in range(2) for c in range(4)]
        g = [t + i for i in range(8)]; w = [t + 8 + i for i in range(8)]
        for h in range(2):
            R = range(4 * h, 4 * h + 4)
            for i in R: L.append('v_mul_f32 v%d, v%d, v%d' % (w[i], G[i], G[i]))
            for i in R: L.append('v_fma_f32 v%d, v%d, v%d, v%d' % (w[i], w[i], c1, c0))
            for i in R: L.append('v_mul_f32 v%d, v%d, v%d' % (w[i], w[i], G[i]))
            for i in R:
                L.append('v_exp_f32 v%d, v%d' % (w[i], w[i]))
                L.append('v_mul_f32 v%d, v%d, v%d' % (g[i], G[i], U[i]))
            for i in R: L.append('v_fma_f32 v%d, v%d, v%d, v%d' % (w[i], w[i], vVE, vVE))
            for i in R: L.append('v_rcp_f32 v%d, v%d' % (w[i], w[i]))
            for i in R: L.append('v_mul_f32 v%d, v%d, v%d' % (g[i], g[i], w[i]))
            for d in (2 * h, 2 * h + 1): L.append('v_cvt_pk_bf16_f32 v%d, v%d, v%d' % (HP + d, g[2 * d], g[2 * d + 1]))
        return L
    def check_flag(self, vreg, cnt_sgpr, target=16):
        sub = Asm()
        X = self.lab('ck'); L = self.lab('ckl')
        sub('v_cmp_gt_u32 vcc, %d, v%d' % (target, vreg))
        sub('s_cbranch_vccz %s' % X)
        sub('s_cmp_lg_u32 s%d, 0' % sDEAD); sub('s_cbranch_scc1 %s' % X)
        sub('s_mov_b32 s%d, 0' % sPC)
        sub.label(L)
        sub('buffer_load_dword v%d, v%d, s[4:7], s%d offen sc1' % (vreg, vZERO, cnt_sgpr), count=False)
        sub('s_waitcnt vmcnt(0)', count=False)
        sub('v_cmp_gt_u32 vcc, %d, v%d' % (target, vreg))
        sub('s_cbranch_vccz %s' % X)
        sub('s_add_u32 s%d, s%d, 1' % (sPC, sPC)); sub('s_cmp_lt_u32 s%d, %d' % (sPC, SPIN_LIMIT))
        sub('s_cbranch_scc1 %s' % L)
        sub('s_mov_b32 s%d, 1' % sDEAD)
        sub.label(X)
        return sub.items
    def phase_c(self):
        e = self.e; o = self.o
        ST, RS, VE, BMs, AM, GT, HP = 112, (120, 121), (122, 123), (124, 132), 136, 152, (168, 172)
        GC0, GC1 = (176, 177), (178, 179)
        k0 = -2.0 * 0.7978845608028654 * LOG2E
        self.cnt(sT0, CNT_XC, sRB)
        e('s_lshl_b32 s%d, s%d, 3\ns_lshl_b32 s%d, s%d, 1\ns_add_u32 s%d, s%d, s%d' % (sT2, sRB, sT1, sW, sT2, sT2, sT1))
        e('s_lshl_b32 s%d, s%d, 7\ns_add_u32 s%d, s%d, s%d\ns_add_u32 s%d, s%d, 0x%x' % (sT1, sT2, sT1, sT1, sLOFF, sT1, sT1, SC))
        e('s_mul_i32 s%d, s%d, 20480\ns_add_u32 s%d, s%d, s%d\ns_add_u32 s%d, s%d, 0x%x' % (sB0, sT2, sB0, sB0, sLOFF, sB0, sB0, XC))
        e('s_add_u32 s%d, s%d, 20480' % (sB1, sB0))
        e('s_mul_i32 s%d, s%d, 48\ns_add_u32 s%d, s%d, s%d\ns_lshl_b32 s%d, s%d, 10' % (sTW, sT2, sTW, sTW, sJ, sTW, sTW))
        e('s_add_u32 s%d, s%d, s%d\ns_add_u32 s%d, s%d, 0x%x' % (sTW, sTW, sLOFF, sTW, sTW, HH))
        if not o.get('ampre', 1): e('s_mul_i32 s%d, s%d, %d\ns_add_u32 s%d, s%d, 0x%x' % (sT4, sJ, 12 * KB, sT4, sT4, WCM))
        self.poll(sT0)
        e('s_barrier')
        self.stamp(11)
        def tok(s, u):
            sb = sB0 if u == 0 else sB1; t = sC1 + u
            g = []
            if s % 4 == 0: g.append('s_add_u32 s%d, s%d, %d' % (t, sb, s * 1024))
            g.append('buffer_load_dwordx4 a[%d:%d], v%d, s[4:7], s%d offen offset:%d%s' % ((2 * s + u) * 4, (2 * s + u) * 4 + 3, vL16, t, (s % 4) * 1024, self.sc))
            return g
        NPRE = o.get('c_npre', 8)
        if o.get('tt', 0): e.extend(self.touch_tok(XC))
        for s in range(NPRE):
            for u in range(2): e.extend(tok(s, u))
        stld = []
        for k in range(2):
            if k: stld.append('s_add_u32 s%d, s%d, 16384' % (sT1, sT1))
            for u in range(2):
                stld.append('buffer_load_dwordx2 v[%d:%d], v%d, s[4:7], s%d offen offset:%d sc1' % (ST + 4 * u + 2 * k, ST + 4 * u + 2 * k + 1, vSC, sT1, 128 * u))
        def amload(sg):
            pre = [] if sg == 0 else ['s_add_u32 s%d, s%d, 4096' % (sT4, sT4)]
            return pre + ['buffer_load_dwordx4 v[%d:%d], v%d, s[4:7], s%d offen offset:%d' % (AM + 4 * t, AM + 4 * t + 3, vL16, sT4, t * 1024) for t in range(4)]
        st = []
        for u in range(2):
            b = ST + 4 * u
            st += ['v_add_f32 v%d, v%d, v%d' % (b, b, b + 2), 'v_add_f32 v%d, v%d, v%d' % (b + 1, b + 1, b + 3)]
            for sw in ('v_permlane16_swap_b32', 'v_permlane32_swap_b32'):
                st += ['v_mov_b32 v%d, v%d' % (b + 2, b), 'v_mov_b32 v%d, v%d' % (b + 3, b + 1),
                       '%s v%d, v%d' % (sw, b, b + 2), '%s v%d, v%d' % (sw, b + 1, b + 3),
                       'v_add_f32 v%d, v%d, v%d' % (b, b, b + 2), 'v_add_f32 v%d, v%d, v%d' % (b + 1, b + 1, b + 3)]
            st += self.rowstat_finish(b, b + 1, RS[u], VE[u], BMs[u], b + 2)
            st += ['v_mul_f32 v%d, %s, v%d' % (GC0[u], f32bits(k0), RS[u]),
                   'v_mul_f32 v%d, v%d, v%d' % (GC1[u], RS[u], RS[u]),
                   'v_mul_f32 v%d, v%d, v%d' % (GC1[u], GC1[u], GC0[u]),
                   'v_mul_f32 v%d, %s, v%d' % (GC1[u], f32bits(0.044715), GC1[u])]
        LA = 5
        def read(n): return self.ring_read(AF + 4 * (n % 8), C0 + n // 20, (n % 20) * 1024)
        def mf(n, u):
            sg, r = n // 80, n % 80; s, tl = r // 4, r % 4
            acc = ACC + 32 * (sg & 1) + (tl * 2 + u) * 4; a = AF + 4 * (n % 8); b = (2 * s + u) * 4
            c = '0' if s == 0 else 'v[%d:%d]' % (acc, acc + 3)
            return 'v_mfma_f32_16x16x32_bf16 v[%d:%d], v[%d:%d], a[%d:%d], %s' % (acc, acc + 3, a, a + 3, b, b + 3, c)
        def mean(sg):
            L = []
            for tl in range(4):
                for u in range(2):
                    acc = ACC + 32 * (sg & 1) + (tl * 2 + u) * 4
                    L.append('v_mfma_f32_16x16x32_bf16 v[%d:%d], v[%d:%d], v[%d:%d], v[%d:%d]' % (acc, acc + 3, AM + 4 * tl, AM + 4 * tl + 3, BMs[u], BMs[u] + 3, acc, acc + 3))
            return L
        def gelu_store(sg):
            L = []
            for u in range(2):
                L += self.gelu_ops(ACC + 32 * (sg & 1), u, GC0[u], GC1[u], VE[u], HP[u], GT)
                L.append('s_add_u32 s%d, s%d, %d' % (sT5, sTW, u * 48 * 1024 + sg * 16 * 1024))
                L.append(('buffer_store_dwordx4 v[%d:%d], v%d, s[4:7], s%d offen sc1' % (HP[u], HP[u] + 3, vL16, sT5), 'h%d' % sg))
            return L
        def ix(n): return 2 * n + 8 * (n // 80)
        items = [(ix(4 * s), 0, tok(s, 0) + tok(s, 1)) for s in range(NPRE, 20)]
        for b in self.C_in:
            dl = ix(20 * (b - C0 - 1)) - (8 if (b - C0 - 1) % 4 == 0 and b > C0 + 1 else 0)
            items.append((dl, 0, self.flat(self.dma_ops(b)), dl - o.get('c_lead', 40)))
        last_in = o.get('c_lastblk', D0 + 4)
        for b in range(C0 + 6, last_in + 1):
            free = 20 * (b - C0 - 5)
            epn = b - C0 - 1
            dl = ix(20 * epn) - (8 if epn % 4 == 0 else 0) if b < D0 else 10000 + b
            items.append((dl, ix(free) - (8 if free % 80 == 0 else 0), self.flat(self.dma_ops(b))))
        if not o.get('ampre', 1): items.append((ix(60), 0, amload(0)))
        if o.get('tw', 0): items.append((ix(90), ix(84), self.touch_w('D')))
        items.append((ix(o.get('c_stdl', 44)), 0, stld))
        items.append((ix(130), ix(80), amload(1)))
        items.append((ix(210), ix(160), amload(2)))
        self.cnt(sT0, CNT_H, sRB, mul=384)
        items.append((ix(239), ix(o.get('c_fl', 226)), ['buffer_load_dword v%d, v%d, s[4:7], s%d offen sc1' % (vPOLL, vZERO, sT0)], 20000))
        vs = self.vm_stream(items)
        e.wait_tag('blk%d' % C0); e.wait_tag('blk%d' % (C0 + 1))
        e('s_barrier')
        for n in range(LA): e(read(n))
        pos = 0; cstate = {}
        for sg in range(3):
            anchors = []; pre = {}; fixed = {}
            if sg > 0: anchors += mean(sg - 1)
            for n in range(80 * sg, 80 * sg + 80):
                assert pos + len(anchors) == ix(n)
                anchors += [mf(n, 0), mf(n, 1)]
                if n + LA < 240: fixed[ix(n)] = [read(n + LA)]
                if n + 1 < 240: fixed[ix(n) + 1] = [Need('v[%d:%d]' % (AF + 4 * ((n + 1) % 8), AF + 4 * ((n + 1) % 8) + 3))]
            for ep in range(4 * sg, 4 * sg + 4):
                if ep == 0: continue
                at = ix(20 * ep) - (8 if ep % 4 == 0 else 0)
                p = [W_tag('blk%d' % (C0 + ep + 1))] if ep < 11 else []
                if ep == o.get('h0ep', 9): p.append(W_tag('h0'))
                p.append('s_barrier')
                if self.o.get('fine') == 'c': p += self.stamp_items(19 + ep - 1)
                if ep == o.get('h0ep', 9):
                    sub = Main(None, self.o); sub.nlab = self.nlab + 1000
                    sub.signal_only(sT0)
                    p += sub.e.items
                pre[at] = p
            valu = Stream(st, ix(o.get('c_stv', 56))) if sg == 0 else Stream(gelu_store(sg - 1), pos + 10)
            e.extend(schedule(anchors, 2, pre, fixed, [vs, valu], start=pos, vm_gap=(o.get('c_gap', 4) if sg == 0 else o.get('c_gap2', 4)), state=cstate))
            e.extend([y[0] for y in valu.q])
            pos += len(anchors)
        if self.o.get('verbose'): print('c forced', cstate.get('forced'), 'left', len(vs.q))
        e.extend([y[0] for y in vs.q])
        self.stamp(12)
        e.extend(self.check_flag(vPOLL, sT0))
        self.d_bases()
        tail = mean(2) + gelu_store(2)
        toks = [self.d_tok(i, u) for i in range(8) for u in range(2)]
        step = max(1, (len(tail) - 8) // (len(toks) + 1))
        k = 0
        for n, x in enumerate(tail):
            if k < len(toks) and n % step == 0: e.extend(toks[k]); k += 1
            e.extend([x])
        for g in toks[k:]: e.extend(g)
        self.cnt(sT1, CNT_H, sRB, mul=384, add=256)
        self.signal(sT1)
        self.stamp(13)
        self.c_last = last_in
        return self.maybe_stop('c')
    def d_bases(self):
        e = self.e
        for (s, tt) in ((sB0, sTTK), (sB1, sTTS)):
            e('s_mul_i32 s%d, s%d, 48\ns_add_u32 s%d, s%d, s%d\ns_lshl_b32 s%d, s%d, 10' % (s, tt, s, s, sKH, s, s))
            e('s_add_u32 s%d, s%d, s%d\ns_add_u32 s%d, s%d, 0x%x' % (s, s, sLOFF, s, s, HH))
    def d_tok(self, i, u):
        sg, jj = i // 8, i % 8
        s = sB0 if u == 0 else sB1; t = sC1 + u
        g = []
        if jj % 2 == 0: g.append('s_add_u32 s%d, s%d, %d' % (t, s, sg * 16384 + jj * 2048))
        g.append('buffer_load_dwordx4 a[%d:%d], v%d, s[4:7], s%d offen offset:%d%s' % ((2 * i + u) * 4, (2 * i + u) * 4 + 3, vL16, t, (jj % 2) * 2048, self.sc))
        return g
    def phase_d(self):
        e = self.e; o = self.o
        tok = self.d_tok
        self.stamp(14)
        CK = o.get('d_ck', 3)
        items = []
        for b in range(self.c_last + 1, D0 + 6): items.append((20 * (b - D0 - 1), 0, self.flat(self.dma_ops(b)), b - 200))
        for b in range(D0 + 6, NBLK):
            early = 20 * (b - D0 - 5)
            key = (b - 200) if early < 20 * CK else 20 * (b - D0 - 1)
            items.append((20 * (b - D0 - 1), early, self.flat(self.dma_ops(b)), key))
        items.append((20 * CK - 1, 20 * CK - o.get('d_fl', 30), ['buffer_load_dword v%d, v%d, s[4:7], s%d offen sc1' % (vPOLL, vZERO, sT1)], -1))
        items += [(10 * i, 20 * CK, tok(i, 0) + tok(i, 1)) for i in range(8, 24)]
        if o.get('tw', 0): items.append((30, 0, self.touch_w('A'), -500))
        for b in self.A_tail: items.append((5000 + b, 20 * (6 + b), self.flat(self.dma_ops(b))))
        chk = [W_vreg(vPOLL)] + self.check_flag(vPOLL, sT1)
        self.gemm_bd(D0, 24, self.vm_stream(items), {CK: chk}, Stream(self.bd_unpack(), 200))
        self.stamp(17)
        def final():
            L = self.lab('d_last'); X = self.lab('d_done')
            e('s_cmp_lg_u32 s%d, 0' % sL); e('s_cbranch_scc1 %s' % L)
            e('s_lshr_b32 s%d, s%d, 1\ns_mul_i32 s%d, s%d, 40960\ns_add_u32 s%d, s%d, s%d\ns_add_u32 s%d, s%d, 0x%x' % (sT0, sTTK, sT0, sT0, sT0, sT0, sLOFF, sT0, sT0, XA + self.lstride))
            e('buffer_store_dwordx4 v[%d:%d], v%d, s[4:7], s%d offen sc1' % (XR, XR + 3, vY0, sT0))
            e('buffer_store_dwordx4 v[%d:%d], v%d, s[4:7], s%d offen sc1' % (XR + 4, XR + 7, vY1, sT0))
            e('buffer_store_dwordx2 v[%d:%d], v%d, s[4:7], s%d offen sc1' % (XR + 8, XR + 9, vY2, sT0))
            self.bd_stats(SA, True)
            self.cnt(sT1, CNT_XA, sRB, next_layer=True)
            self.signal(sT1)
            self.stamp(18)
            if self.o.get('ampre', 1): self.am_a()
            self.side_dma(self.A_side)
            e('s_branch %s' % X)
            e.label(L)
            e('s_mul_i32 s%d, s%d, 20480\ns_mul_i32 s%d, s%d, 160\ns_add_u32 s%d, s%d, s%d' % (sT0, sTTK, sT1, sCS, sT0, sT0, sT1))
            e('buffer_store_dwordx4 v[%d:%d], v%d, s[12:15], s%d offen' % (XR, XR + 3, vR0, sT0))
            e('buffer_store_dwordx4 v[%d:%d], v%d, s[12:15], s%d offen offset:64' % (XR + 4, XR + 7, vR0, sT0))
            e('buffer_store_dwordx2 v[%d:%d], v%d, s[12:15], s%d offen' % (XR + 8, XR + 9, vR2, sT0))
            self.stamp(18)
            self.stamp_flush()
            e('s_endpgm')
            e.label(X)
        self.bd_epilogue(D0 + 11, final)
        return self.maybe_stop('d')
    def build(self):
        e = self.e
        self.prologue()
        e.label('M_LAYER')
        done = self.phase_a() or self.phase_b() or self.phase_c() or self.phase_d()
        if not done:
            e('s_add_u32 s%d, s%d, 1\ns_add_u32 s%d, s%d, 0x%x\ns_add_u32 s%d, s%d, 0x%x' % (sL, sL, sLOFF, sLOFF, self.lstride, sCNT, sCNT, CSTRIDE))
            e('s_branch M_LAYER')
        e.label('M_END')
        e('s_endpgm')
        e.label('M_CODE_END')
        return e
```

```python
from asmlib import *
from layout import *

P0_GRID = 513
P0_LDS = 28 * 1024
NAME = 'prep_kernel'

def srd(e, dst, lo, nbytes):
    e('s_mov_b32 s%d, s%d' % (dst, lo))
    e('s_mov_b32 s%d, s%d' % (dst + 1, lo + 1))
    e('s_mov_b32 s%d, 0x%x' % (dst + 2, nbytes))
    e('s_mov_b32 s%d, 0x20000' % (dst + 3))

S_WS, S_SRC, S_SRC2, S_W = 4, 8, 12, 16

STAMPS = False
def stamp(e, k):
    if not STAMPS: return
    e('s_memrealtime s[70:71]\ns_waitcnt lgkmcnt(0)\nv_mov_b32 v%d, s70' % (120 + k))
def stamp_flush(e):
    if not STAMPS: return
    stamp(e, 3)
    e('s_lshl_b32 s72, s2, 2\ns_add_u32 s72, s72, s16\ns_lshl_b32 s72, s72, 4\ns_add_u32 s72, s72, 0x4100000')
    e('v_mov_b32 v5, 0')
    e('buffer_store_dwordx4 v[120:123], v5, s[4:7], s72 offen' + SC)

SC = ''
CODEPF = 1
ONLYCRIT = 0
REMAP = 1
MAIN_LABEL = 'hedgehog_main_kernel'
def gen_p0(stamps=False, sc='', codepf=1, onlycrit=0, remap=1):
    global STAMPS, SC, CODEPF, ONLYCRIT, REMAP
    STAMPS = stamps; SC = sc; CODEPF = codepf; ONLYCRIT = onlycrit; REMAP = remap
    e = Asm()
    e.directive('.text\n.globl %s\n.p2align 8\n.type %s,@function' % (NAME, NAME))
    e.label(NAME)
    e('s_cmp_ge_u32 s2, %d' % P0_GRID)
    e('s_cbranch_scc1 P0_END')
    stamp(e, 0)
    e('s_load_dwordx8 s[40:47], s[0:1], 0')
    e('s_load_dwordx4 s[48:51], s[0:1], 40')
    e('s_load_dwordx2 s[52:53], s[0:1], 56')
    e('s_load_dwordx2 s[54:55], s[0:1], 80')
    e('v_lshrrev_b32 v1, 6, v0')
    e('v_and_b32 v2, 63, v0')
    e('v_readfirstlane_b32 s16, v1')
    e('v_mov_b32 v3, 0x3f803f80')
    e('v_lshlrev_b32 v4, 4, v2')
    e('s_waitcnt lgkmcnt(0)')
    srd(e, S_WS, 54, WS_BYTES)
    stamp(e, 1)
    e('s_cmp_lt_u32 s2, 96');  e('s_cbranch_scc1 P0_WA')
    if ONLYCRIT:
        e('s_cmp_lt_u32 s2, 448'); e('s_cbranch_scc1 P0_END')
    e('s_cmp_lt_u32 s2, 288'); e('s_cbranch_scc1 P0_WC')
    e('s_cmp_lt_u32 s2, 416'); e('s_cbranch_scc1 P0_WD')
    e('s_cmp_lt_u32 s2, 448'); e('s_cbranch_scc1 P0_WB')
    e('s_cmp_lt_u32 s2, 512'); e('s_cbranch_scc1 P0_X')
    e('v_lshlrev_b32 v5, 4, v0')
    for r in range(8, 12): e('v_mov_b32 v%d, 0' % r)
    for l in range(1):
        for n in range(8):
            e('s_mov_b32 s20, 0x%x' % (n * 4096))
            e('buffer_store_dwordx4 v[8:11], v5, s[4:7], s20 offen' + SC)
    e('s_endpgm')
    gen_wa(e); gen_wc(e); gen_wd(e); gen_wb(e); gen_x(e)
    e.label('P0_END')
    e('s_endpgm')
    return e

def hilo_store(e, vsum, vtmp, voff, soff):
    e('v_cvt_pk_bf16_f32 v%d, v%d, v%d' % (vtmp, vsum, vsum))
    e('v_and_b32 v%d, 0xffff0000, v%d' % (vtmp + 2, vtmp))
    e('v_sub_f32 v%d, v%d, v%d' % (vtmp + 2, vsum, vtmp + 2))
    e('v_cvt_pk_bf16_f32 v%d, v%d, v%d' % (vtmp + 1, vtmp + 2, vtmp + 2))
    e(('buffer_store_dwordx2 v[%d:%d], v%d, s[4:7], %s offen' % (vtmp, vtmp + 1, voff, soff)) + SC)

def gen_wa(e):
    e.label('P0_WA')
    e.reset_state()
    srd(e, S_SRC, 42, 640 * 3840)
    srd(e, S_SRC2, 44, 32 * 800)
    if REMAP:
        e('s_and_b32 s20, s2, 7\ns_lshr_b32 s21, s2, 3')
        e('s_cmp_ge_u32 s21, 6\ns_cselect_b32 s22, 1, 0\ns_cselect_b32 s23, 6, 0')
        e('s_sub_u32 s21, s21, s23\ns_lshl_b32 s20, s20, 1\ns_add_u32 s20, s20, s22')
        e('s_mul_i32 s20, s20, 6\ns_add_u32 s20, s20, s21\ns_lshl_b32 s20, s20, 2\ns_add_u32 s20, s20, s16')
    else:
        e('s_lshl_b32 s20, s2, 2\ns_add_u32 s20, s20, s16')
    e('s_mul_i32 s21, s20, 2731\ns_lshr_b32 s21, s21, 16')
    e('s_mul_i32 s22, s21, 24\ns_sub_u32 s22, s20, s22')
    e('s_mul_i32 s23, s22, 43\ns_lshr_b32 s23, s23, 8')
    e('s_mul_i32 s24, s23, 6\ns_sub_u32 s24, s22, s24')
    e('s_lshr_b32 s25, s24, 1\ns_and_b32 s26, s24, 1')
    e('s_lshl_b32 s27, s21, 1\ns_add_u32 s27, s27, s26')
    e('s_add_u32 s28, s25, 1\ns_mul_i32 s28, s28, 640')
    e('s_cmp_eq_u32 s25, 2\ns_cselect_b32 s28, 0, s28')
    e('s_mul_i32 s29, s27, 20\ns_add_u32 s28, s28, s29\ns_lshl_b32 s28, s28, 1')
    e('s_mul_i32 s29, s23, %d\ns_add_u32 s28, s28, s29' % (160 * 3840))
    e('v_and_b32 v5, 31, v2\nv_lshrrev_b32 v6, 5, v2')
    e('v_and_b32 v7, 0x13, v5')
    e('v_bfe_u32 v8, v5, 2, 1\nv_lshl_add_u32 v7, v8, 3, v7')
    e('v_bfe_u32 v8, v5, 3, 1\nv_lshl_add_u32 v7, v8, 2, v7')
    e('v_mul_u32_u24 v7, 3840, v7\nv_lshl_add_u32 v7, v6, 4, v7')
    for kt in range(5):
        e('s_add_u32 s30, s28, %d' % (kt * 32 * 3840))
        for m in range(2):
            r = 32 + 8 * kt + 4 * m
            e('buffer_load_dwordx4 v[%d:%d], v7, s[8:11], s30 offen offset:%d' % (r, r + 3, 32 * m))
    e('s_cmp_eq_u32 s25, 1\ns_cbranch_scc1 P0_WA_ID')
    e('v_lshlrev_b32 v8, 1, v5')
    e('v_mul_u32_u24 v9, 320, v6\nv_add_u32 v8, v8, v9')
    e('s_mul_i32 s30, s27, 800')
    e('v_mov_b32 v10, 0x%x' % OOB)
    e('v_cmp_gt_u32 vcc, 20, v5\nv_cndmask_b32 v8, v10, v8, vcc')
    e('v_cmp_eq_u32 vcc, 0, v6\nv_cndmask_b32 v9, v10, v8, vcc')
    for el in range(8):
        e('buffer_load_ushort v%d, v8, s[12:15], s30 offen offset:%d' % (80 + el, el * 40))
    for el in range(4):
        e('buffer_load_ushort v%d, v9, s[12:15], s30 offen offset:%d' % (88 + el, (16 + el) * 40))
    for d in range(4): e('v_lshl_or_b32 v%d, v%d, 16, v%d' % (72 + d, 81 + 2 * d, 80 + 2 * d))
    for d in range(2): e('v_lshl_or_b32 v%d, v%d, 16, v%d' % (76 + d, 89 + 2 * d, 88 + 2 * d))
    e('v_mov_b32 v78, 0\nv_mov_b32 v79, 0')
    e.wait_all()
    e('s_branch P0_WA_GO')
    e.label('P0_WA_ID')
    e('v_lshlrev_b32 v8, 3, v6\nv_sub_u32 v8, v5, v8')
    e('v_mov_b32 v10, 0x3f80\nv_mov_b32 v11, 0x3f800000\nv_mov_b32 v12, 0')
    for m in range(2):
        if m == 1: e('v_subrev_u32 v8, 16, v8')
        for d in range(4):
            e('v_cmp_eq_u32 vcc, %d, v8' % (2 * d))
            e('v_cndmask_b32 v%d, v12, v10, vcc' % (72 + 4 * m + d))
            e('v_cmp_eq_u32 vcc, %d, v8' % (2 * d + 1))
            e('v_cndmask_b32 v%d, v%d, v11, vcc' % (72 + 4 * m + d, 72 + 4 * m + d))
    e.wait_all()
    e.label('P0_WA_GO')
    e.reset_state()
    stamp(e, 2)
    e('s_mul_i32 s30, s25, 20\nv_add_u32 v8, s30, v5')
    e('v_lshrrev_b32 v9, 4, v8\nv_and_b32 v10, 15, v8')
    e('v_lshrrev_b32 v11, 2, v10\nv_lshlrev_b32 v11, 3, v11')
    e('v_and_b32 v10, 3, v10\nv_add_u32 v11, v11, v10')
    e('s_lshl_b32 s31, s26, 2\nv_add_u32 v11, s31, v11')
    e('v_lshl_add_u32 v12, v6, 5, v11\nv_lshlrev_b32 v12, 4, v12')
    e('v_cmp_gt_u32 vcc, 3, v9')
    e('v_mov_b32 v13, 120\nv_cndmask_b32 v13, v13, v9, vcc')
    e('v_mov_b32 v14, 1024\nv_mov_b32 v15, 3072\nv_cndmask_b32 v14, v14, v15, vcc')
    e('v_lshl_add_u32 v12, v13, 10, v12')
    e('s_mul_i32 s31, s23, 10\nv_mul_lo_u32 v15, v14, s31\nv_add_u32 v12, v12, v15')
    e('s_cmp_eq_u32 s25, 2\ns_cselect_b32 s32, 24, 20')
    e('v_cmp_gt_u32 vcc, s32, v5\nv_mov_b32 v16, 0x%x' % OOB)
    e('s_mov_b64 s[34:35], vcc', count=False) if False else None
    e('v_cndmask_b32 v12, v16, v12, vcc')
    e('v_cndmask_b32 v14, 0, v14, vcc') if False else None
    e('v_lshlrev_b32 v17, 10, v9\nv_lshl_add_u32 v17, v11, 4, v17')
    e('v_cndmask_b32 v17, v16, v17, vcc')
    e('v_cmp_eq_u32 vcc, 0, v6\nv_cndmask_b32 v17, v16, v17, vcc')
    e('s_mul_i32 s33, s21, %d\ns_add_u32 s33, s33, 0x%x' % (160 * KB, WA))
    e('v_mov_b32 v18, 0')
    for kt in range(5):
        a0 = 32 + 8 * kt
        e('v_mfma_f32_32x32x16_bf16 v[96:111], v[%d:%d], v[72:75], 0' % (a0, a0 + 3))
        e('v_mfma_f32_32x32x16_bf16 v[96:111], v[%d:%d], v[76:79], v[96:111]' % (a0 + 4, a0 + 7))
        for d in range(8):
            e('v_cvt_pk_bf16_f32 v%d, v%d, v%d' % (112 + d, 96 + 2 * d, 97 + 2 * d))
        for d in range(8):
            e('v_dot2c_f32_bf16 v18, v%d, v3' % (112 + d))
        e('buffer_store_dwordx4 v[112:115], v12, s[4:7], s33 offen' + SC)
        e('v_add_u32 v19, v12, v14')
        e('buffer_store_dwordx4 v[116:119], v19, s[4:7], s33 offen' + SC)
        e('v_add_u32 v12, v19, v14')
    e('v_mov_b32 v19, v18')
    e('v_permlane32_swap_b32 v18, v19')
    e('v_add_f32 v18, v18, v19')
    e('s_lshl_b32 s34, s21, 12\ns_add_u32 s34, s34, 0x%x' % WAM)
    e('s_lshr_b32 s35, s23, 1\ns_lshl_b32 s35, s35, 9\ns_add_u32 s34, s34, s35')
    e('s_and_b32 s35, s23, 1\ns_lshl_b32 s35, s35, 3\ns_add_u32 s34, s34, s35')
    hilo_store(e, 18, 20, 17, 's34')
    stamp_flush(e)
    e('s_endpgm')

def tr_lane(e):
    e('v_lshrrev_b32 v5, 4, v2\nv_bfe_u32 v6, v2, 2, 2\nv_and_b32 v7, 3, v2')

def gen_wc(e):
    e.label('P0_WC')
    e.reset_state()
    e('s_sub_u32 s20, s2, 96')
    e('s_cmp_ge_u32 s20, 96\ns_cselect_b32 s21, 1, 0')
    e('s_cselect_b32 s8, s50, s48\ns_cselect_b32 s9, s51, s49')
    e('s_mov_b32 s10, 0x%x\ns_mov_b32 s11, 0x20000' % (640 * 3072))
    e('s_mul_i32 s22, s21, 96\ns_sub_u32 s22, s20, s22')
    e('s_lshr_b32 s23, s22, 2\ns_and_b32 s24, s22, 3')
    e('v_lshrrev_b32 v8, 3, v2\nv_mul_u32_u24 v8, 3072, v8')
    e('v_and_b32 v9, 7, v2\nv_lshl_add_u32 v8, v9, 4, v8')
    e('s_mul_i32 s25, s24, %d\ns_lshl_b32 s26, s23, 7\ns_add_u32 s25, s25, s26' % (160 * 3072))
    e('s_mul_i32 s26, s16, %d\ns_add_u32 s25, s25, s26' % (40 * 3072))
    e('s_mul_i32 s27, s16, 5120')
    for n in range(5):
        e('s_add_u32 m0, s27, %d' % (n * 1024))
        e('s_add_u32 s28, s25, %d' % (n * 8 * 3072))
        e('buffer_load_dwordx4 v8, s[8:11], s28 offen lds')
    tr_lane(e)
    e('v_lshl_add_u32 v9, v5, 3, v6\nv_lshlrev_b32 v9, 7, v9')
    e('v_lshl_add_u32 v9, v7, 3, v9')
    e('s_lshl_b32 s26, s16, 5\nv_add_u32 v9, s26, v9')
    e('s_lshl_b32 s26, s23, 2\ns_add_u32 s26, s26, s16')
    e('s_mul_i32 s27, s26, 171\ns_lshr_b32 s27, s27, 10')
    e('s_mul_i32 s28, s27, 6\ns_sub_u32 s28, s26, s28\ns_lshr_b32 s28, s28, 1')
    e('s_and_b32 s29, s26, 1\ns_lshl_b32 s30, s21, 1\ns_add_u32 s29, s29, s30')
    e('s_mul_i32 s30, s27, 240\ns_mul_i32 s31, s28, 80\ns_add_u32 s30, s30, s31')
    e('s_mul_i32 s31, s24, 20\ns_add_u32 s30, s30, s31\ns_add_u32 s30, s30, s29')
    e('s_lshl_b32 s30, s30, 10\ns_add_u32 s30, s30, 0x%x' % WC)
    e('v_mov_b32 v18, 0')
    e.wait_all()
    e('s_barrier')
    stamp(e, 2)
    for s in range(5):
        r = 32 + 4 * s
        e('ds_read_b64_tr_b16 v[%d:%d], v9 offset:%d' % (r, r + 1, s * 4096))
        e('ds_read_b64_tr_b16 v[%d:%d], v9 offset:%d' % (r + 2, r + 3, s * 4096 + 512))
    for s in range(5):
        r = 32 + 4 * s
        e('s_add_u32 s31, s30, %d' % (s * 4096))
        e(('buffer_store_dwordx4 v[%d:%d], v4, s[4:7], s31 offen' % (r, r + 3)) + SC)
        for d in range(4): e('v_dot2c_f32_bf16 v18, v%d, v3' % (r + d))
    e('v_mov_b32 v19, v18\nv_permlane16_swap_b32 v18, v19\nv_add_f32 v18, v18, v19')
    e('v_mov_b32 v19, v18\nv_permlane32_swap_b32 v18, v19\nv_add_f32 v18, v18, v19')
    e('v_and_b32 v10, 15, v2\nv_lshlrev_b32 v10, 4, v10')
    e('v_lshl_add_u32 v10, v5, 9, v10')
    e('v_mov_b32 v11, 0x%x' % OOB)
    e('v_cmp_gt_u32 vcc, 2, v5\nv_cndmask_b32 v10, v11, v10, vcc')
    e('v_cmp_eq_u32 vcc, 0, v5\nv_cndmask_b32 v18, 0, v18, vcc')
    e('s_mul_i32 s31, s27, 12\ns_lshl_b32 s32, s28, 2\ns_add_u32 s31, s31, s32\ns_add_u32 s31, s31, s29')
    e('s_lshl_b32 s31, s31, 10\ns_add_u32 s31, s31, 0x%x' % WCM)
    e('s_lshr_b32 s32, s24, 1\ns_lshl_b32 s32, s32, 8\ns_add_u32 s31, s31, s32')
    e('s_and_b32 s32, s24, 1\ns_lshl_b32 s32, s32, 3\ns_add_u32 s31, s31, s32')
    hilo_store(e, 18, 20, 10, 's31')
    stamp_flush(e)
    e('s_endpgm')

def dma160_voff(e, dst):
    e('v_mul_u32_u24 v8, 205, v2\nv_lshrrev_b32 v8, 11, v8')
    e('v_mul_u32_u24 v9, 10, v8\nv_sub_u32 v9, v2, v9')
    e('v_min_u32 v8, 5, v8')
    e('v_mul_u32_u24 v8, 1280, v8\nv_lshl_add_u32 v%d, v9, 4, v8' % dst)

def row_to_lds(e, vrow, vdst, vt):
    e('v_mul_u32_u24 v%d, 171, v%d\nv_lshrrev_b32 v%d, 10, v%d' % (vt, vrow, vt, vt))
    e('v_mul_u32_u24 v%d, 6, v%d\nv_sub_u32 v%d, v%d, v%d' % (vdst, vt, vdst, vrow, vdst))
    e('v_mul_u32_u24 v%d, 160, v%d\nv_lshl_add_u32 v%d, v%d, 10, v%d' % (vdst, vdst, vdst, vt, vdst))

def gen_wd(e):
    e.label('P0_WD')
    e.reset_state()
    srd(e, S_SRC, 52, 1536 * 1280)
    if REMAP:
        e('s_sub_u32 s20, s2, 288\ns_lshr_b32 s23, s20, 3\ns_lshr_b32 s21, s23, 1')
        e('s_and_b32 s22, s20, 7\ns_lshl_b32 s22, s22, 1\ns_and_b32 s23, s23, 1\ns_add_u32 s22, s22, s23')
    else:
        e('s_sub_u32 s20, s2, 288\ns_lshr_b32 s21, s20, 4\ns_and_b32 s22, s20, 15')
    dma160_voff(e, 10)
    e('s_mul_i32 s23, s22, %d\ns_mul_i32 s24, s21, 160\ns_add_u32 s23, s23, s24' % (96 * 1280))
    e('s_mul_i32 s24, s16, %d\ns_add_u32 s23, s23, s24' % (24 * 1280))
    e('s_lshl_b32 s25, s16, 12')
    for n in range(4):
        e('s_add_u32 m0, s25, %d' % (n * 1024))
        e('s_add_u32 s26, s23, %d' % (n * 6 * 1280))
        e('buffer_load_dwordx4 v10, s[8:11], s26 offen lds')
    tr_lane(e)
    e('s_lshl_b32 s26, s16, 5')
    e('v_lshl_add_u32 v11, v5, 2, v6\nv_add_u32 v11, s26, v11')
    e('v_min_u32 v11, 79, v11')
    row_to_lds(e, 11, 12, 13)
    e('v_add_u32 v11, 16, v11')
    row_to_lds(e, 11, 14, 13)
    e('v_lshl_add_u32 v16, v7, 4, v12\nv_lshl_add_u32 v17, v7, 4, v14')
    e('v_lshl_add_u32 v18, v7, 3, v12\nv_lshl_add_u32 v19, v7, 3, v14')
    e('s_lshl_b32 s27, s16, 3\ns_lshr_b32 s28, s22, 1\ns_add_u32 s27, s27, s28\ns_mul_i32 s27, s27, 10')
    e('s_and_b32 s28, s22, 1\ns_mul_i32 s28, s28, 5\ns_add_u32 s27, s27, s28')
    e('s_mul_i32 s28, s21, 240\ns_add_u32 s27, s27, s28\ns_lshl_b32 s27, s27, 10\ns_add_u32 s27, s27, 0x%x' % WD)
    e.wait_all()
    e('s_barrier')
    stamp(e, 2)
    e('s_cmp_eq_u32 s16, 3\ns_cbranch_scc1 P0_END')
    for tau in range(5):
        r = 32 + 4 * tau
        off = (8 * tau if tau < 2 else 64 + 8 * (tau - 2)) if tau < 4 else 128
        va, vb = (16, 17) if tau < 4 else (18, 19)
        e('ds_read_b64_tr_b16 v[%d:%d], v%d offset:%d' % (r, r + 1, va, off))
        e('ds_read_b64_tr_b16 v[%d:%d], v%d offset:%d' % (r + 2, r + 3, vb, off))
    for tau in range(5):
        r = 32 + 4 * tau
        e('s_add_u32 s28, s27, %d' % (tau * 1024))
        e(('buffer_store_dwordx4 v[%d:%d], v4, s[4:7], s28 offen' % (r, r + 3)) + SC)
    stamp_flush(e)
    e('s_endpgm')

def gen_wb(e):
    e.label('P0_WB')
    e.reset_state()
    srd(e, S_SRC, 46, 640 * 1280)
    if REMAP:
        e('s_sub_u32 s20, s2, 416\ns_and_b32 s23, s20, 7\ns_lshr_b32 s22, s23, 1')
        e('s_and_b32 s23, s23, 1\ns_lshl_b32 s23, s23, 2\ns_lshr_b32 s21, s20, 3\ns_add_u32 s21, s21, s23')
    else:
        e('s_sub_u32 s20, s2, 416\ns_lshr_b32 s21, s20, 2\ns_and_b32 s22, s20, 3')
    dma160_voff(e, 10)
    e('s_mul_i32 s23, s22, %d\ns_mul_i32 s24, s21, 160\ns_add_u32 s23, s23, s24' % (160 * 1280))
    e('s_mul_i32 s24, s16, %d\ns_add_u32 s23, s23, s24' % (42 * 1280))
    e('s_mul_i32 s25, s16, 7168')
    for n in range(7):
        e('s_add_u32 m0, s25, %d' % (n * 1024))
        e('s_add_u32 s26, s23, %d' % (n * 6 * 1280))
        e('buffer_load_dwordx4 v10, s[8:11], s26 offen lds')
    tr_lane(e)
    e('s_mul_i32 s27, s21, %d\ns_add_u32 s27, s27, 0x%x' % (100 * KB, WB))
    e.wait_all()
    e('s_barrier')
    stamp(e, 2)
    def rows(sp):
        e('v_mov_b32 v11, %s' % sp)
        e('v_lshl_add_u32 v11, v11, 2, v5')
        e('v_mul_u32_u24 v12, 52, v11\nv_lshrrev_b32 v12, 8, v12')
        e('v_mul_u32_u24 v13, 5, v12\nv_sub_u32 v13, v11, v13')
        e('v_mul_u32_u24 v12, 40, v12\nv_add_u32 v12, v12, v6')
        e('v_lshlrev_b32 v14, 3, v13')
        e('v_add_u32 v15, 4, v14')
        e('v_cmp_gt_u32 vcc, 2, v13\nv_cndmask_b32 v14, v15, v14, vcc')
        e('v_cmp_eq_u32 vcc, 4, v13\nv_cndmask_b32 v14, v14, 16, vcc') if False else None
        e('v_mov_b32 v15, 16\nv_cmp_eq_u32 vcc, 4, v13\nv_cndmask_b32 v14, v14, v15, vcc')
        e('v_add_u32 v20, v12, v14')
        e('v_mov_b32 v15, 20\nv_cndmask_b32 v15, 4, v15, vcc')
        e('v_add_u32 v21, v20, v15')
        row_to_lds(e, 20, 12, 13)
        row_to_lds(e, 21, 14, 13)
    def dest(sp, tau_sgpr_or_const):
        e('s_mul_i32 s28, s22, 5\ns_add_u32 s28, s28, %s' % sp)
        e('s_cmp_ge_u32 s28, 10\ns_cselect_b32 s29, 5, 0\ns_cselect_b32 s30, 10, 0')
        e('s_sub_u32 s28, s28, s30\ns_mul_i32 s28, s28, 10\ns_add_u32 s28, s28, s29')
        e('s_add_u32 s28, s28, %s' % tau_sgpr_or_const)
        e('s_lshl_b32 s28, s28, 10\ns_add_u32 s28, s28, s27')
    e('s_and_b32 s31, s16, 1\ns_lshl_b32 s31, s31, 3\ns_lshr_b32 s32, s16, 1\ns_lshl_b32 s32, s32, 6\ns_add_u32 s31, s31, s32')
    e('v_lshlrev_b32 v22, 4, v7\nv_add_u32 v22, s31, v22')
    e('v_lshlrev_b32 v23, 3, v7\nv_add_u32 v23, 128, v23')
    def frag(vcol):
        e('v_add_u32 v16, v12, v%d\nv_add_u32 v17, v14, v%d' % (vcol, vcol))
        e('ds_read_b64_tr_b16 v[32:33], v16\nds_read_b64_tr_b16 v[34:35], v17')
        e('buffer_store_dwordx4 v[32:35], v4, s[4:7], s28 offen' + SC)
    for sp in range(5):
        rows(str(sp)); dest(str(sp), 's16'); frag(22)
        if sp == 4:
            dest('4', '4'); frag(23)
    rows('s16'); dest('s16', '4'); frag(23)
    stamp_flush(e)
    e('s_endpgm')

def gen_x(e):
    e.label('P0_X')
    e.reset_state()
    srd(e, S_SRC, 40, T * 1280)
    e('s_sub_u32 s20, s2, 448')
    if CODEPF:
        e('s_getpc_b64 s[24:25]')
        e.label('P0_PC')
        e('s_add_u32 s24, s24, (%s-P0_PC)\ns_addc_u32 s25, s25, 0' % MAIN_LABEL)
        e('v_lshlrev_b32 v100, 7, v0')
        e('v_mov_b32 v101, (M_CODE_END-%s-4)' % MAIN_LABEL)
        e('v_add_u32 v102, 0x8000, v100')
        e('v_min_u32 v100, v100, v101\nv_min_u32 v102, v102, v101')
        e('v_and_b32 v100, -4, v100\nv_and_b32 v102, -4, v102')
        e('global_load_dword v103, v100, s[24:25]', count=False)
        e('global_load_dword v104, v102, s[24:25]', count=False)
    e('v_and_b32 v5, 31, v2\nv_lshrrev_b32 v6, 5, v2')
    e('v_mul_u32_u24 v7, 1280, v5\nv_lshl_add_u32 v7, v6, 4, v7')
    e('s_mul_i32 s21, s20, 40960\ns_mul_i32 s22, s16, 320\ns_add_u32 s21, s21, s22')
    for n in range(10):
        e('buffer_load_dwordx4 v[%d:%d], v7, s[8:11], s21 offen offset:%d' % (32 + 4 * n, 35 + 4 * n, 32 * n))
    e('s_mul_i32 s22, s20, 40\ns_mul_i32 s23, s16, 10\ns_add_u32 s22, s22, s23')
    e('s_lshl_b32 s22, s22, 10\ns_add_u32 s22, s22, 0x%x' % (LBASE + XA))
    for r in range(20, 24): e('v_mov_b32 v%d, 0' % r)
    if STAMPS:
        e.wait_all(); stamp(e, 2)
    for n in range(10):
        r = 32 + 4 * n
        e('s_add_u32 s23, s22, %d' % (n * 1024))
        e(('buffer_store_dwordx4 v[%d:%d], v4, s[4:7], s23 offen' % (r, r + 3)) + SC)
        a = 20 if n < 5 else 22
        for d in range(4):
            e('v_dot2c_f32_bf16 v%d, v%d, v3' % (a, r + d))
            e('v_dot2c_f32_bf16 v%d, v%d, v%d' % (a + 1, r + d, r + d))
    for r in range(20, 24):
        e('v_mov_b32 v24, v%d\nv_permlane32_swap_b32 v%d, v24\nv_add_f32 v%d, v%d, v24' % (r, r, r, r))
    e('v_lshlrev_b32 v8, 3, v5\nv_mov_b32 v9, 0x%x' % OOB)
    e('v_cmp_eq_u32 vcc, 0, v6\nv_cndmask_b32 v8, v9, v8, vcc')
    e('s_lshl_b32 s23, s20, 8\ns_lshl_b32 s24, s16, 15\ns_add_u32 s23, s23, s24\ns_add_u32 s23, s23, 0x%x' % (LBASE + SA))
    e('buffer_store_dwordx2 v[20:21], v8, s[4:7], s23 offen' + SC)
    e('s_add_u32 s23, s23, 16384')
    e('buffer_store_dwordx2 v[22:23], v8, s[4:7], s23 offen' + SC)
    stamp_flush(e)
    e('s_endpgm')

def descriptor(name, vgpr, accum, sgpr=96):
    return """.amdhsa_kernel %s
  .amdhsa_next_free_vgpr %d
  .amdhsa_next_free_sgpr %d
  .amdhsa_accum_offset %d
  .amdhsa_group_segment_fixed_size 0
  .amdhsa_kernarg_size 88
  .amdhsa_user_sgpr_count 2
  .amdhsa_user_sgpr_kernarg_segment_ptr 1
  .amdhsa_system_sgpr_workgroup_id_x 1
.end_amdhsa_kernel
""" % (name, vgpr, sgpr, accum)
```

```python
from asmlib import *
from layout import *

NAME = 'hedgehog_main_kernel'
KNAME = 'interleave_layers__linear_kernel_hedgehog__geglu_ffn__prompt_kernel'
BLK = 20480
SCR = 6 * BLK
LDS_TOTAL = 163840
SPIN_LIMIT = 40000
LOG2E = 1.4426950408889634
TSOFF = 0x4000000

sW, sRB, sJ, sL, sLOFF, sW5K, sWA, sWB, sWC, sWD = range(16, 26)
sT0, sT1, sT2, sT3, sT4, sT5 = range(26, 32)
sDEAD, sPC, sPV, sCS, sTH, sTTK, sTTS, sKH = range(40, 48)
sDM = 48
sTW = 49
sB0, sB1 = 50, 51
sC1, sC2, sC3, sC4 = 52, 53, 54, 55
sEX, sEXD = 56, 57
sCNT = 3
sTA, sTB = 58, 59
vL16, vLANE, vONES, vZERO, vONE, vPOLL = 1, 2, 3, 4, 5, 6
vL16B, vK0, vK1 = 7, 8, 9
vT0, vT1, vT2, vT3, vT4 = 10, 11, 12, 13, 14
vEXR = 15
AF, ACC = 16, 48
vSA, vTW, vKA, vKB, vPS1, vPS2, vPL, vAW, vO0, vO1, vO2, vX0, vX1, vX2, vY0, vY1 = range(224, 240)
XR = 240
vY2, vR0, vR2, vST, vSC, vEXW = range(250, 256)
vAW2 = 221
vL128, vTCH = 220, 219

A0, B0, C0, D0, NBLK = 0, 8, 13, 25, 37
NSIDE_A, NSIDE_C = 4, 4

def f32bits(x):
    import struct
    return '0x%08x' % struct.unpack('<I', struct.pack('<f', x))[0]

def W_vreg(r):
    return 'v_mov_b32 v%d, v%d' % (r, r)

class Main:
    def __init__(self, stop=None, opts=None):
        self.e = Asm(); self.stop = stop; self.o = opts or {}
        self.sc = '' if self.o.get('nosc1') else ' sc1'
        self.nlab = 0
        self.lstride = 0 if self.o.get('reuse') else LSTRIDE
        self.name = KNAME if self.o.get('merged', 0) else NAME
        global NSIDE_A, NSIDE_C
        NSIDE_A = self.o.get('nsa', 4); NSIDE_C = self.o.get('nsc', 4)
        dt = self.o.get('d_tail', 0); bt = self.o.get('b_tail', 0)
        self.A_tail = list(range(1, 1 + dt))
        rest = [0] + list(range(1 + dt, 6))
        self.A_side, self.A_in = rest[:NSIDE_A], rest[NSIDE_A:]
        self.C_tail = list(range(C0 + 1, C0 + 1 + bt))
        rest = list(range(C0 + 1 + bt, C0 + 6))
        self.C_side, self.C_in = rest[:NSIDE_C], rest[NSIDE_C:]
    def lab(self, p):
        self.nlab += 1
        return 'M_%s_%d' % (p, self.nlab)
    def blk_src(self, b):
        if b < B0: return sWA, (b - A0) * BLK
        if b < C0: return sWB, (b - B0) * BLK
        if b < D0: return sWC, (b - C0) * BLK
        return sWD, (b - D0) * BLK
    def dma_ops(self, b, tag=None):
        nb = b % NBLK if b >= NBLK else b
        base, off = self.blk_src(nb)
        slot = nb % 6
        tag = tag or 'blk%d' % nb
        g = []
        first = ['s_add_u32 m0, s%d, %d' % (sW5K, slot * BLK), 's_add_u32 s%d, s%d, %d' % (sDM, base, off),
                 ('buffer_load_dwordx4 v%d, s[4:7], s%d offen lds' % (vL16, sDM), tag)]
        g.append(first)
        for k in range(1, 4):
            g.append([('buffer_load_dwordx4 v%d, s[4:7], s%d offen offset:%d lds' % (vL16, sDM, k * 1024), tag)])
        g.append(['s_add_u32 m0, s%d, %d' % (sW5K, slot * BLK + 4096), 's_add_u32 s%d, s%d, %d' % (sDM, base, off + 4096),
                  ('buffer_load_dwordx4 v%d, s[4:7], s%d offen lds' % (vL16, sDM), tag)])
        return g
    def am_a(self):
        AM = 128; e = self.e
        e('s_lshl_b32 s%d, s%d, 12\ns_add_u32 s%d, s%d, 0x%x' % (sT2, sJ, sT2, sT2, WAM))
        for t in range(4): e('buffer_load_dwordx4 v[%d:%d], v%d, s[4:7], s%d offen offset:%d' % (AM + 4 * t, AM + 4 * t + 3, vL16, sT2, t * 1024))
    def am_c(self):
        AM = 136; e = self.e
        e('s_mul_i32 s%d, s%d, %d\ns_add_u32 s%d, s%d, 0x%x' % (sT4, sJ, 12 * KB, sT4, sT4, WCM))
        for t in range(4): e('buffer_load_dwordx4 v[%d:%d], v%d, s[4:7], s%d offen offset:%d' % (AM + 4 * t, AM + 4 * t + 3, vL16, sT4, t * 1024))
    def side_dma(self, blocks):
        e = self.e
        L = self.lab('side')
        e('s_cmp_eq_u32 s%d, 0' % sW); e('s_cbranch_scc1 %s' % L)
        for b in blocks:
            base, off = self.blk_src(b); slot = b % 6; tag = 'blk%d' % b
            ld = 'buffer_load_dwordx4 v%d, s[4:7], s%d offen%%s lds' % (vL16, sDM)
            e('s_add_u32 m0, s%d, %d' % (sW5K, slot * BLK)); e('s_add_u32 s%d, s%d, %d' % (sDM, base, off))
            for k in range(4): e.side(ld % (' offset:%d' % (k * 1024) if k else ''), tag)
            e('s_add_u32 m0, s%d, %d' % (sW5K, slot * BLK + 4096)); e('s_add_u32 s%d, s%d, %d' % (sDM, base, off + 4096))
            e.side(ld % '', tag)
            e('s_add_u32 m0, s%d, %d' % (sEX, slot * BLK)); e('s_add_u32 s%d, s%d, %d' % (sDM, base, off))
            e('s_add_u32 s%d, s%d, s%d' % (sDM, sDM, sEXD))
            e.side(ld % '', tag); e.side(ld % ' offset:1024', tag)
        e.label(L)
    def dma_items(self, b, earliest):
        out = []
        for g in self.dma_ops(b):
            for x in g: out.append((x, earliest))
        return out
    def touch(self, base_expr, nlines_wave, ninstr=1, sc=''):
        L = list(base_expr)
        L.append('s_mul_i32 s%d, s%d, %d' % (sTB, sW, nlines_wave * ninstr * 128))
        L.append('s_add_u32 s%d, s%d, s%d' % (sTA, sTA, sTB))
        if nlines_wave < 64:
            L.append('v_mov_b32 v%d, 0x%x' % (vT0, OOB))
            L.append('v_cmp_gt_u32 vcc, %d, v%d' % (nlines_wave, vLANE))
            L.append('v_cndmask_b32 v%d, v%d, v%d, vcc' % (vT0, vT0, vL128))
            va = vT0
        else: va = vL128
        for k in range(ninstr):
            if k: L.append('s_add_u32 s%d, s%d, %d' % (sTA, sTA, nlines_wave * 128))
            I = parse('buffer_load_dword v%d, v%d, s[4:7], s%d offen%s' % (vTCH, va, sTA, sc)); I.wr = set()
            L.append(I)
        return L
    def touch_w(self, which):
        if which == 'A':
            pre = ['s_lshr_b32 s%d, s%d, 2' % (sTA, sRB), 's_mul_i32 s%d, s%d, %d' % (sTA, sTA, 40 * KB), 's_add_u32 s%d, s%d, s%d' % (sTA, sTA, sWA), 's_sub_u32 s%d, s%d, s%d' % (sTA, sTA, sW5K)]
            return self.touch(pre, 40, 2)
        if which == 'C':
            pre = ['s_lshr_b32 s%d, s%d, 2' % (sTA, sRB), 's_mul_i32 s%d, s%d, %d' % (sTA, sTA, 60 * KB), 's_add_u32 s%d, s%d, s%d' % (sTA, sTA, sWC), 's_sub_u32 s%d, s%d, s%d' % (sTA, sTA, sW5K)]
            return self.touch(pre, 60, 2)
        idx = ['s_lshr_b32 s%d, s%d, 2' % (sTA, sRB), 's_lshl_b32 s%d, s%d, 1' % (sTA, sTA), 's_add_u32 s%d, s%d, s%d' % (sTA, sTA, sTH)]
        if which == 'B':
            return self.touch(idx + ['s_mul_i32 s%d, s%d, 12800' % (sTA, sTA), 's_add_u32 s%d, s%d, s%d' % (sTA, sTA, sWB), 's_sub_u32 s%d, s%d, s%d' % (sTA, sTA, sW5K)], 25, 1)
        if which == 'D':
            return self.touch(idx + ['s_mul_i32 s%d, s%d, 30720' % (sTA, sTA), 's_add_u32 s%d, s%d, s%d' % (sTA, sTA, sWD), 's_sub_u32 s%d, s%d, s%d' % (sTA, sTA, sW5K)], 60, 1)
    def touch_tok(self, base_off):
        pre = ['s_mul_i32 s%d, s%d, %d' % (sTA, sRB, 160 * KB), 's_lshr_b32 s%d, s%d, 1' % (sTB, sJ), 's_mul_i32 s%d, s%d, %d' % (sTB, sTB, 20 * KB),
               's_add_u32 s%d, s%d, s%d' % (sTA, sTA, sTB), 's_add_u32 s%d, s%d, s%d' % (sTA, sTA, sLOFF), 's_add_u32 s%d, s%d, 0x%x' % (sTA, sTA, base_off)]
        return self.touch(pre, 40, 1, ' sc1')
    def freed_by(self, c):
        if c <= NBLK - 7: return c + 6
        if c < NBLK - 1: return NBLK + (c - (NBLK - 7))
        return NBLK + 0
    def ring_read(self, dst, blk, off, kh=False):
        slot = blk % 6
        base = (vK0 if kh else vL16) if slot < 3 else (vK1 if kh else vL16B)
        return 'ds_read_b128 v[%d:%d], v%d offset:%d' % (dst, dst + 3, base, (slot % 3) * BLK + off)
    def emit_next_layer_dma(self, b):
        e = self.e
        L = self.lab('nl')
        e('s_cmp_lg_u32 s%d, 0' % sL); e('s_cbranch_scc1 %s' % L)
        for g in self.dma_ops(b):
            for x in g:
                if isinstance(x, tuple): e(x[0], count=False)
                else: e(x)
        e.label(L)
    def signal(self, cnt_off_sgpr):
        e = self.e
        e.wait_all()
        e('s_barrier')
        self.signal_only(cnt_off_sgpr)
    def signal_only(self, cnt_off_sgpr):
        e = self.e
        L = self.lab('sig')
        e('s_cmp_lg_u32 s%d, 0' % sW); e('s_cbranch_scc1 %s' % L)
        e('s_mov_b64 exec, 1')
        e('buffer_atomic_add v%d, v%d, s[4:7], s%d offen sc1' % (vONE, vZERO, cnt_off_sgpr), count=False)
        e('s_mov_b64 exec, -1')
        e.label(L)
    def poll(self, cnt_off_sgpr, n=1, target=16, srd=4, stride=128):
        e = self.e
        L = self.lab('poll'); X = self.lab('got')
        e('s_cmp_lg_u32 s%d, 0' % sW); e('s_cbranch_scc1 %s' % X)
        e('s_cmp_lg_u32 s%d, 0' % sDEAD); e('s_cbranch_scc1 %s' % X)
        e('s_mov_b32 s%d, 0' % sPC)
        if n > 1:
            e('v_min_u32 v%d, %d, v%d' % (vT0, n - 1, vLANE)); e('v_mul_u32_u24 v%d, %d, v%d' % (vT0, stride, vT0))
        e.label(L)
        e('buffer_load_dword v%d, v%d, s[%d:%d], s%d offen sc1' % (vPOLL, vT0 if n > 1 else vZERO, srd, srd + 3, cnt_off_sgpr), count=False)
        e('s_waitcnt vmcnt(0)', count=False)
        e('v_cmp_gt_u32 vcc, %d, v%d' % (target, vPOLL))
        e('s_cbranch_vccz %s' % X)
        if self.o.get('psleep'): e('s_sleep %d' % self.o['psleep'])
        e('s_add_u32 s%d, s%d, 1' % (sPC, sPC)); e('s_cmp_lt_u32 s%d, %d' % (sPC, SPIN_LIMIT))
        e('s_cbranch_scc1 %s' % L)
        e('s_mov_b32 s%d, 1' % sDEAD)
        e.label(X)
    def cnt(self, dst, which, idx_sgpr, mul=128, add=0, next_layer=False):
        e = self.e
        e('s_mul_i32 s%d, s%d, %d' % (dst, idx_sgpr, mul))
        e('s_add_u32 s%d, s%d, s%d' % (dst, dst, sCNT))
        e('s_add_u32 s%d, s%d, 0x%x' % (dst, dst, which + add + (CSTRIDE if next_layer else 0)))
    def prologue(self):
        if self.o.get('merged', 0): return self.prologue_merged()
        e = self.e
        e.directive('.text\n.globl %s\n.p2align 8\n.type %s,@function' % (self.name, self.name))
        e.label(self.name)
        e('s_cmp_ge_u32 s2, 256'); e('s_cbranch_scc1 M_END')
        e('s_load_dwordx2 s[32:33], s[0:1], 0')
        e('s_load_dwordx2 s[34:35], s[0:1], 64')
        e('s_load_dwordx2 s[36:37], s[0:1], 80')
        self.entry_stamp()
        self.pro_scalars(); self.pro_lanes()
        e('s_waitcnt lgkmcnt(0)')
        self.mk_srd(4, 36, WS_BYTES)
        self.pro_tail(32, 34)
    def prologue_merged(self):
        import gen_prep as P
        e = self.e
        e.directive('.text\n.globl %s\n.p2align 8\n.type %s,@function' % (self.name, self.name))
        e.label(self.name)
        e('s_cmp_ge_u32 s2, 256'); e('s_cbranch_scc1 M_END')
        e('s_load_dwordx8 s[64:71], s[0:1], 0')
        e('s_load_dwordx4 s[72:75], s[0:1], 40')
        e('s_load_dwordx2 s[76:77], s[0:1], 56')
        e('s_load_dwordx2 s[78:79], s[0:1], 64')
        e('s_load_dwordx4 s[80:83], s[0:1], 72')
        self.entry_stamp()
        self.pro_scalars()
        e('s_waitcnt lgkmcnt(0)')
        self.mk_srd(4, 82, WS_BYTES)
        e('s_add_u32 s0, s2, 352\ns_sub_u32 s26, s2, 64\ns_cmp_ge_u32 s2, 160\ns_cselect_b32 s0, s26, s0\ns_cmp_lt_u32 s2, 96\ns_cselect_b32 s0, s2, s0')
        e('s_add_u32 s1, s2, 192')
        Lz = self.lab('nz')
        e('s_cmp_ge_u32 s2, 16'); e('s_cbranch_scc1 %s' % Lz)
        e('s_cmp_lg_u32 s%d, 0' % sW); e('s_cbranch_scc1 %s' % Lz)
        for k in range(4): e('v_mov_b32 v%d, 0' % (120 + k))
        e('s_lshl_b32 s26, s2, 11')
        e('buffer_store_dwordx4 v[120:123], v%d, s[4:7], s26 offen sc1' % vL16, count=False)
        e('buffer_store_dwordx4 v[120:123], v%d, s[4:7], s26 offen offset:1024 sc1' % vL16, count=False)
        e.label(Lz)
        r1 = P.Ren(e, 1, 0); r2 = P.Ren(e, 2, 1)
        L1, L2 = 0, 32768
        def dispatch(cases, sreg, tagp):
            end = self.lab(tagp)
            labs = [self.lab(tagp) for _ in cases]
            for (ub, _), lb in list(zip(cases, labs))[:-1]:
                e('s_cmp_lt_u32 s%d, %d' % (sreg, ub)); e('s_cbranch_scc1 %s' % lb)
            e('s_branch %s' % labs[-1])
            for (ub, fn), lb in zip(cases, labs):
                e.label(lb); e.reset_state(); fn()
                e.wait_lgkm0()
                e('s_branch %s' % end)
            e.label(end); e.reset_state()
        dispatch([(96, lambda: P.wa_issue(r1)), (288, lambda: P.wc_issue(r1, L1)), (None, lambda: P.x_issue(r1))], 0, 'i1')
        dispatch([(288, lambda: P.wc_issue(r2, L2)), (416, lambda: P.wd_issue(r2, L2)), (None, lambda: P.wb_issue(r2, L2))], 1, 'i2')
        if self.o.get('codepf', 1):
            Lp = self.lab('npf')
            e('s_cmp_ge_u32 s2, 64'); e('s_cbranch_scc1 %s' % Lp)
            e('s_getpc_b64 s[84:85]')
            e.label('M_PC')
            e('s_add_u32 s84, s84, (M_LAYER-M_PC)\ns_addc_u32 s85, s85, 0')
            e('v_lshlrev_b32 v124, 7, v0\nv_mov_b32 v125, (M_CODE_END-M_LAYER-4)\nv_add_u32 v126, 0x8000, v124')
            e('v_min_u32 v124, v124, v125\nv_min_u32 v126, v126, v125\nv_and_b32 v124, -4, v124\nv_and_b32 v126, -4, v126')
            e('global_load_dword v127, v124, s[84:85]', count=False)
            e('global_load_dword v127, v126, s[84:85]', count=False)
            e.label(Lp)
        self.mk_srd(84, 80, 256)
        Lf = self.lab('nf'); Lv = self.lab('nfv'); Lw = self.lab('nfw')
        e('s_cmp_ge_u32 s2, 16'); e('s_cbranch_scc1 %s' % Lf)
        e('s_cmp_lg_u32 s%d, 0' % sW); e('s_cbranch_scc1 %s' % Lf)
        npf = 2 if self.o.get('codepf', 1) else 0
        e('s_cmp_eq_u32 s31, 1'); e('s_cbranch_scc1 %s' % Lv)
        e('s_waitcnt vmcnt(%d)' % (22 + 5 + npf), count=False); e('s_branch %s' % Lw)
        e.label(Lv)
        e('s_waitcnt vmcnt(%d)' % (10 + 5 + npf), count=False)
        e.label(Lw)
        e('s_lshl_b32 s62, s2, 2\ns_mov_b64 exec, 1')
        e('buffer_store_dword v%d, v%d, s[84:87], s62 offen sc1' % (vONE, vZERO), count=False)
        e('s_mov_b64 exec, -1')
        self.stamp(27)
        e.label(Lf)
        e('s_waitcnt vmcnt(4)', count=False)
        self.stamp(19)
        dispatch([(96, lambda: P.wa_process(r1)), (288, lambda: P.wc_process(r1, L1)), (None, lambda: P.x_process(r1))], 0, 'p1')
        self.stamp(20)
        Lq = self.lab('zq')
        e('s_cmp_lg_u32 s%d, 0' % sW); e('s_cbranch_scc1 %s' % Lq)
        e('v_min_u32 v126, 15, v%d\nv_lshlrev_b32 v126, 2, v126' % vLANE)
        e('buffer_load_dword v%d, v126, s[84:87], 0 offen sc1' % vPOLL, count=False)
        e.label(Lq)
        e('s_waitcnt vmcnt(0) lgkmcnt(0)', count=False)
        e('s_barrier')
        self.stamp(26)
        def arrive(off, below=None):
            La = self.lab('arr')
            e('s_cmp_lg_u32 s%d, 0' % sW); e('s_cbranch_scc1 %s' % La)
            if below is not None:
                e('s_cmp_ge_u32 s2, %d' % below); e('s_cbranch_scc1 %s' % La)
            e('s_and_b32 s62, s2, 15\ns_lshl_b32 s62, s62, 7\ns_add_u32 s62, s62, 0x%x\ns_mov_b64 exec, 1' % off)
            e('buffer_atomic_add v%d, v%d, s[4:7], s62 offen sc1' % (vONE, vZERO), count=False)
            e('s_mov_b64 exec, -1')
            e.label(La)
        Lc = self.lab('zc'); Ls = self.lab('zcs')
        e('s_cmp_lg_u32 s%d, 0' % sW); e('s_cbranch_scc1 %s' % Lc)
        e('s_mov_b32 s%d, 0' % sPC)
        e.label(Ls)
        e('v_cmp_gt_u32 vcc, 1, v%d' % vPOLL)
        e('s_cbranch_vccz %s' % Lc)
        if self.o.get('zsleep'): e('s_sleep %d' % self.o['zsleep'])
        e('buffer_load_dword v%d, v126, s[84:87], 0 offen sc1' % vPOLL, count=False)
        e('s_waitcnt vmcnt(0)', count=False)
        e('s_add_u32 s%d, s%d, 1' % (sPC, sPC)); e('s_cmp_lt_u32 s%d, %d' % (sPC, SPIN_LIMIT)); e('s_cbranch_scc1 %s' % Ls)
        e('s_mov_b32 s%d, 1' % sDEAD)
        e.label(Lc)
        arrive(CNT_CRIT, 160)
        self.stamp(21)
        dispatch([(288, lambda: P.wc_process(r2, L2)), (416, lambda: P.wd_process(r2, L2)), (None, lambda: P.wb_process(r2, L2))], 1, 'p2')
        self.stamp(22)
        e('s_waitcnt vmcnt(0) lgkmcnt(0)', count=False)
        e('s_barrier')
        arrive(CNT_REST)
        self.stamp(25)
        self.pro_lanes()
        e('s_mov_b32 s%d, 0x%x' % (sT0, CNT_CRIT))
        self.stamp(23)
        self.poll(sT0, n=16, target=10)
        e('s_barrier')
        self.stamp(24)
        self.pro_tail(64, 78)
    def entry_stamp(self):
        if self.o.get('stamps'):
            self.e(('s_memtime' if self.o.get('cyc') else 's_memrealtime') + ' s[60:61]\ns_waitcnt lgkmcnt(0)\nv_mov_b32 v223, s60')
    def mk_srd(self, d, lo, n):
        self.e('s_mov_b32 s%d, s%d\ns_mov_b32 s%d, s%d\ns_mov_b32 s%d, 0x%x\ns_mov_b32 s%d, 0x20000' % (d, lo, d + 1, lo + 1, d + 2, n, d + 3))
    def pro_scalars(self):
        e = self.e
        e('v_lshrrev_b32 v10, 6, v0'); e('v_and_b32 v%d, 63, v0' % vLANE)
        e('v_readfirstlane_b32 s%d, v10' % sW)
        e('v_lshlrev_b32 v%d, 4, v%d' % (vL16, vLANE))
        e('s_and_b32 s%d, s2, 3\ns_lshr_b32 s26, s2, 6\ns_lshl_b32 s26, s26, 2\ns_or_b32 s%d, s%d, s26' % (sRB, sRB, sRB))
        e('s_lshr_b32 s%d, s2, 2\ns_and_b32 s%d, s%d, 15' % (sJ, sJ, sJ))
        e('s_and_b32 s%d, s%d, 7\ns_lshr_b32 s%d, s%d, 3' % (sCS, sJ, sTH, sJ))
        e('s_mul_i32 s%d, s%d, 5120' % (sW5K, sW))
        e('s_lshr_b32 s%d, s%d, 1' % (sKH, sW))
        for (s, idx, stride, base) in ((sWA, sJ, 160 * KB, WA), (sWB, sCS, 100 * KB, WB), (sWC, sJ, 240 * KB, WC), (sWD, sCS, 240 * KB, WD)):
            if self.o.get('wsame'): stride = 0
            e('s_mul_i32 s%d, s%d, %d\ns_add_u32 s%d, s%d, s%d\ns_add_u32 s%d, s%d, 0x%x' % (s, idx, stride, s, s, sW5K, s, s, base))
        e('s_lshl_b32 s%d, s%d, 3\ns_lshl_b32 s26, s%d, 2\ns_add_u32 s%d, s%d, s26' % (sTTK, sRB, sTH, sTTK, sTTK))
        e('s_and_b32 s26, s%d, 1\ns_lshl_b32 s26, s26, 1\ns_add_u32 s%d, s%d, s26\ns_add_u32 s%d, s%d, s%d' % (sW, sTTK, sTTK, sTTK, sTTK, sKH))
        e('s_xor_b32 s%d, s%d, 1' % (sTTS, sTTK))
        e('s_mov_b32 s%d, 0\ns_mov_b32 s%d, 0\ns_mov_b32 s%d, 0x%x' % (sDEAD, sL, sLOFF, LBASE))
        e('s_mov_b32 s%d, 0x%x' % (sCNT, CNT0))
        e('s_sub_u32 s%d, s%d, 1\ns_lshl_b32 s%d, s%d, 11\ns_sub_u32 s%d, s%d, s%d' % (sEX, sW, sEX, sEX, sEXD, sEX, sW5K))
        e('v_mov_b32 v%d, 0x3f803f80\nv_mov_b32 v%d, 0\nv_mov_b32 v%d, 1' % (vONES, vZERO, vONE))
    def pro_lanes(self):
        e = self.e
        e('v_add_u32 v%d, %d, v%d' % (vL16B, 3 * BLK, vL16))
        e('v_lshlrev_b32 v%d, 7, v%d' % (vL128, vLANE))
        e('s_mul_i32 s26, s%d, 5120\nv_add_u32 v%d, s26, v%d\nv_add_u32 v%d, %d, v%d' % (sKH, vK0, vL16, vK1, 3 * BLK, vK0))
        t32, hi, t16, q = 100, 101, 102, 103
        e('v_and_b32 v%d, 31, v%d\nv_lshrrev_b32 v%d, 5, v%d' % (t32, vLANE, hi, vLANE))
        e('v_and_b32 v%d, 15, v%d\nv_lshrrev_b32 v%d, 4, v%d' % (t16, vLANE, q, vLANE))
        e('v_mov_b32 v104, 0x%x' % OOB)
        e('v_lshlrev_b32 v%d, 3, v%d\nv_lshl_add_u32 v%d, v%d, 16, v%d' % (vSA, t32, vSA, hi, vSA))
        e('s_lshl_b32 s26, s%d, 5\nv_add_u32 v105, s26, v%d\nv_mul_u32_u24 v105, 144, v105' % (sW, t32))
        e('v_mul_u32_u24 v106, 18432, v%d\nv_add_u32 v105, v105, v106\nv_add_u32 v%d, 0x%x, v105' % (hi, vTW, SCR))
        e('v_lshrrev_b32 v105, 1, v%d\nv_bfe_u32 v106, v%d, 2, 2\nv_lshl_add_u32 v105, v105, 3, v106\nv_mul_u32_u24 v105, 144, v105' % (q, vLANE))
        e('v_and_b32 v106, 1, v%d\nv_lshlrev_b32 v106, 5, v106\nv_and_b32 v107, 3, v%d\nv_lshl_add_u32 v106, v107, 3, v106\nv_add_u32 v105, v105, v106' % (q, vLANE))
        e('s_lshr_b32 s26, s%d, 1\ns_mul_i32 s26, s26, 18432\ns_add_u32 s26, s26, 0x%x' % (sW, SCR))
        e('s_and_b32 s27, s%d, 1\ns_mul_i32 s28, s27, 40\ns_add_u32 s28, s28, s26\ns_add_u32 s29, s26, 80' % sW)
        e('v_add_u32 v%d, s28, v105\nv_add_u32 v%d, s29, v105' % (vKA, vKB))
        e('s_lshl_b32 s26, s%d, 10' % sW)
        e('v_mul_u32_u24 v105, 24, v%d\nv_add_u32 v105, v105, v%d\nv_lshlrev_b32 v105, 4, v105\nv_add_u32 v105, s26, v105' % (hi, t32))
        e('v_cmp_gt_u32 vcc, 24, v%d\nv_cndmask_b32 v%d, v104, v105, vcc' % (t32, vPS1))
        e('v_lshlrev_b32 v105, 3, v%d\nv_add_u32 v105, s26, v105\nv_add_u32 v105, 768, v105' % t32)
        e('v_cmp_eq_u32 vcc, 0, v%d\nv_cndmask_b32 v%d, v104, v105, vcc' % (hi, vPS2))
        e('v_mov_b32 v106, 84\nv_cmp_le_u32 s[30:31], v106, v0\nv_cndmask_b32 v106, 0, 1, s[30:31]')
        e('v_mul_u32_u24 v107, 84, v106\nv_sub_u32 v107, v0, v107')
        e('v_mul_u32_u24 v108, 391, v107\nv_lshrrev_b32 v108, 13, v108')
        e('v_mul_u32_u24 v109, 21, v108\nv_sub_u32 v109, v107, v109')
        e('v_subrev_u32 v110, 168, v0\nv_mul_u32_u24 v111, 391, v110\nv_lshrrev_b32 v111, 13, v111\nv_and_b32 v111, 3, v111')
        e('v_mul_u32_u24 v96, 21, v111\nv_sub_u32 v96, v110, v96')
        e('v_cmp_gt_u32 vcc, 168, v0')
        e('v_lshrrev_b32 v97, 1, v108\nv_lshl_add_u32 v97, v106, 1, v97\nv_lshlrev_b32 v97, 10, v97')
        e('v_and_b32 v98, 1, v108\nv_mul_u32_u24 v98, 24, v98\nv_add_u32 v98, v98, v109\nv_lshl_add_u32 v97, v98, 4, v97')
        e('v_lshlrev_b32 v98, 10, v111\nv_lshl_add_u32 v98, v96, 3, v98\nv_add_u32 v98, 768, v98')
        e('v_cndmask_b32 v97, v98, v97, vcc')
        e('v_mov_b32 v99, 252\nv_cmp_gt_u32 s[30:31], v99, v0\nv_cndmask_b32 v%d, v104, v97, s[30:31]' % vPL)
        e('v_lshrrev_b32 v97, 1, v111\nv_cndmask_b32 v106, v97, v106, vcc')
        e('v_cndmask_b32 v108, 4, v108, vcc\nv_cndmask_b32 v109, v96, v109, vcc')
        e('v_lshrrev_b32 v110, 4, v109\nv_mul_u32_u24 v110, 5, v110\nv_add_u32 v110, v110, v108')
        e('v_and_b32 v109, 15, v109\nv_lshrrev_b32 v97, 2, v109\nv_lshlrev_b32 v97, 3, v97\nv_and_b32 v109, 3, v109\nv_add_u32 v97, v97, v109')
        e('v_mul_u32_u24 v109, 36, v106\nv_add_u32 v97, v97, v109')
        e('v_lshlrev_b32 v97, 4, v97\nv_lshl_add_u32 v97, v110, 10, v97\nv_add_u32 v97, 0x%x, v97' % SCR)
        e('v_and_b32 v105, 63, v0\nv_lshlrev_b32 v105, 4, v105\nv_add_u32 v105, 0x%x, v105' % (SCR + 12288))
        e('v_cndmask_b32 v%d, v105, v97, vcc' % vAW)
        e('v_and_b32 v98, 1, v111\nv_lshl_add_u32 v97, v98, 3, v97')
        e('v_cndmask_b32 v97, v97, v105, vcc\nv_cndmask_b32 v%d, v105, v97, s[30:31]' % vAW2)
        e('s_mul_i32 s26, s%d, 5' % sJ)
        e('v_bfe_u32 v105, v%d, 4, 1\nv_mul_u32_u24 v105, 20480, v105\nv_lshl_add_u32 v105, v%d, 4, v105' % (vLANE, t16))
        for (dst, expr) in ((vO0, 0), (vO1, 1), (vO2, None)):
            if expr is not None:
                e('v_lshl_add_u32 v106, v%d, 1, s26\nv_add_u32 v106, %d, v106' % (hi, expr))
            else:
                e('v_mov_b32 v106, s26\nv_add_u32 v106, 4, v106')
            e('v_lshrrev_b32 v107, 2, v106\nv_lshl_add_u32 v107, v107, 10, v105\nv_and_b32 v106, 3, v106\nv_lshl_add_u32 v%d, v106, 8, v107' % dst)
        e('v_lshl_add_u32 v%d, v%d, 3, v%d' % (vO2, hi, vO2))
        e('s_mul_i32 s26, s%d, 10' % sCS)
        e('s_and_b32 s27, s%d, 1\ns_lshl_b32 s27, s27, 8' % sTTK)
        e('v_lshlrev_b32 v105, 4, v%d' % t16)
        for n, (dx, dy) in enumerate(((vX0, vY0), (vX1, vY1), (vX2, vY2))):
            if n < 2: e('v_add_u32 v106, s26, v%d\nv_add_u32 v106, %d, v106' % (q, 4 * n))
            else: e('v_lshrrev_b32 v106, 1, v%d\nv_add_u32 v106, s26, v106\nv_add_u32 v106, 8, v106' % q)
            e('v_lshrrev_b32 v107, 2, v106\nv_lshl_add_u32 v107, v107, 10, v105\nv_and_b32 v108, 3, v106\nv_lshl_add_u32 v%d, v108, 8, v107' % dx)
            e('v_lshrrev_b32 v107, 1, v106\nv_lshl_add_u32 v107, v107, 10, v105\nv_and_b32 v108, 1, v106\nv_lshl_add_u32 v107, v108, 9, v107\nv_add_u32 v%d, s27, v107' % dy)
        e('v_and_b32 v106, 1, v%d\nv_lshl_add_u32 v%d, v106, 3, v%d\nv_lshl_add_u32 v%d, v106, 3, v%d' % (q, vX2, vX2, vY2, vY2))
        e('v_mul_u32_u24 v105, 1280, v%d\nv_lshl_add_u32 v%d, v%d, 4, v105\nv_lshl_add_u32 v%d, v%d, 3, v105\nv_add_u32 v%d, 128, v%d' % (t16, vR0, q, vR2, q, vR2, vR2))
        e('v_lshlrev_b32 v105, 3, v%d\nv_cmp_eq_u32 vcc, 0, v%d\nv_cndmask_b32 v%d, v104, v105, vcc\nv_lshl_add_u32 v%d, v%d, 15, v105' % (t16, q, vST, vSC, q))
        e('s_add_u32 s26, s%d, 0x%x\nv_add_u32 v%d, s26, v%d' % (sW5K, SCR, vEXW, vL16))
        e('s_xor_b32 s27, s%d, 2\ns_mul_i32 s27, s27, 5120\ns_add_u32 s27, s27, 0x%x\nv_add_u32 v%d, s27, v%d' % (sW, SCR, vEXR, vL16))
    def pro_tail(self, xlo, olo):
        e = self.e
        self.mk_srd(8, xlo, T * 1280); self.mk_srd(12, olo, T * 1280)
        if self.o.get('ampre', 1): self.am_a()
        self.side_dma(self.A_side[:1])
        for b in self.A_tail:
            for g in self.dma_ops(b):
                for x in g:
                    if isinstance(x, tuple): e(x[0], count=False)
                    else: e(x)
        self.side_dma(self.A_side[1:])
        e('s_mul_i32 s26, s%d, 20480\ns_mul_i32 s27, s%d, 160\ns_add_u32 s26, s26, s27' % (sTTK, sCS))
        e('buffer_load_dwordx4 v[%d:%d], v%d, s[8:11], s26 offen' % (XR, XR + 3, vR0), count=False)
        e('buffer_load_dwordx4 v[%d:%d], v%d, s[8:11], s26 offen offset:64' % (XR + 4, XR + 7, vR0), count=False)
        e('buffer_load_dwordx2 v[%d:%d], v%d, s[8:11], s26 offen' % (XR + 8, XR + 9, vR2), count=False)
    def rowstat_finish(self, S, Q, vRS, vVE, BM, tmp):
        L = []
        L.append('v_mul_f32 v%d, %s, v%d' % (S, f32bits(1.0 / 640), S))
        L.append('v_mul_f32 v%d, %s, v%d' % (Q, f32bits(1.0 / 640), Q))
        L.append('v_fma_f32 v%d, -v%d, v%d, v%d' % (Q, S, S, Q))
        L.append('v_max_f32 v%d, 0, v%d' % (Q, Q))
        L.append('v_add_f32 v%d, %s, v%d' % (vVE, f32bits(1e-5), Q))
        L.append('v_rsq_f32 v%d, v%d' % (vRS, vVE))
        L.append('v_cvt_pk_bf16_f32 v%d, -v%d, -v%d' % (tmp, S, S))
        L.append('v_and_b32 v%d, 0xffff0000, v%d' % (tmp, tmp))
        L.append('v_sub_f32 v%d, -v%d, v%d' % (tmp, S, tmp))
        L.append('v_cvt_pk_bf16_f32 v%d, -v%d, v%d' % (BM, S, tmp))
        for k in range(1, 4): L.append('v_mov_b32 v%d, v%d' % (BM + k, BM))
        return L
    def softmax_pair(self, X, vC, EP, EM, t):
        L = []
        mx, mn, ap, am, sp, sm = range(t, t + 6)
        L.append('v_max3_f32 v%d, v%d, v%d, v%d' % (mx, X[0], X[1], X[2]))
        L.append('v_min3_f32 v%d, v%d, v%d, v%d' % (mn, X[0], X[1], X[2]))
        for k in range(3, 19, 2):
            L.append('v_max3_f32 v%d, v%d, v%d, v%d' % (mx, mx, X[k], X[k + 1]))
            L.append('v_min3_f32 v%d, v%d, v%d, v%d' % (mn, mn, X[k], X[k + 1]))
        L.append('v_max_f32 v%d, v%d, v%d' % (mx, mx, X[19]))
        L.append('v_min_f32 v%d, v%d, v%d' % (mn, mn, X[19]))
        L.append('v_mul_f32 v%d, v%d, v%d' % (ap, vC, mx))
        L.append('v_mul_f32 v%d, v%d, v%d' % (am, vC, mn))
        for f in range(20):
            L.append('v_fma_f32 v%d, v%d, v%d, -v%d' % (EP + f, X[f], vC, ap))
            L.append('v_fma_f32 v%d, -v%d, v%d, v%d' % (EM + f, X[f], vC, am))
        for f in range(20):
            L.append('v_exp_f32 v%d, v%d' % (EP + f, EP + f))
            L.append('v_exp_f32 v%d, v%d' % (EM + f, EM + f))
        L.append('v_add_f32 v%d, v%d, v%d' % (sp, EP, EP + 1))
        L.append('v_add_f32 v%d, v%d, v%d' % (sm, EM, EM + 1))
        for f in range(2, 20):
            L.append('v_add_f32 v%d, v%d, v%d' % (sp, sp, EP + f))
            L.append('v_add_f32 v%d, v%d, v%d' % (sm, sm, EM + f))
        L.append('v_rcp_f32 v%d, v%d' % (sp, sp))
        L.append('v_rcp_f32 v%d, v%d' % (sm, sm))
        for f in range(20):
            L.append('v_mul_f32 v%d, v%d, v%d' % (EP + f, EP + f, sp))
            L.append('v_mul_f32 v%d, v%d, v%d' % (EM + f, EM + f, sm))
        return L
    def stamp(self, k):
        if not self.o.get('stamps'): return
        e = self.e
        e('v_mov_b32 v222, s%d' % sL)
        e('v_lshlrev_b32 v222, 5, v222\nv_add_u32 v222, %d, v222' % k)
        e('v_cmp_eq_u32 vcc, v222, v%d' % vLANE)
        e('s_memtime s[58:59]' if self.o.get('cyc') else 's_memrealtime s[58:59]')
        e('s_waitcnt lgkmcnt(0)')
        e('v_mov_b32 v222, s58')
        e('v_cndmask_b32 v223, v223, v222, vcc')
    def stamp_items(self, k):
        if self.o.get('stamps') != 2: return []
        sub = Main(None, self.o); sub.stamp(k)
        return sub.e.items
    def stamp_flush(self):
        if not self.o.get('stamps'): return
        e = self.e
        e('s_lshl_b32 s62, s2, 2\ns_add_u32 s62, s62, s%d\ns_lshl_b32 s62, s62, 8\ns_add_u32 s62, s62, 0x%x' % (sW, TSOFF))
        e('v_lshlrev_b32 v%d, 2, v%d' % (vT0, vLANE))
        e('buffer_store_dword v223, v%d, s[4:7], s62 offen' % vT0)
    def maybe_stop(self, name):
        if self.stop == name:
            self.e.wait_all(); self.e('s_endpgm'); return True
        return False
    def vm_stream(self, items):
        st = Stream()
        for it in sorted(items, key=lambda x: x[3] if len(x) > 3 else x[0]):
            st.add(it[2], it[1], it[0])
        return st
    def flat(self, groups):
        return [x for g in groups for x in g]
    def phase_a(self):
        e = self.e; o = self.o
        T0, T1, T2, T3 = ACC, ACC + 16, ACC + 32, ACC + 48
        ST, vRS, vVE, vC, BM, AM, EP, EM, P = 112, 120, 121, 122, 124, 128, 144, 164, 184
        self.stamp(0)
        L = self.lab('a_nopoll')
        e('s_cmp_eq_u32 s%d, 0' % sL); e('s_cbranch_scc1 %s' % L)
        self.cnt(sT0, CNT_XA, sRB)
        self.poll(sT0)
        e('s_barrier')
        e.label(L)
        self.stamp(1)
        e('s_lshl_b32 s%d, s%d, 2\ns_add_u32 s%d, s%d, s%d' % (sT0, sRB, sT0, sT0, sW))
        e('s_lshl_b32 s%d, s%d, 8\ns_add_u32 s%d, s%d, s%d\ns_add_u32 s%d, s%d, 0x%x' % (sT1, sT0, sT1, sT1, sLOFF, sT1, sT1, SA))
        e('s_mul_i32 s%d, s%d, 40960\ns_add_u32 s%d, s%d, s%d\ns_add_u32 s%d, s%d, 0x%x' % (sTW, sT0, sTW, sTW, sLOFF, sTW, sTW, XA))
        def tok(s):
            g = []
            if s % 4 == 0: g.append('s_add_u32 s%d, s%d, %d' % (sB0, sTW, s * 1024))
            g.append('buffer_load_dwordx4 a[%d:%d], v%d, s[4:7], s%d offen offset:%d%s' % (4 * s, 4 * s + 3, vL16, sB0, (s % 4) * 1024, self.sc))
            return g
        NPRE = o.get('a_npre', 14)
        if o.get('tt', 0): e.extend(self.touch_tok(XA))
        for s in range(NPRE): e.extend(tok(s))
        stld = []
        for k in range(4):
            if k: stld.append('s_add_u32 s%d, s%d, 16384' % (sT1, sT1))
            stld.append('buffer_load_dwordx2 v[%d:%d], v%d, s[4:7], s%d offen sc1' % (ST + 2 * k, ST + 2 * k + 1, vSA, sT1))
        e('s_lshl_b32 s%d, s%d, 12\ns_add_u32 s%d, s%d, 0x%x' % (sT2, sJ, sT2, sT2, WAM))
        amload = ['buffer_load_dwordx4 v[%d:%d], v%d, s[4:7], s%d offen offset:%d' % (AM + 4 * t, AM + 4 * t + 3, vL16, sT2, t * 1024) for t in range(4)]
        st = []
        st += ['v_add_f32 v%d, v%d, v%d' % (ST, ST, ST + 2), 'v_add_f32 v%d, v%d, v%d' % (ST + 1, ST + 1, ST + 3),
               'v_add_f32 v%d, v%d, v%d' % (ST + 4, ST + 4, ST + 6), 'v_add_f32 v%d, v%d, v%d' % (ST + 5, ST + 5, ST + 7),
               'v_add_f32 v%d, v%d, v%d' % (ST, ST, ST + 4), 'v_add_f32 v%d, v%d, v%d' % (ST + 1, ST + 1, ST + 5),
               'v_mov_b32 v%d, v%d' % (ST + 2, ST), 'v_mov_b32 v%d, v%d' % (ST + 3, ST + 1),
               'v_permlane32_swap_b32 v%d, v%d' % (ST, ST + 2), 'v_permlane32_swap_b32 v%d, v%d' % (ST + 1, ST + 3),
               'v_add_f32 v%d, v%d, v%d' % (ST, ST, ST + 2), 'v_add_f32 v%d, v%d, v%d' % (ST + 1, ST + 1, ST + 3)]
        st += self.rowstat_finish(ST, ST + 1, vRS, vVE, BM, ST + 2)
        st += ['v_mul_f32 v%d, %s, v%d' % (vC, f32bits(LOG2E), vRS)]
        LA = 5
        def frag_info(n):
            if n < 120: return n // 3, n % 3
            return n - 120, 3
        def read(n): return self.ring_read(AF + 4 * (n % 8), A0 + n // 20, (n % 20) * 1024)
        def mfma(n):
            s, tau = frag_info(n); acc = ACC + 16 * tau; a = AF + 4 * (n % 8)
            c = '0' if s == 0 else 'v[%d:%d]' % (acc, acc + 15)
            return 'v_mfma_f32_32x32x16_bf16 v[%d:%d], v[%d:%d], a[%d:%d], %s' % (acc, acc + 15, a, a + 3, 4 * s, 4 * s + 3, c)
        def mean(tau):
            acc = ACC + 16 * tau
            return 'v_mfma_f32_32x32x16_bf16 v[%d:%d], v[%d:%d], v[%d:%d], v[%d:%d]' % (acc, acc + 15, AM + 4 * tau, AM + 4 * tau + 3, BM, BM + 3, acc, acc + 15)
        ksm = self.softmax_pair([T0 + r for r in range(16)] + [T1 + r for r in range(4)], vC, EP, EM, ST)
        for d in range(10): ksm.append('v_cvt_pk_bf16_f32 v%d, v%d, v%d' % (P + d, EP + 2 * d, EP + 2 * d + 1))
        for d in range(10): ksm.append('v_cvt_pk_bf16_f32 v%d, v%d, v%d' % (P + 10 + d, EM + 2 * d, EM + 2 * d + 1))
        V = [T1 + r for r in range(4, 16)] + [T2 + r for r in range(8)]
        for f in range(20): ksm.append('v_mul_f32 v%d, v%d, v%d' % (V[f], V[f], vRS))
        for d in range(10): ksm.append('v_cvt_pk_bf16_f32 v%d, v%d, v%d' % (P + 20 + d, V[2 * d], V[2 * d + 1]))
        ksm += ['v_mov_b32 v%d, 0x3f80' % (P + 30), 'v_mov_b32 v%d, 0' % (P + 31)]
        anchors = []; pre = {}; fixed = {}; idx = {}
        for n in range(160):
            if n == 120:
                idx['mean'] = len(anchors)
                anchors += [mean(t) for t in range(3)]
            idx[n] = len(anchors)
            anchors.append(mfma(n))
            fixed[idx[n]] = ([read(n + LA)] if n + LA < 160 else []) + ([Need('v[%d:%d]' % (AF + 4 * ((n + 1) % 8), AF + 4 * ((n + 1) % 8) + 3))] if n + 1 < 160 else [])
        anchors.append(mean(3))
        for ep in range(1, 8):
            at = idx['mean'] if ep == 6 else idx[20 * ep]
            pre[at] = ([W_tag('blk%d' % (A0 + ep + 1))] if ep < 7 else []) + ['s_barrier']
            if self.o.get('fine') == 'a': pre[at] += self.stamp_items(19 + ep - 1)
        items = [(3 * s, 0, tok(s)) for s in range(NPRE, 40)]
        if not o.get('ampre', 1): items.append((90, 0, amload))
        if o.get('tw', 0): items.append((30, 0, self.touch_w('B')))
        items.append((o.get('a_stdl', 64), 0, stld))
        for b in self.A_in: items.append((20 * (b - 1), 0, self.flat(self.dma_ops(b))))
        last_in = o.get('a_lastblk', 11)
        for b in range(6, last_in + 1):
            free = 20 * (b - 5) if b - 5 < 6 else idx['mean']
            items.append((20 * (b - 1) if b < 8 else 200 + b, free, self.flat(self.dma_ops(b))))
        if o.get('merged', 0):
            sub = Main(None, self.o); sub.nlab = self.nlab + 2000; q = sub.e
            Lr = 'M_restld'
            q('s_cmp_lg_u32 s%d, 0' % sL); q('s_cbranch_scc1 %s' % Lr)
            q('v_min_u32 v%d, 15, v%d\nv_lshlrev_b32 v%d, 7, v%d\ns_mov_b32 s%d, 0x%x' % (vT1, vLANE, vT1, vT1, sT3, CNT_REST))
            q('buffer_load_dword v%d, v%d, s[4:7], s%d offen sc1' % (vPOLL, vT1, sT3), count=False)
            q.label(Lr)
            e.extend(q.items)
            sub = Main(None, self.o); sub.nlab = self.nlab + 3000; q = sub.e
            Lk = 'M_restok'; Ll = 'M_restsp'
            q('s_cmp_lg_u32 s%d, 0' % sL); q('s_cbranch_scc1 %s' % Lk)
            q('s_mov_b32 s%d, 0' % sPC)
            q.label(Ll)
            q('v_cmp_gt_u32 vcc, 16, v%d' % vPOLL)
            q('s_cbranch_vccz %s' % Lk)
            q('s_cmp_lg_u32 s%d, 0' % sDEAD); q('s_cbranch_scc1 %s' % Lk)
            q('buffer_load_dword v%d, v%d, s[4:7], s%d offen sc1' % (vPOLL, vT1, sT3), count=False)
            q('s_waitcnt vmcnt(0)', count=False)
            q('s_add_u32 s%d, s%d, 1' % (sPC, sPC)); q('s_cmp_lt_u32 s%d, %d' % (sPC, SPIN_LIMIT)); q('s_cbranch_scc1 %s' % Ll)
            q('s_mov_b32 s%d, 1' % sDEAD)
            q.label(Lk)
            pre[idx[60]] = q.items + pre[idx[60]]
        vs = self.vm_stream(items)
        valu = Stream(st, o.get('a_stv', 90)).add(ksm, idx[120] + 1)
        if o.get('fine') == 'a0': e.extend(self.stamp_items(19))
        e.wait_tag('blk0'); e.wait_tag('blk1')
        if self.A_tail:
            Lw = self.lab('a_l0w')
            e('s_cmp_lg_u32 s%d, 0' % sL); e('s_cbranch_scc1 %s' % Lw)
            e('s_waitcnt vmcnt(0)', count=False)
            e.label(Lw)
        e('s_barrier')
        if o.get('fine') == 'a0':
            e.extend(self.stamp_items(20))
            for k, at in enumerate((1, 3, 6, 9, 12, 15, 18)):
                pre[at] = pre.get(at, []) + self.stamp_items(21 + k)
        for n in range(LA): e(read(n))
        stt = {}
        e.extend(schedule(anchors, 5, pre, fixed, [vs, valu], vm_gap=o.get('a_gap', 2), state=stt))
        if o.get('verbose'): print('a forced', stt.get('forced'), 'left', len(vs.q), len(valu.q))
        e.extend([y[0] for y in vs.q]); e.extend([y[0] for y in valu.q])
        self.a_late = list(range(last_in + 1, 13))
        self.stamp(2)
        for m in range(8):
            e('ds_write_b128 v%d, v[%d:%d] offset:%d' % (vTW, P + 4 * m, P + 4 * m + 3, 16 * m))
        e.wait_lgkm0()
        e('s_barrier')
        KD = T0
        def kvread(ks):
            b = AF + 8 * (ks % 4)
            return ['ds_read_b64_tr_b16 v[%d:%d], v%d offset:%d' % (b, b + 1, vKA, ks * 2304),
                    'ds_read_b64_tr_b16 v[%d:%d], v%d offset:%d' % (b + 2, b + 3, vKA, ks * 2304 + 576),
                    'ds_read_b64_tr_b16 v[%d:%d], v%d offset:%d' % (b + 4, b + 5, vKB, ks * 2304),
                    'ds_read_b64_tr_b16 v[%d:%d], v%d offset:%d' % (b + 6, b + 7, vKB, ks * 2304 + 576)]
        for ks in range(3): e.extend(kvread(ks))
        for ks in range(8):
            if ks + 3 < 8: e.extend(kvread(ks + 3))
            b = AF + 8 * (ks % 4)
            e('v_mfma_f32_32x32x16_bf16 v[%d:%d], v[%d:%d], v[%d:%d], %s' % (KD, KD + 15, b, b + 3, b + 4, b + 7, '0' if ks == 0 else 'v[%d:%d]' % (KD, KD + 15)))
        PK = EP
        for d in range(6): e('v_cvt_pk_bf16_f32 v%d, v%d, v%d' % (PK + d, KD + 2 * d, KD + 2 * d + 1))
        e('s_lshl_b32 s%d, s%d, 4\ns_add_u32 s%d, s%d, s%d\ns_lshl_b32 s%d, s%d, 12' % (sT0, sJ, sT0, sT0, sRB, sT0, sT0))
        e('s_add_u32 s%d, s%d, s%d\ns_add_u32 s%d, s%d, 0x%x' % (sT0, sT0, sLOFF, sT0, sT0, KVP))
        if o.get('reuse'): e('s_lshl_b32 s%d, s%d, 20\ns_add_u32 s%d, s%d, s%d' % (sT3, sL, sT0, sT0, sT3))
        e('buffer_store_dwordx4 v[%d:%d], v%d, s[4:7], s%d offen sc1' % (PK, PK + 3, vPS1, sT0))
        e('buffer_store_dwordx2 v[%d:%d], v%d, s[4:7], s%d offen sc1' % (PK + 4, PK + 5, vPS2, sT0))
        self.cnt(sT1, CNT_KV, sJ)
        self.signal(sT1)
        self.stamp(3)
        if o.get('tw', 0): e.extend(self.touch_w('C'))
        self.side_dma(self.a_late)
        for r in range(4): e('v_mov_b32 v%d, 0' % (AF + r))
        e('v_lshlrev_b32 v%d, 4, v0\nv_add_u32 v%d, 0x%x, v%d' % (vT1, vT1, SCR, vT1))
        for m in range(3): e('ds_write_b128 v%d, v[%d:%d] offset:%d' % (vT1, AF, AF + 3, m * 4096))
        Q = P
        X = [T2 + r for r in range(8, 16)] + [T3 + r for r in range(12)]
        e.extend(self.softmax_pair(X, vC, EP, EM, ST))
        order = []
        for sign in (EP, EM):
            order += [(sign + 0), (sign + 2), (sign + 8), (sign + 10), (sign + 4), (sign + 6), (sign + 12), (sign + 14)]
        order += [EP + 16, EP + 18, EM + 16, EM + 18]
        for d, r in enumerate(order): e('v_cvt_pk_bf16_f32 v%d, v%d, v%d' % (Q + d, r, r + 1))
        e.wait_lgkm0()
        self.stamp(4)
        self.poll(sT1)
        e('s_barrier')
        self.stamp(5)
        if self.maybe_stop('a1'): return True
        LD, SUM, PKK = 112, 176, 204
        e('s_lshl_b32 s%d, s%d, 16\ns_add_u32 s%d, s%d, s%d\ns_add_u32 s%d, s%d, 0x%x' % (sT0, sJ, sT0, sT0, sLOFF, sT0, sT0, KVP))
        if o.get('reuse'): e('s_lshl_b32 s%d, s%d, 20\ns_add_u32 s%d, s%d, s%d' % (sT3, sL, sT0, sT0, sT3))
        for p in range(16):
            if p: e('s_add_u32 s%d, s%d, 4096' % (sT0, sT0))
            e('buffer_load_dwordx4 v[%d:%d], v%d, s[4:7], s%d offen sc1' % (LD + 4 * p, LD + 4 * p + 3, vPL, sT0))
        e('v_mov_b32 v%d, 0x00003f80\nv_mov_b32 v%d, 0x3f800000' % (vT2, vT3))
        for k in range(8): e('v_mov_b32 v%d, 0' % (SUM + k))
        for p in range(16):
            for d in range(4):
                e('v_dot2c_f32_bf16 v%d, v%d, v%d' % (SUM + 2 * d, LD + 4 * p + d, vT2))
                e('v_dot2c_f32_bf16 v%d, v%d, v%d' % (SUM + 2 * d + 1, LD + 4 * p + d, vT3))
        for d in range(4): e('v_cvt_pk_bf16_f32 v%d, v%d, v%d' % (PKK + d, SUM + 2 * d, SUM + 2 * d + 1))
        e('ds_write_b128 v%d, v[%d:%d]' % (vAW, PKK, PKK + 3))
        e('ds_write_b64 v%d, v[%d:%d]' % (vAW2, PKK, PKK + 1))
        e.wait_lgkm0()
        e('s_barrier')
        e('v_add_u32 v%d, 0x%x, v%d' % (vT1, SCR, vL16))
        for n in range(8): e('ds_read_b128 v[%d:%d], v%d offset:%d' % (AF + 4 * n, AF + 4 * n + 3, vT1, n * 1024))
        G0, G1 = T0, T1
        for n in range(10):
            rho, s = n // 5, n % 5
            acc = G0 if rho == 0 else G1
            a = AF + 4 * (n % 8)
            e('v_mfma_f32_32x32x16_bf16 v[%d:%d], v[%d:%d], v[%d:%d], %s' % (acc, acc + 15, a, a + 3, Q + 4 * s, Q + 4 * s + 3, '0' if s == 0 else 'v[%d:%d]' % (acc, acc + 15)))
            if n < 2: e('ds_read_b128 v[%d:%d], v%d offset:%d' % (a, a + 3, vT1, (n + 8) * 1024))
        e('v_add_f32 v%d, %s, v%d' % (vT2, f32bits(1e-6), G1 + 4))
        e('v_rcp_f32 v%d, v%d' % (vT2, vT2))
        OP = 208
        src = [G0 + r for r in range(16)] + [G1 + r for r in range(4)]
        for r in src: e('v_mul_f32 v%d, v%d, v%d' % (r, r, vT2))
        for d in range(10): e('v_cvt_pk_bf16_f32 v%d, v%d, v%d' % (OP + d, src[2 * d], src[2 * d + 1]))
        e('s_lshl_b32 s%d, s%d, 3\ns_lshl_b32 s%d, s%d, 1\ns_add_u32 s%d, s%d, s%d\ns_mul_i32 s%d, s%d, 20480' % (sT0, sRB, sT1, sW, sT0, sT0, sT1, sT0, sT0))
        e('s_add_u32 s%d, s%d, s%d\ns_add_u32 s%d, s%d, 0x%x' % (sT0, sT0, sLOFF, sT0, sT0, O))
        e('buffer_store_dwordx4 v[%d:%d], v%d, s[4:7], s%d offen sc1' % (OP, OP + 3, vO0, sT0))
        e('buffer_store_dwordx4 v[%d:%d], v%d, s[4:7], s%d offen sc1' % (OP + 4, OP + 7, vO1, sT0))
        e('buffer_store_dwordx2 v[%d:%d], v%d, s[4:7], s%d offen sc1' % (OP + 8, OP + 9, vO2, sT0))
        self.stamp(6)
        self.cnt(sT1, CNT_O, sRB)
        self.signal(sT1)
        self.stamp(7)
        self.side_dma([C0])
        return self.maybe_stop('a')
    def gemm_bd(self, first_blk, nsteps, vs, pre_extra, valu, breg=None):
        e = self.e
        LA = 5
        nf = nsteps * 5
        def read(n):
            i, tau = n // 5, n % 5
            return self.ring_read(AF + 4 * (n % 8), first_blk + i // 2, (i & 1) * 10240 + tau * 1024, kh=True)
        def mf(n, u):
            i, tau = n // 5, n % 5
            acc = ACC + (tau * 2 + u) * 4; a = AF + 4 * (n % 8); b = breg(i, u) if breg else (2 * i + u) * 4
            c = '0' if i == 0 else 'v[%d:%d]' % (acc, acc + 3)
            return 'v_mfma_f32_16x16x32_bf16 v[%d:%d], v[%d:%d], a[%d:%d], %s' % (acc, acc + 3, a, a + 3, b, b + 3, c)
        anchors = []; pre = {}; fixed = {}
        for n in range(nf):
            anchors += [mf(n, 0), mf(n, 1)]
            if n + LA < nf: fixed[2 * n] = [read(n + LA)]
            if n + 1 < nf: fixed[2 * n + 1] = [Need('v[%d:%d]' % (AF + 4 * ((n + 1) % 8), AF + 4 * ((n + 1) % 8) + 3))]
        nep = nsteps // 2
        for ep in range(1, nep):
            pre[20 * ep] = list(pre_extra.get(ep, [])) + ([W_tag('blk%d' % (first_blk + ep + 1))] if ep + 1 < nep else []) + ['s_barrier']
            if self.o.get('fine') == 'd' and nsteps == 24: pre[20 * ep] += self.stamp_items(19 + ep - 1)
        for n in range(LA): e(read(n))
        stt = {}
        e.extend(schedule(anchors, 2, pre, fixed, [vs, valu], vm_gap=self.o.get('d_gap', 2), state=stt))
        if self.o.get('verbose'): print('bd forced', stt.get('forced'), 'left', len(vs.q), len(valu.q))
        e.extend([y[0] for y in vs.q]); e.extend([y[0] for y in valu.q])
    def bd_unpack(self):
        U = 112; L = []
        for d in range(10):
            L.append('v_lshlrev_b32 v%d, 16, v%d' % (U + 2 * d, XR + d))
            L.append('v_and_b32 v%d, 0xffff0000, v%d' % (U + 2 * d + 1, XR + d))
        return L
    def bd_epilogue(self, last_blk, final):
        e = self.e
        EX = 88
        for tau in range(5):
            a = ACC + (tau * 2 + 1) * 4
            e('ds_write_b128 v%d, v[%d:%d] offset:%d' % (vEXW, a, a + 3, tau * 1024))
        e.wait_lgkm0()
        e('s_barrier')
        for tau in range(5):
            e('ds_read_b128 v[%d:%d], v%d offset:%d' % (EX + 4 * tau, EX + 4 * tau + 3, vEXR, tau * 1024))
        U = 112
        for tau in range(5):
            a = ACC + (tau * 2) * 4
            for c in range(4):
                e('v_add_f32 v%d, v%d, v%d' % (U + 4 * tau + c, U + 4 * tau + c, a + c))
        for tau in range(5):
            for c in range(4):
                e('v_add_f32 v%d, v%d, v%d' % (U + 4 * tau + c, U + 4 * tau + c, EX + 4 * tau + c))
        for d in range(10): e('v_cvt_pk_bf16_f32 v%d, v%d, v%d' % (XR + d, U + 2 * d, U + 2 * d + 1))
        final()
    def bd_stats(self, base_off, next_layer):
        e = self.e
        S, Q = 136, 137
        e('v_mov_b32 v%d, 0\nv_mov_b32 v%d, 0' % (S, Q))
        for d in range(10):
            e('v_dot2c_f32_bf16 v%d, v%d, v%d' % (S, XR + d, vONES))
            e('v_dot2c_f32_bf16 v%d, v%d, v%d' % (Q, XR + d, XR + d))
        for sw in ('v_permlane16_swap_b32', 'v_permlane32_swap_b32'):
            e('v_mov_b32 v138, v%d\nv_mov_b32 v139, v%d' % (S, Q))
            e('%s v%d, v138\n%s v%d, v139' % (sw, S, sw, Q))
            e('v_add_f32 v%d, v%d, v138\nv_add_f32 v%d, v%d, v139' % (S, S, Q, Q))
        e('s_lshl_b32 s%d, s%d, 7\ns_lshl_b32 s%d, s%d, 14\ns_add_u32 s%d, s%d, s%d' % (sT2, sTTK, sT3, sCS, sT2, sT2, sT3))
        e('s_add_u32 s%d, s%d, s%d\ns_add_u32 s%d, s%d, 0x%x' % (sT2, sT2, sLOFF, sT2, sT2, base_off + (self.lstride if next_layer else 0)))
        if not self.o.get('nostats'): e('buffer_store_dwordx2 v[%d:%d], v%d, s[4:7], s%d offen sc1' % (S, Q, vST, sT2))
    def phase_b(self):
        e = self.e
        self.cnt(sT0, CNT_O, sRB)
        for (s, tt) in ((sB0, sTTK), (sB1, sTTS)):
            e('s_mul_i32 s%d, s%d, 20\ns_mul_i32 s%d, s%d, 10\ns_add_u32 s%d, s%d, s%d\ns_lshl_b32 s%d, s%d, 10' % (s, tt, sT1, sKH, s, s, sT1, s, s))
            e('s_add_u32 s%d, s%d, s%d\ns_add_u32 s%d, s%d, 0x%x' % (s, s, sLOFF, s, s, O))
        def tok(i, u):
            s = sB0 if u == 0 else sB1
            t = sC1 + u
            g = []
            if i % 4 == 0: g.append('s_add_u32 s%d, s%d, %d' % (t, s, i * 1024))
            g.append('buffer_load_dwordx4 a[%d:%d], v%d, s[4:7], s%d offen offset:%d%s' % ((2 * i + u) * 4, (2 * i + u) * 4 + 3, vL16, t, (i % 4) * 1024, self.sc))
            return g
        e.wait_tag('blk%d' % B0); e.wait_tag('blk%d' % (B0 + 1))
        self.poll(sT0)
        e('s_barrier')
        self.stamp(8)
        NPRE = self.o.get('b_npre', 10)
        for i in range(NPRE):
            for u in range(2): e.extend(tok(i, u))
        items = [(10 * i, 0, tok(i, 0) + tok(i, 1)) for i in range(NPRE, 10)]
        for k, b in enumerate(self.C_tail): items.append((5000 + b, 20 * (k + 1), self.flat(self.dma_ops(b))))
        vs = self.vm_stream(items)
        self.gemm_bd(B0, 10, vs, {}, Stream(self.bd_unpack(), 60))
        self.stamp(9)
        def final():
            e('s_mul_i32 s%d, s%d, 20480\ns_add_u32 s%d, s%d, s%d\ns_add_u32 s%d, s%d, 0x%x' % (sT0, sTTK, sT0, sT0, sLOFF, sT0, sT0, XC))
            e('buffer_store_dwordx4 v[%d:%d], v%d, s[4:7], s%d offen sc1' % (XR, XR + 3, vX0, sT0))
            e('buffer_store_dwordx4 v[%d:%d], v%d, s[4:7], s%d offen sc1' % (XR + 4, XR + 7, vX1, sT0))
            e('buffer_store_dwordx2 v[%d:%d], v%d, s[4:7], s%d offen sc1' % (XR + 8, XR + 9, vX2, sT0))
            self.bd_stats(SC, False)
            self.cnt(sT1, CNT_XC, sRB)
            self.signal(sT1)
            self.stamp(10)
            if self.o.get('ampre', 1): self.am_c()
            self.side_dma(self.C_side)
        self.bd_epilogue(B0 + 4, final)
        return self.maybe_stop('b')
    def gelu_ops(self, accset, u, c0, c1, vVE, HP, t):
        L = []
        G = [accset + (p * 2 + u) * 4 + c for p in range(2) for c in range(4)]
        U = [accset + ((2 + p) * 2 + u) * 4 + c for p in range(2) for c in range(4)]
        g = [t + i for i in range(8)]; w = [t + 8 + i for i in range(8)]
        for h in range(2):
            R = range(4 * h, 4 * h + 4)
            for i in R: L.append('v_mul_f32 v%d, v%d, v%d' % (w[i], G[i], G[i]))
            for i in R: L.append('v_fma_f32 v%d, v%d, v%d, v%d' % (w[i], w[i], c1, c0))
            for i in R: L.append('v_mul_f32 v%d, v%d, v%d' % (w[i], w[i], G[i]))
            for i in R:
                L.append('v_exp_f32 v%d, v%d' % (w[i], w[i]))
                L.append('v_mul_f32 v%d, v%d, v%d' % (g[i], G[i], U[i]))
            for i in R: L.append('v_fma_f32 v%d, v%d, v%d, v%d' % (w[i], w[i], vVE, vVE))
            for i in R: L.append('v_rcp_f32 v%d, v%d' % (w[i], w[i]))
            for i in R: L.append('v_mul_f32 v%d, v%d, v%d' % (g[i], g[i], w[i]))
            for d in (2 * h, 2 * h + 1): L.append('v_cvt_pk_bf16_f32 v%d, v%d, v%d' % (HP + d, g[2 * d], g[2 * d + 1]))
        return L
    def check_flag(self, vreg, cnt_sgpr, target=16):
        sub = Asm()
        X = self.lab('ck'); L = self.lab('ckl')
        sub('v_cmp_gt_u32 vcc, %d, v%d' % (target, vreg))
        sub('s_cbranch_vccz %s' % X)
        sub('s_cmp_lg_u32 s%d, 0' % sDEAD); sub('s_cbranch_scc1 %s' % X)
        sub('s_mov_b32 s%d, 0' % sPC)
        sub.label(L)
        sub('buffer_load_dword v%d, v%d, s[4:7], s%d offen sc1' % (vreg, vZERO, cnt_sgpr), count=False)
        sub('s_waitcnt vmcnt(0)', count=False)
        sub('v_cmp_gt_u32 vcc, %d, v%d' % (target, vreg))
        sub('s_cbranch_vccz %s' % X)
        sub('s_add_u32 s%d, s%d, 1' % (sPC, sPC)); sub('s_cmp_lt_u32 s%d, %d' % (sPC, SPIN_LIMIT))
        sub('s_cbranch_scc1 %s' % L)
        sub('s_mov_b32 s%d, 1' % sDEAD)
        sub.label(X)
        return sub.items
    def phase_c(self):
        e = self.e; o = self.o
        ST, RS, VE, BMs, AM, GT, HP = 112, (120, 121), (122, 123), (124, 132), 136, 152, (168, 172)
        GC0, GC1 = (176, 177), (178, 179)
        k0 = -2.0 * 0.7978845608028654 * LOG2E
        self.cnt(sT0, CNT_XC, sRB)
        e('s_lshl_b32 s%d, s%d, 3\ns_lshl_b32 s%d, s%d, 1\ns_add_u32 s%d, s%d, s%d' % (sT2, sRB, sT1, sW, sT2, sT2, sT1))
        e('s_lshl_b32 s%d, s%d, 7\ns_add_u32 s%d, s%d, s%d\ns_add_u32 s%d, s%d, 0x%x' % (sT1, sT2, sT1, sT1, sLOFF, sT1, sT1, SC))
        e('s_mul_i32 s%d, s%d, 20480\ns_add_u32 s%d, s%d, s%d\ns_add_u32 s%d, s%d, 0x%x' % (sB0, sT2, sB0, sB0, sLOFF, sB0, sB0, XC))
        e('s_add_u32 s%d, s%d, 20480' % (sB1, sB0))
        e('s_mul_i32 s%d, s%d, 48\ns_add_u32 s%d, s%d, s%d\ns_lshl_b32 s%d, s%d, 10' % (sTW, sT2, sTW, sTW, sJ, sTW, sTW))
        e('s_add_u32 s%d, s%d, s%d\ns_add_u32 s%d, s%d, 0x%x' % (sTW, sTW, sLOFF, sTW, sTW, HH))
        if not o.get('ampre', 1): e('s_mul_i32 s%d, s%d, %d\ns_add_u32 s%d, s%d, 0x%x' % (sT4, sJ, 12 * KB, sT4, sT4, WCM))
        self.poll(sT0)
        e('s_barrier')
        self.stamp(11)
        def tok(s, u):
            sb = sB0 if u == 0 else sB1; t = sC1 + u
            g = []
            if s % 4 == 0: g.append('s_add_u32 s%d, s%d, %d' % (t, sb, s * 1024))
            g.append('buffer_load_dwordx4 a[%d:%d], v%d, s[4:7], s%d offen offset:%d%s' % ((2 * s + u) * 4, (2 * s + u) * 4 + 3, vL16, t, (s % 4) * 1024, self.sc))
            return g
        NPRE = o.get('c_npre', 8)
        if o.get('tt', 0): e.extend(self.touch_tok(XC))
        for s in range(NPRE):
            for u in range(2): e.extend(tok(s, u))
        stld = []
        for k in range(2):
            if k: stld.append('s_add_u32 s%d, s%d, 16384' % (sT1, sT1))
            for u in range(2):
                stld.append('buffer_load_dwordx2 v[%d:%d], v%d, s[4:7], s%d offen offset:%d sc1' % (ST + 4 * u + 2 * k, ST + 4 * u + 2 * k + 1, vSC, sT1, 128 * u))
        def amload(sg):
            pre = [] if sg == 0 else ['s_add_u32 s%d, s%d, 4096' % (sT4, sT4)]
            return pre + ['buffer_load_dwordx4 v[%d:%d], v%d, s[4:7], s%d offen offset:%d' % (AM + 4 * t, AM + 4 * t + 3, vL16, sT4, t * 1024) for t in range(4)]
        st = []
        for u in range(2):
            b = ST + 4 * u
            st += ['v_add_f32 v%d, v%d, v%d' % (b, b, b + 2), 'v_add_f32 v%d, v%d, v%d' % (b + 1, b + 1, b + 3)]
            for sw in ('v_permlane16_swap_b32', 'v_permlane32_swap_b32'):
                st += ['v_mov_b32 v%d, v%d' % (b + 2, b), 'v_mov_b32 v%d, v%d' % (b + 3, b + 1),
                       '%s v%d, v%d' % (sw, b, b + 2), '%s v%d, v%d' % (sw, b + 1, b + 3),
                       'v_add_f32 v%d, v%d, v%d' % (b, b, b + 2), 'v_add_f32 v%d, v%d, v%d' % (b + 1, b + 1, b + 3)]
            st += self.rowstat_finish(b, b + 1, RS[u], VE[u], BMs[u], b + 2)
            st += ['v_mul_f32 v%d, %s, v%d' % (GC0[u], f32bits(k0), RS[u]),
                   'v_mul_f32 v%d, v%d, v%d' % (GC1[u], RS[u], RS[u]),
                   'v_mul_f32 v%d, v%d, v%d' % (GC1[u], GC1[u], GC0[u]),
                   'v_mul_f32 v%d, %s, v%d' % (GC1[u], f32bits(0.044715), GC1[u])]
        LA = 5
        def read(n): return self.ring_read(AF + 4 * (n % 8), C0 + n // 20, (n % 20) * 1024)
        def mf(n, u):
            sg, r = n // 80, n % 80; s, tl = r // 4, r % 4
            acc = ACC + 32 * (sg & 1) + (tl * 2 + u) * 4; a = AF + 4 * (n % 8); b = (2 * s + u) * 4
            c = '0' if s == 0 else 'v[%d:%d]' % (acc, acc + 3)
            return 'v_mfma_f32_16x16x32_bf16 v[%d:%d], v[%d:%d], a[%d:%d], %s' % (acc, acc + 3, a, a + 3, b, b + 3, c)
        def mean(sg):
            L = []
            for tl in range(4):
                for u in range(2):
                    acc = ACC + 32 * (sg & 1) + (tl * 2 + u) * 4
                    L.append('v_mfma_f32_16x16x32_bf16 v[%d:%d], v[%d:%d], v[%d:%d], v[%d:%d]' % (acc, acc + 3, AM + 4 * tl, AM + 4 * tl + 3, BMs[u], BMs[u] + 3, acc, acc + 3))
            return L
        def gelu_store(sg):
            L = []
            for u in range(2):
                L += self.gelu_ops(ACC + 32 * (sg & 1), u, GC0[u], GC1[u], VE[u], HP[u], GT)
                L.append('s_add_u32 s%d, s%d, %d' % (sT5, sTW, u * 48 * 1024 + sg * 16 * 1024))
                L.append(('buffer_store_dwordx4 v[%d:%d], v%d, s[4:7], s%d offen sc1' % (HP[u], HP[u] + 3, vL16, sT5), 'h%d' % sg))
            return L
        def ix(n): return 2 * n + 8 * (n // 80)
        items = [(ix(4 * s), 0, tok(s, 0) + tok(s, 1)) for s in range(NPRE, 20)]
        for b in self.C_in:
            dl = ix(20 * (b - C0 - 1)) - (8 if (b - C0 - 1) % 4 == 0 and b > C0 + 1 else 0)
            items.append((dl, 0, self.flat(self.dma_ops(b)), dl - o.get('c_lead', 40)))
        last_in = o.get('c_lastblk', D0 + 4)
        for b in range(C0 + 6, last_in + 1):
            free = 20 * (b - C0 - 5)
            epn = b - C0 - 1
            dl = ix(20 * epn) - (8 if epn % 4 == 0 else 0) if b < D0 else 100000 + b
            key = dl if b < D0 else (9000 + ix(free) if free < o.get('c_fl', 200) else 9950 + b)
            items.append((dl, ix(free) - (8 if free % 80 == 0 else 0), self.flat(self.dma_ops(b)), key))
        if not o.get('ampre', 1): items.append((ix(60), 0, amload(0)))
        if o.get('tw', 0): items.append((ix(90), ix(84), self.touch_w('D')))
        items.append((ix(o.get('c_stdl', 44)), 0, stld))
        items.append((ix(130), ix(80), amload(1)))
        items.append((ix(210), ix(160), amload(2)))
        self.cnt(sT0, CNT_H, sRB, mul=384)
        FL, CKC = o.get('c_fl', 200), o.get('c_ck', 216)
        items.append((ix(CKC) - 1, ix(FL), ['buffer_load_dword v%d, v%d, s[4:7], s%d offen sc1' % (vPOLL, vZERO, sT0)], ix(FL) + 9000))
        dtoks = [self.d_tok(i, u) for i in range(8) for u in range(2)]
        for k, g in enumerate(dtoks): items.append((90000 + k, ix(CKC), g, 9900 + k))
        vs = self.vm_stream(items)
        e.wait_tag('blk%d' % C0); e.wait_tag('blk%d' % (C0 + 1))
        e('s_barrier')
        for n in range(LA): e(read(n))
        pos = 0; cstate = {}
        for sg in range(3):
            anchors = []; pre = {}; fixed = {}
            if sg > 0: anchors += mean(sg - 1)
            for n in range(80 * sg, 80 * sg + 80):
                assert pos + len(anchors) == ix(n)
                anchors += [mf(n, 0), mf(n, 1)]
                if n + LA < 240: fixed[ix(n)] = [read(n + LA)]
                if n + 1 < 240: fixed[ix(n) + 1] = [Need('v[%d:%d]' % (AF + 4 * ((n + 1) % 8), AF + 4 * ((n + 1) % 8) + 3))]
            for ep in range(4 * sg, 4 * sg + 4):
                if ep == 0: continue
                at = ix(20 * ep) - (8 if ep % 4 == 0 else 0)
                p = [W_tag('blk%d' % (C0 + ep + 1))] if ep < 11 else []
                if ep == o.get('h0ep', 9): p.append(W_tag('h0'))
                p.append('s_barrier')
                if self.o.get('fine') == 'c': p += self.stamp_items(19 + ep - 1)
                if ep == o.get('h0ep', 9):
                    sub = Main(None, self.o); sub.nlab = self.nlab + 1000
                    sub.signal_only(sT0)
                    p += sub.e.items
                pre[at] = p
            if sg == 2:
                sub = Main(None, self.o); sub.nlab = self.nlab + 4000
                sub.d_bases()
                pre[ix(CKC)] = pre.get(ix(CKC), []) + [W_vreg(vPOLL)] + self.check_flag(vPOLL, sT0) + sub.e.items
            valu = Stream(st, ix(o.get('c_stv', 56))) if sg == 0 else Stream(gelu_store(sg - 1), pos + 10)
            e.extend(schedule(anchors, 2, pre, fixed, [vs, valu], start=pos, vm_gap=(o.get('c_gap', 4) if sg == 0 else o.get('c_gap2', 4)), state=cstate))
            e.extend([y[0] for y in valu.q])
            pos += len(anchors)
        if self.o.get('verbose'): print('c forced', cstate.get('forced'), 'left', len(vs.q))
        self.stamp(12)
        tail = mean(2) + gelu_store(2)
        left = [y[0] for y in vs.q]; del vs.q[:]
        nvm = max(1, sum(1 for x in left if is_vm(x)))
        step = max(1, (len(tail) - 8) // (nvm + 1))
        for n, x in enumerate(tail):
            if left and n % step == 0:
                while left:
                    y = left.pop(0); e.extend([y])
                    if is_vm(y): break
            e.extend([x])
        e.extend(left)
        self.cnt(sT1, CNT_H, sRB, mul=384, add=256)
        self.signal(sT1)
        self.stamp(13)
        self.c_last = last_in
        return self.maybe_stop('c')
    def d_bases(self):
        e = self.e
        for (s, tt) in ((sB0, sTTK), (sB1, sTTS)):
            e('s_mul_i32 s%d, s%d, 48\ns_add_u32 s%d, s%d, s%d\ns_lshl_b32 s%d, s%d, 10' % (s, tt, s, s, sKH, s, s))
            e('s_add_u32 s%d, s%d, s%d\ns_add_u32 s%d, s%d, 0x%x' % (s, s, sLOFF, s, s, HH))
    def d_tok(self, i, u):
        sg, jj = i // 8, i % 8
        s = sB0 if u == 0 else sB1; t = sC1 + u
        g = []
        if jj % 2 == 0: g.append('s_add_u32 s%d, s%d, %d' % (t, s, sg * 16384 + jj * 2048))
        r = self.d_reg(i, u)
        g.append('buffer_load_dwordx4 a[%d:%d], v%d, s[4:7], s%d offen offset:%d%s' % (r, r + 3, vL16, t, (jj % 2) * 2048, self.sc))
        return g
    def d_reg(self, i, u):
        return 160 + (2 * i + u) * 4 if i < 8 else (2 * (i - 8) + u) * 4
    def phase_d(self):
        e = self.e; o = self.o
        tok = self.d_tok
        self.stamp(14)
        CK = o.get('d_ck', 3)
        items = []
        for b in range(self.c_last + 1, D0 + 6): items.append((20 * (b - D0 - 1), 0, self.flat(self.dma_ops(b)), b - 200))
        for b in range(D0 + 6, NBLK):
            early = 20 * (b - D0 - 5)
            key = (b - 200) if early < 20 * CK else 20 * (b - D0 - 1)
            items.append((20 * (b - D0 - 1), early, self.flat(self.dma_ops(b)), key))
        items.append((20 * CK - 1, 20 * CK - o.get('d_fl', 30), ['buffer_load_dword v%d, v%d, s[4:7], s%d offen sc1' % (vPOLL, vZERO, sT1)], -1))
        items += [(10 * i, 20 * CK, tok(i, 0) + tok(i, 1)) for i in range(8, 24)]
        if o.get('tw', 0): items.append((30, 0, self.touch_w('A'), -500))
        for b in self.A_tail: items.append((5000 + b, 20 * (6 + b), self.flat(self.dma_ops(b))))
        chk = [W_vreg(vPOLL)] + self.check_flag(vPOLL, sT1)
        self.gemm_bd(D0, 24, self.vm_stream(items), {CK: chk}, Stream(self.bd_unpack(), 200), self.d_reg)
        self.stamp(17)
        def final():
            L = self.lab('d_last'); X = self.lab('d_done')
            e('s_cmp_lg_u32 s%d, 0' % sL); e('s_cbranch_scc1 %s' % L)
            e('s_lshr_b32 s%d, s%d, 1\ns_mul_i32 s%d, s%d, 40960\ns_add_u32 s%d, s%d, s%d\ns_add_u32 s%d, s%d, 0x%x' % (sT0, sTTK, sT0, sT0, sT0, sT0, sLOFF, sT0, sT0, XA + self.lstride))
            e('buffer_store_dwordx4 v[%d:%d], v%d, s[4:7], s%d offen sc1' % (XR, XR + 3, vY0, sT0))
            e('buffer_store_dwordx4 v[%d:%d], v%d, s[4:7], s%d offen sc1' % (XR + 4, XR + 7, vY1, sT0))
            e('buffer_store_dwordx2 v[%d:%d], v%d, s[4:7], s%d offen sc1' % (XR + 8, XR + 9, vY2, sT0))
            self.bd_stats(SA, True)
            self.cnt(sT1, CNT_XA, sRB, next_layer=True)
            self.signal(sT1)
            self.stamp(18)
            if self.o.get('ampre', 1): self.am_a()
            self.side_dma(self.A_side)
            e('s_branch %s' % X)
            e.label(L)
            e('s_mul_i32 s%d, s%d, 20480\ns_mul_i32 s%d, s%d, 160\ns_add_u32 s%d, s%d, s%d' % (sT0, sTTK, sT1, sCS, sT0, sT0, sT1))
            e('buffer_store_dwordx4 v[%d:%d], v%d, s[12:15], s%d offen' % (XR, XR + 3, vR0, sT0))
            e('buffer_store_dwordx4 v[%d:%d], v%d, s[12:15], s%d offen offset:64' % (XR + 4, XR + 7, vR0, sT0))
            e('buffer_store_dwordx2 v[%d:%d], v%d, s[12:15], s%d offen' % (XR + 8, XR + 9, vR2, sT0))
            self.stamp(18)
            self.stamp_flush()
            e('s_endpgm')
            e.label(X)
        self.bd_epilogue(D0 + 11, final)
        return self.maybe_stop('d')
    def build(self):
        e = self.e
        self.prologue()
        e.label('M_LAYER')
        done = self.phase_a() or self.phase_b() or self.phase_c() or self.phase_d()
        if not done:
            e('s_add_u32 s%d, s%d, 1\ns_add_u32 s%d, s%d, 0x%x\ns_add_u32 s%d, s%d, 0x%x' % (sL, sL, sLOFF, sLOFF, self.lstride, sCNT, sCNT, CSTRIDE))
            e('s_branch M_LAYER')
        e.label('M_END')
        e('s_endpgm')
        e.label('M_CODE_END')
        return e
```

```python
from asmlib import *
from layout import *

NAME = 'hedgehog_main_kernel'
KNAME = 'interleave_layers__linear_kernel_hedgehog__geglu_ffn__prompt_kernel'
BLK = 20480
SCR = 6 * BLK
LDS_TOTAL = 163840
SPIN_LIMIT = 40000
LOG2E = 1.4426950408889634
TSOFF = 0x4000000

sW, sRB, sJ, sL, sLOFF, sW5K, sWA, sWB, sWC, sWD = range(16, 26)
sT0, sT1, sT2, sT3, sT4, sT5 = range(26, 32)
sDEAD, sPC, sPV, sCS, sTH, sTTK, sTTS, sKH = range(40, 48)
sDM = 48
sTW = 49
sB0, sB1 = 50, 51
sC1, sC2, sC3, sC4 = 52, 53, 54, 55
sEX, sEXD = 56, 57
sCNT = 3
sTA, sTB = 58, 59
vL16, vLANE, vONES, vZERO, vONE, vPOLL = 1, 2, 3, 4, 5, 6
vL16B, vK0, vK1 = 7, 8, 9
vT0, vT1, vT2, vT3, vT4 = 10, 11, 12, 13, 14
vEXR = 15
AF, ACC = 16, 48
vSA, vTW, vKA, vKB, vPS1, vPS2, vPL, vAW, vO0, vO1, vO2, vX0, vX1, vX2, vY0, vY1 = range(224, 240)
XR = 240
vY2, vR0, vR2, vST, vSC, vEXW = range(250, 256)
vAW2 = 221
vK2 = 218
vL128, vTCH = 220, 219

A0, B0, C0, D0, NBLK = 0, 8, 13, 25, 37
NSIDE_A, NSIDE_C = 4, 4

def f32bits(x):
    import struct
    return '0x%08x' % struct.unpack('<I', struct.pack('<f', x))[0]

def W_vreg(r):
    return 'v_mov_b32 v%d, v%d' % (r, r)

class Main:
    def __init__(self, stop=None, opts=None):
        self.e = Asm(); self.stop = stop; self.o = opts or {}
        self.sc = '' if self.o.get('nosc1') else ' sc1'
        self.nlab = 0
        self.lstride = 0 if self.o.get('reuse') else LSTRIDE
        self.name = KNAME if self.o.get('merged', 0) else NAME
        global NSIDE_A, NSIDE_C
        NSIDE_A = self.o.get('nsa', 4); NSIDE_C = self.o.get('nsc', 4)
        dt = self.o.get('d_tail', 0); bt = self.o.get('b_tail', 0)
        self.A_tail = list(range(1, 1 + dt))
        rest = [0] + list(range(1 + dt, 6))
        self.A_side, self.A_in = rest[:NSIDE_A], rest[NSIDE_A:]
        self.C_tail = list(range(C0 + 1, C0 + 1 + bt))
        rest = list(range(C0 + 1 + bt, C0 + 6))
        self.C_side, self.C_in = rest[:NSIDE_C], rest[NSIDE_C:]
    def lab(self, p):
        self.nlab += 1
        return 'M_%s_%d' % (p, self.nlab)
    def slot_of(self, b):
        if b >= D0 and self.o.get('ring8', 1):
            return {25: 6, 26: 7, 27: 1, 28: 2, 29: 3, 30: 4, 31: 5, 32: 0, 33: 6, 34: 7, 35: 1, 36: 2}[b]
        return b % 6
    def blk_src(self, b):
        if b < B0: return sWA, (b - A0) * BLK
        if b < C0: return sWB, (b - B0) * BLK
        if b < D0: return sWC, (b - C0) * BLK
        return sWD, (b - D0) * BLK
    def dma_ops(self, b, tag=None):
        nb = b % NBLK if b >= NBLK else b
        base, off = self.blk_src(nb)
        slot = self.slot_of(nb)
        tag = tag or 'blk%d' % nb
        g = []
        first = ['s_add_u32 m0, s%d, %d' % (sW5K, slot * BLK), 's_add_u32 s%d, s%d, %d' % (sDM, base, off),
                 ('buffer_load_dwordx4 v%d, s[4:7], s%d offen lds' % (vL16, sDM), tag)]
        g.append(first)
        for k in range(1, 4):
            g.append([('buffer_load_dwordx4 v%d, s[4:7], s%d offen offset:%d lds' % (vL16, sDM, k * 1024), tag)])
        g.append(['s_add_u32 m0, s%d, %d' % (sW5K, slot * BLK + 4096), 's_add_u32 s%d, s%d, %d' % (sDM, base, off + 4096),
                  ('buffer_load_dwordx4 v%d, s[4:7], s%d offen lds' % (vL16, sDM), tag)])
        return g
    def am_a(self):
        AM = 128; e = self.e
        e('s_lshl_b32 s%d, s%d, 12\ns_add_u32 s%d, s%d, 0x%x' % (sT2, sJ, sT2, sT2, WAM))
        for t in range(4): e('buffer_load_dwordx4 v[%d:%d], v%d, s[4:7], s%d offen offset:%d' % (AM + 4 * t, AM + 4 * t + 3, vL16, sT2, t * 1024))
    def am_c(self):
        AM = 136; e = self.e
        e('s_mul_i32 s%d, s%d, %d\ns_add_u32 s%d, s%d, 0x%x' % (sT4, sJ, 12 * KB, sT4, sT4, WCM))
        for t in range(4): e('buffer_load_dwordx4 v[%d:%d], v%d, s[4:7], s%d offen offset:%d' % (AM + 4 * t, AM + 4 * t + 3, vL16, sT4, t * 1024))
    def side_dma(self, blocks):
        e = self.e
        L = self.lab('side')
        e('s_cmp_eq_u32 s%d, 0' % sW); e('s_cbranch_scc1 %s' % L)
        for b in blocks:
            base, off = self.blk_src(b); slot = self.slot_of(b); tag = 'blk%d' % b
            ld = 'buffer_load_dwordx4 v%d, s[4:7], s%d offen%%s lds' % (vL16, sDM)
            e('s_add_u32 m0, s%d, %d' % (sW5K, slot * BLK)); e('s_add_u32 s%d, s%d, %d' % (sDM, base, off))
            for k in range(4): e.side(ld % (' offset:%d' % (k * 1024) if k else ''), tag)
            e('s_add_u32 m0, s%d, %d' % (sW5K, slot * BLK + 4096)); e('s_add_u32 s%d, s%d, %d' % (sDM, base, off + 4096))
            e.side(ld % '', tag)
            e('s_add_u32 m0, s%d, %d' % (sEX, slot * BLK)); e('s_add_u32 s%d, s%d, %d' % (sDM, base, off))
            e('s_add_u32 s%d, s%d, s%d' % (sDM, sDM, sEXD))
            e.side(ld % '', tag); e.side(ld % ' offset:1024', tag)
        e.label(L)
    def dma_items(self, b, earliest):
        out = []
        for g in self.dma_ops(b):
            for x in g: out.append((x, earliest))
        return out
    def touch(self, base_expr, nlines_wave, ninstr=1, sc=''):
        L = list(base_expr)
        L.append('s_mul_i32 s%d, s%d, %d' % (sTB, sW, nlines_wave * ninstr * 128))
        L.append('s_add_u32 s%d, s%d, s%d' % (sTA, sTA, sTB))
        if nlines_wave < 64:
            L.append('v_mov_b32 v%d, 0x%x' % (vT0, OOB))
            L.append('v_cmp_gt_u32 vcc, %d, v%d' % (nlines_wave, vLANE))
            L.append('v_cndmask_b32 v%d, v%d, v%d, vcc' % (vT0, vT0, vL128))
            va = vT0
        else: va = vL128
        for k in range(ninstr):
            if k: L.append('s_add_u32 s%d, s%d, %d' % (sTA, sTA, nlines_wave * 128))
            I = parse('buffer_load_dword v%d, v%d, s[4:7], s%d offen%s' % (vTCH, va, sTA, sc)); I.wr = set()
            L.append(I)
        return L
    def touch_w(self, which):
        if which == 'A':
            pre = ['s_lshr_b32 s%d, s%d, 2' % (sTA, sRB), 's_mul_i32 s%d, s%d, %d' % (sTA, sTA, 40 * KB), 's_add_u32 s%d, s%d, s%d' % (sTA, sTA, sWA), 's_sub_u32 s%d, s%d, s%d' % (sTA, sTA, sW5K)]
            return self.touch(pre, 40, 2)
        if which == 'C':
            pre = ['s_lshr_b32 s%d, s%d, 2' % (sTA, sRB), 's_mul_i32 s%d, s%d, %d' % (sTA, sTA, 60 * KB), 's_add_u32 s%d, s%d, s%d' % (sTA, sTA, sWC), 's_sub_u32 s%d, s%d, s%d' % (sTA, sTA, sW5K)]
            return self.touch(pre, 60, 2)
        idx = ['s_lshr_b32 s%d, s%d, 2' % (sTA, sRB), 's_lshl_b32 s%d, s%d, 1' % (sTA, sTA), 's_add_u32 s%d, s%d, s%d' % (sTA, sTA, sTH)]
        if which == 'B':
            return self.touch(idx + ['s_mul_i32 s%d, s%d, 12800' % (sTA, sTA), 's_add_u32 s%d, s%d, s%d' % (sTA, sTA, sWB), 's_sub_u32 s%d, s%d, s%d' % (sTA, sTA, sW5K)], 25, 1)
        if which == 'D':
            return self.touch(idx + ['s_mul_i32 s%d, s%d, 30720' % (sTA, sTA), 's_add_u32 s%d, s%d, s%d' % (sTA, sTA, sWD), 's_sub_u32 s%d, s%d, s%d' % (sTA, sTA, sW5K)], 60, 1)
    def touch_tok(self, base_off):
        pre = ['s_mul_i32 s%d, s%d, %d' % (sTA, sRB, 160 * KB), 's_lshr_b32 s%d, s%d, 1' % (sTB, sJ), 's_mul_i32 s%d, s%d, %d' % (sTB, sTB, 20 * KB),
               's_add_u32 s%d, s%d, s%d' % (sTA, sTA, sTB), 's_add_u32 s%d, s%d, s%d' % (sTA, sTA, sLOFF), 's_add_u32 s%d, s%d, 0x%x' % (sTA, sTA, base_off)]
        return self.touch(pre, 40, 1, ' sc1')
    def freed_by(self, c):
        if c <= NBLK - 7: return c + 6
        if c < NBLK - 1: return NBLK + (c - (NBLK - 7))
        return NBLK + 0
    def ring_read(self, dst, blk, off, kh=False):
        slot = self.slot_of(blk)
        base = (vK0 if kh else vL16) if slot < 3 else ((vK1 if kh else vL16B) if slot < 6 else vK2)
        assert slot < 6 or kh
        return 'ds_read_b128 v[%d:%d], v%d offset:%d' % (dst, dst + 3, base, (slot % 3) * BLK + off)
    def emit_next_layer_dma(self, b):
        e = self.e
        L = self.lab('nl')
        e('s_cmp_lg_u32 s%d, 0' % sL); e('s_cbranch_scc1 %s' % L)
        for g in self.dma_ops(b):
            for x in g:
                if isinstance(x, tuple): e(x[0], count=False)
                else: e(x)
        e.label(L)
    def signal(self, cnt_off_sgpr):
        e = self.e
        e.wait_all()
        e('s_barrier')
        self.signal_only(cnt_off_sgpr)
    def signal_only(self, cnt_off_sgpr):
        e = self.e
        L = self.lab('sig')
        e('s_cmp_lg_u32 s%d, 0' % sW); e('s_cbranch_scc1 %s' % L)
        e('s_mov_b64 exec, 1')
        e('buffer_atomic_add v%d, v%d, s[4:7], s%d offen sc1' % (vONE, vZERO, cnt_off_sgpr), count=False)
        e('s_mov_b64 exec, -1')
        e.label(L)
    def poll(self, cnt_off_sgpr, n=1, target=16, srd=4, stride=128):
        e = self.e
        L = self.lab('poll'); X = self.lab('got')
        e('s_cmp_lg_u32 s%d, 0' % sW); e('s_cbranch_scc1 %s' % X)
        e('s_cmp_lg_u32 s%d, 0' % sDEAD); e('s_cbranch_scc1 %s' % X)
        e('s_mov_b32 s%d, 0' % sPC)
        if n > 1:
            e('v_min_u32 v%d, %d, v%d' % (vT0, n - 1, vLANE)); e('v_mul_u32_u24 v%d, %d, v%d' % (vT0, stride, vT0))
        e.label(L)
        e('buffer_load_dword v%d, v%d, s[%d:%d], s%d offen sc1' % (vPOLL, vT0 if n > 1 else vZERO, srd, srd + 3, cnt_off_sgpr), count=False)
        e('s_waitcnt vmcnt(0)', count=False)
        e('v_cmp_gt_u32 vcc, %d, v%d' % (target, vPOLL))
        e('s_cbranch_vccz %s' % X)
        if self.o.get('psleep'): e('s_sleep %d' % self.o['psleep'])
        e('s_add_u32 s%d, s%d, 1' % (sPC, sPC)); e('s_cmp_lt_u32 s%d, %d' % (sPC, SPIN_LIMIT))
        e('s_cbranch_scc1 %s' % L)
        e('s_mov_b32 s%d, 1' % sDEAD)
        e.label(X)
    def cnt(self, dst, which, idx_sgpr, mul=128, add=0, next_layer=False):
        e = self.e
        e('s_mul_i32 s%d, s%d, %d' % (dst, idx_sgpr, mul))
        e('s_add_u32 s%d, s%d, s%d' % (dst, dst, sCNT))
        e('s_add_u32 s%d, s%d, 0x%x' % (dst, dst, which + add + (CSTRIDE if next_layer else 0)))
    def prologue(self):
        if self.o.get('merged', 0): return self.prologue_merged()
        e = self.e
        e.directive('.text\n.globl %s\n.p2align 8\n.type %s,@function' % (self.name, self.name))
        e.label(self.name)
        e('s_cmp_ge_u32 s2, 256'); e('s_cbranch_scc1 M_END')
        e('s_load_dwordx2 s[32:33], s[0:1], 0')
        e('s_load_dwordx2 s[34:35], s[0:1], 64')
        e('s_load_dwordx2 s[36:37], s[0:1], 80')
        self.entry_stamp()
        self.pro_scalars(); self.pro_lanes()
        e('s_waitcnt lgkmcnt(0)')
        self.mk_srd(4, 36, WS_BYTES)
        self.pro_tail(32, 34)
    def prologue_merged(self):
        import gen_prep as P
        e = self.e
        e.directive('.text\n.globl %s\n.p2align 8\n.type %s,@function' % (self.name, self.name))
        e.label(self.name)
        e('s_cmp_ge_u32 s2, 256'); e('s_cbranch_scc1 M_END')
        e('s_load_dwordx8 s[64:71], s[0:1], 0')
        e('s_load_dwordx4 s[72:75], s[0:1], 40')
        e('s_load_dwordx2 s[76:77], s[0:1], 56')
        e('s_load_dwordx2 s[78:79], s[0:1], 64')
        e('s_load_dwordx4 s[80:83], s[0:1], 72')
        self.entry_stamp()
        self.pro_scalars()
        e('s_waitcnt lgkmcnt(0)')
        self.mk_srd(4, 82, WS_BYTES)
        e('s_add_u32 s0, s2, 352\ns_sub_u32 s26, s2, 64\ns_cmp_ge_u32 s2, 160\ns_cselect_b32 s0, s26, s0\ns_cmp_lt_u32 s2, 96\ns_cselect_b32 s0, s2, s0')
        e('s_add_u32 s1, s2, 192')
        Lz = self.lab('nz')
        e('s_cmp_ge_u32 s2, 16'); e('s_cbranch_scc1 %s' % Lz)
        e('s_cmp_lg_u32 s%d, 0' % sW); e('s_cbranch_scc1 %s' % Lz)
        for k in range(4): e('v_mov_b32 v%d, 0' % (120 + k))
        e('s_lshl_b32 s26, s2, 11')
        e('buffer_store_dwordx4 v[120:123], v%d, s[4:7], s26 offen sc1' % vL16, count=False)
        e('buffer_store_dwordx4 v[120:123], v%d, s[4:7], s26 offen offset:1024 sc1' % vL16, count=False)
        e.label(Lz)
        r1 = P.Ren(e, 1, 0); r2 = P.Ren(e, 2, 1)
        L1, L2 = 0, 32768
        def dispatch(cases, sreg, tagp):
            end = self.lab(tagp)
            labs = [self.lab(tagp) for _ in cases]
            for (ub, _), lb in list(zip(cases, labs))[:-1]:
                e('s_cmp_lt_u32 s%d, %d' % (sreg, ub)); e('s_cbranch_scc1 %s' % lb)
            e('s_branch %s' % labs[-1])
            for (ub, fn), lb in zip(cases, labs):
                e.label(lb); e.reset_state(); fn()
                e.wait_lgkm0()
                e('s_branch %s' % end)
            e.label(end); e.reset_state()
        dispatch([(96, lambda: P.wa_issue(r1)), (288, lambda: P.wc_issue(r1, L1)), (None, lambda: P.x_issue(r1))], 0, 'i1')
        dispatch([(288, lambda: P.wc_issue(r2, L2)), (416, lambda: P.wd_issue(r2, L2)), (None, lambda: P.wb_issue(r2, L2))], 1, 'i2')
        if self.o.get('codepf', 1):
            Lp = self.lab('npf')
            e('s_cmp_ge_u32 s2, 64'); e('s_cbranch_scc1 %s' % Lp)
            e('s_getpc_b64 s[84:85]')
            e.label('M_PC')
            e('s_add_u32 s84, s84, (M_LAYER-M_PC)\ns_addc_u32 s85, s85, 0')
            e('v_lshlrev_b32 v124, 7, v0\nv_mov_b32 v125, (M_CODE_END-M_LAYER-4)\nv_add_u32 v126, 0x8000, v124')
            e('v_min_u32 v124, v124, v125\nv_min_u32 v126, v126, v125\nv_and_b32 v124, -4, v124\nv_and_b32 v126, -4, v126')
            e('global_load_dword v127, v124, s[84:85]', count=False)
            e('global_load_dword v127, v126, s[84:85]', count=False)
            e.label(Lp)
        self.mk_srd(84, 80, 256)
        Lf = self.lab('nf'); Lv = self.lab('nfv'); Lw = self.lab('nfw')
        e('s_cmp_ge_u32 s2, 16'); e('s_cbranch_scc1 %s' % Lf)
        e('s_cmp_lg_u32 s%d, 0' % sW); e('s_cbranch_scc1 %s' % Lf)
        npf = 2 if self.o.get('codepf', 1) else 0
        e('s_cmp_eq_u32 s31, 1'); e('s_cbranch_scc1 %s' % Lv)
        e('s_waitcnt vmcnt(%d)' % (22 + 5 + npf), count=False); e('s_branch %s' % Lw)
        e.label(Lv)
        e('s_waitcnt vmcnt(%d)' % (10 + 5 + npf), count=False)
        e.label(Lw)
        e('s_lshl_b32 s62, s2, 2\ns_mov_b64 exec, 1')
        e('buffer_store_dword v%d, v%d, s[84:87], s62 offen sc1' % (vONE, vZERO), count=False)
        e('s_mov_b64 exec, -1')
        self.stamp(27)
        e.label(Lf)
        e('s_waitcnt vmcnt(4)', count=False)
        self.stamp(19)
        dispatch([(96, lambda: P.wa_process(r1)), (288, lambda: P.wc_process(r1, L1)), (None, lambda: P.x_process(r1))], 0, 'p1')
        self.stamp(20)
        Lq = self.lab('zq')
        e('s_cmp_lg_u32 s%d, 0' % sW); e('s_cbranch_scc1 %s' % Lq)
        e('v_min_u32 v126, 15, v%d\nv_lshlrev_b32 v126, 2, v126' % vLANE)
        e('buffer_load_dword v%d, v126, s[84:87], 0 offen sc1' % vPOLL, count=False)
        e.label(Lq)
        e('s_waitcnt vmcnt(0) lgkmcnt(0)', count=False)
        e('s_barrier')
        self.stamp(26)
        def arrive(off, below=None):
            La = self.lab('arr')
            e('s_cmp_lg_u32 s%d, 0' % sW); e('s_cbranch_scc1 %s' % La)
            if below is not None:
                e('s_cmp_ge_u32 s2, %d' % below); e('s_cbranch_scc1 %s' % La)
            e('s_and_b32 s62, s2, 15\ns_lshl_b32 s62, s62, 7\ns_add_u32 s62, s62, 0x%x\ns_mov_b64 exec, 1' % off)
            e('buffer_atomic_add v%d, v%d, s[4:7], s62 offen sc1' % (vONE, vZERO), count=False)
            e('s_mov_b64 exec, -1')
            e.label(La)
        Lc = self.lab('zc'); Ls = self.lab('zcs')
        e('s_cmp_lg_u32 s%d, 0' % sW); e('s_cbranch_scc1 %s' % Lc)
        e('s_mov_b32 s%d, 0' % sPC)
        e.label(Ls)
        e('v_cmp_gt_u32 vcc, 1, v%d' % vPOLL)
        e('s_cbranch_vccz %s' % Lc)
        if self.o.get('zsleep'): e('s_sleep %d' % self.o['zsleep'])
        e('buffer_load_dword v%d, v126, s[84:87], 0 offen sc1' % vPOLL, count=False)
        e('s_waitcnt vmcnt(0)', count=False)
        e('s_add_u32 s%d, s%d, 1' % (sPC, sPC)); e('s_cmp_lt_u32 s%d, %d' % (sPC, SPIN_LIMIT)); e('s_cbranch_scc1 %s' % Ls)
        e('s_mov_b32 s%d, 1' % sDEAD)
        e.label(Lc)
        arrive(CNT_CRIT, 160)
        self.stamp(21)
        dispatch([(288, lambda: P.wc_process(r2, L2)), (416, lambda: P.wd_process(r2, L2)), (None, lambda: P.wb_process(r2, L2))], 1, 'p2')
        self.stamp(22)
        e('s_waitcnt vmcnt(0) lgkmcnt(0)', count=False)
        e('s_barrier')
        arrive(CNT_REST)
        self.stamp(25)
        self.pro_lanes()
        e('s_mov_b32 s%d, 0x%x' % (sT0, CNT_CRIT))
        self.stamp(23)
        self.poll(sT0, n=16, target=10)
        e('s_barrier')
        self.stamp(24)
        self.pro_tail(64, 78)
    def entry_stamp(self):
        if self.o.get('stamps'):
            self.e(('s_memtime' if self.o.get('cyc') else 's_memrealtime') + ' s[60:61]\ns_waitcnt lgkmcnt(0)\nv_mov_b32 v223, s60')
    def mk_srd(self, d, lo, n):
        self.e('s_mov_b32 s%d, s%d\ns_mov_b32 s%d, s%d\ns_mov_b32 s%d, 0x%x\ns_mov_b32 s%d, 0x20000' % (d, lo, d + 1, lo + 1, d + 2, n, d + 3))
    def pro_scalars(self):
        e = self.e
        e('v_lshrrev_b32 v10, 6, v0'); e('v_and_b32 v%d, 63, v0' % vLANE)
        e('v_readfirstlane_b32 s%d, v10' % sW)
        e('v_lshlrev_b32 v%d, 4, v%d' % (vL16, vLANE))
        e('s_and_b32 s%d, s2, 3\ns_lshr_b32 s26, s2, 6\ns_lshl_b32 s26, s26, 2\ns_or_b32 s%d, s%d, s26' % (sRB, sRB, sRB))
        e('s_lshr_b32 s%d, s2, 2\ns_and_b32 s%d, s%d, 15' % (sJ, sJ, sJ))
        e('s_and_b32 s%d, s%d, 7\ns_lshr_b32 s%d, s%d, 3' % (sCS, sJ, sTH, sJ))
        e('s_mul_i32 s%d, s%d, 5120' % (sW5K, sW))
        e('s_lshr_b32 s%d, s%d, 1' % (sKH, sW))
        for (s, idx, stride, base) in ((sWA, sJ, 160 * KB, WA), (sWB, sCS, 100 * KB, WB), (sWC, sJ, 240 * KB, WC), (sWD, sCS, 240 * KB, WD)):
            if self.o.get('wsame'): stride = 0
            e('s_mul_i32 s%d, s%d, %d\ns_add_u32 s%d, s%d, s%d\ns_add_u32 s%d, s%d, 0x%x' % (s, idx, stride, s, s, sW5K, s, s, base))
        e('s_lshl_b32 s%d, s%d, 3\ns_lshl_b32 s26, s%d, 2\ns_add_u32 s%d, s%d, s26' % (sTTK, sRB, sTH, sTTK, sTTK))
        e('s_and_b32 s26, s%d, 1\ns_lshl_b32 s26, s26, 1\ns_add_u32 s%d, s%d, s26\ns_add_u32 s%d, s%d, s%d' % (sW, sTTK, sTTK, sTTK, sTTK, sKH))
        e('s_xor_b32 s%d, s%d, 1' % (sTTS, sTTK))
        e('s_mov_b32 s%d, 0\ns_mov_b32 s%d, 0\ns_mov_b32 s%d, 0x%x' % (sDEAD, sL, sLOFF, LBASE))
        e('s_mov_b32 s%d, 0x%x' % (sCNT, CNT0))
        e('s_sub_u32 s%d, s%d, 1\ns_lshl_b32 s%d, s%d, 11\ns_sub_u32 s%d, s%d, s%d' % (sEX, sW, sEX, sEX, sEXD, sEX, sW5K))
        e('v_mov_b32 v%d, 0x3f803f80\nv_mov_b32 v%d, 0\nv_mov_b32 v%d, 1' % (vONES, vZERO, vONE))
    def pro_lanes(self):
        e = self.e
        e('v_add_u32 v%d, %d, v%d' % (vL16B, 3 * BLK, vL16))
        e('v_lshlrev_b32 v%d, 7, v%d' % (vL128, vLANE))
        e('s_mul_i32 s26, s%d, 5120\nv_add_u32 v%d, s26, v%d\nv_add_u32 v%d, %d, v%d' % (sKH, vK0, vL16, vK1, 3 * BLK, vK0))
        e('v_add_u32 v%d, %d, v%d' % (vK2, 6 * BLK, vK0))
        t32, hi, t16, q = 100, 101, 102, 103
        e('v_and_b32 v%d, 31, v%d\nv_lshrrev_b32 v%d, 5, v%d' % (t32, vLANE, hi, vLANE))
        e('v_and_b32 v%d, 15, v%d\nv_lshrrev_b32 v%d, 4, v%d' % (t16, vLANE, q, vLANE))
        e('v_mov_b32 v104, 0x%x' % OOB)
        e('v_lshlrev_b32 v%d, 3, v%d\nv_lshl_add_u32 v%d, v%d, 16, v%d' % (vSA, t32, vSA, hi, vSA))
        e('s_lshl_b32 s26, s%d, 5\nv_add_u32 v105, s26, v%d\nv_mul_u32_u24 v105, 144, v105' % (sW, t32))
        e('v_mul_u32_u24 v106, 18432, v%d\nv_add_u32 v105, v105, v106\nv_add_u32 v%d, 0x%x, v105' % (hi, vTW, SCR))
        e('v_lshrrev_b32 v105, 1, v%d\nv_bfe_u32 v106, v%d, 2, 2\nv_lshl_add_u32 v105, v105, 3, v106\nv_mul_u32_u24 v105, 144, v105' % (q, vLANE))
        e('v_and_b32 v106, 1, v%d\nv_lshlrev_b32 v106, 5, v106\nv_and_b32 v107, 3, v%d\nv_lshl_add_u32 v106, v107, 3, v106\nv_add_u32 v105, v105, v106' % (q, vLANE))
        e('s_lshr_b32 s26, s%d, 1\ns_mul_i32 s26, s26, 18432\ns_add_u32 s26, s26, 0x%x' % (sW, SCR))
        e('s_and_b32 s27, s%d, 1\ns_mul_i32 s28, s27, 40\ns_add_u32 s28, s28, s26\ns_add_u32 s29, s26, 80' % sW)
        e('v_add_u32 v%d, s28, v105\nv_add_u32 v%d, s29, v105' % (vKA, vKB))
        e('s_lshl_b32 s26, s%d, 10' % sW)
        e('v_mul_u32_u24 v105, 24, v%d\nv_add_u32 v105, v105, v%d\nv_lshlrev_b32 v105, 4, v105\nv_add_u32 v105, s26, v105' % (hi, t32))
        e('v_cmp_gt_u32 vcc, 24, v%d\nv_cndmask_b32 v%d, v104, v105, vcc' % (t32, vPS1))
        e('v_lshlrev_b32 v105, 3, v%d\nv_add_u32 v105, s26, v105\nv_add_u32 v105, 768, v105' % t32)
        e('v_cmp_eq_u32 vcc, 0, v%d\nv_cndmask_b32 v%d, v104, v105, vcc' % (hi, vPS2))
        e('v_mov_b32 v106, 84\nv_cmp_le_u32 s[30:31], v106, v0\nv_cndmask_b32 v106, 0, 1, s[30:31]')
        e('v_mul_u32_u24 v107, 84, v106\nv_sub_u32 v107, v0, v107')
        e('v_mul_u32_u24 v108, 391, v107\nv_lshrrev_b32 v108, 13, v108')
        e('v_mul_u32_u24 v109, 21, v108\nv_sub_u32 v109, v107, v109')
        e('v_subrev_u32 v110, 168, v0\nv_mul_u32_u24 v111, 391, v110\nv_lshrrev_b32 v111, 13, v111\nv_and_b32 v111, 3, v111')
        e('v_mul_u32_u24 v96, 21, v111\nv_sub_u32 v96, v110, v96')
        e('v_cmp_gt_u32 vcc, 168, v0')
        e('v_lshrrev_b32 v97, 1, v108\nv_lshl_add_u32 v97, v106, 1, v97\nv_lshlrev_b32 v97, 10, v97')
        e('v_and_b32 v98, 1, v108\nv_mul_u32_u24 v98, 24, v98\nv_add_u32 v98, v98, v109\nv_lshl_add_u32 v97, v98, 4, v97')
        e('v_lshlrev_b32 v98, 10, v111\nv_lshl_add_u32 v98, v96, 3, v98\nv_add_u32 v98, 768, v98')
        e('v_cndmask_b32 v97, v98, v97, vcc')
        e('v_mov_b32 v99, 252\nv_cmp_gt_u32 s[30:31], v99, v0\nv_cndmask_b32 v%d, v104, v97, s[30:31]' % vPL)
        e('v_lshrrev_b32 v97, 1, v111\nv_cndmask_b32 v106, v97, v106, vcc')
        e('v_cndmask_b32 v108, 4, v108, vcc\nv_cndmask_b32 v109, v96, v109, vcc')
        e('v_lshrrev_b32 v110, 4, v109\nv_mul_u32_u24 v110, 5, v110\nv_add_u32 v110, v110, v108')
        e('v_and_b32 v109, 15, v109\nv_lshrrev_b32 v97, 2, v109\nv_lshlrev_b32 v97, 3, v97\nv_and_b32 v109, 3, v109\nv_add_u32 v97, v97, v109')
        e('v_mul_u32_u24 v109, 36, v106\nv_add_u32 v97, v97, v109')
        e('v_lshlrev_b32 v97, 4, v97\nv_lshl_add_u32 v97, v110, 10, v97\nv_add_u32 v97, 0x%x, v97' % SCR)
        e('v_and_b32 v105, 63, v0\nv_lshlrev_b32 v105, 4, v105\nv_add_u32 v105, 0x%x, v105' % (SCR + 12288))
        e('v_cndmask_b32 v%d, v105, v97, vcc' % vAW)
        e('v_and_b32 v98, 1, v111\nv_lshl_add_u32 v97, v98, 3, v97')
        e('v_cndmask_b32 v97, v97, v105, vcc\nv_cndmask_b32 v%d, v105, v97, s[30:31]' % vAW2)
        e('s_mul_i32 s26, s%d, 5' % sJ)
        e('v_bfe_u32 v105, v%d, 4, 1\nv_mul_u32_u24 v105, 20480, v105\nv_lshl_add_u32 v105, v%d, 4, v105' % (vLANE, t16))
        for (dst, expr) in ((vO0, 0), (vO1, 1), (vO2, None)):
            if expr is not None:
                e('v_lshl_add_u32 v106, v%d, 1, s26\nv_add_u32 v106, %d, v106' % (hi, expr))
            else:
                e('v_mov_b32 v106, s26\nv_add_u32 v106, 4, v106')
            e('v_lshrrev_b32 v107, 2, v106\nv_lshl_add_u32 v107, v107, 10, v105\nv_and_b32 v106, 3, v106\nv_lshl_add_u32 v%d, v106, 8, v107' % dst)
        e('v_lshl_add_u32 v%d, v%d, 3, v%d' % (vO2, hi, vO2))
        e('s_mul_i32 s26, s%d, 10' % sCS)
        e('s_and_b32 s27, s%d, 1\ns_lshl_b32 s27, s27, 8' % sTTK)
        e('v_lshlrev_b32 v105, 4, v%d' % t16)
        for n, (dx, dy) in enumerate(((vX0, vY0), (vX1, vY1), (vX2, vY2))):
            if n < 2: e('v_add_u32 v106, s26, v%d\nv_add_u32 v106, %d, v106' % (q, 4 * n))
            else: e('v_lshrrev_b32 v106, 1, v%d\nv_add_u32 v106, s26, v106\nv_add_u32 v106, 8, v106' % q)
            e('v_lshrrev_b32 v107, 2, v106\nv_lshl_add_u32 v107, v107, 10, v105\nv_and_b32 v108, 3, v106\nv_lshl_add_u32 v%d, v108, 8, v107' % dx)
            e('v_lshrrev_b32 v107, 1, v106\nv_lshl_add_u32 v107, v107, 10, v105\nv_and_b32 v108, 1, v106\nv_lshl_add_u32 v107, v108, 9, v107\nv_add_u32 v%d, s27, v107' % dy)
        e('v_and_b32 v106, 1, v%d\nv_lshl_add_u32 v%d, v106, 3, v%d\nv_lshl_add_u32 v%d, v106, 3, v%d' % (q, vX2, vX2, vY2, vY2))
        e('v_mul_u32_u24 v105, 1280, v%d\nv_lshl_add_u32 v%d, v%d, 4, v105\nv_lshl_add_u32 v%d, v%d, 3, v105\nv_add_u32 v%d, 128, v%d' % (t16, vR0, q, vR2, q, vR2, vR2))
        e('v_lshlrev_b32 v105, 3, v%d\nv_cmp_eq_u32 vcc, 0, v%d\nv_cndmask_b32 v%d, v104, v105, vcc\nv_lshl_add_u32 v%d, v%d, 15, v105' % (t16, q, vST, vSC, q))
        e('s_add_u32 s26, s%d, 0x%x\nv_add_u32 v%d, s26, v%d' % (sW5K, SCR, vEXW, vL16))
        e('s_xor_b32 s27, s%d, 2\ns_mul_i32 s27, s27, 5120\ns_add_u32 s27, s27, 0x%x\nv_add_u32 v%d, s27, v%d' % (sW, SCR, vEXR, vL16))
    def pro_tail(self, xlo, olo):
        e = self.e
        self.mk_srd(8, xlo, T * 1280); self.mk_srd(12, olo, T * 1280)
        if self.o.get('ampre', 1): self.am_a()
        self.side_dma(self.A_side[:1])
        for b in self.A_tail:
            for g in self.dma_ops(b):
                for x in g:
                    if isinstance(x, tuple): e(x[0], count=False)
                    else: e(x)
        self.side_dma(self.A_side[1:])
        e('s_mul_i32 s26, s%d, 20480\ns_mul_i32 s27, s%d, 160\ns_add_u32 s26, s26, s27' % (sTTK, sCS))
        e('buffer_load_dwordx4 v[%d:%d], v%d, s[8:11], s26 offen' % (XR, XR + 3, vR0), count=False)
        e('buffer_load_dwordx4 v[%d:%d], v%d, s[8:11], s26 offen offset:64' % (XR + 4, XR + 7, vR0), count=False)
        e('buffer_load_dwordx2 v[%d:%d], v%d, s[8:11], s26 offen' % (XR + 8, XR + 9, vR2), count=False)
    def rowstat_finish(self, S, Q, vRS, vVE, BM, tmp):
        L = []
        L.append('v_mul_f32 v%d, %s, v%d' % (S, f32bits(1.0 / 640), S))
        L.append('v_mul_f32 v%d, %s, v%d' % (Q, f32bits(1.0 / 640), Q))
        L.append('v_fma_f32 v%d, -v%d, v%d, v%d' % (Q, S, S, Q))
        L.append('v_max_f32 v%d, 0, v%d' % (Q, Q))
        L.append('v_add_f32 v%d, %s, v%d' % (vVE, f32bits(1e-5), Q))
        L.append('v_rsq_f32 v%d, v%d' % (vRS, vVE))
        L.append('v_cvt_pk_bf16_f32 v%d, -v%d, -v%d' % (tmp, S, S))
        L.append('v_and_b32 v%d, 0xffff0000, v%d' % (tmp, tmp))
        L.append('v_sub_f32 v%d, -v%d, v%d' % (tmp, S, tmp))
        L.append('v_cvt_pk_bf16_f32 v%d, -v%d, v%d' % (BM, S, tmp))
        for k in range(1, 4): L.append('v_mov_b32 v%d, v%d' % (BM + k, BM))
        return L
    def softmax_pair(self, X, vC, EP, EM, t):
        L = []
        mx, mn, ap, am, sp, sm = range(t, t + 6)
        L.append('v_max3_f32 v%d, v%d, v%d, v%d' % (mx, X[0], X[1], X[2]))
        L.append('v_min3_f32 v%d, v%d, v%d, v%d' % (mn, X[0], X[1], X[2]))
        for k in range(3, 19, 2):
            L.append('v_max3_f32 v%d, v%d, v%d, v%d' % (mx, mx, X[k], X[k + 1]))
            L.append('v_min3_f32 v%d, v%d, v%d, v%d' % (mn, mn, X[k], X[k + 1]))
        L.append('v_max_f32 v%d, v%d, v%d' % (mx, mx, X[19]))
        L.append('v_min_f32 v%d, v%d, v%d' % (mn, mn, X[19]))
        L.append('v_mul_f32 v%d, v%d, v%d' % (ap, vC, mx))
        L.append('v_mul_f32 v%d, v%d, v%d' % (am, vC, mn))
        for f in range(20):
            L.append('v_fma_f32 v%d, v%d, v%d, -v%d' % (EP + f, X[f], vC, ap))
            L.append('v_fma_f32 v%d, -v%d, v%d, v%d' % (EM + f, X[f], vC, am))
        for f in range(20):
            L.append('v_exp_f32 v%d, v%d' % (EP + f, EP + f))
            L.append('v_exp_f32 v%d, v%d' % (EM + f, EM + f))
        L.append('v_add_f32 v%d, v%d, v%d' % (sp, EP, EP + 1))
        L.append('v_add_f32 v%d, v%d, v%d' % (sm, EM, EM + 1))
        for f in range(2, 20):
            L.append('v_add_f32 v%d, v%d, v%d' % (sp, sp, EP + f))
            L.append('v_add_f32 v%d, v%d, v%d' % (sm, sm, EM + f))
        L.append('v_rcp_f32 v%d, v%d' % (sp, sp))
        L.append('v_rcp_f32 v%d, v%d' % (sm, sm))
        for f in range(20):
            L.append('v_mul_f32 v%d, v%d, v%d' % (EP + f, EP + f, sp))
            L.append('v_mul_f32 v%d, v%d, v%d' % (EM + f, EM + f, sm))
        return L
    def stamp(self, k):
        if not self.o.get('stamps'): return
        e = self.e
        e('v_mov_b32 v222, s%d' % sL)
        e('v_lshlrev_b32 v222, 5, v222\nv_add_u32 v222, %d, v222' % k)
        e('v_cmp_eq_u32 vcc, v222, v%d' % vLANE)
        e('s_memtime s[58:59]' if self.o.get('cyc') else 's_memrealtime s[58:59]')
        e('s_waitcnt lgkmcnt(0)')
        e('v_mov_b32 v222, s58')
        e('v_cndmask_b32 v223, v223, v222, vcc')
    def stamp_items(self, k):
        if self.o.get('stamps') != 2: return []
        sub = Main(None, self.o); sub.stamp(k)
        return sub.e.items
    def stamp_flush(self):
        if not self.o.get('stamps'): return
        e = self.e
        e('s_lshl_b32 s62, s2, 2\ns_add_u32 s62, s62, s%d\ns_lshl_b32 s62, s62, 8\ns_add_u32 s62, s62, 0x%x' % (sW, TSOFF))
        e('v_lshlrev_b32 v%d, 2, v%d' % (vT0, vLANE))
        e('buffer_store_dword v223, v%d, s[4:7], s62 offen' % vT0)
    def maybe_stop(self, name):
        if self.stop == name:
            self.e.wait_all(); self.e('s_endpgm'); return True
        return False
    def vm_stream(self, items):
        st = Stream()
        for it in sorted(items, key=lambda x: x[3] if len(x) > 3 else x[0]):
            st.add(it[2], it[1], it[0])
        return st
    def flat(self, groups):
        return [x for g in groups for x in g]
    def phase_a(self):
        e = self.e; o = self.o
        T0, T1, T2, T3 = ACC, ACC + 16, ACC + 32, ACC + 48
        ST, vRS, vVE, vC, BM, AM, EP, EM, P = 112, 120, 121, 122, 124, 128, 144, 164, 184
        self.stamp(0)
        L = self.lab('a_nopoll')
        e('s_cmp_eq_u32 s%d, 0' % sL); e('s_cbranch_scc1 %s' % L)
        self.cnt(sT0, CNT_XA, sRB)
        self.poll(sT0)
        e('s_barrier')
        e.label(L)
        self.stamp(1)
        e('s_lshl_b32 s%d, s%d, 2\ns_add_u32 s%d, s%d, s%d' % (sT0, sRB, sT0, sT0, sW))
        e('s_lshl_b32 s%d, s%d, 8\ns_add_u32 s%d, s%d, s%d\ns_add_u32 s%d, s%d, 0x%x' % (sT1, sT0, sT1, sT1, sLOFF, sT1, sT1, SA))
        e('s_mul_i32 s%d, s%d, 40960\ns_add_u32 s%d, s%d, s%d\ns_add_u32 s%d, s%d, 0x%x' % (sTW, sT0, sTW, sTW, sLOFF, sTW, sTW, XA))
        def tok(s):
            g = []
            if s % 4 == 0: g.append('s_add_u32 s%d, s%d, %d' % (sB0, sTW, s * 1024))
            g.append('buffer_load_dwordx4 a[%d:%d], v%d, s[4:7], s%d offen offset:%d%s' % (4 * s, 4 * s + 3, vL16, sB0, (s % 4) * 1024, self.sc))
            return g
        NPRE = o.get('a_npre', 14)
        if o.get('tt', 0): e.extend(self.touch_tok(XA))
        for s in range(NPRE): e.extend(tok(s))
        stld = []
        for k in range(4):
            if k: stld.append('s_add_u32 s%d, s%d, 16384' % (sT1, sT1))
            stld.append('buffer_load_dwordx2 v[%d:%d], v%d, s[4:7], s%d offen sc1' % (ST + 2 * k, ST + 2 * k + 1, vSA, sT1))
        e('s_lshl_b32 s%d, s%d, 12\ns_add_u32 s%d, s%d, 0x%x' % (sT2, sJ, sT2, sT2, WAM))
        amload = ['buffer_load_dwordx4 v[%d:%d], v%d, s[4:7], s%d offen offset:%d' % (AM + 4 * t, AM + 4 * t + 3, vL16, sT2, t * 1024) for t in range(4)]
        st = []
        st += ['v_add_f32 v%d, v%d, v%d' % (ST, ST, ST + 2), 'v_add_f32 v%d, v%d, v%d' % (ST + 1, ST + 1, ST + 3),
               'v_add_f32 v%d, v%d, v%d' % (ST + 4, ST + 4, ST + 6), 'v_add_f32 v%d, v%d, v%d' % (ST + 5, ST + 5, ST + 7),
               'v_add_f32 v%d, v%d, v%d' % (ST, ST, ST + 4), 'v_add_f32 v%d, v%d, v%d' % (ST + 1, ST + 1, ST + 5),
               'v_mov_b32 v%d, v%d' % (ST + 2, ST), 'v_mov_b32 v%d, v%d' % (ST + 3, ST + 1),
               'v_permlane32_swap_b32 v%d, v%d' % (ST, ST + 2), 'v_permlane32_swap_b32 v%d, v%d' % (ST + 1, ST + 3),
               'v_add_f32 v%d, v%d, v%d' % (ST, ST, ST + 2), 'v_add_f32 v%d, v%d, v%d' % (ST + 1, ST + 1, ST + 3)]
        st += self.rowstat_finish(ST, ST + 1, vRS, vVE, BM, ST + 2)
        st += ['v_mul_f32 v%d, %s, v%d' % (vC, f32bits(LOG2E), vRS)]
        LA = 5
        def frag_info(n):
            if n < 120: return n // 3, n % 3
            return n - 120, 3
        def read(n): return self.ring_read(AF + 4 * (n % 8), A0 + n // 20, (n % 20) * 1024)
        def mfma(n):
            s, tau = frag_info(n); acc = ACC + 16 * tau; a = AF + 4 * (n % 8)
            c = '0' if s == 0 else 'v[%d:%d]' % (acc, acc + 15)
            return 'v_mfma_f32_32x32x16_bf16 v[%d:%d], v[%d:%d], a[%d:%d], %s' % (acc, acc + 15, a, a + 3, 4 * s, 4 * s + 3, c)
        def mean(tau):
            acc = ACC + 16 * tau
            return 'v_mfma_f32_32x32x16_bf16 v[%d:%d], v[%d:%d], v[%d:%d], v[%d:%d]' % (acc, acc + 15, AM + 4 * tau, AM + 4 * tau + 3, BM, BM + 3, acc, acc + 15)
        ksm = self.softmax_pair([T0 + r for r in range(16)] + [T1 + r for r in range(4)], vC, EP, EM, ST)
        for d in range(10): ksm.append('v_cvt_pk_bf16_f32 v%d, v%d, v%d' % (P + d, EP + 2 * d, EP + 2 * d + 1))
        for d in range(10): ksm.append('v_cvt_pk_bf16_f32 v%d, v%d, v%d' % (P + 10 + d, EM + 2 * d, EM + 2 * d + 1))
        V = [T1 + r for r in range(4, 16)] + [T2 + r for r in range(8)]
        for f in range(20): ksm.append('v_mul_f32 v%d, v%d, v%d' % (V[f], V[f], vRS))
        for d in range(10): ksm.append('v_cvt_pk_bf16_f32 v%d, v%d, v%d' % (P + 20 + d, V[2 * d], V[2 * d + 1]))
        ksm += ['v_mov_b32 v%d, 0x3f80' % (P + 30), 'v_mov_b32 v%d, 0' % (P + 31)]
        anchors = []; pre = {}; fixed = {}; idx = {}
        for n in range(160):
            if n == 120:
                idx['mean'] = len(anchors)
                anchors += [mean(t) for t in range(3)]
            idx[n] = len(anchors)
            anchors.append(mfma(n))
            fixed[idx[n]] = ([read(n + LA)] if n + LA < 160 else []) + ([Need('v[%d:%d]' % (AF + 4 * ((n + 1) % 8), AF + 4 * ((n + 1) % 8) + 3))] if n + 1 < 160 else [])
        anchors.append(mean(3))
        for ep in range(1, 8):
            at = idx['mean'] if ep == 6 else idx[20 * ep]
            pre[at] = ([W_tag('blk%d' % (A0 + ep + 1))] if ep < 7 else []) + ['s_barrier']
            if self.o.get('fine') == 'a': pre[at] += self.stamp_items(19 + ep - 1)
        items = [(3 * s, 0, tok(s)) for s in range(NPRE, 40)]
        if not o.get('ampre', 1): items.append((90, 0, amload))
        if o.get('tw', 0): items.append((30, 0, self.touch_w('B')))
        items.append((o.get('a_stdl', 64), 0, stld))
        for b in self.A_in: items.append((20 * (b - 1), 0, self.flat(self.dma_ops(b))))
        last_in = o.get('a_lastblk', 11)
        for b in range(6, last_in + 1):
            free = 20 * (b - 5) if b - 5 < 6 else idx['mean']
            items.append((20 * (b - 1) if b < 8 else 200 + b, free, self.flat(self.dma_ops(b))))
        if o.get('merged', 0):
            sub = Main(None, self.o); sub.nlab = self.nlab + 2000; q = sub.e
            Lr = 'M_restld'
            q('s_cmp_lg_u32 s%d, 0' % sL); q('s_cbranch_scc1 %s' % Lr)
            q('v_min_u32 v%d, 15, v%d\nv_lshlrev_b32 v%d, 7, v%d\ns_mov_b32 s%d, 0x%x' % (vT1, vLANE, vT1, vT1, sT3, CNT_REST))
            q('buffer_load_dword v%d, v%d, s[4:7], s%d offen sc1' % (vPOLL, vT1, sT3), count=False)
            q.label(Lr)
            e.extend(q.items)
            sub = Main(None, self.o); sub.nlab = self.nlab + 3000; q = sub.e
            Lk = 'M_restok'; Ll = 'M_restsp'
            q('s_cmp_lg_u32 s%d, 0' % sL); q('s_cbranch_scc1 %s' % Lk)
            q('s_mov_b32 s%d, 0' % sPC)
            q.label(Ll)
            q('v_cmp_gt_u32 vcc, 16, v%d' % vPOLL)
            q('s_cbranch_vccz %s' % Lk)
            q('s_cmp_lg_u32 s%d, 0' % sDEAD); q('s_cbranch_scc1 %s' % Lk)
            q('buffer_load_dword v%d, v%d, s[4:7], s%d offen sc1' % (vPOLL, vT1, sT3), count=False)
            q('s_waitcnt vmcnt(0)', count=False)
            q('s_add_u32 s%d, s%d, 1' % (sPC, sPC)); q('s_cmp_lt_u32 s%d, %d' % (sPC, SPIN_LIMIT)); q('s_cbranch_scc1 %s' % Ll)
            q('s_mov_b32 s%d, 1' % sDEAD)
            q.label(Lk)
            pre[idx[60]] = q.items + pre[idx[60]]
        vs = self.vm_stream(items)
        valu = Stream(st, o.get('a_stv', 90)).add(ksm, idx[120] + 1)
        if o.get('fine') == 'a0': e.extend(self.stamp_items(19))
        e.wait_tag('blk0'); e.wait_tag('blk1')
        if self.A_tail:
            Lw = self.lab('a_l0w')
            e('s_cmp_lg_u32 s%d, 0' % sL); e('s_cbranch_scc1 %s' % Lw)
            e('s_waitcnt vmcnt(0)', count=False)
            e.label(Lw)
        e('s_barrier')
        if o.get('fine') == 'a0':
            e.extend(self.stamp_items(20))
            for k, at in enumerate((1, 3, 6, 9, 12, 15, 18)):
                pre[at] = pre.get(at, []) + self.stamp_items(21 + k)
        for n in range(LA): e(read(n))
        stt = {}
        e.extend(schedule(anchors, 5, pre, fixed, [vs, valu], vm_gap=o.get('a_gap', 2), state=stt))
        if o.get('verbose'): print('a forced', stt.get('forced'), 'left', len(vs.q), len(valu.q))
        e.extend([y[0] for y in vs.q]); e.extend([y[0] for y in valu.q])
        self.a_late = list(range(last_in + 1, 13))
        self.stamp(2)
        for m in range(8):
            e('ds_write_b128 v%d, v[%d:%d] offset:%d' % (vTW, P + 4 * m, P + 4 * m + 3, 16 * m))
        e.wait_lgkm0()
        e('s_barrier')
        KD = T0
        def kvread(ks):
            b = AF + 8 * (ks % 4)
            return ['ds_read_b64_tr_b16 v[%d:%d], v%d offset:%d' % (b, b + 1, vKA, ks * 2304),
                    'ds_read_b64_tr_b16 v[%d:%d], v%d offset:%d' % (b + 2, b + 3, vKA, ks * 2304 + 576),
                    'ds_read_b64_tr_b16 v[%d:%d], v%d offset:%d' % (b + 4, b + 5, vKB, ks * 2304),
                    'ds_read_b64_tr_b16 v[%d:%d], v%d offset:%d' % (b + 6, b + 7, vKB, ks * 2304 + 576)]
        for ks in range(3): e.extend(kvread(ks))
        for ks in range(8):
            if ks + 3 < 8: e.extend(kvread(ks + 3))
            b = AF + 8 * (ks % 4)
            e('v_mfma_f32_32x32x16_bf16 v[%d:%d], v[%d:%d], v[%d:%d], %s' % (KD, KD + 15, b, b + 3, b + 4, b + 7, '0' if ks == 0 else 'v[%d:%d]' % (KD, KD + 15)))
        PK = EP
        for d in range(6): e('v_cvt_pk_bf16_f32 v%d, v%d, v%d' % (PK + d, KD + 2 * d, KD + 2 * d + 1))
        e('s_lshl_b32 s%d, s%d, 4\ns_add_u32 s%d, s%d, s%d\ns_lshl_b32 s%d, s%d, 12' % (sT0, sJ, sT0, sT0, sRB, sT0, sT0))
        e('s_add_u32 s%d, s%d, s%d\ns_add_u32 s%d, s%d, 0x%x' % (sT0, sT0, sLOFF, sT0, sT0, KVP))
        if o.get('reuse'): e('s_lshl_b32 s%d, s%d, 20\ns_add_u32 s%d, s%d, s%d' % (sT3, sL, sT0, sT0, sT3))
        e('buffer_store_dwordx4 v[%d:%d], v%d, s[4:7], s%d offen sc1' % (PK, PK + 3, vPS1, sT0))
        e('buffer_store_dwordx2 v[%d:%d], v%d, s[4:7], s%d offen sc1' % (PK + 4, PK + 5, vPS2, sT0))
        self.cnt(sT1, CNT_KV, sJ)
        self.signal(sT1)
        self.stamp(3)
        if o.get('tw', 0): e.extend(self.touch_w('C'))
        self.side_dma(self.a_late)
        for r in range(4): e('v_mov_b32 v%d, 0' % (AF + r))
        e('v_lshlrev_b32 v%d, 4, v0\nv_add_u32 v%d, 0x%x, v%d' % (vT1, vT1, SCR, vT1))
        for m in range(3): e('ds_write_b128 v%d, v[%d:%d] offset:%d' % (vT1, AF, AF + 3, m * 4096))
        Q = P
        X = [T2 + r for r in range(8, 16)] + [T3 + r for r in range(12)]
        e.extend(self.softmax_pair(X, vC, EP, EM, ST))
        order = []
        for sign in (EP, EM):
            order += [(sign + 0), (sign + 2), (sign + 8), (sign + 10), (sign + 4), (sign + 6), (sign + 12), (sign + 14)]
        order += [EP + 16, EP + 18, EM + 16, EM + 18]
        for d, r in enumerate(order): e('v_cvt_pk_bf16_f32 v%d, v%d, v%d' % (Q + d, r, r + 1))
        e.wait_lgkm0()
        self.stamp(4)
        self.poll(sT1)
        e('s_barrier')
        self.stamp(5)
        if self.maybe_stop('a1'): return True
        LD, SUM, PKK = 112, 176, 204
        e('s_lshl_b32 s%d, s%d, 16\ns_add_u32 s%d, s%d, s%d\ns_add_u32 s%d, s%d, 0x%x' % (sT0, sJ, sT0, sT0, sLOFF, sT0, sT0, KVP))
        if o.get('reuse'): e('s_lshl_b32 s%d, s%d, 20\ns_add_u32 s%d, s%d, s%d' % (sT3, sL, sT0, sT0, sT3))
        for p in range(16):
            if p: e('s_add_u32 s%d, s%d, 4096' % (sT0, sT0))
            e('buffer_load_dwordx4 v[%d:%d], v%d, s[4:7], s%d offen sc1' % (LD + 4 * p, LD + 4 * p + 3, vPL, sT0))
        e('v_mov_b32 v%d, 0x00003f80\nv_mov_b32 v%d, 0x3f800000' % (vT2, vT3))
        for k in range(8): e('v_mov_b32 v%d, 0' % (SUM + k))
        for p in range(16):
            for d in range(4):
                e('v_dot2c_f32_bf16 v%d, v%d, v%d' % (SUM + 2 * d, LD + 4 * p + d, vT2))
                e('v_dot2c_f32_bf16 v%d, v%d, v%d' % (SUM + 2 * d + 1, LD + 4 * p + d, vT3))
        for d in range(4): e('v_cvt_pk_bf16_f32 v%d, v%d, v%d' % (PKK + d, SUM + 2 * d, SUM + 2 * d + 1))
        e('ds_write_b128 v%d, v[%d:%d]' % (vAW, PKK, PKK + 3))
        e('ds_write_b64 v%d, v[%d:%d]' % (vAW2, PKK, PKK + 1))
        e.wait_lgkm0()
        e('s_barrier')
        e('v_add_u32 v%d, 0x%x, v%d' % (vT1, SCR, vL16))
        for n in range(8): e('ds_read_b128 v[%d:%d], v%d offset:%d' % (AF + 4 * n, AF + 4 * n + 3, vT1, n * 1024))
        G0, G1 = T0, T1
        for n in range(10):
            rho, s = n // 5, n % 5
            acc = G0 if rho == 0 else G1
            a = AF + 4 * (n % 8)
            e('v_mfma_f32_32x32x16_bf16 v[%d:%d], v[%d:%d], v[%d:%d], %s' % (acc, acc + 15, a, a + 3, Q + 4 * s, Q + 4 * s + 3, '0' if s == 0 else 'v[%d:%d]' % (acc, acc + 15)))
            if n < 2: e('ds_read_b128 v[%d:%d], v%d offset:%d' % (a, a + 3, vT1, (n + 8) * 1024))
        e('v_add_f32 v%d, %s, v%d' % (vT2, f32bits(1e-6), G1 + 4))
        e('v_rcp_f32 v%d, v%d' % (vT2, vT2))
        OP = 208
        src = [G0 + r for r in range(16)] + [G1 + r for r in range(4)]
        for r in src: e('v_mul_f32 v%d, v%d, v%d' % (r, r, vT2))
        for d in range(10): e('v_cvt_pk_bf16_f32 v%d, v%d, v%d' % (OP + d, src[2 * d], src[2 * d + 1]))
        e('s_lshl_b32 s%d, s%d, 3\ns_lshl_b32 s%d, s%d, 1\ns_add_u32 s%d, s%d, s%d\ns_mul_i32 s%d, s%d, 20480' % (sT0, sRB, sT1, sW, sT0, sT0, sT1, sT0, sT0))
        e('s_add_u32 s%d, s%d, s%d\ns_add_u32 s%d, s%d, 0x%x' % (sT0, sT0, sLOFF, sT0, sT0, O))
        e('buffer_store_dwordx4 v[%d:%d], v%d, s[4:7], s%d offen sc1' % (OP, OP + 3, vO0, sT0))
        e('buffer_store_dwordx4 v[%d:%d], v%d, s[4:7], s%d offen sc1' % (OP + 4, OP + 7, vO1, sT0))
        e('buffer_store_dwordx2 v[%d:%d], v%d, s[4:7], s%d offen sc1' % (OP + 8, OP + 9, vO2, sT0))
        self.stamp(6)
        self.cnt(sT1, CNT_O, sRB)
        self.signal(sT1)
        self.stamp(7)
        self.side_dma([C0])
        return self.maybe_stop('a')
    def gemm_bd(self, first_blk, nsteps, vs, pre_extra, valu, breg=None):
        e = self.e
        LA = 5
        nf = nsteps * 5
        def read(n):
            i, tau = n // 5, n % 5
            return self.ring_read(AF + 4 * (n % 8), first_blk + i // 2, (i & 1) * 10240 + tau * 1024, kh=True)
        def mf(n, u):
            i, tau = n // 5, n % 5
            acc = ACC + (tau * 2 + u) * 4; a = AF + 4 * (n % 8); b = breg(i, u) if breg else (2 * i + u) * 4
            c = '0' if i == 0 else 'v[%d:%d]' % (acc, acc + 3)
            return 'v_mfma_f32_16x16x32_bf16 v[%d:%d], v[%d:%d], a[%d:%d], %s' % (acc, acc + 3, a, a + 3, b, b + 3, c)
        anchors = []; pre = {}; fixed = {}
        for n in range(nf):
            anchors += [mf(n, 0), mf(n, 1)]
            if n + LA < nf: fixed[2 * n] = [read(n + LA)]
            if n + 1 < nf: fixed[2 * n + 1] = [Need('v[%d:%d]' % (AF + 4 * ((n + 1) % 8), AF + 4 * ((n + 1) % 8) + 3))]
        nep = nsteps // 2
        for ep in range(1, nep):
            pre[20 * ep] = list(pre_extra.get(ep, [])) + ([W_tag('blk%d' % (first_blk + ep + 1))] if ep + 1 < nep else []) + ['s_barrier']
            if self.o.get('fine') == 'd' and nsteps == 24: pre[20 * ep] += self.stamp_items(19 + ep - 1)
        for n in range(LA): e(read(n))
        stt = {}
        e.extend(schedule(anchors, 2, pre, fixed, [vs, valu], vm_gap=self.o.get('d_gap', 2), state=stt))
        if self.o.get('verbose'): print('bd forced', stt.get('forced'), 'left', len(vs.q), len(valu.q))
        e.extend([y[0] for y in vs.q]); e.extend([y[0] for y in valu.q])
    def bd_unpack(self):
        U = 112; L = []
        for d in range(10):
            L.append('v_lshlrev_b32 v%d, 16, v%d' % (U + 2 * d, XR + d))
            L.append('v_and_b32 v%d, 0xffff0000, v%d' % (U + 2 * d + 1, XR + d))
        return L
    def bd_epilogue(self, last_blk, final):
        e = self.e
        EX = 88
        for tau in range(5):
            a = ACC + (tau * 2 + 1) * 4
            e('ds_write_b128 v%d, v[%d:%d] offset:%d' % (vEXW, a, a + 3, tau * 1024))
        e.wait_lgkm0()
        e('s_barrier')
        for tau in range(5):
            e('ds_read_b128 v[%d:%d], v%d offset:%d' % (EX + 4 * tau, EX + 4 * tau + 3, vEXR, tau * 1024))
        U = 112
        for tau in range(5):
            a = ACC + (tau * 2) * 4
            for c in range(4):
                e('v_add_f32 v%d, v%d, v%d' % (U + 4 * tau + c, U + 4 * tau + c, a + c))
        for tau in range(5):
            for c in range(4):
                e('v_add_f32 v%d, v%d, v%d' % (U + 4 * tau + c, U + 4 * tau + c, EX + 4 * tau + c))
        for d in range(10): e('v_cvt_pk_bf16_f32 v%d, v%d, v%d' % (XR + d, U + 2 * d, U + 2 * d + 1))
        final()
    def bd_stats(self, base_off, next_layer):
        e = self.e
        S, Q = 136, 137
        e('v_mov_b32 v%d, 0\nv_mov_b32 v%d, 0' % (S, Q))
        for d in range(10):
            e('v_dot2c_f32_bf16 v%d, v%d, v%d' % (S, XR + d, vONES))
            e('v_dot2c_f32_bf16 v%d, v%d, v%d' % (Q, XR + d, XR + d))
        for sw in ('v_permlane16_swap_b32', 'v_permlane32_swap_b32'):
            e('v_mov_b32 v138, v%d\nv_mov_b32 v139, v%d' % (S, Q))
            e('%s v%d, v138\n%s v%d, v139' % (sw, S, sw, Q))
            e('v_add_f32 v%d, v%d, v138\nv_add_f32 v%d, v%d, v139' % (S, S, Q, Q))
        e('s_lshl_b32 s%d, s%d, 7\ns_lshl_b32 s%d, s%d, 14\ns_add_u32 s%d, s%d, s%d' % (sT2, sTTK, sT3, sCS, sT2, sT2, sT3))
        e('s_add_u32 s%d, s%d, s%d\ns_add_u32 s%d, s%d, 0x%x' % (sT2, sT2, sLOFF, sT2, sT2, base_off + (self.lstride if next_layer else 0)))
        if not self.o.get('nostats'): e('buffer_store_dwordx2 v[%d:%d], v%d, s[4:7], s%d offen sc1' % (S, Q, vST, sT2))
    def phase_b(self):
        e = self.e
        self.cnt(sT0, CNT_O, sRB)
        for (s, tt) in ((sB0, sTTK), (sB1, sTTS)):
            e('s_mul_i32 s%d, s%d, 20\ns_mul_i32 s%d, s%d, 10\ns_add_u32 s%d, s%d, s%d\ns_lshl_b32 s%d, s%d, 10' % (s, tt, sT1, sKH, s, s, sT1, s, s))
            e('s_add_u32 s%d, s%d, s%d\ns_add_u32 s%d, s%d, 0x%x' % (s, s, sLOFF, s, s, O))
        def tok(i, u):
            s = sB0 if u == 0 else sB1
            t = sC1 + u
            g = []
            if i % 4 == 0: g.append('s_add_u32 s%d, s%d, %d' % (t, s, i * 1024))
            g.append('buffer_load_dwordx4 a[%d:%d], v%d, s[4:7], s%d offen offset:%d%s' % ((2 * i + u) * 4, (2 * i + u) * 4 + 3, vL16, t, (i % 4) * 1024, self.sc))
            return g
        e.wait_tag('blk%d' % B0); e.wait_tag('blk%d' % (B0 + 1))
        self.poll(sT0)
        e('s_barrier')
        self.stamp(8)
        NPRE = self.o.get('b_npre', 10)
        for i in range(NPRE):
            for u in range(2): e.extend(tok(i, u))
        items = [(10 * i, 0, tok(i, 0) + tok(i, 1)) for i in range(NPRE, 10)]
        for k, b in enumerate(self.C_tail): items.append((5000 + b, 20 * (k + 1), self.flat(self.dma_ops(b))))
        vs = self.vm_stream(items)
        self.gemm_bd(B0, 10, vs, {}, Stream(self.bd_unpack(), 60))
        self.stamp(9)
        def final():
            e('s_mul_i32 s%d, s%d, 20480\ns_add_u32 s%d, s%d, s%d\ns_add_u32 s%d, s%d, 0x%x' % (sT0, sTTK, sT0, sT0, sLOFF, sT0, sT0, XC))
            e('buffer_store_dwordx4 v[%d:%d], v%d, s[4:7], s%d offen sc1' % (XR, XR + 3, vX0, sT0))
            e('buffer_store_dwordx4 v[%d:%d], v%d, s[4:7], s%d offen sc1' % (XR + 4, XR + 7, vX1, sT0))
            e('buffer_store_dwordx2 v[%d:%d], v%d, s[4:7], s%d offen sc1' % (XR + 8, XR + 9, vX2, sT0))
            self.bd_stats(SC, False)
            self.cnt(sT1, CNT_XC, sRB)
            self.signal(sT1)
            self.stamp(10)
            if self.o.get('ampre', 1): self.am_c()
            self.side_dma(self.C_side)
        self.bd_epilogue(B0 + 4, final)
        return self.maybe_stop('b')
    def gelu_ops(self, accset, u, c0, c1, vVE, HP, t):
        L = []
        G = [accset + (p * 2 + u) * 4 + c for p in range(2) for c in range(4)]
        U = [accset + ((2 + p) * 2 + u) * 4 + c for p in range(2) for c in range(4)]
        g = [t + i for i in range(8)]; w = [t + 8 + i for i in range(8)]
        for h in range(2):
            R = range(4 * h, 4 * h + 4)
            for i in R: L.append('v_mul_f32 v%d, v%d, v%d' % (w[i], G[i], G[i]))
            for i in R: L.append('v_fma_f32 v%d, v%d, v%d, v%d' % (w[i], w[i], c1, c0))
            for i in R: L.append('v_mul_f32 v%d, v%d, v%d' % (w[i], w[i], G[i]))
            for i in R:
                L.append('v_exp_f32 v%d, v%d' % (w[i], w[i]))
                L.append('v_mul_f32 v%d, v%d, v%d' % (g[i], G[i], U[i]))
            for i in R: L.append('v_fma_f32 v%d, v%d, v%d, v%d' % (w[i], w[i], vVE, vVE))
            for i in R: L.append('v_rcp_f32 v%d, v%d' % (w[i], w[i]))
            for i in R: L.append('v_mul_f32 v%d, v%d, v%d' % (g[i], g[i], w[i]))
            for d in (2 * h, 2 * h + 1): L.append('v_cvt_pk_bf16_f32 v%d, v%d, v%d' % (HP + d, g[2 * d], g[2 * d + 1]))
        return L
    def check_flag(self, vreg, cnt_sgpr, target=16):
        sub = Asm()
        X = self.lab('ck'); L = self.lab('ckl')
        sub('v_cmp_gt_u32 vcc, %d, v%d' % (target, vreg))
        sub('s_cbranch_vccz %s' % X)
        sub('s_cmp_lg_u32 s%d, 0' % sDEAD); sub('s_cbranch_scc1 %s' % X)
        sub('s_mov_b32 s%d, 0' % sPC)
        sub.label(L)
        sub('buffer_load_dword v%d, v%d, s[4:7], s%d offen sc1' % (vreg, vZERO, cnt_sgpr), count=False)
        sub('s_waitcnt vmcnt(0)', count=False)
        sub('v_cmp_gt_u32 vcc, %d, v%d' % (target, vreg))
        sub('s_cbranch_vccz %s' % X)
        sub('s_add_u32 s%d, s%d, 1' % (sPC, sPC)); sub('s_cmp_lt_u32 s%d, %d' % (sPC, SPIN_LIMIT))
        sub('s_cbranch_scc1 %s' % L)
        sub('s_mov_b32 s%d, 1' % sDEAD)
        sub.label(X)
        return sub.items
    def phase_c(self):
        e = self.e; o = self.o
        ST, RS, VE, BMs, AM, GT, HP = 112, (120, 121), (122, 123), (124, 132), 136, 152, (168, 172)
        GC0, GC1 = (176, 177), (178, 179)
        k0 = -2.0 * 0.7978845608028654 * LOG2E
        self.cnt(sT0, CNT_XC, sRB)
        e('s_lshl_b32 s%d, s%d, 3\ns_lshl_b32 s%d, s%d, 1\ns_add_u32 s%d, s%d, s%d' % (sT2, sRB, sT1, sW, sT2, sT2, sT1))
        e('s_lshl_b32 s%d, s%d, 7\ns_add_u32 s%d, s%d, s%d\ns_add_u32 s%d, s%d, 0x%x' % (sT1, sT2, sT1, sT1, sLOFF, sT1, sT1, SC))
        e('s_mul_i32 s%d, s%d, 20480\ns_add_u32 s%d, s%d, s%d\ns_add_u32 s%d, s%d, 0x%x' % (sB0, sT2, sB0, sB0, sLOFF, sB0, sB0, XC))
        e('s_add_u32 s%d, s%d, 20480' % (sB1, sB0))
        e('s_mul_i32 s%d, s%d, 48\ns_add_u32 s%d, s%d, s%d\ns_lshl_b32 s%d, s%d, 10' % (sTW, sT2, sTW, sTW, sJ, sTW, sTW))
        e('s_add_u32 s%d, s%d, s%d\ns_add_u32 s%d, s%d, 0x%x' % (sTW, sTW, sLOFF, sTW, sTW, HH))
        if not o.get('ampre', 1): e('s_mul_i32 s%d, s%d, %d\ns_add_u32 s%d, s%d, 0x%x' % (sT4, sJ, 12 * KB, sT4, sT4, WCM))
        self.poll(sT0)
        e('s_barrier')
        self.stamp(11)
        def tok(s, u):
            sb = sB0 if u == 0 else sB1; t = sC1 + u
            g = []
            if s % 4 == 0: g.append('s_add_u32 s%d, s%d, %d' % (t, sb, s * 1024))
            g.append('buffer_load_dwordx4 a[%d:%d], v%d, s[4:7], s%d offen offset:%d%s' % ((2 * s + u) * 4, (2 * s + u) * 4 + 3, vL16, t, (s % 4) * 1024, self.sc))
            return g
        NPRE = o.get('c_npre', 8)
        if o.get('tt', 0): e.extend(self.touch_tok(XC))
        for s in range(NPRE):
            for u in range(2): e.extend(tok(s, u))
        stld = []
        for k in range(2):
            if k: stld.append('s_add_u32 s%d, s%d, 16384' % (sT1, sT1))
            for u in range(2):
                stld.append('buffer_load_dwordx2 v[%d:%d], v%d, s[4:7], s%d offen offset:%d sc1' % (ST + 4 * u + 2 * k, ST + 4 * u + 2 * k + 1, vSC, sT1, 128 * u))
        def amload(sg):
            pre = [] if sg == 0 else ['s_add_u32 s%d, s%d, 4096' % (sT4, sT4)]
            return pre + ['buffer_load_dwordx4 v[%d:%d], v%d, s[4:7], s%d offen offset:%d' % (AM + 4 * t, AM + 4 * t + 3, vL16, sT4, t * 1024) for t in range(4)]
        st = []
        for u in range(2):
            b = ST + 4 * u
            st += ['v_add_f32 v%d, v%d, v%d' % (b, b, b + 2), 'v_add_f32 v%d, v%d, v%d' % (b + 1, b + 1, b + 3)]
            for sw in ('v_permlane16_swap_b32', 'v_permlane32_swap_b32'):
                st += ['v_mov_b32 v%d, v%d' % (b + 2, b), 'v_mov_b32 v%d, v%d' % (b + 3, b + 1),
                       '%s v%d, v%d' % (sw, b, b + 2), '%s v%d, v%d' % (sw, b + 1, b + 3),
                       'v_add_f32 v%d, v%d, v%d' % (b, b, b + 2), 'v_add_f32 v%d, v%d, v%d' % (b + 1, b + 1, b + 3)]
            st += self.rowstat_finish(b, b + 1, RS[u], VE[u], BMs[u], b + 2)
            st += ['v_mul_f32 v%d, %s, v%d' % (GC0[u], f32bits(k0), RS[u]),
                   'v_mul_f32 v%d, v%d, v%d' % (GC1[u], RS[u], RS[u]),
                   'v_mul_f32 v%d, v%d, v%d' % (GC1[u], GC1[u], GC0[u]),
                   'v_mul_f32 v%d, %s, v%d' % (GC1[u], f32bits(0.044715), GC1[u])]
        LA = 5
        def read(n): return self.ring_read(AF + 4 * (n % 8), C0 + n // 20, (n % 20) * 1024)
        def mf(n, u):
            sg, r = n // 80, n % 80; s, tl = r // 4, r % 4
            acc = ACC + 32 * (sg & 1) + (tl * 2 + u) * 4; a = AF + 4 * (n % 8); b = (2 * s + u) * 4
            c = '0' if s == 0 else 'v[%d:%d]' % (acc, acc + 3)
            return 'v_mfma_f32_16x16x32_bf16 v[%d:%d], v[%d:%d], a[%d:%d], %s' % (acc, acc + 3, a, a + 3, b, b + 3, c)
        def mean(sg):
            L = []
            for tl in range(4):
                for u in range(2):
                    acc = ACC + 32 * (sg & 1) + (tl * 2 + u) * 4
                    L.append('v_mfma_f32_16x16x32_bf16 v[%d:%d], v[%d:%d], v[%d:%d], v[%d:%d]' % (acc, acc + 3, AM + 4 * tl, AM + 4 * tl + 3, BMs[u], BMs[u] + 3, acc, acc + 3))
            return L
        def gelu_store(sg):
            L = []
            for u in range(2):
                L += self.gelu_ops(ACC + 32 * (sg & 1), u, GC0[u], GC1[u], VE[u], HP[u], GT)
                L.append('s_add_u32 s%d, s%d, %d' % (sT5, sTW, u * 48 * 1024 + sg * 16 * 1024))
                L.append(('buffer_store_dwordx4 v[%d:%d], v%d, s[4:7], s%d offen sc1' % (HP[u], HP[u] + 3, vL16, sT5), 'h%d' % sg))
            return L
        def ix(n): return 2 * n + 8 * (n // 80)
        items = [(ix(4 * s), 0, tok(s, 0) + tok(s, 1)) for s in range(NPRE, 20)]
        for b in self.C_in:
            dl = ix(20 * (b - C0 - 1)) - (8 if (b - C0 - 1) % 4 == 0 and b > C0 + 1 else 0)
            items.append((dl, 0, self.flat(self.dma_ops(b)), dl - o.get('c_lead', 40)))
        r8 = o.get('ring8', 1)
        last_in = o.get('c_lastblk', D0 + 5 if r8 else D0 + 3)
        for b in range(C0 + 6, last_in + 1):
            free = 20 * (b - C0 - 5)
            if r8 and b >= D0: free = o.get('c_x0', 100) + 20 * (b - D0) if b < D0 + 2 else 20 * (b - 20)
            epn = b - C0 - 1
            dl = ix(20 * epn) - (8 if epn % 4 == 0 else 0) if b < D0 else 100000 + b
            early = ix(free) - (8 if free % 80 == 0 else 0)
            key = max(early, ix(76)) + (0 if b < D0 else 1)
            items.append((dl, early, self.flat(self.dma_ops(b)), key))
        if not o.get('ampre', 1): items.append((ix(60), 0, amload(0)))
        if o.get('tw', 0): items.append((ix(90), ix(84), self.touch_w('D')))
        items.append((ix(o.get('c_stdl', 44)), 0, stld))
        items.append((ix(150), ix(80), amload(1), ix(80)))
        items.append((ix(230), ix(160), amload(2), ix(160)))
        self.cnt(sT0, CNT_H, sRB, mul=384)
        FL, CKC = o.get('c_fl', 190), o.get('c_ck', 206)
        items.append((ix(CKC) - 1, ix(FL), ['buffer_load_dword v%d, v%d, s[4:7], s%d offen sc1' % (vPOLL, vZERO, sT0)], ix(FL)))
        dtoks = [self.d_tok(i, u) for i in range(8) for u in range(2)]
        for k, g in enumerate(dtoks): items.append((90000 + k, ix(CKC), g, ix(CKC) + 0.01 * k))
        vs = self.vm_stream(items)
        e.wait_tag('blk%d' % C0); e.wait_tag('blk%d' % (C0 + 1))
        e('s_barrier')
        for n in range(LA): e(read(n))
        pos = 0; cstate = {}
        for sg in range(3):
            anchors = []; pre = {}; fixed = {}
            if sg > 0: anchors += mean(sg - 1)
            for n in range(80 * sg, 80 * sg + 80):
                assert pos + len(anchors) == ix(n)
                anchors += [mf(n, 0), mf(n, 1)]
                if n + LA < 240: fixed[ix(n)] = [read(n + LA)]
                if n + 1 < 240: fixed[ix(n) + 1] = [Need('v[%d:%d]' % (AF + 4 * ((n + 1) % 8), AF + 4 * ((n + 1) % 8) + 3))]
            for ep in range(4 * sg, 4 * sg + 4):
                if ep == 0: continue
                at = ix(20 * ep) - (8 if ep % 4 == 0 else 0)
                p = [W_tag('blk%d' % (C0 + ep + 1))] if ep < 11 else []
                if ep == o.get('h0ep', 9): p.append(W_tag('h0'))
                p.append('s_barrier')
                if self.o.get('fine') == 'c': p += self.stamp_items(19 + ep - 1)
                if ep == o.get('h0ep', 9):
                    sub = Main(None, self.o); sub.nlab = self.nlab + 1000
                    sub.signal_only(sT0)
                    p += sub.e.items
                pre[at] = p
            if sg == 2:
                sub = Main(None, self.o); sub.nlab = self.nlab + 4000
                sub.d_bases()
                pre[ix(CKC)] = pre.get(ix(CKC), []) + [W_vreg(vPOLL)] + self.check_flag(vPOLL, sT0) + sub.e.items
            valu = Stream(st, ix(o.get('c_stv', 56))) if sg == 0 else Stream(gelu_store(sg - 1), pos + 10)
            e.extend(schedule(anchors, 2, pre, fixed, [vs, valu], start=pos, vm_gap=(o.get('c_gap', 4) if sg == 0 else o.get('c_gap2', 4)), state=cstate))
            e.extend([y[0] for y in valu.q])
            pos += len(anchors)
        if self.o.get('verbose'): print('c forced', cstate.get('forced'), 'left', len(vs.q))
        self.stamp(12)
        tail = mean(2) + gelu_store(2)
        left = [y[0] for y in vs.q]; del vs.q[:]
        nvm = max(1, sum(1 for x in left if is_vm(x)))
        step = max(1, (len(tail) - 8) // (nvm + 1))
        for n, x in enumerate(tail):
            if left and n % step == 0:
                while left:
                    y = left.pop(0); e.extend([y])
                    if is_vm(y): break
            e.extend([x])
        e.extend(left)
        self.cnt(sT1, CNT_H, sRB, mul=384, add=256)
        self.signal(sT1)
        self.stamp(13)
        self.c_last = last_in
        return self.maybe_stop('c')
    def d_bases(self):
        e = self.e
        for (s, tt) in ((sB0, sTTK), (sB1, sTTS)):
            e('s_mul_i32 s%d, s%d, 48\ns_add_u32 s%d, s%d, s%d\ns_lshl_b32 s%d, s%d, 10' % (s, tt, s, s, sKH, s, s))
            e('s_add_u32 s%d, s%d, s%d\ns_add_u32 s%d, s%d, 0x%x' % (s, s, sLOFF, s, s, HH))
    def d_tok(self, i, u):
        sg, jj = i // 8, i % 8
        s = sB0 if u == 0 else sB1; t = sC1 + u
        g = []
        if jj % 2 == 0: g.append('s_add_u32 s%d, s%d, %d' % (t, s, sg * 16384 + jj * 2048))
        r = self.d_reg(i, u)
        g.append('buffer_load_dwordx4 a[%d:%d], v%d, s[4:7], s%d offen offset:%d%s' % (r, r + 3, vL16, t, (jj % 2) * 2048, self.sc))
        return g
    def d_reg(self, i, u):
        return 160 + (2 * i + u) * 4 if i < 8 else (2 * (i - 8) + u) * 4
    def phase_d(self):
        e = self.e; o = self.o
        tok = self.d_tok
        self.stamp(14)
        CK = o.get('d_ck', 3)
        items = []
        r8 = o.get('ring8', 1); nfree = 8 if r8 else 6
        assert not (r8 and self.A_tail)
        for b in range(self.c_last + 1, D0 + nfree): items.append((20 * (b - D0 - 1), 0, self.flat(self.dma_ops(b)), b - 200))
        for b in range(D0 + nfree, NBLK):
            early = 20 * (b - D0 - nfree + 1)
            key = (b - 200) if early < 20 * CK else 20 * (b - D0 - 1)
            items.append((20 * (b - D0 - 1), early, self.flat(self.dma_ops(b)), key))
        items.append((20 * CK - 1, 20 * CK - o.get('d_fl', 30), ['buffer_load_dword v%d, v%d, s[4:7], s%d offen sc1' % (vPOLL, vZERO, sT1)], -1))
        items += [(10 * i, 20 * CK, tok(i, 0) + tok(i, 1)) for i in range(8, 24)]
        if o.get('tw', 0): items.append((30, 0, self.touch_w('A'), -500))
        for b in self.A_tail: items.append((5000 + b, 20 * (6 + b), self.flat(self.dma_ops(b))))
        chk = [W_vreg(vPOLL)] + self.check_flag(vPOLL, sT1)
        self.gemm_bd(D0, 24, self.vm_stream(items), {CK: chk}, Stream(self.bd_unpack(), 200), self.d_reg)
        self.stamp(17)
        def final():
            L = self.lab('d_last'); X = self.lab('d_done')
            e('s_cmp_lg_u32 s%d, 0' % sL); e('s_cbranch_scc1 %s' % L)
            e('s_lshr_b32 s%d, s%d, 1\ns_mul_i32 s%d, s%d, 40960\ns_add_u32 s%d, s%d, s%d\ns_add_u32 s%d, s%d, 0x%x' % (sT0, sTTK, sT0, sT0, sT0, sT0, sLOFF, sT0, sT0, XA + self.lstride))
            e('buffer_store_dwordx4 v[%d:%d], v%d, s[4:7], s%d offen sc1' % (XR, XR + 3, vY0, sT0))
            e('buffer_store_dwordx4 v[%d:%d], v%d, s[4:7], s%d offen sc1' % (XR + 4, XR + 7, vY1, sT0))
            e('buffer_store_dwordx2 v[%d:%d], v%d, s[4:7], s%d offen sc1' % (XR + 8, XR + 9, vY2, sT0))
            self.bd_stats(SA, True)
            self.cnt(sT1, CNT_XA, sRB, next_layer=True)
            self.signal(sT1)
            self.stamp(18)
            if self.o.get('ampre', 1): self.am_a()
            self.side_dma(self.A_side)
            e('s_branch %s' % X)
            e.label(L)
            e('s_mul_i32 s%d, s%d, 20480\ns_mul_i32 s%d, s%d, 160\ns_add_u32 s%d, s%d, s%d' % (sT0, sTTK, sT1, sCS, sT0, sT0, sT1))
            e('buffer_store_dwordx4 v[%d:%d], v%d, s[12:15], s%d offen' % (XR, XR + 3, vR0, sT0))
            e('buffer_store_dwordx4 v[%d:%d], v%d, s[12:15], s%d offen offset:64' % (XR + 4, XR + 7, vR0, sT0))
            e('buffer_store_dwordx2 v[%d:%d], v%d, s[12:15], s%d offen' % (XR + 8, XR + 9, vR2, sT0))
            self.stamp(18)
            self.stamp_flush()
            e('s_endpgm')
            e.label(X)
        self.bd_epilogue(D0 + 11, final)
        return self.maybe_stop('d')
    def build(self):
        e = self.e
        self.prologue()
        e.label('M_LAYER')
        done = self.phase_a() or self.phase_b() or self.phase_c() or self.phase_d()
        if not done:
            e('s_add_u32 s%d, s%d, 1\ns_add_u32 s%d, s%d, 0x%x\ns_add_u32 s%d, s%d, 0x%x' % (sL, sL, sLOFF, sLOFF, self.lstride, sCNT, sCNT, CSTRIDE))
            e('s_branch M_LAYER')
        e.label('M_END')
        e('s_endpgm')
        e.label('M_CODE_END')
        return e
```

```python
from asmlib import *
from layout import *

NAME = 'hedgehog_main_kernel'
KNAME = 'interleave_layers__linear_kernel_hedgehog__geglu_ffn__prompt_kernel'
BLK = 20480
SCR = 6 * BLK
LDS_TOTAL = 163840
SPIN_LIMIT = 40000
LOG2E = 1.4426950408889634
TSOFF = 0x4000000

sW, sRB, sJ, sL, sLOFF, sW5K, sWA, sWB, sWC, sWD = range(16, 26)
sT0, sT1, sT2, sT3, sT4, sT5 = range(26, 32)
sDEAD, sPC, sPV, sCS, sTH, sTTK, sTTS, sKH = range(40, 48)
sDM = 48
sTW = 49
sB0, sB1 = 50, 51
sC1, sC2, sC3, sC4 = 52, 53, 54, 55
sEX, sEXD = 56, 57
sCNT = 3
sTA, sTB = 58, 59
vL16, vLANE, vONES, vZERO, vONE, vPOLL = 1, 2, 3, 4, 5, 6
vL16B, vK0, vK1 = 7, 8, 9
vT0, vT1, vT2, vT3, vT4 = 10, 11, 12, 13, 14
vEXR = 15
AF, ACC = 16, 48
vSA, vTW, vKA, vKB, vPS1, vPS2, vPL, vAW, vO0, vO1, vO2, vX0, vX1, vX2, vY0, vY1 = range(224, 240)
XR = 240
vY2, vR0, vR2, vST, vSC, vEXW = range(250, 256)
vAW2 = 221
vK2 = 218
vL128, vTCH = 220, 219

A0, B0, C0, D0, NBLK = 0, 8, 13, 25, 37
NSIDE_A, NSIDE_C = 4, 4

def f32bits(x):
    import struct
    return '0x%08x' % struct.unpack('<I', struct.pack('<f', x))[0]

def W_vreg(r):
    return 'v_mov_b32 v%d, v%d' % (r, r)

class Main:
    def __init__(self, stop=None, opts=None):
        self.e = Asm(); self.stop = stop; self.o = opts or {}
        self.sc = '' if self.o.get('nosc1') else ' sc1'
        self.nlab = 0
        self.lstride = 0 if self.o.get('reuse') else LSTRIDE
        self.name = KNAME if self.o.get('merged', 0) else NAME
        global NSIDE_A, NSIDE_C
        NSIDE_A = self.o.get('nsa', 4); NSIDE_C = self.o.get('nsc', 4)
        dt = self.o.get('d_tail', 0); bt = self.o.get('b_tail', 0)
        self.A_tail = list(range(1, 1 + dt))
        rest = [0] + list(range(1 + dt, 6))
        self.A_side, self.A_in = rest[:NSIDE_A], rest[NSIDE_A:]
        self.C_tail = list(range(C0 + 1, C0 + 1 + bt))
        rest = list(range(C0 + 1 + bt, C0 + 6))
        self.C_side, self.C_in = rest[:NSIDE_C], rest[NSIDE_C:]
    def lab(self, p):
        self.nlab += 1
        return 'M_%s_%d' % (p, self.nlab)
    def slot_of(self, b):
        if b >= D0 and self.o.get('ring8', 1):
            return {25: 6, 26: 7, 27: 1, 28: 2, 29: 3, 30: 4, 31: 5, 32: 0, 33: 6, 34: 7, 35: 1, 36: 2}[b]
        return b % 6
    def blk_src(self, b):
        if b < B0: return sWA, (b - A0) * BLK
        if b < C0: return sWB, (b - B0) * BLK
        if b < D0: return sWC, (b - C0) * BLK
        return sWD, (b - D0) * BLK
    def dma_ops(self, b, tag=None):
        nb = b % NBLK if b >= NBLK else b
        base, off = self.blk_src(nb)
        slot = self.slot_of(nb)
        tag = tag or 'blk%d' % nb
        g = []
        first = ['s_add_u32 m0, s%d, %d' % (sW5K, slot * BLK), 's_add_u32 s%d, s%d, %d' % (sDM, base, off),
                 ('buffer_load_dwordx4 v%d, s[4:7], s%d offen lds' % (vL16, sDM), tag)]
        g.append(first)
        for k in range(1, 4):
            g.append([('buffer_load_dwordx4 v%d, s[4:7], s%d offen offset:%d lds' % (vL16, sDM, k * 1024), tag)])
        g.append(['s_add_u32 m0, s%d, %d' % (sW5K, slot * BLK + 4096), 's_add_u32 s%d, s%d, %d' % (sDM, base, off + 4096),
                  ('buffer_load_dwordx4 v%d, s[4:7], s%d offen lds' % (vL16, sDM), tag)])
        return g
    def am_a(self):
        AM = 128; e = self.e
        e('s_lshl_b32 s%d, s%d, 12\ns_add_u32 s%d, s%d, 0x%x' % (sT2, sJ, sT2, sT2, WAM))
        for t in range(4): e('buffer_load_dwordx4 v[%d:%d], v%d, s[4:7], s%d offen offset:%d' % (AM + 4 * t, AM + 4 * t + 3, vL16, sT2, t * 1024))
    def am_c(self):
        AM = 136; e = self.e
        e('s_mul_i32 s%d, s%d, %d\ns_add_u32 s%d, s%d, 0x%x' % (sT4, sJ, 12 * KB, sT4, sT4, WCM))
        for t in range(4): e('buffer_load_dwordx4 v[%d:%d], v%d, s[4:7], s%d offen offset:%d' % (AM + 4 * t, AM + 4 * t + 3, vL16, sT4, t * 1024))
    def side_dma(self, blocks):
        e = self.e
        L = self.lab('side')
        e('s_cmp_eq_u32 s%d, 0' % sW); e('s_cbranch_scc1 %s' % L)
        for b in blocks:
            base, off = self.blk_src(b); slot = self.slot_of(b); tag = 'blk%d' % b
            ld = 'buffer_load_dwordx4 v%d, s[4:7], s%d offen%%s lds' % (vL16, sDM)
            e('s_add_u32 m0, s%d, %d' % (sW5K, slot * BLK)); e('s_add_u32 s%d, s%d, %d' % (sDM, base, off))
            for k in range(4): e.side(ld % (' offset:%d' % (k * 1024) if k else ''), tag)
            e('s_add_u32 m0, s%d, %d' % (sW5K, slot * BLK + 4096)); e('s_add_u32 s%d, s%d, %d' % (sDM, base, off + 4096))
            e.side(ld % '', tag)
            e('s_add_u32 m0, s%d, %d' % (sEX, slot * BLK)); e('s_add_u32 s%d, s%d, %d' % (sDM, base, off))
            e('s_add_u32 s%d, s%d, s%d' % (sDM, sDM, sEXD))
            e.side(ld % '', tag); e.side(ld % ' offset:1024', tag)
        e.label(L)
    def dma_items(self, b, earliest):
        out = []
        for g in self.dma_ops(b):
            for x in g: out.append((x, earliest))
        return out
    def touch(self, base_expr, nlines_wave, ninstr=1, sc=''):
        L = list(base_expr)
        L.append('s_mul_i32 s%d, s%d, %d' % (sTB, sW, nlines_wave * ninstr * 128))
        L.append('s_add_u32 s%d, s%d, s%d' % (sTA, sTA, sTB))
        if nlines_wave < 64:
            L.append('v_mov_b32 v%d, 0x%x' % (vT0, OOB))
            L.append('v_cmp_gt_u32 vcc, %d, v%d' % (nlines_wave, vLANE))
            L.append('v_cndmask_b32 v%d, v%d, v%d, vcc' % (vT0, vT0, vL128))
            va = vT0
        else: va = vL128
        for k in range(ninstr):
            if k: L.append('s_add_u32 s%d, s%d, %d' % (sTA, sTA, nlines_wave * 128))
            I = parse('buffer_load_dword v%d, v%d, s[4:7], s%d offen%s' % (vTCH, va, sTA, sc)); I.wr = set()
            L.append(I)
        return L
    def touch_w(self, which):
        if which == 'A':
            pre = ['s_lshr_b32 s%d, s%d, 2' % (sTA, sRB), 's_mul_i32 s%d, s%d, %d' % (sTA, sTA, 40 * KB), 's_add_u32 s%d, s%d, s%d' % (sTA, sTA, sWA), 's_sub_u32 s%d, s%d, s%d' % (sTA, sTA, sW5K)]
            return self.touch(pre, 40, 2)
        if which == 'C':
            pre = ['s_lshr_b32 s%d, s%d, 2' % (sTA, sRB), 's_mul_i32 s%d, s%d, %d' % (sTA, sTA, 60 * KB), 's_add_u32 s%d, s%d, s%d' % (sTA, sTA, sWC), 's_sub_u32 s%d, s%d, s%d' % (sTA, sTA, sW5K)]
            return self.touch(pre, 60, 2)
        idx = ['s_lshr_b32 s%d, s%d, 2' % (sTA, sRB), 's_lshl_b32 s%d, s%d, 1' % (sTA, sTA), 's_add_u32 s%d, s%d, s%d' % (sTA, sTA, sTH)]
        if which == 'B':
            return self.touch(idx + ['s_mul_i32 s%d, s%d, 12800' % (sTA, sTA), 's_add_u32 s%d, s%d, s%d' % (sTA, sTA, sWB), 's_sub_u32 s%d, s%d, s%d' % (sTA, sTA, sW5K)], 25, 1)
        if which == 'D':
            return self.touch(idx + ['s_mul_i32 s%d, s%d, 30720' % (sTA, sTA), 's_add_u32 s%d, s%d, s%d' % (sTA, sTA, sWD), 's_sub_u32 s%d, s%d, s%d' % (sTA, sTA, sW5K)], 60, 1)
    def touch_tok(self, base_off):
        pre = ['s_mul_i32 s%d, s%d, %d' % (sTA, sRB, 160 * KB), 's_lshr_b32 s%d, s%d, 1' % (sTB, sJ), 's_mul_i32 s%d, s%d, %d' % (sTB, sTB, 20 * KB),
               's_add_u32 s%d, s%d, s%d' % (sTA, sTA, sTB), 's_add_u32 s%d, s%d, s%d' % (sTA, sTA, sLOFF), 's_add_u32 s%d, s%d, 0x%x' % (sTA, sTA, base_off)]
        return self.touch(pre, 40, 1, ' sc1')
    def freed_by(self, c):
        if c <= NBLK - 7: return c + 6
        if c < NBLK - 1: return NBLK + (c - (NBLK - 7))
        return NBLK + 0
    def ring_read(self, dst, blk, off, kh=False):
        slot = self.slot_of(blk)
        base = (vK0 if kh else vL16) if slot < 3 else ((vK1 if kh else vL16B) if slot < 6 else vK2)
        assert slot < 6 or kh
        return 'ds_read_b128 v[%d:%d], v%d offset:%d' % (dst, dst + 3, base, (slot % 3) * BLK + off)
    def emit_next_layer_dma(self, b):
        e = self.e
        L = self.lab('nl')
        e('s_cmp_lg_u32 s%d, 0' % sL); e('s_cbranch_scc1 %s' % L)
        for g in self.dma_ops(b):
            for x in g:
                if isinstance(x, tuple): e(x[0], count=False)
                else: e(x)
        e.label(L)
    def signal(self, cnt_off_sgpr):
        e = self.e
        e.wait_all()
        e('s_barrier')
        self.signal_only(cnt_off_sgpr)
    def signal_only(self, cnt_off_sgpr):
        e = self.e
        L = self.lab('sig')
        e('s_cmp_lg_u32 s%d, 0' % sW); e('s_cbranch_scc1 %s' % L)
        e('s_mov_b64 exec, 1')
        e('buffer_atomic_add v%d, v%d, s[4:7], s%d offen sc1' % (vONE, vZERO, cnt_off_sgpr), count=False)
        e('s_mov_b64 exec, -1')
        e.label(L)
    def poll(self, cnt_off_sgpr, n=1, target=16, srd=4, stride=128):
        e = self.e
        L = self.lab('poll'); X = self.lab('got')
        e('s_cmp_lg_u32 s%d, 0' % sW); e('s_cbranch_scc1 %s' % X)
        e('s_cmp_lg_u32 s%d, 0' % sDEAD); e('s_cbranch_scc1 %s' % X)
        e('s_mov_b32 s%d, 0' % sPC)
        if n > 1:
            e('v_min_u32 v%d, %d, v%d' % (vT0, n - 1, vLANE)); e('v_mul_u32_u24 v%d, %d, v%d' % (vT0, stride, vT0))
        e.label(L)
        e('buffer_load_dword v%d, v%d, s[%d:%d], s%d offen sc1' % (vPOLL, vT0 if n > 1 else vZERO, srd, srd + 3, cnt_off_sgpr), count=False)
        e('s_waitcnt vmcnt(0)', count=False)
        e('v_cmp_gt_u32 vcc, %d, v%d' % (target, vPOLL))
        e('s_cbranch_vccz %s' % X)
        if self.o.get('psleep'): e('s_sleep %d' % self.o['psleep'])
        e('s_add_u32 s%d, s%d, 1' % (sPC, sPC)); e('s_cmp_lt_u32 s%d, %d' % (sPC, SPIN_LIMIT))
        e('s_cbranch_scc1 %s' % L)
        e('s_mov_b32 s%d, 1' % sDEAD)
        e.label(X)
    def cnt(self, dst, which, idx_sgpr, mul=128, add=0, next_layer=False):
        e = self.e
        e('s_mul_i32 s%d, s%d, %d' % (dst, idx_sgpr, mul))
        e('s_add_u32 s%d, s%d, s%d' % (dst, dst, sCNT))
        e('s_add_u32 s%d, s%d, 0x%x' % (dst, dst, which + add + (CSTRIDE if next_layer else 0)))
    def prologue(self):
        if self.o.get('merged', 0): return self.prologue_merged()
        e = self.e
        e.directive('.text\n.globl %s\n.p2align 8\n.type %s,@function' % (self.name, self.name))
        e.label(self.name)
        e('s_cmp_ge_u32 s2, 256'); e('s_cbranch_scc1 M_END')
        e('s_load_dwordx2 s[32:33], s[0:1], 0')
        e('s_load_dwordx2 s[34:35], s[0:1], 64')
        e('s_load_dwordx2 s[36:37], s[0:1], 80')
        self.entry_stamp()
        self.pro_scalars(); self.pro_lanes()
        e('s_waitcnt lgkmcnt(0)')
        self.mk_srd(4, 36, WS_BYTES)
        self.pro_tail(32, 34)
    def prologue_merged(self):
        import gen_prep as P
        e = self.e
        e.directive('.text\n.globl %s\n.p2align 8\n.type %s,@function' % (self.name, self.name))
        e.label(self.name)
        e('s_cmp_ge_u32 s2, 256'); e('s_cbranch_scc1 M_END')
        e('s_load_dwordx8 s[64:71], s[0:1], 0')
        e('s_load_dwordx4 s[72:75], s[0:1], 40')
        e('s_load_dwordx2 s[76:77], s[0:1], 56')
        e('s_load_dwordx2 s[78:79], s[0:1], 64')
        e('s_load_dwordx4 s[80:83], s[0:1], 72')
        self.entry_stamp()
        self.pro_scalars()
        e('s_waitcnt lgkmcnt(0)')
        self.mk_srd(4, 82, WS_BYTES)
        e('s_add_u32 s0, s2, 352\ns_sub_u32 s26, s2, 64\ns_cmp_ge_u32 s2, 160\ns_cselect_b32 s0, s26, s0\ns_cmp_lt_u32 s2, 96\ns_cselect_b32 s0, s2, s0')
        e('s_add_u32 s1, s2, 192')
        Lz = self.lab('nz')
        e('s_cmp_ge_u32 s2, 16'); e('s_cbranch_scc1 %s' % Lz)
        e('s_cmp_lg_u32 s%d, 0' % sW); e('s_cbranch_scc1 %s' % Lz)
        for k in range(4): e('v_mov_b32 v%d, 0' % (120 + k))
        e('s_lshl_b32 s26, s2, 11')
        e('buffer_store_dwordx4 v[120:123], v%d, s[4:7], s26 offen sc1' % vL16, count=False)
        e('buffer_store_dwordx4 v[120:123], v%d, s[4:7], s26 offen offset:1024 sc1' % vL16, count=False)
        e.label(Lz)
        r1 = P.Ren(e, 1, 0); r2 = P.Ren(e, 2, 1)
        L1, L2 = 0, 32768
        def dispatch(cases, sreg, tagp):
            end = self.lab(tagp)
            labs = [self.lab(tagp) for _ in cases]
            for (ub, _), lb in list(zip(cases, labs))[:-1]:
                e('s_cmp_lt_u32 s%d, %d' % (sreg, ub)); e('s_cbranch_scc1 %s' % lb)
            e('s_branch %s' % labs[-1])
            for (ub, fn), lb in zip(cases, labs):
                e.label(lb); e.reset_state(); fn()
                e.wait_lgkm0()
                e('s_branch %s' % end)
            e.label(end); e.reset_state()
        dispatch([(96, lambda: P.wa_issue(r1)), (288, lambda: P.wc_issue(r1, L1)), (None, lambda: P.x_issue(r1))], 0, 'i1')
        dispatch([(288, lambda: P.wc_issue(r2, L2)), (416, lambda: P.wd_issue(r2, L2)), (None, lambda: P.wb_issue(r2, L2))], 1, 'i2')
        if self.o.get('codepf', 1):
            Lp = self.lab('npf')
            e('s_cmp_ge_u32 s2, 64'); e('s_cbranch_scc1 %s' % Lp)
            e('s_getpc_b64 s[84:85]')
            e.label('M_PC')
            e('s_add_u32 s84, s84, (M_LAYER-M_PC)\ns_addc_u32 s85, s85, 0')
            e('v_lshlrev_b32 v124, 7, v0\nv_mov_b32 v125, (M_CODE_END-M_LAYER-4)\nv_add_u32 v126, 0x8000, v124')
            e('v_min_u32 v124, v124, v125\nv_min_u32 v126, v126, v125\nv_and_b32 v124, -4, v124\nv_and_b32 v126, -4, v126')
            e('global_load_dword v127, v124, s[84:85]', count=False)
            e('global_load_dword v127, v126, s[84:85]', count=False)
            e.label(Lp)
        self.mk_srd(84, 80, 256)
        Lf = self.lab('nf'); Lv = self.lab('nfv'); Lw = self.lab('nfw')
        e('s_cmp_ge_u32 s2, 16'); e('s_cbranch_scc1 %s' % Lf)
        e('s_cmp_lg_u32 s%d, 0' % sW); e('s_cbranch_scc1 %s' % Lf)
        npf = 2 if self.o.get('codepf', 1) else 0
        e('s_cmp_eq_u32 s31, 1'); e('s_cbranch_scc1 %s' % Lv)
        e('s_waitcnt vmcnt(%d)' % (22 + 5 + npf), count=False); e('s_branch %s' % Lw)
        e.label(Lv)
        e('s_waitcnt vmcnt(%d)' % (10 + 5 + npf), count=False)
        e.label(Lw)
        e('s_lshl_b32 s62, s2, 2\ns_mov_b64 exec, 1')
        e('buffer_store_dword v%d, v%d, s[84:87], s62 offen sc1' % (vONE, vZERO), count=False)
        e('s_mov_b64 exec, -1')
        self.stamp(27)
        e.label(Lf)
        e('s_waitcnt vmcnt(4)', count=False)
        self.stamp(19)
        dispatch([(96, lambda: P.wa_process(r1)), (288, lambda: P.wc_process(r1, L1)), (None, lambda: P.x_process(r1))], 0, 'p1')
        self.stamp(20)
        Lq = self.lab('zq')
        e('s_cmp_lg_u32 s%d, 0' % sW); e('s_cbranch_scc1 %s' % Lq)
        e('v_min_u32 v126, 15, v%d\nv_lshlrev_b32 v126, 2, v126' % vLANE)
        e('buffer_load_dword v%d, v126, s[84:87], 0 offen sc1' % vPOLL, count=False)
        e.label(Lq)
        e('s_waitcnt vmcnt(0) lgkmcnt(0)', count=False)
        e('s_barrier')
        self.stamp(26)
        def arrive(off, below=None):
            La = self.lab('arr')
            e('s_cmp_lg_u32 s%d, 0' % sW); e('s_cbranch_scc1 %s' % La)
            if below is not None:
                e('s_cmp_ge_u32 s2, %d' % below); e('s_cbranch_scc1 %s' % La)
            e('s_and_b32 s62, s2, 15\ns_lshl_b32 s62, s62, 7\ns_add_u32 s62, s62, 0x%x\ns_mov_b64 exec, 1' % off)
            e('buffer_atomic_add v%d, v%d, s[4:7], s62 offen sc1' % (vONE, vZERO), count=False)
            e('s_mov_b64 exec, -1')
            e.label(La)
        Lc = self.lab('zc'); Ls = self.lab('zcs')
        e('s_cmp_lg_u32 s%d, 0' % sW); e('s_cbranch_scc1 %s' % Lc)
        e('s_mov_b32 s%d, 0' % sPC)
        e.label(Ls)
        e('v_cmp_gt_u32 vcc, 1, v%d' % vPOLL)
        e('s_cbranch_vccz %s' % Lc)
        if self.o.get('zsleep'): e('s_sleep %d' % self.o['zsleep'])
        e('buffer_load_dword v%d, v126, s[84:87], 0 offen sc1' % vPOLL, count=False)
        e('s_waitcnt vmcnt(0)', count=False)
        e('s_add_u32 s%d, s%d, 1' % (sPC, sPC)); e('s_cmp_lt_u32 s%d, %d' % (sPC, SPIN_LIMIT)); e('s_cbranch_scc1 %s' % Ls)
        e('s_mov_b32 s%d, 1' % sDEAD)
        e.label(Lc)
        arrive(CNT_CRIT, 160)
        self.stamp(21)
        dispatch([(288, lambda: P.wc_process(r2, L2)), (416, lambda: P.wd_process(r2, L2)), (None, lambda: P.wb_process(r2, L2))], 1, 'p2')
        self.stamp(22)
        e('s_waitcnt vmcnt(0) lgkmcnt(0)', count=False)
        e('s_barrier')
        arrive(CNT_REST)
        self.stamp(25)
        self.pro_lanes()
        e('s_mov_b32 s%d, 0x%x' % (sT0, CNT_CRIT))
        self.stamp(23)
        self.poll(sT0, n=16, target=10)
        e('s_barrier')
        self.stamp(24)
        self.pro_tail(64, 78)
    def entry_stamp(self):
        if self.o.get('stamps'):
            self.e(('s_memtime' if self.o.get('cyc') else 's_memrealtime') + ' s[60:61]\ns_waitcnt lgkmcnt(0)\nv_mov_b32 v223, s60')
    def mk_srd(self, d, lo, n):
        self.e('s_mov_b32 s%d, s%d\ns_mov_b32 s%d, s%d\ns_mov_b32 s%d, 0x%x\ns_mov_b32 s%d, 0x20000' % (d, lo, d + 1, lo + 1, d + 2, n, d + 3))
    def pro_scalars(self):
        e = self.e
        e('v_lshrrev_b32 v10, 6, v0'); e('v_and_b32 v%d, 63, v0' % vLANE)
        e('v_readfirstlane_b32 s%d, v10' % sW)
        e('v_lshlrev_b32 v%d, 4, v%d' % (vL16, vLANE))
        e('s_and_b32 s%d, s2, 3\ns_lshr_b32 s26, s2, 6\ns_lshl_b32 s26, s26, 2\ns_or_b32 s%d, s%d, s26' % (sRB, sRB, sRB))
        e('s_lshr_b32 s%d, s2, 2\ns_and_b32 s%d, s%d, 15' % (sJ, sJ, sJ))
        e('s_and_b32 s%d, s%d, 7\ns_lshr_b32 s%d, s%d, 3' % (sCS, sJ, sTH, sJ))
        e('s_mul_i32 s%d, s%d, 5120' % (sW5K, sW))
        e('s_lshr_b32 s%d, s%d, 1' % (sKH, sW))
        for (s, idx, stride, base) in ((sWA, sJ, 160 * KB, WA), (sWB, sCS, 100 * KB, WB), (sWC, sJ, 240 * KB, WC), (sWD, sCS, 240 * KB, WD)):
            if self.o.get('wsame'): stride = 0
            e('s_mul_i32 s%d, s%d, %d\ns_add_u32 s%d, s%d, s%d\ns_add_u32 s%d, s%d, 0x%x' % (s, idx, stride, s, s, sW5K, s, s, base))
        e('s_lshl_b32 s%d, s%d, 3\ns_lshl_b32 s26, s%d, 2\ns_add_u32 s%d, s%d, s26' % (sTTK, sRB, sTH, sTTK, sTTK))
        e('s_and_b32 s26, s%d, 1\ns_lshl_b32 s26, s26, 1\ns_add_u32 s%d, s%d, s26\ns_add_u32 s%d, s%d, s%d' % (sW, sTTK, sTTK, sTTK, sTTK, sKH))
        e('s_xor_b32 s%d, s%d, 1' % (sTTS, sTTK))
        e('s_mov_b32 s%d, 0\ns_mov_b32 s%d, 0\ns_mov_b32 s%d, 0x%x' % (sDEAD, sL, sLOFF, LBASE))
        e('s_mov_b32 s%d, 0x%x' % (sCNT, CNT0))
        e('s_sub_u32 s%d, s%d, 1\ns_lshl_b32 s%d, s%d, 11\ns_sub_u32 s%d, s%d, s%d' % (sEX, sW, sEX, sEX, sEXD, sEX, sW5K))
        e('v_mov_b32 v%d, 0x3f803f80\nv_mov_b32 v%d, 0\nv_mov_b32 v%d, 1' % (vONES, vZERO, vONE))
    def pro_lanes(self):
        e = self.e
        e('v_add_u32 v%d, %d, v%d' % (vL16B, 3 * BLK, vL16))
        e('v_lshlrev_b32 v%d, 7, v%d' % (vL128, vLANE))
        e('s_mul_i32 s26, s%d, 5120\nv_add_u32 v%d, s26, v%d\nv_add_u32 v%d, %d, v%d' % (sKH, vK0, vL16, vK1, 3 * BLK, vK0))
        e('v_add_u32 v%d, %d, v%d' % (vK2, 6 * BLK, vK0))
        t32, hi, t16, q = 100, 101, 102, 103
        e('v_and_b32 v%d, 31, v%d\nv_lshrrev_b32 v%d, 5, v%d' % (t32, vLANE, hi, vLANE))
        e('v_and_b32 v%d, 15, v%d\nv_lshrrev_b32 v%d, 4, v%d' % (t16, vLANE, q, vLANE))
        e('v_mov_b32 v104, 0x%x' % OOB)
        e('v_lshlrev_b32 v%d, 3, v%d\nv_lshl_add_u32 v%d, v%d, 16, v%d' % (vSA, t32, vSA, hi, vSA))
        e('s_lshl_b32 s26, s%d, 5\nv_add_u32 v105, s26, v%d\nv_mul_u32_u24 v105, 144, v105' % (sW, t32))
        e('v_mul_u32_u24 v106, 18432, v%d\nv_add_u32 v105, v105, v106\nv_add_u32 v%d, 0x%x, v105' % (hi, vTW, SCR))
        e('v_lshrrev_b32 v105, 1, v%d\nv_bfe_u32 v106, v%d, 2, 2\nv_lshl_add_u32 v105, v105, 3, v106\nv_mul_u32_u24 v105, 144, v105' % (q, vLANE))
        e('v_and_b32 v106, 1, v%d\nv_lshlrev_b32 v106, 5, v106\nv_and_b32 v107, 3, v%d\nv_lshl_add_u32 v106, v107, 3, v106\nv_add_u32 v105, v105, v106' % (q, vLANE))
        e('s_lshr_b32 s26, s%d, 1\ns_mul_i32 s26, s26, 18432\ns_add_u32 s26, s26, 0x%x' % (sW, SCR))
        e('s_and_b32 s27, s%d, 1\ns_mul_i32 s28, s27, 40\ns_add_u32 s28, s28, s26\ns_add_u32 s29, s26, 80' % sW)
        e('v_add_u32 v%d, s28, v105\nv_add_u32 v%d, s29, v105' % (vKA, vKB))
        e('s_lshl_b32 s26, s%d, 10' % sW)
        e('v_mul_u32_u24 v105, 24, v%d\nv_add_u32 v105, v105, v%d\nv_lshlrev_b32 v105, 4, v105\nv_add_u32 v105, s26, v105' % (hi, t32))
        e('v_cmp_gt_u32 vcc, 24, v%d\nv_cndmask_b32 v%d, v104, v105, vcc' % (t32, vPS1))
        e('v_lshlrev_b32 v105, 3, v%d\nv_add_u32 v105, s26, v105\nv_add_u32 v105, 768, v105' % t32)
        e('v_cmp_eq_u32 vcc, 0, v%d\nv_cndmask_b32 v%d, v104, v105, vcc' % (hi, vPS2))
        e('v_mov_b32 v106, 84\nv_cmp_le_u32 s[30:31], v106, v0\nv_cndmask_b32 v106, 0, 1, s[30:31]')
        e('v_mul_u32_u24 v107, 84, v106\nv_sub_u32 v107, v0, v107')
        e('v_mul_u32_u24 v108, 391, v107\nv_lshrrev_b32 v108, 13, v108')
        e('v_mul_u32_u24 v109, 21, v108\nv_sub_u32 v109, v107, v109')
        e('v_subrev_u32 v110, 168, v0\nv_mul_u32_u24 v111, 391, v110\nv_lshrrev_b32 v111, 13, v111\nv_and_b32 v111, 3, v111')
        e('v_mul_u32_u24 v96, 21, v111\nv_sub_u32 v96, v110, v96')
        e('v_cmp_gt_u32 vcc, 168, v0')
        e('v_lshrrev_b32 v97, 1, v108\nv_lshl_add_u32 v97, v106, 1, v97\nv_lshlrev_b32 v97, 10, v97')
        e('v_and_b32 v98, 1, v108\nv_mul_u32_u24 v98, 24, v98\nv_add_u32 v98, v98, v109\nv_lshl_add_u32 v97, v98, 4, v97')
        e('v_lshlrev_b32 v98, 10, v111\nv_lshl_add_u32 v98, v96, 3, v98\nv_add_u32 v98, 768, v98')
        e('v_cndmask_b32 v97, v98, v97, vcc')
        e('v_mov_b32 v99, 252\nv_cmp_gt_u32 s[30:31], v99, v0\nv_cndmask_b32 v%d, v104, v97, s[30:31]' % vPL)
        e('v_lshrrev_b32 v97, 1, v111\nv_cndmask_b32 v106, v97, v106, vcc')
        e('v_cndmask_b32 v108, 4, v108, vcc\nv_cndmask_b32 v109, v96, v109, vcc')
        e('v_lshrrev_b32 v110, 4, v109\nv_mul_u32_u24 v110, 5, v110\nv_add_u32 v110, v110, v108')
        e('v_and_b32 v109, 15, v109\nv_lshrrev_b32 v97, 2, v109\nv_lshlrev_b32 v97, 3, v97\nv_and_b32 v109, 3, v109\nv_add_u32 v97, v97, v109')
        e('v_mul_u32_u24 v109, 36, v106\nv_add_u32 v97, v97, v109')
        e('v_lshlrev_b32 v97, 4, v97\nv_lshl_add_u32 v97, v110, 10, v97\nv_add_u32 v97, 0x%x, v97' % SCR)
        e('v_and_b32 v105, 63, v0\nv_lshlrev_b32 v105, 4, v105\nv_add_u32 v105, 0x%x, v105' % (SCR + 12288))
        e('v_cndmask_b32 v%d, v105, v97, vcc' % vAW)
        e('v_and_b32 v98, 1, v111\nv_lshl_add_u32 v97, v98, 3, v97')
        e('v_cndmask_b32 v97, v97, v105, vcc\nv_cndmask_b32 v%d, v105, v97, s[30:31]' % vAW2)
        e('s_mul_i32 s26, s%d, 5' % sJ)
        e('v_bfe_u32 v105, v%d, 4, 1\nv_mul_u32_u24 v105, 20480, v105\nv_lshl_add_u32 v105, v%d, 4, v105' % (vLANE, t16))
        for (dst, expr) in ((vO0, 0), (vO1, 1), (vO2, None)):
            if expr is not None:
                e('v_lshl_add_u32 v106, v%d, 1, s26\nv_add_u32 v106, %d, v106' % (hi, expr))
            else:
                e('v_mov_b32 v106, s26\nv_add_u32 v106, 4, v106')
            e('v_lshrrev_b32 v107, 2, v106\nv_lshl_add_u32 v107, v107, 10, v105\nv_and_b32 v106, 3, v106\nv_lshl_add_u32 v%d, v106, 8, v107' % dst)
        e('v_lshl_add_u32 v%d, v%d, 3, v%d' % (vO2, hi, vO2))
        e('s_mul_i32 s26, s%d, 10' % sCS)
        e('s_and_b32 s27, s%d, 1\ns_lshl_b32 s27, s27, 8' % sTTK)
        e('v_lshlrev_b32 v105, 4, v%d' % t16)
        for n, (dx, dy) in enumerate(((vX0, vY0), (vX1, vY1), (vX2, vY2))):
            if n < 2: e('v_add_u32 v106, s26, v%d\nv_add_u32 v106, %d, v106' % (q, 4 * n))
            else: e('v_lshrrev_b32 v106, 1, v%d\nv_add_u32 v106, s26, v106\nv_add_u32 v106, 8, v106' % q)
            e('v_lshrrev_b32 v107, 2, v106\nv_lshl_add_u32 v107, v107, 10, v105\nv_and_b32 v108, 3, v106\nv_lshl_add_u32 v%d, v108, 8, v107' % dx)
            e('v_lshrrev_b32 v107, 1, v106\nv_lshl_add_u32 v107, v107, 10, v105\nv_and_b32 v108, 1, v106\nv_lshl_add_u32 v107, v108, 9, v107\nv_add_u32 v%d, s27, v107' % dy)
        e('v_and_b32 v106, 1, v%d\nv_lshl_add_u32 v%d, v106, 3, v%d\nv_lshl_add_u32 v%d, v106, 3, v%d' % (q, vX2, vX2, vY2, vY2))
        e('v_mul_u32_u24 v105, 1280, v%d\nv_lshl_add_u32 v%d, v%d, 4, v105\nv_lshl_add_u32 v%d, v%d, 3, v105\nv_add_u32 v%d, 128, v%d' % (t16, vR0, q, vR2, q, vR2, vR2))
        e('v_lshlrev_b32 v105, 3, v%d\nv_cmp_eq_u32 vcc, 0, v%d\nv_cndmask_b32 v%d, v104, v105, vcc\nv_lshl_add_u32 v%d, v%d, 15, v105' % (t16, q, vST, vSC, q))
        e('s_add_u32 s26, s%d, 0x%x\nv_add_u32 v%d, s26, v%d' % (sW5K, SCR, vEXW, vL16))
        e('s_xor_b32 s27, s%d, 2\ns_mul_i32 s27, s27, 5120\ns_add_u32 s27, s27, 0x%x\nv_add_u32 v%d, s27, v%d' % (sW, SCR, vEXR, vL16))
    def pro_tail(self, xlo, olo):
        e = self.e
        self.mk_srd(8, xlo, T * 1280); self.mk_srd(12, olo, T * 1280)
        if self.o.get('ampre', 1): self.am_a()
        self.side_dma(self.A_side[:1])
        for b in self.A_tail:
            for g in self.dma_ops(b):
                for x in g:
                    if isinstance(x, tuple): e(x[0], count=False)
                    else: e(x)
        self.side_dma(self.A_side[1:])
        e('s_mul_i32 s26, s%d, 20480\ns_mul_i32 s27, s%d, 160\ns_add_u32 s26, s26, s27' % (sTTK, sCS))
        e('buffer_load_dwordx4 v[%d:%d], v%d, s[8:11], s26 offen' % (XR, XR + 3, vR0), count=False)
        e('buffer_load_dwordx4 v[%d:%d], v%d, s[8:11], s26 offen offset:64' % (XR + 4, XR + 7, vR0), count=False)
        e('buffer_load_dwordx2 v[%d:%d], v%d, s[8:11], s26 offen' % (XR + 8, XR + 9, vR2), count=False)
    def rowstat_finish(self, S, Q, vRS, vVE, BM, tmp):
        L = []
        L.append('v_mul_f32 v%d, %s, v%d' % (S, f32bits(1.0 / 640), S))
        L.append('v_mul_f32 v%d, %s, v%d' % (Q, f32bits(1.0 / 640), Q))
        L.append('v_fma_f32 v%d, -v%d, v%d, v%d' % (Q, S, S, Q))
        L.append('v_max_f32 v%d, 0, v%d' % (Q, Q))
        L.append('v_add_f32 v%d, %s, v%d' % (vVE, f32bits(1e-5), Q))
        L.append('v_rsq_f32 v%d, v%d' % (vRS, vVE))
        L.append('v_cvt_pk_bf16_f32 v%d, -v%d, -v%d' % (tmp, S, S))
        L.append('v_and_b32 v%d, 0xffff0000, v%d' % (tmp, tmp))
        L.append('v_sub_f32 v%d, -v%d, v%d' % (tmp, S, tmp))
        L.append('v_cvt_pk_bf16_f32 v%d, -v%d, v%d' % (BM, S, tmp))
        for k in range(1, 4): L.append('v_mov_b32 v%d, v%d' % (BM + k, BM))
        return L
    def softmax_pair(self, X, vC, EP, EM, t):
        L = []
        mx, mn, ap, am, sp, sm = range(t, t + 6)
        L.append('v_max3_f32 v%d, v%d, v%d, v%d' % (mx, X[0], X[1], X[2]))
        L.append('v_min3_f32 v%d, v%d, v%d, v%d' % (mn, X[0], X[1], X[2]))
        for k in range(3, 19, 2):
            L.append('v_max3_f32 v%d, v%d, v%d, v%d' % (mx, mx, X[k], X[k + 1]))
            L.append('v_min3_f32 v%d, v%d, v%d, v%d' % (mn, mn, X[k], X[k + 1]))
        L.append('v_max_f32 v%d, v%d, v%d' % (mx, mx, X[19]))
        L.append('v_min_f32 v%d, v%d, v%d' % (mn, mn, X[19]))
        L.append('v_mul_f32 v%d, v%d, v%d' % (ap, vC, mx))
        L.append('v_mul_f32 v%d, v%d, v%d' % (am, vC, mn))
        for f in range(20):
            L.append('v_fma_f32 v%d, v%d, v%d, -v%d' % (EP + f, X[f], vC, ap))
            L.append('v_fma_f32 v%d, -v%d, v%d, v%d' % (EM + f, X[f], vC, am))
        for f in range(20):
            L.append('v_exp_f32 v%d, v%d' % (EP + f, EP + f))
            L.append('v_exp_f32 v%d, v%d' % (EM + f, EM + f))
        L.append('v_add_f32 v%d, v%d, v%d' % (sp, EP, EP + 1))
        L.append('v_add_f32 v%d, v%d, v%d' % (sm, EM, EM + 1))
        for f in range(2, 20):
            L.append('v_add_f32 v%d, v%d, v%d' % (sp, sp, EP + f))
            L.append('v_add_f32 v%d, v%d, v%d' % (sm, sm, EM + f))
        L.append('v_rcp_f32 v%d, v%d' % (sp, sp))
        L.append('v_rcp_f32 v%d, v%d' % (sm, sm))
        for f in range(20):
            L.append('v_mul_f32 v%d, v%d, v%d' % (EP + f, EP + f, sp))
            L.append('v_mul_f32 v%d, v%d, v%d' % (EM + f, EM + f, sm))
        return L
    def stamp(self, k):
        if not self.o.get('stamps'): return
        e = self.e
        e('v_mov_b32 v222, s%d' % sL)
        e('v_lshlrev_b32 v222, 5, v222\nv_add_u32 v222, %d, v222' % k)
        e('v_cmp_eq_u32 vcc, v222, v%d' % vLANE)
        e('s_memtime s[58:59]' if self.o.get('cyc') else 's_memrealtime s[58:59]')
        e('s_waitcnt lgkmcnt(0)')
        e('v_mov_b32 v222, s58')
        e('v_cndmask_b32 v223, v223, v222, vcc')
    def stamp_items(self, k):
        if self.o.get('stamps') != 2: return []
        sub = Main(None, self.o); sub.stamp(k)
        return sub.e.items
    def stamp_flush(self):
        if not self.o.get('stamps'): return
        e = self.e
        e('s_lshl_b32 s62, s2, 2\ns_add_u32 s62, s62, s%d\ns_lshl_b32 s62, s62, 8\ns_add_u32 s62, s62, 0x%x' % (sW, TSOFF))
        e('v_lshlrev_b32 v%d, 2, v%d' % (vT0, vLANE))
        e('buffer_store_dword v223, v%d, s[4:7], s62 offen' % vT0)
    def maybe_stop(self, name):
        if self.stop == name:
            self.e.wait_all(); self.e('s_endpgm'); return True
        return False
    def vm_stream(self, items):
        st = Stream()
        for it in sorted(items, key=lambda x: x[3] if len(x) > 3 else x[0]):
            st.add(it[2], it[1], it[0])
        return st
    def flat(self, groups):
        return [x for g in groups for x in g]
    def phase_a(self):
        e = self.e; o = self.o
        T0, T1, T2, T3 = ACC, ACC + 16, ACC + 32, ACC + 48
        ST, vRS, vVE, vC, BM, AM, EP, EM, P = 112, 120, 121, 122, 124, 128, 144, 164, 184
        self.stamp(0)
        L = self.lab('a_nopoll')
        e('s_cmp_eq_u32 s%d, 0' % sL); e('s_cbranch_scc1 %s' % L)
        self.cnt(sT0, CNT_XA, sRB)
        self.poll(sT0)
        e('s_barrier')
        e.label(L)
        self.stamp(1)
        e('s_lshl_b32 s%d, s%d, 2\ns_add_u32 s%d, s%d, s%d' % (sT0, sRB, sT0, sT0, sW))
        e('s_lshl_b32 s%d, s%d, 8\ns_add_u32 s%d, s%d, s%d\ns_add_u32 s%d, s%d, 0x%x' % (sT1, sT0, sT1, sT1, sLOFF, sT1, sT1, SA))
        e('s_mul_i32 s%d, s%d, 40960\ns_add_u32 s%d, s%d, s%d\ns_add_u32 s%d, s%d, 0x%x' % (sTW, sT0, sTW, sTW, sLOFF, sTW, sTW, XA))
        def tok(s):
            g = []
            if s % 4 == 0: g.append('s_add_u32 s%d, s%d, %d' % (sB0, sTW, s * 1024))
            g.append('buffer_load_dwordx4 a[%d:%d], v%d, s[4:7], s%d offen offset:%d%s' % (4 * s, 4 * s + 3, vL16, sB0, (s % 4) * 1024, self.sc))
            return g
        NPRE = o.get('a_npre', 14)
        if o.get('tt', 0): e.extend(self.touch_tok(XA))
        for s in range(NPRE): e.extend(tok(s))
        stld = []
        for k in range(4):
            if k: stld.append('s_add_u32 s%d, s%d, 16384' % (sT1, sT1))
            stld.append('buffer_load_dwordx2 v[%d:%d], v%d, s[4:7], s%d offen sc1' % (ST + 2 * k, ST + 2 * k + 1, vSA, sT1))
        e('s_lshl_b32 s%d, s%d, 12\ns_add_u32 s%d, s%d, 0x%x' % (sT2, sJ, sT2, sT2, WAM))
        amload = ['buffer_load_dwordx4 v[%d:%d], v%d, s[4:7], s%d offen offset:%d' % (AM + 4 * t, AM + 4 * t + 3, vL16, sT2, t * 1024) for t in range(4)]
        st = []
        st += ['v_add_f32 v%d, v%d, v%d' % (ST, ST, ST + 2), 'v_add_f32 v%d, v%d, v%d' % (ST + 1, ST + 1, ST + 3),
               'v_add_f32 v%d, v%d, v%d' % (ST + 4, ST + 4, ST + 6), 'v_add_f32 v%d, v%d, v%d' % (ST + 5, ST + 5, ST + 7),
               'v_add_f32 v%d, v%d, v%d' % (ST, ST, ST + 4), 'v_add_f32 v%d, v%d, v%d' % (ST + 1, ST + 1, ST + 5),
               'v_mov_b32 v%d, v%d' % (ST + 2, ST), 'v_mov_b32 v%d, v%d' % (ST + 3, ST + 1),
               'v_permlane32_swap_b32 v%d, v%d' % (ST, ST + 2), 'v_permlane32_swap_b32 v%d, v%d' % (ST + 1, ST + 3),
               'v_add_f32 v%d, v%d, v%d' % (ST, ST, ST + 2), 'v_add_f32 v%d, v%d, v%d' % (ST + 1, ST + 1, ST + 3)]
        st += self.rowstat_finish(ST, ST + 1, vRS, vVE, BM, ST + 2)
        st += ['v_mul_f32 v%d, %s, v%d' % (vC, f32bits(LOG2E), vRS)]
        LA = 5
        def frag_info(n):
            if n < 120: return n // 3, n % 3
            return n - 120, 3
        def read(n): return self.ring_read(AF + 4 * (n % 8), A0 + n // 20, (n % 20) * 1024)
        def mfma(n):
            s, tau = frag_info(n); acc = ACC + 16 * tau; a = AF + 4 * (n % 8)
            c = '0' if s == 0 else 'v[%d:%d]' % (acc, acc + 15)
            return 'v_mfma_f32_32x32x16_bf16 v[%d:%d], v[%d:%d], a[%d:%d], %s' % (acc, acc + 15, a, a + 3, 4 * s, 4 * s + 3, c)
        def mean(tau):
            acc = ACC + 16 * tau
            return 'v_mfma_f32_32x32x16_bf16 v[%d:%d], v[%d:%d], v[%d:%d], v[%d:%d]' % (acc, acc + 15, AM + 4 * tau, AM + 4 * tau + 3, BM, BM + 3, acc, acc + 15)
        ksm = self.softmax_pair([T0 + r for r in range(16)] + [T1 + r for r in range(4)], vC, EP, EM, ST)
        for d in range(10): ksm.append('v_cvt_pk_bf16_f32 v%d, v%d, v%d' % (P + d, EP + 2 * d, EP + 2 * d + 1))
        for d in range(10): ksm.append('v_cvt_pk_bf16_f32 v%d, v%d, v%d' % (P + 10 + d, EM + 2 * d, EM + 2 * d + 1))
        V = [T1 + r for r in range(4, 16)] + [T2 + r for r in range(8)]
        for f in range(20): ksm.append('v_mul_f32 v%d, v%d, v%d' % (V[f], V[f], vRS))
        for d in range(10): ksm.append('v_cvt_pk_bf16_f32 v%d, v%d, v%d' % (P + 20 + d, V[2 * d], V[2 * d + 1]))
        ksm += ['v_mov_b32 v%d, 0x3f80' % (P + 30), 'v_mov_b32 v%d, 0' % (P + 31)]
        anchors = []; pre = {}; fixed = {}; idx = {}
        KF = o.get('kvfirst', 1)
        NF1 = 140 if KF else 160
        for n in range(NF1):
            if n == 120:
                idx['mean'] = len(anchors)
                anchors += [mean(t) for t in range(3)]
            idx[n] = len(anchors)
            anchors.append(mfma(n))
            fixed[idx[n]] = ([read(n + LA)] if n + LA < NF1 else []) + ([Need('v[%d:%d]' % (AF + 4 * ((n + 1) % 8), AF + 4 * ((n + 1) % 8) + 3))] if n + 1 < NF1 else [])
        if not KF: anchors.append(mean(3))
        for ep in range(1, 7 if KF else 8):
            at = idx['mean'] if ep == 6 else idx[20 * ep]
            pre[at] = ([W_tag('blk%d' % (A0 + ep + 1))] if ep < 7 else []) + ['s_barrier']
            if self.o.get('fine') == 'a': pre[at] += self.stamp_items(19 + ep - 1)
        items = [(3 * s, 0, tok(s)) for s in range(NPRE, 40)]
        if not o.get('ampre', 1): items.append((90, 0, amload))
        if o.get('tw', 0): items.append((30, 0, self.touch_w('B')))
        items.append((o.get('a_stdl', 64), 0, stld))
        for b in self.A_in: items.append((20 * (b - 1), 0, self.flat(self.dma_ops(b))))
        last_in = o.get('a_lastblk', 11)
        for b in range(6, last_in + 1):
            free = 20 * (b - 5) if b - 5 < 6 else idx['mean']
            assert not KF or b <= 11
            items.append((20 * (b - 1) if b < 8 else 200 + b, free, self.flat(self.dma_ops(b))))
        if o.get('merged', 0):
            sub = Main(None, self.o); sub.nlab = self.nlab + 2000; q = sub.e
            Lr = 'M_restld'
            q('s_cmp_lg_u32 s%d, 0' % sL); q('s_cbranch_scc1 %s' % Lr)
            q('v_min_u32 v%d, 15, v%d\nv_lshlrev_b32 v%d, 7, v%d\ns_mov_b32 s%d, 0x%x' % (vT1, vLANE, vT1, vT1, sT3, CNT_REST))
            q('buffer_load_dword v%d, v%d, s[4:7], s%d offen sc1' % (vPOLL, vT1, sT3), count=False)
            q.label(Lr)
            e.extend(q.items)
            sub = Main(None, self.o); sub.nlab = self.nlab + 3000; q = sub.e
            Lk = 'M_restok'; Ll = 'M_restsp'
            q('s_cmp_lg_u32 s%d, 0' % sL); q('s_cbranch_scc1 %s' % Lk)
            q('s_mov_b32 s%d, 0' % sPC)
            q.label(Ll)
            q('v_cmp_gt_u32 vcc, 16, v%d' % vPOLL)
            q('s_cbranch_vccz %s' % Lk)
            q('s_cmp_lg_u32 s%d, 0' % sDEAD); q('s_cbranch_scc1 %s' % Lk)
            q('buffer_load_dword v%d, v%d, s[4:7], s%d offen sc1' % (vPOLL, vT1, sT3), count=False)
            q('s_waitcnt vmcnt(0)', count=False)
            q('s_add_u32 s%d, s%d, 1' % (sPC, sPC)); q('s_cmp_lt_u32 s%d, %d' % (sPC, SPIN_LIMIT)); q('s_cbranch_scc1 %s' % Ll)
            q('s_mov_b32 s%d, 1' % sDEAD)
            q.label(Lk)
            pre[idx[60]] = q.items + pre[idx[60]]
        vs = self.vm_stream(items)
        valu = Stream(st, o.get('a_stv', 90)).add(ksm, idx[120] + 1)
        if o.get('fine') == 'a0': e.extend(self.stamp_items(19))
        e.wait_tag('blk0'); e.wait_tag('blk1')
        if self.A_tail:
            Lw = self.lab('a_l0w')
            e('s_cmp_lg_u32 s%d, 0' % sL); e('s_cbranch_scc1 %s' % Lw)
            e('s_waitcnt vmcnt(0)', count=False)
            e.label(Lw)
        e('s_barrier')
        if o.get('fine') == 'a0':
            e.extend(self.stamp_items(20))
            for k, at in enumerate((1, 3, 6, 9, 12, 15, 18)):
                pre[at] = pre.get(at, []) + self.stamp_items(21 + k)
        for n in range(LA): e(read(n))
        stt = {}
        e.extend(schedule(anchors, 5, pre, fixed, [vs, valu], vm_gap=o.get('a_gap', 2), state=stt))
        if o.get('verbose'): print('a forced', stt.get('forced'), 'left', len(vs.q), len(valu.q))
        e.extend([y[0] for y in vs.q]); e.extend([y[0] for y in valu.q])
        self.a_late = list(range(last_in + 1, 13))
        self.stamp(2)
        for m in range(8):
            e('ds_write_b128 v%d, v[%d:%d] offset:%d' % (vTW, P + 4 * m, P + 4 * m + 3, 16 * m))
        e.wait_lgkm0()
        e('s_barrier')
        KD = T0
        def kvread(ks):
            b = AF + 8 * (ks % 4)
            return ['ds_read_b64_tr_b16 v[%d:%d], v%d offset:%d' % (b, b + 1, vKA, ks * 2304),
                    'ds_read_b64_tr_b16 v[%d:%d], v%d offset:%d' % (b + 2, b + 3, vKA, ks * 2304 + 576),
                    'ds_read_b64_tr_b16 v[%d:%d], v%d offset:%d' % (b + 4, b + 5, vKB, ks * 2304),
                    'ds_read_b64_tr_b16 v[%d:%d], v%d offset:%d' % (b + 6, b + 7, vKB, ks * 2304 + 576)]
        for ks in range(3): e.extend(kvread(ks))
        for ks in range(8):
            if ks + 3 < 8: e.extend(kvread(ks + 3))
            b = AF + 8 * (ks % 4)
            e('v_mfma_f32_32x32x16_bf16 v[%d:%d], v[%d:%d], v[%d:%d], %s' % (KD, KD + 15, b, b + 3, b + 4, b + 7, '0' if ks == 0 else 'v[%d:%d]' % (KD, KD + 15)))
        PK = EP
        for d in range(6): e('v_cvt_pk_bf16_f32 v%d, v%d, v%d' % (PK + d, KD + 2 * d, KD + 2 * d + 1))
        e('s_lshl_b32 s%d, s%d, 4\ns_add_u32 s%d, s%d, s%d\ns_lshl_b32 s%d, s%d, 12' % (sT0, sJ, sT0, sT0, sRB, sT0, sT0))
        e('s_add_u32 s%d, s%d, s%d\ns_add_u32 s%d, s%d, 0x%x' % (sT0, sT0, sLOFF, sT0, sT0, KVP))
        if o.get('reuse'): e('s_lshl_b32 s%d, s%d, 20\ns_add_u32 s%d, s%d, s%d' % (sT3, sL, sT0, sT0, sT3))
        e('buffer_store_dwordx4 v[%d:%d], v%d, s[4:7], s%d offen sc1' % (PK, PK + 3, vPS1, sT0))
        e('buffer_store_dwordx2 v[%d:%d], v%d, s[4:7], s%d offen sc1' % (PK + 4, PK + 5, vPS2, sT0))
        self.cnt(sT1, CNT_KV, sJ)
        self.signal(sT1)
        self.stamp(3)
        if o.get('tw', 0): e.extend(self.touch_w('C'))
        self.side_dma(self.a_late)
        ZR = EM
        zf = ['v_mov_b32 v%d, 0' % (ZR + r) for r in range(4)]
        zf += ['v_lshlrev_b32 v%d, 4, v0' % vT1, 'v_add_u32 v%d, 0x%x, v%d' % (vT1, SCR, vT1)]
        zf += ['ds_write_b128 v%d, v[%d:%d] offset:%d' % (vT1, ZR, ZR + 3, m * 4096) for m in range(3)]
        if KF:
            an2 = []; fx2 = {}
            for n in range(NF1, NF1 + LA): e(read(n))
            for n in range(NF1, 160):
                fx2[len(an2)] = ([read(n + LA)] if n + LA < 160 else []) + ([Need('v[%d:%d]' % (AF + 4 * ((n + 1) % 8), AF + 4 * ((n + 1) % 8) + 3))] if n + 1 < 160 else [])
                an2.append(mfma(n))
            an2.append(mean(3))
            z = Stream(zf)
            e.extend(schedule(an2, 5, {}, fx2, [z]))
            e.extend([y[0] for y in z.q])
        else:
            e.extend(zf)
        Q = P
        X = [T2 + r for r in range(8, 16)] + [T3 + r for r in range(12)]
        e.extend(self.softmax_pair(X, vC, EP, EM, ST))
        order = []
        for sign in (EP, EM):
            order += [(sign + 0), (sign + 2), (sign + 8), (sign + 10), (sign + 4), (sign + 6), (sign + 12), (sign + 14)]
        order += [EP + 16, EP + 18, EM + 16, EM + 18]
        for d, r in enumerate(order): e('v_cvt_pk_bf16_f32 v%d, v%d, v%d' % (Q + d, r, r + 1))
        e.wait_lgkm0()
        self.stamp(4)
        self.poll(sT1)
        e('s_barrier')
        self.stamp(5)
        if self.maybe_stop('a1'): return True
        LD, SUM, PKK = 112, 176, 204
        e('s_lshl_b32 s%d, s%d, 16\ns_add_u32 s%d, s%d, s%d\ns_add_u32 s%d, s%d, 0x%x' % (sT0, sJ, sT0, sT0, sLOFF, sT0, sT0, KVP))
        if o.get('reuse'): e('s_lshl_b32 s%d, s%d, 20\ns_add_u32 s%d, s%d, s%d' % (sT3, sL, sT0, sT0, sT3))
        for p in range(16):
            if p: e('s_add_u32 s%d, s%d, 4096' % (sT0, sT0))
            e('buffer_load_dwordx4 v[%d:%d], v%d, s[4:7], s%d offen sc1' % (LD + 4 * p, LD + 4 * p + 3, vPL, sT0))
        e('v_mov_b32 v%d, 0x00003f80\nv_mov_b32 v%d, 0x3f800000' % (vT2, vT3))
        for k in range(8): e('v_mov_b32 v%d, 0' % (SUM + k))
        for p in range(16):
            for d in range(4):
                e('v_dot2c_f32_bf16 v%d, v%d, v%d' % (SUM + 2 * d, LD + 4 * p + d, vT2))
                e('v_dot2c_f32_bf16 v%d, v%d, v%d' % (SUM + 2 * d + 1, LD + 4 * p + d, vT3))
        for d in range(4): e('v_cvt_pk_bf16_f32 v%d, v%d, v%d' % (PKK + d, SUM + 2 * d, SUM + 2 * d + 1))
        e('ds_write_b128 v%d, v[%d:%d]' % (vAW, PKK, PKK + 3))
        e('ds_write_b64 v%d, v[%d:%d]' % (vAW2, PKK, PKK + 1))
        e.wait_lgkm0()
        e('s_barrier')
        e('v_add_u32 v%d, 0x%x, v%d' % (vT1, SCR, vL16))
        for n in range(8): e('ds_read_b128 v[%d:%d], v%d offset:%d' % (AF + 4 * n, AF + 4 * n + 3, vT1, n * 1024))
        G0, G1 = T0, T1
        for n in range(10):
            rho, s = n // 5, n % 5
            acc = G0 if rho == 0 else G1
            a = AF + 4 * (n % 8)
            e('v_mfma_f32_32x32x16_bf16 v[%d:%d], v[%d:%d], v[%d:%d], %s' % (acc, acc + 15, a, a + 3, Q + 4 * s, Q + 4 * s + 3, '0' if s == 0 else 'v[%d:%d]' % (acc, acc + 15)))
            if n < 2: e('ds_read_b128 v[%d:%d], v%d offset:%d' % (a, a + 3, vT1, (n + 8) * 1024))
        e('v_add_f32 v%d, %s, v%d' % (vT2, f32bits(1e-6), G1 + 4))
        e('v_rcp_f32 v%d, v%d' % (vT2, vT2))
        OP = 208
        src = [G0 + r for r in range(16)] + [G1 + r for r in range(4)]
        for r in src: e('v_mul_f32 v%d, v%d, v%d' % (r, r, vT2))
        for d in range(10): e('v_cvt_pk_bf16_f32 v%d, v%d, v%d' % (OP + d, src[2 * d], src[2 * d + 1]))
        e('s_lshl_b32 s%d, s%d, 3\ns_lshl_b32 s%d, s%d, 1\ns_add_u32 s%d, s%d, s%d\ns_mul_i32 s%d, s%d, 20480' % (sT0, sRB, sT1, sW, sT0, sT0, sT1, sT0, sT0))
        e('s_add_u32 s%d, s%d, s%d\ns_add_u32 s%d, s%d, 0x%x' % (sT0, sT0, sLOFF, sT0, sT0, O))
        e('buffer_store_dwordx4 v[%d:%d], v%d, s[4:7], s%d offen sc1' % (OP, OP + 3, vO0, sT0))
        e('buffer_store_dwordx4 v[%d:%d], v%d, s[4:7], s%d offen sc1' % (OP + 4, OP + 7, vO1, sT0))
        e('buffer_store_dwordx2 v[%d:%d], v%d, s[4:7], s%d offen sc1' % (OP + 8, OP + 9, vO2, sT0))
        self.stamp(6)
        self.cnt(sT1, CNT_O, sRB)
        self.signal(sT1)
        self.stamp(7)
        self.side_dma([C0])
        return self.maybe_stop('a')
    def gemm_bd(self, first_blk, nsteps, vs, pre_extra, valu, breg=None):
        e = self.e
        LA = 5
        nf = nsteps * 5
        def read(n):
            i, tau = n // 5, n % 5
            return self.ring_read(AF + 4 * (n % 8), first_blk + i // 2, (i & 1) * 10240 + tau * 1024, kh=True)
        def mf(n, u):
            i, tau = n // 5, n % 5
            acc = ACC + (tau * 2 + u) * 4; a = AF + 4 * (n % 8); b = breg(i, u) if breg else (2 * i + u) * 4
            c = '0' if i == 0 else 'v[%d:%d]' % (acc, acc + 3)
            return 'v_mfma_f32_16x16x32_bf16 v[%d:%d], v[%d:%d], a[%d:%d], %s' % (acc, acc + 3, a, a + 3, b, b + 3, c)
        anchors = []; pre = {}; fixed = {}
        for n in range(nf):
            anchors += [mf(n, 0), mf(n, 1)]
            if n + LA < nf: fixed[2 * n] = [read(n + LA)]
            if n + 1 < nf: fixed[2 * n + 1] = [Need('v[%d:%d]' % (AF + 4 * ((n + 1) % 8), AF + 4 * ((n + 1) % 8) + 3))]
        nep = nsteps // 2
        for ep in range(1, nep):
            pre[20 * ep] = list(pre_extra.get(ep, [])) + ([W_tag('blk%d' % (first_blk + ep + 1))] if ep + 1 < nep else []) + ['s_barrier']
            if self.o.get('fine') == 'd' and nsteps == 24: pre[20 * ep] += self.stamp_items(19 + ep - 1)
        for n in range(LA): e(read(n))
        stt = {}
        e.extend(schedule(anchors, 2, pre, fixed, [vs, valu], vm_gap=self.o.get('d_gap', 2), state=stt))
        if self.o.get('verbose'): print('bd forced', stt.get('forced'), 'left', len(vs.q), len(valu.q))
        e.extend([y[0] for y in vs.q]); e.extend([y[0] for y in valu.q])
    def bd_unpack(self):
        U = 112; L = []
        for d in range(10):
            L.append('v_lshlrev_b32 v%d, 16, v%d' % (U + 2 * d, XR + d))
            L.append('v_and_b32 v%d, 0xffff0000, v%d' % (U + 2 * d + 1, XR + d))
        return L
    def bd_epilogue(self, last_blk, final):
        e = self.e
        EX = 88
        for tau in range(5):
            a = ACC + (tau * 2 + 1) * 4
            e('ds_write_b128 v%d, v[%d:%d] offset:%d' % (vEXW, a, a + 3, tau * 1024))
        e.wait_lgkm0()
        e('s_barrier')
        for tau in range(5):
            e('ds_read_b128 v[%d:%d], v%d offset:%d' % (EX + 4 * tau, EX + 4 * tau + 3, vEXR, tau * 1024))
        U = 112
        for tau in range(5):
            a = ACC + (tau * 2) * 4
            for c in range(4):
                e('v_add_f32 v%d, v%d, v%d' % (U + 4 * tau + c, U + 4 * tau + c, a + c))
        for tau in range(5):
            for c in range(4):
                e('v_add_f32 v%d, v%d, v%d' % (U + 4 * tau + c, U + 4 * tau + c, EX + 4 * tau + c))
        for d in range(10): e('v_cvt_pk_bf16_f32 v%d, v%d, v%d' % (XR + d, U + 2 * d, U + 2 * d + 1))
        final()
    def bd_stats(self, base_off, next_layer):
        e = self.e
        S, Q = 136, 137
        e('v_mov_b32 v%d, 0\nv_mov_b32 v%d, 0' % (S, Q))
        for d in range(10):
            e('v_dot2c_f32_bf16 v%d, v%d, v%d' % (S, XR + d, vONES))
            e('v_dot2c_f32_bf16 v%d, v%d, v%d' % (Q, XR + d, XR + d))
        for sw in ('v_permlane16_swap_b32', 'v_permlane32_swap_b32'):
            e('v_mov_b32 v138, v%d\nv_mov_b32 v139, v%d' % (S, Q))
            e('%s v%d, v138\n%s v%d, v139' % (sw, S, sw, Q))
            e('v_add_f32 v%d, v%d, v138\nv_add_f32 v%d, v%d, v139' % (S, S, Q, Q))
        e('s_lshl_b32 s%d, s%d, 7\ns_lshl_b32 s%d, s%d, 14\ns_add_u32 s%d, s%d, s%d' % (sT2, sTTK, sT3, sCS, sT2, sT2, sT3))
        e('s_add_u32 s%d, s%d, s%d\ns_add_u32 s%d, s%d, 0x%x' % (sT2, sT2, sLOFF, sT2, sT2, base_off + (self.lstride if next_layer else 0)))
        if not self.o.get('nostats'): e('buffer_store_dwordx2 v[%d:%d], v%d, s[4:7], s%d offen sc1' % (S, Q, vST, sT2))
    def phase_b(self):
        e = self.e
        self.cnt(sT0, CNT_O, sRB)
        for (s, tt) in ((sB0, sTTK), (sB1, sTTS)):
            e('s_mul_i32 s%d, s%d, 20\ns_mul_i32 s%d, s%d, 10\ns_add_u32 s%d, s%d, s%d\ns_lshl_b32 s%d, s%d, 10' % (s, tt, sT1, sKH, s, s, sT1, s, s))
            e('s_add_u32 s%d, s%d, s%d\ns_add_u32 s%d, s%d, 0x%x' % (s, s, sLOFF, s, s, O))
        def tok(i, u):
            s = sB0 if u == 0 else sB1
            t = sC1 + u
            g = []
            if i % 4 == 0: g.append('s_add_u32 s%d, s%d, %d' % (t, s, i * 1024))
            g.append('buffer_load_dwordx4 a[%d:%d], v%d, s[4:7], s%d offen offset:%d%s' % ((2 * i + u) * 4, (2 * i + u) * 4 + 3, vL16, t, (i % 4) * 1024, self.sc))
            return g
        e.wait_tag('blk%d' % B0); e.wait_tag('blk%d' % (B0 + 1))
        self.poll(sT0)
        e('s_barrier')
        self.stamp(8)
        NPRE = self.o.get('b_npre', 10)
        for i in range(NPRE):
            for u in range(2): e.extend(tok(i, u))
        items = [(10 * i, 0, tok(i, 0) + tok(i, 1)) for i in range(NPRE, 10)]
        for k, b in enumerate(self.C_tail): items.append((5000 + b, 20 * (k + 1), self.flat(self.dma_ops(b))))
        vs = self.vm_stream(items)
        self.gemm_bd(B0, 10, vs, {}, Stream(self.bd_unpack(), 60))
        self.stamp(9)
        def final():
            e('s_mul_i32 s%d, s%d, 20480\ns_add_u32 s%d, s%d, s%d\ns_add_u32 s%d, s%d, 0x%x' % (sT0, sTTK, sT0, sT0, sLOFF, sT0, sT0, XC))
            e('buffer_store_dwordx4 v[%d:%d], v%d, s[4:7], s%d offen sc1' % (XR, XR + 3, vX0, sT0))
            e('buffer_store_dwordx4 v[%d:%d], v%d, s[4:7], s%d offen sc1' % (XR + 4, XR + 7, vX1, sT0))
            e('buffer_store_dwordx2 v[%d:%d], v%d, s[4:7], s%d offen sc1' % (XR + 8, XR + 9, vX2, sT0))
            self.bd_stats(SC, False)
            self.cnt(sT1, CNT_XC, sRB)
            self.signal(sT1)
            self.stamp(10)
            if self.o.get('ampre', 1): self.am_c()
            self.side_dma(self.C_side)
        self.bd_epilogue(B0 + 4, final)
        return self.maybe_stop('b')
    def gelu_ops(self, accset, u, c0, c1, vVE, HP, t):
        L = []
        G = [accset + (p * 2 + u) * 4 + c for p in range(2) for c in range(4)]
        U = [accset + ((2 + p) * 2 + u) * 4 + c for p in range(2) for c in range(4)]
        g = [t + i for i in range(8)]; w = [t + 8 + i for i in range(8)]
        for h in range(2):
            R = range(4 * h, 4 * h + 4)
            for i in R: L.append('v_mul_f32 v%d, v%d, v%d' % (w[i], G[i], G[i]))
            for i in R: L.append('v_fma_f32 v%d, v%d, v%d, v%d' % (w[i], w[i], c1, c0))
            for i in R: L.append('v_mul_f32 v%d, v%d, v%d' % (w[i], w[i], G[i]))
            for i in R:
                L.append('v_exp_f32 v%d, v%d' % (w[i], w[i]))
                L.append('v_mul_f32 v%d, v%d, v%d' % (g[i], G[i], U[i]))
            for i in R: L.append('v_fma_f32 v%d, v%d, v%d, v%d' % (w[i], w[i], vVE, vVE))
            for i in R: L.append('v_rcp_f32 v%d, v%d' % (w[i], w[i]))
            for i in R: L.append('v_mul_f32 v%d, v%d, v%d' % (g[i], g[i], w[i]))
            for d in (2 * h, 2 * h + 1): L.append('v_cvt_pk_bf16_f32 v%d, v%d, v%d' % (HP + d, g[2 * d], g[2 * d + 1]))
        return L
    def check_flag(self, vreg, cnt_sgpr, target=16):
        sub = Asm()
        X = self.lab('ck'); L = self.lab('ckl')
        sub('v_cmp_gt_u32 vcc, %d, v%d' % (target, vreg))
        sub('s_cbranch_vccz %s' % X)
        sub('s_cmp_lg_u32 s%d, 0' % sDEAD); sub('s_cbranch_scc1 %s' % X)
        sub('s_mov_b32 s%d, 0' % sPC)
        sub.label(L)
        sub('buffer_load_dword v%d, v%d, s[4:7], s%d offen sc1' % (vreg, vZERO, cnt_sgpr), count=False)
        sub('s_waitcnt vmcnt(0)', count=False)
        sub('v_cmp_gt_u32 vcc, %d, v%d' % (target, vreg))
        sub('s_cbranch_vccz %s' % X)
        sub('s_add_u32 s%d, s%d, 1' % (sPC, sPC)); sub('s_cmp_lt_u32 s%d, %d' % (sPC, SPIN_LIMIT))
        sub('s_cbranch_scc1 %s' % L)
        sub('s_mov_b32 s%d, 1' % sDEAD)
        sub.label(X)
        return sub.items
    def phase_c(self):
        e = self.e; o = self.o
        ST, RS, VE, BMs, AM, GT, HP = 112, (120, 121), (122, 123), (124, 132), 136, 152, (168, 172)
        GC0, GC1 = (176, 177), (178, 179)
        k0 = -2.0 * 0.7978845608028654 * LOG2E
        self.cnt(sT0, CNT_XC, sRB)
        e('s_lshl_b32 s%d, s%d, 3\ns_lshl_b32 s%d, s%d, 1\ns_add_u32 s%d, s%d, s%d' % (sT2, sRB, sT1, sW, sT2, sT2, sT1))
        e('s_lshl_b32 s%d, s%d, 7\ns_add_u32 s%d, s%d, s%d\ns_add_u32 s%d, s%d, 0x%x' % (sT1, sT2, sT1, sT1, sLOFF, sT1, sT1, SC))
        e('s_mul_i32 s%d, s%d, 20480\ns_add_u32 s%d, s%d, s%d\ns_add_u32 s%d, s%d, 0x%x' % (sB0, sT2, sB0, sB0, sLOFF, sB0, sB0, XC))
        e('s_add_u32 s%d, s%d, 20480' % (sB1, sB0))
        e('s_mul_i32 s%d, s%d, 48\ns_add_u32 s%d, s%d, s%d\ns_lshl_b32 s%d, s%d, 10' % (sTW, sT2, sTW, sTW, sJ, sTW, sTW))
        e('s_add_u32 s%d, s%d, s%d\ns_add_u32 s%d, s%d, 0x%x' % (sTW, sTW, sLOFF, sTW, sTW, HH))
        if not o.get('ampre', 1): e('s_mul_i32 s%d, s%d, %d\ns_add_u32 s%d, s%d, 0x%x' % (sT4, sJ, 12 * KB, sT4, sT4, WCM))
        self.poll(sT0)
        e('s_barrier')
        self.stamp(11)
        def tok(s, u):
            sb = sB0 if u == 0 else sB1; t = sC1 + u
            g = []
            if s % 4 == 0: g.append('s_add_u32 s%d, s%d, %d' % (t, sb, s * 1024))
            g.append('buffer_load_dwordx4 a[%d:%d], v%d, s[4:7], s%d offen offset:%d%s' % ((2 * s + u) * 4, (2 * s + u) * 4 + 3, vL16, t, (s % 4) * 1024, self.sc))
            return g
        NPRE = o.get('c_npre', 8)
        if o.get('tt', 0): e.extend(self.touch_tok(XC))
        for s in range(NPRE):
            for u in range(2): e.extend(tok(s, u))
        stld = []
        for k in range(2):
            if k: stld.append('s_add_u32 s%d, s%d, 16384' % (sT1, sT1))
            for u in range(2):
                stld.append('buffer_load_dwordx2 v[%d:%d], v%d, s[4:7], s%d offen offset:%d sc1' % (ST + 4 * u + 2 * k, ST + 4 * u + 2 * k + 1, vSC, sT1, 128 * u))
        def amload(sg):
            pre = [] if sg == 0 else ['s_add_u32 s%d, s%d, 4096' % (sT4, sT4)]
            return pre + ['buffer_load_dwordx4 v[%d:%d], v%d, s[4:7], s%d offen offset:%d' % (AM + 4 * t, AM + 4 * t + 3, vL16, sT4, t * 1024) for t in range(4)]
        st = []
        for u in range(2):
            b = ST + 4 * u
            st += ['v_add_f32 v%d, v%d, v%d' % (b, b, b + 2), 'v_add_f32 v%d, v%d, v%d' % (b + 1, b + 1, b + 3)]
            for sw in ('v_permlane16_swap_b32', 'v_permlane32_swap_b32'):
                st += ['v_mov_b32 v%d, v%d' % (b + 2, b), 'v_mov_b32 v%d, v%d' % (b + 3, b + 1),
                       '%s v%d, v%d' % (sw, b, b + 2), '%s v%d, v%d' % (sw, b + 1, b + 3),
                       'v_add_f32 v%d, v%d, v%d' % (b, b, b + 2), 'v_add_f32 v%d, v%d, v%d' % (b + 1, b + 1, b + 3)]
            st += self.rowstat_finish(b, b + 1, RS[u], VE[u], BMs[u], b + 2)
            st += ['v_mul_f32 v%d, %s, v%d' % (GC0[u], f32bits(k0), RS[u]),
                   'v_mul_f32 v%d, v%d, v%d' % (GC1[u], RS[u], RS[u]),
                   'v_mul_f32 v%d, v%d, v%d' % (GC1[u], GC1[u], GC0[u]),
                   'v_mul_f32 v%d, %s, v%d' % (GC1[u], f32bits(0.044715), GC1[u])]
        LA = 5
        def read(n): return self.ring_read(AF + 4 * (n % 8), C0 + n // 20, (n % 20) * 1024)
        def mf(n, u):
            sg, r = n // 80, n % 80; s, tl = r // 4, r % 4
            acc = ACC + 32 * (sg & 1) + (tl * 2 + u) * 4; a = AF + 4 * (n % 8); b = (2 * s + u) * 4
            c = '0' if s == 0 else 'v[%d:%d]' % (acc, acc + 3)
            return 'v_mfma_f32_16x16x32_bf16 v[%d:%d], v[%d:%d], a[%d:%d], %s' % (acc, acc + 3, a, a + 3, b, b + 3, c)
        def mean(sg):
            L = []
            for tl in range(4):
                for u in range(2):
                    acc = ACC + 32 * (sg & 1) + (tl * 2 + u) * 4
                    L.append('v_mfma_f32_16x16x32_bf16 v[%d:%d], v[%d:%d], v[%d:%d], v[%d:%d]' % (acc, acc + 3, AM + 4 * tl, AM + 4 * tl + 3, BMs[u], BMs[u] + 3, acc, acc + 3))
            return L
        def gelu_store(sg):
            L = []
            for u in range(2):
                L += self.gelu_ops(ACC + 32 * (sg & 1), u, GC0[u], GC1[u], VE[u], HP[u], GT)
                L.append('s_add_u32 s%d, s%d, %d' % (sT5, sTW, u * 48 * 1024 + sg * 16 * 1024))
                L.append(('buffer_store_dwordx4 v[%d:%d], v%d, s[4:7], s%d offen sc1' % (HP[u], HP[u] + 3, vL16, sT5), 'h%d' % sg))
            return L
        def ix(n): return 2 * n + 8 * (n // 80)
        items = [(ix(4 * s), 0, tok(s, 0) + tok(s, 1)) for s in range(NPRE, 20)]
        for b in self.C_in:
            dl = ix(20 * (b - C0 - 1)) - (8 if (b - C0 - 1) % 4 == 0 and b > C0 + 1 else 0)
            items.append((dl, 0, self.flat(self.dma_ops(b)), dl - o.get('c_lead', 40)))
        r8 = o.get('ring8', 1)
        last_in = o.get('c_lastblk', D0 + 5 if r8 else D0 + 3)
        for b in range(C0 + 6, last_in + 1):
            free = 20 * (b - C0 - 5)
            if r8 and b >= D0: free = o.get('c_x0', 100) + 20 * (b - D0) if b < D0 + 2 else 20 * (b - 20)
            epn = b - C0 - 1
            dl = ix(20 * epn) - (8 if epn % 4 == 0 else 0) if b < D0 else 100000 + b
            early = ix(free) - (8 if free % 80 == 0 else 0)
            key = max(early, ix(76)) + (0 if b < D0 else 1)
            items.append((dl, early, self.flat(self.dma_ops(b)), key))
        if not o.get('ampre', 1): items.append((ix(60), 0, amload(0)))
        if o.get('tw', 0): items.append((ix(90), ix(84), self.touch_w('D')))
        items.append((ix(o.get('c_stdl', 44)), 0, stld))
        items.append((ix(150), ix(80), amload(1), ix(80)))
        items.append((ix(230), ix(160), amload(2), ix(160)))
        self.cnt(sT0, CNT_H, sRB, mul=384)
        FL, CKC = o.get('c_fl', 190), o.get('c_ck', 206)
        items.append((ix(CKC) - 1, ix(FL), ['buffer_load_dword v%d, v%d, s[4:7], s%d offen sc1' % (vPOLL, vZERO, sT0)], ix(FL)))
        dtoks = [self.d_tok(i, u) for i in range(8) for u in range(2)]
        for k, g in enumerate(dtoks): items.append((90000 + k, ix(CKC), g, ix(CKC) + 0.01 * k))
        vs = self.vm_stream(items)
        e.wait_tag('blk%d' % C0); e.wait_tag('blk%d' % (C0 + 1))
        e('s_barrier')
        for n in range(LA): e(read(n))
        pos = 0; cstate = {}
        for sg in range(3):
            anchors = []; pre = {}; fixed = {}
            if sg > 0: anchors += mean(sg - 1)
            for n in range(80 * sg, 80 * sg + 80):
                assert pos + len(anchors) == ix(n)
                anchors += [mf(n, 0), mf(n, 1)]
                if n + LA < 240: fixed[ix(n)] = [read(n + LA)]
                if n + 1 < 240: fixed[ix(n) + 1] = [Need('v[%d:%d]' % (AF + 4 * ((n + 1) % 8), AF + 4 * ((n + 1) % 8) + 3))]
            for ep in range(4 * sg, 4 * sg + 4):
                if ep == 0: continue
                at = ix(20 * ep) - (8 if ep % 4 == 0 else 0)
                p = [W_tag('blk%d' % (C0 + ep + 1))] if ep < 11 else []
                if ep == o.get('h0ep', 9): p.append(W_tag('h0'))
                p.append('s_barrier')
                if self.o.get('fine') == 'c': p += self.stamp_items(19 + ep - 1)
                if ep == o.get('h0ep', 9):
                    sub = Main(None, self.o); sub.nlab = self.nlab + 1000
                    sub.signal_only(sT0)
                    p += sub.e.items
                pre[at] = p
            if sg == 2:
                sub = Main(None, self.o); sub.nlab = self.nlab + 4000
                sub.d_bases()
                pre[ix(CKC)] = pre.get(ix(CKC), []) + [W_vreg(vPOLL)] + self.check_flag(vPOLL, sT0) + sub.e.items
            valu = Stream(st, ix(o.get('c_stv', 56))) if sg == 0 else Stream(gelu_store(sg - 1), pos + 10)
            e.extend(schedule(anchors, 2, pre, fixed, [vs, valu], start=pos, vm_gap=(o.get('c_gap', 4) if sg == 0 else o.get('c_gap2', 4)), state=cstate))
            e.extend([y[0] for y in valu.q])
            pos += len(anchors)
        if self.o.get('verbose'): print('c forced', cstate.get('forced'), 'left', len(vs.q))
        self.stamp(12)
        tail = mean(2) + gelu_store(2)
        left = [y[0] for y in vs.q]; del vs.q[:]
        nvm = max(1, sum(1 for x in left if is_vm(x)))
        step = max(1, (len(tail) - 8) // (nvm + 1))
        for n, x in enumerate(tail):
            if left and n % step == 0:
                while left:
                    y = left.pop(0); e.extend([y])
                    if is_vm(y): break
            e.extend([x])
        e.extend(left)
        self.cnt(sT1, CNT_H, sRB, mul=384, add=256)
        self.signal(sT1)
        self.stamp(13)
        self.c_last = last_in
        return self.maybe_stop('c')
    def d_bases(self):
        e = self.e
        for (s, tt) in ((sB0, sTTK), (sB1, sTTS)):
            e('s_mul_i32 s%d, s%d, 48\ns_add_u32 s%d, s%d, s%d\ns_lshl_b32 s%d, s%d, 10' % (s, tt, s, s, sKH, s, s))
            e('s_add_u32 s%d, s%d, s%d\ns_add_u32 s%d, s%d, 0x%x' % (s, s, sLOFF, s, s, HH))
    def d_tok(self, i, u):
        sg, jj = i // 8, i % 8
        s = sB0 if u == 0 else sB1; t = sC1 + u
        g = []
        if jj % 2 == 0: g.append('s_add_u32 s%d, s%d, %d' % (t, s, sg * 16384 + jj * 2048))
        r = self.d_reg(i, u)
        g.append('buffer_load_dwordx4 a[%d:%d], v%d, s[4:7], s%d offen offset:%d%s' % (r, r + 3, vL16, t, (jj % 2) * 2048, self.sc))
        return g
    def d_reg(self, i, u):
        return 160 + (2 * i + u) * 4 if i < 8 else (2 * (i - 8) + u) * 4
    def phase_d(self):
        e = self.e; o = self.o
        tok = self.d_tok
        self.stamp(14)
        CK = o.get('d_ck', 3)
        items = []
        r8 = o.get('ring8', 1); nfree = 8 if r8 else 6
        assert not (r8 and self.A_tail)
        for b in range(self.c_last + 1, D0 + nfree): items.append((20 * (b - D0 - 1), 0, self.flat(self.dma_ops(b)), b - 200))
        for b in range(D0 + nfree, NBLK):
            early = 20 * (b - D0 - nfree + 1)
            key = (b - 200) if early < 20 * CK else 20 * (b - D0 - 1)
            items.append((20 * (b - D0 - 1), early, self.flat(self.dma_ops(b)), key))
        items.append((20 * CK - 1, 20 * CK - o.get('d_fl', 30), ['buffer_load_dword v%d, v%d, s[4:7], s%d offen sc1' % (vPOLL, vZERO, sT1)], -1))
        items += [(10 * i, 20 * CK, tok(i, 0) + tok(i, 1)) for i in range(8, 24)]
        if o.get('tw', 0): items.append((30, 0, self.touch_w('A'), -500))
        for b in self.A_tail: items.append((5000 + b, 20 * (6 + b), self.flat(self.dma_ops(b))))
        chk = [W_vreg(vPOLL)] + self.check_flag(vPOLL, sT1)
        self.gemm_bd(D0, 24, self.vm_stream(items), {CK: chk}, Stream(self.bd_unpack(), 200), self.d_reg)
        self.stamp(17)
        def final():
            L = self.lab('d_last'); X = self.lab('d_done')
            e('s_cmp_lg_u32 s%d, 0' % sL); e('s_cbranch_scc1 %s' % L)
            e('s_lshr_b32 s%d, s%d, 1\ns_mul_i32 s%d, s%d, 40960\ns_add_u32 s%d, s%d, s%d\ns_add_u32 s%d, s%d, 0x%x' % (sT0, sTTK, sT0, sT0, sT0, sT0, sLOFF, sT0, sT0, XA + self.lstride))
            e('buffer_store_dwordx4 v[%d:%d], v%d, s[4:7], s%d offen sc1' % (XR, XR + 3, vY0, sT0))
            e('buffer_store_dwordx4 v[%d:%d], v%d, s[4:7], s%d offen sc1' % (XR + 4, XR + 7, vY1, sT0))
            e('buffer_store_dwordx2 v[%d:%d], v%d, s[4:7], s%d offen sc1' % (XR + 8, XR + 9, vY2, sT0))
            self.bd_stats(SA, True)
            self.cnt(sT1, CNT_XA, sRB, next_layer=True)
            self.signal(sT1)
            self.stamp(18)
            if self.o.get('ampre', 1): self.am_a()
            self.side_dma(self.A_side)
            e('s_branch %s' % X)
            e.label(L)
            e('s_mul_i32 s%d, s%d, 20480\ns_mul_i32 s%d, s%d, 160\ns_add_u32 s%d, s%d, s%d' % (sT0, sTTK, sT1, sCS, sT0, sT0, sT1))
            e('buffer_store_dwordx4 v[%d:%d], v%d, s[12:15], s%d offen' % (XR, XR + 3, vR0, sT0))
            e('buffer_store_dwordx4 v[%d:%d], v%d, s[12:15], s%d offen offset:64' % (XR + 4, XR + 7, vR0, sT0))
            e('buffer_store_dwordx2 v[%d:%d], v%d, s[12:15], s%d offen' % (XR + 8, XR + 9, vR2, sT0))
            self.stamp(18)
            self.stamp_flush()
            e('s_endpgm')
            e.label(X)
        self.bd_epilogue(D0 + 11, final)
        return self.maybe_stop('d')
    def build(self):
        e = self.e
        self.prologue()
        e.label('M_LAYER')
        done = self.phase_a() or self.phase_b() or self.phase_c() or self.phase_d()
        if not done:
            e('s_add_u32 s%d, s%d, 1\ns_add_u32 s%d, s%d, 0x%x\ns_add_u32 s%d, s%d, 0x%x' % (sL, sL, sLOFF, sLOFF, self.lstride, sCNT, sCNT, CSTRIDE))
            e('s_branch M_LAYER')
        e.label('M_END')
        e('s_endpgm')
        e.label('M_CODE_END')
        return e
```

```python
from asmlib import *
from layout import *

NAME = 'hedgehog_main_kernel'
KNAME = 'interleave_layers__linear_kernel_hedgehog__geglu_ffn__prompt_kernel'
BLK = 20480
SCR = 6 * BLK
LDS_TOTAL = 163840
SPIN_LIMIT = 40000
LOG2E = 1.4426950408889634
TSOFF = 0x4000000

sW, sRB, sJ, sL, sLOFF, sW5K, sWA, sWB, sWC, sWD = range(16, 26)
sT0, sT1, sT2, sT3, sT4, sT5 = range(26, 32)
sDEAD, sPC, sPV, sCS, sTH, sTTK, sTTS, sKH = range(40, 48)
sDM = 48
sTW = 49
sB0, sB1 = 50, 51
sC1, sC2, sC3, sC4 = 52, 53, 54, 55
sEX, sEXD = 56, 57
sCNT = 3
sTA, sTB = 58, 59
vL16, vLANE, vONES, vZERO, vONE, vPOLL = 1, 2, 3, 4, 5, 6
vL16B, vK0, vK1 = 7, 8, 9
vT0, vT1, vT2, vT3, vT4 = 10, 11, 12, 13, 14
vEXR = 15
AF, ACC = 16, 48
vSA, vTW, vKA, vKB, vPS1, vPS2, vPL, vAW, vO0, vO1, vO2, vX0, vX1, vX2, vY0, vY1 = range(224, 240)
XR = 240
vY2, vR0, vR2, vST, vSC, vEXW = range(250, 256)
vAW2 = 221
vK2 = 218
vL128, vTCH = 220, 219

A0, B0, C0, D0, NBLK = 0, 8, 13, 25, 37
NSIDE_A, NSIDE_C = 4, 4

def f32bits(x):
    import struct
    return '0x%08x' % struct.unpack('<I', struct.pack('<f', x))[0]

def W_vreg(r):
    return 'v_mov_b32 v%d, v%d' % (r, r)

class Main:
    def __init__(self, stop=None, opts=None):
        self.e = Asm(); self.stop = stop; self.o = opts or {}
        self.sc = '' if self.o.get('nosc1') else ' sc1'
        self.nlab = 0
        self.lstride = 0 if self.o.get('reuse') else LSTRIDE
        self.name = KNAME if self.o.get('merged', 0) else NAME
        global NSIDE_A, NSIDE_C
        NSIDE_A = self.o.get('nsa', 4); NSIDE_C = self.o.get('nsc', 4)
        dt = self.o.get('d_tail', 0); bt = self.o.get('b_tail', 0)
        self.A_tail = list(range(1, 1 + dt))
        rest = [0] + list(range(1 + dt, 6))
        self.A_side, self.A_in = rest[:NSIDE_A], rest[NSIDE_A:]
        self.C_tail = list(range(C0 + 1, C0 + 1 + bt))
        rest = list(range(C0 + 1 + bt, C0 + 6))
        self.C_side, self.C_in = rest[:NSIDE_C], rest[NSIDE_C:]
    def lab(self, p):
        self.nlab += 1
        return 'M_%s_%d' % (p, self.nlab)
    def slot_of(self, b):
        if b >= D0 and self.o.get('ring8', 1):
            return {25: 6, 26: 7, 27: 1, 28: 2, 29: 3, 30: 4, 31: 5, 32: 0, 33: 6, 34: 7, 35: 1, 36: 2}[b]
        return b % 6
    def blk_src(self, b):
        if b < B0: return sWA, (b - A0) * BLK
        if b < C0: return sWB, (b - B0) * BLK
        if b < D0: return sWC, (b - C0) * BLK
        return sWD, (b - D0) * BLK
    def dma_ops(self, b, tag=None):
        nb = b % NBLK if b >= NBLK else b
        base, off = self.blk_src(nb)
        slot = self.slot_of(nb)
        tag = tag or 'blk%d' % nb
        g = []
        first = ['s_add_u32 m0, s%d, %d' % (sW5K, slot * BLK), 's_add_u32 s%d, s%d, %d' % (sDM, base, off),
                 ('buffer_load_dwordx4 v%d, s[4:7], s%d offen lds' % (vL16, sDM), tag)]
        g.append(first)
        for k in range(1, 4):
            g.append([('buffer_load_dwordx4 v%d, s[4:7], s%d offen offset:%d lds' % (vL16, sDM, k * 1024), tag)])
        g.append(['s_add_u32 m0, s%d, %d' % (sW5K, slot * BLK + 4096), 's_add_u32 s%d, s%d, %d' % (sDM, base, off + 4096),
                  ('buffer_load_dwordx4 v%d, s[4:7], s%d offen lds' % (vL16, sDM), tag)])
        return g
    def am_a(self):
        AM = 128; e = self.e
        e('s_lshl_b32 s%d, s%d, 12\ns_add_u32 s%d, s%d, 0x%x' % (sT2, sJ, sT2, sT2, WAM))
        for t in range(4): e('buffer_load_dwordx4 v[%d:%d], v%d, s[4:7], s%d offen offset:%d' % (AM + 4 * t, AM + 4 * t + 3, vL16, sT2, t * 1024))
    def am_c(self):
        AM = 136; e = self.e
        e('s_mul_i32 s%d, s%d, %d\ns_add_u32 s%d, s%d, 0x%x' % (sT4, sJ, 12 * KB, sT4, sT4, WCM))
        for t in range(4): e('buffer_load_dwordx4 v[%d:%d], v%d, s[4:7], s%d offen offset:%d' % (AM + 4 * t, AM + 4 * t + 3, vL16, sT4, t * 1024))
    def side_dma(self, blocks):
        e = self.e
        L = self.lab('side')
        e('s_cmp_eq_u32 s%d, 0' % sW); e('s_cbranch_scc1 %s' % L)
        for b in blocks:
            base, off = self.blk_src(b); slot = self.slot_of(b); tag = 'blk%d' % b
            ld = 'buffer_load_dwordx4 v%d, s[4:7], s%d offen%%s lds' % (vL16, sDM)
            e('s_add_u32 m0, s%d, %d' % (sW5K, slot * BLK)); e('s_add_u32 s%d, s%d, %d' % (sDM, base, off))
            for k in range(4): e.side(ld % (' offset:%d' % (k * 1024) if k else ''), tag)
            e('s_add_u32 m0, s%d, %d' % (sW5K, slot * BLK + 4096)); e('s_add_u32 s%d, s%d, %d' % (sDM, base, off + 4096))
            e.side(ld % '', tag)
            e('s_add_u32 m0, s%d, %d' % (sEX, slot * BLK)); e('s_add_u32 s%d, s%d, %d' % (sDM, base, off))
            e('s_add_u32 s%d, s%d, s%d' % (sDM, sDM, sEXD))
            e.side(ld % '', tag); e.side(ld % ' offset:1024', tag)
        e.label(L)
    def dma_items(self, b, earliest):
        out = []
        for g in self.dma_ops(b):
            for x in g: out.append((x, earliest))
        return out
    def touch(self, base_expr, nlines_wave, ninstr=1, sc=''):
        L = list(base_expr)
        L.append('s_mul_i32 s%d, s%d, %d' % (sTB, sW, nlines_wave * ninstr * 128))
        L.append('s_add_u32 s%d, s%d, s%d' % (sTA, sTA, sTB))
        if nlines_wave < 64:
            L.append('v_mov_b32 v%d, 0x%x' % (vT0, OOB))
            L.append('v_cmp_gt_u32 vcc, %d, v%d' % (nlines_wave, vLANE))
            L.append('v_cndmask_b32 v%d, v%d, v%d, vcc' % (vT0, vT0, vL128))
            va = vT0
        else: va = vL128
        for k in range(ninstr):
            if k: L.append('s_add_u32 s%d, s%d, %d' % (sTA, sTA, nlines_wave * 128))
            I = parse('buffer_load_dword v%d, v%d, s[4:7], s%d offen%s' % (vTCH, va, sTA, sc)); I.wr = set()
            L.append(I)
        return L
    def touch_w(self, which):
        if which == 'A':
            pre = ['s_lshr_b32 s%d, s%d, 2' % (sTA, sRB), 's_mul_i32 s%d, s%d, %d' % (sTA, sTA, 40 * KB), 's_add_u32 s%d, s%d, s%d' % (sTA, sTA, sWA), 's_sub_u32 s%d, s%d, s%d' % (sTA, sTA, sW5K)]
            return self.touch(pre, 40, 2)
        if which == 'C':
            pre = ['s_lshr_b32 s%d, s%d, 2' % (sTA, sRB), 's_mul_i32 s%d, s%d, %d' % (sTA, sTA, 60 * KB), 's_add_u32 s%d, s%d, s%d' % (sTA, sTA, sWC), 's_sub_u32 s%d, s%d, s%d' % (sTA, sTA, sW5K)]
            return self.touch(pre, 60, 2)
        idx = ['s_lshr_b32 s%d, s%d, 2' % (sTA, sRB), 's_lshl_b32 s%d, s%d, 1' % (sTA, sTA), 's_add_u32 s%d, s%d, s%d' % (sTA, sTA, sTH)]
        if which == 'B':
            return self.touch(idx + ['s_mul_i32 s%d, s%d, 12800' % (sTA, sTA), 's_add_u32 s%d, s%d, s%d' % (sTA, sTA, sWB), 's_sub_u32 s%d, s%d, s%d' % (sTA, sTA, sW5K)], 25, 1)
        if which == 'D':
            return self.touch(idx + ['s_mul_i32 s%d, s%d, 30720' % (sTA, sTA), 's_add_u32 s%d, s%d, s%d' % (sTA, sTA, sWD), 's_sub_u32 s%d, s%d, s%d' % (sTA, sTA, sW5K)], 60, 1)
    def touch_tok(self, base_off):
        pre = ['s_mul_i32 s%d, s%d, %d' % (sTA, sRB, 160 * KB), 's_lshr_b32 s%d, s%d, 1' % (sTB, sJ), 's_mul_i32 s%d, s%d, %d' % (sTB, sTB, 20 * KB),
               's_add_u32 s%d, s%d, s%d' % (sTA, sTA, sTB), 's_add_u32 s%d, s%d, s%d' % (sTA, sTA, sLOFF), 's_add_u32 s%d, s%d, 0x%x' % (sTA, sTA, base_off)]
        return self.touch(pre, 40, 1, ' sc1')
    def freed_by(self, c):
        if c <= NBLK - 7: return c + 6
        if c < NBLK - 1: return NBLK + (c - (NBLK - 7))
        return NBLK + 0
    def ring_read(self, dst, blk, off, kh=False):
        slot = self.slot_of(blk)
        base = (vK0 if kh else vL16) if slot < 3 else ((vK1 if kh else vL16B) if slot < 6 else vK2)
        assert slot < 6 or kh
        return 'ds_read_b128 v[%d:%d], v%d offset:%d' % (dst, dst + 3, base, (slot % 3) * BLK + off)
    def emit_next_layer_dma(self, b):
        e = self.e
        L = self.lab('nl')
        e('s_cmp_lg_u32 s%d, 0' % sL); e('s_cbranch_scc1 %s' % L)
        for g in self.dma_ops(b):
            for x in g:
                if isinstance(x, tuple): e(x[0], count=False)
                else: e(x)
        e.label(L)
    def signal(self, cnt_off_sgpr):
        e = self.e
        e.wait_all()
        e('s_barrier')
        self.signal_only(cnt_off_sgpr)
    def signal_only(self, cnt_off_sgpr):
        e = self.e
        L = self.lab('sig')
        e('s_cmp_lg_u32 s%d, 0' % sW); e('s_cbranch_scc1 %s' % L)
        e('s_mov_b64 exec, 1')
        e('buffer_atomic_add v%d, v%d, s[4:7], s%d offen sc1' % (vONE, vZERO, cnt_off_sgpr), count=False)
        e('s_mov_b64 exec, -1')
        e.label(L)
    def poll(self, cnt_off_sgpr, n=1, target=16, srd=4, stride=128):
        e = self.e
        L = self.lab('poll'); X = self.lab('got')
        e('s_cmp_lg_u32 s%d, 0' % sW); e('s_cbranch_scc1 %s' % X)
        e('s_cmp_lg_u32 s%d, 0' % sDEAD); e('s_cbranch_scc1 %s' % X)
        e('s_mov_b32 s%d, 0' % sPC)
        if n > 1:
            e('v_min_u32 v%d, %d, v%d' % (vT0, n - 1, vLANE)); e('v_mul_u32_u24 v%d, %d, v%d' % (vT0, stride, vT0))
        e.label(L)
        e('buffer_load_dword v%d, v%d, s[%d:%d], s%d offen sc1' % (vPOLL, vT0 if n > 1 else vZERO, srd, srd + 3, cnt_off_sgpr), count=False)
        e('s_waitcnt vmcnt(0)', count=False)
        e('v_cmp_gt_u32 vcc, %d, v%d' % (target, vPOLL))
        e('s_cbranch_vccz %s' % X)
        if self.o.get('psleep'): e('s_sleep %d' % self.o['psleep'])
        e('s_add_u32 s%d, s%d, 1' % (sPC, sPC)); e('s_cmp_lt_u32 s%d, %d' % (sPC, SPIN_LIMIT))
        e('s_cbranch_scc1 %s' % L)
        e('s_mov_b32 s%d, 1' % sDEAD)
        e.label(X)
    def cnt(self, dst, which, idx_sgpr, mul=128, add=0, next_layer=False):
        e = self.e
        e('s_mul_i32 s%d, s%d, %d' % (dst, idx_sgpr, mul))
        e('s_add_u32 s%d, s%d, s%d' % (dst, dst, sCNT))
        e('s_add_u32 s%d, s%d, 0x%x' % (dst, dst, which + add + (CSTRIDE if next_layer else 0)))
    def prologue(self):
        if self.o.get('merged', 0): return self.prologue_merged()
        e = self.e
        e.directive('.text\n.globl %s\n.p2align 8\n.type %s,@function' % (self.name, self.name))
        e.label(self.name)
        e('s_cmp_ge_u32 s2, 256'); e('s_cbranch_scc1 M_END')
        e('s_load_dwordx2 s[32:33], s[0:1], 0')
        e('s_load_dwordx2 s[34:35], s[0:1], 64')
        e('s_load_dwordx2 s[36:37], s[0:1], 80')
        self.entry_stamp()
        self.pro_scalars(); self.pro_lanes()
        e('s_waitcnt lgkmcnt(0)')
        self.mk_srd(4, 36, WS_BYTES)
        self.pro_tail(32, 34)
    def prologue_merged(self):
        import gen_prep as P
        e = self.e
        e.directive('.text\n.globl %s\n.p2align 8\n.type %s,@function' % (self.name, self.name))
        e.label(self.name)
        e('s_cmp_ge_u32 s2, 256'); e('s_cbranch_scc1 M_END')
        e('s_load_dwordx8 s[64:71], s[0:1], 0')
        e('s_load_dwordx4 s[72:75], s[0:1], 40')
        e('s_load_dwordx2 s[76:77], s[0:1], 56')
        e('s_load_dwordx2 s[78:79], s[0:1], 64')
        e('s_load_dwordx4 s[80:83], s[0:1], 72')
        self.entry_stamp()
        self.pro_scalars()
        e('s_waitcnt lgkmcnt(0)')
        self.mk_srd(4, 82, WS_BYTES)
        e('s_add_u32 s0, s2, 352\ns_sub_u32 s26, s2, 64\ns_cmp_ge_u32 s2, 160\ns_cselect_b32 s0, s26, s0\ns_cmp_lt_u32 s2, 96\ns_cselect_b32 s0, s2, s0')
        e('s_add_u32 s1, s2, 192')
        Lz = self.lab('nz')
        e('s_cmp_ge_u32 s2, 16'); e('s_cbranch_scc1 %s' % Lz)
        e('s_cmp_lg_u32 s%d, 0' % sW); e('s_cbranch_scc1 %s' % Lz)
        for k in range(4): e('v_mov_b32 v%d, 0' % (120 + k))
        e('s_lshl_b32 s26, s2, 11')
        e('buffer_store_dwordx4 v[120:123], v%d, s[4:7], s26 offen sc1' % vL16, count=False)
        e('buffer_store_dwordx4 v[120:123], v%d, s[4:7], s26 offen offset:1024 sc1' % vL16, count=False)
        e.label(Lz)
        r1 = P.Ren(e, 1, 0); r2 = P.Ren(e, 2, 1)
        L1, L2 = 0, 32768
        def dispatch(cases, sreg, tagp):
            end = self.lab(tagp)
            labs = [self.lab(tagp) for _ in cases]
            for (ub, _), lb in list(zip(cases, labs))[:-1]:
                e('s_cmp_lt_u32 s%d, %d' % (sreg, ub)); e('s_cbranch_scc1 %s' % lb)
            e('s_branch %s' % labs[-1])
            for (ub, fn), lb in zip(cases, labs):
                e.label(lb); e.reset_state(); fn()
                e.wait_lgkm0()
                e('s_branch %s' % end)
            e.label(end); e.reset_state()
        dispatch([(96, lambda: P.wa_issue(r1)), (288, lambda: P.wc_issue(r1, L1)), (None, lambda: P.x_issue(r1))], 0, 'i1')
        dispatch([(288, lambda: P.wc_issue(r2, L2)), (416, lambda: P.wd_issue(r2, L2)), (None, lambda: P.wb_issue(r2, L2))], 1, 'i2')
        if self.o.get('codepf', 1):
            Lp = self.lab('npf')
            e('s_cmp_ge_u32 s2, 64'); e('s_cbranch_scc1 %s' % Lp)
            e('s_getpc_b64 s[84:85]')
            e.label('M_PC')
            e('s_add_u32 s84, s84, (M_LAYER-M_PC)\ns_addc_u32 s85, s85, 0')
            e('v_lshlrev_b32 v124, 7, v0\nv_mov_b32 v125, (M_CODE_END-M_LAYER-4)\nv_add_u32 v126, 0x8000, v124')
            e('v_min_u32 v124, v124, v125\nv_min_u32 v126, v126, v125\nv_and_b32 v124, -4, v124\nv_and_b32 v126, -4, v126')
            e('global_load_dword v127, v124, s[84:85]', count=False)
            e('global_load_dword v127, v126, s[84:85]', count=False)
            e.label(Lp)
        self.mk_srd(84, 80, 256)
        Lf = self.lab('nf'); Lv = self.lab('nfv'); Lw = self.lab('nfw')
        e('s_cmp_ge_u32 s2, 16'); e('s_cbranch_scc1 %s' % Lf)
        e('s_cmp_lg_u32 s%d, 0' % sW); e('s_cbranch_scc1 %s' % Lf)
        npf = 2 if self.o.get('codepf', 1) else 0
        e('s_cmp_eq_u32 s31, 1'); e('s_cbranch_scc1 %s' % Lv)
        e('s_waitcnt vmcnt(%d)' % (22 + 5 + npf), count=False); e('s_branch %s' % Lw)
        e.label(Lv)
        e('s_waitcnt vmcnt(%d)' % (10 + 5 + npf), count=False)
        e.label(Lw)
        e('s_lshl_b32 s62, s2, 2\ns_mov_b64 exec, 1')
        e('buffer_store_dword v%d, v%d, s[84:87], s62 offen sc1' % (vONE, vZERO), count=False)
        e('s_mov_b64 exec, -1')
        self.stamp(27)
        e.label(Lf)
        e('s_waitcnt vmcnt(4)', count=False)
        self.stamp(19)
        dispatch([(96, lambda: P.wa_process(r1)), (288, lambda: P.wc_process(r1, L1)), (None, lambda: P.x_process(r1))], 0, 'p1')
        self.stamp(20)
        Lq = self.lab('zq')
        e('s_cmp_lg_u32 s%d, 0' % sW); e('s_cbranch_scc1 %s' % Lq)
        e('v_min_u32 v126, 15, v%d\nv_lshlrev_b32 v126, 2, v126' % vLANE)
        e('buffer_load_dword v%d, v126, s[84:87], 0 offen sc1' % vPOLL, count=False)
        e.label(Lq)
        e('s_waitcnt vmcnt(0) lgkmcnt(0)', count=False)
        e('s_barrier')
        self.stamp(26)
        def arrive(off, below=None):
            La = self.lab('arr')
            e('s_cmp_lg_u32 s%d, 0' % sW); e('s_cbranch_scc1 %s' % La)
            if below is not None:
                e('s_cmp_ge_u32 s2, %d' % below); e('s_cbranch_scc1 %s' % La)
            e('s_and_b32 s62, s2, 15\ns_lshl_b32 s62, s62, 7\ns_add_u32 s62, s62, 0x%x\ns_mov_b64 exec, 1' % off)
            e('buffer_atomic_add v%d, v%d, s[4:7], s62 offen sc1' % (vONE, vZERO), count=False)
            e('s_mov_b64 exec, -1')
            e.label(La)
        Lc = self.lab('zc'); Ls = self.lab('zcs')
        e('s_cmp_lg_u32 s%d, 0' % sW); e('s_cbranch_scc1 %s' % Lc)
        e('s_mov_b32 s%d, 0' % sPC)
        e.label(Ls)
        e('v_cmp_gt_u32 vcc, 1, v%d' % vPOLL)
        e('s_cbranch_vccz %s' % Lc)
        if self.o.get('zsleep'): e('s_sleep %d' % self.o['zsleep'])
        e('buffer_load_dword v%d, v126, s[84:87], 0 offen sc1' % vPOLL, count=False)
        e('s_waitcnt vmcnt(0)', count=False)
        e('s_add_u32 s%d, s%d, 1' % (sPC, sPC)); e('s_cmp_lt_u32 s%d, %d' % (sPC, SPIN_LIMIT)); e('s_cbranch_scc1 %s' % Ls)
        e('s_mov_b32 s%d, 1' % sDEAD)
        e.label(Lc)
        arrive(CNT_CRIT, 160)
        self.stamp(21)
        dispatch([(288, lambda: P.wc_process(r2, L2)), (416, lambda: P.wd_process(r2, L2)), (None, lambda: P.wb_process(r2, L2))], 1, 'p2')
        self.stamp(22)
        e('s_waitcnt vmcnt(0) lgkmcnt(0)', count=False)
        e('s_barrier')
        arrive(CNT_REST)
        self.stamp(25)
        self.pro_lanes()
        e('s_mov_b32 s%d, 0x%x' % (sT0, CNT_CRIT))
        self.stamp(23)
        self.poll(sT0, n=16, target=10)
        e('s_barrier')
        self.stamp(24)
        self.pro_tail(64, 78)
    def entry_stamp(self):
        if self.o.get('stamps'):
            self.e(('s_memtime' if self.o.get('cyc') else 's_memrealtime') + ' s[60:61]\ns_waitcnt lgkmcnt(0)\nv_mov_b32 v223, s60')
    def mk_srd(self, d, lo, n):
        self.e('s_mov_b32 s%d, s%d\ns_mov_b32 s%d, s%d\ns_mov_b32 s%d, 0x%x\ns_mov_b32 s%d, 0x20000' % (d, lo, d + 1, lo + 1, d + 2, n, d + 3))
    def pro_scalars(self):
        e = self.e
        e('v_lshrrev_b32 v10, 6, v0'); e('v_and_b32 v%d, 63, v0' % vLANE)
        e('v_readfirstlane_b32 s%d, v10' % sW)
        e('v_lshlrev_b32 v%d, 4, v%d' % (vL16, vLANE))
        e('s_and_b32 s%d, s2, 3\ns_lshr_b32 s26, s2, 6\ns_lshl_b32 s26, s26, 2\ns_or_b32 s%d, s%d, s26' % (sRB, sRB, sRB))
        e('s_lshr_b32 s%d, s2, 2\ns_and_b32 s%d, s%d, 15' % (sJ, sJ, sJ))
        e('s_and_b32 s%d, s%d, 7\ns_lshr_b32 s%d, s%d, 3' % (sCS, sJ, sTH, sJ))
        e('s_mul_i32 s%d, s%d, 5120' % (sW5K, sW))
        e('s_lshr_b32 s%d, s%d, 1' % (sKH, sW))
        for (s, idx, stride, base) in ((sWA, sJ, 160 * KB, WA), (sWB, sCS, 100 * KB, WB), (sWC, sJ, 240 * KB, WC), (sWD, sCS, 240 * KB, WD)):
            if self.o.get('wsame'): stride = 0
            e('s_mul_i32 s%d, s%d, %d\ns_add_u32 s%d, s%d, s%d\ns_add_u32 s%d, s%d, 0x%x' % (s, idx, stride, s, s, sW5K, s, s, base))
        e('s_lshl_b32 s%d, s%d, 3\ns_lshl_b32 s26, s%d, 2\ns_add_u32 s%d, s%d, s26' % (sTTK, sRB, sTH, sTTK, sTTK))
        e('s_and_b32 s26, s%d, 1\ns_lshl_b32 s26, s26, 1\ns_add_u32 s%d, s%d, s26\ns_add_u32 s%d, s%d, s%d' % (sW, sTTK, sTTK, sTTK, sTTK, sKH))
        e('s_xor_b32 s%d, s%d, 1' % (sTTS, sTTK))
        e('s_mov_b32 s%d, 0\ns_mov_b32 s%d, 0\ns_mov_b32 s%d, 0x%x' % (sDEAD, sL, sLOFF, LBASE))
        e('s_mov_b32 s%d, 0x%x' % (sCNT, CNT0))
        e('s_sub_u32 s%d, s%d, 1\ns_lshl_b32 s%d, s%d, 11\ns_sub_u32 s%d, s%d, s%d' % (sEX, sW, sEX, sEX, sEXD, sEX, sW5K))
        e('v_mov_b32 v%d, 0x3f803f80\nv_mov_b32 v%d, 0\nv_mov_b32 v%d, 1' % (vONES, vZERO, vONE))
    def pro_lanes(self):
        e = self.e
        e('v_add_u32 v%d, %d, v%d' % (vL16B, 3 * BLK, vL16))
        e('v_lshlrev_b32 v%d, 7, v%d' % (vL128, vLANE))
        e('s_mul_i32 s26, s%d, 5120\nv_add_u32 v%d, s26, v%d\nv_add_u32 v%d, %d, v%d' % (sKH, vK0, vL16, vK1, 3 * BLK, vK0))
        e('v_add_u32 v%d, %d, v%d' % (vK2, 6 * BLK, vK0))
        t32, hi, t16, q = 100, 101, 102, 103
        e('v_and_b32 v%d, 31, v%d\nv_lshrrev_b32 v%d, 5, v%d' % (t32, vLANE, hi, vLANE))
        e('v_and_b32 v%d, 15, v%d\nv_lshrrev_b32 v%d, 4, v%d' % (t16, vLANE, q, vLANE))
        e('v_mov_b32 v104, 0x%x' % OOB)
        e('v_lshlrev_b32 v%d, 3, v%d\nv_lshl_add_u32 v%d, v%d, 16, v%d' % (vSA, t32, vSA, hi, vSA))
        e('s_lshl_b32 s26, s%d, 5\nv_add_u32 v105, s26, v%d\nv_mul_u32_u24 v105, 144, v105' % (sW, t32))
        e('v_mul_u32_u24 v106, 18432, v%d\nv_add_u32 v105, v105, v106\nv_add_u32 v%d, 0x%x, v105' % (hi, vTW, SCR))
        e('v_lshrrev_b32 v105, 1, v%d\nv_bfe_u32 v106, v%d, 2, 2\nv_lshl_add_u32 v105, v105, 3, v106\nv_mul_u32_u24 v105, 144, v105' % (q, vLANE))
        e('v_and_b32 v106, 1, v%d\nv_lshlrev_b32 v106, 5, v106\nv_and_b32 v107, 3, v%d\nv_lshl_add_u32 v106, v107, 3, v106\nv_add_u32 v105, v105, v106' % (q, vLANE))
        e('s_lshr_b32 s26, s%d, 1\ns_mul_i32 s26, s26, 18432\ns_add_u32 s26, s26, 0x%x' % (sW, SCR))
        e('s_and_b32 s27, s%d, 1\ns_mul_i32 s28, s27, 40\ns_add_u32 s28, s28, s26\ns_add_u32 s29, s26, 80' % sW)
        e('v_add_u32 v%d, s28, v105\nv_add_u32 v%d, s29, v105' % (vKA, vKB))
        e('s_lshl_b32 s26, s%d, 10' % sW)
        e('v_mul_u32_u24 v105, 24, v%d\nv_add_u32 v105, v105, v%d\nv_lshlrev_b32 v105, 4, v105\nv_add_u32 v105, s26, v105' % (hi, t32))
        e('v_cmp_gt_u32 vcc, 24, v%d\nv_cndmask_b32 v%d, v104, v105, vcc' % (t32, vPS1))
        e('v_lshlrev_b32 v105, 3, v%d\nv_add_u32 v105, s26, v105\nv_add_u32 v105, 768, v105' % t32)
        e('v_cmp_eq_u32 vcc, 0, v%d\nv_cndmask_b32 v%d, v104, v105, vcc' % (hi, vPS2))
        e('v_mov_b32 v106, 84\nv_cmp_le_u32 s[30:31], v106, v0\nv_cndmask_b32 v106, 0, 1, s[30:31]')
        e('v_mul_u32_u24 v107, 84, v106\nv_sub_u32 v107, v0, v107')
        e('v_mul_u32_u24 v108, 391, v107\nv_lshrrev_b32 v108, 13, v108')
        e('v_mul_u32_u24 v109, 21, v108\nv_sub_u32 v109, v107, v109')
        e('v_subrev_u32 v110, 168, v0\nv_mul_u32_u24 v111, 391, v110\nv_lshrrev_b32 v111, 13, v111\nv_and_b32 v111, 3, v111')
        e('v_mul_u32_u24 v96, 21, v111\nv_sub_u32 v96, v110, v96')
        e('v_cmp_gt_u32 vcc, 168, v0')
        e('v_lshrrev_b32 v97, 1, v108\nv_lshl_add_u32 v97, v106, 1, v97\nv_lshlrev_b32 v97, 10, v97')
        e('v_and_b32 v98, 1, v108\nv_mul_u32_u24 v98, 24, v98\nv_add_u32 v98, v98, v109\nv_lshl_add_u32 v97, v98, 4, v97')
        e('v_lshlrev_b32 v98, 10, v111\nv_lshl_add_u32 v98, v96, 3, v98\nv_add_u32 v98, 768, v98')
        e('v_cndmask_b32 v97, v98, v97, vcc')
        e('v_mov_b32 v99, 252\nv_cmp_gt_u32 s[30:31], v99, v0\nv_cndmask_b32 v%d, v104, v97, s[30:31]' % vPL)
        e('v_lshrrev_b32 v97, 1, v111\nv_cndmask_b32 v106, v97, v106, vcc')
        e('v_cndmask_b32 v108, 4, v108, vcc\nv_cndmask_b32 v109, v96, v109, vcc')
        e('v_lshrrev_b32 v110, 4, v109\nv_mul_u32_u24 v110, 5, v110\nv_add_u32 v110, v110, v108')
        e('v_and_b32 v109, 15, v109\nv_lshrrev_b32 v97, 2, v109\nv_lshlrev_b32 v97, 3, v97\nv_and_b32 v109, 3, v109\nv_add_u32 v97, v97, v109')
        e('v_mul_u32_u24 v109, 36, v106\nv_add_u32 v97, v97, v109')
        e('v_lshlrev_b32 v97, 4, v97\nv_lshl_add_u32 v97, v110, 10, v97\nv_add_u32 v97, 0x%x, v97' % SCR)
        e('v_and_b32 v105, 63, v0\nv_lshlrev_b32 v105, 4, v105\nv_add_u32 v105, 0x%x, v105' % (SCR + 12288))
        e('v_cndmask_b32 v%d, v105, v97, vcc' % vAW)
        e('v_and_b32 v98, 1, v111\nv_lshl_add_u32 v97, v98, 3, v97')
        e('v_cndmask_b32 v97, v97, v105, vcc\nv_cndmask_b32 v%d, v105, v97, s[30:31]' % vAW2)
        e('s_mul_i32 s26, s%d, 5' % sJ)
        e('v_bfe_u32 v105, v%d, 4, 1\nv_mul_u32_u24 v105, 20480, v105\nv_lshl_add_u32 v105, v%d, 4, v105' % (vLANE, t16))
        for (dst, expr) in ((vO0, 0), (vO1, 1), (vO2, None)):
            if expr is not None:
                e('v_lshl_add_u32 v106, v%d, 1, s26\nv_add_u32 v106, %d, v106' % (hi, expr))
            else:
                e('v_mov_b32 v106, s26\nv_add_u32 v106, 4, v106')
            e('v_lshrrev_b32 v107, 2, v106\nv_lshl_add_u32 v107, v107, 10, v105\nv_and_b32 v106, 3, v106\nv_lshl_add_u32 v%d, v106, 8, v107' % dst)
        e('v_lshl_add_u32 v%d, v%d, 3, v%d' % (vO2, hi, vO2))
        e('s_mul_i32 s26, s%d, 10' % sCS)
        e('s_and_b32 s27, s%d, 1\ns_lshl_b32 s27, s27, 8' % sTTK)
        e('v_lshlrev_b32 v105, 4, v%d' % t16)
        for n, (dx, dy) in enumerate(((vX0, vY0), (vX1, vY1), (vX2, vY2))):
            if n < 2: e('v_add_u32 v106, s26, v%d\nv_add_u32 v106, %d, v106' % (q, 4 * n))
            else: e('v_lshrrev_b32 v106, 1, v%d\nv_add_u32 v106, s26, v106\nv_add_u32 v106, 8, v106' % q)
            e('v_lshrrev_b32 v107, 2, v106\nv_lshl_add_u32 v107, v107, 10, v105\nv_and_b32 v108, 3, v106\nv_lshl_add_u32 v%d, v108, 8, v107' % dx)
            e('v_lshrrev_b32 v107, 1, v106\nv_lshl_add_u32 v107, v107, 10, v105\nv_and_b32 v108, 1, v106\nv_lshl_add_u32 v107, v108, 9, v107\nv_add_u32 v%d, s27, v107' % dy)
        e('v_and_b32 v106, 1, v%d\nv_lshl_add_u32 v%d, v106, 3, v%d\nv_lshl_add_u32 v%d, v106, 3, v%d' % (q, vX2, vX2, vY2, vY2))
        e('v_mul_u32_u24 v105, 1280, v%d\nv_lshl_add_u32 v%d, v%d, 4, v105\nv_lshl_add_u32 v%d, v%d, 3, v105\nv_add_u32 v%d, 128, v%d' % (t16, vR0, q, vR2, q, vR2, vR2))
        e('v_lshlrev_b32 v105, 3, v%d\nv_cmp_eq_u32 vcc, 0, v%d\nv_cndmask_b32 v%d, v104, v105, vcc\nv_lshl_add_u32 v%d, v%d, 15, v105' % (t16, q, vST, vSC, q))
        e('s_add_u32 s26, s%d, 0x%x\nv_add_u32 v%d, s26, v%d' % (sW5K, SCR, vEXW, vL16))
        e('s_xor_b32 s27, s%d, 2\ns_mul_i32 s27, s27, 5120\ns_add_u32 s27, s27, 0x%x\nv_add_u32 v%d, s27, v%d' % (sW, SCR, vEXR, vL16))
    def pro_tail(self, xlo, olo):
        e = self.e
        self.mk_srd(8, xlo, T * 1280); self.mk_srd(12, olo, T * 1280)
        if self.o.get('ampre_a', 0): self.am_a()
        self.side_dma(self.A_side[:1])
        for b in self.A_tail:
            for g in self.dma_ops(b):
                for x in g:
                    if isinstance(x, tuple): e(x[0], count=False)
                    else: e(x)
        self.side_dma(self.A_side[1:])
        if not self.o.get('xrlate', 1): self.xr_load()
    def xr_load(self):
        e = self.e
        e('s_mul_i32 s29, s%d, 20480\ns_mul_i32 s31, s%d, 160\ns_add_u32 s29, s29, s31' % (sTTK, sCS))
        e('buffer_load_dwordx4 v[%d:%d], v%d, s[8:11], s29 offen' % (XR, XR + 3, vR0), count=False)
        e('buffer_load_dwordx4 v[%d:%d], v%d, s[8:11], s29 offen offset:64' % (XR + 4, XR + 7, vR0), count=False)
        e('buffer_load_dwordx2 v[%d:%d], v%d, s[8:11], s29 offen' % (XR + 8, XR + 9, vR2), count=False)
    def rowstat_finish(self, S, Q, vRS, vVE, BM, tmp):
        L = []
        L.append('v_mul_f32 v%d, %s, v%d' % (S, f32bits(1.0 / 640), S))
        L.append('v_mul_f32 v%d, %s, v%d' % (Q, f32bits(1.0 / 640), Q))
        L.append('v_fma_f32 v%d, -v%d, v%d, v%d' % (Q, S, S, Q))
        L.append('v_max_f32 v%d, 0, v%d' % (Q, Q))
        L.append('v_add_f32 v%d, %s, v%d' % (vVE, f32bits(1e-5), Q))
        L.append('v_rsq_f32 v%d, v%d' % (vRS, vVE))
        L.append('v_cvt_pk_bf16_f32 v%d, -v%d, -v%d' % (tmp, S, S))
        L.append('v_and_b32 v%d, 0xffff0000, v%d' % (tmp, tmp))
        L.append('v_sub_f32 v%d, -v%d, v%d' % (tmp, S, tmp))
        L.append('v_cvt_pk_bf16_f32 v%d, -v%d, v%d' % (BM, S, tmp))
        for k in range(1, 4): L.append('v_mov_b32 v%d, v%d' % (BM + k, BM))
        return L
    def softmax_pair(self, X, vC, EP, EM, t):
        L = []
        mx, mn, ap, am, sp, sm = range(t, t + 6)
        L.append('v_max3_f32 v%d, v%d, v%d, v%d' % (mx, X[0], X[1], X[2]))
        L.append('v_min3_f32 v%d, v%d, v%d, v%d' % (mn, X[0], X[1], X[2]))
        for k in range(3, 19, 2):
            L.append('v_max3_f32 v%d, v%d, v%d, v%d' % (mx, mx, X[k], X[k + 1]))
            L.append('v_min3_f32 v%d, v%d, v%d, v%d' % (mn, mn, X[k], X[k + 1]))
        L.append('v_max_f32 v%d, v%d, v%d' % (mx, mx, X[19]))
        L.append('v_min_f32 v%d, v%d, v%d' % (mn, mn, X[19]))
        L.append('v_mul_f32 v%d, v%d, v%d' % (ap, vC, mx))
        L.append('v_mul_f32 v%d, v%d, v%d' % (am, vC, mn))
        for f in range(20):
            L.append('v_fma_f32 v%d, v%d, v%d, -v%d' % (EP + f, X[f], vC, ap))
            L.append('v_fma_f32 v%d, -v%d, v%d, v%d' % (EM + f, X[f], vC, am))
        for f in range(20):
            L.append('v_exp_f32 v%d, v%d' % (EP + f, EP + f))
            L.append('v_exp_f32 v%d, v%d' % (EM + f, EM + f))
        L.append('v_add_f32 v%d, v%d, v%d' % (sp, EP, EP + 1))
        L.append('v_add_f32 v%d, v%d, v%d' % (sm, EM, EM + 1))
        for f in range(2, 20):
            L.append('v_add_f32 v%d, v%d, v%d' % (sp, sp, EP + f))
            L.append('v_add_f32 v%d, v%d, v%d' % (sm, sm, EM + f))
        L.append('v_rcp_f32 v%d, v%d' % (sp, sp))
        L.append('v_rcp_f32 v%d, v%d' % (sm, sm))
        for f in range(20):
            L.append('v_mul_f32 v%d, v%d, v%d' % (EP + f, EP + f, sp))
            L.append('v_mul_f32 v%d, v%d, v%d' % (EM + f, EM + f, sm))
        return L
    def stamp(self, k):
        if not self.o.get('stamps'): return
        e = self.e
        e('v_mov_b32 v222, s%d' % sL)
        e('v_lshlrev_b32 v222, 5, v222\nv_add_u32 v222, %d, v222' % k)
        e('v_cmp_eq_u32 vcc, v222, v%d' % vLANE)
        e('s_memtime s[58:59]' if self.o.get('cyc') else 's_memrealtime s[58:59]')
        e('s_waitcnt lgkmcnt(0)')
        e('v_mov_b32 v222, s58')
        e('v_cndmask_b32 v223, v223, v222, vcc')
    def stamp_items(self, k):
        if self.o.get('stamps') != 2: return []
        sub = Main(None, self.o); sub.stamp(k)
        return sub.e.items
    def stamp_flush(self):
        if not self.o.get('stamps'): return
        e = self.e
        e('s_lshl_b32 s62, s2, 2\ns_add_u32 s62, s62, s%d\ns_lshl_b32 s62, s62, 8\ns_add_u32 s62, s62, 0x%x' % (sW, TSOFF))
        e('v_lshlrev_b32 v%d, 2, v%d' % (vT0, vLANE))
        e('buffer_store_dword v223, v%d, s[4:7], s62 offen' % vT0)
    def maybe_stop(self, name):
        if self.stop == name:
            self.e.wait_all(); self.e('s_endpgm'); return True
        return False
    def vm_stream(self, items):
        st = Stream()
        for it in sorted(items, key=lambda x: x[3] if len(x) > 3 else x[0]):
            st.add(it[2], it[1], it[0])
        return st
    def flat(self, groups):
        return [x for g in groups for x in g]
    def phase_a(self):
        e = self.e; o = self.o
        T0, T1, T2, T3 = ACC, ACC + 16, ACC + 32, ACC + 48
        ST, vRS, vVE, vC, BM, AM, EP, EM, P = 112, 120, 121, 122, 124, 128, 144, 164, 184
        self.stamp(0)
        L = self.lab('a_nopoll')
        e('s_cmp_eq_u32 s%d, 0' % sL); e('s_cbranch_scc1 %s' % L)
        self.cnt(sT0, CNT_XA, sRB)
        self.poll(sT0)
        e('s_barrier')
        e.label(L)
        self.stamp(1)
        e('s_lshl_b32 s%d, s%d, 2\ns_add_u32 s%d, s%d, s%d' % (sT0, sRB, sT0, sT0, sW))
        e('s_lshl_b32 s%d, s%d, 8\ns_add_u32 s%d, s%d, s%d\ns_add_u32 s%d, s%d, 0x%x' % (sT1, sT0, sT1, sT1, sLOFF, sT1, sT1, SA))
        e('s_mul_i32 s%d, s%d, 40960\ns_add_u32 s%d, s%d, s%d\ns_add_u32 s%d, s%d, 0x%x' % (sTW, sT0, sTW, sTW, sLOFF, sTW, sTW, XA))
        def tok(s):
            g = []
            if s % 4 == 0: g.append('s_add_u32 s%d, s%d, %d' % (sB0, sTW, s * 1024))
            g.append('buffer_load_dwordx4 a[%d:%d], v%d, s[4:7], s%d offen offset:%d%s' % (4 * s, 4 * s + 3, vL16, sB0, (s % 4) * 1024, self.sc))
            return g
        NPRE = o.get('a_npre', 14)
        if o.get('tt', 0): e.extend(self.touch_tok(XA))
        for s in range(NPRE): e.extend(tok(s))
        stld = []
        for k in range(4):
            if k: stld.append('s_add_u32 s%d, s%d, 16384' % (sT1, sT1))
            stld.append('buffer_load_dwordx2 v[%d:%d], v%d, s[4:7], s%d offen sc1' % (ST + 2 * k, ST + 2 * k + 1, vSA, sT1))
        e('s_lshl_b32 s%d, s%d, 12\ns_add_u32 s%d, s%d, 0x%x' % (sT2, sJ, sT2, sT2, WAM))
        amload = ['buffer_load_dwordx4 v[%d:%d], v%d, s[4:7], s%d offen offset:%d' % (AM + 4 * t, AM + 4 * t + 3, vL16, sT2, t * 1024) for t in range(4)]
        st = []
        st += ['v_add_f32 v%d, v%d, v%d' % (ST, ST, ST + 2), 'v_add_f32 v%d, v%d, v%d' % (ST + 1, ST + 1, ST + 3),
               'v_add_f32 v%d, v%d, v%d' % (ST + 4, ST + 4, ST + 6), 'v_add_f32 v%d, v%d, v%d' % (ST + 5, ST + 5, ST + 7),
               'v_add_f32 v%d, v%d, v%d' % (ST, ST, ST + 4), 'v_add_f32 v%d, v%d, v%d' % (ST + 1, ST + 1, ST + 5),
               'v_mov_b32 v%d, v%d' % (ST + 2, ST), 'v_mov_b32 v%d, v%d' % (ST + 3, ST + 1),
               'v_permlane32_swap_b32 v%d, v%d' % (ST, ST + 2), 'v_permlane32_swap_b32 v%d, v%d' % (ST + 1, ST + 3),
               'v_add_f32 v%d, v%d, v%d' % (ST, ST, ST + 2), 'v_add_f32 v%d, v%d, v%d' % (ST + 1, ST + 1, ST + 3)]
        st += self.rowstat_finish(ST, ST + 1, vRS, vVE, BM, ST + 2)
        st += ['v_mul_f32 v%d, %s, v%d' % (vC, f32bits(LOG2E), vRS)]
        LA = 5
        def frag_info(n):
            if n < 120: return n // 3, n % 3
            return n - 120, 3
        def read(n): return self.ring_read(AF + 4 * (n % 8), A0 + n // 20, (n % 20) * 1024)
        def mfma(n):
            s, tau = frag_info(n); acc = ACC + 16 * tau; a = AF + 4 * (n % 8)
            c = '0' if s == 0 else 'v[%d:%d]' % (acc, acc + 15)
            return 'v_mfma_f32_32x32x16_bf16 v[%d:%d], v[%d:%d], a[%d:%d], %s' % (acc, acc + 15, a, a + 3, 4 * s, 4 * s + 3, c)
        def mean(tau):
            acc = ACC + 16 * tau
            return 'v_mfma_f32_32x32x16_bf16 v[%d:%d], v[%d:%d], v[%d:%d], v[%d:%d]' % (acc, acc + 15, AM + 4 * tau, AM + 4 * tau + 3, BM, BM + 3, acc, acc + 15)
        ksm = self.softmax_pair([T0 + r for r in range(16)] + [T1 + r for r in range(4)], vC, EP, EM, ST)
        for d in range(10): ksm.append('v_cvt_pk_bf16_f32 v%d, v%d, v%d' % (P + d, EP + 2 * d, EP + 2 * d + 1))
        for d in range(10): ksm.append('v_cvt_pk_bf16_f32 v%d, v%d, v%d' % (P + 10 + d, EM + 2 * d, EM + 2 * d + 1))
        V = [T1 + r for r in range(4, 16)] + [T2 + r for r in range(8)]
        for f in range(20): ksm.append('v_mul_f32 v%d, v%d, v%d' % (V[f], V[f], vRS))
        for d in range(10): ksm.append('v_cvt_pk_bf16_f32 v%d, v%d, v%d' % (P + 20 + d, V[2 * d], V[2 * d + 1]))
        ksm += ['v_mov_b32 v%d, 0x3f80' % (P + 30), 'v_mov_b32 v%d, 0' % (P + 31)]
        anchors = []; pre = {}; fixed = {}; idx = {}
        KF = o.get('kvfirst', 1)
        NF1 = 140 if KF else 160
        for n in range(NF1):
            if n == 120:
                idx['mean'] = len(anchors)
                anchors += [mean(t) for t in range(3)]
            idx[n] = len(anchors)
            anchors.append(mfma(n))
            fixed[idx[n]] = ([read(n + LA)] if n + LA < NF1 else []) + ([Need('v[%d:%d]' % (AF + 4 * ((n + 1) % 8), AF + 4 * ((n + 1) % 8) + 3))] if n + 1 < NF1 else [])
        if not KF: anchors.append(mean(3))
        for ep in range(1, 7 if KF else 8):
            at = idx['mean'] if ep == 6 else idx[20 * ep]
            pre[at] = ([W_tag('blk%d' % (A0 + ep + 1))] if ep < 7 else []) + ['s_barrier']
            if self.o.get('fine') == 'a': pre[at] += self.stamp_items(19 + ep - 1)
        items = [(3 * s, 0, tok(s)) for s in range(NPRE, 40)]
        if not o.get('ampre_a', 0): items.append((90, 0, amload))
        if o.get('tw', 0): items.append((30, 0, self.touch_w('B')))
        items.append((o.get('a_stdl', 64), 0, stld))
        for b in self.A_in: items.append((20 * (b - 1), 0, self.flat(self.dma_ops(b))))
        last_in = o.get('a_lastblk', 11)
        for b in range(6, last_in + 1):
            free = 20 * (b - 5) if b - 5 < 6 else idx['mean']
            assert not KF or b <= 11
            items.append((20 * (b - 1) if b < 8 else 200 + b, free, self.flat(self.dma_ops(b))))
        if o.get('merged', 0):
            sub = Main(None, self.o); sub.nlab = self.nlab + 2000; q = sub.e
            Lr = 'M_restld'
            q('s_cmp_lg_u32 s%d, 0' % sL); q('s_cbranch_scc1 %s' % Lr)
            q('v_min_u32 v%d, 15, v%d\nv_lshlrev_b32 v%d, 7, v%d\ns_mov_b32 s%d, 0x%x' % (vT1, vLANE, vT1, vT1, sT3, CNT_REST))
            q('buffer_load_dword v%d, v%d, s[4:7], s%d offen sc1' % (vPOLL, vT1, sT3), count=False)
            q.label(Lr)
            e.extend(q.items)
            sub = Main(None, self.o); sub.nlab = self.nlab + 3000; q = sub.e
            Lk = 'M_restok'; Ll = 'M_restsp'
            q('s_cmp_lg_u32 s%d, 0' % sL); q('s_cbranch_scc1 %s' % Lk)
            q('s_mov_b32 s%d, 0' % sPC)
            q.label(Ll)
            q('v_cmp_gt_u32 vcc, 16, v%d' % vPOLL)
            q('s_cbranch_vccz %s' % Lk)
            q('s_cmp_lg_u32 s%d, 0' % sDEAD); q('s_cbranch_scc1 %s' % Lk)
            q('buffer_load_dword v%d, v%d, s[4:7], s%d offen sc1' % (vPOLL, vT1, sT3), count=False)
            q('s_waitcnt vmcnt(0)', count=False)
            q('s_add_u32 s%d, s%d, 1' % (sPC, sPC)); q('s_cmp_lt_u32 s%d, %d' % (sPC, SPIN_LIMIT)); q('s_cbranch_scc1 %s' % Ll)
            q('s_mov_b32 s%d, 1' % sDEAD)
            q.label(Lk)
            pre[idx[60]] = q.items + pre[idx[60]]
        vs = self.vm_stream(items)
        valu = Stream(st, o.get('a_stv', 90)).add(ksm, idx[120] + 1)
        if o.get('fine') == 'a0': e.extend(self.stamp_items(19))
        e.wait_tag('blk0'); e.wait_tag('blk1')
        if self.A_tail:
            Lw = self.lab('a_l0w')
            e('s_cmp_lg_u32 s%d, 0' % sL); e('s_cbranch_scc1 %s' % Lw)
            e('s_waitcnt vmcnt(0)', count=False)
            e.label(Lw)
        e('s_barrier')
        if o.get('fine') == 'a0':
            e.extend(self.stamp_items(20))
            for k, at in enumerate((1, 3, 6, 9, 12, 15, 18)):
                pre[at] = pre.get(at, []) + self.stamp_items(21 + k)
        for n in range(LA): e(read(n))
        stt = {}
        e.extend(schedule(anchors, 5, pre, fixed, [vs, valu], vm_gap=o.get('a_gap', 2), state=stt))
        if o.get('verbose'): print('a forced', stt.get('forced'), 'left', len(vs.q), len(valu.q))
        e.extend([y[0] for y in vs.q]); e.extend([y[0] for y in valu.q])
        self.a_late = list(range(last_in + 1, 13))
        self.stamp(2)
        for m in range(8):
            e('ds_write_b128 v%d, v[%d:%d] offset:%d' % (vTW, P + 4 * m, P + 4 * m + 3, 16 * m))
        e.wait_lgkm0()
        e('s_barrier')
        KD = T0
        def kvread(ks):
            b = AF + 8 * (ks % 4)
            return ['ds_read_b64_tr_b16 v[%d:%d], v%d offset:%d' % (b, b + 1, vKA, ks * 2304),
                    'ds_read_b64_tr_b16 v[%d:%d], v%d offset:%d' % (b + 2, b + 3, vKA, ks * 2304 + 576),
                    'ds_read_b64_tr_b16 v[%d:%d], v%d offset:%d' % (b + 4, b + 5, vKB, ks * 2304),
                    'ds_read_b64_tr_b16 v[%d:%d], v%d offset:%d' % (b + 6, b + 7, vKB, ks * 2304 + 576)]
        for ks in range(3): e.extend(kvread(ks))
        for ks in range(8):
            if ks + 3 < 8: e.extend(kvread(ks + 3))
            b = AF + 8 * (ks % 4)
            e('v_mfma_f32_32x32x16_bf16 v[%d:%d], v[%d:%d], v[%d:%d], %s' % (KD, KD + 15, b, b + 3, b + 4, b + 7, '0' if ks == 0 else 'v[%d:%d]' % (KD, KD + 15)))
        PK = EP
        for d in range(6): e('v_cvt_pk_bf16_f32 v%d, v%d, v%d' % (PK + d, KD + 2 * d, KD + 2 * d + 1))
        e('s_lshl_b32 s%d, s%d, 4\ns_add_u32 s%d, s%d, s%d\ns_lshl_b32 s%d, s%d, 12' % (sT0, sJ, sT0, sT0, sRB, sT0, sT0))
        e('s_add_u32 s%d, s%d, s%d\ns_add_u32 s%d, s%d, 0x%x' % (sT0, sT0, sLOFF, sT0, sT0, KVP))
        if o.get('reuse'): e('s_lshl_b32 s%d, s%d, 20\ns_add_u32 s%d, s%d, s%d' % (sT3, sL, sT0, sT0, sT3))
        e('buffer_store_dwordx4 v[%d:%d], v%d, s[4:7], s%d offen sc1' % (PK, PK + 3, vPS1, sT0))
        e('buffer_store_dwordx2 v[%d:%d], v%d, s[4:7], s%d offen sc1' % (PK + 4, PK + 5, vPS2, sT0))
        self.cnt(sT1, CNT_KV, sJ)
        self.signal(sT1)
        self.stamp(3)
        if o.get('tw', 0): e.extend(self.touch_w('C'))
        self.side_dma(self.a_late)
        if o.get('xrlate', 1):
            Lx = self.lab('xr')
            e('s_cmp_lg_u32 s%d, 0' % sL); e('s_cbranch_scc1 %s' % Lx)
            self.xr_load()
            e.label(Lx)
        ZR = EM
        zf = ['v_mov_b32 v%d, 0' % (ZR + r) for r in range(4)]
        zf += ['v_lshlrev_b32 v%d, 4, v0' % vT1, 'v_add_u32 v%d, 0x%x, v%d' % (vT1, SCR, vT1)]
        zf += ['ds_write_b128 v%d, v[%d:%d] offset:%d' % (vT1, ZR, ZR + 3, m * 4096) for m in range(3)]
        if KF:
            an2 = []; fx2 = {}
            for n in range(NF1, NF1 + LA): e(read(n))
            for n in range(NF1, 160):
                fx2[len(an2)] = ([read(n + LA)] if n + LA < 160 else []) + ([Need('v[%d:%d]' % (AF + 4 * ((n + 1) % 8), AF + 4 * ((n + 1) % 8) + 3))] if n + 1 < 160 else [])
                an2.append(mfma(n))
            an2.append(mean(3))
            z = Stream(zf)
            e.extend(schedule(an2, 5, {}, fx2, [z]))
            e.extend([y[0] for y in z.q])
        else:
            e.extend(zf)
        Q = P
        X = [T2 + r for r in range(8, 16)] + [T3 + r for r in range(12)]
        e.extend(self.softmax_pair(X, vC, EP, EM, ST))
        order = []
        for sign in (EP, EM):
            order += [(sign + 0), (sign + 2), (sign + 8), (sign + 10), (sign + 4), (sign + 6), (sign + 12), (sign + 14)]
        order += [EP + 16, EP + 18, EM + 16, EM + 18]
        for d, r in enumerate(order): e('v_cvt_pk_bf16_f32 v%d, v%d, v%d' % (Q + d, r, r + 1))
        e.wait_lgkm0()
        self.stamp(4)
        self.poll(sT1)
        e('s_barrier')
        self.stamp(5)
        if self.maybe_stop('a1'): return True
        LD, SUM, PKK = 112, 176, 204
        e('s_lshl_b32 s%d, s%d, 16\ns_add_u32 s%d, s%d, s%d\ns_add_u32 s%d, s%d, 0x%x' % (sT0, sJ, sT0, sT0, sLOFF, sT0, sT0, KVP))
        if o.get('reuse'): e('s_lshl_b32 s%d, s%d, 20\ns_add_u32 s%d, s%d, s%d' % (sT3, sL, sT0, sT0, sT3))
        for p in range(16):
            if p: e('s_add_u32 s%d, s%d, 4096' % (sT0, sT0))
            e('buffer_load_dwordx4 v[%d:%d], v%d, s[4:7], s%d offen sc1' % (LD + 4 * p, LD + 4 * p + 3, vPL, sT0))
        e('v_mov_b32 v%d, 0x00003f80\nv_mov_b32 v%d, 0x3f800000' % (vT2, vT3))
        for k in range(8): e('v_mov_b32 v%d, 0' % (SUM + k))
        for p in range(16):
            for d in range(4):
                e('v_dot2c_f32_bf16 v%d, v%d, v%d' % (SUM + 2 * d, LD + 4 * p + d, vT2))
                e('v_dot2c_f32_bf16 v%d, v%d, v%d' % (SUM + 2 * d + 1, LD + 4 * p + d, vT3))
        for d in range(4): e('v_cvt_pk_bf16_f32 v%d, v%d, v%d' % (PKK + d, SUM + 2 * d, SUM + 2 * d + 1))
        e('ds_write_b128 v%d, v[%d:%d]' % (vAW, PKK, PKK + 3))
        e('ds_write_b64 v%d, v[%d:%d]' % (vAW2, PKK, PKK + 1))
        e.wait_lgkm0()
        e('s_barrier')
        e('v_add_u32 v%d, 0x%x, v%d' % (vT1, SCR, vL16))
        for n in range(8): e('ds_read_b128 v[%d:%d], v%d offset:%d' % (AF + 4 * n, AF + 4 * n + 3, vT1, n * 1024))
        G0, G1 = T0, T1
        for n in range(10):
            rho, s = n // 5, n % 5
            acc = G0 if rho == 0 else G1
            a = AF + 4 * (n % 8)
            e('v_mfma_f32_32x32x16_bf16 v[%d:%d], v[%d:%d], v[%d:%d], %s' % (acc, acc + 15, a, a + 3, Q + 4 * s, Q + 4 * s + 3, '0' if s == 0 else 'v[%d:%d]' % (acc, acc + 15)))
            if n < 2: e('ds_read_b128 v[%d:%d], v%d offset:%d' % (a, a + 3, vT1, (n + 8) * 1024))
        e('v_add_f32 v%d, %s, v%d' % (vT2, f32bits(1e-6), G1 + 4))
        e('v_rcp_f32 v%d, v%d' % (vT2, vT2))
        OP = 208
        src = [G0 + r for r in range(16)] + [G1 + r for r in range(4)]
        for r in src: e('v_mul_f32 v%d, v%d, v%d' % (r, r, vT2))
        for d in range(10): e('v_cvt_pk_bf16_f32 v%d, v%d, v%d' % (OP + d, src[2 * d], src[2 * d + 1]))
        e('s_lshl_b32 s%d, s%d, 3\ns_lshl_b32 s%d, s%d, 1\ns_add_u32 s%d, s%d, s%d\ns_mul_i32 s%d, s%d, 20480' % (sT0, sRB, sT1, sW, sT0, sT0, sT1, sT0, sT0))
        e('s_add_u32 s%d, s%d, s%d\ns_add_u32 s%d, s%d, 0x%x' % (sT0, sT0, sLOFF, sT0, sT0, O))
        e('buffer_store_dwordx4 v[%d:%d], v%d, s[4:7], s%d offen sc1' % (OP, OP + 3, vO0, sT0))
        e('buffer_store_dwordx4 v[%d:%d], v%d, s[4:7], s%d offen sc1' % (OP + 4, OP + 7, vO1, sT0))
        e('buffer_store_dwordx2 v[%d:%d], v%d, s[4:7], s%d offen sc1' % (OP + 8, OP + 9, vO2, sT0))
        self.stamp(6)
        self.cnt(sT1, CNT_O, sRB)
        self.signal(sT1)
        self.stamp(7)
        self.side_dma([C0])
        return self.maybe_stop('a')
    def gemm_bd(self, first_blk, nsteps, vs, pre_extra, valu, breg=None):
        e = self.e
        LA = 5
        nf = nsteps * 5
        def read(n):
            i, tau = n // 5, n % 5
            return self.ring_read(AF + 4 * (n % 8), first_blk + i // 2, (i & 1) * 10240 + tau * 1024, kh=True)
        def mf(n, u):
            i, tau = n // 5, n % 5
            acc = ACC + (tau * 2 + u) * 4; a = AF + 4 * (n % 8); b = breg(i, u) if breg else (2 * i + u) * 4
            c = '0' if i == 0 else 'v[%d:%d]' % (acc, acc + 3)
            return 'v_mfma_f32_16x16x32_bf16 v[%d:%d], v[%d:%d], a[%d:%d], %s' % (acc, acc + 3, a, a + 3, b, b + 3, c)
        anchors = []; pre = {}; fixed = {}
        for n in range(nf):
            anchors += [mf(n, 0), mf(n, 1)]
            if n + LA < nf: fixed[2 * n] = [read(n + LA)]
            if n + 1 < nf: fixed[2 * n + 1] = [Need('v[%d:%d]' % (AF + 4 * ((n + 1) % 8), AF + 4 * ((n + 1) % 8) + 3))]
        nep = nsteps // 2
        for ep in range(1, nep):
            pre[20 * ep] = list(pre_extra.get(ep, [])) + ([W_tag('blk%d' % (first_blk + ep + 1))] if ep + 1 < nep else []) + ['s_barrier']
            if self.o.get('fine') == 'd' and nsteps == 24: pre[20 * ep] += self.stamp_items(19 + ep - 1)
        for n in range(LA): e(read(n))
        stt = {}
        e.extend(schedule(anchors, 2, pre, fixed, [vs, valu], vm_gap=self.o.get('d_gap', 2), state=stt))
        if self.o.get('verbose'): print('bd forced', stt.get('forced'), 'left', len(vs.q), len(valu.q))
        e.extend([y[0] for y in vs.q]); e.extend([y[0] for y in valu.q])
    def bd_unpack(self):
        U = 112; L = []
        for d in range(10):
            L.append('v_lshlrev_b32 v%d, 16, v%d' % (U + 2 * d, XR + d))
            L.append('v_and_b32 v%d, 0xffff0000, v%d' % (U + 2 * d + 1, XR + d))
        return L
    def bd_epilogue(self, last_blk, final):
        e = self.e
        EX = 88
        for tau in range(5):
            a = ACC + (tau * 2 + 1) * 4
            e('ds_write_b128 v%d, v[%d:%d] offset:%d' % (vEXW, a, a + 3, tau * 1024))
        e.wait_lgkm0()
        e('s_barrier')
        for tau in range(5):
            e('ds_read_b128 v[%d:%d], v%d offset:%d' % (EX + 4 * tau, EX + 4 * tau + 3, vEXR, tau * 1024))
        U = 112
        for tau in range(5):
            a = ACC + (tau * 2) * 4
            for c in range(4):
                e('v_add_f32 v%d, v%d, v%d' % (U + 4 * tau + c, U + 4 * tau + c, a + c))
        for tau in range(5):
            for c in range(4):
                e('v_add_f32 v%d, v%d, v%d' % (U + 4 * tau + c, U + 4 * tau + c, EX + 4 * tau + c))
        for d in range(10): e('v_cvt_pk_bf16_f32 v%d, v%d, v%d' % (XR + d, U + 2 * d, U + 2 * d + 1))
        final()
    def bd_stats(self, base_off, next_layer):
        e = self.e
        S, Q = 136, 137
        e('v_mov_b32 v%d, 0\nv_mov_b32 v%d, 0' % (S, Q))
        for d in range(10):
            e('v_dot2c_f32_bf16 v%d, v%d, v%d' % (S, XR + d, vONES))
            e('v_dot2c_f32_bf16 v%d, v%d, v%d' % (Q, XR + d, XR + d))
        for sw in ('v_permlane16_swap_b32', 'v_permlane32_swap_b32'):
            e('v_mov_b32 v138, v%d\nv_mov_b32 v139, v%d' % (S, Q))
            e('%s v%d, v138\n%s v%d, v139' % (sw, S, sw, Q))
            e('v_add_f32 v%d, v%d, v138\nv_add_f32 v%d, v%d, v139' % (S, S, Q, Q))
        e('s_lshl_b32 s%d, s%d, 7\ns_lshl_b32 s%d, s%d, 14\ns_add_u32 s%d, s%d, s%d' % (sT2, sTTK, sT3, sCS, sT2, sT2, sT3))
        e('s_add_u32 s%d, s%d, s%d\ns_add_u32 s%d, s%d, 0x%x' % (sT2, sT2, sLOFF, sT2, sT2, base_off + (self.lstride if next_layer else 0)))
        if not self.o.get('nostats'): e('buffer_store_dwordx2 v[%d:%d], v%d, s[4:7], s%d offen sc1' % (S, Q, vST, sT2))
    def phase_b(self):
        e = self.e
        self.cnt(sT0, CNT_O, sRB)
        for (s, tt) in ((sB0, sTTK), (sB1, sTTS)):
            e('s_mul_i32 s%d, s%d, 20\ns_mul_i32 s%d, s%d, 10\ns_add_u32 s%d, s%d, s%d\ns_lshl_b32 s%d, s%d, 10' % (s, tt, sT1, sKH, s, s, sT1, s, s))
            e('s_add_u32 s%d, s%d, s%d\ns_add_u32 s%d, s%d, 0x%x' % (s, s, sLOFF, s, s, O))
        def tok(i, u):
            s = sB0 if u == 0 else sB1
            t = sC1 + u
            g = []
            if i % 4 == 0: g.append('s_add_u32 s%d, s%d, %d' % (t, s, i * 1024))
            g.append('buffer_load_dwordx4 a[%d:%d], v%d, s[4:7], s%d offen offset:%d%s' % ((2 * i + u) * 4, (2 * i + u) * 4 + 3, vL16, t, (i % 4) * 1024, self.sc))
            return g
        e.wait_tag('blk%d' % B0); e.wait_tag('blk%d' % (B0 + 1))
        self.poll(sT0)
        e('s_barrier')
        self.stamp(8)
        NPRE = self.o.get('b_npre', 10)
        for i in range(NPRE):
            for u in range(2): e.extend(tok(i, u))
        items = [(10 * i, 0, tok(i, 0) + tok(i, 1)) for i in range(NPRE, 10)]
        for k, b in enumerate(self.C_tail): items.append((5000 + b, 20 * (k + 1), self.flat(self.dma_ops(b))))
        vs = self.vm_stream(items)
        self.gemm_bd(B0, 10, vs, {}, Stream(self.bd_unpack(), 60))
        self.stamp(9)
        def final():
            e('s_mul_i32 s%d, s%d, 20480\ns_add_u32 s%d, s%d, s%d\ns_add_u32 s%d, s%d, 0x%x' % (sT0, sTTK, sT0, sT0, sLOFF, sT0, sT0, XC))
            e('buffer_store_dwordx4 v[%d:%d], v%d, s[4:7], s%d offen sc1' % (XR, XR + 3, vX0, sT0))
            e('buffer_store_dwordx4 v[%d:%d], v%d, s[4:7], s%d offen sc1' % (XR + 4, XR + 7, vX1, sT0))
            e('buffer_store_dwordx2 v[%d:%d], v%d, s[4:7], s%d offen sc1' % (XR + 8, XR + 9, vX2, sT0))
            self.bd_stats(SC, False)
            self.cnt(sT1, CNT_XC, sRB)
            self.signal(sT1)
            self.stamp(10)
            if self.o.get('ampre', 1): self.am_c()
            self.side_dma(self.C_side)
        self.bd_epilogue(B0 + 4, final)
        return self.maybe_stop('b')
    def gelu_ops(self, accset, u, c0, c1, vVE, HP, t):
        L = []
        G = [accset + (p * 2 + u) * 4 + c for p in range(2) for c in range(4)]
        U = [accset + ((2 + p) * 2 + u) * 4 + c for p in range(2) for c in range(4)]
        g = [t + i for i in range(8)]; w = [t + 8 + i for i in range(8)]
        for h in range(2):
            R = range(4 * h, 4 * h + 4)
            for i in R: L.append('v_mul_f32 v%d, v%d, v%d' % (w[i], G[i], G[i]))
            for i in R: L.append('v_fma_f32 v%d, v%d, v%d, v%d' % (w[i], w[i], c1, c0))
            for i in R: L.append('v_mul_f32 v%d, v%d, v%d' % (w[i], w[i], G[i]))
            for i in R:
                L.append('v_exp_f32 v%d, v%d' % (w[i], w[i]))
                L.append('v_mul_f32 v%d, v%d, v%d' % (g[i], G[i], U[i]))
            for i in R: L.append('v_fma_f32 v%d, v%d, v%d, v%d' % (w[i], w[i], vVE, vVE))
            for i in R: L.append('v_rcp_f32 v%d, v%d' % (w[i], w[i]))
            for i in R: L.append('v_mul_f32 v%d, v%d, v%d' % (g[i], g[i], w[i]))
            for d in (2 * h, 2 * h + 1): L.append('v_cvt_pk_bf16_f32 v%d, v%d, v%d' % (HP + d, g[2 * d], g[2 * d + 1]))
        return L
    def check_flag(self, vreg, cnt_sgpr, target=16):
        sub = Asm()
        X = self.lab('ck'); L = self.lab('ckl')
        sub('v_cmp_gt_u32 vcc, %d, v%d' % (target, vreg))
        sub('s_cbranch_vccz %s' % X)
        sub('s_cmp_lg_u32 s%d, 0' % sDEAD); sub('s_cbranch_scc1 %s' % X)
        sub('s_mov_b32 s%d, 0' % sPC)
        sub.label(L)
        sub('buffer_load_dword v%d, v%d, s[4:7], s%d offen sc1' % (vreg, vZERO, cnt_sgpr), count=False)
        sub('s_waitcnt vmcnt(0)', count=False)
        sub('v_cmp_gt_u32 vcc, %d, v%d' % (target, vreg))
        sub('s_cbranch_vccz %s' % X)
        sub('s_add_u32 s%d, s%d, 1' % (sPC, sPC)); sub('s_cmp_lt_u32 s%d, %d' % (sPC, SPIN_LIMIT))
        sub('s_cbranch_scc1 %s' % L)
        sub('s_mov_b32 s%d, 1' % sDEAD)
        sub.label(X)
        return sub.items
    def phase_c(self):
        e = self.e; o = self.o
        ST, RS, VE, BMs, AM, GT, HP = 112, (120, 121), (122, 123), (124, 132), 136, 152, (168, 172)
        GC0, GC1 = (176, 177), (178, 179)
        k0 = -2.0 * 0.7978845608028654 * LOG2E
        self.cnt(sT0, CNT_XC, sRB)
        e('s_lshl_b32 s%d, s%d, 3\ns_lshl_b32 s%d, s%d, 1\ns_add_u32 s%d, s%d, s%d' % (sT2, sRB, sT1, sW, sT2, sT2, sT1))
        e('s_lshl_b32 s%d, s%d, 7\ns_add_u32 s%d, s%d, s%d\ns_add_u32 s%d, s%d, 0x%x' % (sT1, sT2, sT1, sT1, sLOFF, sT1, sT1, SC))
        e('s_mul_i32 s%d, s%d, 20480\ns_add_u32 s%d, s%d, s%d\ns_add_u32 s%d, s%d, 0x%x' % (sB0, sT2, sB0, sB0, sLOFF, sB0, sB0, XC))
        e('s_add_u32 s%d, s%d, 20480' % (sB1, sB0))
        e('s_mul_i32 s%d, s%d, 48\ns_add_u32 s%d, s%d, s%d\ns_lshl_b32 s%d, s%d, 10' % (sTW, sT2, sTW, sTW, sJ, sTW, sTW))
        e('s_add_u32 s%d, s%d, s%d\ns_add_u32 s%d, s%d, 0x%x' % (sTW, sTW, sLOFF, sTW, sTW, HH))
        if not o.get('ampre', 1): e('s_mul_i32 s%d, s%d, %d\ns_add_u32 s%d, s%d, 0x%x' % (sT4, sJ, 12 * KB, sT4, sT4, WCM))
        self.poll(sT0)
        e('s_barrier')
        self.stamp(11)
        def tok(s, u):
            sb = sB0 if u == 0 else sB1; t = sC1 + u
            g = []
            if s % 4 == 0: g.append('s_add_u32 s%d, s%d, %d' % (t, sb, s * 1024))
            g.append('buffer_load_dwordx4 a[%d:%d], v%d, s[4:7], s%d offen offset:%d%s' % ((2 * s + u) * 4, (2 * s + u) * 4 + 3, vL16, t, (s % 4) * 1024, self.sc))
            return g
        NPRE = o.get('c_npre', 8)
        if o.get('tt', 0): e.extend(self.touch_tok(XC))
        for s in range(NPRE):
            for u in range(2): e.extend(tok(s, u))
        stld = []
        for k in range(2):
            if k: stld.append('s_add_u32 s%d, s%d, 16384' % (sT1, sT1))
            for u in range(2):
                stld.append('buffer_load_dwordx2 v[%d:%d], v%d, s[4:7], s%d offen offset:%d sc1' % (ST + 4 * u + 2 * k, ST + 4 * u + 2 * k + 1, vSC, sT1, 128 * u))
        def amload(sg):
            pre = [] if sg == 0 else ['s_add_u32 s%d, s%d, 4096' % (sT4, sT4)]
            return pre + ['buffer_load_dwordx4 v[%d:%d], v%d, s[4:7], s%d offen offset:%d' % (AM + 4 * t, AM + 4 * t + 3, vL16, sT4, t * 1024) for t in range(4)]
        st = []
        for u in range(2):
            b = ST + 4 * u
            st += ['v_add_f32 v%d, v%d, v%d' % (b, b, b + 2), 'v_add_f32 v%d, v%d, v%d' % (b + 1, b + 1, b + 3)]
            for sw in ('v_permlane16_swap_b32', 'v_permlane32_swap_b32'):
                st += ['v_mov_b32 v%d, v%d' % (b + 2, b), 'v_mov_b32 v%d, v%d' % (b + 3, b + 1),
                       '%s v%d, v%d' % (sw, b, b + 2), '%s v%d, v%d' % (sw, b + 1, b + 3),
                       'v_add_f32 v%d, v%d, v%d' % (b, b, b + 2), 'v_add_f32 v%d, v%d, v%d' % (b + 1, b + 1, b + 3)]
            st += self.rowstat_finish(b, b + 1, RS[u], VE[u], BMs[u], b + 2)
            st += ['v_mul_f32 v%d, %s, v%d' % (GC0[u], f32bits(k0), RS[u]),
                   'v_mul_f32 v%d, v%d, v%d' % (GC1[u], RS[u], RS[u]),
                   'v_mul_f32 v%d, v%d, v%d' % (GC1[u], GC1[u], GC0[u]),
                   'v_mul_f32 v%d, %s, v%d' % (GC1[u], f32bits(0.044715), GC1[u])]
        LA = 5
        def read(n): return self.ring_read(AF + 4 * (n % 8), C0 + n // 20, (n % 20) * 1024)
        def mf(n, u):
            sg, r = n // 80, n % 80; s, tl = r // 4, r % 4
            acc = ACC + 32 * (sg & 1) + (tl * 2 + u) * 4; a = AF + 4 * (n % 8); b = (2 * s + u) * 4
            c = '0' if s == 0 else 'v[%d:%d]' % (acc, acc + 3)
            return 'v_mfma_f32_16x16x32_bf16 v[%d:%d], v[%d:%d], a[%d:%d], %s' % (acc, acc + 3, a, a + 3, b, b + 3, c)
        def mean(sg):
            L = []
            for tl in range(4):
                for u in range(2):
                    acc = ACC + 32 * (sg & 1) + (tl * 2 + u) * 4
                    L.append('v_mfma_f32_16x16x32_bf16 v[%d:%d], v[%d:%d], v[%d:%d], v[%d:%d]' % (acc, acc + 3, AM + 4 * tl, AM + 4 * tl + 3, BMs[u], BMs[u] + 3, acc, acc + 3))
            return L
        def gelu_store(sg):
            L = []
            for u in range(2):
                L += self.gelu_ops(ACC + 32 * (sg & 1), u, GC0[u], GC1[u], VE[u], HP[u], GT)
                L.append('s_add_u32 s%d, s%d, %d' % (sT5, sTW, u * 48 * 1024 + sg * 16 * 1024))
                L.append(('buffer_store_dwordx4 v[%d:%d], v%d, s[4:7], s%d offen sc1' % (HP[u], HP[u] + 3, vL16, sT5), 'h%d' % sg))
            return L
        def ix(n): return 2 * n + 8 * (n // 80)
        items = [(ix(4 * s), 0, tok(s, 0) + tok(s, 1)) for s in range(NPRE, 20)]
        for b in self.C_in:
            dl = ix(20 * (b - C0 - 1)) - (8 if (b - C0 - 1) % 4 == 0 and b > C0 + 1 else 0)
            items.append((dl, 0, self.flat(self.dma_ops(b)), dl - o.get('c_lead', 40)))
        r8 = o.get('ring8', 1)
        last_in = o.get('c_lastblk', D0 + 5 if r8 else D0 + 3)
        for b in range(C0 + 6, last_in + 1):
            free = 20 * (b - C0 - 5)
            if r8 and b >= D0: free = o.get('c_x0', 100) + 20 * (b - D0) if b < D0 + 2 else 20 * (b - 20)
            epn = b - C0 - 1
            dl = ix(20 * epn) - (8 if epn % 4 == 0 else 0) if b < D0 else 100000 + b
            early = ix(free) - (8 if free % 80 == 0 else 0)
            key = max(early, ix(76)) + (0 if b < D0 else 1)
            items.append((dl, early, self.flat(self.dma_ops(b)), key))
        if not o.get('ampre', 1): items.append((ix(60), 0, amload(0)))
        if o.get('tw', 0): items.append((ix(90), ix(84), self.touch_w('D')))
        items.append((ix(o.get('c_stdl', 44)), 0, stld))
        items.append((ix(150), ix(80), amload(1), ix(80)))
        items.append((ix(230), ix(160), amload(2), ix(160)))
        self.cnt(sT0, CNT_H, sRB, mul=384)
        FL, CKC = o.get('c_fl', 190), o.get('c_ck', 206)
        items.append((ix(CKC) - 1, ix(FL), ['buffer_load_dword v%d, v%d, s[4:7], s%d offen sc1' % (vPOLL, vZERO, sT0)], ix(FL)))
        dtoks = [self.d_tok(i, u) for i in range(8) for u in range(2)]
        for k, g in enumerate(dtoks): items.append((90000 + k, ix(CKC), g, ix(CKC) + 0.01 * k))
        vs = self.vm_stream(items)
        e.wait_tag('blk%d' % C0); e.wait_tag('blk%d' % (C0 + 1))
        e('s_barrier')
        for n in range(LA): e(read(n))
        pos = 0; cstate = {}
        for sg in range(3):
            anchors = []; pre = {}; fixed = {}
            if sg > 0: anchors += mean(sg - 1)
            for n in range(80 * sg, 80 * sg + 80):
                assert pos + len(anchors) == ix(n)
                anchors += [mf(n, 0), mf(n, 1)]
                if n + LA < 240: fixed[ix(n)] = [read(n + LA)]
                if n + 1 < 240: fixed[ix(n) + 1] = [Need('v[%d:%d]' % (AF + 4 * ((n + 1) % 8), AF + 4 * ((n + 1) % 8) + 3))]
            for ep in range(4 * sg, 4 * sg + 4):
                if ep == 0: continue
                at = ix(20 * ep) - (8 if ep % 4 == 0 else 0)
                p = [W_tag('blk%d' % (C0 + ep + 1))] if ep < 11 else []
                if ep == o.get('h0ep', 9): p.append(W_tag('h0'))
                p.append('s_barrier')
                if self.o.get('fine') == 'c': p += self.stamp_items(19 + ep - 1)
                if ep == o.get('h0ep', 9):
                    sub = Main(None, self.o); sub.nlab = self.nlab + 1000
                    sub.signal_only(sT0)
                    p += sub.e.items
                pre[at] = p
            if sg == 2:
                sub = Main(None, self.o); sub.nlab = self.nlab + 4000
                sub.d_bases()
                pre[ix(CKC)] = pre.get(ix(CKC), []) + [W_vreg(vPOLL)] + self.check_flag(vPOLL, sT0) + sub.e.items
            valu = Stream(st, ix(o.get('c_stv', 56))) if sg == 0 else Stream(gelu_store(sg - 1), pos + 10)
            e.extend(schedule(anchors, 2, pre, fixed, [vs, valu], start=pos, vm_gap=(o.get('c_gap', 4) if sg == 0 else o.get('c_gap2', 4)), state=cstate))
            e.extend([y[0] for y in valu.q])
            pos += len(anchors)
        if self.o.get('verbose'): print('c forced', cstate.get('forced'), 'left', len(vs.q))
        self.stamp(12)
        tail = mean(2) + gelu_store(2)
        left = [y[0] for y in vs.q]; del vs.q[:]
        nvm = max(1, sum(1 for x in left if is_vm(x)))
        step = max(1, (len(tail) - 8) // (nvm + 1))
        for n, x in enumerate(tail):
            if left and n % step == 0:
                while left:
                    y = left.pop(0); e.extend([y])
                    if is_vm(y): break
            e.extend([x])
        e.extend(left)
        self.cnt(sT1, CNT_H, sRB, mul=384, add=256)
        self.signal(sT1)
        self.stamp(13)
        self.c_last = last_in
        return self.maybe_stop('c')
    def d_bases(self):
        e = self.e
        for (s, tt) in ((sB0, sTTK), (sB1, sTTS)):
            e('s_mul_i32 s%d, s%d, 48\ns_add_u32 s%d, s%d, s%d\ns_lshl_b32 s%d, s%d, 10' % (s, tt, s, s, sKH, s, s))
            e('s_add_u32 s%d, s%d, s%d\ns_add_u32 s%d, s%d, 0x%x' % (s, s, sLOFF, s, s, HH))
    def d_tok(self, i, u):
        sg, jj = i // 8, i % 8
        s = sB0 if u == 0 else sB1; t = sC1 + u
        g = []
        if jj % 2 == 0: g.append('s_add_u32 s%d, s%d, %d' % (t, s, sg * 16384 + jj * 2048))
        r = self.d_reg(i, u)
        g.append('buffer_load_dwordx4 a[%d:%d], v%d, s[4:7], s%d offen offset:%d%s' % (r, r + 3, vL16, t, (jj % 2) * 2048, self.sc))
        return g
    def d_reg(self, i, u):
        return 160 + (2 * i + u) * 4 if i < 8 else (2 * (i - 8) + u) * 4
    def phase_d(self):
        e = self.e; o = self.o
        tok = self.d_tok
        self.stamp(14)
        CK = o.get('d_ck', 3)
        items = []
        r8 = o.get('ring8', 1); nfree = 8 if r8 else 6
        assert not (r8 and self.A_tail)
        for b in range(self.c_last + 1, D0 + nfree): items.append((20 * (b - D0 - 1), 0, self.flat(self.dma_ops(b)), b - 200))
        for b in range(D0 + nfree, NBLK):
            early = 20 * (b - D0 - nfree + 1)
            key = (b - 200) if early < 20 * CK else 20 * (b - D0 - 1)
            items.append((20 * (b - D0 - 1), early, self.flat(self.dma_ops(b)), key))
        items.append((20 * CK - 1, 20 * CK - o.get('d_fl', 30), ['buffer_load_dword v%d, v%d, s[4:7], s%d offen sc1' % (vPOLL, vZERO, sT1)], -1))
        items += [(10 * i, 20 * CK, tok(i, 0) + tok(i, 1)) for i in range(8, 24)]
        if o.get('tw', 0): items.append((30, 0, self.touch_w('A'), -500))
        for b in self.A_tail: items.append((5000 + b, 20 * (6 + b), self.flat(self.dma_ops(b))))
        chk = [W_vreg(vPOLL)] + self.check_flag(vPOLL, sT1)
        self.gemm_bd(D0, 24, self.vm_stream(items), {CK: chk}, Stream(self.bd_unpack(), 200), self.d_reg)
        self.stamp(17)
        def final():
            L = self.lab('d_last'); X = self.lab('d_done')
            e('s_cmp_lg_u32 s%d, 0' % sL); e('s_cbranch_scc1 %s' % L)
            e('s_lshr_b32 s%d, s%d, 1\ns_mul_i32 s%d, s%d, 40960\ns_add_u32 s%d, s%d, s%d\ns_add_u32 s%d, s%d, 0x%x' % (sT0, sTTK, sT0, sT0, sT0, sT0, sLOFF, sT0, sT0, XA + self.lstride))
            e('buffer_store_dwordx4 v[%d:%d], v%d, s[4:7], s%d offen sc1' % (XR, XR + 3, vY0, sT0))
            e('buffer_store_dwordx4 v[%d:%d], v%d, s[4:7], s%d offen sc1' % (XR + 4, XR + 7, vY1, sT0))
            e('buffer_store_dwordx2 v[%d:%d], v%d, s[4:7], s%d offen sc1' % (XR + 8, XR + 9, vY2, sT0))
            self.bd_stats(SA, True)
            self.cnt(sT1, CNT_XA, sRB, next_layer=True)
            self.signal(sT1)
            self.stamp(18)
            if self.o.get('ampre_a', 0): self.am_a()
            self.side_dma(self.A_side)
            e('s_branch %s' % X)
            e.label(L)
            e('s_mul_i32 s%d, s%d, 20480\ns_mul_i32 s%d, s%d, 160\ns_add_u32 s%d, s%d, s%d' % (sT0, sTTK, sT1, sCS, sT0, sT0, sT1))
            e('buffer_store_dwordx4 v[%d:%d], v%d, s[12:15], s%d offen' % (XR, XR + 3, vR0, sT0))
            e('buffer_store_dwordx4 v[%d:%d], v%d, s[12:15], s%d offen offset:64' % (XR + 4, XR + 7, vR0, sT0))
            e('buffer_store_dwordx2 v[%d:%d], v%d, s[12:15], s%d offen' % (XR + 8, XR + 9, vR2, sT0))
            self.stamp(18)
            self.stamp_flush()
            e('s_endpgm')
            e.label(X)
        self.bd_epilogue(D0 + 11, final)
        return self.maybe_stop('d')
    def build(self):
        e = self.e
        self.prologue()
        e.label('M_LAYER')
        done = self.phase_a() or self.phase_b() or self.phase_c() or self.phase_d()
        if not done:
            e('s_add_u32 s%d, s%d, 1\ns_add_u32 s%d, s%d, 0x%x\ns_add_u32 s%d, s%d, 0x%x' % (sL, sL, sLOFF, sLOFF, self.lstride, sCNT, sCNT, CSTRIDE))
            e('s_branch M_LAYER')
        e.label('M_END')
        e('s_endpgm')
        e.label('M_CODE_END')
        return e
```

```python
from asmlib import *
from layout import *

NAME = 'hedgehog_main_kernel'
KNAME = 'interleave_layers__linear_kernel_hedgehog__geglu_ffn__prompt_kernel'
BLK = 20480
SCR = 6 * BLK
LDS_TOTAL = 163840
SPIN_LIMIT = 40000
LOG2E = 1.4426950408889634
TSOFF = 0x4000000

sW, sRB, sJ, sL, sLOFF, sW5K, sWA, sWB, sWC, sWD = range(16, 26)
sT0, sT1, sT2, sT3, sT4, sT5 = range(26, 32)
sDEAD, sPC, sPV, sCS, sTH, sTTK, sTTS, sKH = range(40, 48)
sDM = 48
sTW = 49
sB0, sB1 = 50, 51
sC1, sC2, sC3, sC4 = 52, 53, 54, 55
sEX, sEXD = 56, 57
sCNT = 3
sTA, sTB = 58, 59
vL16, vLANE, vONES, vZERO, vONE, vPOLL = 1, 2, 3, 4, 5, 6
vL16B, vK0, vK1 = 7, 8, 9
vT0, vT1, vT2, vT3, vT4 = 10, 11, 12, 13, 14
vEXR = 15
AF, ACC = 16, 48
vSA, vTW, vKA, vKB, vPS1, vPS2, vPL, vAW, vO0, vO1, vO2, vX0, vX1, vX2, vY0, vY1 = range(224, 240)
XR = 240
vY2, vR0, vR2, vST, vSC, vEXW = range(250, 256)
vAW2 = 221
vK2 = 218
vL128, vTCH = 220, 219

A0, B0, C0, D0, NBLK = 0, 8, 13, 25, 37
NSIDE_A, NSIDE_C = 4, 4

def f32bits(x):
    import struct
    return '0x%08x' % struct.unpack('<I', struct.pack('<f', x))[0]

def W_vreg(r):
    return 'v_mov_b32 v%d, v%d' % (r, r)

class Main:
    def __init__(self, stop=None, opts=None):
        self.e = Asm(); self.stop = stop; self.o = opts or {}
        self.sc = '' if self.o.get('nosc1') else ' sc1'
        self.nlab = 0
        self.lstride = 0 if self.o.get('reuse') else LSTRIDE
        self.name = KNAME if self.o.get('merged', 0) else NAME
        global NSIDE_A, NSIDE_C
        NSIDE_A = self.o.get('nsa', 4); NSIDE_C = self.o.get('nsc', 4)
        dt = self.o.get('d_tail', 0); bt = self.o.get('b_tail', 0)
        self.A_tail = list(range(1, 1 + dt))
        rest = [0] + list(range(1 + dt, 6))
        na = self.o.get('a_ack', 2)
        self.A_ack, rest = rest[:na], rest[na:]
        self.A_side, self.A_in = rest[:NSIDE_A], rest[NSIDE_A:]
        self.C_tail = list(range(C0 + 1, C0 + 1 + bt))
        rest = list(range(C0 + 1 + bt, C0 + 6))
        nc = self.o.get('c_ack', 2)
        self.C_ack, rest = rest[:nc], rest[nc:]
        self.C_side, self.C_in = rest[:NSIDE_C], rest[NSIDE_C:]
    def lab(self, p):
        self.nlab += 1
        return 'M_%s_%d' % (p, self.nlab)
    def slot_of(self, b):
        if b >= D0 and self.o.get('ring8', 1):
            return {25: 6, 26: 7, 27: 1, 28: 2, 29: 3, 30: 4, 31: 5, 32: 0, 33: 6, 34: 7, 35: 1, 36: 2}[b]
        return b % 6
    def blk_src(self, b):
        if b < B0: return sWA, (b - A0) * BLK
        if b < C0: return sWB, (b - B0) * BLK
        if b < D0: return sWC, (b - C0) * BLK
        return sWD, (b - D0) * BLK
    def dma_ops(self, b, tag=None):
        nb = b % NBLK if b >= NBLK else b
        base, off = self.blk_src(nb)
        slot = self.slot_of(nb)
        tag = tag or 'blk%d' % nb
        g = []
        first = ['s_add_u32 m0, s%d, %d' % (sW5K, slot * BLK), 's_add_u32 s%d, s%d, %d' % (sDM, base, off),
                 ('buffer_load_dwordx4 v%d, s[4:7], s%d offen lds' % (vL16, sDM), tag)]
        g.append(first)
        for k in range(1, 4):
            g.append([('buffer_load_dwordx4 v%d, s[4:7], s%d offen offset:%d lds' % (vL16, sDM, k * 1024), tag)])
        g.append(['s_add_u32 m0, s%d, %d' % (sW5K, slot * BLK + 4096), 's_add_u32 s%d, s%d, %d' % (sDM, base, off + 4096),
                  ('buffer_load_dwordx4 v%d, s[4:7], s%d offen lds' % (vL16, sDM), tag)])
        return g
    def am_a(self):
        AM = 128; e = self.e
        e('s_lshl_b32 s%d, s%d, 12\ns_add_u32 s%d, s%d, 0x%x' % (sT2, sJ, sT2, sT2, WAM))
        for t in range(4): e('buffer_load_dwordx4 v[%d:%d], v%d, s[4:7], s%d offen offset:%d' % (AM + 4 * t, AM + 4 * t + 3, vL16, sT2, t * 1024))
    def am_c(self):
        AM = 136; e = self.e
        e('s_mul_i32 s%d, s%d, %d\ns_add_u32 s%d, s%d, 0x%x' % (sT4, sJ, 12 * KB, sT4, sT4, WCM))
        for t in range(4): e('buffer_load_dwordx4 v[%d:%d], v%d, s[4:7], s%d offen offset:%d' % (AM + 4 * t, AM + 4 * t + 3, vL16, sT4, t * 1024))
    def side_dma(self, blocks):
        e = self.e
        L = self.lab('side')
        e('s_cmp_eq_u32 s%d, 0' % sW); e('s_cbranch_scc1 %s' % L)
        for b in blocks:
            base, off = self.blk_src(b); slot = self.slot_of(b); tag = 'blk%d' % b
            ld = 'buffer_load_dwordx4 v%d, s[4:7], s%d offen%%s lds' % (vL16, sDM)
            e('s_add_u32 m0, s%d, %d' % (sW5K, slot * BLK)); e('s_add_u32 s%d, s%d, %d' % (sDM, base, off))
            for k in range(4): e.side(ld % (' offset:%d' % (k * 1024) if k else ''), tag)
            e('s_add_u32 m0, s%d, %d' % (sW5K, slot * BLK + 4096)); e('s_add_u32 s%d, s%d, %d' % (sDM, base, off + 4096))
            e.side(ld % '', tag)
            e('s_add_u32 m0, s%d, %d' % (sEX, slot * BLK)); e('s_add_u32 s%d, s%d, %d' % (sDM, base, off))
            e('s_add_u32 s%d, s%d, s%d' % (sDM, sDM, sEXD))
            e.side(ld % '', tag); e.side(ld % ' offset:1024', tag)
        e.label(L)
    def dma_items(self, b, earliest):
        out = []
        for g in self.dma_ops(b):
            for x in g: out.append((x, earliest))
        return out
    def touch(self, base_expr, nlines_wave, ninstr=1, sc=''):
        L = list(base_expr)
        L.append('s_mul_i32 s%d, s%d, %d' % (sTB, sW, nlines_wave * ninstr * 128))
        L.append('s_add_u32 s%d, s%d, s%d' % (sTA, sTA, sTB))
        if nlines_wave < 64:
            L.append('v_mov_b32 v%d, 0x%x' % (vT0, OOB))
            L.append('v_cmp_gt_u32 vcc, %d, v%d' % (nlines_wave, vLANE))
            L.append('v_cndmask_b32 v%d, v%d, v%d, vcc' % (vT0, vT0, vL128))
            va = vT0
        else: va = vL128
        for k in range(ninstr):
            if k: L.append('s_add_u32 s%d, s%d, %d' % (sTA, sTA, nlines_wave * 128))
            I = parse('buffer_load_dword v%d, v%d, s[4:7], s%d offen%s' % (vTCH, va, sTA, sc)); I.wr = set()
            L.append(I)
        return L
    def touch_w(self, which):
        if which == 'A':
            pre = ['s_lshr_b32 s%d, s%d, 2' % (sTA, sRB), 's_mul_i32 s%d, s%d, %d' % (sTA, sTA, 40 * KB), 's_add_u32 s%d, s%d, s%d' % (sTA, sTA, sWA), 's_sub_u32 s%d, s%d, s%d' % (sTA, sTA, sW5K)]
            return self.touch(pre, 40, 2)
        if which == 'C':
            pre = ['s_lshr_b32 s%d, s%d, 2' % (sTA, sRB), 's_mul_i32 s%d, s%d, %d' % (sTA, sTA, 60 * KB), 's_add_u32 s%d, s%d, s%d' % (sTA, sTA, sWC), 's_sub_u32 s%d, s%d, s%d' % (sTA, sTA, sW5K)]
            return self.touch(pre, 60, 2)
        idx = ['s_lshr_b32 s%d, s%d, 2' % (sTA, sRB), 's_lshl_b32 s%d, s%d, 1' % (sTA, sTA), 's_add_u32 s%d, s%d, s%d' % (sTA, sTA, sTH)]
        if which == 'B':
            return self.touch(idx + ['s_mul_i32 s%d, s%d, 12800' % (sTA, sTA), 's_add_u32 s%d, s%d, s%d' % (sTA, sTA, sWB), 's_sub_u32 s%d, s%d, s%d' % (sTA, sTA, sW5K)], 25, 1)
        if which == 'D':
            return self.touch(idx + ['s_mul_i32 s%d, s%d, 30720' % (sTA, sTA), 's_add_u32 s%d, s%d, s%d' % (sTA, sTA, sWD), 's_sub_u32 s%d, s%d, s%d' % (sTA, sTA, sW5K)], 60, 1)
    def touch_tok(self, base_off):
        pre = ['s_mul_i32 s%d, s%d, %d' % (sTA, sRB, 160 * KB), 's_lshr_b32 s%d, s%d, 1' % (sTB, sJ), 's_mul_i32 s%d, s%d, %d' % (sTB, sTB, 20 * KB),
               's_add_u32 s%d, s%d, s%d' % (sTA, sTA, sTB), 's_add_u32 s%d, s%d, s%d' % (sTA, sTA, sLOFF), 's_add_u32 s%d, s%d, 0x%x' % (sTA, sTA, base_off)]
        return self.touch(pre, 40, 1, ' sc1')
    def freed_by(self, c):
        if c <= NBLK - 7: return c + 6
        if c < NBLK - 1: return NBLK + (c - (NBLK - 7))
        return NBLK + 0
    def ring_read(self, dst, blk, off, kh=False):
        slot = self.slot_of(blk)
        base = (vK0 if kh else vL16) if slot < 3 else ((vK1 if kh else vL16B) if slot < 6 else vK2)
        assert slot < 6 or kh
        return 'ds_read_b128 v[%d:%d], v%d offset:%d' % (dst, dst + 3, base, (slot % 3) * BLK + off)
    def emit_next_layer_dma(self, b):
        e = self.e
        L = self.lab('nl')
        e('s_cmp_lg_u32 s%d, 0' % sL); e('s_cbranch_scc1 %s' % L)
        for g in self.dma_ops(b):
            for x in g:
                if isinstance(x, tuple): e(x[0], count=False)
                else: e(x)
        e.label(L)
    def signal(self, cnt_off_sgpr, ack=()):
        e = self.e
        if ack:
            e.vm_marker('pub')
            for b in ack:
                for g in self.dma_ops(b): e.extend(g)
            e.wait_tag('pub'); e.wait_lgkm0()
        else:
            e.wait_all()
        e('s_barrier')
        self.signal_only(cnt_off_sgpr)
    def signal_only(self, cnt_off_sgpr):
        e = self.e
        L = self.lab('sig')
        e('s_cmp_lg_u32 s%d, 0' % sW); e('s_cbranch_scc1 %s' % L)
        e('s_mov_b64 exec, 1')
        e('buffer_atomic_add v%d, v%d, s[4:7], s%d offen sc1' % (vONE, vZERO, cnt_off_sgpr), count=False)
        e('s_mov_b64 exec, -1')
        e.label(L)
    def poll(self, cnt_off_sgpr, n=1, target=16, srd=4, stride=128):
        e = self.e
        L = self.lab('poll'); X = self.lab('got')
        e('s_cmp_lg_u32 s%d, 0' % sW); e('s_cbranch_scc1 %s' % X)
        e('s_cmp_lg_u32 s%d, 0' % sDEAD); e('s_cbranch_scc1 %s' % X)
        e('s_mov_b32 s%d, 0' % sPC)
        if n > 1:
            e('v_min_u32 v%d, %d, v%d' % (vT0, n - 1, vLANE)); e('v_mul_u32_u24 v%d, %d, v%d' % (vT0, stride, vT0))
        e.label(L)
        e('buffer_load_dword v%d, v%d, s[%d:%d], s%d offen sc1' % (vPOLL, vT0 if n > 1 else vZERO, srd, srd + 3, cnt_off_sgpr), count=False)
        e('s_waitcnt vmcnt(0)', count=False)
        e('v_cmp_gt_u32 vcc, %d, v%d' % (target, vPOLL))
        e('s_cbranch_vccz %s' % X)
        if self.o.get('psleep'): e('s_sleep %d' % self.o['psleep'])
        e('s_add_u32 s%d, s%d, 1' % (sPC, sPC)); e('s_cmp_lt_u32 s%d, %d' % (sPC, SPIN_LIMIT))
        e('s_cbranch_scc1 %s' % L)
        e('s_mov_b32 s%d, 1' % sDEAD)
        e.label(X)
    def cnt(self, dst, which, idx_sgpr, mul=128, add=0, next_layer=False):
        e = self.e
        e('s_mul_i32 s%d, s%d, %d' % (dst, idx_sgpr, mul))
        e('s_add_u32 s%d, s%d, s%d' % (dst, dst, sCNT))
        e('s_add_u32 s%d, s%d, 0x%x' % (dst, dst, which + add + (CSTRIDE if next_layer else 0)))
    def prologue(self):
        if self.o.get('merged', 0): return self.prologue_merged()
        e = self.e
        e.directive('.text\n.globl %s\n.p2align 8\n.type %s,@function' % (self.name, self.name))
        e.label(self.name)
        e('s_cmp_ge_u32 s2, 256'); e('s_cbranch_scc1 M_END')
        e('s_load_dwordx2 s[32:33], s[0:1], 0')
        e('s_load_dwordx2 s[34:35], s[0:1], 64')
        e('s_load_dwordx2 s[36:37], s[0:1], 80')
        self.entry_stamp()
        self.pro_scalars(); self.pro_lanes()
        e('s_waitcnt lgkmcnt(0)')
        self.mk_srd(4, 36, WS_BYTES)
        self.pro_tail(32, 34)
    def prologue_merged(self):
        import gen_prep as P
        e = self.e
        e.directive('.text\n.globl %s\n.p2align 8\n.type %s,@function' % (self.name, self.name))
        e.label(self.name)
        e('s_cmp_ge_u32 s2, 256'); e('s_cbranch_scc1 M_END')
        e('s_load_dwordx8 s[64:71], s[0:1], 0')
        e('s_load_dwordx4 s[72:75], s[0:1], 40')
        e('s_load_dwordx2 s[76:77], s[0:1], 56')
        e('s_load_dwordx2 s[78:79], s[0:1], 64')
        e('s_load_dwordx4 s[80:83], s[0:1], 72')
        self.entry_stamp()
        self.pro_scalars()
        e('s_waitcnt lgkmcnt(0)')
        self.mk_srd(4, 82, WS_BYTES)
        e('s_add_u32 s0, s2, 352\ns_sub_u32 s26, s2, 64\ns_cmp_ge_u32 s2, 160\ns_cselect_b32 s0, s26, s0\ns_cmp_lt_u32 s2, 96\ns_cselect_b32 s0, s2, s0')
        e('s_add_u32 s1, s2, 192')
        Lz = self.lab('nz')
        e('s_cmp_ge_u32 s2, 16'); e('s_cbranch_scc1 %s' % Lz)
        e('s_cmp_lg_u32 s%d, 0' % sW); e('s_cbranch_scc1 %s' % Lz)
        for k in range(4): e('v_mov_b32 v%d, 0' % (120 + k))
        e('s_lshl_b32 s26, s2, 11')
        e('buffer_store_dwordx4 v[120:123], v%d, s[4:7], s26 offen sc1' % vL16, count=False)
        e('buffer_store_dwordx4 v[120:123], v%d, s[4:7], s26 offen offset:1024 sc1' % vL16, count=False)
        e.label(Lz)
        r1 = P.Ren(e, 1, 0); r2 = P.Ren(e, 2, 1)
        L1, L2 = 0, 32768
        def dispatch(cases, sreg, tagp):
            end = self.lab(tagp)
            labs = [self.lab(tagp) for _ in cases]
            for (ub, _), lb in list(zip(cases, labs))[:-1]:
                e('s_cmp_lt_u32 s%d, %d' % (sreg, ub)); e('s_cbranch_scc1 %s' % lb)
            e('s_branch %s' % labs[-1])
            for (ub, fn), lb in zip(cases, labs):
                e.label(lb); e.reset_state(); fn()
                e.wait_lgkm0()
                e('s_branch %s' % end)
            e.label(end); e.reset_state()
        dispatch([(96, lambda: P.wa_issue(r1)), (288, lambda: P.wc_issue(r1, L1)), (None, lambda: P.x_issue(r1))], 0, 'i1')
        dispatch([(288, lambda: P.wc_issue(r2, L2)), (416, lambda: P.wd_issue(r2, L2)), (None, lambda: P.wb_issue(r2, L2))], 1, 'i2')
        if self.o.get('codepf', 1):
            Lp = self.lab('npf')
            e('s_cmp_ge_u32 s2, 64'); e('s_cbranch_scc1 %s' % Lp)
            e('s_getpc_b64 s[84:85]')
            e.label('M_PC')
            e('s_add_u32 s84, s84, (M_LAYER-M_PC)\ns_addc_u32 s85, s85, 0')
            e('v_lshlrev_b32 v124, 7, v0\nv_mov_b32 v125, (M_CODE_END-M_LAYER-4)\nv_add_u32 v126, 0x8000, v124')
            e('v_min_u32 v124, v124, v125\nv_min_u32 v126, v126, v125\nv_and_b32 v124, -4, v124\nv_and_b32 v126, -4, v126')
            e('global_load_dword v127, v124, s[84:85]', count=False)
            e('global_load_dword v127, v126, s[84:85]', count=False)
            e.label(Lp)
        self.mk_srd(84, 80, 256)
        Lf = self.lab('nf'); Lv = self.lab('nfv'); Lw = self.lab('nfw')
        e('s_cmp_ge_u32 s2, 16'); e('s_cbranch_scc1 %s' % Lf)
        e('s_cmp_lg_u32 s%d, 0' % sW); e('s_cbranch_scc1 %s' % Lf)
        npf = 2 if self.o.get('codepf', 1) else 0
        e('s_cmp_eq_u32 s31, 1'); e('s_cbranch_scc1 %s' % Lv)
        e('s_waitcnt vmcnt(%d)' % (22 + 5 + npf), count=False); e('s_branch %s' % Lw)
        e.label(Lv)
        e('s_waitcnt vmcnt(%d)' % (10 + 5 + npf), count=False)
        e.label(Lw)
        e('s_lshl_b32 s62, s2, 2\ns_mov_b64 exec, 1')
        e('buffer_store_dword v%d, v%d, s[84:87], s62 offen sc1' % (vONE, vZERO), count=False)
        e('s_mov_b64 exec, -1')
        self.stamp(27)
        e.label(Lf)
        e('s_waitcnt vmcnt(4)', count=False)
        self.stamp(19)
        dispatch([(96, lambda: P.wa_process(r1)), (288, lambda: P.wc_process(r1, L1)), (None, lambda: P.x_process(r1))], 0, 'p1')
        self.stamp(20)
        Lq = self.lab('zq')
        e('s_cmp_lg_u32 s%d, 0' % sW); e('s_cbranch_scc1 %s' % Lq)
        e('v_min_u32 v126, 15, v%d\nv_lshlrev_b32 v126, 2, v126' % vLANE)
        e('buffer_load_dword v%d, v126, s[84:87], 0 offen sc1' % vPOLL, count=False)
        e.label(Lq)
        e('s_waitcnt vmcnt(0) lgkmcnt(0)', count=False)
        e('s_barrier')
        self.stamp(26)
        def arrive(off, below=None):
            La = self.lab('arr')
            e('s_cmp_lg_u32 s%d, 0' % sW); e('s_cbranch_scc1 %s' % La)
            if below is not None:
                e('s_cmp_ge_u32 s2, %d' % below); e('s_cbranch_scc1 %s' % La)
            e('s_and_b32 s62, s2, 15\ns_lshl_b32 s62, s62, 7\ns_add_u32 s62, s62, 0x%x\ns_mov_b64 exec, 1' % off)
            e('buffer_atomic_add v%d, v%d, s[4:7], s62 offen sc1' % (vONE, vZERO), count=False)
            e('s_mov_b64 exec, -1')
            e.label(La)
        Lc = self.lab('zc'); Ls = self.lab('zcs')
        e('s_cmp_lg_u32 s%d, 0' % sW); e('s_cbranch_scc1 %s' % Lc)
        e('s_mov_b32 s%d, 0' % sPC)
        e.label(Ls)
        e('v_cmp_gt_u32 vcc, 1, v%d' % vPOLL)
        e('s_cbranch_vccz %s' % Lc)
        if self.o.get('zsleep'): e('s_sleep %d' % self.o['zsleep'])
        e('buffer_load_dword v%d, v126, s[84:87], 0 offen sc1' % vPOLL, count=False)
        e('s_waitcnt vmcnt(0)', count=False)
        e('s_add_u32 s%d, s%d, 1' % (sPC, sPC)); e('s_cmp_lt_u32 s%d, %d' % (sPC, SPIN_LIMIT)); e('s_cbranch_scc1 %s' % Ls)
        e('s_mov_b32 s%d, 1' % sDEAD)
        e.label(Lc)
        arrive(CNT_CRIT, 160)
        self.stamp(21)
        dispatch([(288, lambda: P.wc_process(r2, L2)), (416, lambda: P.wd_process(r2, L2)), (None, lambda: P.wb_process(r2, L2))], 1, 'p2')
        self.stamp(22)
        e('s_waitcnt vmcnt(0) lgkmcnt(0)', count=False)
        e('s_barrier')
        arrive(CNT_REST)
        self.stamp(25)
        self.pro_lanes()
        e('s_mov_b32 s%d, 0x%x' % (sT0, CNT_CRIT))
        self.stamp(23)
        self.poll(sT0, n=16, target=10)
        e('s_barrier')
        self.stamp(24)
        self.pro_tail(64, 78)
    def entry_stamp(self):
        if self.o.get('stamps'):
            self.e(('s_memtime' if self.o.get('cyc') else 's_memrealtime') + ' s[60:61]\ns_waitcnt lgkmcnt(0)\nv_mov_b32 v223, s60')
    def mk_srd(self, d, lo, n):
        self.e('s_mov_b32 s%d, s%d\ns_mov_b32 s%d, s%d\ns_mov_b32 s%d, 0x%x\ns_mov_b32 s%d, 0x20000' % (d, lo, d + 1, lo + 1, d + 2, n, d + 3))
    def pro_scalars(self):
        e = self.e
        e('v_lshrrev_b32 v10, 6, v0'); e('v_and_b32 v%d, 63, v0' % vLANE)
        e('v_readfirstlane_b32 s%d, v10' % sW)
        e('v_lshlrev_b32 v%d, 4, v%d' % (vL16, vLANE))
        e('s_and_b32 s%d, s2, 3\ns_lshr_b32 s26, s2, 6\ns_lshl_b32 s26, s26, 2\ns_or_b32 s%d, s%d, s26' % (sRB, sRB, sRB))
        e('s_lshr_b32 s%d, s2, 2\ns_and_b32 s%d, s%d, 15' % (sJ, sJ, sJ))
        e('s_and_b32 s%d, s%d, 7\ns_lshr_b32 s%d, s%d, 3' % (sCS, sJ, sTH, sJ))
        e('s_mul_i32 s%d, s%d, 5120' % (sW5K, sW))
        e('s_lshr_b32 s%d, s%d, 1' % (sKH, sW))
        for (s, idx, stride, base) in ((sWA, sJ, 160 * KB, WA), (sWB, sCS, 100 * KB, WB), (sWC, sJ, 240 * KB, WC), (sWD, sCS, 240 * KB, WD)):
            if self.o.get('wsame'): stride = 0
            e('s_mul_i32 s%d, s%d, %d\ns_add_u32 s%d, s%d, s%d\ns_add_u32 s%d, s%d, 0x%x' % (s, idx, stride, s, s, sW5K, s, s, base))
        e('s_lshl_b32 s%d, s%d, 3\ns_lshl_b32 s26, s%d, 2\ns_add_u32 s%d, s%d, s26' % (sTTK, sRB, sTH, sTTK, sTTK))
        e('s_and_b32 s26, s%d, 1\ns_lshl_b32 s26, s26, 1\ns_add_u32 s%d, s%d, s26\ns_add_u32 s%d, s%d, s%d' % (sW, sTTK, sTTK, sTTK, sTTK, sKH))
        e('s_xor_b32 s%d, s%d, 1' % (sTTS, sTTK))
        e('s_mov_b32 s%d, 0\ns_mov_b32 s%d, 0\ns_mov_b32 s%d, 0x%x' % (sDEAD, sL, sLOFF, LBASE))
        e('s_mov_b32 s%d, 0x%x' % (sCNT, CNT0))
        e('s_sub_u32 s%d, s%d, 1\ns_lshl_b32 s%d, s%d, 11\ns_sub_u32 s%d, s%d, s%d' % (sEX, sW, sEX, sEX, sEXD, sEX, sW5K))
        e('v_mov_b32 v%d, 0x3f803f80\nv_mov_b32 v%d, 0\nv_mov_b32 v%d, 1' % (vONES, vZERO, vONE))
    def pro_lanes(self):
        e = self.e
        e('v_add_u32 v%d, %d, v%d' % (vL16B, 3 * BLK, vL16))
        e('v_lshlrev_b32 v%d, 7, v%d' % (vL128, vLANE))
        e('s_mul_i32 s26, s%d, 5120\nv_add_u32 v%d, s26, v%d\nv_add_u32 v%d, %d, v%d' % (sKH, vK0, vL16, vK1, 3 * BLK, vK0))
        e('v_add_u32 v%d, %d, v%d' % (vK2, 6 * BLK, vK0))
        t32, hi, t16, q = 100, 101, 102, 103
        e('v_and_b32 v%d, 31, v%d\nv_lshrrev_b32 v%d, 5, v%d' % (t32, vLANE, hi, vLANE))
        e('v_and_b32 v%d, 15, v%d\nv_lshrrev_b32 v%d, 4, v%d' % (t16, vLANE, q, vLANE))
        e('v_mov_b32 v104, 0x%x' % OOB)
        e('v_lshlrev_b32 v%d, 3, v%d\nv_lshl_add_u32 v%d, v%d, 16, v%d' % (vSA, t32, vSA, hi, vSA))
        e('s_lshl_b32 s26, s%d, 5\nv_add_u32 v105, s26, v%d\nv_mul_u32_u24 v105, 144, v105' % (sW, t32))
        e('v_mul_u32_u24 v106, 18432, v%d\nv_add_u32 v105, v105, v106\nv_add_u32 v%d, 0x%x, v105' % (hi, vTW, SCR))
        e('v_lshrrev_b32 v105, 1, v%d\nv_bfe_u32 v106, v%d, 2, 2\nv_lshl_add_u32 v105, v105, 3, v106\nv_mul_u32_u24 v105, 144, v105' % (q, vLANE))
        e('v_and_b32 v106, 1, v%d\nv_lshlrev_b32 v106, 5, v106\nv_and_b32 v107, 3, v%d\nv_lshl_add_u32 v106, v107, 3, v106\nv_add_u32 v105, v105, v106' % (q, vLANE))
        e('s_lshr_b32 s26, s%d, 1\ns_mul_i32 s26, s26, 18432\ns_add_u32 s26, s26, 0x%x' % (sW, SCR))
        e('s_and_b32 s27, s%d, 1\ns_mul_i32 s28, s27, 40\ns_add_u32 s28, s28, s26\ns_add_u32 s29, s26, 80' % sW)
        e('v_add_u32 v%d, s28, v105\nv_add_u32 v%d, s29, v105' % (vKA, vKB))
        e('s_lshl_b32 s26, s%d, 10' % sW)
        e('v_mul_u32_u24 v105, 24, v%d\nv_add_u32 v105, v105, v%d\nv_lshlrev_b32 v105, 4, v105\nv_add_u32 v105, s26, v105' % (hi, t32))
        e('v_cmp_gt_u32 vcc, 24, v%d\nv_cndmask_b32 v%d, v104, v105, vcc' % (t32, vPS1))
        e('v_lshlrev_b32 v105, 3, v%d\nv_add_u32 v105, s26, v105\nv_add_u32 v105, 768, v105' % t32)
        e('v_cmp_eq_u32 vcc, 0, v%d\nv_cndmask_b32 v%d, v104, v105, vcc' % (hi, vPS2))
        e('v_mov_b32 v106, 84\nv_cmp_le_u32 s[30:31], v106, v0\nv_cndmask_b32 v106, 0, 1, s[30:31]')
        e('v_mul_u32_u24 v107, 84, v106\nv_sub_u32 v107, v0, v107')
        e('v_mul_u32_u24 v108, 391, v107\nv_lshrrev_b32 v108, 13, v108')
        e('v_mul_u32_u24 v109, 21, v108\nv_sub_u32 v109, v107, v109')
        e('v_subrev_u32 v110, 168, v0\nv_mul_u32_u24 v111, 391, v110\nv_lshrrev_b32 v111, 13, v111\nv_and_b32 v111, 3, v111')
        e('v_mul_u32_u24 v96, 21, v111\nv_sub_u32 v96, v110, v96')
        e('v_cmp_gt_u32 vcc, 168, v0')
        e('v_lshrrev_b32 v97, 1, v108\nv_lshl_add_u32 v97, v106, 1, v97\nv_lshlrev_b32 v97, 10, v97')
        e('v_and_b32 v98, 1, v108\nv_mul_u32_u24 v98, 24, v98\nv_add_u32 v98, v98, v109\nv_lshl_add_u32 v97, v98, 4, v97')
        e('v_lshlrev_b32 v98, 10, v111\nv_lshl_add_u32 v98, v96, 3, v98\nv_add_u32 v98, 768, v98')
        e('v_cndmask_b32 v97, v98, v97, vcc')
        e('v_mov_b32 v99, 252\nv_cmp_gt_u32 s[30:31], v99, v0\nv_cndmask_b32 v%d, v104, v97, s[30:31]' % vPL)
        e('v_lshrrev_b32 v97, 1, v111\nv_cndmask_b32 v106, v97, v106, vcc')
        e('v_cndmask_b32 v108, 4, v108, vcc\nv_cndmask_b32 v109, v96, v109, vcc')
        e('v_lshrrev_b32 v110, 4, v109\nv_mul_u32_u24 v110, 5, v110\nv_add_u32 v110, v110, v108')
        e('v_and_b32 v109, 15, v109\nv_lshrrev_b32 v97, 2, v109\nv_lshlrev_b32 v97, 3, v97\nv_and_b32 v109, 3, v109\nv_add_u32 v97, v97, v109')
        e('v_mul_u32_u24 v109, 36, v106\nv_add_u32 v97, v97, v109')
        e('v_lshlrev_b32 v97, 4, v97\nv_lshl_add_u32 v97, v110, 10, v97\nv_add_u32 v97, 0x%x, v97' % SCR)
        e('v_and_b32 v105, 63, v0\nv_lshlrev_b32 v105, 4, v105\nv_add_u32 v105, 0x%x, v105' % (SCR + 12288))
        e('v_cndmask_b32 v%d, v105, v97, vcc' % vAW)
        e('v_and_b32 v98, 1, v111\nv_lshl_add_u32 v97, v98, 3, v97')
        e('v_cndmask_b32 v97, v97, v105, vcc\nv_cndmask_b32 v%d, v105, v97, s[30:31]' % vAW2)
        e('s_mul_i32 s26, s%d, 5' % sJ)
        e('v_bfe_u32 v105, v%d, 4, 1\nv_mul_u32_u24 v105, 20480, v105\nv_lshl_add_u32 v105, v%d, 4, v105' % (vLANE, t16))
        for (dst, expr) in ((vO0, 0), (vO1, 1), (vO2, None)):
            if expr is not None:
                e('v_lshl_add_u32 v106, v%d, 1, s26\nv_add_u32 v106, %d, v106' % (hi, expr))
            else:
                e('v_mov_b32 v106, s26\nv_add_u32 v106, 4, v106')
            e('v_lshrrev_b32 v107, 2, v106\nv_lshl_add_u32 v107, v107, 10, v105\nv_and_b32 v106, 3, v106\nv_lshl_add_u32 v%d, v106, 8, v107' % dst)
        e('v_lshl_add_u32 v%d, v%d, 3, v%d' % (vO2, hi, vO2))
        e('s_mul_i32 s26, s%d, 10' % sCS)
        e('s_and_b32 s27, s%d, 1\ns_lshl_b32 s27, s27, 8' % sTTK)
        e('v_lshlrev_b32 v105, 4, v%d' % t16)
        for n, (dx, dy) in enumerate(((vX0, vY0), (vX1, vY1), (vX2, vY2))):
            if n < 2: e('v_add_u32 v106, s26, v%d\nv_add_u32 v106, %d, v106' % (q, 4 * n))
            else: e('v_lshrrev_b32 v106, 1, v%d\nv_add_u32 v106, s26, v106\nv_add_u32 v106, 8, v106' % q)
            e('v_lshrrev_b32 v107, 2, v106\nv_lshl_add_u32 v107, v107, 10, v105\nv_and_b32 v108, 3, v106\nv_lshl_add_u32 v%d, v108, 8, v107' % dx)
            e('v_lshrrev_b32 v107, 1, v106\nv_lshl_add_u32 v107, v107, 10, v105\nv_and_b32 v108, 1, v106\nv_lshl_add_u32 v107, v108, 9, v107\nv_add_u32 v%d, s27, v107' % dy)
        e('v_and_b32 v106, 1, v%d\nv_lshl_add_u32 v%d, v106, 3, v%d\nv_lshl_add_u32 v%d, v106, 3, v%d' % (q, vX2, vX2, vY2, vY2))
        e('v_mul_u32_u24 v105, 1280, v%d\nv_lshl_add_u32 v%d, v%d, 4, v105\nv_lshl_add_u32 v%d, v%d, 3, v105\nv_add_u32 v%d, 128, v%d' % (t16, vR0, q, vR2, q, vR2, vR2))
        e('v_lshlrev_b32 v105, 3, v%d\nv_cmp_eq_u32 vcc, 0, v%d\nv_cndmask_b32 v%d, v104, v105, vcc\nv_lshl_add_u32 v%d, v%d, 15, v105' % (t16, q, vST, vSC, q))
        e('s_add_u32 s26, s%d, 0x%x\nv_add_u32 v%d, s26, v%d' % (sW5K, SCR, vEXW, vL16))
        e('s_xor_b32 s27, s%d, 2\ns_mul_i32 s27, s27, 5120\ns_add_u32 s27, s27, 0x%x\nv_add_u32 v%d, s27, v%d' % (sW, SCR, vEXR, vL16))
    def pro_tail(self, xlo, olo):
        e = self.e
        self.mk_srd(8, xlo, T * 1280); self.mk_srd(12, olo, T * 1280)
        if self.o.get('ampre_a', 0): self.am_a()
        for b in self.A_ack:
            for g in self.dma_ops(b): e.extend(g)
        self.side_dma(self.A_side[:1])
        for b in self.A_tail:
            for g in self.dma_ops(b):
                for x in g:
                    if isinstance(x, tuple): e(x[0], count=False)
                    else: e(x)
        self.side_dma(self.A_side[1:])
        if not self.o.get('xrlate', 1): self.xr_load()
    def xr_load(self):
        e = self.e
        e('s_mul_i32 s29, s%d, 20480\ns_mul_i32 s31, s%d, 160\ns_add_u32 s29, s29, s31' % (sTTK, sCS))
        e('buffer_load_dwordx4 v[%d:%d], v%d, s[8:11], s29 offen' % (XR, XR + 3, vR0), count=False)
        e('buffer_load_dwordx4 v[%d:%d], v%d, s[8:11], s29 offen offset:64' % (XR + 4, XR + 7, vR0), count=False)
        e('buffer_load_dwordx2 v[%d:%d], v%d, s[8:11], s29 offen' % (XR + 8, XR + 9, vR2), count=False)
    def rowstat_finish(self, S, Q, vRS, vVE, BM, tmp):
        L = []
        L.append('v_mul_f32 v%d, %s, v%d' % (S, f32bits(1.0 / 640), S))
        L.append('v_mul_f32 v%d, %s, v%d' % (Q, f32bits(1.0 / 640), Q))
        L.append('v_fma_f32 v%d, -v%d, v%d, v%d' % (Q, S, S, Q))
        L.append('v_max_f32 v%d, 0, v%d' % (Q, Q))
        L.append('v_add_f32 v%d, %s, v%d' % (vVE, f32bits(1e-5), Q))
        L.append('v_rsq_f32 v%d, v%d' % (vRS, vVE))
        L.append('v_cvt_pk_bf16_f32 v%d, -v%d, -v%d' % (tmp, S, S))
        L.append('v_and_b32 v%d, 0xffff0000, v%d' % (tmp, tmp))
        L.append('v_sub_f32 v%d, -v%d, v%d' % (tmp, S, tmp))
        L.append('v_cvt_pk_bf16_f32 v%d, -v%d, v%d' % (BM, S, tmp))
        for k in range(1, 4): L.append('v_mov_b32 v%d, v%d' % (BM + k, BM))
        return L
    def softmax_pair(self, X, vC, EP, EM, t):
        L = []
        mx, mn, ap, am, sp, sm = range(t, t + 6)
        L.append('v_max3_f32 v%d, v%d, v%d, v%d' % (mx, X[0], X[1], X[2]))
        L.append('v_min3_f32 v%d, v%d, v%d, v%d' % (mn, X[0], X[1], X[2]))
        for k in range(3, 19, 2):
            L.append('v_max3_f32 v%d, v%d, v%d, v%d' % (mx, mx, X[k], X[k + 1]))
            L.append('v_min3_f32 v%d, v%d, v%d, v%d' % (mn, mn, X[k], X[k + 1]))
        L.append('v_max_f32 v%d, v%d, v%d' % (mx, mx, X[19]))
        L.append('v_min_f32 v%d, v%d, v%d' % (mn, mn, X[19]))
        L.append('v_mul_f32 v%d, v%d, v%d' % (ap, vC, mx))
        L.append('v_mul_f32 v%d, v%d, v%d' % (am, vC, mn))
        for f in range(20):
            L.append('v_fma_f32 v%d, v%d, v%d, -v%d' % (EP + f, X[f], vC, ap))
            L.append('v_fma_f32 v%d, -v%d, v%d, v%d' % (EM + f, X[f], vC, am))
        for f in range(20):
            L.append('v_exp_f32 v%d, v%d' % (EP + f, EP + f))
            L.append('v_exp_f32 v%d, v%d' % (EM + f, EM + f))
        L.append('v_add_f32 v%d, v%d, v%d' % (sp, EP, EP + 1))
        L.append('v_add_f32 v%d, v%d, v%d' % (sm, EM, EM + 1))
        for f in range(2, 20):
            L.append('v_add_f32 v%d, v%d, v%d' % (sp, sp, EP + f))
            L.append('v_add_f32 v%d, v%d, v%d' % (sm, sm, EM + f))
        L.append('v_rcp_f32 v%d, v%d' % (sp, sp))
        L.append('v_rcp_f32 v%d, v%d' % (sm, sm))
        for f in range(20):
            L.append('v_mul_f32 v%d, v%d, v%d' % (EP + f, EP + f, sp))
            L.append('v_mul_f32 v%d, v%d, v%d' % (EM + f, EM + f, sm))
        return L
    def stamp(self, k):
        if not self.o.get('stamps'): return
        e = self.e
        e('v_mov_b32 v222, s%d' % sL)
        e('v_lshlrev_b32 v222, 5, v222\nv_add_u32 v222, %d, v222' % k)
        e('v_cmp_eq_u32 vcc, v222, v%d' % vLANE)
        e('s_memtime s[58:59]' if self.o.get('cyc') else 's_memrealtime s[58:59]')
        e('s_waitcnt lgkmcnt(0)')
        e('v_mov_b32 v222, s58')
        e('v_cndmask_b32 v223, v223, v222, vcc')
    def stamp_items(self, k):
        if self.o.get('stamps') != 2: return []
        sub = Main(None, self.o); sub.stamp(k)
        return sub.e.items
    def stamp_flush(self):
        if not self.o.get('stamps'): return
        e = self.e
        e('s_lshl_b32 s62, s2, 2\ns_add_u32 s62, s62, s%d\ns_lshl_b32 s62, s62, 8\ns_add_u32 s62, s62, 0x%x' % (sW, TSOFF))
        e('v_lshlrev_b32 v%d, 2, v%d' % (vT0, vLANE))
        e('buffer_store_dword v223, v%d, s[4:7], s62 offen' % vT0)
    def maybe_stop(self, name):
        if self.stop == name:
            self.e.wait_all(); self.e('s_endpgm'); return True
        return False
    def vm_stream(self, items):
        st = Stream()
        for it in sorted(items, key=lambda x: x[3] if len(x) > 3 else x[0]):
            st.add(it[2], it[1], it[0])
        return st
    def flat(self, groups):
        return [x for g in groups for x in g]
    def phase_a(self):
        e = self.e; o = self.o
        T0, T1, T2, T3 = ACC, ACC + 16, ACC + 32, ACC + 48
        ST, vRS, vVE, vC, BM, AM, EP, EM, P = 112, 120, 121, 122, 124, 128, 144, 164, 184
        self.stamp(0)
        L = self.lab('a_nopoll')
        e('s_cmp_eq_u32 s%d, 0' % sL); e('s_cbranch_scc1 %s' % L)
        self.cnt(sT0, CNT_XA, sRB)
        self.poll(sT0)
        e('s_barrier')
        e.label(L)
        self.stamp(1)
        e('s_lshl_b32 s%d, s%d, 2\ns_add_u32 s%d, s%d, s%d' % (sT0, sRB, sT0, sT0, sW))
        e('s_lshl_b32 s%d, s%d, 8\ns_add_u32 s%d, s%d, s%d\ns_add_u32 s%d, s%d, 0x%x' % (sT1, sT0, sT1, sT1, sLOFF, sT1, sT1, SA))
        e('s_mul_i32 s%d, s%d, 40960\ns_add_u32 s%d, s%d, s%d\ns_add_u32 s%d, s%d, 0x%x' % (sTW, sT0, sTW, sTW, sLOFF, sTW, sTW, XA))
        def tok(s):
            g = []
            if s % 4 == 0: g.append('s_add_u32 s%d, s%d, %d' % (sB0, sTW, s * 1024))
            g.append('buffer_load_dwordx4 a[%d:%d], v%d, s[4:7], s%d offen offset:%d%s' % (4 * s, 4 * s + 3, vL16, sB0, (s % 4) * 1024, self.sc))
            return g
        NPRE = o.get('a_npre', 14)
        if o.get('tt', 0): e.extend(self.touch_tok(XA))
        for s in range(NPRE): e.extend(tok(s))
        stld = []
        for k in range(4):
            if k: stld.append('s_add_u32 s%d, s%d, 16384' % (sT1, sT1))
            stld.append('buffer_load_dwordx2 v[%d:%d], v%d, s[4:7], s%d offen sc1' % (ST + 2 * k, ST + 2 * k + 1, vSA, sT1))
        e('s_lshl_b32 s%d, s%d, 12\ns_add_u32 s%d, s%d, 0x%x' % (sT2, sJ, sT2, sT2, WAM))
        amload = ['buffer_load_dwordx4 v[%d:%d], v%d, s[4:7], s%d offen offset:%d' % (AM + 4 * t, AM + 4 * t + 3, vL16, sT2, t * 1024) for t in range(4)]
        st = []
        st += ['v_add_f32 v%d, v%d, v%d' % (ST, ST, ST + 2), 'v_add_f32 v%d, v%d, v%d' % (ST + 1, ST + 1, ST + 3),
               'v_add_f32 v%d, v%d, v%d' % (ST + 4, ST + 4, ST + 6), 'v_add_f32 v%d, v%d, v%d' % (ST + 5, ST + 5, ST + 7),
               'v_add_f32 v%d, v%d, v%d' % (ST, ST, ST + 4), 'v_add_f32 v%d, v%d, v%d' % (ST + 1, ST + 1, ST + 5),
               'v_mov_b32 v%d, v%d' % (ST + 2, ST), 'v_mov_b32 v%d, v%d' % (ST + 3, ST + 1),
               'v_permlane32_swap_b32 v%d, v%d' % (ST, ST + 2), 'v_permlane32_swap_b32 v%d, v%d' % (ST + 1, ST + 3),
               'v_add_f32 v%d, v%d, v%d' % (ST, ST, ST + 2), 'v_add_f32 v%d, v%d, v%d' % (ST + 1, ST + 1, ST + 3)]
        st += self.rowstat_finish(ST, ST + 1, vRS, vVE, BM, ST + 2)
        st += ['v_mul_f32 v%d, %s, v%d' % (vC, f32bits(LOG2E), vRS)]
        LA = 5
        def frag_info(n):
            if n < 120: return n // 3, n % 3
            return n - 120, 3
        def read(n): return self.ring_read(AF + 4 * (n % 8), A0 + n // 20, (n % 20) * 1024)
        def mfma(n):
            s, tau = frag_info(n); acc = ACC + 16 * tau; a = AF + 4 * (n % 8)
            c = '0' if s == 0 else 'v[%d:%d]' % (acc, acc + 15)
            return 'v_mfma_f32_32x32x16_bf16 v[%d:%d], v[%d:%d], a[%d:%d], %s' % (acc, acc + 15, a, a + 3, 4 * s, 4 * s + 3, c)
        def mean(tau):
            acc = ACC + 16 * tau
            return 'v_mfma_f32_32x32x16_bf16 v[%d:%d], v[%d:%d], v[%d:%d], v[%d:%d]' % (acc, acc + 15, AM + 4 * tau, AM + 4 * tau + 3, BM, BM + 3, acc, acc + 15)
        ksm = self.softmax_pair([T0 + r for r in range(16)] + [T1 + r for r in range(4)], vC, EP, EM, ST)
        for d in range(10): ksm.append('v_cvt_pk_bf16_f32 v%d, v%d, v%d' % (P + d, EP + 2 * d, EP + 2 * d + 1))
        for d in range(10): ksm.append('v_cvt_pk_bf16_f32 v%d, v%d, v%d' % (P + 10 + d, EM + 2 * d, EM + 2 * d + 1))
        V = [T1 + r for r in range(4, 16)] + [T2 + r for r in range(8)]
        for f in range(20): ksm.append('v_mul_f32 v%d, v%d, v%d' % (V[f], V[f], vRS))
        for d in range(10): ksm.append('v_cvt_pk_bf16_f32 v%d, v%d, v%d' % (P + 20 + d, V[2 * d], V[2 * d + 1]))
        ksm += ['v_mov_b32 v%d, 0x3f80' % (P + 30), 'v_mov_b32 v%d, 0' % (P + 31)]
        anchors = []; pre = {}; fixed = {}; idx = {}
        KF = o.get('kvfirst', 1)
        NF1 = 140 if KF else 160
        for n in range(NF1):
            if n == 120:
                idx['mean'] = len(anchors)
                anchors += [mean(t) for t in range(3)]
            idx[n] = len(anchors)
            anchors.append(mfma(n))
            fixed[idx[n]] = ([read(n + LA)] if n + LA < NF1 else []) + ([Need('v[%d:%d]' % (AF + 4 * ((n + 1) % 8), AF + 4 * ((n + 1) % 8) + 3))] if n + 1 < NF1 else [])
        if not KF: anchors.append(mean(3))
        for ep in range(1, 7 if KF else 8):
            at = idx['mean'] if ep == 6 else idx[20 * ep]
            pre[at] = ([W_tag('blk%d' % (A0 + ep + 1))] if ep < 7 else []) + ['s_barrier']
            if self.o.get('fine') == 'a': pre[at] += self.stamp_items(19 + ep - 1)
        items = [(3 * s, 0, tok(s)) for s in range(NPRE, 40)]
        if not o.get('ampre_a', 0): items.append((90, 0, amload))
        if o.get('tw', 0): items.append((30, 0, self.touch_w('B')))
        items.append((o.get('a_stdl', 64), 0, stld))
        for b in self.A_in: items.append((20 * (b - 1), 0, self.flat(self.dma_ops(b))))
        last_in = o.get('a_lastblk', 11)
        for b in range(6, last_in + 1):
            free = 20 * (b - 5) if b - 5 < 6 else idx['mean']
            assert not KF or b <= 11
            items.append((20 * (b - 1) if b < 8 else 200 + b, free, self.flat(self.dma_ops(b))))
        if o.get('merged', 0):
            sub = Main(None, self.o); sub.nlab = self.nlab + 2000; q = sub.e
            Lr = 'M_restld'
            q('s_cmp_lg_u32 s%d, 0' % sL); q('s_cbranch_scc1 %s' % Lr)
            q('v_min_u32 v%d, 15, v%d\nv_lshlrev_b32 v%d, 7, v%d\ns_mov_b32 s%d, 0x%x' % (vT1, vLANE, vT1, vT1, sT3, CNT_REST))
            q('buffer_load_dword v%d, v%d, s[4:7], s%d offen sc1' % (vPOLL, vT1, sT3), count=False)
            q.label(Lr)
            e.extend(q.items)
            sub = Main(None, self.o); sub.nlab = self.nlab + 3000; q = sub.e
            Lk = 'M_restok'; Ll = 'M_restsp'
            q('s_cmp_lg_u32 s%d, 0' % sL); q('s_cbranch_scc1 %s' % Lk)
            q('s_mov_b32 s%d, 0' % sPC)
            q.label(Ll)
            q('v_cmp_gt_u32 vcc, 16, v%d' % vPOLL)
            q('s_cbranch_vccz %s' % Lk)
            q('s_cmp_lg_u32 s%d, 0' % sDEAD); q('s_cbranch_scc1 %s' % Lk)
            q('buffer_load_dword v%d, v%d, s[4:7], s%d offen sc1' % (vPOLL, vT1, sT3), count=False)
            q('s_waitcnt vmcnt(0)', count=False)
            q('s_add_u32 s%d, s%d, 1' % (sPC, sPC)); q('s_cmp_lt_u32 s%d, %d' % (sPC, SPIN_LIMIT)); q('s_cbranch_scc1 %s' % Ll)
            q('s_mov_b32 s%d, 1' % sDEAD)
            q.label(Lk)
            pre[idx[60]] = q.items + pre[idx[60]]
        vs = self.vm_stream(items)
        valu = Stream(st, o.get('a_stv', 90)).add(ksm, idx[120] + 1)
        if o.get('fine') == 'a0': e.extend(self.stamp_items(19))
        e.wait_tag('blk0'); e.wait_tag('blk1')
        if self.A_tail:
            Lw = self.lab('a_l0w')
            e('s_cmp_lg_u32 s%d, 0' % sL); e('s_cbranch_scc1 %s' % Lw)
            e('s_waitcnt vmcnt(0)', count=False)
            e.label(Lw)
        e('s_barrier')
        if o.get('fine') == 'a0':
            e.extend(self.stamp_items(20))
            for k, at in enumerate((1, 3, 6, 9, 12, 15, 18)):
                pre[at] = pre.get(at, []) + self.stamp_items(21 + k)
        for n in range(LA): e(read(n))
        stt = {}
        e.extend(schedule(anchors, 5, pre, fixed, [vs, valu], vm_gap=o.get('a_gap', 2), state=stt))
        if o.get('verbose'): print('a forced', stt.get('forced'), 'left', len(vs.q), len(valu.q))
        e.extend([y[0] for y in vs.q]); e.extend([y[0] for y in valu.q])
        self.a_late = list(range(last_in + 1, 13))
        self.stamp(2)
        for m in range(8):
            e('ds_write_b128 v%d, v[%d:%d] offset:%d' % (vTW, P + 4 * m, P + 4 * m + 3, 16 * m))
        e.wait_lgkm0()
        e('s_barrier')
        KD = T0
        def kvread(ks):
            b = AF + 8 * (ks % 4)
            return ['ds_read_b64_tr_b16 v[%d:%d], v%d offset:%d' % (b, b + 1, vKA, ks * 2304),
                    'ds_read_b64_tr_b16 v[%d:%d], v%d offset:%d' % (b + 2, b + 3, vKA, ks * 2304 + 576),
                    'ds_read_b64_tr_b16 v[%d:%d], v%d offset:%d' % (b + 4, b + 5, vKB, ks * 2304),
                    'ds_read_b64_tr_b16 v[%d:%d], v%d offset:%d' % (b + 6, b + 7, vKB, ks * 2304 + 576)]
        for ks in range(3): e.extend(kvread(ks))
        for ks in range(8):
            if ks + 3 < 8: e.extend(kvread(ks + 3))
            b = AF + 8 * (ks % 4)
            e('v_mfma_f32_32x32x16_bf16 v[%d:%d], v[%d:%d], v[%d:%d], %s' % (KD, KD + 15, b, b + 3, b + 4, b + 7, '0' if ks == 0 else 'v[%d:%d]' % (KD, KD + 15)))
        PK = EP
        for d in range(6): e('v_cvt_pk_bf16_f32 v%d, v%d, v%d' % (PK + d, KD + 2 * d, KD + 2 * d + 1))
        e('s_lshl_b32 s%d, s%d, 4\ns_add_u32 s%d, s%d, s%d\ns_lshl_b32 s%d, s%d, 12' % (sT0, sJ, sT0, sT0, sRB, sT0, sT0))
        e('s_add_u32 s%d, s%d, s%d\ns_add_u32 s%d, s%d, 0x%x' % (sT0, sT0, sLOFF, sT0, sT0, KVP))
        if o.get('reuse'): e('s_lshl_b32 s%d, s%d, 20\ns_add_u32 s%d, s%d, s%d' % (sT3, sL, sT0, sT0, sT3))
        e('buffer_store_dwordx4 v[%d:%d], v%d, s[4:7], s%d offen sc1' % (PK, PK + 3, vPS1, sT0))
        e('buffer_store_dwordx2 v[%d:%d], v%d, s[4:7], s%d offen sc1' % (PK + 4, PK + 5, vPS2, sT0))
        self.cnt(sT1, CNT_KV, sJ)
        kack = self.a_late if o.get('k_ack', 1) else []
        self.signal(sT1, kack)
        self.stamp(3)
        if o.get('tw', 0): e.extend(self.touch_w('C'))
        if not kack: self.side_dma(self.a_late)
        if o.get('xrlate', 1):
            Lx = self.lab('xr')
            e('s_cmp_lg_u32 s%d, 0' % sL); e('s_cbranch_scc1 %s' % Lx)
            self.xr_load()
            e.label(Lx)
        ZR = EM
        zf = ['v_mov_b32 v%d, 0' % (ZR + r) for r in range(4)]
        zf += ['v_lshlrev_b32 v%d, 4, v0' % vT1, 'v_add_u32 v%d, 0x%x, v%d' % (vT1, SCR, vT1)]
        zf += ['ds_write_b128 v%d, v[%d:%d] offset:%d' % (vT1, ZR, ZR + 3, m * 4096) for m in range(3)]
        if KF:
            an2 = []; fx2 = {}
            for n in range(NF1, NF1 + LA): e(read(n))
            for n in range(NF1, 160):
                fx2[len(an2)] = ([read(n + LA)] if n + LA < 160 else []) + ([Need('v[%d:%d]' % (AF + 4 * ((n + 1) % 8), AF + 4 * ((n + 1) % 8) + 3))] if n + 1 < 160 else [])
                an2.append(mfma(n))
            an2.append(mean(3))
            z = Stream(zf)
            e.extend(schedule(an2, 5, {}, fx2, [z]))
            e.extend([y[0] for y in z.q])
        else:
            e.extend(zf)
        Q = P
        X = [T2 + r for r in range(8, 16)] + [T3 + r for r in range(12)]
        e.extend(self.softmax_pair(X, vC, EP, EM, ST))
        order = []
        for sign in (EP, EM):
            order += [(sign + 0), (sign + 2), (sign + 8), (sign + 10), (sign + 4), (sign + 6), (sign + 12), (sign + 14)]
        order += [EP + 16, EP + 18, EM + 16, EM + 18]
        for d, r in enumerate(order): e('v_cvt_pk_bf16_f32 v%d, v%d, v%d' % (Q + d, r, r + 1))
        e.wait_lgkm0()
        self.stamp(4)
        self.poll(sT1)
        e('s_barrier')
        self.stamp(5)
        if self.maybe_stop('a1'): return True
        LD, SUM, PKK = 112, 176, 204
        e('s_lshl_b32 s%d, s%d, 16\ns_add_u32 s%d, s%d, s%d\ns_add_u32 s%d, s%d, 0x%x' % (sT0, sJ, sT0, sT0, sLOFF, sT0, sT0, KVP))
        if o.get('reuse'): e('s_lshl_b32 s%d, s%d, 20\ns_add_u32 s%d, s%d, s%d' % (sT3, sL, sT0, sT0, sT3))
        for p in range(16):
            if p: e('s_add_u32 s%d, s%d, 4096' % (sT0, sT0))
            e('buffer_load_dwordx4 v[%d:%d], v%d, s[4:7], s%d offen sc1' % (LD + 4 * p, LD + 4 * p + 3, vPL, sT0))
        e('v_mov_b32 v%d, 0x00003f80\nv_mov_b32 v%d, 0x3f800000' % (vT2, vT3))
        for k in range(8): e('v_mov_b32 v%d, 0' % (SUM + k))
        for p in range(16):
            for d in range(4):
                e('v_dot2c_f32_bf16 v%d, v%d, v%d' % (SUM + 2 * d, LD + 4 * p + d, vT2))
                e('v_dot2c_f32_bf16 v%d, v%d, v%d' % (SUM + 2 * d + 1, LD + 4 * p + d, vT3))
        for d in range(4): e('v_cvt_pk_bf16_f32 v%d, v%d, v%d' % (PKK + d, SUM + 2 * d, SUM + 2 * d + 1))
        e('ds_write_b128 v%d, v[%d:%d]' % (vAW, PKK, PKK + 3))
        e('ds_write_b64 v%d, v[%d:%d]' % (vAW2, PKK, PKK + 1))
        e.wait_lgkm0()
        e('s_barrier')
        e('v_add_u32 v%d, 0x%x, v%d' % (vT1, SCR, vL16))
        for n in range(8): e('ds_read_b128 v[%d:%d], v%d offset:%d' % (AF + 4 * n, AF + 4 * n + 3, vT1, n * 1024))
        G0, G1 = T0, T1
        for n in range(10):
            rho, s = n // 5, n % 5
            acc = G0 if rho == 0 else G1
            a = AF + 4 * (n % 8)
            e('v_mfma_f32_32x32x16_bf16 v[%d:%d], v[%d:%d], v[%d:%d], %s' % (acc, acc + 15, a, a + 3, Q + 4 * s, Q + 4 * s + 3, '0' if s == 0 else 'v[%d:%d]' % (acc, acc + 15)))
            if n < 2: e('ds_read_b128 v[%d:%d], v%d offset:%d' % (a, a + 3, vT1, (n + 8) * 1024))
        e('v_add_f32 v%d, %s, v%d' % (vT2, f32bits(1e-6), G1 + 4))
        e('v_rcp_f32 v%d, v%d' % (vT2, vT2))
        OP = 208
        src = [G0 + r for r in range(16)] + [G1 + r for r in range(4)]
        for r in src: e('v_mul_f32 v%d, v%d, v%d' % (r, r, vT2))
        for d in range(10): e('v_cvt_pk_bf16_f32 v%d, v%d, v%d' % (OP + d, src[2 * d], src[2 * d + 1]))
        e('s_lshl_b32 s%d, s%d, 3\ns_lshl_b32 s%d, s%d, 1\ns_add_u32 s%d, s%d, s%d\ns_mul_i32 s%d, s%d, 20480' % (sT0, sRB, sT1, sW, sT0, sT0, sT1, sT0, sT0))
        e('s_add_u32 s%d, s%d, s%d\ns_add_u32 s%d, s%d, 0x%x' % (sT0, sT0, sLOFF, sT0, sT0, O))
        e('buffer_store_dwordx4 v[%d:%d], v%d, s[4:7], s%d offen sc1' % (OP, OP + 3, vO0, sT0))
        e('buffer_store_dwordx4 v[%d:%d], v%d, s[4:7], s%d offen sc1' % (OP + 4, OP + 7, vO1, sT0))
        e('buffer_store_dwordx2 v[%d:%d], v%d, s[4:7], s%d offen sc1' % (OP + 8, OP + 9, vO2, sT0))
        self.stamp(6)
        self.cnt(sT1, CNT_O, sRB)
        self.signal(sT1, [C0] if o.get('o_ack', 1) else [])
        self.stamp(7)
        if not o.get('o_ack', 1): self.side_dma([C0])
        return self.maybe_stop('a')
    def gemm_bd(self, first_blk, nsteps, vs, pre_extra, valu, breg=None):
        e = self.e
        LA = 5
        nf = nsteps * 5
        def read(n):
            i, tau = n // 5, n % 5
            return self.ring_read(AF + 4 * (n % 8), first_blk + i // 2, (i & 1) * 10240 + tau * 1024, kh=True)
        def mf(n, u):
            i, tau = n // 5, n % 5
            acc = ACC + (tau * 2 + u) * 4; a = AF + 4 * (n % 8); b = breg(i, u) if breg else (2 * i + u) * 4
            c = '0' if i == 0 else 'v[%d:%d]' % (acc, acc + 3)
            return 'v_mfma_f32_16x16x32_bf16 v[%d:%d], v[%d:%d], a[%d:%d], %s' % (acc, acc + 3, a, a + 3, b, b + 3, c)
        anchors = []; pre = {}; fixed = {}
        for n in range(nf):
            anchors += [mf(n, 0), mf(n, 1)]
            if n + LA < nf: fixed[2 * n] = [read(n + LA)]
            if n + 1 < nf: fixed[2 * n + 1] = [Need('v[%d:%d]' % (AF + 4 * ((n + 1) % 8), AF + 4 * ((n + 1) % 8) + 3))]
        nep = nsteps // 2
        for ep in range(1, nep):
            pre[20 * ep] = list(pre_extra.get(ep, [])) + ([W_tag('blk%d' % (first_blk + ep + 1))] if ep + 1 < nep else []) + ['s_barrier']
            if self.o.get('fine') == 'd' and nsteps == 24: pre[20 * ep] += self.stamp_items(19 + ep - 1)
        for n in range(LA): e(read(n))
        stt = {}
        e.extend(schedule(anchors, 2, pre, fixed, [vs, valu], vm_gap=self.o.get('d_gap', 2), state=stt))
        if self.o.get('verbose'): print('bd forced', stt.get('forced'), 'left', len(vs.q), len(valu.q))
        e.extend([y[0] for y in vs.q]); e.extend([y[0] for y in valu.q])
    def bd_unpack(self):
        U = 112; L = []
        for d in range(10):
            L.append('v_lshlrev_b32 v%d, 16, v%d' % (U + 2 * d, XR + d))
            L.append('v_and_b32 v%d, 0xffff0000, v%d' % (U + 2 * d + 1, XR + d))
        return L
    def bd_epilogue(self, last_blk, final):
        e = self.e
        EX = 88
        for tau in range(5):
            a = ACC + (tau * 2 + 1) * 4
            e('ds_write_b128 v%d, v[%d:%d] offset:%d' % (vEXW, a, a + 3, tau * 1024))
        e.wait_lgkm0()
        e('s_barrier')
        for tau in range(5):
            e('ds_read_b128 v[%d:%d], v%d offset:%d' % (EX + 4 * tau, EX + 4 * tau + 3, vEXR, tau * 1024))
        U = 112
        for tau in range(5):
            a = ACC + (tau * 2) * 4
            for c in range(4):
                e('v_add_f32 v%d, v%d, v%d' % (U + 4 * tau + c, U + 4 * tau + c, a + c))
        for tau in range(5):
            for c in range(4):
                e('v_add_f32 v%d, v%d, v%d' % (U + 4 * tau + c, U + 4 * tau + c, EX + 4 * tau + c))
        for d in range(10): e('v_cvt_pk_bf16_f32 v%d, v%d, v%d' % (XR + d, U + 2 * d, U + 2 * d + 1))
        final()
    def bd_stats(self, base_off, next_layer):
        e = self.e
        S, Q = 136, 137
        e('v_mov_b32 v%d, 0\nv_mov_b32 v%d, 0' % (S, Q))
        for d in range(10):
            e('v_dot2c_f32_bf16 v%d, v%d, v%d' % (S, XR + d, vONES))
            e('v_dot2c_f32_bf16 v%d, v%d, v%d' % (Q, XR + d, XR + d))
        for sw in ('v_permlane16_swap_b32', 'v_permlane32_swap_b32'):
            e('v_mov_b32 v138, v%d\nv_mov_b32 v139, v%d' % (S, Q))
            e('%s v%d, v138\n%s v%d, v139' % (sw, S, sw, Q))
            e('v_add_f32 v%d, v%d, v138\nv_add_f32 v%d, v%d, v139' % (S, S, Q, Q))
        e('s_lshl_b32 s%d, s%d, 7\ns_lshl_b32 s%d, s%d, 14\ns_add_u32 s%d, s%d, s%d' % (sT2, sTTK, sT3, sCS, sT2, sT2, sT3))
        e('s_add_u32 s%d, s%d, s%d\ns_add_u32 s%d, s%d, 0x%x' % (sT2, sT2, sLOFF, sT2, sT2, base_off + (self.lstride if next_layer else 0)))
        if not self.o.get('nostats'): e('buffer_store_dwordx2 v[%d:%d], v%d, s[4:7], s%d offen sc1' % (S, Q, vST, sT2))
    def phase_b(self):
        e = self.e
        self.cnt(sT0, CNT_O, sRB)
        for (s, tt) in ((sB0, sTTK), (sB1, sTTS)):
            e('s_mul_i32 s%d, s%d, 20\ns_mul_i32 s%d, s%d, 10\ns_add_u32 s%d, s%d, s%d\ns_lshl_b32 s%d, s%d, 10' % (s, tt, sT1, sKH, s, s, sT1, s, s))
            e('s_add_u32 s%d, s%d, s%d\ns_add_u32 s%d, s%d, 0x%x' % (s, s, sLOFF, s, s, O))
        def tok(i, u):
            s = sB0 if u == 0 else sB1
            t = sC1 + u
            g = []
            if i % 4 == 0: g.append('s_add_u32 s%d, s%d, %d' % (t, s, i * 1024))
            g.append('buffer_load_dwordx4 a[%d:%d], v%d, s[4:7], s%d offen offset:%d%s' % ((2 * i + u) * 4, (2 * i + u) * 4 + 3, vL16, t, (i % 4) * 1024, self.sc))
            return g
        e.wait_tag('blk%d' % B0); e.wait_tag('blk%d' % (B0 + 1))
        self.poll(sT0)
        e('s_barrier')
        self.stamp(8)
        NPRE = self.o.get('b_npre', 10)
        for i in range(NPRE):
            for u in range(2): e.extend(tok(i, u))
        items = [(10 * i, 0, tok(i, 0) + tok(i, 1)) for i in range(NPRE, 10)]
        for k, b in enumerate(self.C_tail): items.append((5000 + b, 20 * (k + 1), self.flat(self.dma_ops(b))))
        vs = self.vm_stream(items)
        self.gemm_bd(B0, 10, vs, {}, Stream(self.bd_unpack(), 60))
        self.stamp(9)
        def final():
            e('s_mul_i32 s%d, s%d, 20480\ns_add_u32 s%d, s%d, s%d\ns_add_u32 s%d, s%d, 0x%x' % (sT0, sTTK, sT0, sT0, sLOFF, sT0, sT0, XC))
            e('buffer_store_dwordx4 v[%d:%d], v%d, s[4:7], s%d offen sc1' % (XR, XR + 3, vX0, sT0))
            e('buffer_store_dwordx4 v[%d:%d], v%d, s[4:7], s%d offen sc1' % (XR + 4, XR + 7, vX1, sT0))
            e('buffer_store_dwordx2 v[%d:%d], v%d, s[4:7], s%d offen sc1' % (XR + 8, XR + 9, vX2, sT0))
            self.bd_stats(SC, False)
            self.cnt(sT1, CNT_XC, sRB)
            self.signal(sT1, self.C_ack)
            self.stamp(10)
            if self.o.get('ampre', 1): self.am_c()
            self.side_dma(self.C_side)
        self.bd_epilogue(B0 + 4, final)
        return self.maybe_stop('b')
    def gelu_ops(self, accset, u, c0, c1, vVE, HP, t):
        L = []
        G = [accset + (p * 2 + u) * 4 + c for p in range(2) for c in range(4)]
        U = [accset + ((2 + p) * 2 + u) * 4 + c for p in range(2) for c in range(4)]
        g = [t + i for i in range(8)]; w = [t + 8 + i for i in range(8)]
        for h in range(2):
            R = range(4 * h, 4 * h + 4)
            for i in R: L.append('v_mul_f32 v%d, v%d, v%d' % (w[i], G[i], G[i]))
            for i in R: L.append('v_fma_f32 v%d, v%d, v%d, v%d' % (w[i], w[i], c1, c0))
            for i in R: L.append('v_mul_f32 v%d, v%d, v%d' % (w[i], w[i], G[i]))
            for i in R:
                L.append('v_exp_f32 v%d, v%d' % (w[i], w[i]))
                L.append('v_mul_f32 v%d, v%d, v%d' % (g[i], G[i], U[i]))
            for i in R: L.append('v_fma_f32 v%d, v%d, v%d, v%d' % (w[i], w[i], vVE, vVE))
            for i in R: L.append('v_rcp_f32 v%d, v%d' % (w[i], w[i]))
            for i in R: L.append('v_mul_f32 v%d, v%d, v%d' % (g[i], g[i], w[i]))
            for d in (2 * h, 2 * h + 1): L.append('v_cvt_pk_bf16_f32 v%d, v%d, v%d' % (HP + d, g[2 * d], g[2 * d + 1]))
        return L
    def check_flag(self, vreg, cnt_sgpr, target=16):
        sub = Asm()
        X = self.lab('ck'); L = self.lab('ckl')
        sub('v_cmp_gt_u32 vcc, %d, v%d' % (target, vreg))
        sub('s_cbranch_vccz %s' % X)
        sub('s_cmp_lg_u32 s%d, 0' % sDEAD); sub('s_cbranch_scc1 %s' % X)
        sub('s_mov_b32 s%d, 0' % sPC)
        sub.label(L)
        sub('buffer_load_dword v%d, v%d, s[4:7], s%d offen sc1' % (vreg, vZERO, cnt_sgpr), count=False)
        sub('s_waitcnt vmcnt(0)', count=False)
        sub('v_cmp_gt_u32 vcc, %d, v%d' % (target, vreg))
        sub('s_cbranch_vccz %s' % X)
        sub('s_add_u32 s%d, s%d, 1' % (sPC, sPC)); sub('s_cmp_lt_u32 s%d, %d' % (sPC, SPIN_LIMIT))
        sub('s_cbranch_scc1 %s' % L)
        sub('s_mov_b32 s%d, 1' % sDEAD)
        sub.label(X)
        return sub.items
    def phase_c(self):
        e = self.e; o = self.o
        ST, RS, VE, BMs, AM, GT, HP = 112, (120, 121), (122, 123), (124, 132), 136, 152, (168, 172)
        GC0, GC1 = (176, 177), (178, 179)
        k0 = -2.0 * 0.7978845608028654 * LOG2E
        self.cnt(sT0, CNT_XC, sRB)
        e('s_lshl_b32 s%d, s%d, 3\ns_lshl_b32 s%d, s%d, 1\ns_add_u32 s%d, s%d, s%d' % (sT2, sRB, sT1, sW, sT2, sT2, sT1))
        e('s_lshl_b32 s%d, s%d, 7\ns_add_u32 s%d, s%d, s%d\ns_add_u32 s%d, s%d, 0x%x' % (sT1, sT2, sT1, sT1, sLOFF, sT1, sT1, SC))
        e('s_mul_i32 s%d, s%d, 20480\ns_add_u32 s%d, s%d, s%d\ns_add_u32 s%d, s%d, 0x%x' % (sB0, sT2, sB0, sB0, sLOFF, sB0, sB0, XC))
        e('s_add_u32 s%d, s%d, 20480' % (sB1, sB0))
        e('s_mul_i32 s%d, s%d, 48\ns_add_u32 s%d, s%d, s%d\ns_lshl_b32 s%d, s%d, 10' % (sTW, sT2, sTW, sTW, sJ, sTW, sTW))
        e('s_add_u32 s%d, s%d, s%d\ns_add_u32 s%d, s%d, 0x%x' % (sTW, sTW, sLOFF, sTW, sTW, HH))
        if not o.get('ampre', 1): e('s_mul_i32 s%d, s%d, %d\ns_add_u32 s%d, s%d, 0x%x' % (sT4, sJ, 12 * KB, sT4, sT4, WCM))
        self.poll(sT0)
        e('s_barrier')
        self.stamp(11)
        def tok(s, u):
            sb = sB0 if u == 0 else sB1; t = sC1 + u
            g = []
            if s % 4 == 0: g.append('s_add_u32 s%d, s%d, %d' % (t, sb, s * 1024))
            g.append('buffer_load_dwordx4 a[%d:%d], v%d, s[4:7], s%d offen offset:%d%s' % ((2 * s + u) * 4, (2 * s + u) * 4 + 3, vL16, t, (s % 4) * 1024, self.sc))
            return g
        NPRE = o.get('c_npre', 8)
        if o.get('tt', 0): e.extend(self.touch_tok(XC))
        for s in range(NPRE):
            for u in range(2): e.extend(tok(s, u))
        stld = []
        for k in range(2):
            if k: stld.append('s_add_u32 s%d, s%d, 16384' % (sT1, sT1))
            for u in range(2):
                stld.append('buffer_load_dwordx2 v[%d:%d], v%d, s[4:7], s%d offen offset:%d sc1' % (ST + 4 * u + 2 * k, ST + 4 * u + 2 * k + 1, vSC, sT1, 128 * u))
        def amload(sg):
            pre = [] if sg == 0 else ['s_add_u32 s%d, s%d, 4096' % (sT4, sT4)]
            return pre + ['buffer_load_dwordx4 v[%d:%d], v%d, s[4:7], s%d offen offset:%d' % (AM + 4 * t, AM + 4 * t + 3, vL16, sT4, t * 1024) for t in range(4)]
        st = []
        for u in range(2):
            b = ST + 4 * u
            st += ['v_add_f32 v%d, v%d, v%d' % (b, b, b + 2), 'v_add_f32 v%d, v%d, v%d' % (b + 1, b + 1, b + 3)]
            for sw in ('v_permlane16_swap_b32', 'v_permlane32_swap_b32'):
                st += ['v_mov_b32 v%d, v%d' % (b + 2, b), 'v_mov_b32 v%d, v%d' % (b + 3, b + 1),
                       '%s v%d, v%d' % (sw, b, b + 2), '%s v%d, v%d' % (sw, b + 1, b + 3),
                       'v_add_f32 v%d, v%d, v%d' % (b, b, b + 2), 'v_add_f32 v%d, v%d, v%d' % (b + 1, b + 1, b + 3)]
            st += self.rowstat_finish(b, b + 1, RS[u], VE[u], BMs[u], b + 2)
            st += ['v_mul_f32 v%d, %s, v%d' % (GC0[u], f32bits(k0), RS[u]),
                   'v_mul_f32 v%d, v%d, v%d' % (GC1[u], RS[u], RS[u]),
                   'v_mul_f32 v%d, v%d, v%d' % (GC1[u], GC1[u], GC0[u]),
                   'v_mul_f32 v%d, %s, v%d' % (GC1[u], f32bits(0.044715), GC1[u])]
        LA = 5
        def read(n): return self.ring_read(AF + 4 * (n % 8), C0 + n // 20, (n % 20) * 1024)
        def mf(n, u):
            sg, r = n // 80, n % 80; s, tl = r // 4, r % 4
            acc = ACC + 32 * (sg & 1) + (tl * 2 + u) * 4; a = AF + 4 * (n % 8); b = (2 * s + u) * 4
            c = '0' if s == 0 else 'v[%d:%d]' % (acc, acc + 3)
            return 'v_mfma_f32_16x16x32_bf16 v[%d:%d], v[%d:%d], a[%d:%d], %s' % (acc, acc + 3, a, a + 3, b, b + 3, c)
        def mean(sg):
            L = []
            for tl in range(4):
                for u in range(2):
                    acc = ACC + 32 * (sg & 1) + (tl * 2 + u) * 4
                    L.append('v_mfma_f32_16x16x32_bf16 v[%d:%d], v[%d:%d], v[%d:%d], v[%d:%d]' % (acc, acc + 3, AM + 4 * tl, AM + 4 * tl + 3, BMs[u], BMs[u] + 3, acc, acc + 3))
            return L
        def gelu_store(sg):
            L = []
            for u in range(2):
                L += self.gelu_ops(ACC + 32 * (sg & 1), u, GC0[u], GC1[u], VE[u], HP[u], GT)
                L.append('s_add_u32 s%d, s%d, %d' % (sT5, sTW, u * 48 * 1024 + sg * 16 * 1024))
                L.append(('buffer_store_dwordx4 v[%d:%d], v%d, s[4:7], s%d offen sc1' % (HP[u], HP[u] + 3, vL16, sT5), 'h%d' % sg))
            return L
        def ix(n): return 2 * n + 8 * (n // 80)
        items = [(ix(4 * s), 0, tok(s, 0) + tok(s, 1)) for s in range(NPRE, 20)]
        for b in self.C_in:
            dl = ix(20 * (b - C0 - 1)) - (8 if (b - C0 - 1) % 4 == 0 and b > C0 + 1 else 0)
            items.append((dl, 0, self.flat(self.dma_ops(b)), dl - o.get('c_lead', 40)))
        r8 = o.get('ring8', 1)
        last_in = o.get('c_lastblk', D0 + 5 if r8 else D0 + 3)
        for b in range(C0 + 6, last_in + 1):
            free = 20 * (b - C0 - 5)
            if r8 and b >= D0: free = o.get('c_x0', 100) + 20 * (b - D0) if b < D0 + 2 else 20 * (b - 20)
            epn = b - C0 - 1
            dl = ix(20 * epn) - (8 if epn % 4 == 0 else 0) if b < D0 else 100000 + b
            early = ix(free) - (8 if free % 80 == 0 else 0)
            key = max(early, ix(76)) + (0 if b < D0 else 1)
            items.append((dl, early, self.flat(self.dma_ops(b)), key))
        if not o.get('ampre', 1): items.append((ix(60), 0, amload(0)))
        if o.get('tw', 0): items.append((ix(90), ix(84), self.touch_w('D')))
        items.append((ix(o.get('c_stdl', 44)), 0, stld))
        items.append((ix(150), ix(80), amload(1), ix(80)))
        items.append((ix(230), ix(160), amload(2), ix(160)))
        self.cnt(sT0, CNT_H, sRB, mul=384)
        FL, CKC = o.get('c_fl', 190), o.get('c_ck', 206)
        items.append((ix(CKC) - 1, ix(FL), ['buffer_load_dword v%d, v%d, s[4:7], s%d offen sc1' % (vPOLL, vZERO, sT0)], ix(FL)))
        dtoks = [self.d_tok(i, u) for i in range(8) for u in range(2)]
        for k, g in enumerate(dtoks): items.append((90000 + k, ix(CKC), g, ix(CKC) + 0.01 * k))
        vs = self.vm_stream(items)
        e.wait_tag('blk%d' % C0); e.wait_tag('blk%d' % (C0 + 1))
        e('s_barrier')
        for n in range(LA): e(read(n))
        pos = 0; cstate = {}
        for sg in range(3):
            anchors = []; pre = {}; fixed = {}
            if sg > 0: anchors += mean(sg - 1)
            for n in range(80 * sg, 80 * sg + 80):
                assert pos + len(anchors) == ix(n)
                anchors += [mf(n, 0), mf(n, 1)]
                if n + LA < 240: fixed[ix(n)] = [read(n + LA)]
                if n + 1 < 240: fixed[ix(n) + 1] = [Need('v[%d:%d]' % (AF + 4 * ((n + 1) % 8), AF + 4 * ((n + 1) % 8) + 3))]
            for ep in range(4 * sg, 4 * sg + 4):
                if ep == 0: continue
                at = ix(20 * ep) - (8 if ep % 4 == 0 else 0)
                p = [W_tag('blk%d' % (C0 + ep + 1))] if ep < 11 else []
                if ep == o.get('h0ep', 9): p.append(W_tag('h0'))
                p.append('s_barrier')
                if self.o.get('fine') == 'c': p += self.stamp_items(19 + ep - 1)
                if ep == o.get('h0ep', 9):
                    sub = Main(None, self.o); sub.nlab = self.nlab + 1000
                    sub.signal_only(sT0)
                    p += sub.e.items
                pre[at] = p
            if sg == 2:
                sub = Main(None, self.o); sub.nlab = self.nlab + 4000
                sub.d_bases()
                pre[ix(CKC)] = pre.get(ix(CKC), []) + [W_vreg(vPOLL)] + self.check_flag(vPOLL, sT0) + sub.e.items
            valu = Stream(st, ix(o.get('c_stv', 56))) if sg == 0 else Stream(gelu_store(sg - 1), pos + 10)
            e.extend(schedule(anchors, 2, pre, fixed, [vs, valu], start=pos, vm_gap=(o.get('c_gap', 4) if sg == 0 else o.get('c_gap2', 4)), state=cstate))
            e.extend([y[0] for y in valu.q])
            pos += len(anchors)
        if self.o.get('verbose'): print('c forced', cstate.get('forced'), 'left', len(vs.q))
        self.stamp(12)
        tail = mean(2) + gelu_store(2)
        left = [y[0] for y in vs.q]; del vs.q[:]
        nvm = max(1, sum(1 for x in left if is_vm(x)))
        step = max(1, (len(tail) - 8) // (nvm + 1))
        for n, x in enumerate(tail):
            if left and n % step == 0:
                while left:
                    y = left.pop(0); e.extend([y])
                    if is_vm(y): break
            e.extend([x])
        e.extend(left)
        self.cnt(sT1, CNT_H, sRB, mul=384, add=256)
        self.signal(sT1)
        self.stamp(13)
        self.c_last = last_in
        return self.maybe_stop('c')
    def d_bases(self):
        e = self.e
        for (s, tt) in ((sB0, sTTK), (sB1, sTTS)):
            e('s_mul_i32 s%d, s%d, 48\ns_add_u32 s%d, s%d, s%d\ns_lshl_b32 s%d, s%d, 10' % (s, tt, s, s, sKH, s, s))
            e('s_add_u32 s%d, s%d, s%d\ns_add_u32 s%d, s%d, 0x%x' % (s, s, sLOFF, s, s, HH))
    def d_tok(self, i, u):
        sg, jj = i // 8, i % 8
        s = sB0 if u == 0 else sB1; t = sC1 + u
        g = []
        if jj % 2 == 0: g.append('s_add_u32 s%d, s%d, %d' % (t, s, sg * 16384 + jj * 2048))
        r = self.d_reg(i, u)
        g.append('buffer_load_dwordx4 a[%d:%d], v%d, s[4:7], s%d offen offset:%d%s' % (r, r + 3, vL16, t, (jj % 2) * 2048, self.sc))
        return g
    def d_reg(self, i, u):
        return 160 + (2 * i + u) * 4 if i < 8 else (2 * (i - 8) + u) * 4
    def phase_d(self):
        e = self.e; o = self.o
        tok = self.d_tok
        self.stamp(14)
        CK = o.get('d_ck', 3)
        items = []
        r8 = o.get('ring8', 1); nfree = 8 if r8 else 6
        assert not (r8 and self.A_tail)
        for b in range(self.c_last + 1, D0 + nfree): items.append((20 * (b - D0 - 1), 0, self.flat(self.dma_ops(b)), b - 200))
        for b in range(D0 + nfree, NBLK):
            early = 20 * (b - D0 - nfree + 1)
            key = (b - 200) if early < 20 * CK else 20 * (b - D0 - 1)
            items.append((20 * (b - D0 - 1), early, self.flat(self.dma_ops(b)), key))
        items.append((20 * CK - 1, 20 * CK - o.get('d_fl', 30), ['buffer_load_dword v%d, v%d, s[4:7], s%d offen sc1' % (vPOLL, vZERO, sT1)], -1))
        items += [(10 * i, 20 * CK, tok(i, 0) + tok(i, 1)) for i in range(8, 24)]
        if o.get('tw', 0): items.append((30, 0, self.touch_w('A'), -500))
        for b in self.A_tail: items.append((5000 + b, 20 * (6 + b), self.flat(self.dma_ops(b))))
        chk = [W_vreg(vPOLL)] + self.check_flag(vPOLL, sT1)
        self.gemm_bd(D0, 24, self.vm_stream(items), {CK: chk}, Stream(self.bd_unpack(), 200), self.d_reg)
        self.stamp(17)
        def final():
            L = self.lab('d_last'); X = self.lab('d_done')
            e('s_cmp_lg_u32 s%d, 0' % sL); e('s_cbranch_scc1 %s' % L)
            e('s_lshr_b32 s%d, s%d, 1\ns_mul_i32 s%d, s%d, 40960\ns_add_u32 s%d, s%d, s%d\ns_add_u32 s%d, s%d, 0x%x' % (sT0, sTTK, sT0, sT0, sT0, sT0, sLOFF, sT0, sT0, XA + self.lstride))
            e('buffer_store_dwordx4 v[%d:%d], v%d, s[4:7], s%d offen sc1' % (XR, XR + 3, vY0, sT0))
            e('buffer_store_dwordx4 v[%d:%d], v%d, s[4:7], s%d offen sc1' % (XR + 4, XR + 7, vY1, sT0))
            e('buffer_store_dwordx2 v[%d:%d], v%d, s[4:7], s%d offen sc1' % (XR + 8, XR + 9, vY2, sT0))
            self.bd_stats(SA, True)
            self.cnt(sT1, CNT_XA, sRB, next_layer=True)
            self.signal(sT1, self.A_ack)
            self.stamp(18)
            if self.o.get('ampre_a', 0): self.am_a()
            self.side_dma(self.A_side)
            e('s_branch %s' % X)
            e.label(L)
            e('s_mul_i32 s%d, s%d, 20480\ns_mul_i32 s%d, s%d, 160\ns_add_u32 s%d, s%d, s%d' % (sT0, sTTK, sT1, sCS, sT0, sT0, sT1))
            e('buffer_store_dwordx4 v[%d:%d], v%d, s[12:15], s%d offen' % (XR, XR + 3, vR0, sT0))
            e('buffer_store_dwordx4 v[%d:%d], v%d, s[12:15], s%d offen offset:64' % (XR + 4, XR + 7, vR0, sT0))
            e('buffer_store_dwordx2 v[%d:%d], v%d, s[12:15], s%d offen' % (XR + 8, XR + 9, vR2, sT0))
            self.stamp(18)
            self.stamp_flush()
            e('s_endpgm')
            e.label(X)
        self.bd_epilogue(D0 + 11, final)
        return self.maybe_stop('d')
    def build(self):
        e = self.e
        self.prologue()
        e.label('M_LAYER')
        done = self.phase_a() or self.phase_b() or self.phase_c() or self.phase_d()
        if not done:
            e('s_add_u32 s%d, s%d, 1\ns_add_u32 s%d, s%d, 0x%x\ns_add_u32 s%d, s%d, 0x%x' % (sL, sL, sLOFF, sLOFF, self.lstride, sCNT, sCNT, CSTRIDE))
            e('s_branch M_LAYER')
        e.label('M_END')
        e('s_endpgm')
        e.label('M_CODE_END')
        return e
```

```python
from asmlib import *
from layout import *

NAME = 'hedgehog_main_kernel'
KNAME = 'interleave_layers__linear_kernel_hedgehog__geglu_ffn__prompt_kernel'
BLK = 20480
SCR = 6 * BLK
LDS_TOTAL = 163840
SPIN_LIMIT = 40000
LOG2E = 1.4426950408889634
TSOFF = 0x4000000

sW, sRB, sJ, sL, sLOFF, sW5K, sWA, sWB, sWC, sWD = range(16, 26)
sT0, sT1, sT2, sT3, sT4, sT5 = range(26, 32)
sDEAD, sPC, sPV, sCS, sTH, sTTK, sTTS, sKH = range(40, 48)
sDM = 48
sTW = 49
sB0, sB1 = 50, 51
sC1, sC2, sC3, sC4 = 52, 53, 54, 55
sEX, sEXD = 56, 57
sCNT = 3
sTA, sTB = 58, 59
vL16, vLANE, vONES, vZERO, vONE, vPOLL = 1, 2, 3, 4, 5, 6
vL16B, vK0, vK1 = 7, 8, 9
vT0, vT1, vT2, vT3, vT4 = 10, 11, 12, 13, 14
vEXR = 15
AF, ACC = 16, 48
vSA, vTW, vKA, vKB, vPS1, vPS2, vPL, vAW, vO0, vO1, vO2, vX0, vX1, vX2, vY0, vY1 = range(224, 240)
XR = 240
vY2, vR0, vR2, vST, vSC, vEXW = range(250, 256)
vAW2 = 221
vK2 = 218
vL128, vTCH = 220, 219

A0, B0, C0, D0, NBLK = 0, 8, 13, 25, 37
NSIDE_A, NSIDE_C = 4, 4

def f32bits(x):
    import struct
    return '0x%08x' % struct.unpack('<I', struct.pack('<f', x))[0]

def W_vreg(r):
    return 'v_mov_b32 v%d, v%d' % (r, r)

class Main:
    def __init__(self, stop=None, opts=None):
        self.e = Asm(); self.stop = stop; self.o = opts or {}
        self.sc = '' if self.o.get('nosc1') else ' sc1'
        self.nlab = 0
        self.lstride = 0 if self.o.get('reuse') else LSTRIDE
        self.name = KNAME if self.o.get('merged', 0) else NAME
        global NSIDE_A, NSIDE_C
        NSIDE_A = self.o.get('nsa', 4); NSIDE_C = self.o.get('nsc', 4)
        dt = self.o.get('d_tail', 0); bt = self.o.get('b_tail', 0)
        self.A_tail = list(range(1, 1 + dt))
        rest = [0] + list(range(1 + dt, 6))
        na = self.o.get('a_ack', 2)
        self.A_ack, rest = rest[:na], rest[na:]
        self.A_side, self.A_in = rest[:NSIDE_A], rest[NSIDE_A:]
        self.C_tail = list(range(C0 + 1, C0 + 1 + bt))
        rest = list(range(C0 + 1 + bt, C0 + 6))
        nc = self.o.get('c_ack', 2)
        self.C_ack, rest = rest[:nc], rest[nc:]
        self.C_side, self.C_in = rest[:NSIDE_C], rest[NSIDE_C:]
    def lab(self, p):
        self.nlab += 1
        return 'M_%s_%d' % (p, self.nlab)
    def slot_of(self, b):
        if b >= D0 and self.o.get('ring8', 1):
            return {25: 6, 26: 7, 27: 1, 28: 2, 29: 3, 30: 4, 31: 5, 32: 0, 33: 6, 34: 7, 35: 1, 36: 2}[b]
        return b % 6
    def blk_src(self, b):
        if b < B0: return sWA, (b - A0) * BLK
        if b < C0: return sWB, (b - B0) * BLK
        if b < D0: return sWC, (b - C0) * BLK
        return sWD, (b - D0) * BLK
    def dma_ops(self, b, tag=None):
        nb = b % NBLK if b >= NBLK else b
        base, off = self.blk_src(nb)
        slot = self.slot_of(nb)
        tag = tag or 'blk%d' % nb
        g = []
        first = ['s_add_u32 m0, s%d, %d' % (sW5K, slot * BLK), 's_add_u32 s%d, s%d, %d' % (sDM, base, off),
                 ('buffer_load_dwordx4 v%d, s[4:7], s%d offen lds' % (vL16, sDM), tag)]
        g.append(first)
        for k in range(1, 4):
            g.append([('buffer_load_dwordx4 v%d, s[4:7], s%d offen offset:%d lds' % (vL16, sDM, k * 1024), tag)])
        g.append(['s_add_u32 m0, s%d, %d' % (sW5K, slot * BLK + 4096), 's_add_u32 s%d, s%d, %d' % (sDM, base, off + 4096),
                  ('buffer_load_dwordx4 v%d, s[4:7], s%d offen lds' % (vL16, sDM), tag)])
        return g
    def am_a(self):
        AM = 128; e = self.e
        e('s_lshl_b32 s%d, s%d, 12\ns_add_u32 s%d, s%d, 0x%x' % (sT2, sJ, sT2, sT2, WAM))
        for t in range(4): e('buffer_load_dwordx4 v[%d:%d], v%d, s[4:7], s%d offen offset:%d' % (AM + 4 * t, AM + 4 * t + 3, vL16, sT2, t * 1024))
    def am_c(self):
        AM = 136; e = self.e
        e('s_mul_i32 s%d, s%d, %d\ns_add_u32 s%d, s%d, 0x%x' % (sT4, sJ, 12 * KB, sT4, sT4, WCM))
        for t in range(4): e('buffer_load_dwordx4 v[%d:%d], v%d, s[4:7], s%d offen offset:%d' % (AM + 4 * t, AM + 4 * t + 3, vL16, sT4, t * 1024))
    def side_dma(self, blocks):
        e = self.e
        L = self.lab('side')
        e('s_cmp_eq_u32 s%d, 0' % sW); e('s_cbranch_scc1 %s' % L)
        for b in blocks:
            base, off = self.blk_src(b); slot = self.slot_of(b); tag = 'blk%d' % b
            ld = 'buffer_load_dwordx4 v%d, s[4:7], s%d offen%%s lds' % (vL16, sDM)
            e('s_add_u32 m0, s%d, %d' % (sW5K, slot * BLK)); e('s_add_u32 s%d, s%d, %d' % (sDM, base, off))
            for k in range(4): e.side(ld % (' offset:%d' % (k * 1024) if k else ''), tag)
            e('s_add_u32 m0, s%d, %d' % (sW5K, slot * BLK + 4096)); e('s_add_u32 s%d, s%d, %d' % (sDM, base, off + 4096))
            e.side(ld % '', tag)
            e('s_add_u32 m0, s%d, %d' % (sEX, slot * BLK)); e('s_add_u32 s%d, s%d, %d' % (sDM, base, off))
            e('s_add_u32 s%d, s%d, s%d' % (sDM, sDM, sEXD))
            e.side(ld % '', tag); e.side(ld % ' offset:1024', tag)
        e.label(L)
    def dma_items(self, b, earliest):
        out = []
        for g in self.dma_ops(b):
            for x in g: out.append((x, earliest))
        return out
    def touch(self, base_expr, nlines_wave, ninstr=1, sc=''):
        L = list(base_expr)
        L.append('s_mul_i32 s%d, s%d, %d' % (sTB, sW, nlines_wave * ninstr * 128))
        L.append('s_add_u32 s%d, s%d, s%d' % (sTA, sTA, sTB))
        if nlines_wave < 64:
            L.append('v_mov_b32 v%d, 0x%x' % (vT0, OOB))
            L.append('v_cmp_gt_u32 vcc, %d, v%d' % (nlines_wave, vLANE))
            L.append('v_cndmask_b32 v%d, v%d, v%d, vcc' % (vT0, vT0, vL128))
            va = vT0
        else: va = vL128
        for k in range(ninstr):
            if k: L.append('s_add_u32 s%d, s%d, %d' % (sTA, sTA, nlines_wave * 128))
            I = parse('buffer_load_dword v%d, v%d, s[4:7], s%d offen%s' % (vTCH, va, sTA, sc)); I.wr = set()
            L.append(I)
        return L
    def touch_w(self, which):
        if which == 'A':
            pre = ['s_lshr_b32 s%d, s%d, 2' % (sTA, sRB), 's_mul_i32 s%d, s%d, %d' % (sTA, sTA, 40 * KB), 's_add_u32 s%d, s%d, s%d' % (sTA, sTA, sWA), 's_sub_u32 s%d, s%d, s%d' % (sTA, sTA, sW5K)]
            return self.touch(pre, 40, 2)
        if which == 'C':
            pre = ['s_lshr_b32 s%d, s%d, 2' % (sTA, sRB), 's_mul_i32 s%d, s%d, %d' % (sTA, sTA, 60 * KB), 's_add_u32 s%d, s%d, s%d' % (sTA, sTA, sWC), 's_sub_u32 s%d, s%d, s%d' % (sTA, sTA, sW5K)]
            return self.touch(pre, 60, 2)
        idx = ['s_lshr_b32 s%d, s%d, 2' % (sTA, sRB), 's_lshl_b32 s%d, s%d, 1' % (sTA, sTA), 's_add_u32 s%d, s%d, s%d' % (sTA, sTA, sTH)]
        if which == 'B':
            return self.touch(idx + ['s_mul_i32 s%d, s%d, 12800' % (sTA, sTA), 's_add_u32 s%d, s%d, s%d' % (sTA, sTA, sWB), 's_sub_u32 s%d, s%d, s%d' % (sTA, sTA, sW5K)], 25, 1)
        if which == 'D':
            return self.touch(idx + ['s_mul_i32 s%d, s%d, 30720' % (sTA, sTA), 's_add_u32 s%d, s%d, s%d' % (sTA, sTA, sWD), 's_sub_u32 s%d, s%d, s%d' % (sTA, sTA, sW5K)], 60, 1)
    def touch_tok(self, base_off):
        pre = ['s_mul_i32 s%d, s%d, %d' % (sTA, sRB, 160 * KB), 's_lshr_b32 s%d, s%d, 1' % (sTB, sJ), 's_mul_i32 s%d, s%d, %d' % (sTB, sTB, 20 * KB),
               's_add_u32 s%d, s%d, s%d' % (sTA, sTA, sTB), 's_add_u32 s%d, s%d, s%d' % (sTA, sTA, sLOFF), 's_add_u32 s%d, s%d, 0x%x' % (sTA, sTA, base_off)]
        return self.touch(pre, 40, 1, ' sc1')
    def freed_by(self, c):
        if c <= NBLK - 7: return c + 6
        if c < NBLK - 1: return NBLK + (c - (NBLK - 7))
        return NBLK + 0
    def ring_read(self, dst, blk, off, kh=False):
        slot = self.slot_of(blk)
        base = (vK0 if kh else vL16) if slot < 3 else ((vK1 if kh else vL16B) if slot < 6 else vK2)
        assert slot < 6 or kh
        return 'ds_read_b128 v[%d:%d], v%d offset:%d' % (dst, dst + 3, base, (slot % 3) * BLK + off)
    def emit_next_layer_dma(self, b):
        e = self.e
        L = self.lab('nl')
        e('s_cmp_lg_u32 s%d, 0' % sL); e('s_cbranch_scc1 %s' % L)
        for g in self.dma_ops(b):
            for x in g:
                if isinstance(x, tuple): e(x[0], count=False)
                else: e(x)
        e.label(L)
    def signal(self, cnt_off_sgpr, ack=()):
        e = self.e
        if ack:
            e.vm_marker('pub')
            for b in ack:
                for g in self.dma_ops(b): e.extend(g)
            e.wait_tag('pub'); e.wait_lgkm0()
        else:
            e.wait_all()
        e('s_barrier')
        self.signal_only(cnt_off_sgpr)
    def signal_only(self, cnt_off_sgpr):
        e = self.e
        L = self.lab('sig')
        e('s_cmp_lg_u32 s%d, 0' % sW); e('s_cbranch_scc1 %s' % L)
        e('s_mov_b64 exec, 1')
        e('buffer_atomic_add v%d, v%d, s[4:7], s%d offen sc1' % (vONE, vZERO, cnt_off_sgpr), count=False)
        e('s_mov_b64 exec, -1')
        e.label(L)
    def poll(self, cnt_off_sgpr, n=1, target=16, srd=4, stride=128):
        e = self.e
        L = self.lab('poll'); X = self.lab('got')
        e('s_cmp_lg_u32 s%d, 0' % sW); e('s_cbranch_scc1 %s' % X)
        e('s_cmp_lg_u32 s%d, 0' % sDEAD); e('s_cbranch_scc1 %s' % X)
        e('s_mov_b32 s%d, 0' % sPC)
        if n > 1:
            e('v_min_u32 v%d, %d, v%d' % (vT0, n - 1, vLANE)); e('v_mul_u32_u24 v%d, %d, v%d' % (vT0, stride, vT0))
        e.label(L)
        e('buffer_load_dword v%d, v%d, s[%d:%d], s%d offen sc1' % (vPOLL, vT0 if n > 1 else vZERO, srd, srd + 3, cnt_off_sgpr), count=False)
        e('s_waitcnt vmcnt(0)', count=False)
        e('v_cmp_gt_u32 vcc, %d, v%d' % (target, vPOLL))
        e('s_cbranch_vccz %s' % X)
        if self.o.get('psleep'): e('s_sleep %d' % self.o['psleep'])
        e('s_add_u32 s%d, s%d, 1' % (sPC, sPC)); e('s_cmp_lt_u32 s%d, %d' % (sPC, SPIN_LIMIT))
        e('s_cbranch_scc1 %s' % L)
        e('s_mov_b32 s%d, 1' % sDEAD)
        e.label(X)
    def cnt(self, dst, which, idx_sgpr, mul=128, add=0, next_layer=False):
        e = self.e
        e('s_mul_i32 s%d, s%d, %d' % (dst, idx_sgpr, mul))
        e('s_add_u32 s%d, s%d, s%d' % (dst, dst, sCNT))
        e('s_add_u32 s%d, s%d, 0x%x' % (dst, dst, which + add + (CSTRIDE if next_layer else 0)))
    def prologue(self):
        if self.o.get('merged', 0): return self.prologue_merged()
        e = self.e
        e.directive('.text\n.globl %s\n.p2align 8\n.type %s,@function' % (self.name, self.name))
        e.label(self.name)
        e('s_cmp_ge_u32 s2, 256'); e('s_cbranch_scc1 M_END')
        e('s_load_dwordx2 s[32:33], s[0:1], 0')
        e('s_load_dwordx2 s[34:35], s[0:1], 64')
        e('s_load_dwordx2 s[36:37], s[0:1], 80')
        self.entry_stamp()
        self.pro_scalars(); self.pro_lanes()
        e('s_waitcnt lgkmcnt(0)')
        self.mk_srd(4, 36, WS_BYTES)
        self.pro_tail(32, 34)
    def prologue_merged(self):
        import gen_prep as P
        e = self.e
        e.directive('.text\n.globl %s\n.p2align 8\n.type %s,@function' % (self.name, self.name))
        e.label(self.name)
        e('s_cmp_ge_u32 s2, 256'); e('s_cbranch_scc1 M_END')
        e('s_load_dwordx8 s[64:71], s[0:1], 0')
        e('s_load_dwordx4 s[72:75], s[0:1], 40')
        e('s_load_dwordx2 s[76:77], s[0:1], 56')
        e('s_load_dwordx2 s[78:79], s[0:1], 64')
        e('s_load_dwordx4 s[80:83], s[0:1], 72')
        self.entry_stamp()
        self.pro_scalars()
        e('s_waitcnt lgkmcnt(0)')
        self.mk_srd(4, 82, WS_BYTES)
        e('s_add_u32 s0, s2, 352\ns_sub_u32 s26, s2, 64\ns_cmp_ge_u32 s2, 160\ns_cselect_b32 s0, s26, s0\ns_cmp_lt_u32 s2, 96\ns_cselect_b32 s0, s2, s0')
        e('s_add_u32 s1, s2, 192')
        Lz = self.lab('nz')
        e('s_cmp_ge_u32 s2, 16'); e('s_cbranch_scc1 %s' % Lz)
        e('s_cmp_lg_u32 s%d, 0' % sW); e('s_cbranch_scc1 %s' % Lz)
        for k in range(4): e('v_mov_b32 v%d, 0' % (120 + k))
        e('s_lshl_b32 s26, s2, 11')
        e('buffer_store_dwordx4 v[120:123], v%d, s[4:7], s26 offen sc1' % vL16, count=False)
        e('buffer_store_dwordx4 v[120:123], v%d, s[4:7], s26 offen offset:1024 sc1' % vL16, count=False)
        e.label(Lz)
        r1 = P.Ren(e, 1, 0); r2 = P.Ren(e, 2, 1)
        L1, L2 = 0, 32768
        def dispatch(cases, sreg, tagp):
            end = self.lab(tagp)
            labs = [self.lab(tagp) for _ in cases]
            for (ub, _), lb in list(zip(cases, labs))[:-1]:
                e('s_cmp_lt_u32 s%d, %d' % (sreg, ub)); e('s_cbranch_scc1 %s' % lb)
            e('s_branch %s' % labs[-1])
            for (ub, fn), lb in zip(cases, labs):
                e.label(lb); e.reset_state(); fn()
                e.wait_lgkm0()
                e('s_branch %s' % end)
            e.label(end); e.reset_state()
        dispatch([(96, lambda: P.wa_issue(r1)), (288, lambda: P.wc_issue(r1, L1)), (None, lambda: P.x_issue(r1))], 0, 'i1')
        dispatch([(288, lambda: P.wc_issue(r2, L2)), (416, lambda: P.wd_issue(r2, L2)), (None, lambda: P.wb_issue(r2, L2))], 1, 'i2')
        if self.o.get('codepf', 1):
            Lp = self.lab('npf')
            e('s_cmp_ge_u32 s2, 64'); e('s_cbranch_scc1 %s' % Lp)
            e('s_getpc_b64 s[84:85]')
            e.label('M_PC')
            e('s_add_u32 s84, s84, (M_LAYER-M_PC)\ns_addc_u32 s85, s85, 0')
            e('v_lshlrev_b32 v124, 7, v0\nv_mov_b32 v125, (M_CODE_END-M_LAYER-4)\nv_add_u32 v126, 0x8000, v124')
            e('v_min_u32 v124, v124, v125\nv_min_u32 v126, v126, v125\nv_and_b32 v124, -4, v124\nv_and_b32 v126, -4, v126')
            e('global_load_dword v127, v124, s[84:85]', count=False)
            e('global_load_dword v127, v126, s[84:85]', count=False)
            e.label(Lp)
        self.mk_srd(84, 80, 256)
        Lf = self.lab('nf'); Lv = self.lab('nfv'); Lw = self.lab('nfw')
        e('s_cmp_ge_u32 s2, 16'); e('s_cbranch_scc1 %s' % Lf)
        e('s_cmp_lg_u32 s%d, 0' % sW); e('s_cbranch_scc1 %s' % Lf)
        npf = 2 if self.o.get('codepf', 1) else 0
        e('s_cmp_eq_u32 s31, 1'); e('s_cbranch_scc1 %s' % Lv)
        e('s_waitcnt vmcnt(%d)' % (22 + 5 + npf), count=False); e('s_branch %s' % Lw)
        e.label(Lv)
        e('s_waitcnt vmcnt(%d)' % (10 + 5 + npf), count=False)
        e.label(Lw)
        e('s_lshl_b32 s62, s2, 2\ns_mov_b64 exec, 1')
        e('buffer_store_dword v%d, v%d, s[84:87], s62 offen sc1' % (vONE, vZERO), count=False)
        e('s_mov_b64 exec, -1')
        self.stamp(27)
        e.label(Lf)
        e('s_waitcnt vmcnt(4)', count=False)
        self.stamp(19)
        dispatch([(96, lambda: P.wa_process(r1)), (288, lambda: P.wc_process(r1, L1)), (None, lambda: P.x_process(r1))], 0, 'p1')
        self.stamp(20)
        Lq = self.lab('zq')
        e('s_cmp_lg_u32 s%d, 0' % sW); e('s_cbranch_scc1 %s' % Lq)
        e('v_min_u32 v126, 15, v%d\nv_lshlrev_b32 v126, 2, v126' % vLANE)
        e('buffer_load_dword v%d, v126, s[84:87], 0 offen sc1' % vPOLL, count=False)
        e.label(Lq)
        e('s_waitcnt vmcnt(0) lgkmcnt(0)', count=False)
        e('s_barrier')
        self.stamp(26)
        def arrive(off, below=None):
            La = self.lab('arr')
            e('s_cmp_lg_u32 s%d, 0' % sW); e('s_cbranch_scc1 %s' % La)
            if below is not None:
                e('s_cmp_ge_u32 s2, %d' % below); e('s_cbranch_scc1 %s' % La)
            e('s_and_b32 s62, s2, 15\ns_lshl_b32 s62, s62, 7\ns_add_u32 s62, s62, 0x%x\ns_mov_b64 exec, 1' % off)
            e('buffer_atomic_add v%d, v%d, s[4:7], s62 offen sc1' % (vONE, vZERO), count=False)
            e('s_mov_b64 exec, -1')
            e.label(La)
        Lc = self.lab('zc'); Ls = self.lab('zcs')
        e('s_cmp_lg_u32 s%d, 0' % sW); e('s_cbranch_scc1 %s' % Lc)
        e('s_mov_b32 s%d, 0' % sPC)
        e.label(Ls)
        e('v_cmp_gt_u32 vcc, 1, v%d' % vPOLL)
        e('s_cbranch_vccz %s' % Lc)
        if self.o.get('zsleep'): e('s_sleep %d' % self.o['zsleep'])
        e('buffer_load_dword v%d, v126, s[84:87], 0 offen sc1' % vPOLL, count=False)
        e('s_waitcnt vmcnt(0)', count=False)
        e('s_add_u32 s%d, s%d, 1' % (sPC, sPC)); e('s_cmp_lt_u32 s%d, %d' % (sPC, SPIN_LIMIT)); e('s_cbranch_scc1 %s' % Ls)
        e('s_mov_b32 s%d, 1' % sDEAD)
        e.label(Lc)
        arrive(CNT_CRIT, 160)
        self.stamp(21)
        dispatch([(288, lambda: P.wc_process(r2, L2)), (416, lambda: P.wd_process(r2, L2)), (None, lambda: P.wb_process(r2, L2))], 1, 'p2')
        self.stamp(22)
        e('s_waitcnt vmcnt(0) lgkmcnt(0)', count=False)
        e('s_barrier')
        arrive(CNT_REST)
        self.stamp(25)
        self.pro_lanes()
        e('s_mov_b32 s%d, 0x%x' % (sT0, CNT_CRIT))
        self.stamp(23)
        self.poll(sT0, n=16, target=10)
        e('s_barrier')
        self.stamp(24)
        self.pro_tail(64, 78)
    def entry_stamp(self):
        if self.o.get('stamps'):
            self.e(('s_memtime' if self.o.get('cyc') else 's_memrealtime') + ' s[60:61]\ns_waitcnt lgkmcnt(0)\nv_mov_b32 v223, s60')
    def mk_srd(self, d, lo, n):
        self.e('s_mov_b32 s%d, s%d\ns_mov_b32 s%d, s%d\ns_mov_b32 s%d, 0x%x\ns_mov_b32 s%d, 0x20000' % (d, lo, d + 1, lo + 1, d + 2, n, d + 3))
    def pro_scalars(self):
        e = self.e
        e('v_lshrrev_b32 v10, 6, v0'); e('v_and_b32 v%d, 63, v0' % vLANE)
        e('v_readfirstlane_b32 s%d, v10' % sW)
        e('v_lshlrev_b32 v%d, 4, v%d' % (vL16, vLANE))
        mp = self.o.get('map', 0)
        if mp == 0:
            e('s_and_b32 s%d, s2, 3\ns_lshr_b32 s26, s2, 6\ns_lshl_b32 s26, s26, 2\ns_or_b32 s%d, s%d, s26' % (sRB, sRB, sRB))
            e('s_lshr_b32 s%d, s2, 2\ns_and_b32 s%d, s%d, 15' % (sJ, sJ, sJ))
        elif mp == 1:
            e('s_and_b32 s%d, s2, 15\ns_lshr_b32 s%d, s2, 4' % (sRB, sJ))
        elif mp == 2:
            e('s_and_b32 s%d, s2, 1\ns_lshr_b32 s26, s2, 5\ns_lshl_b32 s26, s26, 1\ns_or_b32 s%d, s%d, s26' % (sRB, sRB, sRB))
            e('s_lshr_b32 s%d, s2, 1\ns_and_b32 s%d, s%d, 15' % (sJ, sJ, sJ))
        e('s_and_b32 s%d, s%d, 7\ns_lshr_b32 s%d, s%d, 3' % (sCS, sJ, sTH, sJ))
        e('s_mul_i32 s%d, s%d, 5120' % (sW5K, sW))
        e('s_lshr_b32 s%d, s%d, 1' % (sKH, sW))
        for (s, idx, stride, base) in ((sWA, sJ, 160 * KB, WA), (sWB, sCS, 100 * KB, WB), (sWC, sJ, 240 * KB, WC), (sWD, sCS, 240 * KB, WD)):
            if self.o.get('wsame'): stride = 0
            e('s_mul_i32 s%d, s%d, %d\ns_add_u32 s%d, s%d, s%d\ns_add_u32 s%d, s%d, 0x%x' % (s, idx, stride, s, s, sW5K, s, s, base))
        e('s_lshl_b32 s%d, s%d, 3\ns_lshl_b32 s26, s%d, 2\ns_add_u32 s%d, s%d, s26' % (sTTK, sRB, sTH, sTTK, sTTK))
        e('s_and_b32 s26, s%d, 1\ns_lshl_b32 s26, s26, 1\ns_add_u32 s%d, s%d, s26\ns_add_u32 s%d, s%d, s%d' % (sW, sTTK, sTTK, sTTK, sTTK, sKH))
        e('s_xor_b32 s%d, s%d, 1' % (sTTS, sTTK))
        e('s_mov_b32 s%d, 0\ns_mov_b32 s%d, 0\ns_mov_b32 s%d, 0x%x' % (sDEAD, sL, sLOFF, LBASE))
        e('s_mov_b32 s%d, 0x%x' % (sCNT, CNT0))
        e('s_sub_u32 s%d, s%d, 1\ns_lshl_b32 s%d, s%d, 11\ns_sub_u32 s%d, s%d, s%d' % (sEX, sW, sEX, sEX, sEXD, sEX, sW5K))
        e('v_mov_b32 v%d, 0x3f803f80\nv_mov_b32 v%d, 0\nv_mov_b32 v%d, 1' % (vONES, vZERO, vONE))
    def pro_lanes(self):
        e = self.e
        e('v_add_u32 v%d, %d, v%d' % (vL16B, 3 * BLK, vL16))
        e('v_lshlrev_b32 v%d, 7, v%d' % (vL128, vLANE))
        e('s_mul_i32 s26, s%d, 5120\nv_add_u32 v%d, s26, v%d\nv_add_u32 v%d, %d, v%d' % (sKH, vK0, vL16, vK1, 3 * BLK, vK0))
        e('v_add_u32 v%d, %d, v%d' % (vK2, 6 * BLK, vK0))
        t32, hi, t16, q = 100, 101, 102, 103
        e('v_and_b32 v%d, 31, v%d\nv_lshrrev_b32 v%d, 5, v%d' % (t32, vLANE, hi, vLANE))
        e('v_and_b32 v%d, 15, v%d\nv_lshrrev_b32 v%d, 4, v%d' % (t16, vLANE, q, vLANE))
        e('v_mov_b32 v104, 0x%x' % OOB)
        e('v_lshlrev_b32 v%d, 3, v%d\nv_lshl_add_u32 v%d, v%d, 16, v%d' % (vSA, t32, vSA, hi, vSA))
        e('s_lshl_b32 s26, s%d, 5\nv_add_u32 v105, s26, v%d\nv_mul_u32_u24 v105, 144, v105' % (sW, t32))
        e('v_mul_u32_u24 v106, 18432, v%d\nv_add_u32 v105, v105, v106\nv_add_u32 v%d, 0x%x, v105' % (hi, vTW, SCR))
        e('v_lshrrev_b32 v105, 1, v%d\nv_bfe_u32 v106, v%d, 2, 2\nv_lshl_add_u32 v105, v105, 3, v106\nv_mul_u32_u24 v105, 144, v105' % (q, vLANE))
        e('v_and_b32 v106, 1, v%d\nv_lshlrev_b32 v106, 5, v106\nv_and_b32 v107, 3, v%d\nv_lshl_add_u32 v106, v107, 3, v106\nv_add_u32 v105, v105, v106' % (q, vLANE))
        e('s_lshr_b32 s26, s%d, 1\ns_mul_i32 s26, s26, 18432\ns_add_u32 s26, s26, 0x%x' % (sW, SCR))
        e('s_and_b32 s27, s%d, 1\ns_mul_i32 s28, s27, 40\ns_add_u32 s28, s28, s26\ns_add_u32 s29, s26, 80' % sW)
        e('v_add_u32 v%d, s28, v105\nv_add_u32 v%d, s29, v105' % (vKA, vKB))
        e('s_lshl_b32 s26, s%d, 10' % sW)
        e('v_mul_u32_u24 v105, 24, v%d\nv_add_u32 v105, v105, v%d\nv_lshlrev_b32 v105, 4, v105\nv_add_u32 v105, s26, v105' % (hi, t32))
        e('v_cmp_gt_u32 vcc, 24, v%d\nv_cndmask_b32 v%d, v104, v105, vcc' % (t32, vPS1))
        e('v_lshlrev_b32 v105, 3, v%d\nv_add_u32 v105, s26, v105\nv_add_u32 v105, 768, v105' % t32)
        e('v_cmp_eq_u32 vcc, 0, v%d\nv_cndmask_b32 v%d, v104, v105, vcc' % (hi, vPS2))
        e('v_mov_b32 v106, 84\nv_cmp_le_u32 s[30:31], v106, v0\nv_cndmask_b32 v106, 0, 1, s[30:31]')
        e('v_mul_u32_u24 v107, 84, v106\nv_sub_u32 v107, v0, v107')
        e('v_mul_u32_u24 v108, 391, v107\nv_lshrrev_b32 v108, 13, v108')
        e('v_mul_u32_u24 v109, 21, v108\nv_sub_u32 v109, v107, v109')
        e('v_subrev_u32 v110, 168, v0\nv_mul_u32_u24 v111, 391, v110\nv_lshrrev_b32 v111, 13, v111\nv_and_b32 v111, 3, v111')
        e('v_mul_u32_u24 v96, 21, v111\nv_sub_u32 v96, v110, v96')
        e('v_cmp_gt_u32 vcc, 168, v0')
        e('v_lshrrev_b32 v97, 1, v108\nv_lshl_add_u32 v97, v106, 1, v97\nv_lshlrev_b32 v97, 10, v97')
        e('v_and_b32 v98, 1, v108\nv_mul_u32_u24 v98, 24, v98\nv_add_u32 v98, v98, v109\nv_lshl_add_u32 v97, v98, 4, v97')
        e('v_lshlrev_b32 v98, 10, v111\nv_lshl_add_u32 v98, v96, 3, v98\nv_add_u32 v98, 768, v98')
        e('v_cndmask_b32 v97, v98, v97, vcc')
        e('v_mov_b32 v99, 252\nv_cmp_gt_u32 s[30:31], v99, v0\nv_cndmask_b32 v%d, v104, v97, s[30:31]' % vPL)
        e('v_lshrrev_b32 v97, 1, v111\nv_cndmask_b32 v106, v97, v106, vcc')
        e('v_cndmask_b32 v108, 4, v108, vcc\nv_cndmask_b32 v109, v96, v109, vcc')
        e('v_lshrrev_b32 v110, 4, v109\nv_mul_u32_u24 v110, 5, v110\nv_add_u32 v110, v110, v108')
        e('v_and_b32 v109, 15, v109\nv_lshrrev_b32 v97, 2, v109\nv_lshlrev_b32 v97, 3, v97\nv_and_b32 v109, 3, v109\nv_add_u32 v97, v97, v109')
        e('v_mul_u32_u24 v109, 36, v106\nv_add_u32 v97, v97, v109')
        e('v_lshlrev_b32 v97, 4, v97\nv_lshl_add_u32 v97, v110, 10, v97\nv_add_u32 v97, 0x%x, v97' % SCR)
        e('v_and_b32 v105, 63, v0\nv_lshlrev_b32 v105, 4, v105\nv_add_u32 v105, 0x%x, v105' % (SCR + 12288))
        e('v_cndmask_b32 v%d, v105, v97, vcc' % vAW)
        e('v_and_b32 v98, 1, v111\nv_lshl_add_u32 v97, v98, 3, v97')
        e('v_cndmask_b32 v97, v97, v105, vcc\nv_cndmask_b32 v%d, v105, v97, s[30:31]' % vAW2)
        e('s_mul_i32 s26, s%d, 5' % sJ)
        e('v_bfe_u32 v105, v%d, 4, 1\nv_mul_u32_u24 v105, 20480, v105\nv_lshl_add_u32 v105, v%d, 4, v105' % (vLANE, t16))
        for (dst, expr) in ((vO0, 0), (vO1, 1), (vO2, None)):
            if expr is not None:
                e('v_lshl_add_u32 v106, v%d, 1, s26\nv_add_u32 v106, %d, v106' % (hi, expr))
            else:
                e('v_mov_b32 v106, s26\nv_add_u32 v106, 4, v106')
            e('v_lshrrev_b32 v107, 2, v106\nv_lshl_add_u32 v107, v107, 10, v105\nv_and_b32 v106, 3, v106\nv_lshl_add_u32 v%d, v106, 8, v107' % dst)
        e('v_lshl_add_u32 v%d, v%d, 3, v%d' % (vO2, hi, vO2))
        e('s_mul_i32 s26, s%d, 10' % sCS)
        e('s_and_b32 s27, s%d, 1\ns_lshl_b32 s27, s27, 8' % sTTK)
        e('v_lshlrev_b32 v105, 4, v%d' % t16)
        for n, (dx, dy) in enumerate(((vX0, vY0), (vX1, vY1), (vX2, vY2))):
            if n < 2: e('v_add_u32 v106, s26, v%d\nv_add_u32 v106, %d, v106' % (q, 4 * n))
            else: e('v_lshrrev_b32 v106, 1, v%d\nv_add_u32 v106, s26, v106\nv_add_u32 v106, 8, v106' % q)
            e('v_lshrrev_b32 v107, 2, v106\nv_lshl_add_u32 v107, v107, 10, v105\nv_and_b32 v108, 3, v106\nv_lshl_add_u32 v%d, v108, 8, v107' % dx)
            e('v_lshrrev_b32 v107, 1, v106\nv_lshl_add_u32 v107, v107, 10, v105\nv_and_b32 v108, 1, v106\nv_lshl_add_u32 v107, v108, 9, v107\nv_add_u32 v%d, s27, v107' % dy)
        e('v_and_b32 v106, 1, v%d\nv_lshl_add_u32 v%d, v106, 3, v%d\nv_lshl_add_u32 v%d, v106, 3, v%d' % (q, vX2, vX2, vY2, vY2))
        e('v_mul_u32_u24 v105, 1280, v%d\nv_lshl_add_u32 v%d, v%d, 4, v105\nv_lshl_add_u32 v%d, v%d, 3, v105\nv_add_u32 v%d, 128, v%d' % (t16, vR0, q, vR2, q, vR2, vR2))
        e('v_lshlrev_b32 v105, 3, v%d\nv_cmp_eq_u32 vcc, 0, v%d\nv_cndmask_b32 v%d, v104, v105, vcc\nv_lshl_add_u32 v%d, v%d, 15, v105' % (t16, q, vST, vSC, q))
        e('s_add_u32 s26, s%d, 0x%x\nv_add_u32 v%d, s26, v%d' % (sW5K, SCR, vEXW, vL16))
        e('s_xor_b32 s27, s%d, 2\ns_mul_i32 s27, s27, 5120\ns_add_u32 s27, s27, 0x%x\nv_add_u32 v%d, s27, v%d' % (sW, SCR, vEXR, vL16))
    def pro_tail(self, xlo, olo):
        e = self.e
        self.mk_srd(8, xlo, T * 1280); self.mk_srd(12, olo, T * 1280)
        if self.o.get('ampre_a', 0): self.am_a()
        for b in self.A_ack:
            for g in self.dma_ops(b): e.extend(g)
        self.side_dma(self.A_side[:1])
        for b in self.A_tail:
            for g in self.dma_ops(b):
                for x in g:
                    if isinstance(x, tuple): e(x[0], count=False)
                    else: e(x)
        self.side_dma(self.A_side[1:])
        if not self.o.get('xrlate', 1): self.xr_load()
    def xr_load(self):
        e = self.e
        e('s_mul_i32 s29, s%d, 20480\ns_mul_i32 s31, s%d, 160\ns_add_u32 s29, s29, s31' % (sTTK, sCS))
        e('buffer_load_dwordx4 v[%d:%d], v%d, s[8:11], s29 offen' % (XR, XR + 3, vR0), count=False)
        e('buffer_load_dwordx4 v[%d:%d], v%d, s[8:11], s29 offen offset:64' % (XR + 4, XR + 7, vR0), count=False)
        e('buffer_load_dwordx2 v[%d:%d], v%d, s[8:11], s29 offen' % (XR + 8, XR + 9, vR2), count=False)
    def rowstat_finish(self, S, Q, vRS, vVE, BM, tmp):
        L = []
        L.append('v_mul_f32 v%d, %s, v%d' % (S, f32bits(1.0 / 640), S))
        L.append('v_mul_f32 v%d, %s, v%d' % (Q, f32bits(1.0 / 640), Q))
        L.append('v_fma_f32 v%d, -v%d, v%d, v%d' % (Q, S, S, Q))
        L.append('v_max_f32 v%d, 0, v%d' % (Q, Q))
        L.append('v_add_f32 v%d, %s, v%d' % (vVE, f32bits(1e-5), Q))
        L.append('v_rsq_f32 v%d, v%d' % (vRS, vVE))
        L.append('v_cvt_pk_bf16_f32 v%d, -v%d, -v%d' % (tmp, S, S))
        L.append('v_and_b32 v%d, 0xffff0000, v%d' % (tmp, tmp))
        L.append('v_sub_f32 v%d, -v%d, v%d' % (tmp, S, tmp))
        L.append('v_cvt_pk_bf16_f32 v%d, -v%d, v%d' % (BM, S, tmp))
        for k in range(1, 4): L.append('v_mov_b32 v%d, v%d' % (BM + k, BM))
        return L
    def softmax_pair(self, X, vC, EP, EM, t):
        L = []
        mx, mn, ap, am, sp, sm = range(t, t + 6)
        L.append('v_max3_f32 v%d, v%d, v%d, v%d' % (mx, X[0], X[1], X[2]))
        L.append('v_min3_f32 v%d, v%d, v%d, v%d' % (mn, X[0], X[1], X[2]))
        for k in range(3, 19, 2):
            L.append('v_max3_f32 v%d, v%d, v%d, v%d' % (mx, mx, X[k], X[k + 1]))
            L.append('v_min3_f32 v%d, v%d, v%d, v%d' % (mn, mn, X[k], X[k + 1]))
        L.append('v_max_f32 v%d, v%d, v%d' % (mx, mx, X[19]))
        L.append('v_min_f32 v%d, v%d, v%d' % (mn, mn, X[19]))
        L.append('v_mul_f32 v%d, v%d, v%d' % (ap, vC, mx))
        L.append('v_mul_f32 v%d, v%d, v%d' % (am, vC, mn))
        for f in range(20):
            L.append('v_fma_f32 v%d, v%d, v%d, -v%d' % (EP + f, X[f], vC, ap))
            L.append('v_fma_f32 v%d, -v%d, v%d, v%d' % (EM + f, X[f], vC, am))
        for f in range(20):
            L.append('v_exp_f32 v%d, v%d' % (EP + f, EP + f))
            L.append('v_exp_f32 v%d, v%d' % (EM + f, EM + f))
        L.append('v_add_f32 v%d, v%d, v%d' % (sp, EP, EP + 1))
        L.append('v_add_f32 v%d, v%d, v%d' % (sm, EM, EM + 1))
        for f in range(2, 20):
            L.append('v_add_f32 v%d, v%d, v%d' % (sp, sp, EP + f))
            L.append('v_add_f32 v%d, v%d, v%d' % (sm, sm, EM + f))
        L.append('v_rcp_f32 v%d, v%d' % (sp, sp))
        L.append('v_rcp_f32 v%d, v%d' % (sm, sm))
        for f in range(20):
            L.append('v_mul_f32 v%d, v%d, v%d' % (EP + f, EP + f, sp))
            L.append('v_mul_f32 v%d, v%d, v%d' % (EM + f, EM + f, sm))
        return L
    def stamp(self, k):
        if not self.o.get('stamps'): return
        e = self.e
        e('v_mov_b32 v222, s%d' % sL)
        e('v_lshlrev_b32 v222, 5, v222\nv_add_u32 v222, %d, v222' % k)
        e('v_cmp_eq_u32 vcc, v222, v%d' % vLANE)
        e('s_memtime s[58:59]' if self.o.get('cyc') else 's_memrealtime s[58:59]')
        e('s_waitcnt lgkmcnt(0)')
        e('v_mov_b32 v222, s58')
        e('v_cndmask_b32 v223, v223, v222, vcc')
    def stamp_items(self, k):
        if self.o.get('stamps') != 2: return []
        sub = Main(None, self.o); sub.stamp(k)
        return sub.e.items
    def stamp_flush(self):
        if not self.o.get('stamps'): return
        e = self.e
        e('s_lshl_b32 s62, s2, 2\ns_add_u32 s62, s62, s%d\ns_lshl_b32 s62, s62, 8\ns_add_u32 s62, s62, 0x%x' % (sW, TSOFF))
        e('v_lshlrev_b32 v%d, 2, v%d' % (vT0, vLANE))
        e('buffer_store_dword v223, v%d, s[4:7], s62 offen' % vT0)
    def maybe_stop(self, name):
        if self.stop == name:
            self.e.wait_all(); self.e('s_endpgm'); return True
        return False
    def vm_stream(self, items):
        st = Stream()
        for it in sorted(items, key=lambda x: x[3] if len(x) > 3 else x[0]):
            st.add(it[2], it[1], it[0])
        return st
    def flat(self, groups):
        return [x for g in groups for x in g]
    def phase_a(self):
        e = self.e; o = self.o
        T0, T1, T2, T3 = ACC, ACC + 16, ACC + 32, ACC + 48
        ST, vRS, vVE, vC, BM, AM, EP, EM, P = 112, 120, 121, 122, 124, 128, 144, 164, 184
        self.stamp(0)
        L = self.lab('a_nopoll')
        e('s_cmp_eq_u32 s%d, 0' % sL); e('s_cbranch_scc1 %s' % L)
        self.cnt(sT0, CNT_XA, sRB)
        self.poll(sT0)
        e('s_barrier')
        e.label(L)
        self.stamp(1)
        e('s_lshl_b32 s%d, s%d, 2\ns_add_u32 s%d, s%d, s%d' % (sT0, sRB, sT0, sT0, sW))
        e('s_lshl_b32 s%d, s%d, 8\ns_add_u32 s%d, s%d, s%d\ns_add_u32 s%d, s%d, 0x%x' % (sT1, sT0, sT1, sT1, sLOFF, sT1, sT1, SA))
        e('s_mul_i32 s%d, s%d, 40960\ns_add_u32 s%d, s%d, s%d\ns_add_u32 s%d, s%d, 0x%x' % (sTW, sT0, sTW, sTW, sLOFF, sTW, sTW, XA))
        def tok(s):
            g = []
            if s % 4 == 0: g.append('s_add_u32 s%d, s%d, %d' % (sB0, sTW, s * 1024))
            g.append('buffer_load_dwordx4 a[%d:%d], v%d, s[4:7], s%d offen offset:%d%s' % (4 * s, 4 * s + 3, vL16, sB0, (s % 4) * 1024, self.sc))
            return g
        NPRE = o.get('a_npre', 14)
        if o.get('tt', 0): e.extend(self.touch_tok(XA))
        for s in range(NPRE): e.extend(tok(s))
        stld = []
        for k in range(4):
            if k: stld.append('s_add_u32 s%d, s%d, 16384' % (sT1, sT1))
            stld.append('buffer_load_dwordx2 v[%d:%d], v%d, s[4:7], s%d offen sc1' % (ST + 2 * k, ST + 2 * k + 1, vSA, sT1))
        e('s_lshl_b32 s%d, s%d, 12\ns_add_u32 s%d, s%d, 0x%x' % (sT2, sJ, sT2, sT2, WAM))
        amload = ['buffer_load_dwordx4 v[%d:%d], v%d, s[4:7], s%d offen offset:%d' % (AM + 4 * t, AM + 4 * t + 3, vL16, sT2, t * 1024) for t in range(4)]
        st = []
        st += ['v_add_f32 v%d, v%d, v%d' % (ST, ST, ST + 2), 'v_add_f32 v%d, v%d, v%d' % (ST + 1, ST + 1, ST + 3),
               'v_add_f32 v%d, v%d, v%d' % (ST + 4, ST + 4, ST + 6), 'v_add_f32 v%d, v%d, v%d' % (ST + 5, ST + 5, ST + 7),
               'v_add_f32 v%d, v%d, v%d' % (ST, ST, ST + 4), 'v_add_f32 v%d, v%d, v%d' % (ST + 1, ST + 1, ST + 5),
               'v_mov_b32 v%d, v%d' % (ST + 2, ST), 'v_mov_b32 v%d, v%d' % (ST + 3, ST + 1),
               'v_permlane32_swap_b32 v%d, v%d' % (ST, ST + 2), 'v_permlane32_swap_b32 v%d, v%d' % (ST + 1, ST + 3),
               'v_add_f32 v%d, v%d, v%d' % (ST, ST, ST + 2), 'v_add_f32 v%d, v%d, v%d' % (ST + 1, ST + 1, ST + 3)]
        st += self.rowstat_finish(ST, ST + 1, vRS, vVE, BM, ST + 2)
        st += ['v_mul_f32 v%d, %s, v%d' % (vC, f32bits(LOG2E), vRS)]
        LA = 5
        def frag_info(n):
            if n < 120: return n // 3, n % 3
            return n - 120, 3
        def read(n): return self.ring_read(AF + 4 * (n % 8), A0 + n // 20, (n % 20) * 1024)
        def mfma(n):
            s, tau = frag_info(n); acc = ACC + 16 * tau; a = AF + 4 * (n % 8)
            c = '0' if s == 0 else 'v[%d:%d]' % (acc, acc + 15)
            return 'v_mfma_f32_32x32x16_bf16 v[%d:%d], v[%d:%d], a[%d:%d], %s' % (acc, acc + 15, a, a + 3, 4 * s, 4 * s + 3, c)
        def mean(tau):
            acc = ACC + 16 * tau
            return 'v_mfma_f32_32x32x16_bf16 v[%d:%d], v[%d:%d], v[%d:%d], v[%d:%d]' % (acc, acc + 15, AM + 4 * tau, AM + 4 * tau + 3, BM, BM + 3, acc, acc + 15)
        ksm = self.softmax_pair([T0 + r for r in range(16)] + [T1 + r for r in range(4)], vC, EP, EM, ST)
        for d in range(10): ksm.append('v_cvt_pk_bf16_f32 v%d, v%d, v%d' % (P + d, EP + 2 * d, EP + 2 * d + 1))
        for d in range(10): ksm.append('v_cvt_pk_bf16_f32 v%d, v%d, v%d' % (P + 10 + d, EM + 2 * d, EM + 2 * d + 1))
        V = [T1 + r for r in range(4, 16)] + [T2 + r for r in range(8)]
        for f in range(20): ksm.append('v_mul_f32 v%d, v%d, v%d' % (V[f], V[f], vRS))
        for d in range(10): ksm.append('v_cvt_pk_bf16_f32 v%d, v%d, v%d' % (P + 20 + d, V[2 * d], V[2 * d + 1]))
        ksm += ['v_mov_b32 v%d, 0x3f80' % (P + 30), 'v_mov_b32 v%d, 0' % (P + 31)]
        anchors = []; pre = {}; fixed = {}; idx = {}
        KF = o.get('kvfirst', 1)
        NF1 = 140 if KF else 160
        for n in range(NF1):
            if n == 120:
                idx['mean'] = len(anchors)
                anchors += [mean(t) for t in range(3)]
            idx[n] = len(anchors)
            anchors.append(mfma(n))
            fixed[idx[n]] = ([read(n + LA)] if n + LA < NF1 else []) + ([Need('v[%d:%d]' % (AF + 4 * ((n + 1) % 8), AF + 4 * ((n + 1) % 8) + 3))] if n + 1 < NF1 else [])
        if not KF: anchors.append(mean(3))
        for ep in range(1, 7 if KF else 8):
            at = idx['mean'] if ep == 6 else idx[20 * ep]
            pre[at] = ([W_tag('blk%d' % (A0 + ep + 1))] if ep < 7 else []) + ['s_barrier']
            if self.o.get('fine') == 'a': pre[at] += self.stamp_items(19 + ep - 1)
        items = [(3 * s, 0, tok(s)) for s in range(NPRE, 40)]
        if not o.get('ampre_a', 0): items.append((90, 0, amload))
        if o.get('tw', 0): items.append((30, 0, self.touch_w('B')))
        items.append((o.get('a_stdl', 64), 0, stld))
        for b in self.A_in: items.append((20 * (b - 1), 0, self.flat(self.dma_ops(b))))
        last_in = o.get('a_lastblk', 11)
        for b in range(6, last_in + 1):
            free = 20 * (b - 5) if b - 5 < 6 else idx['mean']
            assert not KF or b <= 11
            items.append((20 * (b - 1) if b < 8 else 200 + b, free, self.flat(self.dma_ops(b))))
        if o.get('merged', 0):
            sub = Main(None, self.o); sub.nlab = self.nlab + 2000; q = sub.e
            Lr = 'M_restld'
            q('s_cmp_lg_u32 s%d, 0' % sL); q('s_cbranch_scc1 %s' % Lr)
            q('v_min_u32 v%d, 15, v%d\nv_lshlrev_b32 v%d, 7, v%d\ns_mov_b32 s%d, 0x%x' % (vT1, vLANE, vT1, vT1, sT3, CNT_REST))
            q('buffer_load_dword v%d, v%d, s[4:7], s%d offen sc1' % (vPOLL, vT1, sT3), count=False)
            q.label(Lr)
            e.extend(q.items)
            sub = Main(None, self.o); sub.nlab = self.nlab + 3000; q = sub.e
            Lk = 'M_restok'; Ll = 'M_restsp'
            q('s_cmp_lg_u32 s%d, 0' % sL); q('s_cbranch_scc1 %s' % Lk)
            q('s_mov_b32 s%d, 0' % sPC)
            q.label(Ll)
            q('v_cmp_gt_u32 vcc, 16, v%d' % vPOLL)
            q('s_cbranch_vccz %s' % Lk)
            q('s_cmp_lg_u32 s%d, 0' % sDEAD); q('s_cbranch_scc1 %s' % Lk)
            q('buffer_load_dword v%d, v%d, s[4:7], s%d offen sc1' % (vPOLL, vT1, sT3), count=False)
            q('s_waitcnt vmcnt(0)', count=False)
            q('s_add_u32 s%d, s%d, 1' % (sPC, sPC)); q('s_cmp_lt_u32 s%d, %d' % (sPC, SPIN_LIMIT)); q('s_cbranch_scc1 %s' % Ll)
            q('s_mov_b32 s%d, 1' % sDEAD)
            q.label(Lk)
            pre[idx[60]] = q.items + pre[idx[60]]
        vs = self.vm_stream(items)
        valu = Stream(st, o.get('a_stv', 90)).add(ksm, idx[120] + 1)
        if o.get('fine') == 'a0': e.extend(self.stamp_items(19))
        e.wait_tag('blk0'); e.wait_tag('blk1')
        if self.A_tail:
            Lw = self.lab('a_l0w')
            e('s_cmp_lg_u32 s%d, 0' % sL); e('s_cbranch_scc1 %s' % Lw)
            e('s_waitcnt vmcnt(0)', count=False)
            e.label(Lw)
        e('s_barrier')
        if o.get('fine') == 'a0':
            e.extend(self.stamp_items(20))
            for k, at in enumerate((1, 3, 6, 9, 12, 15, 18)):
                pre[at] = pre.get(at, []) + self.stamp_items(21 + k)
        for n in range(LA): e(read(n))
        stt = {}
        e.extend(schedule(anchors, 5, pre, fixed, [vs, valu], vm_gap=o.get('a_gap', 2), state=stt))
        if o.get('verbose'): print('a forced', stt.get('forced'), 'left', len(vs.q), len(valu.q))
        e.extend([y[0] for y in vs.q]); e.extend([y[0] for y in valu.q])
        self.a_late = list(range(last_in + 1, 13))
        self.stamp(2)
        for m in range(8):
            e('ds_write_b128 v%d, v[%d:%d] offset:%d' % (vTW, P + 4 * m, P + 4 * m + 3, 16 * m))
        e.wait_lgkm0()
        e('s_barrier')
        KD = T0
        def kvread(ks):
            b = AF + 8 * (ks % 4)
            return ['ds_read_b64_tr_b16 v[%d:%d], v%d offset:%d' % (b, b + 1, vKA, ks * 2304),
                    'ds_read_b64_tr_b16 v[%d:%d], v%d offset:%d' % (b + 2, b + 3, vKA, ks * 2304 + 576),
                    'ds_read_b64_tr_b16 v[%d:%d], v%d offset:%d' % (b + 4, b + 5, vKB, ks * 2304),
                    'ds_read_b64_tr_b16 v[%d:%d], v%d offset:%d' % (b + 6, b + 7, vKB, ks * 2304 + 576)]
        for ks in range(3): e.extend(kvread(ks))
        for ks in range(8):
            if ks + 3 < 8: e.extend(kvread(ks + 3))
            b = AF + 8 * (ks % 4)
            e('v_mfma_f32_32x32x16_bf16 v[%d:%d], v[%d:%d], v[%d:%d], %s' % (KD, KD + 15, b, b + 3, b + 4, b + 7, '0' if ks == 0 else 'v[%d:%d]' % (KD, KD + 15)))
        PK = EP
        for d in range(6): e('v_cvt_pk_bf16_f32 v%d, v%d, v%d' % (PK + d, KD + 2 * d, KD + 2 * d + 1))
        e('s_lshl_b32 s%d, s%d, 4\ns_add_u32 s%d, s%d, s%d\ns_lshl_b32 s%d, s%d, 12' % (sT0, sJ, sT0, sT0, sRB, sT0, sT0))
        e('s_add_u32 s%d, s%d, s%d\ns_add_u32 s%d, s%d, 0x%x' % (sT0, sT0, sLOFF, sT0, sT0, KVP))
        if o.get('reuse'): e('s_lshl_b32 s%d, s%d, 20\ns_add_u32 s%d, s%d, s%d' % (sT3, sL, sT0, sT0, sT3))
        e('buffer_store_dwordx4 v[%d:%d], v%d, s[4:7], s%d offen sc1' % (PK, PK + 3, vPS1, sT0))
        e('buffer_store_dwordx2 v[%d:%d], v%d, s[4:7], s%d offen sc1' % (PK + 4, PK + 5, vPS2, sT0))
        self.cnt(sT1, CNT_KV, sJ)
        kack = self.a_late if o.get('k_ack', 1) else []
        self.signal(sT1, kack)
        self.stamp(3)
        if o.get('tw', 0): e.extend(self.touch_w('C'))
        if not kack: self.side_dma(self.a_late)
        if o.get('xrlate', 1):
            Lx = self.lab('xr')
            e('s_cmp_lg_u32 s%d, 0' % sL); e('s_cbranch_scc1 %s' % Lx)
            self.xr_load()
            e.label(Lx)
        ZR = EM
        zf = ['v_mov_b32 v%d, 0' % (ZR + r) for r in range(4)]
        zf += ['v_lshlrev_b32 v%d, 4, v0' % vT1, 'v_add_u32 v%d, 0x%x, v%d' % (vT1, SCR, vT1)]
        zf += ['ds_write_b128 v%d, v[%d:%d] offset:%d' % (vT1, ZR, ZR + 3, m * 4096) for m in range(3)]
        if KF:
            an2 = []; fx2 = {}
            for n in range(NF1, NF1 + LA): e(read(n))
            for n in range(NF1, 160):
                fx2[len(an2)] = ([read(n + LA)] if n + LA < 160 else []) + ([Need('v[%d:%d]' % (AF + 4 * ((n + 1) % 8), AF + 4 * ((n + 1) % 8) + 3))] if n + 1 < 160 else [])
                an2.append(mfma(n))
            an2.append(mean(3))
            z = Stream(zf)
            e.extend(schedule(an2, 5, {}, fx2, [z]))
            e.extend([y[0] for y in z.q])
        else:
            e.extend(zf)
        Q = P
        X = [T2 + r for r in range(8, 16)] + [T3 + r for r in range(12)]
        e.extend(self.softmax_pair(X, vC, EP, EM, ST))
        order = []
        for sign in (EP, EM):
            order += [(sign + 0), (sign + 2), (sign + 8), (sign + 10), (sign + 4), (sign + 6), (sign + 12), (sign + 14)]
        order += [EP + 16, EP + 18, EM + 16, EM + 18]
        for d, r in enumerate(order): e('v_cvt_pk_bf16_f32 v%d, v%d, v%d' % (Q + d, r, r + 1))
        e.wait_lgkm0()
        self.stamp(4)
        self.poll(sT1)
        e('s_barrier')
        self.stamp(5)
        if self.maybe_stop('a1'): return True
        LD, SUM, PKK = 112, 176, 204
        e('s_lshl_b32 s%d, s%d, 16\ns_add_u32 s%d, s%d, s%d\ns_add_u32 s%d, s%d, 0x%x' % (sT0, sJ, sT0, sT0, sLOFF, sT0, sT0, KVP))
        if o.get('reuse'): e('s_lshl_b32 s%d, s%d, 20\ns_add_u32 s%d, s%d, s%d' % (sT3, sL, sT0, sT0, sT3))
        for p in range(16):
            if p: e('s_add_u32 s%d, s%d, 4096' % (sT0, sT0))
            e('buffer_load_dwordx4 v[%d:%d], v%d, s[4:7], s%d offen sc1' % (LD + 4 * p, LD + 4 * p + 3, vPL, sT0))
        e('v_mov_b32 v%d, 0x00003f80\nv_mov_b32 v%d, 0x3f800000' % (vT2, vT3))
        for k in range(8): e('v_mov_b32 v%d, 0' % (SUM + k))
        for p in range(16):
            for d in range(4):
                e('v_dot2c_f32_bf16 v%d, v%d, v%d' % (SUM + 2 * d, LD + 4 * p + d, vT2))
                e('v_dot2c_f32_bf16 v%d, v%d, v%d' % (SUM + 2 * d + 1, LD + 4 * p + d, vT3))
        for d in range(4): e('v_cvt_pk_bf16_f32 v%d, v%d, v%d' % (PKK + d, SUM + 2 * d, SUM + 2 * d + 1))
        e('ds_write_b128 v%d, v[%d:%d]' % (vAW, PKK, PKK + 3))
        e('ds_write_b64 v%d, v[%d:%d]' % (vAW2, PKK, PKK + 1))
        e.wait_lgkm0()
        e('s_barrier')
        e('v_add_u32 v%d, 0x%x, v%d' % (vT1, SCR, vL16))
        for n in range(8): e('ds_read_b128 v[%d:%d], v%d offset:%d' % (AF + 4 * n, AF + 4 * n + 3, vT1, n * 1024))
        G0, G1 = T0, T1
        for n in range(10):
            rho, s = n // 5, n % 5
            acc = G0 if rho == 0 else G1
            a = AF + 4 * (n % 8)
            e('v_mfma_f32_32x32x16_bf16 v[%d:%d], v[%d:%d], v[%d:%d], %s' % (acc, acc + 15, a, a + 3, Q + 4 * s, Q + 4 * s + 3, '0' if s == 0 else 'v[%d:%d]' % (acc, acc + 15)))
            if n < 2: e('ds_read_b128 v[%d:%d], v%d offset:%d' % (a, a + 3, vT1, (n + 8) * 1024))
        e('v_add_f32 v%d, %s, v%d' % (vT2, f32bits(1e-6), G1 + 4))
        e('v_rcp_f32 v%d, v%d' % (vT2, vT2))
        OP = 208
        src = [G0 + r for r in range(16)] + [G1 + r for r in range(4)]
        for r in src: e('v_mul_f32 v%d, v%d, v%d' % (r, r, vT2))
        for d in range(10): e('v_cvt_pk_bf16_f32 v%d, v%d, v%d' % (OP + d, src[2 * d], src[2 * d + 1]))
        e('s_lshl_b32 s%d, s%d, 3\ns_lshl_b32 s%d, s%d, 1\ns_add_u32 s%d, s%d, s%d\ns_mul_i32 s%d, s%d, 20480' % (sT0, sRB, sT1, sW, sT0, sT0, sT1, sT0, sT0))
        e('s_add_u32 s%d, s%d, s%d\ns_add_u32 s%d, s%d, 0x%x' % (sT0, sT0, sLOFF, sT0, sT0, O))
        e('buffer_store_dwordx4 v[%d:%d], v%d, s[4:7], s%d offen sc1' % (OP, OP + 3, vO0, sT0))
        e('buffer_store_dwordx4 v[%d:%d], v%d, s[4:7], s%d offen sc1' % (OP + 4, OP + 7, vO1, sT0))
        e('buffer_store_dwordx2 v[%d:%d], v%d, s[4:7], s%d offen sc1' % (OP + 8, OP + 9, vO2, sT0))
        self.stamp(6)
        self.cnt(sT1, CNT_O, sRB)
        self.signal(sT1, [C0] if o.get('o_ack', 1) else [])
        self.stamp(7)
        if not o.get('o_ack', 1): self.side_dma([C0])
        return self.maybe_stop('a')
    def gemm_bd(self, first_blk, nsteps, vs, pre_extra, valu, breg=None):
        e = self.e
        LA = 5
        nf = nsteps * 5
        def read(n):
            i, tau = n // 5, n % 5
            return self.ring_read(AF + 4 * (n % 8), first_blk + i // 2, (i & 1) * 10240 + tau * 1024, kh=True)
        def mf(n, u):
            i, tau = n // 5, n % 5
            acc = ACC + (tau * 2 + u) * 4; a = AF + 4 * (n % 8); b = breg(i, u) if breg else (2 * i + u) * 4
            c = '0' if i == 0 else 'v[%d:%d]' % (acc, acc + 3)
            return 'v_mfma_f32_16x16x32_bf16 v[%d:%d], v[%d:%d], a[%d:%d], %s' % (acc, acc + 3, a, a + 3, b, b + 3, c)
        anchors = []; pre = {}; fixed = {}
        for n in range(nf):
            anchors += [mf(n, 0), mf(n, 1)]
            if n + LA < nf: fixed[2 * n] = [read(n + LA)]
            if n + 1 < nf: fixed[2 * n + 1] = [Need('v[%d:%d]' % (AF + 4 * ((n + 1) % 8), AF + 4 * ((n + 1) % 8) + 3))]
        nep = nsteps // 2
        for ep in range(1, nep):
            pre[20 * ep] = list(pre_extra.get(ep, [])) + ([W_tag('blk%d' % (first_blk + ep + 1))] if ep + 1 < nep else []) + ['s_barrier']
            if self.o.get('fine') == 'd' and nsteps == 24: pre[20 * ep] += self.stamp_items(19 + ep - 1)
        for n in range(LA): e(read(n))
        stt = {}
        e.extend(schedule(anchors, 2, pre, fixed, [vs, valu], vm_gap=self.o.get('d_gap', 2), state=stt))
        if self.o.get('verbose'): print('bd forced', stt.get('forced'), 'left', len(vs.q), len(valu.q))
        e.extend([y[0] for y in vs.q]); e.extend([y[0] for y in valu.q])
    def bd_unpack(self):
        U = 112; L = []
        for d in range(10):
            L.append('v_lshlrev_b32 v%d, 16, v%d' % (U + 2 * d, XR + d))
            L.append('v_and_b32 v%d, 0xffff0000, v%d' % (U + 2 * d + 1, XR + d))
        return L
    def bd_epilogue(self, last_blk, final):
        e = self.e
        EX = 88
        for tau in range(5):
            a = ACC + (tau * 2 + 1) * 4
            e('ds_write_b128 v%d, v[%d:%d] offset:%d' % (vEXW, a, a + 3, tau * 1024))
        e.wait_lgkm0()
        e('s_barrier')
        for tau in range(5):
            e('ds_read_b128 v[%d:%d], v%d offset:%d' % (EX + 4 * tau, EX + 4 * tau + 3, vEXR, tau * 1024))
        U = 112
        for tau in range(5):
            a = ACC + (tau * 2) * 4
            for c in range(4):
                e('v_add_f32 v%d, v%d, v%d' % (U + 4 * tau + c, U + 4 * tau + c, a + c))
        for tau in range(5):
            for c in range(4):
                e('v_add_f32 v%d, v%d, v%d' % (U + 4 * tau + c, U + 4 * tau + c, EX + 4 * tau + c))
        for d in range(10): e('v_cvt_pk_bf16_f32 v%d, v%d, v%d' % (XR + d, U + 2 * d, U + 2 * d + 1))
        final()
    def bd_stats(self, base_off, next_layer):
        e = self.e
        S, Q = 136, 137
        e('v_mov_b32 v%d, 0\nv_mov_b32 v%d, 0' % (S, Q))
        for d in range(10):
            e('v_dot2c_f32_bf16 v%d, v%d, v%d' % (S, XR + d, vONES))
            e('v_dot2c_f32_bf16 v%d, v%d, v%d' % (Q, XR + d, XR + d))
        for sw in ('v_permlane16_swap_b32', 'v_permlane32_swap_b32'):
            e('v_mov_b32 v138, v%d\nv_mov_b32 v139, v%d' % (S, Q))
            e('%s v%d, v138\n%s v%d, v139' % (sw, S, sw, Q))
            e('v_add_f32 v%d, v%d, v138\nv_add_f32 v%d, v%d, v139' % (S, S, Q, Q))
        e('s_lshl_b32 s%d, s%d, 7\ns_lshl_b32 s%d, s%d, 14\ns_add_u32 s%d, s%d, s%d' % (sT2, sTTK, sT3, sCS, sT2, sT2, sT3))
        e('s_add_u32 s%d, s%d, s%d\ns_add_u32 s%d, s%d, 0x%x' % (sT2, sT2, sLOFF, sT2, sT2, base_off + (self.lstride if next_layer else 0)))
        if not self.o.get('nostats'): e('buffer_store_dwordx2 v[%d:%d], v%d, s[4:7], s%d offen sc1' % (S, Q, vST, sT2))
    def phase_b(self):
        e = self.e
        self.cnt(sT0, CNT_O, sRB)
        for (s, tt) in ((sB0, sTTK), (sB1, sTTS)):
            e('s_mul_i32 s%d, s%d, 20\ns_mul_i32 s%d, s%d, 10\ns_add_u32 s%d, s%d, s%d\ns_lshl_b32 s%d, s%d, 10' % (s, tt, sT1, sKH, s, s, sT1, s, s))
            e('s_add_u32 s%d, s%d, s%d\ns_add_u32 s%d, s%d, 0x%x' % (s, s, sLOFF, s, s, O))
        def tok(i, u):
            s = sB0 if u == 0 else sB1
            t = sC1 + u
            g = []
            if i % 4 == 0: g.append('s_add_u32 s%d, s%d, %d' % (t, s, i * 1024))
            g.append('buffer_load_dwordx4 a[%d:%d], v%d, s[4:7], s%d offen offset:%d%s' % ((2 * i + u) * 4, (2 * i + u) * 4 + 3, vL16, t, (i % 4) * 1024, self.sc))
            return g
        e.wait_tag('blk%d' % B0); e.wait_tag('blk%d' % (B0 + 1))
        self.poll(sT0)
        e('s_barrier')
        self.stamp(8)
        NPRE = self.o.get('b_npre', 10)
        for i in range(NPRE):
            for u in range(2): e.extend(tok(i, u))
        items = [(10 * i, 0, tok(i, 0) + tok(i, 1)) for i in range(NPRE, 10)]
        for k, b in enumerate(self.C_tail): items.append((5000 + b, 20 * (k + 1), self.flat(self.dma_ops(b))))
        vs = self.vm_stream(items)
        self.gemm_bd(B0, 10, vs, {}, Stream(self.bd_unpack(), 60))
        self.stamp(9)
        def final():
            e('s_mul_i32 s%d, s%d, 20480\ns_add_u32 s%d, s%d, s%d\ns_add_u32 s%d, s%d, 0x%x' % (sT0, sTTK, sT0, sT0, sLOFF, sT0, sT0, XC))
            e('buffer_store_dwordx4 v[%d:%d], v%d, s[4:7], s%d offen sc1' % (XR, XR + 3, vX0, sT0))
            e('buffer_store_dwordx4 v[%d:%d], v%d, s[4:7], s%d offen sc1' % (XR + 4, XR + 7, vX1, sT0))
            e('buffer_store_dwordx2 v[%d:%d], v%d, s[4:7], s%d offen sc1' % (XR + 8, XR + 9, vX2, sT0))
            self.bd_stats(SC, False)
            self.cnt(sT1, CNT_XC, sRB)
            self.signal(sT1, self.C_ack)
            self.stamp(10)
            if self.o.get('ampre', 1): self.am_c()
            self.side_dma(self.C_side)
        self.bd_epilogue(B0 + 4, final)
        return self.maybe_stop('b')
    def gelu_ops(self, accset, u, c0, c1, vVE, HP, t):
        L = []
        G = [accset + (p * 2 + u) * 4 + c for p in range(2) for c in range(4)]
        U = [accset + ((2 + p) * 2 + u) * 4 + c for p in range(2) for c in range(4)]
        g = [t + i for i in range(8)]; w = [t + 8 + i for i in range(8)]
        for h in range(2):
            R = range(4 * h, 4 * h + 4)
            for i in R: L.append('v_mul_f32 v%d, v%d, v%d' % (w[i], G[i], G[i]))
            for i in R: L.append('v_fma_f32 v%d, v%d, v%d, v%d' % (w[i], w[i], c1, c0))
            for i in R: L.append('v_mul_f32 v%d, v%d, v%d' % (w[i], w[i], G[i]))
            for i in R:
                L.append('v_exp_f32 v%d, v%d' % (w[i], w[i]))
                L.append('v_mul_f32 v%d, v%d, v%d' % (g[i], G[i], U[i]))
            for i in R: L.append('v_fma_f32 v%d, v%d, v%d, v%d' % (w[i], w[i], vVE, vVE))
            for i in R: L.append('v_rcp_f32 v%d, v%d' % (w[i], w[i]))
            for i in R: L.append('v_mul_f32 v%d, v%d, v%d' % (g[i], g[i], w[i]))
            for d in (2 * h, 2 * h + 1): L.append('v_cvt_pk_bf16_f32 v%d, v%d, v%d' % (HP + d, g[2 * d], g[2 * d + 1]))
        return L
    def check_flag(self, vreg, cnt_sgpr, target=16):
        sub = Asm()
        X = self.lab('ck'); L = self.lab('ckl')
        sub('v_cmp_gt_u32 vcc, %d, v%d' % (target, vreg))
        sub('s_cbranch_vccz %s' % X)
        sub('s_cmp_lg_u32 s%d, 0' % sDEAD); sub('s_cbranch_scc1 %s' % X)
        sub('s_mov_b32 s%d, 0' % sPC)
        sub.label(L)
        sub('buffer_load_dword v%d, v%d, s[4:7], s%d offen sc1' % (vreg, vZERO, cnt_sgpr), count=False)
        sub('s_waitcnt vmcnt(0)', count=False)
        sub('v_cmp_gt_u32 vcc, %d, v%d' % (target, vreg))
        sub('s_cbranch_vccz %s' % X)
        sub('s_add_u32 s%d, s%d, 1' % (sPC, sPC)); sub('s_cmp_lt_u32 s%d, %d' % (sPC, SPIN_LIMIT))
        sub('s_cbranch_scc1 %s' % L)
        sub('s_mov_b32 s%d, 1' % sDEAD)
        sub.label(X)
        return sub.items
    def phase_c(self):
        e = self.e; o = self.o
        ST, RS, VE, BMs, AM, GT, HP = 112, (120, 121), (122, 123), (124, 132), 136, 152, (168, 172)
        GC0, GC1 = (176, 177), (178, 179)
        k0 = -2.0 * 0.7978845608028654 * LOG2E
        self.cnt(sT0, CNT_XC, sRB)
        e('s_lshl_b32 s%d, s%d, 3\ns_lshl_b32 s%d, s%d, 1\ns_add_u32 s%d, s%d, s%d' % (sT2, sRB, sT1, sW, sT2, sT2, sT1))
        e('s_lshl_b32 s%d, s%d, 7\ns_add_u32 s%d, s%d, s%d\ns_add_u32 s%d, s%d, 0x%x' % (sT1, sT2, sT1, sT1, sLOFF, sT1, sT1, SC))
        e('s_mul_i32 s%d, s%d, 20480\ns_add_u32 s%d, s%d, s%d\ns_add_u32 s%d, s%d, 0x%x' % (sB0, sT2, sB0, sB0, sLOFF, sB0, sB0, XC))
        e('s_add_u32 s%d, s%d, 20480' % (sB1, sB0))
        e('s_mul_i32 s%d, s%d, 48\ns_add_u32 s%d, s%d, s%d\ns_lshl_b32 s%d, s%d, 10' % (sTW, sT2, sTW, sTW, sJ, sTW, sTW))
        e('s_add_u32 s%d, s%d, s%d\ns_add_u32 s%d, s%d, 0x%x' % (sTW, sTW, sLOFF, sTW, sTW, HH))
        if not o.get('ampre', 1): e('s_mul_i32 s%d, s%d, %d\ns_add_u32 s%d, s%d, 0x%x' % (sT4, sJ, 12 * KB, sT4, sT4, WCM))
        self.poll(sT0)
        e('s_barrier')
        self.stamp(11)
        def tok(s, u):
            sb = sB0 if u == 0 else sB1; t = sC1 + u
            g = []
            if s % 4 == 0: g.append('s_add_u32 s%d, s%d, %d' % (t, sb, s * 1024))
            g.append('buffer_load_dwordx4 a[%d:%d], v%d, s[4:7], s%d offen offset:%d%s' % ((2 * s + u) * 4, (2 * s + u) * 4 + 3, vL16, t, (s % 4) * 1024, self.sc))
            return g
        NPRE = o.get('c_npre', 8)
        if o.get('tt', 0): e.extend(self.touch_tok(XC))
        for s in range(NPRE):
            for u in range(2): e.extend(tok(s, u))
        stld = []
        for k in range(2):
            if k: stld.append('s_add_u32 s%d, s%d, 16384' % (sT1, sT1))
            for u in range(2):
                stld.append('buffer_load_dwordx2 v[%d:%d], v%d, s[4:7], s%d offen offset:%d sc1' % (ST + 4 * u + 2 * k, ST + 4 * u + 2 * k + 1, vSC, sT1, 128 * u))
        def amload(sg):
            pre = [] if sg == 0 else ['s_add_u32 s%d, s%d, 4096' % (sT4, sT4)]
            return pre + ['buffer_load_dwordx4 v[%d:%d], v%d, s[4:7], s%d offen offset:%d' % (AM + 4 * t, AM + 4 * t + 3, vL16, sT4, t * 1024) for t in range(4)]
        st = []
        for u in range(2):
            b = ST + 4 * u
            st += ['v_add_f32 v%d, v%d, v%d' % (b, b, b + 2), 'v_add_f32 v%d, v%d, v%d' % (b + 1, b + 1, b + 3)]
            for sw in ('v_permlane16_swap_b32', 'v_permlane32_swap_b32'):
                st += ['v_mov_b32 v%d, v%d' % (b + 2, b), 'v_mov_b32 v%d, v%d' % (b + 3, b + 1),
                       '%s v%d, v%d' % (sw, b, b + 2), '%s v%d, v%d' % (sw, b + 1, b + 3),
                       'v_add_f32 v%d, v%d, v%d' % (b, b, b + 2), 'v_add_f32 v%d, v%d, v%d' % (b + 1, b + 1, b + 3)]
            st += self.rowstat_finish(b, b + 1, RS[u], VE[u], BMs[u], b + 2)
            st += ['v_mul_f32 v%d, %s, v%d' % (GC0[u], f32bits(k0), RS[u]),
                   'v_mul_f32 v%d, v%d, v%d' % (GC1[u], RS[u], RS[u]),
                   'v_mul_f32 v%d, v%d, v%d' % (GC1[u], GC1[u], GC0[u]),
                   'v_mul_f32 v%d, %s, v%d' % (GC1[u], f32bits(0.044715), GC1[u])]
        LA = 5
        def read(n): return self.ring_read(AF + 4 * (n % 8), C0 + n // 20, (n % 20) * 1024)
        def mf(n, u):
            sg, r = n // 80, n % 80; s, tl = r // 4, r % 4
            acc = ACC + 32 * (sg & 1) + (tl * 2 + u) * 4; a = AF + 4 * (n % 8); b = (2 * s + u) * 4
            c = '0' if s == 0 else 'v[%d:%d]' % (acc, acc + 3)
            return 'v_mfma_f32_16x16x32_bf16 v[%d:%d], v[%d:%d], a[%d:%d], %s' % (acc, acc + 3, a, a + 3, b, b + 3, c)
        def mean(sg):
            L = []
            for tl in range(4):
                for u in range(2):
                    acc = ACC + 32 * (sg & 1) + (tl * 2 + u) * 4
                    L.append('v_mfma_f32_16x16x32_bf16 v[%d:%d], v[%d:%d], v[%d:%d], v[%d:%d]' % (acc, acc + 3, AM + 4 * tl, AM + 4 * tl + 3, BMs[u], BMs[u] + 3, acc, acc + 3))
            return L
        def gelu_store(sg):
            L = []
            for u in range(2):
                L += self.gelu_ops(ACC + 32 * (sg & 1), u, GC0[u], GC1[u], VE[u], HP[u], GT)
                L.append('s_add_u32 s%d, s%d, %d' % (sT5, sTW, u * 48 * 1024 + sg * 16 * 1024))
                L.append(('buffer_store_dwordx4 v[%d:%d], v%d, s[4:7], s%d offen sc1' % (HP[u], HP[u] + 3, vL16, sT5), 'h%d' % sg))
            return L
        def ix(n): return 2 * n + 8 * (n // 80)
        items = [(ix(4 * s), 0, tok(s, 0) + tok(s, 1)) for s in range(NPRE, 20)]
        for b in self.C_in:
            dl = ix(20 * (b - C0 - 1)) - (8 if (b - C0 - 1) % 4 == 0 and b > C0 + 1 else 0)
            items.append((dl, 0, self.flat(self.dma_ops(b)), dl - o.get('c_lead', 40)))
        r8 = o.get('ring8', 1)
        last_in = o.get('c_lastblk', D0 + 5 if r8 else D0 + 3)
        for b in range(C0 + 6, last_in + 1):
            free = 20 * (b - C0 - 5)
            if r8 and b >= D0: free = o.get('c_x0', 100) + 20 * (b - D0) if b < D0 + 2 else 20 * (b - 20)
            epn = b - C0 - 1
            dl = ix(20 * epn) - (8 if epn % 4 == 0 else 0) if b < D0 else 100000 + b
            early = ix(free) - (8 if free % 80 == 0 else 0)
            key = max(early, ix(76)) + (0 if b < D0 else 1)
            items.append((dl, early, self.flat(self.dma_ops(b)), key))
        if not o.get('ampre', 1): items.append((ix(60), 0, amload(0)))
        if o.get('tw', 0): items.append((ix(90), ix(84), self.touch_w('D')))
        items.append((ix(o.get('c_stdl', 44)), 0, stld))
        items.append((ix(150), ix(80), amload(1), ix(80)))
        items.append((ix(230), ix(160), amload(2), ix(160)))
        self.cnt(sT0, CNT_H, sRB, mul=384)
        FL, CKC = o.get('c_fl', 190), o.get('c_ck', 206)
        items.append((ix(CKC) - 1, ix(FL), ['buffer_load_dword v%d, v%d, s[4:7], s%d offen sc1' % (vPOLL, vZERO, sT0)], ix(FL)))
        dtoks = [self.d_tok(i, u) for i in range(8) for u in range(2)]
        for k, g in enumerate(dtoks): items.append((90000 + k, ix(CKC), g, ix(CKC) + 0.01 * k))
        vs = self.vm_stream(items)
        e.wait_tag('blk%d' % C0); e.wait_tag('blk%d' % (C0 + 1))
        e('s_barrier')
        for n in range(LA): e(read(n))
        pos = 0; cstate = {}
        for sg in range(3):
            anchors = []; pre = {}; fixed = {}
            if sg > 0: anchors += mean(sg - 1)
            for n in range(80 * sg, 80 * sg + 80):
                assert pos + len(anchors) == ix(n)
                anchors += [mf(n, 0), mf(n, 1)]
                if n + LA < 240: fixed[ix(n)] = [read(n + LA)]
                if n + 1 < 240: fixed[ix(n) + 1] = [Need('v[%d:%d]' % (AF + 4 * ((n + 1) % 8), AF + 4 * ((n + 1) % 8) + 3))]
            for ep in range(4 * sg, 4 * sg + 4):
                if ep == 0: continue
                at = ix(20 * ep) - (8 if ep % 4 == 0 else 0)
                p = [W_tag('blk%d' % (C0 + ep + 1))] if ep < 11 else []
                if ep == o.get('h0ep', 9): p.append(W_tag('h0'))
                p.append('s_barrier')
                if self.o.get('fine') == 'c': p += self.stamp_items(19 + ep - 1)
                if ep == o.get('h0ep', 9):
                    sub = Main(None, self.o); sub.nlab = self.nlab + 1000
                    sub.signal_only(sT0)
                    p += sub.e.items
                pre[at] = p
            if sg == 2:
                sub = Main(None, self.o); sub.nlab = self.nlab + 4000
                sub.d_bases()
                pre[ix(CKC)] = pre.get(ix(CKC), []) + [W_vreg(vPOLL)] + self.check_flag(vPOLL, sT0) + sub.e.items
            valu = Stream(st, ix(o.get('c_stv', 56))) if sg == 0 else Stream(gelu_store(sg - 1), pos + 10)
            e.extend(schedule(anchors, 2, pre, fixed, [vs, valu], start=pos, vm_gap=(o.get('c_gap', 4) if sg == 0 else o.get('c_gap2', 4)), state=cstate))
            e.extend([y[0] for y in valu.q])
            pos += len(anchors)
        if self.o.get('verbose'): print('c forced', cstate.get('forced'), 'left', len(vs.q))
        self.stamp(12)
        tail = mean(2) + gelu_store(2)
        left = [y[0] for y in vs.q]; del vs.q[:]
        nvm = max(1, sum(1 for x in left if is_vm(x)))
        step = max(1, (len(tail) - 8) // (nvm + 1))
        for n, x in enumerate(tail):
            if left and n % step == 0:
                while left:
                    y = left.pop(0); e.extend([y])
                    if is_vm(y): break
            e.extend([x])
        e.extend(left)
        self.cnt(sT1, CNT_H, sRB, mul=384, add=256)
        self.signal(sT1)
        self.stamp(13)
        self.c_last = last_in
        return self.maybe_stop('c')
    def d_bases(self):
        e = self.e
        for (s, tt) in ((sB0, sTTK), (sB1, sTTS)):
            e('s_mul_i32 s%d, s%d, 48\ns_add_u32 s%d, s%d, s%d\ns_lshl_b32 s%d, s%d, 10' % (s, tt, s, s, sKH, s, s))
            e('s_add_u32 s%d, s%d, s%d\ns_add_u32 s%d, s%d, 0x%x' % (s, s, sLOFF, s, s, HH))
    def d_tok(self, i, u):
        sg, jj = i // 8, i % 8
        s = sB0 if u == 0 else sB1; t = sC1 + u
        g = []
        if jj % 2 == 0: g.append('s_add_u32 s%d, s%d, %d' % (t, s, sg * 16384 + jj * 2048))
        r = self.d_reg(i, u)
        g.append('buffer_load_dwordx4 a[%d:%d], v%d, s[4:7], s%d offen offset:%d%s' % (r, r + 3, vL16, t, (jj % 2) * 2048, self.sc))
        return g
    def d_reg(self, i, u):
        return 160 + (2 * i + u) * 4 if i < 8 else (2 * (i - 8) + u) * 4
    def phase_d(self):
        e = self.e; o = self.o
        tok = self.d_tok
        self.stamp(14)
        CK = o.get('d_ck', 3)
        items = []
        r8 = o.get('ring8', 1); nfree = 8 if r8 else 6
        assert not (r8 and self.A_tail)
        for b in range(self.c_last + 1, D0 + nfree): items.append((20 * (b - D0 - 1), 0, self.flat(self.dma_ops(b)), b - 200))
        for b in range(D0 + nfree, NBLK):
            early = 20 * (b - D0 - nfree + 1)
            key = (b - 200) if early < 20 * CK else 20 * (b - D0 - 1)
            items.append((20 * (b - D0 - 1), early, self.flat(self.dma_ops(b)), key))
        items.append((20 * CK - 1, 20 * CK - o.get('d_fl', 30), ['buffer_load_dword v%d, v%d, s[4:7], s%d offen sc1' % (vPOLL, vZERO, sT1)], -1))
        items += [(10 * i, 20 * CK, tok(i, 0) + tok(i, 1)) for i in range(8, 24)]
        if o.get('tw', 0): items.append((30, 0, self.touch_w('A'), -500))
        for b in self.A_tail: items.append((5000 + b, 20 * (6 + b), self.flat(self.dma_ops(b))))
        chk = [W_vreg(vPOLL)] + self.check_flag(vPOLL, sT1)
        self.gemm_bd(D0, 24, self.vm_stream(items), {CK: chk}, Stream(self.bd_unpack(), 200), self.d_reg)
        self.stamp(17)
        def final():
            L = self.lab('d_last'); X = self.lab('d_done')
            e('s_cmp_lg_u32 s%d, 0' % sL); e('s_cbranch_scc1 %s' % L)
            e('s_lshr_b32 s%d, s%d, 1\ns_mul_i32 s%d, s%d, 40960\ns_add_u32 s%d, s%d, s%d\ns_add_u32 s%d, s%d, 0x%x' % (sT0, sTTK, sT0, sT0, sT0, sT0, sLOFF, sT0, sT0, XA + self.lstride))
            e('buffer_store_dwordx4 v[%d:%d], v%d, s[4:7], s%d offen sc1' % (XR, XR + 3, vY0, sT0))
            e('buffer_store_dwordx4 v[%d:%d], v%d, s[4:7], s%d offen sc1' % (XR + 4, XR + 7, vY1, sT0))
            e('buffer_store_dwordx2 v[%d:%d], v%d, s[4:7], s%d offen sc1' % (XR + 8, XR + 9, vY2, sT0))
            self.bd_stats(SA, True)
            self.cnt(sT1, CNT_XA, sRB, next_layer=True)
            self.signal(sT1, self.A_ack)
            self.stamp(18)
            if self.o.get('ampre_a', 0): self.am_a()
            self.side_dma(self.A_side)
            e('s_branch %s' % X)
            e.label(L)
            e('s_mul_i32 s%d, s%d, 20480\ns_mul_i32 s%d, s%d, 160\ns_add_u32 s%d, s%d, s%d' % (sT0, sTTK, sT1, sCS, sT0, sT0, sT1))
            e('buffer_store_dwordx4 v[%d:%d], v%d, s[12:15], s%d offen' % (XR, XR + 3, vR0, sT0))
            e('buffer_store_dwordx4 v[%d:%d], v%d, s[12:15], s%d offen offset:64' % (XR + 4, XR + 7, vR0, sT0))
            e('buffer_store_dwordx2 v[%d:%d], v%d, s[12:15], s%d offen' % (XR + 8, XR + 9, vR2, sT0))
            self.stamp(18)
            self.stamp_flush()
            e('s_endpgm')
            e.label(X)
        self.bd_epilogue(D0 + 11, final)
        return self.maybe_stop('d')
    def build(self):
        e = self.e
        self.prologue()
        e.label('M_LAYER')
        done = self.phase_a() or self.phase_b() or self.phase_c() or self.phase_d()
        if not done:
            e('s_add_u32 s%d, s%d, 1\ns_add_u32 s%d, s%d, 0x%x\ns_add_u32 s%d, s%d, 0x%x' % (sL, sL, sLOFF, sLOFF, self.lstride, sCNT, sCNT, CSTRIDE))
            e('s_branch M_LAYER')
        e.label('M_END')
        e('s_endpgm')
        e.label('M_CODE_END')
        return e
```

```python
from asmlib import *
from layout import *

NAME = 'hedgehog_main_kernel'
KNAME = 'interleave_layers__linear_kernel_hedgehog__geglu_ffn__prompt_kernel'
BLK = 20480
SCR = 6 * BLK
LDS_TOTAL = 163840
SPIN_LIMIT = 40000
LOG2E = 1.4426950408889634
TSOFF = 0x4000000

sW, sRB, sJ, sL, sLOFF, sW5K, sWA, sWB, sWC, sWD = range(16, 26)
sT0, sT1, sT2, sT3, sT4, sT5 = range(26, 32)
sDEAD, sPC, sPV, sCS, sTH, sTTK, sTTS, sKH = range(40, 48)
sDM = 48
sTW = 49
sB0, sB1 = 50, 51
sC1, sC2, sC3, sC4 = 52, 53, 54, 55
sEX, sEXD = 56, 57
sCNT = 3
sTA, sTB = 58, 59
vL16, vLANE, vONES, vZERO, vONE, vPOLL = 1, 2, 3, 4, 5, 6
vL16B, vK0, vK1 = 7, 8, 9
vT0, vT1, vT2, vT3, vT4 = 10, 11, 12, 13, 14
vEXR = 15
AF, ACC = 16, 48
vSA, vTW, vKA, vKB, vPS1, vPS2, vPL, vAW, vO0, vO1, vO2, vX0, vX1, vX2, vY0, vY1 = range(224, 240)
XR = 240
vY2, vR0, vR2, vST, vSC, vEXW = range(250, 256)
vAW2 = 221
vK2 = 218
vL128, vTCH = 220, 219

A0, B0, C0, D0, NBLK = 0, 8, 13, 25, 37
NSIDE_A, NSIDE_C = 4, 4

def f32bits(x):
    import struct
    return '0x%08x' % struct.unpack('<I', struct.pack('<f', x))[0]

def W_vreg(r):
    return 'v_mov_b32 v%d, v%d' % (r, r)

class Main:
    def __init__(self, stop=None, opts=None):
        self.e = Asm(); self.stop = stop; self.o = opts or {}
        self.sc = '' if self.o.get('nosc1') else ' sc1'
        self.nlab = 0
        self.lstride = 0 if self.o.get('reuse') else LSTRIDE
        self.name = KNAME if self.o.get('merged', 0) else NAME
        global NSIDE_A, NSIDE_C
        NSIDE_A = self.o.get('nsa', 2); NSIDE_C = self.o.get('nsc', 2)
        dt = self.o.get('d_tail', 0); bt = self.o.get('b_tail', 0)
        self.A_tail = list(range(1, 1 + dt))
        rest = [0] + list(range(1 + dt, 6))
        na = self.o.get('a_ack', 2)
        self.A_ack, rest = rest[:na], rest[na:]
        self.A_side, self.A_in = rest[:NSIDE_A], rest[NSIDE_A:]
        self.C_tail = list(range(C0 + 1, C0 + 1 + bt))
        rest = list(range(C0 + 1 + bt, C0 + 6))
        nc = self.o.get('c_ack', 2)
        self.C_ack, rest = rest[:nc], rest[nc:]
        self.C_side, self.C_in = rest[:NSIDE_C], rest[NSIDE_C:]
    def lab(self, p):
        self.nlab += 1
        return 'M_%s_%d' % (p, self.nlab)
    def slot_of(self, b):
        if b >= D0 and self.o.get('ring8', 1):
            return {25: 6, 26: 7, 27: 1, 28: 2, 29: 3, 30: 4, 31: 5, 32: 0, 33: 6, 34: 7, 35: 1, 36: 2}[b]
        return b % 6
    def blk_src(self, b):
        if b < B0: return sWA, (b - A0) * BLK
        if b < C0: return sWB, (b - B0) * BLK
        if b < D0: return sWC, (b - C0) * BLK
        return sWD, (b - D0) * BLK
    def dma_ops(self, b, tag=None):
        nb = b % NBLK if b >= NBLK else b
        base, off = self.blk_src(nb)
        slot = self.slot_of(nb)
        tag = tag or 'blk%d' % nb
        g = []
        first = ['s_add_u32 m0, s%d, %d' % (sW5K, slot * BLK), 's_add_u32 s%d, s%d, %d' % (sDM, base, off),
                 ('buffer_load_dwordx4 v%d, s[4:7], s%d offen lds' % (vL16, sDM), tag)]
        g.append(first)
        for k in range(1, 4):
            g.append([('buffer_load_dwordx4 v%d, s[4:7], s%d offen offset:%d lds' % (vL16, sDM, k * 1024), tag)])
        g.append(['s_add_u32 m0, s%d, %d' % (sW5K, slot * BLK + 4096), 's_add_u32 s%d, s%d, %d' % (sDM, base, off + 4096),
                  ('buffer_load_dwordx4 v%d, s[4:7], s%d offen lds' % (vL16, sDM), tag)])
        return g
    def am_a(self):
        AM = 128; e = self.e
        e('s_lshl_b32 s%d, s%d, 12\ns_add_u32 s%d, s%d, 0x%x' % (sT2, sJ, sT2, sT2, WAM))
        for t in range(4): e('buffer_load_dwordx4 v[%d:%d], v%d, s[4:7], s%d offen offset:%d' % (AM + 4 * t, AM + 4 * t + 3, vL16, sT2, t * 1024))
    def am_c(self):
        AM = 136; e = self.e
        e('s_mul_i32 s%d, s%d, %d\ns_add_u32 s%d, s%d, 0x%x' % (sT4, sJ, 12 * KB, sT4, sT4, WCM))
        for t in range(4): e('buffer_load_dwordx4 v[%d:%d], v%d, s[4:7], s%d offen offset:%d' % (AM + 4 * t, AM + 4 * t + 3, vL16, sT4, t * 1024))
    def side_dma(self, blocks):
        e = self.e
        L = self.lab('side')
        e('s_cmp_eq_u32 s%d, 0' % sW); e('s_cbranch_scc1 %s' % L)
        for b in blocks:
            base, off = self.blk_src(b); slot = self.slot_of(b); tag = 'blk%d' % b
            ld = 'buffer_load_dwordx4 v%d, s[4:7], s%d offen%%s lds' % (vL16, sDM)
            e('s_add_u32 m0, s%d, %d' % (sW5K, slot * BLK)); e('s_add_u32 s%d, s%d, %d' % (sDM, base, off))
            for k in range(4): e.side(ld % (' offset:%d' % (k * 1024) if k else ''), tag)
            e('s_add_u32 m0, s%d, %d' % (sW5K, slot * BLK + 4096)); e('s_add_u32 s%d, s%d, %d' % (sDM, base, off + 4096))
            e.side(ld % '', tag)
            e('s_add_u32 m0, s%d, %d' % (sEX, slot * BLK)); e('s_add_u32 s%d, s%d, %d' % (sDM, base, off))
            e('s_add_u32 s%d, s%d, s%d' % (sDM, sDM, sEXD))
            e.side(ld % '', tag); e.side(ld % ' offset:1024', tag)
        e.label(L)
    def dma_items(self, b, earliest):
        out = []
        for g in self.dma_ops(b):
            for x in g: out.append((x, earliest))
        return out
    def touch(self, base_expr, nlines_wave, ninstr=1, sc=''):
        L = list(base_expr)
        L.append('s_mul_i32 s%d, s%d, %d' % (sTB, sW, nlines_wave * ninstr * 128))
        L.append('s_add_u32 s%d, s%d, s%d' % (sTA, sTA, sTB))
        if nlines_wave < 64:
            L.append('v_mov_b32 v%d, 0x%x' % (vT0, OOB))
            L.append('v_cmp_gt_u32 vcc, %d, v%d' % (nlines_wave, vLANE))
            L.append('v_cndmask_b32 v%d, v%d, v%d, vcc' % (vT0, vT0, vL128))
            va = vT0
        else: va = vL128
        for k in range(ninstr):
            if k: L.append('s_add_u32 s%d, s%d, %d' % (sTA, sTA, nlines_wave * 128))
            I = parse('buffer_load_dword v%d, v%d, s[4:7], s%d offen%s' % (vTCH, va, sTA, sc)); I.wr = set()
            L.append(I)
        return L
    def touch_w(self, which):
        if which == 'A':
            pre = ['s_lshr_b32 s%d, s%d, 2' % (sTA, sRB), 's_mul_i32 s%d, s%d, %d' % (sTA, sTA, 40 * KB), 's_add_u32 s%d, s%d, s%d' % (sTA, sTA, sWA), 's_sub_u32 s%d, s%d, s%d' % (sTA, sTA, sW5K)]
            return self.touch(pre, 40, 2)
        if which == 'C':
            pre = ['s_lshr_b32 s%d, s%d, 2' % (sTA, sRB), 's_mul_i32 s%d, s%d, %d' % (sTA, sTA, 60 * KB), 's_add_u32 s%d, s%d, s%d' % (sTA, sTA, sWC), 's_sub_u32 s%d, s%d, s%d' % (sTA, sTA, sW5K)]
            return self.touch(pre, 60, 2)
        idx = ['s_lshr_b32 s%d, s%d, 2' % (sTA, sRB), 's_lshl_b32 s%d, s%d, 1' % (sTA, sTA), 's_add_u32 s%d, s%d, s%d' % (sTA, sTA, sTH)]
        if which == 'B':
            return self.touch(idx + ['s_mul_i32 s%d, s%d, 12800' % (sTA, sTA), 's_add_u32 s%d, s%d, s%d' % (sTA, sTA, sWB), 's_sub_u32 s%d, s%d, s%d' % (sTA, sTA, sW5K)], 25, 1)
        if which == 'D':
            return self.touch(idx + ['s_mul_i32 s%d, s%d, 30720' % (sTA, sTA), 's_add_u32 s%d, s%d, s%d' % (sTA, sTA, sWD), 's_sub_u32 s%d, s%d, s%d' % (sTA, sTA, sW5K)], 60, 1)
    def touch_tok(self, base_off):
        pre = ['s_mul_i32 s%d, s%d, %d' % (sTA, sRB, 160 * KB), 's_lshr_b32 s%d, s%d, 1' % (sTB, sJ), 's_mul_i32 s%d, s%d, %d' % (sTB, sTB, 20 * KB),
               's_add_u32 s%d, s%d, s%d' % (sTA, sTA, sTB), 's_add_u32 s%d, s%d, s%d' % (sTA, sTA, sLOFF), 's_add_u32 s%d, s%d, 0x%x' % (sTA, sTA, base_off)]
        return self.touch(pre, 40, 1, ' sc1')
    def freed_by(self, c):
        if c <= NBLK - 7: return c + 6
        if c < NBLK - 1: return NBLK + (c - (NBLK - 7))
        return NBLK + 0
    def ring_read(self, dst, blk, off, kh=False):
        slot = self.slot_of(blk)
        base = (vK0 if kh else vL16) if slot < 3 else ((vK1 if kh else vL16B) if slot < 6 else vK2)
        assert slot < 6 or kh
        return 'ds_read_b128 v[%d:%d], v%d offset:%d' % (dst, dst + 3, base, (slot % 3) * BLK + off)
    def emit_next_layer_dma(self, b):
        e = self.e
        L = self.lab('nl')
        e('s_cmp_lg_u32 s%d, 0' % sL); e('s_cbranch_scc1 %s' % L)
        for g in self.dma_ops(b):
            for x in g:
                if isinstance(x, tuple): e(x[0], count=False)
                else: e(x)
        e.label(L)
    def signal(self, cnt_off_sgpr, ack=()):
        e = self.e
        if ack:
            e.vm_marker('pub')
            for b in ack:
                for g in self.dma_ops(b): e.extend(g)
            e.wait_tag('pub'); e.wait_lgkm0()
        else:
            e.wait_all()
        e('s_barrier')
        self.signal_only(cnt_off_sgpr)
    def signal_only(self, cnt_off_sgpr):
        e = self.e
        L = self.lab('sig')
        e('s_cmp_lg_u32 s%d, 0' % sW); e('s_cbranch_scc1 %s' % L)
        e('s_mov_b64 exec, 1')
        e('buffer_atomic_add v%d, v%d, s[4:7], s%d offen sc1' % (vONE, vZERO, cnt_off_sgpr), count=False)
        e('s_mov_b64 exec, -1')
        e.label(L)
    def poll(self, cnt_off_sgpr, n=1, target=16, srd=4, stride=128):
        e = self.e
        L = self.lab('poll'); X = self.lab('got')
        e('s_cmp_lg_u32 s%d, 0' % sW); e('s_cbranch_scc1 %s' % X)
        e('s_cmp_lg_u32 s%d, 0' % sDEAD); e('s_cbranch_scc1 %s' % X)
        e('s_mov_b32 s%d, 0' % sPC)
        if n > 1:
            e('v_min_u32 v%d, %d, v%d' % (vT0, n - 1, vLANE)); e('v_mul_u32_u24 v%d, %d, v%d' % (vT0, stride, vT0))
        e.label(L)
        e('buffer_load_dword v%d, v%d, s[%d:%d], s%d offen sc1' % (vPOLL, vT0 if n > 1 else vZERO, srd, srd + 3, cnt_off_sgpr), count=False)
        e('s_waitcnt vmcnt(0)', count=False)
        e('v_cmp_gt_u32 vcc, %d, v%d' % (target, vPOLL))
        e('s_cbranch_vccz %s' % X)
        if self.o.get('psleep'): e('s_sleep %d' % self.o['psleep'])
        e('s_add_u32 s%d, s%d, 1' % (sPC, sPC)); e('s_cmp_lt_u32 s%d, %d' % (sPC, SPIN_LIMIT))
        e('s_cbranch_scc1 %s' % L)
        e('s_mov_b32 s%d, 1' % sDEAD)
        e.label(X)
    def cnt(self, dst, which, idx_sgpr, mul=128, add=0, next_layer=False):
        e = self.e
        e('s_mul_i32 s%d, s%d, %d' % (dst, idx_sgpr, mul))
        e('s_add_u32 s%d, s%d, s%d' % (dst, dst, sCNT))
        e('s_add_u32 s%d, s%d, 0x%x' % (dst, dst, which + add + (CSTRIDE if next_layer else 0)))
    def prologue(self):
        if self.o.get('merged', 0): return self.prologue_merged()
        e = self.e
        e.directive('.text\n.globl %s\n.p2align 8\n.type %s,@function' % (self.name, self.name))
        e.label(self.name)
        e('s_cmp_ge_u32 s2, 256'); e('s_cbranch_scc1 M_END')
        e('s_load_dwordx2 s[32:33], s[0:1], 0')
        e('s_load_dwordx2 s[34:35], s[0:1], 64')
        e('s_load_dwordx2 s[36:37], s[0:1], 80')
        self.entry_stamp()
        self.pro_scalars(); self.pro_lanes()
        e('s_waitcnt lgkmcnt(0)')
        self.mk_srd(4, 36, WS_BYTES)
        self.pro_tail(32, 34)
    def prologue_merged(self):
        import gen_prep as P
        e = self.e
        e.directive('.text\n.globl %s\n.p2align 8\n.type %s,@function' % (self.name, self.name))
        e.label(self.name)
        e('s_cmp_ge_u32 s2, 256'); e('s_cbranch_scc1 M_END')
        e('s_load_dwordx8 s[64:71], s[0:1], 0')
        e('s_load_dwordx4 s[72:75], s[0:1], 40')
        e('s_load_dwordx2 s[76:77], s[0:1], 56')
        e('s_load_dwordx2 s[78:79], s[0:1], 64')
        e('s_load_dwordx4 s[80:83], s[0:1], 72')
        self.entry_stamp()
        self.pro_scalars()
        e('s_waitcnt lgkmcnt(0)')
        self.mk_srd(4, 82, WS_BYTES)
        e('s_add_u32 s0, s2, 352\ns_sub_u32 s26, s2, 64\ns_cmp_ge_u32 s2, 160\ns_cselect_b32 s0, s26, s0\ns_cmp_lt_u32 s2, 96\ns_cselect_b32 s0, s2, s0')
        e('s_add_u32 s1, s2, 192')
        Lz = self.lab('nz')
        e('s_cmp_ge_u32 s2, 16'); e('s_cbranch_scc1 %s' % Lz)
        e('s_cmp_lg_u32 s%d, 0' % sW); e('s_cbranch_scc1 %s' % Lz)
        for k in range(4): e('v_mov_b32 v%d, 0' % (120 + k))
        e('s_lshl_b32 s26, s2, 11')
        e('buffer_store_dwordx4 v[120:123], v%d, s[4:7], s26 offen sc1' % vL16, count=False)
        e('buffer_store_dwordx4 v[120:123], v%d, s[4:7], s26 offen offset:1024 sc1' % vL16, count=False)
        e.label(Lz)
        r1 = P.Ren(e, 1, 0); r2 = P.Ren(e, 2, 1)
        L1, L2 = 0, 32768
        def dispatch(cases, sreg, tagp):
            end = self.lab(tagp)
            labs = [self.lab(tagp) for _ in cases]
            for (ub, _), lb in list(zip(cases, labs))[:-1]:
                e('s_cmp_lt_u32 s%d, %d' % (sreg, ub)); e('s_cbranch_scc1 %s' % lb)
            e('s_branch %s' % labs[-1])
            for (ub, fn), lb in zip(cases, labs):
                e.label(lb); e.reset_state(); fn()
                e.wait_lgkm0()
                e('s_branch %s' % end)
            e.label(end); e.reset_state()
        dispatch([(96, lambda: P.wa_issue(r1)), (288, lambda: P.wc_issue(r1, L1)), (None, lambda: P.x_issue(r1))], 0, 'i1')
        dispatch([(288, lambda: P.wc_issue(r2, L2)), (416, lambda: P.wd_issue(r2, L2)), (None, lambda: P.wb_issue(r2, L2))], 1, 'i2')
        if self.o.get('codepf', 1):
            Lp = self.lab('npf')
            e('s_cmp_ge_u32 s2, 64'); e('s_cbranch_scc1 %s' % Lp)
            e('s_getpc_b64 s[84:85]')
            e.label('M_PC')
            e('s_add_u32 s84, s84, (M_LAYER-M_PC)\ns_addc_u32 s85, s85, 0')
            e('v_lshlrev_b32 v124, 7, v0\nv_mov_b32 v125, (M_CODE_END-M_LAYER-4)\nv_add_u32 v126, 0x8000, v124')
            e('v_min_u32 v124, v124, v125\nv_min_u32 v126, v126, v125\nv_and_b32 v124, -4, v124\nv_and_b32 v126, -4, v126')
            e('global_load_dword v127, v124, s[84:85]', count=False)
            e('global_load_dword v127, v126, s[84:85]', count=False)
            e.label(Lp)
        self.mk_srd(84, 80, 256)
        Lf = self.lab('nf'); Lv = self.lab('nfv'); Lw = self.lab('nfw')
        e('s_cmp_ge_u32 s2, 16'); e('s_cbranch_scc1 %s' % Lf)
        e('s_cmp_lg_u32 s%d, 0' % sW); e('s_cbranch_scc1 %s' % Lf)
        npf = 2 if self.o.get('codepf', 1) else 0
        e('s_cmp_eq_u32 s31, 1'); e('s_cbranch_scc1 %s' % Lv)
        e('s_waitcnt vmcnt(%d)' % (22 + 5 + npf), count=False); e('s_branch %s' % Lw)
        e.label(Lv)
        e('s_waitcnt vmcnt(%d)' % (10 + 5 + npf), count=False)
        e.label(Lw)
        e('s_lshl_b32 s62, s2, 2\ns_mov_b64 exec, 1')
        e('buffer_store_dword v%d, v%d, s[84:87], s62 offen sc1' % (vONE, vZERO), count=False)
        e('s_mov_b64 exec, -1')
        self.stamp(27)
        e.label(Lf)
        e('s_waitcnt vmcnt(4)', count=False)
        self.stamp(19)
        dispatch([(96, lambda: P.wa_process(r1)), (288, lambda: P.wc_process(r1, L1)), (None, lambda: P.x_process(r1))], 0, 'p1')
        self.stamp(20)
        Lq = self.lab('zq')
        e('s_cmp_lg_u32 s%d, 0' % sW); e('s_cbranch_scc1 %s' % Lq)
        e('v_min_u32 v126, 15, v%d\nv_lshlrev_b32 v126, 2, v126' % vLANE)
        e('buffer_load_dword v%d, v126, s[84:87], 0 offen sc1' % vPOLL, count=False)
        e.label(Lq)
        e('s_waitcnt vmcnt(0) lgkmcnt(0)', count=False)
        e('s_barrier')
        self.stamp(26)
        def arrive(off, below=None):
            La = self.lab('arr')
            e('s_cmp_lg_u32 s%d, 0' % sW); e('s_cbranch_scc1 %s' % La)
            if below is not None:
                e('s_cmp_ge_u32 s2, %d' % below); e('s_cbranch_scc1 %s' % La)
            e('s_and_b32 s62, s2, 15\ns_lshl_b32 s62, s62, 7\ns_add_u32 s62, s62, 0x%x\ns_mov_b64 exec, 1' % off)
            e('buffer_atomic_add v%d, v%d, s[4:7], s62 offen sc1' % (vONE, vZERO), count=False)
            e('s_mov_b64 exec, -1')
            e.label(La)
        Lc = self.lab('zc'); Ls = self.lab('zcs')
        e('s_cmp_lg_u32 s%d, 0' % sW); e('s_cbranch_scc1 %s' % Lc)
        e('s_mov_b32 s%d, 0' % sPC)
        e.label(Ls)
        e('v_cmp_gt_u32 vcc, 1, v%d' % vPOLL)
        e('s_cbranch_vccz %s' % Lc)
        if self.o.get('zsleep'): e('s_sleep %d' % self.o['zsleep'])
        e('buffer_load_dword v%d, v126, s[84:87], 0 offen sc1' % vPOLL, count=False)
        e('s_waitcnt vmcnt(0)', count=False)
        e('s_add_u32 s%d, s%d, 1' % (sPC, sPC)); e('s_cmp_lt_u32 s%d, %d' % (sPC, SPIN_LIMIT)); e('s_cbranch_scc1 %s' % Ls)
        e('s_mov_b32 s%d, 1' % sDEAD)
        e.label(Lc)
        arrive(CNT_CRIT, 160)
        self.stamp(21)
        dispatch([(288, lambda: P.wc_process(r2, L2)), (416, lambda: P.wd_process(r2, L2)), (None, lambda: P.wb_process(r2, L2))], 1, 'p2')
        self.stamp(22)
        e('s_waitcnt vmcnt(0) lgkmcnt(0)', count=False)
        e('s_barrier')
        arrive(CNT_REST)
        self.stamp(25)
        self.pro_lanes()
        e('s_mov_b32 s%d, 0x%x' % (sT0, CNT_CRIT))
        self.stamp(23)
        self.poll(sT0, n=16, target=10)
        e('s_barrier')
        self.stamp(24)
        self.pro_tail(64, 78)
    def entry_stamp(self):
        if self.o.get('stamps'):
            self.e(('s_memtime' if self.o.get('cyc') else 's_memrealtime') + ' s[60:61]\ns_waitcnt lgkmcnt(0)\nv_mov_b32 v223, s60')
    def mk_srd(self, d, lo, n):
        self.e('s_mov_b32 s%d, s%d\ns_mov_b32 s%d, s%d\ns_mov_b32 s%d, 0x%x\ns_mov_b32 s%d, 0x20000' % (d, lo, d + 1, lo + 1, d + 2, n, d + 3))
    def pro_scalars(self):
        e = self.e
        e('v_lshrrev_b32 v10, 6, v0'); e('v_and_b32 v%d, 63, v0' % vLANE)
        e('v_readfirstlane_b32 s%d, v10' % sW)
        e('v_lshlrev_b32 v%d, 4, v%d' % (vL16, vLANE))
        mp = self.o.get('map', 0)
        if mp == 0:
            e('s_and_b32 s%d, s2, 3\ns_lshr_b32 s26, s2, 6\ns_lshl_b32 s26, s26, 2\ns_or_b32 s%d, s%d, s26' % (sRB, sRB, sRB))
            e('s_lshr_b32 s%d, s2, 2\ns_and_b32 s%d, s%d, 15' % (sJ, sJ, sJ))
        elif mp == 1:
            e('s_and_b32 s%d, s2, 15\ns_lshr_b32 s%d, s2, 4' % (sRB, sJ))
        elif mp == 2:
            e('s_and_b32 s%d, s2, 1\ns_lshr_b32 s26, s2, 5\ns_lshl_b32 s26, s26, 1\ns_or_b32 s%d, s%d, s26' % (sRB, sRB, sRB))
            e('s_lshr_b32 s%d, s2, 1\ns_and_b32 s%d, s%d, 15' % (sJ, sJ, sJ))
        e('s_and_b32 s%d, s%d, 7\ns_lshr_b32 s%d, s%d, 3' % (sCS, sJ, sTH, sJ))
        e('s_mul_i32 s%d, s%d, 5120' % (sW5K, sW))
        e('s_lshr_b32 s%d, s%d, 1' % (sKH, sW))
        for (s, idx, stride, base) in ((sWA, sJ, 160 * KB, WA), (sWB, sCS, 100 * KB, WB), (sWC, sJ, 240 * KB, WC), (sWD, sCS, 240 * KB, WD)):
            if self.o.get('wsame'): stride = 0
            e('s_mul_i32 s%d, s%d, %d\ns_add_u32 s%d, s%d, s%d\ns_add_u32 s%d, s%d, 0x%x' % (s, idx, stride, s, s, sW5K, s, s, base))
        e('s_lshl_b32 s%d, s%d, 3\ns_lshl_b32 s26, s%d, 2\ns_add_u32 s%d, s%d, s26' % (sTTK, sRB, sTH, sTTK, sTTK))
        e('s_and_b32 s26, s%d, 1\ns_lshl_b32 s26, s26, 1\ns_add_u32 s%d, s%d, s26\ns_add_u32 s%d, s%d, s%d' % (sW, sTTK, sTTK, sTTK, sTTK, sKH))
        e('s_xor_b32 s%d, s%d, 1' % (sTTS, sTTK))
        e('s_mov_b32 s%d, 0\ns_mov_b32 s%d, 0\ns_mov_b32 s%d, 0x%x' % (sDEAD, sL, sLOFF, LBASE))
        e('s_mov_b32 s%d, 0x%x' % (sCNT, CNT0))
        e('s_sub_u32 s%d, s%d, 1\ns_lshl_b32 s%d, s%d, 11\ns_sub_u32 s%d, s%d, s%d' % (sEX, sW, sEX, sEX, sEXD, sEX, sW5K))
        e('v_mov_b32 v%d, 0x3f803f80\nv_mov_b32 v%d, 0\nv_mov_b32 v%d, 1' % (vONES, vZERO, vONE))
    def pro_lanes(self):
        e = self.e
        e('v_add_u32 v%d, %d, v%d' % (vL16B, 3 * BLK, vL16))
        e('v_lshlrev_b32 v%d, 7, v%d' % (vL128, vLANE))
        e('s_mul_i32 s26, s%d, 5120\nv_add_u32 v%d, s26, v%d\nv_add_u32 v%d, %d, v%d' % (sKH, vK0, vL16, vK1, 3 * BLK, vK0))
        e('v_add_u32 v%d, %d, v%d' % (vK2, 6 * BLK, vK0))
        t32, hi, t16, q = 100, 101, 102, 103
        e('v_and_b32 v%d, 31, v%d\nv_lshrrev_b32 v%d, 5, v%d' % (t32, vLANE, hi, vLANE))
        e('v_and_b32 v%d, 15, v%d\nv_lshrrev_b32 v%d, 4, v%d' % (t16, vLANE, q, vLANE))
        e('v_mov_b32 v104, 0x%x' % OOB)
        e('v_lshlrev_b32 v%d, 3, v%d\nv_lshl_add_u32 v%d, v%d, 16, v%d' % (vSA, t32, vSA, hi, vSA))
        e('s_lshl_b32 s26, s%d, 5\nv_add_u32 v105, s26, v%d\nv_mul_u32_u24 v105, 144, v105' % (sW, t32))
        e('v_mul_u32_u24 v106, 18432, v%d\nv_add_u32 v105, v105, v106\nv_add_u32 v%d, 0x%x, v105' % (hi, vTW, SCR))
        e('v_lshrrev_b32 v105, 1, v%d\nv_bfe_u32 v106, v%d, 2, 2\nv_lshl_add_u32 v105, v105, 3, v106\nv_mul_u32_u24 v105, 144, v105' % (q, vLANE))
        e('v_and_b32 v106, 1, v%d\nv_lshlrev_b32 v106, 5, v106\nv_and_b32 v107, 3, v%d\nv_lshl_add_u32 v106, v107, 3, v106\nv_add_u32 v105, v105, v106' % (q, vLANE))
        e('s_lshr_b32 s26, s%d, 1\ns_mul_i32 s26, s26, 18432\ns_add_u32 s26, s26, 0x%x' % (sW, SCR))
        e('s_and_b32 s27, s%d, 1\ns_mul_i32 s28, s27, 40\ns_add_u32 s28, s28, s26\ns_add_u32 s29, s26, 80' % sW)
        e('v_add_u32 v%d, s28, v105\nv_add_u32 v%d, s29, v105' % (vKA, vKB))
        e('s_lshl_b32 s26, s%d, 10' % sW)
        e('v_mul_u32_u24 v105, 24, v%d\nv_add_u32 v105, v105, v%d\nv_lshlrev_b32 v105, 4, v105\nv_add_u32 v105, s26, v105' % (hi, t32))
        e('v_cmp_gt_u32 vcc, 24, v%d\nv_cndmask_b32 v%d, v104, v105, vcc' % (t32, vPS1))
        e('v_lshlrev_b32 v105, 3, v%d\nv_add_u32 v105, s26, v105\nv_add_u32 v105, 768, v105' % t32)
        e('v_cmp_eq_u32 vcc, 0, v%d\nv_cndmask_b32 v%d, v104, v105, vcc' % (hi, vPS2))
        e('v_mov_b32 v106, 84\nv_cmp_le_u32 s[30:31], v106, v0\nv_cndmask_b32 v106, 0, 1, s[30:31]')
        e('v_mul_u32_u24 v107, 84, v106\nv_sub_u32 v107, v0, v107')
        e('v_mul_u32_u24 v108, 391, v107\nv_lshrrev_b32 v108, 13, v108')
        e('v_mul_u32_u24 v109, 21, v108\nv_sub_u32 v109, v107, v109')
        e('v_subrev_u32 v110, 168, v0\nv_mul_u32_u24 v111, 391, v110\nv_lshrrev_b32 v111, 13, v111\nv_and_b32 v111, 3, v111')
        e('v_mul_u32_u24 v96, 21, v111\nv_sub_u32 v96, v110, v96')
        e('v_cmp_gt_u32 vcc, 168, v0')
        e('v_lshrrev_b32 v97, 1, v108\nv_lshl_add_u32 v97, v106, 1, v97\nv_lshlrev_b32 v97, 10, v97')
        e('v_and_b32 v98, 1, v108\nv_mul_u32_u24 v98, 24, v98\nv_add_u32 v98, v98, v109\nv_lshl_add_u32 v97, v98, 4, v97')
        e('v_lshlrev_b32 v98, 10, v111\nv_lshl_add_u32 v98, v96, 3, v98\nv_add_u32 v98, 768, v98')
        e('v_cndmask_b32 v97, v98, v97, vcc')
        e('v_mov_b32 v99, 252\nv_cmp_gt_u32 s[30:31], v99, v0\nv_cndmask_b32 v%d, v104, v97, s[30:31]' % vPL)
        e('v_lshrrev_b32 v97, 1, v111\nv_cndmask_b32 v106, v97, v106, vcc')
        e('v_cndmask_b32 v108, 4, v108, vcc\nv_cndmask_b32 v109, v96, v109, vcc')
        e('v_lshrrev_b32 v110, 4, v109\nv_mul_u32_u24 v110, 5, v110\nv_add_u32 v110, v110, v108')
        e('v_and_b32 v109, 15, v109\nv_lshrrev_b32 v97, 2, v109\nv_lshlrev_b32 v97, 3, v97\nv_and_b32 v109, 3, v109\nv_add_u32 v97, v97, v109')
        e('v_mul_u32_u24 v109, 36, v106\nv_add_u32 v97, v97, v109')
        e('v_lshlrev_b32 v97, 4, v97\nv_lshl_add_u32 v97, v110, 10, v97\nv_add_u32 v97, 0x%x, v97' % SCR)
        e('v_and_b32 v105, 63, v0\nv_lshlrev_b32 v105, 4, v105\nv_add_u32 v105, 0x%x, v105' % (SCR + 12288))
        e('v_cndmask_b32 v%d, v105, v97, vcc' % vAW)
        e('v_and_b32 v98, 1, v111\nv_lshl_add_u32 v97, v98, 3, v97')
        e('v_cndmask_b32 v97, v97, v105, vcc\nv_cndmask_b32 v%d, v105, v97, s[30:31]' % vAW2)
        e('s_mul_i32 s26, s%d, 5' % sJ)
        e('v_bfe_u32 v105, v%d, 4, 1\nv_mul_u32_u24 v105, 20480, v105\nv_lshl_add_u32 v105, v%d, 4, v105' % (vLANE, t16))
        for (dst, expr) in ((vO0, 0), (vO1, 1), (vO2, None)):
            if expr is not None:
                e('v_lshl_add_u32 v106, v%d, 1, s26\nv_add_u32 v106, %d, v106' % (hi, expr))
            else:
                e('v_mov_b32 v106, s26\nv_add_u32 v106, 4, v106')
            e('v_lshrrev_b32 v107, 2, v106\nv_lshl_add_u32 v107, v107, 10, v105\nv_and_b32 v106, 3, v106\nv_lshl_add_u32 v%d, v106, 8, v107' % dst)
        e('v_lshl_add_u32 v%d, v%d, 3, v%d' % (vO2, hi, vO2))
        e('s_mul_i32 s26, s%d, 10' % sCS)
        e('s_and_b32 s27, s%d, 1\ns_lshl_b32 s27, s27, 8' % sTTK)
        e('v_lshlrev_b32 v105, 4, v%d' % t16)
        for n, (dx, dy) in enumerate(((vX0, vY0), (vX1, vY1), (vX2, vY2))):
            if n < 2: e('v_add_u32 v106, s26, v%d\nv_add_u32 v106, %d, v106' % (q, 4 * n))
            else: e('v_lshrrev_b32 v106, 1, v%d\nv_add_u32 v106, s26, v106\nv_add_u32 v106, 8, v106' % q)
            e('v_lshrrev_b32 v107, 2, v106\nv_lshl_add_u32 v107, v107, 10, v105\nv_and_b32 v108, 3, v106\nv_lshl_add_u32 v%d, v108, 8, v107' % dx)
            e('v_lshrrev_b32 v107, 1, v106\nv_lshl_add_u32 v107, v107, 10, v105\nv_and_b32 v108, 1, v106\nv_lshl_add_u32 v107, v108, 9, v107\nv_add_u32 v%d, s27, v107' % dy)
        e('v_and_b32 v106, 1, v%d\nv_lshl_add_u32 v%d, v106, 3, v%d\nv_lshl_add_u32 v%d, v106, 3, v%d' % (q, vX2, vX2, vY2, vY2))
        e('v_mul_u32_u24 v105, 1280, v%d\nv_lshl_add_u32 v%d, v%d, 4, v105\nv_lshl_add_u32 v%d, v%d, 3, v105\nv_add_u32 v%d, 128, v%d' % (t16, vR0, q, vR2, q, vR2, vR2))
        e('v_lshlrev_b32 v105, 3, v%d\nv_cmp_eq_u32 vcc, 0, v%d\nv_cndmask_b32 v%d, v104, v105, vcc\nv_lshl_add_u32 v%d, v%d, 15, v105' % (t16, q, vST, vSC, q))
        e('s_add_u32 s26, s%d, 0x%x\nv_add_u32 v%d, s26, v%d' % (sW5K, SCR, vEXW, vL16))
        e('s_xor_b32 s27, s%d, 2\ns_mul_i32 s27, s27, 5120\ns_add_u32 s27, s27, 0x%x\nv_add_u32 v%d, s27, v%d' % (sW, SCR, vEXR, vL16))
    def pro_tail(self, xlo, olo):
        e = self.e
        self.mk_srd(8, xlo, T * 1280); self.mk_srd(12, olo, T * 1280)
        if self.o.get('ampre_a', 0): self.am_a()
        for b in self.A_ack:
            for g in self.dma_ops(b): e.extend(g)
        self.side_dma(self.A_side[:1])
        for b in self.A_tail:
            for g in self.dma_ops(b):
                for x in g:
                    if isinstance(x, tuple): e(x[0], count=False)
                    else: e(x)
        self.side_dma(self.A_side[1:])
        if not self.o.get('xrlate', 1): self.xr_load()
    def xr_load(self):
        e = self.e
        e('s_mul_i32 s29, s%d, 20480\ns_mul_i32 s31, s%d, 160\ns_add_u32 s29, s29, s31' % (sTTK, sCS))
        e('buffer_load_dwordx4 v[%d:%d], v%d, s[8:11], s29 offen' % (XR, XR + 3, vR0), count=False)
        e('buffer_load_dwordx4 v[%d:%d], v%d, s[8:11], s29 offen offset:64' % (XR + 4, XR + 7, vR0), count=False)
        e('buffer_load_dwordx2 v[%d:%d], v%d, s[8:11], s29 offen' % (XR + 8, XR + 9, vR2), count=False)
    def rowstat_finish(self, S, Q, vRS, vVE, BM, tmp):
        L = []
        L.append('v_mul_f32 v%d, %s, v%d' % (S, f32bits(1.0 / 640), S))
        L.append('v_mul_f32 v%d, %s, v%d' % (Q, f32bits(1.0 / 640), Q))
        L.append('v_fma_f32 v%d, -v%d, v%d, v%d' % (Q, S, S, Q))
        L.append('v_max_f32 v%d, 0, v%d' % (Q, Q))
        L.append('v_add_f32 v%d, %s, v%d' % (vVE, f32bits(1e-5), Q))
        L.append('v_rsq_f32 v%d, v%d' % (vRS, vVE))
        L.append('v_cvt_pk_bf16_f32 v%d, -v%d, -v%d' % (tmp, S, S))
        L.append('v_and_b32 v%d, 0xffff0000, v%d' % (tmp, tmp))
        L.append('v_sub_f32 v%d, -v%d, v%d' % (tmp, S, tmp))
        L.append('v_cvt_pk_bf16_f32 v%d, -v%d, v%d' % (BM, S, tmp))
        for k in range(1, 4): L.append('v_mov_b32 v%d, v%d' % (BM + k, BM))
        return L
    def softmax_pair(self, X, vC, EP, EM, t):
        L = []
        mx, mn, ap, am, sp, sm = range(t, t + 6)
        L.append('v_max3_f32 v%d, v%d, v%d, v%d' % (mx, X[0], X[1], X[2]))
        L.append('v_min3_f32 v%d, v%d, v%d, v%d' % (mn, X[0], X[1], X[2]))
        for k in range(3, 19, 2):
            L.append('v_max3_f32 v%d, v%d, v%d, v%d' % (mx, mx, X[k], X[k + 1]))
            L.append('v_min3_f32 v%d, v%d, v%d, v%d' % (mn, mn, X[k], X[k + 1]))
        L.append('v_max_f32 v%d, v%d, v%d' % (mx, mx, X[19]))
        L.append('v_min_f32 v%d, v%d, v%d' % (mn, mn, X[19]))
        L.append('v_mul_f32 v%d, v%d, v%d' % (ap, vC, mx))
        L.append('v_mul_f32 v%d, v%d, v%d' % (am, vC, mn))
        for f in range(20):
            L.append('v_fma_f32 v%d, v%d, v%d, -v%d' % (EP + f, X[f], vC, ap))
            L.append('v_fma_f32 v%d, -v%d, v%d, v%d' % (EM + f, X[f], vC, am))
        for f in range(20):
            L.append('v_exp_f32 v%d, v%d' % (EP + f, EP + f))
            L.append('v_exp_f32 v%d, v%d' % (EM + f, EM + f))
        L.append('v_add_f32 v%d, v%d, v%d' % (sp, EP, EP + 1))
        L.append('v_add_f32 v%d, v%d, v%d' % (sm, EM, EM + 1))
        for f in range(2, 20):
            L.append('v_add_f32 v%d, v%d, v%d' % (sp, sp, EP + f))
            L.append('v_add_f32 v%d, v%d, v%d' % (sm, sm, EM + f))
        L.append('v_rcp_f32 v%d, v%d' % (sp, sp))
        L.append('v_rcp_f32 v%d, v%d' % (sm, sm))
        for f in range(20):
            L.append('v_mul_f32 v%d, v%d, v%d' % (EP + f, EP + f, sp))
            L.append('v_mul_f32 v%d, v%d, v%d' % (EM + f, EM + f, sm))
        return L
    def stamp(self, k):
        if not self.o.get('stamps'): return
        e = self.e
        e('v_mov_b32 v222, s%d' % sL)
        e('v_lshlrev_b32 v222, 5, v222\nv_add_u32 v222, %d, v222' % k)
        e('v_cmp_eq_u32 vcc, v222, v%d' % vLANE)
        e('s_memtime s[58:59]' if self.o.get('cyc') else 's_memrealtime s[58:59]')
        e('s_waitcnt lgkmcnt(0)')
        e('v_mov_b32 v222, s58')
        e('v_cndmask_b32 v223, v223, v222, vcc')
    def stamp_items(self, k):
        if self.o.get('stamps') != 2: return []
        sub = Main(None, self.o); sub.stamp(k)
        return sub.e.items
    def stamp_flush(self):
        if not self.o.get('stamps'): return
        e = self.e
        e('s_lshl_b32 s62, s2, 2\ns_add_u32 s62, s62, s%d\ns_lshl_b32 s62, s62, 8\ns_add_u32 s62, s62, 0x%x' % (sW, TSOFF))
        e('v_lshlrev_b32 v%d, 2, v%d' % (vT0, vLANE))
        e('buffer_store_dword v223, v%d, s[4:7], s62 offen' % vT0)
    def maybe_stop(self, name):
        if self.stop == name:
            self.e.wait_all(); self.e('s_endpgm'); return True
        return False
    def vm_stream(self, items):
        st = Stream()
        for it in sorted(items, key=lambda x: x[3] if len(x) > 3 else x[0]):
            st.add(it[2], it[1], it[0])
        return st
    def flat(self, groups):
        return [x for g in groups for x in g]
    def phase_a(self):
        e = self.e; o = self.o
        T0, T1, T2, T3 = ACC, ACC + 16, ACC + 32, ACC + 48
        ST, vRS, vVE, vC, BM, AM, EP, EM, P = 112, 120, 121, 122, 124, 128, 144, 164, 184
        self.stamp(0)
        L = self.lab('a_nopoll')
        e('s_cmp_eq_u32 s%d, 0' % sL); e('s_cbranch_scc1 %s' % L)
        self.cnt(sT0, CNT_XA, sRB)
        self.poll(sT0)
        e('s_barrier')
        e.label(L)
        self.stamp(1)
        e('s_lshl_b32 s%d, s%d, 2\ns_add_u32 s%d, s%d, s%d' % (sT0, sRB, sT0, sT0, sW))
        e('s_lshl_b32 s%d, s%d, 8\ns_add_u32 s%d, s%d, s%d\ns_add_u32 s%d, s%d, 0x%x' % (sT1, sT0, sT1, sT1, sLOFF, sT1, sT1, SA))
        e('s_mul_i32 s%d, s%d, 40960\ns_add_u32 s%d, s%d, s%d\ns_add_u32 s%d, s%d, 0x%x' % (sTW, sT0, sTW, sTW, sLOFF, sTW, sTW, XA))
        def tok(s):
            g = []
            if s % 4 == 0: g.append('s_add_u32 s%d, s%d, %d' % (sB0, sTW, s * 1024))
            g.append('buffer_load_dwordx4 a[%d:%d], v%d, s[4:7], s%d offen offset:%d%s' % (4 * s, 4 * s + 3, vL16, sB0, (s % 4) * 1024, self.sc))
            return g
        NPRE = o.get('a_npre', 14)
        if o.get('tt', 0): e.extend(self.touch_tok(XA))
        for s in range(NPRE): e.extend(tok(s))
        stld = []
        for k in range(4):
            if k: stld.append('s_add_u32 s%d, s%d, 16384' % (sT1, sT1))
            stld.append('buffer_load_dwordx2 v[%d:%d], v%d, s[4:7], s%d offen sc1' % (ST + 2 * k, ST + 2 * k + 1, vSA, sT1))
        e('s_lshl_b32 s%d, s%d, 12\ns_add_u32 s%d, s%d, 0x%x' % (sT2, sJ, sT2, sT2, WAM))
        amload = ['buffer_load_dwordx4 v[%d:%d], v%d, s[4:7], s%d offen offset:%d' % (AM + 4 * t, AM + 4 * t + 3, vL16, sT2, t * 1024) for t in range(4)]
        st = []
        st += ['v_add_f32 v%d, v%d, v%d' % (ST, ST, ST + 2), 'v_add_f32 v%d, v%d, v%d' % (ST + 1, ST + 1, ST + 3),
               'v_add_f32 v%d, v%d, v%d' % (ST + 4, ST + 4, ST + 6), 'v_add_f32 v%d, v%d, v%d' % (ST + 5, ST + 5, ST + 7),
               'v_add_f32 v%d, v%d, v%d' % (ST, ST, ST + 4), 'v_add_f32 v%d, v%d, v%d' % (ST + 1, ST + 1, ST + 5),
               'v_mov_b32 v%d, v%d' % (ST + 2, ST), 'v_mov_b32 v%d, v%d' % (ST + 3, ST + 1),
               'v_permlane32_swap_b32 v%d, v%d' % (ST, ST + 2), 'v_permlane32_swap_b32 v%d, v%d' % (ST + 1, ST + 3),
               'v_add_f32 v%d, v%d, v%d' % (ST, ST, ST + 2), 'v_add_f32 v%d, v%d, v%d' % (ST + 1, ST + 1, ST + 3)]
        st += self.rowstat_finish(ST, ST + 1, vRS, vVE, BM, ST + 2)
        st += ['v_mul_f32 v%d, %s, v%d' % (vC, f32bits(LOG2E), vRS)]
        LA = 5
        def frag_info(n):
            if n < 120: return n // 3, n % 3
            return n - 120, 3
        def read(n): return self.ring_read(AF + 4 * (n % 8), A0 + n // 20, (n % 20) * 1024)
        def mfma(n):
            s, tau = frag_info(n); acc = ACC + 16 * tau; a = AF + 4 * (n % 8)
            c = '0' if s == 0 else 'v[%d:%d]' % (acc, acc + 15)
            return 'v_mfma_f32_32x32x16_bf16 v[%d:%d], v[%d:%d], a[%d:%d], %s' % (acc, acc + 15, a, a + 3, 4 * s, 4 * s + 3, c)
        def mean(tau):
            acc = ACC + 16 * tau
            return 'v_mfma_f32_32x32x16_bf16 v[%d:%d], v[%d:%d], v[%d:%d], v[%d:%d]' % (acc, acc + 15, AM + 4 * tau, AM + 4 * tau + 3, BM, BM + 3, acc, acc + 15)
        ksm = self.softmax_pair([T0 + r for r in range(16)] + [T1 + r for r in range(4)], vC, EP, EM, ST)
        for d in range(10): ksm.append('v_cvt_pk_bf16_f32 v%d, v%d, v%d' % (P + d, EP + 2 * d, EP + 2 * d + 1))
        for d in range(10): ksm.append('v_cvt_pk_bf16_f32 v%d, v%d, v%d' % (P + 10 + d, EM + 2 * d, EM + 2 * d + 1))
        V = [T1 + r for r in range(4, 16)] + [T2 + r for r in range(8)]
        for f in range(20): ksm.append('v_mul_f32 v%d, v%d, v%d' % (V[f], V[f], vRS))
        for d in range(10): ksm.append('v_cvt_pk_bf16_f32 v%d, v%d, v%d' % (P + 20 + d, V[2 * d], V[2 * d + 1]))
        ksm += ['v_mov_b32 v%d, 0x3f80' % (P + 30), 'v_mov_b32 v%d, 0' % (P + 31)]
        anchors = []; pre = {}; fixed = {}; idx = {}
        KF = o.get('kvfirst', 1)
        NF1 = 140 if KF else 160
        for n in range(NF1):
            if n == 120:
                idx['mean'] = len(anchors)
                anchors += [mean(t) for t in range(3)]
            idx[n] = len(anchors)
            anchors.append(mfma(n))
            fixed[idx[n]] = ([read(n + LA)] if n + LA < NF1 else []) + ([Need('v[%d:%d]' % (AF + 4 * ((n + 1) % 8), AF + 4 * ((n + 1) % 8) + 3))] if n + 1 < NF1 else [])
        if not KF: anchors.append(mean(3))
        for ep in range(1, 7 if KF else 8):
            at = idx['mean'] if ep == 6 else idx[20 * ep]
            pre[at] = ([W_tag('blk%d' % (A0 + ep + 1))] if ep < 7 else []) + ['s_barrier']
            if self.o.get('fine') == 'a': pre[at] += self.stamp_items(19 + ep - 1)
        items = [(3 * s, 0, tok(s)) for s in range(NPRE, 40)]
        if not o.get('ampre_a', 0): items.append((90, 0, amload))
        if o.get('tw', 0): items.append((30, 0, self.touch_w('B')))
        items.append((o.get('a_stdl', 64), 0, stld))
        for b in self.A_in: items.append((20 * (b - 1), 0, self.flat(self.dma_ops(b))))
        last_in = o.get('a_lastblk', 11)
        for b in range(6, last_in + 1):
            free = 20 * (b - 5) if b - 5 < 6 else idx['mean']
            assert not KF or b <= 11
            items.append((20 * (b - 1) if b < 8 else 200 + b, free, self.flat(self.dma_ops(b))))
        if o.get('merged', 0):
            sub = Main(None, self.o); sub.nlab = self.nlab + 2000; q = sub.e
            Lr = 'M_restld'
            q('s_cmp_lg_u32 s%d, 0' % sL); q('s_cbranch_scc1 %s' % Lr)
            q('v_min_u32 v%d, 15, v%d\nv_lshlrev_b32 v%d, 7, v%d\ns_mov_b32 s%d, 0x%x' % (vT1, vLANE, vT1, vT1, sT3, CNT_REST))
            q('buffer_load_dword v%d, v%d, s[4:7], s%d offen sc1' % (vPOLL, vT1, sT3), count=False)
            q.label(Lr)
            e.extend(q.items)
            sub = Main(None, self.o); sub.nlab = self.nlab + 3000; q = sub.e
            Lk = 'M_restok'; Ll = 'M_restsp'
            q('s_cmp_lg_u32 s%d, 0' % sL); q('s_cbranch_scc1 %s' % Lk)
            q('s_mov_b32 s%d, 0' % sPC)
            q.label(Ll)
            q('v_cmp_gt_u32 vcc, 16, v%d' % vPOLL)
            q('s_cbranch_vccz %s' % Lk)
            q('s_cmp_lg_u32 s%d, 0' % sDEAD); q('s_cbranch_scc1 %s' % Lk)
            q('buffer_load_dword v%d, v%d, s[4:7], s%d offen sc1' % (vPOLL, vT1, sT3), count=False)
            q('s_waitcnt vmcnt(0)', count=False)
            q('s_add_u32 s%d, s%d, 1' % (sPC, sPC)); q('s_cmp_lt_u32 s%d, %d' % (sPC, SPIN_LIMIT)); q('s_cbranch_scc1 %s' % Ll)
            q('s_mov_b32 s%d, 1' % sDEAD)
            q.label(Lk)
            pre[idx[60]] = q.items + pre[idx[60]]
        vs = self.vm_stream(items)
        valu = Stream(st, o.get('a_stv', 90)).add(ksm, idx[120] + 1)
        if o.get('fine') == 'a0': e.extend(self.stamp_items(19))
        e.wait_tag('blk0'); e.wait_tag('blk1')
        if self.A_tail:
            Lw = self.lab('a_l0w')
            e('s_cmp_lg_u32 s%d, 0' % sL); e('s_cbranch_scc1 %s' % Lw)
            e('s_waitcnt vmcnt(0)', count=False)
            e.label(Lw)
        e('s_barrier')
        if o.get('fine') == 'a0':
            e.extend(self.stamp_items(20))
            for k, at in enumerate((1, 3, 6, 9, 12, 15, 18)):
                pre[at] = pre.get(at, []) + self.stamp_items(21 + k)
        for n in range(LA): e(read(n))
        stt = {}
        e.extend(schedule(anchors, 5, pre, fixed, [vs, valu], vm_gap=o.get('a_gap', 2), state=stt))
        if o.get('verbose'): print('a forced', stt.get('forced'), 'left', len(vs.q), len(valu.q))
        e.extend([y[0] for y in vs.q]); e.extend([y[0] for y in valu.q])
        self.a_late = list(range(last_in + 1, 13))
        self.stamp(2)
        for m in range(8):
            e('ds_write_b128 v%d, v[%d:%d] offset:%d' % (vTW, P + 4 * m, P + 4 * m + 3, 16 * m))
        e.wait_lgkm0()
        e('s_barrier')
        KD = T0
        def kvread(ks):
            b = AF + 8 * (ks % 4)
            return ['ds_read_b64_tr_b16 v[%d:%d], v%d offset:%d' % (b, b + 1, vKA, ks * 2304),
                    'ds_read_b64_tr_b16 v[%d:%d], v%d offset:%d' % (b + 2, b + 3, vKA, ks * 2304 + 576),
                    'ds_read_b64_tr_b16 v[%d:%d], v%d offset:%d' % (b + 4, b + 5, vKB, ks * 2304),
                    'ds_read_b64_tr_b16 v[%d:%d], v%d offset:%d' % (b + 6, b + 7, vKB, ks * 2304 + 576)]
        for ks in range(3): e.extend(kvread(ks))
        for ks in range(8):
            if ks + 3 < 8: e.extend(kvread(ks + 3))
            b = AF + 8 * (ks % 4)
            e('v_mfma_f32_32x32x16_bf16 v[%d:%d], v[%d:%d], v[%d:%d], %s' % (KD, KD + 15, b, b + 3, b + 4, b + 7, '0' if ks == 0 else 'v[%d:%d]' % (KD, KD + 15)))
        PK = EP
        for d in range(6): e('v_cvt_pk_bf16_f32 v%d, v%d, v%d' % (PK + d, KD + 2 * d, KD + 2 * d + 1))
        e('s_lshl_b32 s%d, s%d, 4\ns_add_u32 s%d, s%d, s%d\ns_lshl_b32 s%d, s%d, 12' % (sT0, sJ, sT0, sT0, sRB, sT0, sT0))
        e('s_add_u32 s%d, s%d, s%d\ns_add_u32 s%d, s%d, 0x%x' % (sT0, sT0, sLOFF, sT0, sT0, KVP))
        if o.get('reuse'): e('s_lshl_b32 s%d, s%d, 20\ns_add_u32 s%d, s%d, s%d' % (sT3, sL, sT0, sT0, sT3))
        e('buffer_store_dwordx4 v[%d:%d], v%d, s[4:7], s%d offen sc1' % (PK, PK + 3, vPS1, sT0))
        e('buffer_store_dwordx2 v[%d:%d], v%d, s[4:7], s%d offen sc1' % (PK + 4, PK + 5, vPS2, sT0))
        self.cnt(sT1, CNT_KV, sJ)
        kack = self.a_late if o.get('k_ack', 1) else []
        self.signal(sT1, kack)
        self.stamp(3)
        if o.get('tw', 0): e.extend(self.touch_w('C'))
        if not kack: self.side_dma(self.a_late)
        if o.get('xrlate', 1):
            Lx = self.lab('xr')
            e('s_cmp_lg_u32 s%d, 0' % sL); e('s_cbranch_scc1 %s' % Lx)
            self.xr_load()
            e.label(Lx)
        ZR = EM
        zf = ['v_mov_b32 v%d, 0' % (ZR + r) for r in range(4)]
        zf += ['v_lshlrev_b32 v%d, 4, v0' % vT1, 'v_add_u32 v%d, 0x%x, v%d' % (vT1, SCR, vT1)]
        zf += ['ds_write_b128 v%d, v[%d:%d] offset:%d' % (vT1, ZR, ZR + 3, m * 4096) for m in range(3)]
        if KF:
            an2 = []; fx2 = {}
            for n in range(NF1, NF1 + LA): e(read(n))
            for n in range(NF1, 160):
                fx2[len(an2)] = ([read(n + LA)] if n + LA < 160 else []) + ([Need('v[%d:%d]' % (AF + 4 * ((n + 1) % 8), AF + 4 * ((n + 1) % 8) + 3))] if n + 1 < 160 else [])
                an2.append(mfma(n))
            an2.append(mean(3))
            z = Stream(zf)
            e.extend(schedule(an2, 5, {}, fx2, [z]))
            e.extend([y[0] for y in z.q])
        else:
            e.extend(zf)
        Q = P
        X = [T2 + r for r in range(8, 16)] + [T3 + r for r in range(12)]
        e.extend(self.softmax_pair(X, vC, EP, EM, ST))
        order = []
        for sign in (EP, EM):
            order += [(sign + 0), (sign + 2), (sign + 8), (sign + 10), (sign + 4), (sign + 6), (sign + 12), (sign + 14)]
        order += [EP + 16, EP + 18, EM + 16, EM + 18]
        for d, r in enumerate(order): e('v_cvt_pk_bf16_f32 v%d, v%d, v%d' % (Q + d, r, r + 1))
        e.wait_lgkm0()
        self.stamp(4)
        self.poll(sT1)
        e('s_barrier')
        self.stamp(5)
        if self.maybe_stop('a1'): return True
        LD, SUM, PKK = 112, 176, 204
        e('s_lshl_b32 s%d, s%d, 16\ns_add_u32 s%d, s%d, s%d\ns_add_u32 s%d, s%d, 0x%x' % (sT0, sJ, sT0, sT0, sLOFF, sT0, sT0, KVP))
        if o.get('reuse'): e('s_lshl_b32 s%d, s%d, 20\ns_add_u32 s%d, s%d, s%d' % (sT3, sL, sT0, sT0, sT3))
        for p in range(16):
            if p: e('s_add_u32 s%d, s%d, 4096' % (sT0, sT0))
            e('buffer_load_dwordx4 v[%d:%d], v%d, s[4:7], s%d offen sc1' % (LD + 4 * p, LD + 4 * p + 3, vPL, sT0))
        e('v_mov_b32 v%d, 0x00003f80\nv_mov_b32 v%d, 0x3f800000' % (vT2, vT3))
        for k in range(8): e('v_mov_b32 v%d, 0' % (SUM + k))
        for p in range(16):
            for d in range(4):
                e('v_dot2c_f32_bf16 v%d, v%d, v%d' % (SUM + 2 * d, LD + 4 * p + d, vT2))
                e('v_dot2c_f32_bf16 v%d, v%d, v%d' % (SUM + 2 * d + 1, LD + 4 * p + d, vT3))
        for d in range(4): e('v_cvt_pk_bf16_f32 v%d, v%d, v%d' % (PKK + d, SUM + 2 * d, SUM + 2 * d + 1))
        e('ds_write_b128 v%d, v[%d:%d]' % (vAW, PKK, PKK + 3))
        e('ds_write_b64 v%d, v[%d:%d]' % (vAW2, PKK, PKK + 1))
        e.wait_lgkm0()
        e('s_barrier')
        e('v_add_u32 v%d, 0x%x, v%d' % (vT1, SCR, vL16))
        for n in range(8): e('ds_read_b128 v[%d:%d], v%d offset:%d' % (AF + 4 * n, AF + 4 * n + 3, vT1, n * 1024))
        G0, G1 = T0, T1
        for n in range(10):
            rho, s = n // 5, n % 5
            acc = G0 if rho == 0 else G1
            a = AF + 4 * (n % 8)
            e('v_mfma_f32_32x32x16_bf16 v[%d:%d], v[%d:%d], v[%d:%d], %s' % (acc, acc + 15, a, a + 3, Q + 4 * s, Q + 4 * s + 3, '0' if s == 0 else 'v[%d:%d]' % (acc, acc + 15)))
            if n < 2: e('ds_read_b128 v[%d:%d], v%d offset:%d' % (a, a + 3, vT1, (n + 8) * 1024))
        e('v_add_f32 v%d, %s, v%d' % (vT2, f32bits(1e-6), G1 + 4))
        e('v_rcp_f32 v%d, v%d' % (vT2, vT2))
        OP = 208
        src = [G0 + r for r in range(16)] + [G1 + r for r in range(4)]
        for r in src: e('v_mul_f32 v%d, v%d, v%d' % (r, r, vT2))
        for d in range(10): e('v_cvt_pk_bf16_f32 v%d, v%d, v%d' % (OP + d, src[2 * d], src[2 * d + 1]))
        e('s_lshl_b32 s%d, s%d, 3\ns_lshl_b32 s%d, s%d, 1\ns_add_u32 s%d, s%d, s%d\ns_mul_i32 s%d, s%d, 20480' % (sT0, sRB, sT1, sW, sT0, sT0, sT1, sT0, sT0))
        e('s_add_u32 s%d, s%d, s%d\ns_add_u32 s%d, s%d, 0x%x' % (sT0, sT0, sLOFF, sT0, sT0, O))
        e('buffer_store_dwordx4 v[%d:%d], v%d, s[4:7], s%d offen sc1' % (OP, OP + 3, vO0, sT0))
        e('buffer_store_dwordx4 v[%d:%d], v%d, s[4:7], s%d offen sc1' % (OP + 4, OP + 7, vO1, sT0))
        e('buffer_store_dwordx2 v[%d:%d], v%d, s[4:7], s%d offen sc1' % (OP + 8, OP + 9, vO2, sT0))
        self.stamp(6)
        self.cnt(sT1, CNT_O, sRB)
        self.signal(sT1, [C0] if o.get('o_ack', 1) else [])
        self.stamp(7)
        if not o.get('o_ack', 1): self.side_dma([C0])
        return self.maybe_stop('a')
    def gemm_bd(self, first_blk, nsteps, vs, pre_extra, valu, breg=None):
        e = self.e
        LA = 5
        nf = nsteps * 5
        def read(n):
            i, tau = n // 5, n % 5
            return self.ring_read(AF + 4 * (n % 8), first_blk + i // 2, (i & 1) * 10240 + tau * 1024, kh=True)
        def mf(n, u):
            i, tau = n // 5, n % 5
            acc = ACC + (tau * 2 + u) * 4; a = AF + 4 * (n % 8); b = breg(i, u) if breg else (2 * i + u) * 4
            c = '0' if i == 0 else 'v[%d:%d]' % (acc, acc + 3)
            return 'v_mfma_f32_16x16x32_bf16 v[%d:%d], v[%d:%d], a[%d:%d], %s' % (acc, acc + 3, a, a + 3, b, b + 3, c)
        anchors = []; pre = {}; fixed = {}
        for n in range(nf):
            anchors += [mf(n, 0), mf(n, 1)]
            if n + LA < nf: fixed[2 * n] = [read(n + LA)]
            if n + 1 < nf: fixed[2 * n + 1] = [Need('v[%d:%d]' % (AF + 4 * ((n + 1) % 8), AF + 4 * ((n + 1) % 8) + 3))]
        nep = nsteps // 2
        for ep in range(1, nep):
            pre[20 * ep] = list(pre_extra.get(ep, [])) + ([W_tag('blk%d' % (first_blk + ep + 1))] if ep + 1 < nep else []) + ['s_barrier']
            if self.o.get('fine') == 'd' and nsteps == 24: pre[20 * ep] += self.stamp_items(19 + ep - 1)
        for n in range(LA): e(read(n))
        stt = {}
        e.extend(schedule(anchors, 2, pre, fixed, [vs, valu], vm_gap=self.o.get('d_gap', 2), state=stt))
        if self.o.get('verbose'): print('bd forced', stt.get('forced'), 'left', len(vs.q), len(valu.q))
        e.extend([y[0] for y in vs.q]); e.extend([y[0] for y in valu.q])
    def bd_unpack(self):
        U = 112; L = []
        for d in range(10):
            L.append('v_lshlrev_b32 v%d, 16, v%d' % (U + 2 * d, XR + d))
            L.append('v_and_b32 v%d, 0xffff0000, v%d' % (U + 2 * d + 1, XR + d))
        return L
    def bd_epilogue(self, last_blk, final):
        e = self.e
        EX = 88
        for tau in range(5):
            a = ACC + (tau * 2 + 1) * 4
            e('ds_write_b128 v%d, v[%d:%d] offset:%d' % (vEXW, a, a + 3, tau * 1024))
        e.wait_lgkm0()
        e('s_barrier')
        for tau in range(5):
            e('ds_read_b128 v[%d:%d], v%d offset:%d' % (EX + 4 * tau, EX + 4 * tau + 3, vEXR, tau * 1024))
        U = 112
        for tau in range(5):
            a = ACC + (tau * 2) * 4
            for c in range(4):
                e('v_add_f32 v%d, v%d, v%d' % (U + 4 * tau + c, U + 4 * tau + c, a + c))
        for tau in range(5):
            for c in range(4):
                e('v_add_f32 v%d, v%d, v%d' % (U + 4 * tau + c, U + 4 * tau + c, EX + 4 * tau + c))
        for d in range(10): e('v_cvt_pk_bf16_f32 v%d, v%d, v%d' % (XR + d, U + 2 * d, U + 2 * d + 1))
        final()
    def bd_stats(self, base_off, next_layer):
        e = self.e
        S, Q = 136, 137
        e('v_mov_b32 v%d, 0\nv_mov_b32 v%d, 0' % (S, Q))
        for d in range(10):
            e('v_dot2c_f32_bf16 v%d, v%d, v%d' % (S, XR + d, vONES))
            e('v_dot2c_f32_bf16 v%d, v%d, v%d' % (Q, XR + d, XR + d))
        for sw in ('v_permlane16_swap_b32', 'v_permlane32_swap_b32'):
            e('v_mov_b32 v138, v%d\nv_mov_b32 v139, v%d' % (S, Q))
            e('%s v%d, v138\n%s v%d, v139' % (sw, S, sw, Q))
            e('v_add_f32 v%d, v%d, v138\nv_add_f32 v%d, v%d, v139' % (S, S, Q, Q))
        e('s_lshl_b32 s%d, s%d, 7\ns_lshl_b32 s%d, s%d, 14\ns_add_u32 s%d, s%d, s%d' % (sT2, sTTK, sT3, sCS, sT2, sT2, sT3))
        e('s_add_u32 s%d, s%d, s%d\ns_add_u32 s%d, s%d, 0x%x' % (sT2, sT2, sLOFF, sT2, sT2, base_off + (self.lstride if next_layer else 0)))
        if not self.o.get('nostats'): e('buffer_store_dwordx2 v[%d:%d], v%d, s[4:7], s%d offen sc1' % (S, Q, vST, sT2))
    def phase_b(self):
        e = self.e
        self.cnt(sT0, CNT_O, sRB)
        for (s, tt) in ((sB0, sTTK), (sB1, sTTS)):
            e('s_mul_i32 s%d, s%d, 20\ns_mul_i32 s%d, s%d, 10\ns_add_u32 s%d, s%d, s%d\ns_lshl_b32 s%d, s%d, 10' % (s, tt, sT1, sKH, s, s, sT1, s, s))
            e('s_add_u32 s%d, s%d, s%d\ns_add_u32 s%d, s%d, 0x%x' % (s, s, sLOFF, s, s, O))
        def tok(i, u):
            s = sB0 if u == 0 else sB1
            t = sC1 + u
            g = []
            if i % 4 == 0: g.append('s_add_u32 s%d, s%d, %d' % (t, s, i * 1024))
            g.append('buffer_load_dwordx4 a[%d:%d], v%d, s[4:7], s%d offen offset:%d%s' % ((2 * i + u) * 4, (2 * i + u) * 4 + 3, vL16, t, (i % 4) * 1024, self.sc))
            return g
        e.wait_tag('blk%d' % B0); e.wait_tag('blk%d' % (B0 + 1))
        self.poll(sT0)
        e('s_barrier')
        self.stamp(8)
        NPRE = self.o.get('b_npre', 10)
        for i in range(NPRE):
            for u in range(2): e.extend(tok(i, u))
        items = [(10 * i, 0, tok(i, 0) + tok(i, 1)) for i in range(NPRE, 10)]
        for k, b in enumerate(self.C_tail): items.append((5000 + b, 20 * (k + 1), self.flat(self.dma_ops(b))))
        vs = self.vm_stream(items)
        self.gemm_bd(B0, 10, vs, {}, Stream(self.bd_unpack(), 60))
        self.stamp(9)
        def final():
            e('s_mul_i32 s%d, s%d, 20480\ns_add_u32 s%d, s%d, s%d\ns_add_u32 s%d, s%d, 0x%x' % (sT0, sTTK, sT0, sT0, sLOFF, sT0, sT0, XC))
            e('buffer_store_dwordx4 v[%d:%d], v%d, s[4:7], s%d offen sc1' % (XR, XR + 3, vX0, sT0))
            e('buffer_store_dwordx4 v[%d:%d], v%d, s[4:7], s%d offen sc1' % (XR + 4, XR + 7, vX1, sT0))
            e('buffer_store_dwordx2 v[%d:%d], v%d, s[4:7], s%d offen sc1' % (XR + 8, XR + 9, vX2, sT0))
            self.bd_stats(SC, False)
            self.cnt(sT1, CNT_XC, sRB)
            self.signal(sT1, self.C_ack)
            self.stamp(10)
            if self.o.get('ampre', 1): self.am_c()
            self.side_dma(self.C_side)
        self.bd_epilogue(B0 + 4, final)
        return self.maybe_stop('b')
    def gelu_ops(self, accset, u, c0, c1, vVE, HP, t):
        L = []
        G = [accset + (p * 2 + u) * 4 + c for p in range(2) for c in range(4)]
        U = [accset + ((2 + p) * 2 + u) * 4 + c for p in range(2) for c in range(4)]
        g = [t + i for i in range(8)]; w = [t + 8 + i for i in range(8)]
        for h in range(2):
            R = range(4 * h, 4 * h + 4)
            for i in R: L.append('v_mul_f32 v%d, v%d, v%d' % (w[i], G[i], G[i]))
            for i in R: L.append('v_fma_f32 v%d, v%d, v%d, v%d' % (w[i], w[i], c1, c0))
            for i in R: L.append('v_mul_f32 v%d, v%d, v%d' % (w[i], w[i], G[i]))
            for i in R:
                L.append('v_exp_f32 v%d, v%d' % (w[i], w[i]))
                L.append('v_mul_f32 v%d, v%d, v%d' % (g[i], G[i], U[i]))
            for i in R: L.append('v_fma_f32 v%d, v%d, v%d, v%d' % (w[i], w[i], vVE, vVE))
            for i in R: L.append('v_rcp_f32 v%d, v%d' % (w[i], w[i]))
            for i in R: L.append('v_mul_f32 v%d, v%d, v%d' % (g[i], g[i], w[i]))
            for d in (2 * h, 2 * h + 1): L.append('v_cvt_pk_bf16_f32 v%d, v%d, v%d' % (HP + d, g[2 * d], g[2 * d + 1]))
        return L
    def check_flag(self, vreg, cnt_sgpr, target=16):
        sub = Asm()
        X = self.lab('ck'); L = self.lab('ckl')
        sub('v_cmp_gt_u32 vcc, %d, v%d' % (target, vreg))
        sub('s_cbranch_vccz %s' % X)
        sub('s_cmp_lg_u32 s%d, 0' % sDEAD); sub('s_cbranch_scc1 %s' % X)
        sub('s_mov_b32 s%d, 0' % sPC)
        sub.label(L)
        sub('buffer_load_dword v%d, v%d, s[4:7], s%d offen sc1' % (vreg, vZERO, cnt_sgpr), count=False)
        sub('s_waitcnt vmcnt(0)', count=False)
        sub('v_cmp_gt_u32 vcc, %d, v%d' % (target, vreg))
        sub('s_cbranch_vccz %s' % X)
        sub('s_add_u32 s%d, s%d, 1' % (sPC, sPC)); sub('s_cmp_lt_u32 s%d, %d' % (sPC, SPIN_LIMIT))
        sub('s_cbranch_scc1 %s' % L)
        sub('s_mov_b32 s%d, 1' % sDEAD)
        sub.label(X)
        return sub.items
    def phase_c(self):
        e = self.e; o = self.o
        ST, RS, VE, BMs, AM, GT, HP = 112, (120, 121), (122, 123), (124, 132), 136, 152, (168, 172)
        GC0, GC1 = (176, 177), (178, 179)
        k0 = -2.0 * 0.7978845608028654 * LOG2E
        self.cnt(sT0, CNT_XC, sRB)
        e('s_lshl_b32 s%d, s%d, 3\ns_lshl_b32 s%d, s%d, 1\ns_add_u32 s%d, s%d, s%d' % (sT2, sRB, sT1, sW, sT2, sT2, sT1))
        e('s_lshl_b32 s%d, s%d, 7\ns_add_u32 s%d, s%d, s%d\ns_add_u32 s%d, s%d, 0x%x' % (sT1, sT2, sT1, sT1, sLOFF, sT1, sT1, SC))
        e('s_mul_i32 s%d, s%d, 20480\ns_add_u32 s%d, s%d, s%d\ns_add_u32 s%d, s%d, 0x%x' % (sB0, sT2, sB0, sB0, sLOFF, sB0, sB0, XC))
        e('s_add_u32 s%d, s%d, 20480' % (sB1, sB0))
        e('s_mul_i32 s%d, s%d, 48\ns_add_u32 s%d, s%d, s%d\ns_lshl_b32 s%d, s%d, 10' % (sTW, sT2, sTW, sTW, sJ, sTW, sTW))
        e('s_add_u32 s%d, s%d, s%d\ns_add_u32 s%d, s%d, 0x%x' % (sTW, sTW, sLOFF, sTW, sTW, HH))
        if not o.get('ampre', 1): e('s_mul_i32 s%d, s%d, %d\ns_add_u32 s%d, s%d, 0x%x' % (sT4, sJ, 12 * KB, sT4, sT4, WCM))
        self.poll(sT0)
        e('s_barrier')
        self.stamp(11)
        def tok(s, u):
            sb = sB0 if u == 0 else sB1; t = sC1 + u
            g = []
            if s % 4 == 0: g.append('s_add_u32 s%d, s%d, %d' % (t, sb, s * 1024))
            g.append('buffer_load_dwordx4 a[%d:%d], v%d, s[4:7], s%d offen offset:%d%s' % ((2 * s + u) * 4, (2 * s + u) * 4 + 3, vL16, t, (s % 4) * 1024, self.sc))
            return g
        NPRE = o.get('c_npre', 8)
        if o.get('tt', 0): e.extend(self.touch_tok(XC))
        for s in range(NPRE):
            for u in range(2): e.extend(tok(s, u))
        stld = []
        for k in range(2):
            if k: stld.append('s_add_u32 s%d, s%d, 16384' % (sT1, sT1))
            for u in range(2):
                stld.append('buffer_load_dwordx2 v[%d:%d], v%d, s[4:7], s%d offen offset:%d sc1' % (ST + 4 * u + 2 * k, ST + 4 * u + 2 * k + 1, vSC, sT1, 128 * u))
        def amload(sg):
            pre = [] if sg == 0 else ['s_add_u32 s%d, s%d, 4096' % (sT4, sT4)]
            return pre + ['buffer_load_dwordx4 v[%d:%d], v%d, s[4:7], s%d offen offset:%d' % (AM + 4 * t, AM + 4 * t + 3, vL16, sT4, t * 1024) for t in range(4)]
        st = []
        for u in range(2):
            b = ST + 4 * u
            st += ['v_add_f32 v%d, v%d, v%d' % (b, b, b + 2), 'v_add_f32 v%d, v%d, v%d' % (b + 1, b + 1, b + 3)]
            for sw in ('v_permlane16_swap_b32', 'v_permlane32_swap_b32'):
                st += ['v_mov_b32 v%d, v%d' % (b + 2, b), 'v_mov_b32 v%d, v%d' % (b + 3, b + 1),
                       '%s v%d, v%d' % (sw, b, b + 2), '%s v%d, v%d' % (sw, b + 1, b + 3),
                       'v_add_f32 v%d, v%d, v%d' % (b, b, b + 2), 'v_add_f32 v%d, v%d, v%d' % (b + 1, b + 1, b + 3)]
            st += self.rowstat_finish(b, b + 1, RS[u], VE[u], BMs[u], b + 2)
            st += ['v_mul_f32 v%d, %s, v%d' % (GC0[u], f32bits(k0), RS[u]),
                   'v_mul_f32 v%d, v%d, v%d' % (GC1[u], RS[u], RS[u]),
                   'v_mul_f32 v%d, v%d, v%d' % (GC1[u], GC1[u], GC0[u]),
                   'v_mul_f32 v%d, %s, v%d' % (GC1[u], f32bits(0.044715), GC1[u])]
        LA = 5
        def read(n): return self.ring_read(AF + 4 * (n % 8), C0 + n // 20, (n % 20) * 1024)
        def mf(n, u):
            sg, r = n // 80, n % 80; s, tl = r // 4, r % 4
            acc = ACC + 32 * (sg & 1) + (tl * 2 + u) * 4; a = AF + 4 * (n % 8); b = (2 * s + u) * 4
            c = '0' if s == 0 else 'v[%d:%d]' % (acc, acc + 3)
            return 'v_mfma_f32_16x16x32_bf16 v[%d:%d], v[%d:%d], a[%d:%d], %s' % (acc, acc + 3, a, a + 3, b, b + 3, c)
        def mean(sg):
            L = []
            for tl in range(4):
                for u in range(2):
                    acc = ACC + 32 * (sg & 1) + (tl * 2 + u) * 4
                    L.append('v_mfma_f32_16x16x32_bf16 v[%d:%d], v[%d:%d], v[%d:%d], v[%d:%d]' % (acc, acc + 3, AM + 4 * tl, AM + 4 * tl + 3, BMs[u], BMs[u] + 3, acc, acc + 3))
            return L
        def gelu_store(sg):
            L = []
            for u in range(2):
                L += self.gelu_ops(ACC + 32 * (sg & 1), u, GC0[u], GC1[u], VE[u], HP[u], GT)
                L.append('s_add_u32 s%d, s%d, %d' % (sT5, sTW, u * 48 * 1024 + sg * 16 * 1024))
                L.append(('buffer_store_dwordx4 v[%d:%d], v%d, s[4:7], s%d offen sc1' % (HP[u], HP[u] + 3, vL16, sT5), 'h%d' % sg))
            return L
        def ix(n): return 2 * n + 8 * (n // 80)
        items = [(ix(4 * s), 0, tok(s, 0) + tok(s, 1)) for s in range(NPRE, 20)]
        for b in self.C_in:
            dl = ix(20 * (b - C0 - 1)) - (8 if (b - C0 - 1) % 4 == 0 and b > C0 + 1 else 0)
            items.append((dl, 0, self.flat(self.dma_ops(b)), dl - o.get('c_lead', 40)))
        r8 = o.get('ring8', 1)
        last_in = o.get('c_lastblk', D0 + 5 if r8 else D0 + 3)
        for b in range(C0 + 6, last_in + 1):
            free = 20 * (b - C0 - 5)
            if r8 and b >= D0: free = o.get('c_x0', 100) + 20 * (b - D0) if b < D0 + 2 else 20 * (b - 20)
            epn = b - C0 - 1
            dl = ix(20 * epn) - (8 if epn % 4 == 0 else 0) if b < D0 else 100000 + b
            early = ix(free) - (8 if free % 80 == 0 else 0)
            key = max(early, ix(76)) + (0 if b < D0 else 1)
            items.append((dl, early, self.flat(self.dma_ops(b)), key))
        if not o.get('ampre', 1): items.append((ix(60), 0, amload(0)))
        if o.get('tw', 0): items.append((ix(90), ix(84), self.touch_w('D')))
        items.append((ix(o.get('c_stdl', 44)), 0, stld))
        items.append((ix(150), ix(80), amload(1), ix(80)))
        items.append((ix(230), ix(160), amload(2), ix(160)))
        self.cnt(sT0, CNT_H, sRB, mul=384)
        FL, CKC = o.get('c_fl', 190), o.get('c_ck', 206)
        items.append((ix(CKC) - 1, ix(FL), ['buffer_load_dword v%d, v%d, s[4:7], s%d offen sc1' % (vPOLL, vZERO, sT0)], ix(FL)))
        dtoks = [self.d_tok(i, u) for i in range(8) for u in range(2)]
        for k, g in enumerate(dtoks): items.append((90000 + k, ix(CKC), g, ix(CKC) + 0.01 * k))
        vs = self.vm_stream(items)
        e.wait_tag('blk%d' % C0); e.wait_tag('blk%d' % (C0 + 1))
        e('s_barrier')
        for n in range(LA): e(read(n))
        pos = 0; cstate = {}
        for sg in range(3):
            anchors = []; pre = {}; fixed = {}
            if sg > 0: anchors += mean(sg - 1)
            for n in range(80 * sg, 80 * sg + 80):
                assert pos + len(anchors) == ix(n)
                anchors += [mf(n, 0), mf(n, 1)]
                if n + LA < 240: fixed[ix(n)] = [read(n + LA)]
                if n + 1 < 240: fixed[ix(n) + 1] = [Need('v[%d:%d]' % (AF + 4 * ((n + 1) % 8), AF + 4 * ((n + 1) % 8) + 3))]
            for ep in range(4 * sg, 4 * sg + 4):
                if ep == 0: continue
                at = ix(20 * ep) - (8 if ep % 4 == 0 else 0)
                p = [W_tag('blk%d' % (C0 + ep + 1))] if ep < 11 else []
                if ep == o.get('h0ep', 9): p.append(W_tag('h0'))
                p.append('s_barrier')
                if self.o.get('fine') == 'c': p += self.stamp_items(19 + ep - 1)
                if ep == o.get('h0ep', 9):
                    sub = Main(None, self.o); sub.nlab = self.nlab + 1000
                    sub.signal_only(sT0)
                    p += sub.e.items
                pre[at] = p
            if sg == 2:
                sub = Main(None, self.o); sub.nlab = self.nlab + 4000
                sub.d_bases()
                pre[ix(CKC)] = pre.get(ix(CKC), []) + [W_vreg(vPOLL)] + self.check_flag(vPOLL, sT0) + sub.e.items
            valu = Stream(st, ix(o.get('c_stv', 56))) if sg == 0 else Stream(gelu_store(sg - 1), pos + 10)
            e.extend(schedule(anchors, 2, pre, fixed, [vs, valu], start=pos, vm_gap=(o.get('c_gap', 4) if sg == 0 else o.get('c_gap2', 4)), state=cstate))
            e.extend([y[0] for y in valu.q])
            pos += len(anchors)
        if self.o.get('verbose'): print('c forced', cstate.get('forced'), 'left', len(vs.q))
        self.stamp(12)
        tail = mean(2) + gelu_store(2)
        left = [y[0] for y in vs.q]; del vs.q[:]
        nvm = max(1, sum(1 for x in left if is_vm(x)))
        step = max(1, (len(tail) - 8) // (nvm + 1))
        for n, x in enumerate(tail):
            if left and n % step == 0:
                while left:
                    y = left.pop(0); e.extend([y])
                    if is_vm(y): break
            e.extend([x])
        e.extend(left)
        self.cnt(sT1, CNT_H, sRB, mul=384, add=256)
        self.signal(sT1)
        self.stamp(13)
        self.c_last = last_in
        return self.maybe_stop('c')
    def d_bases(self):
        e = self.e
        for (s, tt) in ((sB0, sTTK), (sB1, sTTS)):
            e('s_mul_i32 s%d, s%d, 48\ns_add_u32 s%d, s%d, s%d\ns_lshl_b32 s%d, s%d, 10' % (s, tt, s, s, sKH, s, s))
            e('s_add_u32 s%d, s%d, s%d\ns_add_u32 s%d, s%d, 0x%x' % (s, s, sLOFF, s, s, HH))
    def d_tok(self, i, u):
        sg, jj = i // 8, i % 8
        s = sB0 if u == 0 else sB1; t = sC1 + u
        g = []
        if jj % 2 == 0: g.append('s_add_u32 s%d, s%d, %d' % (t, s, sg * 16384 + jj * 2048))
        r = self.d_reg(i, u)
        g.append('buffer_load_dwordx4 a[%d:%d], v%d, s[4:7], s%d offen offset:%d%s' % (r, r + 3, vL16, t, (jj % 2) * 2048, self.sc))
        return g
    def d_reg(self, i, u):
        return 160 + (2 * i + u) * 4 if i < 8 else (2 * (i - 8) + u) * 4
    def phase_d(self):
        e = self.e; o = self.o
        tok = self.d_tok
        self.stamp(14)
        CK = o.get('d_ck', 3)
        items = []
        r8 = o.get('ring8', 1); nfree = 8 if r8 else 6
        assert not (r8 and self.A_tail)
        for b in range(self.c_last + 1, D0 + nfree): items.append((20 * (b - D0 - 1), 0, self.flat(self.dma_ops(b)), b - 200))
        for b in range(D0 + nfree, NBLK):
            early = 20 * (b - D0 - nfree + 1)
            key = (b - 200) if early < 20 * CK else 20 * (b - D0 - 1)
            items.append((20 * (b - D0 - 1), early, self.flat(self.dma_ops(b)), key))
        items.append((20 * CK - 1, 20 * CK - o.get('d_fl', 30), ['buffer_load_dword v%d, v%d, s[4:7], s%d offen sc1' % (vPOLL, vZERO, sT1)], -1))
        items += [(10 * i, 20 * CK, tok(i, 0) + tok(i, 1)) for i in range(8, 24)]
        if o.get('tw', 0): items.append((30, 0, self.touch_w('A'), -500))
        for b in self.A_tail: items.append((5000 + b, 20 * (6 + b), self.flat(self.dma_ops(b))))
        chk = [W_vreg(vPOLL)] + self.check_flag(vPOLL, sT1)
        self.gemm_bd(D0, 24, self.vm_stream(items), {CK: chk}, Stream(self.bd_unpack(), 200), self.d_reg)
        self.stamp(17)
        def final():
            L = self.lab('d_last'); X = self.lab('d_done')
            e('s_cmp_lg_u32 s%d, 0' % sL); e('s_cbranch_scc1 %s' % L)
            e('s_lshr_b32 s%d, s%d, 1\ns_mul_i32 s%d, s%d, 40960\ns_add_u32 s%d, s%d, s%d\ns_add_u32 s%d, s%d, 0x%x' % (sT0, sTTK, sT0, sT0, sT0, sT0, sLOFF, sT0, sT0, XA + self.lstride))
            e('buffer_store_dwordx4 v[%d:%d], v%d, s[4:7], s%d offen sc1' % (XR, XR + 3, vY0, sT0))
            e('buffer_store_dwordx4 v[%d:%d], v%d, s[4:7], s%d offen sc1' % (XR + 4, XR + 7, vY1, sT0))
            e('buffer_store_dwordx2 v[%d:%d], v%d, s[4:7], s%d offen sc1' % (XR + 8, XR + 9, vY2, sT0))
            self.bd_stats(SA, True)
            self.cnt(sT1, CNT_XA, sRB, next_layer=True)
            self.signal(sT1, self.A_ack)
            self.stamp(18)
            if self.o.get('ampre_a', 0): self.am_a()
            self.side_dma(self.A_side)
            e('s_branch %s' % X)
            e.label(L)
            e('s_mul_i32 s%d, s%d, 20480\ns_mul_i32 s%d, s%d, 160\ns_add_u32 s%d, s%d, s%d' % (sT0, sTTK, sT1, sCS, sT0, sT0, sT1))
            e('buffer_store_dwordx4 v[%d:%d], v%d, s[12:15], s%d offen' % (XR, XR + 3, vR0, sT0))
            e('buffer_store_dwordx4 v[%d:%d], v%d, s[12:15], s%d offen offset:64' % (XR + 4, XR + 7, vR0, sT0))
            e('buffer_store_dwordx2 v[%d:%d], v%d, s[12:15], s%d offen' % (XR + 8, XR + 9, vR2, sT0))
            self.stamp(18)
            self.stamp_flush()
            e('s_endpgm')
            e.label(X)
        self.bd_epilogue(D0 + 11, final)
        return self.maybe_stop('d')
    def build(self):
        e = self.e
        self.prologue()
        e.label('M_LAYER')
        done = self.phase_a() or self.phase_b() or self.phase_c() or self.phase_d()
        if not done:
            e('s_add_u32 s%d, s%d, 1\ns_add_u32 s%d, s%d, 0x%x\ns_add_u32 s%d, s%d, 0x%x' % (sL, sL, sLOFF, sLOFF, self.lstride, sCNT, sCNT, CSTRIDE))
            e('s_branch M_LAYER')
        e.label('M_END')
        e('s_endpgm')
        e.label('M_CODE_END')
        if self.o.get('dual'):
            out = []; inloop = False
            for I in e.items:
                out.append(I)
                if I.kind == 'label' and I.txt.startswith('M_LAYER'): inloop = True
                if inloop and I.kind == 'vm' and I.op.startswith('buffer_store') and I.txt.endswith(' sc1') and 's[4:7]' in I.txt:
                    if self.o['dual'] == 1 and ('v%d,' % vPS1 in I.txt or 'v%d,' % vPS2 in I.txt): continue
                    J = parse(I.txt[:-4], I.tag); J.count = I.count
                    out.append(J)
            e.items = out
        return e
```

```python
from asmlib import *
from layout import *

NAME = 'hedgehog_main_kernel'
KNAME = 'interleave_layers__linear_kernel_hedgehog__geglu_ffn__prompt_kernel'
BLK = 20480
SCR = 6 * BLK
LDS_TOTAL = 163840
SPIN_LIMIT = 40000
LOG2E = 1.4426950408889634
TSOFF = 0x4000000

sW, sRB, sJ, sL, sLOFF, sW5K, sWA, sWB, sWC, sWD = range(16, 26)
sT0, sT1, sT2, sT3, sT4, sT5 = range(26, 32)
sDEAD, sPC, sPV, sCS, sTH, sTTK, sTTS, sKH = range(40, 48)
sDM = 48
sTW = 49
sB0, sB1 = 50, 51
sC1, sC2, sC3, sC4 = 52, 53, 54, 55
sEX, sEXD = 56, 57
sCNT = 3
sTA, sTB = 58, 59
vL16, vLANE, vONES, vZERO, vONE, vPOLL = 1, 2, 3, 4, 5, 6
vL16B, vK0, vK1 = 7, 8, 9
vT0, vT1, vT2, vT3, vT4 = 10, 11, 12, 13, 14
vEXR = 15
AF, ACC = 16, 48
vSA, vTW, vKA, vKB, vPS1, vPS2, vPL, vAW, vO0, vO1, vO2, vX0, vX1, vX2, vY0, vY1 = range(224, 240)
XR = 240
vY2, vR0, vR2, vST, vSC, vEXW = range(250, 256)
vAW2 = 221
vK2 = 218
vL128, vTCH = 220, 219

A0, B0, C0, D0, NBLK = 0, 8, 13, 25, 37
NSIDE_A, NSIDE_C = 4, 4

def f32bits(x):
    import struct
    return '0x%08x' % struct.unpack('<I', struct.pack('<f', x))[0]

def W_vreg(r):
    return 'v_mov_b32 v%d, v%d' % (r, r)

class Main:
    def __init__(self, stop=None, opts=None):
        self.e = Asm(); self.stop = stop; self.o = opts or {}
        self.sc = '' if self.o.get('nosc1') else ' sc1'
        self.nlab = 0
        self.lstride = 0 if self.o.get('reuse') else LSTRIDE
        self.name = KNAME if self.o.get('merged', 0) else NAME
        global NSIDE_A, NSIDE_C
        NSIDE_A = self.o.get('nsa', 2); NSIDE_C = self.o.get('nsc', 2)
        dt = self.o.get('d_tail', 0); bt = self.o.get('b_tail', 0)
        self.A_tail = list(range(1, 1 + dt))
        rest = [0] + list(range(1 + dt, 6))
        na = self.o.get('a_ack', 2)
        self.A_ack, rest = rest[:na], rest[na:]
        self.A_side, self.A_in = rest[:NSIDE_A], rest[NSIDE_A:]
        self.C_tail = list(range(C0 + 1, C0 + 1 + bt))
        rest = list(range(C0 + 1 + bt, C0 + 6))
        nc = self.o.get('c_ack', 2)
        self.C_ack, rest = rest[:nc], rest[nc:]
        self.C_side, self.C_in = rest[:NSIDE_C], rest[NSIDE_C:]
    def lab(self, p):
        self.nlab += 1
        return 'M_%s_%d' % (p, self.nlab)
    def slot_of(self, b):
        if b >= D0 and self.o.get('ring8', 1):
            return {25: 6, 26: 7, 27: 1, 28: 2, 29: 3, 30: 4, 31: 5, 32: 0, 33: 6, 34: 7, 35: 1, 36: 2}[b]
        return b % 6
    def blk_src(self, b):
        if b < B0: return sWA, (b - A0) * BLK
        if b < C0: return sWB, (b - B0) * BLK
        if b < D0: return sWC, (b - C0) * BLK
        return sWD, (b - D0) * BLK
    def dma_ops(self, b, tag=None):
        nb = b % NBLK if b >= NBLK else b
        base, off = self.blk_src(nb)
        slot = self.slot_of(nb)
        tag = tag or 'blk%d' % nb
        g = []
        first = ['s_add_u32 m0, s%d, %d' % (sW5K, slot * BLK), 's_add_u32 s%d, s%d, %d' % (sDM, base, off),
                 ('buffer_load_dwordx4 v%d, s[4:7], s%d offen lds' % (vL16, sDM), tag)]
        g.append(first)
        for k in range(1, 4):
            g.append([('buffer_load_dwordx4 v%d, s[4:7], s%d offen offset:%d lds' % (vL16, sDM, k * 1024), tag)])
        g.append(['s_add_u32 m0, s%d, %d' % (sW5K, slot * BLK + 4096), 's_add_u32 s%d, s%d, %d' % (sDM, base, off + 4096),
                  ('buffer_load_dwordx4 v%d, s[4:7], s%d offen lds' % (vL16, sDM), tag)])
        return g
    def am_a(self):
        AM = 128; e = self.e
        e('s_lshl_b32 s%d, s%d, 12\ns_add_u32 s%d, s%d, 0x%x' % (sT2, sJ, sT2, sT2, WAM))
        for t in range(4): e('buffer_load_dwordx4 v[%d:%d], v%d, s[4:7], s%d offen offset:%d' % (AM + 4 * t, AM + 4 * t + 3, vL16, sT2, t * 1024))
    def am_c(self):
        AM = 136; e = self.e
        e('s_mul_i32 s%d, s%d, %d\ns_add_u32 s%d, s%d, 0x%x' % (sT4, sJ, 12 * KB, sT4, sT4, WCM))
        for t in range(4): e('buffer_load_dwordx4 v[%d:%d], v%d, s[4:7], s%d offen offset:%d' % (AM + 4 * t, AM + 4 * t + 3, vL16, sT4, t * 1024))
    def side_dma(self, blocks):
        e = self.e
        L = self.lab('side')
        e('s_cmp_eq_u32 s%d, 0' % sW); e('s_cbranch_scc1 %s' % L)
        for b in blocks:
            base, off = self.blk_src(b); slot = self.slot_of(b); tag = 'blk%d' % b
            ld = 'buffer_load_dwordx4 v%d, s[4:7], s%d offen%%s lds' % (vL16, sDM)
            e('s_add_u32 m0, s%d, %d' % (sW5K, slot * BLK)); e('s_add_u32 s%d, s%d, %d' % (sDM, base, off))
            for k in range(4): e.side(ld % (' offset:%d' % (k * 1024) if k else ''), tag)
            e('s_add_u32 m0, s%d, %d' % (sW5K, slot * BLK + 4096)); e('s_add_u32 s%d, s%d, %d' % (sDM, base, off + 4096))
            e.side(ld % '', tag)
            e('s_add_u32 m0, s%d, %d' % (sEX, slot * BLK)); e('s_add_u32 s%d, s%d, %d' % (sDM, base, off))
            e('s_add_u32 s%d, s%d, s%d' % (sDM, sDM, sEXD))
            e.side(ld % '', tag); e.side(ld % ' offset:1024', tag)
        e.label(L)
    def dma_items(self, b, earliest):
        out = []
        for g in self.dma_ops(b):
            for x in g: out.append((x, earliest))
        return out
    def touch(self, base_expr, nlines_wave, ninstr=1, sc=''):
        L = list(base_expr)
        L.append('s_mul_i32 s%d, s%d, %d' % (sTB, sW, nlines_wave * ninstr * 128))
        L.append('s_add_u32 s%d, s%d, s%d' % (sTA, sTA, sTB))
        if nlines_wave < 64:
            L.append('v_mov_b32 v%d, 0x%x' % (vT0, OOB))
            L.append('v_cmp_gt_u32 vcc, %d, v%d' % (nlines_wave, vLANE))
            L.append('v_cndmask_b32 v%d, v%d, v%d, vcc' % (vT0, vT0, vL128))
            va = vT0
        else: va = vL128
        for k in range(ninstr):
            if k: L.append('s_add_u32 s%d, s%d, %d' % (sTA, sTA, nlines_wave * 128))
            I = parse('buffer_load_dword v%d, v%d, s[4:7], s%d offen%s' % (vTCH, va, sTA, sc)); I.wr = set()
            L.append(I)
        return L
    def touch_w(self, which):
        if which == 'A':
            pre = ['s_lshr_b32 s%d, s%d, 2' % (sTA, sRB), 's_mul_i32 s%d, s%d, %d' % (sTA, sTA, 40 * KB), 's_add_u32 s%d, s%d, s%d' % (sTA, sTA, sWA), 's_sub_u32 s%d, s%d, s%d' % (sTA, sTA, sW5K)]
            return self.touch(pre, 40, 2)
        if which == 'C':
            pre = ['s_lshr_b32 s%d, s%d, 2' % (sTA, sRB), 's_mul_i32 s%d, s%d, %d' % (sTA, sTA, 60 * KB), 's_add_u32 s%d, s%d, s%d' % (sTA, sTA, sWC), 's_sub_u32 s%d, s%d, s%d' % (sTA, sTA, sW5K)]
            return self.touch(pre, 60, 2)
        idx = ['s_lshr_b32 s%d, s%d, 2' % (sTA, sRB), 's_lshl_b32 s%d, s%d, 1' % (sTA, sTA), 's_add_u32 s%d, s%d, s%d' % (sTA, sTA, sTH)]
        if which == 'B':
            return self.touch(idx + ['s_mul_i32 s%d, s%d, 12800' % (sTA, sTA), 's_add_u32 s%d, s%d, s%d' % (sTA, sTA, sWB), 's_sub_u32 s%d, s%d, s%d' % (sTA, sTA, sW5K)], 25, 1)
        if which == 'D':
            return self.touch(idx + ['s_mul_i32 s%d, s%d, 30720' % (sTA, sTA), 's_add_u32 s%d, s%d, s%d' % (sTA, sTA, sWD), 's_sub_u32 s%d, s%d, s%d' % (sTA, sTA, sW5K)], 60, 1)
    def touch_tok(self, base_off):
        pre = ['s_mul_i32 s%d, s%d, %d' % (sTA, sRB, 160 * KB), 's_lshr_b32 s%d, s%d, 1' % (sTB, sJ), 's_mul_i32 s%d, s%d, %d' % (sTB, sTB, 20 * KB),
               's_add_u32 s%d, s%d, s%d' % (sTA, sTA, sTB), 's_add_u32 s%d, s%d, s%d' % (sTA, sTA, sLOFF), 's_add_u32 s%d, s%d, 0x%x' % (sTA, sTA, base_off)]
        return self.touch(pre, 40, 1, ' sc1')
    def freed_by(self, c):
        if c <= NBLK - 7: return c + 6
        if c < NBLK - 1: return NBLK + (c - (NBLK - 7))
        return NBLK + 0
    def ring_read(self, dst, blk, off, kh=False):
        slot = self.slot_of(blk)
        base = (vK0 if kh else vL16) if slot < 3 else ((vK1 if kh else vL16B) if slot < 6 else vK2)
        assert slot < 6 or kh
        return 'ds_read_b128 v[%d:%d], v%d offset:%d' % (dst, dst + 3, base, (slot % 3) * BLK + off)
    def emit_next_layer_dma(self, b):
        e = self.e
        L = self.lab('nl')
        e('s_cmp_lg_u32 s%d, 0' % sL); e('s_cbranch_scc1 %s' % L)
        for g in self.dma_ops(b):
            for x in g:
                if isinstance(x, tuple): e(x[0], count=False)
                else: e(x)
        e.label(L)
    def signal(self, cnt_off_sgpr, ack=()):
        e = self.e
        if ack:
            e.vm_marker('pub')
            for b in ack:
                for g in self.dma_ops(b): e.extend(g)
            e.wait_tag('pub'); e.wait_lgkm0()
        else:
            e.wait_all()
        e('s_barrier')
        self.signal_only(cnt_off_sgpr)
    def signal_only(self, cnt_off_sgpr):
        e = self.e
        L = self.lab('sig')
        e('s_cmp_lg_u32 s%d, 0' % sW); e('s_cbranch_scc1 %s' % L)
        e('s_mov_b64 exec, 1')
        e('buffer_atomic_add v%d, v%d, s[4:7], s%d offen sc1' % (vONE, vZERO, cnt_off_sgpr), count=False)
        e('s_mov_b64 exec, -1')
        e.label(L)
    def poll(self, cnt_off_sgpr, n=1, target=16, srd=4, stride=128):
        e = self.e
        L = self.lab('poll'); X = self.lab('got')
        e('s_cmp_lg_u32 s%d, 0' % sW); e('s_cbranch_scc1 %s' % X)
        e('s_cmp_lg_u32 s%d, 0' % sDEAD); e('s_cbranch_scc1 %s' % X)
        e('s_mov_b32 s%d, 0' % sPC)
        if n > 1:
            e('v_min_u32 v%d, %d, v%d' % (vT0, n - 1, vLANE)); e('v_mul_u32_u24 v%d, %d, v%d' % (vT0, stride, vT0))
        e.label(L)
        e('buffer_load_dword v%d, v%d, s[%d:%d], s%d offen sc1' % (vPOLL, vT0 if n > 1 else vZERO, srd, srd + 3, cnt_off_sgpr), count=False)
        e('s_waitcnt vmcnt(0)', count=False)
        e('v_cmp_gt_u32 vcc, %d, v%d' % (target, vPOLL))
        e('s_cbranch_vccz %s' % X)
        if self.o.get('psleep'): e('s_sleep %d' % self.o['psleep'])
        e('s_add_u32 s%d, s%d, 1' % (sPC, sPC)); e('s_cmp_lt_u32 s%d, %d' % (sPC, SPIN_LIMIT))
        e('s_cbranch_scc1 %s' % L)
        e('s_mov_b32 s%d, 1' % sDEAD)
        e.label(X)
    def cnt(self, dst, which, idx_sgpr, mul=128, add=0, next_layer=False):
        e = self.e
        e('s_mul_i32 s%d, s%d, %d' % (dst, idx_sgpr, mul))
        e('s_add_u32 s%d, s%d, s%d' % (dst, dst, sCNT))
        e('s_add_u32 s%d, s%d, 0x%x' % (dst, dst, which + add + (CSTRIDE if next_layer else 0)))
    def prologue(self):
        if self.o.get('merged', 0): return self.prologue_merged()
        e = self.e
        e.directive('.text\n.globl %s\n.p2align 8\n.type %s,@function' % (self.name, self.name))
        e.label(self.name)
        e('s_cmp_ge_u32 s2, 256'); e('s_cbranch_scc1 M_END')
        e('s_load_dwordx2 s[32:33], s[0:1], 0')
        e('s_load_dwordx2 s[34:35], s[0:1], 64')
        e('s_load_dwordx2 s[36:37], s[0:1], 80')
        self.entry_stamp()
        self.pro_scalars(); self.pro_lanes()
        e('s_waitcnt lgkmcnt(0)')
        self.mk_srd(4, 36, WS_BYTES)
        self.pro_tail(32, 34)
    def prologue_merged(self):
        import gen_prep as P
        e = self.e
        e.directive('.text\n.globl %s\n.p2align 8\n.type %s,@function' % (self.name, self.name))
        e.label(self.name)
        e('s_cmp_ge_u32 s2, 256'); e('s_cbranch_scc1 M_END')
        e('s_load_dwordx8 s[64:71], s[0:1], 0')
        e('s_load_dwordx4 s[72:75], s[0:1], 40')
        e('s_load_dwordx2 s[76:77], s[0:1], 56')
        e('s_load_dwordx2 s[78:79], s[0:1], 64')
        e('s_load_dwordx4 s[80:83], s[0:1], 72')
        self.entry_stamp()
        self.pro_scalars()
        e('s_waitcnt lgkmcnt(0)')
        self.mk_srd(4, 82, WS_BYTES)
        e('s_add_u32 s0, s2, 352\ns_sub_u32 s26, s2, 64\ns_cmp_ge_u32 s2, 160\ns_cselect_b32 s0, s26, s0\ns_cmp_lt_u32 s2, 96\ns_cselect_b32 s0, s2, s0')
        e('s_add_u32 s1, s2, 192')
        Lz = self.lab('nz')
        e('s_cmp_ge_u32 s2, 16'); e('s_cbranch_scc1 %s' % Lz)
        e('s_cmp_lg_u32 s%d, 0' % sW); e('s_cbranch_scc1 %s' % Lz)
        for k in range(4): e('v_mov_b32 v%d, 0' % (120 + k))
        e('s_lshl_b32 s26, s2, 11')
        e('buffer_store_dwordx4 v[120:123], v%d, s[4:7], s26 offen sc1' % vL16, count=False)
        e('buffer_store_dwordx4 v[120:123], v%d, s[4:7], s26 offen offset:1024 sc1' % vL16, count=False)
        e.label(Lz)
        r1 = P.Ren(e, 1, 0); r2 = P.Ren(e, 2, 1)
        L1, L2 = 0, 32768
        def dispatch(cases, sreg, tagp):
            end = self.lab(tagp)
            labs = [self.lab(tagp) for _ in cases]
            for (ub, _), lb in list(zip(cases, labs))[:-1]:
                e('s_cmp_lt_u32 s%d, %d' % (sreg, ub)); e('s_cbranch_scc1 %s' % lb)
            e('s_branch %s' % labs[-1])
            for (ub, fn), lb in zip(cases, labs):
                e.label(lb); e.reset_state(); fn()
                e.wait_lgkm0()
                e('s_branch %s' % end)
            e.label(end); e.reset_state()
        dispatch([(96, lambda: P.wa_issue(r1)), (288, lambda: P.wc_issue(r1, L1)), (None, lambda: P.x_issue(r1))], 0, 'i1')
        dispatch([(288, lambda: P.wc_issue(r2, L2)), (416, lambda: P.wd_issue(r2, L2)), (None, lambda: P.wb_issue(r2, L2))], 1, 'i2')
        if self.o.get('codepf', 1):
            Lp = self.lab('npf')
            e('s_cmp_ge_u32 s2, 64'); e('s_cbranch_scc1 %s' % Lp)
            e('s_getpc_b64 s[84:85]')
            e.label('M_PC')
            e('s_add_u32 s84, s84, (M_LAYER-M_PC)\ns_addc_u32 s85, s85, 0')
            e('v_lshlrev_b32 v124, 7, v0\nv_mov_b32 v125, (M_CODE_END-M_LAYER-4)\nv_add_u32 v126, 0x8000, v124')
            e('v_min_u32 v124, v124, v125\nv_min_u32 v126, v126, v125\nv_and_b32 v124, -4, v124\nv_and_b32 v126, -4, v126')
            e('global_load_dword v127, v124, s[84:85]', count=False)
            e('global_load_dword v127, v126, s[84:85]', count=False)
            e.label(Lp)
        self.mk_srd(84, 80, 256)
        Lf = self.lab('nf'); Lv = self.lab('nfv'); Lw = self.lab('nfw')
        e('s_cmp_ge_u32 s2, 16'); e('s_cbranch_scc1 %s' % Lf)
        e('s_cmp_lg_u32 s%d, 0' % sW); e('s_cbranch_scc1 %s' % Lf)
        npf = 2 if self.o.get('codepf', 1) else 0
        e('s_cmp_eq_u32 s31, 1'); e('s_cbranch_scc1 %s' % Lv)
        e('s_waitcnt vmcnt(%d)' % (22 + 5 + npf), count=False); e('s_branch %s' % Lw)
        e.label(Lv)
        e('s_waitcnt vmcnt(%d)' % (10 + 5 + npf), count=False)
        e.label(Lw)
        e('s_lshl_b32 s62, s2, 2\ns_mov_b64 exec, 1')
        e('buffer_store_dword v%d, v%d, s[84:87], s62 offen sc1' % (vONE, vZERO), count=False)
        e('s_mov_b64 exec, -1')
        self.stamp(27)
        e.label(Lf)
        e('s_waitcnt vmcnt(4)', count=False)
        self.stamp(19)
        dispatch([(96, lambda: P.wa_process(r1)), (288, lambda: P.wc_process(r1, L1)), (None, lambda: P.x_process(r1))], 0, 'p1')
        self.stamp(20)
        Lq = self.lab('zq')
        e('s_cmp_lg_u32 s%d, 0' % sW); e('s_cbranch_scc1 %s' % Lq)
        e('v_min_u32 v126, 15, v%d\nv_lshlrev_b32 v126, 2, v126' % vLANE)
        e('buffer_load_dword v%d, v126, s[84:87], 0 offen sc1' % vPOLL, count=False)
        e.label(Lq)
        e('s_waitcnt vmcnt(0) lgkmcnt(0)', count=False)
        e('s_barrier')
        self.stamp(26)
        def arrive(off, below=None):
            La = self.lab('arr')
            e('s_cmp_lg_u32 s%d, 0' % sW); e('s_cbranch_scc1 %s' % La)
            if below is not None:
                e('s_cmp_ge_u32 s2, %d' % below); e('s_cbranch_scc1 %s' % La)
            e('s_and_b32 s62, s2, 15\ns_lshl_b32 s62, s62, 7\ns_add_u32 s62, s62, 0x%x\ns_mov_b64 exec, 1' % off)
            e('buffer_atomic_add v%d, v%d, s[4:7], s62 offen sc1' % (vONE, vZERO), count=False)
            e('s_mov_b64 exec, -1')
            e.label(La)
        Lc = self.lab('zc'); Ls = self.lab('zcs')
        e('s_cmp_lg_u32 s%d, 0' % sW); e('s_cbranch_scc1 %s' % Lc)
        e('s_mov_b32 s%d, 0' % sPC)
        e.label(Ls)
        e('v_cmp_gt_u32 vcc, 1, v%d' % vPOLL)
        e('s_cbranch_vccz %s' % Lc)
        if self.o.get('zsleep'): e('s_sleep %d' % self.o['zsleep'])
        e('buffer_load_dword v%d, v126, s[84:87], 0 offen sc1' % vPOLL, count=False)
        e('s_waitcnt vmcnt(0)', count=False)
        e('s_add_u32 s%d, s%d, 1' % (sPC, sPC)); e('s_cmp_lt_u32 s%d, %d' % (sPC, SPIN_LIMIT)); e('s_cbranch_scc1 %s' % Ls)
        e('s_mov_b32 s%d, 1' % sDEAD)
        e.label(Lc)
        arrive(CNT_CRIT, 160)
        self.stamp(21)
        dispatch([(288, lambda: P.wc_process(r2, L2)), (416, lambda: P.wd_process(r2, L2)), (None, lambda: P.wb_process(r2, L2))], 1, 'p2')
        self.stamp(22)
        e('s_waitcnt vmcnt(0) lgkmcnt(0)', count=False)
        e('s_barrier')
        arrive(CNT_REST)
        self.stamp(25)
        self.pro_lanes()
        e('s_mov_b32 s%d, 0x%x' % (sT0, CNT_CRIT))
        self.stamp(23)
        self.poll(sT0, n=16, target=10)
        e('s_barrier')
        self.stamp(24)
        self.pro_tail(64, 78)
    def entry_stamp(self):
        if self.o.get('stamps'):
            self.e(('s_memtime' if self.o.get('cyc') else 's_memrealtime') + ' s[60:61]\ns_waitcnt lgkmcnt(0)\nv_mov_b32 v223, s60')
    def mk_srd(self, d, lo, n):
        self.e('s_mov_b32 s%d, s%d\ns_mov_b32 s%d, s%d\ns_mov_b32 s%d, 0x%x\ns_mov_b32 s%d, 0x20000' % (d, lo, d + 1, lo + 1, d + 2, n, d + 3))
    def pro_scalars(self):
        e = self.e
        e('v_lshrrev_b32 v10, 6, v0'); e('v_and_b32 v%d, 63, v0' % vLANE)
        e('v_readfirstlane_b32 s%d, v10' % sW)
        e('v_lshlrev_b32 v%d, 4, v%d' % (vL16, vLANE))
        mp = self.o.get('map', 0)
        if mp == 0:
            e('s_and_b32 s%d, s2, 3\ns_lshr_b32 s26, s2, 6\ns_lshl_b32 s26, s26, 2\ns_or_b32 s%d, s%d, s26' % (sRB, sRB, sRB))
            e('s_lshr_b32 s%d, s2, 2\ns_and_b32 s%d, s%d, 15' % (sJ, sJ, sJ))
        elif mp == 1:
            e('s_and_b32 s%d, s2, 15\ns_lshr_b32 s%d, s2, 4' % (sRB, sJ))
        elif mp == 2:
            e('s_and_b32 s%d, s2, 1\ns_lshr_b32 s26, s2, 5\ns_lshl_b32 s26, s26, 1\ns_or_b32 s%d, s%d, s26' % (sRB, sRB, sRB))
            e('s_lshr_b32 s%d, s2, 1\ns_and_b32 s%d, s%d, 15' % (sJ, sJ, sJ))
        if self.o.get('thmap', 1):
            e('s_lshr_b32 s%d, s%d, 1\ns_and_b32 s%d, s%d, 1' % (sCS, sJ, sTH, sJ))
        else:
            e('s_and_b32 s%d, s%d, 7\ns_lshr_b32 s%d, s%d, 3' % (sCS, sJ, sTH, sJ))
        e('s_mul_i32 s%d, s%d, 5120' % (sW5K, sW))
        e('s_lshr_b32 s%d, s%d, 1' % (sKH, sW))
        for (s, idx, stride, base) in ((sWA, sJ, 160 * KB, WA), (sWB, sCS, 100 * KB, WB), (sWC, sJ, 240 * KB, WC), (sWD, sCS, 240 * KB, WD)):
            if self.o.get('wsame'): stride = 0
            e('s_mul_i32 s%d, s%d, %d\ns_add_u32 s%d, s%d, s%d\ns_add_u32 s%d, s%d, 0x%x' % (s, idx, stride, s, s, sW5K, s, s, base))
        e('s_lshl_b32 s%d, s%d, 3\ns_lshl_b32 s26, s%d, 2\ns_add_u32 s%d, s%d, s26' % (sTTK, sRB, sTH, sTTK, sTTK))
        e('s_and_b32 s26, s%d, 1\ns_lshl_b32 s26, s26, 1\ns_add_u32 s%d, s%d, s26\ns_add_u32 s%d, s%d, s%d' % (sW, sTTK, sTTK, sTTK, sTTK, sKH))
        e('s_xor_b32 s%d, s%d, 1' % (sTTS, sTTK))
        e('s_mov_b32 s%d, 0\ns_mov_b32 s%d, 0\ns_mov_b32 s%d, 0x%x' % (sDEAD, sL, sLOFF, LBASE))
        e('s_mov_b32 s%d, 0x%x' % (sCNT, CNT0))
        e('s_sub_u32 s%d, s%d, 1\ns_lshl_b32 s%d, s%d, 11\ns_sub_u32 s%d, s%d, s%d' % (sEX, sW, sEX, sEX, sEXD, sEX, sW5K))
        e('v_mov_b32 v%d, 0x3f803f80\nv_mov_b32 v%d, 0\nv_mov_b32 v%d, 1' % (vONES, vZERO, vONE))
    def pro_lanes(self):
        e = self.e
        e('v_add_u32 v%d, %d, v%d' % (vL16B, 3 * BLK, vL16))
        e('v_lshlrev_b32 v%d, 7, v%d' % (vL128, vLANE))
        e('s_mul_i32 s26, s%d, 5120\nv_add_u32 v%d, s26, v%d\nv_add_u32 v%d, %d, v%d' % (sKH, vK0, vL16, vK1, 3 * BLK, vK0))
        e('v_add_u32 v%d, %d, v%d' % (vK2, 6 * BLK, vK0))
        t32, hi, t16, q = 100, 101, 102, 103
        e('v_and_b32 v%d, 31, v%d\nv_lshrrev_b32 v%d, 5, v%d' % (t32, vLANE, hi, vLANE))
        e('v_and_b32 v%d, 15, v%d\nv_lshrrev_b32 v%d, 4, v%d' % (t16, vLANE, q, vLANE))
        e('v_mov_b32 v104, 0x%x' % OOB)
        e('v_lshlrev_b32 v%d, 3, v%d\nv_lshl_add_u32 v%d, v%d, 16, v%d' % (vSA, t32, vSA, hi, vSA))
        e('s_lshl_b32 s26, s%d, 5\nv_add_u32 v105, s26, v%d\nv_mul_u32_u24 v105, 144, v105' % (sW, t32))
        e('v_mul_u32_u24 v106, 18432, v%d\nv_add_u32 v105, v105, v106\nv_add_u32 v%d, 0x%x, v105' % (hi, vTW, SCR))
        e('v_lshrrev_b32 v105, 1, v%d\nv_bfe_u32 v106, v%d, 2, 2\nv_lshl_add_u32 v105, v105, 3, v106\nv_mul_u32_u24 v105, 144, v105' % (q, vLANE))
        e('v_and_b32 v106, 1, v%d\nv_lshlrev_b32 v106, 5, v106\nv_and_b32 v107, 3, v%d\nv_lshl_add_u32 v106, v107, 3, v106\nv_add_u32 v105, v105, v106' % (q, vLANE))
        e('s_lshr_b32 s26, s%d, 1\ns_mul_i32 s26, s26, 18432\ns_add_u32 s26, s26, 0x%x' % (sW, SCR))
        e('s_and_b32 s27, s%d, 1\ns_mul_i32 s28, s27, 40\ns_add_u32 s28, s28, s26\ns_add_u32 s29, s26, 80' % sW)
        e('v_add_u32 v%d, s28, v105\nv_add_u32 v%d, s29, v105' % (vKA, vKB))
        e('s_lshl_b32 s26, s%d, 10' % sW)
        e('v_mul_u32_u24 v105, 24, v%d\nv_add_u32 v105, v105, v%d\nv_lshlrev_b32 v105, 4, v105\nv_add_u32 v105, s26, v105' % (hi, t32))
        e('v_cmp_gt_u32 vcc, 24, v%d\nv_cndmask_b32 v%d, v104, v105, vcc' % (t32, vPS1))
        e('v_lshlrev_b32 v105, 3, v%d\nv_add_u32 v105, s26, v105\nv_add_u32 v105, 768, v105' % t32)
        e('v_cmp_eq_u32 vcc, 0, v%d\nv_cndmask_b32 v%d, v104, v105, vcc' % (hi, vPS2))
        e('v_mov_b32 v106, 84\nv_cmp_le_u32 s[30:31], v106, v0\nv_cndmask_b32 v106, 0, 1, s[30:31]')
        e('v_mul_u32_u24 v107, 84, v106\nv_sub_u32 v107, v0, v107')
        e('v_mul_u32_u24 v108, 391, v107\nv_lshrrev_b32 v108, 13, v108')
        e('v_mul_u32_u24 v109, 21, v108\nv_sub_u32 v109, v107, v109')
        e('v_subrev_u32 v110, 168, v0\nv_mul_u32_u24 v111, 391, v110\nv_lshrrev_b32 v111, 13, v111\nv_and_b32 v111, 3, v111')
        e('v_mul_u32_u24 v96, 21, v111\nv_sub_u32 v96, v110, v96')
        e('v_cmp_gt_u32 vcc, 168, v0')
        e('v_lshrrev_b32 v97, 1, v108\nv_lshl_add_u32 v97, v106, 1, v97\nv_lshlrev_b32 v97, 10, v97')
        e('v_and_b32 v98, 1, v108\nv_mul_u32_u24 v98, 24, v98\nv_add_u32 v98, v98, v109\nv_lshl_add_u32 v97, v98, 4, v97')
        e('v_lshlrev_b32 v98, 10, v111\nv_lshl_add_u32 v98, v96, 3, v98\nv_add_u32 v98, 768, v98')
        e('v_cndmask_b32 v97, v98, v97, vcc')
        e('v_mov_b32 v99, 252\nv_cmp_gt_u32 s[30:31], v99, v0\nv_cndmask_b32 v%d, v104, v97, s[30:31]' % vPL)
        e('v_lshrrev_b32 v97, 1, v111\nv_cndmask_b32 v106, v97, v106, vcc')
        e('v_cndmask_b32 v108, 4, v108, vcc\nv_cndmask_b32 v109, v96, v109, vcc')
        e('v_lshrrev_b32 v110, 4, v109\nv_mul_u32_u24 v110, 5, v110\nv_add_u32 v110, v110, v108')
        e('v_and_b32 v109, 15, v109\nv_lshrrev_b32 v97, 2, v109\nv_lshlrev_b32 v97, 3, v97\nv_and_b32 v109, 3, v109\nv_add_u32 v97, v97, v109')
        e('v_mul_u32_u24 v109, 36, v106\nv_add_u32 v97, v97, v109')
        e('v_lshlrev_b32 v97, 4, v97\nv_lshl_add_u32 v97, v110, 10, v97\nv_add_u32 v97, 0x%x, v97' % SCR)
        e('v_and_b32 v105, 63, v0\nv_lshlrev_b32 v105, 4, v105\nv_add_u32 v105, 0x%x, v105' % (SCR + 12288))
        e('v_cndmask_b32 v%d, v105, v97, vcc' % vAW)
        e('v_and_b32 v98, 1, v111\nv_lshl_add_u32 v97, v98, 3, v97')
        e('v_cndmask_b32 v97, v97, v105, vcc\nv_cndmask_b32 v%d, v105, v97, s[30:31]' % vAW2)
        e('s_mul_i32 s26, s%d, 5' % sJ)
        e('v_bfe_u32 v105, v%d, 4, 1\nv_mul_u32_u24 v105, 20480, v105\nv_lshl_add_u32 v105, v%d, 4, v105' % (vLANE, t16))
        for (dst, expr) in ((vO0, 0), (vO1, 1), (vO2, None)):
            if expr is not None:
                e('v_lshl_add_u32 v106, v%d, 1, s26\nv_add_u32 v106, %d, v106' % (hi, expr))
            else:
                e('v_mov_b32 v106, s26\nv_add_u32 v106, 4, v106')
            e('v_lshrrev_b32 v107, 2, v106\nv_lshl_add_u32 v107, v107, 10, v105\nv_and_b32 v106, 3, v106\nv_lshl_add_u32 v%d, v106, 8, v107' % dst)
        e('v_lshl_add_u32 v%d, v%d, 3, v%d' % (vO2, hi, vO2))
        e('s_mul_i32 s26, s%d, 10' % sCS)
        e('s_and_b32 s27, s%d, 1\ns_lshl_b32 s27, s27, 8' % sTTK)
        e('v_lshlrev_b32 v105, 4, v%d' % t16)
        for n, (dx, dy) in enumerate(((vX0, vY0), (vX1, vY1), (vX2, vY2))):
            if n < 2: e('v_add_u32 v106, s26, v%d\nv_add_u32 v106, %d, v106' % (q, 4 * n))
            else: e('v_lshrrev_b32 v106, 1, v%d\nv_add_u32 v106, s26, v106\nv_add_u32 v106, 8, v106' % q)
            e('v_lshrrev_b32 v107, 2, v106\nv_lshl_add_u32 v107, v107, 10, v105\nv_and_b32 v108, 3, v106\nv_lshl_add_u32 v%d, v108, 8, v107' % dx)
            e('v_lshrrev_b32 v107, 1, v106\nv_lshl_add_u32 v107, v107, 10, v105\nv_and_b32 v108, 1, v106\nv_lshl_add_u32 v107, v108, 9, v107\nv_add_u32 v%d, s27, v107' % dy)
        e('v_and_b32 v106, 1, v%d\nv_lshl_add_u32 v%d, v106, 3, v%d\nv_lshl_add_u32 v%d, v106, 3, v%d' % (q, vX2, vX2, vY2, vY2))
        e('v_mul_u32_u24 v105, 1280, v%d\nv_lshl_add_u32 v%d, v%d, 4, v105\nv_lshl_add_u32 v%d, v%d, 3, v105\nv_add_u32 v%d, 128, v%d' % (t16, vR0, q, vR2, q, vR2, vR2))
        e('v_lshlrev_b32 v105, 3, v%d\nv_cmp_eq_u32 vcc, 0, v%d\nv_cndmask_b32 v%d, v104, v105, vcc\nv_lshl_add_u32 v%d, v%d, 15, v105' % (t16, q, vST, vSC, q))
        e('s_add_u32 s26, s%d, 0x%x\nv_add_u32 v%d, s26, v%d' % (sW5K, SCR, vEXW, vL16))
        e('s_xor_b32 s27, s%d, 2\ns_mul_i32 s27, s27, 5120\ns_add_u32 s27, s27, 0x%x\nv_add_u32 v%d, s27, v%d' % (sW, SCR, vEXR, vL16))
    def pro_tail(self, xlo, olo):
        e = self.e
        self.mk_srd(8, xlo, T * 1280); self.mk_srd(12, olo, T * 1280)
        if self.o.get('ampre_a', 0): self.am_a()
        for b in self.A_ack:
            for g in self.dma_ops(b): e.extend(g)
        self.side_dma(self.A_side[:1])
        for b in self.A_tail:
            for g in self.dma_ops(b):
                for x in g:
                    if isinstance(x, tuple): e(x[0], count=False)
                    else: e(x)
        self.side_dma(self.A_side[1:])
        if not self.o.get('xrlate', 1): self.xr_load()
    def xr_load(self):
        e = self.e
        e('s_mul_i32 s29, s%d, 20480\ns_mul_i32 s31, s%d, 160\ns_add_u32 s29, s29, s31' % (sTTK, sCS))
        e('buffer_load_dwordx4 v[%d:%d], v%d, s[8:11], s29 offen' % (XR, XR + 3, vR0), count=False)
        e('buffer_load_dwordx4 v[%d:%d], v%d, s[8:11], s29 offen offset:64' % (XR + 4, XR + 7, vR0), count=False)
        e('buffer_load_dwordx2 v[%d:%d], v%d, s[8:11], s29 offen' % (XR + 8, XR + 9, vR2), count=False)
    def rowstat_finish(self, S, Q, vRS, vVE, BM, tmp):
        L = []
        L.append('v_mul_f32 v%d, %s, v%d' % (S, f32bits(1.0 / 640), S))
        L.append('v_mul_f32 v%d, %s, v%d' % (Q, f32bits(1.0 / 640), Q))
        L.append('v_fma_f32 v%d, -v%d, v%d, v%d' % (Q, S, S, Q))
        L.append('v_max_f32 v%d, 0, v%d' % (Q, Q))
        L.append('v_add_f32 v%d, %s, v%d' % (vVE, f32bits(1e-5), Q))
        L.append('v_rsq_f32 v%d, v%d' % (vRS, vVE))
        L.append('v_cvt_pk_bf16_f32 v%d, -v%d, -v%d' % (tmp, S, S))
        L.append('v_and_b32 v%d, 0xffff0000, v%d' % (tmp, tmp))
        L.append('v_sub_f32 v%d, -v%d, v%d' % (tmp, S, tmp))
        L.append('v_cvt_pk_bf16_f32 v%d, -v%d, v%d' % (BM, S, tmp))
        for k in range(1, 4): L.append('v_mov_b32 v%d, v%d' % (BM + k, BM))
        return L
    def softmax_pair(self, X, vC, EP, EM, t):
        L = []
        mx, mn, ap, am, sp, sm = range(t, t + 6)
        L.append('v_max3_f32 v%d, v%d, v%d, v%d' % (mx, X[0], X[1], X[2]))
        L.append('v_min3_f32 v%d, v%d, v%d, v%d' % (mn, X[0], X[1], X[2]))
        for k in range(3, 19, 2):
            L.append('v_max3_f32 v%d, v%d, v%d, v%d' % (mx, mx, X[k], X[k + 1]))
            L.append('v_min3_f32 v%d, v%d, v%d, v%d' % (mn, mn, X[k], X[k + 1]))
        L.append('v_max_f32 v%d, v%d, v%d' % (mx, mx, X[19]))
        L.append('v_min_f32 v%d, v%d, v%d' % (mn, mn, X[19]))
        L.append('v_mul_f32 v%d, v%d, v%d' % (ap, vC, mx))
        L.append('v_mul_f32 v%d, v%d, v%d' % (am, vC, mn))
        for f in range(20):
            L.append('v_fma_f32 v%d, v%d, v%d, -v%d' % (EP + f, X[f], vC, ap))
            L.append('v_fma_f32 v%d, -v%d, v%d, v%d' % (EM + f, X[f], vC, am))
        for f in range(20):
            L.append('v_exp_f32 v%d, v%d' % (EP + f, EP + f))
            L.append('v_exp_f32 v%d, v%d' % (EM + f, EM + f))
        L.append('v_add_f32 v%d, v%d, v%d' % (sp, EP, EP + 1))
        L.append('v_add_f32 v%d, v%d, v%d' % (sm, EM, EM + 1))
        for f in range(2, 20):
            L.append('v_add_f32 v%d, v%d, v%d' % (sp, sp, EP + f))
            L.append('v_add_f32 v%d, v%d, v%d' % (sm, sm, EM + f))
        L.append('v_rcp_f32 v%d, v%d' % (sp, sp))
        L.append('v_rcp_f32 v%d, v%d' % (sm, sm))
        for f in range(20):
            L.append('v_mul_f32 v%d, v%d, v%d' % (EP + f, EP + f, sp))
            L.append('v_mul_f32 v%d, v%d, v%d' % (EM + f, EM + f, sm))
        return L
    def stamp(self, k):
        if not self.o.get('stamps'): return
        e = self.e
        e('v_mov_b32 v222, s%d' % sL)
        e('v_lshlrev_b32 v222, 5, v222\nv_add_u32 v222, %d, v222' % k)
        e('v_cmp_eq_u32 vcc, v222, v%d' % vLANE)
        e('s_memtime s[58:59]' if self.o.get('cyc') else 's_memrealtime s[58:59]')
        e('s_waitcnt lgkmcnt(0)')
        e('v_mov_b32 v222, s58')
        e('v_cndmask_b32 v223, v223, v222, vcc')
    def stamp_items(self, k):
        if self.o.get('stamps') != 2: return []
        sub = Main(None, self.o); sub.stamp(k)
        return sub.e.items
    def stamp_flush(self):
        if not self.o.get('stamps'): return
        e = self.e
        e('s_lshl_b32 s62, s2, 2\ns_add_u32 s62, s62, s%d\ns_lshl_b32 s62, s62, 8\ns_add_u32 s62, s62, 0x%x' % (sW, TSOFF))
        e('v_lshlrev_b32 v%d, 2, v%d' % (vT0, vLANE))
        e('buffer_store_dword v223, v%d, s[4:7], s62 offen' % vT0)
    def maybe_stop(self, name):
        if self.stop == name:
            self.e.wait_all(); self.e('s_endpgm'); return True
        return False
    def vm_stream(self, items):
        st = Stream()
        for it in sorted(items, key=lambda x: x[3] if len(x) > 3 else x[0]):
            st.add(it[2], it[1], it[0])
        return st
    def flat(self, groups):
        return [x for g in groups for x in g]
    def phase_a(self):
        e = self.e; o = self.o
        T0, T1, T2, T3 = ACC, ACC + 16, ACC + 32, ACC + 48
        ST, vRS, vVE, vC, BM, AM, EP, EM, P = 112, 120, 121, 122, 124, 128, 144, 164, 184
        self.stamp(0)
        L = self.lab('a_nopoll')
        e('s_cmp_eq_u32 s%d, 0' % sL); e('s_cbranch_scc1 %s' % L)
        self.cnt(sT0, CNT_XA, sRB)
        self.poll(sT0)
        e('s_barrier')
        e.label(L)
        self.stamp(1)
        e('s_lshl_b32 s%d, s%d, 2\ns_add_u32 s%d, s%d, s%d' % (sT0, sRB, sT0, sT0, sW))
        e('s_lshl_b32 s%d, s%d, 8\ns_add_u32 s%d, s%d, s%d\ns_add_u32 s%d, s%d, 0x%x' % (sT1, sT0, sT1, sT1, sLOFF, sT1, sT1, SA))
        e('s_mul_i32 s%d, s%d, 40960\ns_add_u32 s%d, s%d, s%d\ns_add_u32 s%d, s%d, 0x%x' % (sTW, sT0, sTW, sTW, sLOFF, sTW, sTW, XA))
        def tok(s):
            g = []
            if s % 4 == 0: g.append('s_add_u32 s%d, s%d, %d' % (sB0, sTW, s * 1024))
            g.append('buffer_load_dwordx4 a[%d:%d], v%d, s[4:7], s%d offen offset:%d%s' % (4 * s, 4 * s + 3, vL16, sB0, (s % 4) * 1024, self.sc))
            return g
        NPRE = o.get('a_npre', 14)
        if o.get('tt', 0): e.extend(self.touch_tok(XA))
        for s in range(NPRE): e.extend(tok(s))
        stld = []
        for k in range(4):
            if k: stld.append('s_add_u32 s%d, s%d, 16384' % (sT1, sT1))
            stld.append('buffer_load_dwordx2 v[%d:%d], v%d, s[4:7], s%d offen sc1' % (ST + 2 * k, ST + 2 * k + 1, vSA, sT1))
        e('s_lshl_b32 s%d, s%d, 12\ns_add_u32 s%d, s%d, 0x%x' % (sT2, sJ, sT2, sT2, WAM))
        amload = ['buffer_load_dwordx4 v[%d:%d], v%d, s[4:7], s%d offen offset:%d' % (AM + 4 * t, AM + 4 * t + 3, vL16, sT2, t * 1024) for t in range(4)]
        st = []
        st += ['v_add_f32 v%d, v%d, v%d' % (ST, ST, ST + 2), 'v_add_f32 v%d, v%d, v%d' % (ST + 1, ST + 1, ST + 3),
               'v_add_f32 v%d, v%d, v%d' % (ST + 4, ST + 4, ST + 6), 'v_add_f32 v%d, v%d, v%d' % (ST + 5, ST + 5, ST + 7),
               'v_add_f32 v%d, v%d, v%d' % (ST, ST, ST + 4), 'v_add_f32 v%d, v%d, v%d' % (ST + 1, ST + 1, ST + 5),
               'v_mov_b32 v%d, v%d' % (ST + 2, ST), 'v_mov_b32 v%d, v%d' % (ST + 3, ST + 1),
               'v_permlane32_swap_b32 v%d, v%d' % (ST, ST + 2), 'v_permlane32_swap_b32 v%d, v%d' % (ST + 1, ST + 3),
               'v_add_f32 v%d, v%d, v%d' % (ST, ST, ST + 2), 'v_add_f32 v%d, v%d, v%d' % (ST + 1, ST + 1, ST + 3)]
        st += self.rowstat_finish(ST, ST + 1, vRS, vVE, BM, ST + 2)
        st += ['v_mul_f32 v%d, %s, v%d' % (vC, f32bits(LOG2E), vRS)]
        LA = 5
        def frag_info(n):
            if n < 120: return n // 3, n % 3
            return n - 120, 3
        def read(n): return self.ring_read(AF + 4 * (n % 8), A0 + n // 20, (n % 20) * 1024)
        def mfma(n):
            s, tau = frag_info(n); acc = ACC + 16 * tau; a = AF + 4 * (n % 8)
            c = '0' if s == 0 else 'v[%d:%d]' % (acc, acc + 15)
            return 'v_mfma_f32_32x32x16_bf16 v[%d:%d], v[%d:%d], a[%d:%d], %s' % (acc, acc + 15, a, a + 3, 4 * s, 4 * s + 3, c)
        def mean(tau):
            acc = ACC + 16 * tau
            return 'v_mfma_f32_32x32x16_bf16 v[%d:%d], v[%d:%d], v[%d:%d], v[%d:%d]' % (acc, acc + 15, AM + 4 * tau, AM + 4 * tau + 3, BM, BM + 3, acc, acc + 15)
        ksm = self.softmax_pair([T0 + r for r in range(16)] + [T1 + r for r in range(4)], vC, EP, EM, ST)
        for d in range(10): ksm.append('v_cvt_pk_bf16_f32 v%d, v%d, v%d' % (P + d, EP + 2 * d, EP + 2 * d + 1))
        for d in range(10): ksm.append('v_cvt_pk_bf16_f32 v%d, v%d, v%d' % (P + 10 + d, EM + 2 * d, EM + 2 * d + 1))
        V = [T1 + r for r in range(4, 16)] + [T2 + r for r in range(8)]
        for f in range(20): ksm.append('v_mul_f32 v%d, v%d, v%d' % (V[f], V[f], vRS))
        for d in range(10): ksm.append('v_cvt_pk_bf16_f32 v%d, v%d, v%d' % (P + 20 + d, V[2 * d], V[2 * d + 1]))
        ksm += ['v_mov_b32 v%d, 0x3f80' % (P + 30), 'v_mov_b32 v%d, 0' % (P + 31)]
        anchors = []; pre = {}; fixed = {}; idx = {}
        KF = o.get('kvfirst', 1)
        NF1 = 140 if KF else 160
        for n in range(NF1):
            if n == 120:
                idx['mean'] = len(anchors)
                anchors += [mean(t) for t in range(3)]
            idx[n] = len(anchors)
            anchors.append(mfma(n))
            fixed[idx[n]] = ([read(n + LA)] if n + LA < NF1 else []) + ([Need('v[%d:%d]' % (AF + 4 * ((n + 1) % 8), AF + 4 * ((n + 1) % 8) + 3))] if n + 1 < NF1 else [])
        if not KF: anchors.append(mean(3))
        for ep in range(1, 7 if KF else 8):
            at = idx['mean'] if ep == 6 else idx[20 * ep]
            pre[at] = ([W_tag('blk%d' % (A0 + ep + 1))] if ep < 7 else []) + ['s_barrier']
            if self.o.get('fine') == 'a': pre[at] += self.stamp_items(19 + ep - 1)
        items = [(3 * s, 0, tok(s)) for s in range(NPRE, 40)]
        if not o.get('ampre_a', 0): items.append((90, 0, amload))
        if o.get('tw', 0): items.append((30, 0, self.touch_w('B')))
        items.append((o.get('a_stdl', 64), 0, stld))
        for b in self.A_in: items.append((20 * (b - 1), 0, self.flat(self.dma_ops(b))))
        last_in = o.get('a_lastblk', 11)
        for b in range(6, last_in + 1):
            free = 20 * (b - 5) if b - 5 < 6 else idx['mean']
            assert not KF or b <= 11
            items.append((20 * (b - 1) if b < 8 else 200 + b, free, self.flat(self.dma_ops(b))))
        if o.get('merged', 0):
            sub = Main(None, self.o); sub.nlab = self.nlab + 2000; q = sub.e
            Lr = 'M_restld'
            q('s_cmp_lg_u32 s%d, 0' % sL); q('s_cbranch_scc1 %s' % Lr)
            q('v_min_u32 v%d, 15, v%d\nv_lshlrev_b32 v%d, 7, v%d\ns_mov_b32 s%d, 0x%x' % (vT1, vLANE, vT1, vT1, sT3, CNT_REST))
            q('buffer_load_dword v%d, v%d, s[4:7], s%d offen sc1' % (vPOLL, vT1, sT3), count=False)
            q.label(Lr)
            e.extend(q.items)
            sub = Main(None, self.o); sub.nlab = self.nlab + 3000; q = sub.e
            Lk = 'M_restok'; Ll = 'M_restsp'
            q('s_cmp_lg_u32 s%d, 0' % sL); q('s_cbranch_scc1 %s' % Lk)
            q('s_mov_b32 s%d, 0' % sPC)
            q.label(Ll)
            q('v_cmp_gt_u32 vcc, 16, v%d' % vPOLL)
            q('s_cbranch_vccz %s' % Lk)
            q('s_cmp_lg_u32 s%d, 0' % sDEAD); q('s_cbranch_scc1 %s' % Lk)
            q('buffer_load_dword v%d, v%d, s[4:7], s%d offen sc1' % (vPOLL, vT1, sT3), count=False)
            q('s_waitcnt vmcnt(0)', count=False)
            q('s_add_u32 s%d, s%d, 1' % (sPC, sPC)); q('s_cmp_lt_u32 s%d, %d' % (sPC, SPIN_LIMIT)); q('s_cbranch_scc1 %s' % Ll)
            q('s_mov_b32 s%d, 1' % sDEAD)
            q.label(Lk)
            pre[idx[60]] = q.items + pre[idx[60]]
        vs = self.vm_stream(items)
        valu = Stream(st, o.get('a_stv', 90)).add(ksm, idx[120] + 1)
        if o.get('fine') == 'a0': e.extend(self.stamp_items(19))
        e.wait_tag('blk0'); e.wait_tag('blk1')
        if self.A_tail:
            Lw = self.lab('a_l0w')
            e('s_cmp_lg_u32 s%d, 0' % sL); e('s_cbranch_scc1 %s' % Lw)
            e('s_waitcnt vmcnt(0)', count=False)
            e.label(Lw)
        e('s_barrier')
        if o.get('fine') == 'a0':
            e.extend(self.stamp_items(20))
            for k, at in enumerate((1, 3, 6, 9, 12, 15, 18)):
                pre[at] = pre.get(at, []) + self.stamp_items(21 + k)
        for n in range(LA): e(read(n))
        stt = {}
        e.extend(schedule(anchors, 5, pre, fixed, [vs, valu], vm_gap=o.get('a_gap', 2), state=stt))
        if o.get('verbose'): print('a forced', stt.get('forced'), 'left', len(vs.q), len(valu.q))
        e.extend([y[0] for y in vs.q]); e.extend([y[0] for y in valu.q])
        self.a_late = list(range(last_in + 1, 13))
        self.stamp(2)
        for m in range(8):
            e('ds_write_b128 v%d, v[%d:%d] offset:%d' % (vTW, P + 4 * m, P + 4 * m + 3, 16 * m))
        e.wait_lgkm0()
        e('s_barrier')
        KD = T0
        def kvread(ks):
            b = AF + 8 * (ks % 4)
            return ['ds_read_b64_tr_b16 v[%d:%d], v%d offset:%d' % (b, b + 1, vKA, ks * 2304),
                    'ds_read_b64_tr_b16 v[%d:%d], v%d offset:%d' % (b + 2, b + 3, vKA, ks * 2304 + 576),
                    'ds_read_b64_tr_b16 v[%d:%d], v%d offset:%d' % (b + 4, b + 5, vKB, ks * 2304),
                    'ds_read_b64_tr_b16 v[%d:%d], v%d offset:%d' % (b + 6, b + 7, vKB, ks * 2304 + 576)]
        for ks in range(3): e.extend(kvread(ks))
        for ks in range(8):
            if ks + 3 < 8: e.extend(kvread(ks + 3))
            b = AF + 8 * (ks % 4)
            e('v_mfma_f32_32x32x16_bf16 v[%d:%d], v[%d:%d], v[%d:%d], %s' % (KD, KD + 15, b, b + 3, b + 4, b + 7, '0' if ks == 0 else 'v[%d:%d]' % (KD, KD + 15)))
        PK = EP
        for d in range(6): e('v_cvt_pk_bf16_f32 v%d, v%d, v%d' % (PK + d, KD + 2 * d, KD + 2 * d + 1))
        e('s_lshl_b32 s%d, s%d, 4\ns_add_u32 s%d, s%d, s%d\ns_lshl_b32 s%d, s%d, 12' % (sT0, sJ, sT0, sT0, sRB, sT0, sT0))
        e('s_add_u32 s%d, s%d, s%d\ns_add_u32 s%d, s%d, 0x%x' % (sT0, sT0, sLOFF, sT0, sT0, KVP))
        if o.get('reuse'): e('s_lshl_b32 s%d, s%d, 20\ns_add_u32 s%d, s%d, s%d' % (sT3, sL, sT0, sT0, sT3))
        e('buffer_store_dwordx4 v[%d:%d], v%d, s[4:7], s%d offen sc1' % (PK, PK + 3, vPS1, sT0))
        e('buffer_store_dwordx2 v[%d:%d], v%d, s[4:7], s%d offen sc1' % (PK + 4, PK + 5, vPS2, sT0))
        self.cnt(sT1, CNT_KV, sJ)
        kack = self.a_late if o.get('k_ack', 1) else []
        self.signal(sT1, kack)
        self.stamp(3)
        if o.get('tw', 0): e.extend(self.touch_w('C'))
        if not kack: self.side_dma(self.a_late)
        if o.get('xrlate', 1):
            Lx = self.lab('xr')
            e('s_cmp_lg_u32 s%d, 0' % sL); e('s_cbranch_scc1 %s' % Lx)
            self.xr_load()
            e.label(Lx)
        ZR = EM
        zf = ['v_mov_b32 v%d, 0' % (ZR + r) for r in range(4)]
        zf += ['v_lshlrev_b32 v%d, 4, v0' % vT1, 'v_add_u32 v%d, 0x%x, v%d' % (vT1, SCR, vT1)]
        zf += ['ds_write_b128 v%d, v[%d:%d] offset:%d' % (vT1, ZR, ZR + 3, m * 4096) for m in range(3)]
        if KF:
            an2 = []; fx2 = {}
            for n in range(NF1, NF1 + LA): e(read(n))
            for n in range(NF1, 160):
                fx2[len(an2)] = ([read(n + LA)] if n + LA < 160 else []) + ([Need('v[%d:%d]' % (AF + 4 * ((n + 1) % 8), AF + 4 * ((n + 1) % 8) + 3))] if n + 1 < 160 else [])
                an2.append(mfma(n))
            an2.append(mean(3))
            z = Stream(zf)
            e.extend(schedule(an2, 5, {}, fx2, [z]))
            e.extend([y[0] for y in z.q])
        else:
            e.extend(zf)
        Q = P
        X = [T2 + r for r in range(8, 16)] + [T3 + r for r in range(12)]
        e.extend(self.softmax_pair(X, vC, EP, EM, ST))
        order = []
        for sign in (EP, EM):
            order += [(sign + 0), (sign + 2), (sign + 8), (sign + 10), (sign + 4), (sign + 6), (sign + 12), (sign + 14)]
        order += [EP + 16, EP + 18, EM + 16, EM + 18]
        for d, r in enumerate(order): e('v_cvt_pk_bf16_f32 v%d, v%d, v%d' % (Q + d, r, r + 1))
        e.wait_lgkm0()
        self.stamp(4)
        self.poll(sT1)
        e('s_barrier')
        self.stamp(5)
        if self.maybe_stop('a1'): return True
        LD, SUM, PKK = 112, 176, 204
        e('s_lshl_b32 s%d, s%d, 16\ns_add_u32 s%d, s%d, s%d\ns_add_u32 s%d, s%d, 0x%x' % (sT0, sJ, sT0, sT0, sLOFF, sT0, sT0, KVP))
        if o.get('reuse'): e('s_lshl_b32 s%d, s%d, 20\ns_add_u32 s%d, s%d, s%d' % (sT3, sL, sT0, sT0, sT3))
        for p in range(16):
            if p: e('s_add_u32 s%d, s%d, 4096' % (sT0, sT0))
            e('buffer_load_dwordx4 v[%d:%d], v%d, s[4:7], s%d offen sc1' % (LD + 4 * p, LD + 4 * p + 3, vPL, sT0))
        e('v_mov_b32 v%d, 0x00003f80\nv_mov_b32 v%d, 0x3f800000' % (vT2, vT3))
        for k in range(8): e('v_mov_b32 v%d, 0' % (SUM + k))
        for p in range(16):
            for d in range(4):
                e('v_dot2c_f32_bf16 v%d, v%d, v%d' % (SUM + 2 * d, LD + 4 * p + d, vT2))
                e('v_dot2c_f32_bf16 v%d, v%d, v%d' % (SUM + 2 * d + 1, LD + 4 * p + d, vT3))
        for d in range(4): e('v_cvt_pk_bf16_f32 v%d, v%d, v%d' % (PKK + d, SUM + 2 * d, SUM + 2 * d + 1))
        e('ds_write_b128 v%d, v[%d:%d]' % (vAW, PKK, PKK + 3))
        e('ds_write_b64 v%d, v[%d:%d]' % (vAW2, PKK, PKK + 1))
        e.wait_lgkm0()
        e('s_barrier')
        e('v_add_u32 v%d, 0x%x, v%d' % (vT1, SCR, vL16))
        for n in range(8): e('ds_read_b128 v[%d:%d], v%d offset:%d' % (AF + 4 * n, AF + 4 * n + 3, vT1, n * 1024))
        G0, G1 = T0, T1
        for n in range(10):
            rho, s = n // 5, n % 5
            acc = G0 if rho == 0 else G1
            a = AF + 4 * (n % 8)
            e('v_mfma_f32_32x32x16_bf16 v[%d:%d], v[%d:%d], v[%d:%d], %s' % (acc, acc + 15, a, a + 3, Q + 4 * s, Q + 4 * s + 3, '0' if s == 0 else 'v[%d:%d]' % (acc, acc + 15)))
            if n < 2: e('ds_read_b128 v[%d:%d], v%d offset:%d' % (a, a + 3, vT1, (n + 8) * 1024))
        e('v_add_f32 v%d, %s, v%d' % (vT2, f32bits(1e-6), G1 + 4))
        e('v_rcp_f32 v%d, v%d' % (vT2, vT2))
        OP = 208
        src = [G0 + r for r in range(16)] + [G1 + r for r in range(4)]
        for r in src: e('v_mul_f32 v%d, v%d, v%d' % (r, r, vT2))
        for d in range(10): e('v_cvt_pk_bf16_f32 v%d, v%d, v%d' % (OP + d, src[2 * d], src[2 * d + 1]))
        e('s_lshl_b32 s%d, s%d, 3\ns_lshl_b32 s%d, s%d, 1\ns_add_u32 s%d, s%d, s%d\ns_mul_i32 s%d, s%d, 20480' % (sT0, sRB, sT1, sW, sT0, sT0, sT1, sT0, sT0))
        e('s_add_u32 s%d, s%d, s%d\ns_add_u32 s%d, s%d, 0x%x' % (sT0, sT0, sLOFF, sT0, sT0, O))
        e('buffer_store_dwordx4 v[%d:%d], v%d, s[4:7], s%d offen sc1' % (OP, OP + 3, vO0, sT0))
        e('buffer_store_dwordx4 v[%d:%d], v%d, s[4:7], s%d offen sc1' % (OP + 4, OP + 7, vO1, sT0))
        e('buffer_store_dwordx2 v[%d:%d], v%d, s[4:7], s%d offen sc1' % (OP + 8, OP + 9, vO2, sT0))
        self.stamp(6)
        self.cnt(sT1, CNT_O, sRB)
        self.signal(sT1, [C0] if o.get('o_ack', 1) else [])
        self.stamp(7)
        if not o.get('o_ack', 1): self.side_dma([C0])
        return self.maybe_stop('a')
    def gemm_bd(self, first_blk, nsteps, vs, pre_extra, valu, breg=None):
        e = self.e
        LA = 5
        nf = nsteps * 5
        def read(n):
            i, tau = n // 5, n % 5
            return self.ring_read(AF + 4 * (n % 8), first_blk + i // 2, (i & 1) * 10240 + tau * 1024, kh=True)
        def mf(n, u):
            i, tau = n // 5, n % 5
            acc = ACC + (tau * 2 + u) * 4; a = AF + 4 * (n % 8); b = breg(i, u) if breg else (2 * i + u) * 4
            c = '0' if i == 0 else 'v[%d:%d]' % (acc, acc + 3)
            return 'v_mfma_f32_16x16x32_bf16 v[%d:%d], v[%d:%d], a[%d:%d], %s' % (acc, acc + 3, a, a + 3, b, b + 3, c)
        anchors = []; pre = {}; fixed = {}
        for n in range(nf):
            anchors += [mf(n, 0), mf(n, 1)]
            if n + LA < nf: fixed[2 * n] = [read(n + LA)]
            if n + 1 < nf: fixed[2 * n + 1] = [Need('v[%d:%d]' % (AF + 4 * ((n + 1) % 8), AF + 4 * ((n + 1) % 8) + 3))]
        nep = nsteps // 2
        for ep in range(1, nep):
            pre[20 * ep] = list(pre_extra.get(ep, [])) + ([W_tag('blk%d' % (first_blk + ep + 1))] if ep + 1 < nep else []) + ['s_barrier']
            if self.o.get('fine') == 'd' and nsteps == 24: pre[20 * ep] += self.stamp_items(19 + ep - 1)
        for n in range(LA): e(read(n))
        stt = {}
        e.extend(schedule(anchors, 2, pre, fixed, [vs, valu], vm_gap=self.o.get('d_gap', 2), state=stt))
        if self.o.get('verbose'): print('bd forced', stt.get('forced'), 'left', len(vs.q), len(valu.q))
        e.extend([y[0] for y in vs.q]); e.extend([y[0] for y in valu.q])
    def bd_unpack(self):
        U = 112; L = []
        for d in range(10):
            L.append('v_lshlrev_b32 v%d, 16, v%d' % (U + 2 * d, XR + d))
            L.append('v_and_b32 v%d, 0xffff0000, v%d' % (U + 2 * d + 1, XR + d))
        return L
    def bd_epilogue(self, last_blk, final):
        e = self.e
        EX = 88
        for tau in range(5):
            a = ACC + (tau * 2 + 1) * 4
            e('ds_write_b128 v%d, v[%d:%d] offset:%d' % (vEXW, a, a + 3, tau * 1024))
        e.wait_lgkm0()
        e('s_barrier')
        for tau in range(5):
            e('ds_read_b128 v[%d:%d], v%d offset:%d' % (EX + 4 * tau, EX + 4 * tau + 3, vEXR, tau * 1024))
        U = 112
        for tau in range(5):
            a = ACC + (tau * 2) * 4
            for c in range(4):
                e('v_add_f32 v%d, v%d, v%d' % (U + 4 * tau + c, U + 4 * tau + c, a + c))
        for tau in range(5):
            for c in range(4):
                e('v_add_f32 v%d, v%d, v%d' % (U + 4 * tau + c, U + 4 * tau + c, EX + 4 * tau + c))
        for d in range(10): e('v_cvt_pk_bf16_f32 v%d, v%d, v%d' % (XR + d, U + 2 * d, U + 2 * d + 1))
        final()
    def bd_stats(self, base_off, next_layer):
        e = self.e
        S, Q = 136, 137
        e('v_mov_b32 v%d, 0\nv_mov_b32 v%d, 0' % (S, Q))
        for d in range(10):
            e('v_dot2c_f32_bf16 v%d, v%d, v%d' % (S, XR + d, vONES))
            e('v_dot2c_f32_bf16 v%d, v%d, v%d' % (Q, XR + d, XR + d))
        for sw in ('v_permlane16_swap_b32', 'v_permlane32_swap_b32'):
            e('v_mov_b32 v138, v%d\nv_mov_b32 v139, v%d' % (S, Q))
            e('%s v%d, v138\n%s v%d, v139' % (sw, S, sw, Q))
            e('v_add_f32 v%d, v%d, v138\nv_add_f32 v%d, v%d, v139' % (S, S, Q, Q))
        e('s_lshl_b32 s%d, s%d, 7\ns_lshl_b32 s%d, s%d, 14\ns_add_u32 s%d, s%d, s%d' % (sT2, sTTK, sT3, sCS, sT2, sT2, sT3))
        e('s_add_u32 s%d, s%d, s%d\ns_add_u32 s%d, s%d, 0x%x' % (sT2, sT2, sLOFF, sT2, sT2, base_off + (self.lstride if next_layer else 0)))
        if not self.o.get('nostats'): e('buffer_store_dwordx2 v[%d:%d], v%d, s[4:7], s%d offen sc1' % (S, Q, vST, sT2))
    def phase_b(self):
        e = self.e
        self.cnt(sT0, CNT_O, sRB)
        for (s, tt) in ((sB0, sTTK), (sB1, sTTS)):
            e('s_mul_i32 s%d, s%d, 20\ns_mul_i32 s%d, s%d, 10\ns_add_u32 s%d, s%d, s%d\ns_lshl_b32 s%d, s%d, 10' % (s, tt, sT1, sKH, s, s, sT1, s, s))
            e('s_add_u32 s%d, s%d, s%d\ns_add_u32 s%d, s%d, 0x%x' % (s, s, sLOFF, s, s, O))
        def tok(i, u):
            s = sB0 if u == 0 else sB1
            t = sC1 + u
            g = []
            if i % 4 == 0: g.append('s_add_u32 s%d, s%d, %d' % (t, s, i * 1024))
            g.append('buffer_load_dwordx4 a[%d:%d], v%d, s[4:7], s%d offen offset:%d%s' % ((2 * i + u) * 4, (2 * i + u) * 4 + 3, vL16, t, (i % 4) * 1024, self.sc))
            return g
        e.wait_tag('blk%d' % B0); e.wait_tag('blk%d' % (B0 + 1))
        self.poll(sT0)
        e('s_barrier')
        self.stamp(8)
        NPRE = self.o.get('b_npre', 10)
        for i in range(NPRE):
            for u in range(2): e.extend(tok(i, u))
        items = [(10 * i, 0, tok(i, 0) + tok(i, 1)) for i in range(NPRE, 10)]
        for k, b in enumerate(self.C_tail): items.append((5000 + b, 20 * (k + 1), self.flat(self.dma_ops(b))))
        vs = self.vm_stream(items)
        self.gemm_bd(B0, 10, vs, {}, Stream(self.bd_unpack(), 60))
        self.stamp(9)
        def final():
            e('s_mul_i32 s%d, s%d, 20480\ns_add_u32 s%d, s%d, s%d\ns_add_u32 s%d, s%d, 0x%x' % (sT0, sTTK, sT0, sT0, sLOFF, sT0, sT0, XC))
            e('buffer_store_dwordx4 v[%d:%d], v%d, s[4:7], s%d offen sc1' % (XR, XR + 3, vX0, sT0))
            e('buffer_store_dwordx4 v[%d:%d], v%d, s[4:7], s%d offen sc1' % (XR + 4, XR + 7, vX1, sT0))
            e('buffer_store_dwordx2 v[%d:%d], v%d, s[4:7], s%d offen sc1' % (XR + 8, XR + 9, vX2, sT0))
            self.bd_stats(SC, False)
            self.cnt(sT1, CNT_XC, sRB)
            self.signal(sT1, self.C_ack)
            self.stamp(10)
            if self.o.get('ampre', 1): self.am_c()
            self.side_dma(self.C_side)
        self.bd_epilogue(B0 + 4, final)
        return self.maybe_stop('b')
    def gelu_ops(self, accset, u, c0, c1, vVE, HP, t):
        L = []
        G = [accset + (p * 2 + u) * 4 + c for p in range(2) for c in range(4)]
        U = [accset + ((2 + p) * 2 + u) * 4 + c for p in range(2) for c in range(4)]
        g = [t + i for i in range(8)]; w = [t + 8 + i for i in range(8)]
        for h in range(2):
            R = range(4 * h, 4 * h + 4)
            for i in R: L.append('v_mul_f32 v%d, v%d, v%d' % (w[i], G[i], G[i]))
            for i in R: L.append('v_fma_f32 v%d, v%d, v%d, v%d' % (w[i], w[i], c1, c0))
            for i in R: L.append('v_mul_f32 v%d, v%d, v%d' % (w[i], w[i], G[i]))
            for i in R:
                L.append('v_exp_f32 v%d, v%d' % (w[i], w[i]))
                L.append('v_mul_f32 v%d, v%d, v%d' % (g[i], G[i], U[i]))
            for i in R: L.append('v_fma_f32 v%d, v%d, v%d, v%d' % (w[i], w[i], vVE, vVE))
            for i in R: L.append('v_rcp_f32 v%d, v%d' % (w[i], w[i]))
            for i in R: L.append('v_mul_f32 v%d, v%d, v%d' % (g[i], g[i], w[i]))
            for d in (2 * h, 2 * h + 1): L.append('v_cvt_pk_bf16_f32 v%d, v%d, v%d' % (HP + d, g[2 * d], g[2 * d + 1]))
        return L
    def check_flag(self, vreg, cnt_sgpr, target=16):
        sub = Asm()
        X = self.lab('ck'); L = self.lab('ckl')
        sub('v_cmp_gt_u32 vcc, %d, v%d' % (target, vreg))
        sub('s_cbranch_vccz %s' % X)
        sub('s_cmp_lg_u32 s%d, 0' % sDEAD); sub('s_cbranch_scc1 %s' % X)
        sub('s_mov_b32 s%d, 0' % sPC)
        sub.label(L)
        sub('buffer_load_dword v%d, v%d, s[4:7], s%d offen sc1' % (vreg, vZERO, cnt_sgpr), count=False)
        sub('s_waitcnt vmcnt(0)', count=False)
        sub('v_cmp_gt_u32 vcc, %d, v%d' % (target, vreg))
        sub('s_cbranch_vccz %s' % X)
        sub('s_add_u32 s%d, s%d, 1' % (sPC, sPC)); sub('s_cmp_lt_u32 s%d, %d' % (sPC, SPIN_LIMIT))
        sub('s_cbranch_scc1 %s' % L)
        sub('s_mov_b32 s%d, 1' % sDEAD)
        sub.label(X)
        return sub.items
    def phase_c(self):
        e = self.e; o = self.o
        ST, RS, VE, BMs, AM, GT, HP = 112, (120, 121), (122, 123), (124, 132), 136, 152, (168, 172)
        GC0, GC1 = (176, 177), (178, 179)
        k0 = -2.0 * 0.7978845608028654 * LOG2E
        self.cnt(sT0, CNT_XC, sRB)
        e('s_lshl_b32 s%d, s%d, 3\ns_lshl_b32 s%d, s%d, 1\ns_add_u32 s%d, s%d, s%d' % (sT2, sRB, sT1, sW, sT2, sT2, sT1))
        e('s_lshl_b32 s%d, s%d, 7\ns_add_u32 s%d, s%d, s%d\ns_add_u32 s%d, s%d, 0x%x' % (sT1, sT2, sT1, sT1, sLOFF, sT1, sT1, SC))
        e('s_mul_i32 s%d, s%d, 20480\ns_add_u32 s%d, s%d, s%d\ns_add_u32 s%d, s%d, 0x%x' % (sB0, sT2, sB0, sB0, sLOFF, sB0, sB0, XC))
        e('s_add_u32 s%d, s%d, 20480' % (sB1, sB0))
        e('s_mul_i32 s%d, s%d, 48\ns_add_u32 s%d, s%d, s%d\ns_lshl_b32 s%d, s%d, 10' % (sTW, sT2, sTW, sTW, sJ, sTW, sTW))
        e('s_add_u32 s%d, s%d, s%d\ns_add_u32 s%d, s%d, 0x%x' % (sTW, sTW, sLOFF, sTW, sTW, HH))
        if not o.get('ampre', 1): e('s_mul_i32 s%d, s%d, %d\ns_add_u32 s%d, s%d, 0x%x' % (sT4, sJ, 12 * KB, sT4, sT4, WCM))
        self.poll(sT0)
        e('s_barrier')
        self.stamp(11)
        def tok(s, u):
            sb = sB0 if u == 0 else sB1; t = sC1 + u
            g = []
            if s % 4 == 0: g.append('s_add_u32 s%d, s%d, %d' % (t, sb, s * 1024))
            g.append('buffer_load_dwordx4 a[%d:%d], v%d, s[4:7], s%d offen offset:%d%s' % ((2 * s + u) * 4, (2 * s + u) * 4 + 3, vL16, t, (s % 4) * 1024, self.sc))
            return g
        NPRE = o.get('c_npre', 8)
        if o.get('tt', 0): e.extend(self.touch_tok(XC))
        for s in range(NPRE):
            for u in range(2): e.extend(tok(s, u))
        stld = []
        for k in range(2):
            if k: stld.append('s_add_u32 s%d, s%d, 16384' % (sT1, sT1))
            for u in range(2):
                stld.append('buffer_load_dwordx2 v[%d:%d], v%d, s[4:7], s%d offen offset:%d sc1' % (ST + 4 * u + 2 * k, ST + 4 * u + 2 * k + 1, vSC, sT1, 128 * u))
        def amload(sg):
            pre = [] if sg == 0 else ['s_add_u32 s%d, s%d, 4096' % (sT4, sT4)]
            return pre + ['buffer_load_dwordx4 v[%d:%d], v%d, s[4:7], s%d offen offset:%d' % (AM + 4 * t, AM + 4 * t + 3, vL16, sT4, t * 1024) for t in range(4)]
        st = []
        for u in range(2):
            b = ST + 4 * u
            st += ['v_add_f32 v%d, v%d, v%d' % (b, b, b + 2), 'v_add_f32 v%d, v%d, v%d' % (b + 1, b + 1, b + 3)]
            for sw in ('v_permlane16_swap_b32', 'v_permlane32_swap_b32'):
                st += ['v_mov_b32 v%d, v%d' % (b + 2, b), 'v_mov_b32 v%d, v%d' % (b + 3, b + 1),
                       '%s v%d, v%d' % (sw, b, b + 2), '%s v%d, v%d' % (sw, b + 1, b + 3),
                       'v_add_f32 v%d, v%d, v%d' % (b, b, b + 2), 'v_add_f32 v%d, v%d, v%d' % (b + 1, b + 1, b + 3)]
            st += self.rowstat_finish(b, b + 1, RS[u], VE[u], BMs[u], b + 2)
            st += ['v_mul_f32 v%d, %s, v%d' % (GC0[u], f32bits(k0), RS[u]),
                   'v_mul_f32 v%d, v%d, v%d' % (GC1[u], RS[u], RS[u]),
                   'v_mul_f32 v%d, v%d, v%d' % (GC1[u], GC1[u], GC0[u]),
                   'v_mul_f32 v%d, %s, v%d' % (GC1[u], f32bits(0.044715), GC1[u])]
        LA = 5
        def read(n): return self.ring_read(AF + 4 * (n % 8), C0 + n // 20, (n % 20) * 1024)
        def mf(n, u):
            sg, r = n // 80, n % 80; s, tl = r // 4, r % 4
            acc = ACC + 32 * (sg & 1) + (tl * 2 + u) * 4; a = AF + 4 * (n % 8); b = (2 * s + u) * 4
            c = '0' if s == 0 else 'v[%d:%d]' % (acc, acc + 3)
            return 'v_mfma_f32_16x16x32_bf16 v[%d:%d], v[%d:%d], a[%d:%d], %s' % (acc, acc + 3, a, a + 3, b, b + 3, c)
        def mean(sg):
            L = []
            for tl in range(4):
                for u in range(2):
                    acc = ACC + 32 * (sg & 1) + (tl * 2 + u) * 4
                    L.append('v_mfma_f32_16x16x32_bf16 v[%d:%d], v[%d:%d], v[%d:%d], v[%d:%d]' % (acc, acc + 3, AM + 4 * tl, AM + 4 * tl + 3, BMs[u], BMs[u] + 3, acc, acc + 3))
            return L
        def gelu_store(sg):
            L = []
            for u in range(2):
                L += self.gelu_ops(ACC + 32 * (sg & 1), u, GC0[u], GC1[u], VE[u], HP[u], GT)
                L.append('s_add_u32 s%d, s%d, %d' % (sT5, sTW, u * 48 * 1024 + sg * 16 * 1024))
                L.append(('buffer_store_dwordx4 v[%d:%d], v%d, s[4:7], s%d offen sc1' % (HP[u], HP[u] + 3, vL16, sT5), 'h%d' % sg))
            return L
        def ix(n): return 2 * n + 8 * (n // 80)
        items = [(ix(4 * s), 0, tok(s, 0) + tok(s, 1)) for s in range(NPRE, 20)]
        for b in self.C_in:
            dl = ix(20 * (b - C0 - 1)) - (8 if (b - C0 - 1) % 4 == 0 and b > C0 + 1 else 0)
            items.append((dl, 0, self.flat(self.dma_ops(b)), dl - o.get('c_lead', 40)))
        r8 = o.get('ring8', 1)
        last_in = o.get('c_lastblk', D0 + 5 if r8 else D0 + 3)
        for b in range(C0 + 6, last_in + 1):
            free = 20 * (b - C0 - 5)
            if r8 and b >= D0: free = o.get('c_x0', 100) + 20 * (b - D0) if b < D0 + 2 else 20 * (b - 20)
            epn = b - C0 - 1
            dl = ix(20 * epn) - (8 if epn % 4 == 0 else 0) if b < D0 else 100000 + b
            early = ix(free) - (8 if free % 80 == 0 else 0)
            key = max(early, ix(76)) + (0 if b < D0 else 1)
            items.append((dl, early, self.flat(self.dma_ops(b)), key))
        if not o.get('ampre', 1): items.append((ix(60), 0, amload(0)))
        if o.get('tw', 0): items.append((ix(90), ix(84), self.touch_w('D')))
        items.append((ix(o.get('c_stdl', 44)), 0, stld))
        items.append((ix(150), ix(80), amload(1), ix(80)))
        items.append((ix(230), ix(160), amload(2), ix(160)))
        self.cnt(sT0, CNT_H, sRB, mul=384)
        FL, CKC = o.get('c_fl', 190), o.get('c_ck', 206)
        items.append((ix(CKC) - 1, ix(FL), ['buffer_load_dword v%d, v%d, s[4:7], s%d offen sc1' % (vPOLL, vZERO, sT0)], ix(FL)))
        dtoks = [self.d_tok(i, u) for i in range(8) for u in range(2)]
        for k, g in enumerate(dtoks): items.append((90000 + k, ix(CKC), g, ix(CKC) + 0.01 * k))
        vs = self.vm_stream(items)
        e.wait_tag('blk%d' % C0); e.wait_tag('blk%d' % (C0 + 1))
        e('s_barrier')
        for n in range(LA): e(read(n))
        pos = 0; cstate = {}
        for sg in range(3):
            anchors = []; pre = {}; fixed = {}
            if sg > 0: anchors += mean(sg - 1)
            for n in range(80 * sg, 80 * sg + 80):
                assert pos + len(anchors) == ix(n)
                anchors += [mf(n, 0), mf(n, 1)]
                if n + LA < 240: fixed[ix(n)] = [read(n + LA)]
                if n + 1 < 240: fixed[ix(n) + 1] = [Need('v[%d:%d]' % (AF + 4 * ((n + 1) % 8), AF + 4 * ((n + 1) % 8) + 3))]
            for ep in range(4 * sg, 4 * sg + 4):
                if ep == 0: continue
                at = ix(20 * ep) - (8 if ep % 4 == 0 else 0)
                p = [W_tag('blk%d' % (C0 + ep + 1))] if ep < 11 else []
                if ep == o.get('h0ep', 9): p.append(W_tag('h0'))
                p.append('s_barrier')
                if self.o.get('fine') == 'c': p += self.stamp_items(19 + ep - 1)
                if ep == o.get('h0ep', 9):
                    sub = Main(None, self.o); sub.nlab = self.nlab + 1000
                    sub.signal_only(sT0)
                    p += sub.e.items
                pre[at] = p
            if sg == 2:
                sub = Main(None, self.o); sub.nlab = self.nlab + 4000
                sub.d_bases()
                pre[ix(CKC)] = pre.get(ix(CKC), []) + [W_vreg(vPOLL)] + self.check_flag(vPOLL, sT0) + sub.e.items
            valu = Stream(st, ix(o.get('c_stv', 56))) if sg == 0 else Stream(gelu_store(sg - 1), pos + 10)
            e.extend(schedule(anchors, 2, pre, fixed, [vs, valu], start=pos, vm_gap=(o.get('c_gap', 4) if sg == 0 else o.get('c_gap2', 4)), state=cstate))
            e.extend([y[0] for y in valu.q])
            pos += len(anchors)
        if self.o.get('verbose'): print('c forced', cstate.get('forced'), 'left', len(vs.q))
        self.stamp(12)
        tail = mean(2) + gelu_store(2)
        left = [y[0] for y in vs.q]; del vs.q[:]
        nvm = max(1, sum(1 for x in left if is_vm(x)))
        step = max(1, (len(tail) - 8) // (nvm + 1))
        for n, x in enumerate(tail):
            if left and n % step == 0:
                while left:
                    y = left.pop(0); e.extend([y])
                    if is_vm(y): break
            e.extend([x])
        e.extend(left)
        self.cnt(sT1, CNT_H, sRB, mul=384, add=256)
        self.signal(sT1)
        self.stamp(13)
        self.c_last = last_in
        return self.maybe_stop('c')
    def d_bases(self):
        e = self.e
        for (s, tt) in ((sB0, sTTK), (sB1, sTTS)):
            e('s_mul_i32 s%d, s%d, 48\ns_add_u32 s%d, s%d, s%d\ns_lshl_b32 s%d, s%d, 10' % (s, tt, s, s, sKH, s, s))
            e('s_add_u32 s%d, s%d, s%d\ns_add_u32 s%d, s%d, 0x%x' % (s, s, sLOFF, s, s, HH))
    def d_tok(self, i, u):
        sg, jj = i // 8, i % 8
        s = sB0 if u == 0 else sB1; t = sC1 + u
        g = []
        if jj % 2 == 0: g.append('s_add_u32 s%d, s%d, %d' % (t, s, sg * 16384 + jj * 2048))
        r = self.d_reg(i, u)
        g.append('buffer_load_dwordx4 a[%d:%d], v%d, s[4:7], s%d offen offset:%d%s' % (r, r + 3, vL16, t, (jj % 2) * 2048, self.sc))
        return g
    def d_reg(self, i, u):
        return 160 + (2 * i + u) * 4 if i < 8 else (2 * (i - 8) + u) * 4
    def phase_d(self):
        e = self.e; o = self.o
        tok = self.d_tok
        self.stamp(14)
        CK = o.get('d_ck', 3)
        items = []
        r8 = o.get('ring8', 1); nfree = 8 if r8 else 6
        assert not (r8 and self.A_tail)
        for b in range(self.c_last + 1, D0 + nfree): items.append((20 * (b - D0 - 1), 0, self.flat(self.dma_ops(b)), b - 200))
        for b in range(D0 + nfree, NBLK):
            early = 20 * (b - D0 - nfree + 1)
            key = (b - 200) if early < 20 * CK else 20 * (b - D0 - 1)
            items.append((20 * (b - D0 - 1), early, self.flat(self.dma_ops(b)), key))
        items.append((20 * CK - 1, 20 * CK - o.get('d_fl', 30), ['buffer_load_dword v%d, v%d, s[4:7], s%d offen sc1' % (vPOLL, vZERO, sT1)], -1))
        items += [(10 * i, 20 * CK, tok(i, 0) + tok(i, 1)) for i in range(8, 24)]
        if o.get('tw', 0): items.append((30, 0, self.touch_w('A'), -500))
        for b in self.A_tail: items.append((5000 + b, 20 * (6 + b), self.flat(self.dma_ops(b))))
        chk = [W_vreg(vPOLL)] + self.check_flag(vPOLL, sT1)
        self.gemm_bd(D0, 24, self.vm_stream(items), {CK: chk}, Stream(self.bd_unpack(), 200), self.d_reg)
        self.stamp(17)
        def final():
            L = self.lab('d_last'); X = self.lab('d_done')
            e('s_cmp_lg_u32 s%d, 0' % sL); e('s_cbranch_scc1 %s' % L)
            e('s_lshr_b32 s%d, s%d, 1\ns_mul_i32 s%d, s%d, 40960\ns_add_u32 s%d, s%d, s%d\ns_add_u32 s%d, s%d, 0x%x' % (sT0, sTTK, sT0, sT0, sT0, sT0, sLOFF, sT0, sT0, XA + self.lstride))
            e('buffer_store_dwordx4 v[%d:%d], v%d, s[4:7], s%d offen sc1' % (XR, XR + 3, vY0, sT0))
            e('buffer_store_dwordx4 v[%d:%d], v%d, s[4:7], s%d offen sc1' % (XR + 4, XR + 7, vY1, sT0))
            e('buffer_store_dwordx2 v[%d:%d], v%d, s[4:7], s%d offen sc1' % (XR + 8, XR + 9, vY2, sT0))
            self.bd_stats(SA, True)
            self.cnt(sT1, CNT_XA, sRB, next_layer=True)
            self.signal(sT1, self.A_ack)
            self.stamp(18)
            if self.o.get('ampre_a', 0): self.am_a()
            self.side_dma(self.A_side)
            e('s_branch %s' % X)
            e.label(L)
            e('s_mul_i32 s%d, s%d, 20480\ns_mul_i32 s%d, s%d, 160\ns_add_u32 s%d, s%d, s%d' % (sT0, sTTK, sT1, sCS, sT0, sT0, sT1))
            e('buffer_store_dwordx4 v[%d:%d], v%d, s[12:15], s%d offen' % (XR, XR + 3, vR0, sT0))
            e('buffer_store_dwordx4 v[%d:%d], v%d, s[12:15], s%d offen offset:64' % (XR + 4, XR + 7, vR0, sT0))
            e('buffer_store_dwordx2 v[%d:%d], v%d, s[12:15], s%d offen' % (XR + 8, XR + 9, vR2, sT0))
            self.stamp(18)
            self.stamp_flush()
            e('s_endpgm')
            e.label(X)
        self.bd_epilogue(D0 + 11, final)
        return self.maybe_stop('d')
    def build(self):
        e = self.e
        self.prologue()
        e.label('M_LAYER')
        done = self.phase_a() or self.phase_b() or self.phase_c() or self.phase_d()
        if not done:
            e('s_add_u32 s%d, s%d, 1\ns_add_u32 s%d, s%d, 0x%x\ns_add_u32 s%d, s%d, 0x%x' % (sL, sL, sLOFF, sLOFF, self.lstride, sCNT, sCNT, CSTRIDE))
            e('s_branch M_LAYER')
        e.label('M_END')
        e('s_endpgm')
        e.label('M_CODE_END')
        if self.o.get('dual'):
            out = []; inloop = False
            for I in e.items:
                out.append(I)
                if I.kind == 'label' and I.txt.startswith('M_LAYER'): inloop = True
                if inloop and I.kind == 'vm' and I.op.startswith('buffer_store') and I.txt.endswith(' sc1') and 's[4:7]' in I.txt:
                    if self.o['dual'] == 1 and ('v%d,' % vPS1 in I.txt or 'v%d,' % vPS2 in I.txt): continue
                    J = parse(I.txt[:-4], I.tag); J.count = I.count
                    out.append(J)
            e.items = out
        return e
```

```python
from asmlib import *
from layout import *

NAME = 'hedgehog_main_kernel'
KNAME = 'interleave_layers__linear_kernel_hedgehog__geglu_ffn__prompt_kernel'
BLK = 20480
SCR = 6 * BLK
LDS_TOTAL = 163840
SPIN_LIMIT = 40000
LOG2E = 1.4426950408889634
TSOFF = 0x4000000

sW, sRB, sJ, sL, sLOFF, sW5K, sWA, sWB, sWC, sWD = range(16, 26)
sT0, sT1, sT2, sT3, sT4, sT5 = range(26, 32)
sDEAD, sPC, sPV, sCS, sTH, sTTK, sTTS, sKH = range(40, 48)
sDM = 48
sTW = 49
sB0, sB1 = 50, 51
sC1, sC2, sC3, sC4 = 52, 53, 54, 55
sEX, sEXD = 56, 57
sCNT = 3
sTA, sTB = 58, 59
vL16, vLANE, vONES, vZERO, vONE, vPOLL = 1, 2, 3, 4, 5, 6
vL16B, vK0, vK1 = 7, 8, 9
vT0, vT1, vT2, vT3, vT4 = 10, 11, 12, 13, 14
vEXR = 15
AF, ACC = 16, 48
vSA, vTW, vKA, vKB, vPS1, vPS2, vPL, vAW, vO0, vO1, vO2, vX0, vX1, vX2, vY0, vY1 = range(224, 240)
XR = 240
vY2, vR0, vR2, vST, vSC, vEXW = range(250, 256)
vAW2 = 221
vK2 = 218
vL128, vTCH = 220, 219

A0, B0, C0, D0, NBLK = 0, 8, 13, 25, 37
NSIDE_A, NSIDE_C = 4, 4

def f32bits(x):
    import struct
    return '0x%08x' % struct.unpack('<I', struct.pack('<f', x))[0]

def W_vreg(r):
    return 'v_mov_b32 v%d, v%d' % (r, r)

class Main:
    def __init__(self, stop=None, opts=None):
        self.e = Asm(); self.stop = stop; self.o = opts or {}
        self.sc = '' if self.o.get('nosc1') else ' sc1'
        self.nlab = 0
        self.lstride = 0 if self.o.get('reuse') else LSTRIDE
        self.name = KNAME if self.o.get('merged', 0) else NAME
        global NSIDE_A, NSIDE_C
        NSIDE_A = self.o.get('nsa', 2); NSIDE_C = self.o.get('nsc', 2)
        dt = self.o.get('d_tail', 0); bt = self.o.get('b_tail', 0)
        self.A_tail = list(range(1, 1 + dt))
        rest = [0] + list(range(1 + dt, 6))
        na = self.o.get('a_ack', 2)
        self.A_ack, rest = rest[:na], rest[na:]
        self.A_side, self.A_in = rest[:NSIDE_A], rest[NSIDE_A:]
        self.C_tail = list(range(C0 + 1, C0 + 1 + bt))
        rest = list(range(C0 + 1 + bt, C0 + 6))
        nc = self.o.get('c_ack', 2)
        self.C_ack, rest = rest[:nc], rest[nc:]
        self.C_side, self.C_in = rest[:NSIDE_C], rest[NSIDE_C:]
    def lab(self, p):
        self.nlab += 1
        return 'M_%s_%d' % (p, self.nlab)
    def slot_of(self, b):
        if b >= D0 and self.o.get('ring8', 1):
            return {25: 6, 26: 7, 27: 1, 28: 2, 29: 3, 30: 4, 31: 5, 32: 0, 33: 6, 34: 7, 35: 1, 36: 2}[b]
        return b % 6
    def blk_src(self, b):
        if b < B0: return sWA, (b - A0) * BLK
        if b < C0: return sWB, (b - B0) * BLK
        if b < D0: return sWC, (b - C0) * BLK
        return sWD, (b - D0) * BLK
    def dma_ops(self, b, tag=None):
        nb = b % NBLK if b >= NBLK else b
        base, off = self.blk_src(nb)
        slot = self.slot_of(nb)
        tag = tag or 'blk%d' % nb
        g = []
        first = ['s_add_u32 m0, s%d, %d' % (sW5K, slot * BLK), 's_add_u32 s%d, s%d, %d' % (sDM, base, off),
                 ('buffer_load_dwordx4 v%d, s[4:7], s%d offen lds' % (vL16, sDM), tag)]
        g.append(first)
        for k in range(1, 4):
            g.append([('buffer_load_dwordx4 v%d, s[4:7], s%d offen offset:%d lds' % (vL16, sDM, k * 1024), tag)])
        g.append(['s_add_u32 m0, s%d, %d' % (sW5K, slot * BLK + 4096), 's_add_u32 s%d, s%d, %d' % (sDM, base, off + 4096),
                  ('buffer_load_dwordx4 v%d, s[4:7], s%d offen lds' % (vL16, sDM), tag)])
        return g
    def am_a(self):
        AM = 128; e = self.e
        e('s_lshl_b32 s%d, s%d, 12\ns_add_u32 s%d, s%d, 0x%x' % (sT2, sJ, sT2, sT2, WAM))
        for t in range(4): e('buffer_load_dwordx4 v[%d:%d], v%d, s[4:7], s%d offen offset:%d' % (AM + 4 * t, AM + 4 * t + 3, vL16, sT2, t * 1024))
    def am_c(self):
        AM = 136; e = self.e
        e('s_mul_i32 s%d, s%d, %d\ns_add_u32 s%d, s%d, 0x%x' % (sT4, sJ, 12 * KB, sT4, sT4, WCM))
        for t in range(4): e('buffer_load_dwordx4 v[%d:%d], v%d, s[4:7], s%d offen offset:%d' % (AM + 4 * t, AM + 4 * t + 3, vL16, sT4, t * 1024))
    def side_dma(self, blocks):
        e = self.e
        L = self.lab('side')
        e('s_cmp_eq_u32 s%d, 0' % sW); e('s_cbranch_scc1 %s' % L)
        for b in blocks:
            base, off = self.blk_src(b); slot = self.slot_of(b); tag = 'blk%d' % b
            ld = 'buffer_load_dwordx4 v%d, s[4:7], s%d offen%%s lds' % (vL16, sDM)
            e('s_add_u32 m0, s%d, %d' % (sW5K, slot * BLK)); e('s_add_u32 s%d, s%d, %d' % (sDM, base, off))
            for k in range(4): e.side(ld % (' offset:%d' % (k * 1024) if k else ''), tag)
            e('s_add_u32 m0, s%d, %d' % (sW5K, slot * BLK + 4096)); e('s_add_u32 s%d, s%d, %d' % (sDM, base, off + 4096))
            e.side(ld % '', tag)
            e('s_add_u32 m0, s%d, %d' % (sEX, slot * BLK)); e('s_add_u32 s%d, s%d, %d' % (sDM, base, off))
            e('s_add_u32 s%d, s%d, s%d' % (sDM, sDM, sEXD))
            e.side(ld % '', tag); e.side(ld % ' offset:1024', tag)
        e.label(L)
    def dma_items(self, b, earliest):
        out = []
        for g in self.dma_ops(b):
            for x in g: out.append((x, earliest))
        return out
    def touch(self, base_expr, nlines_wave, ninstr=1, sc=''):
        L = list(base_expr)
        L.append('s_mul_i32 s%d, s%d, %d' % (sTB, sW, nlines_wave * ninstr * 128))
        L.append('s_add_u32 s%d, s%d, s%d' % (sTA, sTA, sTB))
        if nlines_wave < 64:
            L.append('v_mov_b32 v%d, 0x%x' % (vT0, OOB))
            L.append('v_cmp_gt_u32 vcc, %d, v%d' % (nlines_wave, vLANE))
            L.append('v_cndmask_b32 v%d, v%d, v%d, vcc' % (vT0, vT0, vL128))
            va = vT0
        else: va = vL128
        for k in range(ninstr):
            if k: L.append('s_add_u32 s%d, s%d, %d' % (sTA, sTA, nlines_wave * 128))
            I = parse('buffer_load_dword v%d, v%d, s[4:7], s%d offen%s' % (vTCH, va, sTA, sc)); I.wr = set()
            L.append(I)
        return L
    def touch_w(self, which):
        if which == 'A':
            pre = ['s_lshr_b32 s%d, s%d, 2' % (sTA, sRB), 's_mul_i32 s%d, s%d, %d' % (sTA, sTA, 40 * KB), 's_add_u32 s%d, s%d, s%d' % (sTA, sTA, sWA), 's_sub_u32 s%d, s%d, s%d' % (sTA, sTA, sW5K)]
            return self.touch(pre, 40, 2)
        if which == 'C':
            pre = ['s_lshr_b32 s%d, s%d, 2' % (sTA, sRB), 's_mul_i32 s%d, s%d, %d' % (sTA, sTA, 60 * KB), 's_add_u32 s%d, s%d, s%d' % (sTA, sTA, sWC), 's_sub_u32 s%d, s%d, s%d' % (sTA, sTA, sW5K)]
            return self.touch(pre, 60, 2)
        idx = ['s_lshr_b32 s%d, s%d, 2' % (sTA, sRB), 's_lshl_b32 s%d, s%d, 1' % (sTA, sTA), 's_add_u32 s%d, s%d, s%d' % (sTA, sTA, sTH)]
        if which == 'B':
            return self.touch(idx + ['s_mul_i32 s%d, s%d, 12800' % (sTA, sTA), 's_add_u32 s%d, s%d, s%d' % (sTA, sTA, sWB), 's_sub_u32 s%d, s%d, s%d' % (sTA, sTA, sW5K)], 25, 1)
        if which == 'D':
            return self.touch(idx + ['s_mul_i32 s%d, s%d, 30720' % (sTA, sTA), 's_add_u32 s%d, s%d, s%d' % (sTA, sTA, sWD), 's_sub_u32 s%d, s%d, s%d' % (sTA, sTA, sW5K)], 60, 1)
    def touch_tok(self, base_off):
        pre = ['s_mul_i32 s%d, s%d, %d' % (sTA, sRB, 160 * KB), 's_lshr_b32 s%d, s%d, 1' % (sTB, sJ), 's_mul_i32 s%d, s%d, %d' % (sTB, sTB, 20 * KB),
               's_add_u32 s%d, s%d, s%d' % (sTA, sTA, sTB), 's_add_u32 s%d, s%d, s%d' % (sTA, sTA, sLOFF), 's_add_u32 s%d, s%d, 0x%x' % (sTA, sTA, base_off)]
        return self.touch(pre, 40, 1, ' sc1')
    def freed_by(self, c):
        if c <= NBLK - 7: return c + 6
        if c < NBLK - 1: return NBLK + (c - (NBLK - 7))
        return NBLK + 0
    def ring_read(self, dst, blk, off, kh=False):
        slot = self.slot_of(blk)
        base = (vK0 if kh else vL16) if slot < 3 else ((vK1 if kh else vL16B) if slot < 6 else vK2)
        assert slot < 6 or kh
        return 'ds_read_b128 v[%d:%d], v%d offset:%d' % (dst, dst + 3, base, (slot % 3) * BLK + off)
    def emit_next_layer_dma(self, b):
        e = self.e
        L = self.lab('nl')
        e('s_cmp_lg_u32 s%d, 0' % sL); e('s_cbranch_scc1 %s' % L)
        for g in self.dma_ops(b):
            for x in g:
                if isinstance(x, tuple): e(x[0], count=False)
                else: e(x)
        e.label(L)
    def signal(self, cnt_off_sgpr, ack=()):
        e = self.e
        if ack:
            e.vm_marker('pub')
            for b in ack:
                for g in self.dma_ops(b): e.extend(g)
            e.wait_tag('pub'); e.wait_lgkm0()
        else:
            e.wait_all()
        e('s_barrier')
        self.signal_only(cnt_off_sgpr)
    def signal_only(self, cnt_off_sgpr):
        e = self.e
        L = self.lab('sig')
        e('s_cmp_lg_u32 s%d, 0' % sW); e('s_cbranch_scc1 %s' % L)
        e('s_mov_b64 exec, 1')
        e('buffer_atomic_add v%d, v%d, s[4:7], s%d offen sc1' % (vONE, vZERO, cnt_off_sgpr), count=False)
        e('s_mov_b64 exec, -1')
        e.label(L)
    def poll(self, cnt_off_sgpr, n=1, target=16, srd=4, stride=128):
        e = self.e
        L = self.lab('poll'); X = self.lab('got')
        e('s_cmp_lg_u32 s%d, 0' % sW); e('s_cbranch_scc1 %s' % X)
        e('s_cmp_lg_u32 s%d, 0' % sDEAD); e('s_cbranch_scc1 %s' % X)
        e('s_mov_b32 s%d, 0' % sPC)
        if n > 1:
            e('v_min_u32 v%d, %d, v%d' % (vT0, n - 1, vLANE)); e('v_mul_u32_u24 v%d, %d, v%d' % (vT0, stride, vT0))
        e.label(L)
        e('buffer_load_dword v%d, v%d, s[%d:%d], s%d offen sc1' % (vPOLL, vT0 if n > 1 else vZERO, srd, srd + 3, cnt_off_sgpr), count=False)
        e('s_waitcnt vmcnt(0)', count=False)
        e('v_cmp_gt_u32 vcc, %d, v%d' % (target, vPOLL))
        e('s_cbranch_vccz %s' % X)
        if self.o.get('psleep'): e('s_sleep %d' % self.o['psleep'])
        e('s_add_u32 s%d, s%d, 1' % (sPC, sPC)); e('s_cmp_lt_u32 s%d, %d' % (sPC, SPIN_LIMIT))
        e('s_cbranch_scc1 %s' % L)
        e('s_mov_b32 s%d, 1' % sDEAD)
        e.label(X)
    def cnt(self, dst, which, idx_sgpr, mul=128, add=0, next_layer=False):
        e = self.e
        e('s_mul_i32 s%d, s%d, %d' % (dst, idx_sgpr, mul))
        e('s_add_u32 s%d, s%d, s%d' % (dst, dst, sCNT))
        e('s_add_u32 s%d, s%d, 0x%x' % (dst, dst, which + add + (CSTRIDE if next_layer else 0)))
    def prologue(self):
        if self.o.get('merged', 0): return self.prologue_merged()
        e = self.e
        e.directive('.text\n.globl %s\n.p2align 8\n.type %s,@function' % (self.name, self.name))
        e.label(self.name)
        e('s_cmp_ge_u32 s2, 256'); e('s_cbranch_scc1 M_END')
        e('s_load_dwordx2 s[32:33], s[0:1], 0')
        e('s_load_dwordx2 s[34:35], s[0:1], 64')
        e('s_load_dwordx2 s[36:37], s[0:1], 80')
        self.entry_stamp()
        self.pro_scalars(); self.pro_lanes()
        e('s_waitcnt lgkmcnt(0)')
        self.mk_srd(4, 36, WS_BYTES)
        self.pro_tail(32, 34)
    def prologue_merged(self):
        import gen_prep as P
        e = self.e
        e.directive('.text\n.globl %s\n.p2align 8\n.type %s,@function' % (self.name, self.name))
        e.label(self.name)
        e('s_cmp_ge_u32 s2, 256'); e('s_cbranch_scc1 M_END')
        e('s_load_dwordx8 s[64:71], s[0:1], 0')
        e('s_load_dwordx4 s[72:75], s[0:1], 40')
        e('s_load_dwordx2 s[76:77], s[0:1], 56')
        e('s_load_dwordx2 s[78:79], s[0:1], 64')
        e('s_load_dwordx4 s[80:83], s[0:1], 72')
        self.entry_stamp()
        self.pro_scalars()
        e('s_waitcnt lgkmcnt(0)')
        self.mk_srd(4, 82, WS_BYTES)
        e('s_add_u32 s0, s2, 352\ns_sub_u32 s26, s2, 64\ns_cmp_ge_u32 s2, 160\ns_cselect_b32 s0, s26, s0\ns_cmp_lt_u32 s2, 96\ns_cselect_b32 s0, s2, s0')
        e('s_add_u32 s1, s2, 192')
        Lz = self.lab('nz')
        e('s_cmp_ge_u32 s2, 16'); e('s_cbranch_scc1 %s' % Lz)
        e('s_cmp_lg_u32 s%d, 0' % sW); e('s_cbranch_scc1 %s' % Lz)
        for k in range(4): e('v_mov_b32 v%d, 0' % (120 + k))
        e('s_lshl_b32 s26, s2, 11')
        e('buffer_store_dwordx4 v[120:123], v%d, s[4:7], s26 offen sc1' % vL16, count=False)
        e('buffer_store_dwordx4 v[120:123], v%d, s[4:7], s26 offen offset:1024 sc1' % vL16, count=False)
        e.label(Lz)
        r1 = P.Ren(e, 1, 0); r2 = P.Ren(e, 2, 1)
        L1, L2 = 0, 32768
        def dispatch(cases, sreg, tagp):
            end = self.lab(tagp)
            labs = [self.lab(tagp) for _ in cases]
            for (ub, _), lb in list(zip(cases, labs))[:-1]:
                e('s_cmp_lt_u32 s%d, %d' % (sreg, ub)); e('s_cbranch_scc1 %s' % lb)
            e('s_branch %s' % labs[-1])
            for (ub, fn), lb in zip(cases, labs):
                e.label(lb); e.reset_state(); fn()
                e.wait_lgkm0()
                e('s_branch %s' % end)
            e.label(end); e.reset_state()
        dispatch([(96, lambda: P.wa_issue(r1)), (288, lambda: P.wc_issue(r1, L1)), (None, lambda: P.x_issue(r1))], 0, 'i1')
        dispatch([(288, lambda: P.wc_issue(r2, L2)), (416, lambda: P.wd_issue(r2, L2)), (None, lambda: P.wb_issue(r2, L2))], 1, 'i2')
        if self.o.get('codepf', 1):
            Lp = self.lab('npf')
            e('s_cmp_ge_u32 s2, 64'); e('s_cbranch_scc1 %s' % Lp)
            e('s_getpc_b64 s[84:85]')
            e.label('M_PC')
            e('s_add_u32 s84, s84, (M_LAYER-M_PC)\ns_addc_u32 s85, s85, 0')
            e('v_lshlrev_b32 v124, 7, v0\nv_mov_b32 v125, (M_CODE_END-M_LAYER-4)\nv_add_u32 v126, 0x8000, v124')
            e('v_min_u32 v124, v124, v125\nv_min_u32 v126, v126, v125\nv_and_b32 v124, -4, v124\nv_and_b32 v126, -4, v126')
            e('global_load_dword v127, v124, s[84:85]', count=False)
            e('global_load_dword v127, v126, s[84:85]', count=False)
            e.label(Lp)
        self.mk_srd(84, 80, 256)
        Lf = self.lab('nf'); Lv = self.lab('nfv'); Lw = self.lab('nfw')
        e('s_cmp_ge_u32 s2, 16'); e('s_cbranch_scc1 %s' % Lf)
        e('s_cmp_lg_u32 s%d, 0' % sW); e('s_cbranch_scc1 %s' % Lf)
        npf = 2 if self.o.get('codepf', 1) else 0
        e('s_cmp_eq_u32 s31, 1'); e('s_cbranch_scc1 %s' % Lv)
        e('s_waitcnt vmcnt(%d)' % (22 + 5 + npf), count=False); e('s_branch %s' % Lw)
        e.label(Lv)
        e('s_waitcnt vmcnt(%d)' % (10 + 5 + npf), count=False)
        e.label(Lw)
        e('s_lshl_b32 s62, s2, 2\ns_mov_b64 exec, 1')
        e('buffer_store_dword v%d, v%d, s[84:87], s62 offen sc1' % (vONE, vZERO), count=False)
        e('s_mov_b64 exec, -1')
        self.stamp(27)
        e.label(Lf)
        e('s_waitcnt vmcnt(4)', count=False)
        self.stamp(19)
        dispatch([(96, lambda: P.wa_process(r1)), (288, lambda: P.wc_process(r1, L1)), (None, lambda: P.x_process(r1))], 0, 'p1')
        self.stamp(20)
        Lq = self.lab('zq')
        e('s_cmp_lg_u32 s%d, 0' % sW); e('s_cbranch_scc1 %s' % Lq)
        e('v_min_u32 v126, 15, v%d\nv_lshlrev_b32 v126, 2, v126' % vLANE)
        e('buffer_load_dword v%d, v126, s[84:87], 0 offen sc1' % vPOLL, count=False)
        e.label(Lq)
        e('s_waitcnt vmcnt(0) lgkmcnt(0)', count=False)
        e('s_barrier')
        self.stamp(26)
        def arrive(off, below=None):
            La = self.lab('arr')
            e('s_cmp_lg_u32 s%d, 0' % sW); e('s_cbranch_scc1 %s' % La)
            if below is not None:
                e('s_cmp_ge_u32 s2, %d' % below); e('s_cbranch_scc1 %s' % La)
            e('s_and_b32 s62, s2, 15\ns_lshl_b32 s62, s62, 7\ns_add_u32 s62, s62, 0x%x\ns_mov_b64 exec, 1' % off)
            e('buffer_atomic_add v%d, v%d, s[4:7], s62 offen sc1' % (vONE, vZERO), count=False)
            e('s_mov_b64 exec, -1')
            e.label(La)
        Lc = self.lab('zc'); Ls = self.lab('zcs')
        e('s_cmp_lg_u32 s%d, 0' % sW); e('s_cbranch_scc1 %s' % Lc)
        e('s_mov_b32 s%d, 0' % sPC)
        e.label(Ls)
        e('v_cmp_gt_u32 vcc, 1, v%d' % vPOLL)
        e('s_cbranch_vccz %s' % Lc)
        if self.o.get('zsleep'): e('s_sleep %d' % self.o['zsleep'])
        e('buffer_load_dword v%d, v126, s[84:87], 0 offen sc1' % vPOLL, count=False)
        e('s_waitcnt vmcnt(0)', count=False)
        e('s_add_u32 s%d, s%d, 1' % (sPC, sPC)); e('s_cmp_lt_u32 s%d, %d' % (sPC, SPIN_LIMIT)); e('s_cbranch_scc1 %s' % Ls)
        e('s_mov_b32 s%d, 1' % sDEAD)
        e.label(Lc)
        arrive(CNT_CRIT, 160)
        self.stamp(21)
        dispatch([(288, lambda: P.wc_process(r2, L2)), (416, lambda: P.wd_process(r2, L2)), (None, lambda: P.wb_process(r2, L2))], 1, 'p2')
        self.stamp(22)
        e('s_waitcnt vmcnt(0) lgkmcnt(0)', count=False)
        e('s_barrier')
        arrive(CNT_REST)
        self.stamp(25)
        self.pro_lanes()
        e('s_mov_b32 s%d, 0x%x' % (sT0, CNT_CRIT))
        self.stamp(23)
        self.poll(sT0, n=16, target=10)
        e('s_barrier')
        self.stamp(24)
        self.pro_tail(64, 78)
    def entry_stamp(self):
        if self.o.get('stamps'):
            self.e(('s_memtime' if self.o.get('cyc') else 's_memrealtime') + ' s[60:61]\ns_waitcnt lgkmcnt(0)\nv_mov_b32 v223, s60')
    def mk_srd(self, d, lo, n):
        self.e('s_mov_b32 s%d, s%d\ns_mov_b32 s%d, s%d\ns_mov_b32 s%d, 0x%x\ns_mov_b32 s%d, 0x20000' % (d, lo, d + 1, lo + 1, d + 2, n, d + 3))
    def pro_scalars(self):
        e = self.e
        e('v_lshrrev_b32 v10, 6, v0'); e('v_and_b32 v%d, 63, v0' % vLANE)
        e('v_readfirstlane_b32 s%d, v10' % sW)
        e('v_lshlrev_b32 v%d, 4, v%d' % (vL16, vLANE))
        mp = self.o.get('map', 0)
        if mp == 0:
            e('s_and_b32 s%d, s2, 3\ns_lshr_b32 s26, s2, 6\ns_lshl_b32 s26, s26, 2\ns_or_b32 s%d, s%d, s26' % (sRB, sRB, sRB))
            e('s_lshr_b32 s%d, s2, 2\ns_and_b32 s%d, s%d, 15' % (sJ, sJ, sJ))
        elif mp == 1:
            e('s_and_b32 s%d, s2, 15\ns_lshr_b32 s%d, s2, 4' % (sRB, sJ))
        elif mp == 2:
            e('s_and_b32 s%d, s2, 1\ns_lshr_b32 s26, s2, 5\ns_lshl_b32 s26, s26, 1\ns_or_b32 s%d, s%d, s26' % (sRB, sRB, sRB))
            e('s_lshr_b32 s%d, s2, 1\ns_and_b32 s%d, s%d, 15' % (sJ, sJ, sJ))
        if self.o.get('thmap', 1):
            e('s_lshr_b32 s%d, s%d, 1\ns_and_b32 s%d, s%d, 1' % (sCS, sJ, sTH, sJ))
        else:
            e('s_and_b32 s%d, s%d, 7\ns_lshr_b32 s%d, s%d, 3' % (sCS, sJ, sTH, sJ))
        e('s_mul_i32 s%d, s%d, 5120' % (sW5K, sW))
        e('s_lshr_b32 s%d, s%d, 1' % (sKH, sW))
        for (s, idx, stride, base) in ((sWA, sJ, 160 * KB, WA), (sWB, sCS, 100 * KB, WB), (sWC, sJ, 240 * KB, WC), (sWD, sCS, 240 * KB, WD)):
            if self.o.get('wsame'): stride = 0
            e('s_mul_i32 s%d, s%d, %d\ns_add_u32 s%d, s%d, s%d\ns_add_u32 s%d, s%d, 0x%x' % (s, idx, stride, s, s, sW5K, s, s, base))
        e('s_lshl_b32 s%d, s%d, 3\ns_lshl_b32 s26, s%d, 2\ns_add_u32 s%d, s%d, s26' % (sTTK, sRB, sTH, sTTK, sTTK))
        e('s_and_b32 s26, s%d, 1\ns_lshl_b32 s26, s26, 1\ns_add_u32 s%d, s%d, s26\ns_add_u32 s%d, s%d, s%d' % (sW, sTTK, sTTK, sTTK, sTTK, sKH))
        e('s_xor_b32 s%d, s%d, 1' % (sTTS, sTTK))
        e('s_mov_b32 s%d, 0\ns_mov_b32 s%d, 0\ns_mov_b32 s%d, 0x%x' % (sDEAD, sL, sLOFF, LBASE))
        e('s_mov_b32 s%d, 0x%x' % (sCNT, CNT0))
        e('s_sub_u32 s%d, s%d, 1\ns_lshl_b32 s%d, s%d, 11\ns_sub_u32 s%d, s%d, s%d' % (sEX, sW, sEX, sEX, sEXD, sEX, sW5K))
        e('v_mov_b32 v%d, 0x3f803f80\nv_mov_b32 v%d, 0\nv_mov_b32 v%d, 1' % (vONES, vZERO, vONE))
    def pro_lanes(self):
        e = self.e
        e('v_add_u32 v%d, %d, v%d' % (vL16B, 3 * BLK, vL16))
        e('v_lshlrev_b32 v%d, 7, v%d' % (vL128, vLANE))
        e('s_mul_i32 s26, s%d, 5120\nv_add_u32 v%d, s26, v%d\nv_add_u32 v%d, %d, v%d' % (sKH, vK0, vL16, vK1, 3 * BLK, vK0))
        e('v_add_u32 v%d, %d, v%d' % (vK2, 6 * BLK, vK0))
        t32, hi, t16, q = 100, 101, 102, 103
        e('v_and_b32 v%d, 31, v%d\nv_lshrrev_b32 v%d, 5, v%d' % (t32, vLANE, hi, vLANE))
        e('v_and_b32 v%d, 15, v%d\nv_lshrrev_b32 v%d, 4, v%d' % (t16, vLANE, q, vLANE))
        e('v_mov_b32 v104, 0x%x' % OOB)
        e('v_lshlrev_b32 v%d, 3, v%d\nv_lshl_add_u32 v%d, v%d, 16, v%d' % (vSA, t32, vSA, hi, vSA))
        e('s_lshl_b32 s26, s%d, 5\nv_add_u32 v105, s26, v%d\nv_mul_u32_u24 v105, 144, v105' % (sW, t32))
        e('v_mul_u32_u24 v106, 18432, v%d\nv_add_u32 v105, v105, v106\nv_add_u32 v%d, 0x%x, v105' % (hi, vTW, SCR))
        e('v_lshrrev_b32 v105, 1, v%d\nv_bfe_u32 v106, v%d, 2, 2\nv_lshl_add_u32 v105, v105, 3, v106\nv_mul_u32_u24 v105, 144, v105' % (q, vLANE))
        e('v_and_b32 v106, 1, v%d\nv_lshlrev_b32 v106, 5, v106\nv_and_b32 v107, 3, v%d\nv_lshl_add_u32 v106, v107, 3, v106\nv_add_u32 v105, v105, v106' % (q, vLANE))
        e('s_lshr_b32 s26, s%d, 1\ns_mul_i32 s26, s26, 18432\ns_add_u32 s26, s26, 0x%x' % (sW, SCR))
        e('s_and_b32 s27, s%d, 1\ns_mul_i32 s28, s27, 40\ns_add_u32 s28, s28, s26\ns_add_u32 s29, s26, 80' % sW)
        e('v_add_u32 v%d, s28, v105\nv_add_u32 v%d, s29, v105' % (vKA, vKB))
        e('s_lshl_b32 s26, s%d, 10' % sW)
        e('v_mul_u32_u24 v105, 24, v%d\nv_add_u32 v105, v105, v%d\nv_lshlrev_b32 v105, 4, v105\nv_add_u32 v105, s26, v105' % (hi, t32))
        e('v_cmp_gt_u32 vcc, 24, v%d\nv_cndmask_b32 v%d, v104, v105, vcc' % (t32, vPS1))
        e('v_lshlrev_b32 v105, 3, v%d\nv_add_u32 v105, s26, v105\nv_add_u32 v105, 768, v105' % t32)
        e('v_cmp_eq_u32 vcc, 0, v%d\nv_cndmask_b32 v%d, v104, v105, vcc' % (hi, vPS2))
        e('v_mov_b32 v106, 84\nv_cmp_le_u32 s[30:31], v106, v0\nv_cndmask_b32 v106, 0, 1, s[30:31]')
        e('v_mul_u32_u24 v107, 84, v106\nv_sub_u32 v107, v0, v107')
        e('v_mul_u32_u24 v108, 391, v107\nv_lshrrev_b32 v108, 13, v108')
        e('v_mul_u32_u24 v109, 21, v108\nv_sub_u32 v109, v107, v109')
        e('v_subrev_u32 v110, 168, v0\nv_mul_u32_u24 v111, 391, v110\nv_lshrrev_b32 v111, 13, v111\nv_and_b32 v111, 3, v111')
        e('v_mul_u32_u24 v96, 21, v111\nv_sub_u32 v96, v110, v96')
        e('v_cmp_gt_u32 vcc, 168, v0')
        e('v_lshrrev_b32 v97, 1, v108\nv_lshl_add_u32 v97, v106, 1, v97\nv_lshlrev_b32 v97, 10, v97')
        e('v_and_b32 v98, 1, v108\nv_mul_u32_u24 v98, 24, v98\nv_add_u32 v98, v98, v109\nv_lshl_add_u32 v97, v98, 4, v97')
        e('v_lshlrev_b32 v98, 10, v111\nv_lshl_add_u32 v98, v96, 3, v98\nv_add_u32 v98, 768, v98')
        e('v_cndmask_b32 v97, v98, v97, vcc')
        e('v_mov_b32 v99, 252\nv_cmp_gt_u32 s[30:31], v99, v0\nv_cndmask_b32 v%d, v104, v97, s[30:31]' % vPL)
        e('v_lshrrev_b32 v97, 1, v111\nv_cndmask_b32 v106, v97, v106, vcc')
        e('v_cndmask_b32 v108, 4, v108, vcc\nv_cndmask_b32 v109, v96, v109, vcc')
        e('v_lshrrev_b32 v110, 4, v109\nv_mul_u32_u24 v110, 5, v110\nv_add_u32 v110, v110, v108')
        e('v_and_b32 v109, 15, v109\nv_lshrrev_b32 v97, 2, v109\nv_lshlrev_b32 v97, 3, v97\nv_and_b32 v109, 3, v109\nv_add_u32 v97, v97, v109')
        e('v_mul_u32_u24 v109, 36, v106\nv_add_u32 v97, v97, v109')
        e('v_lshlrev_b32 v97, 4, v97\nv_lshl_add_u32 v97, v110, 10, v97\nv_add_u32 v97, 0x%x, v97' % SCR)
        e('v_and_b32 v105, 63, v0\nv_lshlrev_b32 v105, 4, v105\nv_add_u32 v105, 0x%x, v105' % (SCR + 12288))
        e('v_cndmask_b32 v%d, v105, v97, vcc' % vAW)
        e('v_and_b32 v98, 1, v111\nv_lshl_add_u32 v97, v98, 3, v97')
        e('v_cndmask_b32 v97, v97, v105, vcc\nv_cndmask_b32 v%d, v105, v97, s[30:31]' % vAW2)
        e('s_mul_i32 s26, s%d, 5' % sJ)
        e('v_bfe_u32 v105, v%d, 4, 1\nv_mul_u32_u24 v105, 20480, v105\nv_lshl_add_u32 v105, v%d, 4, v105' % (vLANE, t16))
        for (dst, expr) in ((vO0, 0), (vO1, 1), (vO2, None)):
            if expr is not None:
                e('v_lshl_add_u32 v106, v%d, 1, s26\nv_add_u32 v106, %d, v106' % (hi, expr))
            else:
                e('v_mov_b32 v106, s26\nv_add_u32 v106, 4, v106')
            e('v_lshrrev_b32 v107, 2, v106\nv_lshl_add_u32 v107, v107, 10, v105\nv_and_b32 v106, 3, v106\nv_lshl_add_u32 v%d, v106, 8, v107' % dst)
        e('v_lshl_add_u32 v%d, v%d, 3, v%d' % (vO2, hi, vO2))
        e('s_mul_i32 s26, s%d, 10' % sCS)
        e('s_and_b32 s27, s%d, 1\ns_lshl_b32 s27, s27, 8' % sTTK)
        e('v_lshlrev_b32 v105, 4, v%d' % t16)
        for n, (dx, dy) in enumerate(((vX0, vY0), (vX1, vY1), (vX2, vY2))):
            if n < 2: e('v_add_u32 v106, s26, v%d\nv_add_u32 v106, %d, v106' % (q, 4 * n))
            else: e('v_lshrrev_b32 v106, 1, v%d\nv_add_u32 v106, s26, v106\nv_add_u32 v106, 8, v106' % q)
            e('v_lshrrev_b32 v107, 2, v106\nv_lshl_add_u32 v107, v107, 10, v105\nv_and_b32 v108, 3, v106\nv_lshl_add_u32 v%d, v108, 8, v107' % dx)
            e('v_lshrrev_b32 v107, 1, v106\nv_lshl_add_u32 v107, v107, 10, v105\nv_and_b32 v108, 1, v106\nv_lshl_add_u32 v107, v108, 9, v107\nv_add_u32 v%d, s27, v107' % dy)
        e('v_and_b32 v106, 1, v%d\nv_lshl_add_u32 v%d, v106, 3, v%d\nv_lshl_add_u32 v%d, v106, 3, v%d' % (q, vX2, vX2, vY2, vY2))
        e('v_mul_u32_u24 v105, 1280, v%d\nv_lshl_add_u32 v%d, v%d, 4, v105\nv_lshl_add_u32 v%d, v%d, 3, v105\nv_add_u32 v%d, 128, v%d' % (t16, vR0, q, vR2, q, vR2, vR2))
        e('v_lshlrev_b32 v105, 3, v%d\nv_cmp_eq_u32 vcc, 0, v%d\nv_cndmask_b32 v%d, v104, v105, vcc\nv_lshl_add_u32 v%d, v%d, 15, v105' % (t16, q, vST, vSC, q))
        e('s_add_u32 s26, s%d, 0x%x\nv_add_u32 v%d, s26, v%d' % (sW5K, SCR, vEXW, vL16))
        e('s_xor_b32 s27, s%d, 2\ns_mul_i32 s27, s27, 5120\ns_add_u32 s27, s27, 0x%x\nv_add_u32 v%d, s27, v%d' % (sW, SCR, vEXR, vL16))
    def pro_tail(self, xlo, olo):
        e = self.e
        self.mk_srd(8, xlo, T * 1280); self.mk_srd(12, olo, T * 1280)
        if self.o.get('ampre_a', 0): self.am_a()
        for b in self.A_ack:
            for g in self.dma_ops(b): e.extend(g)
        self.side_dma(self.A_side[:1])
        for b in self.A_tail:
            for g in self.dma_ops(b):
                for x in g:
                    if isinstance(x, tuple): e(x[0], count=False)
                    else: e(x)
        self.side_dma(self.A_side[1:])
        if not self.o.get('xrlate', 1): self.xr_load()
    def xr_load(self):
        e = self.e
        e('s_mul_i32 s29, s%d, 20480\ns_mul_i32 s31, s%d, 160\ns_add_u32 s29, s29, s31' % (sTTK, sCS))
        e('buffer_load_dwordx4 v[%d:%d], v%d, s[8:11], s29 offen' % (XR, XR + 3, vR0), count=False)
        e('buffer_load_dwordx4 v[%d:%d], v%d, s[8:11], s29 offen offset:64' % (XR + 4, XR + 7, vR0), count=False)
        e('buffer_load_dwordx2 v[%d:%d], v%d, s[8:11], s29 offen' % (XR + 8, XR + 9, vR2), count=False)
    def rowstat_finish(self, S, Q, vRS, vVE, BM, tmp):
        L = []
        L.append('v_mul_f32 v%d, %s, v%d' % (S, f32bits(1.0 / 640), S))
        L.append('v_mul_f32 v%d, %s, v%d' % (Q, f32bits(1.0 / 640), Q))
        L.append('v_fma_f32 v%d, -v%d, v%d, v%d' % (Q, S, S, Q))
        L.append('v_max_f32 v%d, 0, v%d' % (Q, Q))
        L.append('v_add_f32 v%d, %s, v%d' % (vVE, f32bits(1e-5), Q))
        L.append('v_rsq_f32 v%d, v%d' % (vRS, vVE))
        L.append('v_cvt_pk_bf16_f32 v%d, -v%d, -v%d' % (tmp, S, S))
        L.append('v_and_b32 v%d, 0xffff0000, v%d' % (tmp, tmp))
        L.append('v_sub_f32 v%d, -v%d, v%d' % (tmp, S, tmp))
        L.append('v_cvt_pk_bf16_f32 v%d, -v%d, v%d' % (BM, S, tmp))
        for k in range(1, 4): L.append('v_mov_b32 v%d, v%d' % (BM + k, BM))
        return L
    def softmax_pair(self, X, vC, EP, EM, t):
        L = []
        mx, mn, ap, am, sp, sm = range(t, t + 6)
        L.append('v_max3_f32 v%d, v%d, v%d, v%d' % (mx, X[0], X[1], X[2]))
        L.append('v_min3_f32 v%d, v%d, v%d, v%d' % (mn, X[0], X[1], X[2]))
        for k in range(3, 19, 2):
            L.append('v_max3_f32 v%d, v%d, v%d, v%d' % (mx, mx, X[k], X[k + 1]))
            L.append('v_min3_f32 v%d, v%d, v%d, v%d' % (mn, mn, X[k], X[k + 1]))
        L.append('v_max_f32 v%d, v%d, v%d' % (mx, mx, X[19]))
        L.append('v_min_f32 v%d, v%d, v%d' % (mn, mn, X[19]))
        L.append('v_mul_f32 v%d, v%d, v%d' % (ap, vC, mx))
        L.append('v_mul_f32 v%d, v%d, v%d' % (am, vC, mn))
        for f in range(20):
            L.append('v_fma_f32 v%d, v%d, v%d, -v%d' % (EP + f, X[f], vC, ap))
            L.append('v_fma_f32 v%d, -v%d, v%d, v%d' % (EM + f, X[f], vC, am))
        for f in range(20):
            L.append('v_exp_f32 v%d, v%d' % (EP + f, EP + f))
            L.append('v_exp_f32 v%d, v%d' % (EM + f, EM + f))
        L.append('v_add_f32 v%d, v%d, v%d' % (sp, EP, EP + 1))
        L.append('v_add_f32 v%d, v%d, v%d' % (sm, EM, EM + 1))
        for f in range(2, 20):
            L.append('v_add_f32 v%d, v%d, v%d' % (sp, sp, EP + f))
            L.append('v_add_f32 v%d, v%d, v%d' % (sm, sm, EM + f))
        L.append('v_rcp_f32 v%d, v%d' % (sp, sp))
        L.append('v_rcp_f32 v%d, v%d' % (sm, sm))
        for f in range(20):
            L.append('v_mul_f32 v%d, v%d, v%d' % (EP + f, EP + f, sp))
            L.append('v_mul_f32 v%d, v%d, v%d' % (EM + f, EM + f, sm))
        return L
    def stamp(self, k):
        if not self.o.get('stamps'): return
        e = self.e
        e('v_mov_b32 v222, s%d' % sL)
        e('v_lshlrev_b32 v222, 5, v222\nv_add_u32 v222, %d, v222' % k)
        e('v_cmp_eq_u32 vcc, v222, v%d' % vLANE)
        e('s_memtime s[58:59]' if self.o.get('cyc') else 's_memrealtime s[58:59]')
        e('s_waitcnt lgkmcnt(0)')
        e('v_mov_b32 v222, s58')
        e('v_cndmask_b32 v223, v223, v222, vcc')
    def stamp_items(self, k):
        if self.o.get('stamps') != 2: return []
        sub = Main(None, self.o); sub.stamp(k)
        return sub.e.items
    def stamp_flush(self):
        if not self.o.get('stamps'): return
        e = self.e
        e('s_lshl_b32 s62, s2, 2\ns_add_u32 s62, s62, s%d\ns_lshl_b32 s62, s62, 8\ns_add_u32 s62, s62, 0x%x' % (sW, TSOFF))
        e('v_lshlrev_b32 v%d, 2, v%d' % (vT0, vLANE))
        e('buffer_store_dword v223, v%d, s[4:7], s62 offen' % vT0)
    def maybe_stop(self, name):
        if self.stop == name:
            self.e.wait_all(); self.e('s_endpgm'); return True
        return False
    def vm_stream(self, items):
        st = Stream()
        for it in sorted(items, key=lambda x: x[3] if len(x) > 3 else x[0]):
            st.add(it[2], it[1], it[0])
        return st
    def flat(self, groups):
        return [x for g in groups for x in g]
    def phase_a(self):
        e = self.e; o = self.o
        T0, T1, T2, T3 = ACC, ACC + 16, ACC + 32, ACC + 48
        ST, vRS, vVE, vC, BM, AM, EP, EM, P = 112, 120, 121, 122, 124, 128, 144, 164, 184
        self.stamp(0)
        L = self.lab('a_nopoll')
        e('s_cmp_eq_u32 s%d, 0' % sL); e('s_cbranch_scc1 %s' % L)
        self.cnt(sT0, CNT_XA, sRB)
        self.poll(sT0)
        e('s_barrier')
        e.label(L)
        self.stamp(1)
        e('s_lshl_b32 s%d, s%d, 2\ns_add_u32 s%d, s%d, s%d' % (sT0, sRB, sT0, sT0, sW))
        e('s_lshl_b32 s%d, s%d, 8\ns_add_u32 s%d, s%d, s%d\ns_add_u32 s%d, s%d, 0x%x' % (sT1, sT0, sT1, sT1, sLOFF, sT1, sT1, SA))
        e('s_mul_i32 s%d, s%d, 40960\ns_add_u32 s%d, s%d, s%d\ns_add_u32 s%d, s%d, 0x%x' % (sTW, sT0, sTW, sTW, sLOFF, sTW, sTW, XA))
        def tok(s):
            g = []
            if s % 4 == 0: g.append('s_add_u32 s%d, s%d, %d' % (sB0, sTW, s * 1024))
            g.append('buffer_load_dwordx4 a[%d:%d], v%d, s[4:7], s%d offen offset:%d%s' % (4 * s, 4 * s + 3, vL16, sB0, (s % 4) * 1024, self.sc))
            return g
        NPRE = o.get('a_npre', 12)
        if o.get('tt', 0): e.extend(self.touch_tok(XA))
        for s in range(NPRE): e.extend(tok(s))
        stld = []
        for k in range(4):
            if k: stld.append('s_add_u32 s%d, s%d, 16384' % (sT1, sT1))
            stld.append('buffer_load_dwordx2 v[%d:%d], v%d, s[4:7], s%d offen sc1' % (ST + 2 * k, ST + 2 * k + 1, vSA, sT1))
        e('s_lshl_b32 s%d, s%d, 12\ns_add_u32 s%d, s%d, 0x%x' % (sT2, sJ, sT2, sT2, WAM))
        amload = ['buffer_load_dwordx4 v[%d:%d], v%d, s[4:7], s%d offen offset:%d' % (AM + 4 * t, AM + 4 * t + 3, vL16, sT2, t * 1024) for t in range(4)]
        st = []
        st += ['v_add_f32 v%d, v%d, v%d' % (ST, ST, ST + 2), 'v_add_f32 v%d, v%d, v%d' % (ST + 1, ST + 1, ST + 3),
               'v_add_f32 v%d, v%d, v%d' % (ST + 4, ST + 4, ST + 6), 'v_add_f32 v%d, v%d, v%d' % (ST + 5, ST + 5, ST + 7),
               'v_add_f32 v%d, v%d, v%d' % (ST, ST, ST + 4), 'v_add_f32 v%d, v%d, v%d' % (ST + 1, ST + 1, ST + 5),
               'v_mov_b32 v%d, v%d' % (ST + 2, ST), 'v_mov_b32 v%d, v%d' % (ST + 3, ST + 1),
               'v_permlane32_swap_b32 v%d, v%d' % (ST, ST + 2), 'v_permlane32_swap_b32 v%d, v%d' % (ST + 1, ST + 3),
               'v_add_f32 v%d, v%d, v%d' % (ST, ST, ST + 2), 'v_add_f32 v%d, v%d, v%d' % (ST + 1, ST + 1, ST + 3)]
        st += self.rowstat_finish(ST, ST + 1, vRS, vVE, BM, ST + 2)
        st += ['v_mul_f32 v%d, %s, v%d' % (vC, f32bits(LOG2E), vRS)]
        LA = 5
        def frag_info(n):
            if n < 120: return n // 3, n % 3
            return n - 120, 3
        def read(n): return self.ring_read(AF + 4 * (n % 8), A0 + n // 20, (n % 20) * 1024)
        def mfma(n):
            s, tau = frag_info(n); acc = ACC + 16 * tau; a = AF + 4 * (n % 8)
            c = '0' if s == 0 else 'v[%d:%d]' % (acc, acc + 15)
            return 'v_mfma_f32_32x32x16_bf16 v[%d:%d], v[%d:%d], a[%d:%d], %s' % (acc, acc + 15, a, a + 3, 4 * s, 4 * s + 3, c)
        def mean(tau):
            acc = ACC + 16 * tau
            return 'v_mfma_f32_32x32x16_bf16 v[%d:%d], v[%d:%d], v[%d:%d], v[%d:%d]' % (acc, acc + 15, AM + 4 * tau, AM + 4 * tau + 3, BM, BM + 3, acc, acc + 15)
        ksm = self.softmax_pair([T0 + r for r in range(16)] + [T1 + r for r in range(4)], vC, EP, EM, ST)
        for d in range(10): ksm.append('v_cvt_pk_bf16_f32 v%d, v%d, v%d' % (P + d, EP + 2 * d, EP + 2 * d + 1))
        for d in range(10): ksm.append('v_cvt_pk_bf16_f32 v%d, v%d, v%d' % (P + 10 + d, EM + 2 * d, EM + 2 * d + 1))
        V = [T1 + r for r in range(4, 16)] + [T2 + r for r in range(8)]
        for f in range(20): ksm.append('v_mul_f32 v%d, v%d, v%d' % (V[f], V[f], vRS))
        for d in range(10): ksm.append('v_cvt_pk_bf16_f32 v%d, v%d, v%d' % (P + 20 + d, V[2 * d], V[2 * d + 1]))
        ksm += ['v_mov_b32 v%d, 0x3f80' % (P + 30), 'v_mov_b32 v%d, 0' % (P + 31)]
        anchors = []; pre = {}; fixed = {}; idx = {}
        KF = o.get('kvfirst', 1)
        NF1 = 140 if KF else 160
        for n in range(NF1):
            if n == 120:
                idx['mean'] = len(anchors)
                anchors += [mean(t) for t in range(3)]
            idx[n] = len(anchors)
            anchors.append(mfma(n))
            fixed[idx[n]] = ([read(n + LA)] if n + LA < NF1 else []) + ([Need('v[%d:%d]' % (AF + 4 * ((n + 1) % 8), AF + 4 * ((n + 1) % 8) + 3))] if n + 1 < NF1 else [])
        if not KF: anchors.append(mean(3))
        for ep in range(1, 7 if KF else 8):
            at = idx['mean'] if ep == 6 else idx[20 * ep]
            pre[at] = ([W_tag('blk%d' % (A0 + ep + 1))] if ep < 7 else []) + ['s_barrier']
            if self.o.get('fine') == 'a': pre[at] += self.stamp_items(19 + ep - 1)
        items = [(3 * s, 0, tok(s)) for s in range(NPRE, 40)]
        if not o.get('ampre_a', 0): items.append((90, 0, amload))
        if o.get('tw', 0): items.append((30, 0, self.touch_w('B')))
        items.append((o.get('a_stdl', 64), 0, stld))
        for b in self.A_in: items.append((20 * (b - 1), 0, self.flat(self.dma_ops(b))))
        last_in = o.get('a_lastblk', 11)
        for b in range(6, last_in + 1):
            free = 20 * (b - 5) if b - 5 < 6 else idx['mean']
            assert not KF or b <= 11
            items.append((20 * (b - 1) if b < 8 else 200 + b, free, self.flat(self.dma_ops(b))))
        if o.get('merged', 0):
            sub = Main(None, self.o); sub.nlab = self.nlab + 2000; q = sub.e
            Lr = 'M_restld'
            q('s_cmp_lg_u32 s%d, 0' % sL); q('s_cbranch_scc1 %s' % Lr)
            q('v_min_u32 v%d, 15, v%d\nv_lshlrev_b32 v%d, 7, v%d\ns_mov_b32 s%d, 0x%x' % (vT1, vLANE, vT1, vT1, sT3, CNT_REST))
            q('buffer_load_dword v%d, v%d, s[4:7], s%d offen sc1' % (vPOLL, vT1, sT3), count=False)
            q.label(Lr)
            e.extend(q.items)
            sub = Main(None, self.o); sub.nlab = self.nlab + 3000; q = sub.e
            Lk = 'M_restok'; Ll = 'M_restsp'
            q('s_cmp_lg_u32 s%d, 0' % sL); q('s_cbranch_scc1 %s' % Lk)
            q('s_mov_b32 s%d, 0' % sPC)
            q.label(Ll)
            q('v_cmp_gt_u32 vcc, 16, v%d' % vPOLL)
            q('s_cbranch_vccz %s' % Lk)
            q('s_cmp_lg_u32 s%d, 0' % sDEAD); q('s_cbranch_scc1 %s' % Lk)
            q('buffer_load_dword v%d, v%d, s[4:7], s%d offen sc1' % (vPOLL, vT1, sT3), count=False)
            q('s_waitcnt vmcnt(0)', count=False)
            q('s_add_u32 s%d, s%d, 1' % (sPC, sPC)); q('s_cmp_lt_u32 s%d, %d' % (sPC, SPIN_LIMIT)); q('s_cbranch_scc1 %s' % Ll)
            q('s_mov_b32 s%d, 1' % sDEAD)
            q.label(Lk)
            pre[idx[60]] = q.items + pre[idx[60]]
        vs = self.vm_stream(items)
        valu = Stream(st, o.get('a_stv', 90)).add(ksm, idx[120] + 1)
        if o.get('fine') == 'a0': e.extend(self.stamp_items(19))
        e.wait_tag('blk0'); e.wait_tag('blk1')
        if self.A_tail:
            Lw = self.lab('a_l0w')
            e('s_cmp_lg_u32 s%d, 0' % sL); e('s_cbranch_scc1 %s' % Lw)
            e('s_waitcnt vmcnt(0)', count=False)
            e.label(Lw)
        e('s_barrier')
        if o.get('fine') == 'a0':
            e.extend(self.stamp_items(20))
            for k, at in enumerate((1, 3, 6, 9, 12, 15, 18)):
                pre[at] = pre.get(at, []) + self.stamp_items(21 + k)
        for n in range(LA): e(read(n))
        stt = {}
        e.extend(schedule(anchors, 5, pre, fixed, [vs, valu], vm_gap=o.get('a_gap', 2), state=stt))
        if o.get('verbose'): print('a forced', stt.get('forced'), 'left', len(vs.q), len(valu.q))
        e.extend([y[0] for y in vs.q]); e.extend([y[0] for y in valu.q])
        self.a_late = list(range(last_in + 1, 13))
        self.stamp(2)
        for m in range(8):
            e('ds_write_b128 v%d, v[%d:%d] offset:%d' % (vTW, P + 4 * m, P + 4 * m + 3, 16 * m))
        e.wait_lgkm0()
        e('s_barrier')
        KD = T0
        def kvread(ks):
            b = AF + 8 * (ks % 4)
            return ['ds_read_b64_tr_b16 v[%d:%d], v%d offset:%d' % (b, b + 1, vKA, ks * 2304),
                    'ds_read_b64_tr_b16 v[%d:%d], v%d offset:%d' % (b + 2, b + 3, vKA, ks * 2304 + 576),
                    'ds_read_b64_tr_b16 v[%d:%d], v%d offset:%d' % (b + 4, b + 5, vKB, ks * 2304),
                    'ds_read_b64_tr_b16 v[%d:%d], v%d offset:%d' % (b + 6, b + 7, vKB, ks * 2304 + 576)]
        for ks in range(3): e.extend(kvread(ks))
        for ks in range(8):
            if ks + 3 < 8: e.extend(kvread(ks + 3))
            b = AF + 8 * (ks % 4)
            e('v_mfma_f32_32x32x16_bf16 v[%d:%d], v[%d:%d], v[%d:%d], %s' % (KD, KD + 15, b, b + 3, b + 4, b + 7, '0' if ks == 0 else 'v[%d:%d]' % (KD, KD + 15)))
        PK = EP
        for d in range(6): e('v_cvt_pk_bf16_f32 v%d, v%d, v%d' % (PK + d, KD + 2 * d, KD + 2 * d + 1))
        e('s_lshl_b32 s%d, s%d, 4\ns_add_u32 s%d, s%d, s%d\ns_lshl_b32 s%d, s%d, 12' % (sT0, sJ, sT0, sT0, sRB, sT0, sT0))
        e('s_add_u32 s%d, s%d, s%d\ns_add_u32 s%d, s%d, 0x%x' % (sT0, sT0, sLOFF, sT0, sT0, KVP))
        if o.get('reuse'): e('s_lshl_b32 s%d, s%d, 20\ns_add_u32 s%d, s%d, s%d' % (sT3, sL, sT0, sT0, sT3))
        e('buffer_store_dwordx4 v[%d:%d], v%d, s[4:7], s%d offen sc1' % (PK, PK + 3, vPS1, sT0))
        e('buffer_store_dwordx2 v[%d:%d], v%d, s[4:7], s%d offen sc1' % (PK + 4, PK + 5, vPS2, sT0))
        self.cnt(sT1, CNT_KV, sJ)
        kack = self.a_late if o.get('k_ack', 1) else []
        self.signal(sT1, kack)
        self.stamp(3)
        if o.get('tw', 0): e.extend(self.touch_w('C'))
        if not kack: self.side_dma(self.a_late)
        if o.get('xrlate', 1):
            Lx = self.lab('xr')
            e('s_cmp_lg_u32 s%d, 0' % sL); e('s_cbranch_scc1 %s' % Lx)
            self.xr_load()
            e.label(Lx)
        ZR = EM
        zf = ['v_mov_b32 v%d, 0' % (ZR + r) for r in range(4)]
        zf += ['v_lshlrev_b32 v%d, 4, v0' % vT1, 'v_add_u32 v%d, 0x%x, v%d' % (vT1, SCR, vT1)]
        zf += ['ds_write_b128 v%d, v[%d:%d] offset:%d' % (vT1, ZR, ZR + 3, m * 4096) for m in range(3)]
        if KF:
            an2 = []; fx2 = {}
            for n in range(NF1, NF1 + LA): e(read(n))
            for n in range(NF1, 160):
                fx2[len(an2)] = ([read(n + LA)] if n + LA < 160 else []) + ([Need('v[%d:%d]' % (AF + 4 * ((n + 1) % 8), AF + 4 * ((n + 1) % 8) + 3))] if n + 1 < 160 else [])
                an2.append(mfma(n))
            an2.append(mean(3))
            z = Stream(zf)
            e.extend(schedule(an2, 5, {}, fx2, [z]))
            e.extend([y[0] for y in z.q])
        else:
            e.extend(zf)
        Q = P
        X = [T2 + r for r in range(8, 16)] + [T3 + r for r in range(12)]
        e.extend(self.softmax_pair(X, vC, EP, EM, ST))
        order = []
        for sign in (EP, EM):
            order += [(sign + 0), (sign + 2), (sign + 8), (sign + 10), (sign + 4), (sign + 6), (sign + 12), (sign + 14)]
        order += [EP + 16, EP + 18, EM + 16, EM + 18]
        for d, r in enumerate(order): e('v_cvt_pk_bf16_f32 v%d, v%d, v%d' % (Q + d, r, r + 1))
        e.wait_lgkm0()
        self.stamp(4)
        self.poll(sT1)
        e('s_barrier')
        self.stamp(5)
        if self.maybe_stop('a1'): return True
        LD, SUM, PKK = 112, 176, 204
        e('s_lshl_b32 s%d, s%d, 16\ns_add_u32 s%d, s%d, s%d\ns_add_u32 s%d, s%d, 0x%x' % (sT0, sJ, sT0, sT0, sLOFF, sT0, sT0, KVP))
        if o.get('reuse'): e('s_lshl_b32 s%d, s%d, 20\ns_add_u32 s%d, s%d, s%d' % (sT3, sL, sT0, sT0, sT3))
        for p in range(16):
            if p: e('s_add_u32 s%d, s%d, 4096' % (sT0, sT0))
            e('buffer_load_dwordx4 v[%d:%d], v%d, s[4:7], s%d offen sc1' % (LD + 4 * p, LD + 4 * p + 3, vPL, sT0))
        e('v_mov_b32 v%d, 0x00003f80\nv_mov_b32 v%d, 0x3f800000' % (vT2, vT3))
        for k in range(8): e('v_mov_b32 v%d, 0' % (SUM + k))
        for p in range(16):
            for d in range(4):
                e('v_dot2c_f32_bf16 v%d, v%d, v%d' % (SUM + 2 * d, LD + 4 * p + d, vT2))
                e('v_dot2c_f32_bf16 v%d, v%d, v%d' % (SUM + 2 * d + 1, LD + 4 * p + d, vT3))
        for d in range(4): e('v_cvt_pk_bf16_f32 v%d, v%d, v%d' % (PKK + d, SUM + 2 * d, SUM + 2 * d + 1))
        e('ds_write_b128 v%d, v[%d:%d]' % (vAW, PKK, PKK + 3))
        e('ds_write_b64 v%d, v[%d:%d]' % (vAW2, PKK, PKK + 1))
        e.wait_lgkm0()
        e('s_barrier')
        e('v_add_u32 v%d, 0x%x, v%d' % (vT1, SCR, vL16))
        for n in range(8): e('ds_read_b128 v[%d:%d], v%d offset:%d' % (AF + 4 * n, AF + 4 * n + 3, vT1, n * 1024))
        G0, G1 = T0, T1
        for n in range(10):
            rho, s = n // 5, n % 5
            acc = G0 if rho == 0 else G1
            a = AF + 4 * (n % 8)
            e('v_mfma_f32_32x32x16_bf16 v[%d:%d], v[%d:%d], v[%d:%d], %s' % (acc, acc + 15, a, a + 3, Q + 4 * s, Q + 4 * s + 3, '0' if s == 0 else 'v[%d:%d]' % (acc, acc + 15)))
            if n < 2: e('ds_read_b128 v[%d:%d], v%d offset:%d' % (a, a + 3, vT1, (n + 8) * 1024))
        e('v_add_f32 v%d, %s, v%d' % (vT2, f32bits(1e-6), G1 + 4))
        e('v_rcp_f32 v%d, v%d' % (vT2, vT2))
        OP = 208
        src = [G0 + r for r in range(16)] + [G1 + r for r in range(4)]
        for r in src: e('v_mul_f32 v%d, v%d, v%d' % (r, r, vT2))
        for d in range(10): e('v_cvt_pk_bf16_f32 v%d, v%d, v%d' % (OP + d, src[2 * d], src[2 * d + 1]))
        e('s_lshl_b32 s%d, s%d, 3\ns_lshl_b32 s%d, s%d, 1\ns_add_u32 s%d, s%d, s%d\ns_mul_i32 s%d, s%d, 20480' % (sT0, sRB, sT1, sW, sT0, sT0, sT1, sT0, sT0))
        e('s_add_u32 s%d, s%d, s%d\ns_add_u32 s%d, s%d, 0x%x' % (sT0, sT0, sLOFF, sT0, sT0, O))
        e('buffer_store_dwordx4 v[%d:%d], v%d, s[4:7], s%d offen sc1' % (OP, OP + 3, vO0, sT0))
        e('buffer_store_dwordx4 v[%d:%d], v%d, s[4:7], s%d offen sc1' % (OP + 4, OP + 7, vO1, sT0))
        e('buffer_store_dwordx2 v[%d:%d], v%d, s[4:7], s%d offen sc1' % (OP + 8, OP + 9, vO2, sT0))
        self.stamp(6)
        self.cnt(sT1, CNT_O, sRB)
        self.signal(sT1, [C0] if o.get('o_ack', 1) else [])
        self.stamp(7)
        if not o.get('o_ack', 1): self.side_dma([C0])
        return self.maybe_stop('a')
    def gemm_bd(self, first_blk, nsteps, vs, pre_extra, valu, breg=None):
        e = self.e
        LA = 5
        nf = nsteps * 5
        def read(n):
            i, tau = n // 5, n % 5
            return self.ring_read(AF + 4 * (n % 8), first_blk + i // 2, (i & 1) * 10240 + tau * 1024, kh=True)
        def mf(n, u):
            i, tau = n // 5, n % 5
            acc = ACC + (tau * 2 + u) * 4; a = AF + 4 * (n % 8); b = breg(i, u) if breg else (2 * i + u) * 4
            c = '0' if i == 0 else 'v[%d:%d]' % (acc, acc + 3)
            return 'v_mfma_f32_16x16x32_bf16 v[%d:%d], v[%d:%d], a[%d:%d], %s' % (acc, acc + 3, a, a + 3, b, b + 3, c)
        anchors = []; pre = {}; fixed = {}
        for n in range(nf):
            anchors += [mf(n, 0), mf(n, 1)]
            if n + LA < nf: fixed[2 * n] = [read(n + LA)]
            if n + 1 < nf: fixed[2 * n + 1] = [Need('v[%d:%d]' % (AF + 4 * ((n + 1) % 8), AF + 4 * ((n + 1) % 8) + 3))]
        nep = nsteps // 2
        for ep in range(1, nep):
            pre[20 * ep] = list(pre_extra.get(ep, [])) + ([W_tag('blk%d' % (first_blk + ep + 1))] if ep + 1 < nep else []) + ['s_barrier']
            if self.o.get('fine') == 'd' and nsteps == 24: pre[20 * ep] += self.stamp_items(19 + ep - 1)
        for n in range(LA): e(read(n))
        stt = {}
        e.extend(schedule(anchors, 2, pre, fixed, [vs, valu], vm_gap=self.o.get('d_gap', 2), state=stt))
        if self.o.get('verbose'): print('bd forced', stt.get('forced'), 'left', len(vs.q), len(valu.q))
        e.extend([y[0] for y in vs.q]); e.extend([y[0] for y in valu.q])
    def bd_unpack(self):
        U = 112; L = []
        for d in range(10):
            L.append('v_lshlrev_b32 v%d, 16, v%d' % (U + 2 * d, XR + d))
            L.append('v_and_b32 v%d, 0xffff0000, v%d' % (U + 2 * d + 1, XR + d))
        return L
    def bd_epilogue(self, last_blk, final):
        e = self.e
        EX = 88
        for tau in range(5):
            a = ACC + (tau * 2 + 1) * 4
            e('ds_write_b128 v%d, v[%d:%d] offset:%d' % (vEXW, a, a + 3, tau * 1024))
        e.wait_lgkm0()
        e('s_barrier')
        for tau in range(5):
            e('ds_read_b128 v[%d:%d], v%d offset:%d' % (EX + 4 * tau, EX + 4 * tau + 3, vEXR, tau * 1024))
        U = 112
        for tau in range(5):
            a = ACC + (tau * 2) * 4
            for c in range(4):
                e('v_add_f32 v%d, v%d, v%d' % (U + 4 * tau + c, U + 4 * tau + c, a + c))
        for tau in range(5):
            for c in range(4):
                e('v_add_f32 v%d, v%d, v%d' % (U + 4 * tau + c, U + 4 * tau + c, EX + 4 * tau + c))
        for d in range(10): e('v_cvt_pk_bf16_f32 v%d, v%d, v%d' % (XR + d, U + 2 * d, U + 2 * d + 1))
        final()
    def bd_stats(self, base_off, next_layer):
        e = self.e
        S, Q = 136, 137
        e('v_mov_b32 v%d, 0\nv_mov_b32 v%d, 0' % (S, Q))
        for d in range(10):
            e('v_dot2c_f32_bf16 v%d, v%d, v%d' % (S, XR + d, vONES))
            e('v_dot2c_f32_bf16 v%d, v%d, v%d' % (Q, XR + d, XR + d))
        for sw in ('v_permlane16_swap_b32', 'v_permlane32_swap_b32'):
            e('v_mov_b32 v138, v%d\nv_mov_b32 v139, v%d' % (S, Q))
            e('%s v%d, v138\n%s v%d, v139' % (sw, S, sw, Q))
            e('v_add_f32 v%d, v%d, v138\nv_add_f32 v%d, v%d, v139' % (S, S, Q, Q))
        e('s_lshl_b32 s%d, s%d, 7\ns_lshl_b32 s%d, s%d, 14\ns_add_u32 s%d, s%d, s%d' % (sT2, sTTK, sT3, sCS, sT2, sT2, sT3))
        e('s_add_u32 s%d, s%d, s%d\ns_add_u32 s%d, s%d, 0x%x' % (sT2, sT2, sLOFF, sT2, sT2, base_off + (self.lstride if next_layer else 0)))
        if not self.o.get('nostats'): e('buffer_store_dwordx2 v[%d:%d], v%d, s[4:7], s%d offen sc1' % (S, Q, vST, sT2))
    def phase_b(self):
        e = self.e
        self.cnt(sT0, CNT_O, sRB)
        for (s, tt) in ((sB0, sTTK), (sB1, sTTS)):
            e('s_mul_i32 s%d, s%d, 20\ns_mul_i32 s%d, s%d, 10\ns_add_u32 s%d, s%d, s%d\ns_lshl_b32 s%d, s%d, 10' % (s, tt, sT1, sKH, s, s, sT1, s, s))
            e('s_add_u32 s%d, s%d, s%d\ns_add_u32 s%d, s%d, 0x%x' % (s, s, sLOFF, s, s, O))
        def tok(i, u):
            s = sB0 if u == 0 else sB1
            t = sC1 + u
            g = []
            if i % 4 == 0: g.append('s_add_u32 s%d, s%d, %d' % (t, s, i * 1024))
            g.append('buffer_load_dwordx4 a[%d:%d], v%d, s[4:7], s%d offen offset:%d%s' % ((2 * i + u) * 4, (2 * i + u) * 4 + 3, vL16, t, (i % 4) * 1024, self.sc))
            return g
        e.wait_tag('blk%d' % B0); e.wait_tag('blk%d' % (B0 + 1))
        self.poll(sT0)
        e('s_barrier')
        self.stamp(8)
        NPRE = self.o.get('b_npre', 6)
        for i in range(NPRE):
            for u in range(2): e.extend(tok(i, u))
        items = [(10 * i, 0, tok(i, 0) + tok(i, 1)) for i in range(NPRE, 10)]
        for k, b in enumerate(self.C_tail): items.append((5000 + b, 20 * (k + 1), self.flat(self.dma_ops(b))))
        vs = self.vm_stream(items)
        self.gemm_bd(B0, 10, vs, {}, Stream(self.bd_unpack(), 60))
        self.stamp(9)
        def final():
            e('s_mul_i32 s%d, s%d, 20480\ns_add_u32 s%d, s%d, s%d\ns_add_u32 s%d, s%d, 0x%x' % (sT0, sTTK, sT0, sT0, sLOFF, sT0, sT0, XC))
            e('buffer_store_dwordx4 v[%d:%d], v%d, s[4:7], s%d offen sc1' % (XR, XR + 3, vX0, sT0))
            e('buffer_store_dwordx4 v[%d:%d], v%d, s[4:7], s%d offen sc1' % (XR + 4, XR + 7, vX1, sT0))
            e('buffer_store_dwordx2 v[%d:%d], v%d, s[4:7], s%d offen sc1' % (XR + 8, XR + 9, vX2, sT0))
            self.bd_stats(SC, False)
            self.cnt(sT1, CNT_XC, sRB)
            self.signal(sT1, self.C_ack)
            self.stamp(10)
            if self.o.get('ampre', 1): self.am_c()
            self.side_dma(self.C_side)
        self.bd_epilogue(B0 + 4, final)
        return self.maybe_stop('b')
    def gelu_ops(self, accset, u, c0, c1, vVE, HP, t):
        L = []
        G = [accset + (p * 2 + u) * 4 + c for p in range(2) for c in range(4)]
        U = [accset + ((2 + p) * 2 + u) * 4 + c for p in range(2) for c in range(4)]
        g = [t + i for i in range(8)]; w = [t + 8 + i for i in range(8)]
        for h in range(2):
            R = range(4 * h, 4 * h + 4)
            for i in R: L.append('v_mul_f32 v%d, v%d, v%d' % (w[i], G[i], G[i]))
            for i in R: L.append('v_fma_f32 v%d, v%d, v%d, v%d' % (w[i], w[i], c1, c0))
            for i in R: L.append('v_mul_f32 v%d, v%d, v%d' % (w[i], w[i], G[i]))
            for i in R:
                L.append('v_exp_f32 v%d, v%d' % (w[i], w[i]))
                L.append('v_mul_f32 v%d, v%d, v%d' % (g[i], G[i], U[i]))
            for i in R: L.append('v_fma_f32 v%d, v%d, v%d, v%d' % (w[i], w[i], vVE, vVE))
            for i in R: L.append('v_rcp_f32 v%d, v%d' % (w[i], w[i]))
            for i in R: L.append('v_mul_f32 v%d, v%d, v%d' % (g[i], g[i], w[i]))
            for d in (2 * h, 2 * h + 1): L.append('v_cvt_pk_bf16_f32 v%d, v%d, v%d' % (HP + d, g[2 * d], g[2 * d + 1]))
        return L
    def check_flag(self, vreg, cnt_sgpr, target=16):
        sub = Asm()
        X = self.lab('ck'); L = self.lab('ckl')
        sub('v_cmp_gt_u32 vcc, %d, v%d' % (target, vreg))
        sub('s_cbranch_vccz %s' % X)
        sub('s_cmp_lg_u32 s%d, 0' % sDEAD); sub('s_cbranch_scc1 %s' % X)
        sub('s_mov_b32 s%d, 0' % sPC)
        sub.label(L)
        sub('buffer_load_dword v%d, v%d, s[4:7], s%d offen sc1' % (vreg, vZERO, cnt_sgpr), count=False)
        sub('s_waitcnt vmcnt(0)', count=False)
        sub('v_cmp_gt_u32 vcc, %d, v%d' % (target, vreg))
        sub('s_cbranch_vccz %s' % X)
        sub('s_add_u32 s%d, s%d, 1' % (sPC, sPC)); sub('s_cmp_lt_u32 s%d, %d' % (sPC, SPIN_LIMIT))
        sub('s_cbranch_scc1 %s' % L)
        sub('s_mov_b32 s%d, 1' % sDEAD)
        sub.label(X)
        return sub.items
    def phase_c(self):
        e = self.e; o = self.o
        ST, RS, VE, BMs, AM, GT, HP = 112, (120, 121), (122, 123), (124, 132), 136, 152, (168, 172)
        GC0, GC1 = (176, 177), (178, 179)
        k0 = -2.0 * 0.7978845608028654 * LOG2E
        self.cnt(sT0, CNT_XC, sRB)
        e('s_lshl_b32 s%d, s%d, 3\ns_lshl_b32 s%d, s%d, 1\ns_add_u32 s%d, s%d, s%d' % (sT2, sRB, sT1, sW, sT2, sT2, sT1))
        e('s_lshl_b32 s%d, s%d, 7\ns_add_u32 s%d, s%d, s%d\ns_add_u32 s%d, s%d, 0x%x' % (sT1, sT2, sT1, sT1, sLOFF, sT1, sT1, SC))
        e('s_mul_i32 s%d, s%d, 20480\ns_add_u32 s%d, s%d, s%d\ns_add_u32 s%d, s%d, 0x%x' % (sB0, sT2, sB0, sB0, sLOFF, sB0, sB0, XC))
        e('s_add_u32 s%d, s%d, 20480' % (sB1, sB0))
        e('s_mul_i32 s%d, s%d, 48\ns_add_u32 s%d, s%d, s%d\ns_lshl_b32 s%d, s%d, 10' % (sTW, sT2, sTW, sTW, sJ, sTW, sTW))
        e('s_add_u32 s%d, s%d, s%d\ns_add_u32 s%d, s%d, 0x%x' % (sTW, sTW, sLOFF, sTW, sTW, HH))
        if not o.get('ampre', 1): e('s_mul_i32 s%d, s%d, %d\ns_add_u32 s%d, s%d, 0x%x' % (sT4, sJ, 12 * KB, sT4, sT4, WCM))
        self.poll(sT0)
        e('s_barrier')
        self.stamp(11)
        def tok(s, u):
            sb = sB0 if u == 0 else sB1; t = sC1 + u
            g = []
            if s % 4 == 0: g.append('s_add_u32 s%d, s%d, %d' % (t, sb, s * 1024))
            g.append('buffer_load_dwordx4 a[%d:%d], v%d, s[4:7], s%d offen offset:%d%s' % ((2 * s + u) * 4, (2 * s + u) * 4 + 3, vL16, t, (s % 4) * 1024, self.sc))
            return g
        NPRE = o.get('c_npre', 8)
        if o.get('tt', 0): e.extend(self.touch_tok(XC))
        for s in range(NPRE):
            for u in range(2): e.extend(tok(s, u))
        stld = []
        for k in range(2):
            if k: stld.append('s_add_u32 s%d, s%d, 16384' % (sT1, sT1))
            for u in range(2):
                stld.append('buffer_load_dwordx2 v[%d:%d], v%d, s[4:7], s%d offen offset:%d sc1' % (ST + 4 * u + 2 * k, ST + 4 * u + 2 * k + 1, vSC, sT1, 128 * u))
        def amload(sg):
            pre = [] if sg == 0 else ['s_add_u32 s%d, s%d, 4096' % (sT4, sT4)]
            return pre + ['buffer_load_dwordx4 v[%d:%d], v%d, s[4:7], s%d offen offset:%d' % (AM + 4 * t, AM + 4 * t + 3, vL16, sT4, t * 1024) for t in range(4)]
        st = []
        for u in range(2):
            b = ST + 4 * u
            st += ['v_add_f32 v%d, v%d, v%d' % (b, b, b + 2), 'v_add_f32 v%d, v%d, v%d' % (b + 1, b + 1, b + 3)]
            for sw in ('v_permlane16_swap_b32', 'v_permlane32_swap_b32'):
                st += ['v_mov_b32 v%d, v%d' % (b + 2, b), 'v_mov_b32 v%d, v%d' % (b + 3, b + 1),
                       '%s v%d, v%d' % (sw, b, b + 2), '%s v%d, v%d' % (sw, b + 1, b + 3),
                       'v_add_f32 v%d, v%d, v%d' % (b, b, b + 2), 'v_add_f32 v%d, v%d, v%d' % (b + 1, b + 1, b + 3)]
            st += self.rowstat_finish(b, b + 1, RS[u], VE[u], BMs[u], b + 2)
            st += ['v_mul_f32 v%d, %s, v%d' % (GC0[u], f32bits(k0), RS[u]),
                   'v_mul_f32 v%d, v%d, v%d' % (GC1[u], RS[u], RS[u]),
                   'v_mul_f32 v%d, v%d, v%d' % (GC1[u], GC1[u], GC0[u]),
                   'v_mul_f32 v%d, %s, v%d' % (GC1[u], f32bits(0.044715), GC1[u])]
        LA = 5
        def read(n): return self.ring_read(AF + 4 * (n % 8), C0 + n // 20, (n % 20) * 1024)
        def mf(n, u):
            sg, r = n // 80, n % 80; s, tl = r // 4, r % 4
            acc = ACC + 32 * (sg & 1) + (tl * 2 + u) * 4; a = AF + 4 * (n % 8); b = (2 * s + u) * 4
            c = '0' if s == 0 else 'v[%d:%d]' % (acc, acc + 3)
            return 'v_mfma_f32_16x16x32_bf16 v[%d:%d], v[%d:%d], a[%d:%d], %s' % (acc, acc + 3, a, a + 3, b, b + 3, c)
        def mean(sg):
            L = []
            for tl in range(4):
                for u in range(2):
                    acc = ACC + 32 * (sg & 1) + (tl * 2 + u) * 4
                    L.append('v_mfma_f32_16x16x32_bf16 v[%d:%d], v[%d:%d], v[%d:%d], v[%d:%d]' % (acc, acc + 3, AM + 4 * tl, AM + 4 * tl + 3, BMs[u], BMs[u] + 3, acc, acc + 3))
            return L
        def gelu_store(sg):
            L = []
            for u in range(2):
                L += self.gelu_ops(ACC + 32 * (sg & 1), u, GC0[u], GC1[u], VE[u], HP[u], GT)
                L.append('s_add_u32 s%d, s%d, %d' % (sT5, sTW, u * 48 * 1024 + sg * 16 * 1024))
                L.append(('buffer_store_dwordx4 v[%d:%d], v%d, s[4:7], s%d offen sc1' % (HP[u], HP[u] + 3, vL16, sT5), 'h%d' % sg))
            return L
        def ix(n): return 2 * n + 8 * (n // 80)
        items = [(ix(4 * s), 0, tok(s, 0) + tok(s, 1)) for s in range(NPRE, 20)]
        for b in self.C_in:
            dl = ix(20 * (b - C0 - 1)) - (8 if (b - C0 - 1) % 4 == 0 and b > C0 + 1 else 0)
            items.append((dl, 0, self.flat(self.dma_ops(b)), dl - o.get('c_lead', 40)))
        r8 = o.get('ring8', 1)
        last_in = o.get('c_lastblk', D0 + 4 if r8 else D0 + 3)
        for b in range(C0 + 6, last_in + 1):
            free = 20 * (b - C0 - 5)
            if r8 and b >= D0: free = o.get('c_x0', 100) + 20 * (b - D0) if b < D0 + 2 else 20 * (b - 20)
            epn = b - C0 - 1
            dl = ix(20 * epn) - (8 if epn % 4 == 0 else 0) if b < D0 else 100000 + b
            early = ix(free) - (8 if free % 80 == 0 else 0)
            key = max(early, ix(76)) + (0 if b < D0 else 1)
            items.append((dl, early, self.flat(self.dma_ops(b)), key))
        if not o.get('ampre', 1): items.append((ix(60), 0, amload(0)))
        if o.get('tw', 0): items.append((ix(90), ix(84), self.touch_w('D')))
        items.append((ix(o.get('c_stdl', 36)), 0, stld))
        items.append((ix(150), ix(80), amload(1), ix(80)))
        items.append((ix(230), ix(160), amload(2), ix(160)))
        self.cnt(sT0, CNT_H, sRB, mul=384)
        FL, CKC = o.get('c_fl', 190), o.get('c_ck', 206)
        items.append((ix(CKC) - 1, ix(FL), ['buffer_load_dword v%d, v%d, s[4:7], s%d offen sc1' % (vPOLL, vZERO, sT0)], ix(FL)))
        dtoks = [self.d_tok(i, u) for i in range(8) for u in range(2)]
        for k, g in enumerate(dtoks): items.append((90000 + k, ix(CKC), g, ix(CKC) + 0.01 * k))
        vs = self.vm_stream(items)
        e.wait_tag('blk%d' % C0); e.wait_tag('blk%d' % (C0 + 1))
        e('s_barrier')
        for n in range(LA): e(read(n))
        pos = 0; cstate = {}
        for sg in range(3):
            anchors = []; pre = {}; fixed = {}
            if sg > 0: anchors += mean(sg - 1)
            for n in range(80 * sg, 80 * sg + 80):
                assert pos + len(anchors) == ix(n)
                anchors += [mf(n, 0), mf(n, 1)]
                if n + LA < 240: fixed[ix(n)] = [read(n + LA)]
                if n + 1 < 240: fixed[ix(n) + 1] = [Need('v[%d:%d]' % (AF + 4 * ((n + 1) % 8), AF + 4 * ((n + 1) % 8) + 3))]
            for ep in range(4 * sg, 4 * sg + 4):
                if ep == 0: continue
                at = ix(20 * ep) - (8 if ep % 4 == 0 else 0)
                p = [W_tag('blk%d' % (C0 + ep + 1))] if ep < 11 else []
                if ep == o.get('h0ep', 9): p.append(W_tag('h0'))
                p.append('s_barrier')
                if self.o.get('fine') == 'c': p += self.stamp_items(19 + ep - 1)
                if ep == o.get('h0ep', 9):
                    sub = Main(None, self.o); sub.nlab = self.nlab + 1000
                    sub.signal_only(sT0)
                    p += sub.e.items
                pre[at] = p
            if sg == 2:
                sub = Main(None, self.o); sub.nlab = self.nlab + 4000
                sub.d_bases()
                pre[ix(CKC)] = pre.get(ix(CKC), []) + [W_vreg(vPOLL)] + self.check_flag(vPOLL, sT0) + sub.e.items
            valu = Stream(st, ix(o.get('c_stv', 50))) if sg == 0 else Stream(gelu_store(sg - 1), pos + 10)
            e.extend(schedule(anchors, 2, pre, fixed, [vs, valu], start=pos, vm_gap=(o.get('c_gap', 4) if sg == 0 else o.get('c_gap2', 4)), state=cstate))
            e.extend([y[0] for y in valu.q])
            pos += len(anchors)
        if self.o.get('verbose'): print('c forced', cstate.get('forced'), 'left', len(vs.q))
        self.stamp(12)
        tail = mean(2) + gelu_store(2)
        left = [y[0] for y in vs.q]; del vs.q[:]
        nvm = max(1, sum(1 for x in left if is_vm(x)))
        step = max(1, (len(tail) - 8) // (nvm + 1))
        H1 = o.get('h1early', 1)
        first_store = next(n for n, x in enumerate(tail) if is_vm(x))
        for n, x in enumerate(tail):
            if left and n % step == 0:
                while left:
                    y = left.pop(0); e.extend([y])
                    if is_vm(y): break
            e.extend([x])
            if H1 and n == first_store:
                e.wait_tag('h1')
                e('s_barrier')
                self.cnt(sT2, CNT_H, sRB, mul=384, add=128)
                self.signal_only(sT2)
        e.extend(left)
        if H1: e('buffer_load_dword v%d, v%d, s[4:7], s%d offen sc1' % (vT1, vZERO, sT2))
        self.cnt(sT1, CNT_H, sRB, mul=384, add=256)
        self.signal(sT1)
        self.stamp(13)
        self.c_last = last_in
        return self.maybe_stop('c')
    def d_bases(self):
        e = self.e
        for (s, tt) in ((sB0, sTTK), (sB1, sTTS)):
            e('s_mul_i32 s%d, s%d, 48\ns_add_u32 s%d, s%d, s%d\ns_lshl_b32 s%d, s%d, 10' % (s, tt, s, s, sKH, s, s))
            e('s_add_u32 s%d, s%d, s%d\ns_add_u32 s%d, s%d, 0x%x' % (s, s, sLOFF, s, s, HH))
    def d_tok(self, i, u):
        sg, jj = i // 8, i % 8
        s = sB0 if u == 0 else sB1; t = sC1 + u
        g = []
        if jj % 2 == 0: g.append('s_add_u32 s%d, s%d, %d' % (t, s, sg * 16384 + jj * 2048))
        r = self.d_reg(i, u)
        g.append('buffer_load_dwordx4 a[%d:%d], v%d, s[4:7], s%d offen offset:%d%s' % (r, r + 3, vL16, t, (jj % 2) * 2048, self.sc))
        return g
    def d_reg(self, i, u):
        return 160 + (2 * i + u) * 4 if i < 8 else (2 * (i - 8) + u) * 4
    def phase_d(self):
        e = self.e; o = self.o
        tok = self.d_tok
        self.stamp(14)
        H1 = o.get('h1early', 1)
        CK = o.get('d_ck', 5 if H1 else 3)
        items = []
        r8 = o.get('ring8', 1); nfree = 8 if r8 else 6
        assert not (r8 and self.A_tail)
        if H1:
            e.extend(self.check_flag(vT1, sT2))
            for b in range(self.c_last + 1, D0 + nfree): items.append((20 * (b - D0 - 1), 0, self.flat(self.dma_ops(b)), 20 * (b - D0 - 1) - 25))
            for b in range(D0 + nfree, NBLK):
                early = 20 * (b - D0 - nfree + 1)
                items.append((20 * (b - D0 - 1), early, self.flat(self.dma_ops(b)), max(early, 20 * (b - D0 - 1) - 65)))
            fl = 20 * CK - o.get('d_fl', 16)
            items.append((20 * CK - 1, fl, ['buffer_load_dword v%d, v%d, s[4:7], s%d offen sc1' % (vPOLL, vZERO, sT1)], fl))
            items += [(10 * i, 0, tok(i, 0) + tok(i, 1), 10 * i - 80) for i in range(8, 16)]
            items += [(10 * i, 20 * CK, tok(i, 0) + tok(i, 1), 20 * CK + i - 16) for i in range(16, 24)]
        else:
            for b in range(self.c_last + 1, D0 + nfree): items.append((20 * (b - D0 - 1), 0, self.flat(self.dma_ops(b)), b - 200))
            for b in range(D0 + nfree, NBLK):
                early = 20 * (b - D0 - nfree + 1)
                key = (b - 200) if early < 20 * CK else 20 * (b - D0 - 1)
                items.append((20 * (b - D0 - 1), early, self.flat(self.dma_ops(b)), key))
            items.append((20 * CK - 1, 20 * CK - o.get('d_fl', 30), ['buffer_load_dword v%d, v%d, s[4:7], s%d offen sc1' % (vPOLL, vZERO, sT1)], -1))
            items += [(10 * i, 20 * CK, tok(i, 0) + tok(i, 1)) for i in range(8, 24)]
        if o.get('tw', 0): items.append((30, 0, self.touch_w('A'), -500))
        for b in self.A_tail: items.append((5000 + b, 20 * (6 + b), self.flat(self.dma_ops(b))))
        chk = [W_vreg(vPOLL)] + self.check_flag(vPOLL, sT1)
        self.gemm_bd(D0, 24, self.vm_stream(items), {CK: chk}, Stream(self.bd_unpack(), 200), self.d_reg)
        self.stamp(17)
        def final():
            L = self.lab('d_last'); X = self.lab('d_done')
            e('s_cmp_lg_u32 s%d, 0' % sL); e('s_cbranch_scc1 %s' % L)
            e('s_lshr_b32 s%d, s%d, 1\ns_mul_i32 s%d, s%d, 40960\ns_add_u32 s%d, s%d, s%d\ns_add_u32 s%d, s%d, 0x%x' % (sT0, sTTK, sT0, sT0, sT0, sT0, sLOFF, sT0, sT0, XA + self.lstride))
            e('buffer_store_dwordx4 v[%d:%d], v%d, s[4:7], s%d offen sc1' % (XR, XR + 3, vY0, sT0))
            e('buffer_store_dwordx4 v[%d:%d], v%d, s[4:7], s%d offen sc1' % (XR + 4, XR + 7, vY1, sT0))
            e('buffer_store_dwordx2 v[%d:%d], v%d, s[4:7], s%d offen sc1' % (XR + 8, XR + 9, vY2, sT0))
            self.bd_stats(SA, True)
            self.cnt(sT1, CNT_XA, sRB, next_layer=True)
            self.signal(sT1, self.A_ack)
            self.stamp(18)
            if self.o.get('ampre_a', 0): self.am_a()
            self.side_dma(self.A_side)
            e('s_branch %s' % X)
            e.label(L)
            e('s_mul_i32 s%d, s%d, 20480\ns_mul_i32 s%d, s%d, 160\ns_add_u32 s%d, s%d, s%d' % (sT0, sTTK, sT1, sCS, sT0, sT0, sT1))
            e('buffer_store_dwordx4 v[%d:%d], v%d, s[12:15], s%d offen' % (XR, XR + 3, vR0, sT0))
            e('buffer_store_dwordx4 v[%d:%d], v%d, s[12:15], s%d offen offset:64' % (XR + 4, XR + 7, vR0, sT0))
            e('buffer_store_dwordx2 v[%d:%d], v%d, s[12:15], s%d offen' % (XR + 8, XR + 9, vR2, sT0))
            self.stamp(18)
            self.stamp_flush()
            e('s_endpgm')
            e.label(X)
        self.bd_epilogue(D0 + 11, final)
        return self.maybe_stop('d')
    def build(self):
        e = self.e
        self.prologue()
        e.label('M_LAYER')
        done = self.phase_a() or self.phase_b() or self.phase_c() or self.phase_d()
        if not done:
            e('s_add_u32 s%d, s%d, 1\ns_add_u32 s%d, s%d, 0x%x\ns_add_u32 s%d, s%d, 0x%x' % (sL, sL, sLOFF, sLOFF, self.lstride, sCNT, sCNT, CSTRIDE))
            e('s_branch M_LAYER')
        e.label('M_END')
        e('s_endpgm')
        e.label('M_CODE_END')
        if self.o.get('dual'):
            out = []; inloop = False
            for I in e.items:
                out.append(I)
                if I.kind == 'label' and I.txt.startswith('M_LAYER'): inloop = True
                if inloop and I.kind == 'vm' and I.op.startswith('buffer_store') and I.txt.endswith(' sc1') and 's[4:7]' in I.txt:
                    if self.o['dual'] == 1 and ('v%d,' % vPS1 in I.txt or 'v%d,' % vPS2 in I.txt): continue
                    J = parse(I.txt[:-4], I.tag); J.count = I.count
                    out.append(J)
            e.items = out
        return e
```

```python
from asmlib import *
from layout import *

NAME = 'hedgehog_main_kernel'
KNAME = 'interleave_layers__linear_kernel_hedgehog__geglu_ffn__prompt_kernel'
BLK = 20480
SCR = 6 * BLK
LDS_TOTAL = 163840
SPIN_LIMIT = 40000
LOG2E = 1.4426950408889634
TSOFF = 0x4000000

sW, sRB, sJ, sL, sLOFF, sW5K, sWA, sWB, sWC, sWD = range(16, 26)
sT0, sT1, sT2, sT3, sT4, sT5 = range(26, 32)
sDEAD, sPC, sPV, sCS, sTH, sTTK, sTTS, sKH = range(40, 48)
sDM = 48
sTW = 49
sB0, sB1 = 50, 51
sC1, sC2, sC3, sC4 = 52, 53, 54, 55
sEX, sEXD = 56, 57
sCNT = 3
sTA, sTB = 58, 59
vL16, vLANE, vONES, vZERO, vONE, vPOLL = 1, 2, 3, 4, 5, 6
vL16B, vK0, vK1 = 7, 8, 9
vT0, vT1, vT2, vT3, vT4 = 10, 11, 12, 13, 14
vEXR = 15
AF, ACC = 16, 48
vSA, vTW, vKA, vKB, vPS1, vPS2, vPL, vAW, vO0, vO1, vO2, vX0, vX1, vX2, vY0, vY1 = range(224, 240)
XR = 240
vY2, vR0, vR2, vST, vSC, vEXW = range(250, 256)
vAW2 = 221
vK2 = 218
vL128, vTCH = 220, 219

A0, B0, C0, D0, NBLK = 0, 8, 13, 25, 37
NSIDE_A, NSIDE_C = 4, 4

def f32bits(x):
    import struct
    return '0x%08x' % struct.unpack('<I', struct.pack('<f', x))[0]

def W_vreg(r):
    return 'v_mov_b32 v%d, v%d' % (r, r)

class Main:
    def __init__(self, stop=None, opts=None):
        self.e = Asm(); self.stop = stop; self.o = opts or {}
        self.sc = '' if self.o.get('nosc1') else ' sc1'
        self.nlab = 0
        self.lstride = 0 if self.o.get('reuse') else LSTRIDE
        self.name = KNAME if self.o.get('merged', 0) else NAME
        global NSIDE_A, NSIDE_C
        NSIDE_A = self.o.get('nsa', 2); NSIDE_C = self.o.get('nsc', 2)
        dt = self.o.get('d_tail', 0); bt = self.o.get('b_tail', 0)
        self.A_tail = list(range(1, 1 + dt))
        rest = [0] + list(range(1 + dt, 6))
        na = self.o.get('a_ack', 2)
        self.A_ack, rest = rest[:na], rest[na:]
        self.A_side, self.A_in = rest[:NSIDE_A], rest[NSIDE_A:]
        self.C_tail = list(range(C0 + 1, C0 + 1 + bt))
        rest = list(range(C0 + 1 + bt, C0 + 6))
        nc = self.o.get('c_ack', 2)
        self.C_ack, rest = rest[:nc], rest[nc:]
        self.C_side, self.C_in = rest[:NSIDE_C], rest[NSIDE_C:]
    def lab(self, p):
        self.nlab += 1
        return 'M_%s_%d' % (p, self.nlab)
    def slot_of(self, b):
        if b >= D0 and self.o.get('ring8', 1):
            return {25: 6, 26: 7, 27: 1, 28: 2, 29: 3, 30: 4, 31: 5, 32: 0, 33: 6, 34: 7, 35: 1, 36: 2}[b]
        return b % 6
    def blk_src(self, b):
        if b < B0: return sWA, (b - A0) * BLK
        if b < C0: return sWB, (b - B0) * BLK
        if b < D0: return sWC, (b - C0) * BLK
        return sWD, (b - D0) * BLK
    def dma_ops(self, b, tag=None):
        nb = b % NBLK if b >= NBLK else b
        base, off = self.blk_src(nb)
        slot = self.slot_of(nb)
        tag = tag or 'blk%d' % nb
        g = []
        first = ['s_add_u32 m0, s%d, %d' % (sW5K, slot * BLK), 's_add_u32 s%d, s%d, %d' % (sDM, base, off),
                 ('buffer_load_dwordx4 v%d, s[4:7], s%d offen lds' % (vL16, sDM), tag)]
        g.append(first)
        for k in range(1, 4):
            g.append([('buffer_load_dwordx4 v%d, s[4:7], s%d offen offset:%d lds' % (vL16, sDM, k * 1024), tag)])
        g.append(['s_add_u32 m0, s%d, %d' % (sW5K, slot * BLK + 4096), 's_add_u32 s%d, s%d, %d' % (sDM, base, off + 4096),
                  ('buffer_load_dwordx4 v%d, s[4:7], s%d offen lds' % (vL16, sDM), tag)])
        return g
    def am_a(self):
        AM = 128; e = self.e
        e('s_lshl_b32 s%d, s%d, 12\ns_add_u32 s%d, s%d, 0x%x' % (sT2, sJ, sT2, sT2, WAM))
        for t in range(4): e('buffer_load_dwordx4 v[%d:%d], v%d, s[4:7], s%d offen offset:%d' % (AM + 4 * t, AM + 4 * t + 3, vL16, sT2, t * 1024))
    def am_c(self):
        AM = 136; e = self.e
        e('s_mul_i32 s%d, s%d, %d\ns_add_u32 s%d, s%d, 0x%x' % (sT4, sJ, 12 * KB, sT4, sT4, WCM))
        for t in range(4): e('buffer_load_dwordx4 v[%d:%d], v%d, s[4:7], s%d offen offset:%d' % (AM + 4 * t, AM + 4 * t + 3, vL16, sT4, t * 1024))
    def side_dma(self, blocks):
        e = self.e
        L = self.lab('side')
        e('s_cmp_eq_u32 s%d, 0' % sW); e('s_cbranch_scc1 %s' % L)
        for b in blocks:
            base, off = self.blk_src(b); slot = self.slot_of(b); tag = 'blk%d' % b
            ld = 'buffer_load_dwordx4 v%d, s[4:7], s%d offen%%s lds' % (vL16, sDM)
            e('s_add_u32 m0, s%d, %d' % (sW5K, slot * BLK)); e('s_add_u32 s%d, s%d, %d' % (sDM, base, off))
            for k in range(4): e.side(ld % (' offset:%d' % (k * 1024) if k else ''), tag)
            e('s_add_u32 m0, s%d, %d' % (sW5K, slot * BLK + 4096)); e('s_add_u32 s%d, s%d, %d' % (sDM, base, off + 4096))
            e.side(ld % '', tag)
            e('s_add_u32 m0, s%d, %d' % (sEX, slot * BLK)); e('s_add_u32 s%d, s%d, %d' % (sDM, base, off))
            e('s_add_u32 s%d, s%d, s%d' % (sDM, sDM, sEXD))
            e.side(ld % '', tag); e.side(ld % ' offset:1024', tag)
        e.label(L)
    def dma_items(self, b, earliest):
        out = []
        for g in self.dma_ops(b):
            for x in g: out.append((x, earliest))
        return out
    def touch(self, base_expr, nlines_wave, ninstr=1, sc=''):
        L = list(base_expr)
        L.append('s_mul_i32 s%d, s%d, %d' % (sTB, sW, nlines_wave * ninstr * 128))
        L.append('s_add_u32 s%d, s%d, s%d' % (sTA, sTA, sTB))
        if nlines_wave < 64:
            L.append('v_mov_b32 v%d, 0x%x' % (vT0, OOB))
            L.append('v_cmp_gt_u32 vcc, %d, v%d' % (nlines_wave, vLANE))
            L.append('v_cndmask_b32 v%d, v%d, v%d, vcc' % (vT0, vT0, vL128))
            va = vT0
        else: va = vL128
        for k in range(ninstr):
            if k: L.append('s_add_u32 s%d, s%d, %d' % (sTA, sTA, nlines_wave * 128))
            I = parse('buffer_load_dword v%d, v%d, s[4:7], s%d offen%s' % (vTCH, va, sTA, sc)); I.wr = set()
            L.append(I)
        return L
    def touch_w(self, which):
        if which == 'A':
            pre = ['s_lshr_b32 s%d, s%d, 2' % (sTA, sRB), 's_mul_i32 s%d, s%d, %d' % (sTA, sTA, 40 * KB), 's_add_u32 s%d, s%d, s%d' % (sTA, sTA, sWA), 's_sub_u32 s%d, s%d, s%d' % (sTA, sTA, sW5K)]
            return self.touch(pre, 40, 2)
        if which == 'C':
            pre = ['s_lshr_b32 s%d, s%d, 2' % (sTA, sRB), 's_mul_i32 s%d, s%d, %d' % (sTA, sTA, 60 * KB), 's_add_u32 s%d, s%d, s%d' % (sTA, sTA, sWC), 's_sub_u32 s%d, s%d, s%d' % (sTA, sTA, sW5K)]
            return self.touch(pre, 60, 2)
        idx = ['s_lshr_b32 s%d, s%d, 2' % (sTA, sRB), 's_lshl_b32 s%d, s%d, 1' % (sTA, sTA), 's_add_u32 s%d, s%d, s%d' % (sTA, sTA, sTH)]
        if which == 'B':
            return self.touch(idx + ['s_mul_i32 s%d, s%d, 12800' % (sTA, sTA), 's_add_u32 s%d, s%d, s%d' % (sTA, sTA, sWB), 's_sub_u32 s%d, s%d, s%d' % (sTA, sTA, sW5K)], 25, 1)
        if which == 'D':
            return self.touch(idx + ['s_mul_i32 s%d, s%d, 30720' % (sTA, sTA), 's_add_u32 s%d, s%d, s%d' % (sTA, sTA, sWD), 's_sub_u32 s%d, s%d, s%d' % (sTA, sTA, sW5K)], 60, 1)
    def touch_tok(self, base_off):
        pre = ['s_mul_i32 s%d, s%d, %d' % (sTA, sRB, 160 * KB), 's_lshr_b32 s%d, s%d, 1' % (sTB, sJ), 's_mul_i32 s%d, s%d, %d' % (sTB, sTB, 20 * KB),
               's_add_u32 s%d, s%d, s%d' % (sTA, sTA, sTB), 's_add_u32 s%d, s%d, s%d' % (sTA, sTA, sLOFF), 's_add_u32 s%d, s%d, 0x%x' % (sTA, sTA, base_off)]
        return self.touch(pre, 40, 1, ' sc1')
    def freed_by(self, c):
        if c <= NBLK - 7: return c + 6
        if c < NBLK - 1: return NBLK + (c - (NBLK - 7))
        return NBLK + 0
    def ring_read(self, dst, blk, off, kh=False):
        slot = self.slot_of(blk)
        base = (vK0 if kh else vL16) if slot < 3 else ((vK1 if kh else vL16B) if slot < 6 else vK2)
        assert slot < 6 or kh
        return 'ds_read_b128 v[%d:%d], v%d offset:%d' % (dst, dst + 3, base, (slot % 3) * BLK + off)
    def emit_next_layer_dma(self, b):
        e = self.e
        L = self.lab('nl')
        e('s_cmp_lg_u32 s%d, 0' % sL); e('s_cbranch_scc1 %s' % L)
        for g in self.dma_ops(b):
            for x in g:
                if isinstance(x, tuple): e(x[0], count=False)
                else: e(x)
        e.label(L)
    def signal(self, cnt_off_sgpr, ack=()):
        e = self.e
        if ack:
            e.vm_marker('pub')
            for b in ack:
                for g in self.dma_ops(b): e.extend(g)
            e.wait_tag('pub'); e.wait_lgkm0()
        else:
            e.wait_all()
        e('s_barrier')
        self.signal_only(cnt_off_sgpr)
    def signal_only(self, cnt_off_sgpr):
        e = self.e
        L = self.lab('sig')
        e('s_cmp_lg_u32 s%d, 0' % sW); e('s_cbranch_scc1 %s' % L)
        e('s_mov_b64 exec, 1')
        e('buffer_atomic_add v%d, v%d, s[4:7], s%d offen sc1' % (vONE, vZERO, cnt_off_sgpr), count=False)
        e('s_mov_b64 exec, -1')
        e.label(L)
    def poll(self, cnt_off_sgpr, n=1, target=16, srd=4, stride=128):
        e = self.e
        L = self.lab('poll'); X = self.lab('got')
        e('s_cmp_lg_u32 s%d, 0' % sW); e('s_cbranch_scc1 %s' % X)
        e('s_cmp_lg_u32 s%d, 0' % sDEAD); e('s_cbranch_scc1 %s' % X)
        e('s_mov_b32 s%d, 0' % sPC)
        if n > 1:
            e('v_min_u32 v%d, %d, v%d' % (vT0, n - 1, vLANE)); e('v_mul_u32_u24 v%d, %d, v%d' % (vT0, stride, vT0))
        e.label(L)
        e('buffer_load_dword v%d, v%d, s[%d:%d], s%d offen sc1' % (vPOLL, vT0 if n > 1 else vZERO, srd, srd + 3, cnt_off_sgpr), count=False)
        e('s_waitcnt vmcnt(0)', count=False)
        e('v_cmp_gt_u32 vcc, %d, v%d' % (target, vPOLL))
        e('s_cbranch_vccz %s' % X)
        if self.o.get('psleep'): e('s_sleep %d' % self.o['psleep'])
        e('s_add_u32 s%d, s%d, 1' % (sPC, sPC)); e('s_cmp_lt_u32 s%d, %d' % (sPC, SPIN_LIMIT))
        e('s_cbranch_scc1 %s' % L)
        e('s_mov_b32 s%d, 1' % sDEAD)
        e.label(X)
    def cnt(self, dst, which, idx_sgpr, mul=128, add=0, next_layer=False):
        e = self.e
        e('s_mul_i32 s%d, s%d, %d' % (dst, idx_sgpr, mul))
        e('s_add_u32 s%d, s%d, s%d' % (dst, dst, sCNT))
        e('s_add_u32 s%d, s%d, 0x%x' % (dst, dst, which + add + (CSTRIDE if next_layer else 0)))
    def prologue(self):
        if self.o.get('merged', 0): return self.prologue_merged()
        e = self.e
        e.directive('.text\n.globl %s\n.p2align 8\n.type %s,@function' % (self.name, self.name))
        e.label(self.name)
        e('s_cmp_ge_u32 s2, 256'); e('s_cbranch_scc1 M_END')
        e('s_load_dwordx2 s[32:33], s[0:1], 0')
        e('s_load_dwordx2 s[34:35], s[0:1], 64')
        e('s_load_dwordx2 s[36:37], s[0:1], 80')
        self.entry_stamp()
        self.pro_scalars(); self.pro_lanes()
        e('s_waitcnt lgkmcnt(0)')
        self.mk_srd(4, 36, WS_BYTES)
        self.pro_tail(32, 34)
    def prologue_merged(self):
        import gen_prep as P
        e = self.e
        e.directive('.text\n.globl %s\n.p2align 8\n.type %s,@function' % (self.name, self.name))
        e.label(self.name)
        e('s_cmp_ge_u32 s2, 256'); e('s_cbranch_scc1 M_END')
        e('s_load_dwordx8 s[64:71], s[0:1], 0')
        e('s_load_dwordx4 s[72:75], s[0:1], 40')
        e('s_load_dwordx2 s[76:77], s[0:1], 56')
        e('s_load_dwordx2 s[78:79], s[0:1], 64')
        e('s_load_dwordx4 s[80:83], s[0:1], 72')
        self.entry_stamp()
        self.pro_scalars()
        e('s_waitcnt lgkmcnt(0)')
        self.mk_srd(4, 82, WS_BYTES)
        e('s_add_u32 s0, s2, 352\ns_sub_u32 s26, s2, 64\ns_cmp_ge_u32 s2, 160\ns_cselect_b32 s0, s26, s0\ns_cmp_lt_u32 s2, 96\ns_cselect_b32 s0, s2, s0')
        e('s_add_u32 s1, s2, 192')
        Lz = self.lab('nz')
        e('s_cmp_ge_u32 s2, 16'); e('s_cbranch_scc1 %s' % Lz)
        e('s_cmp_lg_u32 s%d, 0' % sW); e('s_cbranch_scc1 %s' % Lz)
        for k in range(4): e('v_mov_b32 v%d, 0' % (120 + k))
        e('s_lshl_b32 s26, s2, 11')
        e('buffer_store_dwordx4 v[120:123], v%d, s[4:7], s26 offen sc1' % vL16, count=False)
        e('buffer_store_dwordx4 v[120:123], v%d, s[4:7], s26 offen offset:1024 sc1' % vL16, count=False)
        e.label(Lz)
        r1 = P.Ren(e, 1, 0); r2 = P.Ren(e, 2, 1)
        L1, L2 = 0, 32768
        def dispatch(cases, sreg, tagp):
            end = self.lab(tagp)
            labs = [self.lab(tagp) for _ in cases]
            for (ub, _), lb in list(zip(cases, labs))[:-1]:
                e('s_cmp_lt_u32 s%d, %d' % (sreg, ub)); e('s_cbranch_scc1 %s' % lb)
            e('s_branch %s' % labs[-1])
            for (ub, fn), lb in zip(cases, labs):
                e.label(lb); e.reset_state(); fn()
                e.wait_lgkm0()
                e('s_branch %s' % end)
            e.label(end); e.reset_state()
        dispatch([(96, lambda: P.wa_issue(r1)), (288, lambda: P.wc_issue(r1, L1)), (None, lambda: P.x_issue(r1))], 0, 'i1')
        dispatch([(288, lambda: P.wc_issue(r2, L2)), (416, lambda: P.wd_issue(r2, L2)), (None, lambda: P.wb_issue(r2, L2))], 1, 'i2')
        if self.o.get('codepf', 1):
            Lp = self.lab('npf')
            e('s_cmp_ge_u32 s2, 64'); e('s_cbranch_scc1 %s' % Lp)
            e('s_getpc_b64 s[84:85]')
            e.label('M_PC')
            e('s_add_u32 s84, s84, (M_LAYER-M_PC)\ns_addc_u32 s85, s85, 0')
            e('v_lshlrev_b32 v124, 7, v0\nv_mov_b32 v125, (M_CODE_END-M_LAYER-4)\nv_add_u32 v126, 0x8000, v124')
            e('v_min_u32 v124, v124, v125\nv_min_u32 v126, v126, v125\nv_and_b32 v124, -4, v124\nv_and_b32 v126, -4, v126')
            e('global_load_dword v127, v124, s[84:85]', count=False)
            e('global_load_dword v127, v126, s[84:85]', count=False)
            e.label(Lp)
        self.mk_srd(84, 80, 256)
        Lf = self.lab('nf'); Lv = self.lab('nfv'); Lw = self.lab('nfw')
        e('s_cmp_ge_u32 s2, 16'); e('s_cbranch_scc1 %s' % Lf)
        e('s_cmp_lg_u32 s%d, 0' % sW); e('s_cbranch_scc1 %s' % Lf)
        npf = 2 if self.o.get('codepf', 1) else 0
        e('s_cmp_eq_u32 s31, 1'); e('s_cbranch_scc1 %s' % Lv)
        e('s_waitcnt vmcnt(%d)' % (22 + 5 + npf), count=False); e('s_branch %s' % Lw)
        e.label(Lv)
        e('s_waitcnt vmcnt(%d)' % (10 + 5 + npf), count=False)
        e.label(Lw)
        e('s_lshl_b32 s62, s2, 2\ns_mov_b64 exec, 1')
        e('buffer_store_dword v%d, v%d, s[84:87], s62 offen sc1' % (vONE, vZERO), count=False)
        e('s_mov_b64 exec, -1')
        self.stamp(27)
        e.label(Lf)
        e('s_waitcnt vmcnt(4)', count=False)
        self.stamp(19)
        dispatch([(96, lambda: P.wa_process(r1)), (288, lambda: P.wc_process(r1, L1)), (None, lambda: P.x_process(r1))], 0, 'p1')
        self.stamp(20)
        Lq = self.lab('zq')
        e('s_cmp_lg_u32 s%d, 0' % sW); e('s_cbranch_scc1 %s' % Lq)
        e('v_min_u32 v126, 15, v%d\nv_lshlrev_b32 v126, 2, v126' % vLANE)
        e('buffer_load_dword v%d, v126, s[84:87], 0 offen sc1' % vPOLL, count=False)
        e.label(Lq)
        e('s_waitcnt vmcnt(0) lgkmcnt(0)', count=False)
        e('s_barrier')
        self.stamp(26)
        def arrive(off, below=None):
            La = self.lab('arr')
            e('s_cmp_lg_u32 s%d, 0' % sW); e('s_cbranch_scc1 %s' % La)
            if below is not None:
                e('s_cmp_ge_u32 s2, %d' % below); e('s_cbranch_scc1 %s' % La)
            e('s_and_b32 s62, s2, 15\ns_lshl_b32 s62, s62, 7\ns_add_u32 s62, s62, 0x%x\ns_mov_b64 exec, 1' % off)
            e('buffer_atomic_add v%d, v%d, s[4:7], s62 offen sc1' % (vONE, vZERO), count=False)
            e('s_mov_b64 exec, -1')
            e.label(La)
        Lc = self.lab('zc'); Ls = self.lab('zcs')
        e('s_cmp_lg_u32 s%d, 0' % sW); e('s_cbranch_scc1 %s' % Lc)
        e('s_mov_b32 s%d, 0' % sPC)
        e.label(Ls)
        e('v_cmp_gt_u32 vcc, 1, v%d' % vPOLL)
        e('s_cbranch_vccz %s' % Lc)
        if self.o.get('zsleep'): e('s_sleep %d' % self.o['zsleep'])
        e('buffer_load_dword v%d, v126, s[84:87], 0 offen sc1' % vPOLL, count=False)
        e('s_waitcnt vmcnt(0)', count=False)
        e('s_add_u32 s%d, s%d, 1' % (sPC, sPC)); e('s_cmp_lt_u32 s%d, %d' % (sPC, SPIN_LIMIT)); e('s_cbranch_scc1 %s' % Ls)
        e('s_mov_b32 s%d, 1' % sDEAD)
        e.label(Lc)
        arrive(CNT_CRIT, 160)
        self.stamp(21)
        dispatch([(288, lambda: P.wc_process(r2, L2)), (416, lambda: P.wd_process(r2, L2)), (None, lambda: P.wb_process(r2, L2))], 1, 'p2')
        self.stamp(22)
        e('s_waitcnt vmcnt(0) lgkmcnt(0)', count=False)
        e('s_barrier')
        arrive(CNT_REST)
        self.stamp(25)
        self.pro_lanes()
        e('s_mov_b32 s%d, 0x%x' % (sT0, CNT_CRIT))
        self.stamp(23)
        self.poll(sT0, n=16, target=10)
        e('s_barrier')
        self.stamp(24)
        self.pro_tail(64, 78)
    def entry_stamp(self):
        if self.o.get('stamps'):
            self.e(('s_memtime' if self.o.get('cyc') else 's_memrealtime') + ' s[60:61]\ns_waitcnt lgkmcnt(0)\nv_mov_b32 v223, s60')
    def mk_srd(self, d, lo, n):
        self.e('s_mov_b32 s%d, s%d\ns_mov_b32 s%d, s%d\ns_mov_b32 s%d, 0x%x\ns_mov_b32 s%d, 0x20000' % (d, lo, d + 1, lo + 1, d + 2, n, d + 3))
    def pro_scalars(self):
        e = self.e
        e('v_lshrrev_b32 v10, 6, v0'); e('v_and_b32 v%d, 63, v0' % vLANE)
        e('v_readfirstlane_b32 s%d, v10' % sW)
        e('v_lshlrev_b32 v%d, 4, v%d' % (vL16, vLANE))
        mp = self.o.get('map', 0)
        if mp == 0:
            e('s_and_b32 s%d, s2, 3\ns_lshr_b32 s26, s2, 6\ns_lshl_b32 s26, s26, 2\ns_or_b32 s%d, s%d, s26' % (sRB, sRB, sRB))
            e('s_lshr_b32 s%d, s2, 2\ns_and_b32 s%d, s%d, 15' % (sJ, sJ, sJ))
        elif mp == 1:
            e('s_and_b32 s%d, s2, 15\ns_lshr_b32 s%d, s2, 4' % (sRB, sJ))
        elif mp == 2:
            e('s_and_b32 s%d, s2, 1\ns_lshr_b32 s26, s2, 5\ns_lshl_b32 s26, s26, 1\ns_or_b32 s%d, s%d, s26' % (sRB, sRB, sRB))
            e('s_lshr_b32 s%d, s2, 1\ns_and_b32 s%d, s%d, 15' % (sJ, sJ, sJ))
        if self.o.get('thmap', 1):
            e('s_lshr_b32 s%d, s%d, 1\ns_and_b32 s%d, s%d, 1' % (sCS, sJ, sTH, sJ))
        else:
            e('s_and_b32 s%d, s%d, 7\ns_lshr_b32 s%d, s%d, 3' % (sCS, sJ, sTH, sJ))
        e('s_mul_i32 s%d, s%d, 5120' % (sW5K, sW))
        e('s_lshr_b32 s%d, s%d, 1' % (sKH, sW))
        for (s, idx, stride, base) in ((sWA, sJ, 160 * KB, WA), (sWB, sCS, 100 * KB, WB), (sWC, sJ, 240 * KB, WC), (sWD, sCS, 240 * KB, WD)):
            if self.o.get('wsame'): stride = 0
            e('s_mul_i32 s%d, s%d, %d\ns_add_u32 s%d, s%d, s%d\ns_add_u32 s%d, s%d, 0x%x' % (s, idx, stride, s, s, sW5K, s, s, base))
        e('s_lshl_b32 s%d, s%d, 3\ns_lshl_b32 s26, s%d, 2\ns_add_u32 s%d, s%d, s26' % (sTTK, sRB, sTH, sTTK, sTTK))
        e('s_and_b32 s26, s%d, 1\ns_lshl_b32 s26, s26, 1\ns_add_u32 s%d, s%d, s26\ns_add_u32 s%d, s%d, s%d' % (sW, sTTK, sTTK, sTTK, sTTK, sKH))
        e('s_xor_b32 s%d, s%d, 1' % (sTTS, sTTK))
        e('s_mov_b32 s%d, 0\ns_mov_b32 s%d, 0\ns_mov_b32 s%d, 0x%x' % (sDEAD, sL, sLOFF, LBASE))
        e('s_mov_b32 s%d, 0x%x' % (sCNT, CNT0))
        e('s_sub_u32 s%d, s%d, 1\ns_lshl_b32 s%d, s%d, 11\ns_sub_u32 s%d, s%d, s%d' % (sEX, sW, sEX, sEX, sEXD, sEX, sW5K))
        e('v_mov_b32 v%d, 0x3f803f80\nv_mov_b32 v%d, 0\nv_mov_b32 v%d, 1' % (vONES, vZERO, vONE))
    def pro_lanes(self):
        e = self.e
        e('v_add_u32 v%d, %d, v%d' % (vL16B, 3 * BLK, vL16))
        e('v_lshlrev_b32 v%d, 7, v%d' % (vL128, vLANE))
        e('s_mul_i32 s26, s%d, 5120\nv_add_u32 v%d, s26, v%d\nv_add_u32 v%d, %d, v%d' % (sKH, vK0, vL16, vK1, 3 * BLK, vK0))
        e('v_add_u32 v%d, %d, v%d' % (vK2, 6 * BLK, vK0))
        t32, hi, t16, q = 100, 101, 102, 103
        e('v_and_b32 v%d, 31, v%d\nv_lshrrev_b32 v%d, 5, v%d' % (t32, vLANE, hi, vLANE))
        e('v_and_b32 v%d, 15, v%d\nv_lshrrev_b32 v%d, 4, v%d' % (t16, vLANE, q, vLANE))
        e('v_mov_b32 v104, 0x%x' % OOB)
        e('v_lshlrev_b32 v%d, 3, v%d\nv_lshl_add_u32 v%d, v%d, 16, v%d' % (vSA, t32, vSA, hi, vSA))
        e('s_lshl_b32 s26, s%d, 5\nv_add_u32 v105, s26, v%d\nv_mul_u32_u24 v105, 144, v105' % (sW, t32))
        e('v_mul_u32_u24 v106, 18432, v%d\nv_add_u32 v105, v105, v106\nv_add_u32 v%d, 0x%x, v105' % (hi, vTW, SCR))
        e('v_lshrrev_b32 v105, 1, v%d\nv_bfe_u32 v106, v%d, 2, 2\nv_lshl_add_u32 v105, v105, 3, v106\nv_mul_u32_u24 v105, 144, v105' % (q, vLANE))
        e('v_and_b32 v106, 1, v%d\nv_lshlrev_b32 v106, 5, v106\nv_and_b32 v107, 3, v%d\nv_lshl_add_u32 v106, v107, 3, v106\nv_add_u32 v105, v105, v106' % (q, vLANE))
        e('s_lshr_b32 s26, s%d, 1\ns_mul_i32 s26, s26, 18432\ns_add_u32 s26, s26, 0x%x' % (sW, SCR))
        e('s_and_b32 s27, s%d, 1\ns_mul_i32 s28, s27, 40\ns_add_u32 s28, s28, s26\ns_add_u32 s29, s26, 80' % sW)
        e('v_add_u32 v%d, s28, v105\nv_add_u32 v%d, s29, v105' % (vKA, vKB))
        e('s_lshl_b32 s26, s%d, 10' % sW)
        e('v_mul_u32_u24 v105, 24, v%d\nv_add_u32 v105, v105, v%d\nv_lshlrev_b32 v105, 4, v105\nv_add_u32 v105, s26, v105' % (hi, t32))
        e('v_cmp_gt_u32 vcc, 24, v%d\nv_cndmask_b32 v%d, v104, v105, vcc' % (t32, vPS1))
        e('v_lshlrev_b32 v105, 3, v%d\nv_add_u32 v105, s26, v105\nv_add_u32 v105, 768, v105' % t32)
        e('v_cmp_eq_u32 vcc, 0, v%d\nv_cndmask_b32 v%d, v104, v105, vcc' % (hi, vPS2))
        e('v_mov_b32 v106, 84\nv_cmp_le_u32 s[30:31], v106, v0\nv_cndmask_b32 v106, 0, 1, s[30:31]')
        e('v_mul_u32_u24 v107, 84, v106\nv_sub_u32 v107, v0, v107')
        e('v_mul_u32_u24 v108, 391, v107\nv_lshrrev_b32 v108, 13, v108')
        e('v_mul_u32_u24 v109, 21, v108\nv_sub_u32 v109, v107, v109')
        e('v_subrev_u32 v110, 168, v0\nv_mul_u32_u24 v111, 391, v110\nv_lshrrev_b32 v111, 13, v111\nv_and_b32 v111, 3, v111')
        e('v_mul_u32_u24 v96, 21, v111\nv_sub_u32 v96, v110, v96')
        e('v_cmp_gt_u32 vcc, 168, v0')
        e('v_lshrrev_b32 v97, 1, v108\nv_lshl_add_u32 v97, v106, 1, v97\nv_lshlrev_b32 v97, 10, v97')
        e('v_and_b32 v98, 1, v108\nv_mul_u32_u24 v98, 24, v98\nv_add_u32 v98, v98, v109\nv_lshl_add_u32 v97, v98, 4, v97')
        e('v_lshlrev_b32 v98, 10, v111\nv_lshl_add_u32 v98, v96, 3, v98\nv_add_u32 v98, 768, v98')
        e('v_cndmask_b32 v97, v98, v97, vcc')
        e('v_mov_b32 v99, 252\nv_cmp_gt_u32 s[30:31], v99, v0\nv_cndmask_b32 v%d, v104, v97, s[30:31]' % vPL)
        e('v_lshrrev_b32 v97, 1, v111\nv_cndmask_b32 v106, v97, v106, vcc')
        e('v_cndmask_b32 v108, 4, v108, vcc\nv_cndmask_b32 v109, v96, v109, vcc')
        e('v_lshrrev_b32 v110, 4, v109\nv_mul_u32_u24 v110, 5, v110\nv_add_u32 v110, v110, v108')
        e('v_and_b32 v109, 15, v109\nv_lshrrev_b32 v97, 2, v109\nv_lshlrev_b32 v97, 3, v97\nv_and_b32 v109, 3, v109\nv_add_u32 v97, v97, v109')
        e('v_mul_u32_u24 v109, 36, v106\nv_add_u32 v97, v97, v109')
        e('v_lshlrev_b32 v97, 4, v97\nv_lshl_add_u32 v97, v110, 10, v97\nv_add_u32 v97, 0x%x, v97' % SCR)
        e('v_and_b32 v105, 63, v0\nv_lshlrev_b32 v105, 4, v105\nv_add_u32 v105, 0x%x, v105' % (SCR + 12288))
        e('v_cndmask_b32 v%d, v105, v97, vcc' % vAW)
        e('v_and_b32 v98, 1, v111\nv_lshl_add_u32 v97, v98, 3, v97')
        e('v_cndmask_b32 v97, v97, v105, vcc\nv_cndmask_b32 v%d, v105, v97, s[30:31]' % vAW2)
        e('s_mul_i32 s26, s%d, 5' % sJ)
        e('v_bfe_u32 v105, v%d, 4, 1\nv_mul_u32_u24 v105, 20480, v105\nv_lshl_add_u32 v105, v%d, 4, v105' % (vLANE, t16))
        for (dst, expr) in ((vO0, 0), (vO1, 1), (vO2, None)):
            if expr is not None:
                e('v_lshl_add_u32 v106, v%d, 1, s26\nv_add_u32 v106, %d, v106' % (hi, expr))
            else:
                e('v_mov_b32 v106, s26\nv_add_u32 v106, 4, v106')
            e('v_lshrrev_b32 v107, 2, v106\nv_lshl_add_u32 v107, v107, 10, v105\nv_and_b32 v106, 3, v106\nv_lshl_add_u32 v%d, v106, 8, v107' % dst)
        e('v_lshl_add_u32 v%d, v%d, 3, v%d' % (vO2, hi, vO2))
        e('s_mul_i32 s26, s%d, 10' % sCS)
        e('s_and_b32 s27, s%d, 1\ns_lshl_b32 s27, s27, 8' % sTTK)
        e('v_lshlrev_b32 v105, 4, v%d' % t16)
        for n, (dx, dy) in enumerate(((vX0, vY0), (vX1, vY1), (vX2, vY2))):
            if n < 2: e('v_add_u32 v106, s26, v%d\nv_add_u32 v106, %d, v106' % (q, 4 * n))
            else: e('v_lshrrev_b32 v106, 1, v%d\nv_add_u32 v106, s26, v106\nv_add_u32 v106, 8, v106' % q)
            e('v_lshrrev_b32 v107, 2, v106\nv_lshl_add_u32 v107, v107, 10, v105\nv_and_b32 v108, 3, v106\nv_lshl_add_u32 v%d, v108, 8, v107' % dx)
            e('v_lshrrev_b32 v107, 1, v106\nv_lshl_add_u32 v107, v107, 10, v105\nv_and_b32 v108, 1, v106\nv_lshl_add_u32 v107, v108, 9, v107\nv_add_u32 v%d, s27, v107' % dy)
        e('v_and_b32 v106, 1, v%d\nv_lshl_add_u32 v%d, v106, 3, v%d\nv_lshl_add_u32 v%d, v106, 3, v%d' % (q, vX2, vX2, vY2, vY2))
        e('v_mul_u32_u24 v105, 1280, v%d\nv_lshl_add_u32 v%d, v%d, 4, v105\nv_lshl_add_u32 v%d, v%d, 3, v105\nv_add_u32 v%d, 128, v%d' % (t16, vR0, q, vR2, q, vR2, vR2))
        e('v_lshlrev_b32 v105, 3, v%d\nv_cmp_eq_u32 vcc, 0, v%d\nv_cndmask_b32 v%d, v104, v105, vcc\nv_lshl_add_u32 v%d, v%d, 15, v105' % (t16, q, vST, vSC, q))
        e('s_add_u32 s26, s%d, 0x%x\nv_add_u32 v%d, s26, v%d' % (sW5K, SCR, vEXW, vL16))
        e('s_xor_b32 s27, s%d, 2\ns_mul_i32 s27, s27, 5120\ns_add_u32 s27, s27, 0x%x\nv_add_u32 v%d, s27, v%d' % (sW, SCR, vEXR, vL16))
    def pro_tail(self, xlo, olo):
        e = self.e
        self.mk_srd(8, xlo, T * 1280); self.mk_srd(12, olo, T * 1280)
        if self.o.get('ampre_a', 0): self.am_a()
        for b in self.A_ack:
            for g in self.dma_ops(b): e.extend(g)
        self.side_dma(self.A_side[:1])
        for b in self.A_tail:
            for g in self.dma_ops(b):
                for x in g:
                    if isinstance(x, tuple): e(x[0], count=False)
                    else: e(x)
        self.side_dma(self.A_side[1:])
        if not self.o.get('xrlate', 1): self.xr_load()
    def xr_load(self):
        e = self.e
        e('s_mul_i32 s29, s%d, 20480\ns_mul_i32 s31, s%d, 160\ns_add_u32 s29, s29, s31' % (sTTK, sCS))
        e('buffer_load_dwordx4 v[%d:%d], v%d, s[8:11], s29 offen' % (XR, XR + 3, vR0), count=False)
        e('buffer_load_dwordx4 v[%d:%d], v%d, s[8:11], s29 offen offset:64' % (XR + 4, XR + 7, vR0), count=False)
        e('buffer_load_dwordx2 v[%d:%d], v%d, s[8:11], s29 offen' % (XR + 8, XR + 9, vR2), count=False)
    def rowstat_finish(self, S, Q, vRS, vVE, BM, tmp):
        L = []
        L.append('v_mul_f32 v%d, %s, v%d' % (S, f32bits(1.0 / 640), S))
        L.append('v_mul_f32 v%d, %s, v%d' % (Q, f32bits(1.0 / 640), Q))
        L.append('v_fma_f32 v%d, -v%d, v%d, v%d' % (Q, S, S, Q))
        L.append('v_max_f32 v%d, 0, v%d' % (Q, Q))
        L.append('v_add_f32 v%d, %s, v%d' % (vVE, f32bits(1e-5), Q))
        L.append('v_rsq_f32 v%d, v%d' % (vRS, vVE))
        L.append('v_cvt_pk_bf16_f32 v%d, -v%d, -v%d' % (tmp, S, S))
        L.append('v_and_b32 v%d, 0xffff0000, v%d' % (tmp, tmp))
        L.append('v_sub_f32 v%d, -v%d, v%d' % (tmp, S, tmp))
        L.append('v_cvt_pk_bf16_f32 v%d, -v%d, v%d' % (BM, S, tmp))
        for k in range(1, 4): L.append('v_mov_b32 v%d, v%d' % (BM + k, BM))
        return L
    def softmax_pair(self, X, vC, EP, EM, t):
        L = []
        mx, mn, ap, am, sp, sm = range(t, t + 6)
        L.append('v_max3_f32 v%d, v%d, v%d, v%d' % (mx, X[0], X[1], X[2]))
        L.append('v_min3_f32 v%d, v%d, v%d, v%d' % (mn, X[0], X[1], X[2]))
        for k in range(3, 19, 2):
            L.append('v_max3_f32 v%d, v%d, v%d, v%d' % (mx, mx, X[k], X[k + 1]))
            L.append('v_min3_f32 v%d, v%d, v%d, v%d' % (mn, mn, X[k], X[k + 1]))
        L.append('v_max_f32 v%d, v%d, v%d' % (mx, mx, X[19]))
        L.append('v_min_f32 v%d, v%d, v%d' % (mn, mn, X[19]))
        L.append('v_mul_f32 v%d, v%d, v%d' % (ap, vC, mx))
        L.append('v_mul_f32 v%d, v%d, v%d' % (am, vC, mn))
        for f in range(20):
            L.append('v_fma_f32 v%d, v%d, v%d, -v%d' % (EP + f, X[f], vC, ap))
            L.append('v_fma_f32 v%d, -v%d, v%d, v%d' % (EM + f, X[f], vC, am))
        for f in range(20):
            L.append('v_exp_f32 v%d, v%d' % (EP + f, EP + f))
            L.append('v_exp_f32 v%d, v%d' % (EM + f, EM + f))
        L.append('v_add_f32 v%d, v%d, v%d' % (sp, EP, EP + 1))
        L.append('v_add_f32 v%d, v%d, v%d' % (sm, EM, EM + 1))
        for f in range(2, 20):
            L.append('v_add_f32 v%d, v%d, v%d' % (sp, sp, EP + f))
            L.append('v_add_f32 v%d, v%d, v%d' % (sm, sm, EM + f))
        L.append('v_rcp_f32 v%d, v%d' % (sp, sp))
        L.append('v_rcp_f32 v%d, v%d' % (sm, sm))
        for f in range(20):
            L.append('v_mul_f32 v%d, v%d, v%d' % (EP + f, EP + f, sp))
            L.append('v_mul_f32 v%d, v%d, v%d' % (EM + f, EM + f, sm))
        return L
    def stamp(self, k):
        if not self.o.get('stamps'): return
        e = self.e
        e('v_mov_b32 v222, s%d' % sL)
        e('v_lshlrev_b32 v222, 5, v222\nv_add_u32 v222, %d, v222' % k)
        e('v_cmp_eq_u32 vcc, v222, v%d' % vLANE)
        e('s_memtime s[58:59]' if self.o.get('cyc') else 's_memrealtime s[58:59]')
        e('s_waitcnt lgkmcnt(0)')
        e('v_mov_b32 v222, s58')
        e('v_cndmask_b32 v223, v223, v222, vcc')
    def stamp_items(self, k):
        if self.o.get('stamps') != 2: return []
        sub = Main(None, self.o); sub.stamp(k)
        return sub.e.items
    def stamp_flush(self):
        if not self.o.get('stamps'): return
        e = self.e
        e('s_lshl_b32 s62, s2, 2\ns_add_u32 s62, s62, s%d\ns_lshl_b32 s62, s62, 8\ns_add_u32 s62, s62, 0x%x' % (sW, TSOFF))
        e('v_lshlrev_b32 v%d, 2, v%d' % (vT0, vLANE))
        e('buffer_store_dword v223, v%d, s[4:7], s62 offen' % vT0)
    def maybe_stop(self, name):
        if self.stop == name:
            self.e.wait_all(); self.e('s_endpgm'); return True
        return False
    def vm_stream(self, items):
        st = Stream()
        for it in sorted(items, key=lambda x: x[3] if len(x) > 3 else x[0]):
            st.add(it[2], it[1], it[0])
        return st
    def flat(self, groups):
        return [x for g in groups for x in g]
    def phase_a(self):
        e = self.e; o = self.o
        T0, T1, T2, T3 = ACC, ACC + 16, ACC + 32, ACC + 48
        ST, vRS, vVE, vC, BM, AM, EP, EM, P = 112, 120, 121, 122, 124, 128, 144, 164, 184
        self.stamp(0)
        L = self.lab('a_nopoll')
        e('s_cmp_eq_u32 s%d, 0' % sL); e('s_cbranch_scc1 %s' % L)
        self.cnt(sT0, CNT_XA, sRB)
        self.poll(sT0)
        e('s_barrier')
        e.label(L)
        self.stamp(1)
        e('s_lshl_b32 s%d, s%d, 2\ns_add_u32 s%d, s%d, s%d' % (sT0, sRB, sT0, sT0, sW))
        e('s_lshl_b32 s%d, s%d, 8\ns_add_u32 s%d, s%d, s%d\ns_add_u32 s%d, s%d, 0x%x' % (sT1, sT0, sT1, sT1, sLOFF, sT1, sT1, SA))
        e('s_mul_i32 s%d, s%d, 40960\ns_add_u32 s%d, s%d, s%d\ns_add_u32 s%d, s%d, 0x%x' % (sTW, sT0, sTW, sTW, sLOFF, sTW, sTW, XA))
        def tok(s):
            g = []
            if s % 4 == 0: g.append('s_add_u32 s%d, s%d, %d' % (sB0, sTW, s * 1024))
            g.append('buffer_load_dwordx4 a[%d:%d], v%d, s[4:7], s%d offen offset:%d%s' % (4 * s, 4 * s + 3, vL16, sB0, (s % 4) * 1024, self.sc))
            return g
        NPRE = o.get('a_npre', 12)
        if o.get('tt', 0): e.extend(self.touch_tok(XA))
        for s in range(NPRE): e.extend(tok(s))
        stld = []
        for k in range(4):
            if k: stld.append('s_add_u32 s%d, s%d, 16384' % (sT1, sT1))
            stld.append('buffer_load_dwordx2 v[%d:%d], v%d, s[4:7], s%d offen sc1' % (ST + 2 * k, ST + 2 * k + 1, vSA, sT1))
        e('s_lshl_b32 s%d, s%d, 12\ns_add_u32 s%d, s%d, 0x%x' % (sT2, sJ, sT2, sT2, WAM))
        amload = ['buffer_load_dwordx4 v[%d:%d], v%d, s[4:7], s%d offen offset:%d' % (AM + 4 * t, AM + 4 * t + 3, vL16, sT2, t * 1024) for t in range(4)]
        st = []
        st += ['v_add_f32 v%d, v%d, v%d' % (ST, ST, ST + 2), 'v_add_f32 v%d, v%d, v%d' % (ST + 1, ST + 1, ST + 3),
               'v_add_f32 v%d, v%d, v%d' % (ST + 4, ST + 4, ST + 6), 'v_add_f32 v%d, v%d, v%d' % (ST + 5, ST + 5, ST + 7),
               'v_add_f32 v%d, v%d, v%d' % (ST, ST, ST + 4), 'v_add_f32 v%d, v%d, v%d' % (ST + 1, ST + 1, ST + 5),
               'v_mov_b32 v%d, v%d' % (ST + 2, ST), 'v_mov_b32 v%d, v%d' % (ST + 3, ST + 1),
               'v_permlane32_swap_b32 v%d, v%d' % (ST, ST + 2), 'v_permlane32_swap_b32 v%d, v%d' % (ST + 1, ST + 3),
               'v_add_f32 v%d, v%d, v%d' % (ST, ST, ST + 2), 'v_add_f32 v%d, v%d, v%d' % (ST + 1, ST + 1, ST + 3)]
        st += self.rowstat_finish(ST, ST + 1, vRS, vVE, BM, ST + 2)
        st += ['v_mul_f32 v%d, %s, v%d' % (vC, f32bits(LOG2E), vRS)]
        LA = 5
        def frag_info(n):
            if n < 120: return n // 3, n % 3
            return n - 120, 3
        def read(n): return self.ring_read(AF + 4 * (n % 8), A0 + n // 20, (n % 20) * 1024)
        def mfma(n):
            s, tau = frag_info(n); acc = ACC + 16 * tau; a = AF + 4 * (n % 8)
            c = '0' if s == 0 else 'v[%d:%d]' % (acc, acc + 15)
            return 'v_mfma_f32_32x32x16_bf16 v[%d:%d], v[%d:%d], a[%d:%d], %s' % (acc, acc + 15, a, a + 3, 4 * s, 4 * s + 3, c)
        def mean(tau):
            acc = ACC + 16 * tau
            return 'v_mfma_f32_32x32x16_bf16 v[%d:%d], v[%d:%d], v[%d:%d], v[%d:%d]' % (acc, acc + 15, AM + 4 * tau, AM + 4 * tau + 3, BM, BM + 3, acc, acc + 15)
        ksm = self.softmax_pair([T0 + r for r in range(16)] + [T1 + r for r in range(4)], vC, EP, EM, ST)
        for d in range(10): ksm.append('v_cvt_pk_bf16_f32 v%d, v%d, v%d' % (P + d, EP + 2 * d, EP + 2 * d + 1))
        for d in range(10): ksm.append('v_cvt_pk_bf16_f32 v%d, v%d, v%d' % (P + 10 + d, EM + 2 * d, EM + 2 * d + 1))
        V = [T1 + r for r in range(4, 16)] + [T2 + r for r in range(8)]
        for f in range(20): ksm.append('v_mul_f32 v%d, v%d, v%d' % (V[f], V[f], vRS))
        for d in range(10): ksm.append('v_cvt_pk_bf16_f32 v%d, v%d, v%d' % (P + 20 + d, V[2 * d], V[2 * d + 1]))
        ksm += ['v_mov_b32 v%d, 0x3f80' % (P + 30), 'v_mov_b32 v%d, 0' % (P + 31)]
        anchors = []; pre = {}; fixed = {}; idx = {}
        KF = o.get('kvfirst', 1)
        NF1 = 140 if KF else 160
        for n in range(NF1):
            if n == 120:
                idx['mean'] = len(anchors)
                anchors += [mean(t) for t in range(3)]
            idx[n] = len(anchors)
            anchors.append(mfma(n))
            fixed[idx[n]] = ([read(n + LA)] if n + LA < NF1 else []) + ([Need('v[%d:%d]' % (AF + 4 * ((n + 1) % 8), AF + 4 * ((n + 1) % 8) + 3))] if n + 1 < NF1 else [])
        if not KF: anchors.append(mean(3))
        for ep in range(1, 7 if KF else 8):
            at = idx['mean'] if ep == 6 else idx[20 * ep]
            pre[at] = ([W_tag('blk%d' % (A0 + ep + 1))] if ep < 7 else []) + ['s_barrier']
            if self.o.get('fine') == 'a': pre[at] += self.stamp_items(19 + ep - 1)
        items = [(3 * s, 0, tok(s)) for s in range(NPRE, 40)]
        if not o.get('ampre_a', 0): items.append((90, 0, amload))
        if o.get('tw', 0): items.append((30, 0, self.touch_w('B')))
        items.append((o.get('a_stdl', 64), 0, stld))
        for b in self.A_in: items.append((20 * (b - 1), 0, self.flat(self.dma_ops(b))))
        last_in = o.get('a_lastblk', 11)
        for b in range(6, last_in + 1):
            free = 20 * (b - 5) if b - 5 < 6 else idx['mean']
            assert not KF or b <= 11
            items.append((20 * (b - 1) if b < 8 else 200 + b, free, self.flat(self.dma_ops(b))))
        if o.get('merged', 0):
            sub = Main(None, self.o); sub.nlab = self.nlab + 2000; q = sub.e
            Lr = 'M_restld'
            q('s_cmp_lg_u32 s%d, 0' % sL); q('s_cbranch_scc1 %s' % Lr)
            q('v_min_u32 v%d, 15, v%d\nv_lshlrev_b32 v%d, 7, v%d\ns_mov_b32 s%d, 0x%x' % (vT1, vLANE, vT1, vT1, sT3, CNT_REST))
            q('buffer_load_dword v%d, v%d, s[4:7], s%d offen sc1' % (vPOLL, vT1, sT3), count=False)
            q.label(Lr)
            e.extend(q.items)
            sub = Main(None, self.o); sub.nlab = self.nlab + 3000; q = sub.e
            Lk = 'M_restok'; Ll = 'M_restsp'
            q('s_cmp_lg_u32 s%d, 0' % sL); q('s_cbranch_scc1 %s' % Lk)
            q('s_mov_b32 s%d, 0' % sPC)
            q.label(Ll)
            q('v_cmp_gt_u32 vcc, 16, v%d' % vPOLL)
            q('s_cbranch_vccz %s' % Lk)
            q('s_cmp_lg_u32 s%d, 0' % sDEAD); q('s_cbranch_scc1 %s' % Lk)
            q('buffer_load_dword v%d, v%d, s[4:7], s%d offen sc1' % (vPOLL, vT1, sT3), count=False)
            q('s_waitcnt vmcnt(0)', count=False)
            q('s_add_u32 s%d, s%d, 1' % (sPC, sPC)); q('s_cmp_lt_u32 s%d, %d' % (sPC, SPIN_LIMIT)); q('s_cbranch_scc1 %s' % Ll)
            q('s_mov_b32 s%d, 1' % sDEAD)
            q.label(Lk)
            pre[idx[60]] = q.items + pre[idx[60]]
        vs = self.vm_stream(items)
        valu = Stream(st, o.get('a_stv', 90)).add(ksm, idx[120] + 1)
        if o.get('fine') == 'a0': e.extend(self.stamp_items(19))
        e.wait_tag('blk0'); e.wait_tag('blk1')
        if self.A_tail:
            Lw = self.lab('a_l0w')
            e('s_cmp_lg_u32 s%d, 0' % sL); e('s_cbranch_scc1 %s' % Lw)
            e('s_waitcnt vmcnt(0)', count=False)
            e.label(Lw)
        e('s_barrier')
        if o.get('fine') == 'a0':
            e.extend(self.stamp_items(20))
            for k, at in enumerate((1, 3, 6, 9, 12, 15, 18)):
                pre[at] = pre.get(at, []) + self.stamp_items(21 + k)
        for n in range(LA): e(read(n))
        stt = {}
        e.extend(schedule(anchors, 5, pre, fixed, [vs, valu], vm_gap=o.get('a_gap', 2), state=stt))
        if o.get('verbose'): print('a forced', stt.get('forced'), 'left', len(vs.q), len(valu.q))
        e.extend([y[0] for y in vs.q]); e.extend([y[0] for y in valu.q])
        self.a_late = list(range(last_in + 1, 13))
        self.stamp(2)
        for m in range(8):
            e('ds_write_b128 v%d, v[%d:%d] offset:%d' % (vTW, P + 4 * m, P + 4 * m + 3, 16 * m))
        e.wait_lgkm0()
        e('s_barrier')
        KD = T0
        def kvread(ks):
            b = AF + 8 * (ks % 4)
            return ['ds_read_b64_tr_b16 v[%d:%d], v%d offset:%d' % (b, b + 1, vKA, ks * 2304),
                    'ds_read_b64_tr_b16 v[%d:%d], v%d offset:%d' % (b + 2, b + 3, vKA, ks * 2304 + 576),
                    'ds_read_b64_tr_b16 v[%d:%d], v%d offset:%d' % (b + 4, b + 5, vKB, ks * 2304),
                    'ds_read_b64_tr_b16 v[%d:%d], v%d offset:%d' % (b + 6, b + 7, vKB, ks * 2304 + 576)]
        for ks in range(3): e.extend(kvread(ks))
        for ks in range(8):
            if ks + 3 < 8: e.extend(kvread(ks + 3))
            b = AF + 8 * (ks % 4)
            e('v_mfma_f32_32x32x16_bf16 v[%d:%d], v[%d:%d], v[%d:%d], %s' % (KD, KD + 15, b, b + 3, b + 4, b + 7, '0' if ks == 0 else 'v[%d:%d]' % (KD, KD + 15)))
        PK = EP
        for d in range(6): e('v_cvt_pk_bf16_f32 v%d, v%d, v%d' % (PK + d, KD + 2 * d, KD + 2 * d + 1))
        e('s_lshl_b32 s%d, s%d, 4\ns_add_u32 s%d, s%d, s%d\ns_lshl_b32 s%d, s%d, 12' % (sT0, sJ, sT0, sT0, sRB, sT0, sT0))
        e('s_add_u32 s%d, s%d, s%d\ns_add_u32 s%d, s%d, 0x%x' % (sT0, sT0, sLOFF, sT0, sT0, KVP))
        if o.get('reuse'): e('s_lshl_b32 s%d, s%d, 20\ns_add_u32 s%d, s%d, s%d' % (sT3, sL, sT0, sT0, sT3))
        e('buffer_store_dwordx4 v[%d:%d], v%d, s[4:7], s%d offen sc1' % (PK, PK + 3, vPS1, sT0))
        e('buffer_store_dwordx2 v[%d:%d], v%d, s[4:7], s%d offen sc1' % (PK + 4, PK + 5, vPS2, sT0))
        self.cnt(sT1, CNT_KV, sJ)
        kack = self.a_late if o.get('k_ack', 1) else []
        self.signal(sT1, kack)
        self.stamp(3)
        if o.get('tw', 0): e.extend(self.touch_w('C'))
        if not kack: self.side_dma(self.a_late)
        if o.get('xrlate', 1):
            Lx = self.lab('xr')
            e('s_cmp_lg_u32 s%d, 0' % sL); e('s_cbranch_scc1 %s' % Lx)
            self.xr_load()
            e.label(Lx)
        ZR = EM
        zf = ['v_mov_b32 v%d, 0' % (ZR + r) for r in range(4)]
        zf += ['v_lshlrev_b32 v%d, 4, v0' % vT1, 'v_add_u32 v%d, 0x%x, v%d' % (vT1, SCR, vT1)]
        zf += ['ds_write_b128 v%d, v[%d:%d] offset:%d' % (vT1, ZR, ZR + 3, m * 4096) for m in range(3)]
        if KF:
            an2 = []; fx2 = {}
            for n in range(NF1, NF1 + LA): e(read(n))
            for n in range(NF1, 160):
                fx2[len(an2)] = ([read(n + LA)] if n + LA < 160 else []) + ([Need('v[%d:%d]' % (AF + 4 * ((n + 1) % 8), AF + 4 * ((n + 1) % 8) + 3))] if n + 1 < 160 else [])
                an2.append(mfma(n))
            an2.append(mean(3))
            z = Stream(zf)
            e.extend(schedule(an2, 5, {}, fx2, [z]))
            e.extend([y[0] for y in z.q])
        else:
            e.extend(zf)
        Q = P
        X = [T2 + r for r in range(8, 16)] + [T3 + r for r in range(12)]
        e.extend(self.softmax_pair(X, vC, EP, EM, ST))
        order = []
        for sign in (EP, EM):
            order += [(sign + 0), (sign + 2), (sign + 8), (sign + 10), (sign + 4), (sign + 6), (sign + 12), (sign + 14)]
        order += [EP + 16, EP + 18, EM + 16, EM + 18]
        for d, r in enumerate(order): e('v_cvt_pk_bf16_f32 v%d, v%d, v%d' % (Q + d, r, r + 1))
        e.wait_lgkm0()
        self.stamp(4)
        self.poll(sT1)
        e('s_barrier')
        self.stamp(5)
        if self.maybe_stop('a1'): return True
        LD, SUM, PKK = 112, 176, 204
        e('s_lshl_b32 s%d, s%d, 16\ns_add_u32 s%d, s%d, s%d\ns_add_u32 s%d, s%d, 0x%x' % (sT0, sJ, sT0, sT0, sLOFF, sT0, sT0, KVP))
        if o.get('reuse'): e('s_lshl_b32 s%d, s%d, 20\ns_add_u32 s%d, s%d, s%d' % (sT3, sL, sT0, sT0, sT3))
        for p in range(16):
            if p: e('s_add_u32 s%d, s%d, 4096' % (sT0, sT0))
            e('buffer_load_dwordx4 v[%d:%d], v%d, s[4:7], s%d offen sc1' % (LD + 4 * p, LD + 4 * p + 3, vPL, sT0))
        e('v_mov_b32 v%d, 0x00003f80\nv_mov_b32 v%d, 0x3f800000' % (vT2, vT3))
        for k in range(8): e('v_mov_b32 v%d, 0' % (SUM + k))
        for p in range(16):
            for d in range(4):
                e('v_dot2c_f32_bf16 v%d, v%d, v%d' % (SUM + 2 * d, LD + 4 * p + d, vT2))
                e('v_dot2c_f32_bf16 v%d, v%d, v%d' % (SUM + 2 * d + 1, LD + 4 * p + d, vT3))
        for d in range(4): e('v_cvt_pk_bf16_f32 v%d, v%d, v%d' % (PKK + d, SUM + 2 * d, SUM + 2 * d + 1))
        e('ds_write_b128 v%d, v[%d:%d]' % (vAW, PKK, PKK + 3))
        e('ds_write_b64 v%d, v[%d:%d]' % (vAW2, PKK, PKK + 1))
        e.wait_lgkm0()
        e('s_barrier')
        e('v_add_u32 v%d, 0x%x, v%d' % (vT1, SCR, vL16))
        for n in range(8): e('ds_read_b128 v[%d:%d], v%d offset:%d' % (AF + 4 * n, AF + 4 * n + 3, vT1, n * 1024))
        G0, G1 = T0, T1
        for n in range(10):
            rho, s = n // 5, n % 5
            acc = G0 if rho == 0 else G1
            a = AF + 4 * (n % 8)
            e('v_mfma_f32_32x32x16_bf16 v[%d:%d], v[%d:%d], v[%d:%d], %s' % (acc, acc + 15, a, a + 3, Q + 4 * s, Q + 4 * s + 3, '0' if s == 0 else 'v[%d:%d]' % (acc, acc + 15)))
            if n < 2: e('ds_read_b128 v[%d:%d], v%d offset:%d' % (a, a + 3, vT1, (n + 8) * 1024))
        e('v_add_f32 v%d, %s, v%d' % (vT2, f32bits(1e-6), G1 + 4))
        e('v_rcp_f32 v%d, v%d' % (vT2, vT2))
        OP = 208
        src = [G0 + r for r in range(16)] + [G1 + r for r in range(4)]
        for r in src: e('v_mul_f32 v%d, v%d, v%d' % (r, r, vT2))
        for d in range(10): e('v_cvt_pk_bf16_f32 v%d, v%d, v%d' % (OP + d, src[2 * d], src[2 * d + 1]))
        e('s_lshl_b32 s%d, s%d, 3\ns_lshl_b32 s%d, s%d, 1\ns_add_u32 s%d, s%d, s%d\ns_mul_i32 s%d, s%d, 20480' % (sT0, sRB, sT1, sW, sT0, sT0, sT1, sT0, sT0))
        e('s_add_u32 s%d, s%d, s%d\ns_add_u32 s%d, s%d, 0x%x' % (sT0, sT0, sLOFF, sT0, sT0, O))
        e('buffer_store_dwordx4 v[%d:%d], v%d, s[4:7], s%d offen sc1' % (OP, OP + 3, vO0, sT0))
        e('buffer_store_dwordx4 v[%d:%d], v%d, s[4:7], s%d offen sc1' % (OP + 4, OP + 7, vO1, sT0))
        e('buffer_store_dwordx2 v[%d:%d], v%d, s[4:7], s%d offen sc1' % (OP + 8, OP + 9, vO2, sT0))
        self.stamp(6)
        self.cnt(sT1, CNT_O, sRB)
        self.signal(sT1, [C0] if o.get('o_ack', 1) else [])
        self.stamp(7)
        if not o.get('o_ack', 1): self.side_dma([C0])
        return self.maybe_stop('a')
    def gemm_bd(self, first_blk, nsteps, vs, pre_extra, valu, breg=None):
        e = self.e
        LA = 5
        nf = nsteps * 5
        def read(n):
            i, tau = n // 5, n % 5
            return self.ring_read(AF + 4 * (n % 8), first_blk + i // 2, (i & 1) * 10240 + tau * 1024, kh=True)
        def mf(n, u):
            i, tau = n // 5, n % 5
            acc = ACC + (tau * 2 + u) * 4; a = AF + 4 * (n % 8); b = breg(i, u) if breg else (2 * i + u) * 4
            c = '0' if i == 0 else 'v[%d:%d]' % (acc, acc + 3)
            return 'v_mfma_f32_16x16x32_bf16 v[%d:%d], v[%d:%d], a[%d:%d], %s' % (acc, acc + 3, a, a + 3, b, b + 3, c)
        anchors = []; pre = {}; fixed = {}
        for n in range(nf):
            anchors += [mf(n, 0), mf(n, 1)]
            if n + LA < nf: fixed[2 * n] = [read(n + LA)]
            if n + 1 < nf: fixed[2 * n + 1] = [Need('v[%d:%d]' % (AF + 4 * ((n + 1) % 8), AF + 4 * ((n + 1) % 8) + 3))]
        nep = nsteps // 2
        for ep in range(1, nep):
            pre[20 * ep] = list(pre_extra.get(ep, [])) + ([W_tag('blk%d' % (first_blk + ep + 1))] if ep + 1 < nep else []) + ['s_barrier']
            if self.o.get('fine') == 'd' and nsteps == 24: pre[20 * ep] += self.stamp_items(19 + ep - 1)
        for n in range(LA): e(read(n))
        stt = {}
        e.extend(schedule(anchors, 2, pre, fixed, [vs, valu], vm_gap=self.o.get('d_gap', 2), state=stt))
        if self.o.get('verbose'): print('bd forced', stt.get('forced'), 'left', len(vs.q), len(valu.q))
        e.extend([y[0] for y in vs.q]); e.extend([y[0] for y in valu.q])
    def bd_unpack(self):
        U = 112; L = []
        for d in range(10):
            L.append('v_lshlrev_b32 v%d, 16, v%d' % (U + 2 * d, XR + d))
            L.append('v_and_b32 v%d, 0xffff0000, v%d' % (U + 2 * d + 1, XR + d))
        return L
    def bd_epilogue(self, last_blk, final):
        e = self.e
        EX = 88
        for tau in range(5):
            a = ACC + (tau * 2 + 1) * 4
            e('ds_write_b128 v%d, v[%d:%d] offset:%d' % (vEXW, a, a + 3, tau * 1024))
        e.wait_lgkm0()
        e('s_barrier')
        for tau in range(5):
            e('ds_read_b128 v[%d:%d], v%d offset:%d' % (EX + 4 * tau, EX + 4 * tau + 3, vEXR, tau * 1024))
        U = 112
        for tau in range(5):
            a = ACC + (tau * 2) * 4
            for c in range(4):
                e('v_add_f32 v%d, v%d, v%d' % (U + 4 * tau + c, U + 4 * tau + c, a + c))
        for tau in range(5):
            for c in range(4):
                e('v_add_f32 v%d, v%d, v%d' % (U + 4 * tau + c, U + 4 * tau + c, EX + 4 * tau + c))
        for d in range(10): e('v_cvt_pk_bf16_f32 v%d, v%d, v%d' % (XR + d, U + 2 * d, U + 2 * d + 1))
        final()
    def bd_stats(self, base_off, next_layer):
        e = self.e
        S, Q = 136, 137
        e('v_mov_b32 v%d, 0\nv_mov_b32 v%d, 0' % (S, Q))
        for d in range(10):
            e('v_dot2c_f32_bf16 v%d, v%d, v%d' % (S, XR + d, vONES))
            e('v_dot2c_f32_bf16 v%d, v%d, v%d' % (Q, XR + d, XR + d))
        for sw in ('v_permlane16_swap_b32', 'v_permlane32_swap_b32'):
            e('v_mov_b32 v138, v%d\nv_mov_b32 v139, v%d' % (S, Q))
            e('%s v%d, v138\n%s v%d, v139' % (sw, S, sw, Q))
            e('v_add_f32 v%d, v%d, v138\nv_add_f32 v%d, v%d, v139' % (S, S, Q, Q))
        e('s_lshl_b32 s%d, s%d, 7\ns_lshl_b32 s%d, s%d, 14\ns_add_u32 s%d, s%d, s%d' % (sT2, sTTK, sT3, sCS, sT2, sT2, sT3))
        e('s_add_u32 s%d, s%d, s%d\ns_add_u32 s%d, s%d, 0x%x' % (sT2, sT2, sLOFF, sT2, sT2, base_off + (self.lstride if next_layer else 0)))
        if not self.o.get('nostats'): e('buffer_store_dwordx2 v[%d:%d], v%d, s[4:7], s%d offen sc1' % (S, Q, vST, sT2))
    def phase_b(self):
        e = self.e
        self.cnt(sT0, CNT_O, sRB)
        for (s, tt) in ((sB0, sTTK), (sB1, sTTS)):
            e('s_mul_i32 s%d, s%d, 20\ns_mul_i32 s%d, s%d, 10\ns_add_u32 s%d, s%d, s%d\ns_lshl_b32 s%d, s%d, 10' % (s, tt, sT1, sKH, s, s, sT1, s, s))
            e('s_add_u32 s%d, s%d, s%d\ns_add_u32 s%d, s%d, 0x%x' % (s, s, sLOFF, s, s, O))
        def tok(i, u):
            s = sB0 if u == 0 else sB1
            t = sC1 + u
            g = []
            if i % 4 == 0: g.append('s_add_u32 s%d, s%d, %d' % (t, s, i * 1024))
            g.append('buffer_load_dwordx4 a[%d:%d], v%d, s[4:7], s%d offen offset:%d%s' % ((2 * i + u) * 4, (2 * i + u) * 4 + 3, vL16, t, (i % 4) * 1024, self.sc))
            return g
        e.wait_tag('blk%d' % B0); e.wait_tag('blk%d' % (B0 + 1))
        self.poll(sT0)
        e('s_barrier')
        self.stamp(8)
        NPRE = self.o.get('b_npre', 6)
        for i in range(NPRE):
            for u in range(2): e.extend(tok(i, u))
        items = [(10 * i, 0, tok(i, 0) + tok(i, 1)) for i in range(NPRE, 10)]
        for k, b in enumerate(self.C_tail): items.append((5000 + b, 20 * (k + 1), self.flat(self.dma_ops(b))))
        vs = self.vm_stream(items)
        self.gemm_bd(B0, 10, vs, {}, Stream(self.bd_unpack(), 60))
        self.stamp(9)
        def final():
            e('s_mul_i32 s%d, s%d, 20480\ns_add_u32 s%d, s%d, s%d\ns_add_u32 s%d, s%d, 0x%x' % (sT0, sTTK, sT0, sT0, sLOFF, sT0, sT0, XC))
            e('buffer_store_dwordx4 v[%d:%d], v%d, s[4:7], s%d offen sc1' % (XR, XR + 3, vX0, sT0))
            e('buffer_store_dwordx4 v[%d:%d], v%d, s[4:7], s%d offen sc1' % (XR + 4, XR + 7, vX1, sT0))
            e('buffer_store_dwordx2 v[%d:%d], v%d, s[4:7], s%d offen sc1' % (XR + 8, XR + 9, vX2, sT0))
            self.bd_stats(SC, False)
            self.cnt(sT1, CNT_XC, sRB)
            self.signal(sT1, self.C_ack)
            self.stamp(10)
            if self.o.get('ampre', 1): self.am_c()
            self.side_dma(self.C_side)
        self.bd_epilogue(B0 + 4, final)
        return self.maybe_stop('b')
    def gelu_ops(self, accset, u, c0, c1, vVE, HP, t):
        L = []
        G = [accset + (p * 2 + u) * 4 + c for p in range(2) for c in range(4)]
        U = [accset + ((2 + p) * 2 + u) * 4 + c for p in range(2) for c in range(4)]
        g = [t + i for i in range(8)]; w = [t + 8 + i for i in range(8)]
        for h in range(2):
            R = range(4 * h, 4 * h + 4)
            for i in R: L.append('v_mul_f32 v%d, v%d, v%d' % (w[i], G[i], G[i]))
            for i in R: L.append('v_fma_f32 v%d, v%d, v%d, v%d' % (w[i], w[i], c1, c0))
            for i in R: L.append('v_mul_f32 v%d, v%d, v%d' % (w[i], w[i], G[i]))
            for i in R:
                L.append('v_exp_f32 v%d, v%d' % (w[i], w[i]))
                L.append('v_mul_f32 v%d, v%d, v%d' % (g[i], G[i], U[i]))
            for i in R: L.append('v_fma_f32 v%d, v%d, v%d, v%d' % (w[i], w[i], vVE, vVE))
            for i in R: L.append('v_rcp_f32 v%d, v%d' % (w[i], w[i]))
            for i in R: L.append('v_mul_f32 v%d, v%d, v%d' % (g[i], g[i], w[i]))
            for d in (2 * h, 2 * h + 1): L.append('v_cvt_pk_bf16_f32 v%d, v%d, v%d' % (HP + d, g[2 * d], g[2 * d + 1]))
        return L
    def check_flag(self, vreg, cnt_sgpr, target=16):
        sub = Asm()
        X = self.lab('ck'); L = self.lab('ckl')
        sub('v_cmp_gt_u32 vcc, %d, v%d' % (target, vreg))
        sub('s_cbranch_vccz %s' % X)
        sub('s_cmp_lg_u32 s%d, 0' % sDEAD); sub('s_cbranch_scc1 %s' % X)
        sub('s_mov_b32 s%d, 0' % sPC)
        sub.label(L)
        sub('buffer_load_dword v%d, v%d, s[4:7], s%d offen sc1' % (vreg, vZERO, cnt_sgpr), count=False)
        sub('s_waitcnt vmcnt(0)', count=False)
        sub('v_cmp_gt_u32 vcc, %d, v%d' % (target, vreg))
        sub('s_cbranch_vccz %s' % X)
        sub('s_add_u32 s%d, s%d, 1' % (sPC, sPC)); sub('s_cmp_lt_u32 s%d, %d' % (sPC, SPIN_LIMIT))
        sub('s_cbranch_scc1 %s' % L)
        sub('s_mov_b32 s%d, 1' % sDEAD)
        sub.label(X)
        return sub.items
    def phase_c(self):
        e = self.e; o = self.o
        ST, RS, VE, BMs, AM, GT, HP = 112, (120, 121), (122, 123), (124, 132), 136, 152, (168, 172)
        GC0, GC1 = (176, 177), (178, 179)
        k0 = -2.0 * 0.7978845608028654 * LOG2E
        self.cnt(sT0, CNT_XC, sRB)
        e('s_lshl_b32 s%d, s%d, 3\ns_lshl_b32 s%d, s%d, 1\ns_add_u32 s%d, s%d, s%d' % (sT2, sRB, sT1, sW, sT2, sT2, sT1))
        e('s_lshl_b32 s%d, s%d, 7\ns_add_u32 s%d, s%d, s%d\ns_add_u32 s%d, s%d, 0x%x' % (sT1, sT2, sT1, sT1, sLOFF, sT1, sT1, SC))
        e('s_mul_i32 s%d, s%d, 20480\ns_add_u32 s%d, s%d, s%d\ns_add_u32 s%d, s%d, 0x%x' % (sB0, sT2, sB0, sB0, sLOFF, sB0, sB0, XC))
        e('s_add_u32 s%d, s%d, 20480' % (sB1, sB0))
        e('s_mul_i32 s%d, s%d, 48\ns_add_u32 s%d, s%d, s%d\ns_lshl_b32 s%d, s%d, 10' % (sTW, sT2, sTW, sTW, sJ, sTW, sTW))
        e('s_add_u32 s%d, s%d, s%d\ns_add_u32 s%d, s%d, 0x%x' % (sTW, sTW, sLOFF, sTW, sTW, HH))
        if not o.get('ampre', 1): e('s_mul_i32 s%d, s%d, %d\ns_add_u32 s%d, s%d, 0x%x' % (sT4, sJ, 12 * KB, sT4, sT4, WCM))
        self.poll(sT0)
        e('s_barrier')
        self.stamp(11)
        def tok(s, u):
            sb = sB0 if u == 0 else sB1; t = sC1 + u
            g = []
            if s % 4 == 0: g.append('s_add_u32 s%d, s%d, %d' % (t, sb, s * 1024))
            g.append('buffer_load_dwordx4 a[%d:%d], v%d, s[4:7], s%d offen offset:%d%s' % ((2 * s + u) * 4, (2 * s + u) * 4 + 3, vL16, t, (s % 4) * 1024, self.sc))
            return g
        NPRE = o.get('c_npre', 8)
        if o.get('tt', 0): e.extend(self.touch_tok(XC))
        for s in range(NPRE):
            for u in range(2): e.extend(tok(s, u))
        stld = []
        for k in range(2):
            if k: stld.append('s_add_u32 s%d, s%d, 16384' % (sT1, sT1))
            for u in range(2):
                stld.append('buffer_load_dwordx2 v[%d:%d], v%d, s[4:7], s%d offen offset:%d sc1' % (ST + 4 * u + 2 * k, ST + 4 * u + 2 * k + 1, vSC, sT1, 128 * u))
        def amload(sg):
            pre = [] if sg == 0 else ['s_add_u32 s%d, s%d, 4096' % (sT4, sT4)]
            return pre + ['buffer_load_dwordx4 v[%d:%d], v%d, s[4:7], s%d offen offset:%d' % (AM + 4 * t, AM + 4 * t + 3, vL16, sT4, t * 1024) for t in range(4)]
        st = []
        for u in range(2):
            b = ST + 4 * u
            st += ['v_add_f32 v%d, v%d, v%d' % (b, b, b + 2), 'v_add_f32 v%d, v%d, v%d' % (b + 1, b + 1, b + 3)]
            for sw in ('v_permlane16_swap_b32', 'v_permlane32_swap_b32'):
                st += ['v_mov_b32 v%d, v%d' % (b + 2, b), 'v_mov_b32 v%d, v%d' % (b + 3, b + 1),
                       '%s v%d, v%d' % (sw, b, b + 2), '%s v%d, v%d' % (sw, b + 1, b + 3),
                       'v_add_f32 v%d, v%d, v%d' % (b, b, b + 2), 'v_add_f32 v%d, v%d, v%d' % (b + 1, b + 1, b + 3)]
            st += self.rowstat_finish(b, b + 1, RS[u], VE[u], BMs[u], b + 2)
            st += ['v_mul_f32 v%d, %s, v%d' % (GC0[u], f32bits(k0), RS[u]),
                   'v_mul_f32 v%d, v%d, v%d' % (GC1[u], RS[u], RS[u]),
                   'v_mul_f32 v%d, v%d, v%d' % (GC1[u], GC1[u], GC0[u]),
                   'v_mul_f32 v%d, %s, v%d' % (GC1[u], f32bits(0.044715), GC1[u])]
        LA = 5
        def read(n): return self.ring_read(AF + 4 * (n % 8), C0 + n // 20, (n % 20) * 1024)
        def mf(n, u):
            sg, r = n // 80, n % 80; s, tl = r // 4, r % 4
            acc = ACC + 32 * (sg & 1) + (tl * 2 + u) * 4; a = AF + 4 * (n % 8); b = (2 * s + u) * 4
            c = '0' if s == 0 else 'v[%d:%d]' % (acc, acc + 3)
            return 'v_mfma_f32_16x16x32_bf16 v[%d:%d], v[%d:%d], a[%d:%d], %s' % (acc, acc + 3, a, a + 3, b, b + 3, c)
        def mean(sg):
            L = []
            for tl in range(4):
                for u in range(2):
                    acc = ACC + 32 * (sg & 1) + (tl * 2 + u) * 4
                    L.append('v_mfma_f32_16x16x32_bf16 v[%d:%d], v[%d:%d], v[%d:%d], v[%d:%d]' % (acc, acc + 3, AM + 4 * tl, AM + 4 * tl + 3, BMs[u], BMs[u] + 3, acc, acc + 3))
            return L
        def gelu_store(sg):
            L = []
            for u in range(2):
                L += self.gelu_ops(ACC + 32 * (sg & 1), u, GC0[u], GC1[u], VE[u], HP[u], GT)
                L.append('s_add_u32 s%d, s%d, %d' % (sT5, sTW, u * 48 * 1024 + sg * 16 * 1024))
                L.append(('buffer_store_dwordx4 v[%d:%d], v%d, s[4:7], s%d offen sc1' % (HP[u], HP[u] + 3, vL16, sT5), 'h%d' % sg))
            return L
        def ix(n): return 2 * n + 8 * (n // 80)
        items = [(ix(4 * s), 0, tok(s, 0) + tok(s, 1)) for s in range(NPRE, 20)]
        for b in self.C_in:
            dl = ix(20 * (b - C0 - 1)) - (8 if (b - C0 - 1) % 4 == 0 and b > C0 + 1 else 0)
            items.append((dl, 0, self.flat(self.dma_ops(b)), dl - o.get('c_lead', 40)))
        r8 = o.get('ring8', 1)
        last_in = o.get('c_lastblk', D0 + 4 if r8 else D0 + 3)
        for b in range(C0 + 6, last_in + 1):
            free = 20 * (b - C0 - 5)
            if r8 and b >= D0: free = o.get('c_x0', 100) + 20 * (b - D0) if b < D0 + 2 else 20 * (b - 20)
            epn = b - C0 - 1
            dl = ix(20 * epn) - (8 if epn % 4 == 0 else 0) if b < D0 else 100000 + b
            early = ix(free) - (8 if free % 80 == 0 else 0)
            key = max(early, ix(76)) + (0 if b < D0 else 1)
            items.append((dl, early, self.flat(self.dma_ops(b)), key))
        if not o.get('ampre', 1): items.append((ix(60), 0, amload(0)))
        if o.get('tw', 0): items.append((ix(90), ix(84), self.touch_w('D')))
        items.append((ix(o.get('c_stdl', 44)), 0, stld))
        items.append((ix(150), ix(80), amload(1), ix(80)))
        items.append((ix(230), ix(160), amload(2), ix(160)))
        self.cnt(sT0, CNT_H, sRB, mul=384)
        FL, CKC = o.get('c_fl', 190), o.get('c_ck', 206)
        items.append((ix(CKC) - 1, ix(FL), ['buffer_load_dword v%d, v%d, s[4:7], s%d offen sc1' % (vPOLL, vZERO, sT0)], ix(FL)))
        dtoks = [self.d_tok(i, u) for i in range(8) for u in range(2)]
        for k, g in enumerate(dtoks): items.append((90000 + k, ix(CKC), g, ix(CKC) + 0.01 * k))
        vs = self.vm_stream(items)
        e.wait_tag('blk%d' % C0); e.wait_tag('blk%d' % (C0 + 1))
        e('s_barrier')
        for n in range(LA): e(read(n))
        pos = 0; cstate = {}
        for sg in range(3):
            anchors = []; pre = {}; fixed = {}
            if sg > 0: anchors += mean(sg - 1)
            for n in range(80 * sg, 80 * sg + 80):
                assert pos + len(anchors) == ix(n)
                anchors += [mf(n, 0), mf(n, 1)]
                if n + LA < 240: fixed[ix(n)] = [read(n + LA)]
                if n + 1 < 240: fixed[ix(n) + 1] = [Need('v[%d:%d]' % (AF + 4 * ((n + 1) % 8), AF + 4 * ((n + 1) % 8) + 3))]
            for ep in range(4 * sg, 4 * sg + 4):
                if ep == 0: continue
                at = ix(20 * ep) - (8 if ep % 4 == 0 else 0)
                p = [W_tag('blk%d' % (C0 + ep + 1))] if ep < 11 else []
                if ep == o.get('h0ep', 9): p.append(W_tag('h0'))
                p.append('s_barrier')
                if self.o.get('fine') == 'c': p += self.stamp_items(19 + ep - 1)
                if ep == o.get('h0ep', 9):
                    sub = Main(None, self.o); sub.nlab = self.nlab + 1000
                    sub.signal_only(sT0)
                    p += sub.e.items
                pre[at] = p
            if sg == 2:
                sub = Main(None, self.o); sub.nlab = self.nlab + 4000
                sub.d_bases()
                pre[ix(CKC)] = pre.get(ix(CKC), []) + [W_vreg(vPOLL)] + self.check_flag(vPOLL, sT0) + sub.e.items
            valu = Stream(st, ix(o.get('c_stv', 56))) if sg == 0 else Stream(gelu_store(sg - 1), pos + 10)
            e.extend(schedule(anchors, 2, pre, fixed, [vs, valu], start=pos, vm_gap=(o.get('c_gap', 4) if sg == 0 else o.get('c_gap2', 4)), state=cstate))
            e.extend([y[0] for y in valu.q])
            pos += len(anchors)
        if self.o.get('verbose'): print('c forced', cstate.get('forced'), 'left', len(vs.q))
        self.stamp(12)
        tail = mean(2) + gelu_store(2)
        left = [y[0] for y in vs.q]; del vs.q[:]
        nvm = max(1, sum(1 for x in left if is_vm(x)))
        step = max(1, (len(tail) - 8) // (nvm + 1))
        H1 = o.get('h1early', 0)
        first_store = next(n for n, x in enumerate(tail) if is_vm(x))
        for n, x in enumerate(tail):
            if left and n % step == 0:
                while left:
                    y = left.pop(0); e.extend([y])
                    if is_vm(y): break
            e.extend([x])
            if H1 and n == first_store:
                e.wait_tag('h1')
                e('s_barrier')
                self.cnt(sT2, CNT_H, sRB, mul=384, add=128)
                self.signal_only(sT2)
        e.extend(left)
        if H1: e('buffer_load_dword v%d, v%d, s[4:7], s%d offen sc1' % (vT1, vZERO, sT2))
        self.cnt(sT1, CNT_H, sRB, mul=384, add=256)
        self.signal(sT1)
        self.stamp(13)
        self.c_last = last_in
        return self.maybe_stop('c')
    def d_bases(self):
        e = self.e
        for (s, tt) in ((sB0, sTTK), (sB1, sTTS)):
            e('s_mul_i32 s%d, s%d, 48\ns_add_u32 s%d, s%d, s%d\ns_lshl_b32 s%d, s%d, 10' % (s, tt, s, s, sKH, s, s))
            e('s_add_u32 s%d, s%d, s%d\ns_add_u32 s%d, s%d, 0x%x' % (s, s, sLOFF, s, s, HH))
    def d_tok(self, i, u):
        sg, jj = i // 8, i % 8
        s = sB0 if u == 0 else sB1; t = sC1 + u
        g = []
        if jj % 2 == 0: g.append('s_add_u32 s%d, s%d, %d' % (t, s, sg * 16384 + jj * 2048))
        r = self.d_reg(i, u)
        g.append('buffer_load_dwordx4 a[%d:%d], v%d, s[4:7], s%d offen offset:%d%s' % (r, r + 3, vL16, t, (jj % 2) * 2048, self.sc))
        return g
    def d_reg(self, i, u):
        return 160 + (2 * i + u) * 4 if i < 8 else (2 * (i - 8) + u) * 4
    def phase_d(self):
        e = self.e; o = self.o
        tok = self.d_tok
        self.stamp(14)
        H1 = o.get('h1early', 0)
        CK = o.get('d_ck', 5 if H1 else 3)
        items = []
        r8 = o.get('ring8', 1); nfree = 8 if r8 else 6
        assert not (r8 and self.A_tail)
        if H1:
            e.extend(self.check_flag(vT1, sT2))
            for b in range(self.c_last + 1, D0 + nfree): items.append((20 * (b - D0 - 1), 0, self.flat(self.dma_ops(b)), 20 * (b - D0 - 1) - 25))
            for b in range(D0 + nfree, NBLK):
                early = 20 * (b - D0 - nfree + 1)
                items.append((20 * (b - D0 - 1), early, self.flat(self.dma_ops(b)), max(early, 20 * (b - D0 - 1) - 65)))
            fl = 20 * CK - o.get('d_fl', 16)
            items.append((20 * CK - 1, fl, ['buffer_load_dword v%d, v%d, s[4:7], s%d offen sc1' % (vPOLL, vZERO, sT1)], fl))
            items += [(10 * i, 0, tok(i, 0) + tok(i, 1), 10 * i - 80) for i in range(8, 16)]
            items += [(10 * i, 20 * CK, tok(i, 0) + tok(i, 1), 20 * CK + i - 16) for i in range(16, 24)]
        else:
            for b in range(self.c_last + 1, D0 + nfree): items.append((20 * (b - D0 - 1), 0, self.flat(self.dma_ops(b)), b - 200))
            for b in range(D0 + nfree, NBLK):
                early = 20 * (b - D0 - nfree + 1)
                key = (b - 200) if early < 20 * CK else 20 * (b - D0 - 1)
                items.append((20 * (b - D0 - 1), early, self.flat(self.dma_ops(b)), key))
            items.append((20 * CK - 1, 20 * CK - o.get('d_fl', 30), ['buffer_load_dword v%d, v%d, s[4:7], s%d offen sc1' % (vPOLL, vZERO, sT1)], -1))
            items += [(10 * i, 20 * CK, tok(i, 0) + tok(i, 1)) for i in range(8, 24)]
        if o.get('tw', 0): items.append((30, 0, self.touch_w('A'), -500))
        for b in self.A_tail: items.append((5000 + b, 20 * (6 + b), self.flat(self.dma_ops(b))))
        chk = [W_vreg(vPOLL)] + self.check_flag(vPOLL, sT1)
        self.gemm_bd(D0, 24, self.vm_stream(items), {CK: chk}, Stream(self.bd_unpack(), 200), self.d_reg)
        self.stamp(17)
        def final():
            L = self.lab('d_last'); X = self.lab('d_done')
            e('s_cmp_lg_u32 s%d, 0' % sL); e('s_cbranch_scc1 %s' % L)
            e('s_lshr_b32 s%d, s%d, 1\ns_mul_i32 s%d, s%d, 40960\ns_add_u32 s%d, s%d, s%d\ns_add_u32 s%d, s%d, 0x%x' % (sT0, sTTK, sT0, sT0, sT0, sT0, sLOFF, sT0, sT0, XA + self.lstride))
            e('buffer_store_dwordx4 v[%d:%d], v%d, s[4:7], s%d offen sc1' % (XR, XR + 3, vY0, sT0))
            e('buffer_store_dwordx4 v[%d:%d], v%d, s[4:7], s%d offen sc1' % (XR + 4, XR + 7, vY1, sT0))
            e('buffer_store_dwordx2 v[%d:%d], v%d, s[4:7], s%d offen sc1' % (XR + 8, XR + 9, vY2, sT0))
            self.bd_stats(SA, True)
            self.cnt(sT1, CNT_XA, sRB, next_layer=True)
            self.signal(sT1, self.A_ack)
            self.stamp(18)
            if self.o.get('ampre_a', 0): self.am_a()
            self.side_dma(self.A_side)
            e('s_branch %s' % X)
            e.label(L)
            e('s_mul_i32 s%d, s%d, 20480\ns_mul_i32 s%d, s%d, 160\ns_add_u32 s%d, s%d, s%d' % (sT0, sTTK, sT1, sCS, sT0, sT0, sT1))
            e('buffer_store_dwordx4 v[%d:%d], v%d, s[12:15], s%d offen' % (XR, XR + 3, vR0, sT0))
            e('buffer_store_dwordx4 v[%d:%d], v%d, s[12:15], s%d offen offset:64' % (XR + 4, XR + 7, vR0, sT0))
            e('buffer_store_dwordx2 v[%d:%d], v%d, s[12:15], s%d offen' % (XR + 8, XR + 9, vR2, sT0))
            self.stamp(18)
            self.stamp_flush()
            e('s_endpgm')
            e.label(X)
        self.bd_epilogue(D0 + 11, final)
        return self.maybe_stop('d')
    def build(self):
        e = self.e
        self.prologue()
        e.label('M_LAYER')
        done = self.phase_a() or self.phase_b() or self.phase_c() or self.phase_d()
        if not done:
            e('s_add_u32 s%d, s%d, 1\ns_add_u32 s%d, s%d, 0x%x\ns_add_u32 s%d, s%d, 0x%x' % (sL, sL, sLOFF, sLOFF, self.lstride, sCNT, sCNT, CSTRIDE))
            e('s_branch M_LAYER')
        e.label('M_END')
        e('s_endpgm')
        e.label('M_CODE_END')
        if self.o.get('dual'):
            out = []; inloop = False
            for I in e.items:
                out.append(I)
                if I.kind == 'label' and I.txt.startswith('M_LAYER'): inloop = True
                if inloop and I.kind == 'vm' and I.op.startswith('buffer_store') and I.txt.endswith(' sc1') and 's[4:7]' in I.txt:
                    if self.o['dual'] == 1 and ('v%d,' % vPS1 in I.txt or 'v%d,' % vPS2 in I.txt): continue
                    J = parse(I.txt[:-4], I.tag); J.count = I.count
                    out.append(J)
            e.items = out
        return e
```

```python
import re

REG_RE = re.compile(r'^(-|\|)?(v|a|s)(\d+|\[(\d+):(\d+)\])\|?$')

def regs_of(op):
    op = op.strip()
    if op.startswith('abs(') or op.startswith('neg('):
        op = op[4:-1]
    m = REG_RE.match(op)
    if m:
        k = m.group(2)
        if m.group(4) is not None:
            return {(k, i) for i in range(int(m.group(4)), int(m.group(5)) + 1)}
        return {(k, int(m.group(3)))}
    if op in ('vcc', 'exec', 'm0', 'scc'):
        return {('x', op)}
    if op in ('vcc_lo', 'vcc_hi'):
        return {('x', 'vcc')}
    if op in ('exec_lo', 'exec_hi'):
        return {('x', 'exec')}
    return set()

def regs_names(S):
    return ['%s%d' % r for r in S]

TRANS = ('v_exp_f32', 'v_log_f32', 'v_rcp_f32', 'v_rsq_f32', 'v_sqrt_f32', 'v_sin_f32', 'v_cos_f32')
RMW = ('v_fmac_f32', 'v_dot2c_f32_bf16', 'v_mac_f32', 'v_writelane_b32')

class Ins:
    __slots__ = ('txt', 'op', 'kind', 'rd', 'wr', 'tag', 'passes', 'srcc', 'srcab', 'wide_store', 'states', 'count', 'lds_dma', 'meta')
    def __init__(self, txt, op='', kind='raw', rd=(), wr=(), tag=None):
        self.txt = txt; self.op = op; self.kind = kind
        self.rd = set(rd); self.wr = set(wr); self.tag = tag
        self.passes = 0; self.srcc = set(); self.srcab = set(); self.wide_store = False
        self.states = 1; self.count = True; self.lds_dma = False; self.meta = None

def split_ops(s):
    out = []; depth = 0; cur = ''
    for ch in s:
        if ch in '[(': depth += 1
        if ch in '])': depth -= 1
        if ch == ',' and depth == 0:
            out.append(cur.strip()); cur = ''
        else:
            cur += ch
    if cur.strip(): out.append(cur.strip())
    return out

def parse(txt, tag=None):
    t = txt.strip()
    sp = t.split(None, 1)
    op = sp[0]
    rest = sp[1] if len(sp) > 1 else ''
    ops = split_ops(rest)
    mods = ''
    if ops:
        last = ops[-1].split()
        ops[-1] = last[0]
        mods = ' '.join(last[1:])
    base = op
    for suf in ('_e32', '_e64', '_sdwa', '_dpp'):
        if base.endswith(suf): base = base[:-len(suf)]
    I = Ins(txt, base, 'raw', tag=tag)
    R = lambda idxs: set().union(*[regs_of(ops[i]) for i in idxs if i < len(ops)]) if idxs else set()
    n = len(ops)
    if base.startswith('v_mfma'):
        I.kind = 'mfma'
        I.wr = R([0]); I.srcab = R([1, 2]); I.srcc = R([3]); I.rd = I.srcab | I.srcc
        I.passes = 8 if '32x32' in base else 4
    elif base.startswith('v_cmp'):
        I.kind = 'valu'; I.wr = R([0]); I.rd = R(range(1, n)) | {('x', 'exec')}
    elif base in ('v_readfirstlane_b32', 'v_readlane_b32'):
        I.kind = 'valu'; I.wr = R([0]); I.rd = R(range(1, n))
    elif base.startswith('v_permlane') and 'swap' in base:
        I.kind = 'valu'; I.wr = R([0, 1]); I.rd = R([0, 1])
    elif base in ('v_add_co_u32', 'v_sub_co_u32', 'v_addc_co_u32'):
        I.kind = 'valu'; I.wr = R([0, 1]); I.rd = R(range(2, n))
    elif base.startswith('v_'):
        I.kind = 'valu'; I.wr = R([0]); I.rd = R(range(1, n))
        if base in RMW: I.rd |= I.wr
        if base == 'v_cndmask_b32' and n == 3: I.rd |= {('x', 'vcc')}
    elif base.startswith('ds_read') or base.startswith('ds_bpermute'):
        I.kind = 'ds'; I.wr = R([0]); I.rd = R(range(1, n))
    elif base.startswith('ds_write'):
        I.kind = 'ds'; I.rd = R(range(0, n))
    elif base.startswith('buffer_load'):
        I.kind = 'vm'
        if ' lds' in (' ' + mods):
            I.lds_dma = True; I.rd = R(range(0, n)) | {('x', 'm0')}
        else:
            I.wr = R([0]); I.rd = R(range(1, n))
    elif base.startswith('buffer_store'):
        I.kind = 'vm'; I.rd = R(range(0, n))
        I.wide_store = base.endswith('x3') or base.endswith('x4')
        I.meta = R([0])
    elif base.startswith('buffer_atomic'):
        I.kind = 'vm'; I.rd = R(range(0, n))
        if 'sc0' in mods: I.wr = R([0])
    elif base.startswith('global_load'):
        I.kind = 'vm'; I.wr = R([0]); I.rd = R(range(1, n))
    elif base.startswith('s_load') :
        I.kind = 'smem'; I.wr = R([0]); I.rd = R(range(1, n))
    elif base in ('s_memtime', 's_memrealtime'):
        I.kind = 'smem'; I.wr = R([0])
    elif base == 's_waitcnt':
        I.kind = 'wait'
    elif base == 's_nop':
        I.kind = 'nop'; I.states = int(ops[0], 0) + 1
    elif base == 's_barrier':
        I.kind = 'barrier'
    elif base.startswith('s_cmp') or base.startswith('s_bitcmp'):
        I.kind = 'salu'; I.rd = R(range(0, n)); I.wr = {('x', 'scc')}
    elif base.startswith('s_cbranch') or base in ('s_branch', 's_endpgm', 's_setpc_b64', 's_sleep', 's_setprio'):
        I.kind = 'ctl'
        if base == 's_setpc_b64': I.rd = R([0])
    elif base.startswith('s_'):
        I.kind = 'salu'; I.wr = R([0]); I.rd = R(range(1, n))
        if base in ('s_and_saveexec_b64',): I.wr |= {('x', 'exec')}
    else:
        raise ValueError('cannot parse: ' + txt)
    return I

class Asm:
    def __init__(self):
        self.items = []
    def __call__(self, txt, tag=None, count=True):
        for line in txt.split('\n'):
            line = line.strip()
            if not line: continue
            I = parse(line, tag); I.count = count
            self.items.append(I)
    def add(self, I): self.items.append(I)
    def side(self, txt, tag):
        I = parse(txt, tag); I.meta = 'side'; self.items.append(I)
    def extend(self, L):
        for x in L:
            if isinstance(x, str): self(x)
            elif isinstance(x, tuple): self(*x)
            else: self.items.append(x)
    def comment(self, txt):
        self.items.append(Ins('; ' + txt, kind='comment'))
    def label(self, name):
        self.items.append(Ins(name + ':', kind='label'))
    def directive(self, txt):
        self.items.append(Ins(txt, kind='comment'))
    def wait_tag(self, tag):
        I = Ins('', kind='wait_tag', tag=tag); self.items.append(I)
    def vm_marker(self, tag):
        self.items.append(Ins('', kind='vm_marker', tag=tag))
    def wait_lgkm0(self):
        self.items.append(Ins('', kind='wait_lgkm0'))
    def wait_all(self):
        self.items.append(Ins('', kind='wait_all'))
    def reset_state(self):
        self.items.append(Ins('', kind='reset'))
    def insert_waits(self):
        out = []; vm = []; lg = []; smem = [False]
        def wait(vmn=None, lgn=None):
            parts = []
            if vmn is not None: parts.append('vmcnt(%d)' % min(vmn, 63))
            if lgn is not None: parts.append('lgkmcnt(%d)' % min(lgn, 15))
            out.append(parse('s_waitcnt ' + ' '.join(parts)))
        def real_after(p):
            own_side = vm[p].meta == 'side'
            return sum(1 for x in vm[p + 1:] if x.kind != 'vm_marker' and (own_side or x.meta != 'side'))
        def need(touch):
            vp = ln = None
            for p in range(len(vm) - 1, -1, -1):
                if vm[p].wr & touch:
                    vp = p; break
            for p in range(len(lg) - 1, -1, -1):
                if lg[p].wr & touch:
                    ln = len(lg) - 1 - p; break
            if ln is not None and any(x.kind == 'smem' for x in lg): ln = 0
            return vp, ln
        def retire_lg(ln):
            if ln is not None: del lg[:len(lg) - ln]
        for I in self.items:
            if I.kind == 'vm_marker':
                vm.append(I); continue
            if I.kind == 'wait_tag':
                vp = None
                for p in range(len(vm) - 1, -1, -1):
                    if vm[p].tag == I.tag:
                        vp = p; break
                if vp is not None:
                    vn = real_after(vp)
                    if vn <= 63: wait(vn, None)
                    del vm[:vp + 1]
                continue
            if I.kind == 'need':
                vp, ln = need(I.rd)
                vn = None
                if vp is not None:
                    vn = real_after(vp)
                    del vm[:vp + 1]
                    if vn > 63: vn = None
                if vn is not None or ln is not None:
                    wait(vn, ln); retire_lg(ln)
                continue
            if I.kind == 'wait_lgkm0':
                if lg: wait(None, 0); lg.clear()
                continue
            if I.kind == 'wait_all':
                wait(0, 0); vm.clear(); lg.clear(); continue
            if I.kind == 'reset':
                vm.clear(); lg.clear(); continue
            if I.kind == 'wait' and not I.count:
                out.append(I); continue
            if I.kind == 'wait':
                m = re.search(r'vmcnt\((\d+)\)', I.txt)
                if m:
                    assert int(m.group(1)) == 0, 'only full manual vmcnt waits are tracked'
                    vm.clear()
                m = re.search(r'lgkmcnt\((\d+)\)', I.txt)
                if m:
                    k = int(m.group(1))
                    if k == 0: lg.clear()
                    elif not any(x.kind == 'smem' for x in lg): retire_lg(min(k, len(lg)))
                out.append(I); continue
            if I.kind in ('comment', 'label', 'ctl', 'barrier', 'nop', 'raw'):
                out.append(I); continue
            touch = {r for r in (I.rd | I.wr)}
            vp, ln = need(touch)
            vn = None
            if vp is not None:
                vn = real_after(vp)
                del vm[:vp + 1]
                if vn > 63: vn = None
            if vn is not None or ln is not None:
                wait(vn, ln); retire_lg(ln)
            out.append(I)
            if I.count:
                if I.kind == 'vm': vm.append(I)
                elif I.kind == 'ds': lg.append(I)
                elif I.kind == 'smem': lg.append(I)
        self.items = out
    def insert_nops(self):
        out = []
        def required(prev, I):
            n = 0
            vr = lambda s: {r for r in s if r[0] in 'va'}
            if prev.kind == 'valu' and prev.op.startswith('v_dot'):
                if prev.wr & (I.rd | I.wr):
                    chain = I.op == prev.op and I.wr == prev.wr and I.txt.count(next(iter(regs_names(prev.wr)))) == 1
                    if not chain: n = max(n, 3)
            if prev.kind == 'valu':
                pw = prev.wr
                if I.kind == 'mfma' and vr(pw) & I.rd: n = max(n, 2)
                if I.kind == 'valu':
                    if prev.op in TRANS and I.op not in TRANS and (pw & I.rd): n = max(n, 1)
                    if prev.op in TRANS and I.op in TRANS and (pw & I.rd): n = max(n, 1)
                    if I.op.startswith('v_permlane') and (vr(pw) & I.rd): n = max(n, 2)
                    if I.op in ('v_readfirstlane_b32', 'v_readlane_b32') and (vr(pw) & I.rd): n = max(n, 1)
                    sw = {r for r in pw if r[0] == 's' or r == ('x', 'vcc')}
                    if sw & I.rd: n = max(n, 4 if I.op in ('v_readlane_b32', 'v_writelane_b32') else 2)
                if I.kind in ('vm', 'smem'):
                    sw = {r for r in pw if r[0] == 's'}
                    if sw & I.rd: n = max(n, 5)
                if I.kind == 'salu':
                    sw = {r for r in pw if r[0] == 's' or r == ('x', 'vcc')}
                    if sw & I.rd: n = max(n, 4)
                if I.kind == 'ctl' and ('x', 'vcc') in pw and 'vcc' in I.op: n = max(n, 5)
            if prev.kind == 'mfma':
                D = prev.wr; four = prev.passes == 4
                if I.kind == 'mfma':
                    if D & I.srcab: n = max(n, 8 if four else 12)
                    if D & I.srcc and not (D == I.srcc and prev.passes == I.passes): n = max(n, 6 if four else 10)
                    if D & I.wr and not (D == I.wr and D == I.srcc and prev.passes == I.passes):
                        n = max(n, 8 if four else 12)
                elif I.kind in ('valu', 'ds', 'vm'):
                    if D & (I.rd | I.wr): n = max(n, 8 if four else 12)
                if I.kind == 'valu' and (prev.srcc & I.wr): n = max(n, 3 if four else 7)
            if prev.kind == 'salu' and ('x', 'm0') in prev.wr and I.kind == 'vm' and I.lds_dma: n = max(n, 1)
            if prev.kind == 'vm' and prev.wide_store and prev.meta & I.wr:
                n = max(n, 2 if I.kind == 'valu' else 1)
            return n
        for I in self.items:
            if I.kind in ('comment', 'label'):
                out.append(I); continue
            need = 0; dist = 0
            for prev in reversed(out):
                if prev.kind in ('comment', 'label'): continue
                if dist >= 20: break
                r = required(prev, I)
                if r > dist: need = max(need, r - dist)
                dist += prev.states
            while need > 0:
                k = min(need, 16)
                out.append(parse('s_nop %d' % (k - 1))); need -= k
            out.append(I)
        self.items = out
    def text(self):
        L = []
        for I in self.items:
            if I.kind in ('label', 'comment'): L.append(I.txt)
            else: L.append('  ' + I.txt)
        return '\n'.join(L) + '\n'
    def finish(self):
        self.insert_waits(); self.insert_nops()
        return self.text()
    def stats(self):
        import collections
        c = collections.Counter(I.kind for I in self.items)
        return dict(c)

def vr(b, n=1): return 'v%d' % b if n == 1 else 'v[%d:%d]' % (b, b + n - 1)
def ar(b, n=1): return 'a%d' % b if n == 1 else 'a[%d:%d]' % (b, b + n - 1)
def sr(b, n=1): return 's%d' % b if n == 1 else 's[%d:%d]' % (b, b + n - 1)

def interleave(slots, fillers, per=None, start=0):
    out = []; f = list(fillers); n = len(slots)
    for i, s in enumerate(slots):
        out.extend(s)
        if i < start or not f: continue
        left = n - i
        k = -(-len(f) // left)
        if per is not None: k = min(k, per)
        out.extend(f[:k]); del f[:k]
    return out, f


def Need(op):
    return Ins('', kind='need', rd=regs_of(op))
def W_tag(tag): return Ins('', kind='wait_tag', tag=tag)
def V_marker(tag): return Ins('', kind='vm_marker', tag=tag)

def cost_of(x):
    t = x[0] if isinstance(x, tuple) else (x.txt if isinstance(x, Ins) else x)
    t = t.strip()
    if not t: return 0
    op = t.split()[0]
    if op.startswith('buffer_') or op.startswith('global_'): return 2
    if op in TRANS: return 2
    if op in ('s_waitcnt', 's_barrier'): return 0
    return 1

class Stream:
    def __init__(self, items=(), earliest=0, before=1 << 30):
        self.q = [(x, earliest, before) for x in items]
    def add(self, items, earliest=0, before=1 << 30):
        self.q += [(x, earliest, before) for x in items]
        return self
    def __len__(self): return len(self.q)

def is_vm(x):
    t = x[0] if isinstance(x, tuple) else (x.txt if isinstance(x, Ins) else x)
    return t.strip().startswith('buffer_')

def schedule(anchors, cap, pre=None, fixed=None, streams=(), start=0, vm_gap=0, state=None):
    pre = pre or {}; fixed = fixed or {}
    out = []
    state = state if state is not None else {}
    state.setdefault('last_vm', -1000)
    for k, a in enumerate(anchors):
        i = start + k
        late = []
        for s in streams:
            last = max((n for n, y in enumerate(s.q) if y[2] <= i), default=-1)
            if last >= 0:
                assert all(y[1] <= i for y in s.q[:last + 1]), 'deadline precedes earliest slot'
                state['forced'] = state.get('forced', 0) + last + 1
                cut = next((n for n, y in enumerate(s.q[:last + 1]) if False), last + 1)
                out.extend(y[0] for y in s.q[:cut])
                late.extend(y[0] for y in s.q[cut:last + 1])
                del s.q[:last + 1]
                state['last_vm'] = i
        out.extend(pre.get(i, ()))
        out.extend(late)
        out.append(a)
        room = cap(i) if callable(cap) else cap
        for x in fixed.get(i, ()):
            out.append(x); room -= cost_of(x)
        progress = True
        while room > 0 and progress:
            progress = False
            for s in streams:
                if s.q and s.q[0][1] <= i:
                    if is_vm(s.q[0][0]):
                        if i - state['last_vm'] < vm_gap: continue
                    c = cost_of(s.q[0][0])
                    if c <= room or (c > 1 and room >= 1 and c > (cap(i) if callable(cap) else cap)):
                        if is_vm(s.q[0][0]): state['last_vm'] = i
                        out.append(s.q.pop(0)[0]); room -= c; progress = True
                        break
    return out
```

```python
import re

REG_RE = re.compile(r'^(-|\|)?(v|a|s)(\d+|\[(\d+):(\d+)\])\|?$')

def regs_of(op):
    op = op.strip()
    if op.startswith('abs(') or op.startswith('neg('):
        op = op[4:-1]
    m = REG_RE.match(op)
    if m:
        k = m.group(2)
        if m.group(4) is not None:
            return {(k, i) for i in range(int(m.group(4)), int(m.group(5)) + 1)}
        return {(k, int(m.group(3)))}
    if op in ('vcc', 'exec', 'm0', 'scc'):
        return {('x', op)}
    if op in ('vcc_lo', 'vcc_hi'):
        return {('x', 'vcc')}
    if op in ('exec_lo', 'exec_hi'):
        return {('x', 'exec')}
    return set()

def regs_names(S):
    return ['%s%d' % r for r in S]

TRANS = ('v_exp_f32', 'v_log_f32', 'v_rcp_f32', 'v_rsq_f32', 'v_sqrt_f32', 'v_sin_f32', 'v_cos_f32')
RMW = ('v_fmac_f32', 'v_dot2c_f32_bf16', 'v_mac_f32', 'v_writelane_b32')

class Ins:
    __slots__ = ('txt', 'op', 'kind', 'rd', 'wr', 'tag', 'passes', 'srcc', 'srcab', 'wide_store', 'states', 'count', 'lds_dma', 'meta')
    def __init__(self, txt, op='', kind='raw', rd=(), wr=(), tag=None):
        self.txt = txt; self.op = op; self.kind = kind
        self.rd = set(rd); self.wr = set(wr); self.tag = tag
        self.passes = 0; self.srcc = set(); self.srcab = set(); self.wide_store = False
        self.states = 1; self.count = True; self.lds_dma = False; self.meta = None

def split_ops(s):
    out = []; depth = 0; cur = ''
    for ch in s:
        if ch in '[(': depth += 1
        if ch in '])': depth -= 1
        if ch == ',' and depth == 0:
            out.append(cur.strip()); cur = ''
        else:
            cur += ch
    if cur.strip(): out.append(cur.strip())
    return out

def parse(txt, tag=None):
    t = txt.strip()
    sp = t.split(None, 1)
    op = sp[0]
    rest = sp[1] if len(sp) > 1 else ''
    ops = split_ops(rest)
    mods = ''
    if ops:
        last = ops[-1].split()
        ops[-1] = last[0]
        mods = ' '.join(last[1:])
    base = op
    for suf in ('_e32', '_e64', '_sdwa', '_dpp'):
        if base.endswith(suf): base = base[:-len(suf)]
    I = Ins(txt, base, 'raw', tag=tag)
    R = lambda idxs: set().union(*[regs_of(ops[i]) for i in idxs if i < len(ops)]) if idxs else set()
    n = len(ops)
    if base.startswith('v_mfma'):
        I.kind = 'mfma'
        I.wr = R([0]); I.srcab = R([1, 2]); I.srcc = R([3]); I.rd = I.srcab | I.srcc
        I.passes = 8 if '32x32' in base else 4
    elif base.startswith('v_cmp'):
        I.kind = 'valu'; I.wr = R([0]); I.rd = R(range(1, n)) | {('x', 'exec')}
    elif base in ('v_readfirstlane_b32', 'v_readlane_b32'):
        I.kind = 'valu'; I.wr = R([0]); I.rd = R(range(1, n))
    elif base.startswith('v_permlane') and 'swap' in base:
        I.kind = 'valu'; I.wr = R([0, 1]); I.rd = R([0, 1])
    elif base in ('v_add_co_u32', 'v_sub_co_u32', 'v_addc_co_u32'):
        I.kind = 'valu'; I.wr = R([0, 1]); I.rd = R(range(2, n))
    elif base.startswith('v_'):
        I.kind = 'valu'; I.wr = R([0]); I.rd = R(range(1, n))
        if base in RMW: I.rd |= I.wr
        if base == 'v_cndmask_b32' and n == 3: I.rd |= {('x', 'vcc')}
    elif base.startswith('ds_read') or base.startswith('ds_bpermute'):
        I.kind = 'ds'; I.wr = R([0]); I.rd = R(range(1, n))
    elif base.startswith('ds_write'):
        I.kind = 'ds'; I.rd = R(range(0, n))
    elif base.startswith('buffer_load'):
        I.kind = 'vm'
        if ' lds' in (' ' + mods):
            I.lds_dma = True; I.rd = R(range(0, n)) | {('x', 'm0')}
        else:
            I.wr = R([0]); I.rd = R(range(1, n))
    elif base.startswith('buffer_store'):
        I.kind = 'vm'; I.rd = R(range(0, n))
        I.wide_store = base.endswith('x3') or base.endswith('x4')
        I.meta = R([0])
    elif base.startswith('buffer_atomic'):
        I.kind = 'vm'; I.rd = R(range(0, n))
        if 'sc0' in mods: I.wr = R([0])
    elif base.startswith('global_load'):
        I.kind = 'vm'; I.wr = R([0]); I.rd = R(range(1, n))
    elif base.startswith('s_load') :
        I.kind = 'smem'; I.wr = R([0]); I.rd = R(range(1, n))
    elif base in ('s_memtime', 's_memrealtime'):
        I.kind = 'smem'; I.wr = R([0])
    elif base == 's_waitcnt':
        I.kind = 'wait'
    elif base == 's_nop':
        I.kind = 'nop'; I.states = int(ops[0], 0) + 1
    elif base == 's_barrier':
        I.kind = 'barrier'
    elif base.startswith('s_cmp') or base.startswith('s_bitcmp'):
        I.kind = 'salu'; I.rd = R(range(0, n)); I.wr = {('x', 'scc')}
    elif base.startswith('s_cbranch') or base in ('s_branch', 's_endpgm', 's_setpc_b64', 's_sleep', 's_setprio'):
        I.kind = 'ctl'
        if base == 's_setpc_b64': I.rd = R([0])
    elif base.startswith('s_'):
        I.kind = 'salu'; I.wr = R([0]); I.rd = R(range(1, n))
        if base in ('s_and_saveexec_b64',): I.wr |= {('x', 'exec')}
    else:
        raise ValueError('cannot parse: ' + txt)
    return I

class Asm:
    def __init__(self):
        self.items = []
    def __call__(self, txt, tag=None, count=True):
        for line in txt.split('\n'):
            line = line.strip()
            if not line: continue
            I = parse(line, tag); I.count = count
            self.items.append(I)
    def add(self, I): self.items.append(I)
    def side(self, txt, tag):
        I = parse(txt, tag); I.meta = 'side'; self.items.append(I)
    def extend(self, L):
        for x in L:
            if isinstance(x, str): self(x)
            elif isinstance(x, tuple): self(*x)
            else: self.items.append(x)
    def comment(self, txt):
        self.items.append(Ins('; ' + txt, kind='comment'))
    def label(self, name):
        self.items.append(Ins(name + ':', kind='label'))
    def directive(self, txt):
        self.items.append(Ins(txt, kind='comment'))
    def wait_tag(self, tag):
        I = Ins('', kind='wait_tag', tag=tag); self.items.append(I)
    def vm_marker(self, tag):
        self.items.append(Ins('', kind='vm_marker', tag=tag))
    def wait_lgkm0(self):
        self.items.append(Ins('', kind='wait_lgkm0'))
    def wait_all(self):
        self.items.append(Ins('', kind='wait_all'))
    def reset_state(self):
        self.items.append(Ins('', kind='reset'))
    def insert_waits(self):
        out = []; vm = []; lg = []; smem = [False]
        def wait(vmn=None, lgn=None):
            parts = []
            if vmn is not None: parts.append('vmcnt(%d)' % min(vmn, 63))
            if lgn is not None: parts.append('lgkmcnt(%d)' % min(lgn, 15))
            out.append(parse('s_waitcnt ' + ' '.join(parts)))
        def real_after(p):
            own_side = vm[p].meta == 'side'
            return sum(1 for x in vm[p + 1:] if x.kind != 'vm_marker' and (own_side or x.meta != 'side'))
        def need(touch):
            vp = ln = None
            for p in range(len(vm) - 1, -1, -1):
                if vm[p].wr & touch:
                    vp = p; break
            for p in range(len(lg) - 1, -1, -1):
                if lg[p].wr & touch:
                    ln = len(lg) - 1 - p; break
            if ln is not None and any(x.kind == 'smem' for x in lg): ln = 0
            return vp, ln
        def retire_lg(ln):
            if ln is not None: del lg[:len(lg) - ln]
        for I in self.items:
            if I.kind == 'vm_marker':
                vm.append(I); continue
            if I.kind == 'wait_tag':
                vp = None
                for p in range(len(vm) - 1, -1, -1):
                    if vm[p].tag == I.tag:
                        vp = p; break
                if vp is not None:
                    vn = real_after(vp)
                    if vn <= 63: wait(vn, None)
                    del vm[:vp + 1]
                continue
            if I.kind == 'need':
                vp, ln = need(I.rd)
                vn = None
                if vp is not None:
                    vn = real_after(vp)
                    del vm[:vp + 1]
                    if vn > 63: vn = None
                if vn is not None or ln is not None:
                    wait(vn, ln); retire_lg(ln)
                continue
            if I.kind == 'wait_lgkm0':
                if lg: wait(None, 0); lg.clear()
                continue
            if I.kind == 'wait_all':
                wait(0, 0); vm.clear(); lg.clear(); continue
            if I.kind == 'reset':
                vm.clear(); lg.clear(); continue
            if I.kind == 'wait' and not I.count:
                out.append(I); continue
            if I.kind == 'wait':
                m = re.search(r'vmcnt\((\d+)\)', I.txt)
                if m:
                    assert int(m.group(1)) == 0, 'only full manual vmcnt waits are tracked'
                    vm.clear()
                m = re.search(r'lgkmcnt\((\d+)\)', I.txt)
                if m:
                    k = int(m.group(1))
                    if k == 0: lg.clear()
                    elif not any(x.kind == 'smem' for x in lg): retire_lg(min(k, len(lg)))
                out.append(I); continue
            if I.kind in ('comment', 'label', 'ctl', 'barrier', 'nop', 'raw'):
                out.append(I); continue
            touch = {r for r in (I.rd | I.wr)}
            vp, ln = need(touch)
            vn = None
            if vp is not None:
                vn = real_after(vp)
                del vm[:vp + 1]
                if vn > 63: vn = None
            if vn is not None or ln is not None:
                wait(vn, ln); retire_lg(ln)
            out.append(I)
            if I.count:
                if I.kind == 'vm': vm.append(I)
                elif I.kind == 'ds': lg.append(I)
                elif I.kind == 'smem': lg.append(I)
        self.items = out
    def insert_nops(self):
        out = []
        def required(prev, I):
            n = 0
            vr = lambda s: {r for r in s if r[0] in 'va'}
            if prev.kind == 'valu' and prev.op.startswith('v_dot'):
                if prev.wr & (I.rd | I.wr):
                    chain = I.op == prev.op and I.wr == prev.wr and I.txt.count(next(iter(regs_names(prev.wr)))) == 1
                    if not chain: n = max(n, 3)
            if prev.kind == 'valu':
                pw = prev.wr
                if I.kind == 'mfma' and vr(pw) & I.rd: n = max(n, 2)
                if I.kind == 'valu':
                    if prev.op in TRANS and I.op not in TRANS and (pw & I.rd): n = max(n, 1)
                    if prev.op in TRANS and I.op in TRANS and (pw & I.rd): n = max(n, 1)
                    if I.op.startswith('v_permlane') and (vr(pw) & I.rd): n = max(n, 2)
                    if I.op in ('v_readfirstlane_b32', 'v_readlane_b32') and (vr(pw) & I.rd): n = max(n, 1)
                    sw = {r for r in pw if r[0] == 's' or r == ('x', 'vcc')}
                    if sw & I.rd: n = max(n, 4 if I.op in ('v_readlane_b32', 'v_writelane_b32') else 2)
                if I.kind in ('vm', 'smem'):
                    sw = {r for r in pw if r[0] == 's'}
                    if sw & I.rd: n = max(n, 5)
                if I.kind == 'salu':
                    sw = {r for r in pw if r[0] == 's' or r == ('x', 'vcc')}
                    if sw & I.rd: n = max(n, 4)
                if I.kind == 'ctl' and ('x', 'vcc') in pw and 'vcc' in I.op: n = max(n, 5)
            if prev.kind == 'mfma':
                D = prev.wr; four = prev.passes == 4
                if I.kind == 'mfma':
                    if D & I.srcab: n = max(n, 8 if four else 12)
                    if D & I.srcc and not (D == I.srcc and prev.passes == I.passes): n = max(n, 6 if four else 10)
                    if D & I.wr and not (D == I.wr and D == I.srcc and prev.passes == I.passes):
                        n = max(n, 8 if four else 12)
                elif I.kind in ('valu', 'ds', 'vm'):
                    if D & (I.rd | I.wr): n = max(n, 8 if four else 12)
                if I.kind == 'valu' and (prev.srcc & I.wr): n = max(n, 3 if four else 7)
            if prev.kind == 'salu' and ('x', 'm0') in prev.wr and I.kind == 'vm' and I.lds_dma: n = max(n, 1)
            if prev.kind == 'vm' and prev.wide_store and prev.meta & I.wr:
                n = max(n, 2 if I.kind == 'valu' else 1)
            return n
        for I in self.items:
            if I.kind in ('comment', 'label'):
                out.append(I); continue
            need = 0; dist = 0
            for prev in reversed(out):
                if prev.kind in ('comment', 'label'): continue
                if dist >= 20: break
                r = required(prev, I)
                if r > dist: need = max(need, r - dist)
                dist += prev.states
            while need > 0:
                k = min(need, 16)
                out.append(parse('s_nop %d' % (k - 1))); need -= k
            out.append(I)
        self.items = out
    def text(self):
        L = []
        for I in self.items:
            if I.kind in ('label', 'comment'): L.append(I.txt)
            else: L.append('  ' + I.txt)
        return '\n'.join(L) + '\n'
    def finish(self):
        self.insert_waits(); self.insert_nops()
        return self.text()
    def stats(self):
        import collections
        c = collections.Counter(I.kind for I in self.items)
        return dict(c)

def vr(b, n=1): return 'v%d' % b if n == 1 else 'v[%d:%d]' % (b, b + n - 1)
def ar(b, n=1): return 'a%d' % b if n == 1 else 'a[%d:%d]' % (b, b + n - 1)
def sr(b, n=1): return 's%d' % b if n == 1 else 's[%d:%d]' % (b, b + n - 1)

def interleave(slots, fillers, per=None, start=0):
    out = []; f = list(fillers); n = len(slots)
    for i, s in enumerate(slots):
        out.extend(s)
        if i < start or not f: continue
        left = n - i
        k = -(-len(f) // left)
        if per is not None: k = min(k, per)
        out.extend(f[:k]); del f[:k]
    return out, f


def Need(op):
    return Ins('', kind='need', rd=regs_of(op))
def W_tag(tag): return Ins('', kind='wait_tag', tag=tag)
def V_marker(tag): return Ins('', kind='vm_marker', tag=tag)

def cost_of(x):
    t = x[0] if isinstance(x, tuple) else (x.txt if isinstance(x, Ins) else x)
    t = t.strip()
    if not t: return 0
    op = t.split()[0]
    if op.startswith('buffer_') or op.startswith('global_'): return 2
    if op in TRANS: return 2
    if op in ('s_waitcnt', 's_barrier'): return 0
    return 1

class Stream:
    def __init__(self, items=(), earliest=0, before=1 << 30):
        self.q = [(x, earliest, before) for x in items]
    def add(self, items, earliest=0, before=1 << 30):
        self.q += [(x, earliest, before) for x in items]
        return self
    def __len__(self): return len(self.q)

def is_vm(x):
    t = x[0] if isinstance(x, tuple) else (x.txt if isinstance(x, Ins) else x)
    return t.strip().startswith('buffer_')

def schedule(anchors, cap, pre=None, fixed=None, streams=(), start=0, vm_gap=0, state=None):
    pre = pre or {}; fixed = fixed or {}
    out = []
    state = state if state is not None else {}
    state.setdefault('last_vm', -1000)
    for k, a in enumerate(anchors):
        i = start + k
        late = []
        for s in streams:
            last = max((n for n, y in enumerate(s.q) if y[2] <= i), default=-1)
            if last >= 0:
                assert all(y[1] <= i for y in s.q[:last + 1]), 'deadline precedes earliest slot'
                state['forced'] = state.get('forced', 0) + last + 1
                state.setdefault('flist', []).extend((i, (y[0][0] if isinstance(y[0], tuple) else getattr(y[0], 'txt', y[0]))[:70]) for y in s.q[:last + 1])
                cut = next((n for n, y in enumerate(s.q[:last + 1]) if y[1] == i and i in pre), last + 1)
                out.extend(y[0] for y in s.q[:cut])
                late.extend(y[0] for y in s.q[cut:last + 1])
                del s.q[:last + 1]
                state['last_vm'] = i
        out.extend(pre.get(i, ()))
        out.extend(late)
        out.append(a)
        room = cap(i) if callable(cap) else cap
        for x in fixed.get(i, ()):
            out.append(x); room -= cost_of(x)
        progress = True
        while room > 0 and progress:
            progress = False
            for s in streams:
                if s.q and s.q[0][1] <= i:
                    if is_vm(s.q[0][0]):
                        if i - state['last_vm'] < vm_gap: continue
                    c = cost_of(s.q[0][0])
                    if c <= room or (c > 1 and room >= 1 and c > (cap(i) if callable(cap) else cap)):
                        if is_vm(s.q[0][0]): state['last_vm'] = i
                        out.append(s.q.pop(0)[0]); room -= c; progress = True
                        break
    return out
```

```python
from asmlib import *
from layout import *

NAME = 'hedgehog_main_kernel'
KNAME = 'interleave_layers__linear_kernel_hedgehog__geglu_ffn__prompt_kernel'
BLK = 20480
SCR = 6 * BLK
LDS_TOTAL = 163840
SPIN_LIMIT = 40000
LOG2E = 1.4426950408889634
TSOFF = 0x4000000

sW, sRB, sJ, sL, sLOFF, sW5K, sWA, sWB, sWC, sWD = range(16, 26)
sT0, sT1, sT2, sT3, sT4, sT5 = range(26, 32)
sDEAD, sPC, sPV, sCS, sTH, sTTK, sTTS, sKH = range(40, 48)
sDM = 48
sTW = 49
sB0, sB1 = 50, 51
sC1, sC2, sC3, sC4 = 52, 53, 54, 55
sEX, sEXD = 56, 57
sFIRST = 38
sCNT = 3
sTA, sTB = 58, 59
vL16, vLANE, vONES, vZERO, vONE, vPOLL = 1, 2, 3, 4, 5, 6
vL16B, vK0, vK1 = 7, 8, 9
vT0, vT1, vT2, vT3, vT4 = 10, 11, 12, 13, 14
vEXR = 15
AF, ACC = 16, 48
vSA, vTW, vKA, vKB, vPS1, vPS2, vPL, vAW, vO0, vO1, vO2, vX0, vX1, vX2, vY0, vY1 = range(224, 240)
XR = 240
vY2, vR0, vR2, vST, vSC, vEXW = range(250, 256)
vAW2 = 221
vK2 = 218
vL128, vTCH = 220, 219

A0, B0, C0, D0, NBLK = 0, 8, 13, 25, 37
NSIDE_A, NSIDE_C = 4, 4

def f32bits(x):
    import struct
    return '0x%08x' % struct.unpack('<I', struct.pack('<f', x))[0]

def W_vreg(r):
    return 'v_mov_b32 v%d, v%d' % (r, r)

class Main:
    def __init__(self, stop=None, opts=None):
        self.e = Asm(); self.stop = stop; self.o = opts or {}
        self.sc = '' if self.o.get('nosc1') else ' sc1'
        self.nlab = 0
        self.lstride = 0 if self.o.get('reuse') else LSTRIDE
        self.name = KNAME if self.o.get('merged', 0) else NAME
        global NSIDE_A, NSIDE_C
        NSIDE_A = self.o.get('nsa', 2); NSIDE_C = self.o.get('nsc', 2)
        dt = self.o.get('d_tail', 0); bt = self.o.get('b_tail', 0)
        self.A_tail = list(range(1, 1 + dt))
        rest = [0] + list(range(1 + dt, 6))
        na = self.o.get('a_ack', 2)
        self.A_ack, rest = rest[:na], rest[na:]
        self.A_side, self.A_in = rest[:NSIDE_A], rest[NSIDE_A:]
        self.C_tail = list(range(C0 + 1, C0 + 1 + bt))
        rest = list(range(C0 + 1 + bt, C0 + 6))
        nc = self.o.get('c_ack', 2)
        self.C_ack, rest = rest[:nc], rest[nc:]
        self.C_side, self.C_in = rest[:NSIDE_C], rest[NSIDE_C:]
    def lab(self, p):
        self.nlab += 1
        return 'M_%s_%d' % (p, self.nlab)
    def slot_of(self, b):
        if b >= D0 and self.o.get('ring8', 1):
            return {25: 6, 26: 7, 27: 1, 28: 2, 29: 3, 30: 4, 31: 5, 32: 0, 33: 6, 34: 7, 35: 1, 36: 2}[b]
        return b % 6
    def blk_src(self, b):
        if b < B0: return sWA, (b - A0) * BLK
        if b < C0: return sWB, (b - B0) * BLK
        if b < D0: return sWC, (b - C0) * BLK
        return sWD, (b - D0) * BLK
    def dma_ops(self, b, tag=None):
        nb = b % NBLK if b >= NBLK else b
        base, off = self.blk_src(nb)
        slot = self.slot_of(nb)
        tag = tag or 'blk%d' % nb
        g = []
        first = ['s_add_u32 m0, s%d, %d' % (sW5K, slot * BLK), 's_add_u32 s%d, s%d, %d' % (sDM, base, off),
                 ('buffer_load_dwordx4 v%d, s[4:7], s%d offen lds' % (vL16, sDM), tag)]
        g.append(first)
        for k in range(1, 4):
            g.append([('buffer_load_dwordx4 v%d, s[4:7], s%d offen offset:%d lds' % (vL16, sDM, k * 1024), tag)])
        g.append(['s_add_u32 m0, s%d, %d' % (sW5K, slot * BLK + 4096), 's_add_u32 s%d, s%d, %d' % (sDM, base, off + 4096),
                  ('buffer_load_dwordx4 v%d, s[4:7], s%d offen lds' % (vL16, sDM), tag)])
        return g
    def am_a(self):
        AM = 128; e = self.e
        e('s_lshl_b32 s%d, s%d, 12\ns_add_u32 s%d, s%d, 0x%x' % (sT2, sJ, sT2, sT2, WAM))
        for t in range(4): e('buffer_load_dwordx4 v[%d:%d], v%d, s[4:7], s%d offen offset:%d' % (AM + 4 * t, AM + 4 * t + 3, vL16, sT2, t * 1024))
    def am_c(self):
        AM = 136; e = self.e
        e('s_mul_i32 s%d, s%d, %d\ns_add_u32 s%d, s%d, 0x%x' % (sT4, sJ, 12 * KB, sT4, sT4, WCM))
        for t in range(4): e('buffer_load_dwordx4 v[%d:%d], v%d, s[4:7], s%d offen offset:%d' % (AM + 4 * t, AM + 4 * t + 3, vL16, sT4, t * 1024))
    def side_dma(self, blocks):
        e = self.e
        L = self.lab('side')
        e('s_cmp_eq_u32 s%d, 0' % sW); e('s_cbranch_scc1 %s' % L)
        for b in blocks:
            base, off = self.blk_src(b); slot = self.slot_of(b); tag = 'blk%d' % b
            ld = 'buffer_load_dwordx4 v%d, s[4:7], s%d offen%%s lds' % (vL16, sDM)
            e('s_add_u32 m0, s%d, %d' % (sW5K, slot * BLK)); e('s_add_u32 s%d, s%d, %d' % (sDM, base, off))
            for k in range(4): e.side(ld % (' offset:%d' % (k * 1024) if k else ''), tag)
            e('s_add_u32 m0, s%d, %d' % (sW5K, slot * BLK + 4096)); e('s_add_u32 s%d, s%d, %d' % (sDM, base, off + 4096))
            e.side(ld % '', tag)
            e('s_add_u32 m0, s%d, %d' % (sEX, slot * BLK)); e('s_add_u32 s%d, s%d, %d' % (sDM, base, off))
            e('s_add_u32 s%d, s%d, s%d' % (sDM, sDM, sEXD))
            e.side(ld % '', tag); e.side(ld % ' offset:1024', tag)
        e.label(L)
    def dma_items(self, b, earliest):
        out = []
        for g in self.dma_ops(b):
            for x in g: out.append((x, earliest))
        return out
    def touch(self, base_expr, nlines_wave, ninstr=1, sc=''):
        L = list(base_expr)
        L.append('s_mul_i32 s%d, s%d, %d' % (sTB, sW, nlines_wave * ninstr * 128))
        L.append('s_add_u32 s%d, s%d, s%d' % (sTA, sTA, sTB))
        if nlines_wave < 64:
            L.append('v_mov_b32 v%d, 0x%x' % (vT0, OOB))
            L.append('v_cmp_gt_u32 vcc, %d, v%d' % (nlines_wave, vLANE))
            L.append('v_cndmask_b32 v%d, v%d, v%d, vcc' % (vT0, vT0, vL128))
            va = vT0
        else: va = vL128
        for k in range(ninstr):
            if k: L.append('s_add_u32 s%d, s%d, %d' % (sTA, sTA, nlines_wave * 128))
            I = parse('buffer_load_dword v%d, v%d, s[4:7], s%d offen%s' % (vTCH, va, sTA, sc)); I.wr = set()
            L.append(I)
        return L
    def touch_w(self, which):
        if which == 'A':
            pre = ['s_lshr_b32 s%d, s%d, 2' % (sTA, sRB), 's_mul_i32 s%d, s%d, %d' % (sTA, sTA, 40 * KB), 's_add_u32 s%d, s%d, s%d' % (sTA, sTA, sWA), 's_sub_u32 s%d, s%d, s%d' % (sTA, sTA, sW5K)]
            return self.touch(pre, 40, 2)
        if which == 'C':
            pre = ['s_lshr_b32 s%d, s%d, 2' % (sTA, sRB), 's_mul_i32 s%d, s%d, %d' % (sTA, sTA, 60 * KB), 's_add_u32 s%d, s%d, s%d' % (sTA, sTA, sWC), 's_sub_u32 s%d, s%d, s%d' % (sTA, sTA, sW5K)]
            return self.touch(pre, 60, 2)
        idx = ['s_lshr_b32 s%d, s%d, 2' % (sTA, sRB), 's_lshl_b32 s%d, s%d, 1' % (sTA, sTA), 's_add_u32 s%d, s%d, s%d' % (sTA, sTA, sTH)]
        if which == 'B':
            return self.touch(idx + ['s_mul_i32 s%d, s%d, 12800' % (sTA, sTA), 's_add_u32 s%d, s%d, s%d' % (sTA, sTA, sWB), 's_sub_u32 s%d, s%d, s%d' % (sTA, sTA, sW5K)], 25, 1)
        if which == 'D':
            return self.touch(idx + ['s_mul_i32 s%d, s%d, 30720' % (sTA, sTA), 's_add_u32 s%d, s%d, s%d' % (sTA, sTA, sWD), 's_sub_u32 s%d, s%d, s%d' % (sTA, sTA, sW5K)], 60, 1)
    def touch_tok(self, base_off):
        pre = ['s_mul_i32 s%d, s%d, %d' % (sTA, sRB, 160 * KB), 's_lshr_b32 s%d, s%d, 1' % (sTB, sJ), 's_mul_i32 s%d, s%d, %d' % (sTB, sTB, 20 * KB),
               's_add_u32 s%d, s%d, s%d' % (sTA, sTA, sTB), 's_add_u32 s%d, s%d, s%d' % (sTA, sTA, sLOFF), 's_add_u32 s%d, s%d, 0x%x' % (sTA, sTA, base_off)]
        return self.touch(pre, 40, 1, ' sc1')
    def freed_by(self, c):
        if c <= NBLK - 7: return c + 6
        if c < NBLK - 1: return NBLK + (c - (NBLK - 7))
        return NBLK + 0
    def ring_read(self, dst, blk, off, kh=False):
        slot = self.slot_of(blk)
        base = (vK0 if kh else vL16) if slot < 3 else ((vK1 if kh else vL16B) if slot < 6 else vK2)
        assert slot < 6 or kh
        return 'ds_read_b128 v[%d:%d], v%d offset:%d' % (dst, dst + 3, base, (slot % 3) * BLK + off)
    def emit_next_layer_dma(self, b):
        e = self.e
        L = self.lab('nl')
        e('s_cmp_lg_u32 s%d, 0' % sL); e('s_cbranch_scc1 %s' % L)
        for g in self.dma_ops(b):
            for x in g:
                if isinstance(x, tuple): e(x[0], count=False)
                else: e(x)
        e.label(L)
    def signal(self, cnt_off_sgpr, ack=()):
        e = self.e
        if ack:
            e.vm_marker('pub')
            for b in ack:
                for g in self.dma_ops(b): e.extend(g)
            e.wait_tag('pub'); e.wait_lgkm0()
        else:
            e.wait_all()
        e('s_barrier')
        self.signal_only(cnt_off_sgpr)
    def signal_only(self, cnt_off_sgpr):
        e = self.e
        L = self.lab('sig')
        e('s_cmp_lg_u32 s%d, 0' % sW); e('s_cbranch_scc1 %s' % L)
        e('s_mov_b64 exec, 1')
        e('buffer_atomic_add v%d, v%d, s[4:7], s%d offen sc1' % (vONE, vZERO, cnt_off_sgpr), count=False)
        e('s_mov_b64 exec, -1')
        e.label(L)
    def poll(self, cnt_off_sgpr, n=1, target=16, srd=4, stride=128):
        e = self.e
        L = self.lab('poll'); X = self.lab('got')
        e('s_cmp_lg_u32 s%d, 0' % sW); e('s_cbranch_scc1 %s' % X)
        e('s_cmp_lg_u32 s%d, 0' % sDEAD); e('s_cbranch_scc1 %s' % X)
        e('s_mov_b32 s%d, 0' % sPC)
        if n > 1:
            e('v_min_u32 v%d, %d, v%d' % (vT0, n - 1, vLANE)); e('v_mul_u32_u24 v%d, %d, v%d' % (vT0, stride, vT0))
        e.label(L)
        e('buffer_load_dword v%d, v%d, s[%d:%d], s%d offen sc1' % (vPOLL, vT0 if n > 1 else vZERO, srd, srd + 3, cnt_off_sgpr), count=False)
        e('s_waitcnt vmcnt(0)', count=False)
        e('v_cmp_gt_u32 vcc, %d, v%d' % (target, vPOLL))
        e('s_cbranch_vccz %s' % X)
        if self.o.get('psleep'): e('s_sleep %d' % self.o['psleep'])
        e('s_add_u32 s%d, s%d, 1' % (sPC, sPC)); e('s_cmp_lt_u32 s%d, %d' % (sPC, SPIN_LIMIT))
        e('s_cbranch_scc1 %s' % L)
        e('s_mov_b32 s%d, 1' % sDEAD)
        e.label(X)
    def cnt(self, dst, which, idx_sgpr, mul=128, add=0, next_layer=False):
        e = self.e
        e('s_mul_i32 s%d, s%d, %d' % (dst, idx_sgpr, mul))
        e('s_add_u32 s%d, s%d, s%d' % (dst, dst, sCNT))
        e('s_add_u32 s%d, s%d, 0x%x' % (dst, dst, which + add + (CSTRIDE if next_layer else 0)))
    def prologue(self):
        if self.o.get('merged', 0): return self.prologue_merged()
        e = self.e
        e.directive('.text\n.globl %s\n.p2align 8\n.type %s,@function' % (self.name, self.name))
        e.label(self.name)
        e('s_cmp_ge_u32 s2, 256'); e('s_cbranch_scc1 M_END')
        e('s_load_dwordx2 s[32:33], s[0:1], 0')
        e('s_load_dwordx2 s[34:35], s[0:1], 64')
        e('s_load_dwordx2 s[36:37], s[0:1], 80')
        if self.o.get('jitter'):
            e('s_load_dwordx2 s[60:61], s[0:1], 72\ns_waitcnt lgkmcnt(0)\ns_load_dword s63, s[60:61], 0\ns_waitcnt lgkmcnt(0)')
        self.entry_stamp()
        self.pro_scalars()
        if not self.o.get('lanelate', 1): self.pro_lanes()
        e('s_waitcnt lgkmcnt(0)')
        self.mk_srd(4, 36, WS_BYTES)
        self.pro_tail(32, 34)
    def prologue_merged(self):
        import gen_prep as P
        e = self.e
        e.directive('.text\n.globl %s\n.p2align 8\n.type %s,@function' % (self.name, self.name))
        e.label(self.name)
        e('s_cmp_ge_u32 s2, 256'); e('s_cbranch_scc1 M_END')
        e('s_load_dwordx8 s[64:71], s[0:1], 0')
        e('s_load_dwordx4 s[72:75], s[0:1], 40')
        e('s_load_dwordx2 s[76:77], s[0:1], 56')
        e('s_load_dwordx2 s[78:79], s[0:1], 64')
        e('s_load_dwordx4 s[80:83], s[0:1], 72')
        self.entry_stamp()
        self.pro_scalars()
        e('s_waitcnt lgkmcnt(0)')
        self.mk_srd(4, 82, WS_BYTES)
        e('s_add_u32 s0, s2, 352\ns_sub_u32 s26, s2, 64\ns_cmp_ge_u32 s2, 160\ns_cselect_b32 s0, s26, s0\ns_cmp_lt_u32 s2, 96\ns_cselect_b32 s0, s2, s0')
        e('s_add_u32 s1, s2, 192')
        Lz = self.lab('nz')
        e('s_cmp_ge_u32 s2, 16'); e('s_cbranch_scc1 %s' % Lz)
        e('s_cmp_lg_u32 s%d, 0' % sW); e('s_cbranch_scc1 %s' % Lz)
        for k in range(4): e('v_mov_b32 v%d, 0' % (120 + k))
        e('s_lshl_b32 s26, s2, 11')
        e('buffer_store_dwordx4 v[120:123], v%d, s[4:7], s26 offen sc1' % vL16, count=False)
        e('buffer_store_dwordx4 v[120:123], v%d, s[4:7], s26 offen offset:1024 sc1' % vL16, count=False)
        e.label(Lz)
        r1 = P.Ren(e, 1, 0); r2 = P.Ren(e, 2, 1)
        L1, L2 = 0, 32768
        def dispatch(cases, sreg, tagp):
            end = self.lab(tagp)
            labs = [self.lab(tagp) for _ in cases]
            for (ub, _), lb in list(zip(cases, labs))[:-1]:
                e('s_cmp_lt_u32 s%d, %d' % (sreg, ub)); e('s_cbranch_scc1 %s' % lb)
            e('s_branch %s' % labs[-1])
            for (ub, fn), lb in zip(cases, labs):
                e.label(lb); e.reset_state(); fn()
                e.wait_lgkm0()
                e('s_branch %s' % end)
            e.label(end); e.reset_state()
        dispatch([(96, lambda: P.wa_issue(r1)), (288, lambda: P.wc_issue(r1, L1)), (None, lambda: P.x_issue(r1))], 0, 'i1')
        dispatch([(288, lambda: P.wc_issue(r2, L2)), (416, lambda: P.wd_issue(r2, L2)), (None, lambda: P.wb_issue(r2, L2))], 1, 'i2')
        if self.o.get('codepf', 1):
            Lp = self.lab('npf')
            e('s_cmp_ge_u32 s2, 64'); e('s_cbranch_scc1 %s' % Lp)
            e('s_getpc_b64 s[84:85]')
            e.label('M_PC')
            e('s_add_u32 s84, s84, (M_LAYER-M_PC)\ns_addc_u32 s85, s85, 0')
            e('v_lshlrev_b32 v124, 7, v0\nv_mov_b32 v125, (M_CODE_END-M_LAYER-4)\nv_add_u32 v126, 0x8000, v124')
            e('v_min_u32 v124, v124, v125\nv_min_u32 v126, v126, v125\nv_and_b32 v124, -4, v124\nv_and_b32 v126, -4, v126')
            e('global_load_dword v127, v124, s[84:85]', count=False)
            e('global_load_dword v127, v126, s[84:85]', count=False)
            e.label(Lp)
        self.mk_srd(84, 80, 256)
        Lf = self.lab('nf'); Lv = self.lab('nfv'); Lw = self.lab('nfw')
        e('s_cmp_ge_u32 s2, 16'); e('s_cbranch_scc1 %s' % Lf)
        e('s_cmp_lg_u32 s%d, 0' % sW); e('s_cbranch_scc1 %s' % Lf)
        npf = 2 if self.o.get('codepf', 1) else 0
        e('s_cmp_eq_u32 s31, 1'); e('s_cbranch_scc1 %s' % Lv)
        e('s_waitcnt vmcnt(%d)' % (22 + 5 + npf), count=False); e('s_branch %s' % Lw)
        e.label(Lv)
        e('s_waitcnt vmcnt(%d)' % (10 + 5 + npf), count=False)
        e.label(Lw)
        e('s_lshl_b32 s62, s2, 2\ns_mov_b64 exec, 1')
        e('buffer_store_dword v%d, v%d, s[84:87], s62 offen sc1' % (vONE, vZERO), count=False)
        e('s_mov_b64 exec, -1')
        self.stamp(27)
        e.label(Lf)
        e('s_waitcnt vmcnt(4)', count=False)
        self.stamp(19)
        dispatch([(96, lambda: P.wa_process(r1)), (288, lambda: P.wc_process(r1, L1)), (None, lambda: P.x_process(r1))], 0, 'p1')
        self.stamp(20)
        Lq = self.lab('zq')
        e('s_cmp_lg_u32 s%d, 0' % sW); e('s_cbranch_scc1 %s' % Lq)
        e('v_min_u32 v126, 15, v%d\nv_lshlrev_b32 v126, 2, v126' % vLANE)
        e('buffer_load_dword v%d, v126, s[84:87], 0 offen sc1' % vPOLL, count=False)
        e.label(Lq)
        e('s_waitcnt vmcnt(0) lgkmcnt(0)', count=False)
        e('s_barrier')
        self.stamp(26)
        def arrive(off, below=None):
            La = self.lab('arr')
            e('s_cmp_lg_u32 s%d, 0' % sW); e('s_cbranch_scc1 %s' % La)
            if below is not None:
                e('s_cmp_ge_u32 s2, %d' % below); e('s_cbranch_scc1 %s' % La)
            e('s_and_b32 s62, s2, 15\ns_lshl_b32 s62, s62, 7\ns_add_u32 s62, s62, 0x%x\ns_mov_b64 exec, 1' % off)
            e('buffer_atomic_add v%d, v%d, s[4:7], s62 offen sc1' % (vONE, vZERO), count=False)
            e('s_mov_b64 exec, -1')
            e.label(La)
        Lc = self.lab('zc'); Ls = self.lab('zcs')
        e('s_cmp_lg_u32 s%d, 0' % sW); e('s_cbranch_scc1 %s' % Lc)
        e('s_mov_b32 s%d, 0' % sPC)
        e.label(Ls)
        e('v_cmp_gt_u32 vcc, 1, v%d' % vPOLL)
        e('s_cbranch_vccz %s' % Lc)
        if self.o.get('zsleep'): e('s_sleep %d' % self.o['zsleep'])
        e('buffer_load_dword v%d, v126, s[84:87], 0 offen sc1' % vPOLL, count=False)
        e('s_waitcnt vmcnt(0)', count=False)
        e('s_add_u32 s%d, s%d, 1' % (sPC, sPC)); e('s_cmp_lt_u32 s%d, %d' % (sPC, SPIN_LIMIT)); e('s_cbranch_scc1 %s' % Ls)
        e('s_mov_b32 s%d, 1' % sDEAD)
        e.label(Lc)
        arrive(CNT_CRIT, 160)
        self.stamp(21)
        dispatch([(288, lambda: P.wc_process(r2, L2)), (416, lambda: P.wd_process(r2, L2)), (None, lambda: P.wb_process(r2, L2))], 1, 'p2')
        self.stamp(22)
        e('s_waitcnt vmcnt(0) lgkmcnt(0)', count=False)
        e('s_barrier')
        arrive(CNT_REST)
        self.stamp(25)
        self.pro_lanes()
        e('s_mov_b32 s%d, 0x%x' % (sT0, CNT_CRIT))
        self.stamp(23)
        self.poll(sT0, n=16, target=10)
        e('s_barrier')
        self.stamp(24)
        self.pro_tail(64, 78)
    def entry_stamp(self):
        if self.o.get('stamps'):
            self.e(('s_memtime' if self.o.get('cyc') else 's_memrealtime') + ' s[60:61]\ns_waitcnt lgkmcnt(0)\nv_mov_b32 v223, s60')
    def mk_srd(self, d, lo, n):
        self.e('s_mov_b32 s%d, s%d\ns_mov_b32 s%d, s%d\ns_mov_b32 s%d, 0x%x\ns_mov_b32 s%d, 0x20000' % (d, lo, d + 1, lo + 1, d + 2, n, d + 3))
    def pro_scalars(self):
        e = self.e
        e('v_lshrrev_b32 v10, 6, v0'); e('v_and_b32 v%d, 63, v0' % vLANE)
        e('v_readfirstlane_b32 s%d, v10' % sW)
        e('v_lshlrev_b32 v%d, 4, v%d' % (vL16, vLANE))
        mp = self.o.get('map', 0)
        if mp == 0:
            e('s_and_b32 s%d, s2, 3\ns_lshr_b32 s26, s2, 6\ns_lshl_b32 s26, s26, 2\ns_or_b32 s%d, s%d, s26' % (sRB, sRB, sRB))
            e('s_lshr_b32 s%d, s2, 2\ns_and_b32 s%d, s%d, 15' % (sJ, sJ, sJ))
        elif mp == 1:
            e('s_and_b32 s%d, s2, 15\ns_lshr_b32 s%d, s2, 4' % (sRB, sJ))
        elif mp == 2:
            e('s_and_b32 s%d, s2, 1\ns_lshr_b32 s26, s2, 5\ns_lshl_b32 s26, s26, 1\ns_or_b32 s%d, s%d, s26' % (sRB, sRB, sRB))
            e('s_lshr_b32 s%d, s2, 1\ns_and_b32 s%d, s%d, 15' % (sJ, sJ, sJ))
        if self.o.get('thmap', 1):
            e('s_lshr_b32 s%d, s%d, 1\ns_and_b32 s%d, s%d, 1' % (sCS, sJ, sTH, sJ))
        else:
            e('s_and_b32 s%d, s%d, 7\ns_lshr_b32 s%d, s%d, 3' % (sCS, sJ, sTH, sJ))
        e('s_mul_i32 s%d, s%d, 5120' % (sW5K, sW))
        e('s_lshr_b32 s%d, s%d, 1' % (sKH, sW))
        for (s, idx, stride, base) in ((sWA, sJ, 160 * KB, WA), (sWB, sCS, 100 * KB, WB), (sWC, sJ, 240 * KB, WC), (sWD, sCS, 240 * KB, WD)):
            if self.o.get('wsame'): stride = 0
            e('s_mul_i32 s%d, s%d, %d\ns_add_u32 s%d, s%d, s%d\ns_add_u32 s%d, s%d, 0x%x' % (s, idx, stride, s, s, sW5K, s, s, base))
        e('s_lshl_b32 s%d, s%d, 3\ns_lshl_b32 s26, s%d, 2\ns_add_u32 s%d, s%d, s26' % (sTTK, sRB, sTH, sTTK, sTTK))
        e('s_and_b32 s26, s%d, 1\ns_lshl_b32 s26, s26, 1\ns_add_u32 s%d, s%d, s26\ns_add_u32 s%d, s%d, s%d' % (sW, sTTK, sTTK, sTTK, sTTK, sKH))
        e('s_xor_b32 s%d, s%d, 1' % (sTTS, sTTK))
        e('s_mov_b32 s%d, 0\ns_mov_b32 s%d, 0\ns_mov_b32 s%d, 0x%x' % (sDEAD, sL, sLOFF, LBASE))
        e('s_mov_b32 s%d, 0x%x\ns_mov_b32 s%d, 1' % (sCNT, CNT0, sFIRST))
        e('s_sub_u32 s%d, s%d, 1\ns_lshl_b32 s%d, s%d, 11\ns_sub_u32 s%d, s%d, s%d' % (sEX, sW, sEX, sEX, sEXD, sEX, sW5K))
        e('v_mov_b32 v%d, 0x3f803f80\nv_mov_b32 v%d, 0\nv_mov_b32 v%d, 1' % (vONES, vZERO, vONE))
    def pro_lanes(self):
        e = self.e
        e('v_add_u32 v%d, %d, v%d' % (vL16B, 3 * BLK, vL16))
        e('v_lshlrev_b32 v%d, 7, v%d' % (vL128, vLANE))
        e('s_mul_i32 s26, s%d, 5120\nv_add_u32 v%d, s26, v%d\nv_add_u32 v%d, %d, v%d' % (sKH, vK0, vL16, vK1, 3 * BLK, vK0))
        e('v_add_u32 v%d, %d, v%d' % (vK2, 6 * BLK, vK0))
        t32, hi, t16, q = 100, 101, 102, 103
        e('v_and_b32 v%d, 31, v%d\nv_lshrrev_b32 v%d, 5, v%d' % (t32, vLANE, hi, vLANE))
        e('v_and_b32 v%d, 15, v%d\nv_lshrrev_b32 v%d, 4, v%d' % (t16, vLANE, q, vLANE))
        e('v_mov_b32 v104, 0x%x' % OOB)
        e('v_lshlrev_b32 v%d, 3, v%d\nv_lshl_add_u32 v%d, v%d, 16, v%d' % (vSA, t32, vSA, hi, vSA))
        e('s_lshl_b32 s26, s%d, 5\nv_add_u32 v105, s26, v%d\nv_mul_u32_u24 v105, 144, v105' % (sW, t32))
        e('v_mul_u32_u24 v106, 18432, v%d\nv_add_u32 v105, v105, v106\nv_add_u32 v%d, 0x%x, v105' % (hi, vTW, SCR))
        e('v_lshrrev_b32 v105, 1, v%d\nv_bfe_u32 v106, v%d, 2, 2\nv_lshl_add_u32 v105, v105, 3, v106\nv_mul_u32_u24 v105, 144, v105' % (q, vLANE))
        e('v_and_b32 v106, 1, v%d\nv_lshlrev_b32 v106, 5, v106\nv_and_b32 v107, 3, v%d\nv_lshl_add_u32 v106, v107, 3, v106\nv_add_u32 v105, v105, v106' % (q, vLANE))
        e('s_lshr_b32 s26, s%d, 1\ns_mul_i32 s26, s26, 18432\ns_add_u32 s26, s26, 0x%x' % (sW, SCR))
        e('s_and_b32 s27, s%d, 1\ns_mul_i32 s28, s27, 40\ns_add_u32 s28, s28, s26\ns_add_u32 s29, s26, 80' % sW)
        e('v_add_u32 v%d, s28, v105\nv_add_u32 v%d, s29, v105' % (vKA, vKB))
        e('s_lshl_b32 s26, s%d, 10' % sW)
        e('v_mul_u32_u24 v105, 24, v%d\nv_add_u32 v105, v105, v%d\nv_lshlrev_b32 v105, 4, v105\nv_add_u32 v105, s26, v105' % (hi, t32))
        e('v_cmp_gt_u32 vcc, 24, v%d\nv_cndmask_b32 v%d, v104, v105, vcc' % (t32, vPS1))
        e('v_lshlrev_b32 v105, 3, v%d\nv_add_u32 v105, s26, v105\nv_add_u32 v105, 768, v105' % t32)
        e('v_cmp_eq_u32 vcc, 0, v%d\nv_cndmask_b32 v%d, v104, v105, vcc' % (hi, vPS2))
        e('v_mov_b32 v106, 84\nv_cmp_le_u32 s[30:31], v106, v0\nv_cndmask_b32 v106, 0, 1, s[30:31]')
        e('v_mul_u32_u24 v107, 84, v106\nv_sub_u32 v107, v0, v107')
        e('v_mul_u32_u24 v108, 391, v107\nv_lshrrev_b32 v108, 13, v108')
        e('v_mul_u32_u24 v109, 21, v108\nv_sub_u32 v109, v107, v109')
        e('v_subrev_u32 v110, 168, v0\nv_mul_u32_u24 v111, 391, v110\nv_lshrrev_b32 v111, 13, v111\nv_and_b32 v111, 3, v111')
        e('v_mul_u32_u24 v96, 21, v111\nv_sub_u32 v96, v110, v96')
        e('v_cmp_gt_u32 vcc, 168, v0')
        e('v_lshrrev_b32 v97, 1, v108\nv_lshl_add_u32 v97, v106, 1, v97\nv_lshlrev_b32 v97, 10, v97')
        e('v_and_b32 v98, 1, v108\nv_mul_u32_u24 v98, 24, v98\nv_add_u32 v98, v98, v109\nv_lshl_add_u32 v97, v98, 4, v97')
        e('v_lshlrev_b32 v98, 10, v111\nv_lshl_add_u32 v98, v96, 3, v98\nv_add_u32 v98, 768, v98')
        e('v_cndmask_b32 v97, v98, v97, vcc')
        e('v_mov_b32 v99, 252\nv_cmp_gt_u32 s[30:31], v99, v0\nv_cndmask_b32 v%d, v104, v97, s[30:31]' % vPL)
        e('v_lshrrev_b32 v97, 1, v111\nv_cndmask_b32 v106, v97, v106, vcc')
        e('v_cndmask_b32 v108, 4, v108, vcc\nv_cndmask_b32 v109, v96, v109, vcc')
        e('v_lshrrev_b32 v110, 4, v109\nv_mul_u32_u24 v110, 5, v110\nv_add_u32 v110, v110, v108')
        e('v_and_b32 v109, 15, v109\nv_lshrrev_b32 v97, 2, v109\nv_lshlrev_b32 v97, 3, v97\nv_and_b32 v109, 3, v109\nv_add_u32 v97, v97, v109')
        e('v_mul_u32_u24 v109, 36, v106\nv_add_u32 v97, v97, v109')
        e('v_lshlrev_b32 v97, 4, v97\nv_lshl_add_u32 v97, v110, 10, v97\nv_add_u32 v97, 0x%x, v97' % SCR)
        e('v_and_b32 v105, 63, v0\nv_lshlrev_b32 v105, 4, v105\nv_add_u32 v105, 0x%x, v105' % (SCR + 12288))
        e('v_cndmask_b32 v%d, v105, v97, vcc' % vAW)
        e('v_and_b32 v98, 1, v111\nv_lshl_add_u32 v97, v98, 3, v97')
        e('v_cndmask_b32 v97, v97, v105, vcc\nv_cndmask_b32 v%d, v105, v97, s[30:31]' % vAW2)
        e('s_mul_i32 s26, s%d, 5' % sJ)
        e('v_bfe_u32 v105, v%d, 4, 1\nv_mul_u32_u24 v105, 20480, v105\nv_lshl_add_u32 v105, v%d, 4, v105' % (vLANE, t16))
        for (dst, expr) in ((vO0, 0), (vO1, 1), (vO2, None)):
            if expr is not None:
                e('v_lshl_add_u32 v106, v%d, 1, s26\nv_add_u32 v106, %d, v106' % (hi, expr))
            else:
                e('v_mov_b32 v106, s26\nv_add_u32 v106, 4, v106')
            e('v_lshrrev_b32 v107, 2, v106\nv_lshl_add_u32 v107, v107, 10, v105\nv_and_b32 v106, 3, v106\nv_lshl_add_u32 v%d, v106, 8, v107' % dst)
        e('v_lshl_add_u32 v%d, v%d, 3, v%d' % (vO2, hi, vO2))
        e('s_mul_i32 s26, s%d, 10' % sCS)
        e('s_and_b32 s27, s%d, 1\ns_lshl_b32 s27, s27, 8' % sTTK)
        e('v_lshlrev_b32 v105, 4, v%d' % t16)
        for n, (dx, dy) in enumerate(((vX0, vY0), (vX1, vY1), (vX2, vY2))):
            if n < 2: e('v_add_u32 v106, s26, v%d\nv_add_u32 v106, %d, v106' % (q, 4 * n))
            else: e('v_lshrrev_b32 v106, 1, v%d\nv_add_u32 v106, s26, v106\nv_add_u32 v106, 8, v106' % q)
            e('v_lshrrev_b32 v107, 2, v106\nv_lshl_add_u32 v107, v107, 10, v105\nv_and_b32 v108, 3, v106\nv_lshl_add_u32 v%d, v108, 8, v107' % dx)
            e('v_lshrrev_b32 v107, 1, v106\nv_lshl_add_u32 v107, v107, 10, v105\nv_and_b32 v108, 1, v106\nv_lshl_add_u32 v107, v108, 9, v107\nv_add_u32 v%d, s27, v107' % dy)
        e('v_and_b32 v106, 1, v%d\nv_lshl_add_u32 v%d, v106, 3, v%d\nv_lshl_add_u32 v%d, v106, 3, v%d' % (q, vX2, vX2, vY2, vY2))
        e('v_mul_u32_u24 v105, 1280, v%d\nv_lshl_add_u32 v%d, v%d, 4, v105\nv_lshl_add_u32 v%d, v%d, 3, v105\nv_add_u32 v%d, 128, v%d' % (t16, vR0, q, vR2, q, vR2, vR2))
        e('v_lshlrev_b32 v105, 3, v%d\nv_cmp_eq_u32 vcc, 0, v%d\nv_cndmask_b32 v%d, v104, v105, vcc\nv_lshl_add_u32 v%d, v%d, 15, v105' % (t16, q, vST, vSC, q))
        e('s_add_u32 s26, s%d, 0x%x\nv_add_u32 v%d, s26, v%d' % (sW5K, SCR, vEXW, vL16))
        e('s_xor_b32 s27, s%d, 2\ns_mul_i32 s27, s27, 5120\ns_add_u32 s27, s27, 0x%x\nv_add_u32 v%d, s27, v%d' % (sW, SCR, vEXR, vL16))
    def pro_tail(self, xlo, olo):
        e = self.e
        self.mk_srd(8, xlo, T * 1280); self.mk_srd(12, olo, T * 1280)
        if self.o.get('ampre_a', 0): self.am_a()
        for b in self.A_ack:
            for g in self.dma_ops(b): e.extend(g)
        self.side_dma(self.A_side[:1])
        for b in self.A_tail:
            for g in self.dma_ops(b):
                for x in g:
                    if isinstance(x, tuple): e(x[0], count=False)
                    else: e(x)
        self.side_dma(self.A_side[1:])
        if not self.o.get('xrlate', 1): self.xr_load()
    def xr_load(self):
        e = self.e
        e('s_mul_i32 s29, s%d, 20480\ns_mul_i32 s31, s%d, 160\ns_add_u32 s29, s29, s31' % (sTTK, sCS))
        e('buffer_load_dwordx4 v[%d:%d], v%d, s[8:11], s29 offen' % (XR, XR + 3, vR0), count=False)
        e('buffer_load_dwordx4 v[%d:%d], v%d, s[8:11], s29 offen offset:64' % (XR + 4, XR + 7, vR0), count=False)
        e('buffer_load_dwordx2 v[%d:%d], v%d, s[8:11], s29 offen' % (XR + 8, XR + 9, vR2), count=False)
    def rowstat_finish(self, S, Q, vRS, vVE, BM, tmp):
        L = []
        L.append('v_mul_f32 v%d, %s, v%d' % (S, f32bits(1.0 / 640), S))
        L.append('v_mul_f32 v%d, %s, v%d' % (Q, f32bits(1.0 / 640), Q))
        L.append('v_fma_f32 v%d, -v%d, v%d, v%d' % (Q, S, S, Q))
        L.append('v_max_f32 v%d, 0, v%d' % (Q, Q))
        L.append('v_add_f32 v%d, %s, v%d' % (vVE, f32bits(1e-5), Q))
        L.append('v_rsq_f32 v%d, v%d' % (vRS, vVE))
        L.append('v_cvt_pk_bf16_f32 v%d, -v%d, -v%d' % (tmp, S, S))
        L.append('v_and_b32 v%d, 0xffff0000, v%d' % (tmp, tmp))
        L.append('v_sub_f32 v%d, -v%d, v%d' % (tmp, S, tmp))
        L.append('v_cvt_pk_bf16_f32 v%d, -v%d, v%d' % (BM, S, tmp))
        for k in range(1, 4): L.append('v_mov_b32 v%d, v%d' % (BM + k, BM))
        return L
    def softmax_pair(self, X, vC, EP, EM, t):
        L = []
        mx, mn, ap, am, sp, sm = range(t, t + 6)
        L.append('v_max3_f32 v%d, v%d, v%d, v%d' % (mx, X[0], X[1], X[2]))
        L.append('v_min3_f32 v%d, v%d, v%d, v%d' % (mn, X[0], X[1], X[2]))
        for k in range(3, 19, 2):
            L.append('v_max3_f32 v%d, v%d, v%d, v%d' % (mx, mx, X[k], X[k + 1]))
            L.append('v_min3_f32 v%d, v%d, v%d, v%d' % (mn, mn, X[k], X[k + 1]))
        L.append('v_max_f32 v%d, v%d, v%d' % (mx, mx, X[19]))
        L.append('v_min_f32 v%d, v%d, v%d' % (mn, mn, X[19]))
        L.append('v_mul_f32 v%d, v%d, v%d' % (ap, vC, mx))
        L.append('v_mul_f32 v%d, v%d, v%d' % (am, vC, mn))
        for f in range(20):
            L.append('v_fma_f32 v%d, v%d, v%d, -v%d' % (EP + f, X[f], vC, ap))
            L.append('v_fma_f32 v%d, -v%d, v%d, v%d' % (EM + f, X[f], vC, am))
        for f in range(20):
            L.append('v_exp_f32 v%d, v%d' % (EP + f, EP + f))
            L.append('v_exp_f32 v%d, v%d' % (EM + f, EM + f))
        L.append('v_add_f32 v%d, v%d, v%d' % (sp, EP, EP + 1))
        L.append('v_add_f32 v%d, v%d, v%d' % (sm, EM, EM + 1))
        for f in range(2, 20):
            L.append('v_add_f32 v%d, v%d, v%d' % (sp, sp, EP + f))
            L.append('v_add_f32 v%d, v%d, v%d' % (sm, sm, EM + f))
        L.append('v_rcp_f32 v%d, v%d' % (sp, sp))
        L.append('v_rcp_f32 v%d, v%d' % (sm, sm))
        for f in range(20):
            L.append('v_mul_f32 v%d, v%d, v%d' % (EP + f, EP + f, sp))
            L.append('v_mul_f32 v%d, v%d, v%d' % (EM + f, EM + f, sm))
        return L
    def stamp(self, k):
        if not self.o.get('stamps'): return
        e = self.e
        e('v_mov_b32 v222, s%d' % sL)
        e('v_lshlrev_b32 v222, 5, v222\nv_add_u32 v222, %d, v222' % k)
        e('v_cmp_eq_u32 vcc, v222, v%d' % vLANE)
        e('s_memtime s[58:59]' if self.o.get('cyc') else 's_memrealtime s[58:59]')
        e('s_waitcnt lgkmcnt(0)')
        e('v_mov_b32 v222, s58')
        e('v_cndmask_b32 v223, v223, v222, vcc')
    def jitter(self, k, e=None):
        if not self.o.get('jitter'): return
        e = e or self.e
        L = self.lab('jit'); X = self.lab('jitx')
        e('s_mul_i32 s60, s2, %d' % (2654435761 % (1 << 31)))
        e('s_mul_i32 s61, s%d, 40503\ns_add_u32 s60, s60, s61\ns_add_u32 s60, s60, s63' % sL)
        e('s_mul_i32 s61, s%d, %d\ns_add_u32 s60, s60, s61' % (sW, self.o.get('jitw', 0) * 9973))
        e('s_add_u32 s60, s60, %d\ns_mul_i32 s60, s60, 1103515245\ns_lshr_b32 s61, s60, 13\ns_xor_b32 s60, s60, s61\ns_mul_i32 s60, s60, 1664525' % (k * 7919 + self.o['jitter'] * 104729))
        e('s_lshr_b32 s61, s60, 28\ns_lshr_b32 s60, s60, 20\ns_and_b32 s60, s60, %d' % self.o.get('jitmask', 31))
        e('s_cmp_lt_u32 s61, %d\ns_cselect_b32 s60, s60, 0' % self.o.get('jitp', 2))
        e.label(L)
        e('s_cmp_eq_u32 s60, 0'); e('s_cbranch_scc1 %s' % X)
        e('s_sleep 4'); e('s_sub_u32 s60, s60, 1'); e('s_branch %s' % L)
        e.label(X)
    def jitter_items(self, k):
        if not self.o.get('jitter'): return []
        sub = Main(None, self.o); sub.nlab = self.nlab + 5000 + 10 * k; sub.jitter(k); self.nlab += 1
        return sub.e.items
    def stamp_items(self, k):
        if self.o.get('stamps') != 2: return []
        sub = Main(None, self.o); sub.stamp(k)
        return sub.e.items
    def stamp_flush(self):
        if not self.o.get('stamps'): return
        e = self.e
        e('s_lshl_b32 s62, s2, 2\ns_add_u32 s62, s62, s%d\ns_lshl_b32 s62, s62, 8\ns_add_u32 s62, s62, 0x%x' % (sW, TSOFF))
        e('v_lshlrev_b32 v%d, 2, v%d' % (vT0, vLANE))
        e('buffer_store_dword v223, v%d, s[4:7], s62 offen' % vT0)
    def maybe_stop(self, name):
        if self.stop == name:
            self.e.wait_all(); self.e('s_endpgm'); return True
        return False
    def vm_stream(self, items):
        st = Stream()
        for it in sorted(items, key=lambda x: x[3] if len(x) > 3 else x[0]):
            st.add(it[2], it[1], it[0])
        return st
    def flat(self, groups):
        return [x for g in groups for x in g]
    def phase_a(self):
        e = self.e; o = self.o
        T0, T1, T2, T3 = ACC, ACC + 16, ACC + 32, ACC + 48
        ST, vRS, vVE, vC, BM, AM, EP, EM, P = 112, 120, 121, 122, 124, 128, 144, 164, 184
        self.stamp(0)
        L = self.lab('a_nopoll')
        e('s_cmp_eq_u32 s%d, 0' % sL); e('s_cbranch_scc1 %s' % L)
        self.cnt(sT0, CNT_XA, sRB)
        self.poll(sT0)
        e('s_barrier')
        e.label(L)
        self.stamp(1)
        e('s_lshl_b32 s%d, s%d, 2\ns_add_u32 s%d, s%d, s%d' % (sT0, sRB, sT0, sT0, sW))
        e('s_mul_i32 s%d, s%d, 40960\ns_add_u32 s%d, s%d, s%d\ns_add_u32 s%d, s%d, 0x%x' % (sTW, sT0, sTW, sTW, sLOFF, sTW, sTW, XA))
        def tok(s):
            g = []
            if s % 4 == 0: g.append('s_add_u32 s%d, s%d, %d' % (sB0, sTW, s * 1024))
            g.append('buffer_load_dwordx4 a[%d:%d], v%d, s[4:7], s%d offen offset:%d%s' % (4 * s, 4 * s + 3, vL16, sB0, (s % 4) * 1024, self.sc))
            return g
        NPRE = o.get('a_npre', 12)
        if o.get('tt', 0): e.extend(self.touch_tok(XA))
        for s in range(NPRE): e.extend(tok(s))
        if o.get('lanelate', 1) and not o.get('merged', 0):
            Ll = self.lab('lanes')
            e('s_cmp_eq_u32 s%d, 0' % sFIRST); e('s_cbranch_scc1 %s' % Ll)
            self.pro_lanes()
            e('s_mov_b32 s%d, 0' % sFIRST)
            e.label(Ll)
        e('s_lshl_b32 s%d, s%d, 2\ns_add_u32 s%d, s%d, s%d' % (sT0, sRB, sT0, sT0, sW))
        e('s_lshl_b32 s%d, s%d, 8\ns_add_u32 s%d, s%d, s%d\ns_add_u32 s%d, s%d, 0x%x' % (sT1, sT0, sT1, sT1, sLOFF, sT1, sT1, SA))
        stld = []
        for k in range(4):
            if k: stld.append('s_add_u32 s%d, s%d, 16384' % (sT1, sT1))
            stld.append('buffer_load_dwordx2 v[%d:%d], v%d, s[4:7], s%d offen sc1' % (ST + 2 * k, ST + 2 * k + 1, vSA, sT1))
        e('s_lshl_b32 s%d, s%d, 12\ns_add_u32 s%d, s%d, 0x%x' % (sT2, sJ, sT2, sT2, WAM))
        amload = ['buffer_load_dwordx4 v[%d:%d], v%d, s[4:7], s%d offen offset:%d' % (AM + 4 * t, AM + 4 * t + 3, vL16, sT2, t * 1024) for t in range(4)]
        st = []
        st += ['v_add_f32 v%d, v%d, v%d' % (ST, ST, ST + 2), 'v_add_f32 v%d, v%d, v%d' % (ST + 1, ST + 1, ST + 3),
               'v_add_f32 v%d, v%d, v%d' % (ST + 4, ST + 4, ST + 6), 'v_add_f32 v%d, v%d, v%d' % (ST + 5, ST + 5, ST + 7),
               'v_add_f32 v%d, v%d, v%d' % (ST, ST, ST + 4), 'v_add_f32 v%d, v%d, v%d' % (ST + 1, ST + 1, ST + 5),
               'v_mov_b32 v%d, v%d' % (ST + 2, ST), 'v_mov_b32 v%d, v%d' % (ST + 3, ST + 1),
               'v_permlane32_swap_b32 v%d, v%d' % (ST, ST + 2), 'v_permlane32_swap_b32 v%d, v%d' % (ST + 1, ST + 3),
               'v_add_f32 v%d, v%d, v%d' % (ST, ST, ST + 2), 'v_add_f32 v%d, v%d, v%d' % (ST + 1, ST + 1, ST + 3)]
        st += self.rowstat_finish(ST, ST + 1, vRS, vVE, BM, ST + 2)
        st += ['v_mul_f32 v%d, %s, v%d' % (vC, f32bits(LOG2E), vRS)]
        LA = 5
        def frag_info(n):
            if n < 120: return n // 3, n % 3
            return n - 120, 3
        def read(n): return self.ring_read(AF + 4 * (n % 8), A0 + n // 20, (n % 20) * 1024)
        def mfma(n):
            s, tau = frag_info(n); acc = ACC + 16 * tau; a = AF + 4 * (n % 8)
            c = '0' if s == 0 else 'v[%d:%d]' % (acc, acc + 15)
            return 'v_mfma_f32_32x32x16_bf16 v[%d:%d], v[%d:%d], a[%d:%d], %s' % (acc, acc + 15, a, a + 3, 4 * s, 4 * s + 3, c)
        def mean(tau):
            acc = ACC + 16 * tau
            return 'v_mfma_f32_32x32x16_bf16 v[%d:%d], v[%d:%d], v[%d:%d], v[%d:%d]' % (acc, acc + 15, AM + 4 * tau, AM + 4 * tau + 3, BM, BM + 3, acc, acc + 15)
        ksm = self.softmax_pair([T0 + r for r in range(16)] + [T1 + r for r in range(4)], vC, EP, EM, ST)
        for d in range(10): ksm.append('v_cvt_pk_bf16_f32 v%d, v%d, v%d' % (P + d, EP + 2 * d, EP + 2 * d + 1))
        for d in range(10): ksm.append('v_cvt_pk_bf16_f32 v%d, v%d, v%d' % (P + 10 + d, EM + 2 * d, EM + 2 * d + 1))
        V = [T1 + r for r in range(4, 16)] + [T2 + r for r in range(8)]
        for f in range(20): ksm.append('v_mul_f32 v%d, v%d, v%d' % (V[f], V[f], vRS))
        for d in range(10): ksm.append('v_cvt_pk_bf16_f32 v%d, v%d, v%d' % (P + 20 + d, V[2 * d], V[2 * d + 1]))
        ksm += ['v_mov_b32 v%d, 0x3f80' % (P + 30), 'v_mov_b32 v%d, 0' % (P + 31)]
        anchors = []; pre = {}; fixed = {}; idx = {}
        KF = o.get('kvfirst', 1)
        NF1 = 140 if KF else 160
        for n in range(NF1):
            if n == 120:
                idx['mean'] = len(anchors)
                anchors += [mean(t) for t in range(3)]
            idx[n] = len(anchors)
            anchors.append(mfma(n))
            fixed[idx[n]] = ([read(n + LA)] if n + LA < NF1 else []) + ([Need('v[%d:%d]' % (AF + 4 * ((n + 1) % 8), AF + 4 * ((n + 1) % 8) + 3))] if n + 1 < NF1 else [])
        if not KF: anchors.append(mean(3))
        for ep in range(1, 7 if KF else 8):
            at = idx['mean'] if ep == 6 else idx[20 * ep]
            pre[at] = (self.jitter_items(120 + ep) if ep in (1, 4) else []) + ([W_tag('blk%d' % (A0 + ep + 1))] if ep < 7 else []) + ['s_barrier']
            if self.o.get('fine') == 'a': pre[at] += self.stamp_items(19 + ep - 1)
        items = [(3 * s, 0, tok(s)) for s in range(NPRE, 40)]
        if not o.get('ampre_a', 0): items.append((90, 0, amload))
        if o.get('tw', 0): items.append((30, 0, self.touch_w('B')))
        items.append((o.get('a_stdl', 64), 0, stld))
        for b in self.A_in: items.append((20 * (b - 1), 0, self.flat(self.dma_ops(b))))
        last_in = o.get('a_lastblk', 11)
        for b in range(6, last_in + 1):
            free = 20 * (b - 5) if b - 5 < 6 else idx['mean']
            assert not KF or b <= 11
            items.append((20 * (b - 1) if b < 8 else 200 + b, free, self.flat(self.dma_ops(b))))
        if o.get('merged', 0):
            sub = Main(None, self.o); sub.nlab = self.nlab + 2000; q = sub.e
            Lr = 'M_restld'
            q('s_cmp_lg_u32 s%d, 0' % sL); q('s_cbranch_scc1 %s' % Lr)
            q('v_min_u32 v%d, 15, v%d\nv_lshlrev_b32 v%d, 7, v%d\ns_mov_b32 s%d, 0x%x' % (vT1, vLANE, vT1, vT1, sT3, CNT_REST))
            q('buffer_load_dword v%d, v%d, s[4:7], s%d offen sc1' % (vPOLL, vT1, sT3), count=False)
            q.label(Lr)
            e.extend(q.items)
            sub = Main(None, self.o); sub.nlab = self.nlab + 3000; q = sub.e
            Lk = 'M_restok'; Ll = 'M_restsp'
            q('s_cmp_lg_u32 s%d, 0' % sL); q('s_cbranch_scc1 %s' % Lk)
            q('s_mov_b32 s%d, 0' % sPC)
            q.label(Ll)
            q('v_cmp_gt_u32 vcc, 16, v%d' % vPOLL)
            q('s_cbranch_vccz %s' % Lk)
            q('s_cmp_lg_u32 s%d, 0' % sDEAD); q('s_cbranch_scc1 %s' % Lk)
            q('buffer_load_dword v%d, v%d, s[4:7], s%d offen sc1' % (vPOLL, vT1, sT3), count=False)
            q('s_waitcnt vmcnt(0)', count=False)
            q('s_add_u32 s%d, s%d, 1' % (sPC, sPC)); q('s_cmp_lt_u32 s%d, %d' % (sPC, SPIN_LIMIT)); q('s_cbranch_scc1 %s' % Ll)
            q('s_mov_b32 s%d, 1' % sDEAD)
            q.label(Lk)
            pre[idx[60]] = q.items + pre[idx[60]]
        vs = self.vm_stream(items)
        valu = Stream(st, o.get('a_stv', 90)).add(ksm, idx[120] + 1)
        if o.get('fine') == 'a0': e.extend(self.stamp_items(19))
        e.wait_tag('blk0'); e.wait_tag('blk1')
        if self.A_tail:
            Lw = self.lab('a_l0w')
            e('s_cmp_lg_u32 s%d, 0' % sL); e('s_cbranch_scc1 %s' % Lw)
            e('s_waitcnt vmcnt(0)', count=False)
            e.label(Lw)
        e('s_barrier')
        if o.get('fine') == 'a0':
            e.extend(self.stamp_items(20))
            for k, at in enumerate((1, 3, 6, 9, 12, 15, 18)):
                pre[at] = pre.get(at, []) + self.stamp_items(21 + k)
        for n in range(LA): e(read(n))
        stt = {}
        e.extend(schedule(anchors, 5, pre, fixed, [vs, valu], vm_gap=o.get('a_gap', 2), state=stt))
        if o.get('verbose'): print('a forced', stt.get('forced'), 'left', len(vs.q), len(valu.q))
        e.extend([y[0] for y in vs.q]); e.extend([y[0] for y in valu.q])
        self.a_late = list(range(last_in + 1, 13))
        self.stamp(2)
        self.jitter(1)
        for m in range(8):
            e('ds_write_b128 v%d, v[%d:%d] offset:%d' % (vTW, P + 4 * m, P + 4 * m + 3, 16 * m))
        e.wait_lgkm0()
        e('s_barrier')
        KD = T0
        def kvread(ks):
            b = AF + 8 * (ks % 4)
            return ['ds_read_b64_tr_b16 v[%d:%d], v%d offset:%d' % (b, b + 1, vKA, ks * 2304),
                    'ds_read_b64_tr_b16 v[%d:%d], v%d offset:%d' % (b + 2, b + 3, vKA, ks * 2304 + 576),
                    'ds_read_b64_tr_b16 v[%d:%d], v%d offset:%d' % (b + 4, b + 5, vKB, ks * 2304),
                    'ds_read_b64_tr_b16 v[%d:%d], v%d offset:%d' % (b + 6, b + 7, vKB, ks * 2304 + 576)]
        for ks in range(3): e.extend(kvread(ks))
        for ks in range(8):
            if ks + 3 < 8: e.extend(kvread(ks + 3))
            b = AF + 8 * (ks % 4)
            e('v_mfma_f32_32x32x16_bf16 v[%d:%d], v[%d:%d], v[%d:%d], %s' % (KD, KD + 15, b, b + 3, b + 4, b + 7, '0' if ks == 0 else 'v[%d:%d]' % (KD, KD + 15)))
        PK = EP
        for d in range(6): e('v_cvt_pk_bf16_f32 v%d, v%d, v%d' % (PK + d, KD + 2 * d, KD + 2 * d + 1))
        e('s_lshl_b32 s%d, s%d, 4\ns_add_u32 s%d, s%d, s%d\ns_lshl_b32 s%d, s%d, 12' % (sT0, sJ, sT0, sT0, sRB, sT0, sT0))
        e('s_add_u32 s%d, s%d, s%d\ns_add_u32 s%d, s%d, 0x%x' % (sT0, sT0, sLOFF, sT0, sT0, KVP))
        if o.get('reuse'): e('s_lshl_b32 s%d, s%d, 20\ns_add_u32 s%d, s%d, s%d' % (sT3, sL, sT0, sT0, sT3))
        e('buffer_store_dwordx4 v[%d:%d], v%d, s[4:7], s%d offen sc1' % (PK, PK + 3, vPS1, sT0))
        e('buffer_store_dwordx2 v[%d:%d], v%d, s[4:7], s%d offen sc1' % (PK + 4, PK + 5, vPS2, sT0))
        self.cnt(sT1, CNT_KV, sJ)
        kack = self.a_late if o.get('k_ack', 1) else []
        self.signal(sT1, kack)
        self.stamp(3)
        if o.get('tw', 0): e.extend(self.touch_w('C'))
        if not kack: self.side_dma(self.a_late)
        if o.get('xrlate', 1):
            Lx = self.lab('xr')
            e('s_cmp_lg_u32 s%d, 0' % sL); e('s_cbranch_scc1 %s' % Lx)
            self.xr_load()
            e.label(Lx)
        ZR = EM
        zf = ['v_mov_b32 v%d, 0' % (ZR + r) for r in range(4)]
        zf += ['v_lshlrev_b32 v%d, 4, v0' % vT1, 'v_add_u32 v%d, 0x%x, v%d' % (vT1, SCR, vT1)]
        zf += ['ds_write_b128 v%d, v[%d:%d] offset:%d' % (vT1, ZR, ZR + 3, m * 4096) for m in range(3)]
        if KF:
            an2 = []; fx2 = {}
            for n in range(NF1, NF1 + LA): e(read(n))
            for n in range(NF1, 160):
                fx2[len(an2)] = ([read(n + LA)] if n + LA < 160 else []) + ([Need('v[%d:%d]' % (AF + 4 * ((n + 1) % 8), AF + 4 * ((n + 1) % 8) + 3))] if n + 1 < 160 else [])
                an2.append(mfma(n))
            an2.append(mean(3))
            z = Stream(zf)
            e.extend(schedule(an2, 5, {}, fx2, [z]))
            e.extend([y[0] for y in z.q])
        else:
            e.extend(zf)
        Q = P
        X = [T2 + r for r in range(8, 16)] + [T3 + r for r in range(12)]
        e.extend(self.softmax_pair(X, vC, EP, EM, ST))
        order = []
        for sign in (EP, EM):
            order += [(sign + 0), (sign + 2), (sign + 8), (sign + 10), (sign + 4), (sign + 6), (sign + 12), (sign + 14)]
        order += [EP + 16, EP + 18, EM + 16, EM + 18]
        for d, r in enumerate(order): e('v_cvt_pk_bf16_f32 v%d, v%d, v%d' % (Q + d, r, r + 1))
        e.wait_lgkm0()
        self.stamp(4)
        self.poll(sT1)
        e('s_barrier')
        self.stamp(5)
        if self.maybe_stop('a1'): return True
        LD, SUM, PKK = 112, 176, 204
        e('s_lshl_b32 s%d, s%d, 16\ns_add_u32 s%d, s%d, s%d\ns_add_u32 s%d, s%d, 0x%x' % (sT0, sJ, sT0, sT0, sLOFF, sT0, sT0, KVP))
        if o.get('reuse'): e('s_lshl_b32 s%d, s%d, 20\ns_add_u32 s%d, s%d, s%d' % (sT3, sL, sT0, sT0, sT3))
        for p in range(16):
            if p: e('s_add_u32 s%d, s%d, 4096' % (sT0, sT0))
            e('buffer_load_dwordx4 v[%d:%d], v%d, s[4:7], s%d offen sc1' % (LD + 4 * p, LD + 4 * p + 3, vPL, sT0))
        e('v_mov_b32 v%d, 0x00003f80\nv_mov_b32 v%d, 0x3f800000' % (vT2, vT3))
        for k in range(8): e('v_mov_b32 v%d, 0' % (SUM + k))
        for p in range(16):
            for d in range(4):
                e('v_dot2c_f32_bf16 v%d, v%d, v%d' % (SUM + 2 * d, LD + 4 * p + d, vT2))
                e('v_dot2c_f32_bf16 v%d, v%d, v%d' % (SUM + 2 * d + 1, LD + 4 * p + d, vT3))
        for d in range(4): e('v_cvt_pk_bf16_f32 v%d, v%d, v%d' % (PKK + d, SUM + 2 * d, SUM + 2 * d + 1))
        e('ds_write_b128 v%d, v[%d:%d]' % (vAW, PKK, PKK + 3))
        e('ds_write_b64 v%d, v[%d:%d]' % (vAW2, PKK, PKK + 1))
        e.wait_lgkm0()
        e('s_barrier')
        e('v_add_u32 v%d, 0x%x, v%d' % (vT1, SCR, vL16))
        for n in range(8): e('ds_read_b128 v[%d:%d], v%d offset:%d' % (AF + 4 * n, AF + 4 * n + 3, vT1, n * 1024))
        G0, G1 = T0, T1
        for n in range(10):
            rho, s = n // 5, n % 5
            acc = G0 if rho == 0 else G1
            a = AF + 4 * (n % 8)
            e('v_mfma_f32_32x32x16_bf16 v[%d:%d], v[%d:%d], v[%d:%d], %s' % (acc, acc + 15, a, a + 3, Q + 4 * s, Q + 4 * s + 3, '0' if s == 0 else 'v[%d:%d]' % (acc, acc + 15)))
            if n < 2: e('ds_read_b128 v[%d:%d], v%d offset:%d' % (a, a + 3, vT1, (n + 8) * 1024))
        self.jitter(2)
        e('v_add_f32 v%d, %s, v%d' % (vT2, f32bits(1e-6), G1 + 4))
        e('v_rcp_f32 v%d, v%d' % (vT2, vT2))
        OP = 208
        src = [G0 + r for r in range(16)] + [G1 + r for r in range(4)]
        for r in src: e('v_mul_f32 v%d, v%d, v%d' % (r, r, vT2))
        for d in range(10): e('v_cvt_pk_bf16_f32 v%d, v%d, v%d' % (OP + d, src[2 * d], src[2 * d + 1]))
        e('s_lshl_b32 s%d, s%d, 3\ns_lshl_b32 s%d, s%d, 1\ns_add_u32 s%d, s%d, s%d\ns_mul_i32 s%d, s%d, 20480' % (sT0, sRB, sT1, sW, sT0, sT0, sT1, sT0, sT0))
        e('s_add_u32 s%d, s%d, s%d\ns_add_u32 s%d, s%d, 0x%x' % (sT0, sT0, sLOFF, sT0, sT0, O))
        e('buffer_store_dwordx4 v[%d:%d], v%d, s[4:7], s%d offen sc1' % (OP, OP + 3, vO0, sT0))
        e('buffer_store_dwordx4 v[%d:%d], v%d, s[4:7], s%d offen sc1' % (OP + 4, OP + 7, vO1, sT0))
        e('buffer_store_dwordx2 v[%d:%d], v%d, s[4:7], s%d offen sc1' % (OP + 8, OP + 9, vO2, sT0))
        self.stamp(6)
        self.cnt(sT1, CNT_O, sRB)
        self.signal(sT1, [C0] if o.get('o_ack', 1) else [])
        self.stamp(7)
        if not o.get('o_ack', 1): self.side_dma([C0])
        return self.maybe_stop('a')
    def gemm_bd(self, first_blk, nsteps, vs, pre_extra, valu, breg=None):
        e = self.e
        LA = 5
        nf = nsteps * 5
        def read(n):
            i, tau = n // 5, n % 5
            return self.ring_read(AF + 4 * (n % 8), first_blk + i // 2, (i & 1) * 10240 + tau * 1024, kh=True)
        def mf(n, u):
            i, tau = n // 5, n % 5
            acc = ACC + (tau * 2 + u) * 4; a = AF + 4 * (n % 8); b = breg(i, u) if breg else (2 * i + u) * 4
            c = '0' if i == 0 else 'v[%d:%d]' % (acc, acc + 3)
            return 'v_mfma_f32_16x16x32_bf16 v[%d:%d], v[%d:%d], a[%d:%d], %s' % (acc, acc + 3, a, a + 3, b, b + 3, c)
        anchors = []; pre = {}; fixed = {}
        for n in range(nf):
            anchors += [mf(n, 0), mf(n, 1)]
            if n + LA < nf: fixed[2 * n] = [read(n + LA)]
            if n + 1 < nf: fixed[2 * n + 1] = [Need('v[%d:%d]' % (AF + 4 * ((n + 1) % 8), AF + 4 * ((n + 1) % 8) + 3))]
        nep = nsteps // 2
        for ep in range(1, nep):
            pre[20 * ep] = (self.jitter_items(80 + ep + nsteps) if ep in (1, 3, 6) else []) + list(pre_extra.get(ep, [])) + ([W_tag('blk%d' % (first_blk + ep + 1))] if ep + 1 < nep else []) + ['s_barrier']
            if self.o.get('fine') == 'd' and nsteps == 24: pre[20 * ep] += self.stamp_items(19 + ep - 1)
        for n in range(LA): e(read(n))
        stt = {}
        e.extend(schedule(anchors, 2, pre, fixed, [vs, valu], vm_gap=self.o.get('d_gap', 2), state=stt))
        if self.o.get('verbose'): print('bd forced', stt.get('forced'), 'left', len(vs.q), len(valu.q))
        e.extend([y[0] for y in vs.q]); e.extend([y[0] for y in valu.q])
    def bd_unpack(self):
        U = 112; L = []
        for d in range(10):
            L.append('v_lshlrev_b32 v%d, 16, v%d' % (U + 2 * d, XR + d))
            L.append('v_and_b32 v%d, 0xffff0000, v%d' % (U + 2 * d + 1, XR + d))
        return L
    def bd_epilogue(self, last_blk, final):
        e = self.e
        EX = 88
        self.jitter(3 + last_blk)
        for tau in range(5):
            a = ACC + (tau * 2 + 1) * 4
            e('ds_write_b128 v%d, v[%d:%d] offset:%d' % (vEXW, a, a + 3, tau * 1024))
        e.wait_lgkm0()
        e('s_barrier')
        for tau in range(5):
            e('ds_read_b128 v[%d:%d], v%d offset:%d' % (EX + 4 * tau, EX + 4 * tau + 3, vEXR, tau * 1024))
        U = 112
        for tau in range(5):
            a = ACC + (tau * 2) * 4
            for c in range(4):
                e('v_add_f32 v%d, v%d, v%d' % (U + 4 * tau + c, U + 4 * tau + c, a + c))
        for tau in range(5):
            for c in range(4):
                e('v_add_f32 v%d, v%d, v%d' % (U + 4 * tau + c, U + 4 * tau + c, EX + 4 * tau + c))
        for d in range(10): e('v_cvt_pk_bf16_f32 v%d, v%d, v%d' % (XR + d, U + 2 * d, U + 2 * d + 1))
        final()
    def bd_stats(self, base_off, next_layer):
        e = self.e
        S, Q = 136, 137
        e('v_mov_b32 v%d, 0\nv_mov_b32 v%d, 0' % (S, Q))
        for d in range(10):
            e('v_dot2c_f32_bf16 v%d, v%d, v%d' % (S, XR + d, vONES))
            e('v_dot2c_f32_bf16 v%d, v%d, v%d' % (Q, XR + d, XR + d))
        for sw in ('v_permlane16_swap_b32', 'v_permlane32_swap_b32'):
            e('v_mov_b32 v138, v%d\nv_mov_b32 v139, v%d' % (S, Q))
            e('%s v%d, v138\n%s v%d, v139' % (sw, S, sw, Q))
            e('v_add_f32 v%d, v%d, v138\nv_add_f32 v%d, v%d, v139' % (S, S, Q, Q))
        e('s_lshl_b32 s%d, s%d, 7\ns_lshl_b32 s%d, s%d, 14\ns_add_u32 s%d, s%d, s%d' % (sT2, sTTK, sT3, sCS, sT2, sT2, sT3))
        e('s_add_u32 s%d, s%d, s%d\ns_add_u32 s%d, s%d, 0x%x' % (sT2, sT2, sLOFF, sT2, sT2, base_off + (self.lstride if next_layer else 0)))
        if not self.o.get('nostats'): e('buffer_store_dwordx2 v[%d:%d], v%d, s[4:7], s%d offen sc1' % (S, Q, vST, sT2))
    def phase_b(self):
        e = self.e
        self.cnt(sT0, CNT_O, sRB)
        for (s, tt) in ((sB0, sTTK), (sB1, sTTS)):
            e('s_mul_i32 s%d, s%d, 20\ns_mul_i32 s%d, s%d, 10\ns_add_u32 s%d, s%d, s%d\ns_lshl_b32 s%d, s%d, 10' % (s, tt, sT1, sKH, s, s, sT1, s, s))
            e('s_add_u32 s%d, s%d, s%d\ns_add_u32 s%d, s%d, 0x%x' % (s, s, sLOFF, s, s, O))
        def tok(i, u):
            s = sB0 if u == 0 else sB1
            t = sC1 + u
            g = []
            if i % 4 == 0: g.append('s_add_u32 s%d, s%d, %d' % (t, s, i * 1024))
            g.append('buffer_load_dwordx4 a[%d:%d], v%d, s[4:7], s%d offen offset:%d%s' % ((2 * i + u) * 4, (2 * i + u) * 4 + 3, vL16, t, (i % 4) * 1024, self.sc))
            return g
        e.wait_tag('blk%d' % B0); e.wait_tag('blk%d' % (B0 + 1))
        self.poll(sT0)
        e('s_barrier')
        self.stamp(8)
        NPRE = self.o.get('b_npre', 6)
        for i in range(NPRE):
            for u in range(2): e.extend(tok(i, u))
        items = [(10 * i, 0, tok(i, 0) + tok(i, 1)) for i in range(NPRE, 10)]
        for k, b in enumerate(self.C_tail): items.append((5000 + b, 20 * (k + 1), self.flat(self.dma_ops(b))))
        vs = self.vm_stream(items)
        self.gemm_bd(B0, 10, vs, {}, Stream(self.bd_unpack(), 60))
        self.stamp(9)
        def final():
            e('s_mul_i32 s%d, s%d, 20480\ns_add_u32 s%d, s%d, s%d\ns_add_u32 s%d, s%d, 0x%x' % (sT0, sTTK, sT0, sT0, sLOFF, sT0, sT0, XC))
            e('buffer_store_dwordx4 v[%d:%d], v%d, s[4:7], s%d offen sc1' % (XR, XR + 3, vX0, sT0))
            e('buffer_store_dwordx4 v[%d:%d], v%d, s[4:7], s%d offen sc1' % (XR + 4, XR + 7, vX1, sT0))
            e('buffer_store_dwordx2 v[%d:%d], v%d, s[4:7], s%d offen sc1' % (XR + 8, XR + 9, vX2, sT0))
            self.bd_stats(SC, False)
            self.cnt(sT1, CNT_XC, sRB)
            self.signal(sT1, self.C_ack)
            self.stamp(10)
            if self.o.get('ampre', 1): self.am_c()
            self.side_dma(self.C_side)
        self.bd_epilogue(B0 + 4, final)
        return self.maybe_stop('b')
    def gelu_ops(self, accset, u, c0, c1, vVE, HP, t):
        L = []
        G = [accset + (p * 2 + u) * 4 + c for p in range(2) for c in range(4)]
        U = [accset + ((2 + p) * 2 + u) * 4 + c for p in range(2) for c in range(4)]
        g = [t + i for i in range(8)]; w = [t + 8 + i for i in range(8)]
        for h in range(2):
            R = range(4 * h, 4 * h + 4)
            for i in R: L.append('v_mul_f32 v%d, v%d, v%d' % (w[i], G[i], G[i]))
            for i in R: L.append('v_fma_f32 v%d, v%d, v%d, v%d' % (w[i], w[i], c1, c0))
            for i in R: L.append('v_mul_f32 v%d, v%d, v%d' % (w[i], w[i], G[i]))
            for i in R:
                L.append('v_exp_f32 v%d, v%d' % (w[i], w[i]))
                L.append('v_mul_f32 v%d, v%d, v%d' % (g[i], G[i], U[i]))
            for i in R: L.append('v_fma_f32 v%d, v%d, v%d, v%d' % (w[i], w[i], vVE, vVE))
            for i in R: L.append('v_rcp_f32 v%d, v%d' % (w[i], w[i]))
            for i in R: L.append('v_mul_f32 v%d, v%d, v%d' % (g[i], g[i], w[i]))
            for d in (2 * h, 2 * h + 1): L.append('v_cvt_pk_bf16_f32 v%d, v%d, v%d' % (HP + d, g[2 * d], g[2 * d + 1]))
        return L
    def check_flag(self, vreg, cnt_sgpr, target=16):
        sub = Asm()
        X = self.lab('ck'); L = self.lab('ckl')
        sub('v_cmp_gt_u32 vcc, %d, v%d' % (target, vreg))
        sub('s_cbranch_vccz %s' % X)
        sub('s_cmp_lg_u32 s%d, 0' % sDEAD); sub('s_cbranch_scc1 %s' % X)
        sub('s_mov_b32 s%d, 0' % sPC)
        sub.label(L)
        sub('buffer_load_dword v%d, v%d, s[4:7], s%d offen sc1' % (vreg, vZERO, cnt_sgpr), count=False)
        sub('s_waitcnt vmcnt(0)', count=False)
        sub('v_cmp_gt_u32 vcc, %d, v%d' % (target, vreg))
        sub('s_cbranch_vccz %s' % X)
        sub('s_add_u32 s%d, s%d, 1' % (sPC, sPC)); sub('s_cmp_lt_u32 s%d, %d' % (sPC, SPIN_LIMIT))
        sub('s_cbranch_scc1 %s' % L)
        sub('s_mov_b32 s%d, 1' % sDEAD)
        sub.label(X)
        return sub.items
    def phase_c(self):
        e = self.e; o = self.o
        ST, RS, VE, BMs, AM, GT, HP = 112, (120, 121), (122, 123), (124, 132), 136, 152, (168, 172)
        GC0, GC1 = (176, 177), (178, 179)
        k0 = -2.0 * 0.7978845608028654 * LOG2E
        self.cnt(sT0, CNT_XC, sRB)
        e('s_lshl_b32 s%d, s%d, 3\ns_lshl_b32 s%d, s%d, 1\ns_add_u32 s%d, s%d, s%d' % (sT2, sRB, sT1, sW, sT2, sT2, sT1))
        e('s_lshl_b32 s%d, s%d, 7\ns_add_u32 s%d, s%d, s%d\ns_add_u32 s%d, s%d, 0x%x' % (sT1, sT2, sT1, sT1, sLOFF, sT1, sT1, SC))
        e('s_mul_i32 s%d, s%d, 20480\ns_add_u32 s%d, s%d, s%d\ns_add_u32 s%d, s%d, 0x%x' % (sB0, sT2, sB0, sB0, sLOFF, sB0, sB0, XC))
        e('s_add_u32 s%d, s%d, 20480' % (sB1, sB0))
        e('s_mul_i32 s%d, s%d, 48\ns_add_u32 s%d, s%d, s%d\ns_lshl_b32 s%d, s%d, 10' % (sTW, sT2, sTW, sTW, sJ, sTW, sTW))
        e('s_add_u32 s%d, s%d, s%d\ns_add_u32 s%d, s%d, 0x%x' % (sTW, sTW, sLOFF, sTW, sTW, HH))
        if not o.get('ampre', 1): e('s_mul_i32 s%d, s%d, %d\ns_add_u32 s%d, s%d, 0x%x' % (sT4, sJ, 12 * KB, sT4, sT4, WCM))
        self.poll(sT0)
        e('s_barrier')
        self.stamp(11)
        def tok(s, u):
            sb = sB0 if u == 0 else sB1; t = sC1 + u
            g = []
            if s % 4 == 0: g.append('s_add_u32 s%d, s%d, %d' % (t, sb, s * 1024))
            g.append('buffer_load_dwordx4 a[%d:%d], v%d, s[4:7], s%d offen offset:%d%s' % ((2 * s + u) * 4, (2 * s + u) * 4 + 3, vL16, t, (s % 4) * 1024, self.sc))
            return g
        NPRE = o.get('c_npre', 8)
        if o.get('tt', 0): e.extend(self.touch_tok(XC))
        for s in range(NPRE):
            for u in range(2): e.extend(tok(s, u))
        stld = []
        for k in range(2):
            if k: stld.append('s_add_u32 s%d, s%d, 16384' % (sT1, sT1))
            for u in range(2):
                stld.append('buffer_load_dwordx2 v[%d:%d], v%d, s[4:7], s%d offen offset:%d sc1' % (ST + 4 * u + 2 * k, ST + 4 * u + 2 * k + 1, vSC, sT1, 128 * u))
        def amload(sg):
            pre = [] if sg == 0 else ['s_add_u32 s%d, s%d, 4096' % (sT4, sT4)]
            return pre + ['buffer_load_dwordx4 v[%d:%d], v%d, s[4:7], s%d offen offset:%d' % (AM + 4 * t, AM + 4 * t + 3, vL16, sT4, t * 1024) for t in range(4)]
        st = []
        for u in range(2):
            b = ST + 4 * u
            st += ['v_add_f32 v%d, v%d, v%d' % (b, b, b + 2), 'v_add_f32 v%d, v%d, v%d' % (b + 1, b + 1, b + 3)]
            for sw in ('v_permlane16_swap_b32', 'v_permlane32_swap_b32'):
                st += ['v_mov_b32 v%d, v%d' % (b + 2, b), 'v_mov_b32 v%d, v%d' % (b + 3, b + 1),
                       '%s v%d, v%d' % (sw, b, b + 2), '%s v%d, v%d' % (sw, b + 1, b + 3),
                       'v_add_f32 v%d, v%d, v%d' % (b, b, b + 2), 'v_add_f32 v%d, v%d, v%d' % (b + 1, b + 1, b + 3)]
            st += self.rowstat_finish(b, b + 1, RS[u], VE[u], BMs[u], b + 2)
            st += ['v_mul_f32 v%d, %s, v%d' % (GC0[u], f32bits(k0), RS[u]),
                   'v_mul_f32 v%d, v%d, v%d' % (GC1[u], RS[u], RS[u]),
                   'v_mul_f32 v%d, v%d, v%d' % (GC1[u], GC1[u], GC0[u]),
                   'v_mul_f32 v%d, %s, v%d' % (GC1[u], f32bits(0.044715), GC1[u])]
        LA = 5
        def read(n): return self.ring_read(AF + 4 * (n % 8), C0 + n // 20, (n % 20) * 1024)
        def mf(n, u):
            sg, r = n // 80, n % 80; s, tl = r // 4, r % 4
            acc = ACC + 32 * (sg & 1) + (tl * 2 + u) * 4; a = AF + 4 * (n % 8); b = (2 * s + u) * 4
            c = '0' if s == 0 else 'v[%d:%d]' % (acc, acc + 3)
            return 'v_mfma_f32_16x16x32_bf16 v[%d:%d], v[%d:%d], a[%d:%d], %s' % (acc, acc + 3, a, a + 3, b, b + 3, c)
        def mean(sg):
            L = []
            for tl in range(4):
                for u in range(2):
                    acc = ACC + 32 * (sg & 1) + (tl * 2 + u) * 4
                    L.append('v_mfma_f32_16x16x32_bf16 v[%d:%d], v[%d:%d], v[%d:%d], v[%d:%d]' % (acc, acc + 3, AM + 4 * tl, AM + 4 * tl + 3, BMs[u], BMs[u] + 3, acc, acc + 3))
            return L
        def gelu_store(sg):
            L = []
            for u in range(2):
                L += self.gelu_ops(ACC + 32 * (sg & 1), u, GC0[u], GC1[u], VE[u], HP[u], GT)
                L.append('s_add_u32 s%d, s%d, %d' % (sT5, sTW, u * 48 * 1024 + sg * 16 * 1024))
                L.append(('buffer_store_dwordx4 v[%d:%d], v%d, s[4:7], s%d offen sc1' % (HP[u], HP[u] + 3, vL16, sT5), 'h%d' % sg))
            return L
        def ix(n): return 2 * n + 8 * (n // 80)
        items = [(ix(4 * s), 0, tok(s, 0) + tok(s, 1)) for s in range(NPRE, 20)]
        for b in self.C_in:
            dl = ix(20 * (b - C0 - 1)) - (8 if (b - C0 - 1) % 4 == 0 and b > C0 + 1 else 0)
            items.append((dl, 0, self.flat(self.dma_ops(b)), dl - o.get('c_lead', 40)))
        r8 = o.get('ring8', 1)
        last_in = o.get('c_lastblk', D0 + 4 if r8 else D0 + 3)
        for b in range(C0 + 6, last_in + 1):
            free = 20 * (b - C0 - 5)
            if r8 and b >= D0: free = o.get('c_x0', 100) + 20 * (b - D0) if b < D0 + 2 else 20 * (b - 20)
            epn = b - C0 - 1
            dl = ix(20 * epn) - (8 if epn % 4 == 0 else 0) if b < D0 else 100000 + b
            early = ix(free) - (8 if free % 80 == 0 else 0)
            key = max(early, ix(76)) + (0 if b < D0 else 1)
            items.append((dl, early, self.flat(self.dma_ops(b)), key))
        if not o.get('ampre', 1): items.append((ix(60), 0, amload(0)))
        if o.get('tw', 0): items.append((ix(90), ix(84), self.touch_w('D')))
        items.append((ix(o.get('c_stdl', 44)), 0, stld))
        items.append((ix(150), ix(80), amload(1), ix(80)))
        items.append((ix(230), ix(160), amload(2), ix(160)))
        self.cnt(sT0, CNT_H, sRB, mul=384)
        FL, CKC = o.get('c_fl', 190), o.get('c_ck', 206)
        items.append((ix(CKC) - 1, ix(FL), ['buffer_load_dword v%d, v%d, s[4:7], s%d offen sc1' % (vPOLL, vZERO, sT0)], ix(FL)))
        dtoks = [self.d_tok(i, u) for i in range(8) for u in range(2)]
        for k, g in enumerate(dtoks): items.append((90000 + k, ix(CKC), g, ix(CKC) + 0.01 * k))
        vs = self.vm_stream(items)
        e.wait_tag('blk%d' % C0); e.wait_tag('blk%d' % (C0 + 1))
        e('s_barrier')
        for n in range(LA): e(read(n))
        pos = 0; cstate = {}
        for sg in range(3):
            anchors = []; pre = {}; fixed = {}
            if sg > 0: anchors += mean(sg - 1)
            for n in range(80 * sg, 80 * sg + 80):
                assert pos + len(anchors) == ix(n)
                anchors += [mf(n, 0), mf(n, 1)]
                if n + LA < 240: fixed[ix(n)] = [read(n + LA)]
                if n + 1 < 240: fixed[ix(n) + 1] = [Need('v[%d:%d]' % (AF + 4 * ((n + 1) % 8), AF + 4 * ((n + 1) % 8) + 3))]
            for ep in range(4 * sg, 4 * sg + 4):
                if ep == 0: continue
                at = ix(20 * ep) - (8 if ep % 4 == 0 else 0)
                p = [W_tag('blk%d' % (C0 + ep + 1))] if ep < 11 else []
                if ep == o.get('h0ep', 9): p.append(W_tag('h0'))
                if ep in (2, 5, 6, 9, 10): p += self.jitter_items(50 + ep)
                p.append('s_barrier')
                if self.o.get('fine') == 'c': p += self.stamp_items(19 + ep - 1)
                if ep == o.get('h0ep', 9):
                    sub = Main(None, self.o); sub.nlab = self.nlab + 1000
                    sub.signal_only(sT0)
                    p += sub.e.items
                pre[at] = p
            if sg == 2:
                sub = Main(None, self.o); sub.nlab = self.nlab + 4000
                sub.d_bases()
                pre[ix(CKC)] = pre.get(ix(CKC), []) + [W_vreg(vPOLL)] + self.check_flag(vPOLL, sT0) + sub.e.items
            valu = Stream(st, ix(o.get('c_stv', 56))) if sg == 0 else Stream(gelu_store(sg - 1), pos + 10)
            e.extend(schedule(anchors, 2, pre, fixed, [vs, valu], start=pos, vm_gap=(o.get('c_gap', 4) if sg == 0 else o.get('c_gap2', 4)), state=cstate))
            e.extend([y[0] for y in valu.q])
            pos += len(anchors)
        if self.o.get('verbose'): print('c forced', cstate.get('forced'), 'left', len(vs.q))
        self.stamp(12)
        self.jitter(70)
        tail = mean(2) + gelu_store(2)
        left = [y[0] for y in vs.q]; del vs.q[:]
        nvm = max(1, sum(1 for x in left if is_vm(x)))
        step = max(1, (len(tail) - 8) // (nvm + 1))
        H1 = o.get('h1early', 0)
        first_store = next(n for n, x in enumerate(tail) if is_vm(x))
        for n, x in enumerate(tail):
            if left and n % step == 0:
                while left:
                    y = left.pop(0); e.extend([y])
                    if is_vm(y): break
            e.extend([x])
            if H1 and n == first_store:
                e.wait_tag('h1')
                e('s_barrier')
                self.cnt(sT2, CNT_H, sRB, mul=384, add=128)
                self.signal_only(sT2)
        e.extend(left)
        if H1: e('buffer_load_dword v%d, v%d, s[4:7], s%d offen sc1' % (vT1, vZERO, sT2))
        self.cnt(sT1, CNT_H, sRB, mul=384, add=256)
        self.signal(sT1)
        self.stamp(13)
        self.c_last = last_in
        return self.maybe_stop('c')
    def d_bases(self):
        e = self.e
        for (s, tt) in ((sB0, sTTK), (sB1, sTTS)):
            e('s_mul_i32 s%d, s%d, 48\ns_add_u32 s%d, s%d, s%d\ns_lshl_b32 s%d, s%d, 10' % (s, tt, s, s, sKH, s, s))
            e('s_add_u32 s%d, s%d, s%d\ns_add_u32 s%d, s%d, 0x%x' % (s, s, sLOFF, s, s, HH))
    def d_tok(self, i, u):
        sg, jj = i // 8, i % 8
        s = sB0 if u == 0 else sB1; t = sC1 + u
        g = []
        if jj % 2 == 0: g.append('s_add_u32 s%d, s%d, %d' % (t, s, sg * 16384 + jj * 2048))
        r = self.d_reg(i, u)
        g.append('buffer_load_dwordx4 a[%d:%d], v%d, s[4:7], s%d offen offset:%d%s' % (r, r + 3, vL16, t, (jj % 2) * 2048, self.sc))
        return g
    def d_reg(self, i, u):
        return 160 + (2 * i + u) * 4 if i < 8 else (2 * (i - 8) + u) * 4
    def phase_d(self):
        e = self.e; o = self.o
        tok = self.d_tok
        self.stamp(14)
        H1 = o.get('h1early', 0)
        CK = o.get('d_ck', 5 if H1 else 3)
        items = []
        r8 = o.get('ring8', 1); nfree = 8 if r8 else 6
        assert not (r8 and self.A_tail)
        if H1:
            e.extend(self.check_flag(vT1, sT2))
            for b in range(self.c_last + 1, D0 + nfree): items.append((20 * (b - D0 - 1), 0, self.flat(self.dma_ops(b)), 20 * (b - D0 - 1) - 25))
            for b in range(D0 + nfree, NBLK):
                early = 20 * (b - D0 - nfree + 1)
                items.append((20 * (b - D0 - 1), early, self.flat(self.dma_ops(b)), max(early, 20 * (b - D0 - 1) - 65)))
            fl = 20 * CK - o.get('d_fl', 16)
            items.append((20 * CK - 1, fl, ['buffer_load_dword v%d, v%d, s[4:7], s%d offen sc1' % (vPOLL, vZERO, sT1)], fl))
            items += [(10 * i, 0, tok(i, 0) + tok(i, 1), 10 * i - 80) for i in range(8, 16)]
            items += [(10 * i, 20 * CK, tok(i, 0) + tok(i, 1), 20 * CK + i - 16) for i in range(16, 24)]
        else:
            for b in range(self.c_last + 1, D0 + nfree): items.append((20 * (b - D0 - 1), 0, self.flat(self.dma_ops(b)), b - 200))
            for b in range(D0 + nfree, NBLK):
                early = 20 * (b - D0 - nfree + 1)
                key = (b - 200) if early < 20 * CK else 20 * (b - D0 - 1)
                items.append((20 * (b - D0 - 1), early, self.flat(self.dma_ops(b)), key))
            items.append((20 * CK - 1, 20 * CK - o.get('d_fl', 30), ['buffer_load_dword v%d, v%d, s[4:7], s%d offen sc1' % (vPOLL, vZERO, sT1)], -1))
            items += [(10 * i, 20 * CK, tok(i, 0) + tok(i, 1)) for i in range(8, 24)]
        if o.get('tw', 0): items.append((30, 0, self.touch_w('A'), -500))
        for b in self.A_tail: items.append((5000 + b, 20 * (6 + b), self.flat(self.dma_ops(b))))
        chk = [W_vreg(vPOLL)] + self.check_flag(vPOLL, sT1)
        self.gemm_bd(D0, 24, self.vm_stream(items), {CK: chk}, Stream(self.bd_unpack(), 200), self.d_reg)
        self.stamp(17)
        def final():
            L = self.lab('d_last'); X = self.lab('d_done')
            e('s_cmp_lg_u32 s%d, 0' % sL); e('s_cbranch_scc1 %s' % L)
            e('s_lshr_b32 s%d, s%d, 1\ns_mul_i32 s%d, s%d, 40960\ns_add_u32 s%d, s%d, s%d\ns_add_u32 s%d, s%d, 0x%x' % (sT0, sTTK, sT0, sT0, sT0, sT0, sLOFF, sT0, sT0, XA + self.lstride))
            e('buffer_store_dwordx4 v[%d:%d], v%d, s[4:7], s%d offen sc1' % (XR, XR + 3, vY0, sT0))
            e('buffer_store_dwordx4 v[%d:%d], v%d, s[4:7], s%d offen sc1' % (XR + 4, XR + 7, vY1, sT0))
            e('buffer_store_dwordx2 v[%d:%d], v%d, s[4:7], s%d offen sc1' % (XR + 8, XR + 9, vY2, sT0))
            self.bd_stats(SA, True)
            self.cnt(sT1, CNT_XA, sRB, next_layer=True)
            self.signal(sT1, self.A_ack)
            self.stamp(18)
            if self.o.get('ampre_a', 0): self.am_a()
            self.side_dma(self.A_side)
            e('s_branch %s' % X)
            e.label(L)
            e('s_mul_i32 s%d, s%d, 20480\ns_mul_i32 s%d, s%d, 160\ns_add_u32 s%d, s%d, s%d' % (sT0, sTTK, sT1, sCS, sT0, sT0, sT1))
            e('buffer_store_dwordx4 v[%d:%d], v%d, s[12:15], s%d offen' % (XR, XR + 3, vR0, sT0))
            e('buffer_store_dwordx4 v[%d:%d], v%d, s[12:15], s%d offen offset:64' % (XR + 4, XR + 7, vR0, sT0))
            e('buffer_store_dwordx2 v[%d:%d], v%d, s[12:15], s%d offen' % (XR + 8, XR + 9, vR2, sT0))
            self.stamp(18)
            self.stamp_flush()
            e('s_endpgm')
            e.label(X)
        self.bd_epilogue(D0 + 11, final)
        return self.maybe_stop('d')
    def build(self):
        e = self.e
        self.prologue()
        e.label('M_LAYER')
        done = self.phase_a() or self.phase_b() or self.phase_c() or self.phase_d()
        if not done:
            e('s_add_u32 s%d, s%d, 1\ns_add_u32 s%d, s%d, 0x%x\ns_add_u32 s%d, s%d, 0x%x' % (sL, sL, sLOFF, sLOFF, self.lstride, sCNT, sCNT, CSTRIDE))
            e('s_branch M_LAYER')
        e.label('M_END')
        e('s_endpgm')
        e.label('M_CODE_END')
        if self.o.get('dual'):
            out = []; inloop = False
            for I in e.items:
                out.append(I)
                if I.kind == 'label' and I.txt.startswith('M_LAYER'): inloop = True
                if inloop and I.kind == 'vm' and I.op.startswith('buffer_store') and I.txt.endswith(' sc1') and 's[4:7]' in I.txt:
                    if self.o['dual'] == 1 and ('v%d,' % vPS1 in I.txt or 'v%d,' % vPS2 in I.txt): continue
                    J = parse(I.txt[:-4], I.tag); J.count = I.count
                    out.append(J)
            e.items = out
        return e
```

```python
from asmlib import *
from layout import *

NAME = 'hedgehog_main_kernel'
KNAME = 'interleave_layers__linear_kernel_hedgehog__geglu_ffn__prompt_kernel'
BLK = 20480
SCR = 6 * BLK
LDS_TOTAL = 163840
SPIN_LIMIT = 40000
LOG2E = 1.4426950408889634
TSOFF = 0x4000000

sW, sRB, sJ, sL, sLOFF, sW5K, sWA, sWB, sWC, sWD = range(16, 26)
sT0, sT1, sT2, sT3, sT4, sT5 = range(26, 32)
sDEAD, sPC, sPV, sCS, sTH, sTTK, sTTS, sKH = range(40, 48)
sDM = 48
sTW = 49
sB0, sB1 = 50, 51
sC1, sC2, sC3, sC4 = 52, 53, 54, 55
sEX, sEXD = 56, 57
sFIRST = 38
sCNT = 3
sTA, sTB = 58, 59
vL16, vLANE, vONES, vZERO, vONE, vPOLL = 1, 2, 3, 4, 5, 6
vL16B, vK0, vK1 = 7, 8, 9
vT0, vT1, vT2, vT3, vT4 = 10, 11, 12, 13, 14
vEXR = 15
AF, ACC = 16, 48
vSA, vTW, vKA, vKB, vPS1, vPS2, vPL, vAW, vO0, vO1, vO2, vX0, vX1, vX2, vY0, vY1 = range(224, 240)
XR = 240
vY2, vR0, vR2, vST, vSC, vEXW = range(250, 256)
vAW2 = 221
vK2 = 218
vL128, vTCH = 220, 219

A0, B0, C0, D0, NBLK = 0, 8, 13, 25, 37
NSIDE_A, NSIDE_C = 4, 4

def f32bits(x):
    import struct
    return '0x%08x' % struct.unpack('<I', struct.pack('<f', x))[0]

def W_vreg(r):
    return 'v_mov_b32 v%d, v%d' % (r, r)

class Main:
    def __init__(self, stop=None, opts=None):
        self.e = Asm(); self.stop = stop; self.o = opts or {}
        self.sc = '' if self.o.get('nosc1') else ' sc1'
        self.nlab = 0
        self.lstride = 0 if self.o.get('reuse') else LSTRIDE
        self.name = KNAME if self.o.get('merged', 0) else NAME
        global NSIDE_A, NSIDE_C
        NSIDE_A = self.o.get('nsa', 1); NSIDE_C = self.o.get('nsc', 2)
        dt = self.o.get('d_tail', 0); bt = self.o.get('b_tail', 0)
        self.A_tail = list(range(1, 1 + dt))
        rest = [0] + list(range(1 + dt, 6))
        na = self.o.get('a_ack', 2)
        self.A_ack, rest = rest[:na], rest[na:]
        self.A_side, self.A_in = rest[:NSIDE_A], rest[NSIDE_A:]
        self.C_tail = list(range(C0 + 1, C0 + 1 + bt))
        rest = list(range(C0 + 1 + bt, C0 + 6))
        nc = self.o.get('c_ack', 2)
        self.C_ack, rest = rest[:nc], rest[nc:]
        self.C_side, self.C_in = rest[:NSIDE_C], rest[NSIDE_C:]
    def lab(self, p):
        self.nlab += 1
        return 'M_%s_%d' % (p, self.nlab)
    def slot_of(self, b):
        if b >= D0 and self.o.get('ring8', 1):
            return {25: 6, 26: 7, 27: 1, 28: 2, 29: 3, 30: 4, 31: 5, 32: 0, 33: 6, 34: 7, 35: 1, 36: 2}[b]
        return b % 6
    def blk_src(self, b):
        if b < B0: return sWA, (b - A0) * BLK
        if b < C0: return sWB, (b - B0) * BLK
        if b < D0: return sWC, (b - C0) * BLK
        return sWD, (b - D0) * BLK
    def dma_ops(self, b, tag=None):
        nb = b % NBLK if b >= NBLK else b
        base, off = self.blk_src(nb)
        slot = self.slot_of(nb)
        tag = tag or 'blk%d' % nb
        g = []
        first = ['s_add_u32 m0, s%d, %d' % (sW5K, slot * BLK), 's_add_u32 s%d, s%d, %d' % (sDM, base, off),
                 ('buffer_load_dwordx4 v%d, s[4:7], s%d offen lds' % (vL16, sDM), tag)]
        g.append(first)
        for k in range(1, 4):
            g.append([('buffer_load_dwordx4 v%d, s[4:7], s%d offen offset:%d lds' % (vL16, sDM, k * 1024), tag)])
        g.append(['s_add_u32 m0, s%d, %d' % (sW5K, slot * BLK + 4096), 's_add_u32 s%d, s%d, %d' % (sDM, base, off + 4096),
                  ('buffer_load_dwordx4 v%d, s[4:7], s%d offen lds' % (vL16, sDM), tag)])
        return g
    def am_a(self):
        AM = 128; e = self.e
        e('s_lshl_b32 s%d, s%d, 12\ns_add_u32 s%d, s%d, 0x%x' % (sT2, sJ, sT2, sT2, WAM))
        for t in range(4): e('buffer_load_dwordx4 v[%d:%d], v%d, s[4:7], s%d offen offset:%d' % (AM + 4 * t, AM + 4 * t + 3, vL16, sT2, t * 1024))
    def am_c(self):
        AM = 136; e = self.e
        e('s_mul_i32 s%d, s%d, %d\ns_add_u32 s%d, s%d, 0x%x' % (sT4, sJ, 12 * KB, sT4, sT4, WCM))
        for t in range(4): e('buffer_load_dwordx4 v[%d:%d], v%d, s[4:7], s%d offen offset:%d' % (AM + 4 * t, AM + 4 * t + 3, vL16, sT4, t * 1024))
    def side_dma(self, blocks):
        e = self.e
        L = self.lab('side')
        e('s_cmp_eq_u32 s%d, 0' % sW); e('s_cbranch_scc1 %s' % L)
        for b in blocks:
            base, off = self.blk_src(b); slot = self.slot_of(b); tag = 'blk%d' % b
            ld = 'buffer_load_dwordx4 v%d, s[4:7], s%d offen%%s lds' % (vL16, sDM)
            e('s_add_u32 m0, s%d, %d' % (sW5K, slot * BLK)); e('s_add_u32 s%d, s%d, %d' % (sDM, base, off))
            for k in range(4): e.side(ld % (' offset:%d' % (k * 1024) if k else ''), tag)
            e('s_add_u32 m0, s%d, %d' % (sW5K, slot * BLK + 4096)); e('s_add_u32 s%d, s%d, %d' % (sDM, base, off + 4096))
            e.side(ld % '', tag)
            e('s_add_u32 m0, s%d, %d' % (sEX, slot * BLK)); e('s_add_u32 s%d, s%d, %d' % (sDM, base, off))
            e('s_add_u32 s%d, s%d, s%d' % (sDM, sDM, sEXD))
            e.side(ld % '', tag); e.side(ld % ' offset:1024', tag)
        e.label(L)
    def dma_items(self, b, earliest):
        out = []
        for g in self.dma_ops(b):
            for x in g: out.append((x, earliest))
        return out
    def touch(self, base_expr, nlines_wave, ninstr=1, sc=''):
        L = list(base_expr)
        L.append('s_mul_i32 s%d, s%d, %d' % (sTB, sW, nlines_wave * ninstr * 128))
        L.append('s_add_u32 s%d, s%d, s%d' % (sTA, sTA, sTB))
        if nlines_wave < 64:
            L.append('v_mov_b32 v%d, 0x%x' % (vT0, OOB))
            L.append('v_cmp_gt_u32 vcc, %d, v%d' % (nlines_wave, vLANE))
            L.append('v_cndmask_b32 v%d, v%d, v%d, vcc' % (vT0, vT0, vL128))
            va = vT0
        else: va = vL128
        for k in range(ninstr):
            if k: L.append('s_add_u32 s%d, s%d, %d' % (sTA, sTA, nlines_wave * 128))
            I = parse('buffer_load_dword v%d, v%d, s[4:7], s%d offen%s' % (vTCH, va, sTA, sc)); I.wr = set()
            L.append(I)
        return L
    def touch_w(self, which):
        if which == 'A':
            pre = ['s_lshr_b32 s%d, s%d, 2' % (sTA, sRB), 's_mul_i32 s%d, s%d, %d' % (sTA, sTA, 40 * KB), 's_add_u32 s%d, s%d, s%d' % (sTA, sTA, sWA), 's_sub_u32 s%d, s%d, s%d' % (sTA, sTA, sW5K)]
            return self.touch(pre, 40, 2)
        if which == 'C':
            pre = ['s_lshr_b32 s%d, s%d, 2' % (sTA, sRB), 's_mul_i32 s%d, s%d, %d' % (sTA, sTA, 60 * KB), 's_add_u32 s%d, s%d, s%d' % (sTA, sTA, sWC), 's_sub_u32 s%d, s%d, s%d' % (sTA, sTA, sW5K)]
            return self.touch(pre, 60, 2)
        idx = ['s_lshr_b32 s%d, s%d, 2' % (sTA, sRB), 's_lshl_b32 s%d, s%d, 1' % (sTA, sTA), 's_add_u32 s%d, s%d, s%d' % (sTA, sTA, sTH)]
        if which == 'B':
            return self.touch(idx + ['s_mul_i32 s%d, s%d, 12800' % (sTA, sTA), 's_add_u32 s%d, s%d, s%d' % (sTA, sTA, sWB), 's_sub_u32 s%d, s%d, s%d' % (sTA, sTA, sW5K)], 25, 1)
        if which == 'D':
            return self.touch(idx + ['s_mul_i32 s%d, s%d, 30720' % (sTA, sTA), 's_add_u32 s%d, s%d, s%d' % (sTA, sTA, sWD), 's_sub_u32 s%d, s%d, s%d' % (sTA, sTA, sW5K)], 60, 1)
    def touch_tok(self, base_off):
        pre = ['s_mul_i32 s%d, s%d, %d' % (sTA, sRB, 160 * KB), 's_lshr_b32 s%d, s%d, 1' % (sTB, sJ), 's_mul_i32 s%d, s%d, %d' % (sTB, sTB, 20 * KB),
               's_add_u32 s%d, s%d, s%d' % (sTA, sTA, sTB), 's_add_u32 s%d, s%d, s%d' % (sTA, sTA, sLOFF), 's_add_u32 s%d, s%d, 0x%x' % (sTA, sTA, base_off)]
        return self.touch(pre, 40, 1, ' sc1')
    def freed_by(self, c):
        if c <= NBLK - 7: return c + 6
        if c < NBLK - 1: return NBLK + (c - (NBLK - 7))
        return NBLK + 0
    def ring_read(self, dst, blk, off, kh=False):
        slot = self.slot_of(blk)
        base = (vK0 if kh else vL16) if slot < 3 else ((vK1 if kh else vL16B) if slot < 6 else vK2)
        assert slot < 6 or kh
        return 'ds_read_b128 v[%d:%d], v%d offset:%d' % (dst, dst + 3, base, (slot % 3) * BLK + off)
    def emit_next_layer_dma(self, b):
        e = self.e
        L = self.lab('nl')
        e('s_cmp_lg_u32 s%d, 0' % sL); e('s_cbranch_scc1 %s' % L)
        for g in self.dma_ops(b):
            for x in g:
                if isinstance(x, tuple): e(x[0], count=False)
                else: e(x)
        e.label(L)
    def signal(self, cnt_off_sgpr, ack=()):
        e = self.e
        if ack:
            e.vm_marker('pub')
            for b in ack:
                for g in self.dma_ops(b): e.extend(g)
            e.wait_tag('pub'); e.wait_lgkm0()
        else:
            e.wait_all()
        e('s_barrier')
        self.signal_only(cnt_off_sgpr)
    def signal_only(self, cnt_off_sgpr):
        e = self.e
        L = self.lab('sig')
        e('s_cmp_lg_u32 s%d, 0' % sW); e('s_cbranch_scc1 %s' % L)
        e('s_mov_b64 exec, 1')
        e('buffer_atomic_add v%d, v%d, s[4:7], s%d offen sc1' % (vONE, vZERO, cnt_off_sgpr), count=False)
        e('s_mov_b64 exec, -1')
        e.label(L)
    def poll(self, cnt_off_sgpr, n=1, target=16, srd=4, stride=128):
        e = self.e
        L = self.lab('poll'); X = self.lab('got')
        e('s_cmp_lg_u32 s%d, 0' % sW); e('s_cbranch_scc1 %s' % X)
        e('s_cmp_lg_u32 s%d, 0' % sDEAD); e('s_cbranch_scc1 %s' % X)
        e('s_mov_b32 s%d, 0' % sPC)
        if n > 1:
            e('v_min_u32 v%d, %d, v%d' % (vT0, n - 1, vLANE)); e('v_mul_u32_u24 v%d, %d, v%d' % (vT0, stride, vT0))
        e.label(L)
        e('buffer_load_dword v%d, v%d, s[%d:%d], s%d offen sc1' % (vPOLL, vT0 if n > 1 else vZERO, srd, srd + 3, cnt_off_sgpr), count=False)
        e('s_waitcnt vmcnt(0)', count=False)
        e('v_cmp_gt_u32 vcc, %d, v%d' % (target, vPOLL))
        e('s_cbranch_vccz %s' % X)
        if self.o.get('psleep'): e('s_sleep %d' % self.o['psleep'])
        e('s_add_u32 s%d, s%d, 1' % (sPC, sPC)); e('s_cmp_lt_u32 s%d, %d' % (sPC, SPIN_LIMIT))
        e('s_cbranch_scc1 %s' % L)
        e('s_mov_b32 s%d, 1' % sDEAD)
        e.label(X)
    def cnt(self, dst, which, idx_sgpr, mul=128, add=0, next_layer=False):
        e = self.e
        e('s_mul_i32 s%d, s%d, %d' % (dst, idx_sgpr, mul))
        e('s_add_u32 s%d, s%d, s%d' % (dst, dst, sCNT))
        e('s_add_u32 s%d, s%d, 0x%x' % (dst, dst, which + add + (CSTRIDE if next_layer else 0)))
    def prologue(self):
        if self.o.get('merged', 0): return self.prologue_merged()
        e = self.e
        e.directive('.text\n.globl %s\n.p2align 8\n.type %s,@function' % (self.name, self.name))
        e.label(self.name)
        e('s_cmp_ge_u32 s2, 256'); e('s_cbranch_scc1 M_END')
        e('s_load_dwordx2 s[32:33], s[0:1], 0')
        e('s_load_dwordx2 s[34:35], s[0:1], 64')
        e('s_load_dwordx2 s[36:37], s[0:1], 80')
        if self.o.get('jitter'):
            e('s_load_dwordx2 s[60:61], s[0:1], 72\ns_waitcnt lgkmcnt(0)\ns_load_dword s63, s[60:61], 0\ns_waitcnt lgkmcnt(0)')
        self.entry_stamp()
        self.pro_scalars()
        if not self.o.get('lanelate', 1): self.pro_lanes()
        e('s_waitcnt lgkmcnt(0)')
        self.mk_srd(4, 36, WS_BYTES)
        self.pro_tail(32, 34)
    def prologue_merged(self):
        import gen_prep as P
        e = self.e
        e.directive('.text\n.globl %s\n.p2align 8\n.type %s,@function' % (self.name, self.name))
        e.label(self.name)
        e('s_cmp_ge_u32 s2, 256'); e('s_cbranch_scc1 M_END')
        e('s_load_dwordx8 s[64:71], s[0:1], 0')
        e('s_load_dwordx4 s[72:75], s[0:1], 40')
        e('s_load_dwordx2 s[76:77], s[0:1], 56')
        e('s_load_dwordx2 s[78:79], s[0:1], 64')
        e('s_load_dwordx4 s[80:83], s[0:1], 72')
        self.entry_stamp()
        self.pro_scalars()
        e('s_waitcnt lgkmcnt(0)')
        self.mk_srd(4, 82, WS_BYTES)
        e('s_add_u32 s0, s2, 352\ns_sub_u32 s26, s2, 64\ns_cmp_ge_u32 s2, 160\ns_cselect_b32 s0, s26, s0\ns_cmp_lt_u32 s2, 96\ns_cselect_b32 s0, s2, s0')
        e('s_add_u32 s1, s2, 192')
        Lz = self.lab('nz')
        e('s_cmp_ge_u32 s2, 16'); e('s_cbranch_scc1 %s' % Lz)
        e('s_cmp_lg_u32 s%d, 0' % sW); e('s_cbranch_scc1 %s' % Lz)
        for k in range(4): e('v_mov_b32 v%d, 0' % (120 + k))
        e('s_lshl_b32 s26, s2, 11')
        e('buffer_store_dwordx4 v[120:123], v%d, s[4:7], s26 offen sc1' % vL16, count=False)
        e('buffer_store_dwordx4 v[120:123], v%d, s[4:7], s26 offen offset:1024 sc1' % vL16, count=False)
        e.label(Lz)
        r1 = P.Ren(e, 1, 0); r2 = P.Ren(e, 2, 1)
        L1, L2 = 0, 32768
        def dispatch(cases, sreg, tagp):
            end = self.lab(tagp)
            labs = [self.lab(tagp) for _ in cases]
            for (ub, _), lb in list(zip(cases, labs))[:-1]:
                e('s_cmp_lt_u32 s%d, %d' % (sreg, ub)); e('s_cbranch_scc1 %s' % lb)
            e('s_branch %s' % labs[-1])
            for (ub, fn), lb in zip(cases, labs):
                e.label(lb); e.reset_state(); fn()
                e.wait_lgkm0()
                e('s_branch %s' % end)
            e.label(end); e.reset_state()
        dispatch([(96, lambda: P.wa_issue(r1)), (288, lambda: P.wc_issue(r1, L1)), (None, lambda: P.x_issue(r1))], 0, 'i1')
        dispatch([(288, lambda: P.wc_issue(r2, L2)), (416, lambda: P.wd_issue(r2, L2)), (None, lambda: P.wb_issue(r2, L2))], 1, 'i2')
        if self.o.get('codepf', 1):
            Lp = self.lab('npf')
            e('s_cmp_ge_u32 s2, 64'); e('s_cbranch_scc1 %s' % Lp)
            e('s_getpc_b64 s[84:85]')
            e.label('M_PC')
            e('s_add_u32 s84, s84, (M_LAYER-M_PC)\ns_addc_u32 s85, s85, 0')
            e('v_lshlrev_b32 v124, 7, v0\nv_mov_b32 v125, (M_CODE_END-M_LAYER-4)\nv_add_u32 v126, 0x8000, v124')
            e('v_min_u32 v124, v124, v125\nv_min_u32 v126, v126, v125\nv_and_b32 v124, -4, v124\nv_and_b32 v126, -4, v126')
            e('global_load_dword v127, v124, s[84:85]', count=False)
            e('global_load_dword v127, v126, s[84:85]', count=False)
            e.label(Lp)
        self.mk_srd(84, 80, 256)
        Lf = self.lab('nf'); Lv = self.lab('nfv'); Lw = self.lab('nfw')
        e('s_cmp_ge_u32 s2, 16'); e('s_cbranch_scc1 %s' % Lf)
        e('s_cmp_lg_u32 s%d, 0' % sW); e('s_cbranch_scc1 %s' % Lf)
        npf = 2 if self.o.get('codepf', 1) else 0
        e('s_cmp_eq_u32 s31, 1'); e('s_cbranch_scc1 %s' % Lv)
        e('s_waitcnt vmcnt(%d)' % (22 + 5 + npf), count=False); e('s_branch %s' % Lw)
        e.label(Lv)
        e('s_waitcnt vmcnt(%d)' % (10 + 5 + npf), count=False)
        e.label(Lw)
        e('s_lshl_b32 s62, s2, 2\ns_mov_b64 exec, 1')
        e('buffer_store_dword v%d, v%d, s[84:87], s62 offen sc1' % (vONE, vZERO), count=False)
        e('s_mov_b64 exec, -1')
        self.stamp(27)
        e.label(Lf)
        e('s_waitcnt vmcnt(4)', count=False)
        self.stamp(19)
        dispatch([(96, lambda: P.wa_process(r1)), (288, lambda: P.wc_process(r1, L1)), (None, lambda: P.x_process(r1))], 0, 'p1')
        self.stamp(20)
        Lq = self.lab('zq')
        e('s_cmp_lg_u32 s%d, 0' % sW); e('s_cbranch_scc1 %s' % Lq)
        e('v_min_u32 v126, 15, v%d\nv_lshlrev_b32 v126, 2, v126' % vLANE)
        e('buffer_load_dword v%d, v126, s[84:87], 0 offen sc1' % vPOLL, count=False)
        e.label(Lq)
        e('s_waitcnt vmcnt(0) lgkmcnt(0)', count=False)
        e('s_barrier')
        self.stamp(26)
        def arrive(off, below=None):
            La = self.lab('arr')
            e('s_cmp_lg_u32 s%d, 0' % sW); e('s_cbranch_scc1 %s' % La)
            if below is not None:
                e('s_cmp_ge_u32 s2, %d' % below); e('s_cbranch_scc1 %s' % La)
            e('s_and_b32 s62, s2, 15\ns_lshl_b32 s62, s62, 7\ns_add_u32 s62, s62, 0x%x\ns_mov_b64 exec, 1' % off)
            e('buffer_atomic_add v%d, v%d, s[4:7], s62 offen sc1' % (vONE, vZERO), count=False)
            e('s_mov_b64 exec, -1')
            e.label(La)
        Lc = self.lab('zc'); Ls = self.lab('zcs')
        e('s_cmp_lg_u32 s%d, 0' % sW); e('s_cbranch_scc1 %s' % Lc)
        e('s_mov_b32 s%d, 0' % sPC)
        e.label(Ls)
        e('v_cmp_gt_u32 vcc, 1, v%d' % vPOLL)
        e('s_cbranch_vccz %s' % Lc)
        if self.o.get('zsleep'): e('s_sleep %d' % self.o['zsleep'])
        e('buffer_load_dword v%d, v126, s[84:87], 0 offen sc1' % vPOLL, count=False)
        e('s_waitcnt vmcnt(0)', count=False)
        e('s_add_u32 s%d, s%d, 1' % (sPC, sPC)); e('s_cmp_lt_u32 s%d, %d' % (sPC, SPIN_LIMIT)); e('s_cbranch_scc1 %s' % Ls)
        e('s_mov_b32 s%d, 1' % sDEAD)
        e.label(Lc)
        arrive(CNT_CRIT, 160)
        self.stamp(21)
        dispatch([(288, lambda: P.wc_process(r2, L2)), (416, lambda: P.wd_process(r2, L2)), (None, lambda: P.wb_process(r2, L2))], 1, 'p2')
        self.stamp(22)
        e('s_waitcnt vmcnt(0) lgkmcnt(0)', count=False)
        e('s_barrier')
        arrive(CNT_REST)
        self.stamp(25)
        self.pro_lanes()
        e('s_mov_b32 s%d, 0x%x' % (sT0, CNT_CRIT))
        self.stamp(23)
        self.poll(sT0, n=16, target=10)
        e('s_barrier')
        self.stamp(24)
        self.pro_tail(64, 78)
    def entry_stamp(self):
        if self.o.get('stamps'):
            self.e(('s_memtime' if self.o.get('cyc') else 's_memrealtime') + ' s[60:61]\ns_waitcnt lgkmcnt(0)\nv_mov_b32 v223, s60')
    def mk_srd(self, d, lo, n):
        self.e('s_mov_b32 s%d, s%d\ns_mov_b32 s%d, s%d\ns_mov_b32 s%d, 0x%x\ns_mov_b32 s%d, 0x20000' % (d, lo, d + 1, lo + 1, d + 2, n, d + 3))
    def pro_scalars(self):
        e = self.e
        e('v_lshrrev_b32 v10, 6, v0'); e('v_and_b32 v%d, 63, v0' % vLANE)
        e('v_readfirstlane_b32 s%d, v10' % sW)
        e('v_lshlrev_b32 v%d, 4, v%d' % (vL16, vLANE))
        mp = self.o.get('map', 0)
        if mp == 0:
            e('s_and_b32 s%d, s2, 3\ns_lshr_b32 s26, s2, 6\ns_lshl_b32 s26, s26, 2\ns_or_b32 s%d, s%d, s26' % (sRB, sRB, sRB))
            e('s_lshr_b32 s%d, s2, 2\ns_and_b32 s%d, s%d, 15' % (sJ, sJ, sJ))
        elif mp == 1:
            e('s_and_b32 s%d, s2, 15\ns_lshr_b32 s%d, s2, 4' % (sRB, sJ))
        elif mp == 2:
            e('s_and_b32 s%d, s2, 1\ns_lshr_b32 s26, s2, 5\ns_lshl_b32 s26, s26, 1\ns_or_b32 s%d, s%d, s26' % (sRB, sRB, sRB))
            e('s_lshr_b32 s%d, s2, 1\ns_and_b32 s%d, s%d, 15' % (sJ, sJ, sJ))
        if self.o.get('thmap', 1):
            e('s_lshr_b32 s%d, s%d, 1\ns_and_b32 s%d, s%d, 1' % (sCS, sJ, sTH, sJ))
        else:
            e('s_and_b32 s%d, s%d, 7\ns_lshr_b32 s%d, s%d, 3' % (sCS, sJ, sTH, sJ))
        e('s_mul_i32 s%d, s%d, 5120' % (sW5K, sW))
        e('s_lshr_b32 s%d, s%d, 1' % (sKH, sW))
        for (s, idx, stride, base) in ((sWA, sJ, 160 * KB, WA), (sWB, sCS, 100 * KB, WB), (sWC, sJ, 240 * KB, WC), (sWD, sCS, 240 * KB, WD)):
            if self.o.get('wsame'): stride = 0
            e('s_mul_i32 s%d, s%d, %d\ns_add_u32 s%d, s%d, s%d\ns_add_u32 s%d, s%d, 0x%x' % (s, idx, stride, s, s, sW5K, s, s, base))
        e('s_lshl_b32 s%d, s%d, 3\ns_lshl_b32 s26, s%d, 2\ns_add_u32 s%d, s%d, s26' % (sTTK, sRB, sTH, sTTK, sTTK))
        e('s_and_b32 s26, s%d, 1\ns_lshl_b32 s26, s26, 1\ns_add_u32 s%d, s%d, s26\ns_add_u32 s%d, s%d, s%d' % (sW, sTTK, sTTK, sTTK, sTTK, sKH))
        e('s_xor_b32 s%d, s%d, 1' % (sTTS, sTTK))
        e('s_mov_b32 s%d, 0\ns_mov_b32 s%d, 0\ns_mov_b32 s%d, 0x%x' % (sDEAD, sL, sLOFF, LBASE))
        e('s_mov_b32 s%d, 0x%x\ns_mov_b32 s%d, 1' % (sCNT, CNT0, sFIRST))
        e('s_sub_u32 s%d, s%d, 1\ns_lshl_b32 s%d, s%d, 11\ns_sub_u32 s%d, s%d, s%d' % (sEX, sW, sEX, sEX, sEXD, sEX, sW5K))
        e('v_mov_b32 v%d, 0x3f803f80\nv_mov_b32 v%d, 0\nv_mov_b32 v%d, 1' % (vONES, vZERO, vONE))
    def pro_lanes(self):
        e = self.e
        e('v_add_u32 v%d, %d, v%d' % (vL16B, 3 * BLK, vL16))
        e('v_lshlrev_b32 v%d, 7, v%d' % (vL128, vLANE))
        e('s_mul_i32 s26, s%d, 5120\nv_add_u32 v%d, s26, v%d\nv_add_u32 v%d, %d, v%d' % (sKH, vK0, vL16, vK1, 3 * BLK, vK0))
        e('v_add_u32 v%d, %d, v%d' % (vK2, 6 * BLK, vK0))
        t32, hi, t16, q = 100, 101, 102, 103
        e('v_and_b32 v%d, 31, v%d\nv_lshrrev_b32 v%d, 5, v%d' % (t32, vLANE, hi, vLANE))
        e('v_and_b32 v%d, 15, v%d\nv_lshrrev_b32 v%d, 4, v%d' % (t16, vLANE, q, vLANE))
        e('v_mov_b32 v104, 0x%x' % OOB)
        e('v_lshlrev_b32 v%d, 3, v%d\nv_lshl_add_u32 v%d, v%d, 16, v%d' % (vSA, t32, vSA, hi, vSA))
        e('s_lshl_b32 s26, s%d, 5\nv_add_u32 v105, s26, v%d\nv_mul_u32_u24 v105, 144, v105' % (sW, t32))
        e('v_mul_u32_u24 v106, 18432, v%d\nv_add_u32 v105, v105, v106\nv_add_u32 v%d, 0x%x, v105' % (hi, vTW, SCR))
        e('v_lshrrev_b32 v105, 1, v%d\nv_bfe_u32 v106, v%d, 2, 2\nv_lshl_add_u32 v105, v105, 3, v106\nv_mul_u32_u24 v105, 144, v105' % (q, vLANE))
        e('v_and_b32 v106, 1, v%d\nv_lshlrev_b32 v106, 5, v106\nv_and_b32 v107, 3, v%d\nv_lshl_add_u32 v106, v107, 3, v106\nv_add_u32 v105, v105, v106' % (q, vLANE))
        e('s_lshr_b32 s26, s%d, 1\ns_mul_i32 s26, s26, 18432\ns_add_u32 s26, s26, 0x%x' % (sW, SCR))
        e('s_and_b32 s27, s%d, 1\ns_mul_i32 s28, s27, 40\ns_add_u32 s28, s28, s26\ns_add_u32 s29, s26, 80' % sW)
        e('v_add_u32 v%d, s28, v105\nv_add_u32 v%d, s29, v105' % (vKA, vKB))
        e('s_lshl_b32 s26, s%d, 10' % sW)
        e('v_mul_u32_u24 v105, 24, v%d\nv_add_u32 v105, v105, v%d\nv_lshlrev_b32 v105, 4, v105\nv_add_u32 v105, s26, v105' % (hi, t32))
        e('v_cmp_gt_u32 vcc, 24, v%d\nv_cndmask_b32 v%d, v104, v105, vcc' % (t32, vPS1))
        e('v_lshlrev_b32 v105, 3, v%d\nv_add_u32 v105, s26, v105\nv_add_u32 v105, 768, v105' % t32)
        e('v_cmp_eq_u32 vcc, 0, v%d\nv_cndmask_b32 v%d, v104, v105, vcc' % (hi, vPS2))
        e('v_mov_b32 v106, 84\nv_cmp_le_u32 s[30:31], v106, v0\nv_cndmask_b32 v106, 0, 1, s[30:31]')
        e('v_mul_u32_u24 v107, 84, v106\nv_sub_u32 v107, v0, v107')
        e('v_mul_u32_u24 v108, 391, v107\nv_lshrrev_b32 v108, 13, v108')
        e('v_mul_u32_u24 v109, 21, v108\nv_sub_u32 v109, v107, v109')
        e('v_subrev_u32 v110, 168, v0\nv_mul_u32_u24 v111, 391, v110\nv_lshrrev_b32 v111, 13, v111\nv_and_b32 v111, 3, v111')
        e('v_mul_u32_u24 v96, 21, v111\nv_sub_u32 v96, v110, v96')
        e('v_cmp_gt_u32 vcc, 168, v0')
        e('v_lshrrev_b32 v97, 1, v108\nv_lshl_add_u32 v97, v106, 1, v97\nv_lshlrev_b32 v97, 10, v97')
        e('v_and_b32 v98, 1, v108\nv_mul_u32_u24 v98, 24, v98\nv_add_u32 v98, v98, v109\nv_lshl_add_u32 v97, v98, 4, v97')
        e('v_lshlrev_b32 v98, 10, v111\nv_lshl_add_u32 v98, v96, 3, v98\nv_add_u32 v98, 768, v98')
        e('v_cndmask_b32 v97, v98, v97, vcc')
        e('v_mov_b32 v99, 252\nv_cmp_gt_u32 s[30:31], v99, v0\nv_cndmask_b32 v%d, v104, v97, s[30:31]' % vPL)
        e('v_lshrrev_b32 v97, 1, v111\nv_cndmask_b32 v106, v97, v106, vcc')
        e('v_cndmask_b32 v108, 4, v108, vcc\nv_cndmask_b32 v109, v96, v109, vcc')
        e('v_lshrrev_b32 v110, 4, v109\nv_mul_u32_u24 v110, 5, v110\nv_add_u32 v110, v110, v108')
        e('v_and_b32 v109, 15, v109\nv_lshrrev_b32 v97, 2, v109\nv_lshlrev_b32 v97, 3, v97\nv_and_b32 v109, 3, v109\nv_add_u32 v97, v97, v109')
        e('v_mul_u32_u24 v109, 36, v106\nv_add_u32 v97, v97, v109')
        e('v_lshlrev_b32 v97, 4, v97\nv_lshl_add_u32 v97, v110, 10, v97\nv_add_u32 v97, 0x%x, v97' % SCR)
        e('v_and_b32 v105, 63, v0\nv_lshlrev_b32 v105, 4, v105\nv_add_u32 v105, 0x%x, v105' % (SCR + 12288))
        e('v_cndmask_b32 v%d, v105, v97, vcc' % vAW)
        e('v_and_b32 v98, 1, v111\nv_lshl_add_u32 v97, v98, 3, v97')
        e('v_cndmask_b32 v97, v97, v105, vcc\nv_cndmask_b32 v%d, v105, v97, s[30:31]' % vAW2)
        e('s_mul_i32 s26, s%d, 5' % sJ)
        e('v_bfe_u32 v105, v%d, 4, 1\nv_mul_u32_u24 v105, 20480, v105\nv_lshl_add_u32 v105, v%d, 4, v105' % (vLANE, t16))
        for (dst, expr) in ((vO0, 0), (vO1, 1), (vO2, None)):
            if expr is not None:
                e('v_lshl_add_u32 v106, v%d, 1, s26\nv_add_u32 v106, %d, v106' % (hi, expr))
            else:
                e('v_mov_b32 v106, s26\nv_add_u32 v106, 4, v106')
            e('v_lshrrev_b32 v107, 2, v106\nv_lshl_add_u32 v107, v107, 10, v105\nv_and_b32 v106, 3, v106\nv_lshl_add_u32 v%d, v106, 8, v107' % dst)
        e('v_lshl_add_u32 v%d, v%d, 3, v%d' % (vO2, hi, vO2))
        e('s_mul_i32 s26, s%d, 10' % sCS)
        e('s_and_b32 s27, s%d, 1\ns_lshl_b32 s27, s27, 8' % sTTK)
        e('v_lshlrev_b32 v105, 4, v%d' % t16)
        for n, (dx, dy) in enumerate(((vX0, vY0), (vX1, vY1), (vX2, vY2))):
            if n < 2: e('v_add_u32 v106, s26, v%d\nv_add_u32 v106, %d, v106' % (q, 4 * n))
            else: e('v_lshrrev_b32 v106, 1, v%d\nv_add_u32 v106, s26, v106\nv_add_u32 v106, 8, v106' % q)
            e('v_lshrrev_b32 v107, 2, v106\nv_lshl_add_u32 v107, v107, 10, v105\nv_and_b32 v108, 3, v106\nv_lshl_add_u32 v%d, v108, 8, v107' % dx)
            e('v_lshrrev_b32 v107, 1, v106\nv_lshl_add_u32 v107, v107, 10, v105\nv_and_b32 v108, 1, v106\nv_lshl_add_u32 v107, v108, 9, v107\nv_add_u32 v%d, s27, v107' % dy)
        e('v_and_b32 v106, 1, v%d\nv_lshl_add_u32 v%d, v106, 3, v%d\nv_lshl_add_u32 v%d, v106, 3, v%d' % (q, vX2, vX2, vY2, vY2))
        e('v_mul_u32_u24 v105, 1280, v%d\nv_lshl_add_u32 v%d, v%d, 4, v105\nv_lshl_add_u32 v%d, v%d, 3, v105\nv_add_u32 v%d, 128, v%d' % (t16, vR0, q, vR2, q, vR2, vR2))
        e('v_lshlrev_b32 v105, 3, v%d\nv_cmp_eq_u32 vcc, 0, v%d\nv_cndmask_b32 v%d, v104, v105, vcc\nv_lshl_add_u32 v%d, v%d, 15, v105' % (t16, q, vST, vSC, q))
        e('s_add_u32 s26, s%d, 0x%x\nv_add_u32 v%d, s26, v%d' % (sW5K, SCR, vEXW, vL16))
        e('s_xor_b32 s27, s%d, 2\ns_mul_i32 s27, s27, 5120\ns_add_u32 s27, s27, 0x%x\nv_add_u32 v%d, s27, v%d' % (sW, SCR, vEXR, vL16))
    def pro_tail(self, xlo, olo):
        e = self.e
        self.mk_srd(8, xlo, T * 1280); self.mk_srd(12, olo, T * 1280)
        if self.o.get('ampre_a', 0): self.am_a()
        for b in self.A_ack:
            for g in self.dma_ops(b): e.extend(g)
        self.side_dma(self.A_side[:1])
        for b in self.A_tail:
            for g in self.dma_ops(b):
                for x in g:
                    if isinstance(x, tuple): e(x[0], count=False)
                    else: e(x)
        self.side_dma(self.A_side[1:])
        if self.o.get('codepf2') and not self.o.get('merged', 0):
            Lp = self.lab('npf2')
            e('s_cmp_ge_u32 s2, %d' % self.o['codepf2']); e('s_cbranch_scc1 %s' % Lp)
            e('s_getpc_b64 s[60:61]')
            e.label('M_PC2')
            e('s_add_u32 s60, s60, (M_LAYER-M_PC2)\ns_addc_u32 s61, s61, 0')
            e('v_lshlrev_b32 v124, 7, v0\nv_mov_b32 v125, (M_CODE_END-M_LAYER-4)')
            e('v_min_u32 v124, v124, v125\nv_and_b32 v124, -4, v124')
            e('global_load_dword v127, v124, s[60:61]', count=False)
            e.label(Lp)
        if not self.o.get('xrlate', 1): self.xr_load()
    def xr_load(self):
        e = self.e
        e('s_mul_i32 s29, s%d, 20480\ns_mul_i32 s31, s%d, 160\ns_add_u32 s29, s29, s31' % (sTTK, sCS))
        e('buffer_load_dwordx4 v[%d:%d], v%d, s[8:11], s29 offen' % (XR, XR + 3, vR0), count=False)
        e('buffer_load_dwordx4 v[%d:%d], v%d, s[8:11], s29 offen offset:64' % (XR + 4, XR + 7, vR0), count=False)
        e('buffer_load_dwordx2 v[%d:%d], v%d, s[8:11], s29 offen' % (XR + 8, XR + 9, vR2), count=False)
    def rowstat_finish(self, S, Q, vRS, vVE, BM, tmp):
        L = []
        L.append('v_mul_f32 v%d, %s, v%d' % (S, f32bits(1.0 / 640), S))
        L.append('v_mul_f32 v%d, %s, v%d' % (Q, f32bits(1.0 / 640), Q))
        L.append('v_fma_f32 v%d, -v%d, v%d, v%d' % (Q, S, S, Q))
        L.append('v_max_f32 v%d, 0, v%d' % (Q, Q))
        L.append('v_add_f32 v%d, %s, v%d' % (vVE, f32bits(1e-5), Q))
        L.append('v_rsq_f32 v%d, v%d' % (vRS, vVE))
        L.append('v_cvt_pk_bf16_f32 v%d, -v%d, -v%d' % (tmp, S, S))
        L.append('v_and_b32 v%d, 0xffff0000, v%d' % (tmp, tmp))
        L.append('v_sub_f32 v%d, -v%d, v%d' % (tmp, S, tmp))
        L.append('v_cvt_pk_bf16_f32 v%d, -v%d, v%d' % (BM, S, tmp))
        for k in range(1, 4): L.append('v_mov_b32 v%d, v%d' % (BM + k, BM))
        return L
    def softmax_pair(self, X, vC, EP, EM, t):
        L = []
        mx, mn, ap, am, sp, sm = range(t, t + 6)
        L.append('v_max3_f32 v%d, v%d, v%d, v%d' % (mx, X[0], X[1], X[2]))
        L.append('v_min3_f32 v%d, v%d, v%d, v%d' % (mn, X[0], X[1], X[2]))
        for k in range(3, 19, 2):
            L.append('v_max3_f32 v%d, v%d, v%d, v%d' % (mx, mx, X[k], X[k + 1]))
            L.append('v_min3_f32 v%d, v%d, v%d, v%d' % (mn, mn, X[k], X[k + 1]))
        L.append('v_max_f32 v%d, v%d, v%d' % (mx, mx, X[19]))
        L.append('v_min_f32 v%d, v%d, v%d' % (mn, mn, X[19]))
        L.append('v_mul_f32 v%d, v%d, v%d' % (ap, vC, mx))
        L.append('v_mul_f32 v%d, v%d, v%d' % (am, vC, mn))
        for f in range(20):
            L.append('v_fma_f32 v%d, v%d, v%d, -v%d' % (EP + f, X[f], vC, ap))
            L.append('v_fma_f32 v%d, -v%d, v%d, v%d' % (EM + f, X[f], vC, am))
        for f in range(20):
            L.append('v_exp_f32 v%d, v%d' % (EP + f, EP + f))
            L.append('v_exp_f32 v%d, v%d' % (EM + f, EM + f))
        L.append('v_add_f32 v%d, v%d, v%d' % (sp, EP, EP + 1))
        L.append('v_add_f32 v%d, v%d, v%d' % (sm, EM, EM + 1))
        for f in range(2, 20):
            L.append('v_add_f32 v%d, v%d, v%d' % (sp, sp, EP + f))
            L.append('v_add_f32 v%d, v%d, v%d' % (sm, sm, EM + f))
        L.append('v_rcp_f32 v%d, v%d' % (sp, sp))
        L.append('v_rcp_f32 v%d, v%d' % (sm, sm))
        for f in range(20):
            L.append('v_mul_f32 v%d, v%d, v%d' % (EP + f, EP + f, sp))
            L.append('v_mul_f32 v%d, v%d, v%d' % (EM + f, EM + f, sm))
        return L
    def stamp(self, k):
        if not self.o.get('stamps'): return
        e = self.e
        e('v_mov_b32 v222, s%d' % sL)
        e('v_lshlrev_b32 v222, 5, v222\nv_add_u32 v222, %d, v222' % k)
        e('v_cmp_eq_u32 vcc, v222, v%d' % vLANE)
        e('s_memtime s[58:59]' if self.o.get('cyc') else 's_memrealtime s[58:59]')
        e('s_waitcnt lgkmcnt(0)')
        e('v_mov_b32 v222, s58')
        e('v_cndmask_b32 v223, v223, v222, vcc')
    def jitter(self, k, e=None):
        if not self.o.get('jitter'): return
        e = e or self.e
        L = self.lab('jit'); X = self.lab('jitx')
        e('s_mul_i32 s60, s2, %d' % (2654435761 % (1 << 31)))
        e('s_mul_i32 s61, s%d, 40503\ns_add_u32 s60, s60, s61\ns_add_u32 s60, s60, s63' % sL)
        e('s_mul_i32 s61, s%d, %d\ns_add_u32 s60, s60, s61' % (sW, self.o.get('jitw', 0) * 9973))
        e('s_add_u32 s60, s60, %d\ns_mul_i32 s60, s60, 1103515245\ns_lshr_b32 s61, s60, 13\ns_xor_b32 s60, s60, s61\ns_mul_i32 s60, s60, 1664525' % (k * 7919 + self.o['jitter'] * 104729))
        e('s_lshr_b32 s61, s60, 28\ns_lshr_b32 s60, s60, 20\ns_and_b32 s60, s60, %d' % self.o.get('jitmask', 31))
        e('s_cmp_lt_u32 s61, %d\ns_cselect_b32 s60, s60, 0' % self.o.get('jitp', 2))
        e.label(L)
        e('s_cmp_eq_u32 s60, 0'); e('s_cbranch_scc1 %s' % X)
        e('s_sleep 4'); e('s_sub_u32 s60, s60, 1'); e('s_branch %s' % L)
        e.label(X)
    def jitter_items(self, k):
        if not self.o.get('jitter'): return []
        sub = Main(None, self.o); sub.nlab = self.nlab + 5000 + 10 * k; sub.jitter(k); self.nlab += 1
        return sub.e.items
    def stamp_items(self, k):
        if self.o.get('stamps') != 2: return []
        sub = Main(None, self.o); sub.stamp(k)
        return sub.e.items
    def stamp_flush(self):
        if not self.o.get('stamps'): return
        e = self.e
        e('s_lshl_b32 s62, s2, 2\ns_add_u32 s62, s62, s%d\ns_lshl_b32 s62, s62, 8\ns_add_u32 s62, s62, 0x%x' % (sW, TSOFF))
        e('v_lshlrev_b32 v%d, 2, v%d' % (vT0, vLANE))
        e('buffer_store_dword v223, v%d, s[4:7], s62 offen' % vT0)
    def maybe_stop(self, name):
        if self.stop == name:
            self.e.wait_all(); self.e('s_endpgm'); return True
        return False
    def vm_stream(self, items):
        st = Stream()
        for it in sorted(items, key=lambda x: x[3] if len(x) > 3 else x[0]):
            st.add(it[2], it[1], it[0])
        return st
    def flat(self, groups):
        return [x for g in groups for x in g]
    def phase_a(self):
        e = self.e; o = self.o
        T0, T1, T2, T3 = ACC, ACC + 16, ACC + 32, ACC + 48
        ST, vRS, vVE, vC, BM, AM, EP, EM, P = 112, 120, 121, 122, 124, 128, 144, 164, 184
        self.stamp(0)
        L = self.lab('a_nopoll')
        e('s_cmp_eq_u32 s%d, 0' % sL); e('s_cbranch_scc1 %s' % L)
        self.cnt(sT0, CNT_XA, sRB)
        self.poll(sT0)
        e('s_barrier')
        e.label(L)
        self.stamp(1)
        e('s_lshl_b32 s%d, s%d, 2\ns_add_u32 s%d, s%d, s%d' % (sT0, sRB, sT0, sT0, sW))
        e('s_mul_i32 s%d, s%d, 40960\ns_add_u32 s%d, s%d, s%d\ns_add_u32 s%d, s%d, 0x%x' % (sTW, sT0, sTW, sTW, sLOFF, sTW, sTW, XA))
        def tok(s):
            g = []
            if s % 4 == 0: g.append('s_add_u32 s%d, s%d, %d' % (sB0, sTW, s * 1024))
            g.append('buffer_load_dwordx4 a[%d:%d], v%d, s[4:7], s%d offen offset:%d%s' % (4 * s, 4 * s + 3, vL16, sB0, (s % 4) * 1024, self.sc))
            return g
        NPRE = o.get('a_npre', 12)
        if o.get('tt', 0): e.extend(self.touch_tok(XA))
        for s in range(NPRE): e.extend(tok(s))
        if o.get('lanelate', 1) and not o.get('merged', 0):
            Ll = self.lab('lanes')
            e('s_cmp_eq_u32 s%d, 0' % sFIRST); e('s_cbranch_scc1 %s' % Ll)
            self.pro_lanes()
            e('s_mov_b32 s%d, 0' % sFIRST)
            e.label(Ll)
        e('s_lshl_b32 s%d, s%d, 2\ns_add_u32 s%d, s%d, s%d' % (sT0, sRB, sT0, sT0, sW))
        e('s_lshl_b32 s%d, s%d, 8\ns_add_u32 s%d, s%d, s%d\ns_add_u32 s%d, s%d, 0x%x' % (sT1, sT0, sT1, sT1, sLOFF, sT1, sT1, SA))
        stld = []
        for k in range(4):
            if k: stld.append('s_add_u32 s%d, s%d, 16384' % (sT1, sT1))
            stld.append('buffer_load_dwordx2 v[%d:%d], v%d, s[4:7], s%d offen sc1' % (ST + 2 * k, ST + 2 * k + 1, vSA, sT1))
        e('s_lshl_b32 s%d, s%d, 12\ns_add_u32 s%d, s%d, 0x%x' % (sT2, sJ, sT2, sT2, WAM))
        amload = ['buffer_load_dwordx4 v[%d:%d], v%d, s[4:7], s%d offen offset:%d' % (AM + 4 * t, AM + 4 * t + 3, vL16, sT2, t * 1024) for t in range(4)]
        st = []
        st += ['v_add_f32 v%d, v%d, v%d' % (ST, ST, ST + 2), 'v_add_f32 v%d, v%d, v%d' % (ST + 1, ST + 1, ST + 3),
               'v_add_f32 v%d, v%d, v%d' % (ST + 4, ST + 4, ST + 6), 'v_add_f32 v%d, v%d, v%d' % (ST + 5, ST + 5, ST + 7),
               'v_add_f32 v%d, v%d, v%d' % (ST, ST, ST + 4), 'v_add_f32 v%d, v%d, v%d' % (ST + 1, ST + 1, ST + 5),
               'v_mov_b32 v%d, v%d' % (ST + 2, ST), 'v_mov_b32 v%d, v%d' % (ST + 3, ST + 1),
               'v_permlane32_swap_b32 v%d, v%d' % (ST, ST + 2), 'v_permlane32_swap_b32 v%d, v%d' % (ST + 1, ST + 3),
               'v_add_f32 v%d, v%d, v%d' % (ST, ST, ST + 2), 'v_add_f32 v%d, v%d, v%d' % (ST + 1, ST + 1, ST + 3)]
        st += self.rowstat_finish(ST, ST + 1, vRS, vVE, BM, ST + 2)
        st += ['v_mul_f32 v%d, %s, v%d' % (vC, f32bits(LOG2E), vRS)]
        LA = self.o.get('la', 5)
        def frag_info(n):
            if n < 120: return n // 3, n % 3
            return n - 120, 3
        def read(n): return self.ring_read(AF + 4 * (n % 8), A0 + n // 20, (n % 20) * 1024)
        def mfma(n):
            s, tau = frag_info(n); acc = ACC + 16 * tau; a = AF + 4 * (n % 8)
            c = '0' if s == 0 else 'v[%d:%d]' % (acc, acc + 15)
            return 'v_mfma_f32_32x32x16_bf16 v[%d:%d], v[%d:%d], a[%d:%d], %s' % (acc, acc + 15, a, a + 3, 4 * s, 4 * s + 3, c)
        def mean(tau):
            acc = ACC + 16 * tau
            return 'v_mfma_f32_32x32x16_bf16 v[%d:%d], v[%d:%d], v[%d:%d], v[%d:%d]' % (acc, acc + 15, AM + 4 * tau, AM + 4 * tau + 3, BM, BM + 3, acc, acc + 15)
        ksm = self.softmax_pair([T0 + r for r in range(16)] + [T1 + r for r in range(4)], vC, EP, EM, ST)
        for d in range(10): ksm.append('v_cvt_pk_bf16_f32 v%d, v%d, v%d' % (P + d, EP + 2 * d, EP + 2 * d + 1))
        for d in range(10): ksm.append('v_cvt_pk_bf16_f32 v%d, v%d, v%d' % (P + 10 + d, EM + 2 * d, EM + 2 * d + 1))
        V = [T1 + r for r in range(4, 16)] + [T2 + r for r in range(8)]
        for f in range(20): ksm.append('v_mul_f32 v%d, v%d, v%d' % (V[f], V[f], vRS))
        for d in range(10): ksm.append('v_cvt_pk_bf16_f32 v%d, v%d, v%d' % (P + 20 + d, V[2 * d], V[2 * d + 1]))
        ksm += ['v_mov_b32 v%d, 0x3f80' % (P + 30), 'v_mov_b32 v%d, 0' % (P + 31)]
        anchors = []; pre = {}; fixed = {}; idx = {}
        KF = o.get('kvfirst', 1)
        NF1 = 140 if KF else 160
        for n in range(NF1):
            if n == 120:
                idx['mean'] = len(anchors)
                anchors += [mean(t) for t in range(3)]
            idx[n] = len(anchors)
            anchors.append(mfma(n))
            fixed[idx[n]] = ([read(n + LA)] if n + LA < NF1 else []) + ([Need('v[%d:%d]' % (AF + 4 * ((n + 1) % 8), AF + 4 * ((n + 1) % 8) + 3))] if n + 1 < NF1 else [])
        if not KF: anchors.append(mean(3))
        for ep in range(1, 7 if KF else 8):
            at = idx['mean'] if ep == 6 else idx[20 * ep]
            pre[at] = (self.jitter_items(120 + ep) if ep in (1, 4) else []) + ([W_tag('blk%d' % (A0 + ep + 1))] if ep < 7 else []) + ['s_barrier']
            if self.o.get('fine') == 'a': pre[at] += self.stamp_items(19 + ep - 1)
        items = [(3 * s, 0, tok(s)) for s in range(NPRE, 40)]
        if not o.get('ampre_a', 0): items.append((90, 0, amload))
        if o.get('tw', 0): items.append((30, 0, self.touch_w('B')))
        items.append((o.get('a_stdl', 64), 0, stld))
        for b in self.A_in: items.append((20 * (b - 1), 0, self.flat(self.dma_ops(b))))
        last_in = o.get('a_lastblk', 11)
        for b in range(6, last_in + 1):
            free = 20 * (b - 5) if b - 5 < 6 else idx['mean']
            assert not KF or b <= 11
            items.append((20 * (b - 1) if b < 8 else 200 + b, free, self.flat(self.dma_ops(b))))
        if o.get('merged', 0):
            sub = Main(None, self.o); sub.nlab = self.nlab + 2000; q = sub.e
            Lr = 'M_restld'
            q('s_cmp_lg_u32 s%d, 0' % sL); q('s_cbranch_scc1 %s' % Lr)
            q('v_min_u32 v%d, 15, v%d\nv_lshlrev_b32 v%d, 7, v%d\ns_mov_b32 s%d, 0x%x' % (vT1, vLANE, vT1, vT1, sT3, CNT_REST))
            q('buffer_load_dword v%d, v%d, s[4:7], s%d offen sc1' % (vPOLL, vT1, sT3), count=False)
            q.label(Lr)
            e.extend(q.items)
            sub = Main(None, self.o); sub.nlab = self.nlab + 3000; q = sub.e
            Lk = 'M_restok'; Ll = 'M_restsp'
            q('s_cmp_lg_u32 s%d, 0' % sL); q('s_cbranch_scc1 %s' % Lk)
            q('s_mov_b32 s%d, 0' % sPC)
            q.label(Ll)
            q('v_cmp_gt_u32 vcc, 16, v%d' % vPOLL)
            q('s_cbranch_vccz %s' % Lk)
            q('s_cmp_lg_u32 s%d, 0' % sDEAD); q('s_cbranch_scc1 %s' % Lk)
            q('buffer_load_dword v%d, v%d, s[4:7], s%d offen sc1' % (vPOLL, vT1, sT3), count=False)
            q('s_waitcnt vmcnt(0)', count=False)
            q('s_add_u32 s%d, s%d, 1' % (sPC, sPC)); q('s_cmp_lt_u32 s%d, %d' % (sPC, SPIN_LIMIT)); q('s_cbranch_scc1 %s' % Ll)
            q('s_mov_b32 s%d, 1' % sDEAD)
            q.label(Lk)
            pre[idx[60]] = q.items + pre[idx[60]]
        vs = self.vm_stream(items)
        valu = Stream(st, o.get('a_stv', 90)).add(ksm, idx[120] + 1)
        if o.get('fine') == 'a0': e.extend(self.stamp_items(19))
        e.wait_tag('blk0'); e.wait_tag('blk1')
        if self.A_tail:
            Lw = self.lab('a_l0w')
            e('s_cmp_lg_u32 s%d, 0' % sL); e('s_cbranch_scc1 %s' % Lw)
            e('s_waitcnt vmcnt(0)', count=False)
            e.label(Lw)
        e('s_barrier')
        if o.get('fine') == 'a0':
            e.extend(self.stamp_items(20))
            for k, at in enumerate((1, 3, 6, 9, 12, 15, 18)):
                pre[at] = pre.get(at, []) + self.stamp_items(21 + k)
        for n in range(LA): e(read(n))
        stt = {}
        e.extend(schedule(anchors, 5, pre, fixed, [vs, valu], vm_gap=o.get('a_gap', 1), state=stt))
        if o.get('verbose'): print('a forced', stt.get('forced'), 'left', len(vs.q), len(valu.q))
        e.extend([y[0] for y in vs.q]); e.extend([y[0] for y in valu.q])
        self.a_late = list(range(last_in + 1, 13))
        self.stamp(2)
        self.jitter(1)
        for m in range(8):
            e('ds_write_b128 v%d, v[%d:%d] offset:%d' % (vTW, P + 4 * m, P + 4 * m + 3, 16 * m))
        e.wait_lgkm0()
        e('s_barrier')
        KD = T0
        def kvread(ks):
            b = AF + 8 * (ks % 4)
            return ['ds_read_b64_tr_b16 v[%d:%d], v%d offset:%d' % (b, b + 1, vKA, ks * 2304),
                    'ds_read_b64_tr_b16 v[%d:%d], v%d offset:%d' % (b + 2, b + 3, vKA, ks * 2304 + 576),
                    'ds_read_b64_tr_b16 v[%d:%d], v%d offset:%d' % (b + 4, b + 5, vKB, ks * 2304),
                    'ds_read_b64_tr_b16 v[%d:%d], v%d offset:%d' % (b + 6, b + 7, vKB, ks * 2304 + 576)]
        for ks in range(3): e.extend(kvread(ks))
        for ks in range(8):
            if ks + 3 < 8: e.extend(kvread(ks + 3))
            b = AF + 8 * (ks % 4)
            e('v_mfma_f32_32x32x16_bf16 v[%d:%d], v[%d:%d], v[%d:%d], %s' % (KD, KD + 15, b, b + 3, b + 4, b + 7, '0' if ks == 0 else 'v[%d:%d]' % (KD, KD + 15)))
        PK = EP
        for d in range(6): e('v_cvt_pk_bf16_f32 v%d, v%d, v%d' % (PK + d, KD + 2 * d, KD + 2 * d + 1))
        e('s_lshl_b32 s%d, s%d, 4\ns_add_u32 s%d, s%d, s%d\ns_lshl_b32 s%d, s%d, 12' % (sT0, sJ, sT0, sT0, sRB, sT0, sT0))
        e('s_add_u32 s%d, s%d, s%d\ns_add_u32 s%d, s%d, 0x%x' % (sT0, sT0, sLOFF, sT0, sT0, KVP))
        if o.get('reuse'): e('s_lshl_b32 s%d, s%d, 20\ns_add_u32 s%d, s%d, s%d' % (sT3, sL, sT0, sT0, sT3))
        e('buffer_store_dwordx4 v[%d:%d], v%d, s[4:7], s%d offen sc1' % (PK, PK + 3, vPS1, sT0))
        e('buffer_store_dwordx2 v[%d:%d], v%d, s[4:7], s%d offen sc1' % (PK + 4, PK + 5, vPS2, sT0))
        self.cnt(sT1, CNT_KV, sJ)
        kack = self.a_late if o.get('k_ack', 1) else []
        self.signal(sT1, kack)
        self.stamp(3)
        if o.get('tw', 0): e.extend(self.touch_w('C'))
        if not kack: self.side_dma(self.a_late)
        if o.get('xrlate', 1):
            Lx = self.lab('xr')
            e('s_cmp_lg_u32 s%d, 0' % sL); e('s_cbranch_scc1 %s' % Lx)
            self.xr_load()
            e.label(Lx)
        ZR = EM
        zf = ['v_mov_b32 v%d, 0' % (ZR + r) for r in range(4)]
        zf += ['v_lshlrev_b32 v%d, 4, v0' % vT1, 'v_add_u32 v%d, 0x%x, v%d' % (vT1, SCR, vT1)]
        zf += ['ds_write_b128 v%d, v[%d:%d] offset:%d' % (vT1, ZR, ZR + 3, m * 4096) for m in range(3)]
        if KF:
            an2 = []; fx2 = {}
            for n in range(NF1, NF1 + LA): e(read(n))
            for n in range(NF1, 160):
                fx2[len(an2)] = ([read(n + LA)] if n + LA < 160 else []) + ([Need('v[%d:%d]' % (AF + 4 * ((n + 1) % 8), AF + 4 * ((n + 1) % 8) + 3))] if n + 1 < 160 else [])
                an2.append(mfma(n))
            an2.append(mean(3))
            z = Stream(zf)
            e.extend(schedule(an2, 5, {}, fx2, [z]))
            e.extend([y[0] for y in z.q])
        else:
            e.extend(zf)
        Q = P
        X = [T2 + r for r in range(8, 16)] + [T3 + r for r in range(12)]
        e.extend(self.softmax_pair(X, vC, EP, EM, ST))
        order = []
        for sign in (EP, EM):
            order += [(sign + 0), (sign + 2), (sign + 8), (sign + 10), (sign + 4), (sign + 6), (sign + 12), (sign + 14)]
        order += [EP + 16, EP + 18, EM + 16, EM + 18]
        for d, r in enumerate(order): e('v_cvt_pk_bf16_f32 v%d, v%d, v%d' % (Q + d, r, r + 1))
        e.wait_lgkm0()
        self.stamp(4)
        self.poll(sT1)
        e('s_barrier')
        self.stamp(5)
        if self.maybe_stop('a1'): return True
        LD, SUM, PKK = 112, 176, 204
        e('s_lshl_b32 s%d, s%d, 16\ns_add_u32 s%d, s%d, s%d\ns_add_u32 s%d, s%d, 0x%x' % (sT0, sJ, sT0, sT0, sLOFF, sT0, sT0, KVP))
        if o.get('reuse'): e('s_lshl_b32 s%d, s%d, 20\ns_add_u32 s%d, s%d, s%d' % (sT3, sL, sT0, sT0, sT3))
        for p in range(16):
            if p: e('s_add_u32 s%d, s%d, 4096' % (sT0, sT0))
            e('buffer_load_dwordx4 v[%d:%d], v%d, s[4:7], s%d offen sc1' % (LD + 4 * p, LD + 4 * p + 3, vPL, sT0))
        e('v_mov_b32 v%d, 0x00003f80\nv_mov_b32 v%d, 0x3f800000' % (vT2, vT3))
        for k in range(8): e('v_mov_b32 v%d, 0' % (SUM + k))
        for p in range(16):
            for d in range(4):
                e('v_dot2c_f32_bf16 v%d, v%d, v%d' % (SUM + 2 * d, LD + 4 * p + d, vT2))
                e('v_dot2c_f32_bf16 v%d, v%d, v%d' % (SUM + 2 * d + 1, LD + 4 * p + d, vT3))
        for d in range(4): e('v_cvt_pk_bf16_f32 v%d, v%d, v%d' % (PKK + d, SUM + 2 * d, SUM + 2 * d + 1))
        e('ds_write_b128 v%d, v[%d:%d]' % (vAW, PKK, PKK + 3))
        e('ds_write_b64 v%d, v[%d:%d]' % (vAW2, PKK, PKK + 1))
        e.wait_lgkm0()
        e('s_barrier')
        e('v_add_u32 v%d, 0x%x, v%d' % (vT1, SCR, vL16))
        for n in range(8): e('ds_read_b128 v[%d:%d], v%d offset:%d' % (AF + 4 * n, AF + 4 * n + 3, vT1, n * 1024))
        G0, G1 = T0, T1
        for n in range(10):
            rho, s = n // 5, n % 5
            acc = G0 if rho == 0 else G1
            a = AF + 4 * (n % 8)
            e('v_mfma_f32_32x32x16_bf16 v[%d:%d], v[%d:%d], v[%d:%d], %s' % (acc, acc + 15, a, a + 3, Q + 4 * s, Q + 4 * s + 3, '0' if s == 0 else 'v[%d:%d]' % (acc, acc + 15)))
            if n < 2: e('ds_read_b128 v[%d:%d], v%d offset:%d' % (a, a + 3, vT1, (n + 8) * 1024))
        self.jitter(2)
        e('v_add_f32 v%d, %s, v%d' % (vT2, f32bits(1e-6), G1 + 4))
        e('v_rcp_f32 v%d, v%d' % (vT2, vT2))
        OP = 208
        src = [G0 + r for r in range(16)] + [G1 + r for r in range(4)]
        for r in src: e('v_mul_f32 v%d, v%d, v%d' % (r, r, vT2))
        for d in range(10): e('v_cvt_pk_bf16_f32 v%d, v%d, v%d' % (OP + d, src[2 * d], src[2 * d + 1]))
        e('s_lshl_b32 s%d, s%d, 3\ns_lshl_b32 s%d, s%d, 1\ns_add_u32 s%d, s%d, s%d\ns_mul_i32 s%d, s%d, 20480' % (sT0, sRB, sT1, sW, sT0, sT0, sT1, sT0, sT0))
        e('s_add_u32 s%d, s%d, s%d\ns_add_u32 s%d, s%d, 0x%x' % (sT0, sT0, sLOFF, sT0, sT0, O))
        e('buffer_store_dwordx4 v[%d:%d], v%d, s[4:7], s%d offen sc1' % (OP, OP + 3, vO0, sT0))
        e('buffer_store_dwordx4 v[%d:%d], v%d, s[4:7], s%d offen sc1' % (OP + 4, OP + 7, vO1, sT0))
        e('buffer_store_dwordx2 v[%d:%d], v%d, s[4:7], s%d offen sc1' % (OP + 8, OP + 9, vO2, sT0))
        self.stamp(6)
        self.cnt(sT1, CNT_O, sRB)
        self.signal(sT1, [C0] if o.get('o_ack', 1) else [])
        self.stamp(7)
        if not o.get('o_ack', 1): self.side_dma([C0])
        return self.maybe_stop('a')
    def gemm_bd(self, first_blk, nsteps, vs, pre_extra, valu, breg=None):
        e = self.e
        LA = self.o.get('la', 5)
        nf = nsteps * 5
        def read(n):
            i, tau = n // 5, n % 5
            return self.ring_read(AF + 4 * (n % 8), first_blk + i // 2, (i & 1) * 10240 + tau * 1024, kh=True)
        def mf(n, u):
            i, tau = n // 5, n % 5
            acc = ACC + (tau * 2 + u) * 4; a = AF + 4 * (n % 8); b = breg(i, u) if breg else (2 * i + u) * 4
            c = '0' if i == 0 else 'v[%d:%d]' % (acc, acc + 3)
            return 'v_mfma_f32_16x16x32_bf16 v[%d:%d], v[%d:%d], a[%d:%d], %s' % (acc, acc + 3, a, a + 3, b, b + 3, c)
        anchors = []; pre = {}; fixed = {}
        for n in range(nf):
            anchors += [mf(n, 0), mf(n, 1)]
            if n + LA < nf: fixed[2 * n] = [read(n + LA)]
            if n + 1 < nf: fixed[2 * n + 1] = [Need('v[%d:%d]' % (AF + 4 * ((n + 1) % 8), AF + 4 * ((n + 1) % 8) + 3))]
        nep = nsteps // 2
        for ep in range(1, nep):
            pre[20 * ep] = (self.jitter_items(80 + ep + nsteps) if ep in (1, 3, 6) else []) + list(pre_extra.get(ep, [])) + ([W_tag('blk%d' % (first_blk + ep + 1))] if ep + 1 < nep else []) + ['s_barrier']
            if self.o.get('fine') == 'd' and nsteps == 24: pre[20 * ep] += self.stamp_items(19 + ep - 1)
        for n in range(LA): e(read(n))
        stt = {}
        e.extend(schedule(anchors, 2, pre, fixed, [vs, valu], vm_gap=self.o.get('d_gap', 2), state=stt))
        if self.o.get('verbose'): print('bd forced', stt.get('forced'), 'left', len(vs.q), len(valu.q))
        e.extend([y[0] for y in vs.q]); e.extend([y[0] for y in valu.q])
    def bd_unpack(self):
        U = 112; L = []
        for d in range(10):
            L.append('v_lshlrev_b32 v%d, 16, v%d' % (U + 2 * d, XR + d))
            L.append('v_and_b32 v%d, 0xffff0000, v%d' % (U + 2 * d + 1, XR + d))
        return L
    def bd_epilogue(self, last_blk, final):
        e = self.e
        EX = 88
        self.jitter(3 + last_blk)
        for tau in range(5):
            a = ACC + (tau * 2 + 1) * 4
            e('ds_write_b128 v%d, v[%d:%d] offset:%d' % (vEXW, a, a + 3, tau * 1024))
        e.wait_lgkm0()
        e('s_barrier')
        for tau in range(5):
            e('ds_read_b128 v[%d:%d], v%d offset:%d' % (EX + 4 * tau, EX + 4 * tau + 3, vEXR, tau * 1024))
        U = 112
        for tau in range(5):
            a = ACC + (tau * 2) * 4
            for c in range(4):
                e('v_add_f32 v%d, v%d, v%d' % (U + 4 * tau + c, U + 4 * tau + c, a + c))
        for tau in range(5):
            for c in range(4):
                e('v_add_f32 v%d, v%d, v%d' % (U + 4 * tau + c, U + 4 * tau + c, EX + 4 * tau + c))
        for d in range(10): e('v_cvt_pk_bf16_f32 v%d, v%d, v%d' % (XR + d, U + 2 * d, U + 2 * d + 1))
        final()
    def bd_stats(self, base_off, next_layer):
        e = self.e
        S, Q = 136, 137
        e('v_mov_b32 v%d, 0\nv_mov_b32 v%d, 0' % (S, Q))
        for d in range(10):
            e('v_dot2c_f32_bf16 v%d, v%d, v%d' % (S, XR + d, vONES))
            e('v_dot2c_f32_bf16 v%d, v%d, v%d' % (Q, XR + d, XR + d))
        for sw in ('v_permlane16_swap_b32', 'v_permlane32_swap_b32'):
            e('v_mov_b32 v138, v%d\nv_mov_b32 v139, v%d' % (S, Q))
            e('%s v%d, v138\n%s v%d, v139' % (sw, S, sw, Q))
            e('v_add_f32 v%d, v%d, v138\nv_add_f32 v%d, v%d, v139' % (S, S, Q, Q))
        e('s_lshl_b32 s%d, s%d, 7\ns_lshl_b32 s%d, s%d, 14\ns_add_u32 s%d, s%d, s%d' % (sT2, sTTK, sT3, sCS, sT2, sT2, sT3))
        e('s_add_u32 s%d, s%d, s%d\ns_add_u32 s%d, s%d, 0x%x' % (sT2, sT2, sLOFF, sT2, sT2, base_off + (self.lstride if next_layer else 0)))
        if not self.o.get('nostats'): e('buffer_store_dwordx2 v[%d:%d], v%d, s[4:7], s%d offen sc1' % (S, Q, vST, sT2))
    def phase_b(self):
        e = self.e
        self.cnt(sT0, CNT_O, sRB)
        for (s, tt) in ((sB0, sTTK), (sB1, sTTS)):
            e('s_mul_i32 s%d, s%d, 20\ns_mul_i32 s%d, s%d, 10\ns_add_u32 s%d, s%d, s%d\ns_lshl_b32 s%d, s%d, 10' % (s, tt, sT1, sKH, s, s, sT1, s, s))
            e('s_add_u32 s%d, s%d, s%d\ns_add_u32 s%d, s%d, 0x%x' % (s, s, sLOFF, s, s, O))
        def tok(i, u):
            s = sB0 if u == 0 else sB1
            t = sC1 + u
            g = []
            if i % 4 == 0: g.append('s_add_u32 s%d, s%d, %d' % (t, s, i * 1024))
            g.append('buffer_load_dwordx4 a[%d:%d], v%d, s[4:7], s%d offen offset:%d%s' % ((2 * i + u) * 4, (2 * i + u) * 4 + 3, vL16, t, (i % 4) * 1024, self.sc))
            return g
        e.wait_tag('blk%d' % B0); e.wait_tag('blk%d' % (B0 + 1))
        self.poll(sT0)
        e('s_barrier')
        self.stamp(8)
        NPRE = self.o.get('b_npre', 6)
        for i in range(NPRE):
            for u in range(2): e.extend(tok(i, u))
        items = [(10 * i, 0, tok(i, 0) + tok(i, 1)) for i in range(NPRE, 10)]
        for k, b in enumerate(self.C_tail): items.append((5000 + b, 20 * (k + 1), self.flat(self.dma_ops(b))))
        vs = self.vm_stream(items)
        self.gemm_bd(B0, 10, vs, {}, Stream(self.bd_unpack(), 60))
        self.stamp(9)
        def final():
            e('s_mul_i32 s%d, s%d, 20480\ns_add_u32 s%d, s%d, s%d\ns_add_u32 s%d, s%d, 0x%x' % (sT0, sTTK, sT0, sT0, sLOFF, sT0, sT0, XC))
            e('buffer_store_dwordx4 v[%d:%d], v%d, s[4:7], s%d offen sc1' % (XR, XR + 3, vX0, sT0))
            e('buffer_store_dwordx4 v[%d:%d], v%d, s[4:7], s%d offen sc1' % (XR + 4, XR + 7, vX1, sT0))
            e('buffer_store_dwordx2 v[%d:%d], v%d, s[4:7], s%d offen sc1' % (XR + 8, XR + 9, vX2, sT0))
            self.bd_stats(SC, False)
            self.cnt(sT1, CNT_XC, sRB)
            self.signal(sT1, self.C_ack)
            self.stamp(10)
            if self.o.get('ampre', 1): self.am_c()
            self.side_dma(self.C_side)
        self.bd_epilogue(B0 + 4, final)
        return self.maybe_stop('b')
    def gelu_ops(self, accset, u, c0, c1, vVE, HP, t):
        L = []
        G = [accset + (p * 2 + u) * 4 + c for p in range(2) for c in range(4)]
        U = [accset + ((2 + p) * 2 + u) * 4 + c for p in range(2) for c in range(4)]
        g = [t + i for i in range(8)]; w = [t + 8 + i for i in range(8)]
        for h in range(2):
            R = range(4 * h, 4 * h + 4)
            for i in R: L.append('v_mul_f32 v%d, v%d, v%d' % (w[i], G[i], G[i]))
            for i in R: L.append('v_fma_f32 v%d, v%d, v%d, v%d' % (w[i], w[i], c1, c0))
            for i in R: L.append('v_mul_f32 v%d, v%d, v%d' % (w[i], w[i], G[i]))
            for i in R:
                L.append('v_exp_f32 v%d, v%d' % (w[i], w[i]))
                L.append('v_mul_f32 v%d, v%d, v%d' % (g[i], G[i], U[i]))
            for i in R: L.append('v_fma_f32 v%d, v%d, v%d, v%d' % (w[i], w[i], vVE, vVE))
            for i in R: L.append('v_rcp_f32 v%d, v%d' % (w[i], w[i]))
            for i in R: L.append('v_mul_f32 v%d, v%d, v%d' % (g[i], g[i], w[i]))
            for d in (2 * h, 2 * h + 1): L.append('v_cvt_pk_bf16_f32 v%d, v%d, v%d' % (HP + d, g[2 * d], g[2 * d + 1]))
        return L
    def check_flag(self, vreg, cnt_sgpr, target=16):
        sub = Asm()
        X = self.lab('ck'); L = self.lab('ckl')
        sub('v_cmp_gt_u32 vcc, %d, v%d' % (target, vreg))
        sub('s_cbranch_vccz %s' % X)
        sub('s_cmp_lg_u32 s%d, 0' % sDEAD); sub('s_cbranch_scc1 %s' % X)
        sub('s_mov_b32 s%d, 0' % sPC)
        sub.label(L)
        sub('buffer_load_dword v%d, v%d, s[4:7], s%d offen sc1' % (vreg, vZERO, cnt_sgpr), count=False)
        sub('s_waitcnt vmcnt(0)', count=False)
        sub('v_cmp_gt_u32 vcc, %d, v%d' % (target, vreg))
        sub('s_cbranch_vccz %s' % X)
        sub('s_add_u32 s%d, s%d, 1' % (sPC, sPC)); sub('s_cmp_lt_u32 s%d, %d' % (sPC, SPIN_LIMIT))
        sub('s_cbranch_scc1 %s' % L)
        sub('s_mov_b32 s%d, 1' % sDEAD)
        sub.label(X)
        return sub.items
    def phase_c(self):
        e = self.e; o = self.o
        ST, RS, VE, BMs, AM, GT, HP = 112, (120, 121), (122, 123), (124, 132), 136, 152, (168, 172)
        GC0, GC1 = (176, 177), (178, 179)
        k0 = -2.0 * 0.7978845608028654 * LOG2E
        self.cnt(sT0, CNT_XC, sRB)
        e('s_lshl_b32 s%d, s%d, 3\ns_lshl_b32 s%d, s%d, 1\ns_add_u32 s%d, s%d, s%d' % (sT2, sRB, sT1, sW, sT2, sT2, sT1))
        e('s_lshl_b32 s%d, s%d, 7\ns_add_u32 s%d, s%d, s%d\ns_add_u32 s%d, s%d, 0x%x' % (sT1, sT2, sT1, sT1, sLOFF, sT1, sT1, SC))
        e('s_mul_i32 s%d, s%d, 20480\ns_add_u32 s%d, s%d, s%d\ns_add_u32 s%d, s%d, 0x%x' % (sB0, sT2, sB0, sB0, sLOFF, sB0, sB0, XC))
        e('s_add_u32 s%d, s%d, 20480' % (sB1, sB0))
        e('s_mul_i32 s%d, s%d, 48\ns_add_u32 s%d, s%d, s%d\ns_lshl_b32 s%d, s%d, 10' % (sTW, sT2, sTW, sTW, sJ, sTW, sTW))
        e('s_add_u32 s%d, s%d, s%d\ns_add_u32 s%d, s%d, 0x%x' % (sTW, sTW, sLOFF, sTW, sTW, HH))
        if not o.get('ampre', 1): e('s_mul_i32 s%d, s%d, %d\ns_add_u32 s%d, s%d, 0x%x' % (sT4, sJ, 12 * KB, sT4, sT4, WCM))
        self.poll(sT0)
        e('s_barrier')
        self.stamp(11)
        def tok(s, u):
            sb = sB0 if u == 0 else sB1; t = sC1 + u
            g = []
            if s % 4 == 0: g.append('s_add_u32 s%d, s%d, %d' % (t, sb, s * 1024))
            g.append('buffer_load_dwordx4 a[%d:%d], v%d, s[4:7], s%d offen offset:%d%s' % ((2 * s + u) * 4, (2 * s + u) * 4 + 3, vL16, t, (s % 4) * 1024, self.sc))
            return g
        NPRE = o.get('c_npre', 9)
        if o.get('tt', 0): e.extend(self.touch_tok(XC))
        for s in range(NPRE):
            for u in range(2): e.extend(tok(s, u))
        stld = []
        for k in range(2):
            if k: stld.append('s_add_u32 s%d, s%d, 16384' % (sT1, sT1))
            for u in range(2):
                stld.append('buffer_load_dwordx2 v[%d:%d], v%d, s[4:7], s%d offen offset:%d sc1' % (ST + 4 * u + 2 * k, ST + 4 * u + 2 * k + 1, vSC, sT1, 128 * u))
        def amload(sg):
            pre = [] if sg == 0 else ['s_add_u32 s%d, s%d, 4096' % (sT4, sT4)]
            return pre + ['buffer_load_dwordx4 v[%d:%d], v%d, s[4:7], s%d offen offset:%d' % (AM + 4 * t, AM + 4 * t + 3, vL16, sT4, t * 1024) for t in range(4)]
        st = []
        for u in range(2):
            b = ST + 4 * u
            st += ['v_add_f32 v%d, v%d, v%d' % (b, b, b + 2), 'v_add_f32 v%d, v%d, v%d' % (b + 1, b + 1, b + 3)]
            for sw in ('v_permlane16_swap_b32', 'v_permlane32_swap_b32'):
                st += ['v_mov_b32 v%d, v%d' % (b + 2, b), 'v_mov_b32 v%d, v%d' % (b + 3, b + 1),
                       '%s v%d, v%d' % (sw, b, b + 2), '%s v%d, v%d' % (sw, b + 1, b + 3),
                       'v_add_f32 v%d, v%d, v%d' % (b, b, b + 2), 'v_add_f32 v%d, v%d, v%d' % (b + 1, b + 1, b + 3)]
            st += self.rowstat_finish(b, b + 1, RS[u], VE[u], BMs[u], b + 2)
            st += ['v_mul_f32 v%d, %s, v%d' % (GC0[u], f32bits(k0), RS[u]),
                   'v_mul_f32 v%d, v%d, v%d' % (GC1[u], RS[u], RS[u]),
                   'v_mul_f32 v%d, v%d, v%d' % (GC1[u], GC1[u], GC0[u]),
                   'v_mul_f32 v%d, %s, v%d' % (GC1[u], f32bits(0.044715), GC1[u])]
        LA = self.o.get('la', 5)
        def read(n): return self.ring_read(AF + 4 * (n % 8), C0 + n // 20, (n % 20) * 1024)
        def mf(n, u):
            sg, r = n // 80, n % 80; s, tl = r // 4, r % 4
            acc = ACC + 32 * (sg & 1) + (tl * 2 + u) * 4; a = AF + 4 * (n % 8); b = (2 * s + u) * 4
            c = '0' if s == 0 else 'v[%d:%d]' % (acc, acc + 3)
            return 'v_mfma_f32_16x16x32_bf16 v[%d:%d], v[%d:%d], a[%d:%d], %s' % (acc, acc + 3, a, a + 3, b, b + 3, c)
        def mean(sg):
            L = []
            for tl in range(4):
                for u in range(2):
                    acc = ACC + 32 * (sg & 1) + (tl * 2 + u) * 4
                    L.append('v_mfma_f32_16x16x32_bf16 v[%d:%d], v[%d:%d], v[%d:%d], v[%d:%d]' % (acc, acc + 3, AM + 4 * tl, AM + 4 * tl + 3, BMs[u], BMs[u] + 3, acc, acc + 3))
            return L
        def gelu_store(sg):
            L = []
            for u in range(2):
                L += self.gelu_ops(ACC + 32 * (sg & 1), u, GC0[u], GC1[u], VE[u], HP[u], GT)
                L.append('s_add_u32 s%d, s%d, %d' % (sT5, sTW, u * 48 * 1024 + sg * 16 * 1024))
                L.append(('buffer_store_dwordx4 v[%d:%d], v%d, s[4:7], s%d offen sc1' % (HP[u], HP[u] + 3, vL16, sT5), 'h%d' % sg))
            return L
        def ix(n): return 2 * n + 8 * (n // 80)
        items = [(ix(4 * s), 0, tok(s, 0) + tok(s, 1)) for s in range(NPRE, 20)]
        for b in self.C_in:
            dl = ix(20 * (b - C0 - 1)) - (8 if (b - C0 - 1) % 4 == 0 and b > C0 + 1 else 0)
            items.append((dl, 0, self.flat(self.dma_ops(b)), dl - o.get('c_lead', 40)))
        r8 = o.get('ring8', 1)
        last_in = o.get('c_lastblk', D0 + 4 if r8 else D0 + 3)
        for b in range(C0 + 6, last_in + 1):
            free = 20 * (b - C0 - 5)
            if r8 and b >= D0: free = o.get('c_x0', 100) + 20 * (b - D0) if b < D0 + 2 else 20 * (b - 20)
            epn = b - C0 - 1
            dl = ix(20 * epn) - (8 if epn % 4 == 0 else 0) if b < D0 else 100000 + b
            early = ix(free) - (8 if free % 80 == 0 else 0)
            key = max(early, ix(76)) + (0 if b < D0 else 1)
            items.append((dl, early, self.flat(self.dma_ops(b)), key))
        if not o.get('ampre', 1): items.append((ix(60), 0, amload(0)))
        if o.get('tw', 0): items.append((ix(90), ix(84), self.touch_w('D')))
        items.append((ix(o.get('c_stdl', 44)), 0, stld))
        items.append((ix(150), ix(80), amload(1), ix(80)))
        items.append((ix(230), ix(160), amload(2), ix(160)))
        self.cnt(sT0, CNT_H, sRB, mul=384)
        FL, CKC = o.get('c_fl', 190), o.get('c_ck', 206)
        items.append((ix(CKC) - 1, ix(FL), ['buffer_load_dword v%d, v%d, s[4:7], s%d offen sc1' % (vPOLL, vZERO, sT0)], ix(FL)))
        dtoks = [self.d_tok(i, u) for i in range(8) for u in range(2)]
        for k, g in enumerate(dtoks): items.append((90000 + k, ix(CKC), g, ix(CKC) + 0.01 * k))
        vs = self.vm_stream(items)
        e.wait_tag('blk%d' % C0); e.wait_tag('blk%d' % (C0 + 1))
        e('s_barrier')
        for n in range(LA): e(read(n))
        pos = 0; cstate = {}
        for sg in range(3):
            anchors = []; pre = {}; fixed = {}
            if sg > 0: anchors += mean(sg - 1)
            for n in range(80 * sg, 80 * sg + 80):
                assert pos + len(anchors) == ix(n)
                anchors += [mf(n, 0), mf(n, 1)]
                if n + LA < 240: fixed[ix(n)] = [read(n + LA)]
                if n + 1 < 240: fixed[ix(n) + 1] = [Need('v[%d:%d]' % (AF + 4 * ((n + 1) % 8), AF + 4 * ((n + 1) % 8) + 3))]
            for ep in range(4 * sg, 4 * sg + 4):
                if ep == 0: continue
                at = ix(20 * ep) - (8 if ep % 4 == 0 else 0)
                p = [W_tag('blk%d' % (C0 + ep + 1))] if ep < 11 else []
                if ep == o.get('h0ep', 9): p.append(W_tag('h0'))
                if ep in (2, 5, 6, 9, 10): p += self.jitter_items(50 + ep)
                p.append('s_barrier')
                if self.o.get('fine') == 'c': p += self.stamp_items(19 + ep - 1)
                if ep == o.get('h0ep', 9):
                    sub = Main(None, self.o); sub.nlab = self.nlab + 1000
                    sub.signal_only(sT0)
                    p += sub.e.items
                pre[at] = p
            if sg == 2:
                sub = Main(None, self.o); sub.nlab = self.nlab + 4000
                sub.d_bases()
                pre[ix(CKC)] = pre.get(ix(CKC), []) + [W_vreg(vPOLL)] + self.check_flag(vPOLL, sT0) + sub.e.items
            valu = Stream(st, ix(o.get('c_stv', 56))) if sg == 0 else Stream(gelu_store(sg - 1), pos + 10)
            e.extend(schedule(anchors, 2, pre, fixed, [vs, valu], start=pos, vm_gap=(o.get('c_gap', 4) if sg == 0 else o.get('c_gap2', 4)), state=cstate))
            e.extend([y[0] for y in valu.q])
            pos += len(anchors)
        if self.o.get('verbose'): print('c forced', cstate.get('forced'), 'left', len(vs.q))
        self.stamp(12)
        self.jitter(70)
        tail = mean(2) + gelu_store(2)
        left = [y[0] for y in vs.q]; del vs.q[:]
        nvm = max(1, sum(1 for x in left if is_vm(x)))
        step = max(1, (len(tail) - 8) // (nvm + 1))
        H1 = o.get('h1early', 0)
        first_store = next(n for n, x in enumerate(tail) if is_vm(x))
        for n, x in enumerate(tail):
            if left and n % step == 0:
                while left:
                    y = left.pop(0); e.extend([y])
                    if is_vm(y): break
            e.extend([x])
            if H1 and n == first_store:
                e.wait_tag('h1')
                e('s_barrier')
                self.cnt(sT2, CNT_H, sRB, mul=384, add=128)
                self.signal_only(sT2)
        e.extend(left)
        if H1: e('buffer_load_dword v%d, v%d, s[4:7], s%d offen sc1' % (vT1, vZERO, sT2))
        self.cnt(sT1, CNT_H, sRB, mul=384, add=256)
        self.signal(sT1)
        self.stamp(13)
        self.c_last = last_in
        return self.maybe_stop('c')
    def d_bases(self):
        e = self.e
        for (s, tt) in ((sB0, sTTK), (sB1, sTTS)):
            e('s_mul_i32 s%d, s%d, 48\ns_add_u32 s%d, s%d, s%d\ns_lshl_b32 s%d, s%d, 10' % (s, tt, s, s, sKH, s, s))
            e('s_add_u32 s%d, s%d, s%d\ns_add_u32 s%d, s%d, 0x%x' % (s, s, sLOFF, s, s, HH))
    def d_tok(self, i, u):
        sg, jj = i // 8, i % 8
        s = sB0 if u == 0 else sB1; t = sC1 + u
        g = []
        if jj % 2 == 0: g.append('s_add_u32 s%d, s%d, %d' % (t, s, sg * 16384 + jj * 2048))
        r = self.d_reg(i, u)
        g.append('buffer_load_dwordx4 a[%d:%d], v%d, s[4:7], s%d offen offset:%d%s' % (r, r + 3, vL16, t, (jj % 2) * 2048, self.sc))
        return g
    def d_reg(self, i, u):
        return 160 + (2 * i + u) * 4 if i < 8 else (2 * (i - 8) + u) * 4
    def phase_d(self):
        e = self.e; o = self.o
        tok = self.d_tok
        self.stamp(14)
        H1 = o.get('h1early', 0)
        CK = o.get('d_ck', 5 if H1 else 3)
        items = []
        r8 = o.get('ring8', 1); nfree = 8 if r8 else 6
        assert not (r8 and self.A_tail)
        if H1:
            e.extend(self.check_flag(vT1, sT2))
            for b in range(self.c_last + 1, D0 + nfree): items.append((20 * (b - D0 - 1), 0, self.flat(self.dma_ops(b)), 20 * (b - D0 - 1) - 25))
            for b in range(D0 + nfree, NBLK):
                early = 20 * (b - D0 - nfree + 1)
                items.append((20 * (b - D0 - 1), early, self.flat(self.dma_ops(b)), max(early, 20 * (b - D0 - 1) - 65)))
            fl = 20 * CK - o.get('d_fl', 16)
            items.append((20 * CK - 1, fl, ['buffer_load_dword v%d, v%d, s[4:7], s%d offen sc1' % (vPOLL, vZERO, sT1)], fl))
            items += [(10 * i, 0, tok(i, 0) + tok(i, 1), 10 * i - 80) for i in range(8, 16)]
            items += [(10 * i, 20 * CK, tok(i, 0) + tok(i, 1), 20 * CK + i - 16) for i in range(16, 24)]
        else:
            for b in range(self.c_last + 1, D0 + nfree): items.append((20 * (b - D0 - 1), 0, self.flat(self.dma_ops(b)), b - 200))
            for b in range(D0 + nfree, NBLK):
                early = 20 * (b - D0 - nfree + 1)
                key = (b - 200) if early < 20 * CK else 20 * (b - D0 - 1)
                items.append((20 * (b - D0 - 1), early, self.flat(self.dma_ops(b)), key))
            items.append((20 * CK - 1, 20 * CK - o.get('d_fl', 30), ['buffer_load_dword v%d, v%d, s[4:7], s%d offen sc1' % (vPOLL, vZERO, sT1)], -1))
            items += [(10 * i, 20 * CK, tok(i, 0) + tok(i, 1)) for i in range(8, 24)]
        if o.get('tw', 0): items.append((30, 0, self.touch_w('A'), -500))
        for b in self.A_tail: items.append((5000 + b, 20 * (6 + b), self.flat(self.dma_ops(b))))
        chk = [W_vreg(vPOLL)] + self.check_flag(vPOLL, sT1)
        self.gemm_bd(D0, 24, self.vm_stream(items), {CK: chk}, Stream(self.bd_unpack(), 200), self.d_reg)
        self.stamp(17)
        def final():
            L = self.lab('d_last'); X = self.lab('d_done')
            e('s_cmp_lg_u32 s%d, 0' % sL); e('s_cbranch_scc1 %s' % L)
            e('s_lshr_b32 s%d, s%d, 1\ns_mul_i32 s%d, s%d, 40960\ns_add_u32 s%d, s%d, s%d\ns_add_u32 s%d, s%d, 0x%x' % (sT0, sTTK, sT0, sT0, sT0, sT0, sLOFF, sT0, sT0, XA + self.lstride))
            e('buffer_store_dwordx4 v[%d:%d], v%d, s[4:7], s%d offen sc1' % (XR, XR + 3, vY0, sT0))
            e('buffer_store_dwordx4 v[%d:%d], v%d, s[4:7], s%d offen sc1' % (XR + 4, XR + 7, vY1, sT0))
            e('buffer_store_dwordx2 v[%d:%d], v%d, s[4:7], s%d offen sc1' % (XR + 8, XR + 9, vY2, sT0))
            self.bd_stats(SA, True)
            self.cnt(sT1, CNT_XA, sRB, next_layer=True)
            self.signal(sT1, self.A_ack)
            self.stamp(18)
            if self.o.get('ampre_a', 0): self.am_a()
            self.side_dma(self.A_side)
            e('s_branch %s' % X)
            e.label(L)
            e('s_mul_i32 s%d, s%d, 20480\ns_mul_i32 s%d, s%d, 160\ns_add_u32 s%d, s%d, s%d' % (sT0, sTTK, sT1, sCS, sT0, sT0, sT1))
            e('buffer_store_dwordx4 v[%d:%d], v%d, s[12:15], s%d offen' % (XR, XR + 3, vR0, sT0))
            e('buffer_store_dwordx4 v[%d:%d], v%d, s[12:15], s%d offen offset:64' % (XR + 4, XR + 7, vR0, sT0))
            e('buffer_store_dwordx2 v[%d:%d], v%d, s[12:15], s%d offen' % (XR + 8, XR + 9, vR2, sT0))
            self.stamp(18)
            self.stamp_flush()
            e('s_endpgm')
            e.label(X)
        self.bd_epilogue(D0 + 11, final)
        return self.maybe_stop('d')
    def build(self):
        e = self.e
        self.prologue()
        e.label('M_LAYER')
        done = self.phase_a() or self.phase_b() or self.phase_c() or self.phase_d()
        if not done:
            e('s_add_u32 s%d, s%d, 1\ns_add_u32 s%d, s%d, 0x%x\ns_add_u32 s%d, s%d, 0x%x' % (sL, sL, sLOFF, sLOFF, self.lstride, sCNT, sCNT, CSTRIDE))
            e('s_branch M_LAYER')
        e.label('M_END')
        e('s_endpgm')
        e.label('M_CODE_END')
        if self.o.get('dual'):
            out = []; inloop = False
            for I in e.items:
                out.append(I)
                if I.kind == 'label' and I.txt.startswith('M_LAYER'): inloop = True
                if inloop and I.kind == 'vm' and I.op.startswith('buffer_store') and I.txt.endswith(' sc1') and 's[4:7]' in I.txt:
                    if self.o['dual'] == 1 and ('v%d,' % vPS1 in I.txt or 'v%d,' % vPS2 in I.txt): continue
                    J = parse(I.txt[:-4], I.tag); J.count = I.count
                    out.append(J)
            e.items = out
        return e
```

```python
from asmlib import *
from layout import *

P0_GRID = 513
P0_LDS = 28 * 1024
NAME = 'prep_kernel'

def srd(e, dst, lo, nbytes):
    e('s_mov_b32 s%d, s%d' % (dst, lo))
    e('s_mov_b32 s%d, s%d' % (dst + 1, lo + 1))
    e('s_mov_b32 s%d, 0x%x' % (dst + 2, nbytes))
    e('s_mov_b32 s%d, 0x20000' % (dst + 3))

S_WS, S_SRC, S_SRC2, S_W = 4, 8, 12, 16

STAMPS = False
def stamp(e, k):
    if not STAMPS: return
    e('s_memrealtime s[70:71]\ns_waitcnt lgkmcnt(0)\nv_mov_b32 v%d, s70' % (120 + k))
def stamp_flush(e):
    if not STAMPS: return
    stamp(e, 3)
    e('s_lshl_b32 s72, s2, 2\ns_add_u32 s72, s72, s16\ns_lshl_b32 s72, s72, 4\ns_add_u32 s72, s72, 0x4100000')
    e('v_mov_b32 v5, 0')
    e('buffer_store_dwordx4 v[120:123], v5, s[4:7], s72 offen' + SC)

SC = ''
CODEPF = 1
ONLYCRIT = 0
REMAP = 1
EARLYJ = 1
MAIN_LABEL = 'hedgehog_main_kernel'
def gen_p0(stamps=False, sc='', codepf=1, onlycrit=0, remap=1, earlyj=1):
    global STAMPS, SC, CODEPF, ONLYCRIT, REMAP, EARLYJ
    EARLYJ = earlyj
    STAMPS = stamps; SC = sc; CODEPF = codepf; ONLYCRIT = onlycrit; REMAP = remap
    e = Asm()
    e.directive('.text\n.globl %s\n.p2align 8\n.type %s,@function' % (NAME, NAME))
    e.label(NAME)
    e('s_cmp_ge_u32 s2, %d' % P0_GRID)
    e('s_cbranch_scc1 P0_END')
    stamp(e, 0)
    e('s_load_dwordx8 s[40:47], s[0:1], 0')
    e('s_load_dwordx4 s[48:51], s[0:1], 40')
    e('s_load_dwordx2 s[52:53], s[0:1], 56')
    e('s_load_dwordx2 s[54:55], s[0:1], 80')
    e('v_lshrrev_b32 v1, 6, v0')
    e('v_and_b32 v2, 63, v0')
    e('v_readfirstlane_b32 s16, v1')
    e('v_mov_b32 v3, 0x3f803f80')
    e('v_lshlrev_b32 v4, 4, v2')
    if not EARLYJ: kwait(e)
    e('s_cmp_lt_u32 s2, 96');  e('s_cbranch_scc1 P0_WA')
    if ONLYCRIT:
        e('s_cmp_lt_u32 s2, 448'); e('s_cbranch_scc1 P0_END')
    e('s_cmp_lt_u32 s2, 288'); e('s_cbranch_scc1 P0_WC')
    e('s_cmp_lt_u32 s2, 416'); e('s_cbranch_scc1 P0_WD')
    e('s_cmp_lt_u32 s2, 448'); e('s_cbranch_scc1 P0_WB')
    e('s_cmp_lt_u32 s2, 512'); e('s_cbranch_scc1 P0_X')
    if EARLYJ: kwait(e)
    e('v_lshlrev_b32 v5, 4, v0')
    for r in range(8, 12): e('v_mov_b32 v%d, 0' % r)
    for l in range(1):
        for n in range(8):
            e('s_mov_b32 s20, 0x%x' % (n * 4096))
            e('buffer_store_dwordx4 v[8:11], v5, s[4:7], s20 offen' + SC)
    e('s_endpgm')
    gen_wa(e); gen_wc(e); gen_wd(e); gen_wb(e); gen_x(e)
    e.label('P0_END')
    e('s_endpgm')
    return e

def kwait(e):
    e('s_waitcnt lgkmcnt(0)')
    srd(e, S_WS, 54, WS_BYTES)
    stamp(e, 1)

def hilo_store(e, vsum, vtmp, voff, soff):
    e('v_cvt_pk_bf16_f32 v%d, v%d, v%d' % (vtmp, vsum, vsum))
    e('v_and_b32 v%d, 0xffff0000, v%d' % (vtmp + 2, vtmp))
    e('v_sub_f32 v%d, v%d, v%d' % (vtmp + 2, vsum, vtmp + 2))
    e('v_cvt_pk_bf16_f32 v%d, v%d, v%d' % (vtmp + 1, vtmp + 2, vtmp + 2))
    e(('buffer_store_dwordx2 v[%d:%d], v%d, s[4:7], %s offen' % (vtmp, vtmp + 1, voff, soff)) + SC)

def gen_wa(e):
    e.label('P0_WA')
    e.reset_state()
    if EARLYJ: kwait(e)
    srd(e, S_SRC, 42, 640 * 3840)
    srd(e, S_SRC2, 44, 32 * 800)
    if REMAP:
        e('s_and_b32 s20, s2, 7\ns_lshr_b32 s21, s2, 3')
        e('s_cmp_ge_u32 s21, 6\ns_cselect_b32 s22, 1, 0\ns_cselect_b32 s23, 6, 0')
        e('s_sub_u32 s21, s21, s23\ns_lshl_b32 s20, s20, 1\ns_add_u32 s20, s20, s22')
        e('s_mul_i32 s20, s20, 6\ns_add_u32 s20, s20, s21\ns_lshl_b32 s20, s20, 2\ns_add_u32 s20, s20, s16')
    else:
        e('s_lshl_b32 s20, s2, 2\ns_add_u32 s20, s20, s16')
    e('s_mul_i32 s21, s20, 2731\ns_lshr_b32 s21, s21, 16')
    e('s_mul_i32 s22, s21, 24\ns_sub_u32 s22, s20, s22')
    e('s_mul_i32 s23, s22, 43\ns_lshr_b32 s23, s23, 8')
    e('s_mul_i32 s24, s23, 6\ns_sub_u32 s24, s22, s24')
    e('s_lshr_b32 s25, s24, 1\ns_and_b32 s26, s24, 1')
    e('s_lshl_b32 s27, s21, 1\ns_add_u32 s27, s27, s26')
    e('s_add_u32 s28, s25, 1\ns_mul_i32 s28, s28, 640')
    e('s_cmp_eq_u32 s25, 2\ns_cselect_b32 s28, 0, s28')
    e('s_mul_i32 s29, s27, 20\ns_add_u32 s28, s28, s29\ns_lshl_b32 s28, s28, 1')
    e('s_mul_i32 s29, s23, %d\ns_add_u32 s28, s28, s29' % (160 * 3840))
    e('v_and_b32 v5, 31, v2\nv_lshrrev_b32 v6, 5, v2')
    e('v_and_b32 v7, 0x13, v5')
    e('v_bfe_u32 v8, v5, 2, 1\nv_lshl_add_u32 v7, v8, 3, v7')
    e('v_bfe_u32 v8, v5, 3, 1\nv_lshl_add_u32 v7, v8, 2, v7')
    e('v_mul_u32_u24 v7, 3840, v7\nv_lshl_add_u32 v7, v6, 4, v7')
    for kt in range(5):
        e('s_add_u32 s30, s28, %d' % (kt * 32 * 3840))
        for m in range(2):
            r = 32 + 8 * kt + 4 * m
            e('buffer_load_dwordx4 v[%d:%d], v7, s[8:11], s30 offen offset:%d' % (r, r + 3, 32 * m))
    e('s_cmp_eq_u32 s25, 1\ns_cbranch_scc1 P0_WA_ID')
    e('v_lshlrev_b32 v8, 1, v5')
    e('v_mul_u32_u24 v9, 320, v6\nv_add_u32 v8, v8, v9')
    e('s_mul_i32 s30, s27, 800')
    e('v_mov_b32 v10, 0x%x' % OOB)
    e('v_cmp_gt_u32 vcc, 20, v5\nv_cndmask_b32 v8, v10, v8, vcc')
    e('v_cmp_eq_u32 vcc, 0, v6\nv_cndmask_b32 v9, v10, v8, vcc')
    for el in range(8):
        e('buffer_load_ushort v%d, v8, s[12:15], s30 offen offset:%d' % (80 + el, el * 40))
    for el in range(4):
        e('buffer_load_ushort v%d, v9, s[12:15], s30 offen offset:%d' % (88 + el, (16 + el) * 40))
    for d in range(4): e('v_lshl_or_b32 v%d, v%d, 16, v%d' % (72 + d, 81 + 2 * d, 80 + 2 * d))
    for d in range(2): e('v_lshl_or_b32 v%d, v%d, 16, v%d' % (76 + d, 89 + 2 * d, 88 + 2 * d))
    e('v_mov_b32 v78, 0\nv_mov_b32 v79, 0')
    e.wait_all()
    e('s_branch P0_WA_GO')
    e.label('P0_WA_ID')
    e('v_lshlrev_b32 v8, 3, v6\nv_sub_u32 v8, v5, v8')
    e('v_mov_b32 v10, 0x3f80\nv_mov_b32 v11, 0x3f800000\nv_mov_b32 v12, 0')
    for m in range(2):
        if m == 1: e('v_subrev_u32 v8, 16, v8')
        for d in range(4):
            e('v_cmp_eq_u32 vcc, %d, v8' % (2 * d))
            e('v_cndmask_b32 v%d, v12, v10, vcc' % (72 + 4 * m + d))
            e('v_cmp_eq_u32 vcc, %d, v8' % (2 * d + 1))
            e('v_cndmask_b32 v%d, v%d, v11, vcc' % (72 + 4 * m + d, 72 + 4 * m + d))
    e.wait_all()
    e.label('P0_WA_GO')
    e.reset_state()
    stamp(e, 2)
    e('s_mul_i32 s30, s25, 20\nv_add_u32 v8, s30, v5')
    e('v_lshrrev_b32 v9, 4, v8\nv_and_b32 v10, 15, v8')
    e('v_lshrrev_b32 v11, 2, v10\nv_lshlrev_b32 v11, 3, v11')
    e('v_and_b32 v10, 3, v10\nv_add_u32 v11, v11, v10')
    e('s_lshl_b32 s31, s26, 2\nv_add_u32 v11, s31, v11')
    e('v_lshl_add_u32 v12, v6, 5, v11\nv_lshlrev_b32 v12, 4, v12')
    e('v_cmp_gt_u32 vcc, 3, v9')
    e('v_mov_b32 v13, 120\nv_cndmask_b32 v13, v13, v9, vcc')
    e('v_mov_b32 v14, 1024\nv_mov_b32 v15, 3072\nv_cndmask_b32 v14, v14, v15, vcc')
    e('v_lshl_add_u32 v12, v13, 10, v12')
    e('s_mul_i32 s31, s23, 10\nv_mul_lo_u32 v15, v14, s31\nv_add_u32 v12, v12, v15')
    e('s_cmp_eq_u32 s25, 2\ns_cselect_b32 s32, 24, 20')
    e('v_cmp_gt_u32 vcc, s32, v5\nv_mov_b32 v16, 0x%x' % OOB)
    e('s_mov_b64 s[34:35], vcc', count=False) if False else None
    e('v_cndmask_b32 v12, v16, v12, vcc')
    e('v_cndmask_b32 v14, 0, v14, vcc') if False else None
    e('v_lshlrev_b32 v17, 10, v9\nv_lshl_add_u32 v17, v11, 4, v17')
    e('v_cndmask_b32 v17, v16, v17, vcc')
    e('v_cmp_eq_u32 vcc, 0, v6\nv_cndmask_b32 v17, v16, v17, vcc')
    e('s_mul_i32 s33, s21, %d\ns_add_u32 s33, s33, 0x%x' % (160 * KB, WA))
    e('v_mov_b32 v18, 0')
    for kt in range(5):
        a0 = 32 + 8 * kt
        e('v_mfma_f32_32x32x16_bf16 v[96:111], v[%d:%d], v[72:75], 0' % (a0, a0 + 3))
        e('v_mfma_f32_32x32x16_bf16 v[96:111], v[%d:%d], v[76:79], v[96:111]' % (a0 + 4, a0 + 7))
        for d in range(8):
            e('v_cvt_pk_bf16_f32 v%d, v%d, v%d' % (112 + d, 96 + 2 * d, 97 + 2 * d))
        for d in range(8):
            e('v_dot2c_f32_bf16 v18, v%d, v3' % (112 + d))
        e('buffer_store_dwordx4 v[112:115], v12, s[4:7], s33 offen' + SC)
        e('v_add_u32 v19, v12, v14')
        e('buffer_store_dwordx4 v[116:119], v19, s[4:7], s33 offen' + SC)
        e('v_add_u32 v12, v19, v14')
    e('v_mov_b32 v19, v18')
    e('v_permlane32_swap_b32 v18, v19')
    e('v_add_f32 v18, v18, v19')
    e('s_lshl_b32 s34, s21, 12\ns_add_u32 s34, s34, 0x%x' % WAM)
    e('s_lshr_b32 s35, s23, 1\ns_lshl_b32 s35, s35, 9\ns_add_u32 s34, s34, s35')
    e('s_and_b32 s35, s23, 1\ns_lshl_b32 s35, s35, 3\ns_add_u32 s34, s34, s35')
    hilo_store(e, 18, 20, 17, 's34')
    stamp_flush(e)
    e('s_endpgm')

def tr_lane(e):
    e('v_lshrrev_b32 v5, 4, v2\nv_bfe_u32 v6, v2, 2, 2\nv_and_b32 v7, 3, v2')

def gen_wc(e):
    e.label('P0_WC')
    e.reset_state()
    if EARLYJ: kwait(e)
    e('s_sub_u32 s20, s2, 96')
    e('s_cmp_ge_u32 s20, 96\ns_cselect_b32 s21, 1, 0')
    e('s_cselect_b32 s8, s50, s48\ns_cselect_b32 s9, s51, s49')
    e('s_mov_b32 s10, 0x%x\ns_mov_b32 s11, 0x20000' % (640 * 3072))
    e('s_mul_i32 s22, s21, 96\ns_sub_u32 s22, s20, s22')
    e('s_lshr_b32 s23, s22, 2\ns_and_b32 s24, s22, 3')
    e('v_lshrrev_b32 v8, 3, v2\nv_mul_u32_u24 v8, 3072, v8')
    e('v_and_b32 v9, 7, v2\nv_lshl_add_u32 v8, v9, 4, v8')
    e('s_mul_i32 s25, s24, %d\ns_lshl_b32 s26, s23, 7\ns_add_u32 s25, s25, s26' % (160 * 3072))
    e('s_mul_i32 s26, s16, %d\ns_add_u32 s25, s25, s26' % (40 * 3072))
    e('s_mul_i32 s27, s16, 5120')
    for n in range(5):
        e('s_add_u32 m0, s27, %d' % (n * 1024))
        e('s_add_u32 s28, s25, %d' % (n * 8 * 3072))
        e('buffer_load_dwordx4 v8, s[8:11], s28 offen lds')
    tr_lane(e)
    e('v_lshl_add_u32 v9, v5, 3, v6\nv_lshlrev_b32 v9, 7, v9')
    e('v_lshl_add_u32 v9, v7, 3, v9')
    e('s_lshl_b32 s26, s16, 5\nv_add_u32 v9, s26, v9')
    e('s_lshl_b32 s26, s23, 2\ns_add_u32 s26, s26, s16')
    e('s_mul_i32 s27, s26, 171\ns_lshr_b32 s27, s27, 10')
    e('s_mul_i32 s28, s27, 6\ns_sub_u32 s28, s26, s28\ns_lshr_b32 s28, s28, 1')
    e('s_and_b32 s29, s26, 1\ns_lshl_b32 s30, s21, 1\ns_add_u32 s29, s29, s30')
    e('s_mul_i32 s30, s27, 240\ns_mul_i32 s31, s28, 80\ns_add_u32 s30, s30, s31')
    e('s_mul_i32 s31, s24, 20\ns_add_u32 s30, s30, s31\ns_add_u32 s30, s30, s29')
    e('s_lshl_b32 s30, s30, 10\ns_add_u32 s30, s30, 0x%x' % WC)
    e('v_mov_b32 v18, 0')
    e.wait_all()
    e('s_barrier')
    stamp(e, 2)
    for s in range(5):
        r = 32 + 4 * s
        e('ds_read_b64_tr_b16 v[%d:%d], v9 offset:%d' % (r, r + 1, s * 4096))
        e('ds_read_b64_tr_b16 v[%d:%d], v9 offset:%d' % (r + 2, r + 3, s * 4096 + 512))
    for s in range(5):
        r = 32 + 4 * s
        e('s_add_u32 s31, s30, %d' % (s * 4096))
        e(('buffer_store_dwordx4 v[%d:%d], v4, s[4:7], s31 offen' % (r, r + 3)) + SC)
        for d in range(4): e('v_dot2c_f32_bf16 v18, v%d, v3' % (r + d))
    e('v_mov_b32 v19, v18\nv_permlane16_swap_b32 v18, v19\nv_add_f32 v18, v18, v19')
    e('v_mov_b32 v19, v18\nv_permlane32_swap_b32 v18, v19\nv_add_f32 v18, v18, v19')
    e('v_and_b32 v10, 15, v2\nv_lshlrev_b32 v10, 4, v10')
    e('v_lshl_add_u32 v10, v5, 9, v10')
    e('v_mov_b32 v11, 0x%x' % OOB)
    e('v_cmp_gt_u32 vcc, 2, v5\nv_cndmask_b32 v10, v11, v10, vcc')
    e('v_cmp_eq_u32 vcc, 0, v5\nv_cndmask_b32 v18, 0, v18, vcc')
    e('s_mul_i32 s31, s27, 12\ns_lshl_b32 s32, s28, 2\ns_add_u32 s31, s31, s32\ns_add_u32 s31, s31, s29')
    e('s_lshl_b32 s31, s31, 10\ns_add_u32 s31, s31, 0x%x' % WCM)
    e('s_lshr_b32 s32, s24, 1\ns_lshl_b32 s32, s32, 8\ns_add_u32 s31, s31, s32')
    e('s_and_b32 s32, s24, 1\ns_lshl_b32 s32, s32, 3\ns_add_u32 s31, s31, s32')
    hilo_store(e, 18, 20, 10, 's31')
    stamp_flush(e)
    e('s_endpgm')

def dma160_voff(e, dst):
    e('v_mul_u32_u24 v8, 205, v2\nv_lshrrev_b32 v8, 11, v8')
    e('v_mul_u32_u24 v9, 10, v8\nv_sub_u32 v9, v2, v9')
    e('v_min_u32 v8, 5, v8')
    e('v_mul_u32_u24 v8, 1280, v8\nv_lshl_add_u32 v%d, v9, 4, v8' % dst)

def row_to_lds(e, vrow, vdst, vt):
    e('v_mul_u32_u24 v%d, 171, v%d\nv_lshrrev_b32 v%d, 10, v%d' % (vt, vrow, vt, vt))
    e('v_mul_u32_u24 v%d, 6, v%d\nv_sub_u32 v%d, v%d, v%d' % (vdst, vt, vdst, vrow, vdst))
    e('v_mul_u32_u24 v%d, 160, v%d\nv_lshl_add_u32 v%d, v%d, 10, v%d' % (vdst, vdst, vdst, vt, vdst))

def gen_wd(e):
    e.label('P0_WD')
    e.reset_state()
    if EARLYJ: kwait(e)
    srd(e, S_SRC, 52, 1536 * 1280)
    if REMAP:
        e('s_sub_u32 s20, s2, 288\ns_lshr_b32 s23, s20, 3\ns_lshr_b32 s21, s23, 1')
        e('s_and_b32 s22, s20, 7\ns_lshl_b32 s22, s22, 1\ns_and_b32 s23, s23, 1\ns_add_u32 s22, s22, s23')
    else:
        e('s_sub_u32 s20, s2, 288\ns_lshr_b32 s21, s20, 4\ns_and_b32 s22, s20, 15')
    dma160_voff(e, 10)
    e('s_mul_i32 s23, s22, %d\ns_mul_i32 s24, s21, 160\ns_add_u32 s23, s23, s24' % (96 * 1280))
    e('s_mul_i32 s24, s16, %d\ns_add_u32 s23, s23, s24' % (24 * 1280))
    e('s_lshl_b32 s25, s16, 12')
    for n in range(4):
        e('s_add_u32 m0, s25, %d' % (n * 1024))
        e('s_add_u32 s26, s23, %d' % (n * 6 * 1280))
        e('buffer_load_dwordx4 v10, s[8:11], s26 offen lds')
    tr_lane(e)
    e('s_lshl_b32 s26, s16, 5')
    e('v_lshl_add_u32 v11, v5, 2, v6\nv_add_u32 v11, s26, v11')
    e('v_min_u32 v11, 79, v11')
    row_to_lds(e, 11, 12, 13)
    e('v_add_u32 v11, 16, v11')
    row_to_lds(e, 11, 14, 13)
    e('v_lshl_add_u32 v16, v7, 4, v12\nv_lshl_add_u32 v17, v7, 4, v14')
    e('v_lshl_add_u32 v18, v7, 3, v12\nv_lshl_add_u32 v19, v7, 3, v14')
    e('s_lshl_b32 s27, s16, 3\ns_lshr_b32 s28, s22, 1\ns_add_u32 s27, s27, s28\ns_mul_i32 s27, s27, 10')
    e('s_and_b32 s28, s22, 1\ns_mul_i32 s28, s28, 5\ns_add_u32 s27, s27, s28')
    e('s_mul_i32 s28, s21, 240\ns_add_u32 s27, s27, s28\ns_lshl_b32 s27, s27, 10\ns_add_u32 s27, s27, 0x%x' % WD)
    e.wait_all()
    e('s_barrier')
    stamp(e, 2)
    e('s_cmp_eq_u32 s16, 3\ns_cbranch_scc1 P0_END')
    for tau in range(5):
        r = 32 + 4 * tau
        off = (8 * tau if tau < 2 else 64 + 8 * (tau - 2)) if tau < 4 else 128
        va, vb = (16, 17) if tau < 4 else (18, 19)
        e('ds_read_b64_tr_b16 v[%d:%d], v%d offset:%d' % (r, r + 1, va, off))
        e('ds_read_b64_tr_b16 v[%d:%d], v%d offset:%d' % (r + 2, r + 3, vb, off))
    for tau in range(5):
        r = 32 + 4 * tau
        e('s_add_u32 s28, s27, %d' % (tau * 1024))
        e(('buffer_store_dwordx4 v[%d:%d], v4, s[4:7], s28 offen' % (r, r + 3)) + SC)
    stamp_flush(e)
    e('s_endpgm')

def gen_wb(e):
    e.label('P0_WB')
    e.reset_state()
    if EARLYJ: kwait(e)
    srd(e, S_SRC, 46, 640 * 1280)
    if REMAP:
        e('s_sub_u32 s20, s2, 416\ns_and_b32 s23, s20, 7\ns_lshr_b32 s22, s23, 1')
        e('s_and_b32 s23, s23, 1\ns_lshl_b32 s23, s23, 2\ns_lshr_b32 s21, s20, 3\ns_add_u32 s21, s21, s23')
    else:
        e('s_sub_u32 s20, s2, 416\ns_lshr_b32 s21, s20, 2\ns_and_b32 s22, s20, 3')
    dma160_voff(e, 10)
    e('s_mul_i32 s23, s22, %d\ns_mul_i32 s24, s21, 160\ns_add_u32 s23, s23, s24' % (160 * 1280))
    e('s_mul_i32 s24, s16, %d\ns_add_u32 s23, s23, s24' % (42 * 1280))
    e('s_mul_i32 s25, s16, 7168')
    for n in range(7):
        e('s_add_u32 m0, s25, %d' % (n * 1024))
        e('s_add_u32 s26, s23, %d' % (n * 6 * 1280))
        e('buffer_load_dwordx4 v10, s[8:11], s26 offen lds')
    tr_lane(e)
    e('s_mul_i32 s27, s21, %d\ns_add_u32 s27, s27, 0x%x' % (100 * KB, WB))
    e.wait_all()
    e('s_barrier')
    stamp(e, 2)
    def rows(sp):
        e('v_mov_b32 v11, %s' % sp)
        e('v_lshl_add_u32 v11, v11, 2, v5')
        e('v_mul_u32_u24 v12, 52, v11\nv_lshrrev_b32 v12, 8, v12')
        e('v_mul_u32_u24 v13, 5, v12\nv_sub_u32 v13, v11, v13')
        e('v_mul_u32_u24 v12, 40, v12\nv_add_u32 v12, v12, v6')
        e('v_lshlrev_b32 v14, 3, v13')
        e('v_add_u32 v15, 4, v14')
        e('v_cmp_gt_u32 vcc, 2, v13\nv_cndmask_b32 v14, v15, v14, vcc')
        e('v_cmp_eq_u32 vcc, 4, v13\nv_cndmask_b32 v14, v14, 16, vcc') if False else None
        e('v_mov_b32 v15, 16\nv_cmp_eq_u32 vcc, 4, v13\nv_cndmask_b32 v14, v14, v15, vcc')
        e('v_add_u32 v20, v12, v14')
        e('v_mov_b32 v15, 20\nv_cndmask_b32 v15, 4, v15, vcc')
        e('v_add_u32 v21, v20, v15')
        row_to_lds(e, 20, 12, 13)
        row_to_lds(e, 21, 14, 13)
    def dest(sp, tau_sgpr_or_const):
        e('s_mul_i32 s28, s22, 5\ns_add_u32 s28, s28, %s' % sp)
        e('s_cmp_ge_u32 s28, 10\ns_cselect_b32 s29, 5, 0\ns_cselect_b32 s30, 10, 0')
        e('s_sub_u32 s28, s28, s30\ns_mul_i32 s28, s28, 10\ns_add_u32 s28, s28, s29')
        e('s_add_u32 s28, s28, %s' % tau_sgpr_or_const)
        e('s_lshl_b32 s28, s28, 10\ns_add_u32 s28, s28, s27')
    e('s_and_b32 s31, s16, 1\ns_lshl_b32 s31, s31, 3\ns_lshr_b32 s32, s16, 1\ns_lshl_b32 s32, s32, 6\ns_add_u32 s31, s31, s32')
    e('v_lshlrev_b32 v22, 4, v7\nv_add_u32 v22, s31, v22')
    e('v_lshlrev_b32 v23, 3, v7\nv_add_u32 v23, 128, v23')
    def frag(vcol):
        e('v_add_u32 v16, v12, v%d\nv_add_u32 v17, v14, v%d' % (vcol, vcol))
        e('ds_read_b64_tr_b16 v[32:33], v16\nds_read_b64_tr_b16 v[34:35], v17')
        e('buffer_store_dwordx4 v[32:35], v4, s[4:7], s28 offen' + SC)
    for sp in range(5):
        rows(str(sp)); dest(str(sp), 's16'); frag(22)
        if sp == 4:
            dest('4', '4'); frag(23)
    rows('s16'); dest('s16', '4'); frag(23)
    stamp_flush(e)
    e('s_endpgm')

def gen_x(e):
    e.label('P0_X')
    e.reset_state()
    if EARLYJ: kwait(e)
    srd(e, S_SRC, 40, T * 1280)
    e('s_sub_u32 s20, s2, 448')
    if CODEPF:
        e('s_getpc_b64 s[24:25]')
        e.label('P0_PC')
        e('s_add_u32 s24, s24, (%s-P0_PC)\ns_addc_u32 s25, s25, 0' % MAIN_LABEL)
        e('v_lshlrev_b32 v100, 7, v0')
        e('v_mov_b32 v101, (M_CODE_END-%s-4)' % MAIN_LABEL)
        e('v_add_u32 v102, 0x8000, v100')
        e('v_min_u32 v100, v100, v101\nv_min_u32 v102, v102, v101')
        e('v_and_b32 v100, -4, v100\nv_and_b32 v102, -4, v102')
        e('global_load_dword v103, v100, s[24:25]', count=False)
        e('global_load_dword v104, v102, s[24:25]', count=False)
    e('v_and_b32 v5, 31, v2\nv_lshrrev_b32 v6, 5, v2')
    e('v_mul_u32_u24 v7, 1280, v5\nv_lshl_add_u32 v7, v6, 4, v7')
    e('s_mul_i32 s21, s20, 40960\ns_mul_i32 s22, s16, 320\ns_add_u32 s21, s21, s22')
    for n in range(10):
        e('buffer_load_dwordx4 v[%d:%d], v7, s[8:11], s21 offen offset:%d' % (32 + 4 * n, 35 + 4 * n, 32 * n))
    e('s_mul_i32 s22, s20, 40\ns_mul_i32 s23, s16, 10\ns_add_u32 s22, s22, s23')
    e('s_lshl_b32 s22, s22, 10\ns_add_u32 s22, s22, 0x%x' % (LBASE + XA))
    for r in range(20, 24): e('v_mov_b32 v%d, 0' % r)
    if STAMPS:
        e.wait_all(); stamp(e, 2)
    for n in range(10):
        r = 32 + 4 * n
        e('s_add_u32 s23, s22, %d' % (n * 1024))
        e(('buffer_store_dwordx4 v[%d:%d], v4, s[4:7], s23 offen' % (r, r + 3)) + SC)
        a = 20 if n < 5 else 22
        for d in range(4):
            e('v_dot2c_f32_bf16 v%d, v%d, v3' % (a, r + d))
            e('v_dot2c_f32_bf16 v%d, v%d, v%d' % (a + 1, r + d, r + d))
    for r in range(20, 24):
        e('v_mov_b32 v24, v%d\nv_permlane32_swap_b32 v%d, v24\nv_add_f32 v%d, v%d, v24' % (r, r, r, r))
    e('v_lshlrev_b32 v8, 3, v5\nv_mov_b32 v9, 0x%x' % OOB)
    e('v_cmp_eq_u32 vcc, 0, v6\nv_cndmask_b32 v8, v9, v8, vcc')
    e('s_lshl_b32 s23, s20, 8\ns_lshl_b32 s24, s16, 15\ns_add_u32 s23, s23, s24\ns_add_u32 s23, s23, 0x%x' % (LBASE + SA))
    e('buffer_store_dwordx2 v[20:21], v8, s[4:7], s23 offen' + SC)
    e('s_add_u32 s23, s23, 16384')
    e('buffer_store_dwordx2 v[22:23], v8, s[4:7], s23 offen' + SC)
    stamp_flush(e)
    e('s_endpgm')

def descriptor(name, vgpr, accum, sgpr=96):
    return """.amdhsa_kernel %s
  .amdhsa_next_free_vgpr %d
  .amdhsa_next_free_sgpr %d
  .amdhsa_accum_offset %d
  .amdhsa_group_segment_fixed_size 0
  .amdhsa_kernarg_size 88
  .amdhsa_user_sgpr_count 2
  .amdhsa_user_sgpr_kernarg_segment_ptr 1
  .amdhsa_system_sgpr_workgroup_id_x 1
.end_amdhsa_kernel
""" % (name, vgpr, sgpr, accum)
```

```python
from asmlib import *
from layout import *

NAME = 'hedgehog_main_kernel'
KNAME = 'interleave_layers__linear_kernel_hedgehog__geglu_ffn__prompt_kernel'
BLK = 20480
SCR = 6 * BLK
LDS_TOTAL = 163840
SPIN_LIMIT = 40000
LOG2E = 1.4426950408889634
TSOFF = 0x4000000

sW, sRB, sJ, sL, sLOFF, sW5K, sWA, sWB, sWC, sWD = range(16, 26)
sT0, sT1, sT2, sT3, sT4, sT5 = range(26, 32)
sDEAD, sPC, sPV, sCS, sTH, sTTK, sTTS, sKH = range(40, 48)
sDM = 48
sTW = 49
sB0, sB1 = 50, 51
sC1, sC2, sC3, sC4 = 52, 53, 54, 55
sEX, sEXD = 56, 57
sFIRST = 38
sCNT = 3
sTA, sTB = 58, 59
vL16, vLANE, vONES, vZERO, vONE, vPOLL = 1, 2, 3, 4, 5, 6
vL16B, vK0, vK1 = 7, 8, 9
vT0, vT1, vT2, vT3, vT4 = 10, 11, 12, 13, 14
vEXR = 15
AF, ACC = 16, 48
vSA, vTW, vKA, vKB, vPS1, vPS2, vPL, vAW, vO0, vO1, vO2, vX0, vX1, vX2, vY0, vY1 = range(224, 240)
XR = 240
vY2, vR0, vR2, vST, vSC, vEXW = range(250, 256)
vAW2 = 221
vK2 = 218
vL128, vTCH = 220, 219

A0, B0, C0, D0, NBLK = 0, 8, 13, 25, 37
NSIDE_A, NSIDE_C = 4, 4

def f32bits(x):
    import struct
    return '0x%08x' % struct.unpack('<I', struct.pack('<f', x))[0]

def W_vreg(r):
    return 'v_mov_b32 v%d, v%d' % (r, r)

class Main:
    def __init__(self, stop=None, opts=None):
        self.e = Asm(); self.stop = stop; self.o = opts or {}
        self.sc = '' if self.o.get('nosc1') else ' sc1'
        self.nlab = 0
        self.lstride = 0 if self.o.get('reuse') else LSTRIDE
        self.name = KNAME if self.o.get('merged', 0) else NAME
        global NSIDE_A, NSIDE_C
        NSIDE_A = self.o.get('nsa', 1); NSIDE_C = self.o.get('nsc', 2)
        dt = self.o.get('d_tail', 0); bt = self.o.get('b_tail', 0)
        self.A_tail = list(range(1, 1 + dt))
        rest = [0] + list(range(1 + dt, 6))
        na = self.o.get('a_ack', 2)
        self.A_ack, rest = rest[:na], rest[na:]
        self.A_side, self.A_in = rest[:NSIDE_A], rest[NSIDE_A:]
        self.C_tail = list(range(C0 + 1, C0 + 1 + bt))
        rest = list(range(C0 + 1 + bt, C0 + 6))
        nc = self.o.get('c_ack', 2)
        self.C_ack, rest = rest[:nc], rest[nc:]
        self.C_side, self.C_in = rest[:NSIDE_C], rest[NSIDE_C:]
    def lab(self, p):
        self.nlab += 1
        return 'M_%s_%d' % (p, self.nlab)
    def slot_of(self, b):
        if b >= D0 and self.o.get('ring8', 1):
            return {25: 6, 26: 7, 27: 1, 28: 2, 29: 3, 30: 4, 31: 5, 32: 0, 33: 6, 34: 7, 35: 1, 36: 2}[b]
        return b % 6
    def blk_src(self, b):
        if b < B0: return sWA, (b - A0) * BLK
        if b < C0: return sWB, (b - B0) * BLK
        if b < D0: return sWC, (b - C0) * BLK
        return sWD, (b - D0) * BLK
    def dma_ops(self, b, tag=None):
        nb = b % NBLK if b >= NBLK else b
        base, off = self.blk_src(nb)
        slot = self.slot_of(nb)
        tag = tag or 'blk%d' % nb
        g = []
        first = ['s_add_u32 m0, s%d, %d' % (sW5K, slot * BLK), 's_add_u32 s%d, s%d, %d' % (sDM, base, off),
                 ('buffer_load_dwordx4 v%d, s[4:7], s%d offen lds' % (vL16, sDM), tag)]
        g.append(first)
        for k in range(1, 4):
            g.append([('buffer_load_dwordx4 v%d, s[4:7], s%d offen offset:%d lds' % (vL16, sDM, k * 1024), tag)])
        g.append(['s_add_u32 m0, s%d, %d' % (sW5K, slot * BLK + 4096), 's_add_u32 s%d, s%d, %d' % (sDM, base, off + 4096),
                  ('buffer_load_dwordx4 v%d, s[4:7], s%d offen lds' % (vL16, sDM), tag)])
        return g
    def am_a(self):
        AM = 128; e = self.e
        e('s_lshl_b32 s%d, s%d, 12\ns_add_u32 s%d, s%d, 0x%x' % (sT2, sJ, sT2, sT2, WAM))
        for t in range(4): e('buffer_load_dwordx4 v[%d:%d], v%d, s[4:7], s%d offen offset:%d' % (AM + 4 * t, AM + 4 * t + 3, vL16, sT2, t * 1024))
    def am_c(self):
        AM = 136; e = self.e
        e('s_mul_i32 s%d, s%d, %d\ns_add_u32 s%d, s%d, 0x%x' % (sT4, sJ, 12 * KB, sT4, sT4, WCM))
        for t in range(4): e('buffer_load_dwordx4 v[%d:%d], v%d, s[4:7], s%d offen offset:%d' % (AM + 4 * t, AM + 4 * t + 3, vL16, sT4, t * 1024))
    def side_dma(self, blocks):
        e = self.e
        L = self.lab('side')
        e('s_cmp_eq_u32 s%d, 0' % sW); e('s_cbranch_scc1 %s' % L)
        for b in blocks:
            base, off = self.blk_src(b); slot = self.slot_of(b); tag = 'blk%d' % b
            ld = 'buffer_load_dwordx4 v%d, s[4:7], s%d offen%%s lds' % (vL16, sDM)
            e('s_add_u32 m0, s%d, %d' % (sW5K, slot * BLK)); e('s_add_u32 s%d, s%d, %d' % (sDM, base, off))
            for k in range(4): e.side(ld % (' offset:%d' % (k * 1024) if k else ''), tag)
            e('s_add_u32 m0, s%d, %d' % (sW5K, slot * BLK + 4096)); e('s_add_u32 s%d, s%d, %d' % (sDM, base, off + 4096))
            e.side(ld % '', tag)
            e('s_add_u32 m0, s%d, %d' % (sEX, slot * BLK)); e('s_add_u32 s%d, s%d, %d' % (sDM, base, off))
            e('s_add_u32 s%d, s%d, s%d' % (sDM, sDM, sEXD))
            e.side(ld % '', tag); e.side(ld % ' offset:1024', tag)
        e.label(L)
    def dma_items(self, b, earliest):
        out = []
        for g in self.dma_ops(b):
            for x in g: out.append((x, earliest))
        return out
    def touch(self, base_expr, nlines_wave, ninstr=1, sc=''):
        L = list(base_expr)
        L.append('s_mul_i32 s%d, s%d, %d' % (sTB, sW, nlines_wave * ninstr * 128))
        L.append('s_add_u32 s%d, s%d, s%d' % (sTA, sTA, sTB))
        if nlines_wave < 64:
            L.append('v_mov_b32 v%d, 0x%x' % (vT0, OOB))
            L.append('v_cmp_gt_u32 vcc, %d, v%d' % (nlines_wave, vLANE))
            L.append('v_cndmask_b32 v%d, v%d, v%d, vcc' % (vT0, vT0, vL128))
            va = vT0
        else: va = vL128
        for k in range(ninstr):
            if k: L.append('s_add_u32 s%d, s%d, %d' % (sTA, sTA, nlines_wave * 128))
            I = parse('buffer_load_dword v%d, v%d, s[4:7], s%d offen%s' % (vTCH, va, sTA, sc)); I.wr = set()
            L.append(I)
        return L
    def touch_w(self, which):
        if which == 'A':
            pre = ['s_lshr_b32 s%d, s%d, 2' % (sTA, sRB), 's_mul_i32 s%d, s%d, %d' % (sTA, sTA, 40 * KB), 's_add_u32 s%d, s%d, s%d' % (sTA, sTA, sWA), 's_sub_u32 s%d, s%d, s%d' % (sTA, sTA, sW5K)]
            return self.touch(pre, 40, 2)
        if which == 'C':
            pre = ['s_lshr_b32 s%d, s%d, 2' % (sTA, sRB), 's_mul_i32 s%d, s%d, %d' % (sTA, sTA, 60 * KB), 's_add_u32 s%d, s%d, s%d' % (sTA, sTA, sWC), 's_sub_u32 s%d, s%d, s%d' % (sTA, sTA, sW5K)]
            return self.touch(pre, 60, 2)
        idx = ['s_lshr_b32 s%d, s%d, 2' % (sTA, sRB), 's_lshl_b32 s%d, s%d, 1' % (sTA, sTA), 's_add_u32 s%d, s%d, s%d' % (sTA, sTA, sTH)]
        if which == 'B':
            return self.touch(idx + ['s_mul_i32 s%d, s%d, 12800' % (sTA, sTA), 's_add_u32 s%d, s%d, s%d' % (sTA, sTA, sWB), 's_sub_u32 s%d, s%d, s%d' % (sTA, sTA, sW5K)], 25, 1)
        if which == 'D':
            return self.touch(idx + ['s_mul_i32 s%d, s%d, 30720' % (sTA, sTA), 's_add_u32 s%d, s%d, s%d' % (sTA, sTA, sWD), 's_sub_u32 s%d, s%d, s%d' % (sTA, sTA, sW5K)], 60, 1)
    def touch_tok(self, base_off):
        pre = ['s_mul_i32 s%d, s%d, %d' % (sTA, sRB, 160 * KB), 's_lshr_b32 s%d, s%d, 1' % (sTB, sJ), 's_mul_i32 s%d, s%d, %d' % (sTB, sTB, 20 * KB),
               's_add_u32 s%d, s%d, s%d' % (sTA, sTA, sTB), 's_add_u32 s%d, s%d, s%d' % (sTA, sTA, sLOFF), 's_add_u32 s%d, s%d, 0x%x' % (sTA, sTA, base_off)]
        return self.touch(pre, 40, 1, ' sc1')
    def freed_by(self, c):
        if c <= NBLK - 7: return c + 6
        if c < NBLK - 1: return NBLK + (c - (NBLK - 7))
        return NBLK + 0
    def ring_read(self, dst, blk, off, kh=False):
        slot = self.slot_of(blk)
        base = (vK0 if kh else vL16) if slot < 3 else ((vK1 if kh else vL16B) if slot < 6 else vK2)
        assert slot < 6 or kh
        return 'ds_read_b128 v[%d:%d], v%d offset:%d' % (dst, dst + 3, base, (slot % 3) * BLK + off)
    def emit_next_layer_dma(self, b):
        e = self.e
        L = self.lab('nl')
        e('s_cmp_lg_u32 s%d, 0' % sL); e('s_cbranch_scc1 %s' % L)
        for g in self.dma_ops(b):
            for x in g:
                if isinstance(x, tuple): e(x[0], count=False)
                else: e(x)
        e.label(L)
    def signal(self, cnt_off_sgpr, ack=()):
        e = self.e
        if ack:
            e.vm_marker('pub')
            for b in ack:
                for g in self.dma_ops(b): e.extend(g)
            e.wait_tag('pub'); e.wait_lgkm0()
        else:
            e.wait_all()
        e('s_barrier')
        self.signal_only(cnt_off_sgpr)
    def signal_only(self, cnt_off_sgpr):
        e = self.e
        L = self.lab('sig')
        e('s_cmp_lg_u32 s%d, 0' % sW); e('s_cbranch_scc1 %s' % L)
        e('s_mov_b64 exec, 1')
        e('buffer_atomic_add v%d, v%d, s[4:7], s%d offen sc1' % (vONE, vZERO, cnt_off_sgpr), count=False)
        e('s_mov_b64 exec, -1')
        e.label(L)
    def poll(self, cnt_off_sgpr, n=1, target=16, srd=4, stride=128):
        e = self.e
        L = self.lab('poll'); X = self.lab('got')
        e('s_cmp_lg_u32 s%d, 0' % sW); e('s_cbranch_scc1 %s' % X)
        e('s_cmp_lg_u32 s%d, 0' % sDEAD); e('s_cbranch_scc1 %s' % X)
        e('s_mov_b32 s%d, 0' % sPC)
        if n > 1:
            e('v_min_u32 v%d, %d, v%d' % (vT0, n - 1, vLANE)); e('v_mul_u32_u24 v%d, %d, v%d' % (vT0, stride, vT0))
        e.label(L)
        e('buffer_load_dword v%d, v%d, s[%d:%d], s%d offen sc1' % (vPOLL, vT0 if n > 1 else vZERO, srd, srd + 3, cnt_off_sgpr), count=False)
        e('s_waitcnt vmcnt(0)', count=False)
        e('v_cmp_gt_u32 vcc, %d, v%d' % (target, vPOLL))
        e('s_cbranch_vccz %s' % X)
        if self.o.get('psleep'): e('s_sleep %d' % self.o['psleep'])
        e('s_add_u32 s%d, s%d, 1' % (sPC, sPC)); e('s_cmp_lt_u32 s%d, %d' % (sPC, SPIN_LIMIT))
        e('s_cbranch_scc1 %s' % L)
        e('s_mov_b32 s%d, 1' % sDEAD)
        e.label(X)
    def cnt(self, dst, which, idx_sgpr, mul=128, add=0, next_layer=False):
        e = self.e
        e('s_mul_i32 s%d, s%d, %d' % (dst, idx_sgpr, mul))
        e('s_add_u32 s%d, s%d, s%d' % (dst, dst, sCNT))
        e('s_add_u32 s%d, s%d, 0x%x' % (dst, dst, which + add + (CSTRIDE if next_layer else 0)))
    def prologue(self):
        if self.o.get('merged', 0): return self.prologue_merged()
        e = self.e
        e.directive('.text\n.globl %s\n.p2align 8\n.type %s,@function' % (self.name, self.name))
        e.label(self.name)
        e('s_cmp_ge_u32 s2, 256'); e('s_cbranch_scc1 M_END')
        e('s_load_dwordx2 s[32:33], s[0:1], 0')
        e('s_load_dwordx2 s[34:35], s[0:1], 64')
        e('s_load_dwordx2 s[36:37], s[0:1], 80')
        if self.o.get('jitter'):
            e('s_load_dwordx2 s[60:61], s[0:1], 72\ns_waitcnt lgkmcnt(0)\ns_load_dword s63, s[60:61], 0\ns_waitcnt lgkmcnt(0)')
        self.entry_stamp()
        self.pro_scalars()
        if not self.o.get('lanelate', 1): self.pro_lanes()
        e('s_waitcnt lgkmcnt(0)')
        self.mk_srd(4, 36, WS_BYTES)
        self.pro_tail(32, 34)
    def prologue_merged(self):
        import gen_prep as P
        e = self.e
        e.directive('.text\n.globl %s\n.p2align 8\n.type %s,@function' % (self.name, self.name))
        e.label(self.name)
        e('s_cmp_ge_u32 s2, 256'); e('s_cbranch_scc1 M_END')
        e('s_load_dwordx8 s[64:71], s[0:1], 0')
        e('s_load_dwordx4 s[72:75], s[0:1], 40')
        e('s_load_dwordx2 s[76:77], s[0:1], 56')
        e('s_load_dwordx2 s[78:79], s[0:1], 64')
        e('s_load_dwordx4 s[80:83], s[0:1], 72')
        self.entry_stamp()
        self.pro_scalars()
        e('s_waitcnt lgkmcnt(0)')
        self.mk_srd(4, 82, WS_BYTES)
        e('s_add_u32 s0, s2, 352\ns_sub_u32 s26, s2, 64\ns_cmp_ge_u32 s2, 160\ns_cselect_b32 s0, s26, s0\ns_cmp_lt_u32 s2, 96\ns_cselect_b32 s0, s2, s0')
        e('s_add_u32 s1, s2, 192')
        Lz = self.lab('nz')
        e('s_cmp_ge_u32 s2, 16'); e('s_cbranch_scc1 %s' % Lz)
        e('s_cmp_lg_u32 s%d, 0' % sW); e('s_cbranch_scc1 %s' % Lz)
        for k in range(4): e('v_mov_b32 v%d, 0' % (120 + k))
        e('s_lshl_b32 s26, s2, 11')
        e('buffer_store_dwordx4 v[120:123], v%d, s[4:7], s26 offen sc1' % vL16, count=False)
        e('buffer_store_dwordx4 v[120:123], v%d, s[4:7], s26 offen offset:1024 sc1' % vL16, count=False)
        e.label(Lz)
        r1 = P.Ren(e, 1, 0); r2 = P.Ren(e, 2, 1)
        L1, L2 = 0, 32768
        def dispatch(cases, sreg, tagp):
            end = self.lab(tagp)
            labs = [self.lab(tagp) for _ in cases]
            for (ub, _), lb in list(zip(cases, labs))[:-1]:
                e('s_cmp_lt_u32 s%d, %d' % (sreg, ub)); e('s_cbranch_scc1 %s' % lb)
            e('s_branch %s' % labs[-1])
            for (ub, fn), lb in zip(cases, labs):
                e.label(lb); e.reset_state(); fn()
                e.wait_lgkm0()
                e('s_branch %s' % end)
            e.label(end); e.reset_state()
        dispatch([(96, lambda: P.wa_issue(r1)), (288, lambda: P.wc_issue(r1, L1)), (None, lambda: P.x_issue(r1))], 0, 'i1')
        dispatch([(288, lambda: P.wc_issue(r2, L2)), (416, lambda: P.wd_issue(r2, L2)), (None, lambda: P.wb_issue(r2, L2))], 1, 'i2')
        if self.o.get('codepf', 1):
            Lp = self.lab('npf')
            e('s_cmp_ge_u32 s2, 64'); e('s_cbranch_scc1 %s' % Lp)
            e('s_getpc_b64 s[84:85]')
            e.label('M_PC')
            e('s_add_u32 s84, s84, (M_LAYER-M_PC)\ns_addc_u32 s85, s85, 0')
            e('v_lshlrev_b32 v124, 7, v0\nv_mov_b32 v125, (M_CODE_END-M_LAYER-4)\nv_add_u32 v126, 0x8000, v124')
            e('v_min_u32 v124, v124, v125\nv_min_u32 v126, v126, v125\nv_and_b32 v124, -4, v124\nv_and_b32 v126, -4, v126')
            e('global_load_dword v127, v124, s[84:85]', count=False)
            e('global_load_dword v127, v126, s[84:85]', count=False)
            e.label(Lp)
        self.mk_srd(84, 80, 256)
        Lf = self.lab('nf'); Lv = self.lab('nfv'); Lw = self.lab('nfw')
        e('s_cmp_ge_u32 s2, 16'); e('s_cbranch_scc1 %s' % Lf)
        e('s_cmp_lg_u32 s%d, 0' % sW); e('s_cbranch_scc1 %s' % Lf)
        npf = 2 if self.o.get('codepf', 1) else 0
        e('s_cmp_eq_u32 s31, 1'); e('s_cbranch_scc1 %s' % Lv)
        e('s_waitcnt vmcnt(%d)' % (22 + 5 + npf), count=False); e('s_branch %s' % Lw)
        e.label(Lv)
        e('s_waitcnt vmcnt(%d)' % (10 + 5 + npf), count=False)
        e.label(Lw)
        e('s_lshl_b32 s62, s2, 2\ns_mov_b64 exec, 1')
        e('buffer_store_dword v%d, v%d, s[84:87], s62 offen sc1' % (vONE, vZERO), count=False)
        e('s_mov_b64 exec, -1')
        self.stamp(27)
        e.label(Lf)
        e('s_waitcnt vmcnt(4)', count=False)
        self.stamp(19)
        dispatch([(96, lambda: P.wa_process(r1)), (288, lambda: P.wc_process(r1, L1)), (None, lambda: P.x_process(r1))], 0, 'p1')
        self.stamp(20)
        Lq = self.lab('zq')
        e('s_cmp_lg_u32 s%d, 0' % sW); e('s_cbranch_scc1 %s' % Lq)
        e('v_min_u32 v126, 15, v%d\nv_lshlrev_b32 v126, 2, v126' % vLANE)
        e('buffer_load_dword v%d, v126, s[84:87], 0 offen sc1' % vPOLL, count=False)
        e.label(Lq)
        e('s_waitcnt vmcnt(0) lgkmcnt(0)', count=False)
        e('s_barrier')
        self.stamp(26)
        def arrive(off, below=None):
            La = self.lab('arr')
            e('s_cmp_lg_u32 s%d, 0' % sW); e('s_cbranch_scc1 %s' % La)
            if below is not None:
                e('s_cmp_ge_u32 s2, %d' % below); e('s_cbranch_scc1 %s' % La)
            e('s_and_b32 s62, s2, 15\ns_lshl_b32 s62, s62, 7\ns_add_u32 s62, s62, 0x%x\ns_mov_b64 exec, 1' % off)
            e('buffer_atomic_add v%d, v%d, s[4:7], s62 offen sc1' % (vONE, vZERO), count=False)
            e('s_mov_b64 exec, -1')
            e.label(La)
        Lc = self.lab('zc'); Ls = self.lab('zcs')
        e('s_cmp_lg_u32 s%d, 0' % sW); e('s_cbranch_scc1 %s' % Lc)
        e('s_mov_b32 s%d, 0' % sPC)
        e.label(Ls)
        e('v_cmp_gt_u32 vcc, 1, v%d' % vPOLL)
        e('s_cbranch_vccz %s' % Lc)
        if self.o.get('zsleep'): e('s_sleep %d' % self.o['zsleep'])
        e('buffer_load_dword v%d, v126, s[84:87], 0 offen sc1' % vPOLL, count=False)
        e('s_waitcnt vmcnt(0)', count=False)
        e('s_add_u32 s%d, s%d, 1' % (sPC, sPC)); e('s_cmp_lt_u32 s%d, %d' % (sPC, SPIN_LIMIT)); e('s_cbranch_scc1 %s' % Ls)
        e('s_mov_b32 s%d, 1' % sDEAD)
        e.label(Lc)
        arrive(CNT_CRIT, 160)
        self.stamp(21)
        dispatch([(288, lambda: P.wc_process(r2, L2)), (416, lambda: P.wd_process(r2, L2)), (None, lambda: P.wb_process(r2, L2))], 1, 'p2')
        self.stamp(22)
        e('s_waitcnt vmcnt(0) lgkmcnt(0)', count=False)
        e('s_barrier')
        arrive(CNT_REST)
        self.stamp(25)
        self.pro_lanes()
        e('s_mov_b32 s%d, 0x%x' % (sT0, CNT_CRIT))
        self.stamp(23)
        self.poll(sT0, n=16, target=10)
        e('s_barrier')
        self.stamp(24)
        self.pro_tail(64, 78)
    def entry_stamp(self):
        if self.o.get('stamps'):
            self.e(('s_memtime' if self.o.get('cyc') else 's_memrealtime') + ' s[60:61]\ns_waitcnt lgkmcnt(0)\nv_mov_b32 v223, s60')
    def mk_srd(self, d, lo, n):
        self.e('s_mov_b32 s%d, s%d\ns_mov_b32 s%d, s%d\ns_mov_b32 s%d, 0x%x\ns_mov_b32 s%d, 0x20000' % (d, lo, d + 1, lo + 1, d + 2, n, d + 3))
    def pro_scalars(self):
        e = self.e
        e('v_lshrrev_b32 v10, 6, v0'); e('v_and_b32 v%d, 63, v0' % vLANE)
        e('v_readfirstlane_b32 s%d, v10' % sW)
        e('v_lshlrev_b32 v%d, 4, v%d' % (vL16, vLANE))
        mp = self.o.get('map', 0)
        if mp == 0:
            e('s_and_b32 s%d, s2, 3\ns_lshr_b32 s26, s2, 6\ns_lshl_b32 s26, s26, 2\ns_or_b32 s%d, s%d, s26' % (sRB, sRB, sRB))
            e('s_lshr_b32 s%d, s2, 2\ns_and_b32 s%d, s%d, 15' % (sJ, sJ, sJ))
        elif mp == 1:
            e('s_and_b32 s%d, s2, 15\ns_lshr_b32 s%d, s2, 4' % (sRB, sJ))
        elif mp == 2:
            e('s_and_b32 s%d, s2, 1\ns_lshr_b32 s26, s2, 5\ns_lshl_b32 s26, s26, 1\ns_or_b32 s%d, s%d, s26' % (sRB, sRB, sRB))
            e('s_lshr_b32 s%d, s2, 1\ns_and_b32 s%d, s%d, 15' % (sJ, sJ, sJ))
        if self.o.get('thmap', 1):
            e('s_lshr_b32 s%d, s%d, 1\ns_and_b32 s%d, s%d, 1' % (sCS, sJ, sTH, sJ))
        else:
            e('s_and_b32 s%d, s%d, 7\ns_lshr_b32 s%d, s%d, 3' % (sCS, sJ, sTH, sJ))
        e('s_mul_i32 s%d, s%d, 5120' % (sW5K, sW))
        e('s_lshr_b32 s%d, s%d, 1' % (sKH, sW))
        for (s, idx, stride, base) in ((sWA, sJ, 160 * KB, WA), (sWB, sCS, 100 * KB, WB), (sWC, sJ, 240 * KB, WC), (sWD, sCS, 240 * KB, WD)):
            if self.o.get('wsame'): stride = 0
            e('s_mul_i32 s%d, s%d, %d\ns_add_u32 s%d, s%d, s%d\ns_add_u32 s%d, s%d, 0x%x' % (s, idx, stride, s, s, sW5K, s, s, base))
        e('s_lshl_b32 s%d, s%d, 3\ns_lshl_b32 s26, s%d, 2\ns_add_u32 s%d, s%d, s26' % (sTTK, sRB, sTH, sTTK, sTTK))
        e('s_and_b32 s26, s%d, 1\ns_lshl_b32 s26, s26, 1\ns_add_u32 s%d, s%d, s26\ns_add_u32 s%d, s%d, s%d' % (sW, sTTK, sTTK, sTTK, sTTK, sKH))
        e('s_xor_b32 s%d, s%d, 1' % (sTTS, sTTK))
        e('s_mov_b32 s%d, 0\ns_mov_b32 s%d, 0\ns_mov_b32 s%d, 0x%x' % (sDEAD, sL, sLOFF, LBASE))
        e('s_mov_b32 s%d, 0x%x\ns_mov_b32 s%d, 1' % (sCNT, CNT0, sFIRST))
        e('s_sub_u32 s%d, s%d, 1\ns_lshl_b32 s%d, s%d, 11\ns_sub_u32 s%d, s%d, s%d' % (sEX, sW, sEX, sEX, sEXD, sEX, sW5K))
        e('v_mov_b32 v%d, 0x3f803f80\nv_mov_b32 v%d, 0\nv_mov_b32 v%d, 1' % (vONES, vZERO, vONE))
    def pro_lanes(self):
        e = self.e
        e('v_add_u32 v%d, %d, v%d' % (vL16B, 3 * BLK, vL16))
        e('v_lshlrev_b32 v%d, 7, v%d' % (vL128, vLANE))
        e('s_mul_i32 s26, s%d, 5120\nv_add_u32 v%d, s26, v%d\nv_add_u32 v%d, %d, v%d' % (sKH, vK0, vL16, vK1, 3 * BLK, vK0))
        e('v_add_u32 v%d, %d, v%d' % (vK2, 6 * BLK, vK0))
        t32, hi, t16, q = 100, 101, 102, 103
        e('v_and_b32 v%d, 31, v%d\nv_lshrrev_b32 v%d, 5, v%d' % (t32, vLANE, hi, vLANE))
        e('v_and_b32 v%d, 15, v%d\nv_lshrrev_b32 v%d, 4, v%d' % (t16, vLANE, q, vLANE))
        e('v_mov_b32 v104, 0x%x' % OOB)
        e('v_lshlrev_b32 v%d, 3, v%d\nv_lshl_add_u32 v%d, v%d, 16, v%d' % (vSA, t32, vSA, hi, vSA))
        e('s_lshl_b32 s26, s%d, 5\nv_add_u32 v105, s26, v%d\nv_mul_u32_u24 v105, 144, v105' % (sW, t32))
        e('v_mul_u32_u24 v106, 18432, v%d\nv_add_u32 v105, v105, v106\nv_add_u32 v%d, 0x%x, v105' % (hi, vTW, SCR))
        e('v_lshrrev_b32 v105, 1, v%d\nv_bfe_u32 v106, v%d, 2, 2\nv_lshl_add_u32 v105, v105, 3, v106\nv_mul_u32_u24 v105, 144, v105' % (q, vLANE))
        e('v_and_b32 v106, 1, v%d\nv_lshlrev_b32 v106, 5, v106\nv_and_b32 v107, 3, v%d\nv_lshl_add_u32 v106, v107, 3, v106\nv_add_u32 v105, v105, v106' % (q, vLANE))
        e('s_lshr_b32 s26, s%d, 1\ns_mul_i32 s26, s26, 18432\ns_add_u32 s26, s26, 0x%x' % (sW, SCR))
        e('s_and_b32 s27, s%d, 1\ns_mul_i32 s28, s27, 40\ns_add_u32 s28, s28, s26\ns_add_u32 s29, s26, 80' % sW)
        e('v_add_u32 v%d, s28, v105\nv_add_u32 v%d, s29, v105' % (vKA, vKB))
        e('s_lshl_b32 s26, s%d, 10' % sW)
        e('v_mul_u32_u24 v105, 24, v%d\nv_add_u32 v105, v105, v%d\nv_lshlrev_b32 v105, 4, v105\nv_add_u32 v105, s26, v105' % (hi, t32))
        e('v_cmp_gt_u32 vcc, 24, v%d\nv_cndmask_b32 v%d, v104, v105, vcc' % (t32, vPS1))
        e('v_lshlrev_b32 v105, 3, v%d\nv_add_u32 v105, s26, v105\nv_add_u32 v105, 768, v105' % t32)
        e('v_cmp_eq_u32 vcc, 0, v%d\nv_cndmask_b32 v%d, v104, v105, vcc' % (hi, vPS2))
        e('v_mov_b32 v106, 84\nv_cmp_le_u32 s[30:31], v106, v0\nv_cndmask_b32 v106, 0, 1, s[30:31]')
        e('v_mul_u32_u24 v107, 84, v106\nv_sub_u32 v107, v0, v107')
        e('v_mul_u32_u24 v108, 391, v107\nv_lshrrev_b32 v108, 13, v108')
        e('v_mul_u32_u24 v109, 21, v108\nv_sub_u32 v109, v107, v109')
        e('v_subrev_u32 v110, 168, v0\nv_mul_u32_u24 v111, 391, v110\nv_lshrrev_b32 v111, 13, v111\nv_and_b32 v111, 3, v111')
        e('v_mul_u32_u24 v96, 21, v111\nv_sub_u32 v96, v110, v96')
        e('v_cmp_gt_u32 vcc, 168, v0')
        e('v_lshrrev_b32 v97, 1, v108\nv_lshl_add_u32 v97, v106, 1, v97\nv_lshlrev_b32 v97, 10, v97')
        e('v_and_b32 v98, 1, v108\nv_mul_u32_u24 v98, 24, v98\nv_add_u32 v98, v98, v109\nv_lshl_add_u32 v97, v98, 4, v97')
        e('v_lshlrev_b32 v98, 10, v111\nv_lshl_add_u32 v98, v96, 3, v98\nv_add_u32 v98, 768, v98')
        e('v_cndmask_b32 v97, v98, v97, vcc')
        e('v_mov_b32 v99, 252\nv_cmp_gt_u32 s[30:31], v99, v0\nv_cndmask_b32 v%d, v104, v97, s[30:31]' % vPL)
        e('v_lshrrev_b32 v97, 1, v111\nv_cndmask_b32 v106, v97, v106, vcc')
        e('v_cndmask_b32 v108, 4, v108, vcc\nv_cndmask_b32 v109, v96, v109, vcc')
        e('v_lshrrev_b32 v110, 4, v109\nv_mul_u32_u24 v110, 5, v110\nv_add_u32 v110, v110, v108')
        e('v_and_b32 v109, 15, v109\nv_lshrrev_b32 v97, 2, v109\nv_lshlrev_b32 v97, 3, v97\nv_and_b32 v109, 3, v109\nv_add_u32 v97, v97, v109')
        e('v_mul_u32_u24 v109, 36, v106\nv_add_u32 v97, v97, v109')
        e('v_lshlrev_b32 v97, 4, v97\nv_lshl_add_u32 v97, v110, 10, v97\nv_add_u32 v97, 0x%x, v97' % SCR)
        e('v_and_b32 v105, 63, v0\nv_lshlrev_b32 v105, 4, v105\nv_add_u32 v105, 0x%x, v105' % (SCR + 12288))
        e('v_cndmask_b32 v%d, v105, v97, vcc' % vAW)
        e('v_and_b32 v98, 1, v111\nv_lshl_add_u32 v97, v98, 3, v97')
        e('v_cndmask_b32 v97, v97, v105, vcc\nv_cndmask_b32 v%d, v105, v97, s[30:31]' % vAW2)
        e('s_mul_i32 s26, s%d, 5' % sJ)
        e('v_bfe_u32 v105, v%d, 4, 1\nv_mul_u32_u24 v105, 20480, v105\nv_lshl_add_u32 v105, v%d, 4, v105' % (vLANE, t16))
        for (dst, expr) in ((vO0, 0), (vO1, 1), (vO2, None)):
            if expr is not None:
                e('v_lshl_add_u32 v106, v%d, 1, s26\nv_add_u32 v106, %d, v106' % (hi, expr))
            else:
                e('v_mov_b32 v106, s26\nv_add_u32 v106, 4, v106')
            e('v_lshrrev_b32 v107, 2, v106\nv_lshl_add_u32 v107, v107, 10, v105\nv_and_b32 v106, 3, v106\nv_lshl_add_u32 v%d, v106, 8, v107' % dst)
        e('v_lshl_add_u32 v%d, v%d, 3, v%d' % (vO2, hi, vO2))
        e('s_mul_i32 s26, s%d, 10' % sCS)
        e('s_and_b32 s27, s%d, 1\ns_lshl_b32 s27, s27, 8' % sTTK)
        e('v_lshlrev_b32 v105, 4, v%d' % t16)
        for n, (dx, dy) in enumerate(((vX0, vY0), (vX1, vY1), (vX2, vY2))):
            if n < 2: e('v_add_u32 v106, s26, v%d\nv_add_u32 v106, %d, v106' % (q, 4 * n))
            else: e('v_lshrrev_b32 v106, 1, v%d\nv_add_u32 v106, s26, v106\nv_add_u32 v106, 8, v106' % q)
            e('v_lshrrev_b32 v107, 2, v106\nv_lshl_add_u32 v107, v107, 10, v105\nv_and_b32 v108, 3, v106\nv_lshl_add_u32 v%d, v108, 8, v107' % dx)
            e('v_lshrrev_b32 v107, 1, v106\nv_lshl_add_u32 v107, v107, 10, v105\nv_and_b32 v108, 1, v106\nv_lshl_add_u32 v107, v108, 9, v107\nv_add_u32 v%d, s27, v107' % dy)
        e('v_and_b32 v106, 1, v%d\nv_lshl_add_u32 v%d, v106, 3, v%d\nv_lshl_add_u32 v%d, v106, 3, v%d' % (q, vX2, vX2, vY2, vY2))
        e('v_mul_u32_u24 v105, 1280, v%d\nv_lshl_add_u32 v%d, v%d, 4, v105\nv_lshl_add_u32 v%d, v%d, 3, v105\nv_add_u32 v%d, 128, v%d' % (t16, vR0, q, vR2, q, vR2, vR2))
        e('v_lshlrev_b32 v105, 3, v%d\nv_cmp_eq_u32 vcc, 0, v%d\nv_cndmask_b32 v%d, v104, v105, vcc\nv_lshl_add_u32 v%d, v%d, 15, v105' % (t16, q, vST, vSC, q))
        e('s_add_u32 s26, s%d, 0x%x\nv_add_u32 v%d, s26, v%d' % (sW5K, SCR, vEXW, vL16))
        e('s_xor_b32 s27, s%d, 2\ns_mul_i32 s27, s27, 5120\ns_add_u32 s27, s27, 0x%x\nv_add_u32 v%d, s27, v%d' % (sW, SCR, vEXR, vL16))
    def pro_tail(self, xlo, olo):
        e = self.e
        self.mk_srd(8, xlo, T * 1280); self.mk_srd(12, olo, T * 1280)
        if self.o.get('ampre_a', 0): self.am_a()
        for b in self.A_ack:
            for g in self.dma_ops(b): e.extend(g)
        self.side_dma(self.A_side[:1])
        for b in self.A_tail:
            for g in self.dma_ops(b):
                for x in g:
                    if isinstance(x, tuple): e(x[0], count=False)
                    else: e(x)
        self.side_dma(self.A_side[1:])
        if self.o.get('codepf2') and not self.o.get('merged', 0):
            Lp = self.lab('npf2')
            e('s_cmp_ge_u32 s2, %d' % self.o['codepf2']); e('s_cbranch_scc1 %s' % Lp)
            e('s_getpc_b64 s[60:61]')
            e.label('M_PC2')
            e('s_add_u32 s60, s60, (M_LAYER-M_PC2)\ns_addc_u32 s61, s61, 0')
            e('v_lshlrev_b32 v124, 7, v0\nv_mov_b32 v125, (M_CODE_END-M_LAYER-4)')
            e('v_min_u32 v124, v124, v125\nv_and_b32 v124, -4, v124')
            e('global_load_dword v127, v124, s[60:61]', count=False)
            e.label(Lp)
        if not self.o.get('xrlate', 1): self.xr_load()
    def xr_load(self):
        e = self.e
        e('s_mul_i32 s29, s%d, 20480\ns_mul_i32 s31, s%d, 160\ns_add_u32 s29, s29, s31' % (sTTK, sCS))
        e('buffer_load_dwordx4 v[%d:%d], v%d, s[8:11], s29 offen' % (XR, XR + 3, vR0), count=False)
        e('buffer_load_dwordx4 v[%d:%d], v%d, s[8:11], s29 offen offset:64' % (XR + 4, XR + 7, vR0), count=False)
        e('buffer_load_dwordx2 v[%d:%d], v%d, s[8:11], s29 offen' % (XR + 8, XR + 9, vR2), count=False)
    def rowstat_finish(self, S, Q, vRS, vVE, BM, tmp):
        L = []
        L.append('v_mul_f32 v%d, %s, v%d' % (S, f32bits(1.0 / 640), S))
        L.append('v_mul_f32 v%d, %s, v%d' % (Q, f32bits(1.0 / 640), Q))
        L.append('v_fma_f32 v%d, -v%d, v%d, v%d' % (Q, S, S, Q))
        L.append('v_max_f32 v%d, 0, v%d' % (Q, Q))
        L.append('v_add_f32 v%d, %s, v%d' % (vVE, f32bits(1e-5), Q))
        L.append('v_rsq_f32 v%d, v%d' % (vRS, vVE))
        L.append('v_cvt_pk_bf16_f32 v%d, -v%d, -v%d' % (tmp, S, S))
        L.append('v_and_b32 v%d, 0xffff0000, v%d' % (tmp, tmp))
        L.append('v_sub_f32 v%d, -v%d, v%d' % (tmp, S, tmp))
        L.append('v_cvt_pk_bf16_f32 v%d, -v%d, v%d' % (BM, S, tmp))
        for k in range(1, 4): L.append('v_mov_b32 v%d, v%d' % (BM + k, BM))
        return L
    def softmax_pair(self, X, vC, EP, EM, t):
        L = []
        mx, mn, ap, am, sp, sm = range(t, t + 6)
        L.append('v_max3_f32 v%d, v%d, v%d, v%d' % (mx, X[0], X[1], X[2]))
        L.append('v_min3_f32 v%d, v%d, v%d, v%d' % (mn, X[0], X[1], X[2]))
        for k in range(3, 19, 2):
            L.append('v_max3_f32 v%d, v%d, v%d, v%d' % (mx, mx, X[k], X[k + 1]))
            L.append('v_min3_f32 v%d, v%d, v%d, v%d' % (mn, mn, X[k], X[k + 1]))
        L.append('v_max_f32 v%d, v%d, v%d' % (mx, mx, X[19]))
        L.append('v_min_f32 v%d, v%d, v%d' % (mn, mn, X[19]))
        L.append('v_mul_f32 v%d, v%d, v%d' % (ap, vC, mx))
        L.append('v_mul_f32 v%d, v%d, v%d' % (am, vC, mn))
        for f in range(20):
            L.append('v_fma_f32 v%d, v%d, v%d, -v%d' % (EP + f, X[f], vC, ap))
            L.append('v_fma_f32 v%d, -v%d, v%d, v%d' % (EM + f, X[f], vC, am))
        for f in range(20):
            L.append('v_exp_f32 v%d, v%d' % (EP + f, EP + f))
            L.append('v_exp_f32 v%d, v%d' % (EM + f, EM + f))
        L.append('v_add_f32 v%d, v%d, v%d' % (sp, EP, EP + 1))
        L.append('v_add_f32 v%d, v%d, v%d' % (sm, EM, EM + 1))
        for f in range(2, 20):
            L.append('v_add_f32 v%d, v%d, v%d' % (sp, sp, EP + f))
            L.append('v_add_f32 v%d, v%d, v%d' % (sm, sm, EM + f))
        L.append('v_rcp_f32 v%d, v%d' % (sp, sp))
        L.append('v_rcp_f32 v%d, v%d' % (sm, sm))
        for f in range(20):
            L.append('v_mul_f32 v%d, v%d, v%d' % (EP + f, EP + f, sp))
            L.append('v_mul_f32 v%d, v%d, v%d' % (EM + f, EM + f, sm))
        return L
    def stamp(self, k):
        if not self.o.get('stamps'): return
        e = self.e
        e('v_mov_b32 v222, s%d' % sL)
        e('v_lshlrev_b32 v222, 5, v222\nv_add_u32 v222, %d, v222' % k)
        e('v_cmp_eq_u32 vcc, v222, v%d' % vLANE)
        e('s_memtime s[58:59]' if self.o.get('cyc') else 's_memrealtime s[58:59]')
        e('s_waitcnt lgkmcnt(0)')
        e('v_mov_b32 v222, s58')
        e('v_cndmask_b32 v223, v223, v222, vcc')
    def jitter(self, k, e=None):
        if not self.o.get('jitter'): return
        e = e or self.e
        L = self.lab('jit'); X = self.lab('jitx')
        e('s_mul_i32 s60, s2, %d' % (2654435761 % (1 << 31)))
        e('s_mul_i32 s61, s%d, 40503\ns_add_u32 s60, s60, s61\ns_add_u32 s60, s60, s63' % sL)
        e('s_mul_i32 s61, s%d, %d\ns_add_u32 s60, s60, s61' % (sW, self.o.get('jitw', 0) * 9973))
        e('s_add_u32 s60, s60, %d\ns_mul_i32 s60, s60, 1103515245\ns_lshr_b32 s61, s60, 13\ns_xor_b32 s60, s60, s61\ns_mul_i32 s60, s60, 1664525' % (k * 7919 + self.o['jitter'] * 104729))
        e('s_lshr_b32 s61, s60, 28\ns_lshr_b32 s60, s60, 20\ns_and_b32 s60, s60, %d' % self.o.get('jitmask', 31))
        e('s_cmp_lt_u32 s61, %d\ns_cselect_b32 s60, s60, 0' % self.o.get('jitp', 2))
        e.label(L)
        e('s_cmp_eq_u32 s60, 0'); e('s_cbranch_scc1 %s' % X)
        e('s_sleep 4'); e('s_sub_u32 s60, s60, 1'); e('s_branch %s' % L)
        e.label(X)
    def jitter_items(self, k):
        if not self.o.get('jitter'): return []
        sub = Main(None, self.o); sub.nlab = self.nlab + 5000 + 10 * k; sub.jitter(k); self.nlab += 1
        return sub.e.items
    def stamp_items(self, k):
        if self.o.get('stamps') != 2: return []
        sub = Main(None, self.o); sub.stamp(k)
        return sub.e.items
    def stamp_flush(self):
        if not self.o.get('stamps'): return
        e = self.e
        e('s_lshl_b32 s62, s2, 2\ns_add_u32 s62, s62, s%d\ns_lshl_b32 s62, s62, 8\ns_add_u32 s62, s62, 0x%x' % (sW, TSOFF))
        e('v_lshlrev_b32 v%d, 2, v%d' % (vT0, vLANE))
        e('buffer_store_dword v223, v%d, s[4:7], s62 offen' % vT0)
    def maybe_stop(self, name):
        if self.stop == name:
            self.e.wait_all(); self.e('s_endpgm'); return True
        return False
    def vm_stream(self, items):
        st = Stream()
        for it in sorted(items, key=lambda x: x[3] if len(x) > 3 else x[0]):
            st.add(it[2], it[1], it[0])
        return st
    def flat(self, groups):
        return [x for g in groups for x in g]
    def phase_a(self):
        e = self.e; o = self.o
        T0, T1, T2, T3 = ACC, ACC + 16, ACC + 32, ACC + 48
        ST, vRS, vVE, vC, BM, AM, EP, EM, P = 112, 120, 121, 122, 124, 128, 144, 164, 184
        self.stamp(0)
        L = self.lab('a_nopoll')
        e('s_cmp_eq_u32 s%d, 0' % sL); e('s_cbranch_scc1 %s' % L)
        self.cnt(sT0, CNT_XA, sRB)
        self.poll(sT0)
        e('s_barrier')
        e.label(L)
        self.stamp(1)
        e('s_lshl_b32 s%d, s%d, 2\ns_add_u32 s%d, s%d, s%d' % (sT0, sRB, sT0, sT0, sW))
        e('s_mul_i32 s%d, s%d, 40960\ns_add_u32 s%d, s%d, s%d\ns_add_u32 s%d, s%d, 0x%x' % (sTW, sT0, sTW, sTW, sLOFF, sTW, sTW, XA))
        def tok(s):
            g = []
            if s % 4 == 0: g.append('s_add_u32 s%d, s%d, %d' % (sB0, sTW, s * 1024))
            g.append('buffer_load_dwordx4 a[%d:%d], v%d, s[4:7], s%d offen offset:%d%s' % (4 * s, 4 * s + 3, vL16, sB0, (s % 4) * 1024, self.sc))
            return g
        NPRE = o.get('a_npre', 12)
        if o.get('tt', 0): e.extend(self.touch_tok(XA))
        for s in range(NPRE): e.extend(tok(s))
        if o.get('lanelate', 1) and not o.get('merged', 0):
            Ll = self.lab('lanes')
            e('s_cmp_eq_u32 s%d, 0' % sFIRST); e('s_cbranch_scc1 %s' % Ll)
            self.pro_lanes()
            e('s_mov_b32 s%d, 0' % sFIRST)
            e.label(Ll)
        e('s_lshl_b32 s%d, s%d, 2\ns_add_u32 s%d, s%d, s%d' % (sT0, sRB, sT0, sT0, sW))
        e('s_lshl_b32 s%d, s%d, 8\ns_add_u32 s%d, s%d, s%d\ns_add_u32 s%d, s%d, 0x%x' % (sT1, sT0, sT1, sT1, sLOFF, sT1, sT1, SA))
        stld = []
        for k in range(4):
            if k: stld.append('s_add_u32 s%d, s%d, 16384' % (sT1, sT1))
            stld.append('buffer_load_dwordx2 v[%d:%d], v%d, s[4:7], s%d offen sc1' % (ST + 2 * k, ST + 2 * k + 1, vSA, sT1))
        e('s_lshl_b32 s%d, s%d, 12\ns_add_u32 s%d, s%d, 0x%x' % (sT2, sJ, sT2, sT2, WAM))
        amload = ['buffer_load_dwordx4 v[%d:%d], v%d, s[4:7], s%d offen offset:%d' % (AM + 4 * t, AM + 4 * t + 3, vL16, sT2, t * 1024) for t in range(4)]
        st = []
        st += ['v_add_f32 v%d, v%d, v%d' % (ST, ST, ST + 2), 'v_add_f32 v%d, v%d, v%d' % (ST + 1, ST + 1, ST + 3),
               'v_add_f32 v%d, v%d, v%d' % (ST + 4, ST + 4, ST + 6), 'v_add_f32 v%d, v%d, v%d' % (ST + 5, ST + 5, ST + 7),
               'v_add_f32 v%d, v%d, v%d' % (ST, ST, ST + 4), 'v_add_f32 v%d, v%d, v%d' % (ST + 1, ST + 1, ST + 5),
               'v_mov_b32 v%d, v%d' % (ST + 2, ST), 'v_mov_b32 v%d, v%d' % (ST + 3, ST + 1),
               'v_permlane32_swap_b32 v%d, v%d' % (ST, ST + 2), 'v_permlane32_swap_b32 v%d, v%d' % (ST + 1, ST + 3),
               'v_add_f32 v%d, v%d, v%d' % (ST, ST, ST + 2), 'v_add_f32 v%d, v%d, v%d' % (ST + 1, ST + 1, ST + 3)]
        st += self.rowstat_finish(ST, ST + 1, vRS, vVE, BM, ST + 2)
        st += ['v_mul_f32 v%d, %s, v%d' % (vC, f32bits(LOG2E), vRS)]
        LA = self.o.get('la', 5)
        def frag_info(n):
            if n < 120: return n // 3, n % 3
            return n - 120, 3
        def read(n): return self.ring_read(AF + 4 * (n % 8), A0 + n // 20, (n % 20) * 1024)
        def mfma(n):
            s, tau = frag_info(n); acc = ACC + 16 * tau; a = AF + 4 * (n % 8)
            c = '0' if s == 0 else 'v[%d:%d]' % (acc, acc + 15)
            return 'v_mfma_f32_32x32x16_bf16 v[%d:%d], v[%d:%d], a[%d:%d], %s' % (acc, acc + 15, a, a + 3, 4 * s, 4 * s + 3, c)
        def mean(tau):
            acc = ACC + 16 * tau
            return 'v_mfma_f32_32x32x16_bf16 v[%d:%d], v[%d:%d], v[%d:%d], v[%d:%d]' % (acc, acc + 15, AM + 4 * tau, AM + 4 * tau + 3, BM, BM + 3, acc, acc + 15)
        ksm = self.softmax_pair([T0 + r for r in range(16)] + [T1 + r for r in range(4)], vC, EP, EM, ST)
        for d in range(10): ksm.append('v_cvt_pk_bf16_f32 v%d, v%d, v%d' % (P + d, EP + 2 * d, EP + 2 * d + 1))
        for d in range(10): ksm.append('v_cvt_pk_bf16_f32 v%d, v%d, v%d' % (P + 10 + d, EM + 2 * d, EM + 2 * d + 1))
        V = [T1 + r for r in range(4, 16)] + [T2 + r for r in range(8)]
        for f in range(20): ksm.append('v_mul_f32 v%d, v%d, v%d' % (V[f], V[f], vRS))
        for d in range(10): ksm.append('v_cvt_pk_bf16_f32 v%d, v%d, v%d' % (P + 20 + d, V[2 * d], V[2 * d + 1]))
        ksm += ['v_mov_b32 v%d, 0x3f80' % (P + 30), 'v_mov_b32 v%d, 0' % (P + 31)]
        anchors = []; pre = {}; fixed = {}; idx = {}
        KF = o.get('kvfirst', 1)
        NF1 = 140 if KF else 160
        for n in range(NF1):
            if n == 120:
                idx['mean'] = len(anchors)
                anchors += [mean(t) for t in range(3)]
            idx[n] = len(anchors)
            anchors.append(mfma(n))
            fixed[idx[n]] = ([read(n + LA)] if n + LA < NF1 else []) + ([Need('v[%d:%d]' % (AF + 4 * ((n + 1) % 8), AF + 4 * ((n + 1) % 8) + 3))] if n + 1 < NF1 else [])
        if not KF: anchors.append(mean(3))
        for ep in range(1, 7 if KF else 8):
            at = idx['mean'] if ep == 6 else idx[20 * ep]
            pre[at] = (self.jitter_items(120 + ep) if ep in (1, 4) else []) + ([W_tag('blk%d' % (A0 + ep + 1))] if ep < 7 else []) + ['s_barrier']
            if self.o.get('fine') == 'a': pre[at] += self.stamp_items(19 + ep - 1)
        items = [(3 * s, 0, tok(s)) for s in range(NPRE, 40)]
        if not o.get('ampre_a', 0): items.append((90, 0, amload))
        if o.get('tw', 0): items.append((30, 0, self.touch_w('B')))
        items.append((o.get('a_stdl', 64), 0, stld))
        for b in self.A_in: items.append((20 * (b - 1), 0, self.flat(self.dma_ops(b))))
        last_in = o.get('a_lastblk', 11)
        for b in range(6, last_in + 1):
            free = 20 * (b - 5) if b - 5 < 6 else idx['mean']
            assert not KF or b <= 11
            items.append((20 * (b - 1) if b < 8 else 200 + b, free, self.flat(self.dma_ops(b))))
        if o.get('merged', 0):
            sub = Main(None, self.o); sub.nlab = self.nlab + 2000; q = sub.e
            Lr = 'M_restld'
            q('s_cmp_lg_u32 s%d, 0' % sL); q('s_cbranch_scc1 %s' % Lr)
            q('v_min_u32 v%d, 15, v%d\nv_lshlrev_b32 v%d, 7, v%d\ns_mov_b32 s%d, 0x%x' % (vT1, vLANE, vT1, vT1, sT3, CNT_REST))
            q('buffer_load_dword v%d, v%d, s[4:7], s%d offen sc1' % (vPOLL, vT1, sT3), count=False)
            q.label(Lr)
            e.extend(q.items)
            sub = Main(None, self.o); sub.nlab = self.nlab + 3000; q = sub.e
            Lk = 'M_restok'; Ll = 'M_restsp'
            q('s_cmp_lg_u32 s%d, 0' % sL); q('s_cbranch_scc1 %s' % Lk)
            q('s_mov_b32 s%d, 0' % sPC)
            q.label(Ll)
            q('v_cmp_gt_u32 vcc, 16, v%d' % vPOLL)
            q('s_cbranch_vccz %s' % Lk)
            q('s_cmp_lg_u32 s%d, 0' % sDEAD); q('s_cbranch_scc1 %s' % Lk)
            q('buffer_load_dword v%d, v%d, s[4:7], s%d offen sc1' % (vPOLL, vT1, sT3), count=False)
            q('s_waitcnt vmcnt(0)', count=False)
            q('s_add_u32 s%d, s%d, 1' % (sPC, sPC)); q('s_cmp_lt_u32 s%d, %d' % (sPC, SPIN_LIMIT)); q('s_cbranch_scc1 %s' % Ll)
            q('s_mov_b32 s%d, 1' % sDEAD)
            q.label(Lk)
            pre[idx[60]] = q.items + pre[idx[60]]
        vs = self.vm_stream(items)
        valu = Stream(st, o.get('a_stv', 90)).add(ksm, idx[120] + 1)
        if o.get('fine') == 'a0': e.extend(self.stamp_items(19))
        e.wait_tag('blk0'); e.wait_tag('blk1')
        if self.A_tail:
            Lw = self.lab('a_l0w')
            e('s_cmp_lg_u32 s%d, 0' % sL); e('s_cbranch_scc1 %s' % Lw)
            e('s_waitcnt vmcnt(0)', count=False)
            e.label(Lw)
        e('s_barrier')
        if o.get('fine') == 'a0':
            e.extend(self.stamp_items(20))
            for k, at in enumerate((1, 3, 6, 9, 12, 15, 18)):
                pre[at] = pre.get(at, []) + self.stamp_items(21 + k)
        for n in range(LA): e(read(n))
        stt = {}
        e.extend(schedule(anchors, 5, pre, fixed, [vs, valu], vm_gap=o.get('a_gap', 1), state=stt))
        if o.get('verbose'): print('a forced', stt.get('forced'), 'left', len(vs.q), len(valu.q))
        e.extend([y[0] for y in vs.q]); e.extend([y[0] for y in valu.q])
        self.a_late = list(range(last_in + 1, 13))
        self.stamp(2)
        self.jitter(1)
        for m in range(8):
            e('ds_write_b128 v%d, v[%d:%d] offset:%d' % (vTW, P + 4 * m, P + 4 * m + 3, 16 * m))
        e.wait_lgkm0()
        e('s_barrier')
        KD = T0
        def kvread(ks):
            b = AF + 8 * (ks % 4)
            return ['ds_read_b64_tr_b16 v[%d:%d], v%d offset:%d' % (b, b + 1, vKA, ks * 2304),
                    'ds_read_b64_tr_b16 v[%d:%d], v%d offset:%d' % (b + 2, b + 3, vKA, ks * 2304 + 576),
                    'ds_read_b64_tr_b16 v[%d:%d], v%d offset:%d' % (b + 4, b + 5, vKB, ks * 2304),
                    'ds_read_b64_tr_b16 v[%d:%d], v%d offset:%d' % (b + 6, b + 7, vKB, ks * 2304 + 576)]
        for ks in range(3): e.extend(kvread(ks))
        for ks in range(8):
            if ks + 3 < 8: e.extend(kvread(ks + 3))
            b = AF + 8 * (ks % 4)
            e('v_mfma_f32_32x32x16_bf16 v[%d:%d], v[%d:%d], v[%d:%d], %s' % (KD, KD + 15, b, b + 3, b + 4, b + 7, '0' if ks == 0 else 'v[%d:%d]' % (KD, KD + 15)))
        PK = EP
        for d in range(6): e('v_cvt_pk_bf16_f32 v%d, v%d, v%d' % (PK + d, KD + 2 * d, KD + 2 * d + 1))
        e('s_lshl_b32 s%d, s%d, 4\ns_add_u32 s%d, s%d, s%d\ns_lshl_b32 s%d, s%d, 12' % (sT0, sJ, sT0, sT0, sRB, sT0, sT0))
        e('s_add_u32 s%d, s%d, s%d\ns_add_u32 s%d, s%d, 0x%x' % (sT0, sT0, sLOFF, sT0, sT0, KVP))
        if o.get('reuse'): e('s_lshl_b32 s%d, s%d, 20\ns_add_u32 s%d, s%d, s%d' % (sT3, sL, sT0, sT0, sT3))
        e('buffer_store_dwordx4 v[%d:%d], v%d, s[4:7], s%d offen sc1' % (PK, PK + 3, vPS1, sT0))
        e('buffer_store_dwordx2 v[%d:%d], v%d, s[4:7], s%d offen sc1' % (PK + 4, PK + 5, vPS2, sT0))
        self.cnt(sT1, CNT_KV, sJ)
        kack = self.a_late if o.get('k_ack', 1) else []
        self.signal(sT1, kack)
        self.stamp(3)
        if o.get('tw', 0): e.extend(self.touch_w('C'))
        if not kack: self.side_dma(self.a_late)
        if o.get('xrlate', 1):
            Lx = self.lab('xr')
            e('s_cmp_lg_u32 s%d, 0' % sL); e('s_cbranch_scc1 %s' % Lx)
            self.xr_load()
            e.label(Lx)
        ZR = EM
        zf = ['v_mov_b32 v%d, 0' % (ZR + r) for r in range(4)]
        zf += ['v_lshlrev_b32 v%d, 4, v0' % vT1, 'v_add_u32 v%d, 0x%x, v%d' % (vT1, SCR, vT1)]
        zf += ['ds_write_b128 v%d, v[%d:%d] offset:%d' % (vT1, ZR, ZR + 3, m * 4096) for m in range(3)]
        if KF:
            an2 = []; fx2 = {}
            for n in range(NF1, NF1 + LA): e(read(n))
            for n in range(NF1, 160):
                fx2[len(an2)] = ([read(n + LA)] if n + LA < 160 else []) + ([Need('v[%d:%d]' % (AF + 4 * ((n + 1) % 8), AF + 4 * ((n + 1) % 8) + 3))] if n + 1 < 160 else [])
                an2.append(mfma(n))
            an2.append(mean(3))
            z = Stream(zf)
            e.extend(schedule(an2, 5, {}, fx2, [z]))
            e.extend([y[0] for y in z.q])
        else:
            e.extend(zf)
        Q = P
        X = [T2 + r for r in range(8, 16)] + [T3 + r for r in range(12)]
        e.extend(self.softmax_pair(X, vC, EP, EM, ST))
        order = []
        for sign in (EP, EM):
            order += [(sign + 0), (sign + 2), (sign + 8), (sign + 10), (sign + 4), (sign + 6), (sign + 12), (sign + 14)]
        order += [EP + 16, EP + 18, EM + 16, EM + 18]
        for d, r in enumerate(order): e('v_cvt_pk_bf16_f32 v%d, v%d, v%d' % (Q + d, r, r + 1))
        e.wait_lgkm0()
        self.stamp(4)
        self.poll(sT1)
        e('s_barrier')
        self.stamp(5)
        if self.maybe_stop('a1'): return True
        LD, SUM, PKK = 112, 176, 204
        e('s_lshl_b32 s%d, s%d, 16\ns_add_u32 s%d, s%d, s%d\ns_add_u32 s%d, s%d, 0x%x' % (sT0, sJ, sT0, sT0, sLOFF, sT0, sT0, KVP))
        if o.get('reuse'): e('s_lshl_b32 s%d, s%d, 20\ns_add_u32 s%d, s%d, s%d' % (sT3, sL, sT0, sT0, sT3))
        for p in range(16):
            if p: e('s_add_u32 s%d, s%d, 4096' % (sT0, sT0))
            e('buffer_load_dwordx4 v[%d:%d], v%d, s[4:7], s%d offen sc1' % (LD + 4 * p, LD + 4 * p + 3, vPL, sT0))
        e('v_mov_b32 v%d, 0x00003f80\nv_mov_b32 v%d, 0x3f800000' % (vT2, vT3))
        for k in range(8): e('v_mov_b32 v%d, 0' % (SUM + k))
        for p in range(16):
            for d in range(4):
                e('v_dot2c_f32_bf16 v%d, v%d, v%d' % (SUM + 2 * d, LD + 4 * p + d, vT2))
                e('v_dot2c_f32_bf16 v%d, v%d, v%d' % (SUM + 2 * d + 1, LD + 4 * p + d, vT3))
        for d in range(4): e('v_cvt_pk_bf16_f32 v%d, v%d, v%d' % (PKK + d, SUM + 2 * d, SUM + 2 * d + 1))
        e('ds_write_b128 v%d, v[%d:%d]' % (vAW, PKK, PKK + 3))
        e('ds_write_b64 v%d, v[%d:%d]' % (vAW2, PKK, PKK + 1))
        e.wait_lgkm0()
        e('s_barrier')
        e('v_add_u32 v%d, 0x%x, v%d' % (vT1, SCR, vL16))
        for n in range(8): e('ds_read_b128 v[%d:%d], v%d offset:%d' % (AF + 4 * n, AF + 4 * n + 3, vT1, n * 1024))
        G0, G1 = T0, T1
        for n in range(10):
            rho, s = n // 5, n % 5
            acc = G0 if rho == 0 else G1
            a = AF + 4 * (n % 8)
            e('v_mfma_f32_32x32x16_bf16 v[%d:%d], v[%d:%d], v[%d:%d], %s' % (acc, acc + 15, a, a + 3, Q + 4 * s, Q + 4 * s + 3, '0' if s == 0 else 'v[%d:%d]' % (acc, acc + 15)))
            if n < 2: e('ds_read_b128 v[%d:%d], v%d offset:%d' % (a, a + 3, vT1, (n + 8) * 1024))
        self.jitter(2)
        e('v_add_f32 v%d, %s, v%d' % (vT2, f32bits(1e-6), G1 + 4))
        e('v_rcp_f32 v%d, v%d' % (vT2, vT2))
        OP = 208
        src = [G0 + r for r in range(16)] + [G1 + r for r in range(4)]
        for r in src: e('v_mul_f32 v%d, v%d, v%d' % (r, r, vT2))
        for d in range(10): e('v_cvt_pk_bf16_f32 v%d, v%d, v%d' % (OP + d, src[2 * d], src[2 * d + 1]))
        e('s_lshl_b32 s%d, s%d, 3\ns_lshl_b32 s%d, s%d, 1\ns_add_u32 s%d, s%d, s%d\ns_mul_i32 s%d, s%d, 20480' % (sT0, sRB, sT1, sW, sT0, sT0, sT1, sT0, sT0))
        e('s_add_u32 s%d, s%d, s%d\ns_add_u32 s%d, s%d, 0x%x' % (sT0, sT0, sLOFF, sT0, sT0, O))
        e('buffer_store_dwordx4 v[%d:%d], v%d, s[4:7], s%d offen sc1' % (OP, OP + 3, vO0, sT0))
        e('buffer_store_dwordx4 v[%d:%d], v%d, s[4:7], s%d offen sc1' % (OP + 4, OP + 7, vO1, sT0))
        e('buffer_store_dwordx2 v[%d:%d], v%d, s[4:7], s%d offen sc1' % (OP + 8, OP + 9, vO2, sT0))
        self.stamp(6)
        self.cnt(sT1, CNT_O, sRB)
        self.signal(sT1, [C0] if o.get('o_ack', 1) else [])
        self.stamp(7)
        if not o.get('o_ack', 1): self.side_dma([C0])
        return self.maybe_stop('a')
    def gemm_bd(self, first_blk, nsteps, vs, pre_extra, valu, breg=None):
        e = self.e
        LA = self.o.get('la', 5)
        nf = nsteps * 5
        def read(n):
            i, tau = n // 5, n % 5
            return self.ring_read(AF + 4 * (n % 8), first_blk + i // 2, (i & 1) * 10240 + tau * 1024, kh=True)
        def mf(n, u):
            i, tau = n // 5, n % 5
            acc = ACC + (tau * 2 + u) * 4; a = AF + 4 * (n % 8); b = breg(i, u) if breg else (2 * i + u) * 4
            c = '0' if i == 0 else 'v[%d:%d]' % (acc, acc + 3)
            return 'v_mfma_f32_16x16x32_bf16 v[%d:%d], v[%d:%d], a[%d:%d], %s' % (acc, acc + 3, a, a + 3, b, b + 3, c)
        anchors = []; pre = {}; fixed = {}
        for n in range(nf):
            anchors += [mf(n, 0), mf(n, 1)]
            if n + LA < nf: fixed[2 * n] = [read(n + LA)]
            if n + 1 < nf: fixed[2 * n + 1] = [Need('v[%d:%d]' % (AF + 4 * ((n + 1) % 8), AF + 4 * ((n + 1) % 8) + 3))]
        nep = nsteps // 2
        for ep in range(1, nep):
            pre[20 * ep] = (self.jitter_items(80 + ep + nsteps) if ep in (1, 3, 6) else []) + list(pre_extra.get(ep, [])) + ([W_tag('blk%d' % (first_blk + ep + 1))] if ep + 1 < nep else []) + ['s_barrier']
            if self.o.get('fine') == 'd' and nsteps == 24: pre[20 * ep] += self.stamp_items(19 + ep - 1)
        for n in range(LA): e(read(n))
        stt = {}
        e.extend(schedule(anchors, 2, pre, fixed, [vs, valu], vm_gap=self.o.get('d_gap', 2), state=stt))
        if self.o.get('verbose'): print('bd forced', stt.get('forced'), 'left', len(vs.q), len(valu.q), stt.get('flist'))
        e.extend([y[0] for y in vs.q]); e.extend([y[0] for y in valu.q])
    def bd_unpack(self):
        U = 112; L = []
        for d in range(10):
            L.append('v_lshlrev_b32 v%d, 16, v%d' % (U + 2 * d, XR + d))
            L.append('v_and_b32 v%d, 0xffff0000, v%d' % (U + 2 * d + 1, XR + d))
        return L
    def bd_epilogue(self, last_blk, final):
        e = self.e
        EX = 88
        self.jitter(3 + last_blk)
        for tau in range(5):
            a = ACC + (tau * 2 + 1) * 4
            e('ds_write_b128 v%d, v[%d:%d] offset:%d' % (vEXW, a, a + 3, tau * 1024))
        e.wait_lgkm0()
        e('s_barrier')
        for tau in range(5):
            e('ds_read_b128 v[%d:%d], v%d offset:%d' % (EX + 4 * tau, EX + 4 * tau + 3, vEXR, tau * 1024))
        U = 112
        for tau in range(5):
            a = ACC + (tau * 2) * 4
            for c in range(4):
                e('v_add_f32 v%d, v%d, v%d' % (U + 4 * tau + c, U + 4 * tau + c, a + c))
        for tau in range(5):
            for c in range(4):
                e('v_add_f32 v%d, v%d, v%d' % (U + 4 * tau + c, U + 4 * tau + c, EX + 4 * tau + c))
        for d in range(10): e('v_cvt_pk_bf16_f32 v%d, v%d, v%d' % (XR + d, U + 2 * d, U + 2 * d + 1))
        final()
    def bd_stats(self, base_off, next_layer):
        e = self.e
        S, Q = 136, 137
        e('v_mov_b32 v%d, 0\nv_mov_b32 v%d, 0' % (S, Q))
        for d in range(10):
            e('v_dot2c_f32_bf16 v%d, v%d, v%d' % (S, XR + d, vONES))
            e('v_dot2c_f32_bf16 v%d, v%d, v%d' % (Q, XR + d, XR + d))
        for sw in ('v_permlane16_swap_b32', 'v_permlane32_swap_b32'):
            e('v_mov_b32 v138, v%d\nv_mov_b32 v139, v%d' % (S, Q))
            e('%s v%d, v138\n%s v%d, v139' % (sw, S, sw, Q))
            e('v_add_f32 v%d, v%d, v138\nv_add_f32 v%d, v%d, v139' % (S, S, Q, Q))
        e('s_lshl_b32 s%d, s%d, 7\ns_lshl_b32 s%d, s%d, 14\ns_add_u32 s%d, s%d, s%d' % (sT2, sTTK, sT3, sCS, sT2, sT2, sT3))
        e('s_add_u32 s%d, s%d, s%d\ns_add_u32 s%d, s%d, 0x%x' % (sT2, sT2, sLOFF, sT2, sT2, base_off + (self.lstride if next_layer else 0)))
        if not self.o.get('nostats'): e('buffer_store_dwordx2 v[%d:%d], v%d, s[4:7], s%d offen sc1' % (S, Q, vST, sT2))
    def phase_b(self):
        e = self.e
        self.cnt(sT0, CNT_O, sRB)
        for (s, tt) in ((sB0, sTTK), (sB1, sTTS)):
            e('s_mul_i32 s%d, s%d, 20\ns_mul_i32 s%d, s%d, 10\ns_add_u32 s%d, s%d, s%d\ns_lshl_b32 s%d, s%d, 10' % (s, tt, sT1, sKH, s, s, sT1, s, s))
            e('s_add_u32 s%d, s%d, s%d\ns_add_u32 s%d, s%d, 0x%x' % (s, s, sLOFF, s, s, O))
        def tok(i, u):
            s = sB0 if u == 0 else sB1
            t = sC1 + u
            g = []
            if i % 4 == 0: g.append('s_add_u32 s%d, s%d, %d' % (t, s, i * 1024))
            g.append('buffer_load_dwordx4 a[%d:%d], v%d, s[4:7], s%d offen offset:%d%s' % ((2 * i + u) * 4, (2 * i + u) * 4 + 3, vL16, t, (i % 4) * 1024, self.sc))
            return g
        e.wait_tag('blk%d' % B0); e.wait_tag('blk%d' % (B0 + 1))
        self.poll(sT0)
        e('s_barrier')
        self.stamp(8)
        NPRE = self.o.get('b_npre', 6)
        for i in range(NPRE):
            for u in range(2): e.extend(tok(i, u))
        items = [(10 * i, 0, tok(i, 0) + tok(i, 1)) for i in range(NPRE, 10)]
        for k, b in enumerate(self.C_tail): items.append((5000 + b, 20 * (k + 1), self.flat(self.dma_ops(b))))
        vs = self.vm_stream(items)
        self.gemm_bd(B0, 10, vs, {}, Stream(self.bd_unpack(), 60))
        self.stamp(9)
        def final():
            e('s_mul_i32 s%d, s%d, 20480\ns_add_u32 s%d, s%d, s%d\ns_add_u32 s%d, s%d, 0x%x' % (sT0, sTTK, sT0, sT0, sLOFF, sT0, sT0, XC))
            e('buffer_store_dwordx4 v[%d:%d], v%d, s[4:7], s%d offen sc1' % (XR, XR + 3, vX0, sT0))
            e('buffer_store_dwordx4 v[%d:%d], v%d, s[4:7], s%d offen sc1' % (XR + 4, XR + 7, vX1, sT0))
            e('buffer_store_dwordx2 v[%d:%d], v%d, s[4:7], s%d offen sc1' % (XR + 8, XR + 9, vX2, sT0))
            self.bd_stats(SC, False)
            self.cnt(sT1, CNT_XC, sRB)
            self.signal(sT1, self.C_ack)
            self.stamp(10)
            if self.o.get('ampre', 1): self.am_c()
            self.side_dma(self.C_side)
        self.bd_epilogue(B0 + 4, final)
        return self.maybe_stop('b')
    def gelu_ops(self, accset, u, c0, c1, vVE, HP, t):
        L = []
        G = [accset + (p * 2 + u) * 4 + c for p in range(2) for c in range(4)]
        U = [accset + ((2 + p) * 2 + u) * 4 + c for p in range(2) for c in range(4)]
        g = [t + i for i in range(8)]; w = [t + 8 + i for i in range(8)]
        for h in range(2):
            R = range(4 * h, 4 * h + 4)
            for i in R: L.append('v_mul_f32 v%d, v%d, v%d' % (w[i], G[i], G[i]))
            for i in R: L.append('v_fma_f32 v%d, v%d, v%d, v%d' % (w[i], w[i], c1, c0))
            for i in R: L.append('v_mul_f32 v%d, v%d, v%d' % (w[i], w[i], G[i]))
            for i in R:
                L.append('v_exp_f32 v%d, v%d' % (w[i], w[i]))
                L.append('v_mul_f32 v%d, v%d, v%d' % (g[i], G[i], U[i]))
            for i in R: L.append('v_fma_f32 v%d, v%d, v%d, v%d' % (w[i], w[i], vVE, vVE))
            for i in R: L.append('v_rcp_f32 v%d, v%d' % (w[i], w[i]))
            for i in R: L.append('v_mul_f32 v%d, v%d, v%d' % (g[i], g[i], w[i]))
            for d in (2 * h, 2 * h + 1): L.append('v_cvt_pk_bf16_f32 v%d, v%d, v%d' % (HP + d, g[2 * d], g[2 * d + 1]))
        return L
    def check_flag(self, vreg, cnt_sgpr, target=16):
        sub = Asm()
        X = self.lab('ck'); L = self.lab('ckl')
        sub('v_cmp_gt_u32 vcc, %d, v%d' % (target, vreg))
        sub('s_cbranch_vccz %s' % X)
        sub('s_cmp_lg_u32 s%d, 0' % sDEAD); sub('s_cbranch_scc1 %s' % X)
        sub('s_mov_b32 s%d, 0' % sPC)
        sub.label(L)
        sub('buffer_load_dword v%d, v%d, s[4:7], s%d offen sc1' % (vreg, vZERO, cnt_sgpr), count=False)
        sub('s_waitcnt vmcnt(0)', count=False)
        sub('v_cmp_gt_u32 vcc, %d, v%d' % (target, vreg))
        sub('s_cbranch_vccz %s' % X)
        sub('s_add_u32 s%d, s%d, 1' % (sPC, sPC)); sub('s_cmp_lt_u32 s%d, %d' % (sPC, SPIN_LIMIT))
        sub('s_cbranch_scc1 %s' % L)
        sub('s_mov_b32 s%d, 1' % sDEAD)
        sub.label(X)
        return sub.items
    def phase_c(self):
        e = self.e; o = self.o
        ST, RS, VE, BMs, AM, GT, HP = 112, (120, 121), (122, 123), (124, 132), 136, 152, (168, 172)
        GC0, GC1 = (176, 177), (178, 179)
        k0 = -2.0 * 0.7978845608028654 * LOG2E
        self.cnt(sT0, CNT_XC, sRB)
        e('s_lshl_b32 s%d, s%d, 3\ns_lshl_b32 s%d, s%d, 1\ns_add_u32 s%d, s%d, s%d' % (sT2, sRB, sT1, sW, sT2, sT2, sT1))
        e('s_lshl_b32 s%d, s%d, 7\ns_add_u32 s%d, s%d, s%d\ns_add_u32 s%d, s%d, 0x%x' % (sT1, sT2, sT1, sT1, sLOFF, sT1, sT1, SC))
        e('s_mul_i32 s%d, s%d, 20480\ns_add_u32 s%d, s%d, s%d\ns_add_u32 s%d, s%d, 0x%x' % (sB0, sT2, sB0, sB0, sLOFF, sB0, sB0, XC))
        e('s_add_u32 s%d, s%d, 20480' % (sB1, sB0))
        e('s_mul_i32 s%d, s%d, 48\ns_add_u32 s%d, s%d, s%d\ns_lshl_b32 s%d, s%d, 10' % (sTW, sT2, sTW, sTW, sJ, sTW, sTW))
        e('s_add_u32 s%d, s%d, s%d\ns_add_u32 s%d, s%d, 0x%x' % (sTW, sTW, sLOFF, sTW, sTW, HH))
        if not o.get('ampre', 1): e('s_mul_i32 s%d, s%d, %d\ns_add_u32 s%d, s%d, 0x%x' % (sT4, sJ, 12 * KB, sT4, sT4, WCM))
        self.poll(sT0)
        e('s_barrier')
        self.stamp(11)
        def tok(s, u):
            sb = sB0 if u == 0 else sB1; t = sC1 + u
            g = []
            if s % 4 == 0: g.append('s_add_u32 s%d, s%d, %d' % (t, sb, s * 1024))
            g.append('buffer_load_dwordx4 a[%d:%d], v%d, s[4:7], s%d offen offset:%d%s' % ((2 * s + u) * 4, (2 * s + u) * 4 + 3, vL16, t, (s % 4) * 1024, self.sc))
            return g
        NPRE = o.get('c_npre', 9)
        if o.get('tt', 0): e.extend(self.touch_tok(XC))
        for s in range(NPRE):
            for u in range(2): e.extend(tok(s, u))
        stld = []
        for k in range(2):
            if k: stld.append('s_add_u32 s%d, s%d, 16384' % (sT1, sT1))
            for u in range(2):
                stld.append('buffer_load_dwordx2 v[%d:%d], v%d, s[4:7], s%d offen offset:%d sc1' % (ST + 4 * u + 2 * k, ST + 4 * u + 2 * k + 1, vSC, sT1, 128 * u))
        def amload(sg):
            pre = [] if sg == 0 else ['s_add_u32 s%d, s%d, 4096' % (sT4, sT4)]
            return pre + ['buffer_load_dwordx4 v[%d:%d], v%d, s[4:7], s%d offen offset:%d' % (AM + 4 * t, AM + 4 * t + 3, vL16, sT4, t * 1024) for t in range(4)]
        st = []
        for u in range(2):
            b = ST + 4 * u
            st += ['v_add_f32 v%d, v%d, v%d' % (b, b, b + 2), 'v_add_f32 v%d, v%d, v%d' % (b + 1, b + 1, b + 3)]
            for sw in ('v_permlane16_swap_b32', 'v_permlane32_swap_b32'):
                st += ['v_mov_b32 v%d, v%d' % (b + 2, b), 'v_mov_b32 v%d, v%d' % (b + 3, b + 1),
                       '%s v%d, v%d' % (sw, b, b + 2), '%s v%d, v%d' % (sw, b + 1, b + 3),
                       'v_add_f32 v%d, v%d, v%d' % (b, b, b + 2), 'v_add_f32 v%d, v%d, v%d' % (b + 1, b + 1, b + 3)]
            st += self.rowstat_finish(b, b + 1, RS[u], VE[u], BMs[u], b + 2)
            st += ['v_mul_f32 v%d, %s, v%d' % (GC0[u], f32bits(k0), RS[u]),
                   'v_mul_f32 v%d, v%d, v%d' % (GC1[u], RS[u], RS[u]),
                   'v_mul_f32 v%d, v%d, v%d' % (GC1[u], GC1[u], GC0[u]),
                   'v_mul_f32 v%d, %s, v%d' % (GC1[u], f32bits(0.044715), GC1[u])]
        LA = self.o.get('la', 5)
        def read(n): return self.ring_read(AF + 4 * (n % 8), C0 + n // 20, (n % 20) * 1024)
        def mf(n, u):
            sg, r = n // 80, n % 80; s, tl = r // 4, r % 4
            acc = ACC + 32 * (sg & 1) + (tl * 2 + u) * 4; a = AF + 4 * (n % 8); b = (2 * s + u) * 4
            c = '0' if s == 0 else 'v[%d:%d]' % (acc, acc + 3)
            return 'v_mfma_f32_16x16x32_bf16 v[%d:%d], v[%d:%d], a[%d:%d], %s' % (acc, acc + 3, a, a + 3, b, b + 3, c)
        def mean(sg):
            L = []
            for tl in range(4):
                for u in range(2):
                    acc = ACC + 32 * (sg & 1) + (tl * 2 + u) * 4
                    L.append('v_mfma_f32_16x16x32_bf16 v[%d:%d], v[%d:%d], v[%d:%d], v[%d:%d]' % (acc, acc + 3, AM + 4 * tl, AM + 4 * tl + 3, BMs[u], BMs[u] + 3, acc, acc + 3))
            return L
        def gelu_store(sg):
            L = []
            for u in range(2):
                L += self.gelu_ops(ACC + 32 * (sg & 1), u, GC0[u], GC1[u], VE[u], HP[u], GT)
                L.append('s_add_u32 s%d, s%d, %d' % (sT5, sTW, u * 48 * 1024 + sg * 16 * 1024))
                L.append(('buffer_store_dwordx4 v[%d:%d], v%d, s[4:7], s%d offen sc1' % (HP[u], HP[u] + 3, vL16, sT5), 'h%d' % sg))
            return L
        def ix(n): return 2 * n + 8 * (n // 80)
        items = [(ix(4 * s), 0, tok(s, 0) + tok(s, 1)) for s in range(NPRE, 20)]
        for b in self.C_in:
            dl = ix(20 * (b - C0 - 1)) - (8 if (b - C0 - 1) % 4 == 0 and b > C0 + 1 else 0)
            items.append((dl, 0, self.flat(self.dma_ops(b)), dl - o.get('c_lead', 40)))
        r8 = o.get('ring8', 1)
        last_in = o.get('c_lastblk', D0 + 4 if r8 else D0 + 3)
        for b in range(C0 + 6, last_in + 1):
            free = 20 * (b - C0 - 5)
            if r8 and b >= D0: free = o.get('c_x0', 100) + 20 * (b - D0) if b < D0 + 2 else 20 * (b - 20)
            epn = b - C0 - 1
            dl = ix(20 * epn) - (8 if epn % 4 == 0 else 0) if b < D0 else 100000 + b
            early = ix(free) - (8 if free % 80 == 0 else 0)
            key = max(early, ix(76)) + (0 if b < D0 else 1)
            items.append((dl, early, self.flat(self.dma_ops(b)), key))
        if not o.get('ampre', 1): items.append((ix(60), 0, amload(0)))
        if o.get('tw', 0): items.append((ix(90), ix(84), self.touch_w('D')))
        items.append((ix(o.get('c_stdl', 44)), 0, stld))
        items.append((ix(150), ix(80), amload(1), ix(80)))
        items.append((ix(230), ix(160), amload(2), ix(160)))
        self.cnt(sT0, CNT_H, sRB, mul=384)
        FL, CKC = o.get('c_fl', 190), o.get('c_ck', 206)
        items.append((ix(CKC) - 1, ix(FL), ['buffer_load_dword v%d, v%d, s[4:7], s%d offen sc1' % (vPOLL, vZERO, sT0)], ix(FL)))
        dtoks = [self.d_tok(i, u) for i in range(8) for u in range(2)]
        for k, g in enumerate(dtoks): items.append((90000 + k, ix(CKC), g, ix(CKC) + 0.01 * k))
        vs = self.vm_stream(items)
        e.wait_tag('blk%d' % C0); e.wait_tag('blk%d' % (C0 + 1))
        e('s_barrier')
        for n in range(LA): e(read(n))
        pos = 0; cstate = {}
        for sg in range(3):
            anchors = []; pre = {}; fixed = {}
            if sg > 0: anchors += mean(sg - 1)
            for n in range(80 * sg, 80 * sg + 80):
                assert pos + len(anchors) == ix(n)
                anchors += [mf(n, 0), mf(n, 1)]
                if n + LA < 240: fixed[ix(n)] = [read(n + LA)]
                if n + 1 < 240: fixed[ix(n) + 1] = [Need('v[%d:%d]' % (AF + 4 * ((n + 1) % 8), AF + 4 * ((n + 1) % 8) + 3))]
            for ep in range(4 * sg, 4 * sg + 4):
                if ep == 0: continue
                at = ix(20 * ep) - (8 if ep % 4 == 0 else 0)
                p = [W_tag('blk%d' % (C0 + ep + 1))] if ep < 11 else []
                if ep == o.get('h0ep', 9): p.append(W_tag('h0'))
                if ep in (2, 5, 6, 9, 10): p += self.jitter_items(50 + ep)
                p.append('s_barrier')
                if self.o.get('fine') == 'c': p += self.stamp_items(19 + ep - 1)
                if ep == o.get('h0ep', 9):
                    sub = Main(None, self.o); sub.nlab = self.nlab + 1000
                    sub.signal_only(sT0)
                    p += sub.e.items
                pre[at] = p
            if sg == 2:
                sub = Main(None, self.o); sub.nlab = self.nlab + 4000
                sub.d_bases()
                pre[ix(CKC)] = pre.get(ix(CKC), []) + [W_vreg(vPOLL)] + self.check_flag(vPOLL, sT0) + sub.e.items
            valu = Stream(st, ix(o.get('c_stv', 56))) if sg == 0 else Stream(gelu_store(sg - 1), pos + 10)
            order = [valu, vs] if (sg == 2 and o.get('h1early', 0) == 2) else [vs, valu]
            e.extend(schedule(anchors, 2, pre, fixed, order, start=pos, vm_gap=(o.get('c_gap', 4) if sg == 0 else o.get('c_gap2', 4)), state=cstate))
            e.extend([y[0] for y in valu.q])
            pos += len(anchors)
        if self.o.get('verbose'): print('c forced', cstate.get('forced'), 'left', len(vs.q))
        self.stamp(12)
        self.jitter(70)
        tail = mean(2) + gelu_store(2)
        left = [y[0] for y in vs.q]; del vs.q[:]
        nvm = max(1, sum(1 for x in left if is_vm(x)))
        step = max(1, (len(tail) - 8) // (nvm + 1))
        H1 = o.get('h1early', 0)
        first_store = next(n for n, x in enumerate(tail) if is_vm(x))
        if H1 == 2:
            e.wait_tag('h1')
            e('s_barrier')
            self.cnt(sT2, CNT_H, sRB, mul=384, add=128)
            self.signal_only(sT2)
        for n, x in enumerate(tail):
            if left and n % step == 0:
                while left:
                    y = left.pop(0); e.extend([y])
                    if is_vm(y): break
            e.extend([x])
            if H1 == 1 and n == first_store:
                e.wait_tag('h1')
                e('s_barrier')
                self.cnt(sT2, CNT_H, sRB, mul=384, add=128)
                self.signal_only(sT2)
        e.extend(left)
        if H1: e('buffer_load_dword v%d, v%d, s[4:7], s%d offen sc1' % (vT1, vZERO, sT2))
        self.cnt(sT1, CNT_H, sRB, mul=384, add=256)
        self.signal(sT1)
        self.stamp(13)
        self.c_last = last_in
        return self.maybe_stop('c')
    def d_bases(self):
        e = self.e
        for (s, tt) in ((sB0, sTTK), (sB1, sTTS)):
            e('s_mul_i32 s%d, s%d, 48\ns_add_u32 s%d, s%d, s%d\ns_lshl_b32 s%d, s%d, 10' % (s, tt, s, s, sKH, s, s))
            e('s_add_u32 s%d, s%d, s%d\ns_add_u32 s%d, s%d, 0x%x' % (s, s, sLOFF, s, s, HH))
    def d_tok(self, i, u):
        sg, jj = i // 8, i % 8
        s = sB0 if u == 0 else sB1; t = sC1 + u
        g = []
        if jj % 2 == 0: g.append('s_add_u32 s%d, s%d, %d' % (t, s, sg * 16384 + jj * 2048))
        r = self.d_reg(i, u)
        g.append('buffer_load_dwordx4 a[%d:%d], v%d, s[4:7], s%d offen offset:%d%s' % (r, r + 3, vL16, t, (jj % 2) * 2048, self.sc))
        return g
    def d_reg(self, i, u):
        return 160 + (2 * i + u) * 4 if i < 8 else (2 * (i - 8) + u) * 4
    def phase_d(self):
        e = self.e; o = self.o
        tok = self.d_tok
        self.stamp(14)
        H1 = o.get('h1early', 0)
        CK = o.get('d_ck', 5 if H1 else 3)
        items = []
        r8 = o.get('ring8', 1); nfree = 8 if r8 else 6
        assert not (r8 and self.A_tail)
        if H1:
            e.extend(self.check_flag(vT1, sT2))
            for b in range(self.c_last + 1, D0 + nfree): items.append((20 * (b - D0 - 1), 0, self.flat(self.dma_ops(b)), 20 * (b - D0 - 1) - 25))
            for b in range(D0 + nfree, NBLK):
                early = 20 * (b - D0 - nfree + 1)
                items.append((20 * (b - D0 - 1), early, self.flat(self.dma_ops(b)), max(early, 20 * (b - D0 - 1) - 65)))
            fl = 20 * CK - o.get('d_fl', 16)
            items.append((20 * CK - 1, fl, ['buffer_load_dword v%d, v%d, s[4:7], s%d offen sc1' % (vPOLL, vZERO, sT1)], fl))
            items += [(10 * i, 0, tok(i, 0) + tok(i, 1), 10 * i - 80) for i in range(8, 16)]
            items += [(10 * i, 20 * CK, tok(i, 0) + tok(i, 1), 20 * CK + i - 16) for i in range(16, 24)]
        else:
            for b in range(self.c_last + 1, D0 + nfree): items.append((20 * (b - D0 - 1), 0, self.flat(self.dma_ops(b)), b - 200))
            for b in range(D0 + nfree, NBLK):
                early = 20 * (b - D0 - nfree + 1)
                key = (b - 200) if early < 20 * CK else 20 * (b - D0 - 1)
                items.append((20 * (b - D0 - 1), early, self.flat(self.dma_ops(b)), key))
            items.append((20 * CK - 1, 20 * CK - o.get('d_fl', 30), ['buffer_load_dword v%d, v%d, s[4:7], s%d offen sc1' % (vPOLL, vZERO, sT1)], -1))
            items += [(10 * i, 20 * CK, tok(i, 0) + tok(i, 1)) for i in range(8, 24)]
        if o.get('tw', 0): items.append((30, 0, self.touch_w('A'), -500))
        for b in self.A_tail: items.append((5000 + b, 20 * (6 + b), self.flat(self.dma_ops(b))))
        chk = [W_vreg(vPOLL)] + self.check_flag(vPOLL, sT1)
        self.gemm_bd(D0, 24, self.vm_stream(items), {CK: chk}, Stream(self.bd_unpack(), 200), self.d_reg)
        self.stamp(17)
        def final():
            L = self.lab('d_last'); X = self.lab('d_done')
            e('s_cmp_lg_u32 s%d, 0' % sL); e('s_cbranch_scc1 %s' % L)
            e('s_lshr_b32 s%d, s%d, 1\ns_mul_i32 s%d, s%d, 40960\ns_add_u32 s%d, s%d, s%d\ns_add_u32 s%d, s%d, 0x%x' % (sT0, sTTK, sT0, sT0, sT0, sT0, sLOFF, sT0, sT0, XA + self.lstride))
            e('buffer_store_dwordx4 v[%d:%d], v%d, s[4:7], s%d offen sc1' % (XR, XR + 3, vY0, sT0))
            e('buffer_store_dwordx4 v[%d:%d], v%d, s[4:7], s%d offen sc1' % (XR + 4, XR + 7, vY1, sT0))
            e('buffer_store_dwordx2 v[%d:%d], v%d, s[4:7], s%d offen sc1' % (XR + 8, XR + 9, vY2, sT0))
            self.bd_stats(SA, True)
            self.cnt(sT1, CNT_XA, sRB, next_layer=True)
            self.signal(sT1, self.A_ack)
            self.stamp(18)
            if self.o.get('ampre_a', 0): self.am_a()
            self.side_dma(self.A_side)
            e('s_branch %s' % X)
            e.label(L)
            e('s_mul_i32 s%d, s%d, 20480\ns_mul_i32 s%d, s%d, 160\ns_add_u32 s%d, s%d, s%d' % (sT0, sTTK, sT1, sCS, sT0, sT0, sT1))
            e('buffer_store_dwordx4 v[%d:%d], v%d, s[12:15], s%d offen' % (XR, XR + 3, vR0, sT0))
            e('buffer_store_dwordx4 v[%d:%d], v%d, s[12:15], s%d offen offset:64' % (XR + 4, XR + 7, vR0, sT0))
            e('buffer_store_dwordx2 v[%d:%d], v%d, s[12:15], s%d offen' % (XR + 8, XR + 9, vR2, sT0))
            self.stamp(18)
            self.stamp_flush()
            e('s_endpgm')
            e.label(X)
        self.bd_epilogue(D0 + 11, final)
        return self.maybe_stop('d')
    def build(self):
        e = self.e
        self.prologue()
        e.label('M_LAYER')
        done = self.phase_a() or self.phase_b() or self.phase_c() or self.phase_d()
        if not done:
            e('s_add_u32 s%d, s%d, 1\ns_add_u32 s%d, s%d, 0x%x\ns_add_u32 s%d, s%d, 0x%x' % (sL, sL, sLOFF, sLOFF, self.lstride, sCNT, sCNT, CSTRIDE))
            e('s_branch M_LAYER')
        e.label('M_END')
        e('s_endpgm')
        e.label('M_CODE_END')
        if self.o.get('dual'):
            out = []; inloop = False
            for I in e.items:
                out.append(I)
                if I.kind == 'label' and I.txt.startswith('M_LAYER'): inloop = True
                if inloop and I.kind == 'vm' and I.op.startswith('buffer_store') and I.txt.endswith(' sc1') and 's[4:7]' in I.txt:
                    if self.o['dual'] == 1 and ('v%d,' % vPS1 in I.txt or 'v%d,' % vPS2 in I.txt): continue
                    J = parse(I.txt[:-4], I.tag); J.count = I.count
                    out.append(J)
            e.items = out
        return e
```

```python
from asmlib import *
from layout import *

NAME = 'hedgehog_main_kernel'
KNAME = 'interleave_layers__linear_kernel_hedgehog__geglu_ffn__prompt_kernel'
BLK = 20480
SCR = 6 * BLK
LDS_TOTAL = 163840
SPIN_LIMIT = 40000
LOG2E = 1.4426950408889634
TSOFF = 0x4000000

sW, sRB, sJ, sL, sLOFF, sW5K, sWA, sWB, sWC, sWD = range(16, 26)
sT0, sT1, sT2, sT3, sT4, sT5 = range(26, 32)
sDEAD, sPC, sPV, sCS, sTH, sTTK, sTTS, sKH = range(40, 48)
sDM = 48
sTW = 49
sB0, sB1 = 50, 51
sC1, sC2, sC3, sC4 = 52, 53, 54, 55
sEX, sEXD = 56, 57
sFIRST = 38
sCNT = 3
sTA, sTB = 58, 59
vL16, vLANE, vONES, vZERO, vONE, vPOLL = 1, 2, 3, 4, 5, 6
vL16B, vK0, vK1 = 7, 8, 9
vT0, vT1, vT2, vT3, vT4 = 10, 11, 12, 13, 14
vEXR = 15
AF, ACC = 16, 48
vSA, vTW, vKA, vKB, vPS1, vPS2, vPL, vAW, vO0, vO1, vO2, vX0, vX1, vX2, vY0, vY1 = range(224, 240)
XR = 240
vY2, vR0, vR2, vST, vSC, vEXW = range(250, 256)
vAW2 = 221
vK2 = 218
vL128, vTCH = 220, 219

A0, B0, C0, D0, NBLK = 0, 8, 13, 25, 37
NSIDE_A, NSIDE_C = 4, 4

def f32bits(x):
    import struct
    return '0x%08x' % struct.unpack('<I', struct.pack('<f', x))[0]

def W_vreg(r):
    return 'v_mov_b32 v%d, v%d' % (r, r)

class Main:
    def __init__(self, stop=None, opts=None):
        self.e = Asm(); self.stop = stop; self.o = opts or {}
        self.sc = '' if self.o.get('nosc1') else ' sc1'
        self.nlab = 0
        self.lstride = 0 if self.o.get('reuse') else LSTRIDE
        self.name = KNAME if self.o.get('merged', 0) else NAME
        global NSIDE_A, NSIDE_C
        NSIDE_A = self.o.get('nsa', 1); NSIDE_C = self.o.get('nsc', 2)
        dt = self.o.get('d_tail', 0); bt = self.o.get('b_tail', 0)
        self.A_tail = list(range(1, 1 + dt))
        rest = [0] + list(range(1 + dt, 6))
        na = self.o.get('a_ack', 2)
        self.A_ack, rest = rest[:na], rest[na:]
        self.A_side, self.A_in = rest[:NSIDE_A], rest[NSIDE_A:]
        self.C_tail = list(range(C0 + 1, C0 + 1 + bt))
        rest = list(range(C0 + 1 + bt, C0 + 6))
        nc = self.o.get('c_ack', 2)
        self.C_ack, rest = rest[:nc], rest[nc:]
        self.C_side, self.C_in = rest[:NSIDE_C], rest[NSIDE_C:]
    def lab(self, p):
        self.nlab += 1
        return 'M_%s_%d' % (p, self.nlab)
    def slot_of(self, b):
        if b >= D0 and self.o.get('ring8', 1):
            return {25: 6, 26: 7, 27: 1, 28: 2, 29: 3, 30: 4, 31: 5, 32: 0, 33: 6, 34: 7, 35: 1, 36: 2}[b]
        return b % 6
    def blk_src(self, b):
        if b < B0: return sWA, (b - A0) * BLK
        if b < C0: return sWB, (b - B0) * BLK
        if b < D0: return sWC, (b - C0) * BLK
        return sWD, (b - D0) * BLK
    def dma_ops(self, b, tag=None):
        nb = b % NBLK if b >= NBLK else b
        base, off = self.blk_src(nb)
        slot = self.slot_of(nb)
        tag = tag or 'blk%d' % nb
        g = []
        first = ['s_add_u32 m0, s%d, %d' % (sW5K, slot * BLK), 's_add_u32 s%d, s%d, %d' % (sDM, base, off),
                 ('buffer_load_dwordx4 v%d, s[4:7], s%d offen lds' % (vL16, sDM), tag)]
        g.append(first)
        for k in range(1, 4):
            g.append([('buffer_load_dwordx4 v%d, s[4:7], s%d offen offset:%d lds' % (vL16, sDM, k * 1024), tag)])
        g.append(['s_add_u32 m0, s%d, %d' % (sW5K, slot * BLK + 4096), 's_add_u32 s%d, s%d, %d' % (sDM, base, off + 4096),
                  ('buffer_load_dwordx4 v%d, s[4:7], s%d offen lds' % (vL16, sDM), tag)])
        return g
    def am_a(self):
        AM = 128; e = self.e
        e('s_lshl_b32 s%d, s%d, 12\ns_add_u32 s%d, s%d, 0x%x' % (sT2, sJ, sT2, sT2, WAM))
        for t in range(4): e('buffer_load_dwordx4 v[%d:%d], v%d, s[4:7], s%d offen offset:%d' % (AM + 4 * t, AM + 4 * t + 3, vL16, sT2, t * 1024))
    def am_c(self):
        AM = 136; e = self.e
        e('s_mul_i32 s%d, s%d, %d\ns_add_u32 s%d, s%d, 0x%x' % (sT4, sJ, 12 * KB, sT4, sT4, WCM))
        for t in range(4): e('buffer_load_dwordx4 v[%d:%d], v%d, s[4:7], s%d offen offset:%d' % (AM + 4 * t, AM + 4 * t + 3, vL16, sT4, t * 1024))
    def side_dma(self, blocks):
        e = self.e
        L = self.lab('side')
        e('s_cmp_eq_u32 s%d, 0' % sW); e('s_cbranch_scc1 %s' % L)
        for b in blocks:
            base, off = self.blk_src(b); slot = self.slot_of(b); tag = 'blk%d' % b
            ld = 'buffer_load_dwordx4 v%d, s[4:7], s%d offen%%s lds' % (vL16, sDM)
            e('s_add_u32 m0, s%d, %d' % (sW5K, slot * BLK)); e('s_add_u32 s%d, s%d, %d' % (sDM, base, off))
            for k in range(4): e.side(ld % (' offset:%d' % (k * 1024) if k else ''), tag)
            e('s_add_u32 m0, s%d, %d' % (sW5K, slot * BLK + 4096)); e('s_add_u32 s%d, s%d, %d' % (sDM, base, off + 4096))
            e.side(ld % '', tag)
            e('s_add_u32 m0, s%d, %d' % (sEX, slot * BLK)); e('s_add_u32 s%d, s%d, %d' % (sDM, base, off))
            e('s_add_u32 s%d, s%d, s%d' % (sDM, sDM, sEXD))
            e.side(ld % '', tag); e.side(ld % ' offset:1024', tag)
        e.label(L)
    def dma_items(self, b, earliest):
        out = []
        for g in self.dma_ops(b):
            for x in g: out.append((x, earliest))
        return out
    def touch(self, base_expr, nlines_wave, ninstr=1, sc=''):
        L = list(base_expr)
        L.append('s_mul_i32 s%d, s%d, %d' % (sTB, sW, nlines_wave * ninstr * 128))
        L.append('s_add_u32 s%d, s%d, s%d' % (sTA, sTA, sTB))
        if nlines_wave < 64:
            L.append('v_mov_b32 v%d, 0x%x' % (vT0, OOB))
            L.append('v_cmp_gt_u32 vcc, %d, v%d' % (nlines_wave, vLANE))
            L.append('v_cndmask_b32 v%d, v%d, v%d, vcc' % (vT0, vT0, vL128))
            va = vT0
        else: va = vL128
        for k in range(ninstr):
            if k: L.append('s_add_u32 s%d, s%d, %d' % (sTA, sTA, nlines_wave * 128))
            I = parse('buffer_load_dword v%d, v%d, s[4:7], s%d offen%s' % (vTCH, va, sTA, sc)); I.wr = set()
            L.append(I)
        return L
    def touch_w(self, which):
        if which == 'A':
            pre = ['s_lshr_b32 s%d, s%d, 2' % (sTA, sRB), 's_mul_i32 s%d, s%d, %d' % (sTA, sTA, 40 * KB), 's_add_u32 s%d, s%d, s%d' % (sTA, sTA, sWA), 's_sub_u32 s%d, s%d, s%d' % (sTA, sTA, sW5K)]
            return self.touch(pre, 40, 2)
        if which == 'C':
            pre = ['s_lshr_b32 s%d, s%d, 2' % (sTA, sRB), 's_mul_i32 s%d, s%d, %d' % (sTA, sTA, 60 * KB), 's_add_u32 s%d, s%d, s%d' % (sTA, sTA, sWC), 's_sub_u32 s%d, s%d, s%d' % (sTA, sTA, sW5K)]
            return self.touch(pre, 60, 2)
        idx = ['s_lshr_b32 s%d, s%d, 2' % (sTA, sRB), 's_lshl_b32 s%d, s%d, 1' % (sTA, sTA), 's_add_u32 s%d, s%d, s%d' % (sTA, sTA, sTH)]
        if which == 'B':
            return self.touch(idx + ['s_mul_i32 s%d, s%d, 12800' % (sTA, sTA), 's_add_u32 s%d, s%d, s%d' % (sTA, sTA, sWB), 's_sub_u32 s%d, s%d, s%d' % (sTA, sTA, sW5K)], 25, 1)
        if which == 'D':
            return self.touch(idx + ['s_mul_i32 s%d, s%d, 30720' % (sTA, sTA), 's_add_u32 s%d, s%d, s%d' % (sTA, sTA, sWD), 's_sub_u32 s%d, s%d, s%d' % (sTA, sTA, sW5K)], 60, 1)
    def touch_tok(self, base_off):
        pre = ['s_mul_i32 s%d, s%d, %d' % (sTA, sRB, 160 * KB), 's_lshr_b32 s%d, s%d, 1' % (sTB, sJ), 's_mul_i32 s%d, s%d, %d' % (sTB, sTB, 20 * KB),
               's_add_u32 s%d, s%d, s%d' % (sTA, sTA, sTB), 's_add_u32 s%d, s%d, s%d' % (sTA, sTA, sLOFF), 's_add_u32 s%d, s%d, 0x%x' % (sTA, sTA, base_off)]
        return self.touch(pre, 40, 1, ' sc1')
    def freed_by(self, c):
        if c <= NBLK - 7: return c + 6
        if c < NBLK - 1: return NBLK + (c - (NBLK - 7))
        return NBLK + 0
    def ring_read(self, dst, blk, off, kh=False):
        slot = self.slot_of(blk)
        base = (vK0 if kh else vL16) if slot < 3 else ((vK1 if kh else vL16B) if slot < 6 else vK2)
        assert slot < 6 or kh
        return 'ds_read_b128 v[%d:%d], v%d offset:%d' % (dst, dst + 3, base, (slot % 3) * BLK + off)
    def emit_next_layer_dma(self, b):
        e = self.e
        L = self.lab('nl')
        e('s_cmp_lg_u32 s%d, 0' % sL); e('s_cbranch_scc1 %s' % L)
        for g in self.dma_ops(b):
            for x in g:
                if isinstance(x, tuple): e(x[0], count=False)
                else: e(x)
        e.label(L)
    def signal(self, cnt_off_sgpr, ack=()):
        e = self.e
        if ack:
            e.vm_marker('pub')
            for b in ack:
                for g in self.dma_ops(b): e.extend(g)
            e.wait_tag('pub'); e.wait_lgkm0()
        else:
            e.wait_all()
        e('s_barrier')
        self.signal_only(cnt_off_sgpr)
    def signal_only(self, cnt_off_sgpr):
        e = self.e
        L = self.lab('sig')
        e('s_cmp_lg_u32 s%d, 0' % sW); e('s_cbranch_scc1 %s' % L)
        e('s_mov_b64 exec, 1')
        e('buffer_atomic_add v%d, v%d, s[4:7], s%d offen sc1' % (vONE, vZERO, cnt_off_sgpr), count=False)
        e('s_mov_b64 exec, -1')
        e.label(L)
    def poll(self, cnt_off_sgpr, n=1, target=16, srd=4, stride=128):
        e = self.e
        L = self.lab('poll'); X = self.lab('got')
        e('s_cmp_lg_u32 s%d, 0' % sW); e('s_cbranch_scc1 %s' % X)
        e('s_cmp_lg_u32 s%d, 0' % sDEAD); e('s_cbranch_scc1 %s' % X)
        e('s_mov_b32 s%d, 0' % sPC)
        if n > 1:
            e('v_min_u32 v%d, %d, v%d' % (vT0, n - 1, vLANE)); e('v_mul_u32_u24 v%d, %d, v%d' % (vT0, stride, vT0))
        e.label(L)
        e('buffer_load_dword v%d, v%d, s[%d:%d], s%d offen sc1' % (vPOLL, vT0 if n > 1 else vZERO, srd, srd + 3, cnt_off_sgpr), count=False)
        e('s_waitcnt vmcnt(0)', count=False)
        e('v_cmp_gt_u32 vcc, %d, v%d' % (target, vPOLL))
        e('s_cbranch_vccz %s' % X)
        if self.o.get('psleep'): e('s_sleep %d' % self.o['psleep'])
        e('s_add_u32 s%d, s%d, 1' % (sPC, sPC)); e('s_cmp_lt_u32 s%d, %d' % (sPC, SPIN_LIMIT))
        e('s_cbranch_scc1 %s' % L)
        e('s_mov_b32 s%d, 1' % sDEAD)
        e.label(X)
    def cnt(self, dst, which, idx_sgpr, mul=128, add=0, next_layer=False):
        e = self.e
        e('s_mul_i32 s%d, s%d, %d' % (dst, idx_sgpr, mul))
        e('s_add_u32 s%d, s%d, s%d' % (dst, dst, sCNT))
        e('s_add_u32 s%d, s%d, 0x%x' % (dst, dst, which + add + (CSTRIDE if next_layer else 0)))
    def prologue(self):
        if self.o.get('merged', 0): return self.prologue_merged()
        e = self.e
        e.directive('.text\n.globl %s\n.p2align 8\n.type %s,@function' % (self.name, self.name))
        e.label(self.name)
        e('s_cmp_ge_u32 s2, 256'); e('s_cbranch_scc1 M_END')
        e('s_load_dwordx2 s[32:33], s[0:1], 0')
        e('s_load_dwordx2 s[34:35], s[0:1], 64')
        e('s_load_dwordx2 s[36:37], s[0:1], 80')
        if self.o.get('jitter'):
            e('s_load_dwordx2 s[60:61], s[0:1], 72\ns_waitcnt lgkmcnt(0)\ns_load_dword s63, s[60:61], 0\ns_waitcnt lgkmcnt(0)')
        self.entry_stamp()
        self.pro_scalars()
        if not self.o.get('lanelate', 1): self.pro_lanes()
        e('s_waitcnt lgkmcnt(0)')
        self.mk_srd(4, 36, WS_BYTES)
        self.pro_tail(32, 34)
    def prologue_merged(self):
        import gen_prep as P
        e = self.e
        e.directive('.text\n.globl %s\n.p2align 8\n.type %s,@function' % (self.name, self.name))
        e.label(self.name)
        e('s_cmp_ge_u32 s2, 256'); e('s_cbranch_scc1 M_END')
        e('s_load_dwordx8 s[64:71], s[0:1], 0')
        e('s_load_dwordx4 s[72:75], s[0:1], 40')
        e('s_load_dwordx2 s[76:77], s[0:1], 56')
        e('s_load_dwordx2 s[78:79], s[0:1], 64')
        e('s_load_dwordx4 s[80:83], s[0:1], 72')
        self.entry_stamp()
        self.pro_scalars()
        e('s_waitcnt lgkmcnt(0)')
        self.mk_srd(4, 82, WS_BYTES)
        e('s_add_u32 s0, s2, 352\ns_sub_u32 s26, s2, 64\ns_cmp_ge_u32 s2, 160\ns_cselect_b32 s0, s26, s0\ns_cmp_lt_u32 s2, 96\ns_cselect_b32 s0, s2, s0')
        e('s_add_u32 s1, s2, 192')
        Lz = self.lab('nz')
        e('s_cmp_ge_u32 s2, 16'); e('s_cbranch_scc1 %s' % Lz)
        e('s_cmp_lg_u32 s%d, 0' % sW); e('s_cbranch_scc1 %s' % Lz)
        for k in range(4): e('v_mov_b32 v%d, 0' % (120 + k))
        e('s_lshl_b32 s26, s2, 11')
        e('buffer_store_dwordx4 v[120:123], v%d, s[4:7], s26 offen sc1' % vL16, count=False)
        e('buffer_store_dwordx4 v[120:123], v%d, s[4:7], s26 offen offset:1024 sc1' % vL16, count=False)
        e.label(Lz)
        r1 = P.Ren(e, 1, 0); r2 = P.Ren(e, 2, 1)
        L1, L2 = 0, 32768
        def dispatch(cases, sreg, tagp):
            end = self.lab(tagp)
            labs = [self.lab(tagp) for _ in cases]
            for (ub, _), lb in list(zip(cases, labs))[:-1]:
                e('s_cmp_lt_u32 s%d, %d' % (sreg, ub)); e('s_cbranch_scc1 %s' % lb)
            e('s_branch %s' % labs[-1])
            for (ub, fn), lb in zip(cases, labs):
                e.label(lb); e.reset_state(); fn()
                e.wait_lgkm0()
                e('s_branch %s' % end)
            e.label(end); e.reset_state()
        dispatch([(96, lambda: P.wa_issue(r1)), (288, lambda: P.wc_issue(r1, L1)), (None, lambda: P.x_issue(r1))], 0, 'i1')
        dispatch([(288, lambda: P.wc_issue(r2, L2)), (416, lambda: P.wd_issue(r2, L2)), (None, lambda: P.wb_issue(r2, L2))], 1, 'i2')
        if self.o.get('codepf', 1):
            Lp = self.lab('npf')
            e('s_cmp_ge_u32 s2, 64'); e('s_cbranch_scc1 %s' % Lp)
            e('s_getpc_b64 s[84:85]')
            e.label('M_PC')
            e('s_add_u32 s84, s84, (M_LAYER-M_PC)\ns_addc_u32 s85, s85, 0')
            e('v_lshlrev_b32 v124, 7, v0\nv_mov_b32 v125, (M_CODE_END-M_LAYER-4)\nv_add_u32 v126, 0x8000, v124')
            e('v_min_u32 v124, v124, v125\nv_min_u32 v126, v126, v125\nv_and_b32 v124, -4, v124\nv_and_b32 v126, -4, v126')
            e('global_load_dword v127, v124, s[84:85]', count=False)
            e('global_load_dword v127, v126, s[84:85]', count=False)
            e.label(Lp)
        self.mk_srd(84, 80, 256)
        Lf = self.lab('nf'); Lv = self.lab('nfv'); Lw = self.lab('nfw')
        e('s_cmp_ge_u32 s2, 16'); e('s_cbranch_scc1 %s' % Lf)
        e('s_cmp_lg_u32 s%d, 0' % sW); e('s_cbranch_scc1 %s' % Lf)
        npf = 2 if self.o.get('codepf', 1) else 0
        e('s_cmp_eq_u32 s31, 1'); e('s_cbranch_scc1 %s' % Lv)
        e('s_waitcnt vmcnt(%d)' % (22 + 5 + npf), count=False); e('s_branch %s' % Lw)
        e.label(Lv)
        e('s_waitcnt vmcnt(%d)' % (10 + 5 + npf), count=False)
        e.label(Lw)
        e('s_lshl_b32 s62, s2, 2\ns_mov_b64 exec, 1')
        e('buffer_store_dword v%d, v%d, s[84:87], s62 offen sc1' % (vONE, vZERO), count=False)
        e('s_mov_b64 exec, -1')
        self.stamp(27)
        e.label(Lf)
        e('s_waitcnt vmcnt(4)', count=False)
        self.stamp(19)
        dispatch([(96, lambda: P.wa_process(r1)), (288, lambda: P.wc_process(r1, L1)), (None, lambda: P.x_process(r1))], 0, 'p1')
        self.stamp(20)
        Lq = self.lab('zq')
        e('s_cmp_lg_u32 s%d, 0' % sW); e('s_cbranch_scc1 %s' % Lq)
        e('v_min_u32 v126, 15, v%d\nv_lshlrev_b32 v126, 2, v126' % vLANE)
        e('buffer_load_dword v%d, v126, s[84:87], 0 offen sc1' % vPOLL, count=False)
        e.label(Lq)
        e('s_waitcnt vmcnt(0) lgkmcnt(0)', count=False)
        e('s_barrier')
        self.stamp(26)
        def arrive(off, below=None):
            La = self.lab('arr')
            e('s_cmp_lg_u32 s%d, 0' % sW); e('s_cbranch_scc1 %s' % La)
            if below is not None:
                e('s_cmp_ge_u32 s2, %d' % below); e('s_cbranch_scc1 %s' % La)
            e('s_and_b32 s62, s2, 15\ns_lshl_b32 s62, s62, 7\ns_add_u32 s62, s62, 0x%x\ns_mov_b64 exec, 1' % off)
            e('buffer_atomic_add v%d, v%d, s[4:7], s62 offen sc1' % (vONE, vZERO), count=False)
            e('s_mov_b64 exec, -1')
            e.label(La)
        Lc = self.lab('zc'); Ls = self.lab('zcs')
        e('s_cmp_lg_u32 s%d, 0' % sW); e('s_cbranch_scc1 %s' % Lc)
        e('s_mov_b32 s%d, 0' % sPC)
        e.label(Ls)
        e('v_cmp_gt_u32 vcc, 1, v%d' % vPOLL)
        e('s_cbranch_vccz %s' % Lc)
        if self.o.get('zsleep'): e('s_sleep %d' % self.o['zsleep'])
        e('buffer_load_dword v%d, v126, s[84:87], 0 offen sc1' % vPOLL, count=False)
        e('s_waitcnt vmcnt(0)', count=False)
        e('s_add_u32 s%d, s%d, 1' % (sPC, sPC)); e('s_cmp_lt_u32 s%d, %d' % (sPC, SPIN_LIMIT)); e('s_cbranch_scc1 %s' % Ls)
        e('s_mov_b32 s%d, 1' % sDEAD)
        e.label(Lc)
        arrive(CNT_CRIT, 160)
        self.stamp(21)
        dispatch([(288, lambda: P.wc_process(r2, L2)), (416, lambda: P.wd_process(r2, L2)), (None, lambda: P.wb_process(r2, L2))], 1, 'p2')
        self.stamp(22)
        e('s_waitcnt vmcnt(0) lgkmcnt(0)', count=False)
        e('s_barrier')
        arrive(CNT_REST)
        self.stamp(25)
        self.pro_lanes()
        e('s_mov_b32 s%d, 0x%x' % (sT0, CNT_CRIT))
        self.stamp(23)
        self.poll(sT0, n=16, target=10)
        e('s_barrier')
        self.stamp(24)
        self.pro_tail(64, 78)
    def entry_stamp(self):
        if self.o.get('stamps'):
            self.e(('s_memtime' if self.o.get('cyc') else 's_memrealtime') + ' s[60:61]\ns_waitcnt lgkmcnt(0)\nv_mov_b32 v223, s60')
    def mk_srd(self, d, lo, n):
        self.e('s_mov_b32 s%d, s%d\ns_mov_b32 s%d, s%d\ns_mov_b32 s%d, 0x%x\ns_mov_b32 s%d, 0x20000' % (d, lo, d + 1, lo + 1, d + 2, n, d + 3))
    def pro_scalars(self):
        e = self.e
        e('v_lshrrev_b32 v10, 6, v0'); e('v_and_b32 v%d, 63, v0' % vLANE)
        e('v_readfirstlane_b32 s%d, v10' % sW)
        e('v_lshlrev_b32 v%d, 4, v%d' % (vL16, vLANE))
        mp = self.o.get('map', 0)
        if mp == 0:
            e('s_and_b32 s%d, s2, 3\ns_lshr_b32 s26, s2, 6\ns_lshl_b32 s26, s26, 2\ns_or_b32 s%d, s%d, s26' % (sRB, sRB, sRB))
            e('s_lshr_b32 s%d, s2, 2\ns_and_b32 s%d, s%d, 15' % (sJ, sJ, sJ))
        elif mp == 1:
            e('s_and_b32 s%d, s2, 15\ns_lshr_b32 s%d, s2, 4' % (sRB, sJ))
        elif mp == 2:
            e('s_and_b32 s%d, s2, 1\ns_lshr_b32 s26, s2, 5\ns_lshl_b32 s26, s26, 1\ns_or_b32 s%d, s%d, s26' % (sRB, sRB, sRB))
            e('s_lshr_b32 s%d, s2, 1\ns_and_b32 s%d, s%d, 15' % (sJ, sJ, sJ))
        if self.o.get('thmap', 1):
            e('s_lshr_b32 s%d, s%d, 1\ns_and_b32 s%d, s%d, 1' % (sCS, sJ, sTH, sJ))
        else:
            e('s_and_b32 s%d, s%d, 7\ns_lshr_b32 s%d, s%d, 3' % (sCS, sJ, sTH, sJ))
        e('s_mul_i32 s%d, s%d, 5120' % (sW5K, sW))
        e('s_lshr_b32 s%d, s%d, 1' % (sKH, sW))
        for (s, idx, stride, base) in ((sWA, sJ, 160 * KB, WA), (sWB, sCS, 100 * KB, WB), (sWC, sJ, 240 * KB, WC), (sWD, sCS, 240 * KB, WD)):
            if self.o.get('wsame'): stride = 0
            e('s_mul_i32 s%d, s%d, %d\ns_add_u32 s%d, s%d, s%d\ns_add_u32 s%d, s%d, 0x%x' % (s, idx, stride, s, s, sW5K, s, s, base))
        e('s_lshl_b32 s%d, s%d, 3\ns_lshl_b32 s26, s%d, 2\ns_add_u32 s%d, s%d, s26' % (sTTK, sRB, sTH, sTTK, sTTK))
        e('s_and_b32 s26, s%d, 1\ns_lshl_b32 s26, s26, 1\ns_add_u32 s%d, s%d, s26\ns_add_u32 s%d, s%d, s%d' % (sW, sTTK, sTTK, sTTK, sTTK, sKH))
        e('s_xor_b32 s%d, s%d, 1' % (sTTS, sTTK))
        e('s_mov_b32 s%d, 0\ns_mov_b32 s%d, 0\ns_mov_b32 s%d, 0x%x' % (sDEAD, sL, sLOFF, LBASE))
        e('s_mov_b32 s%d, 0x%x\ns_mov_b32 s%d, 1' % (sCNT, CNT0, sFIRST))
        e('s_sub_u32 s%d, s%d, 1\ns_lshl_b32 s%d, s%d, 11\ns_sub_u32 s%d, s%d, s%d' % (sEX, sW, sEX, sEX, sEXD, sEX, sW5K))
        e('v_mov_b32 v%d, 0x3f803f80\nv_mov_b32 v%d, 0\nv_mov_b32 v%d, 1' % (vONES, vZERO, vONE))
    def pro_lanes(self):
        e = self.e
        e('v_add_u32 v%d, %d, v%d' % (vL16B, 3 * BLK, vL16))
        e('v_lshlrev_b32 v%d, 7, v%d' % (vL128, vLANE))
        e('s_mul_i32 s26, s%d, 5120\nv_add_u32 v%d, s26, v%d\nv_add_u32 v%d, %d, v%d' % (sKH, vK0, vL16, vK1, 3 * BLK, vK0))
        e('v_add_u32 v%d, %d, v%d' % (vK2, 6 * BLK, vK0))
        t32, hi, t16, q = 100, 101, 102, 103
        e('v_and_b32 v%d, 31, v%d\nv_lshrrev_b32 v%d, 5, v%d' % (t32, vLANE, hi, vLANE))
        e('v_and_b32 v%d, 15, v%d\nv_lshrrev_b32 v%d, 4, v%d' % (t16, vLANE, q, vLANE))
        e('v_mov_b32 v104, 0x%x' % OOB)
        e('v_lshlrev_b32 v%d, 3, v%d\nv_lshl_add_u32 v%d, v%d, 16, v%d' % (vSA, t32, vSA, hi, vSA))
        e('s_lshl_b32 s26, s%d, 5\nv_add_u32 v105, s26, v%d\nv_mul_u32_u24 v105, 144, v105' % (sW, t32))
        e('v_mul_u32_u24 v106, 18432, v%d\nv_add_u32 v105, v105, v106\nv_add_u32 v%d, 0x%x, v105' % (hi, vTW, SCR))
        e('v_lshrrev_b32 v105, 1, v%d\nv_bfe_u32 v106, v%d, 2, 2\nv_lshl_add_u32 v105, v105, 3, v106\nv_mul_u32_u24 v105, 144, v105' % (q, vLANE))
        e('v_and_b32 v106, 1, v%d\nv_lshlrev_b32 v106, 5, v106\nv_and_b32 v107, 3, v%d\nv_lshl_add_u32 v106, v107, 3, v106\nv_add_u32 v105, v105, v106' % (q, vLANE))
        e('s_lshr_b32 s26, s%d, 1\ns_mul_i32 s26, s26, 18432\ns_add_u32 s26, s26, 0x%x' % (sW, SCR))
        e('s_and_b32 s27, s%d, 1\ns_mul_i32 s28, s27, 40\ns_add_u32 s28, s28, s26\ns_add_u32 s29, s26, 80' % sW)
        e('v_add_u32 v%d, s28, v105\nv_add_u32 v%d, s29, v105' % (vKA, vKB))
        e('s_lshl_b32 s26, s%d, 10' % sW)
        e('v_mul_u32_u24 v105, 24, v%d\nv_add_u32 v105, v105, v%d\nv_lshlrev_b32 v105, 4, v105\nv_add_u32 v105, s26, v105' % (hi, t32))
        e('v_cmp_gt_u32 vcc, 24, v%d\nv_cndmask_b32 v%d, v104, v105, vcc' % (t32, vPS1))
        e('v_lshlrev_b32 v105, 3, v%d\nv_add_u32 v105, s26, v105\nv_add_u32 v105, 768, v105' % t32)
        e('v_cmp_eq_u32 vcc, 0, v%d\nv_cndmask_b32 v%d, v104, v105, vcc' % (hi, vPS2))
        e('v_mov_b32 v106, 84\nv_cmp_le_u32 s[30:31], v106, v0\nv_cndmask_b32 v106, 0, 1, s[30:31]')
        e('v_mul_u32_u24 v107, 84, v106\nv_sub_u32 v107, v0, v107')
        e('v_mul_u32_u24 v108, 391, v107\nv_lshrrev_b32 v108, 13, v108')
        e('v_mul_u32_u24 v109, 21, v108\nv_sub_u32 v109, v107, v109')
        e('v_subrev_u32 v110, 168, v0\nv_mul_u32_u24 v111, 391, v110\nv_lshrrev_b32 v111, 13, v111\nv_and_b32 v111, 3, v111')
        e('v_mul_u32_u24 v96, 21, v111\nv_sub_u32 v96, v110, v96')
        e('v_cmp_gt_u32 vcc, 168, v0')
        e('v_lshrrev_b32 v97, 1, v108\nv_lshl_add_u32 v97, v106, 1, v97\nv_lshlrev_b32 v97, 10, v97')
        e('v_and_b32 v98, 1, v108\nv_mul_u32_u24 v98, 24, v98\nv_add_u32 v98, v98, v109\nv_lshl_add_u32 v97, v98, 4, v97')
        e('v_lshlrev_b32 v98, 10, v111\nv_lshl_add_u32 v98, v96, 3, v98\nv_add_u32 v98, 768, v98')
        e('v_cndmask_b32 v97, v98, v97, vcc')
        e('v_mov_b32 v99, 252\nv_cmp_gt_u32 s[30:31], v99, v0\nv_cndmask_b32 v%d, v104, v97, s[30:31]' % vPL)
        e('v_lshrrev_b32 v97, 1, v111\nv_cndmask_b32 v106, v97, v106, vcc')
        e('v_cndmask_b32 v108, 4, v108, vcc\nv_cndmask_b32 v109, v96, v109, vcc')
        e('v_lshrrev_b32 v110, 4, v109\nv_mul_u32_u24 v110, 5, v110\nv_add_u32 v110, v110, v108')
        e('v_and_b32 v109, 15, v109\nv_lshrrev_b32 v97, 2, v109\nv_lshlrev_b32 v97, 3, v97\nv_and_b32 v109, 3, v109\nv_add_u32 v97, v97, v109')
        e('v_mul_u32_u24 v109, 36, v106\nv_add_u32 v97, v97, v109')
        e('v_lshlrev_b32 v97, 4, v97\nv_lshl_add_u32 v97, v110, 10, v97\nv_add_u32 v97, 0x%x, v97' % SCR)
        e('v_and_b32 v105, 63, v0\nv_lshlrev_b32 v105, 4, v105\nv_add_u32 v105, 0x%x, v105' % (SCR + 12288))
        e('v_cndmask_b32 v%d, v105, v97, vcc' % vAW)
        e('v_and_b32 v98, 1, v111\nv_lshl_add_u32 v97, v98, 3, v97')
        e('v_cndmask_b32 v97, v97, v105, vcc\nv_cndmask_b32 v%d, v105, v97, s[30:31]' % vAW2)
        e('s_mul_i32 s26, s%d, 5' % sJ)
        e('v_bfe_u32 v105, v%d, 4, 1\nv_mul_u32_u24 v105, 20480, v105\nv_lshl_add_u32 v105, v%d, 4, v105' % (vLANE, t16))
        for (dst, expr) in ((vO0, 0), (vO1, 1), (vO2, None)):
            if expr is not None:
                e('v_lshl_add_u32 v106, v%d, 1, s26\nv_add_u32 v106, %d, v106' % (hi, expr))
            else:
                e('v_mov_b32 v106, s26\nv_add_u32 v106, 4, v106')
            e('v_lshrrev_b32 v107, 2, v106\nv_lshl_add_u32 v107, v107, 10, v105\nv_and_b32 v106, 3, v106\nv_lshl_add_u32 v%d, v106, 8, v107' % dst)
        e('v_lshl_add_u32 v%d, v%d, 3, v%d' % (vO2, hi, vO2))
        e('s_mul_i32 s26, s%d, 10' % sCS)
        e('s_and_b32 s27, s%d, 1\ns_lshl_b32 s27, s27, 8' % sTTK)
        e('v_lshlrev_b32 v105, 4, v%d' % t16)
        for n, (dx, dy) in enumerate(((vX0, vY0), (vX1, vY1), (vX2, vY2))):
            if n < 2: e('v_add_u32 v106, s26, v%d\nv_add_u32 v106, %d, v106' % (q, 4 * n))
            else: e('v_lshrrev_b32 v106, 1, v%d\nv_add_u32 v106, s26, v106\nv_add_u32 v106, 8, v106' % q)
            e('v_lshrrev_b32 v107, 2, v106\nv_lshl_add_u32 v107, v107, 10, v105\nv_and_b32 v108, 3, v106\nv_lshl_add_u32 v%d, v108, 8, v107' % dx)
            e('v_lshrrev_b32 v107, 1, v106\nv_lshl_add_u32 v107, v107, 10, v105\nv_and_b32 v108, 1, v106\nv_lshl_add_u32 v107, v108, 9, v107\nv_add_u32 v%d, s27, v107' % dy)
        e('v_and_b32 v106, 1, v%d\nv_lshl_add_u32 v%d, v106, 3, v%d\nv_lshl_add_u32 v%d, v106, 3, v%d' % (q, vX2, vX2, vY2, vY2))
        e('v_mul_u32_u24 v105, 1280, v%d\nv_lshl_add_u32 v%d, v%d, 4, v105\nv_lshl_add_u32 v%d, v%d, 3, v105\nv_add_u32 v%d, 128, v%d' % (t16, vR0, q, vR2, q, vR2, vR2))
        e('v_lshlrev_b32 v105, 3, v%d\nv_cmp_eq_u32 vcc, 0, v%d\nv_cndmask_b32 v%d, v104, v105, vcc\nv_lshl_add_u32 v%d, v%d, 15, v105' % (t16, q, vST, vSC, q))
        e('s_add_u32 s26, s%d, 0x%x\nv_add_u32 v%d, s26, v%d' % (sW5K, SCR, vEXW, vL16))
        e('s_xor_b32 s27, s%d, 2\ns_mul_i32 s27, s27, 5120\ns_add_u32 s27, s27, 0x%x\nv_add_u32 v%d, s27, v%d' % (sW, SCR, vEXR, vL16))
    def pro_tail(self, xlo, olo):
        e = self.e
        self.mk_srd(8, xlo, T * 1280); self.mk_srd(12, olo, T * 1280)
        if self.o.get('ampre_a', 0): self.am_a()
        for b in self.A_ack:
            for g in self.dma_ops(b): e.extend(g)
        self.side_dma(self.A_side[:1])
        for b in self.A_tail:
            for g in self.dma_ops(b):
                for x in g:
                    if isinstance(x, tuple): e(x[0], count=False)
                    else: e(x)
        self.side_dma(self.A_side[1:])
        if self.o.get('codepf2') and not self.o.get('merged', 0):
            Lp = self.lab('npf2')
            e('s_cmp_ge_u32 s2, %d' % self.o['codepf2']); e('s_cbranch_scc1 %s' % Lp)
            e('s_getpc_b64 s[60:61]')
            e.label('M_PC2')
            e('s_add_u32 s60, s60, (M_LAYER-M_PC2)\ns_addc_u32 s61, s61, 0')
            e('v_lshlrev_b32 v124, 7, v0\nv_mov_b32 v125, (M_CODE_END-M_LAYER-4)')
            e('v_min_u32 v124, v124, v125\nv_and_b32 v124, -4, v124')
            e('global_load_dword v127, v124, s[60:61]', count=False)
            e.label(Lp)
        if not self.o.get('xrlate', 1): self.xr_load()
    def xr_load(self):
        e = self.e
        e('s_mul_i32 s29, s%d, 20480\ns_mul_i32 s31, s%d, 160\ns_add_u32 s29, s29, s31' % (sTTK, sCS))
        e('buffer_load_dwordx4 v[%d:%d], v%d, s[8:11], s29 offen' % (XR, XR + 3, vR0), count=False)
        e('buffer_load_dwordx4 v[%d:%d], v%d, s[8:11], s29 offen offset:64' % (XR + 4, XR + 7, vR0), count=False)
        e('buffer_load_dwordx2 v[%d:%d], v%d, s[8:11], s29 offen' % (XR + 8, XR + 9, vR2), count=False)
    def rowstat_finish(self, S, Q, vRS, vVE, BM, tmp):
        L = []
        L.append('v_mul_f32 v%d, %s, v%d' % (S, f32bits(1.0 / 640), S))
        L.append('v_mul_f32 v%d, %s, v%d' % (Q, f32bits(1.0 / 640), Q))
        L.append('v_fma_f32 v%d, -v%d, v%d, v%d' % (Q, S, S, Q))
        L.append('v_max_f32 v%d, 0, v%d' % (Q, Q))
        L.append('v_add_f32 v%d, %s, v%d' % (vVE, f32bits(1e-5), Q))
        L.append('v_rsq_f32 v%d, v%d' % (vRS, vVE))
        L.append('v_cvt_pk_bf16_f32 v%d, -v%d, -v%d' % (tmp, S, S))
        L.append('v_and_b32 v%d, 0xffff0000, v%d' % (tmp, tmp))
        L.append('v_sub_f32 v%d, -v%d, v%d' % (tmp, S, tmp))
        L.append('v_cvt_pk_bf16_f32 v%d, -v%d, v%d' % (BM, S, tmp))
        for k in range(1, 4): L.append('v_mov_b32 v%d, v%d' % (BM + k, BM))
        return L
    def softmax_pair(self, X, vC, EP, EM, t):
        L = []
        mx, mn, ap, am, sp, sm = range(t, t + 6)
        L.append('v_max3_f32 v%d, v%d, v%d, v%d' % (mx, X[0], X[1], X[2]))
        L.append('v_min3_f32 v%d, v%d, v%d, v%d' % (mn, X[0], X[1], X[2]))
        for k in range(3, 19, 2):
            L.append('v_max3_f32 v%d, v%d, v%d, v%d' % (mx, mx, X[k], X[k + 1]))
            L.append('v_min3_f32 v%d, v%d, v%d, v%d' % (mn, mn, X[k], X[k + 1]))
        L.append('v_max_f32 v%d, v%d, v%d' % (mx, mx, X[19]))
        L.append('v_min_f32 v%d, v%d, v%d' % (mn, mn, X[19]))
        L.append('v_mul_f32 v%d, v%d, v%d' % (ap, vC, mx))
        L.append('v_mul_f32 v%d, v%d, v%d' % (am, vC, mn))
        for f in range(20):
            L.append('v_fma_f32 v%d, v%d, v%d, -v%d' % (EP + f, X[f], vC, ap))
            L.append('v_fma_f32 v%d, -v%d, v%d, v%d' % (EM + f, X[f], vC, am))
        for f in range(20):
            L.append('v_exp_f32 v%d, v%d' % (EP + f, EP + f))
            L.append('v_exp_f32 v%d, v%d' % (EM + f, EM + f))
        L.append('v_add_f32 v%d, v%d, v%d' % (sp, EP, EP + 1))
        L.append('v_add_f32 v%d, v%d, v%d' % (sm, EM, EM + 1))
        for f in range(2, 20):
            L.append('v_add_f32 v%d, v%d, v%d' % (sp, sp, EP + f))
            L.append('v_add_f32 v%d, v%d, v%d' % (sm, sm, EM + f))
        L.append('v_rcp_f32 v%d, v%d' % (sp, sp))
        L.append('v_rcp_f32 v%d, v%d' % (sm, sm))
        for f in range(20):
            L.append('v_mul_f32 v%d, v%d, v%d' % (EP + f, EP + f, sp))
            L.append('v_mul_f32 v%d, v%d, v%d' % (EM + f, EM + f, sm))
        return L
    def stamp(self, k):
        if not self.o.get('stamps'): return
        e = self.e
        e('v_mov_b32 v222, s%d' % sL)
        e('v_lshlrev_b32 v222, 5, v222\nv_add_u32 v222, %d, v222' % k)
        e('v_cmp_eq_u32 vcc, v222, v%d' % vLANE)
        e('s_memtime s[58:59]' if self.o.get('cyc') else 's_memrealtime s[58:59]')
        e('s_waitcnt lgkmcnt(0)')
        e('v_mov_b32 v222, s58')
        e('v_cndmask_b32 v223, v223, v222, vcc')
    def jitter(self, k, e=None):
        if not self.o.get('jitter'): return
        e = e or self.e
        L = self.lab('jit'); X = self.lab('jitx')
        e('s_mul_i32 s60, s2, %d' % (2654435761 % (1 << 31)))
        e('s_mul_i32 s61, s%d, 40503\ns_add_u32 s60, s60, s61\ns_add_u32 s60, s60, s63' % sL)
        e('s_mul_i32 s61, s%d, %d\ns_add_u32 s60, s60, s61' % (sW, self.o.get('jitw', 0) * 9973))
        e('s_add_u32 s60, s60, %d\ns_mul_i32 s60, s60, 1103515245\ns_lshr_b32 s61, s60, 13\ns_xor_b32 s60, s60, s61\ns_mul_i32 s60, s60, 1664525' % (k * 7919 + self.o['jitter'] * 104729))
        e('s_lshr_b32 s61, s60, 28\ns_lshr_b32 s60, s60, 20\ns_and_b32 s60, s60, %d' % self.o.get('jitmask', 31))
        e('s_cmp_lt_u32 s61, %d\ns_cselect_b32 s60, s60, 0' % self.o.get('jitp', 2))
        e.label(L)
        e('s_cmp_eq_u32 s60, 0'); e('s_cbranch_scc1 %s' % X)
        e('s_sleep 4'); e('s_sub_u32 s60, s60, 1'); e('s_branch %s' % L)
        e.label(X)
    def jitter_items(self, k):
        if not self.o.get('jitter'): return []
        sub = Main(None, self.o); sub.nlab = self.nlab + 5000 + 10 * k; sub.jitter(k); self.nlab += 1
        return sub.e.items
    def stamp_items(self, k):
        if self.o.get('stamps') != 2: return []
        sub = Main(None, self.o); sub.stamp(k)
        return sub.e.items
    def stamp_flush(self):
        if not self.o.get('stamps'): return
        e = self.e
        e('s_lshl_b32 s62, s2, 2\ns_add_u32 s62, s62, s%d\ns_lshl_b32 s62, s62, 8\ns_add_u32 s62, s62, 0x%x' % (sW, TSOFF))
        e('v_lshlrev_b32 v%d, 2, v%d' % (vT0, vLANE))
        e('buffer_store_dword v223, v%d, s[4:7], s62 offen' % vT0)
    def maybe_stop(self, name):
        if self.stop == name:
            self.e.wait_all(); self.e('s_endpgm'); return True
        return False
    def vm_stream(self, items):
        st = Stream()
        for it in sorted(items, key=lambda x: x[3] if len(x) > 3 else x[0]):
            st.add(it[2], it[1], it[0])
        return st
    def flat(self, groups):
        return [x for g in groups for x in g]
    def phase_a(self):
        e = self.e; o = self.o
        T0, T1, T2, T3 = ACC, ACC + 16, ACC + 32, ACC + 48
        ST, vRS, vVE, vC, BM, AM, EP, EM, P = 112, 120, 121, 122, 124, 128, 144, 164, 184
        self.stamp(0)
        L = self.lab('a_nopoll')
        e('s_cmp_eq_u32 s%d, 0' % sL); e('s_cbranch_scc1 %s' % L)
        self.cnt(sT0, CNT_XA, sRB)
        self.poll(sT0)
        e('s_barrier')
        e.label(L)
        self.stamp(1)
        e('s_lshl_b32 s%d, s%d, 2\ns_add_u32 s%d, s%d, s%d' % (sT0, sRB, sT0, sT0, sW))
        e('s_mul_i32 s%d, s%d, 40960\ns_add_u32 s%d, s%d, s%d\ns_add_u32 s%d, s%d, 0x%x' % (sTW, sT0, sTW, sTW, sLOFF, sTW, sTW, XA))
        def tok(s):
            g = []
            if s % 4 == 0: g.append('s_add_u32 s%d, s%d, %d' % (sB0, sTW, s * 1024))
            g.append('buffer_load_dwordx4 a[%d:%d], v%d, s[4:7], s%d offen offset:%d%s' % (4 * s, 4 * s + 3, vL16, sB0, (s % 4) * 1024, self.sc))
            return g
        NPRE = o.get('a_npre', 12)
        if o.get('tt', 0): e.extend(self.touch_tok(XA))
        for s in range(NPRE): e.extend(tok(s))
        if o.get('lanelate', 1) and not o.get('merged', 0):
            Ll = self.lab('lanes')
            e('s_cmp_eq_u32 s%d, 0' % sFIRST); e('s_cbranch_scc1 %s' % Ll)
            self.pro_lanes()
            e('s_mov_b32 s%d, 0' % sFIRST)
            e.label(Ll)
        e('s_lshl_b32 s%d, s%d, 2\ns_add_u32 s%d, s%d, s%d' % (sT0, sRB, sT0, sT0, sW))
        e('s_lshl_b32 s%d, s%d, 8\ns_add_u32 s%d, s%d, s%d\ns_add_u32 s%d, s%d, 0x%x' % (sT1, sT0, sT1, sT1, sLOFF, sT1, sT1, SA))
        stld = []
        for k in range(4):
            if k: stld.append('s_add_u32 s%d, s%d, 16384' % (sT1, sT1))
            stld.append('buffer_load_dwordx2 v[%d:%d], v%d, s[4:7], s%d offen sc1' % (ST + 2 * k, ST + 2 * k + 1, vSA, sT1))
        e('s_lshl_b32 s%d, s%d, 12\ns_add_u32 s%d, s%d, 0x%x' % (sT2, sJ, sT2, sT2, WAM))
        amload = ['buffer_load_dwordx4 v[%d:%d], v%d, s[4:7], s%d offen offset:%d' % (AM + 4 * t, AM + 4 * t + 3, vL16, sT2, t * 1024) for t in range(4)]
        st = []
        st += ['v_add_f32 v%d, v%d, v%d' % (ST, ST, ST + 2), 'v_add_f32 v%d, v%d, v%d' % (ST + 1, ST + 1, ST + 3),
               'v_add_f32 v%d, v%d, v%d' % (ST + 4, ST + 4, ST + 6), 'v_add_f32 v%d, v%d, v%d' % (ST + 5, ST + 5, ST + 7),
               'v_add_f32 v%d, v%d, v%d' % (ST, ST, ST + 4), 'v_add_f32 v%d, v%d, v%d' % (ST + 1, ST + 1, ST + 5),
               'v_mov_b32 v%d, v%d' % (ST + 2, ST), 'v_mov_b32 v%d, v%d' % (ST + 3, ST + 1),
               'v_permlane32_swap_b32 v%d, v%d' % (ST, ST + 2), 'v_permlane32_swap_b32 v%d, v%d' % (ST + 1, ST + 3),
               'v_add_f32 v%d, v%d, v%d' % (ST, ST, ST + 2), 'v_add_f32 v%d, v%d, v%d' % (ST + 1, ST + 1, ST + 3)]
        st += self.rowstat_finish(ST, ST + 1, vRS, vVE, BM, ST + 2)
        st += ['v_mul_f32 v%d, %s, v%d' % (vC, f32bits(LOG2E), vRS)]
        LA = self.o.get('la', 5)
        def frag_info(n):
            if n < 120: return n // 3, n % 3
            return n - 120, 3
        def read(n): return self.ring_read(AF + 4 * (n % 8), A0 + n // 20, (n % 20) * 1024)
        def mfma(n):
            s, tau = frag_info(n); acc = ACC + 16 * tau; a = AF + 4 * (n % 8)
            c = '0' if s == 0 else 'v[%d:%d]' % (acc, acc + 15)
            return 'v_mfma_f32_32x32x16_bf16 v[%d:%d], v[%d:%d], a[%d:%d], %s' % (acc, acc + 15, a, a + 3, 4 * s, 4 * s + 3, c)
        def mean(tau):
            acc = ACC + 16 * tau
            return 'v_mfma_f32_32x32x16_bf16 v[%d:%d], v[%d:%d], v[%d:%d], v[%d:%d]' % (acc, acc + 15, AM + 4 * tau, AM + 4 * tau + 3, BM, BM + 3, acc, acc + 15)
        ksm = self.softmax_pair([T0 + r for r in range(16)] + [T1 + r for r in range(4)], vC, EP, EM, ST)
        for d in range(10): ksm.append('v_cvt_pk_bf16_f32 v%d, v%d, v%d' % (P + d, EP + 2 * d, EP + 2 * d + 1))
        for d in range(10): ksm.append('v_cvt_pk_bf16_f32 v%d, v%d, v%d' % (P + 10 + d, EM + 2 * d, EM + 2 * d + 1))
        V = [T1 + r for r in range(4, 16)] + [T2 + r for r in range(8)]
        for f in range(20): ksm.append('v_mul_f32 v%d, v%d, v%d' % (V[f], V[f], vRS))
        for d in range(10): ksm.append('v_cvt_pk_bf16_f32 v%d, v%d, v%d' % (P + 20 + d, V[2 * d], V[2 * d + 1]))
        ksm += ['v_mov_b32 v%d, 0x3f80' % (P + 30), 'v_mov_b32 v%d, 0' % (P + 31)]
        anchors = []; pre = {}; fixed = {}; idx = {}
        KF = o.get('kvfirst', 1)
        NF1 = o.get('a_nf1', 140) if KF else 160
        for n in range(NF1):
            if n == 120:
                idx['mean'] = len(anchors)
                anchors += [mean(t) for t in range(3)]
            idx[n] = len(anchors)
            anchors.append(mfma(n))
            fixed[idx[n]] = ([read(n + LA)] if n + LA < NF1 else []) + ([Need('v[%d:%d]' % (AF + 4 * ((n + 1) % 8), AF + 4 * ((n + 1) % 8) + 3))] if n + 1 < NF1 else [])
        if not KF: anchors.append(mean(3))
        for ep in range(1, 7 if KF else 8):
            at = idx['mean'] if ep == 6 else idx[20 * ep]
            pre[at] = (self.jitter_items(120 + ep) if ep in (1, 4) else []) + ([W_tag('blk%d' % (A0 + ep + 1))] if ep < 7 else []) + ['s_barrier']
            if self.o.get('fine') == 'a': pre[at] += self.stamp_items(19 + ep - 1)
        items = [(3 * s, 0, tok(s)) for s in range(NPRE, 40)]
        if not o.get('ampre_a', 0): items.append((90, 0, amload))
        if o.get('tw', 0): items.append((30, 0, self.touch_w('B')))
        items.append((o.get('a_stdl', 64), 0, stld))
        for b in self.A_in: items.append((20 * (b - 1), 0, self.flat(self.dma_ops(b))))
        last_in = o.get('a_lastblk', 11)
        for b in range(6, last_in + 1):
            free = 20 * (b - 5) if b - 5 < 6 else idx['mean']
            assert not KF or b <= 11
            items.append((20 * (b - 1) if b < 8 else 200 + b, free, self.flat(self.dma_ops(b))))
        if o.get('merged', 0):
            sub = Main(None, self.o); sub.nlab = self.nlab + 2000; q = sub.e
            Lr = 'M_restld'
            q('s_cmp_lg_u32 s%d, 0' % sL); q('s_cbranch_scc1 %s' % Lr)
            q('v_min_u32 v%d, 15, v%d\nv_lshlrev_b32 v%d, 7, v%d\ns_mov_b32 s%d, 0x%x' % (vT1, vLANE, vT1, vT1, sT3, CNT_REST))
            q('buffer_load_dword v%d, v%d, s[4:7], s%d offen sc1' % (vPOLL, vT1, sT3), count=False)
            q.label(Lr)
            e.extend(q.items)
            sub = Main(None, self.o); sub.nlab = self.nlab + 3000; q = sub.e
            Lk = 'M_restok'; Ll = 'M_restsp'
            q('s_cmp_lg_u32 s%d, 0' % sL); q('s_cbranch_scc1 %s' % Lk)
            q('s_mov_b32 s%d, 0' % sPC)
            q.label(Ll)
            q('v_cmp_gt_u32 vcc, 16, v%d' % vPOLL)
            q('s_cbranch_vccz %s' % Lk)
            q('s_cmp_lg_u32 s%d, 0' % sDEAD); q('s_cbranch_scc1 %s' % Lk)
            q('buffer_load_dword v%d, v%d, s[4:7], s%d offen sc1' % (vPOLL, vT1, sT3), count=False)
            q('s_waitcnt vmcnt(0)', count=False)
            q('s_add_u32 s%d, s%d, 1' % (sPC, sPC)); q('s_cmp_lt_u32 s%d, %d' % (sPC, SPIN_LIMIT)); q('s_cbranch_scc1 %s' % Ll)
            q('s_mov_b32 s%d, 1' % sDEAD)
            q.label(Lk)
            pre[idx[60]] = q.items + pre[idx[60]]
        vs = self.vm_stream(items)
        valu = Stream(st, o.get('a_stv', 90)).add(ksm, idx[120] + 1)
        if o.get('fine') == 'a0': e.extend(self.stamp_items(19))
        e.wait_tag('blk0'); e.wait_tag('blk1')
        if self.A_tail:
            Lw = self.lab('a_l0w')
            e('s_cmp_lg_u32 s%d, 0' % sL); e('s_cbranch_scc1 %s' % Lw)
            e('s_waitcnt vmcnt(0)', count=False)
            e.label(Lw)
        e('s_barrier')
        if o.get('fine') == 'a0':
            e.extend(self.stamp_items(20))
            for k, at in enumerate((1, 3, 6, 9, 12, 15, 18)):
                pre[at] = pre.get(at, []) + self.stamp_items(21 + k)
        for n in range(LA): e(read(n))
        stt = {}
        e.extend(schedule(anchors, o.get('a_cap', 5), pre, fixed, [vs, valu], vm_gap=o.get('a_gap', 1), state=stt))
        if o.get('verbose'): print('a forced', stt.get('forced'), 'left', len(vs.q), len(valu.q))
        e.extend([y[0] for y in vs.q]); e.extend([y[0] for y in valu.q])
        self.a_late = list(range(last_in + 1, 13))
        self.stamp(2)
        self.jitter(1)
        for m in range(8):
            e('ds_write_b128 v%d, v[%d:%d] offset:%d' % (vTW, P + 4 * m, P + 4 * m + 3, 16 * m))
        e.wait_lgkm0()
        e('s_barrier')
        KD = T0
        def kvread(ks):
            b = AF + 8 * (ks % 4)
            return ['ds_read_b64_tr_b16 v[%d:%d], v%d offset:%d' % (b, b + 1, vKA, ks * 2304),
                    'ds_read_b64_tr_b16 v[%d:%d], v%d offset:%d' % (b + 2, b + 3, vKA, ks * 2304 + 576),
                    'ds_read_b64_tr_b16 v[%d:%d], v%d offset:%d' % (b + 4, b + 5, vKB, ks * 2304),
                    'ds_read_b64_tr_b16 v[%d:%d], v%d offset:%d' % (b + 6, b + 7, vKB, ks * 2304 + 576)]
        for ks in range(3): e.extend(kvread(ks))
        for ks in range(8):
            if ks + 3 < 8: e.extend(kvread(ks + 3))
            b = AF + 8 * (ks % 4)
            e('v_mfma_f32_32x32x16_bf16 v[%d:%d], v[%d:%d], v[%d:%d], %s' % (KD, KD + 15, b, b + 3, b + 4, b + 7, '0' if ks == 0 else 'v[%d:%d]' % (KD, KD + 15)))
        PK = EP
        for d in range(6): e('v_cvt_pk_bf16_f32 v%d, v%d, v%d' % (PK + d, KD + 2 * d, KD + 2 * d + 1))
        e('s_lshl_b32 s%d, s%d, 4\ns_add_u32 s%d, s%d, s%d\ns_lshl_b32 s%d, s%d, 12' % (sT0, sJ, sT0, sT0, sRB, sT0, sT0))
        e('s_add_u32 s%d, s%d, s%d\ns_add_u32 s%d, s%d, 0x%x' % (sT0, sT0, sLOFF, sT0, sT0, KVP))
        if o.get('reuse'): e('s_lshl_b32 s%d, s%d, 20\ns_add_u32 s%d, s%d, s%d' % (sT3, sL, sT0, sT0, sT3))
        e('buffer_store_dwordx4 v[%d:%d], v%d, s[4:7], s%d offen sc1' % (PK, PK + 3, vPS1, sT0))
        e('buffer_store_dwordx2 v[%d:%d], v%d, s[4:7], s%d offen sc1' % (PK + 4, PK + 5, vPS2, sT0))
        self.cnt(sT1, CNT_KV, sJ)
        kack = self.a_late if o.get('k_ack', 1) else []
        self.signal(sT1, kack)
        self.stamp(3)
        if o.get('tw', 0): e.extend(self.touch_w('C'))
        if not kack: self.side_dma(self.a_late)
        if o.get('xrlate', 1):
            Lx = self.lab('xr')
            e('s_cmp_lg_u32 s%d, 0' % sL); e('s_cbranch_scc1 %s' % Lx)
            self.xr_load()
            e.label(Lx)
        ZR = EM
        zf = ['v_mov_b32 v%d, 0' % (ZR + r) for r in range(4)]
        zf += ['v_lshlrev_b32 v%d, 4, v0' % vT1, 'v_add_u32 v%d, 0x%x, v%d' % (vT1, SCR, vT1)]
        zf += ['ds_write_b128 v%d, v[%d:%d] offset:%d' % (vT1, ZR, ZR + 3, m * 4096) for m in range(3)]
        if KF:
            an2 = []; fx2 = {}
            for n in range(NF1, NF1 + LA): e(read(n))
            for n in range(NF1, 160):
                fx2[len(an2)] = ([read(n + LA)] if n + LA < 160 else []) + ([Need('v[%d:%d]' % (AF + 4 * ((n + 1) % 8), AF + 4 * ((n + 1) % 8) + 3))] if n + 1 < 160 else [])
                an2.append(mfma(n))
            an2.append(mean(3))
            z = Stream(zf)
            e.extend(schedule(an2, 5, {}, fx2, [z]))
            e.extend([y[0] for y in z.q])
        else:
            e.extend(zf)
        Q = P
        X = [T2 + r for r in range(8, 16)] + [T3 + r for r in range(12)]
        e.extend(self.softmax_pair(X, vC, EP, EM, ST))
        order = []
        for sign in (EP, EM):
            order += [(sign + 0), (sign + 2), (sign + 8), (sign + 10), (sign + 4), (sign + 6), (sign + 12), (sign + 14)]
        order += [EP + 16, EP + 18, EM + 16, EM + 18]
        for d, r in enumerate(order): e('v_cvt_pk_bf16_f32 v%d, v%d, v%d' % (Q + d, r, r + 1))
        e.wait_lgkm0()
        self.stamp(4)
        self.poll(sT1)
        e('s_barrier')
        self.stamp(5)
        if self.maybe_stop('a1'): return True
        LD, SUM, PKK = 112, 176, 204
        e('s_lshl_b32 s%d, s%d, 16\ns_add_u32 s%d, s%d, s%d\ns_add_u32 s%d, s%d, 0x%x' % (sT0, sJ, sT0, sT0, sLOFF, sT0, sT0, KVP))
        if o.get('reuse'): e('s_lshl_b32 s%d, s%d, 20\ns_add_u32 s%d, s%d, s%d' % (sT3, sL, sT0, sT0, sT3))
        for p in range(16):
            if p: e('s_add_u32 s%d, s%d, 4096' % (sT0, sT0))
            e('buffer_load_dwordx4 v[%d:%d], v%d, s[4:7], s%d offen sc1' % (LD + 4 * p, LD + 4 * p + 3, vPL, sT0))
        e('v_mov_b32 v%d, 0x00003f80\nv_mov_b32 v%d, 0x3f800000' % (vT2, vT3))
        for k in range(8): e('v_mov_b32 v%d, 0' % (SUM + k))
        for p in range(16):
            for d in range(4):
                e('v_dot2c_f32_bf16 v%d, v%d, v%d' % (SUM + 2 * d, LD + 4 * p + d, vT2))
                e('v_dot2c_f32_bf16 v%d, v%d, v%d' % (SUM + 2 * d + 1, LD + 4 * p + d, vT3))
        for d in range(4): e('v_cvt_pk_bf16_f32 v%d, v%d, v%d' % (PKK + d, SUM + 2 * d, SUM + 2 * d + 1))
        e('ds_write_b128 v%d, v[%d:%d]' % (vAW, PKK, PKK + 3))
        e('ds_write_b64 v%d, v[%d:%d]' % (vAW2, PKK, PKK + 1))
        e.wait_lgkm0()
        e('s_barrier')
        e('v_add_u32 v%d, 0x%x, v%d' % (vT1, SCR, vL16))
        for n in range(8): e('ds_read_b128 v[%d:%d], v%d offset:%d' % (AF + 4 * n, AF + 4 * n + 3, vT1, n * 1024))
        G0, G1 = T0, T1
        for n in range(10):
            rho, s = n // 5, n % 5
            acc = G0 if rho == 0 else G1
            a = AF + 4 * (n % 8)
            e('v_mfma_f32_32x32x16_bf16 v[%d:%d], v[%d:%d], v[%d:%d], %s' % (acc, acc + 15, a, a + 3, Q + 4 * s, Q + 4 * s + 3, '0' if s == 0 else 'v[%d:%d]' % (acc, acc + 15)))
            if n < 2: e('ds_read_b128 v[%d:%d], v%d offset:%d' % (a, a + 3, vT1, (n + 8) * 1024))
        self.jitter(2)
        e('v_add_f32 v%d, %s, v%d' % (vT2, f32bits(1e-6), G1 + 4))
        e('v_rcp_f32 v%d, v%d' % (vT2, vT2))
        OP = 208
        src = [G0 + r for r in range(16)] + [G1 + r for r in range(4)]
        for r in src: e('v_mul_f32 v%d, v%d, v%d' % (r, r, vT2))
        for d in range(10): e('v_cvt_pk_bf16_f32 v%d, v%d, v%d' % (OP + d, src[2 * d], src[2 * d + 1]))
        e('s_lshl_b32 s%d, s%d, 3\ns_lshl_b32 s%d, s%d, 1\ns_add_u32 s%d, s%d, s%d\ns_mul_i32 s%d, s%d, 20480' % (sT0, sRB, sT1, sW, sT0, sT0, sT1, sT0, sT0))
        e('s_add_u32 s%d, s%d, s%d\ns_add_u32 s%d, s%d, 0x%x' % (sT0, sT0, sLOFF, sT0, sT0, O))
        e('buffer_store_dwordx4 v[%d:%d], v%d, s[4:7], s%d offen sc1' % (OP, OP + 3, vO0, sT0))
        e('buffer_store_dwordx4 v[%d:%d], v%d, s[4:7], s%d offen sc1' % (OP + 4, OP + 7, vO1, sT0))
        e('buffer_store_dwordx2 v[%d:%d], v%d, s[4:7], s%d offen sc1' % (OP + 8, OP + 9, vO2, sT0))
        self.stamp(6)
        self.cnt(sT1, CNT_O, sRB)
        self.signal(sT1, [C0] if o.get('o_ack', 1) else [])
        self.stamp(7)
        if not o.get('o_ack', 1): self.side_dma([C0])
        return self.maybe_stop('a')
    def gemm_bd(self, first_blk, nsteps, vs, pre_extra, valu, breg=None):
        e = self.e
        LA = self.o.get('la', 5)
        nf = nsteps * 5
        def read(n):
            i, tau = n // 5, n % 5
            return self.ring_read(AF + 4 * (n % 8), first_blk + i // 2, (i & 1) * 10240 + tau * 1024, kh=True)
        def mf(n, u):
            i, tau = n // 5, n % 5
            acc = ACC + (tau * 2 + u) * 4; a = AF + 4 * (n % 8); b = breg(i, u) if breg else (2 * i + u) * 4
            c = '0' if i == 0 else 'v[%d:%d]' % (acc, acc + 3)
            return 'v_mfma_f32_16x16x32_bf16 v[%d:%d], v[%d:%d], a[%d:%d], %s' % (acc, acc + 3, a, a + 3, b, b + 3, c)
        anchors = []; pre = {}; fixed = {}
        for n in range(nf):
            anchors += [mf(n, 0), mf(n, 1)]
            if n + LA < nf: fixed[2 * n] = [read(n + LA)]
            if n + 1 < nf: fixed[2 * n + 1] = [Need('v[%d:%d]' % (AF + 4 * ((n + 1) % 8), AF + 4 * ((n + 1) % 8) + 3))]
        nep = nsteps // 2
        for ep in range(1, nep):
            pre[20 * ep] = (self.jitter_items(80 + ep + nsteps) if ep in (1, 3, 6) else []) + list(pre_extra.get(ep, [])) + ([W_tag('blk%d' % (first_blk + ep + 1))] if ep + 1 < nep else []) + ['s_barrier']
            if self.o.get('fine') == 'd' and nsteps == 24: pre[20 * ep] += self.stamp_items(19 + ep - 1)
        for n in range(LA): e(read(n))
        stt = {}
        e.extend(schedule(anchors, 2, pre, fixed, [vs, valu], vm_gap=self.o.get('d_gap', 2), state=stt))
        if self.o.get('verbose'): print('bd forced', stt.get('forced'), 'left', len(vs.q), len(valu.q), stt.get('flist'))
        e.extend([y[0] for y in vs.q]); e.extend([y[0] for y in valu.q])
    def bd_unpack(self):
        U = 112; L = []
        for d in range(10):
            L.append('v_lshlrev_b32 v%d, 16, v%d' % (U + 2 * d, XR + d))
            L.append('v_and_b32 v%d, 0xffff0000, v%d' % (U + 2 * d + 1, XR + d))
        return L
    def bd_epilogue(self, last_blk, final):
        e = self.e
        EX = 88
        self.jitter(3 + last_blk)
        for tau in range(5):
            a = ACC + (tau * 2 + 1) * 4
            e('ds_write_b128 v%d, v[%d:%d] offset:%d' % (vEXW, a, a + 3, tau * 1024))
        e.wait_lgkm0()
        e('s_barrier')
        for tau in range(5):
            e('ds_read_b128 v[%d:%d], v%d offset:%d' % (EX + 4 * tau, EX + 4 * tau + 3, vEXR, tau * 1024))
        U = 112
        for tau in range(5):
            a = ACC + (tau * 2) * 4
            for c in range(4):
                e('v_add_f32 v%d, v%d, v%d' % (U + 4 * tau + c, U + 4 * tau + c, a + c))
        for tau in range(5):
            for c in range(4):
                e('v_add_f32 v%d, v%d, v%d' % (U + 4 * tau + c, U + 4 * tau + c, EX + 4 * tau + c))
        for d in range(10): e('v_cvt_pk_bf16_f32 v%d, v%d, v%d' % (XR + d, U + 2 * d, U + 2 * d + 1))
        final()
    def bd_stats(self, base_off, next_layer):
        e = self.e
        S, Q = 136, 137
        e('v_mov_b32 v%d, 0\nv_mov_b32 v%d, 0' % (S, Q))
        for d in range(10):
            e('v_dot2c_f32_bf16 v%d, v%d, v%d' % (S, XR + d, vONES))
            e('v_dot2c_f32_bf16 v%d, v%d, v%d' % (Q, XR + d, XR + d))
        for sw in ('v_permlane16_swap_b32', 'v_permlane32_swap_b32'):
            e('v_mov_b32 v138, v%d\nv_mov_b32 v139, v%d' % (S, Q))
            e('%s v%d, v138\n%s v%d, v139' % (sw, S, sw, Q))
            e('v_add_f32 v%d, v%d, v138\nv_add_f32 v%d, v%d, v139' % (S, S, Q, Q))
        e('s_lshl_b32 s%d, s%d, 7\ns_lshl_b32 s%d, s%d, 14\ns_add_u32 s%d, s%d, s%d' % (sT2, sTTK, sT3, sCS, sT2, sT2, sT3))
        e('s_add_u32 s%d, s%d, s%d\ns_add_u32 s%d, s%d, 0x%x' % (sT2, sT2, sLOFF, sT2, sT2, base_off + (self.lstride if next_layer else 0)))
        if not self.o.get('nostats'): e('buffer_store_dwordx2 v[%d:%d], v%d, s[4:7], s%d offen sc1' % (S, Q, vST, sT2))
    def phase_b(self):
        e = self.e
        self.cnt(sT0, CNT_O, sRB)
        for (s, tt) in ((sB0, sTTK), (sB1, sTTS)):
            e('s_mul_i32 s%d, s%d, 20\ns_mul_i32 s%d, s%d, 10\ns_add_u32 s%d, s%d, s%d\ns_lshl_b32 s%d, s%d, 10' % (s, tt, sT1, sKH, s, s, sT1, s, s))
            e('s_add_u32 s%d, s%d, s%d\ns_add_u32 s%d, s%d, 0x%x' % (s, s, sLOFF, s, s, O))
        def tok(i, u):
            s = sB0 if u == 0 else sB1
            t = sC1 + u
            g = []
            if i % 4 == 0: g.append('s_add_u32 s%d, s%d, %d' % (t, s, i * 1024))
            g.append('buffer_load_dwordx4 a[%d:%d], v%d, s[4:7], s%d offen offset:%d%s' % ((2 * i + u) * 4, (2 * i + u) * 4 + 3, vL16, t, (i % 4) * 1024, self.sc))
            return g
        e.wait_tag('blk%d' % B0); e.wait_tag('blk%d' % (B0 + 1))
        self.poll(sT0)
        e('s_barrier')
        self.stamp(8)
        NPRE = self.o.get('b_npre', 6)
        for i in range(NPRE):
            for u in range(2): e.extend(tok(i, u))
        items = [(10 * i, 0, tok(i, 0) + tok(i, 1)) for i in range(NPRE, 10)]
        for k, b in enumerate(self.C_tail): items.append((5000 + b, 20 * (k + 1), self.flat(self.dma_ops(b))))
        vs = self.vm_stream(items)
        self.gemm_bd(B0, 10, vs, {}, Stream(self.bd_unpack(), 60))
        self.stamp(9)
        def final():
            e('s_mul_i32 s%d, s%d, 20480\ns_add_u32 s%d, s%d, s%d\ns_add_u32 s%d, s%d, 0x%x' % (sT0, sTTK, sT0, sT0, sLOFF, sT0, sT0, XC))
            e('buffer_store_dwordx4 v[%d:%d], v%d, s[4:7], s%d offen sc1' % (XR, XR + 3, vX0, sT0))
            e('buffer_store_dwordx4 v[%d:%d], v%d, s[4:7], s%d offen sc1' % (XR + 4, XR + 7, vX1, sT0))
            e('buffer_store_dwordx2 v[%d:%d], v%d, s[4:7], s%d offen sc1' % (XR + 8, XR + 9, vX2, sT0))
            self.bd_stats(SC, False)
            self.cnt(sT1, CNT_XC, sRB)
            self.signal(sT1, self.C_ack)
            self.stamp(10)
            if self.o.get('ampre', 1): self.am_c()
            self.side_dma(self.C_side)
        self.bd_epilogue(B0 + 4, final)
        return self.maybe_stop('b')
    def gelu_ops(self, accset, u, c0, c1, vVE, HP, t):
        L = []
        G = [accset + (p * 2 + u) * 4 + c for p in range(2) for c in range(4)]
        U = [accset + ((2 + p) * 2 + u) * 4 + c for p in range(2) for c in range(4)]
        g = [t + i for i in range(8)]; w = [t + 8 + i for i in range(8)]
        for h in range(2):
            R = range(4 * h, 4 * h + 4)
            for i in R: L.append('v_mul_f32 v%d, v%d, v%d' % (w[i], G[i], G[i]))
            for i in R: L.append('v_fma_f32 v%d, v%d, v%d, v%d' % (w[i], w[i], c1, c0))
            for i in R: L.append('v_mul_f32 v%d, v%d, v%d' % (w[i], w[i], G[i]))
            for i in R:
                L.append('v_exp_f32 v%d, v%d' % (w[i], w[i]))
                L.append('v_mul_f32 v%d, v%d, v%d' % (g[i], G[i], U[i]))
            for i in R: L.append('v_fma_f32 v%d, v%d, v%d, v%d' % (w[i], w[i], vVE, vVE))
            for i in R: L.append('v_rcp_f32 v%d, v%d' % (w[i], w[i]))
            for i in R: L.append('v_mul_f32 v%d, v%d, v%d' % (g[i], g[i], w[i]))
            for d in (2 * h, 2 * h + 1): L.append('v_cvt_pk_bf16_f32 v%d, v%d, v%d' % (HP + d, g[2 * d], g[2 * d + 1]))
        return L
    def check_flag(self, vreg, cnt_sgpr, target=16):
        sub = Asm()
        X = self.lab('ck'); L = self.lab('ckl')
        sub('v_cmp_gt_u32 vcc, %d, v%d' % (target, vreg))
        sub('s_cbranch_vccz %s' % X)
        sub('s_cmp_lg_u32 s%d, 0' % sDEAD); sub('s_cbranch_scc1 %s' % X)
        sub('s_mov_b32 s%d, 0' % sPC)
        sub.label(L)
        sub('buffer_load_dword v%d, v%d, s[4:7], s%d offen sc1' % (vreg, vZERO, cnt_sgpr), count=False)
        sub('s_waitcnt vmcnt(0)', count=False)
        sub('v_cmp_gt_u32 vcc, %d, v%d' % (target, vreg))
        sub('s_cbranch_vccz %s' % X)
        sub('s_add_u32 s%d, s%d, 1' % (sPC, sPC)); sub('s_cmp_lt_u32 s%d, %d' % (sPC, SPIN_LIMIT))
        sub('s_cbranch_scc1 %s' % L)
        sub('s_mov_b32 s%d, 1' % sDEAD)
        sub.label(X)
        return sub.items
    def phase_c(self):
        e = self.e; o = self.o
        ST, RS, VE, BMs, AM, GT, HP = 112, (120, 121), (122, 123), (124, 132), 136, 152, (168, 172)
        GC0, GC1 = (176, 177), (178, 179)
        k0 = -2.0 * 0.7978845608028654 * LOG2E
        self.cnt(sT0, CNT_XC, sRB)
        e('s_lshl_b32 s%d, s%d, 3\ns_lshl_b32 s%d, s%d, 1\ns_add_u32 s%d, s%d, s%d' % (sT2, sRB, sT1, sW, sT2, sT2, sT1))
        e('s_lshl_b32 s%d, s%d, 7\ns_add_u32 s%d, s%d, s%d\ns_add_u32 s%d, s%d, 0x%x' % (sT1, sT2, sT1, sT1, sLOFF, sT1, sT1, SC))
        e('s_mul_i32 s%d, s%d, 20480\ns_add_u32 s%d, s%d, s%d\ns_add_u32 s%d, s%d, 0x%x' % (sB0, sT2, sB0, sB0, sLOFF, sB0, sB0, XC))
        e('s_add_u32 s%d, s%d, 20480' % (sB1, sB0))
        e('s_mul_i32 s%d, s%d, 48\ns_add_u32 s%d, s%d, s%d\ns_lshl_b32 s%d, s%d, 10' % (sTW, sT2, sTW, sTW, sJ, sTW, sTW))
        e('s_add_u32 s%d, s%d, s%d\ns_add_u32 s%d, s%d, 0x%x' % (sTW, sTW, sLOFF, sTW, sTW, HH))
        if not o.get('ampre', 1): e('s_mul_i32 s%d, s%d, %d\ns_add_u32 s%d, s%d, 0x%x' % (sT4, sJ, 12 * KB, sT4, sT4, WCM))
        self.poll(sT0)
        e('s_barrier')
        self.stamp(11)
        def tok(s, u):
            sb = sB0 if u == 0 else sB1; t = sC1 + u
            g = []
            if s % 4 == 0: g.append('s_add_u32 s%d, s%d, %d' % (t, sb, s * 1024))
            g.append('buffer_load_dwordx4 a[%d:%d], v%d, s[4:7], s%d offen offset:%d%s' % ((2 * s + u) * 4, (2 * s + u) * 4 + 3, vL16, t, (s % 4) * 1024, self.sc))
            return g
        NPRE = o.get('c_npre', 9)
        if o.get('tt', 0): e.extend(self.touch_tok(XC))
        for s in range(NPRE):
            for u in range(2): e.extend(tok(s, u))
        stld = []
        for k in range(2):
            if k: stld.append('s_add_u32 s%d, s%d, 16384' % (sT1, sT1))
            for u in range(2):
                stld.append('buffer_load_dwordx2 v[%d:%d], v%d, s[4:7], s%d offen offset:%d sc1' % (ST + 4 * u + 2 * k, ST + 4 * u + 2 * k + 1, vSC, sT1, 128 * u))
        def amload(sg):
            pre = [] if sg == 0 else ['s_add_u32 s%d, s%d, 4096' % (sT4, sT4)]
            return pre + ['buffer_load_dwordx4 v[%d:%d], v%d, s[4:7], s%d offen offset:%d' % (AM + 4 * t, AM + 4 * t + 3, vL16, sT4, t * 1024) for t in range(4)]
        st = []
        for u in range(2):
            b = ST + 4 * u
            st += ['v_add_f32 v%d, v%d, v%d' % (b, b, b + 2), 'v_add_f32 v%d, v%d, v%d' % (b + 1, b + 1, b + 3)]
            for sw in ('v_permlane16_swap_b32', 'v_permlane32_swap_b32'):
                st += ['v_mov_b32 v%d, v%d' % (b + 2, b), 'v_mov_b32 v%d, v%d' % (b + 3, b + 1),
                       '%s v%d, v%d' % (sw, b, b + 2), '%s v%d, v%d' % (sw, b + 1, b + 3),
                       'v_add_f32 v%d, v%d, v%d' % (b, b, b + 2), 'v_add_f32 v%d, v%d, v%d' % (b + 1, b + 1, b + 3)]
            st += self.rowstat_finish(b, b + 1, RS[u], VE[u], BMs[u], b + 2)
            st += ['v_mul_f32 v%d, %s, v%d' % (GC0[u], f32bits(k0), RS[u]),
                   'v_mul_f32 v%d, v%d, v%d' % (GC1[u], RS[u], RS[u]),
                   'v_mul_f32 v%d, v%d, v%d' % (GC1[u], GC1[u], GC0[u]),
                   'v_mul_f32 v%d, %s, v%d' % (GC1[u], f32bits(0.044715), GC1[u])]
        LA = self.o.get('la', 5)
        def read(n): return self.ring_read(AF + 4 * (n % 8), C0 + n // 20, (n % 20) * 1024)
        def mf(n, u):
            sg, r = n // 80, n % 80; s, tl = r // 4, r % 4
            acc = ACC + 32 * (sg & 1) + (tl * 2 + u) * 4; a = AF + 4 * (n % 8); b = (2 * s + u) * 4
            c = '0' if s == 0 else 'v[%d:%d]' % (acc, acc + 3)
            return 'v_mfma_f32_16x16x32_bf16 v[%d:%d], v[%d:%d], a[%d:%d], %s' % (acc, acc + 3, a, a + 3, b, b + 3, c)
        def mean(sg):
            L = []
            for tl in range(4):
                for u in range(2):
                    acc = ACC + 32 * (sg & 1) + (tl * 2 + u) * 4
                    L.append('v_mfma_f32_16x16x32_bf16 v[%d:%d], v[%d:%d], v[%d:%d], v[%d:%d]' % (acc, acc + 3, AM + 4 * tl, AM + 4 * tl + 3, BMs[u], BMs[u] + 3, acc, acc + 3))
            return L
        def gelu_store(sg):
            L = []
            for u in range(2):
                L += self.gelu_ops(ACC + 32 * (sg & 1), u, GC0[u], GC1[u], VE[u], HP[u], GT)
                L.append('s_add_u32 s%d, s%d, %d' % (sT5, sTW, u * 48 * 1024 + sg * 16 * 1024))
                L.append(('buffer_store_dwordx4 v[%d:%d], v%d, s[4:7], s%d offen sc1' % (HP[u], HP[u] + 3, vL16, sT5), 'h%d' % sg))
            return L
        def ix(n): return 2 * n + 8 * (n // 80)
        items = [(ix(4 * s), 0, tok(s, 0) + tok(s, 1)) for s in range(NPRE, 20)]
        for b in self.C_in:
            dl = ix(20 * (b - C0 - 1)) - (8 if (b - C0 - 1) % 4 == 0 and b > C0 + 1 else 0)
            items.append((dl, 0, self.flat(self.dma_ops(b)), dl - o.get('c_lead', 40)))
        r8 = o.get('ring8', 1)
        last_in = o.get('c_lastblk', D0 + 4 if r8 else D0 + 3)
        for b in range(C0 + 6, last_in + 1):
            free = 20 * (b - C0 - 5)
            if r8 and b >= D0: free = o.get('c_x0', 100) + 20 * (b - D0) if b < D0 + 2 else 20 * (b - 20)
            epn = b - C0 - 1
            dl = ix(20 * epn) - (8 if epn % 4 == 0 else 0) if b < D0 else 100000 + b
            early = ix(free) - (8 if free % 80 == 0 else 0)
            key = max(early, ix(76)) + (0 if b < D0 else 1)
            items.append((dl, early, self.flat(self.dma_ops(b)), key))
        if not o.get('ampre', 1): items.append((ix(60), 0, amload(0)))
        if o.get('tw', 0): items.append((ix(90), ix(84), self.touch_w('D')))
        items.append((ix(o.get('c_stdl', 44)), 0, stld))
        items.append((ix(150), ix(80), amload(1), ix(80)))
        items.append((ix(230), ix(160), amload(2), ix(160)))
        self.cnt(sT0, CNT_H, sRB, mul=384)
        FL, CKC = o.get('c_fl', 190), o.get('c_ck', 206)
        items.append((ix(CKC) - 1, ix(FL), ['buffer_load_dword v%d, v%d, s[4:7], s%d offen sc1' % (vPOLL, vZERO, sT0)], ix(FL)))
        dtoks = [self.d_tok(i, u) for i in range(8) for u in range(2)]
        for k, g in enumerate(dtoks): items.append((90000 + k, ix(CKC), g, ix(CKC) + 0.01 * k))
        vs = self.vm_stream(items)
        e.wait_tag('blk%d' % C0); e.wait_tag('blk%d' % (C0 + 1))
        e('s_barrier')
        for n in range(LA): e(read(n))
        pos = 0; cstate = {}
        for sg in range(3):
            anchors = []; pre = {}; fixed = {}
            if sg > 0: anchors += mean(sg - 1)
            for n in range(80 * sg, 80 * sg + 80):
                assert pos + len(anchors) == ix(n)
                anchors += [mf(n, 0), mf(n, 1)]
                if n + LA < 240: fixed[ix(n)] = [read(n + LA)]
                if n + 1 < 240: fixed[ix(n) + 1] = [Need('v[%d:%d]' % (AF + 4 * ((n + 1) % 8), AF + 4 * ((n + 1) % 8) + 3))]
            for ep in range(4 * sg, 4 * sg + 4):
                if ep == 0: continue
                at = ix(20 * ep) - (8 if ep % 4 == 0 else 0)
                p = [W_tag('blk%d' % (C0 + ep + 1))] if ep < 11 else []
                if ep == o.get('h0ep', 9): p.append(W_tag('h0'))
                if ep in (2, 5, 6, 9, 10): p += self.jitter_items(50 + ep)
                p.append('s_barrier')
                if self.o.get('fine') == 'c': p += self.stamp_items(19 + ep - 1)
                if ep == o.get('h0ep', 9):
                    sub = Main(None, self.o); sub.nlab = self.nlab + 1000
                    sub.signal_only(sT0)
                    p += sub.e.items
                pre[at] = p
            if sg == 2:
                sub = Main(None, self.o); sub.nlab = self.nlab + 4000
                sub.d_bases()
                pre[ix(CKC)] = pre.get(ix(CKC), []) + [W_vreg(vPOLL)] + self.check_flag(vPOLL, sT0) + sub.e.items
            valu = Stream(st, ix(o.get('c_stv', 56))) if sg == 0 else Stream(gelu_store(sg - 1), pos + 10)
            order = [valu, vs] if (sg == 2 and o.get('h1early', 0) == 2) else [vs, valu]
            e.extend(schedule(anchors, 2, pre, fixed, order, start=pos, vm_gap=(o.get('c_gap', 4) if sg == 0 else o.get('c_gap2', 4)), state=cstate))
            e.extend([y[0] for y in valu.q])
            pos += len(anchors)
        if self.o.get('verbose'): print('c forced', cstate.get('forced'), 'left', len(vs.q))
        self.stamp(12)
        self.jitter(70)
        tail = mean(2) + gelu_store(2)
        left = [y[0] for y in vs.q]; del vs.q[:]
        nvm = max(1, sum(1 for x in left if is_vm(x)))
        step = max(1, (len(tail) - 8) // (nvm + 1))
        H1 = o.get('h1early', 0)
        first_store = next(n for n, x in enumerate(tail) if is_vm(x))
        if H1 == 2:
            e.wait_tag('h1')
            e('s_barrier')
            self.cnt(sT2, CNT_H, sRB, mul=384, add=128)
            self.signal_only(sT2)
        for n, x in enumerate(tail):
            if left and n % step == 0:
                while left:
                    y = left.pop(0); e.extend([y])
                    if is_vm(y): break
            e.extend([x])
            if H1 == 1 and n == first_store:
                e.wait_tag('h1')
                e('s_barrier')
                self.cnt(sT2, CNT_H, sRB, mul=384, add=128)
                self.signal_only(sT2)
        e.extend(left)
        if H1: e('buffer_load_dword v%d, v%d, s[4:7], s%d offen sc1' % (vT1, vZERO, sT2))
        self.cnt(sT1, CNT_H, sRB, mul=384, add=256)
        self.signal(sT1)
        self.stamp(13)
        self.c_last = last_in
        return self.maybe_stop('c')
    def d_bases(self):
        e = self.e
        for (s, tt) in ((sB0, sTTK), (sB1, sTTS)):
            e('s_mul_i32 s%d, s%d, 48\ns_add_u32 s%d, s%d, s%d\ns_lshl_b32 s%d, s%d, 10' % (s, tt, s, s, sKH, s, s))
            e('s_add_u32 s%d, s%d, s%d\ns_add_u32 s%d, s%d, 0x%x' % (s, s, sLOFF, s, s, HH))
    def d_tok(self, i, u):
        sg, jj = i // 8, i % 8
        s = sB0 if u == 0 else sB1; t = sC1 + u
        g = []
        if jj % 2 == 0: g.append('s_add_u32 s%d, s%d, %d' % (t, s, sg * 16384 + jj * 2048))
        r = self.d_reg(i, u)
        g.append('buffer_load_dwordx4 a[%d:%d], v%d, s[4:7], s%d offen offset:%d%s' % (r, r + 3, vL16, t, (jj % 2) * 2048, self.sc))
        return g
    def d_reg(self, i, u):
        return 160 + (2 * i + u) * 4 if i < 8 else (2 * (i - 8) + u) * 4
    def phase_d(self):
        e = self.e; o = self.o
        tok = self.d_tok
        self.stamp(14)
        H1 = o.get('h1early', 0)
        CK = o.get('d_ck', 5 if H1 else 3)
        items = []
        r8 = o.get('ring8', 1); nfree = 8 if r8 else 6
        assert not (r8 and self.A_tail)
        if H1:
            e.extend(self.check_flag(vT1, sT2))
            for b in range(self.c_last + 1, D0 + nfree): items.append((20 * (b - D0 - 1), 0, self.flat(self.dma_ops(b)), 20 * (b - D0 - 1) - 25))
            for b in range(D0 + nfree, NBLK):
                early = 20 * (b - D0 - nfree + 1)
                items.append((20 * (b - D0 - 1), early, self.flat(self.dma_ops(b)), max(early, 20 * (b - D0 - 1) - 65)))
            fl = 20 * CK - o.get('d_fl', 16)
            items.append((20 * CK - 1, fl, ['buffer_load_dword v%d, v%d, s[4:7], s%d offen sc1' % (vPOLL, vZERO, sT1)], fl))
            items += [(10 * i, 0, tok(i, 0) + tok(i, 1), 10 * i - 80) for i in range(8, 16)]
            items += [(10 * i, 20 * CK, tok(i, 0) + tok(i, 1), 20 * CK + i - 16) for i in range(16, 24)]
        else:
            if o.get('d_plan', 0):
                t = 0
                for b in range(self.c_last + 1, D0 + nfree):
                    items.append((20 * (b - D0 - 1), 0, self.flat(self.dma_ops(b)), t)); t += 10
                for b in range(D0 + nfree, NBLK):
                    early = 20 * (b - D0 - nfree + 1)
                    key = max(early, t) if early < 20 * CK else 20 * (b - D0 - 1)
                    if early < 20 * CK: t = key + 10
                    items.append((20 * (b - D0 - 1), early, self.flat(self.dma_ops(b)), key))
                fl = 20 * CK - o.get('d_fl', 30)
                items.append((20 * CK - 1, fl, ['buffer_load_dword v%d, v%d, s[4:7], s%d offen sc1' % (vPOLL, vZERO, sT1)], fl - 0.5))
            else:
                for b in range(self.c_last + 1, D0 + nfree): items.append((20 * (b - D0 - 1), 0, self.flat(self.dma_ops(b)), b - 200))
                for b in range(D0 + nfree, NBLK):
                    early = 20 * (b - D0 - nfree + 1)
                    key = (b - 200) if early < 20 * CK else 20 * (b - D0 - 1)
                    items.append((20 * (b - D0 - 1), early, self.flat(self.dma_ops(b)), key))
                items.append((20 * CK - 1, 20 * CK - o.get('d_fl', 30), ['buffer_load_dword v%d, v%d, s[4:7], s%d offen sc1' % (vPOLL, vZERO, sT1)], -1))
            items += [(10 * i, 20 * CK, tok(i, 0) + tok(i, 1)) for i in range(8, 24)]
        if o.get('tw', 0): items.append((30, 0, self.touch_w('A'), -500))
        for b in self.A_tail: items.append((5000 + b, 20 * (6 + b), self.flat(self.dma_ops(b))))
        chk = [W_vreg(vPOLL)] + self.check_flag(vPOLL, sT1)
        self.gemm_bd(D0, 24, self.vm_stream(items), {CK: chk}, Stream(self.bd_unpack(), 200), self.d_reg)
        self.stamp(17)
        def final():
            L = self.lab('d_last'); X = self.lab('d_done')
            e('s_cmp_lg_u32 s%d, 0' % sL); e('s_cbranch_scc1 %s' % L)
            e('s_lshr_b32 s%d, s%d, 1\ns_mul_i32 s%d, s%d, 40960\ns_add_u32 s%d, s%d, s%d\ns_add_u32 s%d, s%d, 0x%x' % (sT0, sTTK, sT0, sT0, sT0, sT0, sLOFF, sT0, sT0, XA + self.lstride))
            e('buffer_store_dwordx4 v[%d:%d], v%d, s[4:7], s%d offen sc1' % (XR, XR + 3, vY0, sT0))
            e('buffer_store_dwordx4 v[%d:%d], v%d, s[4:7], s%d offen sc1' % (XR + 4, XR + 7, vY1, sT0))
            e('buffer_store_dwordx2 v[%d:%d], v%d, s[4:7], s%d offen sc1' % (XR + 8, XR + 9, vY2, sT0))
            self.bd_stats(SA, True)
            self.cnt(sT1, CNT_XA, sRB, next_layer=True)
            self.signal(sT1, self.A_ack)
            self.stamp(18)
            if self.o.get('ampre_a', 0): self.am_a()
            self.side_dma(self.A_side)
            e('s_branch %s' % X)
            e.label(L)
            e('s_mul_i32 s%d, s%d, 20480\ns_mul_i32 s%d, s%d, 160\ns_add_u32 s%d, s%d, s%d' % (sT0, sTTK, sT1, sCS, sT0, sT0, sT1))
            e('buffer_store_dwordx4 v[%d:%d], v%d, s[12:15], s%d offen' % (XR, XR + 3, vR0, sT0))
            e('buffer_store_dwordx4 v[%d:%d], v%d, s[12:15], s%d offen offset:64' % (XR + 4, XR + 7, vR0, sT0))
            e('buffer_store_dwordx2 v[%d:%d], v%d, s[12:15], s%d offen' % (XR + 8, XR + 9, vR2, sT0))
            self.stamp(18)
            self.stamp_flush()
            e('s_endpgm')
            e.label(X)
        self.bd_epilogue(D0 + 11, final)
        return self.maybe_stop('d')
    def build(self):
        e = self.e
        self.prologue()
        if self.o.get('align'): e.directive('.p2align %d' % self.o['align'])
        e.label('M_LAYER')
        for _ in range(self.o.get('shift', 0)): e('s_nop 0')
        done = self.phase_a() or self.phase_b() or self.phase_c() or self.phase_d()
        if not done:
            e('s_add_u32 s%d, s%d, 1\ns_add_u32 s%d, s%d, 0x%x\ns_add_u32 s%d, s%d, 0x%x' % (sL, sL, sLOFF, sLOFF, self.lstride, sCNT, sCNT, CSTRIDE))
            e('s_branch M_LAYER')
        e.label('M_END')
        e('s_endpgm')
        e.label('M_CODE_END')
        if self.o.get('dual'):
            out = []; inloop = False
            for I in e.items:
                out.append(I)
                if I.kind == 'label' and I.txt.startswith('M_LAYER'): inloop = True
                if inloop and I.kind == 'vm' and I.op.startswith('buffer_store') and I.txt.endswith(' sc1') and 's[4:7]' in I.txt:
                    if self.o['dual'] == 1 and ('v%d,' % vPS1 in I.txt or 'v%d,' % vPS2 in I.txt): continue
                    J = parse(I.txt[:-4], I.tag); J.count = I.count
                    out.append(J)
            e.items = out
        return e
```

```python
import sys
sys.path.insert(0, 'gen')
import gen_p0, gen_main
from layout import *

HEADER = open('interleave_layers__linear_kernel_hedgehog__geglu_ffn__prompt.s.ref').read().split('; Override launch geometry')[0]

DOC = """; Generated by gen/gen.py (hand-written emitter; see gen/gen_p0.py, gen/gen_main.py, gen/layout.py).
"""

def build(stop=None, opts=None):
    opts = opts or {}
    if opts.get('merged', 0):
        m = gen_main.Main(stop, opts).build(); t1 = m.finish()
        src = HEADER
        src += '; One persistent launch: operand re-layout, then both layers, with hand-offs between workgroups through counters.\n'
        src += '; @launch grid=(256,1,1) block=(256,1,1) lds=%d\n' % gen_main.LDS_TOTAL
        src += '.amdgcn_target "amdgcn-amd-amdhsa--gfx950"\n' + t1
        src += '.section .rodata,"a"\n.p2align 6\n' + gen_p0.descriptor(gen_main.KNAME, 512, 256, 102)
        return src, m, m
    p0 = gen_p0.gen_p0(bool(opts.get('p0stamps')), {0: '', 1: ' sc1', 2: ' nt', 3: ' sc0 sc1'}[opts.get('p0sc', 0)], opts.get('codepf', 1), opts.get('onlycrit', 0), opts.get('remap', 1), opts.get('earlyj', 1)); t0 = p0.finish()
    m = gen_main.Main(stop, opts).build(); t1 = m.finish()
    src = HEADER
    src += DOC
    src += '; @launch kernel=%s grid=(%d,1,1) block=(256,1,1) lds=%d\n' % (gen_p0.NAME, gen_p0.P0_GRID, gen_p0.P0_LDS)
    for _ in range(opts.get('empty', 0)):
        src += '; @launch kernel=nop_kernel grid=(1,1,1) block=(64,1,1) lds=0\n'
    src += '; @launch kernel=%s grid=(256,1,1) block=(256,1,1) lds=%d\n' % (gen_main.NAME, gen_main.LDS_TOTAL)
    src += '.amdgcn_target "amdgcn-amd-amdhsa--gfx950"\n' + t0 + t1
    if opts.get('empty'):
        src += '.text\n.globl nop_kernel\n.p2align 8\n.type nop_kernel,@function\nnop_kernel:\n  s_endpgm\n'
    src += '.section .rodata,"a"\n.p2align 6\n' + gen_p0.descriptor(gen_p0.NAME, 128, 128)
    if opts.get('empty'):
        src += '.p2align 6\n' + gen_p0.descriptor('nop_kernel', 32, 32)
    src += '.p2align 6\n' + gen_p0.descriptor(gen_main.NAME, 512, 256)
    return src, p0, m

if __name__ == '__main__':
    out = sys.argv[1]; stop = sys.argv[2] if len(sys.argv) > 2 and sys.argv[2] != 'none' else None
    opts = {}
    for a in sys.argv[3:]:
        k, _, v = a.partition('=')
        opts[k] = int(v) if v.lstrip('-').isdigit() else (v or 1)
    src, p0, m = build(stop, opts)
    open(out, 'w').write(src)
    print('p0', p0.stats()); print('main', m.stats())
```
